```python
import torch

def _softmax(x, axis=-1):
    return torch.softmax(x, dim=axis)
def _gelu(x):
    return torch.nn.functional.gelu(x, approximate="tanh")
def _silu(x):
    return torch.nn.functional.silu(x)
def _sigmoid(x):
    return torch.sigmoid(x)
def _layernorm(x, axis=-1, eps=1e-5):
    m = x.mean(dim=axis, keepdim=True)
    v = x.var(dim=axis, keepdim=True, unbiased=False)
    return (x - m) / torch.sqrt(v + eps)
def _scatter_add(tgt, idx, src, axis=0):
    return tgt.clone().index_add_(axis, idx, src)
def _segment_sum(src, seg, n):
    out = torch.zeros((n,) + src.shape[1:], dtype=src.dtype)
    return out.index_add_(0, seg, src)
def _pad(x, pw):
    flat = tuple(v for pair in reversed(pw) for v in pair)
    return torch.nn.functional.pad(x, flat)

kernel_name = 'recurrent_scan__grouped_kv_mqa__geglu_ffn__prompt'

def setup_inputs():

    _w = (lambda a: (lambda t: t.to(torch.bfloat16) if t.is_floating_point() else t)(torch.as_tensor(a)))
    def _A_setup():
        B, S, D, H = 1, 2048, 512, 32
        Dh = D // H
        return {
            "x": _w((lambda *s: torch.randn(*s, dtype=torch.bfloat16) * 0.05)(B, S, D)),
            "wq": _w((lambda *s: torch.randn(*s, dtype=torch.bfloat16) * 0.05)(D, H * Dh)),
            "wk": _w((lambda *s: torch.randn(*s, dtype=torch.bfloat16) * 0.05)(D, Dh)),
            "wv": _w((lambda *s: torch.randn(*s, dtype=torch.bfloat16) * 0.05)(D, Dh)),
            "wo": _w((lambda *s: torch.randn(*s, dtype=torch.bfloat16) * 0.05)(H * Dh, D)),
        }
    _A_in = _A_setup()

    def _B_setup():
        B, S, D, F = 1, 2048, 512, 1376
        return {
            "x": _w((lambda *s: torch.randn(*s, dtype=torch.bfloat16) * 0.05)(B, S, D)),
            "w_gate": _w((lambda *s: torch.randn(*s, dtype=torch.bfloat16) * 0.05)(D, F)),
            "w_up": _w((lambda *s: torch.randn(*s, dtype=torch.bfloat16) * 0.05)(D, F)),
            "w_down": _w((lambda *s: torch.randn(*s, dtype=torch.bfloat16) * 0.05)(F, D)),
        }
    _B_in = _B_setup()

    return {
        "A_x": _A_in["x"],
        "A_wq": _A_in["wq"],
        "A_wk": _A_in["wk"],
        "A_wv": _A_in["wv"],
        "A_wo": _A_in["wo"],
        "B_x": _B_in["x"],
        "B_w_gate": _B_in["w_gate"],
        "B_w_up": _B_in["w_up"],
        "B_w_down": _B_in["w_down"],
    }

def reference(A_x, A_wq, A_wk, A_wv, A_wo, B_x, B_w_gate, B_w_up, B_w_down):
    def _A_ref(x, wq, wk, wv, wo):
        B, S, D = x.shape
        H = 32
        Dh = D // H
        q = (lambda x, *d: x.permute(*d))((x @ wq).reshape(B, S, H, Dh), 0, 2, 1, 3)
        k = x @ wk
        v = x @ wv
        scores = torch.einsum("bhqd,bkd->bhqk", q, k) * (Dh ** -0.5)
        p = _softmax(scores, axis=-1)
        o = torch.einsum("bhqk,bkd->bhqd", p, v)
        return (lambda x, *d: x.permute(*d))(o, 0, 2, 1, 3).reshape(B, S, H * Dh) @ wo

    def _B_ref(x, w_gate, w_up, w_down):
        return (_gelu(x @ w_gate) * (x @ w_up)) @ w_down

    x = A_x
    xn = _layernorm(x, axis=-1)
    s = _A_ref(xn, A_wq, A_wk, A_wv, A_wo)
    g = _silu(_B_ref(xn, B_w_gate, B_w_up, B_w_down))
    return x + s * g
```

```python
class MB:
    def __init__(self):
        self.out=[]; self.kernels=[]; self.hdr=['.amdgcn_target "amdgcn-amd-amdhsa--gfx950"']; self.cfg=[]
    def emit(self,s): self.out.append(s)
    def kernel(self,name, body_fn, nw, iters=200, nvgpr=128, nagpr=0, setup=None, grid=256, lds=0, init=0x3c003c00):
        emit=self.emit
        self.kernels.append((name,nvgpr,nagpr))
        self.cfg.append(f"{name}:{grid}:{nw*64}:{lds}")
        emit(f".text\n.globl {name}\n.p2align 8\n.type {name},@function\n{name}:")
        emit("  s_load_dwordx2 s[4:5], s[0:1], 0\n  s_load_dwordx2 s[6:7], s[0:1], 8")
        emit("  v_lshrrev_b32 v1, 6, v0\n  s_nop 0\n  v_readfirstlane_b32 s20, v1")
        for r in range(2,nvgpr): emit(f"  v_mov_b32 v{r}, {init:#x}")
        for r in range(nagpr): emit(f"  v_accvgpr_write_b32 a{r}, v2")
        emit("  s_waitcnt lgkmcnt(0)")
        emit("  s_mov_b32 s24, s4\n  s_mov_b32 s25, s5\n  s_mov_b32 s26, 0x4000000\n  s_mov_b32 s27, 0x20000")
        if setup: setup()
        emit("  s_barrier")
        emit("  s_memtime s[8:9]\n  s_memrealtime s[10:11]\n  s_waitcnt lgkmcnt(0)")
        emit(f"  s_mov_b32 s16, {iters}")
        body_fn(name)
        emit("  s_waitcnt vmcnt(0) lgkmcnt(0)\n  s_nop 15\n s_nop 15")
        emit("  s_memtime s[12:13]\n  s_memrealtime s[14:15]\n  s_waitcnt lgkmcnt(0)")
        emit("  s_sub_u32 s12, s12, s8\n  s_sub_u32 s14, s14, s10")
        emit(f"  s_mul_i32 s17, s2, {nw}\n  s_add_u32 s17, s17, s20\n  s_lshl_b32 s17, s17, 3")
        emit("  v_mov_b32 v2, s12\n  v_mov_b32 v3, s14\n  v_mov_b32 v4, s17")
        emit("  v_and_b32 v5, 63, v0\n  v_cmp_eq_u32 vcc, 0, v5\n  s_and_saveexec_b64 s[18:19], vcc")
        emit("  global_store_dwordx2 v4, v[2:3], s[6:7]\n  s_waitcnt vmcnt(0)\n  s_endpgm")
    def loop(self,name, body, tag=""):
        self.emit(f".p2align 3\nL_{name}{tag}:")
        for b in body: self.emit("  "+b)
        self.emit(f"  s_sub_u32 s16, s16, 1\n  s_cmp_lg_u32 s16, 0\n  s_cbranch_scc1 L_{name}{tag}")
    def simple(self,body):
        return lambda name: self.loop(name, body)
    def role(self,bodyA, bodyB, itB, nA=4):
        def f(name):
            self.emit(f"  s_cmp_ge_u32 s20, {nA}\n  s_cbranch_scc1 LB_{name}")
            self.loop(name, bodyA, "a")
            self.emit(f"  s_branch LE_{name}")
            self.emit(f"LB_{name}:\n  s_mov_b32 s16, {itB}")
            self.loop(name, bodyB, "b")
            self.emit(f"LE_{name}:")
        return f
    def write(self,base):
        emit=self.emit
        emit('.section .rodata,"a"')
        for n,v,a in self.kernels:
            emit(f".p2align 6\n.amdhsa_kernel {n}\n  .amdhsa_next_free_vgpr {v+a}\n  .amdhsa_next_free_sgpr 48\n  .amdhsa_accum_offset {v}\n  .amdhsa_kernarg_size 16\n  .amdhsa_user_sgpr_count 2\n  .amdhsa_user_sgpr_kernarg_segment_ptr 1\n  .amdhsa_system_sgpr_workgroup_id_x 1\n.end_amdhsa_kernel")
        emit(".amdgpu_metadata\n---\namdhsa.version: [1, 2]\namdhsa.kernels:")
        for n,v,a in self.kernels:
            emit(f"  - .name: {n}\n    .symbol: {n}.kd\n    .kernarg_segment_size: 16\n    .kernarg_segment_align: 8\n    .group_segment_fixed_size: 0\n    .private_segment_fixed_size: 0\n    .wavefront_size: 64\n    .sgpr_count: 48\n    .vgpr_count: {v+a}\n    .max_flat_workgroup_size: 1024\n    .args:\n      - {{.name: kernargs, .size: 16, .offset: 0, .value_kind: by_value}}")
        emit("...\n.end_amdgpu_metadata")
        open(base+".s","w").write("\n".join(self.hdr+self.out)+"\n")
        open(base+".args","w").write(" ".join(self.cfg))
```

```python
from mbgen import MB
m=MB()
def line(body):
    def f(name):
        for b in body: m.emit("  "+b)
    return f
ex=[f"v_exp_f32 v{16+(i%32)}, v{48+(i%32)}" for i in range(2048)]
fm=[f"v_fma_f32 v{16+(i%32)}, v{48+(i%32)}, v8, v9" for i in range(2048)]
for nw in (4,8):
    m.kernel(f"sl_exp_w{nw}", line(ex), nw, nvgpr=96)
    m.kernel(f"sl_fma_w{nw}", line(fm), nw, nvgpr=96)
m.kernel("evict", line([f"v_fma_f32 v{16+(i%32)}, v{48+(i%32)}, v8, v9" for i in range(20000)]), 1, nvgpr=96)
m.cfg.pop()
m.write("mb7")
```

```python
import sys, struct
NAME = "recurrent_scan__grouped_kv_mqa__geglu_ffn__prompt"
PROF = "--prof" in sys.argv
OUT = [a for a in sys.argv[1:] if not a.startswith("--")]
OUT = OUT[0] if OUT else f"cdna_kernels/{NAME}.s"

L = []
def e(s):
    for ln in s.split("\n"):
        if not ln.strip(): continue
        L.append(("    " + ln.strip()) if not ln.strip().endswith(":") else ln.strip())
def f2u(x): return struct.unpack("<I", struct.pack("<f", x))[0]
def vr(a, n): return f"v[{a}:{a+n-1}]"
def sr(a, n): return f"s[{a}:{a+n-1}]"

KVT = 2080
KVIMG = 0
HIMG = 135168
OIMG = HIMG + 64*88*1024
PROFO = OIMG + 64*32*1024
WS_BYTES = PROFO + 256*8*16*8
CNT_KV = 0
CNT_H = 64
CNT_O = 128
STG = 45056
XOFF, GOFF, UOFF, QOFF = 0, 16384, 28672, 40960
STGK, QOFFK, NBK = 24832, 20736, 5
QIMG = 135168
STATM = 160768
CSUM = 162816
MRX = 159744
ZERO = 163712
FLAG = 163776
LDS_BYTES = 163840
SX, SWQ, SWK, SWV, SWO, SWG, SWD, SOUT, SDBG, SWS = 4, 8, 12, 16, 20, 24, 28, 32, 36, 40
sI, sJ, sW, sW4 = 44, 45, 46, 47
sXo, sWo, sQo, sLb = 48, 49, 50, 51
sMx, sMw, sMq = 52, 53, 54
sSt, sDl, sT0, sT1, sT2, sT3 = 55, 56, 57, 58, 59, 60
sTB, sCS, sRetry, sRb = 61, 62, 63, 3
sEx = 88
sTm = 90
sPo = 92
sC0, sC1, sC2, sC3 = 94, 95, 96, 97
sOp = 98
TOUCH = "--notouch" not in sys.argv
vLane, vH, vT0, vT1, vT2, vT3 = 1, 2, 3, 4, 5, 6
vXa0, vXa1, vWa0, vWa1, vWa2, vQa = 7, 8, 9, 10, 11, 12
vRX = 13
vRW, vRQ = 17, 18
vSel = 20
vCs = 24
vF = 32
vAcc = 64
vSt = 128
vPoll = 19

nstamp = [0]
def stamp(k):
    if not PROF: return
    e(f"""s_memtime s[{sTm}:{sTm+1}]
    s_waitcnt lgkmcnt(0)
    v_mov_b32 v0, s{sTm}
    buffer_store_dword v0, off, {sr(SWS,4)}, s{sPo} offset:{4*k}""")

def tick(acc):
    if not PROF: return "s_nop 0" if False else ""
    r = f"s_memtime s[{sTm}:{sTm+1}]\ns_waitcnt lgkmcnt(0)\n"
    if acc is not None: r += f"s_sub_u32 s99, s{sTm}, s99\ns_add_u32 s{acc}, s{acc}, s99\n"
    return r + f"s_mov_b32 s99, s{sTm}"

def interleave(main, fill):
    out = []; n = len(main); m = len(fill); k = 0
    for i, a in enumerate(main):
        out.append(a)
        t = (m * (i + 1)) // n
        out += fill[k:t]; k = t
    return out

def mfma(d, a, b, c=None):
    c = vr(d, 16) if c is None else c
    return f"v_mfma_f32_32x32x16_bf16 {vr(d,16)}, {vr(a,4)}, {vr(b,4)}, {c}"
def mfma16(d, a, b): return f"v_mfma_f32_16x16x32_bf16 {vr(d,4)}, {vr(a,4)}, {vr(b,4)}, {vr(d,4)}"
def smf(d, a, b, idx): return f"v_smfmac_f32_32x32x32_bf16 {vr(d,16)}, {vr(a,4)}, {vr(b,8)}, v{idx}"

def poll(cnt_off_sreg_or_imm, target, tag):
    e(f"v_mov_b32 v{vT0}, {cnt_off_sreg_or_imm}")
    e(f"s_mov_b32 s{sT0}, 0")
    e(f"""Lpoll_{tag}:
    buffer_load_dword v{vT1}, v{vT0}, {sr(SDBG,4)}, 0 offen sc1
    s_waitcnt vmcnt(0)
    v_readfirstlane_b32 s{sT1}, v{vT1}
    s_add_u32 s{sT0}, s{sT0}, 1
    s_cmp_ge_u32 s{sT1}, {target}
    s_cbranch_scc1 Lpolld_{tag}
    s_cmp_ge_u32 s{sT0}, 100000
    s_cbranch_scc1 Lpolld_{tag}
    s_sleep 6
    s_branch Lpoll_{tag}
    Lpolld_{tag}:""")

def signal(cnt_off, tag):
    e(f"""s_cmp_lg_u32 s{sW}, 0
    s_cbranch_scc1 Lsig_{tag}
    v_mov_b32 v{vT0}, {cnt_off}
    v_mov_b32 v{vT1}, 1
    s_mov_b64 exec, 1
    buffer_atomic_add v{vT1}, v{vT0}, {sr(SDBG,4)}, 0 offen sc1
    s_mov_b64 exec, -1
    Lsig_{tag}:""")

hdr = open(f"cdna_kernels/{NAME}.s.ref").read().split("\n")
hdr = [h for h in hdr[:15] if h.startswith(";") and "@launch" not in h]
L += hdr
L.append(f"; @launch grid=(256,1,1) block=(512,1,1) lds={LDS_BYTES}")
L += ['.amdgcn_target "amdgcn-amd-amdhsa--gfx950"', ".text", f".globl {NAME}_kernel", ".p2align 8",
      f".type {NAME}_kernel,@function"]
e(f"{NAME}_kernel:")
e(f"""s_cmp_ge_u32 s2, 256
s_cbranch_scc1 Lend
s_load_dwordx16 s[64:79], s[0:1], 0
s_load_dwordx8 s[80:87], s[0:1], 64
v_and_b32 v{vLane}, 63, v0
v_lshrrev_b32 v{vT0}, 6, v0
v_lshrrev_b32 v{vH}, 5, v{vLane}
v_readfirstlane_b32 s{sW}, v{vT0}
s_and_b32 s{sT0}, s2, 7
s_lshr_b32 s{sT1}, s2, 3
s_and_b32 s{sI}, s{sT0}, 1
s_lshl_b32 s{sI}, s{sI}, 3
s_and_b32 s{sT2}, s{sT1}, 7
s_add_u32 s{sI}, s{sI}, s{sT2}
s_lshr_b32 s{sJ}, s{sT0}, 1
s_lshl_b32 s{sJ}, s{sJ}, 2
s_lshr_b32 s{sT3}, s{sT1}, 3
s_add_u32 s{sJ}, s{sJ}, s{sT3}
s_and_b32 s{sTB}, s{sT0}, 3
s_lshl_b32 s{sTB}, s{sTB}, 3
s_add_u32 s{sTB}, s{sTB}, s{sT2}
s_lshr_b32 s{sCS}, s{sT0}, 2
s_lshl_b32 s{sCS}, s{sCS}, 2
s_add_u32 s{sCS}, s{sCS}, s{sT3}
s_and_b32 s{sW4}, s{sW}, 3""")
e(f"""v_lshrrev_b32 v{vT0}, 3, v{vLane}
v_lshlrev_b32 v{vT0}, 10, v{vT0}
v_and_b32 v{vT1}, 7, v{vLane}
v_lshrrev_b32 v{vT2}, 4, v{vLane}
v_xor_b32 v{vT1}, v{vT1}, v{vT2}
v_lshl_add_u32 v{vXa0}, v{vT1}, 4, v{vT0}
v_xor_b32 v{vXa1}, 64, v{vXa0}
v_add_u32 v{vXa1}, {8192-1024}, v{vXa1}""")
for k, r in enumerate((vWa0, vWa1, vWa2)):
    e(f"""v_add_u32 v{vT0}, {64*k}, v{vLane}
    v_mul_u32_u24 v{vT1}, 43691, v{vT0}
    v_lshrrev_b32 v{vT1}, 19, v{vT1}
    v_mul_u32_u24 v{vT2}, 12, v{vT1}
    v_sub_u32 v{vT0}, v{vT0}, v{vT2}
    v_mul_u32_u24 v{vT1}, 2752, v{vT1}
    v_lshl_add_u32 v{r}, v{vT0}, 4, v{vT1}""")
    if k: e(f"v_subrev_u32 v{r}, {1024*k}, v{r}")
e(f"""v_lshrrev_b32 v{vT0}, 2, v{vLane}
v_lshlrev_b32 v{vT0}, 10, v{vT0}
v_and_b32 v{vT1}, 3, v{vLane}
v_lshl_add_u32 v{vQa}, v{vT1}, 4, v{vT0}""")
e(f"""s_lshl_b32 s{sXo}, s{sI}, 17
s_lshl_b32 s{sT0}, s{sW}, 14
s_add_u32 s{sXo}, s{sXo}, s{sT0}
s_mul_i32 s{sT0}, s{sJ}, 96
s_min_u32 s{sT0}, s{sT0}, 1280
s_lshl_b32 s{sT0}, s{sT0}, 1
s_mul_i32 s{sWo}, s{sW4}, {16*2752}
s_add_u32 s{sWo}, s{sWo}, s{sT0}
s_lshl_b32 s{sQo}, s{sW4}, 14
s_lshl_b32 s{sT0}, s{sJ}, 6
s_add_u32 s{sQo}, s{sQo}, s{sT0}
s_lshl_b32 s{sMx}, s{sW}, 11
s_mul_i32 s{sMw}, s{sW}, 3072
s_add_u32 s{sMw}, s{sMw}, {GOFF}
s_lshl_b32 s{sMq}, s{sW4}, 10
s_add_u32 s{sMq}, s{sMq}, {QOFF}
s_mov_b32 s{sLb}, 0
s_mov_b32 s{sRetry}, 0
s_mov_b32 s{sC3}, {(-2*STG) & 0xffffffff}
s_waitcnt lgkmcnt(0)""")
def srd(d, p, nbytes):
    e(f"s_mov_b32 s{d}, s{p}\ns_mov_b32 s{d+1}, s{p+1}\ns_mov_b32 s{d+2}, {nbytes}\ns_mov_b32 s{d+3}, 0x20000")
srd(SX, 64, 2048*1024); srd(SWQ, 66, 512*1024)
e(f"s_cmp_ge_u32 s{sW}, 4\ns_cselect_b32 s{SWG}, s78, s76\ns_cselect_b32 s{SWG+1}, s79, s77\ns_mov_b32 s{SWG+2}, {512*2752}\ns_mov_b32 s{SWG+3}, 0x20000")
srd(SWS, 86, WS_BYTES)
srd(SWK, 68, 16384); srd(SWV, 70, 16384); srd(SWO, 72, 512*1024)
srd(SWD, 80, 1376*1024); srd(SOUT, 82, 2048*1024); srd(SDBG, 84, 256)
if PROF:
    e(f"s_lshl_b32 s{sPo}, s2, 3\ns_add_u32 s{sPo}, s{sPo}, s{sW}\ns_lshl_b32 s{sPo}, s{sPo}, 6\ns_add_u32 s{sPo}, s{sPo}, {PROFO}")
stamp(0)
if PROF: e("s_mov_b32 s100, 0\ns_mov_b32 s101, 0")
e(f"""s_cmp_lg_u32 s{sJ}, 15
s_cbranch_scc1 Lnotkv0
s_cmp_ge_u32 s{sW}, 6
s_cselect_b32 s{SWG}, s68, s70
s_cselect_b32 s{SWG+1}, s69, s71
s_mov_b32 s{SWG+2}, 16384
s_cselect_b32 s{sT0}, 128, 0
s_lshl_b32 s{sMw}, s{sW4}, 10
s_add_u32 s{sMw}, s{sMw}, s{sT0}
s_add_u32 s{sMw}, s{sMw}, {GOFF}
s_and_b32 s{sWo}, s{sW}, 1
s_lshl_b32 s{sWo}, s{sWo}, 10
v_lshlrev_b32 v{vWa0}, 4, v{vLane}
s_sub_u32 s{sMq}, s{sMq}, {QOFF-QOFFK}
s_mov_b32 s{sC3}, {(-(NBK-1)*STGK) & 0xffffffff}
Lnotkv0:""")

def dma_groups(kind):
    gx = [f"s_add_u32 m0, s{sLb}, s{sMx}", "s_nop 0",
          f"buffer_load_dwordx4 v{vXa0}, {sr(SX,4)}, s{sXo} offen lds"]
    gx2 = [f"buffer_load_dwordx4 v{vXa1}, {sr(SX,4)}, s{sXo} offen offset:1024 lds", f"s_add_u32 s{sXo}, s{sXo}, 128"]
    w0 = [f"s_add_u32 m0, s{sLb}, s{sMw}", "s_nop 0", f"buffer_load_dwordx4 v{vWa0}, {sr(SWG,4)}, s{sWo} offen lds"]
    w1 = [f"buffer_load_dwordx4 v{vWa1}, {sr(SWG,4)}, s{sWo} offen offset:1024 lds"]
    w2 = [f"buffer_load_dwordx4 v{vWa2}, {sr(SWG,4)}, s{sWo} offen offset:2048 lds", f"s_add_u32 s{sWo}, s{sWo}, {64*2752}"]
    q = [f"s_add_u32 m0, s{sLb}, s{sMq}", "s_nop 0", f"buffer_load_dwordx4 v{vQa}, {sr(SWQ,4)}, s{sQo} offen lds",
         f"s_add_u32 s{sQo}, s{sQo}, 65536"]
    stg, nb = (STGK, NBK) if kind[-1] == "K" else (STG, 3)
    adv = [f"s_add_u32 s{sLb}, s{sLb}, {stg}", f"s_cmp_ge_u32 s{sLb}, {nb*stg}", f"s_cselect_b32 s{sLb}, 0, s{sLb}"]
    if kind == "L": return [gx+gx2, w0+w1, w2, q+adv]
    if kind == "H": return [gx+gx2, w0, w1, w2+adv]
    if kind == "HK": return [gx, gx2, w0+[f"s_add_u32 s{sWo}, s{sWo}, 2048"], adv]
    if kind == "LK": return [gx, gx2, q, adv]
def dma_stage(kind): return sum(dma_groups(kind), [])
NDMA = {"L": 6, "H": 5, "LK": 3, "HK": 3}
NX = {"L": 1+TOUCH, "H": 1+TOUCH, "LK": 1, "HK": 1}

e(f"""s_cmp_eq_u32 s{sJ}, 15
s_cbranch_scc1 Lkvcu
s_cmp_ge_u32 s{sW}, 4
s_cbranch_scc1 LproH""")

def common_init(kind):
    e(f"""v_and_b32 v{vT0}, 31, v{vLane}
    v_lshrrev_b32 v{vT1}, 1, v{vT0}
    v_and_b32 v{vT1}, 7, v{vT1}
    v_xor_b32 v{vT1}, v{vT1}, v{vH}
    v_lshlrev_b32 v{vT0}, 7, v{vT0}""")
    if kind == "L": e(f"s_and_b32 s{sT0}, s{sW}, 1\ns_lshl_b32 s{sT0}, s{sT0}, 13")
    else: e(f"s_lshl_b32 s{sT0}, s{sW4}, 12")
    e(f"v_add_u32 v{vT0}, s{sT0}, v{vT0}")
    for ks in range(4):
        e(f"v_xor_b32 v{vT2}, {2*ks}, v{vT1}\nv_lshl_add_u32 v{vRX+ks}, v{vT2}, 4, v{vT0}")
    e(f"""v_bfe_u32 v{vT0}, v{vLane}, 2, 2
    v_lshl_add_u32 v{vT0}, v{vH}, 3, v{vT0}
    v_bfe_u32 v{vT1}, v{vLane}, 4, 1
    v_and_b32 v{vT2}, 3, v{vLane}
    v_lshlrev_b32 v{vT2}, 3, v{vT2}
    v_lshl_add_u32 v{vT3}, v{vT1}, 5, v{vT2}
    v_lshl_add_u32 v{vRQ}, v{vT0}, 6, v{vT3}""")
    if kind == "LK": pass
    elif kind == "HK":
        e(f"""v_mul_u32_u24 v{vT1}, {2048+128}, v{vT1}
        v_lshl_add_u32 v{vRW}, v{vT0}, 5, v{vT2}
        v_add_u32 v{vRW}, v{vRW}, v{vT1}""")
    else:
        e(f"v_mul_u32_u24 v{vRW}, 192, v{vT0}\nv_add_u32 v{vRW}, v{vRW}, v{vT3}")
        if kind == "L": e(f"s_lshr_b32 s{sT0}, s{sW}, 1\ns_lshl_b32 s{sT0}, s{sT0}, 6\nv_add_u32 v{vRW}, s{sT0}, v{vRW}")
        else: e(f"v_add_u32 v{vRW}, 128, v{vRW}")
    e(f"""v_bfe_u32 v{vT0}, v{vLane}, 4, 1
    v_and_b32 v{vT1}, 1, v{vLane}
    v_cmp_eq_u32 vcc, v{vT0}, v{vT1}
    v_mov_b32 v{vT2}, 0x3f803f80
    s_nop 0
    v_cndmask_b32 v{vSel}, 0, v{vT2}, vcc""")
    for k in range(1, 4): e(f"v_mov_b32 v{vSel+k}, v{vSel}")
    for r in list(range(vCs, vCs+8)) + list(range(vF+16, vF+32)) + list(range(vAcc, vAcc+64)) + list(range(vSt, vSt+4)):
        e(f"v_mov_b32 v{r}, 0")

def stats_ops(x, regs=range(4)):
    r = []
    for k in regs:
        lo, hi = vSt+4+2*(k & 1), vSt+5+2*(k & 1)
        r += [f"v_lshlrev_b32 v{lo}, 16, v{x+k}", f"v_and_b32 v{hi}, 0xffff0000, v{x+k}",
              f"v_add_f32 v{vSt}, v{vSt}, v{lo}", f"v_add_f32 v{vSt+1}, v{vSt+1}, v{hi}",
              f"v_fmac_f32 v{vSt+2}, v{lo}, v{lo}", f"v_fmac_f32 v{vSt+3}, v{hi}, v{hi}"]
    return r

def tr(d, a, off): return [f"ds_read_b64_tr_b16 {vr(d,2)}, v{a} offset:{off}"]
def p1_reads(kind, ks, F):
    if kind == "L":
        return [f"ds_read_b128 {vr(F,4)}, v{vRX+ks}"] + tr(F+8, vRW, GOFF+(16*ks)*192) + tr(F+10, vRW, GOFF+(16*ks+4)*192) + \
               tr(F+12, vRW, UOFF+(16*ks)*192) + tr(F+14, vRW, UOFF+(16*ks+4)*192) + \
               [f"ds_read_b128 {vr(F+4,4)}, v{vRX+ks} offset:4096"]
    if kind == "H":
        return [f"ds_read_b128 {vr(F,4)}, v{vRX+ks}"] + tr(F+4, vRQ, QOFF+(16*ks)*64) + tr(F+6, vRQ, QOFF+(16*ks+4)*64) + \
               tr(F+8, vRW, GOFF+(16*ks)*192) + tr(F+10, vRW, GOFF+(16*ks+4)*192) + \
               tr(F+12, vRW, UOFF+(16*ks)*192) + tr(F+14, vRW, UOFF+(16*ks+4)*192)
    if kind == "HK":
        return [f"ds_read_b128 {vr(F,4)}, v{vRX+ks}"] + tr(F+8, vRW, GOFF+(16*ks)*32) + tr(F+10, vRW, GOFF+(16*ks+4)*32)
    if kind == "LK":
        return [f"ds_read_b128 {vr(F,4)}, v{vRX+ks}"] + tr(F+4, vRQ, QOFFK+(16*ks)*64) + tr(F+6, vRQ, QOFFK+(16*ks+4)*64)
def p1_comp(kind, var, F):
    if kind == "L":
        m = [mfma(vAcc, F+8, F), mfma(vAcc+16, F+12, F), mfma16(vCs, F+8+4*(var & 1), vSel), mfma(vAcc+32, F+8, F+4), mfma(vAcc+48, F+12, F+4)]
        return m, stats_ops(F+4*(var >> 1), (2, 3))
    if kind == "H":
        m = [mfma(vAcc, F+4, F), mfma(vAcc+16, F+8, F), mfma(vAcc+32, F+12, F)]
        if var < 3: m.insert(1, mfma16(vCs, F+4+4*var, vSel))
        return m, stats_ops(F, (0, 1))
    if kind == "HK":
        return [mfma(vAcc+16, F+8, F), mfma16(vCs, F+8, vSel), mfma(vAcc+32, F, F+8)], stats_ops(F, (0, 1))
    if kind == "LK":
        return [mfma(vAcc, F+4, F), mfma16(vCs, F+4, vSel)], stats_ops(F, (2, 3))

def p1_loop(kind, var, done_label):
    tag = f"{kind}{var}"
    n = NDMA[kind]
    dg = dma_groups(kind)
    kv = kind[-1] == "K"
    stg, nb = (STGK, NBK) if kv else (STG, 3)
    LA = nb - 1
    e(f"s_mov_b32 s{sSt}, 0\ns_mov_b32 s{sRb}, 0\ns_mov_b64 vcc, -1\ns_waitcnt vmcnt({(LA-1)*n+NX[kind]})\ns_barrier")
    stamp(12)
    e(f".p2align 3\nLp1_{tag}:")
    for ks in range(4):
        Fn = vF + 16*(ks & 1); Fc = vF + 16*((ks+1) & 1)
        rd = p1_reads(kind, ks, Fn)
        m, va = p1_comp(kind, var, Fc)
        if ks: e("s_waitcnt lgkmcnt(0)")
        d = ["\n".join([f"s_cbranch_vccz Lnd{ks}_{tag}"] + dg[ks] + [f"Lnd{ks}_{tag}:"])]
        h = (len(rd)+1)//2
        if len(m) >= 3:
            seq = [m[0]] + rd[:h] + [m[1]] + rd[h:] + interleave(m[2:], va) + d
        else:
            seq = [m[0]] + rd + va[:6] + [m[1]] + va[6:] + d
        for x in seq: e(x)
    e(f"s_add_u32 s{sRb}, s{sRb}, 1\ns_cmp_eq_u32 s{sRb}, {nb}\ns_cselect_b32 s{sDl}, s{sC3}, {stg}\ns_cselect_b32 s{sRb}, 0, s{sRb}")
    for r in list(range(vRX, vRX+4)) + ([vRW] if kind != "LK" else []) + ([vRQ] if kind in ("H", "LK") else []):
        e(f"v_add_u32 v{r}, s{sDl}, v{r}")
    e(f"""s_add_u32 s{sSt}, s{sSt}, 1
    s_cmp_lt_u32 s{sSt}, {8-LA}
    s_cselect_b64 vcc, -1, 0
    s_waitcnt lgkmcnt(0)
    {tick(None)}
    s_cmp_gt_u32 s{sSt}, {8-LA}
    s_cbranch_scc1 Lp1w_{tag}
    s_waitcnt vmcnt({(LA-1)*n})
    {tick(100)}
    s_barrier
    {tick(101)}
    s_branch Lp1_{tag}
    Lp1w_{tag}:
    s_cmp_eq_u32 s{sSt}, 8
    s_cbranch_scc1 Lp1d_{tag}""")
    for st in range(9-LA, 7):
        e(f"s_waitcnt vmcnt({(7-st)*n})\ns_cmp_eq_u32 s{sSt}, {st}\ns_cbranch_scc1 Lp1x_{tag}")
    e(f"s_waitcnt vmcnt(0)\nLp1x_{tag}:\n{tick(100)}\ns_barrier\n{tick(101)}")
    e(f"s_branch Lp1_{tag}\nLp1d_{tag}:")
    if kind == "H":
        e(f"v_mov_b32 v{vPoll}, {CNT_KV}\nbuffer_load_dword v{vPoll}, v{vPoll}, {sr(SDBG,4)}, 0 offen sc1")
    m, va = p1_comp(kind, var, vF+16)
    for x in interleave(m, va): e(x)
    if PROF:
        e(f"v_mov_b32 v0, s100\nbuffer_store_dword v0, off, {sr(SWS,4)}, s{sPo} offset:56\ns_nop 1\nv_mov_b32 v0, s101\nbuffer_store_dword v0, off, {sr(SWS,4)}, s{sPo} offset:60")
    e(f"s_branch {done_label}")

def o_prod_off(dst):
    e(f"""s_lshl_b32 s{sT0}, s{sI}, 2
    s_lshr_b32 s{sT1}, s{sW}, 1
    s_add_u32 s{sT0}, s{sT0}, s{sT1}
    s_lshl_b32 s{sT0}, s{sT0}, 5
    s_lshl_b32 s{sT1}, s{sJ}, 1
    s_and_b32 s{dst}, s{sW}, 1
    s_add_u32 s{sT1}, s{sT1}, s{dst}
    s_lshr_b32 s{dst}, s{sT1}, 2
    s_add_u32 s{sT0}, s{sT0}, s{dst}
    s_and_b32 s{sT1}, s{sT1}, 3
    s_lshl_b32 s{sT1}, s{sT1}, 3
    s_add_u32 s{sT0}, s{sT0}, s{sT1}
    s_lshl_b32 s{sT0}, s{sT0}, 10
    s_add_u32 s{dst}, s{sT0}, {OIMG}""")

def prologue(kind):
    nb = NBK if kind[-1] == "K" else 3
    for _ in range(nb-1):
        for x in dma_stage(kind): e(x)
    common_init(kind)
    o_prod_off(sOp)
    for r in range(4): e(f"v_mov_b32 v{vF+r}, -1")
    e(f"v_lshlrev_b32 v{vT0}, 4, v{vLane}\nbuffer_store_dwordx4 {vr(vF,4)}, v{vT0}, {sr(SWS,4)}, s{sOp} offen sc1")
    if kind in ("L", "H") and TOUCH: touch(kind)

def touch(kind):
    t = f"Lt{kind}"
    e(f"s_and_b32 s{sT2}, s{sI}, 7\ns_lshl_b32 s{sT2}, s{sT2}, 5\ns_add_u32 s{sT2}, s{sT2}, 256")
    for v in range(1, 4): e(f"s_cmp_eq_u32 s{sW4}, {v}\ns_cbranch_scc1 {t}{v}")
    e(f"""v_lshrrev_b32 v{vT0}, 1, v{vLane}
    v_mul_u32_u24 v{vT0}, 2752, v{vT0}
    v_and_b32 v{vT1}, 1, v{vLane}
    v_lshl_add_u32 v{vT0}, v{vT1}, 7, v{vT0}
    s_mul_i32 s{sT0}, s{sJ}, 96
    s_min_u32 s{sT0}, s{sT0}, 1280
    s_lshl_b32 s{sT0}, s{sT0}, 1
    s_mul_i32 s{sT2}, s{sT2}, 2752
    s_add_u32 s{sT0}, s{sT0}, s{sT2}
    buffer_load_dword v{vPoll}, v{vT0}, {sr(SWG,4)}, s{sT0} offen
    s_branch {t}e""")
    if kind == "L":
        e(f"""{t}1:
        v_and_b32 v{vT0}, 31, v{vLane}
        v_lshlrev_b32 v{vT0}, 10, v{vT0}
        s_lshl_b32 s{sT2}, s{sT2}, 10
        s_lshl_b32 s{sT0}, s{sJ}, 6
        s_add_u32 s{sT0}, s{sT0}, s{sT2}
        buffer_load_dword v{vPoll}, v{vT0}, {sr(SWQ,4)}, s{sT0} offen
        s_branch {t}e
        {t}2:
        {t}3:
        v_lshrrev_b32 v{vT0}, 2, v{vLane}
        v_lshlrev_b32 v{vT0}, 10, v{vT0}
        v_and_b32 v{vT1}, 3, v{vLane}
        v_lshl_add_u32 v{vT0}, v{vT1}, 7, v{vT0}
        s_lshl_b32 s{sT0}, s{sI}, 17
        s_and_b32 s{sT1}, s{sJ}, 3
        s_lshl_b32 s{sT1}, s{sT1}, 15
        s_add_u32 s{sT0}, s{sT0}, s{sT1}
        s_and_b32 s{sT1}, s{sW}, 1
        s_lshl_b32 s{sT1}, s{sT1}, 14
        s_add_u32 s{sT0}, s{sT0}, s{sT1}
        buffer_load_dword v{vPoll}, v{vT0}, {sr(SX,4)}, s{sT0} offen offset:512""")
    else:
        e(f"""{t}1:
        v_lshlrev_b32 v{vT0}, 15, v{vLane}
        buffer_load_dword v{vPoll}, v{vT0}, {sr(SWD,4)}, 0 offen
        s_branch {t}e
        {t}2:
        v_lshlrev_b32 v{vT0}, 15, v{vLane}
        buffer_load_dword v{vPoll}, v{vT0}, {sr(SWO,4)}, 0 offen
        s_branch {t}e
        {t}3:
        v_lshlrev_b32 v{vT0}, 17, v{vLane}
        buffer_load_dword v{vPoll}, v{vT0}, {sr(SWS,4)}, 0 offen""")
    e(f"{t}e:")

def cs_write(acc, slot_expr_sreg):
    e(f"""v_and_b32 v{vT0}, 1, v{vLane}
    v_lshlrev_b32 v{vT0}, 6, v{vT0}
    v_lshrrev_b32 v{vT1}, 4, v{vLane}
    v_lshl_add_u32 v{vT0}, v{vT1}, 4, v{vT0}
    v_add_u32 v{vT0}, {slot_expr_sreg}, v{vT0}
    ds_write_b128 v{vT0}, {vr(acc,4)}""")

def stats_post(tile_sreg, part):
    e(f"""v_add_f32 v{vSt}, v{vSt}, v{vSt+1}
    v_add_f32 v{vSt+2}, v{vSt+2}, v{vSt+3}
    v_mov_b32 v{vSt+1}, v{vSt}
    v_mov_b32 v{vSt+3}, v{vSt+2}
    v_and_b32 v{vT0}, 31, v{vLane}
    s_lshl_b32 s{sT0}, s{tile_sreg}, 7
    v_permlane32_swap_b32 v{vSt}, v{vSt+1}
    v_permlane32_swap_b32 v{vSt+2}, v{vSt+3}
    s_add_u32 s{sT0}, s{sT0}, {STATM+1024*part}
    v_lshl_add_u32 v{vT0}, v{vT0}, 2, s{sT0}
    v_add_f32 v{vSt}, v{vSt}, v{vSt+1}
    v_add_f32 v{vSt+2}, v{vSt+2}, v{vSt+3}
    ds_write_b32 v{vT0}, v{vSt}
    ds_write_b32 v{vT0}, v{vSt+2} offset:512""")
def stats_read(d, addr, off):
    e(f"ds_read2st64_b32 {vr(d,2)}, v{addr} offset0:0 offset1:2" if off == 0 else f"ds_read2_b32 {vr(d,2)}, v{addr} offset0:{off//4} offset1:{(off+512)//4}")
    e(f"ds_read_b32 v{d+2}, v{addr} offset:{off+1024}\nds_read_b32 v{d+3}, v{addr} offset:{off+1536}")
def stats_fin(d, m, r):
    e(f"""v_add_f32 v{d}, v{d}, v{d+2}
    v_add_f32 v{d+1}, v{d+1}, v{d+3}
    v_mul_f32 v{m}, {f2u(1/512):#x}, v{d}
    v_mul_f32 v{d+1}, {f2u(1/512):#x}, v{d+1}
    v_fma_f32 v{d+1}, -v{m}, v{m}, v{d+1}
    v_max_f32 v{d+1}, 0, v{d+1}
    v_add_f32 v{d+1}, {f2u(1e-5):#x}, v{d+1}
    v_rsq_f32 v{r}, v{d+1}
    s_nop 0""")

C1 = -2*0.7978845608028654*1.4426950408889634
C3 = C1*0.044715
def gelu_consts(m, r, d):
    e(f"""v_sub_f32 v{d}, 0, v{m}
    v_mul_f32 v{d+3}, v{r}, v{r}
    v_mul_f32 v{d+1}, {f2u(C1):#x}, v{r}
    v_mul_f32 v{d+2}, {f2u(C3):#x}, v{r}
    v_mul_f32 v{d+2}, v{d+2}, v{d+3}
    v_rcp_f32 v{d+3}, v{d+3}""")
def bc(reg, pos, n):
    base = reg & ~1
    return vr(base, 2), reg & 1
def pk(op, d, srcs, neg=None):
    ops = []; lo = []; hi = []
    for t, r in srcs:
        if t == 'p': ops.append(vr(r, 2)); lo.append(0); hi.append(1)
        else: ops.append(vr(r & ~1, 2)); lo.append(r & 1); hi.append(r & 1)
    return f"{op} {vr(d,2)}, {', '.join(ops)} op_sel:[{','.join(map(str,lo))}] op_sel_hi:[{','.join(map(str,hi))}]"
def gelu_tile(g, u, csg, csu, k, tmp):
    for p in range(0, 16, 2):
        e(pk("v_pk_fma_f32", g+p, [('b', k), ('p', csg+p), ('p', g+p)]))
        e(pk("v_pk_fma_f32", u+p, [('b', k), ('p', csu+p), ('p', u+p)]))
    for p in range(0, 16, 2):
        e(pk("v_pk_mul_f32", tmp+p, [('p', g+p), ('p', g+p)]))
    for p in range(0, 16, 2):
        e(pk("v_pk_fma_f32", tmp+p, [('p', tmp+p), ('b', k+2), ('b', k+1)]))
    for p in range(0, 16, 2):
        e(pk("v_pk_mul_f32", tmp+p, [('p', tmp+p), ('p', g+p)]))
    for p in range(16): e(f"v_exp_f32 v{tmp+p}, v{tmp+p}")
    for p in range(0, 16, 2):
        e(pk("v_pk_mul_f32", u+p, [('p', u+p), ('p', g+p)]))
    for p in range(0, 16, 2):
        e(pk("v_pk_fma_f32", tmp+p, [('p', tmp+p), ('b', k+3), ('b', k+3)]))
    for p in range(16): e(f"v_rcp_f32 v{tmp+p}, v{tmp+p}")
    e("s_nop 0")
    for p in range(0, 16, 2):
        e(pk("v_pk_mul_f32", u+p, [('p', u+p), ('p', tmp+p)]))
    for p in range(8): e(f"v_cvt_pk_bf16_f32 v{g+p}, v{u+2*p}, v{u+2*p+1}")

def cs_read(d, slot_off):
    for q in range(4): e(f"ds_read_b128 {vr(d+4*q,4)}, v{vT3} offset:{slot_off+32*q}")

def lin_fold(acc, cs, negm, scale, n=16):
    for p in range(0, n, 2):
        e(pk("v_pk_fma_f32", acc+p, [('b', negm), ('p', cs+p), ('p', acc+p)]))
    for p in range(0, n, 2):
        e(pk("v_pk_mul_f32", acc+p, [('p', acc+p), ('b', scale)]))

def q_epilogue(cs):
    e(f"v_mul_f32 v{vSt+2}, {f2u(0.25*1.4426950408889634):#x}, v{vSt+1}")
    lin_fold(vAcc, cs, vSt+4, vSt+2)
    for p in range(8): e(f"v_cvt_pk_bf16_f32 v{vAcc+p}, v{vAcc+2*p}, v{vAcc+2*p+1}")
    e(f"""s_lshl_b32 s{sT0}, s{sW4}, 11
    s_add_u32 s{sT0}, s{sT0}, {QIMG}
    v_lshl_add_u32 v{vT0}, v{vLane}, 4, s{sT0}
    ds_write_b128 v{vT0}, {vr(vAcc,4)}
    ds_write_b128 v{vT0}, {vr(vAcc+4,4)} offset:1024""")

def h_off(dst, tile_add_sreg, unit_add):
    e(f"""s_lshl_b32 s{sT0}, s{sI}, 2
    s_add_u32 s{sT0}, s{sT0}, s{tile_add_sreg}
    s_mul_i32 s{sT0}, s{sT0}, 88
    s_mul_i32 s{sT1}, s{sJ}, 6
    s_min_u32 s{sT1}, s{sT1}, 80
    s_add_u32 s{sT1}, s{sT1}, {unit_add}
    s_lshr_b32 s{dst}, s{sT1}, 2
    s_add_u32 s{sT0}, s{sT0}, s{dst}
    s_and_b32 s{sT1}, s{sT1}, 3
    s_mul_i32 s{sT1}, s{sT1}, 22
    s_add_u32 s{sT0}, s{sT0}, s{sT1}
    s_lshl_b32 s{sT0}, s{sT0}, 10
    s_add_u32 s{dst}, s{sT0}, {HIMG}""")
def h_store(acc, so):
    e(f"buffer_store_dwordx4 {vr(acc,4)}, v{vT2}, {sr(SWS,4)}, s{so} offen sc1")
    e(f"s_add_u32 s{so}, s{so}, {22*1024}")
    e(f"buffer_store_dwordx4 {vr(acc+4,4)}, v{vT2}, {sr(SWS,4)}, s{so} offen sc1")
def kv_dma(tag):
    e(f"""s_lshl_b32 s{sT0}, s{sW4}, 10
    v_lshlrev_b32 v{vT0}, 4, v{vLane}
    Lkvd_{tag}:
    s_mov_b32 m0, s{sT0}
    s_nop 0
    buffer_load_dwordx4 v{vT0}, {sr(SWS,4)}, s{sT0} offen sc1 lds
    s_add_u32 s{sT0}, s{sT0}, 4096
    s_cmp_lt_u32 s{sT0}, {36*1024}
    s_cbranch_scc1 Lkvd_{tag}""")

prologue("L")
for v in range(1, 4): e(f"s_cmp_eq_u32 s{sW}, {v}\ns_cbranch_scc1 LL{v}")
for v in range(4):
    e(f"LL{v}:")
    p1_loop("L", v, "LepiL")
e("LepiL:")
stamp(1)
e(f"s_and_b32 s{sT2}, s{sW}, 1\ns_lshl_b32 s{sT2}, s{sT2}, 1\ns_lshr_b32 s{sT3}, s{sW}, 1\ns_add_u32 s{sT2}, s{sT2}, s{sT3}")
stats_post(sT2, 1)
e(f"s_lshl_b32 s{sT1}, s{sW}, 7\ns_add_u32 s{sT1}, s{sT1}, {CSUM+128}")
cs_write(vCs, f"s{sT1}")
e(f"""s_lshr_b32 s{sT0}, s{sW}, 1
s_lshl_b32 s{sT0}, s{sT0}, 8
s_add_u32 s{sT0}, s{sT0}, {CSUM+128}
v_lshl_add_u32 v{vT3}, v{vH}, 4, s{sT0}
s_and_b32 s{sT1}, s{sW}, 1
s_lshl_b32 s{sT1}, s{sT1}, 8
s_add_u32 s{sT1}, s{sT1}, {STATM}
v_and_b32 v{vT0}, 31, v{vLane}
v_lshl_add_u32 v{vT0}, v{vT0}, 2, s{sT1}
s_waitcnt lgkmcnt(0)
s_barrier""")
stats_read(vSt+12, vT0, 0); stats_read(vSt+16, vT0, 128)
cs_read(vF, 0); cs_read(vF+16, 128)
e(f"s_and_b32 s{sT3}, s{sW}, 1\ns_lshl_b32 s{sT3}, s{sT3}, 1\ns_and_b32 s{sC0}, s{sW}, 2")
h_off(sT2, sT3, f"s{sC0}")
e(f"s_add_u32 s{sT3}, s{sT2}, {88*1024}\nv_lshlrev_b32 v{vT2}, 4, v{vLane}\ns_waitcnt lgkmcnt(0)")
stats_fin(vSt+12, vSt, vSt+1); stats_fin(vSt+16, vSt+2, vSt+3)
gelu_consts(vSt, vSt+1, vSt+4); gelu_consts(vSt+2, vSt+3, vSt+8)
for tt in range(2):
    gelu_tile(vAcc+32*tt, vAcc+32*tt+16, vF, vF+16, vSt+4+4*tt, vSt+12)
    h_store(vAcc+32*tt, sT2 if tt == 0 else sT3)
e("s_branch Lp2")

e("LproH:")
prologue("H")
for v in range(1, 4): e(f"s_cmp_eq_u32 s{sW4}, {v}\ns_cbranch_scc1 LH{v}")
for v in range(4):
    e(f"LH{v}:")
    p1_loop("H", v, "LepiH")
e("LepiH:")
stamp(1)
stats_post(sW4, 0)
e(f"v_mov_b32 v{vT2}, v{vT0}")
e(f"""s_cmp_eq_u32 s{sW4}, 3
s_cbranch_scc1 LHnocs
s_add_u32 s{sT1}, s{sW4}, 4
s_cmp_eq_u32 s{sW4}, 0
s_cselect_b32 s{sT1}, 0, s{sT1}
s_lshl_b32 s{sT1}, s{sT1}, 7
s_add_u32 s{sT1}, s{sT1}, {CSUM}""")
cs_write(vCs, f"s{sT1}")
e(f"""LHnocs:
v_mov_b32 v{vT3}, {CSUM}
v_lshl_add_u32 v{vT3}, v{vH}, 4, v{vT3}
s_waitcnt lgkmcnt(0)
s_barrier""")
stats_read(vSt+12, vT2, 0)
cs_read(vAcc+48, 0); cs_read(vF, 5*128); cs_read(vF+16, 6*128)
h_off(sT2, sW4, 4)
e(f"v_lshlrev_b32 v{vT2}, 4, v{vLane}\ns_waitcnt lgkmcnt(0)")
stats_fin(vSt+12, vSt, vSt+1)
gelu_consts(vSt, vSt+1, vSt+4)
q_epilogue(vAcc+48)
e(f"s_waitcnt vmcnt(0)\nv_readfirstlane_b32 s{sRetry}, v{vPoll}\ns_cmp_lt_u32 s{sRetry}, 16\ns_cbranch_scc1 LHnodma")
kv_dma("a")
e("LHnodma:")
stamp(13)
gelu_tile(vAcc+16, vAcc+32, vF, vF+16, vSt+4, vSt+12)
h_store(vAcc+16, sT2)
e(f"s_cmp_lt_u32 s{sRetry}, 16\ns_cbranch_scc1 Lkvwait\ns_waitcnt vmcnt(2)\ns_branch Lp2")

e("Lkvcu:")
e(f"s_cmp_ge_u32 s{sW}, 4\ns_cbranch_scc1 LproHK")
prologue("LK")
p1_loop("LK", 0, "LepiLK")
e("LepiLK:")
stamp(1)
stats_post(sW4, 1)
e(f"v_subrev_u32 v{vT2}, 1024, v{vT0}")
cs_write(vCs, f"{CSUM}")
e(f"v_mov_b32 v{vT3}, {CSUM}\nv_lshl_add_u32 v{vT3}, v{vH}, 4, v{vT3}\ns_waitcnt lgkmcnt(0)\ns_barrier")
stats_read(vSt+12, vT2, 0)
cs_read(vAcc+48, 0)
e("s_waitcnt lgkmcnt(0)")
stats_fin(vSt+12, vSt, vSt+1)
e(f"v_sub_f32 v{vSt+4}, 0, v{vSt}")
q_epilogue(vAcc+48)
e("s_barrier")
signal(CNT_KV, "kv")
e("s_branch Lp2")
e("LproHK:")
prologue("HK")
p1_loop("HK", 0, "LepiHK")
e("LepiHK:")
stamp(1)
stats_post(sW4, 0)
e(f"v_mov_b32 v{vT2}, v{vT0}")
cs_write(vCs, f"{CSUM+128}")
e(f"v_mov_b32 v{vT3}, {CSUM}\nv_lshl_add_u32 v{vT3}, v{vH}, 4, v{vT3}\ns_waitcnt lgkmcnt(0)\ns_barrier")
stats_read(vSt+20, vT2, 0)
e(f"ds_read_b128 {vr(vSt+12,4)}, v{vT3} offset:{128+64}\nds_read_b128 {vr(vSt+16,4)}, v{vT3} offset:{128+96}")
e(f"""v_and_b32 v{vT0}, 31, v{vLane}
v_lshlrev_b32 v{vT0}, 2, v{vT0}
v_add_u32 v{vT1}, {CSUM+128}, v{vT0}
ds_read_b32 v{vSt+6}, v{vT1}
s_lshl_b32 s{sT0}, s{sW4}, 8
s_add_u32 s{sT0}, s{sT0}, {MRX}
v_add_u32 v{vT1}, s{sT0}, v{vT0}
v_lshl_add_u32 v{vT0}, v{vH}, 4, s{sT0}
s_waitcnt lgkmcnt(0)""")
stats_fin(vSt+20, vSt, vSt+1)
e(f"ds_write_b32 v{vT1}, v{vSt}\nds_write_b32 v{vT1}, v{vSt+1} offset:128\ns_waitcnt lgkmcnt(0)")
for q in range(4):
    e(f"ds_read_b128 {vr(vF+4*q,4)}, v{vT0} offset:{32*q}\nds_read_b128 {vr(vF+16+4*q,4)}, v{vT0} offset:{128+32*q}")
e(f"v_sub_f32 v{vSt+4}, 0, v{vSt}\nv_sub_f32 v{vSt+6}, 0, v{vSt+6}")
lin_fold(vAcc+24, vSt+12, vSt+4, vSt+1, 8)
for p in range(4): e(f"v_cvt_pk_bf16_f32 v{vAcc+16+p}, v{vAcc+24+2*p}, v{vAcc+25+2*p}")
e(f"""v_and_b32 v{vT0}, 0x33, v{vLane}
v_bfe_u32 v{vT1}, v{vLane}, 2, 1
v_lshl_or_b32 v{vT0}, v{vT1}, 3, v{vT0}
v_bfe_u32 v{vT1}, v{vLane}, 3, 1
v_lshl_or_b32 v{vT0}, v{vT1}, 2, v{vT0}
v_lshlrev_b32 v{vT0}, 4, v{vT0}
s_lshl_b32 s{sT0}, s{sI}, 2
s_add_u32 s{sT0}, s{sT0}, s{sW4}
s_mul_i32 s{sT0}, s{sT0}, {KVT}
buffer_store_dwordx4 {vr(vAcc+16,4)}, v{vT0}, {sr(SWS,4)}, s{sT0} offen sc1
s_waitcnt lgkmcnt(0)""")
for p in range(0, 16, 2): e(pk("v_pk_fma_f32", vAcc+32+p, [('p', vF+p), ('b', vSt+6), ('p', vAcc+32+p)]))
for p in range(0, 16, 2): e(pk("v_pk_mul_f32", vAcc+32+p, [('p', vAcc+32+p), ('p', vF+16+p)]))
for p in range(8): e(f"v_cvt_pk_bf16_f32 v{vAcc+32+p}, v{vAcc+32+2*p}, v{vAcc+33+2*p}")
def v_lane_addr(d):
    e(f"""v_and_b32 v{d}, 15, v{vLane}
    v_lshlrev_b32 v{d}, 4, v{d}
    v_lshl_add_u32 v{d}, v{vH}, 8, v{d}
    s_mov_b32 exec_lo, 0xffff0000
    s_mov_b32 exec_hi, 0xffff0000
    v_mov_b32 v{d}, 512""")
v_lane_addr(vT0)
for p in range(8): e(f"v_mov_b32 v{vAcc+32+p}, 0x3f803f80")
e(f"""s_mov_b32 exec_lo, 0x1ffff
s_mov_b32 exec_hi, 0xffff
buffer_store_dwordx4 {vr(vAcc+32,4)}, v{vT0}, {sr(SWS,4)}, s{sT0} offen offset:1024 sc1
buffer_store_dwordx4 {vr(vAcc+36,4)}, v{vT0}, {sr(SWS,4)}, s{sT0} offen offset:{1024+528} sc1
s_mov_b64 exec, -1""")
e("s_waitcnt vmcnt(0)\ns_barrier")
e("Lkvwait:")
poll(CNT_KV, 16, "kv")
kv_dma("b")
e("s_waitcnt vmcnt(0)")

vS = [32, 48]; vC = 64; vO = 80; vQ = 96; vKf = [100, 104]; vVl = [108, 112]; vVh = 116
vIdx, vAk, vAv, vDa, vL16 = 120, 121, 122, 123, 124
vHf = 168
sKq, sTt, sHo, sDo, sDm = sXo, sWo, sQo, sLb, sMx
GSLOT = [135168, 143360, 151552] + [33280*s+8192*q for s in range(4) for q in range(4)]
def gslot(G): return GSLOT[G % 19]
vm = []
def vtag(tag): vm.append(tag)
def vwait_s(tag):
    idx = max(i for i, t in enumerate(vm) if t == tag)
    return f"s_waitcnt vmcnt({len(vm)-1-idx})"
def w_dma(G):
    srdw, row = (SWD, 64*G) if G < 22 else (SWO, 64*(G-22))
    return [f"s_add_u32 m0, s{sDm}, {gslot(G)}", f"s_add_u32 s{sT0}, s{sDo}, {row*1024}",
            (f"g{G}", f"buffer_load_dwordx4 v{vDa}, {sr(srdw,4)}, s{sT0} offen lds")]
def emit_seq(seq):
    for x in seq:
        if isinstance(x, tuple): vtag(x[0]); e(x[1])
        elif callable(x): e(x())
        else: e(x)
e("Lp2:")
stamp(2)
v_lane_addr(vAv)
e(f"""s_mov_b64 exec, -1
v_add_u32 v{vAv}, 1024, v{vAv}
v_lshlrev_b32 v{vAk}, 4, v{vLane}
v_lshlrev_b32 v{vL16}, 4, v{vLane}
v_mov_b32 v{vIdx}, 0xdddd
v_lshrrev_b32 v{vT0}, 3, v{vLane}
v_lshlrev_b32 v{vT0}, 10, v{vT0}
v_and_b32 v{vT1}, 7, v{vLane}
v_bfe_u32 v{vT2}, v{vLane}, 4, 1
v_lshlrev_b32 v{vT2}, 2, v{vT2}
v_xor_b32 v{vT1}, v{vT1}, v{vT2}
v_lshl_add_u32 v{vDa}, v{vT1}, 4, v{vT0}
s_lshl_b32 s{sDo}, s{sW}, 13
s_lshl_b32 s{sT1}, s{sCS}, 7
s_add_u32 s{sDo}, s{sDo}, s{sT1}
s_lshl_b32 s{sDm}, s{sW}, 10
s_lshr_b32 s{sKq}, s{sW}, 1
s_and_b32 s{sTt}, s{sW}, 1
s_lshl_b32 s{sT0}, s{sTB}, 1
s_add_u32 s{sT0}, s{sT0}, s{sTt}
s_mul_i32 s{sHo}, s{sT0}, 88
s_mul_i32 s{sT0}, s{sKq}, 22
s_add_u32 s{sHo}, s{sHo}, s{sT0}
s_lshl_b32 s{sHo}, s{sHo}, 10
s_add_u32 s{sHo}, s{sHo}, {HIMG}
s_add_u32 s{sT0}, s{sDm}, {QIMG}
v_add_u32 v{vT0}, s{sT0}, v{vL16}""")
for r in range(12): e(f"v_mov_b32 v{vO+r}, 0")
for r in range(8, 16): e(f"v_mov_b32 v{vS[1]+r}, 0")
for r in range(4): e(f"v_mov_b32 v{vVh+r}, 0")
e("s_waitcnt lgkmcnt(0)\ns_barrier")
stamp(3)
e(f"""ds_read_b128 {vr(vQ,4)}, v{vT0}
ds_read_b128 {vr(vKf[0],4)}, v{vAk}
ds_read_b128 {vr(vKf[1],4)}, v{vAk} offset:{KVT}
ds_read_b128 {vr(vVl[0],4)}, v{vAv}
s_waitcnt lgkmcnt(2)""")
def rowmax_to_C(first):
    pass
e(mfma(vS[0], vKf[0], vQ, "0"))
e("s_nop 11")
e(f"v_max3_f32 v{vT1}, v{vS[0]}, v{vS[0]+1}, v{vS[0]+2}")
for p in range(3, 15, 2): e(f"v_max3_f32 v{vT1}, v{vT1}, v{vS[0]+p}, v{vS[0]+p+1}")
e(f"""v_max_f32 v{vT1}, v{vT1}, v{vS[0]+15}
v_mov_b32 v{vT2}, v{vT1}
s_nop 1
v_permlane32_swap_b32 v{vT1}, v{vT2}
s_nop 1
v_max_f32 v{vT1}, v{vT1}, v{vT2}""")
for r in range(16): e(f"v_sub_f32 v{vC+r}, 0, v{vT1}")
e("s_nop 1")
e(mfma(vS[0], vKf[0], vQ, vr(vC, 16)))
e("s_nop 10")
stamp(5)
side = {T: [] for T in range(64)}
for n in range(12):
    side[n] += [f"s_add_u32 s{sT0}, s{sDm}, {(36+8*n)*1024}", f"s_mov_b32 m0, s{sT0}", "s_nop 0",
                ("kv", f"buffer_load_dwordx4 v{vL16}, {sr(SWS,4)}, s{sT0} offen sc1 lds")]
for n, G in enumerate(range(0, 7)): side[17+2*n] += w_dma(G)
for n, G in enumerate(range(7, 11)): side[33+2*n] += w_dma(G)
for n, G in enumerate(range(11, 15)): side[49+2*n] += w_dma(G)
side[40] += [f"v_mov_b32 v{vPoll}, s{sC1}", ("poll", f"buffer_load_dword v{vPoll}, v{vPoll}, {sr(SDBG,4)}, 0 offen sc1")]
for i in range(22):
    T = 48 + (i*15)//22
    if i % 4 == 0: side[T].append(f"s_add_u32 s{sC0}, s{sHo}, {1024*i}")
    side[T].append((f"h{i}", f"buffer_load_dwordx4 {vr(vHf+4*i,4)}, v{vL16}, {sr(SWS,4)}, s{sC0} offen offset:{1024*(i%4)} sc1"))
e(f"s_lshr_b32 s{sC1}, s{sTB}, 1\ns_lshl_b32 s{sC1}, s{sC1}, 2\ns_add_u32 s{sC1}, s{sC1}, {CNT_H}")
for T in range(64):
    X = vS[T & 1]; Y = vS[(T+1) & 1]
    rel = T % 16
    e("s_waitcnt lgkmcnt(0)")
    if T and rel == 0:
        if T == 16:
            e("s_waitcnt vmcnt(0)\ns_barrier")
            e(f"s_lshl_b32 s{sT2}, s{sI}, 2\ns_add_u32 s{sT2}, s{sT2}, {CNT_H}")
            signal(f"s{sT2}", "h")
        elif T == 48:
            e(vwait_s("poll"))
            e(f"v_readfirstlane_b32 s{sT1}, v{vPoll}\ns_cmp_ge_u32 s{sT1}, 16\ns_cbranch_scc1 Lhok")
            poll(f"s{sC1}", 16, "h")
            e("Lhok:\ns_barrier")
        else: e("s_barrier")
        e(f"v_add_u32 v{vAk}, {16*KVT}, v{vAk}\nv_add_u32 v{vAv}, {16*KVT}, v{vAv}")
    if rel % 4 == 0: e(f"s_setprio {3-rel//4}")
    ex = [f"v_exp_f32 v{X+i}, v{X+i}" for i in range(16)]
    rd = [f"ds_read_b128 {vr(vVh,4)}, v{vAv} offset:{rel*KVT+528}"]
    if T+1 < 64: rd.append(f"ds_read_b128 {vr(vVl[(T+1)&1],4)}, v{vAv} offset:{(rel+1)*KVT}")
    if T+2 < 64: rd.append(f"ds_read_b128 {vr(vKf[T&1],4)}, v{vAk} offset:{(rel+2)*KVT}")
    seq = ex[0:2] + [smf(vO, vVh, Y+8, vIdx)] + interleave(ex[2:5], rd)
    if T+1 < 64: seq.append(mfma(Y, vKf[(T+1) & 1], vQ, vr(vC, 16)))
    tail = ex[5:10] + [smf(vO, vVl[T & 1], X, vIdx)] + ex[10:16]
    if side[T]:
        chunks = []; cur = []
        for x in side[T]:
            cur.append(x)
            if isinstance(x, tuple): chunks.append(cur); cur = []
        t2 = []
        for x in interleave(tail, chunks):
            if isinstance(x, list): t2 += x
            else: t2.append(x)
        tail = t2
    emit_seq(seq + tail)
e("s_waitcnt lgkmcnt(0)\ns_nop 0")
e(smf(vO, vVh, vS[1]+8, vIdx))
e(f"s_mov_b32 s{sRetry}, 0")
e("Lfin:")
e(f"""s_nop 10
s_mov_b32 s{sC0}, {f2u(2.0**40):#x}
s_mov_b32 s{sC1}, {f2u(2.0**126):#x}
v_rcp_f32 v{vO+10}, v{vO+8}
v_max3_f32 v{vT1}, abs(v{vO}), abs(v{vO+1}), abs(v{vO+2})
v_max3_f32 v{vT1}, v{vT1}, abs(v{vO+3}), abs(v{vO+4})
v_max3_f32 v{vT1}, v{vT1}, abs(v{vO+5}), abs(v{vO+6})
v_max_f32 v{vT1}, v{vT1}, abs(v{vO+7})
v_cmp_nlt_f32 vcc, v{vO+8}, s{sC0}
v_cmp_nlt_f32 s[{sEx}:{sEx+1}], v{vT1}, s{sC1}""")
for p in range(8): e(f"v_mul_f32 v{vO+p}, v{vO+p}, v{vO+10}")
e(f"s_or_b64 vcc, vcc, s[{sEx}:{sEx+1}]")
for p in range(4): e(f"v_cvt_pk_bf16_f32 v{vO+p}, v{vO+2*p}, v{vO+2*p+1}")
for p in range(4): e(f"v_min_u32 v{vO+p}, -2, v{vO+p}")
e("s_cbranch_vccnz Lfallback\nLok:")
emit_seq([("o", f"buffer_store_dwordx4 {vr(vO,4)}, v{vL16}, {sr(SWS,4)}, s{sOp} offen sc1")])
stamp(6)

vOf = 136
vAf = [32, 48]
vAs = [64, 84]
vAs = [64, 80]
vWf = [96, 104]
vRd = 125
vRa, vXr = 131, 132
e(f"""v_bfe_u32 v{vT0}, v{vLane}, 2, 2
v_lshl_add_u32 v{vT0}, v{vH}, 2, v{vT0}
v_lshlrev_b32 v{vT0}, 7, v{vT0}
v_bfe_u32 v{vT1}, v{vLane}, 4, 1
v_lshl_add_u32 v{vT0}, v{vT1}, 5, v{vT0}
v_and_b32 v{vT1}, 3, v{vLane}
v_lshl_add_u32 v{vT0}, v{vT1}, 3, v{vT0}
v_bfe_u32 v{vT1}, v{vLane}, 3, 1
v_lshl_add_u32 v{vT0}, v{vT1}, 6, v{vT0}
s_lshl_b32 s{sT0}, s{sKq}, 11
v_add_u32 v{vRd}, s{sT0}, v{vT0}
v_xor_b32 v{vRd+1}, 64, v{vRd}
v_add_u32 v{vRd+2}, 0xe000, v{vRd}
v_add_u32 v{vRd+3}, 0xe000, v{vRd+1}
v_add_u32 v{vRd+4}, 0x1c000, v{vRd}
v_add_u32 v{vRd+5}, 0x1c000, v{vRd+1}""")
for r in range(32, 64): e(f"v_mov_b32 v{r}, 0")
e(vwait_s("g14"))
e("s_setprio 0\ns_barrier")
def w_reads(G, F):
    a = gslot(G); win = a // 0xe000; off = a - win*0xe000
    r0, r1 = vRd+2*win, vRd+2*win+1
    return tr(F, r0, off) + tr(F+2, r0, off+1024) + tr(F+4, r1, off) + tr(F+6, r1, off+1024)
for x in w_reads(0, vWf[0]): e(x)
for G in range(15, 19): emit_seq(w_dma(G))
e(f"""v_and_b32 v{vT0}, 31, v{vLane}
v_lshlrev_b32 v{vT0}, 10, v{vT0}
v_lshl_add_u32 v{vRa}, v{vH}, 4, v{vT0}
s_lshl_b32 s{sT0}, s{sTB}, 16
s_lshl_b32 s{sT1}, s{sTt}, 15
s_add_u32 s{sT0}, s{sT0}, s{sT1}
s_lshl_b32 s{sT1}, s{sCS}, 7
s_add_u32 s{sT0}, s{sT0}, s{sT1}
s_lshl_b32 s{sT1}, s{sKq}, 5
s_add_u32 s{sC2}, s{sT0}, s{sT1}""")
emit_seq([("x", f"buffer_load_dwordx4 {vr(vXr,4)}, v{vRa}, {sr(SX,4)}, s{sC2} offen")])
RED = 66560
def reduce_write(acc):
    e(f"""s_lshl_b32 s{sT0}, s{sTt}, 15
    s_lshl_b32 s{sT1}, s{sKq}, 11
    s_add_u32 s{sT0}, s{sT0}, s{sT1}
    s_add_u32 s{sT0}, s{sT0}, {RED}
    v_add_u32 v{vT0}, s{sT0}, v{vL16}""")
    for q in range(4):
        e(f"ds_write_b128 v{vT0}, {vr(acc+8*q,4)} offset:{8192*q}\nds_write_b128 v{vT0}, {vr(acc+8*q+4,4)} offset:{8192*q+1024}")
def reduce_read(acc):
    e(f"""s_lshl_b32 s{sT0}, s{sTt}, 15
    s_lshl_b32 s{sT1}, s{sKq}, 13
    s_add_u32 s{sT0}, s{sT0}, s{sT1}
    s_add_u32 s{sT0}, s{sT0}, {RED}
    v_add_u32 v{vT0}, s{sT0}, v{vL16}""")
    for q in range(4):
        e(f"ds_read_b128 {vr(acc+8*q,4)}, v{vT0} offset:{2048*q}\nds_read_b128 {vr(acc+8*q+4,4)}, v{vT0} offset:{2048*q+1024}")
    e("s_waitcnt lgkmcnt(0)")
    for p in range(8):
        e(f"v_add_f32 v{acc+p}, v{acc+p}, v{acc+8+p}\nv_add_f32 v{acc+16+p}, v{acc+16+p}, v{acc+24+p}")
    for p in range(8): e(f"v_add_f32 v{acc+p}, v{acc+p}, v{acc+16+p}")
OLD = 20
def o_loads():
    for k in range(8):
        emit_seq([(f"o{k}", f"buffer_load_dwordx4 {vr(vOf+4*k,4)}, v{vL16}, {sr(SWS,4)}, s{sHo if k<4 else sC0} offen offset:{1024*(k%4)} sc1")])
for n in range(30):
    F = vWf[n & 1]; Fn = vWf[(n+1) & 1]
    down = n < 22
    e("s_waitcnt lgkmcnt(0)")
    post = []
    if n == 3:
        e("s_barrier")
        for G in range(19, 23): post += w_dma(G)
    if n == 7:
        e("s_barrier")
        for G in range(23, 27): post += w_dma(G)
    if n == 11:
        e(vwait_s("g18")); e("s_barrier")
        for G in range(27, 30): post += w_dma(G)
    if n == 18:
        e(vwait_s("g22")); e("s_barrier")
    if n == OLD:
        e(f"""s_lshl_b32 s{sT0}, s{sTB}, 1
        s_add_u32 s{sT0}, s{sT0}, s{sTt}
        s_lshl_b32 s{sT0}, s{sT0}, 2
        s_add_u32 s{sT0}, s{sT0}, s{sKq}
        s_lshl_b32 s{sT0}, s{sT0}, 13
        s_add_u32 s{sHo}, s{sT0}, {OIMG}
        s_add_u32 s{sC0}, s{sHo}, 4096""")
        o_loads()
    if n == 26: e("s_barrier")
    rd = w_reads(n+1, Fn) if n+1 < 30 else []
    e(vwait_s(f"h{n}" if down else f"o{n-22}"))
    acc = vAf if down else vAs
    B = vHf + 4*n if down else vOf + 4*(n-22)
    if n == 21:
        for x in rd: e(x)
        rd = []
        e(f"s_cmp_ge_u32 s{sKq}, 2\ns_cbranch_scc1 Lskip21")
    c0 = "0" if n == 22 else None
    emit_seq(interleave([mfma(acc[0], F, B, c0), mfma(acc[1], F+4, B, c0)], rd) + post)
    if n == 21:
        e("Lskip21:")
        stamp(8)
        e("s_nop 6")
        reduce_write(vAf[0])
        e(vwait_s("g29")); e("s_waitcnt lgkmcnt(0)\ns_barrier")
        reduce_read(vAf[0])
        for p in range(8): e(f"v_mul_f32 v{vAf[0]+8+p}, {f2u(-1.4426950408889634):#x}, v{vAf[0]+p}")
        for p in range(8): e(f"v_exp_f32 v{vAf[0]+8+p}, v{vAf[0]+8+p}")
        e("s_nop 0")
        for p in range(8): e(f"v_add_f32 v{vAf[0]+8+p}, 1.0, v{vAf[0]+8+p}")
        for p in range(8): e(f"v_rcp_f32 v{vAf[0]+8+p}, v{vAf[0]+8+p}")
        e("s_nop 0")
        for p in range(8): e(f"v_mul_f32 v{vAf[0]+p}, v{vAf[0]+p}, v{vAf[0]+8+p}")
        stamp(9)
        e(f"s_mov_b32 s{sT0}, 0\nLow:\ns_waitcnt vmcnt(0)")
        e(f"v_max3_u32 v{vT1}, v{vOf}, v{vOf+1}, v{vOf+2}")
        for p in range(3, 31, 2): e(f"v_max3_u32 v{vT1}, v{vT1}, v{vOf+p}, v{vOf+p+1}")
        e(f"""v_max_u32 v{vT1}, v{vT1}, v{vOf+31}
        v_cmp_eq_u32 vcc, -1, v{vT1}
        s_add_u32 s{sT0}, s{sT0}, 1
        s_cmp_ge_u32 s{sT0}, 100000
        s_cbranch_vccz Lod
        s_cbranch_scc1 Lod""")
        o_loads()
        e("s_branch Low\nLod:")
        vm.clear(); vm.extend(f"o{k}" for k in range(8)); vm.extend(["z"]*8)
        stamp(7)
stamp(10)
e("s_nop 6")
reduce_write(vAs[0])
e("s_waitcnt lgkmcnt(0)\ns_barrier")
reduce_read(vAs[0])
for p in range(8): e(f"v_mul_f32 v{vAs[0]+p}, v{vAs[0]+p}, v{vAf[0]+p}")
e("s_nop 1")
for p in range(4): e(f"v_permlane32_swap_b32 v{vAs[0]+p}, v{vAs[0]+4+p}")
for p in range(4):
    e(f"v_lshlrev_b32 v{vAs[0]+8+2*p}, 16, v{vXr+p}\nv_and_b32 v{vAs[0]+9+2*p}, 0xffff0000, v{vXr+p}")
for p in range(8): e(f"v_add_f32 v{vAs[0]+p}, v{vAs[0]+p}, v{vAs[0]+8+p}")
for p in range(4): e(f"v_cvt_pk_bf16_f32 v{vAs[0]+p}, v{vAs[0]+2*p}, v{vAs[0]+2*p+1}")
e(f"buffer_store_dwordx4 {vr(vAs[0],4)}, v{vRa}, {sr(SOUT,4)}, s{sC2} offen")
stamp(11)
e("Lend:\ns_endpgm")

e("Lfallback:")
e(f"""s_cmp_lg_u32 s{sRetry}, 0
s_cbranch_scc1 Lok
s_mov_b32 s{sRetry}, 1
s_mov_b32 s{sSt}, 0
v_mov_b32 v{vT1}, 0xff800000
Lfb1:
buffer_load_dwordx4 {vr(vKf[0],4)}, v{vL16}, {sr(SWS,4)}, s{sSt} offen sc1
s_waitcnt vmcnt(0)""")
e(mfma(vS[0], vKf[0], vQ, "0"))
e("s_nop 11")
for p in range(0, 16, 2): e(f"v_max3_f32 v{vT1}, v{vT1}, v{vS[0]+p}, v{vS[0]+p+1}")
e(f"""s_add_u32 s{sSt}, s{sSt}, {KVT}
s_cmp_lt_u32 s{sSt}, {64*KVT}
s_cbranch_scc1 Lfb1
v_mov_b32 v{vT2}, v{vT1}
s_nop 1
v_permlane32_swap_b32 v{vT1}, v{vT2}
s_nop 1
v_max_f32 v{vT1}, v{vT1}, v{vT2}""")
for r in range(16): e(f"v_sub_f32 v{vC+r}, 0, v{vT1}")
for r in range(12): e(f"v_mov_b32 v{vO+r}, 0")
e(f"""v_subrev_u32 v{vAv}, {48*KVT}, v{vAv}
s_mov_b32 s{sSt}, 0
Lfb2:
buffer_load_dwordx4 {vr(vKf[0],4)}, v{vL16}, {sr(SWS,4)}, s{sSt} offen sc1
buffer_load_dwordx4 {vr(vVl[0],4)}, v{vAv}, {sr(SWS,4)}, s{sSt} offen sc1
buffer_load_dwordx4 {vr(vVh,4)}, v{vAv}, {sr(SWS,4)}, s{sSt} offen offset:528 sc1
s_waitcnt vmcnt(0)""")
e(mfma(vS[0], vKf[0], vQ, vr(vC, 16)))
e("s_nop 11")
for i in range(16): e(f"v_exp_f32 v{vS[0]+i}, v{vS[0]+i}")
e("s_nop 1")
e(smf(vO, vVl[0], vS[0], vIdx)); e(smf(vO, vVh, vS[0]+8, vIdx))
e(f"""s_add_u32 s{sSt}, s{sSt}, {KVT}
s_cmp_lt_u32 s{sSt}, {64*KVT}
s_cbranch_scc1 Lfb2
s_branch Lfin""")

L += ['.section .rodata,"a"', ".p2align 6", f".amdhsa_kernel {NAME}_kernel",
      "  .amdhsa_next_free_vgpr 256", "  .amdhsa_next_free_sgpr 102", "  .amdhsa_accum_offset 256",
      "  .amdhsa_group_segment_fixed_size 0", "  .amdhsa_kernarg_size 96", "  .amdhsa_user_sgpr_count 2",
      "  .amdhsa_user_sgpr_kernarg_segment_ptr 1", "  .amdhsa_system_sgpr_workgroup_id_x 1", ".end_amdhsa_kernel"]
open(OUT, "w").write("\n".join(L) + "\n")
print("wrote", OUT, len(L), "lines")
```

```python
import sys, struct
NAME = "recurrent_scan__grouped_kv_mqa__geglu_ffn__prompt"
PROF = "--prof" in sys.argv
OUT = [a for a in sys.argv[1:2] if not a.startswith("--")]
OUT = OUT[0] if OUT else f"cdna_kernels/{NAME}.s"

L = []
def e(s):
    for ln in s.split("\n"):
        if not ln.strip(): continue
        L.append(("    " + ln.strip()) if not ln.strip().endswith(":") else ln.strip())
def f2u(x): return struct.unpack("<I", struct.pack("<f", x))[0]
def vr(a, n): return f"v[{a}:{a+n-1}]"
def sr(a, n): return f"s[{a}:{a+n-1}]"

KVT = 2080
KVIMG = 0
HIMG = 135168
OIMG = HIMG + 64*88*1024
PROFO = OIMG + 64*32*1024
WS_BYTES = PROFO + 256*8*256
CNT_KV = 0
CNT_H = 64
CNT_O = 128
STG = 45056
XOFF, GOFF, UOFF, QOFF = 0, 16384, 28672, 40960
STGK, QOFFK, NBK = 24832, 20736, 5
QIMG = 135168
STATM = 160768
CSUM = 162816
MRX = 159744
ZERO = 163712
FLAG = 163776
LDS_BYTES = 163840
SX, SWQ, SWK, SWV, SWO, SWG, SWD, SOUT, SDBG, SWS = 4, 8, 12, 16, 20, 24, 28, 32, 36, 40
sI, sJ, sW, sW4 = 44, 45, 46, 47
sXo, sWo, sQo, sLb = 48, 49, 50, 51
sMx, sMw, sMq = 52, 53, 54
sSt, sDl, sT0, sT1, sT2, sT3 = 55, 56, 57, 58, 59, 60
sTB, sCS, sRetry, sRb = 61, 62, 63, 3
sEx = 88
sTm = 90
sPo = 92
sC0, sC1, sC2, sC3 = 94, 95, 96, 97
sOp = 98
TOUCH = int("--touch" in sys.argv)
vLane, vH, vT0, vT1, vT2, vT3 = 1, 2, 3, 4, 5, 6
vXa0, vXa1, vWa0, vWa1, vWa2, vQa = 7, 8, 9, 10, 11, 12
vRX = 13
vRW, vRQ = 17, 18
vSel = 20
vCs = 24
vF = 32
vAcc = 96
vSt = 160
vQ = 8; vKf = [12, 16]; vVl = [20, 24]; vVh = 28
vS = [32, 48]; vC = 64
vWf = [80, 88, 96]
vAf = [104, 120]
vHf = 136
vO = 224
vIdx, vAk, vAv, vDa, vL16, vRa, vPoll, vAq = 240, 241, 242, 243, 244, 245, 246, 247
vRd = 248
vRw, vRr = 254, 255
vOf = 136
vAs = [32, 48]
vXr = 64
sKq, sTt, sHo, sDo, sDm, sHc, sXf, sOc, sOc2, sHs = 64, 65, 66, 67, 68, 69, 70, 71, 72, 73
ASL = 8320
def aslot(n): return ASL*n
SP = [135168, 143360, 151552]
GSLOT = SP + [aslot(0), aslot(1), aslot(2), aslot(3), aslot(4), aslot(5)]
GSLOT += SP + [aslot(0), aslot(6), aslot(7)]
GSLOT += [aslot(1), aslot(2), aslot(3), aslot(4), aslot(5), aslot(8), aslot(9)]
GSLOT += SP + [aslot(0), aslot(10), aslot(11), aslot(12), aslot(13)]
RED = aslot(1)

nstamp = [0]
def stamp(k):
    if not PROF: return
    e(f"""s_memtime s[{sTm}:{sTm+1}]
    s_waitcnt lgkmcnt(0)
    v_mov_b32 v0, s{sTm}
    buffer_store_dword v0, off, {sr(SWS,4)}, s{sPo} offset:{4*k}""")
    if k in RTS:
        e(f"""s_memrealtime s[{sTm}:{sTm+1}]
        s_waitcnt lgkmcnt(0)
        v_mov_b32 v0, s{sTm}
        buffer_store_dword v0, off, {sr(SWS,4)}, s{sPo} offset:{4*RTS[k]}""")
RTS = {12: 24, 1: 25, 5: 26, 6: 27, 11: 28}

def tick(acc):
    if not PROF or "--notick" in sys.argv: return ""
    r = f"s_memtime s[{sTm}:{sTm+1}]\ns_waitcnt lgkmcnt(0)\n"
    if acc is not None: r += f"s_sub_u32 s99, s{sTm}, s99\ns_add_u32 s{acc}, s{acc}, s99\n"
    return r + f"s_mov_b32 s99, s{sTm}"

def interleave(main, fill):
    out = []; n = len(main); m = len(fill); k = 0
    for i, a in enumerate(main):
        out.append(a)
        t = (m * (i + 1)) // n
        out += fill[k:t]; k = t
    return out

def mfma(d, a, b, c=None):
    c = vr(d, 16) if c is None else c
    return f"v_mfma_f32_32x32x16_bf16 {vr(d,16)}, {vr(a,4)}, {vr(b,4)}, {c}"
def mfma16(d, a, b): return f"v_mfma_f32_16x16x32_bf16 {vr(d,4)}, {vr(a,4)}, {vr(b,4)}, {vr(d,4)}"
def smf(d, a, b, idx): return f"v_smfmac_f32_32x32x32_bf16 {vr(d,16)}, {vr(a,4)}, {vr(b,8)}, v{idx}"

def poll(cnt_off_sreg_or_imm, target, tag):
    e(f"v_mov_b32 v{vT0}, {cnt_off_sreg_or_imm}")
    e(f"s_mov_b32 s{sT0}, 0")
    e(f"""Lpoll_{tag}:
    buffer_load_dword v{vT1}, v{vT0}, {sr(SDBG,4)}, 0 offen sc1
    s_waitcnt vmcnt(0)
    v_readfirstlane_b32 s{sT1}, v{vT1}
    s_add_u32 s{sT0}, s{sT0}, 1
    s_cmp_ge_u32 s{sT1}, {target}
    s_cbranch_scc1 Lpolld_{tag}
    s_cmp_ge_u32 s{sT0}, 100000
    s_cbranch_scc1 Lpolld_{tag}
    s_sleep 6
    s_branch Lpoll_{tag}
    Lpolld_{tag}:""")

def signal(cnt_off, tag):
    e(f"""s_cmp_lg_u32 s{sW}, 0
    s_cbranch_scc1 Lsig_{tag}
    v_mov_b32 v{vT0}, {cnt_off}
    v_mov_b32 v{vT1}, 1
    s_mov_b64 exec, 1
    buffer_atomic_add v{vT1}, v{vT0}, {sr(SDBG,4)}, 0 offen sc1
    s_mov_b64 exec, -1
    Lsig_{tag}:""")

hdr = open(f"cdna_kernels/{NAME}.s.ref").read().split("\n")
hdr = [h for h in hdr[:15] if h.startswith(";") and "@launch" not in h]
L += hdr
L.append(f"; @launch grid=(256,1,1) block=(512,1,1) lds={LDS_BYTES}")
L += ['.amdgcn_target "amdgcn-amd-amdhsa--gfx950"', ".text", f".globl {NAME}_kernel", ".p2align 8",
      f".type {NAME}_kernel,@function"]
e(f"{NAME}_kernel:")
RT = PROF and "--notick" in sys.argv
if RT: e("s_memrealtime s[100:101]\ns_memtime s[98:99]")
e(f"""s_cmp_ge_u32 s2, 256
s_cbranch_scc1 Lend
s_load_dwordx16 s[64:79], s[0:1], 0
s_load_dwordx8 s[80:87], s[0:1], 64
v_and_b32 v{vLane}, 63, v0
v_lshrrev_b32 v{vT0}, 6, v0
v_lshrrev_b32 v{vH}, 5, v{vLane}
v_readfirstlane_b32 s{sW}, v{vT0}
s_and_b32 s{sT0}, s2, 7
s_lshr_b32 s{sT1}, s2, 3
s_and_b32 s{sI}, s{sT0}, 1
s_lshl_b32 s{sI}, s{sI}, 3
s_and_b32 s{sT2}, s{sT1}, 7
s_add_u32 s{sI}, s{sI}, s{sT2}
s_lshr_b32 s{sJ}, s{sT0}, 1
s_lshl_b32 s{sJ}, s{sJ}, 2
s_lshr_b32 s{sT3}, s{sT1}, 3
s_sub_u32 s{sJ}, s{sJ}, s{sT3}
s_add_u32 s{sJ}, s{sJ}, 3
s_and_b32 s{sTB}, s{sT0}, 3
s_lshl_b32 s{sTB}, s{sTB}, 3
s_add_u32 s{sTB}, s{sTB}, s{sT2}
s_lshr_b32 s{sCS}, s{sT0}, 2
s_lshl_b32 s{sCS}, s{sCS}, 2
s_add_u32 s{sCS}, s{sCS}, s{sT3}
s_and_b32 s{sW4}, s{sW}, 3""")
e(f"""v_lshrrev_b32 v{vT0}, 3, v{vLane}
v_lshlrev_b32 v{vT0}, 10, v{vT0}
v_and_b32 v{vT1}, 7, v{vLane}
v_lshrrev_b32 v{vT2}, 4, v{vLane}
v_xor_b32 v{vT1}, v{vT1}, v{vT2}
v_lshl_add_u32 v{vXa0}, v{vT1}, 4, v{vT0}
v_xor_b32 v{vXa1}, 64, v{vXa0}
v_add_u32 v{vXa1}, {8192-1024}, v{vXa1}""")
for k, r in enumerate((vWa0, vWa1, vWa2)):
    e(f"""v_add_u32 v{vT0}, {64*k}, v{vLane}
    v_mul_u32_u24 v{vT1}, 43691, v{vT0}
    v_lshrrev_b32 v{vT1}, 19, v{vT1}
    v_mul_u32_u24 v{vT2}, 12, v{vT1}
    v_sub_u32 v{vT0}, v{vT0}, v{vT2}
    v_mul_u32_u24 v{vT1}, 2752, v{vT1}
    v_lshl_add_u32 v{r}, v{vT0}, 4, v{vT1}""")
    if k: e(f"v_subrev_u32 v{r}, {1024*k}, v{r}")
e(f"""v_lshrrev_b32 v{vT0}, 2, v{vLane}
v_lshlrev_b32 v{vT0}, 10, v{vT0}
v_and_b32 v{vT1}, 3, v{vLane}
v_lshl_add_u32 v{vQa}, v{vT1}, 4, v{vT0}""")
e(f"""s_lshl_b32 s{sXo}, s{sI}, 17
s_lshl_b32 s{sT0}, s{sW}, 14
s_add_u32 s{sXo}, s{sXo}, s{sT0}
s_mul_i32 s{sT0}, s{sJ}, 96
s_min_u32 s{sT0}, s{sT0}, 1280
s_lshl_b32 s{sT0}, s{sT0}, 1
s_mul_i32 s{sWo}, s{sW4}, {16*2752}
s_add_u32 s{sWo}, s{sWo}, s{sT0}
s_lshl_b32 s{sQo}, s{sW4}, 14
s_lshl_b32 s{sT0}, s{sJ}, 6
s_add_u32 s{sQo}, s{sQo}, s{sT0}
s_lshl_b32 s{sMx}, s{sW}, 11
s_mul_i32 s{sMw}, s{sW}, 3072
s_add_u32 s{sMw}, s{sMw}, {GOFF}
s_lshl_b32 s{sMq}, s{sW4}, 10
s_add_u32 s{sMq}, s{sMq}, {QOFF}
s_mov_b32 s{sLb}, 0
s_mov_b32 s{sRetry}, 0
s_mov_b32 s{sC3}, {(-2*STG) & 0xffffffff}
s_waitcnt lgkmcnt(0)""")
def srd(d, p, nbytes):
    e(f"s_mov_b32 s{d}, s{p}\ns_mov_b32 s{d+1}, s{p+1}\ns_mov_b32 s{d+2}, {nbytes}\ns_mov_b32 s{d+3}, 0x20000")
srd(SX, 64, 2048*1024); srd(SWQ, 66, 512*1024)
e(f"s_cmp_ge_u32 s{sW}, 4\ns_cselect_b32 s{SWG}, s78, s76\ns_cselect_b32 s{SWG+1}, s79, s77\ns_mov_b32 s{SWG+2}, {512*2752}\ns_mov_b32 s{SWG+3}, 0x20000")
srd(SWS, 86, WS_BYTES)
srd(SWK, 68, 16384); srd(SWV, 70, 16384); srd(SWO, 72, 512*1024)
srd(SWD, 80, 1376*1024); srd(SOUT, 82, 2048*1024); srd(SDBG, 84, 256)
if PROF:
    e(f"s_lshl_b32 s{sPo}, s2, 3\ns_add_u32 s{sPo}, s{sPo}, s{sW}\ns_lshl_b32 s{sPo}, s{sPo}, 8\ns_add_u32 s{sPo}, s{sPo}, {PROFO}")
stamp(0)
if RT: e(f"s_nop 1\nv_mov_b32 v0, s100\nbuffer_store_dword v0, off, {sr(SWS,4)}, s{sPo} offset:60\ns_nop 1\nv_mov_b32 v0, s98\nbuffer_store_dword v0, off, {sr(SWS,4)}, s{sPo} offset:16")
elif PROF: e("s_mov_b32 s100, 0\ns_mov_b32 s101, 0")
def dma_groups(kind):
    gx = [f"s_add_u32 m0, s{sLb}, s{sMx}", "s_nop 0",
          f"buffer_load_dwordx4 v{vXa0}, {sr(SX,4)}, s{sXo} offen lds"]
    gx2 = [f"buffer_load_dwordx4 v{vXa1}, {sr(SX,4)}, s{sXo} offen offset:1024 lds", f"s_add_u32 s{sXo}, s{sXo}, 128"]
    w0 = [f"s_add_u32 m0, s{sLb}, s{sMw}", "s_nop 0", f"buffer_load_dwordx4 v{vWa0}, {sr(SWG,4)}, s{sWo} offen lds"]
    w1 = [f"buffer_load_dwordx4 v{vWa1}, {sr(SWG,4)}, s{sWo} offen offset:1024 lds"]
    w2 = [f"buffer_load_dwordx4 v{vWa2}, {sr(SWG,4)}, s{sWo} offen offset:2048 lds", f"s_add_u32 s{sWo}, s{sWo}, {64*2752}"]
    q = [f"s_add_u32 m0, s{sLb}, s{sMq}", "s_nop 0", f"buffer_load_dwordx4 v{vQa}, {sr(SWQ,4)}, s{sQo} offen lds",
         f"s_add_u32 s{sQo}, s{sQo}, 65536"]
    stg, nb = (STGK, NBK) if kind[-1] == "K" else (STG, 3)
    adv = [f"s_add_u32 s{sLb}, s{sLb}, {stg}", f"s_cmp_ge_u32 s{sLb}, {nb*stg}", f"s_cselect_b32 s{sLb}, 0, s{sLb}"]
    if kind == "L": return [gx+gx2, w0+w1, w2, q+adv]
    if kind == "H": return [gx+gx2, w0, w1, w2+adv]
    if kind == "HK": return [gx, gx2, w0+[f"s_add_u32 s{sWo}, s{sWo}, 2048"], adv]
    if kind == "LK": return [gx, gx2, q, adv]
def dma_stage(kind): return sum(dma_groups(kind), [])
NDMA = {"L": 6, "H": 5, "LK": 3, "HK": 3}
NX = {"L": TOUCH, "H": TOUCH, "LK": 0, "HK": 0}

e(f"""s_cmp_eq_u32 s{sJ}, 15
s_cbranch_scc1 Lkvcu
s_cmp_ge_u32 s{sW}, 4
s_cbranch_scc1 LproH""")

def common_init(kind):
    e(f"""v_and_b32 v{vT0}, 31, v{vLane}
    v_lshrrev_b32 v{vT1}, 1, v{vT0}
    v_and_b32 v{vT1}, 7, v{vT1}
    v_xor_b32 v{vT1}, v{vT1}, v{vH}
    v_lshlrev_b32 v{vT0}, 7, v{vT0}""")
    if kind == "L": e(f"s_and_b32 s{sT0}, s{sW}, 1\ns_lshl_b32 s{sT0}, s{sT0}, 13")
    elif kind == "KV": e(f"s_lshl_b32 s{sT0}, s{sW}, 14")
    else: e(f"s_lshl_b32 s{sT0}, s{sW4}, 12")
    e(f"v_add_u32 v{vT0}, s{sT0}, v{vT0}")
    for ks in range(4):
        e(f"v_xor_b32 v{vT2}, {2*ks}, v{vT1}\nv_lshl_add_u32 v{vRX+ks}, v{vT2}, 4, v{vT0}")
    e(f"""v_bfe_u32 v{vT0}, v{vLane}, 2, 2
    v_lshl_add_u32 v{vT0}, v{vH}, 3, v{vT0}
    v_bfe_u32 v{vT1}, v{vLane}, 4, 1
    v_and_b32 v{vT2}, 3, v{vLane}
    v_lshlrev_b32 v{vT2}, 3, v{vT2}
    v_lshl_add_u32 v{vT3}, v{vT1}, 5, v{vT2}
    v_lshl_add_u32 v{vRQ}, v{vT0}, 6, v{vT3}""")
    if kind == "KV":
        e(f"""v_lshlrev_b32 v{vT1}, 14, v{vT1}
        v_lshl_add_u32 v{vRW}, v{vT0}, 5, v{vT2}
        s_lshr_b32 s{sT0}, s{sW}, 2
        s_lshl_b32 s{sT0}, s{sT0}, 13
        s_add_u32 s{sT1}, s{sT0}, 131072
        v_add3_u32 v{vRW}, v{vRW}, v{vT1}, s{sT1}
        s_add_u32 s{sT1}, s{sT1}, s{sT0}
        v_add_u32 v{vRQ}, s{sT1}, v{vRQ}""")
    else:
        e(f"v_mul_u32_u24 v{vRW}, 192, v{vT0}\nv_add_u32 v{vRW}, v{vRW}, v{vT3}")
        if kind == "L": e(f"s_lshr_b32 s{sT0}, s{sW}, 1\ns_lshl_b32 s{sT0}, s{sT0}, 6\nv_add_u32 v{vRW}, s{sT0}, v{vRW}")
        else: e(f"v_add_u32 v{vRW}, 128, v{vRW}")
    e(f"""v_bfe_u32 v{vT0}, v{vLane}, 4, 1
    v_and_b32 v{vT1}, 15, v{vLane}
    v_cmp_eq_u32 vcc, v{vT0}, v{vT1}
    v_mov_b32 v{vT2}, 0x3f803f80
    s_nop 0
    v_cndmask_b32 v{vSel}, 0, v{vT2}, vcc""")
    for k in range(1, 4): e(f"v_mov_b32 v{vSel+k}, v{vSel}")
    for r in list(range(vCs, vCs+4)) + list(range(vAcc, vAcc+(64 if kind == 'L' else 48))) + list(range(vSt, vSt+4)):
        e(f"v_mov_b32 v{r}, 0")

def stats_ops(x, regs=range(4)):
    r = []
    for k in regs:
        lo, hi = vSt+4+2*(k & 1), vSt+5+2*(k & 1)
        r += [f"v_lshlrev_b32 v{lo}, 16, v{x+k}", f"v_and_b32 v{hi}, 0xffff0000, v{x+k}",
              f"v_add_f32 v{vSt}, v{vSt}, v{lo}", f"v_add_f32 v{vSt+1}, v{vSt+1}, v{hi}",
              f"v_fmac_f32 v{vSt+2}, v{lo}, v{lo}", f"v_fmac_f32 v{vSt+3}, v{hi}, v{hi}"]
    return r

def tr(d, a, off): return [f"ds_read_b64_tr_b16 {vr(d,2)}, v{a} offset:{off}"]
def p1_reads(kind, ks, F):
    if "--noread" in sys.argv: return []
    if kind == "L":
        return [f"ds_read_b128 {vr(F,4)}, v{vRX+ks}"] + tr(F+8, vRW, GOFF+(16*ks)*192) + tr(F+10, vRW, GOFF+(16*ks+4)*192) + \
               tr(F+12, vRW, UOFF+(16*ks)*192) + tr(F+14, vRW, UOFF+(16*ks+4)*192) + \
               [f"ds_read_b128 {vr(F+4,4)}, v{vRX+ks} offset:4096"]
    if kind == "H":
        return [f"ds_read_b128 {vr(F,4)}, v{vRX+ks}"] + tr(F+4, vRQ, QOFF+(16*ks)*64) + tr(F+6, vRQ, QOFF+(16*ks+4)*64) + \
               tr(F+8, vRW, GOFF+(16*ks)*192) + tr(F+10, vRW, GOFF+(16*ks+4)*192) + \
               tr(F+12, vRW, UOFF+(16*ks)*192) + tr(F+14, vRW, UOFF+(16*ks+4)*192)
    if kind == "HK":
        return [f"ds_read_b128 {vr(F,4)}, v{vRX+ks}"] + tr(F+8, vRW, GOFF+(16*ks)*32) + tr(F+10, vRW, GOFF+(16*ks+4)*32)
    if kind == "LK":
        return [f"ds_read_b128 {vr(F,4)}, v{vRX+ks}"] + tr(F+4, vRQ, QOFFK+(16*ks)*64) + tr(F+6, vRQ, QOFFK+(16*ks+4)*64)
def p1_comp(kind, var, F):
    if kind == "L":
        m = [mfma(vAcc, F+8, F), mfma(vAcc+16, F+12, F), mfma16(vCs, F+8+4*(var & 1), vSel), mfma(vAcc+32, F+8, F+4), mfma(vAcc+48, F+12, F+4)]
        return m, stats_ops(F+4*(var >> 1), (2, 3))
    if kind == "H":
        m = [mfma(vAcc, F+4, F), mfma(vAcc+16, F+8, F), mfma(vAcc+32, F+12, F)]
        if var < 3: m.insert(1, mfma16(vCs, F+4+4*var, vSel))
        return m, stats_ops(F, (0, 1))
    if kind == "HK":
        return [mfma(vAcc+16, F+8, F), mfma16(vCs, F+8, vSel), mfma(vAcc+32, F, F+8)], stats_ops(F, (0, 1))
    if kind == "LK":
        return [mfma(vAcc, F+4, F), mfma16(vCs, F+4, vSel)], stats_ops(F, (2, 3))

BARX = "s_nop 0" if "--nobar" in sys.argv else "s_barrier"
NST = 208 if "--rep" in sys.argv else 8
def spread(m, fill):
    w = [16 if "16x16" in x else 32 for x in m]
    tot = sum(c for c, _ in fill); W = sum(w)
    out = []; k = 0; acc = 0; cw = 0
    for x, wx in zip(m, w):
        out.append(x); cw += wx
        while k < len(fill) and (acc + fill[k][0]/2) * W <= tot * cw:
            out.append(fill[k][1]); acc += fill[k][0]; k += 1
    out += [t for _, t in fill[k:]]
    return out

def p1_loop(kind, var, done_label):
    tag = f"{kind}{var}"
    n = NDMA[kind]
    dg = dma_groups(kind)
    kv = kind[-1] == "K"
    stg, nb = (STGK, NBK) if kv else (STG, 3)
    LA = nb - 1
    if kind[0] == "H" and "--noprio" not in sys.argv: e("s_setprio 1")
    e(f"s_mov_b32 s{sSt}, 0\ns_mov_b32 s{sRb}, 0\ns_mov_b64 vcc, -1\ns_waitcnt vmcnt({(LA-1)*n+NX[kind]})\ns_barrier")
    stamp(12)
    def comp(F):
        m0, v0 = p1_comp(kind, var, F); m1, v1 = p1_comp(kind, var, F+16)
        if "--nostat" in sys.argv: v0 = v1 = ["s_nop 0"]*5
        if "--nomfma" in sys.argv: m0 = m1 = ["s_nop 0"]*2
        if "--nocs" in sys.argv: m0 = [x for x in m0 if "16x16" not in x]; m1 = [x for x in m1 if "16x16" not in x]
        return m0+m1, v0+v1
    def dblk(i, g): return (4*len(g)+8, "\n".join([f"s_cbranch_vccz Lnd{i}_{tag}"] + g + [f"Lnd{i}_{tag}:"]))
    rd = p1_reads(kind, 0, vF) + p1_reads(kind, 1, vF+16)
    for x in rd + sum(dg, []): e(x)
    e(f"s_branch Lp1h_{tag}")
    e(f".p2align 3\nLp1_{tag}:")
    m, va = comp(vF+32)
    hv = len(va)//2
    fill = [(6, x) for x in rd] + [dblk(0, dg[0])] + [(4, x) for x in va[:hv]] + [dblk(1, dg[1])] + [(4, x) for x in va[hv:]] + [dblk(2, dg[2]+dg[3])]
    for x in spread(m, fill): e(x)
    e(f"Lp1h_{tag}:\ns_waitcnt lgkmcnt(0)")
    rd = p1_reads(kind, 2, vF+32) + p1_reads(kind, 3, vF+48)
    m, va = comp(vF)
    ctl = (16, f"s_add_u32 s{sRb}, s{sRb}, 1\ns_cmp_eq_u32 s{sRb}, {nb}\ns_cselect_b32 s{sDl}, s{sC3}, {stg}\ns_cselect_b32 s{sRb}, 0, s{sRb}")
    adr = [(4, f"v_add_u32 v{r}, s{sDl}, v{r}") for r in list(range(vRX, vRX+4)) + ([vRW] if kind != "LK" else []) + ([vRQ] if kind in ("H", "LK") else [])]
    ctl2 = f"s_add_u32 s{sSt}, s{sSt}, 1\ns_cmp_lt_u32 s{sSt}, {8-LA}\ns_cselect_b64 vcc, -1, 0\ns_cmp_gt_u32 s{sSt}, {8-LA}"
    sync = f"s_cbranch_scc1 Lp1w_{tag}\ns_waitcnt vmcnt({(LA-1)*n}) lgkmcnt(0)\nLp1x_{tag}:\n{BARX}\nLp1y_{tag}:"
    k = 2
    nv = 10
    for x in spread(m[:-k], [(6, x) for x in rd] + [ctl] + adr + [(4, x) for x in va[:-nv]]): e(x)
    e(ctl2); e(sync)
    for x in spread(m[-k:], [(4, x) for x in va[-nv:]]): e(x)
    e(f"s_cmp_lg_u32 s{sSt}, {NST}\ns_cbranch_scc1 Lp1_{tag}")
    if kind == "H":
        e(f"v_mov_b32 v{vPoll}, {CNT_KV}\nbuffer_load_dword v{vPoll}, v{vPoll}, {sr(SDBG,4)}, 0 offen sc1")
    m, va = comp(vF+32)
    for x in spread(m, [(4, x) for x in va]): e(x)
    e(f"s_branch {done_label}")
    e(f"Lp1w_{tag}:\ns_waitcnt lgkmcnt(0)\ns_cmp_eq_u32 s{sSt}, {NST}\ns_cbranch_scc1 Lp1y_{tag}")
    for st in range(9-LA, 7):
        e(f"s_waitcnt vmcnt({(7-st)*n})\ns_cmp_eq_u32 s{sSt}, {st}\ns_cbranch_scc1 Lp1x_{tag}")
    e(f"s_waitcnt vmcnt(0)\ns_branch Lp1x_{tag}")

def o_prod_off(dst):
    e(f"""s_lshl_b32 s{sT0}, s{sI}, 2
    s_lshr_b32 s{sT1}, s{sW}, 1
    s_add_u32 s{sT0}, s{sT0}, s{sT1}
    s_lshl_b32 s{sT0}, s{sT0}, 5
    s_lshl_b32 s{sT1}, s{sJ}, 1
    s_and_b32 s{dst}, s{sW}, 1
    s_add_u32 s{sT1}, s{sT1}, s{dst}
    s_lshr_b32 s{dst}, s{sT1}, 2
    s_add_u32 s{sT0}, s{sT0}, s{dst}
    s_and_b32 s{sT1}, s{sT1}, 3
    s_lshl_b32 s{sT1}, s{sT1}, 3
    s_add_u32 s{sT0}, s{sT0}, s{sT1}
    s_lshl_b32 s{sT0}, s{sT0}, 10
    s_add_u32 s{dst}, s{sT0}, {OIMG}""")

def v_lane_addr(d):
    e(f"""v_and_b32 v{d}, 15, v{vLane}
    v_lshlrev_b32 v{d}, 4, v{d}
    v_lshl_add_u32 v{d}, v{vH}, 8, v{d}
    s_mov_b32 exec_lo, 0xffff0000
    s_mov_b32 exec_hi, 0xffff0000
    v_mov_b32 v{d}, 512""")
def early_init():
    o_prod_off(sOp)
    v_lane_addr(vAv)
    e(f"""s_mov_b32 exec_lo, 0xffee0000
    s_mov_b32 exec_hi, 0xffee0000
    v_mov_b32 v{vAv}, 0x4000000
    s_mov_b64 exec, -1
    v_add_u32 v{vAv}, 1024, v{vAv}
    v_lshlrev_b32 v{vAk}, 4, v{vLane}
    v_lshlrev_b32 v{vL16}, 4, v{vLane}
    v_mov_b32 v{vIdx}, 0xdddd
    v_lshrrev_b32 v{vT0}, 3, v{vLane}
    v_lshlrev_b32 v{vT0}, 10, v{vT0}
    v_and_b32 v{vT1}, 7, v{vLane}
    v_bfe_u32 v{vT2}, v{vLane}, 4, 1
    v_lshlrev_b32 v{vT2}, 2, v{vT2}
    v_xor_b32 v{vT1}, v{vT1}, v{vT2}
    v_lshl_add_u32 v{vDa}, v{vT1}, 4, v{vT0}
    s_lshl_b32 s{sDo}, s{sW}, 13
    s_lshl_b32 s{sT1}, s{sCS}, 7
    s_add_u32 s{sDo}, s{sDo}, s{sT1}
    s_lshl_b32 s{sDm}, s{sW}, 10
    s_lshr_b32 s{sKq}, s{sW}, 1
    s_and_b32 s{sTt}, s{sW}, 1
    s_lshl_b32 s{sT0}, s{sTB}, 1
    s_add_u32 s{sT2}, s{sT0}, s{sTt}
    s_mul_i32 s{sHo}, s{sT2}, 88
    s_mul_i32 s{sT0}, s{sKq}, 22
    s_add_u32 s{sHo}, s{sHo}, s{sT0}
    s_lshl_b32 s{sHo}, s{sHo}, 10
    s_add_u32 s{sHo}, s{sHo}, {HIMG}
    s_lshl_b32 s{sT0}, s{sT2}, 2
    s_add_u32 s{sT0}, s{sT0}, s{sKq}
    s_lshl_b32 s{sT0}, s{sT0}, 13
    s_add_u32 s{sOc}, s{sT0}, {OIMG}
    s_add_u32 s{sOc2}, s{sOc}, 4096
    s_lshl_b32 s{sT0}, s{sT2}, 15
    s_add_u32 s{sT0}, s{sT0}, s{sT1}
    s_lshl_b32 s{sT1}, s{sKq}, 5
    s_add_u32 s{sXf}, s{sT0}, s{sT1}
    s_lshr_b32 s{sHc}, s{sTB}, 1
    s_lshl_b32 s{sHc}, s{sHc}, 2
    s_add_u32 s{sHc}, s{sHc}, {CNT_H}
    s_lshl_b32 s{sHs}, s{sI}, 2
    s_add_u32 s{sHs}, s{sHs}, {CNT_H}
    s_add_u32 s{sT0}, s{sDm}, {QIMG}
    v_add_u32 v{vAq}, s{sT0}, v{vL16}
    v_and_b32 v{vT0}, 31, v{vLane}
    v_lshlrev_b32 v{vT0}, 10, v{vT0}
    v_lshl_add_u32 v{vRa}, v{vH}, 4, v{vT0}
    v_bfe_u32 v{vT0}, v{vLane}, 2, 2
    v_lshl_add_u32 v{vT0}, v{vH}, 2, v{vT0}
    v_lshlrev_b32 v{vT0}, 7, v{vT0}
    v_bfe_u32 v{vT1}, v{vLane}, 4, 1
    v_lshl_add_u32 v{vT0}, v{vT1}, 5, v{vT0}
    v_and_b32 v{vT1}, 3, v{vLane}
    v_lshl_add_u32 v{vT0}, v{vT1}, 3, v{vT0}
    v_bfe_u32 v{vT1}, v{vLane}, 3, 1
    v_lshl_add_u32 v{vT0}, v{vT1}, 6, v{vT0}
    s_lshl_b32 s{sT0}, s{sKq}, 11
    v_add_u32 v{vRd}, s{sT0}, v{vT0}
    v_xor_b32 v{vRd+1}, 64, v{vRd}
    v_add_u32 v{vRd+2}, 0xe000, v{vRd}
    v_add_u32 v{vRd+3}, 0xe000, v{vRd+1}
    v_add_u32 v{vRd+4}, 0x1c000, v{vRd}
    v_add_u32 v{vRd+5}, 0x1c000, v{vRd+1}
    s_mul_i32 s{sT1}, s{sTt}, {4*ASL}
    s_add_u32 s{sT1}, s{sT1}, {RED}
    s_add_u32 s{sT0}, s{sT0}, s{sT1}
    v_add_u32 v{vRw}, s{sT0}, v{vL16}
    s_mul_i32 s{sT0}, s{sKq}, {ASL}
    s_add_u32 s{sT0}, s{sT0}, s{sT1}
    v_add_u32 v{vRr}, s{sT0}, v{vL16}""")
    for r in range(12): e(f"v_mov_b32 v{vO+r}, 0")

def prologue(kind):
    nb = NBK if kind[-1] == "K" else 3
    for x in dma_stage(kind): e(x)
    common_init(kind)
    for _ in range(nb-2):
        for x in dma_stage(kind): e(x)
    early_init()
    if kind in ("L", "H") and TOUCH: touch(kind)
def sentinel(r):
    for k in range(4): e(f"v_mov_b32 v{r+k}, -1")
    e(f"buffer_store_dwordx4 {vr(r,4)}, v{vL16}, {sr(SWS,4)}, s{sOp} offen sc1")

def touch(kind):
    t = f"Lt{kind}"
    e(f"s_and_b32 s{sT2}, s{sI}, 7\ns_lshl_b32 s{sT2}, s{sT2}, 5\ns_add_u32 s{sT2}, s{sT2}, 256")
    for v in range(1, 4): e(f"s_cmp_eq_u32 s{sW4}, {v}\ns_cbranch_scc1 {t}{v}")
    e(f"""v_lshrrev_b32 v{vT0}, 1, v{vLane}
    v_mul_u32_u24 v{vT0}, 2752, v{vT0}
    v_and_b32 v{vT1}, 1, v{vLane}
    v_lshl_add_u32 v{vT0}, v{vT1}, 7, v{vT0}
    s_mul_i32 s{sT0}, s{sJ}, 96
    s_min_u32 s{sT0}, s{sT0}, 1280
    s_lshl_b32 s{sT0}, s{sT0}, 1
    s_mul_i32 s{sT2}, s{sT2}, 2752
    s_add_u32 s{sT0}, s{sT0}, s{sT2}
    buffer_load_dword v{vPoll}, v{vT0}, {sr(SWG,4)}, s{sT0} offen
    s_branch {t}e""")
    if kind == "L":
        e(f"""{t}1:
        v_and_b32 v{vT0}, 31, v{vLane}
        v_lshlrev_b32 v{vT0}, 10, v{vT0}
        s_lshl_b32 s{sT2}, s{sT2}, 10
        s_lshl_b32 s{sT0}, s{sJ}, 6
        s_add_u32 s{sT0}, s{sT0}, s{sT2}
        buffer_load_dword v{vPoll}, v{vT0}, {sr(SWQ,4)}, s{sT0} offen
        s_branch {t}e
        {t}2:
        {t}3:
        v_lshrrev_b32 v{vT0}, 2, v{vLane}
        v_lshlrev_b32 v{vT0}, 10, v{vT0}
        v_and_b32 v{vT1}, 3, v{vLane}
        v_lshl_add_u32 v{vT0}, v{vT1}, 7, v{vT0}
        s_lshl_b32 s{sT0}, s{sI}, 17
        s_and_b32 s{sT1}, s{sJ}, 3
        s_lshl_b32 s{sT1}, s{sT1}, 15
        s_add_u32 s{sT0}, s{sT0}, s{sT1}
        s_and_b32 s{sT1}, s{sW}, 1
        s_lshl_b32 s{sT1}, s{sT1}, 14
        s_add_u32 s{sT0}, s{sT0}, s{sT1}
        buffer_load_dword v{vPoll}, v{vT0}, {sr(SX,4)}, s{sT0} offen offset:512""")
    else:
        e(f"""{t}1:
        v_lshlrev_b32 v{vT0}, 15, v{vLane}
        buffer_load_dword v{vPoll}, v{vT0}, {sr(SWD,4)}, 0 offen
        s_branch {t}e
        {t}2:
        v_lshlrev_b32 v{vT0}, 15, v{vLane}
        buffer_load_dword v{vPoll}, v{vT0}, {sr(SWO,4)}, 0 offen
        s_branch {t}e
        {t}3:
        v_lshlrev_b32 v{vT0}, 17, v{vLane}
        buffer_load_dword v{vPoll}, v{vT0}, {sr(SWS,4)}, 0 offen""")
    e(f"{t}e:")

def cs_write(acc, slot_expr_sreg):
    e(f"""v_and_b32 v{vT0}, 1, v{vLane}
    v_lshlrev_b32 v{vT0}, 6, v{vT0}
    v_lshrrev_b32 v{vT1}, 4, v{vLane}
    v_lshl_add_u32 v{vT0}, v{vT1}, 4, v{vT0}
    v_add_u32 v{vT0}, {slot_expr_sreg}, v{vT0}
    s_mov_b32 exec_lo, 0x00030003
    s_mov_b32 exec_hi, 0x00030003
    ds_write_b128 v{vT0}, {vr(acc,4)}
    s_mov_b64 exec, -1""")

def stats_post(tile_sreg, part):
    e(f"""v_add_f32 v{vSt}, v{vSt}, v{vSt+1}
    v_add_f32 v{vSt+2}, v{vSt+2}, v{vSt+3}
    v_mov_b32 v{vSt+1}, v{vSt}
    v_mov_b32 v{vSt+3}, v{vSt+2}
    v_and_b32 v{vT0}, 31, v{vLane}
    s_lshl_b32 s{sT0}, s{tile_sreg}, 7
    v_permlane32_swap_b32 v{vSt}, v{vSt+1}
    v_permlane32_swap_b32 v{vSt+2}, v{vSt+3}
    s_add_u32 s{sT0}, s{sT0}, {STATM+1024*part}
    v_lshl_add_u32 v{vT0}, v{vT0}, 2, s{sT0}
    v_add_f32 v{vSt}, v{vSt}, v{vSt+1}
    v_add_f32 v{vSt+2}, v{vSt+2}, v{vSt+3}
    ds_write_b32 v{vT0}, v{vSt}
    ds_write_b32 v{vT0}, v{vSt+2} offset:512""")
def stats_read(d, addr, off):
    e(f"ds_read2st64_b32 {vr(d,2)}, v{addr} offset0:0 offset1:2" if off == 0 else f"ds_read2_b32 {vr(d,2)}, v{addr} offset0:{off//4} offset1:{(off+512)//4}")
    e(f"ds_read_b32 v{d+2}, v{addr} offset:{off+1024}\nds_read_b32 v{d+3}, v{addr} offset:{off+1536}")
def stats_fin(d, m, r):
    e(f"""v_add_f32 v{d}, v{d}, v{d+2}
    v_add_f32 v{d+1}, v{d+1}, v{d+3}
    v_mul_f32 v{m}, {f2u(1/512):#x}, v{d}
    v_mul_f32 v{d+1}, {f2u(1/512):#x}, v{d+1}
    v_fma_f32 v{d+1}, -v{m}, v{m}, v{d+1}
    v_max_f32 v{d+1}, 0, v{d+1}
    v_add_f32 v{d+1}, {f2u(1e-5):#x}, v{d+1}
    v_rsq_f32 v{r}, v{d+1}
    s_nop 0""")

C1 = -2*0.7978845608028654*1.4426950408889634
C3 = C1*0.044715
def gelu_consts(m, r, d):
    e(f"""v_sub_f32 v{d}, 0, v{m}
    v_mul_f32 v{d+3}, v{r}, v{r}
    v_mul_f32 v{d+1}, {f2u(C1):#x}, v{r}
    v_mul_f32 v{d+2}, {f2u(C3):#x}, v{r}
    v_mul_f32 v{d+2}, v{d+2}, v{d+3}
    v_rcp_f32 v{d+3}, v{d+3}""")
def bc(reg, pos, n):
    base = reg & ~1
    return vr(base, 2), reg & 1
def pk(op, d, srcs, neg=None):
    ops = []; lo = []; hi = []
    for t, r in srcs:
        if t == 'p': ops.append(vr(r, 2)); lo.append(0); hi.append(1)
        else: ops.append(vr(r & ~1, 2)); lo.append(r & 1); hi.append(r & 1)
    return f"{op} {vr(d,2)}, {', '.join(ops)} op_sel:[{','.join(map(str,lo))}] op_sel_hi:[{','.join(map(str,hi))}]"
def gelu_tile(g, u, csg, csu, k, tmp):
    for p in range(0, 16, 2):
        e(pk("v_pk_fma_f32", g+p, [('b', k), ('p', csg+p), ('p', g+p)]))
        e(pk("v_pk_fma_f32", u+p, [('b', k), ('p', csu+p), ('p', u+p)]))
    for p in range(0, 16, 2):
        e(pk("v_pk_mul_f32", tmp+p, [('p', g+p), ('p', g+p)]))
    for p in range(0, 16, 2):
        e(pk("v_pk_fma_f32", tmp+p, [('p', tmp+p), ('b', k+2), ('b', k+1)]))
    for p in range(0, 16, 2):
        e(pk("v_pk_mul_f32", tmp+p, [('p', tmp+p), ('p', g+p)]))
    for p in range(16): e(f"v_exp_f32 v{tmp+p}, v{tmp+p}")
    for p in range(0, 16, 2):
        e(pk("v_pk_mul_f32", u+p, [('p', u+p), ('p', g+p)]))
    for p in range(0, 16, 2):
        e(pk("v_pk_fma_f32", tmp+p, [('p', tmp+p), ('b', k+3), ('b', k+3)]))
    for p in range(16): e(f"v_rcp_f32 v{tmp+p}, v{tmp+p}")
    e("s_nop 0")
    for p in range(0, 16, 2):
        e(pk("v_pk_mul_f32", u+p, [('p', u+p), ('p', tmp+p)]))
    for p in range(8): e(f"v_cvt_pk_bf16_f32 v{g+p}, v{u+2*p}, v{u+2*p+1}")

def cs_read(d, slot_off):
    for q in range(4): e(f"ds_read_b128 {vr(d+4*q,4)}, v{vT3} offset:{slot_off+32*q}")

def lin_fold(acc, cs, negm, scale, n=16):
    for p in range(0, n, 2):
        e(pk("v_pk_fma_f32", acc+p, [('b', negm), ('p', cs+p), ('p', acc+p)]))
    for p in range(0, n, 2):
        e(pk("v_pk_mul_f32", acc+p, [('p', acc+p), ('b', scale)]))

def q_epilogue(cs):
    e(f"v_mul_f32 v{vSt+2}, {f2u(0.25*1.4426950408889634):#x}, v{vSt+1}")
    lin_fold(vAcc, cs, vSt+4, vSt+2)
    for p in range(8): e(f"v_cvt_pk_bf16_f32 v{vAcc+p}, v{vAcc+2*p}, v{vAcc+2*p+1}")
    e(f"""s_lshl_b32 s{sT0}, s{sW4}, 11
    s_add_u32 s{sT0}, s{sT0}, {QIMG}
    v_lshl_add_u32 v{vT0}, v{vLane}, 4, s{sT0}
    ds_write_b128 v{vT0}, {vr(vAcc,4)}
    ds_write_b128 v{vT0}, {vr(vAcc+4,4)} offset:1024""")

def h_off(dst, tile_add_sreg, unit_add):
    e(f"""s_lshl_b32 s{sT0}, s{sI}, 2
    s_add_u32 s{sT0}, s{sT0}, s{tile_add_sreg}
    s_mul_i32 s{sT0}, s{sT0}, 88
    s_mul_i32 s{sT1}, s{sJ}, 6
    s_min_u32 s{sT1}, s{sT1}, 80
    s_add_u32 s{sT1}, s{sT1}, {unit_add}
    s_lshr_b32 s{dst}, s{sT1}, 2
    s_add_u32 s{sT0}, s{sT0}, s{dst}
    s_and_b32 s{sT1}, s{sT1}, 3
    s_mul_i32 s{sT1}, s{sT1}, 22
    s_add_u32 s{sT0}, s{sT0}, s{sT1}
    s_lshl_b32 s{sT0}, s{sT0}, 10
    s_add_u32 s{dst}, s{sT0}, {HIMG}""")
def h_store(acc, so):
    e(f"buffer_store_dwordx4 {vr(acc,4)}, v{vT2}, {sr(SWS,4)}, s{so} offen sc1")
    e(f"s_add_u32 s{so}, s{so}, {22*1024}")
    e(f"buffer_store_dwordx4 {vr(acc+4,4)}, v{vT2}, {sr(SWS,4)}, s{so} offen sc1")
def kv_dma(tag):
    e(f"""s_lshl_b32 s{sT0}, s{sW4}, 10
    v_lshlrev_b32 v{vT0}, 4, v{vLane}
    Lkvd_{tag}:
    s_mov_b32 m0, s{sT0}
    s_nop 0
    buffer_load_dwordx4 v{vT0}, {sr(SWS,4)}, s{sT0} offen sc1 lds
    s_add_u32 s{sT0}, s{sT0}, 4096
    s_cmp_lt_u32 s{sT0}, {36*1024}
    s_cbranch_scc1 Lkvd_{tag}""")

prologue("L")
for v in range(1, 4): e(f"s_cmp_eq_u32 s{sW}, {v}\ns_cbranch_scc1 LL{v}")
for v in range(4):
    e(f"LL{v}:")
    p1_loop("L", v, "LepiL")
e("LepiL:")
stamp(1)
e(f"s_and_b32 s{sT2}, s{sW}, 1\ns_lshl_b32 s{sT2}, s{sT2}, 1\ns_lshr_b32 s{sT3}, s{sW}, 1\ns_add_u32 s{sT2}, s{sT2}, s{sT3}")
stats_post(sT2, 1)
e(f"s_lshl_b32 s{sT1}, s{sW}, 7\ns_add_u32 s{sT1}, s{sT1}, {CSUM+128}")
cs_write(vCs, f"s{sT1}")
e(f"""s_lshr_b32 s{sT0}, s{sW}, 1
s_lshl_b32 s{sT0}, s{sT0}, 8
s_add_u32 s{sT0}, s{sT0}, {CSUM+128}
v_lshl_add_u32 v{vT3}, v{vH}, 4, s{sT0}
s_and_b32 s{sT1}, s{sW}, 1
s_lshl_b32 s{sT1}, s{sT1}, 8
s_add_u32 s{sT1}, s{sT1}, {STATM}
v_and_b32 v{vT0}, 31, v{vLane}
v_lshl_add_u32 v{vT0}, v{vT0}, 2, s{sT1}
s_waitcnt lgkmcnt(0)
s_barrier""")
stats_read(vSt+12, vT0, 0); stats_read(vSt+16, vT0, 128)
cs_read(vF, 0); cs_read(vF+16, 128)
e(f"s_and_b32 s{sT3}, s{sW}, 1\ns_lshl_b32 s{sT3}, s{sT3}, 1\ns_and_b32 s{sC0}, s{sW}, 2")
h_off(sT2, sT3, f"s{sC0}")
e(f"s_add_u32 s{sT3}, s{sT2}, {88*1024}\nv_lshlrev_b32 v{vT2}, 4, v{vLane}\ns_waitcnt lgkmcnt(0)")
stats_fin(vSt+12, vSt, vSt+1); stats_fin(vSt+16, vSt+2, vSt+3)
gelu_consts(vSt, vSt+1, vSt+4); gelu_consts(vSt+2, vSt+3, vSt+8)
for tt in range(2):
    gelu_tile(vAcc+32*tt, vAcc+32*tt+16, vF, vF+16, vSt+4+4*tt, vSt+12)
    h_store(vAcc+32*tt, sT2 if tt == 0 else sT3)
e("s_branch Lp2")

e("LproH:")
prologue("H")
for v in range(1, 4): e(f"s_cmp_eq_u32 s{sW4}, {v}\ns_cbranch_scc1 LH{v}")
for v in range(4):
    e(f"LH{v}:")
    p1_loop("H", v, "LepiH")
e("LepiH:")
stamp(1)
stats_post(sW4, 0)
e(f"v_mov_b32 v{vT2}, v{vT0}")
e(f"""s_cmp_eq_u32 s{sW4}, 3
s_cbranch_scc1 LHnocs
s_add_u32 s{sT1}, s{sW4}, 4
s_cmp_eq_u32 s{sW4}, 0
s_cselect_b32 s{sT1}, 0, s{sT1}
s_lshl_b32 s{sT1}, s{sT1}, 7
s_add_u32 s{sT1}, s{sT1}, {CSUM}""")
cs_write(vCs, f"s{sT1}")
e(f"""LHnocs:
v_mov_b32 v{vT3}, {CSUM}
v_lshl_add_u32 v{vT3}, v{vH}, 4, v{vT3}
s_waitcnt lgkmcnt(0)
s_barrier""")
stats_read(vSt+12, vT2, 0)
cs_read(vAcc+48, 0); cs_read(vF, 5*128); cs_read(vF+16, 6*128)
h_off(sT2, sW4, 4)
e(f"v_lshlrev_b32 v{vT2}, 4, v{vLane}\ns_waitcnt lgkmcnt(0)")
stats_fin(vSt+12, vSt, vSt+1)
gelu_consts(vSt, vSt+1, vSt+4)
q_epilogue(vAcc+48)
e(f"s_waitcnt vmcnt(0)\nv_readfirstlane_b32 s{sRetry}, v{vPoll}\ns_cmp_lt_u32 s{sRetry}, 16\ns_cbranch_scc1 LHnodma")
kv_dma("a")
e("LHnodma:")
stamp(13)
gelu_tile(vAcc+16, vAcc+32, vF, vF+16, vSt+4, vSt+12)
h_store(vAcc+16, sT2)
e(f"s_cmp_lt_u32 s{sRetry}, 16\ns_cbranch_scc1 Lkvwait\ns_waitcnt vmcnt(2)\ns_branch Lp2")

e("Lkvcu:")
WKV = 131072
vXf, vWk = 32, 192
sXb = sMw
e(f"""s_lshl_b32 s{sT0}, s{sW}, 11
v_lshlrev_b32 v{vWa0}, 4, v{vLane}
s_add_u32 m0, s{sT0}, {WKV}
s_lshl_b32 s{sXb}, s{sW}, 14
buffer_load_dwordx4 v{vWa0}, {sr(SWV,4)}, s{sT0} offen lds
buffer_load_dwordx4 v{vWa0}, {sr(SWV,4)}, s{sT0} offen offset:1024 lds
s_add_u32 m0, s{sT0}, {WKV+16384}
s_lshl_b32 s{sXo}, s{sI}, 17
buffer_load_dwordx4 v{vWa0}, {sr(SWK,4)}, s{sT0} offen lds
buffer_load_dwordx4 v{vWa0}, {sr(SWK,4)}, s{sT0} offen offset:1024 lds
s_lshl_b32 s{sT0}, s{sW4}, 15
s_add_u32 s{sXo}, s{sXo}, s{sT0}
s_lshr_b32 s{sT3}, s{sW}, 2
s_lshl_b32 s{sT0}, s{sT3}, 9
s_add_u32 s{sXo}, s{sXo}, s{sT0}""")
def kvx_dma(c):
    return [f"""s_add_u32 m0, s{sXb}, {4096*c+2048*hf}
        s_add_u32 s{sT0}, s{sXo}, {128*c+16384*hf}
        buffer_load_dwordx4 v{vXa0}, {sr(SX,4)}, s{sT0} offen lds
        buffer_load_dwordx4 v{vXa1}, {sr(SX,4)}, s{sT0} offen offset:1024 lds""" for hf in range(2)]
for x in kvx_dma(0): e(x)
common_init("KV")
for x in kvx_dma(1): e(x)
e("s_waitcnt vmcnt(4)\ns_barrier")
stamp(12)
def kv_reads(c):
    r = []
    for ks in range(4):
        W = vWk + 16*(c & 1) + 4*ks
        r += [f"ds_read_b128 {vr(vXf+16*c+4*ks,4)}, v{vRX+ks} offset:{4096*c}"]
        r += tr(W, vRW, (64*c+16*ks)*32) + tr(W+2, vRW, (64*c+16*ks+4)*32)
    return r
for x in kv_reads(0): e(x)
for c in range(4):
    m = []; va = []
    for ks in range(4):
        X = vXf+16*c+4*ks; W = vWk + 16*(c & 1) + 4*ks
        m += [mfma(vAcc+16, W, X), mfma16(vCs, W, vSel), mfma(vAcc+32, X, W)]
        va += stats_ops(X)
    fill = [(4, x) for x in va]
    if c < 2: fill = [(16, x) for x in kvx_dma(c+2)] + fill
    if c < 3: fill = fill[:56] + [(4, f"s_waitcnt vmcnt({4 if c < 2 else 0})")] + [(6, x) for x in kv_reads(c+1)] + fill[56:]
    e("s_waitcnt lgkmcnt(0)")
    for x in spread(m, fill): e(x)
stamp(1)
e(f"""v_add_f32 v{vSt}, v{vSt}, v{vSt+1}
v_add_f32 v{vSt+2}, v{vSt+2}, v{vSt+3}
v_mov_b32 v{vSt+1}, v{vSt}
v_mov_b32 v{vSt+3}, v{vSt+2}
v_and_b32 v{vT2}, 31, v{vLane}
v_lshlrev_b32 v{vT2}, 2, v{vT2}
v_permlane32_swap_b32 v{vSt}, v{vSt+1}
v_permlane32_swap_b32 v{vSt+2}, v{vSt+3}
v_add_u32 v{vT1}, s{sXb}, v{vT2}
s_xor_b32 s{sT2}, s{sXb}, 65536
v_add_f32 v{vSt+20}, v{vSt}, v{vSt+1}
v_add_f32 v{vSt+21}, v{vSt+2}, v{vSt+3}
ds_write_b32 v{vT1}, v{vSt+20} offset:4096
ds_write_b32 v{vT1}, v{vSt+21} offset:4224
s_add_u32 s{sT1}, s{sXb}, 4352""")
cs_write(vCs, f"s{sT1}")
e(f"""v_add_u32 v{vT0}, s{sXb}, v{vWa0}
v_add_u32 v{vWa1}, s{sT2}, v{vWa0}
v_add_u32 v{vWa2}, s{sT2}, v{vT2}
v_lshl_add_u32 v{vT3}, v{vH}, 4, s{sXb}
s_lshl_b32 s{sT0}, s{sI}, 2
s_add_u32 s{sT0}, s{sT0}, s{sW4}
s_mul_i32 s{sC0}, s{sT0}, {KVT}
s_lshl_b32 s{sQo}, s{sW}, 16
s_add_u32 s{sQo}, s{sQo}, {64*15}
s_lshl_b32 s{sMq}, s{sW}, 12
s_add_u32 s{sMq}, s{sMq}, {WKV}
s_cmp_ge_u32 s{sW}, 4
s_cbranch_scc1 LkvH""")
def wq_dma():
    for k in range(4):
        e(f"s_add_u32 m0, s{sMq}, {1024*k}\ns_add_u32 s{sT0}, s{sQo}, {16384*k}\nbuffer_load_dwordx4 v{vQa}, {sr(SWQ,4)}, s{sT0} offen lds")
for q in range(4): e(f"ds_write_b128 v{vT0}, {vr(vAcc+32+4*q,4)} offset:{1024*q}")
e(f"v_xor_b32 v{vT1}, 0x10000, v{vT3}\ns_waitcnt lgkmcnt(0)\ns_barrier")
e(f"""ds_read_b32 v{vSt+22}, v{vWa2} offset:4096
ds_read_b32 v{vSt+23}, v{vWa2} offset:4224
ds_read_b128 {vr(vWk,4)}, v{vWa1}
ds_read_b128 {vr(vWk+4,4)}, v{vWa1} offset:1024
ds_read_b128 {vr(vSt+12,4)}, v{vT3} offset:{4352+64}
ds_read_b128 {vr(vSt+16,4)}, v{vT3} offset:{4352+96}
ds_read_b128 {vr(vWk+8,4)}, v{vT1} offset:{4352+64}
ds_read_b128 {vr(vWk+12,4)}, v{vT1} offset:{4352+96}""")
wq_dma()
e(f"""v_and_b32 v{vT0}, 0x33, v{vLane}
v_bfe_u32 v{vT1}, v{vLane}, 2, 1
v_lshl_or_b32 v{vT0}, v{vT1}, 3, v{vT0}
v_bfe_u32 v{vT1}, v{vLane}, 3, 1
v_lshl_or_b32 v{vT0}, v{vT1}, 2, v{vT0}
v_lshlrev_b32 v{vT0}, 4, v{vT0}
s_waitcnt lgkmcnt(0)""")
stats_fin(vSt+20, vSt, vSt+1)
e(f"v_sub_f32 v{vSt+4}, 0, v{vSt}")
for p in range(0, 8, 2):
    e(pk("v_pk_add_f32", vAcc+24+p, [('p', vAcc+24+p), ('p', vWk+p)]))
    e(pk("v_pk_add_f32", vSt+12+p, [('p', vSt+12+p), ('p', vWk+8+p)]))
lin_fold(vAcc+24, vSt+12, vSt+4, vSt+1, 8)
for p in range(4): e(f"v_cvt_pk_bf16_f32 v{vAcc+16+p}, v{vAcc+24+2*p}, v{vAcc+25+2*p}")
e(f"buffer_store_dwordx4 {vr(vAcc+16,4)}, v{vT0}, {sr(SWS,4)}, s{sC0} offen sc1\ns_branch LkvS")
e("LkvH:")
e(f"ds_write_b128 v{vT0}, {vr(vAcc+24,4)}\nds_write_b128 v{vT0}, {vr(vAcc+28,4)} offset:1024")
e(f"v_add_u32 v{vT1}, s{sXb}, v{vT2}\ns_waitcnt lgkmcnt(0)\ns_barrier")
e(f"""ds_read_b32 v{vSt+22}, v{vWa2} offset:4096
ds_read_b32 v{vSt+23}, v{vWa2} offset:4224
ds_read_b32 v{vSt+6}, v{vT1} offset:4352
ds_read_b32 v{vSt+7}, v{vWa2} offset:4352""")
for q in range(4): e(f"ds_read_b128 {vr(vAcc+48+4*q,4)}, v{vWa1} offset:{1024*q}")
wq_dma()
e("s_waitcnt lgkmcnt(0)")
stats_fin(vSt+20, vSt, vSt+1)
e(f"ds_write_b32 v{vT1}, v{vSt} offset:4608\nds_write_b32 v{vT1}, v{vSt+1} offset:4736\ns_waitcnt lgkmcnt(0)")
for q in range(4):
    e(f"ds_read_b128 {vr(vWk+4*q,4)}, v{vT3} offset:{4608+32*q}\nds_read_b128 {vr(vWk+16+4*q,4)}, v{vT3} offset:{4736+32*q}")
e(f"v_add_f32 v{vSt+6}, v{vSt+6}, v{vSt+7}\nv_sub_f32 v{vSt+6}, 0, v{vSt+6}")
for p in range(0, 16, 2): e(pk("v_pk_add_f32", vAcc+32+p, [('p', vAcc+32+p), ('p', vAcc+48+p)]))
e("s_waitcnt lgkmcnt(0)")
for p in range(0, 16, 2): e(pk("v_pk_fma_f32", vAcc+32+p, [('p', vWk+p), ('b', vSt+6), ('p', vAcc+32+p)]))
for p in range(0, 16, 2): e(pk("v_pk_mul_f32", vAcc+32+p, [('p', vAcc+32+p), ('p', vWk+16+p)]))
for p in range(8): e(f"v_cvt_pk_bf16_f32 v{vAcc+32+p}, v{vAcc+32+2*p}, v{vAcc+33+2*p}")
v_lane_addr(vT0)
for p in range(8): e(f"v_mov_b32 v{vAcc+32+p}, 0x3f803f80")
e(f"""s_mov_b32 exec_lo, 0x1ffff
s_mov_b32 exec_hi, 0xffff
buffer_store_dwordx4 {vr(vAcc+32,4)}, v{vT0}, {sr(SWS,4)}, s{sC0} offen offset:1024 sc1
buffer_store_dwordx4 {vr(vAcc+36,4)}, v{vT0}, {sr(SWS,4)}, s{sC0} offen offset:{1024+528} sc1
s_mov_b64 exec, -1
LkvS:""")
for r in range(4): e(f"v_mov_b32 v{vCs+r}, 0")
e("s_waitcnt vmcnt(0)\ns_barrier")
signal(CNT_KV, "kv")
stamp(13)
early_init()
def q_reads(c):
    r = []
    for ks in range(4):
        W = vWk + 16*(c & 1) + 4*ks
        r += tr(W, vRQ, (64*c+16*ks)*64) + tr(W+2, vRQ, (64*c+16*ks+4)*64)
    return r
for x in q_reads(0): e(x)
for c in range(4):
    m = []
    for ks in range(4):
        X = vXf+16*c+4*ks; W = vWk + 16*(c & 1) + 4*ks
        m += [mfma(vAcc, W, X), mfma16(vCs, W, vSel)]
    e("s_waitcnt lgkmcnt(0)")
    for x in interleave(m[:4], q_reads(c+1) if c < 3 else []) + m[4:]: e(x)
e(f"""s_or_b32 s{sT2}, s{sXb}, {65536+8192}
s_lshr_b32 s{sT3}, s{sW}, 2
s_lshl_b32 s{sT3}, s{sT3}, 7
s_add_u32 s{sT1}, s{sT2}, s{sT3}
s_add_u32 s{sT1}, s{sT1}, 4096
v_add_u32 v{vWa1}, s{sT2}, v{vWa0}
v_lshl_add_u32 v{vT3}, v{vH}, 4, s{sT2}
s_nop 3""")
cs_write(vCs, f"s{sT1}")
e(f"s_cmp_ge_u32 s{sW}, 4\ns_cbranch_scc1 LkvH2\ns_waitcnt lgkmcnt(0)\ns_barrier")
for q in range(4): e(f"ds_read_b128 {vr(vWk+4*q,4)}, v{vWa1} offset:{1024*q}")
cs_read(vAcc+48, 4096); cs_read(vWk+16, 4096+128)
e("s_waitcnt lgkmcnt(0)")
for p in range(0, 16, 2):
    e(pk("v_pk_add_f32", vAcc+p, [('p', vAcc+p), ('p', vWk+p)]))
    e(pk("v_pk_add_f32", vAcc+48+p, [('p', vAcc+48+p), ('p', vWk+16+p)]))
q_epilogue(vAcc+48)
e("s_branch Lp2\nLkvH2:")
for q in range(4): e(f"ds_write_b128 v{vWa1}, {vr(vAcc+4*q,4)} offset:{1024*q}")
e("s_waitcnt lgkmcnt(0)\ns_barrier")
e("Lkvwait:")
stamp(16)
poll(CNT_KV, 16, "kv")
stamp(17)
kv_dma("b")
e("s_waitcnt vmcnt(0)")

vm = []
def vtag(tag): vm.append(tag)
def vwait_s(tag):
    idx = max(i for i, t in enumerate(vm) if t == tag)
    return f"s_waitcnt vmcnt({min(63, len(vm)-1-idx)})"
def w_dma(G):
    srdw, row = (SWD, 64*G) if G < 22 else (SWO, 64*(G-22))
    return [f"s_add_u32 m0, s{sDm}, {GSLOT[G]}", f"s_add_u32 s{sT0}, s{sDo}, {row*1024}",
            (f"g{G}", f"buffer_load_dwordx4 v{vDa}, {sr(srdw,4)}, s{sT0} offen lds")]
def w_reads(G, F):
    a = GSLOT[G]; win = a // 0xe000; off = a - win*0xe000
    r0, r1 = vRd+2*win, vRd+2*win+1
    return tr(F, r0, off) + tr(F+2, r0, off+1024) + tr(F+4, r1, off) + tr(F+6, r1, off+1024)
def emit_seq(seq):
    for x in seq:
        if isinstance(x, list): emit_seq(x)
        elif isinstance(x, tuple): vtag(x[0]); e(x[1])
        elif callable(x): e(x())
        else: e(x)
e("Lp2:")
stamp(2)
sentinel(vC); vtag("sent")
e("s_waitcnt lgkmcnt(0)\ns_barrier")
stamp(3)
e(f"""ds_read_b128 {vr(vQ,4)}, v{vAq}
ds_read_b128 {vr(vKf[0],4)}, v{vAk}
ds_read_b128 {vr(vKf[1],4)}, v{vAk} offset:{KVT}
ds_read_b128 {vr(vVl[0],4)}, v{vAv}
s_waitcnt lgkmcnt(2)""")
e(mfma(vS[0], vKf[0], vQ, "0"))
e("s_nop 11")
e(f"v_max3_f32 v{vT1}, v{vS[0]}, v{vS[0]+1}, v{vS[0]+2}")
for p in range(3, 15, 2): e(f"v_max3_f32 v{vT1}, v{vT1}, v{vS[0]+p}, v{vS[0]+p+1}")
e(f"""v_max_f32 v{vT1}, v{vT1}, v{vS[0]+15}
v_mov_b32 v{vT2}, v{vT1}
s_nop 1
v_permlane32_swap_b32 v{vT1}, v{vT2}
s_nop 1
v_max_f32 v{vT1}, v{vT1}, v{vT2}""")
for r in range(16): e(f"v_sub_f32 v{vC+r}, 0, v{vT1}")
for r in range(16): e(f"v_sub_f32 v{vS[0]+r}, v{vS[0]+r}, v{vT1}")
stamp(5)
side = {T: [] for T in range(64)}
xm = {T: [] for T in range(65)}
for n in range(12):
    side[n].append([f"s_add_u32 s{sT0}, s{sDm}, {(36+8*n)*1024}", f"s_mov_b32 m0, s{sT0}", "s_nop 0",
                    ("kv", f"buffer_load_dwordx4 v{vL16}, {sr(SWS,4)}, s{sT0} offen sc1 lds")])
for T0, Gs in ((8, range(0, 5)), (16, range(5, 7)), (24, range(7, 9)), (32, range(9, 15)), (40, range(15, 22)),
               (48, range(22, 28)), (56, range(28, 30))):
    for n, G in enumerate(Gs): side[T0 + (n//2 if T0 != 8 else n+2)].append(w_dma(G))
side[18].append([f"v_mov_b32 v{vPoll}, s{sHc}", ("poll", f"buffer_load_dword v{vPoll}, v{vPoll}, {sr(SDBG,4)}, 0 offen sc1")])
for i in range(22):
    T = 24 + (i*16)//22
    c = [f"s_add_u32 s{sC0}, s{sHo}, {1024*i}"] if i % 4 == 0 else []
    side[T].append(c + [(f"h{i}", f"buffer_load_dwordx4 {vr(vHf+4*i,4)}, v{vL16}, {sr(SWS,4)}, s{sC0} offen offset:{1024*(i%4)} sc1")])
lastm = {}
for T0, span, Gs in ((26, 6, range(0, 4)), (32, 8, range(4, 9)), (40, 8, range(9, 15)), (48, 8, range(15, 22))):
    k = len(Gs)
    for n, G in enumerate(Gs):
        F = vWf[G % 3]
        t0 = T0 + (2*n*span)//(2*k); t1 = T0 + ((2*n+1)*span)//(2*k)
        lastm[G] = t1+1
        assert G < 3 or t0 > lastm[G-3]
        for x in w_reads(G, F): side[t0].append([x])
        c0 = "0" if G == 0 else None
        w = (lambda g=G: vwait_s(f"h{g}"))
        m0, m1 = mfma(vAf[0], F, vHf+4*G, c0), mfma(vAf[1], F+4, vHf+4*G, c0)
        if G == 21:
            xm[t0+1].append([w, f"s_cmp_ge_u32 s{sKq}, 2", "s_cbranch_scc1 Lskip21", m0, m1, "Lskip21:"])
        else:
            xm[t0+1].append([w, m0]); xm[t1+1].append([m1])
for q in range(8):
    side[58 + (q*6)//8].append([f"ds_write_b128 v{vRw}, {vr(vAf[0]+4*q,4)} offset:{ASL*(q//2)+1024*(q%2)}"])
side[60].append([("x", f"buffer_load_dwordx4 {vr(vWf[0],4)}, v{vRa}, {sr(SX,4)}, s{sXf} offen")])
if "--noside" in sys.argv:
    keep = {18: side[18][-1:], 60: side[60][-1:]}
    side = {T: keep.get(T, []) for T in range(64)}; xm = {T: [] for T in range(65)}
    vm += ["kv", "g6", "g8", "g14", "g21"]
def last_txt(c): return c[-1][1] if isinstance(c[-1], tuple) else c[-1]
def last_tag(c): return c[-1][0] if isinstance(c[-1], tuple) else ""
if "--dx" in sys.argv:
    dx = sys.argv[sys.argv.index("--dx")+1]
    vm += ["kv", "g6", "g8", "g14", "g21"] + [f"h{i}" for i in range(22)]
    for T in range(64):
        if "w" in dx: side[T] = [c for c in side[T] if not last_tag(c).startswith("g")]
        if "h" in dx: side[T] = [c for c in side[T] if not last_tag(c).startswith("h")]
        if "r" in dx: side[T] = [c for c in side[T] if "ds_" not in last_txt(c)]
        if "k" in dx: side[T] = [c for c in side[T] if last_tag(c) != "kv"]
        if "m" in dx: xm[T] = []
PRI = int(sys.argv[sys.argv.index("--pri")+1]) if "--pri" in sys.argv else 2
lastg = {16: "kv", 24: "g6", 32: "g8", 40: "g14", 48: "g21"}
for T in range(64):
    X = vS[T & 1]; Y = vS[(T+1) & 1]
    rel = T % 16
    e("s_waitcnt lgkmcnt(0)")
    if T and T % 8 == 0:
        if "--abar" in sys.argv: stamp(29+3*(T//8))
        if T == 8: e(vwait_s("sent"))
        if T in lastg: e(vwait_s(lastg[T]))
        if T == 24:
            e(vwait_s("poll"))
            e(f"v_readfirstlane_b32 s{sT1}, v{vPoll}\ns_cmp_ge_u32 s{sT1}, 16\ns_cbranch_scc1 Lhok")
            poll(f"s{sHc}", 16, "h")
            e("Lhok:")
        if "--abar" in sys.argv: stamp(30+3*(T//8))
        if "--noabar" not in sys.argv or T == 8: e("s_barrier")
        if "--abar" in sys.argv: stamp(31+3*(T//8))
        if T == 8: signal(f"s{sHs}", "h")
        if rel == 0: e(f"v_add_u32 v{vAk}, {16*KVT}, v{vAk}\nv_add_u32 v{vAv}, {16*KVT}, v{vAv}")
    if PRI == 2 and T % 2 == 0: e(f"s_setprio {3-(T%8)//2}")
    if PRI == 16 and T % 16 == 0: e(f"s_setprio {3-T//16}")
    if PRI == 0 and T == 0: e("s_setprio 0")
    ex = [f"v_exp_f32 v{X+i}, v{X+i}" for i in range(16)]
    rd = [f"ds_read_b128 {vr(vVh,4)}, v{vAv} offset:{rel*KVT+528}"]
    if T+1 < 64: rd.append(f"ds_read_b128 {vr(vVl[(T+1)&1],4)}, v{vAv} offset:{(rel+1)*KVT}")
    if T+2 < 64: rd.append(f"ds_read_b128 {vr(vKf[T&1],4)}, v{vAk} offset:{(rel+2)*KVT}")
    seq = ex[0:2] + ([smf(vO, vVh, Y+8, vIdx)] if T else []) + interleave(ex[2:5], rd)
    if T+1 < 64: seq.append(mfma(Y, vKf[(T+1) & 1], vQ, vr(vC, 16)))
    x2 = xm[T]
    assert len(x2) <= 2
    if len(x2) == 2: tail = ex[5:8] + [x2[0]] + ex[8:11] + [smf(vO, vVl[T & 1], X, vIdx)] + ex[11:14] + [x2[1]] + ex[14:16]
    else: tail = ex[5:10] + [smf(vO, vVl[T & 1], X, vIdx)] + ex[10:14] + x2 + ex[14:16]
    if "--nord" in sys.argv and T > 2: seq = [x for x in seq if "ds_read" not in x]
    if side[T]: tail = interleave(tail[:-3], side[T]) + tail[-3:]
    emit_seq(seq + tail)
assert not xm[64]
e("s_waitcnt lgkmcnt(0)\ns_nop 0")
e(smf(vO, vVh, vS[1]+8, vIdx))
e(f"s_mov_b32 s{sRetry}, 0")
e("Lfin:")
e(f"""s_nop 9
s_mov_b32 s{sC0}, {f2u(2.0**40):#x}
s_mov_b32 s{sC1}, {f2u(2.0**126):#x}
v_rcp_f32 v{vO+10}, v{vO+8}
v_max3_f32 v{vT1}, abs(v{vO}), abs(v{vO+1}), abs(v{vO+2})
v_max3_f32 v{vT1}, v{vT1}, abs(v{vO+3}), abs(v{vO+4})
v_max3_f32 v{vT1}, v{vT1}, abs(v{vO+5}), abs(v{vO+6})
v_max_f32 v{vT1}, v{vT1}, abs(v{vO+7})
v_cmp_nlt_f32 vcc, v{vO+8}, s{sC0}
v_cmp_nlt_f32 s[{sEx}:{sEx+1}], v{vT1}, s{sC1}""")
for p in range(8): e(f"v_mul_f32 v{vO+p}, v{vO+p}, v{vO+10}")
e(f"s_or_b64 vcc, vcc, s[{sEx}:{sEx+1}]")
for p in range(4): e(f"v_cvt_pk_bf16_f32 v{vO+p}, v{vO+2*p}, v{vO+2*p+1}")
for p in range(4): e(f"v_min_u32 v{vO+p}, -2, v{vO+p}")
e("s_cbranch_vccnz Lfallback\nLok:" if "--noside" not in sys.argv and "--dx" not in sys.argv else "Lok:")
emit_seq([("o", f"buffer_store_dwordx4 {vr(vO,4)}, v{vL16}, {sr(SWS,4)}, s{sOp} offen sc1")])
stamp(6)

def o_loads():
    for k in range(8):
        e(f"buffer_load_dwordx4 {vr(vOf+4*k,4)}, v{vL16}, {sr(SWS,4)}, s{sOc if k<4 else sOc2} offen offset:{1024*(k%4)} sc1")
def reduce_read(acc):
    for q in range(4):
        e(f"ds_read_b128 {vr(acc+8*q,4)}, v{vRr} offset:{2048*q}\nds_read_b128 {vr(acc+8*q+4,4)}, v{vRr} offset:{2048*q+1024}")
def reduce_sum(acc):
    for p in range(0, 8, 2):
        e(pk("v_pk_add_f32", acc+p, [('p', acc+p), ('p', acc+8+p)]))
        e(pk("v_pk_add_f32", acc+16+p, [('p', acc+16+p), ('p', acc+24+p)]))
    for p in range(0, 8, 2): e(pk("v_pk_add_f32", acc+p, [('p', acc+p), ('p', acc+16+p)]))
e(vwait_s("x"))
for p in range(4):
    e(f"v_lshlrev_b32 v{vXr+2*p}, 16, v{vWf[0]+p}\nv_and_b32 v{vXr+1+2*p}, 0xffff0000, v{vWf[0]+p}")
e("s_setprio 0\ns_barrier")
stamp(8)
o_loads()
reduce_read(vAf[0])
vWo = 168
WOF = [168+8*k for k in range(7)] + [vWf[1]]
e("s_waitcnt lgkmcnt(0)")
for k in range(3):
    for x in w_reads(22+k, WOF[k]): e(x)
reduce_sum(vAf[0])
for p in range(8): e(f"v_mul_f32 v{vAf[0]+8+p}, {f2u(-1.4426950408889634):#x}, v{vAf[0]+p}")
for p in range(8): e(f"v_exp_f32 v{vAf[0]+8+p}, v{vAf[0]+8+p}")
for k in range(3, 6):
    for x in w_reads(22+k, WOF[k]): e(x)
for p in range(8): e(f"v_add_f32 v{vAf[0]+8+p}, 1.0, v{vAf[0]+8+p}")
for p in range(8): e(f"v_rcp_f32 v{vAf[0]+8+p}, v{vAf[0]+8+p}")
for k in range(6, 8):
    for x in w_reads(22+k, WOF[k]): e(x)
for p in range(8): e(f"v_mul_f32 v{vAf[0]+p}, v{vAf[0]+p}, v{vAf[0]+8+p}")
e("s_barrier")
stamp(9)
e(f"s_mov_b32 s{sT0}, 0\nLow:\ns_waitcnt vmcnt(0)")
e(f"v_max3_u32 v{vT1}, v{vOf}, v{vOf+1}, v{vOf+2}")
for p in range(3, 31, 2): e(f"v_max3_u32 v{vT1}, v{vT1}, v{vOf+p}, v{vOf+p+1}")
e(f"""v_max_u32 v{vT1}, v{vT1}, v{vOf+31}
v_cmp_eq_u32 vcc, -1, v{vT1}
s_add_u32 s{sT0}, s{sT0}, 1
s_cmp_ge_u32 s{sT0}, 100000
s_cbranch_vccz Lod
s_cbranch_scc1 Lod""")
o_loads()
e("s_branch Low\nLod:\ns_waitcnt lgkmcnt(0)")
stamp(7)
for k in range(8): e(mfma(vAs[0], WOF[k], vOf+4*k, "0" if k == 0 else None))
wr = [f"ds_write_b128 v{vRw}, {vr(vAs[0]+4*q,4)} offset:{ASL*(q//2)+1024*(q%2)}" for q in range(8)]
m1 = [mfma(vAs[1], WOF[k]+4, vOf+4*k, "0" if k == 0 else None) for k in range(8)]
for x in m1[:3] + ["s_nop 8"] + interleave(m1[3:], wr[:4]) + ["s_nop 10"] + wr[4:]: e(x)
stamp(10)
e("s_waitcnt lgkmcnt(0)\ns_barrier")
reduce_read(vAs[0])
e("s_waitcnt lgkmcnt(0)")
reduce_sum(vAs[0])
for p in range(0, 8, 2): e(pk("v_pk_mul_f32", vAs[0]+p, [('p', vAs[0]+p), ('p', vAf[0]+p)]))
e("s_nop 1")
for p in range(4): e(f"v_permlane32_swap_b32 v{vAs[0]+p}, v{vAs[0]+4+p}")
e("s_nop 1")
for p in range(0, 8, 2): e(pk("v_pk_add_f32", vAs[0]+p, [('p', vAs[0]+p), ('p', vXr+p)]))
for p in range(4): e(f"v_cvt_pk_bf16_f32 v{vAs[0]+p}, v{vAs[0]+2*p}, v{vAs[0]+2*p+1}")
e(f"buffer_store_dwordx4 {vr(vAs[0],4)}, v{vRa}, {sr(SOUT,4)}, s{sXf} offen")
stamp(11)
if RT: e(f"s_waitcnt vmcnt(0)\ns_memrealtime s[100:101]\ns_waitcnt lgkmcnt(0)\nv_mov_b32 v0, s100\nbuffer_store_dword v0, off, {sr(SWS,4)}, s{sPo} offset:56")
e("Lend:\ns_endpgm")

e("Lfallback:")
e(f"""s_cmp_lg_u32 s{sRetry}, 0
s_cbranch_scc1 Lok
s_mov_b32 s{sRetry}, 1
s_mov_b32 s{sSt}, 0
v_mov_b32 v{vT1}, 0xff800000
Lfb1:
buffer_load_dwordx4 {vr(vKf[0],4)}, v{vL16}, {sr(SWS,4)}, s{sSt} offen sc1
s_waitcnt vmcnt(0)""")
e(mfma(vS[0], vKf[0], vQ, "0"))
e("s_nop 11")
for p in range(0, 16, 2): e(f"v_max3_f32 v{vT1}, v{vT1}, v{vS[0]+p}, v{vS[0]+p+1}")
e(f"""s_add_u32 s{sSt}, s{sSt}, {KVT}
s_cmp_lt_u32 s{sSt}, {64*KVT}
s_cbranch_scc1 Lfb1
v_mov_b32 v{vT2}, v{vT1}
s_nop 1
v_permlane32_swap_b32 v{vT1}, v{vT2}
s_nop 1
v_max_f32 v{vT1}, v{vT1}, v{vT2}""")
for r in range(16): e(f"v_sub_f32 v{vC+r}, 0, v{vT1}")
for r in range(12): e(f"v_mov_b32 v{vO+r}, 0")
e(f"""v_subrev_u32 v{vAv}, {48*KVT}, v{vAv}
s_mov_b32 s{sSt}, 0
Lfb2:
buffer_load_dwordx4 {vr(vKf[0],4)}, v{vL16}, {sr(SWS,4)}, s{sSt} offen sc1
buffer_load_dwordx4 {vr(vVl[0],4)}, v{vAv}, {sr(SWS,4)}, s{sSt} offen sc1
buffer_load_dwordx4 {vr(vVh,4)}, v{vAv}, {sr(SWS,4)}, s{sSt} offen offset:528 sc1
s_waitcnt vmcnt(0)""")
e(mfma(vS[0], vKf[0], vQ, vr(vC, 16)))
e("s_nop 11")
for i in range(16): e(f"v_exp_f32 v{vS[0]+i}, v{vS[0]+i}")
e("s_nop 1")
e(smf(vO, vVl[0], vS[0], vIdx)); e(smf(vO, vVh, vS[0]+8, vIdx))
e(f"""s_add_u32 s{sSt}, s{sSt}, {KVT}
s_cmp_lt_u32 s{sSt}, {64*KVT}
s_cbranch_scc1 Lfb2
s_branch Lfin""")

L += ['.section .rodata,"a"', ".p2align 6", f".amdhsa_kernel {NAME}_kernel",
      "  .amdhsa_next_free_vgpr 256", "  .amdhsa_next_free_sgpr 102", "  .amdhsa_accum_offset 256",
      "  .amdhsa_group_segment_fixed_size 0", "  .amdhsa_kernarg_size 96", "  .amdhsa_user_sgpr_count 2",
      "  .amdhsa_user_sgpr_kernarg_segment_ptr 1", "  .amdhsa_system_sgpr_workgroup_id_x 1", ".end_amdhsa_kernel"]
open(OUT, "w").write("\n".join(L) + "\n")
print("wrote", OUT, len(L), "lines")
```

```python
import sys, struct
NAME = "recurrent_scan__grouped_kv_mqa__geglu_ffn__prompt"
PROF = "--prof" in sys.argv
OUT = [a for a in sys.argv[1:] if not a.startswith("--")]
OUT = OUT[0] if OUT else f"cdna_kernels/{NAME}.s"

L = []
def e(s):
    for ln in s.split("\n"):
        if not ln.strip(): continue
        L.append(("    " + ln.strip()) if not ln.strip().endswith(":") else ln.strip())
def f2u(x): return struct.unpack("<I", struct.pack("<f", x))[0]
def vr(a, n): return f"v[{a}:{a+n-1}]"
def sr(a, n): return f"s[{a}:{a+n-1}]"

KVT = 2080
KVIMG = 0
HIMG = 135168
OIMG = HIMG + 64*88*1024
PROFO = OIMG + 64*32*1024
WS_BYTES = PROFO + 256*8*16*8
CNT_KV = 0
CNT_H = 64
CNT_O = 128
STG = 45056
XOFF, GOFF, UOFF, QOFF = 0, 16384, 28672, 40960
STGK, QOFFK, NBK = 24832, 20736, 5
QIMG = 135168
STATM = 160768
CSUM = 162816
MRX = 159744
ZERO = 163712
FLAG = 163776
LDS_BYTES = 163840
SX, SWQ, SWK, SWV, SWO, SWG, SWD, SOUT, SDBG, SWS = 4, 8, 12, 16, 20, 24, 28, 32, 36, 40
sI, sJ, sW, sW4 = 44, 45, 46, 47
sXo, sWo, sQo, sLb = 48, 49, 50, 51
sMx, sMw, sMq = 52, 53, 54
sSt, sDl, sT0, sT1, sT2, sT3 = 55, 56, 57, 58, 59, 60
sTB, sCS, sRetry, sRb = 61, 62, 63, 3
sEx = 88
sTm = 90
sPo = 92
sC0, sC1, sC2, sC3 = 94, 95, 96, 97
sOp = 98
TOUCH = int("--touch" in sys.argv)
vLane, vH, vT0, vT1, vT2, vT3 = 1, 2, 3, 4, 5, 6
vXa0, vXa1, vWa0, vWa1, vWa2, vQa = 7, 8, 9, 10, 11, 12
vRX = 13
vRW, vRQ = 17, 18
vSel = 20
vCs = 24
vF = 32
vAcc = 96
vSt = 160
vPoll = 19

nstamp = [0]
def stamp(k):
    if not PROF: return
    e(f"""s_memtime s[{sTm}:{sTm+1}]
    s_waitcnt lgkmcnt(0)
    v_mov_b32 v0, s{sTm}
    buffer_store_dword v0, off, {sr(SWS,4)}, s{sPo} offset:{4*k}""")
    if k in RTS:
        e(f"""s_memrealtime s[{sTm}:{sTm+1}]
        s_waitcnt lgkmcnt(0)
        v_mov_b32 v0, s{sTm}
        buffer_store_dword v0, off, {sr(SWS,4)}, s{sPo} offset:{4*RTS[k]}""")
RTS = {12: 24, 1: 25, 5: 26, 6: 27, 11: 28}

def tick(acc):
    if not PROF or "--notick" in sys.argv: return ""
    r = f"s_memtime s[{sTm}:{sTm+1}]\ns_waitcnt lgkmcnt(0)\n"
    if acc is not None: r += f"s_sub_u32 s99, s{sTm}, s99\ns_add_u32 s{acc}, s{acc}, s99\n"
    return r + f"s_mov_b32 s99, s{sTm}"

def interleave(main, fill):
    out = []; n = len(main); m = len(fill); k = 0
    for i, a in enumerate(main):
        out.append(a)
        t = (m * (i + 1)) // n
        out += fill[k:t]; k = t
    return out

def mfma(d, a, b, c=None):
    c = vr(d, 16) if c is None else c
    return f"v_mfma_f32_32x32x16_bf16 {vr(d,16)}, {vr(a,4)}, {vr(b,4)}, {c}"
def mfma16(d, a, b): return f"v_mfma_f32_16x16x32_bf16 {vr(d,4)}, {vr(a,4)}, {vr(b,4)}, {vr(d,4)}"
def smf(d, a, b, idx): return f"v_smfmac_f32_32x32x32_bf16 {vr(d,16)}, {vr(a,4)}, {vr(b,8)}, v{idx}"

def poll(cnt_off_sreg_or_imm, target, tag):
    e(f"v_mov_b32 v{vT0}, {cnt_off_sreg_or_imm}")
    e(f"s_mov_b32 s{sT0}, 0")
    e(f"""Lpoll_{tag}:
    buffer_load_dword v{vT1}, v{vT0}, {sr(SDBG,4)}, 0 offen sc1
    s_waitcnt vmcnt(0)
    v_readfirstlane_b32 s{sT1}, v{vT1}
    s_add_u32 s{sT0}, s{sT0}, 1
    s_cmp_ge_u32 s{sT1}, {target}
    s_cbranch_scc1 Lpolld_{tag}
    s_cmp_ge_u32 s{sT0}, 100000
    s_cbranch_scc1 Lpolld_{tag}
    s_sleep 6
    s_branch Lpoll_{tag}
    Lpolld_{tag}:""")

def signal(cnt_off, tag):
    e(f"""s_cmp_lg_u32 s{sW}, 0
    s_cbranch_scc1 Lsig_{tag}
    v_mov_b32 v{vT0}, {cnt_off}
    v_mov_b32 v{vT1}, 1
    s_mov_b64 exec, 1
    buffer_atomic_add v{vT1}, v{vT0}, {sr(SDBG,4)}, 0 offen sc1
    s_mov_b64 exec, -1
    Lsig_{tag}:""")

hdr = open(f"cdna_kernels/{NAME}.s.ref").read().split("\n")
hdr = [h for h in hdr[:15] if h.startswith(";") and "@launch" not in h]
L += hdr
L.append(f"; @launch grid=(256,1,1) block=(512,1,1) lds={LDS_BYTES}")
L += ['.amdgcn_target "amdgcn-amd-amdhsa--gfx950"', ".text", f".globl {NAME}_kernel", ".p2align 8",
      f".type {NAME}_kernel,@function"]
e(f"{NAME}_kernel:")
RT = PROF and "--notick" in sys.argv
if RT: e("s_memrealtime s[100:101]\ns_memtime s[98:99]")
e(f"""s_cmp_ge_u32 s2, 256
s_cbranch_scc1 Lend
s_load_dwordx16 s[64:79], s[0:1], 0
s_load_dwordx8 s[80:87], s[0:1], 64
v_and_b32 v{vLane}, 63, v0
v_lshrrev_b32 v{vT0}, 6, v0
v_lshrrev_b32 v{vH}, 5, v{vLane}
v_readfirstlane_b32 s{sW}, v{vT0}
s_and_b32 s{sT0}, s2, 7
s_lshr_b32 s{sT1}, s2, 3
s_and_b32 s{sI}, s{sT0}, 1
s_lshl_b32 s{sI}, s{sI}, 3
s_and_b32 s{sT2}, s{sT1}, 7
s_add_u32 s{sI}, s{sI}, s{sT2}
s_lshr_b32 s{sJ}, s{sT0}, 1
s_lshl_b32 s{sJ}, s{sJ}, 2
s_lshr_b32 s{sT3}, s{sT1}, 3
s_sub_u32 s{sJ}, s{sJ}, s{sT3}
s_add_u32 s{sJ}, s{sJ}, 3
s_and_b32 s{sTB}, s{sT0}, 3
s_lshl_b32 s{sTB}, s{sTB}, 3
s_add_u32 s{sTB}, s{sTB}, s{sT2}
s_lshr_b32 s{sCS}, s{sT0}, 2
s_lshl_b32 s{sCS}, s{sCS}, 2
s_add_u32 s{sCS}, s{sCS}, s{sT3}
s_and_b32 s{sW4}, s{sW}, 3""")
e(f"""v_lshrrev_b32 v{vT0}, 3, v{vLane}
v_lshlrev_b32 v{vT0}, 10, v{vT0}
v_and_b32 v{vT1}, 7, v{vLane}
v_lshrrev_b32 v{vT2}, 4, v{vLane}
v_xor_b32 v{vT1}, v{vT1}, v{vT2}
v_lshl_add_u32 v{vXa0}, v{vT1}, 4, v{vT0}
v_xor_b32 v{vXa1}, 64, v{vXa0}
v_add_u32 v{vXa1}, {8192-1024}, v{vXa1}""")
for k, r in enumerate((vWa0, vWa1, vWa2)):
    e(f"""v_add_u32 v{vT0}, {64*k}, v{vLane}
    v_mul_u32_u24 v{vT1}, 43691, v{vT0}
    v_lshrrev_b32 v{vT1}, 19, v{vT1}
    v_mul_u32_u24 v{vT2}, 12, v{vT1}
    v_sub_u32 v{vT0}, v{vT0}, v{vT2}
    v_mul_u32_u24 v{vT1}, 2752, v{vT1}
    v_lshl_add_u32 v{r}, v{vT0}, 4, v{vT1}""")
    if k: e(f"v_subrev_u32 v{r}, {1024*k}, v{r}")
e(f"""v_lshrrev_b32 v{vT0}, 2, v{vLane}
v_lshlrev_b32 v{vT0}, 10, v{vT0}
v_and_b32 v{vT1}, 3, v{vLane}
v_lshl_add_u32 v{vQa}, v{vT1}, 4, v{vT0}""")
e(f"""s_lshl_b32 s{sXo}, s{sI}, 17
s_lshl_b32 s{sT0}, s{sW}, 14
s_add_u32 s{sXo}, s{sXo}, s{sT0}
s_mul_i32 s{sT0}, s{sJ}, 96
s_min_u32 s{sT0}, s{sT0}, 1280
s_lshl_b32 s{sT0}, s{sT0}, 1
s_mul_i32 s{sWo}, s{sW4}, {16*2752}
s_add_u32 s{sWo}, s{sWo}, s{sT0}
s_lshl_b32 s{sQo}, s{sW4}, 14
s_lshl_b32 s{sT0}, s{sJ}, 6
s_add_u32 s{sQo}, s{sQo}, s{sT0}
s_lshl_b32 s{sMx}, s{sW}, 11
s_mul_i32 s{sMw}, s{sW}, 3072
s_add_u32 s{sMw}, s{sMw}, {GOFF}
s_lshl_b32 s{sMq}, s{sW4}, 10
s_add_u32 s{sMq}, s{sMq}, {QOFF}
s_mov_b32 s{sLb}, 0
s_mov_b32 s{sRetry}, 0
s_mov_b32 s{sC3}, {(-2*STG) & 0xffffffff}
s_waitcnt lgkmcnt(0)""")
def srd(d, p, nbytes):
    e(f"s_mov_b32 s{d}, s{p}\ns_mov_b32 s{d+1}, s{p+1}\ns_mov_b32 s{d+2}, {nbytes}\ns_mov_b32 s{d+3}, 0x20000")
srd(SX, 64, 2048*1024); srd(SWQ, 66, 512*1024)
e(f"s_cmp_ge_u32 s{sW}, 4\ns_cselect_b32 s{SWG}, s78, s76\ns_cselect_b32 s{SWG+1}, s79, s77\ns_mov_b32 s{SWG+2}, {512*2752}\ns_mov_b32 s{SWG+3}, 0x20000")
srd(SWS, 86, WS_BYTES)
srd(SWK, 68, 16384); srd(SWV, 70, 16384); srd(SWO, 72, 512*1024)
srd(SWD, 80, 1376*1024); srd(SOUT, 82, 2048*1024); srd(SDBG, 84, 256)
if PROF:
    e(f"s_lshl_b32 s{sPo}, s2, 3\ns_add_u32 s{sPo}, s{sPo}, s{sW}\ns_lshl_b32 s{sPo}, s{sPo}, 7\ns_add_u32 s{sPo}, s{sPo}, {PROFO}")
stamp(0)
if RT: e(f"s_nop 1\nv_mov_b32 v0, s100\nbuffer_store_dword v0, off, {sr(SWS,4)}, s{sPo} offset:60\ns_nop 1\nv_mov_b32 v0, s98\nbuffer_store_dword v0, off, {sr(SWS,4)}, s{sPo} offset:16")
elif PROF: e("s_mov_b32 s100, 0\ns_mov_b32 s101, 0")
def dma_groups(kind):
    gx = [f"s_add_u32 m0, s{sLb}, s{sMx}", "s_nop 0",
          f"buffer_load_dwordx4 v{vXa0}, {sr(SX,4)}, s{sXo} offen lds"]
    gx2 = [f"buffer_load_dwordx4 v{vXa1}, {sr(SX,4)}, s{sXo} offen offset:1024 lds", f"s_add_u32 s{sXo}, s{sXo}, 128"]
    w0 = [f"s_add_u32 m0, s{sLb}, s{sMw}", "s_nop 0", f"buffer_load_dwordx4 v{vWa0}, {sr(SWG,4)}, s{sWo} offen lds"]
    w1 = [f"buffer_load_dwordx4 v{vWa1}, {sr(SWG,4)}, s{sWo} offen offset:1024 lds"]
    w2 = [f"buffer_load_dwordx4 v{vWa2}, {sr(SWG,4)}, s{sWo} offen offset:2048 lds", f"s_add_u32 s{sWo}, s{sWo}, {64*2752}"]
    q = [f"s_add_u32 m0, s{sLb}, s{sMq}", "s_nop 0", f"buffer_load_dwordx4 v{vQa}, {sr(SWQ,4)}, s{sQo} offen lds",
         f"s_add_u32 s{sQo}, s{sQo}, 65536"]
    stg, nb = (STGK, NBK) if kind[-1] == "K" else (STG, 3)
    adv = [f"s_add_u32 s{sLb}, s{sLb}, {stg}", f"s_cmp_ge_u32 s{sLb}, {nb*stg}", f"s_cselect_b32 s{sLb}, 0, s{sLb}"]
    if kind == "L": return [gx+gx2, w0+w1, w2, q+adv]
    if kind == "H": return [gx+gx2, w0, w1, w2+adv]
    if kind == "HK": return [gx, gx2, w0+[f"s_add_u32 s{sWo}, s{sWo}, 2048"], adv]
    if kind == "LK": return [gx, gx2, q, adv]
def dma_stage(kind): return sum(dma_groups(kind), [])
NDMA = {"L": 6, "H": 5, "LK": 3, "HK": 3}
NX = {"L": TOUCH, "H": TOUCH, "LK": 0, "HK": 0}

e(f"""s_cmp_eq_u32 s{sJ}, 15
s_cbranch_scc1 Lkvcu
s_cmp_ge_u32 s{sW}, 4
s_cbranch_scc1 LproH""")

def common_init(kind):
    e(f"""v_and_b32 v{vT0}, 31, v{vLane}
    v_lshrrev_b32 v{vT1}, 1, v{vT0}
    v_and_b32 v{vT1}, 7, v{vT1}
    v_xor_b32 v{vT1}, v{vT1}, v{vH}
    v_lshlrev_b32 v{vT0}, 7, v{vT0}""")
    if kind == "L": e(f"s_and_b32 s{sT0}, s{sW}, 1\ns_lshl_b32 s{sT0}, s{sT0}, 13")
    elif kind == "KV": e(f"s_lshl_b32 s{sT0}, s{sW}, 14")
    else: e(f"s_lshl_b32 s{sT0}, s{sW4}, 12")
    e(f"v_add_u32 v{vT0}, s{sT0}, v{vT0}")
    for ks in range(4):
        e(f"v_xor_b32 v{vT2}, {2*ks}, v{vT1}\nv_lshl_add_u32 v{vRX+ks}, v{vT2}, 4, v{vT0}")
    e(f"""v_bfe_u32 v{vT0}, v{vLane}, 2, 2
    v_lshl_add_u32 v{vT0}, v{vH}, 3, v{vT0}
    v_bfe_u32 v{vT1}, v{vLane}, 4, 1
    v_and_b32 v{vT2}, 3, v{vLane}
    v_lshlrev_b32 v{vT2}, 3, v{vT2}
    v_lshl_add_u32 v{vT3}, v{vT1}, 5, v{vT2}
    v_lshl_add_u32 v{vRQ}, v{vT0}, 6, v{vT3}""")
    if kind == "KV":
        e(f"""v_lshlrev_b32 v{vT1}, 14, v{vT1}
        v_lshl_add_u32 v{vRW}, v{vT0}, 5, v{vT2}
        s_lshr_b32 s{sT0}, s{sW}, 2
        s_lshl_b32 s{sT0}, s{sT0}, 13
        s_add_u32 s{sT1}, s{sT0}, 131072
        v_add3_u32 v{vRW}, v{vRW}, v{vT1}, s{sT1}
        s_add_u32 s{sT1}, s{sT1}, s{sT0}
        v_add_u32 v{vRQ}, s{sT1}, v{vRQ}""")
    else:
        e(f"v_mul_u32_u24 v{vRW}, 192, v{vT0}\nv_add_u32 v{vRW}, v{vRW}, v{vT3}")
        if kind == "L": e(f"s_lshr_b32 s{sT0}, s{sW}, 1\ns_lshl_b32 s{sT0}, s{sT0}, 6\nv_add_u32 v{vRW}, s{sT0}, v{vRW}")
        else: e(f"v_add_u32 v{vRW}, 128, v{vRW}")
    e(f"""v_bfe_u32 v{vT0}, v{vLane}, 4, 1
    v_and_b32 v{vT1}, 15, v{vLane}
    v_cmp_eq_u32 vcc, v{vT0}, v{vT1}
    v_mov_b32 v{vT2}, 0x3f803f80
    s_nop 0
    v_cndmask_b32 v{vSel}, 0, v{vT2}, vcc""")
    for k in range(1, 4): e(f"v_mov_b32 v{vSel+k}, v{vSel}")
    for r in list(range(vCs, vCs+4)) + list(range(vAcc, vAcc+(64 if kind == 'L' else 48))) + list(range(vSt, vSt+4)):
        e(f"v_mov_b32 v{r}, 0")

def stats_ops(x, regs=range(4)):
    r = []
    for k in regs:
        lo, hi = vSt+4+2*(k & 1), vSt+5+2*(k & 1)
        r += [f"v_lshlrev_b32 v{lo}, 16, v{x+k}", f"v_and_b32 v{hi}, 0xffff0000, v{x+k}",
              f"v_add_f32 v{vSt}, v{vSt}, v{lo}", f"v_add_f32 v{vSt+1}, v{vSt+1}, v{hi}",
              f"v_fmac_f32 v{vSt+2}, v{lo}, v{lo}", f"v_fmac_f32 v{vSt+3}, v{hi}, v{hi}"]
    return r

def tr(d, a, off): return [f"ds_read_b64_tr_b16 {vr(d,2)}, v{a} offset:{off}"]
def p1_reads(kind, ks, F):
    if "--noread" in sys.argv: return []
    if kind == "L":
        return [f"ds_read_b128 {vr(F,4)}, v{vRX+ks}"] + tr(F+8, vRW, GOFF+(16*ks)*192) + tr(F+10, vRW, GOFF+(16*ks+4)*192) + \
               tr(F+12, vRW, UOFF+(16*ks)*192) + tr(F+14, vRW, UOFF+(16*ks+4)*192) + \
               [f"ds_read_b128 {vr(F+4,4)}, v{vRX+ks} offset:4096"]
    if kind == "H":
        return [f"ds_read_b128 {vr(F,4)}, v{vRX+ks}"] + tr(F+4, vRQ, QOFF+(16*ks)*64) + tr(F+6, vRQ, QOFF+(16*ks+4)*64) + \
               tr(F+8, vRW, GOFF+(16*ks)*192) + tr(F+10, vRW, GOFF+(16*ks+4)*192) + \
               tr(F+12, vRW, UOFF+(16*ks)*192) + tr(F+14, vRW, UOFF+(16*ks+4)*192)
    if kind == "HK":
        return [f"ds_read_b128 {vr(F,4)}, v{vRX+ks}"] + tr(F+8, vRW, GOFF+(16*ks)*32) + tr(F+10, vRW, GOFF+(16*ks+4)*32)
    if kind == "LK":
        return [f"ds_read_b128 {vr(F,4)}, v{vRX+ks}"] + tr(F+4, vRQ, QOFFK+(16*ks)*64) + tr(F+6, vRQ, QOFFK+(16*ks+4)*64)
def p1_comp(kind, var, F):
    if kind == "L":
        m = [mfma(vAcc, F+8, F), mfma(vAcc+16, F+12, F), mfma16(vCs, F+8+4*(var & 1), vSel), mfma(vAcc+32, F+8, F+4), mfma(vAcc+48, F+12, F+4)]
        return m, stats_ops(F+4*(var >> 1), (2, 3))
    if kind == "H":
        m = [mfma(vAcc, F+4, F), mfma(vAcc+16, F+8, F), mfma(vAcc+32, F+12, F)]
        if var < 3: m.insert(1, mfma16(vCs, F+4+4*var, vSel))
        return m, stats_ops(F, (0, 1))
    if kind == "HK":
        return [mfma(vAcc+16, F+8, F), mfma16(vCs, F+8, vSel), mfma(vAcc+32, F, F+8)], stats_ops(F, (0, 1))
    if kind == "LK":
        return [mfma(vAcc, F+4, F), mfma16(vCs, F+4, vSel)], stats_ops(F, (2, 3))

BARX = "s_nop 0" if "--nobar" in sys.argv else "s_barrier"
NST = 208 if "--rep" in sys.argv else 8
def spread(m, fill):
    w = [16 if "16x16" in x else 32 for x in m]
    tot = sum(c for c, _ in fill); W = sum(w)
    out = []; k = 0; acc = 0; cw = 0
    for x, wx in zip(m, w):
        out.append(x); cw += wx
        while k < len(fill) and (acc + fill[k][0]/2) * W <= tot * cw:
            out.append(fill[k][1]); acc += fill[k][0]; k += 1
    out += [t for _, t in fill[k:]]
    return out

def p1_loop(kind, var, done_label):
    tag = f"{kind}{var}"
    n = NDMA[kind]
    dg = dma_groups(kind)
    kv = kind[-1] == "K"
    stg, nb = (STGK, NBK) if kv else (STG, 3)
    LA = nb - 1
    if kind[0] == "H" and "--noprio" not in sys.argv: e("s_setprio 1")
    e(f"s_mov_b32 s{sSt}, 0\ns_mov_b32 s{sRb}, 0\ns_mov_b64 vcc, -1\ns_waitcnt vmcnt({(LA-1)*n+NX[kind]})\ns_barrier")
    stamp(12)
    def comp(F):
        m0, v0 = p1_comp(kind, var, F); m1, v1 = p1_comp(kind, var, F+16)
        if "--nostat" in sys.argv: v0 = v1 = ["s_nop 0"]*5
        if "--nomfma" in sys.argv: m0 = m1 = ["s_nop 0"]*2
        if "--nocs" in sys.argv: m0 = [x for x in m0 if "16x16" not in x]; m1 = [x for x in m1 if "16x16" not in x]
        return m0+m1, v0+v1
    def dblk(i, g): return (4*len(g)+8, "\n".join([f"s_cbranch_vccz Lnd{i}_{tag}"] + g + [f"Lnd{i}_{tag}:"]))
    rd = p1_reads(kind, 0, vF) + p1_reads(kind, 1, vF+16)
    for x in rd + sum(dg, []): e(x)
    e(f"s_branch Lp1h_{tag}")
    e(f".p2align 3\nLp1_{tag}:")
    m, va = comp(vF+32)
    hv = len(va)//2
    fill = [(6, x) for x in rd] + [dblk(0, dg[0])] + [(4, x) for x in va[:hv]] + [dblk(1, dg[1])] + [(4, x) for x in va[hv:]] + [dblk(2, dg[2]+dg[3])]
    for x in spread(m, fill): e(x)
    e(f"Lp1h_{tag}:\ns_waitcnt lgkmcnt(0)")
    rd = p1_reads(kind, 2, vF+32) + p1_reads(kind, 3, vF+48)
    m, va = comp(vF)
    ctl = (16, f"s_add_u32 s{sRb}, s{sRb}, 1\ns_cmp_eq_u32 s{sRb}, {nb}\ns_cselect_b32 s{sDl}, s{sC3}, {stg}\ns_cselect_b32 s{sRb}, 0, s{sRb}")
    adr = [(4, f"v_add_u32 v{r}, s{sDl}, v{r}") for r in list(range(vRX, vRX+4)) + ([vRW] if kind != "LK" else []) + ([vRQ] if kind in ("H", "LK") else [])]
    ctl2 = f"s_add_u32 s{sSt}, s{sSt}, 1\ns_cmp_lt_u32 s{sSt}, {8-LA}\ns_cselect_b64 vcc, -1, 0\ns_cmp_gt_u32 s{sSt}, {8-LA}"
    sync = f"s_cbranch_scc1 Lp1w_{tag}\ns_waitcnt vmcnt({(LA-1)*n}) lgkmcnt(0)\nLp1x_{tag}:\n{BARX}\nLp1y_{tag}:"
    k = 2
    nv = 10
    for x in spread(m[:-k], [(6, x) for x in rd] + [ctl] + adr + [(4, x) for x in va[:-nv]]): e(x)
    e(ctl2); e(sync)
    for x in spread(m[-k:], [(4, x) for x in va[-nv:]]): e(x)
    e(f"s_cmp_lg_u32 s{sSt}, {NST}\ns_cbranch_scc1 Lp1_{tag}")
    if kind == "H":
        e(f"v_mov_b32 v{vPoll}, {CNT_KV}\nbuffer_load_dword v{vPoll}, v{vPoll}, {sr(SDBG,4)}, 0 offen sc1")
    m, va = comp(vF+32)
    for x in spread(m, [(4, x) for x in va]): e(x)
    e(f"s_branch {done_label}")
    e(f"Lp1w_{tag}:\ns_waitcnt lgkmcnt(0)\ns_cmp_eq_u32 s{sSt}, {NST}\ns_cbranch_scc1 Lp1y_{tag}")
    for st in range(9-LA, 7):
        e(f"s_waitcnt vmcnt({(7-st)*n})\ns_cmp_eq_u32 s{sSt}, {st}\ns_cbranch_scc1 Lp1x_{tag}")
    e(f"s_waitcnt vmcnt(0)\ns_branch Lp1x_{tag}")

def o_prod_off(dst):
    e(f"""s_lshl_b32 s{sT0}, s{sI}, 2
    s_lshr_b32 s{sT1}, s{sW}, 1
    s_add_u32 s{sT0}, s{sT0}, s{sT1}
    s_lshl_b32 s{sT0}, s{sT0}, 5
    s_lshl_b32 s{sT1}, s{sJ}, 1
    s_and_b32 s{dst}, s{sW}, 1
    s_add_u32 s{sT1}, s{sT1}, s{dst}
    s_lshr_b32 s{dst}, s{sT1}, 2
    s_add_u32 s{sT0}, s{sT0}, s{dst}
    s_and_b32 s{sT1}, s{sT1}, 3
    s_lshl_b32 s{sT1}, s{sT1}, 3
    s_add_u32 s{sT0}, s{sT0}, s{sT1}
    s_lshl_b32 s{sT0}, s{sT0}, 10
    s_add_u32 s{dst}, s{sT0}, {OIMG}""")

def prologue(kind):
    nb = NBK if kind[-1] == "K" else 3
    for x in dma_stage(kind): e(x)
    common_init(kind)
    o_prod_off(sOp)
    for _ in range(nb-2):
        for x in dma_stage(kind): e(x)
    if kind in ("L", "H") and TOUCH: touch(kind)
def sentinel(r):
    for k in range(4): e(f"v_mov_b32 v{r+k}, -1")
    e(f"buffer_store_dwordx4 {vr(r,4)}, v{vL16}, {sr(SWS,4)}, s{sOp} offen sc1")

def touch(kind):
    t = f"Lt{kind}"
    e(f"s_and_b32 s{sT2}, s{sI}, 7\ns_lshl_b32 s{sT2}, s{sT2}, 5\ns_add_u32 s{sT2}, s{sT2}, 256")
    for v in range(1, 4): e(f"s_cmp_eq_u32 s{sW4}, {v}\ns_cbranch_scc1 {t}{v}")
    e(f"""v_lshrrev_b32 v{vT0}, 1, v{vLane}
    v_mul_u32_u24 v{vT0}, 2752, v{vT0}
    v_and_b32 v{vT1}, 1, v{vLane}
    v_lshl_add_u32 v{vT0}, v{vT1}, 7, v{vT0}
    s_mul_i32 s{sT0}, s{sJ}, 96
    s_min_u32 s{sT0}, s{sT0}, 1280
    s_lshl_b32 s{sT0}, s{sT0}, 1
    s_mul_i32 s{sT2}, s{sT2}, 2752
    s_add_u32 s{sT0}, s{sT0}, s{sT2}
    buffer_load_dword v{vPoll}, v{vT0}, {sr(SWG,4)}, s{sT0} offen
    s_branch {t}e""")
    if kind == "L":
        e(f"""{t}1:
        v_and_b32 v{vT0}, 31, v{vLane}
        v_lshlrev_b32 v{vT0}, 10, v{vT0}
        s_lshl_b32 s{sT2}, s{sT2}, 10
        s_lshl_b32 s{sT0}, s{sJ}, 6
        s_add_u32 s{sT0}, s{sT0}, s{sT2}
        buffer_load_dword v{vPoll}, v{vT0}, {sr(SWQ,4)}, s{sT0} offen
        s_branch {t}e
        {t}2:
        {t}3:
        v_lshrrev_b32 v{vT0}, 2, v{vLane}
        v_lshlrev_b32 v{vT0}, 10, v{vT0}
        v_and_b32 v{vT1}, 3, v{vLane}
        v_lshl_add_u32 v{vT0}, v{vT1}, 7, v{vT0}
        s_lshl_b32 s{sT0}, s{sI}, 17
        s_and_b32 s{sT1}, s{sJ}, 3
        s_lshl_b32 s{sT1}, s{sT1}, 15
        s_add_u32 s{sT0}, s{sT0}, s{sT1}
        s_and_b32 s{sT1}, s{sW}, 1
        s_lshl_b32 s{sT1}, s{sT1}, 14
        s_add_u32 s{sT0}, s{sT0}, s{sT1}
        buffer_load_dword v{vPoll}, v{vT0}, {sr(SX,4)}, s{sT0} offen offset:512""")
    else:
        e(f"""{t}1:
        v_lshlrev_b32 v{vT0}, 15, v{vLane}
        buffer_load_dword v{vPoll}, v{vT0}, {sr(SWD,4)}, 0 offen
        s_branch {t}e
        {t}2:
        v_lshlrev_b32 v{vT0}, 15, v{vLane}
        buffer_load_dword v{vPoll}, v{vT0}, {sr(SWO,4)}, 0 offen
        s_branch {t}e
        {t}3:
        v_lshlrev_b32 v{vT0}, 17, v{vLane}
        buffer_load_dword v{vPoll}, v{vT0}, {sr(SWS,4)}, 0 offen""")
    e(f"{t}e:")

def cs_write(acc, slot_expr_sreg):
    e(f"""v_and_b32 v{vT0}, 1, v{vLane}
    v_lshlrev_b32 v{vT0}, 6, v{vT0}
    v_lshrrev_b32 v{vT1}, 4, v{vLane}
    v_lshl_add_u32 v{vT0}, v{vT1}, 4, v{vT0}
    v_add_u32 v{vT0}, {slot_expr_sreg}, v{vT0}
    s_mov_b32 exec_lo, 0x00030003
    s_mov_b32 exec_hi, 0x00030003
    ds_write_b128 v{vT0}, {vr(acc,4)}
    s_mov_b64 exec, -1""")

def stats_post(tile_sreg, part):
    e(f"""v_add_f32 v{vSt}, v{vSt}, v{vSt+1}
    v_add_f32 v{vSt+2}, v{vSt+2}, v{vSt+3}
    v_mov_b32 v{vSt+1}, v{vSt}
    v_mov_b32 v{vSt+3}, v{vSt+2}
    v_and_b32 v{vT0}, 31, v{vLane}
    s_lshl_b32 s{sT0}, s{tile_sreg}, 7
    v_permlane32_swap_b32 v{vSt}, v{vSt+1}
    v_permlane32_swap_b32 v{vSt+2}, v{vSt+3}
    s_add_u32 s{sT0}, s{sT0}, {STATM+1024*part}
    v_lshl_add_u32 v{vT0}, v{vT0}, 2, s{sT0}
    v_add_f32 v{vSt}, v{vSt}, v{vSt+1}
    v_add_f32 v{vSt+2}, v{vSt+2}, v{vSt+3}
    ds_write_b32 v{vT0}, v{vSt}
    ds_write_b32 v{vT0}, v{vSt+2} offset:512""")
def stats_read(d, addr, off):
    e(f"ds_read2st64_b32 {vr(d,2)}, v{addr} offset0:0 offset1:2" if off == 0 else f"ds_read2_b32 {vr(d,2)}, v{addr} offset0:{off//4} offset1:{(off+512)//4}")
    e(f"ds_read_b32 v{d+2}, v{addr} offset:{off+1024}\nds_read_b32 v{d+3}, v{addr} offset:{off+1536}")
def stats_fin(d, m, r):
    e(f"""v_add_f32 v{d}, v{d}, v{d+2}
    v_add_f32 v{d+1}, v{d+1}, v{d+3}
    v_mul_f32 v{m}, {f2u(1/512):#x}, v{d}
    v_mul_f32 v{d+1}, {f2u(1/512):#x}, v{d+1}
    v_fma_f32 v{d+1}, -v{m}, v{m}, v{d+1}
    v_max_f32 v{d+1}, 0, v{d+1}
    v_add_f32 v{d+1}, {f2u(1e-5):#x}, v{d+1}
    v_rsq_f32 v{r}, v{d+1}
    s_nop 0""")

C1 = -2*0.7978845608028654*1.4426950408889634
C3 = C1*0.044715
def gelu_consts(m, r, d):
    e(f"""v_sub_f32 v{d}, 0, v{m}
    v_mul_f32 v{d+3}, v{r}, v{r}
    v_mul_f32 v{d+1}, {f2u(C1):#x}, v{r}
    v_mul_f32 v{d+2}, {f2u(C3):#x}, v{r}
    v_mul_f32 v{d+2}, v{d+2}, v{d+3}
    v_rcp_f32 v{d+3}, v{d+3}""")
def bc(reg, pos, n):
    base = reg & ~1
    return vr(base, 2), reg & 1
def pk(op, d, srcs, neg=None):
    ops = []; lo = []; hi = []
    for t, r in srcs:
        if t == 'p': ops.append(vr(r, 2)); lo.append(0); hi.append(1)
        else: ops.append(vr(r & ~1, 2)); lo.append(r & 1); hi.append(r & 1)
    return f"{op} {vr(d,2)}, {', '.join(ops)} op_sel:[{','.join(map(str,lo))}] op_sel_hi:[{','.join(map(str,hi))}]"
def gelu_tile(g, u, csg, csu, k, tmp):
    for p in range(0, 16, 2):
        e(pk("v_pk_fma_f32", g+p, [('b', k), ('p', csg+p), ('p', g+p)]))
        e(pk("v_pk_fma_f32", u+p, [('b', k), ('p', csu+p), ('p', u+p)]))
    for p in range(0, 16, 2):
        e(pk("v_pk_mul_f32", tmp+p, [('p', g+p), ('p', g+p)]))
    for p in range(0, 16, 2):
        e(pk("v_pk_fma_f32", tmp+p, [('p', tmp+p), ('b', k+2), ('b', k+1)]))
    for p in range(0, 16, 2):
        e(pk("v_pk_mul_f32", tmp+p, [('p', tmp+p), ('p', g+p)]))
    for p in range(16): e(f"v_exp_f32 v{tmp+p}, v{tmp+p}")
    for p in range(0, 16, 2):
        e(pk("v_pk_mul_f32", u+p, [('p', u+p), ('p', g+p)]))
    for p in range(0, 16, 2):
        e(pk("v_pk_fma_f32", tmp+p, [('p', tmp+p), ('b', k+3), ('b', k+3)]))
    for p in range(16): e(f"v_rcp_f32 v{tmp+p}, v{tmp+p}")
    e("s_nop 0")
    for p in range(0, 16, 2):
        e(pk("v_pk_mul_f32", u+p, [('p', u+p), ('p', tmp+p)]))
    for p in range(8): e(f"v_cvt_pk_bf16_f32 v{g+p}, v{u+2*p}, v{u+2*p+1}")

def cs_read(d, slot_off):
    for q in range(4): e(f"ds_read_b128 {vr(d+4*q,4)}, v{vT3} offset:{slot_off+32*q}")

def lin_fold(acc, cs, negm, scale, n=16):
    for p in range(0, n, 2):
        e(pk("v_pk_fma_f32", acc+p, [('b', negm), ('p', cs+p), ('p', acc+p)]))
    for p in range(0, n, 2):
        e(pk("v_pk_mul_f32", acc+p, [('p', acc+p), ('b', scale)]))

def q_epilogue(cs):
    e(f"v_mul_f32 v{vSt+2}, {f2u(0.25*1.4426950408889634):#x}, v{vSt+1}")
    lin_fold(vAcc, cs, vSt+4, vSt+2)
    for p in range(8): e(f"v_cvt_pk_bf16_f32 v{vAcc+p}, v{vAcc+2*p}, v{vAcc+2*p+1}")
    e(f"""s_lshl_b32 s{sT0}, s{sW4}, 11
    s_add_u32 s{sT0}, s{sT0}, {QIMG}
    v_lshl_add_u32 v{vT0}, v{vLane}, 4, s{sT0}
    ds_write_b128 v{vT0}, {vr(vAcc,4)}
    ds_write_b128 v{vT0}, {vr(vAcc+4,4)} offset:1024""")

def h_off(dst, tile_add_sreg, unit_add):
    e(f"""s_lshl_b32 s{sT0}, s{sI}, 2
    s_add_u32 s{sT0}, s{sT0}, s{tile_add_sreg}
    s_mul_i32 s{sT0}, s{sT0}, 88
    s_mul_i32 s{sT1}, s{sJ}, 6
    s_min_u32 s{sT1}, s{sT1}, 80
    s_add_u32 s{sT1}, s{sT1}, {unit_add}
    s_lshr_b32 s{dst}, s{sT1}, 2
    s_add_u32 s{sT0}, s{sT0}, s{dst}
    s_and_b32 s{sT1}, s{sT1}, 3
    s_mul_i32 s{sT1}, s{sT1}, 22
    s_add_u32 s{sT0}, s{sT0}, s{sT1}
    s_lshl_b32 s{sT0}, s{sT0}, 10
    s_add_u32 s{dst}, s{sT0}, {HIMG}""")
def h_store(acc, so):
    e(f"buffer_store_dwordx4 {vr(acc,4)}, v{vT2}, {sr(SWS,4)}, s{so} offen sc1")
    e(f"s_add_u32 s{so}, s{so}, {22*1024}")
    e(f"buffer_store_dwordx4 {vr(acc+4,4)}, v{vT2}, {sr(SWS,4)}, s{so} offen sc1")
def kv_dma(tag):
    e(f"""s_lshl_b32 s{sT0}, s{sW4}, 10
    v_lshlrev_b32 v{vT0}, 4, v{vLane}
    Lkvd_{tag}:
    s_mov_b32 m0, s{sT0}
    s_nop 0
    buffer_load_dwordx4 v{vT0}, {sr(SWS,4)}, s{sT0} offen sc1 lds
    s_add_u32 s{sT0}, s{sT0}, 4096
    s_cmp_lt_u32 s{sT0}, {36*1024}
    s_cbranch_scc1 Lkvd_{tag}""")

prologue("L")
for v in range(1, 4): e(f"s_cmp_eq_u32 s{sW}, {v}\ns_cbranch_scc1 LL{v}")
for v in range(4):
    e(f"LL{v}:")
    p1_loop("L", v, "LepiL")
e("LepiL:")
stamp(1)
e(f"s_and_b32 s{sT2}, s{sW}, 1\ns_lshl_b32 s{sT2}, s{sT2}, 1\ns_lshr_b32 s{sT3}, s{sW}, 1\ns_add_u32 s{sT2}, s{sT2}, s{sT3}")
stats_post(sT2, 1)
e(f"s_lshl_b32 s{sT1}, s{sW}, 7\ns_add_u32 s{sT1}, s{sT1}, {CSUM+128}")
cs_write(vCs, f"s{sT1}")
e(f"""s_lshr_b32 s{sT0}, s{sW}, 1
s_lshl_b32 s{sT0}, s{sT0}, 8
s_add_u32 s{sT0}, s{sT0}, {CSUM+128}
v_lshl_add_u32 v{vT3}, v{vH}, 4, s{sT0}
s_and_b32 s{sT1}, s{sW}, 1
s_lshl_b32 s{sT1}, s{sT1}, 8
s_add_u32 s{sT1}, s{sT1}, {STATM}
v_and_b32 v{vT0}, 31, v{vLane}
v_lshl_add_u32 v{vT0}, v{vT0}, 2, s{sT1}
s_waitcnt lgkmcnt(0)
s_barrier""")
stats_read(vSt+12, vT0, 0); stats_read(vSt+16, vT0, 128)
cs_read(vF, 0); cs_read(vF+16, 128)
e(f"s_and_b32 s{sT3}, s{sW}, 1\ns_lshl_b32 s{sT3}, s{sT3}, 1\ns_and_b32 s{sC0}, s{sW}, 2")
h_off(sT2, sT3, f"s{sC0}")
e(f"s_add_u32 s{sT3}, s{sT2}, {88*1024}\nv_lshlrev_b32 v{vT2}, 4, v{vLane}\ns_waitcnt lgkmcnt(0)")
stats_fin(vSt+12, vSt, vSt+1); stats_fin(vSt+16, vSt+2, vSt+3)
gelu_consts(vSt, vSt+1, vSt+4); gelu_consts(vSt+2, vSt+3, vSt+8)
for tt in range(2):
    gelu_tile(vAcc+32*tt, vAcc+32*tt+16, vF, vF+16, vSt+4+4*tt, vSt+12)
    h_store(vAcc+32*tt, sT2 if tt == 0 else sT3)
e("s_branch Lp2")

e("LproH:")
prologue("H")
for v in range(1, 4): e(f"s_cmp_eq_u32 s{sW4}, {v}\ns_cbranch_scc1 LH{v}")
for v in range(4):
    e(f"LH{v}:")
    p1_loop("H", v, "LepiH")
e("LepiH:")
stamp(1)
stats_post(sW4, 0)
e(f"v_mov_b32 v{vT2}, v{vT0}")
e(f"""s_cmp_eq_u32 s{sW4}, 3
s_cbranch_scc1 LHnocs
s_add_u32 s{sT1}, s{sW4}, 4
s_cmp_eq_u32 s{sW4}, 0
s_cselect_b32 s{sT1}, 0, s{sT1}
s_lshl_b32 s{sT1}, s{sT1}, 7
s_add_u32 s{sT1}, s{sT1}, {CSUM}""")
cs_write(vCs, f"s{sT1}")
e(f"""LHnocs:
v_mov_b32 v{vT3}, {CSUM}
v_lshl_add_u32 v{vT3}, v{vH}, 4, v{vT3}
s_waitcnt lgkmcnt(0)
s_barrier""")
stats_read(vSt+12, vT2, 0)
cs_read(vAcc+48, 0); cs_read(vF, 5*128); cs_read(vF+16, 6*128)
h_off(sT2, sW4, 4)
e(f"v_lshlrev_b32 v{vT2}, 4, v{vLane}\ns_waitcnt lgkmcnt(0)")
stats_fin(vSt+12, vSt, vSt+1)
gelu_consts(vSt, vSt+1, vSt+4)
q_epilogue(vAcc+48)
e(f"s_waitcnt vmcnt(0)\nv_readfirstlane_b32 s{sRetry}, v{vPoll}\ns_cmp_lt_u32 s{sRetry}, 16\ns_cbranch_scc1 LHnodma")
kv_dma("a")
e("LHnodma:")
stamp(13)
gelu_tile(vAcc+16, vAcc+32, vF, vF+16, vSt+4, vSt+12)
h_store(vAcc+16, sT2)
e(f"s_cmp_lt_u32 s{sRetry}, 16\ns_cbranch_scc1 Lkvwait\ns_waitcnt vmcnt(2)\ns_branch Lp2")

e("Lkvcu:")
WKV = 131072
vXf, vWk = 32, 192
sXb = sMw
e(f"""s_lshl_b32 s{sT0}, s{sW}, 11
v_lshlrev_b32 v{vWa0}, 4, v{vLane}
s_add_u32 m0, s{sT0}, {WKV}
s_lshl_b32 s{sXb}, s{sW}, 14
buffer_load_dwordx4 v{vWa0}, {sr(SWV,4)}, s{sT0} offen lds
buffer_load_dwordx4 v{vWa0}, {sr(SWV,4)}, s{sT0} offen offset:1024 lds
s_add_u32 m0, s{sT0}, {WKV+16384}
s_lshl_b32 s{sXo}, s{sI}, 17
buffer_load_dwordx4 v{vWa0}, {sr(SWK,4)}, s{sT0} offen lds
buffer_load_dwordx4 v{vWa0}, {sr(SWK,4)}, s{sT0} offen offset:1024 lds
s_lshl_b32 s{sT0}, s{sW4}, 15
s_add_u32 s{sXo}, s{sXo}, s{sT0}
s_lshr_b32 s{sT3}, s{sW}, 2
s_lshl_b32 s{sT0}, s{sT3}, 9
s_add_u32 s{sXo}, s{sXo}, s{sT0}""")
for c in range(4):
    for hf in range(2):
        e(f"""s_add_u32 m0, s{sXb}, {4096*c+2048*hf}
        s_add_u32 s{sT0}, s{sXo}, {128*c+16384*hf}
        buffer_load_dwordx4 v{vXa0}, {sr(SX,4)}, s{sT0} offen lds
        buffer_load_dwordx4 v{vXa1}, {sr(SX,4)}, s{sT0} offen offset:1024 lds""")
    if c == 0:
        common_init("KV")
        o_prod_off(sOp)
e("s_waitcnt vmcnt(12)\ns_barrier")
stamp(12)
def kv_reads(c):
    r = []
    for ks in range(4):
        W = vWk + 16*(c & 1) + 4*ks
        r += [f"ds_read_b128 {vr(vXf+16*c+4*ks,4)}, v{vRX+ks} offset:{4096*c}"]
        r += tr(W, vRW, (64*c+16*ks)*32) + tr(W+2, vRW, (64*c+16*ks+4)*32)
    return r
for x in kv_reads(0): e(x)
for c in range(4):
    m = []; va = []
    for ks in range(4):
        X = vXf+16*c+4*ks; W = vWk + 16*(c & 1) + 4*ks
        m += [mfma(vAcc+16, W, X), mfma16(vCs, W, vSel), mfma(vAcc+32, X, W)]
        va += stats_ops(X)
    fill = [(4, x) for x in va]
    if c < 3: fill = fill[:56] + [(4, f"s_waitcnt vmcnt({8-4*c})")] + [(6, x) for x in kv_reads(c+1)] + fill[56:]
    e("s_waitcnt lgkmcnt(0)")
    for x in spread(m, fill): e(x)
stamp(1)
e(f"""v_add_f32 v{vSt}, v{vSt}, v{vSt+1}
v_add_f32 v{vSt+2}, v{vSt+2}, v{vSt+3}
v_mov_b32 v{vSt+1}, v{vSt}
v_mov_b32 v{vSt+3}, v{vSt+2}
v_and_b32 v{vT2}, 31, v{vLane}
v_lshlrev_b32 v{vT2}, 2, v{vT2}
v_permlane32_swap_b32 v{vSt}, v{vSt+1}
v_permlane32_swap_b32 v{vSt+2}, v{vSt+3}
v_add_u32 v{vT1}, s{sXb}, v{vT2}
s_xor_b32 s{sT2}, s{sXb}, 65536
v_add_f32 v{vSt+20}, v{vSt}, v{vSt+1}
v_add_f32 v{vSt+21}, v{vSt+2}, v{vSt+3}
ds_write_b32 v{vT1}, v{vSt+20} offset:4096
ds_write_b32 v{vT1}, v{vSt+21} offset:4224
s_add_u32 s{sT1}, s{sXb}, 4352""")
cs_write(vCs, f"s{sT1}")
e(f"""v_add_u32 v{vT0}, s{sXb}, v{vWa0}
v_add_u32 v{vWa1}, s{sT2}, v{vWa0}
v_add_u32 v{vWa2}, s{sT2}, v{vT2}
v_lshl_add_u32 v{vT3}, v{vH}, 4, s{sXb}
s_lshl_b32 s{sT0}, s{sI}, 2
s_add_u32 s{sT0}, s{sT0}, s{sW4}
s_mul_i32 s{sC0}, s{sT0}, {KVT}
s_lshl_b32 s{sQo}, s{sW}, 16
s_add_u32 s{sQo}, s{sQo}, {64*15}
s_lshl_b32 s{sMq}, s{sW}, 12
s_add_u32 s{sMq}, s{sMq}, {WKV}
s_cmp_ge_u32 s{sW}, 4
s_cbranch_scc1 LkvH""")
def wq_dma():
    for k in range(4):
        e(f"s_add_u32 m0, s{sMq}, {1024*k}\ns_add_u32 s{sT0}, s{sQo}, {16384*k}\nbuffer_load_dwordx4 v{vQa}, {sr(SWQ,4)}, s{sT0} offen lds")
for q in range(4): e(f"ds_write_b128 v{vT0}, {vr(vAcc+32+4*q,4)} offset:{1024*q}")
e(f"v_xor_b32 v{vT1}, 0x10000, v{vT3}\ns_waitcnt lgkmcnt(0)\ns_barrier")
e(f"""ds_read_b32 v{vSt+22}, v{vWa2} offset:4096
ds_read_b32 v{vSt+23}, v{vWa2} offset:4224
ds_read_b128 {vr(vWk,4)}, v{vWa1}
ds_read_b128 {vr(vWk+4,4)}, v{vWa1} offset:1024
ds_read_b128 {vr(vSt+12,4)}, v{vT3} offset:{4352+64}
ds_read_b128 {vr(vSt+16,4)}, v{vT3} offset:{4352+96}
ds_read_b128 {vr(vWk+8,4)}, v{vT1} offset:{4352+64}
ds_read_b128 {vr(vWk+12,4)}, v{vT1} offset:{4352+96}""")
wq_dma()
e(f"""v_and_b32 v{vT0}, 0x33, v{vLane}
v_bfe_u32 v{vT1}, v{vLane}, 2, 1
v_lshl_or_b32 v{vT0}, v{vT1}, 3, v{vT0}
v_bfe_u32 v{vT1}, v{vLane}, 3, 1
v_lshl_or_b32 v{vT0}, v{vT1}, 2, v{vT0}
v_lshlrev_b32 v{vT0}, 4, v{vT0}
s_waitcnt lgkmcnt(0)""")
stats_fin(vSt+20, vSt, vSt+1)
e(f"v_sub_f32 v{vSt+4}, 0, v{vSt}")
for p in range(0, 8, 2):
    e(pk("v_pk_add_f32", vAcc+24+p, [('p', vAcc+24+p), ('p', vWk+p)]))
    e(pk("v_pk_add_f32", vSt+12+p, [('p', vSt+12+p), ('p', vWk+8+p)]))
lin_fold(vAcc+24, vSt+12, vSt+4, vSt+1, 8)
for p in range(4): e(f"v_cvt_pk_bf16_f32 v{vAcc+16+p}, v{vAcc+24+2*p}, v{vAcc+25+2*p}")
e(f"buffer_store_dwordx4 {vr(vAcc+16,4)}, v{vT0}, {sr(SWS,4)}, s{sC0} offen sc1\ns_branch LkvS")
e("LkvH:")
e(f"ds_write_b128 v{vT0}, {vr(vAcc+24,4)}\nds_write_b128 v{vT0}, {vr(vAcc+28,4)} offset:1024")
e(f"v_add_u32 v{vT1}, s{sXb}, v{vT2}\ns_waitcnt lgkmcnt(0)\ns_barrier")
e(f"""ds_read_b32 v{vSt+22}, v{vWa2} offset:4096
ds_read_b32 v{vSt+23}, v{vWa2} offset:4224
ds_read_b32 v{vSt+6}, v{vT1} offset:4352
ds_read_b32 v{vSt+7}, v{vWa2} offset:4352""")
for q in range(4): e(f"ds_read_b128 {vr(vAcc+48+4*q,4)}, v{vWa1} offset:{1024*q}")
wq_dma()
e("s_waitcnt lgkmcnt(0)")
stats_fin(vSt+20, vSt, vSt+1)
e(f"ds_write_b32 v{vT1}, v{vSt} offset:4608\nds_write_b32 v{vT1}, v{vSt+1} offset:4736\ns_waitcnt lgkmcnt(0)")
for q in range(4):
    e(f"ds_read_b128 {vr(vWk+4*q,4)}, v{vT3} offset:{4608+32*q}\nds_read_b128 {vr(vWk+16+4*q,4)}, v{vT3} offset:{4736+32*q}")
e(f"v_add_f32 v{vSt+6}, v{vSt+6}, v{vSt+7}\nv_sub_f32 v{vSt+6}, 0, v{vSt+6}")
for p in range(0, 16, 2): e(pk("v_pk_add_f32", vAcc+32+p, [('p', vAcc+32+p), ('p', vAcc+48+p)]))
e("s_waitcnt lgkmcnt(0)")
for p in range(0, 16, 2): e(pk("v_pk_fma_f32", vAcc+32+p, [('p', vWk+p), ('b', vSt+6), ('p', vAcc+32+p)]))
for p in range(0, 16, 2): e(pk("v_pk_mul_f32", vAcc+32+p, [('p', vAcc+32+p), ('p', vWk+16+p)]))
for p in range(8): e(f"v_cvt_pk_bf16_f32 v{vAcc+32+p}, v{vAcc+32+2*p}, v{vAcc+33+2*p}")
def v_lane_addr(d):
    e(f"""v_and_b32 v{d}, 15, v{vLane}
    v_lshlrev_b32 v{d}, 4, v{d}
    v_lshl_add_u32 v{d}, v{vH}, 8, v{d}
    s_mov_b32 exec_lo, 0xffff0000
    s_mov_b32 exec_hi, 0xffff0000
    v_mov_b32 v{d}, 512""")
v_lane_addr(vT0)
for p in range(8): e(f"v_mov_b32 v{vAcc+32+p}, 0x3f803f80")
e(f"""s_mov_b32 exec_lo, 0x1ffff
s_mov_b32 exec_hi, 0xffff
buffer_store_dwordx4 {vr(vAcc+32,4)}, v{vT0}, {sr(SWS,4)}, s{sC0} offen offset:1024 sc1
buffer_store_dwordx4 {vr(vAcc+36,4)}, v{vT0}, {sr(SWS,4)}, s{sC0} offen offset:{1024+528} sc1
s_mov_b64 exec, -1
LkvS:""")
for r in range(4): e(f"v_mov_b32 v{vCs+r}, 0")
e("s_waitcnt vmcnt(0)\ns_barrier")
signal(CNT_KV, "kv")
stamp(13)
def q_reads(c):
    r = []
    for ks in range(4):
        W = vWk + 16*(c & 1) + 4*ks
        r += tr(W, vRQ, (64*c+16*ks)*64) + tr(W+2, vRQ, (64*c+16*ks+4)*64)
    return r
for x in q_reads(0): e(x)
for c in range(4):
    m = []
    for ks in range(4):
        X = vXf+16*c+4*ks; W = vWk + 16*(c & 1) + 4*ks
        m += [mfma(vAcc, W, X), mfma16(vCs, W, vSel)]
    e("s_waitcnt lgkmcnt(0)")
    for x in interleave(m[:4], q_reads(c+1) if c < 3 else []) + m[4:]: e(x)
e(f"""s_or_b32 s{sT2}, s{sXb}, {65536+8192}
s_lshr_b32 s{sT3}, s{sW}, 2
s_lshl_b32 s{sT3}, s{sT3}, 7
s_add_u32 s{sT1}, s{sT2}, s{sT3}
s_add_u32 s{sT1}, s{sT1}, 4096
v_add_u32 v{vWa1}, s{sT2}, v{vWa0}
v_lshl_add_u32 v{vT3}, v{vH}, 4, s{sT2}
s_nop 3""")
cs_write(vCs, f"s{sT1}")
e(f"s_cmp_ge_u32 s{sW}, 4\ns_cbranch_scc1 LkvH2\ns_waitcnt lgkmcnt(0)\ns_barrier")
for q in range(4): e(f"ds_read_b128 {vr(vWk+4*q,4)}, v{vWa1} offset:{1024*q}")
cs_read(vAcc+48, 4096); cs_read(vWk+16, 4096+128)
e("s_waitcnt lgkmcnt(0)")
for p in range(0, 16, 2):
    e(pk("v_pk_add_f32", vAcc+p, [('p', vAcc+p), ('p', vWk+p)]))
    e(pk("v_pk_add_f32", vAcc+48+p, [('p', vAcc+48+p), ('p', vWk+16+p)]))
q_epilogue(vAcc+48)
e("s_branch Lp2\nLkvH2:")
for q in range(4): e(f"ds_write_b128 v{vWa1}, {vr(vAcc+4*q,4)} offset:{1024*q}")
e("s_waitcnt lgkmcnt(0)\ns_barrier")
e("Lkvwait:")
stamp(16)
poll(CNT_KV, 16, "kv")
stamp(17)
kv_dma("b")
e("s_waitcnt vmcnt(0)")

vS = [32, 48]; vC = 64; vO = 80; vQ = 96; vKf = [100, 104]; vVl = [108, 112]; vVh = 116
vIdx, vAk, vAv, vDa, vL16 = 120, 121, 122, 123, 124
vHf = 168
sKq, sTt, sHo, sDo, sDm = sXo, sWo, sQo, sLb, sMx
GSLOT = [135168, 143360, 151552] + [33280*s+8192*q for s in range(4) for q in range(4)]
def gslot(G): return GSLOT[G % 19]
vm = []
def vtag(tag): vm.append(tag)
def vwait_s(tag):
    idx = max(i for i, t in enumerate(vm) if t == tag)
    return f"s_waitcnt vmcnt({len(vm)-1-idx})"
def w_dma(G):
    srdw, row = (SWD, 64*G) if G < 22 else (SWO, 64*(G-22))
    return [f"s_add_u32 m0, s{sDm}, {gslot(G)}", f"s_add_u32 s{sT0}, s{sDo}, {row*1024}",
            (f"g{G}", f"buffer_load_dwordx4 v{vDa}, {sr(srdw,4)}, s{sT0} offen lds")]
def emit_seq(seq):
    for x in seq:
        if isinstance(x, tuple): vtag(x[0]); e(x[1])
        elif callable(x): e(x())
        else: e(x)
e("Lp2:")
stamp(2)
v_lane_addr(vAv)
if "--ones" not in sys.argv:
    e(f"s_mov_b32 exec_lo, 0xffee0000\ns_mov_b32 exec_hi, 0xffee0000\nv_mov_b32 v{vAv}, 0x4000000")
e(f"""s_mov_b64 exec, -1
v_add_u32 v{vAv}, 1024, v{vAv}
v_lshlrev_b32 v{vAk}, 4, v{vLane}
v_lshlrev_b32 v{vL16}, 4, v{vLane}
v_mov_b32 v{vIdx}, 0xdddd
v_lshrrev_b32 v{vT0}, 3, v{vLane}
v_lshlrev_b32 v{vT0}, 10, v{vT0}
v_and_b32 v{vT1}, 7, v{vLane}
v_bfe_u32 v{vT2}, v{vLane}, 4, 1
v_lshlrev_b32 v{vT2}, 2, v{vT2}
v_xor_b32 v{vT1}, v{vT1}, v{vT2}
v_lshl_add_u32 v{vDa}, v{vT1}, 4, v{vT0}
s_lshl_b32 s{sDo}, s{sW}, 13
s_lshl_b32 s{sT1}, s{sCS}, 7
s_add_u32 s{sDo}, s{sDo}, s{sT1}
s_lshl_b32 s{sDm}, s{sW}, 10
s_lshr_b32 s{sKq}, s{sW}, 1
s_and_b32 s{sTt}, s{sW}, 1
s_lshl_b32 s{sT0}, s{sTB}, 1
s_add_u32 s{sT0}, s{sT0}, s{sTt}
s_mul_i32 s{sHo}, s{sT0}, 88
s_mul_i32 s{sT0}, s{sKq}, 22
s_add_u32 s{sHo}, s{sHo}, s{sT0}
s_lshl_b32 s{sHo}, s{sHo}, 10
s_add_u32 s{sHo}, s{sHo}, {HIMG}
s_add_u32 s{sT0}, s{sDm}, {QIMG}
v_add_u32 v{vT0}, s{sT0}, v{vL16}""")
for r in range(12): e(f"v_mov_b32 v{vO+r}, 0")
for r in range(8, 16): e(f"v_mov_b32 v{vS[1]+r}, 0")
for r in range(4): e(f"v_mov_b32 v{vVh+r}, 0")
sentinel(vC)
e("s_waitcnt lgkmcnt(0)\ns_barrier")
stamp(3)
e(f"""ds_read_b128 {vr(vQ,4)}, v{vT0}
ds_read_b128 {vr(vKf[0],4)}, v{vAk}
ds_read_b128 {vr(vKf[1],4)}, v{vAk} offset:{KVT}
ds_read_b128 {vr(vVl[0],4)}, v{vAv}
s_waitcnt lgkmcnt(2)""")
def rowmax_to_C(first):
    pass
e(mfma(vS[0], vKf[0], vQ, "0"))
e("s_nop 11")
e(f"v_max3_f32 v{vT1}, v{vS[0]}, v{vS[0]+1}, v{vS[0]+2}")
for p in range(3, 15, 2): e(f"v_max3_f32 v{vT1}, v{vT1}, v{vS[0]+p}, v{vS[0]+p+1}")
e(f"""v_max_f32 v{vT1}, v{vT1}, v{vS[0]+15}
v_mov_b32 v{vT2}, v{vT1}
s_nop 1
v_permlane32_swap_b32 v{vT1}, v{vT2}
s_nop 1
v_max_f32 v{vT1}, v{vT1}, v{vT2}""")
for r in range(16): e(f"v_sub_f32 v{vC+r}, 0, v{vT1}")
e("s_nop 1")
e(mfma(vS[0], vKf[0], vQ, vr(vC, 16)))
e("s_nop 10")
stamp(5)
side = {T: [] for T in range(64)}
for n in range(12):
    side[n] += [f"s_add_u32 s{sT0}, s{sDm}, {(36+8*n)*1024}", f"s_mov_b32 m0, s{sT0}", "s_nop 0",
                ("kv", f"buffer_load_dwordx4 v{vL16}, {sr(SWS,4)}, s{sT0} offen sc1 lds")]
for n, G in enumerate(range(0, 7)): side[17+2*n] += w_dma(G)
for n, G in enumerate(range(7, 11)): side[33+2*n] += w_dma(G)
for n, G in enumerate(range(11, 15)): side[49+2*n] += w_dma(G)
side[40] += [f"v_mov_b32 v{vPoll}, s{sC1}", ("poll", f"buffer_load_dword v{vPoll}, v{vPoll}, {sr(SDBG,4)}, 0 offen sc1")]
for i in range(22):
    T = 48 + (i*15)//22
    if i % 4 == 0: side[T].append(f"s_add_u32 s{sC0}, s{sHo}, {1024*i}")
    side[T].append((f"h{i}", f"buffer_load_dwordx4 {vr(vHf+4*i,4)}, v{vL16}, {sr(SWS,4)}, s{sC0} offen offset:{1024*(i%4)} sc1"))
e(f"s_lshr_b32 s{sC1}, s{sTB}, 1\ns_lshl_b32 s{sC1}, s{sC1}, 2\ns_add_u32 s{sC1}, s{sC1}, {CNT_H}")
for T in range(64):
    X = vS[T & 1]; Y = vS[(T+1) & 1]
    rel = T % 16
    e("s_waitcnt lgkmcnt(0)")
    if T and rel == 0:
        if T == 16:
            e("s_waitcnt vmcnt(0)\ns_barrier")
            e(f"s_lshl_b32 s{sT2}, s{sI}, 2\ns_add_u32 s{sT2}, s{sT2}, {CNT_H}")
            signal(f"s{sT2}", "h")
        elif T == 48:
            e(vwait_s("poll"))
            e(f"v_readfirstlane_b32 s{sT1}, v{vPoll}\ns_cmp_ge_u32 s{sT1}, 16\ns_cbranch_scc1 Lhok")
            poll(f"s{sC1}", 16, "h")
            e("Lhok:\ns_barrier")
        else: e("s_barrier")
        e(f"v_add_u32 v{vAk}, {16*KVT}, v{vAk}\nv_add_u32 v{vAv}, {16*KVT}, v{vAv}")
    if rel % 4 == 0: e(f"s_setprio {3-rel//4}")
    ex = [f"v_exp_f32 v{X+i}, v{X+i}" for i in range(16)]
    rd = [f"ds_read_b128 {vr(vVh,4)}, v{vAv} offset:{rel*KVT+528}"]
    if T+1 < 64: rd.append(f"ds_read_b128 {vr(vVl[(T+1)&1],4)}, v{vAv} offset:{(rel+1)*KVT}")
    if T+2 < 64: rd.append(f"ds_read_b128 {vr(vKf[T&1],4)}, v{vAk} offset:{(rel+2)*KVT}")
    seq = ex[0:2] + [smf(vO, vVh, Y+8, vIdx)] + interleave(ex[2:5], rd)
    if T+1 < 64: seq.append(mfma(Y, vKf[(T+1) & 1], vQ, vr(vC, 16)))
    tail = ex[5:10] + [smf(vO, vVl[T & 1], X, vIdx)] + ex[10:16]
    if side[T]:
        chunks = []; cur = []
        for x in side[T]:
            cur.append(x)
            if isinstance(x, tuple): chunks.append(cur); cur = []
        t2 = []
        for x in interleave(tail, chunks):
            if isinstance(x, list): t2 += x
            else: t2.append(x)
        tail = t2
    full = seq + tail
    def drop(sub): return [x for x in full if not (isinstance(x, str) and sub in x)]
    if "--a_noread" in sys.argv and T > 2: full = drop("ds_read")
    if "--a_nopv" in sys.argv: full = drop("smfmac")
    if "--a_noqk" in sys.argv: full = [x.replace("v_exp_f32", "v_sin_f32") if isinstance(x, str) else x for x in drop("v_mfma")]
    if "--a_noexp" in sys.argv: full = drop("v_exp")
    emit_seq(full)
e("s_waitcnt lgkmcnt(0)\ns_nop 0")
e(smf(vO, vVh, vS[1]+8, vIdx))
e(f"s_mov_b32 s{sRetry}, 0")
e("Lfin:")
e(f"""s_nop 10
s_mov_b32 s{sC0}, {f2u(2.0**40):#x}
s_mov_b32 s{sC1}, {f2u(2.0**126):#x}
v_rcp_f32 v{vO+10}, v{vO+8}
v_max3_f32 v{vT1}, abs(v{vO}), abs(v{vO+1}), abs(v{vO+2})
v_max3_f32 v{vT1}, v{vT1}, abs(v{vO+3}), abs(v{vO+4})
v_max3_f32 v{vT1}, v{vT1}, abs(v{vO+5}), abs(v{vO+6})
v_max_f32 v{vT1}, v{vT1}, abs(v{vO+7})
v_cmp_nlt_f32 vcc, v{vO+8}, s{sC0}
v_cmp_nlt_f32 s[{sEx}:{sEx+1}], v{vT1}, s{sC1}""")
for p in range(8): e(f"v_mul_f32 v{vO+p}, v{vO+p}, v{vO+10}")
e(f"s_or_b64 vcc, vcc, s[{sEx}:{sEx+1}]")
for p in range(4): e(f"v_cvt_pk_bf16_f32 v{vO+p}, v{vO+2*p}, v{vO+2*p+1}")
for p in range(4): e(f"v_min_u32 v{vO+p}, -2, v{vO+p}")
e("s_cbranch_vccnz Lfallback\nLok:" if not any(a.startswith("--a_") for a in sys.argv) else "Lok:")
emit_seq([("o", f"buffer_store_dwordx4 {vr(vO,4)}, v{vL16}, {sr(SWS,4)}, s{sOp} offen sc1")])
stamp(6)

vOf = 136
vAf = [32, 48]
vAs = [64, 84]
vAs = [64, 80]
vWf = [96, 104]
vRd = 125
vRa, vXr = 131, 132
e(f"""v_bfe_u32 v{vT0}, v{vLane}, 2, 2
v_lshl_add_u32 v{vT0}, v{vH}, 2, v{vT0}
v_lshlrev_b32 v{vT0}, 7, v{vT0}
v_bfe_u32 v{vT1}, v{vLane}, 4, 1
v_lshl_add_u32 v{vT0}, v{vT1}, 5, v{vT0}
v_and_b32 v{vT1}, 3, v{vLane}
v_lshl_add_u32 v{vT0}, v{vT1}, 3, v{vT0}
v_bfe_u32 v{vT1}, v{vLane}, 3, 1
v_lshl_add_u32 v{vT0}, v{vT1}, 6, v{vT0}
s_lshl_b32 s{sT0}, s{sKq}, 11
v_add_u32 v{vRd}, s{sT0}, v{vT0}
v_xor_b32 v{vRd+1}, 64, v{vRd}
v_add_u32 v{vRd+2}, 0xe000, v{vRd}
v_add_u32 v{vRd+3}, 0xe000, v{vRd+1}
v_add_u32 v{vRd+4}, 0x1c000, v{vRd}
v_add_u32 v{vRd+5}, 0x1c000, v{vRd+1}""")
for r in range(32, 64): e(f"v_mov_b32 v{r}, 0")
e(vwait_s("g14"))
e("s_setprio 0\ns_barrier")
def w_reads(G, F):
    a = gslot(G); win = a // 0xe000; off = a - win*0xe000
    r0, r1 = vRd+2*win, vRd+2*win+1
    return tr(F, r0, off) + tr(F+2, r0, off+1024) + tr(F+4, r1, off) + tr(F+6, r1, off+1024)
for x in w_reads(0, vWf[0]): e(x)
for G in range(15, 19): emit_seq(w_dma(G))
e(f"""v_and_b32 v{vT0}, 31, v{vLane}
v_lshlrev_b32 v{vT0}, 10, v{vT0}
v_lshl_add_u32 v{vRa}, v{vH}, 4, v{vT0}
s_lshl_b32 s{sT0}, s{sTB}, 16
s_lshl_b32 s{sT1}, s{sTt}, 15
s_add_u32 s{sT0}, s{sT0}, s{sT1}
s_lshl_b32 s{sT1}, s{sCS}, 7
s_add_u32 s{sT0}, s{sT0}, s{sT1}
s_lshl_b32 s{sT1}, s{sKq}, 5
s_add_u32 s{sC2}, s{sT0}, s{sT1}""")
emit_seq([("x", f"buffer_load_dwordx4 {vr(vXr,4)}, v{vRa}, {sr(SX,4)}, s{sC2} offen")])
RED = 66560
def reduce_write(acc):
    e(f"""s_lshl_b32 s{sT0}, s{sTt}, 15
    s_lshl_b32 s{sT1}, s{sKq}, 11
    s_add_u32 s{sT0}, s{sT0}, s{sT1}
    s_add_u32 s{sT0}, s{sT0}, {RED}
    v_add_u32 v{vT0}, s{sT0}, v{vL16}""")
    for q in range(4):
        e(f"ds_write_b128 v{vT0}, {vr(acc+8*q,4)} offset:{8192*q}\nds_write_b128 v{vT0}, {vr(acc+8*q+4,4)} offset:{8192*q+1024}")
def reduce_read(acc):
    e(f"""s_lshl_b32 s{sT0}, s{sTt}, 15
    s_lshl_b32 s{sT1}, s{sKq}, 13
    s_add_u32 s{sT0}, s{sT0}, s{sT1}
    s_add_u32 s{sT0}, s{sT0}, {RED}
    v_add_u32 v{vT0}, s{sT0}, v{vL16}""")
    for q in range(4):
        e(f"ds_read_b128 {vr(acc+8*q,4)}, v{vT0} offset:{2048*q}\nds_read_b128 {vr(acc+8*q+4,4)}, v{vT0} offset:{2048*q+1024}")
    e("s_waitcnt lgkmcnt(0)")
    for p in range(8):
        e(f"v_add_f32 v{acc+p}, v{acc+p}, v{acc+8+p}\nv_add_f32 v{acc+16+p}, v{acc+16+p}, v{acc+24+p}")
    for p in range(8): e(f"v_add_f32 v{acc+p}, v{acc+p}, v{acc+16+p}")
OLD = 20
def o_loads():
    for k in range(8):
        emit_seq([(f"o{k}", f"buffer_load_dwordx4 {vr(vOf+4*k,4)}, v{vL16}, {sr(SWS,4)}, s{sHo if k<4 else sC0} offen offset:{1024*(k%4)} sc1")])
for n in range(30):
    F = vWf[n & 1]; Fn = vWf[(n+1) & 1]
    down = n < 22
    e("s_waitcnt lgkmcnt(0)")
    post = []
    if n == 3:
        e("s_barrier")
        for G in range(19, 23): post += w_dma(G)
    if n == 7:
        e("s_barrier")
        for G in range(23, 27): post += w_dma(G)
    if n == 11:
        e(vwait_s("g18")); e("s_barrier")
        for G in range(27, 30): post += w_dma(G)
    if n == 18:
        e(vwait_s("g22")); e("s_barrier")
    if n == OLD:
        e(f"""s_lshl_b32 s{sT0}, s{sTB}, 1
        s_add_u32 s{sT0}, s{sT0}, s{sTt}
        s_lshl_b32 s{sT0}, s{sT0}, 2
        s_add_u32 s{sT0}, s{sT0}, s{sKq}
        s_lshl_b32 s{sT0}, s{sT0}, 13
        s_add_u32 s{sHo}, s{sT0}, {OIMG}
        s_add_u32 s{sC0}, s{sHo}, 4096""")
        o_loads()
    if n == 26: e("s_barrier")
    rd = w_reads(n+1, Fn) if n+1 < 30 else []
    e(vwait_s(f"h{n}" if down else f"o{n-22}"))
    acc = vAf if down else vAs
    B = vHf + 4*n if down else vOf + 4*(n-22)
    if n == 21:
        for x in rd: e(x)
        rd = []
        e(f"s_cmp_ge_u32 s{sKq}, 2\ns_cbranch_scc1 Lskip21")
    c0 = "0" if n == 22 else None
    emit_seq(interleave([mfma(acc[0], F, B, c0), mfma(acc[1], F+4, B, c0)], rd) + post)
    if n == 21:
        e("Lskip21:")
        stamp(8)
        e("s_nop 6")
        reduce_write(vAf[0])
        e(vwait_s("g29")); e("s_waitcnt lgkmcnt(0)\ns_barrier")
        reduce_read(vAf[0])
        for p in range(8): e(f"v_mul_f32 v{vAf[0]+8+p}, {f2u(-1.4426950408889634):#x}, v{vAf[0]+p}")
        for p in range(8): e(f"v_exp_f32 v{vAf[0]+8+p}, v{vAf[0]+8+p}")
        e("s_nop 0")
        for p in range(8): e(f"v_add_f32 v{vAf[0]+8+p}, 1.0, v{vAf[0]+8+p}")
        for p in range(8): e(f"v_rcp_f32 v{vAf[0]+8+p}, v{vAf[0]+8+p}")
        e("s_nop 0")
        for p in range(8): e(f"v_mul_f32 v{vAf[0]+p}, v{vAf[0]+p}, v{vAf[0]+8+p}")
        stamp(9)
        e(f"s_mov_b32 s{sT0}, 0\nLow:\ns_waitcnt vmcnt(0)")
        e(f"v_max3_u32 v{vT1}, v{vOf}, v{vOf+1}, v{vOf+2}")
        for p in range(3, 31, 2): e(f"v_max3_u32 v{vT1}, v{vT1}, v{vOf+p}, v{vOf+p+1}")
        e(f"""v_max_u32 v{vT1}, v{vT1}, v{vOf+31}
        v_cmp_eq_u32 vcc, -1, v{vT1}
        s_add_u32 s{sT0}, s{sT0}, 1
        s_cmp_ge_u32 s{sT0}, 100000
        s_cbranch_vccz Lod
        s_cbranch_scc1 Lod""")
        o_loads()
        e("s_branch Low\nLod:")
        vm.clear(); vm.extend(f"o{k}" for k in range(8)); vm.extend(["z"]*8)
        stamp(7)
stamp(10)
e("s_nop 6")
reduce_write(vAs[0])
e("s_waitcnt lgkmcnt(0)\ns_barrier")
reduce_read(vAs[0])
for p in range(8): e(f"v_mul_f32 v{vAs[0]+p}, v{vAs[0]+p}, v{vAf[0]+p}")
e("s_nop 1")
for p in range(4): e(f"v_permlane32_swap_b32 v{vAs[0]+p}, v{vAs[0]+4+p}")
for p in range(4):
    e(f"v_lshlrev_b32 v{vAs[0]+8+2*p}, 16, v{vXr+p}\nv_and_b32 v{vAs[0]+9+2*p}, 0xffff0000, v{vXr+p}")
for p in range(8): e(f"v_add_f32 v{vAs[0]+p}, v{vAs[0]+p}, v{vAs[0]+8+p}")
for p in range(4): e(f"v_cvt_pk_bf16_f32 v{vAs[0]+p}, v{vAs[0]+2*p}, v{vAs[0]+2*p+1}")
e(f"buffer_store_dwordx4 {vr(vAs[0],4)}, v{vRa}, {sr(SOUT,4)}, s{sC2} offen")
stamp(11)
if RT: e(f"s_waitcnt vmcnt(0)\ns_memrealtime s[100:101]\ns_waitcnt lgkmcnt(0)\nv_mov_b32 v0, s100\nbuffer_store_dword v0, off, {sr(SWS,4)}, s{sPo} offset:56")
e("Lend:\ns_endpgm")

e("Lfallback:")
e(f"""s_cmp_lg_u32 s{sRetry}, 0
s_cbranch_scc1 Lok
s_mov_b32 s{sRetry}, 1
s_mov_b32 s{sSt}, 0
v_mov_b32 v{vT1}, 0xff800000
Lfb1:
buffer_load_dwordx4 {vr(vKf[0],4)}, v{vL16}, {sr(SWS,4)}, s{sSt} offen sc1
s_waitcnt vmcnt(0)""")
e(mfma(vS[0], vKf[0], vQ, "0"))
e("s_nop 11")
for p in range(0, 16, 2): e(f"v_max3_f32 v{vT1}, v{vT1}, v{vS[0]+p}, v{vS[0]+p+1}")
e(f"""s_add_u32 s{sSt}, s{sSt}, {KVT}
s_cmp_lt_u32 s{sSt}, {64*KVT}
s_cbranch_scc1 Lfb1
v_mov_b32 v{vT2}, v{vT1}
s_nop 1
v_permlane32_swap_b32 v{vT1}, v{vT2}
s_nop 1
v_max_f32 v{vT1}, v{vT1}, v{vT2}""")
for r in range(16): e(f"v_sub_f32 v{vC+r}, 0, v{vT1}")
for r in range(12): e(f"v_mov_b32 v{vO+r}, 0")
e(f"""v_subrev_u32 v{vAv}, {48*KVT}, v{vAv}
s_mov_b32 s{sSt}, 0
Lfb2:
buffer_load_dwordx4 {vr(vKf[0],4)}, v{vL16}, {sr(SWS,4)}, s{sSt} offen sc1
buffer_load_dwordx4 {vr(vVl[0],4)}, v{vAv}, {sr(SWS,4)}, s{sSt} offen sc1
buffer_load_dwordx4 {vr(vVh,4)}, v{vAv}, {sr(SWS,4)}, s{sSt} offen offset:528 sc1
s_waitcnt vmcnt(0)""")
e(mfma(vS[0], vKf[0], vQ, vr(vC, 16)))
e("s_nop 11")
for i in range(16): e(f"v_exp_f32 v{vS[0]+i}, v{vS[0]+i}")
e("s_nop 1")
e(smf(vO, vVl[0], vS[0], vIdx)); e(smf(vO, vVh, vS[0]+8, vIdx))
e(f"""s_add_u32 s{sSt}, s{sSt}, {KVT}
s_cmp_lt_u32 s{sSt}, {64*KVT}
s_cbranch_scc1 Lfb2
s_branch Lfin""")

L += ['.section .rodata,"a"', ".p2align 6", f".amdhsa_kernel {NAME}_kernel",
      "  .amdhsa_next_free_vgpr 256", "  .amdhsa_next_free_sgpr 102", "  .amdhsa_accum_offset 256",
      "  .amdhsa_group_segment_fixed_size 0", "  .amdhsa_kernarg_size 96", "  .amdhsa_user_sgpr_count 2",
      "  .amdhsa_user_sgpr_kernarg_segment_ptr 1", "  .amdhsa_system_sgpr_workgroup_id_x 1", ".end_amdhsa_kernel"]
open(OUT, "w").write("\n".join(L) + "\n")
print("wrote", OUT, len(L), "lines")
```

```python
import sys, struct
NAME = "recurrent_scan__grouped_kv_mqa__geglu_ffn__prompt"
PROF = "--prof" in sys.argv
OUT = [a for a in sys.argv[1:2] if not a.startswith("--")]
OUT = OUT[0] if OUT else f"cdna_kernels/{NAME}.s"

L = []
def e(s):
    for ln in s.split("\n"):
        if not ln.strip(): continue
        L.append(("    " + ln.strip()) if not ln.strip().endswith(":") else ln.strip())
def f2u(x): return struct.unpack("<I", struct.pack("<f", x))[0]
def vr(a, n): return f"v[{a}:{a+n-1}]"
def sr(a, n): return f"s[{a}:{a+n-1}]"

KVT = 2080
KVIMG = 0
HIMG = 135168
OIMG = HIMG + 64*88*1024
PROFO = OIMG + 64*32*1024
WS_BYTES = PROFO + 256*8*256
CNT_KV = 0
CNT_H = 64
CNT_O = 128
STG = 45056
XOFF, GOFF, UOFF, QOFF = 0, 16384, 28672, 40960
STGK, QOFFK, NBK = 24832, 20736, 5
QIMG = 135168
STATM = 160768
CSUM = 162816
MRX = 159744
ZERO = 163712
FLAG = 163776
LDS_BYTES = 163840
SX, SWQ, SWK, SWV, SWO, SWG, SWD, SOUT, SDBG, SWS = 4, 8, 12, 16, 20, 24, 28, 32, 36, 40
sI, sJ, sW, sW4 = 44, 45, 46, 47
sXo, sWo, sQo, sLb = 48, 49, 50, 51
sMx, sMw, sMq = 52, 53, 54
sSt, sDl, sT0, sT1, sT2, sT3 = 55, 56, 57, 58, 59, 60
sTB, sCS, sRetry, sRb = 61, 62, 63, 3
sEx = 88
sTm = 90
sPo = 92
sC0, sC1, sC2, sC3 = 94, 95, 96, 97
sOp = 98
TOUCH = int("--touch" in sys.argv)
vLane, vH, vT0, vT1, vT2, vT3 = 1, 2, 3, 4, 5, 6
vXa0, vXa1, vWa0, vWa1, vWa2, vQa = 7, 8, 9, 10, 11, 12
vRX = 13
vRW, vRQ = 17, 18
vSel = 20
vCs = 24
vF = 32
vAcc = 96
vSt = 160
vQ = 8; vKf = [12, 16]; vVl = [20, 24]; vVh = 28
vS = [32, 48]; vC = 64
vWf = [80, 88, 96]
vAf = [104, 120]
vHf = 136
vO = 224
vIdx, vAk, vAv, vDa, vL16, vRa, vPoll, vAq = 240, 241, 242, 243, 244, 245, 246, 247
vRd = 248
vRw, vRr = 254, 255
vOf = 136
vAs = [32, 48]
vXr = 64
sKq, sTt, sHo, sDo, sDm, sHc, sXf, sOc, sOc2, sHs = 64, 65, 66, 67, 68, 69, 70, 71, 72, 73
ASL = 8320
def aslot(n): return ASL*n
SP = [135168, 143360, 151552]
GSLOT = SP + [aslot(0), aslot(1), aslot(2), aslot(3), aslot(4), aslot(5)]
GSLOT += SP + [aslot(0), aslot(6), aslot(7)]
GSLOT += [aslot(1), aslot(2), aslot(3), aslot(4), aslot(5), aslot(8), aslot(9)]
GSLOT += SP + [aslot(0), aslot(10), aslot(11), aslot(12), aslot(13)]
RED = aslot(1)

nstamp = [0]
DBGT = "--dbgt" in sys.argv
DT = {0: 75, 12: 76, 1: 77, 2: 78, 3: 79, 6: 80, 9: 81, 7: 82, 11: 83}
def stamp(k):
    if DBGT and k in DT:
        e(f"s_memrealtime s[{sTm}:{sTm+1}]\ns_waitcnt lgkmcnt(0)\ns_sub_u32 s{DT[k]}, s{sTm}, s100")
        if k == 11:
            e(f"s_memtime s[{sTm}:{sTm+1}]\ns_waitcnt lgkmcnt(0)\ns_sub_u32 s84, s{sTm}, s92")
            e(f"s_cmp_lg_u32 s2, 64\ns_cbranch_scc1 Lend\ns_cmp_lg_u32 s{sW}, 4\ns_cbranch_scc1 Lend")
            for n, r in enumerate(range(75, 85)):
                e(f"v_mov_b32 v0, s{r}\nbuffer_store_dword v0, off, {sr(SDBG,4)}, 0 offset:{4+4*n}\ns_nop 1")
    if not PROF: return
    e(f"""s_memtime s[{sTm}:{sTm+1}]
    s_waitcnt lgkmcnt(0)
    v_mov_b32 v0, s{sTm}
    buffer_store_dword v0, off, {sr(SWS,4)}, s{sPo} offset:{4*k}""")
    if k in RTS:
        e(f"""s_memrealtime s[{sTm}:{sTm+1}]
        s_waitcnt lgkmcnt(0)
        v_mov_b32 v0, s{sTm}
        buffer_store_dword v0, off, {sr(SWS,4)}, s{sPo} offset:{4*RTS[k]}""")
RTS = {12: 24, 1: 25, 5: 26, 6: 27, 11: 28}

def tick(acc):
    if not PROF or "--notick" in sys.argv: return ""
    r = f"s_memtime s[{sTm}:{sTm+1}]\ns_waitcnt lgkmcnt(0)\n"
    if acc is not None: r += f"s_sub_u32 s99, s{sTm}, s99\ns_add_u32 s{acc}, s{acc}, s99\n"
    return r + f"s_mov_b32 s99, s{sTm}"

def interleave(main, fill):
    out = []; n = len(main); m = len(fill); k = 0
    for i, a in enumerate(main):
        out.append(a)
        t = (m * (i + 1)) // n
        out += fill[k:t]; k = t
    return out

def mfma(d, a, b, c=None):
    c = vr(d, 16) if c is None else c
    return f"v_mfma_f32_32x32x16_bf16 {vr(d,16)}, {vr(a,4)}, {vr(b,4)}, {c}"
def mfma16(d, a, b): return f"v_mfma_f32_16x16x32_bf16 {vr(d,4)}, {vr(a,4)}, {vr(b,4)}, {vr(d,4)}"
def smf(d, a, b, idx): return f"v_smfmac_f32_32x32x32_bf16 {vr(d,16)}, {vr(a,4)}, {vr(b,8)}, v{idx}"

def poll(cnt_off_sreg_or_imm, target, tag):
    e(f"v_mov_b32 v{vT0}, {cnt_off_sreg_or_imm}")
    e(f"s_mov_b32 s{sT0}, 0")
    e(f"""Lpoll_{tag}:
    buffer_load_dword v{vT1}, v{vT0}, {sr(SDBG,4)}, 0 offen sc1
    s_waitcnt vmcnt(0)
    v_readfirstlane_b32 s{sT1}, v{vT1}
    s_add_u32 s{sT0}, s{sT0}, 1
    s_cmp_ge_u32 s{sT1}, {target}
    s_cbranch_scc1 Lpolld_{tag}
    s_cmp_ge_u32 s{sT0}, 100000
    s_cbranch_scc1 Lpolld_{tag}
    s_sleep 6
    s_branch Lpoll_{tag}
    Lpolld_{tag}:""")

def signal(cnt_off, tag):
    e(f"""s_cmp_lg_u32 s{sW}, 0
    s_cbranch_scc1 Lsig_{tag}
    v_mov_b32 v{vT0}, {cnt_off}
    v_mov_b32 v{vT1}, 1
    s_mov_b64 exec, 1
    buffer_atomic_add v{vT1}, v{vT0}, {sr(SDBG,4)}, 0 offen sc1
    s_mov_b64 exec, -1
    Lsig_{tag}:""")

hdr = open(f"cdna_kernels/{NAME}.s.ref").read().split("\n")
hdr = [h for h in hdr[:15] if h.startswith(";") and "@launch" not in h]
L += hdr
L.append(f"; @launch grid=(256,1,1) block=(512,1,1) lds={LDS_BYTES}")
L += ['.amdgcn_target "amdgcn-amd-amdhsa--gfx950"', ".text", f".globl {NAME}_kernel", ".p2align 8",
      f".type {NAME}_kernel,@function"]
e(f"{NAME}_kernel:")
RT = PROF and "--notick" in sys.argv
if RT: e("s_memrealtime s[100:101]\ns_memtime s[98:99]")
if DBGT: e("s_memrealtime s[100:101]\ns_memtime s[92:93]")
e(f"""s_cmp_ge_u32 s2, 256
s_cbranch_scc1 Lend
s_load_dwordx16 s[64:79], s[0:1], 0
s_load_dwordx8 s[80:87], s[0:1], 64
v_and_b32 v{vLane}, 63, v0
v_lshrrev_b32 v{vT0}, 6, v0
v_lshrrev_b32 v{vH}, 5, v{vLane}
v_readfirstlane_b32 s{sW}, v{vT0}
s_and_b32 s{sT0}, s2, 7
s_lshr_b32 s{sT1}, s2, 3
s_and_b32 s{sI}, s{sT0}, 1
s_lshl_b32 s{sI}, s{sI}, 3
s_and_b32 s{sT2}, s{sT1}, 7
s_add_u32 s{sI}, s{sI}, s{sT2}
s_lshr_b32 s{sJ}, s{sT0}, 1
s_lshl_b32 s{sJ}, s{sJ}, 2
s_lshr_b32 s{sT3}, s{sT1}, 3
s_sub_u32 s{sJ}, s{sJ}, s{sT3}
s_add_u32 s{sJ}, s{sJ}, 3
s_and_b32 s{sTB}, s{sT0}, 3
s_lshl_b32 s{sTB}, s{sTB}, 3
s_add_u32 s{sTB}, s{sTB}, s{sT2}
s_lshr_b32 s{sCS}, s{sT0}, 2
s_lshl_b32 s{sCS}, s{sCS}, 2
s_add_u32 s{sCS}, s{sCS}, s{sT3}
s_and_b32 s{sW4}, s{sW}, 3""")
e(f"""v_lshrrev_b32 v{vT0}, 3, v{vLane}
v_lshlrev_b32 v{vT0}, 10, v{vT0}
v_and_b32 v{vT1}, 7, v{vLane}
v_lshrrev_b32 v{vT2}, 4, v{vLane}
v_xor_b32 v{vT1}, v{vT1}, v{vT2}
v_lshl_add_u32 v{vXa0}, v{vT1}, 4, v{vT0}
v_xor_b32 v{vXa1}, 64, v{vXa0}
v_add_u32 v{vXa1}, {8192-1024}, v{vXa1}""")
for k, r in enumerate((vWa0, vWa1, vWa2)):
    e(f"""v_add_u32 v{vT0}, {64*k}, v{vLane}
    v_mul_u32_u24 v{vT1}, 43691, v{vT0}
    v_lshrrev_b32 v{vT1}, 19, v{vT1}
    v_mul_u32_u24 v{vT2}, 12, v{vT1}
    v_sub_u32 v{vT0}, v{vT0}, v{vT2}
    v_mul_u32_u24 v{vT1}, 2752, v{vT1}
    v_lshl_add_u32 v{r}, v{vT0}, 4, v{vT1}""")
    if k: e(f"v_subrev_u32 v{r}, {1024*k}, v{r}")
e(f"""v_lshrrev_b32 v{vT0}, 2, v{vLane}
v_lshlrev_b32 v{vT0}, 10, v{vT0}
v_and_b32 v{vT1}, 3, v{vLane}
v_lshl_add_u32 v{vQa}, v{vT1}, 4, v{vT0}""")
e(f"""s_lshl_b32 s{sXo}, s{sI}, 17
s_lshl_b32 s{sT0}, s{sW}, 14
s_add_u32 s{sXo}, s{sXo}, s{sT0}
s_mul_i32 s{sT0}, s{sJ}, 96
s_min_u32 s{sT0}, s{sT0}, 1280
s_lshl_b32 s{sT0}, s{sT0}, 1
s_mul_i32 s{sWo}, s{sW4}, {16*2752}
s_add_u32 s{sWo}, s{sWo}, s{sT0}
s_lshl_b32 s{sQo}, s{sW4}, 14
s_lshl_b32 s{sT0}, s{sJ}, 6
s_add_u32 s{sQo}, s{sQo}, s{sT0}
s_lshl_b32 s{sMx}, s{sW}, 11
s_mul_i32 s{sMw}, s{sW}, 3072
s_add_u32 s{sMw}, s{sMw}, {GOFF}
s_lshl_b32 s{sMq}, s{sW4}, 10
s_add_u32 s{sMq}, s{sMq}, {QOFF}
s_mov_b32 s{sLb}, 0
s_mov_b32 s{sRetry}, 0
s_mov_b32 s{sC3}, {(-2*STG) & 0xffffffff}
s_waitcnt lgkmcnt(0)""")
def srd(d, p, nbytes):
    e(f"s_mov_b32 s{d}, s{p}\ns_mov_b32 s{d+1}, s{p+1}\ns_mov_b32 s{d+2}, {nbytes}\ns_mov_b32 s{d+3}, 0x20000")
srd(SX, 64, 2048*1024); srd(SWQ, 66, 512*1024)
e(f"s_cmp_ge_u32 s{sW}, 4\ns_cselect_b32 s{SWG}, s78, s76\ns_cselect_b32 s{SWG+1}, s79, s77\ns_mov_b32 s{SWG+2}, {512*2752}\ns_mov_b32 s{SWG+3}, 0x20000")
srd(SWS, 86, WS_BYTES)
srd(SWK, 68, 16384); srd(SWV, 70, 16384); srd(SWO, 72, 512*1024)
srd(SWD, 80, 1376*1024); srd(SOUT, 82, 2048*1024); srd(SDBG, 84, 256)
if PROF:
    e(f"s_lshl_b32 s{sPo}, s2, 3\ns_add_u32 s{sPo}, s{sPo}, s{sW}\ns_lshl_b32 s{sPo}, s{sPo}, 8\ns_add_u32 s{sPo}, s{sPo}, {PROFO}")
stamp(0)
if RT: e(f"s_nop 1\nv_mov_b32 v0, s100\nbuffer_store_dword v0, off, {sr(SWS,4)}, s{sPo} offset:60\ns_nop 1\nv_mov_b32 v0, s98\nbuffer_store_dword v0, off, {sr(SWS,4)}, s{sPo} offset:16")
elif PROF: e("s_mov_b32 s100, 0\ns_mov_b32 s101, 0")
def dma_groups(kind):
    gx = [f"s_add_u32 m0, s{sLb}, s{sMx}", "s_nop 0",
          f"buffer_load_dwordx4 v{vXa0}, {sr(SX,4)}, s{sXo} offen lds"]
    gx2 = [f"buffer_load_dwordx4 v{vXa1}, {sr(SX,4)}, s{sXo} offen offset:1024 lds", f"s_add_u32 s{sXo}, s{sXo}, 128"]
    w0 = [f"s_add_u32 m0, s{sLb}, s{sMw}", "s_nop 0", f"buffer_load_dwordx4 v{vWa0}, {sr(SWG,4)}, s{sWo} offen lds"]
    w1 = [f"buffer_load_dwordx4 v{vWa1}, {sr(SWG,4)}, s{sWo} offen offset:1024 lds"]
    w2 = [f"buffer_load_dwordx4 v{vWa2}, {sr(SWG,4)}, s{sWo} offen offset:2048 lds", f"s_add_u32 s{sWo}, s{sWo}, {64*2752}"]
    q = [f"s_add_u32 m0, s{sLb}, s{sMq}", "s_nop 0", f"buffer_load_dwordx4 v{vQa}, {sr(SWQ,4)}, s{sQo} offen lds",
         f"s_add_u32 s{sQo}, s{sQo}, 65536"]
    stg, nb = (STGK, NBK) if kind[-1] == "K" else (STG, 3)
    adv = [f"s_add_u32 s{sLb}, s{sLb}, {stg}", f"s_cmp_ge_u32 s{sLb}, {nb*stg}", f"s_cselect_b32 s{sLb}, 0, s{sLb}"]
    if kind == "L": return [gx+gx2, w0+w1, w2, q+adv]
    if kind == "H": return [gx+gx2, w0, w1, w2+adv]
    if kind == "HK": return [gx, gx2, w0+[f"s_add_u32 s{sWo}, s{sWo}, 2048"], adv]
    if kind == "LK": return [gx, gx2, q, adv]
def dma_stage(kind): return sum(dma_groups(kind), [])
NDMA = {"L": 6, "H": 5, "LK": 3, "HK": 3}
NX = {"L": TOUCH, "H": TOUCH, "LK": 0, "HK": 0}

e(f"""s_cmp_eq_u32 s{sJ}, 15
s_cbranch_scc1 Lkvcu
s_cmp_ge_u32 s{sW}, 4
s_cbranch_scc1 LproH""")

def common_init(kind):
    e(f"""v_and_b32 v{vT0}, 31, v{vLane}
    v_lshrrev_b32 v{vT1}, 1, v{vT0}
    v_and_b32 v{vT1}, 7, v{vT1}
    v_xor_b32 v{vT1}, v{vT1}, v{vH}
    v_lshlrev_b32 v{vT0}, 7, v{vT0}""")
    if kind == "L": e(f"s_and_b32 s{sT0}, s{sW}, 1\ns_lshl_b32 s{sT0}, s{sT0}, 13")
    elif kind == "KV": e(f"s_lshl_b32 s{sT0}, s{sW}, 14")
    else: e(f"s_lshl_b32 s{sT0}, s{sW4}, 12")
    e(f"v_add_u32 v{vT0}, s{sT0}, v{vT0}")
    for ks in range(4):
        e(f"v_xor_b32 v{vT2}, {2*ks}, v{vT1}\nv_lshl_add_u32 v{vRX+ks}, v{vT2}, 4, v{vT0}")
    e(f"""v_bfe_u32 v{vT0}, v{vLane}, 2, 2
    v_lshl_add_u32 v{vT0}, v{vH}, 3, v{vT0}
    v_bfe_u32 v{vT1}, v{vLane}, 4, 1
    v_and_b32 v{vT2}, 3, v{vLane}
    v_lshlrev_b32 v{vT2}, 3, v{vT2}
    v_lshl_add_u32 v{vT3}, v{vT1}, 5, v{vT2}
    v_lshl_add_u32 v{vRQ}, v{vT0}, 6, v{vT3}""")
    if kind == "KV":
        e(f"""v_lshlrev_b32 v{vT1}, 14, v{vT1}
        v_lshl_add_u32 v{vRW}, v{vT0}, 5, v{vT2}
        s_lshr_b32 s{sT0}, s{sW}, 2
        s_lshl_b32 s{sT0}, s{sT0}, 13
        s_add_u32 s{sT1}, s{sT0}, 131072
        v_add3_u32 v{vRW}, v{vRW}, v{vT1}, s{sT1}
        s_add_u32 s{sT1}, s{sT1}, s{sT0}
        v_add_u32 v{vRQ}, s{sT1}, v{vRQ}""")
    else:
        e(f"v_mul_u32_u24 v{vRW}, 192, v{vT0}\nv_add_u32 v{vRW}, v{vRW}, v{vT3}")
        if kind == "L": e(f"s_lshr_b32 s{sT0}, s{sW}, 1\ns_lshl_b32 s{sT0}, s{sT0}, 6\nv_add_u32 v{vRW}, s{sT0}, v{vRW}")
        else: e(f"v_add_u32 v{vRW}, 128, v{vRW}")
    e(f"""v_bfe_u32 v{vT0}, v{vLane}, 4, 1
    v_and_b32 v{vT1}, 15, v{vLane}
    v_cmp_eq_u32 vcc, v{vT0}, v{vT1}
    v_mov_b32 v{vT2}, 0x3f803f80
    s_nop 0
    v_cndmask_b32 v{vSel}, 0, v{vT2}, vcc""")
    for k in range(1, 4): e(f"v_mov_b32 v{vSel+k}, v{vSel}")
    for r in list(range(vCs, vCs+4)) + list(range(vAcc, vAcc+(64 if kind == 'L' else 48))) + list(range(vSt, vSt+4)):
        e(f"v_mov_b32 v{r}, 0")

def stats_ops(x, regs=range(4)):
    r = []
    for k in regs:
        lo, hi = vSt+4+2*(k & 1), vSt+5+2*(k & 1)
        r += [f"v_lshlrev_b32 v{lo}, 16, v{x+k}", f"v_and_b32 v{hi}, 0xffff0000, v{x+k}",
              f"v_add_f32 v{vSt}, v{vSt}, v{lo}", f"v_add_f32 v{vSt+1}, v{vSt+1}, v{hi}",
              f"v_fmac_f32 v{vSt+2}, v{lo}, v{lo}", f"v_fmac_f32 v{vSt+3}, v{hi}, v{hi}"]
    return r

def tr(d, a, off): return [f"ds_read_b64_tr_b16 {vr(d,2)}, v{a} offset:{off}"]
def p1_reads(kind, ks, F):
    if "--noread" in sys.argv: return []
    if kind == "L":
        return [f"ds_read_b128 {vr(F,4)}, v{vRX+ks}"] + tr(F+8, vRW, GOFF+(16*ks)*192) + tr(F+10, vRW, GOFF+(16*ks+4)*192) + \
               tr(F+12, vRW, UOFF+(16*ks)*192) + tr(F+14, vRW, UOFF+(16*ks+4)*192) + \
               [f"ds_read_b128 {vr(F+4,4)}, v{vRX+ks} offset:4096"]
    if kind == "H":
        return [f"ds_read_b128 {vr(F,4)}, v{vRX+ks}"] + tr(F+4, vRQ, QOFF+(16*ks)*64) + tr(F+6, vRQ, QOFF+(16*ks+4)*64) + \
               tr(F+8, vRW, GOFF+(16*ks)*192) + tr(F+10, vRW, GOFF+(16*ks+4)*192) + \
               tr(F+12, vRW, UOFF+(16*ks)*192) + tr(F+14, vRW, UOFF+(16*ks+4)*192)
    if kind == "HK":
        return [f"ds_read_b128 {vr(F,4)}, v{vRX+ks}"] + tr(F+8, vRW, GOFF+(16*ks)*32) + tr(F+10, vRW, GOFF+(16*ks+4)*32)
    if kind == "LK":
        return [f"ds_read_b128 {vr(F,4)}, v{vRX+ks}"] + tr(F+4, vRQ, QOFFK+(16*ks)*64) + tr(F+6, vRQ, QOFFK+(16*ks+4)*64)
def p1_comp(kind, var, F):
    if kind == "L":
        m = [mfma(vAcc, F+8, F), mfma(vAcc+16, F+12, F), mfma16(vCs, F+8+4*(var & 1), vSel), mfma(vAcc+32, F+8, F+4), mfma(vAcc+48, F+12, F+4)]
        return m, stats_ops(F+4*(var >> 1), (2, 3))
    if kind == "H":
        m = [mfma(vAcc, F+4, F), mfma(vAcc+16, F+8, F), mfma(vAcc+32, F+12, F)]
        if var < 3: m.insert(1, mfma16(vCs, F+4+4*var, vSel))
        return m, stats_ops(F, (0, 1))
    if kind == "HK":
        return [mfma(vAcc+16, F+8, F), mfma16(vCs, F+8, vSel), mfma(vAcc+32, F, F+8)], stats_ops(F, (0, 1))
    if kind == "LK":
        return [mfma(vAcc, F+4, F), mfma16(vCs, F+4, vSel)], stats_ops(F, (2, 3))

BARX = "s_nop 0" if "--nobar" in sys.argv else "s_barrier"
NST = 208 if "--rep" in sys.argv else 8
def spread(m, fill):
    w = [16 if "16x16" in x else 32 for x in m]
    tot = sum(c for c, _ in fill); W = sum(w)
    out = []; k = 0; acc = 0; cw = 0
    for x, wx in zip(m, w):
        out.append(x); cw += wx
        while k < len(fill) and (acc + fill[k][0]/2) * W <= tot * cw:
            out.append(fill[k][1]); acc += fill[k][0]; k += 1
    out += [t for _, t in fill[k:]]
    return out

def p1_loop(kind, var, done_label):
    tag = f"{kind}{var}"
    n = NDMA[kind]
    dg = dma_groups(kind)
    kv = kind[-1] == "K"
    stg, nb = (STGK, NBK) if kv else (STG, 3)
    LA = nb - 1
    if kind[0] == "H" and "--noprio" not in sys.argv: e("s_setprio 1")
    e(f"s_mov_b32 s{sSt}, 0\ns_mov_b32 s{sRb}, 0\ns_mov_b64 vcc, -1\ns_waitcnt vmcnt({(LA-1)*n+NX[kind]})\ns_barrier")
    stamp(12)
    def comp(F):
        m0, v0 = p1_comp(kind, var, F); m1, v1 = p1_comp(kind, var, F+16)
        if "--nostat" in sys.argv: v0 = v1 = ["s_nop 0"]*5
        if "--nomfma" in sys.argv: m0 = m1 = ["s_nop 0"]*2
        if "--nocs" in sys.argv: m0 = [x for x in m0 if "16x16" not in x]; m1 = [x for x in m1 if "16x16" not in x]
        return m0+m1, v0+v1
    def dblk(i, g): return (4*len(g)+8, "\n".join([f"s_cbranch_vccz Lnd{i}_{tag}"] + g + [f"Lnd{i}_{tag}:"]))
    rd = p1_reads(kind, 0, vF) + p1_reads(kind, 1, vF+16)
    for x in rd + sum(dg, []): e(x)
    e(f"s_branch Lp1h_{tag}")
    e(f".p2align 3\nLp1_{tag}:")
    m, va = comp(vF+32)
    hv = len(va)//2
    fill = [(6, x) for x in rd] + [dblk(0, dg[0])] + [(4, x) for x in va[:hv]] + [dblk(1, dg[1])] + [(4, x) for x in va[hv:]] + [dblk(2, dg[2]+dg[3])]
    for x in spread(m, fill): e(x)
    e(f"Lp1h_{tag}:\ns_waitcnt lgkmcnt(0)")
    rd = p1_reads(kind, 2, vF+32) + p1_reads(kind, 3, vF+48)
    m, va = comp(vF)
    ctl = (16, f"s_add_u32 s{sRb}, s{sRb}, 1\ns_cmp_eq_u32 s{sRb}, {nb}\ns_cselect_b32 s{sDl}, s{sC3}, {stg}\ns_cselect_b32 s{sRb}, 0, s{sRb}")
    adr = [(4, f"v_add_u32 v{r}, s{sDl}, v{r}") for r in list(range(vRX, vRX+4)) + ([vRW] if kind != "LK" else []) + ([vRQ] if kind in ("H", "LK") else [])]
    ctl2 = f"s_add_u32 s{sSt}, s{sSt}, 1\ns_cmp_lt_u32 s{sSt}, {8-LA}\ns_cselect_b64 vcc, -1, 0\ns_cmp_gt_u32 s{sSt}, {8-LA}"
    sync = f"s_cbranch_scc1 Lp1w_{tag}\ns_waitcnt vmcnt({(LA-1)*n}) lgkmcnt(0)\nLp1x_{tag}:\n{BARX}\nLp1y_{tag}:"
    k = 2
    nv = 10
    for x in spread(m[:-k], [(6, x) for x in rd] + [ctl] + adr + [(4, x) for x in va[:-nv]]): e(x)
    e(ctl2); e(sync)
    for x in spread(m[-k:], [(4, x) for x in va[-nv:]]): e(x)
    e(f"s_cmp_lg_u32 s{sSt}, {NST}\ns_cbranch_scc1 Lp1_{tag}")
    if kind == "H":
        e(f"v_mov_b32 v{vPoll}, {CNT_KV}\nbuffer_load_dword v{vPoll}, v{vPoll}, {sr(SDBG,4)}, 0 offen sc1")
    m, va = comp(vF+32)
    for x in spread(m, [(4, x) for x in va]): e(x)
    e(f"s_branch {done_label}")
    e(f"Lp1w_{tag}:\ns_waitcnt lgkmcnt(0)\ns_cmp_eq_u32 s{sSt}, {NST}\ns_cbranch_scc1 Lp1y_{tag}")
    for st in range(9-LA, 7):
        e(f"s_waitcnt vmcnt({(7-st)*n})\ns_cmp_eq_u32 s{sSt}, {st}\ns_cbranch_scc1 Lp1x_{tag}")
    e(f"s_waitcnt vmcnt(0)\ns_branch Lp1x_{tag}")

def o_prod_off(dst):
    e(f"""s_lshl_b32 s{sT0}, s{sI}, 2
    s_lshr_b32 s{sT1}, s{sW}, 1
    s_add_u32 s{sT0}, s{sT0}, s{sT1}
    s_lshl_b32 s{sT0}, s{sT0}, 5
    s_lshl_b32 s{sT1}, s{sJ}, 1
    s_and_b32 s{dst}, s{sW}, 1
    s_add_u32 s{sT1}, s{sT1}, s{dst}
    s_lshr_b32 s{dst}, s{sT1}, 2
    s_add_u32 s{sT0}, s{sT0}, s{dst}
    s_and_b32 s{sT1}, s{sT1}, 3
    s_lshl_b32 s{sT1}, s{sT1}, 3
    s_add_u32 s{sT0}, s{sT0}, s{sT1}
    s_lshl_b32 s{sT0}, s{sT0}, 10
    s_add_u32 s{dst}, s{sT0}, {OIMG}""")

def v_lane_addr(d):
    e(f"""v_and_b32 v{d}, 15, v{vLane}
    v_lshlrev_b32 v{d}, 4, v{d}
    v_lshl_add_u32 v{d}, v{vH}, 8, v{d}
    s_mov_b32 exec_lo, 0xffff0000
    s_mov_b32 exec_hi, 0xffff0000
    v_mov_b32 v{d}, 512""")
def early_init():
    o_prod_off(sOp)
    v_lane_addr(vAv)
    e(f"""s_mov_b32 exec_lo, 0xffee0000
    s_mov_b32 exec_hi, 0xffee0000
    v_mov_b32 v{vAv}, 0x4000000
    s_mov_b64 exec, -1
    v_add_u32 v{vAv}, 1024, v{vAv}
    v_lshlrev_b32 v{vAk}, 4, v{vLane}
    v_lshlrev_b32 v{vL16}, 4, v{vLane}
    v_mov_b32 v{vIdx}, 0xdddd
    v_lshrrev_b32 v{vT0}, 3, v{vLane}
    v_lshlrev_b32 v{vT0}, 10, v{vT0}
    v_and_b32 v{vT1}, 7, v{vLane}
    v_bfe_u32 v{vT2}, v{vLane}, 4, 1
    v_lshlrev_b32 v{vT2}, 2, v{vT2}
    v_xor_b32 v{vT1}, v{vT1}, v{vT2}
    v_lshl_add_u32 v{vDa}, v{vT1}, 4, v{vT0}
    s_lshl_b32 s{sDo}, s{sW}, 13
    s_lshl_b32 s{sT1}, s{sCS}, 7
    s_add_u32 s{sDo}, s{sDo}, s{sT1}
    s_lshl_b32 s{sDm}, s{sW}, 10
    s_lshr_b32 s{sKq}, s{sW}, 1
    s_and_b32 s{sTt}, s{sW}, 1
    s_lshl_b32 s{sT0}, s{sTB}, 1
    s_add_u32 s{sT2}, s{sT0}, s{sTt}
    s_mul_i32 s{sHo}, s{sT2}, 88
    s_mul_i32 s{sT0}, s{sKq}, 22
    s_add_u32 s{sHo}, s{sHo}, s{sT0}
    s_lshl_b32 s{sHo}, s{sHo}, 10
    s_add_u32 s{sHo}, s{sHo}, {HIMG}
    s_lshl_b32 s{sT0}, s{sT2}, 2
    s_add_u32 s{sT0}, s{sT0}, s{sKq}
    s_lshl_b32 s{sT0}, s{sT0}, 13
    s_add_u32 s{sOc}, s{sT0}, {OIMG}
    s_add_u32 s{sOc2}, s{sOc}, 4096
    s_lshl_b32 s{sT0}, s{sT2}, 15
    s_add_u32 s{sT0}, s{sT0}, s{sT1}
    s_lshl_b32 s{sT1}, s{sKq}, 5
    s_add_u32 s{sXf}, s{sT0}, s{sT1}
    s_lshr_b32 s{sHc}, s{sTB}, 1
    s_lshl_b32 s{sHc}, s{sHc}, 2
    s_add_u32 s{sHc}, s{sHc}, {CNT_H}
    s_lshl_b32 s{sHs}, s{sI}, 2
    s_add_u32 s{sHs}, s{sHs}, {CNT_H}
    s_add_u32 s{sT0}, s{sDm}, {QIMG}
    v_add_u32 v{vAq}, s{sT0}, v{vL16}
    v_and_b32 v{vT0}, 31, v{vLane}
    v_lshlrev_b32 v{vT0}, 10, v{vT0}
    v_lshl_add_u32 v{vRa}, v{vH}, 4, v{vT0}
    v_bfe_u32 v{vT0}, v{vLane}, 2, 2
    v_lshl_add_u32 v{vT0}, v{vH}, 2, v{vT0}
    v_lshlrev_b32 v{vT0}, 7, v{vT0}
    v_bfe_u32 v{vT1}, v{vLane}, 4, 1
    v_lshl_add_u32 v{vT0}, v{vT1}, 5, v{vT0}
    v_and_b32 v{vT1}, 3, v{vLane}
    v_lshl_add_u32 v{vT0}, v{vT1}, 3, v{vT0}
    v_bfe_u32 v{vT1}, v{vLane}, 3, 1
    v_lshl_add_u32 v{vT0}, v{vT1}, 6, v{vT0}
    s_lshl_b32 s{sT0}, s{sKq}, 11
    v_add_u32 v{vRd}, s{sT0}, v{vT0}
    v_xor_b32 v{vRd+1}, 64, v{vRd}
    v_add_u32 v{vRd+2}, 0xe000, v{vRd}
    v_add_u32 v{vRd+3}, 0xe000, v{vRd+1}
    v_add_u32 v{vRd+4}, 0x1c000, v{vRd}
    v_add_u32 v{vRd+5}, 0x1c000, v{vRd+1}
    s_mul_i32 s{sT1}, s{sTt}, {4*ASL}
    s_add_u32 s{sT1}, s{sT1}, {RED}
    s_add_u32 s{sT0}, s{sT0}, s{sT1}
    v_add_u32 v{vRw}, s{sT0}, v{vL16}
    s_mul_i32 s{sT0}, s{sKq}, {ASL}
    s_add_u32 s{sT0}, s{sT0}, s{sT1}
    v_add_u32 v{vRr}, s{sT0}, v{vL16}""")
    for r in range(12): e(f"v_mov_b32 v{vO+r}, 0")

def prologue(kind):
    nb = NBK if kind[-1] == "K" else 3
    for x in dma_stage(kind): e(x)
    common_init(kind)
    for _ in range(nb-2):
        for x in dma_stage(kind): e(x)
    early_init()
    if kind in ("L", "H") and TOUCH: touch(kind)
def sentinel(r):
    for k in range(4): e(f"v_mov_b32 v{r+k}, -1")
    e(f"buffer_store_dwordx4 {vr(r,4)}, v{vL16}, {sr(SWS,4)}, s{sOp} offen sc1")

def touch(kind):
    t = f"Lt{kind}"
    e(f"s_and_b32 s{sT2}, s{sI}, 7\ns_lshl_b32 s{sT2}, s{sT2}, 5\ns_add_u32 s{sT2}, s{sT2}, 256")
    for v in range(1, 4): e(f"s_cmp_eq_u32 s{sW4}, {v}\ns_cbranch_scc1 {t}{v}")
    e(f"""v_lshrrev_b32 v{vT0}, 1, v{vLane}
    v_mul_u32_u24 v{vT0}, 2752, v{vT0}
    v_and_b32 v{vT1}, 1, v{vLane}
    v_lshl_add_u32 v{vT0}, v{vT1}, 7, v{vT0}
    s_mul_i32 s{sT0}, s{sJ}, 96
    s_min_u32 s{sT0}, s{sT0}, 1280
    s_lshl_b32 s{sT0}, s{sT0}, 1
    s_mul_i32 s{sT2}, s{sT2}, 2752
    s_add_u32 s{sT0}, s{sT0}, s{sT2}
    buffer_load_dword v{vPoll}, v{vT0}, {sr(SWG,4)}, s{sT0} offen
    s_branch {t}e""")
    if kind == "L":
        e(f"""{t}1:
        v_and_b32 v{vT0}, 31, v{vLane}
        v_lshlrev_b32 v{vT0}, 10, v{vT0}
        s_lshl_b32 s{sT2}, s{sT2}, 10
        s_lshl_b32 s{sT0}, s{sJ}, 6
        s_add_u32 s{sT0}, s{sT0}, s{sT2}
        buffer_load_dword v{vPoll}, v{vT0}, {sr(SWQ,4)}, s{sT0} offen
        s_branch {t}e
        {t}2:
        {t}3:
        v_lshrrev_b32 v{vT0}, 2, v{vLane}
        v_lshlrev_b32 v{vT0}, 10, v{vT0}
        v_and_b32 v{vT1}, 3, v{vLane}
        v_lshl_add_u32 v{vT0}, v{vT1}, 7, v{vT0}
        s_lshl_b32 s{sT0}, s{sI}, 17
        s_and_b32 s{sT1}, s{sJ}, 3
        s_lshl_b32 s{sT1}, s{sT1}, 15
        s_add_u32 s{sT0}, s{sT0}, s{sT1}
        s_and_b32 s{sT1}, s{sW}, 1
        s_lshl_b32 s{sT1}, s{sT1}, 14
        s_add_u32 s{sT0}, s{sT0}, s{sT1}
        buffer_load_dword v{vPoll}, v{vT0}, {sr(SX,4)}, s{sT0} offen offset:512""")
    else:
        e(f"""{t}1:
        v_lshlrev_b32 v{vT0}, 15, v{vLane}
        buffer_load_dword v{vPoll}, v{vT0}, {sr(SWD,4)}, 0 offen
        s_branch {t}e
        {t}2:
        v_lshlrev_b32 v{vT0}, 15, v{vLane}
        buffer_load_dword v{vPoll}, v{vT0}, {sr(SWO,4)}, 0 offen
        s_branch {t}e
        {t}3:
        v_lshlrev_b32 v{vT0}, 17, v{vLane}
        buffer_load_dword v{vPoll}, v{vT0}, {sr(SWS,4)}, 0 offen""")
    e(f"{t}e:")

def cs_write(acc, slot_expr_sreg):
    e(f"""v_and_b32 v{vT0}, 1, v{vLane}
    v_lshlrev_b32 v{vT0}, 6, v{vT0}
    v_lshrrev_b32 v{vT1}, 4, v{vLane}
    v_lshl_add_u32 v{vT0}, v{vT1}, 4, v{vT0}
    v_add_u32 v{vT0}, {slot_expr_sreg}, v{vT0}
    s_mov_b32 exec_lo, 0x00030003
    s_mov_b32 exec_hi, 0x00030003
    ds_write_b128 v{vT0}, {vr(acc,4)}
    s_mov_b64 exec, -1""")

def stats_post(tile_sreg, part):
    e(f"""v_add_f32 v{vSt}, v{vSt}, v{vSt+1}
    v_add_f32 v{vSt+2}, v{vSt+2}, v{vSt+3}
    v_mov_b32 v{vSt+1}, v{vSt}
    v_mov_b32 v{vSt+3}, v{vSt+2}
    v_and_b32 v{vT0}, 31, v{vLane}
    s_lshl_b32 s{sT0}, s{tile_sreg}, 7
    v_permlane32_swap_b32 v{vSt}, v{vSt+1}
    v_permlane32_swap_b32 v{vSt+2}, v{vSt+3}
    s_add_u32 s{sT0}, s{sT0}, {STATM+1024*part}
    v_lshl_add_u32 v{vT0}, v{vT0}, 2, s{sT0}
    v_add_f32 v{vSt}, v{vSt}, v{vSt+1}
    v_add_f32 v{vSt+2}, v{vSt+2}, v{vSt+3}
    ds_write_b32 v{vT0}, v{vSt}
    ds_write_b32 v{vT0}, v{vSt+2} offset:512""")
def stats_read(d, addr, off):
    e(f"ds_read2st64_b32 {vr(d,2)}, v{addr} offset0:0 offset1:2" if off == 0 else f"ds_read2_b32 {vr(d,2)}, v{addr} offset0:{off//4} offset1:{(off+512)//4}")
    e(f"ds_read_b32 v{d+2}, v{addr} offset:{off+1024}\nds_read_b32 v{d+3}, v{addr} offset:{off+1536}")
def stats_fin(d, m, r):
    e(f"""v_add_f32 v{d}, v{d}, v{d+2}
    v_add_f32 v{d+1}, v{d+1}, v{d+3}
    v_mul_f32 v{m}, {f2u(1/512):#x}, v{d}
    v_mul_f32 v{d+1}, {f2u(1/512):#x}, v{d+1}
    v_fma_f32 v{d+1}, -v{m}, v{m}, v{d+1}
    v_max_f32 v{d+1}, 0, v{d+1}
    v_add_f32 v{d+1}, {f2u(1e-5):#x}, v{d+1}
    v_rsq_f32 v{r}, v{d+1}
    s_nop 0""")

C1 = -2*0.7978845608028654*1.4426950408889634
C3 = C1*0.044715
def gelu_consts(m, r, d):
    e(f"""v_sub_f32 v{d}, 0, v{m}
    v_mul_f32 v{d+3}, v{r}, v{r}
    v_mul_f32 v{d+1}, {f2u(C1):#x}, v{r}
    v_mul_f32 v{d+2}, {f2u(C3):#x}, v{r}
    v_mul_f32 v{d+2}, v{d+2}, v{d+3}
    v_rcp_f32 v{d+3}, v{d+3}""")
def bc(reg, pos, n):
    base = reg & ~1
    return vr(base, 2), reg & 1
def pk(op, d, srcs, neg=None):
    ops = []; lo = []; hi = []
    for t, r in srcs:
        if t == 'p': ops.append(vr(r, 2)); lo.append(0); hi.append(1)
        else: ops.append(vr(r & ~1, 2)); lo.append(r & 1); hi.append(r & 1)
    return f"{op} {vr(d,2)}, {', '.join(ops)} op_sel:[{','.join(map(str,lo))}] op_sel_hi:[{','.join(map(str,hi))}]"
def gelu_tile(g, u, csg, csu, k, tmp):
    for p in range(0, 16, 2):
        e(pk("v_pk_fma_f32", g+p, [('b', k), ('p', csg+p), ('p', g+p)]))
        e(pk("v_pk_fma_f32", u+p, [('b', k), ('p', csu+p), ('p', u+p)]))
    for p in range(0, 16, 2):
        e(pk("v_pk_mul_f32", tmp+p, [('p', g+p), ('p', g+p)]))
    for p in range(0, 16, 2):
        e(pk("v_pk_fma_f32", tmp+p, [('p', tmp+p), ('b', k+2), ('b', k+1)]))
    for p in range(0, 16, 2):
        e(pk("v_pk_mul_f32", tmp+p, [('p', tmp+p), ('p', g+p)]))
    for p in range(16): e(f"v_exp_f32 v{tmp+p}, v{tmp+p}")
    for p in range(0, 16, 2):
        e(pk("v_pk_mul_f32", u+p, [('p', u+p), ('p', g+p)]))
    for p in range(0, 16, 2):
        e(pk("v_pk_fma_f32", tmp+p, [('p', tmp+p), ('b', k+3), ('b', k+3)]))
    for p in range(16): e(f"v_rcp_f32 v{tmp+p}, v{tmp+p}")
    e("s_nop 0")
    for p in range(0, 16, 2):
        e(pk("v_pk_mul_f32", u+p, [('p', u+p), ('p', tmp+p)]))
    for p in range(8): e(f"v_cvt_pk_bf16_f32 v{g+p}, v{u+2*p}, v{u+2*p+1}")

def cs_read(d, slot_off):
    for q in range(4): e(f"ds_read_b128 {vr(d+4*q,4)}, v{vT3} offset:{slot_off+32*q}")

def lin_fold(acc, cs, negm, scale, n=16):
    for p in range(0, n, 2):
        e(pk("v_pk_fma_f32", acc+p, [('b', negm), ('p', cs+p), ('p', acc+p)]))
    for p in range(0, n, 2):
        e(pk("v_pk_mul_f32", acc+p, [('p', acc+p), ('b', scale)]))

def q_epilogue(cs):
    e(f"v_mul_f32 v{vSt+2}, {f2u(0.25*1.4426950408889634):#x}, v{vSt+1}")
    lin_fold(vAcc, cs, vSt+4, vSt+2)
    for p in range(8): e(f"v_cvt_pk_bf16_f32 v{vAcc+p}, v{vAcc+2*p}, v{vAcc+2*p+1}")
    e(f"""s_lshl_b32 s{sT0}, s{sW4}, 11
    s_add_u32 s{sT0}, s{sT0}, {QIMG}
    v_lshl_add_u32 v{vT0}, v{vLane}, 4, s{sT0}
    ds_write_b128 v{vT0}, {vr(vAcc,4)}
    ds_write_b128 v{vT0}, {vr(vAcc+4,4)} offset:1024""")

def h_off(dst, tile_add_sreg, unit_add):
    e(f"""s_lshl_b32 s{sT0}, s{sI}, 2
    s_add_u32 s{sT0}, s{sT0}, s{tile_add_sreg}
    s_mul_i32 s{sT0}, s{sT0}, 88
    s_mul_i32 s{sT1}, s{sJ}, 6
    s_min_u32 s{sT1}, s{sT1}, 80
    s_add_u32 s{sT1}, s{sT1}, {unit_add}
    s_lshr_b32 s{dst}, s{sT1}, 2
    s_add_u32 s{sT0}, s{sT0}, s{dst}
    s_and_b32 s{sT1}, s{sT1}, 3
    s_mul_i32 s{sT1}, s{sT1}, 22
    s_add_u32 s{sT0}, s{sT0}, s{sT1}
    s_lshl_b32 s{sT0}, s{sT0}, 10
    s_add_u32 s{dst}, s{sT0}, {HIMG}""")
def h_store(acc, so):
    e(f"buffer_store_dwordx4 {vr(acc,4)}, v{vT2}, {sr(SWS,4)}, s{so} offen sc1")
    e(f"s_add_u32 s{so}, s{so}, {22*1024}")
    e(f"buffer_store_dwordx4 {vr(acc+4,4)}, v{vT2}, {sr(SWS,4)}, s{so} offen sc1")
def kv_dma(tag):
    e(f"""s_lshl_b32 s{sT0}, s{sW4}, 10
    v_lshlrev_b32 v{vT0}, 4, v{vLane}
    Lkvd_{tag}:
    s_mov_b32 m0, s{sT0}
    s_nop 0
    buffer_load_dwordx4 v{vT0}, {sr(SWS,4)}, s{sT0} offen sc1 lds
    s_add_u32 s{sT0}, s{sT0}, 4096
    s_cmp_lt_u32 s{sT0}, {36*1024}
    s_cbranch_scc1 Lkvd_{tag}""")

prologue("L")
for v in range(1, 4): e(f"s_cmp_eq_u32 s{sW}, {v}\ns_cbranch_scc1 LL{v}")
for v in range(4):
    e(f"LL{v}:")
    p1_loop("L", v, "LepiL")
e("LepiL:")
stamp(1)
e(f"s_and_b32 s{sT2}, s{sW}, 1\ns_lshl_b32 s{sT2}, s{sT2}, 1\ns_lshr_b32 s{sT3}, s{sW}, 1\ns_add_u32 s{sT2}, s{sT2}, s{sT3}")
stats_post(sT2, 1)
e(f"s_lshl_b32 s{sT1}, s{sW}, 7\ns_add_u32 s{sT1}, s{sT1}, {CSUM+128}")
cs_write(vCs, f"s{sT1}")
e(f"""s_lshr_b32 s{sT0}, s{sW}, 1
s_lshl_b32 s{sT0}, s{sT0}, 8
s_add_u32 s{sT0}, s{sT0}, {CSUM+128}
v_lshl_add_u32 v{vT3}, v{vH}, 4, s{sT0}
s_and_b32 s{sT1}, s{sW}, 1
s_lshl_b32 s{sT1}, s{sT1}, 8
s_add_u32 s{sT1}, s{sT1}, {STATM}
v_and_b32 v{vT0}, 31, v{vLane}
v_lshl_add_u32 v{vT0}, v{vT0}, 2, s{sT1}
s_waitcnt lgkmcnt(0)
s_barrier""")
stats_read(vSt+12, vT0, 0); stats_read(vSt+16, vT0, 128)
cs_read(vF, 0); cs_read(vF+16, 128)
e(f"s_and_b32 s{sT3}, s{sW}, 1\ns_lshl_b32 s{sT3}, s{sT3}, 1\ns_and_b32 s{sC0}, s{sW}, 2")
h_off(sT2, sT3, f"s{sC0}")
e(f"s_add_u32 s{sT3}, s{sT2}, {88*1024}\nv_lshlrev_b32 v{vT2}, 4, v{vLane}\ns_waitcnt lgkmcnt(0)")
stats_fin(vSt+12, vSt, vSt+1); stats_fin(vSt+16, vSt+2, vSt+3)
gelu_consts(vSt, vSt+1, vSt+4); gelu_consts(vSt+2, vSt+3, vSt+8)
for tt in range(2):
    gelu_tile(vAcc+32*tt, vAcc+32*tt+16, vF, vF+16, vSt+4+4*tt, vSt+12)
    h_store(vAcc+32*tt, sT2 if tt == 0 else sT3)
e("s_branch Lp2")

e("LproH:")
prologue("H")
for v in range(1, 4): e(f"s_cmp_eq_u32 s{sW4}, {v}\ns_cbranch_scc1 LH{v}")
for v in range(4):
    e(f"LH{v}:")
    p1_loop("H", v, "LepiH")
e("LepiH:")
stamp(1)
stats_post(sW4, 0)
e(f"v_mov_b32 v{vT2}, v{vT0}")
e(f"""s_cmp_eq_u32 s{sW4}, 3
s_cbranch_scc1 LHnocs
s_add_u32 s{sT1}, s{sW4}, 4
s_cmp_eq_u32 s{sW4}, 0
s_cselect_b32 s{sT1}, 0, s{sT1}
s_lshl_b32 s{sT1}, s{sT1}, 7
s_add_u32 s{sT1}, s{sT1}, {CSUM}""")
cs_write(vCs, f"s{sT1}")
e(f"""LHnocs:
v_mov_b32 v{vT3}, {CSUM}
v_lshl_add_u32 v{vT3}, v{vH}, 4, v{vT3}
s_waitcnt lgkmcnt(0)
s_barrier""")
stats_read(vSt+12, vT2, 0)
cs_read(vAcc+48, 0); cs_read(vF, 5*128); cs_read(vF+16, 6*128)
h_off(sT2, sW4, 4)
e(f"v_lshlrev_b32 v{vT2}, 4, v{vLane}\ns_waitcnt lgkmcnt(0)")
stats_fin(vSt+12, vSt, vSt+1)
gelu_consts(vSt, vSt+1, vSt+4)
q_epilogue(vAcc+48)
e(f"s_waitcnt vmcnt(0)\nv_readfirstlane_b32 s{sRetry}, v{vPoll}\ns_cmp_lt_u32 s{sRetry}, 16\ns_cbranch_scc1 LHnodma")
kv_dma("a")
e("LHnodma:")
stamp(13)
gelu_tile(vAcc+16, vAcc+32, vF, vF+16, vSt+4, vSt+12)
h_store(vAcc+16, sT2)
e(f"s_cmp_lt_u32 s{sRetry}, 16\ns_cbranch_scc1 Lkvwait\ns_waitcnt vmcnt(2)\ns_branch Lp2")

e("Lkvcu:")
WKV = 131072
vXf, vWk = 32, 192
sXb = sMw
e(f"""s_lshl_b32 s{sT0}, s{sW}, 11
v_lshlrev_b32 v{vWa0}, 4, v{vLane}
s_add_u32 m0, s{sT0}, {WKV}
s_lshl_b32 s{sXb}, s{sW}, 14
buffer_load_dwordx4 v{vWa0}, {sr(SWV,4)}, s{sT0} offen lds
buffer_load_dwordx4 v{vWa0}, {sr(SWV,4)}, s{sT0} offen offset:1024 lds
s_add_u32 m0, s{sT0}, {WKV+16384}
s_lshl_b32 s{sXo}, s{sI}, 17
buffer_load_dwordx4 v{vWa0}, {sr(SWK,4)}, s{sT0} offen lds
buffer_load_dwordx4 v{vWa0}, {sr(SWK,4)}, s{sT0} offen offset:1024 lds
s_lshl_b32 s{sT0}, s{sW4}, 15
s_add_u32 s{sXo}, s{sXo}, s{sT0}
s_lshr_b32 s{sT3}, s{sW}, 2
s_lshl_b32 s{sT0}, s{sT3}, 9
s_add_u32 s{sXo}, s{sXo}, s{sT0}""")
def kvx_dma(c):
    return [f"""s_add_u32 m0, s{sXb}, {4096*c+2048*hf}
        s_add_u32 s{sT0}, s{sXo}, {128*c+16384*hf}
        buffer_load_dwordx4 v{vXa0}, {sr(SX,4)}, s{sT0} offen lds
        buffer_load_dwordx4 v{vXa1}, {sr(SX,4)}, s{sT0} offen offset:1024 lds""" for hf in range(2)]
for x in kvx_dma(0): e(x)
common_init("KV")
for x in kvx_dma(1): e(x)
e("s_waitcnt vmcnt(4)\ns_barrier")
stamp(12)
def kv_reads(c):
    r = []
    for ks in range(4):
        W = vWk + 16*(c & 1) + 4*ks
        r += [f"ds_read_b128 {vr(vXf+16*c+4*ks,4)}, v{vRX+ks} offset:{4096*c}"]
        r += tr(W, vRW, (64*c+16*ks)*32) + tr(W+2, vRW, (64*c+16*ks+4)*32)
    return r
for x in kv_reads(0): e(x)
for c in range(4):
    m = []; va = []
    for ks in range(4):
        X = vXf+16*c+4*ks; W = vWk + 16*(c & 1) + 4*ks
        m += [mfma(vAcc+16, W, X), mfma16(vCs, W, vSel), mfma(vAcc+32, X, W)]
        va += stats_ops(X)
    fill = [(4, x) for x in va]
    if c < 2: fill = [(16, x) for x in kvx_dma(c+2)] + fill
    if c < 3: fill = fill[:56] + [(4, f"s_waitcnt vmcnt({4 if c < 2 else 0})")] + [(6, x) for x in kv_reads(c+1)] + fill[56:]
    e("s_waitcnt lgkmcnt(0)")
    for x in spread(m, fill): e(x)
stamp(1)
e(f"""v_add_f32 v{vSt}, v{vSt}, v{vSt+1}
v_add_f32 v{vSt+2}, v{vSt+2}, v{vSt+3}
v_mov_b32 v{vSt+1}, v{vSt}
v_mov_b32 v{vSt+3}, v{vSt+2}
v_and_b32 v{vT2}, 31, v{vLane}
v_lshlrev_b32 v{vT2}, 2, v{vT2}
v_permlane32_swap_b32 v{vSt}, v{vSt+1}
v_permlane32_swap_b32 v{vSt+2}, v{vSt+3}
v_add_u32 v{vT1}, s{sXb}, v{vT2}
s_xor_b32 s{sT2}, s{sXb}, 65536
v_add_f32 v{vSt+20}, v{vSt}, v{vSt+1}
v_add_f32 v{vSt+21}, v{vSt+2}, v{vSt+3}
ds_write_b32 v{vT1}, v{vSt+20} offset:4096
ds_write_b32 v{vT1}, v{vSt+21} offset:4224
s_add_u32 s{sT1}, s{sXb}, 4352""")
cs_write(vCs, f"s{sT1}")
e(f"""v_add_u32 v{vT0}, s{sXb}, v{vWa0}
v_add_u32 v{vWa1}, s{sT2}, v{vWa0}
v_add_u32 v{vWa2}, s{sT2}, v{vT2}
v_lshl_add_u32 v{vT3}, v{vH}, 4, s{sXb}
s_lshl_b32 s{sT0}, s{sI}, 2
s_add_u32 s{sT0}, s{sT0}, s{sW4}
s_mul_i32 s{sC0}, s{sT0}, {KVT}
s_lshl_b32 s{sQo}, s{sW}, 16
s_add_u32 s{sQo}, s{sQo}, {64*15}
s_lshl_b32 s{sMq}, s{sW}, 12
s_add_u32 s{sMq}, s{sMq}, {WKV}
s_cmp_ge_u32 s{sW}, 4
s_cbranch_scc1 LkvH""")
def wq_dma():
    for k in range(4):
        e(f"s_add_u32 m0, s{sMq}, {1024*k}\ns_add_u32 s{sT0}, s{sQo}, {16384*k}\nbuffer_load_dwordx4 v{vQa}, {sr(SWQ,4)}, s{sT0} offen lds")
for q in range(4): e(f"ds_write_b128 v{vT0}, {vr(vAcc+32+4*q,4)} offset:{1024*q}")
e(f"v_xor_b32 v{vT1}, 0x10000, v{vT3}\ns_waitcnt lgkmcnt(0)\ns_barrier")
e(f"""ds_read_b32 v{vSt+22}, v{vWa2} offset:4096
ds_read_b32 v{vSt+23}, v{vWa2} offset:4224
ds_read_b128 {vr(vWk,4)}, v{vWa1}
ds_read_b128 {vr(vWk+4,4)}, v{vWa1} offset:1024
ds_read_b128 {vr(vSt+12,4)}, v{vT3} offset:{4352+64}
ds_read_b128 {vr(vSt+16,4)}, v{vT3} offset:{4352+96}
ds_read_b128 {vr(vWk+8,4)}, v{vT1} offset:{4352+64}
ds_read_b128 {vr(vWk+12,4)}, v{vT1} offset:{4352+96}""")
wq_dma()
e(f"""v_and_b32 v{vT0}, 0x33, v{vLane}
v_bfe_u32 v{vT1}, v{vLane}, 2, 1
v_lshl_or_b32 v{vT0}, v{vT1}, 3, v{vT0}
v_bfe_u32 v{vT1}, v{vLane}, 3, 1
v_lshl_or_b32 v{vT0}, v{vT1}, 2, v{vT0}
v_lshlrev_b32 v{vT0}, 4, v{vT0}
s_waitcnt lgkmcnt(0)""")
stats_fin(vSt+20, vSt, vSt+1)
e(f"v_sub_f32 v{vSt+4}, 0, v{vSt}")
for p in range(0, 8, 2):
    e(pk("v_pk_add_f32", vAcc+24+p, [('p', vAcc+24+p), ('p', vWk+p)]))
    e(pk("v_pk_add_f32", vSt+12+p, [('p', vSt+12+p), ('p', vWk+8+p)]))
lin_fold(vAcc+24, vSt+12, vSt+4, vSt+1, 8)
for p in range(4): e(f"v_cvt_pk_bf16_f32 v{vAcc+16+p}, v{vAcc+24+2*p}, v{vAcc+25+2*p}")
e(f"buffer_store_dwordx4 {vr(vAcc+16,4)}, v{vT0}, {sr(SWS,4)}, s{sC0} offen sc1\ns_branch LkvS")
e("LkvH:")
e(f"ds_write_b128 v{vT0}, {vr(vAcc+24,4)}\nds_write_b128 v{vT0}, {vr(vAcc+28,4)} offset:1024")
e(f"v_add_u32 v{vT1}, s{sXb}, v{vT2}\ns_waitcnt lgkmcnt(0)\ns_barrier")
e(f"""ds_read_b32 v{vSt+22}, v{vWa2} offset:4096
ds_read_b32 v{vSt+23}, v{vWa2} offset:4224
ds_read_b32 v{vSt+6}, v{vT1} offset:4352
ds_read_b32 v{vSt+7}, v{vWa2} offset:4352""")
for q in range(4): e(f"ds_read_b128 {vr(vAcc+48+4*q,4)}, v{vWa1} offset:{1024*q}")
wq_dma()
e("s_waitcnt lgkmcnt(0)")
stats_fin(vSt+20, vSt, vSt+1)
e(f"ds_write_b32 v{vT1}, v{vSt} offset:4608\nds_write_b32 v{vT1}, v{vSt+1} offset:4736\ns_waitcnt lgkmcnt(0)")
for q in range(4):
    e(f"ds_read_b128 {vr(vWk+4*q,4)}, v{vT3} offset:{4608+32*q}\nds_read_b128 {vr(vWk+16+4*q,4)}, v{vT3} offset:{4736+32*q}")
e(f"v_add_f32 v{vSt+6}, v{vSt+6}, v{vSt+7}\nv_sub_f32 v{vSt+6}, 0, v{vSt+6}")
for p in range(0, 16, 2): e(pk("v_pk_add_f32", vAcc+32+p, [('p', vAcc+32+p), ('p', vAcc+48+p)]))
e("s_waitcnt lgkmcnt(0)")
for p in range(0, 16, 2): e(pk("v_pk_fma_f32", vAcc+32+p, [('p', vWk+p), ('b', vSt+6), ('p', vAcc+32+p)]))
for p in range(0, 16, 2): e(pk("v_pk_mul_f32", vAcc+32+p, [('p', vAcc+32+p), ('p', vWk+16+p)]))
for p in range(8): e(f"v_cvt_pk_bf16_f32 v{vAcc+32+p}, v{vAcc+32+2*p}, v{vAcc+33+2*p}")
v_lane_addr(vT0)
for p in range(8): e(f"v_mov_b32 v{vAcc+32+p}, 0x3f803f80")
e(f"""s_mov_b32 exec_lo, 0x1ffff
s_mov_b32 exec_hi, 0xffff
buffer_store_dwordx4 {vr(vAcc+32,4)}, v{vT0}, {sr(SWS,4)}, s{sC0} offen offset:1024 sc1
buffer_store_dwordx4 {vr(vAcc+36,4)}, v{vT0}, {sr(SWS,4)}, s{sC0} offen offset:{1024+528} sc1
s_mov_b64 exec, -1
LkvS:""")
for r in range(4): e(f"v_mov_b32 v{vCs+r}, 0")
e("s_waitcnt vmcnt(0)\ns_barrier")
signal(CNT_KV, "kv")
stamp(13)
early_init()
def q_reads(c):
    r = []
    for ks in range(4):
        W = vWk + 16*(c & 1) + 4*ks
        r += tr(W, vRQ, (64*c+16*ks)*64) + tr(W+2, vRQ, (64*c+16*ks+4)*64)
    return r
for x in q_reads(0): e(x)
for c in range(4):
    m = []
    for ks in range(4):
        X = vXf+16*c+4*ks; W = vWk + 16*(c & 1) + 4*ks
        m += [mfma(vAcc, W, X), mfma16(vCs, W, vSel)]
    e("s_waitcnt lgkmcnt(0)")
    for x in interleave(m[:4], q_reads(c+1) if c < 3 else []) + m[4:]: e(x)
e(f"""s_or_b32 s{sT2}, s{sXb}, {65536+8192}
s_lshr_b32 s{sT3}, s{sW}, 2
s_lshl_b32 s{sT3}, s{sT3}, 7
s_add_u32 s{sT1}, s{sT2}, s{sT3}
s_add_u32 s{sT1}, s{sT1}, 4096
v_add_u32 v{vWa1}, s{sT2}, v{vWa0}
v_lshl_add_u32 v{vT3}, v{vH}, 4, s{sT2}
s_nop 3""")
cs_write(vCs, f"s{sT1}")
e(f"s_cmp_ge_u32 s{sW}, 4\ns_cbranch_scc1 LkvH2\ns_waitcnt lgkmcnt(0)\ns_barrier")
for q in range(4): e(f"ds_read_b128 {vr(vWk+4*q,4)}, v{vWa1} offset:{1024*q}")
cs_read(vAcc+48, 4096); cs_read(vWk+16, 4096+128)
e("s_waitcnt lgkmcnt(0)")
for p in range(0, 16, 2):
    e(pk("v_pk_add_f32", vAcc+p, [('p', vAcc+p), ('p', vWk+p)]))
    e(pk("v_pk_add_f32", vAcc+48+p, [('p', vAcc+48+p), ('p', vWk+16+p)]))
q_epilogue(vAcc+48)
e("s_branch Lp2\nLkvH2:")
for q in range(4): e(f"ds_write_b128 v{vWa1}, {vr(vAcc+4*q,4)} offset:{1024*q}")
e("s_waitcnt lgkmcnt(0)\ns_barrier")
e("Lkvwait:")
stamp(16)
poll(CNT_KV, 16, "kv")
stamp(17)
kv_dma("b")
e("s_waitcnt vmcnt(0)")

vm = []
def vtag(tag): vm.append(tag)
def vwait_s(tag):
    idx = max(i for i, t in enumerate(vm) if t == tag)
    return f"s_waitcnt vmcnt({min(63, len(vm)-1-idx)})"
def w_dma(G):
    srdw, row = (SWD, 64*G) if G < 22 else (SWO, 64*(G-22))
    return [f"s_add_u32 m0, s{sDm}, {GSLOT[G]}", f"s_add_u32 s{sT0}, s{sDo}, {row*1024}",
            (f"g{G}", f"buffer_load_dwordx4 v{vDa}, {sr(srdw,4)}, s{sT0} offen lds")]
def w_reads(G, F):
    a = GSLOT[G]; win = a // 0xe000; off = a - win*0xe000
    r0, r1 = vRd+2*win, vRd+2*win+1
    return tr(F, r0, off) + tr(F+2, r0, off+1024) + tr(F+4, r1, off) + tr(F+6, r1, off+1024)
def emit_seq(seq):
    for x in seq:
        if isinstance(x, list): emit_seq(x)
        elif isinstance(x, tuple): vtag(x[0]); e(x[1])
        elif callable(x): e(x())
        else: e(x)
e("Lp2:")
stamp(2)
sentinel(vC); vtag("sent")
e("s_waitcnt lgkmcnt(0)\ns_barrier")
stamp(3)
e(f"""ds_read_b128 {vr(vQ,4)}, v{vAq}
ds_read_b128 {vr(vKf[0],4)}, v{vAk}
ds_read_b128 {vr(vKf[1],4)}, v{vAk} offset:{KVT}
ds_read_b128 {vr(vVl[0],4)}, v{vAv}
s_waitcnt lgkmcnt(2)""")
e(mfma(vS[0], vKf[0], vQ, "0"))
e("s_nop 11")
e(f"v_max3_f32 v{vT1}, v{vS[0]}, v{vS[0]+1}, v{vS[0]+2}")
for p in range(3, 15, 2): e(f"v_max3_f32 v{vT1}, v{vT1}, v{vS[0]+p}, v{vS[0]+p+1}")
e(f"""v_max_f32 v{vT1}, v{vT1}, v{vS[0]+15}
v_mov_b32 v{vT2}, v{vT1}
s_nop 1
v_permlane32_swap_b32 v{vT1}, v{vT2}
s_nop 1
v_max_f32 v{vT1}, v{vT1}, v{vT2}""")
for r in range(16): e(f"v_sub_f32 v{vC+r}, 0, v{vT1}")
for r in range(16): e(f"v_sub_f32 v{vS[0]+r}, v{vS[0]+r}, v{vT1}")
stamp(5)
side = {T: [] for T in range(64)}
xm = {T: [] for T in range(65)}
for n in range(12):
    side[n].append([f"s_add_u32 s{sT0}, s{sDm}, {(36+8*n)*1024}", f"s_mov_b32 m0, s{sT0}", "s_nop 0",
                    ("kv", f"buffer_load_dwordx4 v{vL16}, {sr(SWS,4)}, s{sT0} offen sc1 lds")])
for T0, Gs in ((8, range(0, 5)), (16, range(5, 7)), (24, range(7, 9)), (32, range(9, 15)), (40, range(15, 22)),
               (48, range(22, 28)), (56, range(28, 30))):
    for n, G in enumerate(Gs): side[T0 + (n//2 if T0 != 8 else n+2)].append(w_dma(G))
side[18].append([f"v_mov_b32 v{vPoll}, s{sHc}", ("poll", f"buffer_load_dword v{vPoll}, v{vPoll}, {sr(SDBG,4)}, 0 offen sc1")])
for i in range(22):
    T = 24 + (i*16)//22
    c = [f"s_add_u32 s{sC0}, s{sHo}, {1024*i}"] if i % 4 == 0 else []
    side[T].append(c + [(f"h{i}", f"buffer_load_dwordx4 {vr(vHf+4*i,4)}, v{vL16}, {sr(SWS,4)}, s{sC0} offen offset:{1024*(i%4)} sc1")])
lastm = {}
for T0, span, Gs in ((26, 6, range(0, 4)), (32, 8, range(4, 9)), (40, 8, range(9, 15)), (48, 8, range(15, 22))):
    k = len(Gs)
    for n, G in enumerate(Gs):
        F = vWf[G % 3]
        t0 = T0 + (2*n*span)//(2*k); t1 = T0 + ((2*n+1)*span)//(2*k)
        lastm[G] = t1+1
        assert G < 3 or t0 > lastm[G-3]
        for x in w_reads(G, F): side[t0].append([x])
        c0 = "0" if G == 0 else None
        w = (lambda g=G: vwait_s(f"h{g}"))
        m0, m1 = mfma(vAf[0], F, vHf+4*G, c0), mfma(vAf[1], F+4, vHf+4*G, c0)
        if G == 21:
            xm[t0+1].append([w, f"s_cmp_ge_u32 s{sKq}, 2", "s_cbranch_scc1 Lskip21", m0, m1, "Lskip21:"])
        else:
            xm[t0+1].append([w, m0]); xm[t1+1].append([m1])
for q in range(8):
    side[58 + (q*6)//8].append([f"ds_write_b128 v{vRw}, {vr(vAf[0]+4*q,4)} offset:{ASL*(q//2)+1024*(q%2)}"])
side[60].append([("x", f"buffer_load_dwordx4 {vr(vWf[0],4)}, v{vRa}, {sr(SX,4)}, s{sXf} offen")])
if "--noside" in sys.argv:
    keep = {18: side[18][-1:], 60: side[60][-1:]}
    side = {T: keep.get(T, []) for T in range(64)}; xm = {T: [] for T in range(65)}
    vm += ["kv", "g6", "g8", "g14", "g21"]
def last_txt(c): return c[-1][1] if isinstance(c[-1], tuple) else c[-1]
def last_tag(c): return c[-1][0] if isinstance(c[-1], tuple) else ""
if "--dx" in sys.argv:
    dx = sys.argv[sys.argv.index("--dx")+1]
    vm += ["kv", "g6", "g8", "g14", "g21"] + [f"h{i}" for i in range(22)]
    for T in range(64):
        if "w" in dx: side[T] = [c for c in side[T] if not last_tag(c).startswith("g")]
        if "h" in dx: side[T] = [c for c in side[T] if not last_tag(c).startswith("h")]
        if "r" in dx: side[T] = [c for c in side[T] if "ds_" not in last_txt(c)]
        if "k" in dx: side[T] = [c for c in side[T] if last_tag(c) != "kv"]
        if "m" in dx: xm[T] = []
PRI = int(sys.argv[sys.argv.index("--pri")+1]) if "--pri" in sys.argv else 2
lastg = {16: "kv", 24: "g6", 32: "g8", 40: "g14", 48: "g21"}
for T in range(64):
    X = vS[T & 1]; Y = vS[(T+1) & 1]
    rel = T % 16
    e("s_waitcnt lgkmcnt(0)")
    if T and T % 8 == 0:
        if "--abar" in sys.argv: stamp(29+3*(T//8))
        if T == 8: e(vwait_s("sent"))
        if T in lastg: e(vwait_s(lastg[T]))
        if T == 24:
            e(vwait_s("poll"))
            e(f"v_readfirstlane_b32 s{sT1}, v{vPoll}\ns_cmp_ge_u32 s{sT1}, 16\ns_cbranch_scc1 Lhok")
            poll(f"s{sHc}", 16, "h")
            e("Lhok:")
        if "--abar" in sys.argv: stamp(30+3*(T//8))
        if "--noabar" not in sys.argv or T == 8: e("s_barrier")
        if "--abar" in sys.argv: stamp(31+3*(T//8))
        if T == 8: signal(f"s{sHs}", "h")
        if rel == 0: e(f"v_add_u32 v{vAk}, {16*KVT}, v{vAk}\nv_add_u32 v{vAv}, {16*KVT}, v{vAv}")
    if PRI == 2 and T % 2 == 0: e(f"s_setprio {3-(T%8)//2}")
    if PRI == 16 and T % 16 == 0: e(f"s_setprio {3-T//16}")
    if PRI == 0 and T == 0: e("s_setprio 0")
    ex = [f"v_exp_f32 v{X+i}, v{X+i}" for i in range(16)]
    rd = [f"ds_read_b128 {vr(vVh,4)}, v{vAv} offset:{rel*KVT+528}"]
    if T+1 < 64: rd.append(f"ds_read_b128 {vr(vVl[(T+1)&1],4)}, v{vAv} offset:{(rel+1)*KVT}")
    if T+2 < 64: rd.append(f"ds_read_b128 {vr(vKf[T&1],4)}, v{vAk} offset:{(rel+2)*KVT}")
    seq = ex[0:2] + ([smf(vO, vVh, Y+8, vIdx)] if T else []) + interleave(ex[2:5], rd)
    if T+1 < 64: seq.append(mfma(Y, vKf[(T+1) & 1], vQ, vr(vC, 16)))
    x2 = xm[T]
    assert len(x2) <= 2
    if len(x2) == 2: tail = ex[5:8] + [x2[0]] + ex[8:11] + [smf(vO, vVl[T & 1], X, vIdx)] + ex[11:14] + [x2[1]] + ex[14:16]
    else: tail = ex[5:10] + [smf(vO, vVl[T & 1], X, vIdx)] + ex[10:14] + x2 + ex[14:16]
    if "--nord" in sys.argv and T > 2: seq = [x for x in seq if "ds_read" not in x]
    if side[T]: tail = interleave(tail[:-3], side[T]) + tail[-3:]
    emit_seq(seq + tail)
assert not xm[64]
e("s_waitcnt lgkmcnt(0)\ns_nop 0")
e(smf(vO, vVh, vS[1]+8, vIdx))
e(f"s_mov_b32 s{sRetry}, 0")
e("Lfin:")
e(f"""s_nop 9
s_mov_b32 s{sC0}, {f2u(2.0**40):#x}
s_mov_b32 s{sC1}, {f2u(2.0**126):#x}
v_rcp_f32 v{vO+10}, v{vO+8}
v_max3_f32 v{vT1}, abs(v{vO}), abs(v{vO+1}), abs(v{vO+2})
v_max3_f32 v{vT1}, v{vT1}, abs(v{vO+3}), abs(v{vO+4})
v_max3_f32 v{vT1}, v{vT1}, abs(v{vO+5}), abs(v{vO+6})
v_max_f32 v{vT1}, v{vT1}, abs(v{vO+7})
v_cmp_nlt_f32 vcc, v{vO+8}, s{sC0}
v_cmp_nlt_f32 s[{sEx}:{sEx+1}], v{vT1}, s{sC1}""")
for p in range(8): e(f"v_mul_f32 v{vO+p}, v{vO+p}, v{vO+10}")
e(f"s_or_b64 vcc, vcc, s[{sEx}:{sEx+1}]")
for p in range(4): e(f"v_cvt_pk_bf16_f32 v{vO+p}, v{vO+2*p}, v{vO+2*p+1}")
for p in range(4): e(f"v_min_u32 v{vO+p}, -2, v{vO+p}")
e("s_cbranch_vccnz Lfallback\nLok:" if "--noside" not in sys.argv and "--dx" not in sys.argv else "Lok:")
emit_seq([("o", f"buffer_store_dwordx4 {vr(vO,4)}, v{vL16}, {sr(SWS,4)}, s{sOp} offen sc1")])
stamp(6)

def o_loads():
    for k in range(8):
        e(f"buffer_load_dwordx4 {vr(vOf+4*k,4)}, v{vL16}, {sr(SWS,4)}, s{sOc if k<4 else sOc2} offen offset:{1024*(k%4)} sc1")
def reduce_read(acc):
    for q in range(4):
        e(f"ds_read_b128 {vr(acc+8*q,4)}, v{vRr} offset:{2048*q}\nds_read_b128 {vr(acc+8*q+4,4)}, v{vRr} offset:{2048*q+1024}")
def reduce_sum(acc):
    for p in range(0, 8, 2):
        e(pk("v_pk_add_f32", acc+p, [('p', acc+p), ('p', acc+8+p)]))
        e(pk("v_pk_add_f32", acc+16+p, [('p', acc+16+p), ('p', acc+24+p)]))
    for p in range(0, 8, 2): e(pk("v_pk_add_f32", acc+p, [('p', acc+p), ('p', acc+16+p)]))
e(vwait_s("x"))
for p in range(4):
    e(f"v_lshlrev_b32 v{vXr+2*p}, 16, v{vWf[0]+p}\nv_and_b32 v{vXr+1+2*p}, 0xffff0000, v{vWf[0]+p}")
e("s_setprio 0\ns_barrier")
stamp(8)
o_loads()
reduce_read(vAf[0])
vWo = 168
WOF = [168+8*k for k in range(7)] + [vWf[1]]
e("s_waitcnt lgkmcnt(0)")
for k in range(3):
    for x in w_reads(22+k, WOF[k]): e(x)
reduce_sum(vAf[0])
for p in range(8): e(f"v_mul_f32 v{vAf[0]+8+p}, {f2u(-1.4426950408889634):#x}, v{vAf[0]+p}")
for p in range(8): e(f"v_exp_f32 v{vAf[0]+8+p}, v{vAf[0]+8+p}")
for k in range(3, 6):
    for x in w_reads(22+k, WOF[k]): e(x)
for p in range(8): e(f"v_add_f32 v{vAf[0]+8+p}, 1.0, v{vAf[0]+8+p}")
for p in range(8): e(f"v_rcp_f32 v{vAf[0]+8+p}, v{vAf[0]+8+p}")
for k in range(6, 8):
    for x in w_reads(22+k, WOF[k]): e(x)
for p in range(8): e(f"v_mul_f32 v{vAf[0]+p}, v{vAf[0]+p}, v{vAf[0]+8+p}")
e("s_barrier")
stamp(9)
e(f"s_mov_b32 s{sT0}, 0\nLow:\ns_waitcnt vmcnt(0)")
e(f"v_max3_u32 v{vT1}, v{vOf}, v{vOf+1}, v{vOf+2}")
for p in range(3, 31, 2): e(f"v_max3_u32 v{vT1}, v{vT1}, v{vOf+p}, v{vOf+p+1}")
e(f"""v_max_u32 v{vT1}, v{vT1}, v{vOf+31}
v_cmp_eq_u32 vcc, -1, v{vT1}
s_add_u32 s{sT0}, s{sT0}, 1
s_cmp_ge_u32 s{sT0}, 100000
s_cbranch_vccz Lod
s_cbranch_scc1 Lod""")
o_loads()
e("s_branch Low\nLod:\ns_waitcnt lgkmcnt(0)")
stamp(7)
for k in range(8): e(mfma(vAs[0], WOF[k], vOf+4*k, "0" if k == 0 else None))
wr = [f"ds_write_b128 v{vRw}, {vr(vAs[0]+4*q,4)} offset:{ASL*(q//2)+1024*(q%2)}" for q in range(8)]
m1 = [mfma(vAs[1], WOF[k]+4, vOf+4*k, "0" if k == 0 else None) for k in range(8)]
for x in m1[:3] + ["s_nop 8"] + interleave(m1[3:], wr[:4]) + ["s_nop 10"] + wr[4:]: e(x)
stamp(10)
e("s_waitcnt lgkmcnt(0)\ns_barrier")
reduce_read(vAs[0])
e("s_waitcnt lgkmcnt(0)")
reduce_sum(vAs[0])
for p in range(0, 8, 2): e(pk("v_pk_mul_f32", vAs[0]+p, [('p', vAs[0]+p), ('p', vAf[0]+p)]))
e("s_nop 1")
for p in range(4): e(f"v_permlane32_swap_b32 v{vAs[0]+p}, v{vAs[0]+4+p}")
e("s_nop 1")
for p in range(0, 8, 2): e(pk("v_pk_add_f32", vAs[0]+p, [('p', vAs[0]+p), ('p', vXr+p)]))
for p in range(4): e(f"v_cvt_pk_bf16_f32 v{vAs[0]+p}, v{vAs[0]+2*p}, v{vAs[0]+2*p+1}")
e(f"buffer_store_dwordx4 {vr(vAs[0],4)}, v{vRa}, {sr(SOUT,4)}, s{sXf} offen")
stamp(11)
if RT: e(f"s_waitcnt vmcnt(0)\ns_memrealtime s[100:101]\ns_waitcnt lgkmcnt(0)\nv_mov_b32 v0, s100\nbuffer_store_dword v0, off, {sr(SWS,4)}, s{sPo} offset:56")
e("Lend:\ns_endpgm")

e("Lfallback:")
e(f"""s_cmp_lg_u32 s{sRetry}, 0
s_cbranch_scc1 Lok
s_mov_b32 s{sRetry}, 1
s_mov_b32 s{sSt}, 0
v_mov_b32 v{vT1}, 0xff800000
Lfb1:
buffer_load_dwordx4 {vr(vKf[0],4)}, v{vL16}, {sr(SWS,4)}, s{sSt} offen sc1
s_waitcnt vmcnt(0)""")
e(mfma(vS[0], vKf[0], vQ, "0"))
e("s_nop 11")
for p in range(0, 16, 2): e(f"v_max3_f32 v{vT1}, v{vT1}, v{vS[0]+p}, v{vS[0]+p+1}")
e(f"""s_add_u32 s{sSt}, s{sSt}, {KVT}
s_cmp_lt_u32 s{sSt}, {64*KVT}
s_cbranch_scc1 Lfb1
v_mov_b32 v{vT2}, v{vT1}
s_nop 1
v_permlane32_swap_b32 v{vT1}, v{vT2}
s_nop 1
v_max_f32 v{vT1}, v{vT1}, v{vT2}""")
for r in range(16): e(f"v_sub_f32 v{vC+r}, 0, v{vT1}")
for r in range(12): e(f"v_mov_b32 v{vO+r}, 0")
e(f"""v_subrev_u32 v{vAv}, {48*KVT}, v{vAv}
s_mov_b32 s{sSt}, 0
Lfb2:
buffer_load_dwordx4 {vr(vKf[0],4)}, v{vL16}, {sr(SWS,4)}, s{sSt} offen sc1
buffer_load_dwordx4 {vr(vVl[0],4)}, v{vAv}, {sr(SWS,4)}, s{sSt} offen sc1
buffer_load_dwordx4 {vr(vVh,4)}, v{vAv}, {sr(SWS,4)}, s{sSt} offen offset:528 sc1
s_waitcnt vmcnt(0)""")
e(mfma(vS[0], vKf[0], vQ, vr(vC, 16)))
e("s_nop 11")
for i in range(16): e(f"v_exp_f32 v{vS[0]+i}, v{vS[0]+i}")
e("s_nop 1")
e(smf(vO, vVl[0], vS[0], vIdx)); e(smf(vO, vVh, vS[0]+8, vIdx))
e(f"""s_add_u32 s{sSt}, s{sSt}, {KVT}
s_cmp_lt_u32 s{sSt}, {64*KVT}
s_cbranch_scc1 Lfb2
s_branch Lfin""")

L += ['.section .rodata,"a"', ".p2align 6", f".amdhsa_kernel {NAME}_kernel",
      "  .amdhsa_next_free_vgpr 256", "  .amdhsa_next_free_sgpr 102", "  .amdhsa_accum_offset 256",
      "  .amdhsa_group_segment_fixed_size 0", "  .amdhsa_kernarg_size 96", "  .amdhsa_user_sgpr_count 2",
      "  .amdhsa_user_sgpr_kernarg_segment_ptr 1", "  .amdhsa_system_sgpr_workgroup_id_x 1", ".end_amdhsa_kernel"]
open(OUT, "w").write("\n".join(L) + "\n")
print("wrote", OUT, len(L), "lines")
```

```python
import sys, struct
NAME = "recurrent_scan__grouped_kv_mqa__geglu_ffn__prompt"
PROF = "--prof" in sys.argv
OUT = [a for a in sys.argv[1:2] if not a.startswith("--")]
OUT = OUT[0] if OUT else f"cdna_kernels/{NAME}.s"

L = []
def e(s):
    for ln in s.split("\n"):
        if not ln.strip(): continue
        L.append(("    " + ln.strip()) if not ln.strip().endswith(":") else ln.strip())
def f2u(x): return struct.unpack("<I", struct.pack("<f", x))[0]
def vr(a, n): return f"v[{a}:{a+n-1}]"
def sr(a, n): return f"s[{a}:{a+n-1}]"

KVT = 2080
KVIMG = 0
HIMG = 135168
OIMG = HIMG + 64*88*1024
PROFO = OIMG + 64*32*1024
WS_BYTES = PROFO + 256*8*256
CNT_KV = 0
CNT_H = 64
CNT_O = 128
STG = 45056
XOFF, GOFF, UOFF, QOFF = 0, 16384, 28672, 40960
STGK, QOFFK, NBK = 24832, 20736, 5
QIMG = 135168
STATM = 160768
CSUM = 162816
MRX = 159744
ZERO = 163712
FLAG = 163776
LDS_BYTES = 163840
SX, SWQ, SWK, SWV, SWO, SWG, SWD, SOUT, SDBG, SWS = 4, 8, 12, 16, 20, 24, 28, 32, 36, 40
sI, sJ, sW, sW4 = 44, 45, 46, 47
sXo, sWo, sQo, sLb = 48, 49, 50, 51
sMx, sMw, sMq = 52, 53, 54
sSt, sDl, sT0, sT1, sT2, sT3 = 55, 56, 57, 58, 59, 60
sTB, sCS, sRetry, sRb = 61, 62, 63, 3
sEx = 88
sTm = 90
sPo = 92
sC0, sC1, sC2, sC3 = 94, 95, 96, 97
sOp = 98
TOUCH = int("--touch" in sys.argv)
vLane, vH, vT0, vT1, vT2, vT3 = 1, 2, 3, 4, 5, 6
vXa0, vXa1, vWa0, vWa1, vWa2, vQa = 7, 8, 9, 10, 11, 12
vRX = 13
vRW, vRQ = 17, 18
vSel = 20
vCs = 24
vF = 32
vAcc = 96
vSt = 160
vQ = 8; vKf = [12, 16]; vVl = [20, 24]; vVh = 28
vS = [32, 48]; vC = 64
vWf = [80, 88, 96]
vAf = [104, 120]
vHf = 136
vO = 224
vIdx, vAk, vAv, vDa, vL16, vRa, vPoll, vAq = 240, 241, 242, 243, 244, 245, 246, 247
vRd = 248
vRw, vRr = 254, 255
vOf = 136
vAs = [32, 48]
vXr = 64
sKq, sTt, sHo, sDo, sDm, sHc, sXf, sOc, sOc2, sHs = 64, 65, 66, 67, 68, 69, 70, 71, 72, 73
ASL = 8320
def aslot(n): return ASL*n
SP = [135168, 143360, 151552]
GSLOT = SP + [aslot(0), aslot(1), aslot(2), aslot(3), aslot(4), aslot(5)]
GSLOT += SP + [aslot(0), aslot(6), aslot(7)]
GSLOT += [aslot(1), aslot(2), aslot(3), aslot(4), aslot(5), aslot(8), aslot(9)]
GSLOT += SP + [aslot(0), aslot(10), aslot(11), aslot(12), aslot(13)]
RED = aslot(1)

nstamp = [0]
DBGT = "--dbgt" in sys.argv
DT = {0: 75, 12: 76, 1: 77, 2: 78, 3: 79, 6: 80, 9: 81, 7: 82, 11: 83}
def stamp(k):
    if DBGT and k in DT:
        e(f"s_memrealtime s[{sTm}:{sTm+1}]\ns_waitcnt lgkmcnt(0)\ns_sub_u32 s{DT[k]}, s{sTm}, s100")
        if k == 11:
            e(f"s_memtime s[{sTm}:{sTm+1}]\ns_waitcnt lgkmcnt(0)\ns_sub_u32 s84, s{sTm}, s92")
            e(f"s_cmp_lg_u32 s2, 64\ns_cbranch_scc1 Lend\ns_cmp_lg_u32 s{sW}, 4\ns_cbranch_scc1 Lend")
            for n, r in enumerate(range(75, 85)):
                e(f"v_mov_b32 v0, s{r}\nbuffer_store_dword v0, off, {sr(SDBG,4)}, 0 offset:{4+4*n}\ns_nop 1")
    if not PROF: return
    e(f"""s_memtime s[{sTm}:{sTm+1}]
    s_waitcnt lgkmcnt(0)
    v_mov_b32 v0, s{sTm}
    buffer_store_dword v0, off, {sr(SWS,4)}, s{sPo} offset:{4*k}""")
    if k in RTS:
        e(f"""s_memrealtime s[{sTm}:{sTm+1}]
        s_waitcnt lgkmcnt(0)
        v_mov_b32 v0, s{sTm}
        buffer_store_dword v0, off, {sr(SWS,4)}, s{sPo} offset:{4*RTS[k]}""")
RTS = {12: 24, 1: 25, 5: 26, 6: 27, 11: 28}

def tick(acc):
    if not PROF or "--notick" in sys.argv: return ""
    r = f"s_memtime s[{sTm}:{sTm+1}]\ns_waitcnt lgkmcnt(0)\n"
    if acc is not None: r += f"s_sub_u32 s99, s{sTm}, s99\ns_add_u32 s{acc}, s{acc}, s99\n"
    return r + f"s_mov_b32 s99, s{sTm}"

def interleave(main, fill):
    out = []; n = len(main); m = len(fill); k = 0
    for i, a in enumerate(main):
        out.append(a)
        t = (m * (i + 1)) // n
        out += fill[k:t]; k = t
    return out

def mfma(d, a, b, c=None):
    c = vr(d, 16) if c is None else c
    return f"v_mfma_f32_32x32x16_bf16 {vr(d,16)}, {vr(a,4)}, {vr(b,4)}, {c}"
def mfma16(d, a, b): return f"v_mfma_f32_16x16x32_bf16 {vr(d,4)}, {vr(a,4)}, {vr(b,4)}, {vr(d,4)}"
def smf(d, a, b, idx): return f"v_smfmac_f32_32x32x32_bf16 {vr(d,16)}, {vr(a,4)}, {vr(b,8)}, v{idx}"

def poll(cnt_off_sreg_or_imm, target, tag):
    e(f"v_mov_b32 v{vT0}, {cnt_off_sreg_or_imm}")
    e(f"s_mov_b32 s{sT0}, 0")
    e(f"""Lpoll_{tag}:
    buffer_load_dword v{vT1}, v{vT0}, {sr(SDBG,4)}, 0 offen sc1
    s_waitcnt vmcnt(0)
    v_readfirstlane_b32 s{sT1}, v{vT1}
    s_add_u32 s{sT0}, s{sT0}, 1
    s_cmp_ge_u32 s{sT1}, {target}
    s_cbranch_scc1 Lpolld_{tag}
    s_cmp_ge_u32 s{sT0}, 100000
    s_cbranch_scc1 Lpolld_{tag}
    s_sleep 6
    s_branch Lpoll_{tag}
    Lpolld_{tag}:""")

def signal(cnt_off, tag):
    e(f"""s_cmp_lg_u32 s{sW}, 0
    s_cbranch_scc1 Lsig_{tag}
    v_mov_b32 v{vT0}, {cnt_off}
    v_mov_b32 v{vT1}, 1
    s_mov_b64 exec, 1
    buffer_atomic_add v{vT1}, v{vT0}, {sr(SDBG,4)}, 0 offen sc1
    s_mov_b64 exec, -1
    Lsig_{tag}:""")

hdr = open(f"cdna_kernels/{NAME}.s.ref").read().split("\n")
hdr = [h for h in hdr[:15] if h.startswith(";") and "@launch" not in h]
L += hdr
L.append(f"; @launch grid=(256,1,1) block=(512,1,1) lds={LDS_BYTES}")
L += ['.amdgcn_target "amdgcn-amd-amdhsa--gfx950"', ".text", f".globl {NAME}_kernel", ".p2align 8",
      f".type {NAME}_kernel,@function"]
e(f"{NAME}_kernel:")
RT = PROF and "--notick" in sys.argv
if RT: e("s_memrealtime s[100:101]\ns_memtime s[98:99]")
if DBGT: e("s_memrealtime s[100:101]\ns_memtime s[92:93]")
def busy(tag):
    e(f"s_mov_b32 s99, 16\nLbusy{tag}:")
    for i in range(64): e(f"v_exp_f32 v{200+i%8}, v{200+i%8}")
    e(f"s_sub_u32 s99, s99, 1\ns_cmp_lg_u32 s99, 0\ns_cbranch_scc1 Lbusy{tag}")
if "--busy0" in sys.argv: busy(0)
e(f"""s_cmp_ge_u32 s2, 256
s_cbranch_scc1 Lend
s_load_dwordx16 s[64:79], s[0:1], 0
s_load_dwordx8 s[80:87], s[0:1], 64
v_and_b32 v{vLane}, 63, v0
v_lshrrev_b32 v{vT0}, 6, v0
v_lshrrev_b32 v{vH}, 5, v{vLane}
v_readfirstlane_b32 s{sW}, v{vT0}
s_and_b32 s{sT0}, s2, 7
s_lshr_b32 s{sT1}, s2, 3
s_and_b32 s{sI}, s{sT0}, 1
s_lshl_b32 s{sI}, s{sI}, 3
s_and_b32 s{sT2}, s{sT1}, 7
s_add_u32 s{sI}, s{sI}, s{sT2}
s_lshr_b32 s{sJ}, s{sT0}, 1
s_lshl_b32 s{sJ}, s{sJ}, 2
s_lshr_b32 s{sT3}, s{sT1}, 3
s_sub_u32 s{sJ}, s{sJ}, s{sT3}
s_add_u32 s{sJ}, s{sJ}, 3
s_and_b32 s{sTB}, s{sT0}, 3
s_lshl_b32 s{sTB}, s{sTB}, 3
s_add_u32 s{sTB}, s{sTB}, s{sT2}
s_lshr_b32 s{sCS}, s{sT0}, 2
s_lshl_b32 s{sCS}, s{sCS}, 2
s_add_u32 s{sCS}, s{sCS}, s{sT3}
s_and_b32 s{sW4}, s{sW}, 3""")
e(f"""v_lshrrev_b32 v{vT0}, 3, v{vLane}
v_lshlrev_b32 v{vT0}, 10, v{vT0}
v_and_b32 v{vT1}, 7, v{vLane}
v_lshrrev_b32 v{vT2}, 4, v{vLane}
v_xor_b32 v{vT1}, v{vT1}, v{vT2}
v_lshl_add_u32 v{vXa0}, v{vT1}, 4, v{vT0}
v_xor_b32 v{vXa1}, 64, v{vXa0}
v_add_u32 v{vXa1}, {8192-1024}, v{vXa1}""")
for k, r in enumerate((vWa0, vWa1, vWa2)):
    e(f"""v_add_u32 v{vT0}, {64*k}, v{vLane}
    v_mul_u32_u24 v{vT1}, 43691, v{vT0}
    v_lshrrev_b32 v{vT1}, 19, v{vT1}
    v_mul_u32_u24 v{vT2}, 12, v{vT1}
    v_sub_u32 v{vT0}, v{vT0}, v{vT2}
    v_mul_u32_u24 v{vT1}, 2752, v{vT1}
    v_lshl_add_u32 v{r}, v{vT0}, 4, v{vT1}""")
    if k: e(f"v_subrev_u32 v{r}, {1024*k}, v{r}")
e(f"""v_lshrrev_b32 v{vT0}, 2, v{vLane}
v_lshlrev_b32 v{vT0}, 10, v{vT0}
v_and_b32 v{vT1}, 3, v{vLane}
v_lshl_add_u32 v{vQa}, v{vT1}, 4, v{vT0}""")
e(f"""s_lshl_b32 s{sXo}, s{sI}, 17
s_lshl_b32 s{sT0}, s{sW}, 14
s_add_u32 s{sXo}, s{sXo}, s{sT0}
s_mul_i32 s{sT0}, s{sJ}, 96
s_min_u32 s{sT0}, s{sT0}, 1280
s_lshl_b32 s{sT0}, s{sT0}, 1
s_mul_i32 s{sWo}, s{sW4}, {16*2752}
s_add_u32 s{sWo}, s{sWo}, s{sT0}
s_lshl_b32 s{sQo}, s{sW4}, 14
s_lshl_b32 s{sT0}, s{sJ}, 6
s_add_u32 s{sQo}, s{sQo}, s{sT0}
s_lshl_b32 s{sMx}, s{sW}, 11
s_mul_i32 s{sMw}, s{sW}, 3072
s_add_u32 s{sMw}, s{sMw}, {GOFF}
s_lshl_b32 s{sMq}, s{sW4}, 10
s_add_u32 s{sMq}, s{sMq}, {QOFF}
s_mov_b32 s{sLb}, 0
s_mov_b32 s{sRetry}, 0
s_mov_b32 s{sC3}, {(-2*STG) & 0xffffffff}
s_waitcnt lgkmcnt(0)""")
def srd(d, p, nbytes):
    e(f"s_mov_b32 s{d}, s{p}\ns_mov_b32 s{d+1}, s{p+1}\ns_mov_b32 s{d+2}, {nbytes}\ns_mov_b32 s{d+3}, 0x20000")
srd(SX, 64, 2048*1024); srd(SWQ, 66, 512*1024)
e(f"s_cmp_ge_u32 s{sW}, 4\ns_cselect_b32 s{SWG}, s78, s76\ns_cselect_b32 s{SWG+1}, s79, s77\ns_mov_b32 s{SWG+2}, {512*2752}\ns_mov_b32 s{SWG+3}, 0x20000")
srd(SWS, 86, WS_BYTES)
srd(SWK, 68, 16384); srd(SWV, 70, 16384); srd(SWO, 72, 512*1024)
srd(SWD, 80, 1376*1024); srd(SOUT, 82, 2048*1024); srd(SDBG, 84, 256)
if PROF:
    e(f"s_lshl_b32 s{sPo}, s2, 3\ns_add_u32 s{sPo}, s{sPo}, s{sW}\ns_lshl_b32 s{sPo}, s{sPo}, 8\ns_add_u32 s{sPo}, s{sPo}, {PROFO}")
stamp(0)
if RT: e(f"s_nop 1\nv_mov_b32 v0, s100\nbuffer_store_dword v0, off, {sr(SWS,4)}, s{sPo} offset:60\ns_nop 1\nv_mov_b32 v0, s98\nbuffer_store_dword v0, off, {sr(SWS,4)}, s{sPo} offset:16")
elif PROF: e("s_mov_b32 s100, 0\ns_mov_b32 s101, 0")
def dma_groups(kind):
    gx = [f"s_add_u32 m0, s{sLb}, s{sMx}", "s_nop 0",
          f"buffer_load_dwordx4 v{vXa0}, {sr(SX,4)}, s{sXo} offen lds"]
    gx2 = [f"buffer_load_dwordx4 v{vXa1}, {sr(SX,4)}, s{sXo} offen offset:1024 lds", f"s_add_u32 s{sXo}, s{sXo}, 128"]
    w0 = [f"s_add_u32 m0, s{sLb}, s{sMw}", "s_nop 0", f"buffer_load_dwordx4 v{vWa0}, {sr(SWG,4)}, s{sWo} offen lds"]
    w1 = [f"buffer_load_dwordx4 v{vWa1}, {sr(SWG,4)}, s{sWo} offen offset:1024 lds"]
    w2 = [f"buffer_load_dwordx4 v{vWa2}, {sr(SWG,4)}, s{sWo} offen offset:2048 lds", f"s_add_u32 s{sWo}, s{sWo}, {64*2752}"]
    q = [f"s_add_u32 m0, s{sLb}, s{sMq}", "s_nop 0", f"buffer_load_dwordx4 v{vQa}, {sr(SWQ,4)}, s{sQo} offen lds",
         f"s_add_u32 s{sQo}, s{sQo}, 65536"]
    stg, nb = (STGK, NBK) if kind[-1] == "K" else (STG, 3)
    adv = [f"s_add_u32 s{sLb}, s{sLb}, {stg}", f"s_cmp_ge_u32 s{sLb}, {nb*stg}", f"s_cselect_b32 s{sLb}, 0, s{sLb}"]
    if kind == "L": return [gx+gx2, w0+w1, w2, q+adv]
    if kind == "H": return [gx+gx2, w0, w1, w2+adv]
    if kind == "HK": return [gx, gx2, w0+[f"s_add_u32 s{sWo}, s{sWo}, 2048"], adv]
    if kind == "LK": return [gx, gx2, q, adv]
def dma_stage(kind): return sum(dma_groups(kind), [])
NDMA = {"L": 6, "H": 5, "LK": 3, "HK": 3}
NX = {"L": TOUCH, "H": TOUCH, "LK": 0, "HK": 0}

e(f"""s_cmp_eq_u32 s{sJ}, 15
s_cbranch_scc1 Lkvcu
s_cmp_ge_u32 s{sW}, 4
s_cbranch_scc1 LproH""")

def common_init(kind):
    e(f"""v_and_b32 v{vT0}, 31, v{vLane}
    v_lshrrev_b32 v{vT1}, 1, v{vT0}
    v_and_b32 v{vT1}, 7, v{vT1}
    v_xor_b32 v{vT1}, v{vT1}, v{vH}
    v_lshlrev_b32 v{vT0}, 7, v{vT0}""")
    if kind == "L": e(f"s_and_b32 s{sT0}, s{sW}, 1\ns_lshl_b32 s{sT0}, s{sT0}, 13")
    elif kind == "KV": e(f"s_lshl_b32 s{sT0}, s{sW}, 14")
    else: e(f"s_lshl_b32 s{sT0}, s{sW4}, 12")
    e(f"v_add_u32 v{vT0}, s{sT0}, v{vT0}")
    for ks in range(4):
        e(f"v_xor_b32 v{vT2}, {2*ks}, v{vT1}\nv_lshl_add_u32 v{vRX+ks}, v{vT2}, 4, v{vT0}")
    e(f"""v_bfe_u32 v{vT0}, v{vLane}, 2, 2
    v_lshl_add_u32 v{vT0}, v{vH}, 3, v{vT0}
    v_bfe_u32 v{vT1}, v{vLane}, 4, 1
    v_and_b32 v{vT2}, 3, v{vLane}
    v_lshlrev_b32 v{vT2}, 3, v{vT2}
    v_lshl_add_u32 v{vT3}, v{vT1}, 5, v{vT2}
    v_lshl_add_u32 v{vRQ}, v{vT0}, 6, v{vT3}""")
    if kind == "KV":
        e(f"""v_lshlrev_b32 v{vT1}, 14, v{vT1}
        v_lshl_add_u32 v{vRW}, v{vT0}, 5, v{vT2}
        s_lshr_b32 s{sT0}, s{sW}, 2
        s_lshl_b32 s{sT0}, s{sT0}, 13
        s_add_u32 s{sT1}, s{sT0}, 131072
        v_add3_u32 v{vRW}, v{vRW}, v{vT1}, s{sT1}
        s_add_u32 s{sT1}, s{sT1}, s{sT0}
        v_add_u32 v{vRQ}, s{sT1}, v{vRQ}""")
    else:
        e(f"v_mul_u32_u24 v{vRW}, 192, v{vT0}\nv_add_u32 v{vRW}, v{vRW}, v{vT3}")
        if kind == "L": e(f"s_lshr_b32 s{sT0}, s{sW}, 1\ns_lshl_b32 s{sT0}, s{sT0}, 6\nv_add_u32 v{vRW}, s{sT0}, v{vRW}")
        else: e(f"v_add_u32 v{vRW}, 128, v{vRW}")
    e(f"""v_bfe_u32 v{vT0}, v{vLane}, 4, 1
    v_and_b32 v{vT1}, 15, v{vLane}
    v_cmp_eq_u32 vcc, v{vT0}, v{vT1}
    v_mov_b32 v{vT2}, 0x3f803f80
    s_nop 0
    v_cndmask_b32 v{vSel}, 0, v{vT2}, vcc""")
    for k in range(1, 4): e(f"v_mov_b32 v{vSel+k}, v{vSel}")
    for r in list(range(vCs, vCs+4)) + list(range(vAcc, vAcc+(64 if kind == 'L' else 48))) + list(range(vSt, vSt+4)):
        e(f"v_mov_b32 v{r}, 0")

def stats_ops(x, regs=range(4)):
    r = []
    for k in regs:
        lo, hi = vSt+4+2*(k & 1), vSt+5+2*(k & 1)
        r += [f"v_lshlrev_b32 v{lo}, 16, v{x+k}", f"v_and_b32 v{hi}, 0xffff0000, v{x+k}",
              f"v_add_f32 v{vSt}, v{vSt}, v{lo}", f"v_add_f32 v{vSt+1}, v{vSt+1}, v{hi}",
              f"v_fmac_f32 v{vSt+2}, v{lo}, v{lo}", f"v_fmac_f32 v{vSt+3}, v{hi}, v{hi}"]
    return r

def tr(d, a, off): return [f"ds_read_b64_tr_b16 {vr(d,2)}, v{a} offset:{off}"]
def p1_reads(kind, ks, F):
    if "--noread" in sys.argv: return []
    if kind == "L":
        return [f"ds_read_b128 {vr(F,4)}, v{vRX+ks}"] + tr(F+8, vRW, GOFF+(16*ks)*192) + tr(F+10, vRW, GOFF+(16*ks+4)*192) + \
               tr(F+12, vRW, UOFF+(16*ks)*192) + tr(F+14, vRW, UOFF+(16*ks+4)*192) + \
               [f"ds_read_b128 {vr(F+4,4)}, v{vRX+ks} offset:4096"]
    if kind == "H":
        return [f"ds_read_b128 {vr(F,4)}, v{vRX+ks}"] + tr(F+4, vRQ, QOFF+(16*ks)*64) + tr(F+6, vRQ, QOFF+(16*ks+4)*64) + \
               tr(F+8, vRW, GOFF+(16*ks)*192) + tr(F+10, vRW, GOFF+(16*ks+4)*192) + \
               tr(F+12, vRW, UOFF+(16*ks)*192) + tr(F+14, vRW, UOFF+(16*ks+4)*192)
    if kind == "HK":
        return [f"ds_read_b128 {vr(F,4)}, v{vRX+ks}"] + tr(F+8, vRW, GOFF+(16*ks)*32) + tr(F+10, vRW, GOFF+(16*ks+4)*32)
    if kind == "LK":
        return [f"ds_read_b128 {vr(F,4)}, v{vRX+ks}"] + tr(F+4, vRQ, QOFFK+(16*ks)*64) + tr(F+6, vRQ, QOFFK+(16*ks+4)*64)
def p1_comp(kind, var, F):
    if kind == "L":
        m = [mfma(vAcc, F+8, F), mfma(vAcc+16, F+12, F), mfma16(vCs, F+8+4*(var & 1), vSel), mfma(vAcc+32, F+8, F+4), mfma(vAcc+48, F+12, F+4)]
        return m, stats_ops(F+4*(var >> 1), (2, 3))
    if kind == "H":
        m = [mfma(vAcc, F+4, F), mfma(vAcc+16, F+8, F), mfma(vAcc+32, F+12, F)]
        if var < 3: m.insert(1, mfma16(vCs, F+4+4*var, vSel))
        return m, stats_ops(F, (0, 1))
    if kind == "HK":
        return [mfma(vAcc+16, F+8, F), mfma16(vCs, F+8, vSel), mfma(vAcc+32, F, F+8)], stats_ops(F, (0, 1))
    if kind == "LK":
        return [mfma(vAcc, F+4, F), mfma16(vCs, F+4, vSel)], stats_ops(F, (2, 3))

BARX = "s_nop 0" if "--nobar" in sys.argv else "s_barrier"
NST = 208 if "--rep" in sys.argv else 8
def spread(m, fill):
    w = [16 if "16x16" in x else 32 for x in m]
    tot = sum(c for c, _ in fill); W = sum(w)
    out = []; k = 0; acc = 0; cw = 0
    for x, wx in zip(m, w):
        out.append(x); cw += wx
        while k < len(fill) and (acc + fill[k][0]/2) * W <= tot * cw:
            out.append(fill[k][1]); acc += fill[k][0]; k += 1
    out += [t for _, t in fill[k:]]
    return out

def p1_loop(kind, var, done_label):
    tag = f"{kind}{var}"
    n = NDMA[kind]
    dg = dma_groups(kind)
    kv = kind[-1] == "K"
    stg, nb = (STGK, NBK) if kv else (STG, 3)
    LA = nb - 1
    if kind[0] == "H" and "--noprio" not in sys.argv: e("s_setprio 1")
    e(f"s_mov_b32 s{sSt}, 0\ns_mov_b32 s{sRb}, 0\ns_mov_b64 vcc, -1\ns_waitcnt vmcnt({(LA-1)*n+NX[kind]})\ns_barrier")
    stamp(12)
    def comp(F):
        m0, v0 = p1_comp(kind, var, F); m1, v1 = p1_comp(kind, var, F+16)
        if "--nostat" in sys.argv: v0 = v1 = ["s_nop 0"]*5
        if "--nomfma" in sys.argv: m0 = m1 = ["s_nop 0"]*2
        if "--nocs" in sys.argv: m0 = [x for x in m0 if "16x16" not in x]; m1 = [x for x in m1 if "16x16" not in x]
        return m0+m1, v0+v1
    def dblk(i, g): return (4*len(g)+8, "\n".join([f"s_cbranch_vccz Lnd{i}_{tag}"] + g + [f"Lnd{i}_{tag}:"]))
    rd = p1_reads(kind, 0, vF) + p1_reads(kind, 1, vF+16)
    for x in rd + sum(dg, []): e(x)
    e(f"s_branch Lp1h_{tag}")
    e(f".p2align 3\nLp1_{tag}:")
    m, va = comp(vF+32)
    hv = len(va)//2
    fill = [(6, x) for x in rd] + [dblk(0, dg[0])] + [(4, x) for x in va[:hv]] + [dblk(1, dg[1])] + [(4, x) for x in va[hv:]] + [dblk(2, dg[2]+dg[3])]
    for x in spread(m, fill): e(x)
    e(f"Lp1h_{tag}:\ns_waitcnt lgkmcnt(0)")
    rd = p1_reads(kind, 2, vF+32) + p1_reads(kind, 3, vF+48)
    m, va = comp(vF)
    ctl = (16, f"s_add_u32 s{sRb}, s{sRb}, 1\ns_cmp_eq_u32 s{sRb}, {nb}\ns_cselect_b32 s{sDl}, s{sC3}, {stg}\ns_cselect_b32 s{sRb}, 0, s{sRb}")
    adr = [(4, f"v_add_u32 v{r}, s{sDl}, v{r}") for r in list(range(vRX, vRX+4)) + ([vRW] if kind != "LK" else []) + ([vRQ] if kind in ("H", "LK") else [])]
    ctl2 = f"s_add_u32 s{sSt}, s{sSt}, 1\ns_cmp_lt_u32 s{sSt}, {8-LA}\ns_cselect_b64 vcc, -1, 0\ns_cmp_gt_u32 s{sSt}, {8-LA}"
    sync = f"s_cbranch_scc1 Lp1w_{tag}\ns_waitcnt vmcnt({(LA-1)*n}) lgkmcnt(0)\nLp1x_{tag}:\n{BARX}\nLp1y_{tag}:"
    k = 2
    nv = 10
    for x in spread(m[:-k], [(6, x) for x in rd] + [ctl] + adr + [(4, x) for x in va[:-nv]]): e(x)
    e(ctl2); e(sync)
    for x in spread(m[-k:], [(4, x) for x in va[-nv:]]): e(x)
    e(f"s_cmp_lg_u32 s{sSt}, {NST}\ns_cbranch_scc1 Lp1_{tag}")
    if kind == "H":
        e(f"v_mov_b32 v{vPoll}, {CNT_KV}\nbuffer_load_dword v{vPoll}, v{vPoll}, {sr(SDBG,4)}, 0 offen sc1")
    m, va = comp(vF+32)
    for x in spread(m, [(4, x) for x in va]): e(x)
    e(f"s_branch {done_label}")
    e(f"Lp1w_{tag}:\ns_waitcnt lgkmcnt(0)\ns_cmp_eq_u32 s{sSt}, {NST}\ns_cbranch_scc1 Lp1y_{tag}")
    for st in range(9-LA, 7):
        e(f"s_waitcnt vmcnt({(7-st)*n})\ns_cmp_eq_u32 s{sSt}, {st}\ns_cbranch_scc1 Lp1x_{tag}")
    e(f"s_waitcnt vmcnt(0)\ns_branch Lp1x_{tag}")

def o_prod_off(dst):
    e(f"""s_lshl_b32 s{sT0}, s{sI}, 2
    s_lshr_b32 s{sT1}, s{sW}, 1
    s_add_u32 s{sT0}, s{sT0}, s{sT1}
    s_lshl_b32 s{sT0}, s{sT0}, 5
    s_lshl_b32 s{sT1}, s{sJ}, 1
    s_and_b32 s{dst}, s{sW}, 1
    s_add_u32 s{sT1}, s{sT1}, s{dst}
    s_lshr_b32 s{dst}, s{sT1}, 2
    s_add_u32 s{sT0}, s{sT0}, s{dst}
    s_and_b32 s{sT1}, s{sT1}, 3
    s_lshl_b32 s{sT1}, s{sT1}, 3
    s_add_u32 s{sT0}, s{sT0}, s{sT1}
    s_lshl_b32 s{sT0}, s{sT0}, 10
    s_add_u32 s{dst}, s{sT0}, {OIMG}""")

def v_lane_addr(d):
    e(f"""v_and_b32 v{d}, 15, v{vLane}
    v_lshlrev_b32 v{d}, 4, v{d}
    v_lshl_add_u32 v{d}, v{vH}, 8, v{d}
    s_mov_b32 exec_lo, 0xffff0000
    s_mov_b32 exec_hi, 0xffff0000
    v_mov_b32 v{d}, 512""")
def early_init():
    o_prod_off(sOp)
    v_lane_addr(vAv)
    e(f"""s_mov_b32 exec_lo, 0xffee0000
    s_mov_b32 exec_hi, 0xffee0000
    v_mov_b32 v{vAv}, 0x4000000
    s_mov_b64 exec, -1
    v_add_u32 v{vAv}, 1024, v{vAv}
    v_lshlrev_b32 v{vAk}, 4, v{vLane}
    v_lshlrev_b32 v{vL16}, 4, v{vLane}
    v_mov_b32 v{vIdx}, 0xdddd
    v_lshrrev_b32 v{vT0}, 3, v{vLane}
    v_lshlrev_b32 v{vT0}, 10, v{vT0}
    v_and_b32 v{vT1}, 7, v{vLane}
    v_bfe_u32 v{vT2}, v{vLane}, 4, 1
    v_lshlrev_b32 v{vT2}, 2, v{vT2}
    v_xor_b32 v{vT1}, v{vT1}, v{vT2}
    v_lshl_add_u32 v{vDa}, v{vT1}, 4, v{vT0}
    s_lshl_b32 s{sDo}, s{sW}, 13
    s_lshl_b32 s{sT1}, s{sCS}, 7
    s_add_u32 s{sDo}, s{sDo}, s{sT1}
    s_lshl_b32 s{sDm}, s{sW}, 10
    s_lshr_b32 s{sKq}, s{sW}, 1
    s_and_b32 s{sTt}, s{sW}, 1
    s_lshl_b32 s{sT0}, s{sTB}, 1
    s_add_u32 s{sT2}, s{sT0}, s{sTt}
    s_mul_i32 s{sHo}, s{sT2}, 88
    s_mul_i32 s{sT0}, s{sKq}, 22
    s_add_u32 s{sHo}, s{sHo}, s{sT0}
    s_lshl_b32 s{sHo}, s{sHo}, 10
    s_add_u32 s{sHo}, s{sHo}, {HIMG}
    s_lshl_b32 s{sT0}, s{sT2}, 2
    s_add_u32 s{sT0}, s{sT0}, s{sKq}
    s_lshl_b32 s{sT0}, s{sT0}, 13
    s_add_u32 s{sOc}, s{sT0}, {OIMG}
    s_add_u32 s{sOc2}, s{sOc}, 4096
    s_lshl_b32 s{sT0}, s{sT2}, 15
    s_add_u32 s{sT0}, s{sT0}, s{sT1}
    s_lshl_b32 s{sT1}, s{sKq}, 5
    s_add_u32 s{sXf}, s{sT0}, s{sT1}
    s_lshr_b32 s{sHc}, s{sTB}, 1
    s_lshl_b32 s{sHc}, s{sHc}, 2
    s_add_u32 s{sHc}, s{sHc}, {CNT_H}
    s_lshl_b32 s{sHs}, s{sI}, 2
    s_add_u32 s{sHs}, s{sHs}, {CNT_H}
    s_add_u32 s{sT0}, s{sDm}, {QIMG}
    v_add_u32 v{vAq}, s{sT0}, v{vL16}
    v_and_b32 v{vT0}, 31, v{vLane}
    v_lshlrev_b32 v{vT0}, 10, v{vT0}
    v_lshl_add_u32 v{vRa}, v{vH}, 4, v{vT0}
    v_bfe_u32 v{vT0}, v{vLane}, 2, 2
    v_lshl_add_u32 v{vT0}, v{vH}, 2, v{vT0}
    v_lshlrev_b32 v{vT0}, 7, v{vT0}
    v_bfe_u32 v{vT1}, v{vLane}, 4, 1
    v_lshl_add_u32 v{vT0}, v{vT1}, 5, v{vT0}
    v_and_b32 v{vT1}, 3, v{vLane}
    v_lshl_add_u32 v{vT0}, v{vT1}, 3, v{vT0}
    v_bfe_u32 v{vT1}, v{vLane}, 3, 1
    v_lshl_add_u32 v{vT0}, v{vT1}, 6, v{vT0}
    s_lshl_b32 s{sT0}, s{sKq}, 11
    v_add_u32 v{vRd}, s{sT0}, v{vT0}
    v_xor_b32 v{vRd+1}, 64, v{vRd}
    v_add_u32 v{vRd+2}, 0xe000, v{vRd}
    v_add_u32 v{vRd+3}, 0xe000, v{vRd+1}
    v_add_u32 v{vRd+4}, 0x1c000, v{vRd}
    v_add_u32 v{vRd+5}, 0x1c000, v{vRd+1}
    s_mul_i32 s{sT1}, s{sTt}, {4*ASL}
    s_add_u32 s{sT1}, s{sT1}, {RED}
    s_add_u32 s{sT0}, s{sT0}, s{sT1}
    v_add_u32 v{vRw}, s{sT0}, v{vL16}
    s_mul_i32 s{sT0}, s{sKq}, {ASL}
    s_add_u32 s{sT0}, s{sT0}, s{sT1}
    v_add_u32 v{vRr}, s{sT0}, v{vL16}""")
    for r in range(12): e(f"v_mov_b32 v{vO+r}, 0")

def prologue(kind):
    nb = NBK if kind[-1] == "K" else 3
    for x in dma_stage(kind): e(x)
    common_init(kind)
    for _ in range(nb-2):
        for x in dma_stage(kind): e(x)
    early_init()
    if kind in ("L", "H") and TOUCH: touch(kind)
def sentinel(r):
    for k in range(4): e(f"v_mov_b32 v{r+k}, -1")
    e(f"buffer_store_dwordx4 {vr(r,4)}, v{vL16}, {sr(SWS,4)}, s{sOp} offen sc1")

def touch(kind):
    t = f"Lt{kind}"
    e(f"s_and_b32 s{sT2}, s{sI}, 7\ns_lshl_b32 s{sT2}, s{sT2}, 5\ns_add_u32 s{sT2}, s{sT2}, 256")
    for v in range(1, 4): e(f"s_cmp_eq_u32 s{sW4}, {v}\ns_cbranch_scc1 {t}{v}")
    e(f"""v_lshrrev_b32 v{vT0}, 1, v{vLane}
    v_mul_u32_u24 v{vT0}, 2752, v{vT0}
    v_and_b32 v{vT1}, 1, v{vLane}
    v_lshl_add_u32 v{vT0}, v{vT1}, 7, v{vT0}
    s_mul_i32 s{sT0}, s{sJ}, 96
    s_min_u32 s{sT0}, s{sT0}, 1280
    s_lshl_b32 s{sT0}, s{sT0}, 1
    s_mul_i32 s{sT2}, s{sT2}, 2752
    s_add_u32 s{sT0}, s{sT0}, s{sT2}
    buffer_load_dword v{vPoll}, v{vT0}, {sr(SWG,4)}, s{sT0} offen
    s_branch {t}e""")
    if kind == "L":
        e(f"""{t}1:
        v_and_b32 v{vT0}, 31, v{vLane}
        v_lshlrev_b32 v{vT0}, 10, v{vT0}
        s_lshl_b32 s{sT2}, s{sT2}, 10
        s_lshl_b32 s{sT0}, s{sJ}, 6
        s_add_u32 s{sT0}, s{sT0}, s{sT2}
        buffer_load_dword v{vPoll}, v{vT0}, {sr(SWQ,4)}, s{sT0} offen
        s_branch {t}e
        {t}2:
        {t}3:
        v_lshrrev_b32 v{vT0}, 2, v{vLane}
        v_lshlrev_b32 v{vT0}, 10, v{vT0}
        v_and_b32 v{vT1}, 3, v{vLane}
        v_lshl_add_u32 v{vT0}, v{vT1}, 7, v{vT0}
        s_lshl_b32 s{sT0}, s{sI}, 17
        s_and_b32 s{sT1}, s{sJ}, 3
        s_lshl_b32 s{sT1}, s{sT1}, 15
        s_add_u32 s{sT0}, s{sT0}, s{sT1}
        s_and_b32 s{sT1}, s{sW}, 1
        s_lshl_b32 s{sT1}, s{sT1}, 14
        s_add_u32 s{sT0}, s{sT0}, s{sT1}
        buffer_load_dword v{vPoll}, v{vT0}, {sr(SX,4)}, s{sT0} offen offset:512""")
    else:
        e(f"""{t}1:
        v_lshlrev_b32 v{vT0}, 15, v{vLane}
        buffer_load_dword v{vPoll}, v{vT0}, {sr(SWD,4)}, 0 offen
        s_branch {t}e
        {t}2:
        v_lshlrev_b32 v{vT0}, 15, v{vLane}
        buffer_load_dword v{vPoll}, v{vT0}, {sr(SWO,4)}, 0 offen
        s_branch {t}e
        {t}3:
        v_lshlrev_b32 v{vT0}, 17, v{vLane}
        buffer_load_dword v{vPoll}, v{vT0}, {sr(SWS,4)}, 0 offen""")
    e(f"{t}e:")

def cs_write(acc, slot_expr_sreg):
    e(f"""v_and_b32 v{vT0}, 1, v{vLane}
    v_lshlrev_b32 v{vT0}, 6, v{vT0}
    v_lshrrev_b32 v{vT1}, 4, v{vLane}
    v_lshl_add_u32 v{vT0}, v{vT1}, 4, v{vT0}
    v_add_u32 v{vT0}, {slot_expr_sreg}, v{vT0}
    s_mov_b32 exec_lo, 0x00030003
    s_mov_b32 exec_hi, 0x00030003
    ds_write_b128 v{vT0}, {vr(acc,4)}
    s_mov_b64 exec, -1""")

def stats_post(tile_sreg, part):
    e(f"""v_add_f32 v{vSt}, v{vSt}, v{vSt+1}
    v_add_f32 v{vSt+2}, v{vSt+2}, v{vSt+3}
    v_mov_b32 v{vSt+1}, v{vSt}
    v_mov_b32 v{vSt+3}, v{vSt+2}
    v_and_b32 v{vT0}, 31, v{vLane}
    s_lshl_b32 s{sT0}, s{tile_sreg}, 7
    v_permlane32_swap_b32 v{vSt}, v{vSt+1}
    v_permlane32_swap_b32 v{vSt+2}, v{vSt+3}
    s_add_u32 s{sT0}, s{sT0}, {STATM+1024*part}
    v_lshl_add_u32 v{vT0}, v{vT0}, 2, s{sT0}
    v_add_f32 v{vSt}, v{vSt}, v{vSt+1}
    v_add_f32 v{vSt+2}, v{vSt+2}, v{vSt+3}
    ds_write_b32 v{vT0}, v{vSt}
    ds_write_b32 v{vT0}, v{vSt+2} offset:512""")
def stats_read(d, addr, off):
    e(f"ds_read2st64_b32 {vr(d,2)}, v{addr} offset0:0 offset1:2" if off == 0 else f"ds_read2_b32 {vr(d,2)}, v{addr} offset0:{off//4} offset1:{(off+512)//4}")
    e(f"ds_read_b32 v{d+2}, v{addr} offset:{off+1024}\nds_read_b32 v{d+3}, v{addr} offset:{off+1536}")
def stats_fin(d, m, r):
    e(f"""v_add_f32 v{d}, v{d}, v{d+2}
    v_add_f32 v{d+1}, v{d+1}, v{d+3}
    v_mul_f32 v{m}, {f2u(1/512):#x}, v{d}
    v_mul_f32 v{d+1}, {f2u(1/512):#x}, v{d+1}
    v_fma_f32 v{d+1}, -v{m}, v{m}, v{d+1}
    v_max_f32 v{d+1}, 0, v{d+1}
    v_add_f32 v{d+1}, {f2u(1e-5):#x}, v{d+1}
    v_rsq_f32 v{r}, v{d+1}
    s_nop 0""")

C1 = -2*0.7978845608028654*1.4426950408889634
C3 = C1*0.044715
def gelu_consts(m, r, d):
    e(f"""v_sub_f32 v{d}, 0, v{m}
    v_mul_f32 v{d+3}, v{r}, v{r}
    v_mul_f32 v{d+1}, {f2u(C1):#x}, v{r}
    v_mul_f32 v{d+2}, {f2u(C3):#x}, v{r}
    v_mul_f32 v{d+2}, v{d+2}, v{d+3}
    v_rcp_f32 v{d+3}, v{d+3}""")
def bc(reg, pos, n):
    base = reg & ~1
    return vr(base, 2), reg & 1
def pk(op, d, srcs, neg=None):
    ops = []; lo = []; hi = []
    for t, r in srcs:
        if t == 'p': ops.append(vr(r, 2)); lo.append(0); hi.append(1)
        else: ops.append(vr(r & ~1, 2)); lo.append(r & 1); hi.append(r & 1)
    return f"{op} {vr(d,2)}, {', '.join(ops)} op_sel:[{','.join(map(str,lo))}] op_sel_hi:[{','.join(map(str,hi))}]"
def gelu_tile(g, u, csg, csu, k, tmp):
    for p in range(0, 16, 2):
        e(pk("v_pk_fma_f32", g+p, [('b', k), ('p', csg+p), ('p', g+p)]))
        e(pk("v_pk_fma_f32", u+p, [('b', k), ('p', csu+p), ('p', u+p)]))
    for p in range(0, 16, 2):
        e(pk("v_pk_mul_f32", tmp+p, [('p', g+p), ('p', g+p)]))
    for p in range(0, 16, 2):
        e(pk("v_pk_fma_f32", tmp+p, [('p', tmp+p), ('b', k+2), ('b', k+1)]))
    for p in range(0, 16, 2):
        e(pk("v_pk_mul_f32", tmp+p, [('p', tmp+p), ('p', g+p)]))
    for p in range(16): e(f"v_exp_f32 v{tmp+p}, v{tmp+p}")
    for p in range(0, 16, 2):
        e(pk("v_pk_mul_f32", u+p, [('p', u+p), ('p', g+p)]))
    for p in range(0, 16, 2):
        e(pk("v_pk_fma_f32", tmp+p, [('p', tmp+p), ('b', k+3), ('b', k+3)]))
    for p in range(16): e(f"v_rcp_f32 v{tmp+p}, v{tmp+p}")
    e("s_nop 0")
    for p in range(0, 16, 2):
        e(pk("v_pk_mul_f32", u+p, [('p', u+p), ('p', tmp+p)]))
    for p in range(8): e(f"v_cvt_pk_bf16_f32 v{g+p}, v{u+2*p}, v{u+2*p+1}")

def cs_read(d, slot_off):
    for q in range(4): e(f"ds_read_b128 {vr(d+4*q,4)}, v{vT3} offset:{slot_off+32*q}")

def lin_fold(acc, cs, negm, scale, n=16):
    for p in range(0, n, 2):
        e(pk("v_pk_fma_f32", acc+p, [('b', negm), ('p', cs+p), ('p', acc+p)]))
    for p in range(0, n, 2):
        e(pk("v_pk_mul_f32", acc+p, [('p', acc+p), ('b', scale)]))

def q_epilogue(cs):
    e(f"v_mul_f32 v{vSt+2}, {f2u(0.25*1.4426950408889634):#x}, v{vSt+1}")
    lin_fold(vAcc, cs, vSt+4, vSt+2)
    for p in range(8): e(f"v_cvt_pk_bf16_f32 v{vAcc+p}, v{vAcc+2*p}, v{vAcc+2*p+1}")
    e(f"""s_lshl_b32 s{sT0}, s{sW4}, 11
    s_add_u32 s{sT0}, s{sT0}, {QIMG}
    v_lshl_add_u32 v{vT0}, v{vLane}, 4, s{sT0}
    ds_write_b128 v{vT0}, {vr(vAcc,4)}
    ds_write_b128 v{vT0}, {vr(vAcc+4,4)} offset:1024""")

def h_off(dst, tile_add_sreg, unit_add):
    e(f"""s_lshl_b32 s{sT0}, s{sI}, 2
    s_add_u32 s{sT0}, s{sT0}, s{tile_add_sreg}
    s_mul_i32 s{sT0}, s{sT0}, 88
    s_mul_i32 s{sT1}, s{sJ}, 6
    s_min_u32 s{sT1}, s{sT1}, 80
    s_add_u32 s{sT1}, s{sT1}, {unit_add}
    s_lshr_b32 s{dst}, s{sT1}, 2
    s_add_u32 s{sT0}, s{sT0}, s{dst}
    s_and_b32 s{sT1}, s{sT1}, 3
    s_mul_i32 s{sT1}, s{sT1}, 22
    s_add_u32 s{sT0}, s{sT0}, s{sT1}
    s_lshl_b32 s{sT0}, s{sT0}, 10
    s_add_u32 s{dst}, s{sT0}, {HIMG}""")
def h_store(acc, so):
    e(f"buffer_store_dwordx4 {vr(acc,4)}, v{vT2}, {sr(SWS,4)}, s{so} offen sc1")
    e(f"s_add_u32 s{so}, s{so}, {22*1024}")
    e(f"buffer_store_dwordx4 {vr(acc+4,4)}, v{vT2}, {sr(SWS,4)}, s{so} offen sc1")
def kv_dma(tag):
    e(f"""s_lshl_b32 s{sT0}, s{sW4}, 10
    v_lshlrev_b32 v{vT0}, 4, v{vLane}
    Lkvd_{tag}:
    s_mov_b32 m0, s{sT0}
    s_nop 0
    buffer_load_dwordx4 v{vT0}, {sr(SWS,4)}, s{sT0} offen sc1 lds
    s_add_u32 s{sT0}, s{sT0}, 4096
    s_cmp_lt_u32 s{sT0}, {36*1024}
    s_cbranch_scc1 Lkvd_{tag}""")

prologue("L")
for v in range(1, 4): e(f"s_cmp_eq_u32 s{sW}, {v}\ns_cbranch_scc1 LL{v}")
for v in range(4):
    e(f"LL{v}:")
    p1_loop("L", v, "LepiL")
e("LepiL:")
stamp(1)
e(f"s_and_b32 s{sT2}, s{sW}, 1\ns_lshl_b32 s{sT2}, s{sT2}, 1\ns_lshr_b32 s{sT3}, s{sW}, 1\ns_add_u32 s{sT2}, s{sT2}, s{sT3}")
stats_post(sT2, 1)
e(f"s_lshl_b32 s{sT1}, s{sW}, 7\ns_add_u32 s{sT1}, s{sT1}, {CSUM+128}")
cs_write(vCs, f"s{sT1}")
e(f"""s_lshr_b32 s{sT0}, s{sW}, 1
s_lshl_b32 s{sT0}, s{sT0}, 8
s_add_u32 s{sT0}, s{sT0}, {CSUM+128}
v_lshl_add_u32 v{vT3}, v{vH}, 4, s{sT0}
s_and_b32 s{sT1}, s{sW}, 1
s_lshl_b32 s{sT1}, s{sT1}, 8
s_add_u32 s{sT1}, s{sT1}, {STATM}
v_and_b32 v{vT0}, 31, v{vLane}
v_lshl_add_u32 v{vT0}, v{vT0}, 2, s{sT1}
s_waitcnt lgkmcnt(0)
s_barrier""")
stats_read(vSt+12, vT0, 0); stats_read(vSt+16, vT0, 128)
cs_read(vF, 0); cs_read(vF+16, 128)
e(f"s_and_b32 s{sT3}, s{sW}, 1\ns_lshl_b32 s{sT3}, s{sT3}, 1\ns_and_b32 s{sC0}, s{sW}, 2")
h_off(sT2, sT3, f"s{sC0}")
e(f"s_add_u32 s{sT3}, s{sT2}, {88*1024}\nv_lshlrev_b32 v{vT2}, 4, v{vLane}\ns_waitcnt lgkmcnt(0)")
stats_fin(vSt+12, vSt, vSt+1); stats_fin(vSt+16, vSt+2, vSt+3)
gelu_consts(vSt, vSt+1, vSt+4); gelu_consts(vSt+2, vSt+3, vSt+8)
for tt in range(2):
    gelu_tile(vAcc+32*tt, vAcc+32*tt+16, vF, vF+16, vSt+4+4*tt, vSt+12)
    h_store(vAcc+32*tt, sT2 if tt == 0 else sT3)
e("s_branch Lp2")

e("LproH:")
prologue("H")
for v in range(1, 4): e(f"s_cmp_eq_u32 s{sW4}, {v}\ns_cbranch_scc1 LH{v}")
for v in range(4):
    e(f"LH{v}:")
    p1_loop("H", v, "LepiH")
e("LepiH:")
stamp(1)
stats_post(sW4, 0)
e(f"v_mov_b32 v{vT2}, v{vT0}")
e(f"""s_cmp_eq_u32 s{sW4}, 3
s_cbranch_scc1 LHnocs
s_add_u32 s{sT1}, s{sW4}, 4
s_cmp_eq_u32 s{sW4}, 0
s_cselect_b32 s{sT1}, 0, s{sT1}
s_lshl_b32 s{sT1}, s{sT1}, 7
s_add_u32 s{sT1}, s{sT1}, {CSUM}""")
cs_write(vCs, f"s{sT1}")
e(f"""LHnocs:
v_mov_b32 v{vT3}, {CSUM}
v_lshl_add_u32 v{vT3}, v{vH}, 4, v{vT3}
s_waitcnt lgkmcnt(0)
s_barrier""")
stats_read(vSt+12, vT2, 0)
cs_read(vAcc+48, 0); cs_read(vF, 5*128); cs_read(vF+16, 6*128)
h_off(sT2, sW4, 4)
e(f"v_lshlrev_b32 v{vT2}, 4, v{vLane}\ns_waitcnt lgkmcnt(0)")
stats_fin(vSt+12, vSt, vSt+1)
gelu_consts(vSt, vSt+1, vSt+4)
q_epilogue(vAcc+48)
e(f"s_waitcnt vmcnt(0)\nv_readfirstlane_b32 s{sRetry}, v{vPoll}\ns_cmp_lt_u32 s{sRetry}, 16\ns_cbranch_scc1 LHnodma")
kv_dma("a")
e("LHnodma:")
stamp(13)
gelu_tile(vAcc+16, vAcc+32, vF, vF+16, vSt+4, vSt+12)
h_store(vAcc+16, sT2)
e(f"s_cmp_lt_u32 s{sRetry}, 16\ns_cbranch_scc1 Lkvwait\ns_waitcnt vmcnt(2)\ns_branch Lp2")

e("Lkvcu:")
WKV = 131072
vXf, vWk = 32, 192
sXb = sMw
e(f"""s_lshl_b32 s{sT0}, s{sW}, 11
v_lshlrev_b32 v{vWa0}, 4, v{vLane}
s_add_u32 m0, s{sT0}, {WKV}
s_lshl_b32 s{sXb}, s{sW}, 14
buffer_load_dwordx4 v{vWa0}, {sr(SWV,4)}, s{sT0} offen lds
buffer_load_dwordx4 v{vWa0}, {sr(SWV,4)}, s{sT0} offen offset:1024 lds
s_add_u32 m0, s{sT0}, {WKV+16384}
s_lshl_b32 s{sXo}, s{sI}, 17
buffer_load_dwordx4 v{vWa0}, {sr(SWK,4)}, s{sT0} offen lds
buffer_load_dwordx4 v{vWa0}, {sr(SWK,4)}, s{sT0} offen offset:1024 lds
s_lshl_b32 s{sT0}, s{sW4}, 15
s_add_u32 s{sXo}, s{sXo}, s{sT0}
s_lshr_b32 s{sT3}, s{sW}, 2
s_lshl_b32 s{sT0}, s{sT3}, 9
s_add_u32 s{sXo}, s{sXo}, s{sT0}""")
def kvx_dma(c):
    return [f"""s_add_u32 m0, s{sXb}, {4096*c+2048*hf}
        s_add_u32 s{sT0}, s{sXo}, {128*c+16384*hf}
        buffer_load_dwordx4 v{vXa0}, {sr(SX,4)}, s{sT0} offen lds
        buffer_load_dwordx4 v{vXa1}, {sr(SX,4)}, s{sT0} offen offset:1024 lds""" for hf in range(2)]
for x in kvx_dma(0): e(x)
common_init("KV")
for x in kvx_dma(1): e(x)
e("s_waitcnt vmcnt(4)\ns_barrier")
stamp(12)
def kv_reads(c):
    r = []
    for ks in range(4):
        W = vWk + 16*(c & 1) + 4*ks
        r += [f"ds_read_b128 {vr(vXf+16*c+4*ks,4)}, v{vRX+ks} offset:{4096*c}"]
        r += tr(W, vRW, (64*c+16*ks)*32) + tr(W+2, vRW, (64*c+16*ks+4)*32)
    return r
for x in kv_reads(0): e(x)
for c in range(4):
    m = []; va = []
    for ks in range(4):
        X = vXf+16*c+4*ks; W = vWk + 16*(c & 1) + 4*ks
        m += [mfma(vAcc+16, W, X), mfma16(vCs, W, vSel), mfma(vAcc+32, X, W)]
        va += stats_ops(X)
    fill = [(4, x) for x in va]
    if c < 2: fill = [(16, x) for x in kvx_dma(c+2)] + fill
    if c < 3: fill = fill[:56] + [(4, f"s_waitcnt vmcnt({4 if c < 2 else 0})")] + [(6, x) for x in kv_reads(c+1)] + fill[56:]
    e("s_waitcnt lgkmcnt(0)")
    for x in spread(m, fill): e(x)
stamp(1)
e(f"""v_add_f32 v{vSt}, v{vSt}, v{vSt+1}
v_add_f32 v{vSt+2}, v{vSt+2}, v{vSt+3}
v_mov_b32 v{vSt+1}, v{vSt}
v_mov_b32 v{vSt+3}, v{vSt+2}
v_and_b32 v{vT2}, 31, v{vLane}
v_lshlrev_b32 v{vT2}, 2, v{vT2}
v_permlane32_swap_b32 v{vSt}, v{vSt+1}
v_permlane32_swap_b32 v{vSt+2}, v{vSt+3}
v_add_u32 v{vT1}, s{sXb}, v{vT2}
s_xor_b32 s{sT2}, s{sXb}, 65536
v_add_f32 v{vSt+20}, v{vSt}, v{vSt+1}
v_add_f32 v{vSt+21}, v{vSt+2}, v{vSt+3}
ds_write_b32 v{vT1}, v{vSt+20} offset:4096
ds_write_b32 v{vT1}, v{vSt+21} offset:4224
s_add_u32 s{sT1}, s{sXb}, 4352""")
cs_write(vCs, f"s{sT1}")
e(f"""v_add_u32 v{vT0}, s{sXb}, v{vWa0}
v_add_u32 v{vWa1}, s{sT2}, v{vWa0}
v_add_u32 v{vWa2}, s{sT2}, v{vT2}
v_lshl_add_u32 v{vT3}, v{vH}, 4, s{sXb}
s_lshl_b32 s{sT0}, s{sI}, 2
s_add_u32 s{sT0}, s{sT0}, s{sW4}
s_mul_i32 s{sC0}, s{sT0}, {KVT}
s_lshl_b32 s{sQo}, s{sW}, 16
s_add_u32 s{sQo}, s{sQo}, {64*15}
s_lshl_b32 s{sMq}, s{sW}, 12
s_add_u32 s{sMq}, s{sMq}, {WKV}
s_cmp_ge_u32 s{sW}, 4
s_cbranch_scc1 LkvH""")
def wq_dma():
    for k in range(4):
        e(f"s_add_u32 m0, s{sMq}, {1024*k}\ns_add_u32 s{sT0}, s{sQo}, {16384*k}\nbuffer_load_dwordx4 v{vQa}, {sr(SWQ,4)}, s{sT0} offen lds")
for q in range(4): e(f"ds_write_b128 v{vT0}, {vr(vAcc+32+4*q,4)} offset:{1024*q}")
e(f"v_xor_b32 v{vT1}, 0x10000, v{vT3}\ns_waitcnt lgkmcnt(0)\ns_barrier")
e(f"""ds_read_b32 v{vSt+22}, v{vWa2} offset:4096
ds_read_b32 v{vSt+23}, v{vWa2} offset:4224
ds_read_b128 {vr(vWk,4)}, v{vWa1}
ds_read_b128 {vr(vWk+4,4)}, v{vWa1} offset:1024
ds_read_b128 {vr(vSt+12,4)}, v{vT3} offset:{4352+64}
ds_read_b128 {vr(vSt+16,4)}, v{vT3} offset:{4352+96}
ds_read_b128 {vr(vWk+8,4)}, v{vT1} offset:{4352+64}
ds_read_b128 {vr(vWk+12,4)}, v{vT1} offset:{4352+96}""")
wq_dma()
e(f"""v_and_b32 v{vT0}, 0x33, v{vLane}
v_bfe_u32 v{vT1}, v{vLane}, 2, 1
v_lshl_or_b32 v{vT0}, v{vT1}, 3, v{vT0}
v_bfe_u32 v{vT1}, v{vLane}, 3, 1
v_lshl_or_b32 v{vT0}, v{vT1}, 2, v{vT0}
v_lshlrev_b32 v{vT0}, 4, v{vT0}
s_waitcnt lgkmcnt(0)""")
stats_fin(vSt+20, vSt, vSt+1)
e(f"v_sub_f32 v{vSt+4}, 0, v{vSt}")
for p in range(0, 8, 2):
    e(pk("v_pk_add_f32", vAcc+24+p, [('p', vAcc+24+p), ('p', vWk+p)]))
    e(pk("v_pk_add_f32", vSt+12+p, [('p', vSt+12+p), ('p', vWk+8+p)]))
lin_fold(vAcc+24, vSt+12, vSt+4, vSt+1, 8)
for p in range(4): e(f"v_cvt_pk_bf16_f32 v{vAcc+16+p}, v{vAcc+24+2*p}, v{vAcc+25+2*p}")
e(f"buffer_store_dwordx4 {vr(vAcc+16,4)}, v{vT0}, {sr(SWS,4)}, s{sC0} offen sc1\ns_branch LkvS")
e("LkvH:")
e(f"ds_write_b128 v{vT0}, {vr(vAcc+24,4)}\nds_write_b128 v{vT0}, {vr(vAcc+28,4)} offset:1024")
e(f"v_add_u32 v{vT1}, s{sXb}, v{vT2}\ns_waitcnt lgkmcnt(0)\ns_barrier")
e(f"""ds_read_b32 v{vSt+22}, v{vWa2} offset:4096
ds_read_b32 v{vSt+23}, v{vWa2} offset:4224
ds_read_b32 v{vSt+6}, v{vT1} offset:4352
ds_read_b32 v{vSt+7}, v{vWa2} offset:4352""")
for q in range(4): e(f"ds_read_b128 {vr(vAcc+48+4*q,4)}, v{vWa1} offset:{1024*q}")
wq_dma()
e("s_waitcnt lgkmcnt(0)")
stats_fin(vSt+20, vSt, vSt+1)
e(f"ds_write_b32 v{vT1}, v{vSt} offset:4608\nds_write_b32 v{vT1}, v{vSt+1} offset:4736\ns_waitcnt lgkmcnt(0)")
for q in range(4):
    e(f"ds_read_b128 {vr(vWk+4*q,4)}, v{vT3} offset:{4608+32*q}\nds_read_b128 {vr(vWk+16+4*q,4)}, v{vT3} offset:{4736+32*q}")
e(f"v_add_f32 v{vSt+6}, v{vSt+6}, v{vSt+7}\nv_sub_f32 v{vSt+6}, 0, v{vSt+6}")
for p in range(0, 16, 2): e(pk("v_pk_add_f32", vAcc+32+p, [('p', vAcc+32+p), ('p', vAcc+48+p)]))
e("s_waitcnt lgkmcnt(0)")
for p in range(0, 16, 2): e(pk("v_pk_fma_f32", vAcc+32+p, [('p', vWk+p), ('b', vSt+6), ('p', vAcc+32+p)]))
for p in range(0, 16, 2): e(pk("v_pk_mul_f32", vAcc+32+p, [('p', vAcc+32+p), ('p', vWk+16+p)]))
for p in range(8): e(f"v_cvt_pk_bf16_f32 v{vAcc+32+p}, v{vAcc+32+2*p}, v{vAcc+33+2*p}")
v_lane_addr(vT0)
for p in range(8): e(f"v_mov_b32 v{vAcc+32+p}, 0x3f803f80")
e(f"""s_mov_b32 exec_lo, 0x1ffff
s_mov_b32 exec_hi, 0xffff
buffer_store_dwordx4 {vr(vAcc+32,4)}, v{vT0}, {sr(SWS,4)}, s{sC0} offen offset:1024 sc1
buffer_store_dwordx4 {vr(vAcc+36,4)}, v{vT0}, {sr(SWS,4)}, s{sC0} offen offset:{1024+528} sc1
s_mov_b64 exec, -1
LkvS:""")
for r in range(4): e(f"v_mov_b32 v{vCs+r}, 0")
e("s_waitcnt vmcnt(0)\ns_barrier")
signal(CNT_KV, "kv")
stamp(13)
early_init()
def q_reads(c):
    r = []
    for ks in range(4):
        W = vWk + 16*(c & 1) + 4*ks
        r += tr(W, vRQ, (64*c+16*ks)*64) + tr(W+2, vRQ, (64*c+16*ks+4)*64)
    return r
for x in q_reads(0): e(x)
for c in range(4):
    m = []
    for ks in range(4):
        X = vXf+16*c+4*ks; W = vWk + 16*(c & 1) + 4*ks
        m += [mfma(vAcc, W, X), mfma16(vCs, W, vSel)]
    e("s_waitcnt lgkmcnt(0)")
    for x in interleave(m[:4], q_reads(c+1) if c < 3 else []) + m[4:]: e(x)
e(f"""s_or_b32 s{sT2}, s{sXb}, {65536+8192}
s_lshr_b32 s{sT3}, s{sW}, 2
s_lshl_b32 s{sT3}, s{sT3}, 7
s_add_u32 s{sT1}, s{sT2}, s{sT3}
s_add_u32 s{sT1}, s{sT1}, 4096
v_add_u32 v{vWa1}, s{sT2}, v{vWa0}
v_lshl_add_u32 v{vT3}, v{vH}, 4, s{sT2}
s_nop 3""")
cs_write(vCs, f"s{sT1}")
e(f"s_cmp_ge_u32 s{sW}, 4\ns_cbranch_scc1 LkvH2\ns_waitcnt lgkmcnt(0)\ns_barrier")
for q in range(4): e(f"ds_read_b128 {vr(vWk+4*q,4)}, v{vWa1} offset:{1024*q}")
cs_read(vAcc+48, 4096); cs_read(vWk+16, 4096+128)
e("s_waitcnt lgkmcnt(0)")
for p in range(0, 16, 2):
    e(pk("v_pk_add_f32", vAcc+p, [('p', vAcc+p), ('p', vWk+p)]))
    e(pk("v_pk_add_f32", vAcc+48+p, [('p', vAcc+48+p), ('p', vWk+16+p)]))
q_epilogue(vAcc+48)
e("s_branch Lp2\nLkvH2:")
for q in range(4): e(f"ds_write_b128 v{vWa1}, {vr(vAcc+4*q,4)} offset:{1024*q}")
e("s_waitcnt lgkmcnt(0)\ns_barrier")
e("Lkvwait:")
stamp(16)
poll(CNT_KV, 16, "kv")
stamp(17)
kv_dma("b")
e("s_waitcnt vmcnt(0)")

vm = []
def vtag(tag): vm.append(tag)
def vwait_s(tag):
    idx = max(i for i, t in enumerate(vm) if t == tag)
    return f"s_waitcnt vmcnt({min(63, len(vm)-1-idx)})"
def w_dma(G):
    srdw, row = (SWD, 64*G) if G < 22 else (SWO, 64*(G-22))
    return [f"s_add_u32 m0, s{sDm}, {GSLOT[G]}", f"s_add_u32 s{sT0}, s{sDo}, {row*1024}",
            (f"g{G}", f"buffer_load_dwordx4 v{vDa}, {sr(srdw,4)}, s{sT0} offen lds")]
def w_reads(G, F):
    a = GSLOT[G]; win = a // 0xe000; off = a - win*0xe000
    r0, r1 = vRd+2*win, vRd+2*win+1
    return tr(F, r0, off) + tr(F+2, r0, off+1024) + tr(F+4, r1, off) + tr(F+6, r1, off+1024)
def emit_seq(seq):
    for x in seq:
        if isinstance(x, list): emit_seq(x)
        elif isinstance(x, tuple): vtag(x[0]); e(x[1])
        elif callable(x): e(x())
        else: e(x)
e("Lp2:")
stamp(2)
sentinel(vC); vtag("sent")
e("s_waitcnt lgkmcnt(0)\ns_barrier")
stamp(3)
e(f"""ds_read_b128 {vr(vQ,4)}, v{vAq}
ds_read_b128 {vr(vKf[0],4)}, v{vAk}
ds_read_b128 {vr(vKf[1],4)}, v{vAk} offset:{KVT}
ds_read_b128 {vr(vVl[0],4)}, v{vAv}
s_waitcnt lgkmcnt(2)""")
e(mfma(vS[0], vKf[0], vQ, "0"))
e("s_nop 11")
e(f"v_max3_f32 v{vT1}, v{vS[0]}, v{vS[0]+1}, v{vS[0]+2}")
for p in range(3, 15, 2): e(f"v_max3_f32 v{vT1}, v{vT1}, v{vS[0]+p}, v{vS[0]+p+1}")
e(f"""v_max_f32 v{vT1}, v{vT1}, v{vS[0]+15}
v_mov_b32 v{vT2}, v{vT1}
s_nop 1
v_permlane32_swap_b32 v{vT1}, v{vT2}
s_nop 1
v_max_f32 v{vT1}, v{vT1}, v{vT2}""")
for r in range(16): e(f"v_sub_f32 v{vC+r}, 0, v{vT1}")
for r in range(16): e(f"v_sub_f32 v{vS[0]+r}, v{vS[0]+r}, v{vT1}")
stamp(5)
side = {T: [] for T in range(64)}
xm = {T: [] for T in range(65)}
for n in range(12):
    side[n].append([f"s_add_u32 s{sT0}, s{sDm}, {(36+8*n)*1024}", f"s_mov_b32 m0, s{sT0}", "s_nop 0",
                    ("kv", f"buffer_load_dwordx4 v{vL16}, {sr(SWS,4)}, s{sT0} offen sc1 lds")])
for T0, Gs in ((8, range(0, 5)), (16, range(5, 7)), (24, range(7, 9)), (32, range(9, 15)), (40, range(15, 22)),
               (48, range(22, 28)), (56, range(28, 30))):
    for n, G in enumerate(Gs): side[T0 + (n//2 if T0 != 8 else n+2)].append(w_dma(G))
side[18].append([f"v_mov_b32 v{vPoll}, s{sHc}", ("poll", f"buffer_load_dword v{vPoll}, v{vPoll}, {sr(SDBG,4)}, 0 offen sc1")])
for i in range(22):
    T = 24 + (i*16)//22
    c = [f"s_add_u32 s{sC0}, s{sHo}, {1024*i}"] if i % 4 == 0 else []
    side[T].append(c + [(f"h{i}", f"buffer_load_dwordx4 {vr(vHf+4*i,4)}, v{vL16}, {sr(SWS,4)}, s{sC0} offen offset:{1024*(i%4)} sc1")])
lastm = {}
for T0, span, Gs in ((26, 6, range(0, 4)), (32, 8, range(4, 9)), (40, 8, range(9, 15)), (48, 8, range(15, 22))):
    k = len(Gs)
    for n, G in enumerate(Gs):
        F = vWf[G % 3]
        t0 = T0 + (2*n*span)//(2*k); t1 = T0 + ((2*n+1)*span)//(2*k)
        lastm[G] = t1+1
        assert G < 3 or t0 > lastm[G-3]
        for x in w_reads(G, F): side[t0].append([x])
        c0 = "0" if G == 0 else None
        w = (lambda g=G: vwait_s(f"h{g}"))
        m0, m1 = mfma(vAf[0], F, vHf+4*G, c0), mfma(vAf[1], F+4, vHf+4*G, c0)
        if G == 21:
            xm[t0+1].append([w, f"s_cmp_ge_u32 s{sKq}, 2", "s_cbranch_scc1 Lskip21", m0, m1, "Lskip21:"])
        else:
            xm[t0+1].append([w, m0]); xm[t1+1].append([m1])
for q in range(8):
    side[58 + (q*6)//8].append([f"ds_write_b128 v{vRw}, {vr(vAf[0]+4*q,4)} offset:{ASL*(q//2)+1024*(q%2)}"])
side[60].append([("x", f"buffer_load_dwordx4 {vr(vWf[0],4)}, v{vRa}, {sr(SX,4)}, s{sXf} offen")])
if "--noside" in sys.argv:
    keep = {18: side[18][-1:], 60: side[60][-1:]}
    side = {T: keep.get(T, []) for T in range(64)}; xm = {T: [] for T in range(65)}
    vm += ["kv", "g6", "g8", "g14", "g21"]
def last_txt(c): return c[-1][1] if isinstance(c[-1], tuple) else c[-1]
def last_tag(c): return c[-1][0] if isinstance(c[-1], tuple) else ""
if "--dx" in sys.argv:
    dx = sys.argv[sys.argv.index("--dx")+1]
    vm += ["kv", "g6", "g8", "g14", "g21"] + [f"h{i}" for i in range(22)]
    for T in range(64):
        if "w" in dx: side[T] = [c for c in side[T] if not last_tag(c).startswith("g")]
        if "h" in dx: side[T] = [c for c in side[T] if not last_tag(c).startswith("h")]
        if "r" in dx: side[T] = [c for c in side[T] if "ds_" not in last_txt(c)]
        if "k" in dx: side[T] = [c for c in side[T] if last_tag(c) != "kv"]
        if "m" in dx: xm[T] = []
PRI = int(sys.argv[sys.argv.index("--pri")+1]) if "--pri" in sys.argv else 2
lastg = {16: "kv", 24: "g6", 32: "g8", 40: "g14", 48: "g21"}
for T in range(64):
    X = vS[T & 1]; Y = vS[(T+1) & 1]
    rel = T % 16
    e("s_waitcnt lgkmcnt(0)")
    if T and T % 8 == 0:
        if "--abar" in sys.argv: stamp(29+3*(T//8))
        if T == 8: e(vwait_s("sent"))
        if T in lastg: e(vwait_s(lastg[T]))
        if T == 24:
            e(vwait_s("poll"))
            e(f"v_readfirstlane_b32 s{sT1}, v{vPoll}\ns_cmp_ge_u32 s{sT1}, 16\ns_cbranch_scc1 Lhok")
            poll(f"s{sHc}", 16, "h")
            e("Lhok:")
        if "--abar" in sys.argv: stamp(30+3*(T//8))
        if "--noabar" not in sys.argv or T == 8: e("s_barrier")
        if "--abar" in sys.argv: stamp(31+3*(T//8))
        if T == 8: signal(f"s{sHs}", "h")
        if rel == 0: e(f"v_add_u32 v{vAk}, {16*KVT}, v{vAk}\nv_add_u32 v{vAv}, {16*KVT}, v{vAv}")
    if PRI == 2 and T % 2 == 0: e(f"s_setprio {3-(T%8)//2}")
    if PRI == 16 and T % 16 == 0: e(f"s_setprio {3-T//16}")
    if PRI == 0 and T == 0: e("s_setprio 0")
    ex = [f"v_exp_f32 v{X+i}, v{X+i}" for i in range(16)]
    rd = [f"ds_read_b128 {vr(vVh,4)}, v{vAv} offset:{rel*KVT+528}"]
    if T+1 < 64: rd.append(f"ds_read_b128 {vr(vVl[(T+1)&1],4)}, v{vAv} offset:{(rel+1)*KVT}")
    if T+2 < 64: rd.append(f"ds_read_b128 {vr(vKf[T&1],4)}, v{vAk} offset:{(rel+2)*KVT}")
    seq = ex[0:2] + ([smf(vO, vVh, Y+8, vIdx)] if T else []) + interleave(ex[2:5], rd)
    if T+1 < 64: seq.append(mfma(Y, vKf[(T+1) & 1], vQ, vr(vC, 16)))
    x2 = xm[T]
    assert len(x2) <= 2
    if len(x2) == 2: tail = ex[5:8] + [x2[0]] + ex[8:11] + [smf(vO, vVl[T & 1], X, vIdx)] + ex[11:14] + [x2[1]] + ex[14:16]
    else: tail = ex[5:10] + [smf(vO, vVl[T & 1], X, vIdx)] + ex[10:14] + x2 + ex[14:16]
    if "--nord" in sys.argv and T > 2: seq = [x for x in seq if "ds_read" not in x]
    if side[T]: tail = interleave(tail[:-3], side[T]) + tail[-3:]
    emit_seq(seq + tail)
assert not xm[64]
e("s_waitcnt lgkmcnt(0)\ns_nop 0")
e(smf(vO, vVh, vS[1]+8, vIdx))
e(f"s_mov_b32 s{sRetry}, 0")
e("Lfin:")
e(f"""s_nop 9
s_mov_b32 s{sC0}, {f2u(2.0**40):#x}
s_mov_b32 s{sC1}, {f2u(2.0**126):#x}
v_rcp_f32 v{vO+10}, v{vO+8}
v_max3_f32 v{vT1}, abs(v{vO}), abs(v{vO+1}), abs(v{vO+2})
v_max3_f32 v{vT1}, v{vT1}, abs(v{vO+3}), abs(v{vO+4})
v_max3_f32 v{vT1}, v{vT1}, abs(v{vO+5}), abs(v{vO+6})
v_max_f32 v{vT1}, v{vT1}, abs(v{vO+7})
v_cmp_nlt_f32 vcc, v{vO+8}, s{sC0}
v_cmp_nlt_f32 s[{sEx}:{sEx+1}], v{vT1}, s{sC1}""")
for p in range(8): e(f"v_mul_f32 v{vO+p}, v{vO+p}, v{vO+10}")
e(f"s_or_b64 vcc, vcc, s[{sEx}:{sEx+1}]")
for p in range(4): e(f"v_cvt_pk_bf16_f32 v{vO+p}, v{vO+2*p}, v{vO+2*p+1}")
for p in range(4): e(f"v_min_u32 v{vO+p}, -2, v{vO+p}")
e("s_cbranch_vccnz Lfallback\nLok:" if "--noside" not in sys.argv and "--dx" not in sys.argv else "Lok:")
emit_seq([("o", f"buffer_store_dwordx4 {vr(vO,4)}, v{vL16}, {sr(SWS,4)}, s{sOp} offen sc1")])
stamp(6)

def o_loads():
    for k in range(8):
        e(f"buffer_load_dwordx4 {vr(vOf+4*k,4)}, v{vL16}, {sr(SWS,4)}, s{sOc if k<4 else sOc2} offen offset:{1024*(k%4)} sc1")
def reduce_read(acc):
    for q in range(4):
        e(f"ds_read_b128 {vr(acc+8*q,4)}, v{vRr} offset:{2048*q}\nds_read_b128 {vr(acc+8*q+4,4)}, v{vRr} offset:{2048*q+1024}")
def reduce_sum(acc):
    for p in range(0, 8, 2):
        e(pk("v_pk_add_f32", acc+p, [('p', acc+p), ('p', acc+8+p)]))
        e(pk("v_pk_add_f32", acc+16+p, [('p', acc+16+p), ('p', acc+24+p)]))
    for p in range(0, 8, 2): e(pk("v_pk_add_f32", acc+p, [('p', acc+p), ('p', acc+16+p)]))
e(vwait_s("x"))
for p in range(4):
    e(f"v_lshlrev_b32 v{vXr+2*p}, 16, v{vWf[0]+p}\nv_and_b32 v{vXr+1+2*p}, 0xffff0000, v{vWf[0]+p}")
e("s_setprio 0\ns_barrier")
stamp(8)
o_loads()
reduce_read(vAf[0])
vWo = 168
WOF = [168+8*k for k in range(7)] + [vWf[1]]
e("s_waitcnt lgkmcnt(0)")
for k in range(3):
    for x in w_reads(22+k, WOF[k]): e(x)
reduce_sum(vAf[0])
for p in range(8): e(f"v_mul_f32 v{vAf[0]+8+p}, {f2u(-1.4426950408889634):#x}, v{vAf[0]+p}")
for p in range(8): e(f"v_exp_f32 v{vAf[0]+8+p}, v{vAf[0]+8+p}")
for k in range(3, 6):
    for x in w_reads(22+k, WOF[k]): e(x)
for p in range(8): e(f"v_add_f32 v{vAf[0]+8+p}, 1.0, v{vAf[0]+8+p}")
for p in range(8): e(f"v_rcp_f32 v{vAf[0]+8+p}, v{vAf[0]+8+p}")
for k in range(6, 8):
    for x in w_reads(22+k, WOF[k]): e(x)
for p in range(8): e(f"v_mul_f32 v{vAf[0]+p}, v{vAf[0]+p}, v{vAf[0]+8+p}")
e("s_barrier")
stamp(9)
e(f"s_mov_b32 s{sT0}, 0\nLow:\ns_waitcnt vmcnt(0)")
e(f"v_max3_u32 v{vT1}, v{vOf}, v{vOf+1}, v{vOf+2}")
for p in range(3, 31, 2): e(f"v_max3_u32 v{vT1}, v{vT1}, v{vOf+p}, v{vOf+p+1}")
e(f"""v_max_u32 v{vT1}, v{vT1}, v{vOf+31}
v_cmp_eq_u32 vcc, -1, v{vT1}
s_add_u32 s{sT0}, s{sT0}, 1
s_cmp_ge_u32 s{sT0}, 100000
s_cbranch_vccz Lod
s_cbranch_scc1 Lod""")
o_loads()
e("s_branch Low\nLod:\ns_waitcnt lgkmcnt(0)")
stamp(7)
for k in range(8): e(mfma(vAs[0], WOF[k], vOf+4*k, "0" if k == 0 else None))
wr = [f"ds_write_b128 v{vRw}, {vr(vAs[0]+4*q,4)} offset:{ASL*(q//2)+1024*(q%2)}" for q in range(8)]
m1 = [mfma(vAs[1], WOF[k]+4, vOf+4*k, "0" if k == 0 else None) for k in range(8)]
for x in m1[:3] + ["s_nop 8"] + interleave(m1[3:], wr[:4]) + ["s_nop 10"] + wr[4:]: e(x)
stamp(10)
e("s_waitcnt lgkmcnt(0)\ns_barrier")
reduce_read(vAs[0])
e("s_waitcnt lgkmcnt(0)")
reduce_sum(vAs[0])
for p in range(0, 8, 2): e(pk("v_pk_mul_f32", vAs[0]+p, [('p', vAs[0]+p), ('p', vAf[0]+p)]))
e("s_nop 1")
for p in range(4): e(f"v_permlane32_swap_b32 v{vAs[0]+p}, v{vAs[0]+4+p}")
e("s_nop 1")
for p in range(0, 8, 2): e(pk("v_pk_add_f32", vAs[0]+p, [('p', vAs[0]+p), ('p', vXr+p)]))
for p in range(4): e(f"v_cvt_pk_bf16_f32 v{vAs[0]+p}, v{vAs[0]+2*p}, v{vAs[0]+2*p+1}")
e(f"buffer_store_dwordx4 {vr(vAs[0],4)}, v{vRa}, {sr(SOUT,4)}, s{sXf} offen")
if "--busy1" in sys.argv: busy(1)
stamp(11)
if RT: e(f"s_waitcnt vmcnt(0)\ns_memrealtime s[100:101]\ns_waitcnt lgkmcnt(0)\nv_mov_b32 v0, s100\nbuffer_store_dword v0, off, {sr(SWS,4)}, s{sPo} offset:56")
e("Lend:\ns_endpgm")

e("Lfallback:")
e(f"""s_cmp_lg_u32 s{sRetry}, 0
s_cbranch_scc1 Lok
s_mov_b32 s{sRetry}, 1
s_mov_b32 s{sSt}, 0
v_mov_b32 v{vT1}, 0xff800000
Lfb1:
buffer_load_dwordx4 {vr(vKf[0],4)}, v{vL16}, {sr(SWS,4)}, s{sSt} offen sc1
s_waitcnt vmcnt(0)""")
e(mfma(vS[0], vKf[0], vQ, "0"))
e("s_nop 11")
for p in range(0, 16, 2): e(f"v_max3_f32 v{vT1}, v{vT1}, v{vS[0]+p}, v{vS[0]+p+1}")
e(f"""s_add_u32 s{sSt}, s{sSt}, {KVT}
s_cmp_lt_u32 s{sSt}, {64*KVT}
s_cbranch_scc1 Lfb1
v_mov_b32 v{vT2}, v{vT1}
s_nop 1
v_permlane32_swap_b32 v{vT1}, v{vT2}
s_nop 1
v_max_f32 v{vT1}, v{vT1}, v{vT2}""")
for r in range(16): e(f"v_sub_f32 v{vC+r}, 0, v{vT1}")
for r in range(12): e(f"v_mov_b32 v{vO+r}, 0")
e(f"""v_subrev_u32 v{vAv}, {48*KVT}, v{vAv}
s_mov_b32 s{sSt}, 0
Lfb2:
buffer_load_dwordx4 {vr(vKf[0],4)}, v{vL16}, {sr(SWS,4)}, s{sSt} offen sc1
buffer_load_dwordx4 {vr(vVl[0],4)}, v{vAv}, {sr(SWS,4)}, s{sSt} offen sc1
buffer_load_dwordx4 {vr(vVh,4)}, v{vAv}, {sr(SWS,4)}, s{sSt} offen offset:528 sc1
s_waitcnt vmcnt(0)""")
e(mfma(vS[0], vKf[0], vQ, vr(vC, 16)))
e("s_nop 11")
for i in range(16): e(f"v_exp_f32 v{vS[0]+i}, v{vS[0]+i}")
e("s_nop 1")
e(smf(vO, vVl[0], vS[0], vIdx)); e(smf(vO, vVh, vS[0]+8, vIdx))
e(f"""s_add_u32 s{sSt}, s{sSt}, {KVT}
s_cmp_lt_u32 s{sSt}, {64*KVT}
s_cbranch_scc1 Lfb2
s_branch Lfin""")

L += ['.section .rodata,"a"', ".p2align 6", f".amdhsa_kernel {NAME}_kernel",
      "  .amdhsa_next_free_vgpr 256", "  .amdhsa_next_free_sgpr 102", "  .amdhsa_accum_offset 256",
      "  .amdhsa_group_segment_fixed_size 0", "  .amdhsa_kernarg_size 96", "  .amdhsa_user_sgpr_count 2",
      "  .amdhsa_user_sgpr_kernarg_segment_ptr 1", "  .amdhsa_system_sgpr_workgroup_id_x 1", ".end_amdhsa_kernel"]
open(OUT, "w").write("\n".join(L) + "\n")
print("wrote", OUT, len(L), "lines")
```

```python
import sys, struct
NAME = "recurrent_scan__grouped_kv_mqa__geglu_ffn__prompt"
PROF = "--prof" in sys.argv
OUT = [a for a in sys.argv[1:] if not a.startswith("--")]
OUT = OUT[0] if OUT else f"cdna_kernels/{NAME}.s"

L = []
def e(s):
    for ln in s.split("\n"):
        if not ln.strip(): continue
        L.append(("    " + ln.strip()) if not ln.strip().endswith(":") else ln.strip())
def f2u(x): return struct.unpack("<I", struct.pack("<f", x))[0]
def vr(a, n): return f"v[{a}:{a+n-1}]"
def sr(a, n): return f"s[{a}:{a+n-1}]"

KVT = 2080
KVIMG = 0
HIMG = 135168
OIMG = HIMG + 64*88*1024
PROFO = OIMG + 64*32*1024
WS_BYTES = PROFO + 256*8*16*8
CNT_KV = 0
CNT_H = 64
CNT_O = 128
STG = 45056
XOFF, GOFF, UOFF, QOFF = 0, 16384, 28672, 40960
STGK, QOFFK, NBK = 24832, 20736, 5
QIMG = 135168
STATM = 160768
CSUM = 162816
MRX = 159744
ZERO = 163712
FLAG = 163776
LDS_BYTES = 163840
SX, SWQ, SWK, SWV, SWO, SWG, SWD, SOUT, SDBG, SWS = 4, 8, 12, 16, 20, 24, 28, 32, 36, 40
sI, sJ, sW, sW4 = 44, 45, 46, 47
sXo, sWo, sQo, sLb = 48, 49, 50, 51
sMx, sMw, sMq = 52, 53, 54
sSt, sDl, sT0, sT1, sT2, sT3 = 55, 56, 57, 58, 59, 60
sTB, sCS, sRetry, sRb = 61, 62, 63, 3
sEx = 88
sTm = 90
sPo = 92
sC0, sC1, sC2, sC3 = 94, 95, 96, 97
sOp = 98
TOUCH = int("--touch" in sys.argv)
vLane, vH, vT0, vT1, vT2, vT3 = 1, 2, 3, 4, 5, 6
vXa0, vXa1, vWa0, vWa1, vWa2, vQa = 7, 8, 9, 10, 11, 12
vRX = 13
vRW, vRQ = 17, 18
vSel = 20
vCs = 24
vF = 32
vAcc = 96
vSt = 160
vQ = 8; vKf = [12, 16]; vVl = [20, 24]; vVh = 28
vS = [32, 48]; vC = 64
vWf = [80, 88, 96]
vAf = [104, 120]
vHf = 136
vO = 224
vIdx, vAk, vAv, vDa, vL16, vRa, vPoll, vAq = 240, 241, 242, 243, 244, 245, 246, 247
vRd = 248
vRw, vRr = 254, 255
vOf = 136
vAs = [32, 48]
vXr = 64
sKq, sTt, sHo, sDo, sDm, sHc, sXf, sOc, sOc2, sHs = 64, 65, 66, 67, 68, 69, 70, 71, 72, 73
ASL = 8320
def aslot(n): return ASL*n
SP = [135168, 143360, 151552]
GSLOT = SP + [aslot(0), aslot(1), aslot(2), aslot(3), aslot(4), aslot(5)]
GSLOT += SP + [aslot(0), aslot(6), aslot(7)]
GSLOT += [aslot(1), aslot(2), aslot(3), aslot(4), aslot(5), aslot(8), aslot(9)]
GSLOT += SP + [aslot(0), aslot(10), aslot(11), aslot(12), aslot(13)]
RED = aslot(1)

nstamp = [0]
def stamp(k):
    if not PROF: return
    e(f"""s_memtime s[{sTm}:{sTm+1}]
    s_waitcnt lgkmcnt(0)
    v_mov_b32 v0, s{sTm}
    buffer_store_dword v0, off, {sr(SWS,4)}, s{sPo} offset:{4*k}""")
    if k in RTS:
        e(f"""s_memrealtime s[{sTm}:{sTm+1}]
        s_waitcnt lgkmcnt(0)
        v_mov_b32 v0, s{sTm}
        buffer_store_dword v0, off, {sr(SWS,4)}, s{sPo} offset:{4*RTS[k]}""")
RTS = {12: 24, 1: 25, 5: 26, 6: 27, 11: 28}

def tick(acc):
    if not PROF or "--notick" in sys.argv: return ""
    r = f"s_memtime s[{sTm}:{sTm+1}]\ns_waitcnt lgkmcnt(0)\n"
    if acc is not None: r += f"s_sub_u32 s99, s{sTm}, s99\ns_add_u32 s{acc}, s{acc}, s99\n"
    return r + f"s_mov_b32 s99, s{sTm}"

def interleave(main, fill):
    out = []; n = len(main); m = len(fill); k = 0
    for i, a in enumerate(main):
        out.append(a)
        t = (m * (i + 1)) // n
        out += fill[k:t]; k = t
    return out

def mfma(d, a, b, c=None):
    c = vr(d, 16) if c is None else c
    return f"v_mfma_f32_32x32x16_bf16 {vr(d,16)}, {vr(a,4)}, {vr(b,4)}, {c}"
def mfma16(d, a, b): return f"v_mfma_f32_16x16x32_bf16 {vr(d,4)}, {vr(a,4)}, {vr(b,4)}, {vr(d,4)}"
def smf(d, a, b, idx): return f"v_smfmac_f32_32x32x32_bf16 {vr(d,16)}, {vr(a,4)}, {vr(b,8)}, v{idx}"

def poll(cnt_off_sreg_or_imm, target, tag):
    e(f"v_mov_b32 v{vT0}, {cnt_off_sreg_or_imm}")
    e(f"s_mov_b32 s{sT0}, 0")
    e(f"""Lpoll_{tag}:
    buffer_load_dword v{vT1}, v{vT0}, {sr(SDBG,4)}, 0 offen sc1
    s_waitcnt vmcnt(0)
    v_readfirstlane_b32 s{sT1}, v{vT1}
    s_add_u32 s{sT0}, s{sT0}, 1
    s_cmp_ge_u32 s{sT1}, {target}
    s_cbranch_scc1 Lpolld_{tag}
    s_cmp_ge_u32 s{sT0}, 100000
    s_cbranch_scc1 Lpolld_{tag}
    s_sleep 6
    s_branch Lpoll_{tag}
    Lpolld_{tag}:""")

def signal(cnt_off, tag):
    e(f"""s_cmp_lg_u32 s{sW}, 0
    s_cbranch_scc1 Lsig_{tag}
    v_mov_b32 v{vT0}, {cnt_off}
    v_mov_b32 v{vT1}, 1
    s_mov_b64 exec, 1
    buffer_atomic_add v{vT1}, v{vT0}, {sr(SDBG,4)}, 0 offen sc1
    s_mov_b64 exec, -1
    Lsig_{tag}:""")

hdr = open(f"cdna_kernels/{NAME}.s.ref").read().split("\n")
hdr = [h for h in hdr[:15] if h.startswith(";") and "@launch" not in h]
L += hdr
L.append(f"; @launch grid=(256,1,1) block=(512,1,1) lds={LDS_BYTES}")
L += ['.amdgcn_target "amdgcn-amd-amdhsa--gfx950"', ".text", f".globl {NAME}_kernel", ".p2align 8",
      f".type {NAME}_kernel,@function"]
e(f"{NAME}_kernel:")
RT = PROF and "--notick" in sys.argv
if RT: e("s_memrealtime s[100:101]\ns_memtime s[98:99]")
e(f"""s_cmp_ge_u32 s2, 256
s_cbranch_scc1 Lend
s_load_dwordx16 s[64:79], s[0:1], 0
s_load_dwordx8 s[80:87], s[0:1], 64
v_and_b32 v{vLane}, 63, v0
v_lshrrev_b32 v{vT0}, 6, v0
v_lshrrev_b32 v{vH}, 5, v{vLane}
v_readfirstlane_b32 s{sW}, v{vT0}
s_and_b32 s{sT0}, s2, 7
s_lshr_b32 s{sT1}, s2, 3
s_and_b32 s{sI}, s{sT0}, 1
s_lshl_b32 s{sI}, s{sI}, 3
s_and_b32 s{sT2}, s{sT1}, 7
s_add_u32 s{sI}, s{sI}, s{sT2}
s_lshr_b32 s{sJ}, s{sT0}, 1
s_lshl_b32 s{sJ}, s{sJ}, 2
s_lshr_b32 s{sT3}, s{sT1}, 3
s_sub_u32 s{sJ}, s{sJ}, s{sT3}
s_add_u32 s{sJ}, s{sJ}, 3
s_and_b32 s{sTB}, s{sT0}, 3
s_lshl_b32 s{sTB}, s{sTB}, 3
s_add_u32 s{sTB}, s{sTB}, s{sT2}
s_lshr_b32 s{sCS}, s{sT0}, 2
s_lshl_b32 s{sCS}, s{sCS}, 2
s_add_u32 s{sCS}, s{sCS}, s{sT3}
s_and_b32 s{sW4}, s{sW}, 3""")
e(f"""v_lshrrev_b32 v{vT0}, 3, v{vLane}
v_lshlrev_b32 v{vT0}, 10, v{vT0}
v_and_b32 v{vT1}, 7, v{vLane}
v_lshrrev_b32 v{vT2}, 4, v{vLane}
v_xor_b32 v{vT1}, v{vT1}, v{vT2}
v_lshl_add_u32 v{vXa0}, v{vT1}, 4, v{vT0}
v_xor_b32 v{vXa1}, 64, v{vXa0}
v_add_u32 v{vXa1}, {8192-1024}, v{vXa1}""")
for k, r in enumerate((vWa0, vWa1, vWa2)):
    e(f"""v_add_u32 v{vT0}, {64*k}, v{vLane}
    v_mul_u32_u24 v{vT1}, 43691, v{vT0}
    v_lshrrev_b32 v{vT1}, 19, v{vT1}
    v_mul_u32_u24 v{vT2}, 12, v{vT1}
    v_sub_u32 v{vT0}, v{vT0}, v{vT2}
    v_mul_u32_u24 v{vT1}, 2752, v{vT1}
    v_lshl_add_u32 v{r}, v{vT0}, 4, v{vT1}""")
    if k: e(f"v_subrev_u32 v{r}, {1024*k}, v{r}")
e(f"""v_lshrrev_b32 v{vT0}, 2, v{vLane}
v_lshlrev_b32 v{vT0}, 10, v{vT0}
v_and_b32 v{vT1}, 3, v{vLane}
v_lshl_add_u32 v{vQa}, v{vT1}, 4, v{vT0}""")
e(f"""s_lshl_b32 s{sXo}, s{sI}, 17
s_lshl_b32 s{sT0}, s{sW}, 14
s_add_u32 s{sXo}, s{sXo}, s{sT0}
s_mul_i32 s{sT0}, s{sJ}, 96
s_min_u32 s{sT0}, s{sT0}, 1280
s_lshl_b32 s{sT0}, s{sT0}, 1
s_mul_i32 s{sWo}, s{sW4}, {16*2752}
s_add_u32 s{sWo}, s{sWo}, s{sT0}
s_lshl_b32 s{sQo}, s{sW4}, 14
s_lshl_b32 s{sT0}, s{sJ}, 6
s_add_u32 s{sQo}, s{sQo}, s{sT0}
s_lshl_b32 s{sMx}, s{sW}, 11
s_mul_i32 s{sMw}, s{sW}, 3072
s_add_u32 s{sMw}, s{sMw}, {GOFF}
s_lshl_b32 s{sMq}, s{sW4}, 10
s_add_u32 s{sMq}, s{sMq}, {QOFF}
s_mov_b32 s{sLb}, 0
s_mov_b32 s{sRetry}, 0
s_mov_b32 s{sC3}, {(-2*STG) & 0xffffffff}
s_waitcnt lgkmcnt(0)""")
def srd(d, p, nbytes):
    e(f"s_mov_b32 s{d}, s{p}\ns_mov_b32 s{d+1}, s{p+1}\ns_mov_b32 s{d+2}, {nbytes}\ns_mov_b32 s{d+3}, 0x20000")
srd(SX, 64, 2048*1024); srd(SWQ, 66, 512*1024)
e(f"s_cmp_ge_u32 s{sW}, 4\ns_cselect_b32 s{SWG}, s78, s76\ns_cselect_b32 s{SWG+1}, s79, s77\ns_mov_b32 s{SWG+2}, {512*2752}\ns_mov_b32 s{SWG+3}, 0x20000")
srd(SWS, 86, WS_BYTES)
srd(SWK, 68, 16384); srd(SWV, 70, 16384); srd(SWO, 72, 512*1024)
srd(SWD, 80, 1376*1024); srd(SOUT, 82, 2048*1024); srd(SDBG, 84, 256)
if PROF:
    e(f"s_lshl_b32 s{sPo}, s2, 3\ns_add_u32 s{sPo}, s{sPo}, s{sW}\ns_lshl_b32 s{sPo}, s{sPo}, 7\ns_add_u32 s{sPo}, s{sPo}, {PROFO}")
stamp(0)
if RT: e(f"s_nop 1\nv_mov_b32 v0, s100\nbuffer_store_dword v0, off, {sr(SWS,4)}, s{sPo} offset:60\ns_nop 1\nv_mov_b32 v0, s98\nbuffer_store_dword v0, off, {sr(SWS,4)}, s{sPo} offset:16")
elif PROF: e("s_mov_b32 s100, 0\ns_mov_b32 s101, 0")
def dma_groups(kind):
    gx = [f"s_add_u32 m0, s{sLb}, s{sMx}", "s_nop 0",
          f"buffer_load_dwordx4 v{vXa0}, {sr(SX,4)}, s{sXo} offen lds"]
    gx2 = [f"buffer_load_dwordx4 v{vXa1}, {sr(SX,4)}, s{sXo} offen offset:1024 lds", f"s_add_u32 s{sXo}, s{sXo}, 128"]
    w0 = [f"s_add_u32 m0, s{sLb}, s{sMw}", "s_nop 0", f"buffer_load_dwordx4 v{vWa0}, {sr(SWG,4)}, s{sWo} offen lds"]
    w1 = [f"buffer_load_dwordx4 v{vWa1}, {sr(SWG,4)}, s{sWo} offen offset:1024 lds"]
    w2 = [f"buffer_load_dwordx4 v{vWa2}, {sr(SWG,4)}, s{sWo} offen offset:2048 lds", f"s_add_u32 s{sWo}, s{sWo}, {64*2752}"]
    q = [f"s_add_u32 m0, s{sLb}, s{sMq}", "s_nop 0", f"buffer_load_dwordx4 v{vQa}, {sr(SWQ,4)}, s{sQo} offen lds",
         f"s_add_u32 s{sQo}, s{sQo}, 65536"]
    stg, nb = (STGK, NBK) if kind[-1] == "K" else (STG, 3)
    adv = [f"s_add_u32 s{sLb}, s{sLb}, {stg}", f"s_cmp_ge_u32 s{sLb}, {nb*stg}", f"s_cselect_b32 s{sLb}, 0, s{sLb}"]
    if kind == "L": return [gx+gx2, w0+w1, w2, q+adv]
    if kind == "H": return [gx+gx2, w0, w1, w2+adv]
    if kind == "HK": return [gx, gx2, w0+[f"s_add_u32 s{sWo}, s{sWo}, 2048"], adv]
    if kind == "LK": return [gx, gx2, q, adv]
def dma_stage(kind): return sum(dma_groups(kind), [])
NDMA = {"L": 6, "H": 5, "LK": 3, "HK": 3}
NX = {"L": TOUCH, "H": TOUCH, "LK": 0, "HK": 0}

e(f"""s_cmp_eq_u32 s{sJ}, 15
s_cbranch_scc1 Lkvcu
s_cmp_ge_u32 s{sW}, 4
s_cbranch_scc1 LproH""")

def common_init(kind):
    e(f"""v_and_b32 v{vT0}, 31, v{vLane}
    v_lshrrev_b32 v{vT1}, 1, v{vT0}
    v_and_b32 v{vT1}, 7, v{vT1}
    v_xor_b32 v{vT1}, v{vT1}, v{vH}
    v_lshlrev_b32 v{vT0}, 7, v{vT0}""")
    if kind == "L": e(f"s_and_b32 s{sT0}, s{sW}, 1\ns_lshl_b32 s{sT0}, s{sT0}, 13")
    elif kind == "KV": e(f"s_lshl_b32 s{sT0}, s{sW}, 14")
    else: e(f"s_lshl_b32 s{sT0}, s{sW4}, 12")
    e(f"v_add_u32 v{vT0}, s{sT0}, v{vT0}")
    for ks in range(4):
        e(f"v_xor_b32 v{vT2}, {2*ks}, v{vT1}\nv_lshl_add_u32 v{vRX+ks}, v{vT2}, 4, v{vT0}")
    e(f"""v_bfe_u32 v{vT0}, v{vLane}, 2, 2
    v_lshl_add_u32 v{vT0}, v{vH}, 3, v{vT0}
    v_bfe_u32 v{vT1}, v{vLane}, 4, 1
    v_and_b32 v{vT2}, 3, v{vLane}
    v_lshlrev_b32 v{vT2}, 3, v{vT2}
    v_lshl_add_u32 v{vT3}, v{vT1}, 5, v{vT2}
    v_lshl_add_u32 v{vRQ}, v{vT0}, 6, v{vT3}""")
    if kind == "KV":
        e(f"""v_lshlrev_b32 v{vT1}, 14, v{vT1}
        v_lshl_add_u32 v{vRW}, v{vT0}, 5, v{vT2}
        s_lshr_b32 s{sT0}, s{sW}, 2
        s_lshl_b32 s{sT0}, s{sT0}, 13
        s_add_u32 s{sT1}, s{sT0}, 131072
        v_add3_u32 v{vRW}, v{vRW}, v{vT1}, s{sT1}
        s_add_u32 s{sT1}, s{sT1}, s{sT0}
        v_add_u32 v{vRQ}, s{sT1}, v{vRQ}""")
    else:
        e(f"v_mul_u32_u24 v{vRW}, 192, v{vT0}\nv_add_u32 v{vRW}, v{vRW}, v{vT3}")
        if kind == "L": e(f"s_lshr_b32 s{sT0}, s{sW}, 1\ns_lshl_b32 s{sT0}, s{sT0}, 6\nv_add_u32 v{vRW}, s{sT0}, v{vRW}")
        else: e(f"v_add_u32 v{vRW}, 128, v{vRW}")
    e(f"""v_bfe_u32 v{vT0}, v{vLane}, 4, 1
    v_and_b32 v{vT1}, 15, v{vLane}
    v_cmp_eq_u32 vcc, v{vT0}, v{vT1}
    v_mov_b32 v{vT2}, 0x3f803f80
    s_nop 0
    v_cndmask_b32 v{vSel}, 0, v{vT2}, vcc""")
    for k in range(1, 4): e(f"v_mov_b32 v{vSel+k}, v{vSel}")
    for r in list(range(vCs, vCs+4)) + list(range(vAcc, vAcc+(64 if kind == 'L' else 48))) + list(range(vSt, vSt+4)):
        e(f"v_mov_b32 v{r}, 0")

def stats_ops(x, regs=range(4)):
    r = []
    for k in regs:
        lo, hi = vSt+4+2*(k & 1), vSt+5+2*(k & 1)
        r += [f"v_lshlrev_b32 v{lo}, 16, v{x+k}", f"v_and_b32 v{hi}, 0xffff0000, v{x+k}",
              f"v_add_f32 v{vSt}, v{vSt}, v{lo}", f"v_add_f32 v{vSt+1}, v{vSt+1}, v{hi}",
              f"v_fmac_f32 v{vSt+2}, v{lo}, v{lo}", f"v_fmac_f32 v{vSt+3}, v{hi}, v{hi}"]
    return r

def tr(d, a, off): return [f"ds_read_b64_tr_b16 {vr(d,2)}, v{a} offset:{off}"]
def p1_reads(kind, ks, F):
    if "--noread" in sys.argv: return []
    if kind == "L":
        return [f"ds_read_b128 {vr(F,4)}, v{vRX+ks}"] + tr(F+8, vRW, GOFF+(16*ks)*192) + tr(F+10, vRW, GOFF+(16*ks+4)*192) + \
               tr(F+12, vRW, UOFF+(16*ks)*192) + tr(F+14, vRW, UOFF+(16*ks+4)*192) + \
               [f"ds_read_b128 {vr(F+4,4)}, v{vRX+ks} offset:4096"]
    if kind == "H":
        return [f"ds_read_b128 {vr(F,4)}, v{vRX+ks}"] + tr(F+4, vRQ, QOFF+(16*ks)*64) + tr(F+6, vRQ, QOFF+(16*ks+4)*64) + \
               tr(F+8, vRW, GOFF+(16*ks)*192) + tr(F+10, vRW, GOFF+(16*ks+4)*192) + \
               tr(F+12, vRW, UOFF+(16*ks)*192) + tr(F+14, vRW, UOFF+(16*ks+4)*192)
    if kind == "HK":
        return [f"ds_read_b128 {vr(F,4)}, v{vRX+ks}"] + tr(F+8, vRW, GOFF+(16*ks)*32) + tr(F+10, vRW, GOFF+(16*ks+4)*32)
    if kind == "LK":
        return [f"ds_read_b128 {vr(F,4)}, v{vRX+ks}"] + tr(F+4, vRQ, QOFFK+(16*ks)*64) + tr(F+6, vRQ, QOFFK+(16*ks+4)*64)
def p1_comp(kind, var, F):
    if kind == "L":
        m = [mfma(vAcc, F+8, F), mfma(vAcc+16, F+12, F), mfma16(vCs, F+8+4*(var & 1), vSel), mfma(vAcc+32, F+8, F+4), mfma(vAcc+48, F+12, F+4)]
        return m, stats_ops(F+4*(var >> 1), (2, 3))
    if kind == "H":
        m = [mfma(vAcc, F+4, F), mfma(vAcc+16, F+8, F), mfma(vAcc+32, F+12, F)]
        if var < 3: m.insert(1, mfma16(vCs, F+4+4*var, vSel))
        return m, stats_ops(F, (0, 1))
    if kind == "HK":
        return [mfma(vAcc+16, F+8, F), mfma16(vCs, F+8, vSel), mfma(vAcc+32, F, F+8)], stats_ops(F, (0, 1))
    if kind == "LK":
        return [mfma(vAcc, F+4, F), mfma16(vCs, F+4, vSel)], stats_ops(F, (2, 3))

BARX = "s_nop 0" if "--nobar" in sys.argv else "s_barrier"
NST = 208 if "--rep" in sys.argv else 8
def spread(m, fill):
    w = [16 if "16x16" in x else 32 for x in m]
    tot = sum(c for c, _ in fill); W = sum(w)
    out = []; k = 0; acc = 0; cw = 0
    for x, wx in zip(m, w):
        out.append(x); cw += wx
        while k < len(fill) and (acc + fill[k][0]/2) * W <= tot * cw:
            out.append(fill[k][1]); acc += fill[k][0]; k += 1
    out += [t for _, t in fill[k:]]
    return out

def p1_loop(kind, var, done_label):
    tag = f"{kind}{var}"
    n = NDMA[kind]
    dg = dma_groups(kind)
    kv = kind[-1] == "K"
    stg, nb = (STGK, NBK) if kv else (STG, 3)
    LA = nb - 1
    if kind[0] == "H" and "--noprio" not in sys.argv: e("s_setprio 1")
    e(f"s_mov_b32 s{sSt}, 0\ns_mov_b32 s{sRb}, 0\ns_mov_b64 vcc, -1\ns_waitcnt vmcnt({(LA-1)*n+NX[kind]})\ns_barrier")
    stamp(12)
    def comp(F):
        m0, v0 = p1_comp(kind, var, F); m1, v1 = p1_comp(kind, var, F+16)
        if "--nostat" in sys.argv: v0 = v1 = ["s_nop 0"]*5
        if "--nomfma" in sys.argv: m0 = m1 = ["s_nop 0"]*2
        if "--nocs" in sys.argv: m0 = [x for x in m0 if "16x16" not in x]; m1 = [x for x in m1 if "16x16" not in x]
        return m0+m1, v0+v1
    def dblk(i, g): return (4*len(g)+8, "\n".join([f"s_cbranch_vccz Lnd{i}_{tag}"] + g + [f"Lnd{i}_{tag}:"]))
    rd = p1_reads(kind, 0, vF) + p1_reads(kind, 1, vF+16)
    for x in rd + sum(dg, []): e(x)
    e(f"s_branch Lp1h_{tag}")
    e(f".p2align 3\nLp1_{tag}:")
    m, va = comp(vF+32)
    hv = len(va)//2
    fill = [(6, x) for x in rd] + [dblk(0, dg[0])] + [(4, x) for x in va[:hv]] + [dblk(1, dg[1])] + [(4, x) for x in va[hv:]] + [dblk(2, dg[2]+dg[3])]
    for x in spread(m, fill): e(x)
    e(f"Lp1h_{tag}:\ns_waitcnt lgkmcnt(0)")
    rd = p1_reads(kind, 2, vF+32) + p1_reads(kind, 3, vF+48)
    m, va = comp(vF)
    ctl = (16, f"s_add_u32 s{sRb}, s{sRb}, 1\ns_cmp_eq_u32 s{sRb}, {nb}\ns_cselect_b32 s{sDl}, s{sC3}, {stg}\ns_cselect_b32 s{sRb}, 0, s{sRb}")
    adr = [(4, f"v_add_u32 v{r}, s{sDl}, v{r}") for r in list(range(vRX, vRX+4)) + ([vRW] if kind != "LK" else []) + ([vRQ] if kind in ("H", "LK") else [])]
    ctl2 = f"s_add_u32 s{sSt}, s{sSt}, 1\ns_cmp_lt_u32 s{sSt}, {8-LA}\ns_cselect_b64 vcc, -1, 0\ns_cmp_gt_u32 s{sSt}, {8-LA}"
    sync = f"s_cbranch_scc1 Lp1w_{tag}\ns_waitcnt vmcnt({(LA-1)*n}) lgkmcnt(0)\nLp1x_{tag}:\n{BARX}\nLp1y_{tag}:"
    k = 2
    nv = 10
    for x in spread(m[:-k], [(6, x) for x in rd] + [ctl] + adr + [(4, x) for x in va[:-nv]]): e(x)
    e(ctl2); e(sync)
    for x in spread(m[-k:], [(4, x) for x in va[-nv:]]): e(x)
    e(f"s_cmp_lg_u32 s{sSt}, {NST}\ns_cbranch_scc1 Lp1_{tag}")
    if kind == "H":
        e(f"v_mov_b32 v{vPoll}, {CNT_KV}\nbuffer_load_dword v{vPoll}, v{vPoll}, {sr(SDBG,4)}, 0 offen sc1")
    m, va = comp(vF+32)
    for x in spread(m, [(4, x) for x in va]): e(x)
    e(f"s_branch {done_label}")
    e(f"Lp1w_{tag}:\ns_waitcnt lgkmcnt(0)\ns_cmp_eq_u32 s{sSt}, {NST}\ns_cbranch_scc1 Lp1y_{tag}")
    for st in range(9-LA, 7):
        e(f"s_waitcnt vmcnt({(7-st)*n})\ns_cmp_eq_u32 s{sSt}, {st}\ns_cbranch_scc1 Lp1x_{tag}")
    e(f"s_waitcnt vmcnt(0)\ns_branch Lp1x_{tag}")

def o_prod_off(dst):
    e(f"""s_lshl_b32 s{sT0}, s{sI}, 2
    s_lshr_b32 s{sT1}, s{sW}, 1
    s_add_u32 s{sT0}, s{sT0}, s{sT1}
    s_lshl_b32 s{sT0}, s{sT0}, 5
    s_lshl_b32 s{sT1}, s{sJ}, 1
    s_and_b32 s{dst}, s{sW}, 1
    s_add_u32 s{sT1}, s{sT1}, s{dst}
    s_lshr_b32 s{dst}, s{sT1}, 2
    s_add_u32 s{sT0}, s{sT0}, s{dst}
    s_and_b32 s{sT1}, s{sT1}, 3
    s_lshl_b32 s{sT1}, s{sT1}, 3
    s_add_u32 s{sT0}, s{sT0}, s{sT1}
    s_lshl_b32 s{sT0}, s{sT0}, 10
    s_add_u32 s{dst}, s{sT0}, {OIMG}""")

def v_lane_addr(d):
    e(f"""v_and_b32 v{d}, 15, v{vLane}
    v_lshlrev_b32 v{d}, 4, v{d}
    v_lshl_add_u32 v{d}, v{vH}, 8, v{d}
    s_mov_b32 exec_lo, 0xffff0000
    s_mov_b32 exec_hi, 0xffff0000
    v_mov_b32 v{d}, 512""")
def early_init():
    o_prod_off(sOp)
    v_lane_addr(vAv)
    e(f"""s_mov_b32 exec_lo, 0xffee0000
    s_mov_b32 exec_hi, 0xffee0000
    v_mov_b32 v{vAv}, 0x4000000
    s_mov_b64 exec, -1
    v_add_u32 v{vAv}, 1024, v{vAv}
    v_lshlrev_b32 v{vAk}, 4, v{vLane}
    v_lshlrev_b32 v{vL16}, 4, v{vLane}
    v_mov_b32 v{vIdx}, 0xdddd
    v_lshrrev_b32 v{vT0}, 3, v{vLane}
    v_lshlrev_b32 v{vT0}, 10, v{vT0}
    v_and_b32 v{vT1}, 7, v{vLane}
    v_bfe_u32 v{vT2}, v{vLane}, 4, 1
    v_lshlrev_b32 v{vT2}, 2, v{vT2}
    v_xor_b32 v{vT1}, v{vT1}, v{vT2}
    v_lshl_add_u32 v{vDa}, v{vT1}, 4, v{vT0}
    s_lshl_b32 s{sDo}, s{sW}, 13
    s_lshl_b32 s{sT1}, s{sCS}, 7
    s_add_u32 s{sDo}, s{sDo}, s{sT1}
    s_lshl_b32 s{sDm}, s{sW}, 10
    s_lshr_b32 s{sKq}, s{sW}, 1
    s_and_b32 s{sTt}, s{sW}, 1
    s_lshl_b32 s{sT0}, s{sTB}, 1
    s_add_u32 s{sT2}, s{sT0}, s{sTt}
    s_mul_i32 s{sHo}, s{sT2}, 88
    s_mul_i32 s{sT0}, s{sKq}, 22
    s_add_u32 s{sHo}, s{sHo}, s{sT0}
    s_lshl_b32 s{sHo}, s{sHo}, 10
    s_add_u32 s{sHo}, s{sHo}, {HIMG}
    s_lshl_b32 s{sT0}, s{sT2}, 2
    s_add_u32 s{sT0}, s{sT0}, s{sKq}
    s_lshl_b32 s{sT0}, s{sT0}, 13
    s_add_u32 s{sOc}, s{sT0}, {OIMG}
    s_add_u32 s{sOc2}, s{sOc}, 4096
    s_lshl_b32 s{sT0}, s{sT2}, 15
    s_add_u32 s{sT0}, s{sT0}, s{sT1}
    s_lshl_b32 s{sT1}, s{sKq}, 5
    s_add_u32 s{sXf}, s{sT0}, s{sT1}
    s_lshr_b32 s{sHc}, s{sTB}, 1
    s_lshl_b32 s{sHc}, s{sHc}, 2
    s_add_u32 s{sHc}, s{sHc}, {CNT_H}
    s_lshl_b32 s{sHs}, s{sI}, 2
    s_add_u32 s{sHs}, s{sHs}, {CNT_H}
    s_add_u32 s{sT0}, s{sDm}, {QIMG}
    v_add_u32 v{vAq}, s{sT0}, v{vL16}
    v_and_b32 v{vT0}, 31, v{vLane}
    v_lshlrev_b32 v{vT0}, 10, v{vT0}
    v_lshl_add_u32 v{vRa}, v{vH}, 4, v{vT0}
    v_bfe_u32 v{vT0}, v{vLane}, 2, 2
    v_lshl_add_u32 v{vT0}, v{vH}, 2, v{vT0}
    v_lshlrev_b32 v{vT0}, 7, v{vT0}
    v_bfe_u32 v{vT1}, v{vLane}, 4, 1
    v_lshl_add_u32 v{vT0}, v{vT1}, 5, v{vT0}
    v_and_b32 v{vT1}, 3, v{vLane}
    v_lshl_add_u32 v{vT0}, v{vT1}, 3, v{vT0}
    v_bfe_u32 v{vT1}, v{vLane}, 3, 1
    v_lshl_add_u32 v{vT0}, v{vT1}, 6, v{vT0}
    s_lshl_b32 s{sT0}, s{sKq}, 11
    v_add_u32 v{vRd}, s{sT0}, v{vT0}
    v_xor_b32 v{vRd+1}, 64, v{vRd}
    v_add_u32 v{vRd+2}, 0xe000, v{vRd}
    v_add_u32 v{vRd+3}, 0xe000, v{vRd+1}
    v_add_u32 v{vRd+4}, 0x1c000, v{vRd}
    v_add_u32 v{vRd+5}, 0x1c000, v{vRd+1}
    s_mul_i32 s{sT1}, s{sTt}, {4*ASL}
    s_add_u32 s{sT1}, s{sT1}, {RED}
    s_add_u32 s{sT0}, s{sT0}, s{sT1}
    v_add_u32 v{vRw}, s{sT0}, v{vL16}
    s_mul_i32 s{sT0}, s{sKq}, {ASL}
    s_add_u32 s{sT0}, s{sT0}, s{sT1}
    v_add_u32 v{vRr}, s{sT0}, v{vL16}""")
    for r in range(12): e(f"v_mov_b32 v{vO+r}, 0")

def prologue(kind):
    nb = NBK if kind[-1] == "K" else 3
    for x in dma_stage(kind): e(x)
    common_init(kind)
    for _ in range(nb-2):
        for x in dma_stage(kind): e(x)
    early_init()
    if kind in ("L", "H") and TOUCH: touch(kind)
def sentinel(r):
    for k in range(4): e(f"v_mov_b32 v{r+k}, -1")
    e(f"buffer_store_dwordx4 {vr(r,4)}, v{vL16}, {sr(SWS,4)}, s{sOp} offen sc1")

def touch(kind):
    t = f"Lt{kind}"
    e(f"s_and_b32 s{sT2}, s{sI}, 7\ns_lshl_b32 s{sT2}, s{sT2}, 5\ns_add_u32 s{sT2}, s{sT2}, 256")
    for v in range(1, 4): e(f"s_cmp_eq_u32 s{sW4}, {v}\ns_cbranch_scc1 {t}{v}")
    e(f"""v_lshrrev_b32 v{vT0}, 1, v{vLane}
    v_mul_u32_u24 v{vT0}, 2752, v{vT0}
    v_and_b32 v{vT1}, 1, v{vLane}
    v_lshl_add_u32 v{vT0}, v{vT1}, 7, v{vT0}
    s_mul_i32 s{sT0}, s{sJ}, 96
    s_min_u32 s{sT0}, s{sT0}, 1280
    s_lshl_b32 s{sT0}, s{sT0}, 1
    s_mul_i32 s{sT2}, s{sT2}, 2752
    s_add_u32 s{sT0}, s{sT0}, s{sT2}
    buffer_load_dword v{vPoll}, v{vT0}, {sr(SWG,4)}, s{sT0} offen
    s_branch {t}e""")
    if kind == "L":
        e(f"""{t}1:
        v_and_b32 v{vT0}, 31, v{vLane}
        v_lshlrev_b32 v{vT0}, 10, v{vT0}
        s_lshl_b32 s{sT2}, s{sT2}, 10
        s_lshl_b32 s{sT0}, s{sJ}, 6
        s_add_u32 s{sT0}, s{sT0}, s{sT2}
        buffer_load_dword v{vPoll}, v{vT0}, {sr(SWQ,4)}, s{sT0} offen
        s_branch {t}e
        {t}2:
        {t}3:
        v_lshrrev_b32 v{vT0}, 2, v{vLane}
        v_lshlrev_b32 v{vT0}, 10, v{vT0}
        v_and_b32 v{vT1}, 3, v{vLane}
        v_lshl_add_u32 v{vT0}, v{vT1}, 7, v{vT0}
        s_lshl_b32 s{sT0}, s{sI}, 17
        s_and_b32 s{sT1}, s{sJ}, 3
        s_lshl_b32 s{sT1}, s{sT1}, 15
        s_add_u32 s{sT0}, s{sT0}, s{sT1}
        s_and_b32 s{sT1}, s{sW}, 1
        s_lshl_b32 s{sT1}, s{sT1}, 14
        s_add_u32 s{sT0}, s{sT0}, s{sT1}
        buffer_load_dword v{vPoll}, v{vT0}, {sr(SX,4)}, s{sT0} offen offset:512""")
    else:
        e(f"""{t}1:
        v_lshlrev_b32 v{vT0}, 15, v{vLane}
        buffer_load_dword v{vPoll}, v{vT0}, {sr(SWD,4)}, 0 offen
        s_branch {t}e
        {t}2:
        v_lshlrev_b32 v{vT0}, 15, v{vLane}
        buffer_load_dword v{vPoll}, v{vT0}, {sr(SWO,4)}, 0 offen
        s_branch {t}e
        {t}3:
        v_lshlrev_b32 v{vT0}, 17, v{vLane}
        buffer_load_dword v{vPoll}, v{vT0}, {sr(SWS,4)}, 0 offen""")
    e(f"{t}e:")

def cs_write(acc, slot_expr_sreg):
    e(f"""v_and_b32 v{vT0}, 1, v{vLane}
    v_lshlrev_b32 v{vT0}, 6, v{vT0}
    v_lshrrev_b32 v{vT1}, 4, v{vLane}
    v_lshl_add_u32 v{vT0}, v{vT1}, 4, v{vT0}
    v_add_u32 v{vT0}, {slot_expr_sreg}, v{vT0}
    s_mov_b32 exec_lo, 0x00030003
    s_mov_b32 exec_hi, 0x00030003
    ds_write_b128 v{vT0}, {vr(acc,4)}
    s_mov_b64 exec, -1""")

def stats_post(tile_sreg, part):
    e(f"""v_add_f32 v{vSt}, v{vSt}, v{vSt+1}
    v_add_f32 v{vSt+2}, v{vSt+2}, v{vSt+3}
    v_mov_b32 v{vSt+1}, v{vSt}
    v_mov_b32 v{vSt+3}, v{vSt+2}
    v_and_b32 v{vT0}, 31, v{vLane}
    s_lshl_b32 s{sT0}, s{tile_sreg}, 7
    v_permlane32_swap_b32 v{vSt}, v{vSt+1}
    v_permlane32_swap_b32 v{vSt+2}, v{vSt+3}
    s_add_u32 s{sT0}, s{sT0}, {STATM+1024*part}
    v_lshl_add_u32 v{vT0}, v{vT0}, 2, s{sT0}
    v_add_f32 v{vSt}, v{vSt}, v{vSt+1}
    v_add_f32 v{vSt+2}, v{vSt+2}, v{vSt+3}
    ds_write_b32 v{vT0}, v{vSt}
    ds_write_b32 v{vT0}, v{vSt+2} offset:512""")
def stats_read(d, addr, off):
    e(f"ds_read2st64_b32 {vr(d,2)}, v{addr} offset0:0 offset1:2" if off == 0 else f"ds_read2_b32 {vr(d,2)}, v{addr} offset0:{off//4} offset1:{(off+512)//4}")
    e(f"ds_read_b32 v{d+2}, v{addr} offset:{off+1024}\nds_read_b32 v{d+3}, v{addr} offset:{off+1536}")
def stats_fin(d, m, r):
    e(f"""v_add_f32 v{d}, v{d}, v{d+2}
    v_add_f32 v{d+1}, v{d+1}, v{d+3}
    v_mul_f32 v{m}, {f2u(1/512):#x}, v{d}
    v_mul_f32 v{d+1}, {f2u(1/512):#x}, v{d+1}
    v_fma_f32 v{d+1}, -v{m}, v{m}, v{d+1}
    v_max_f32 v{d+1}, 0, v{d+1}
    v_add_f32 v{d+1}, {f2u(1e-5):#x}, v{d+1}
    v_rsq_f32 v{r}, v{d+1}
    s_nop 0""")

C1 = -2*0.7978845608028654*1.4426950408889634
C3 = C1*0.044715
def gelu_consts(m, r, d):
    e(f"""v_sub_f32 v{d}, 0, v{m}
    v_mul_f32 v{d+3}, v{r}, v{r}
    v_mul_f32 v{d+1}, {f2u(C1):#x}, v{r}
    v_mul_f32 v{d+2}, {f2u(C3):#x}, v{r}
    v_mul_f32 v{d+2}, v{d+2}, v{d+3}
    v_rcp_f32 v{d+3}, v{d+3}""")
def bc(reg, pos, n):
    base = reg & ~1
    return vr(base, 2), reg & 1
def pk(op, d, srcs, neg=None):
    ops = []; lo = []; hi = []
    for t, r in srcs:
        if t == 'p': ops.append(vr(r, 2)); lo.append(0); hi.append(1)
        else: ops.append(vr(r & ~1, 2)); lo.append(r & 1); hi.append(r & 1)
    return f"{op} {vr(d,2)}, {', '.join(ops)} op_sel:[{','.join(map(str,lo))}] op_sel_hi:[{','.join(map(str,hi))}]"
def gelu_tile(g, u, csg, csu, k, tmp):
    for p in range(0, 16, 2):
        e(pk("v_pk_fma_f32", g+p, [('b', k), ('p', csg+p), ('p', g+p)]))
        e(pk("v_pk_fma_f32", u+p, [('b', k), ('p', csu+p), ('p', u+p)]))
    for p in range(0, 16, 2):
        e(pk("v_pk_mul_f32", tmp+p, [('p', g+p), ('p', g+p)]))
    for p in range(0, 16, 2):
        e(pk("v_pk_fma_f32", tmp+p, [('p', tmp+p), ('b', k+2), ('b', k+1)]))
    for p in range(0, 16, 2):
        e(pk("v_pk_mul_f32", tmp+p, [('p', tmp+p), ('p', g+p)]))
    for p in range(16): e(f"v_exp_f32 v{tmp+p}, v{tmp+p}")
    for p in range(0, 16, 2):
        e(pk("v_pk_mul_f32", u+p, [('p', u+p), ('p', g+p)]))
    for p in range(0, 16, 2):
        e(pk("v_pk_fma_f32", tmp+p, [('p', tmp+p), ('b', k+3), ('b', k+3)]))
    for p in range(16): e(f"v_rcp_f32 v{tmp+p}, v{tmp+p}")
    e("s_nop 0")
    for p in range(0, 16, 2):
        e(pk("v_pk_mul_f32", u+p, [('p', u+p), ('p', tmp+p)]))
    for p in range(8): e(f"v_cvt_pk_bf16_f32 v{g+p}, v{u+2*p}, v{u+2*p+1}")

def cs_read(d, slot_off):
    for q in range(4): e(f"ds_read_b128 {vr(d+4*q,4)}, v{vT3} offset:{slot_off+32*q}")

def lin_fold(acc, cs, negm, scale, n=16):
    for p in range(0, n, 2):
        e(pk("v_pk_fma_f32", acc+p, [('b', negm), ('p', cs+p), ('p', acc+p)]))
    for p in range(0, n, 2):
        e(pk("v_pk_mul_f32", acc+p, [('p', acc+p), ('b', scale)]))

def q_epilogue(cs):
    e(f"v_mul_f32 v{vSt+2}, {f2u(0.25*1.4426950408889634):#x}, v{vSt+1}")
    lin_fold(vAcc, cs, vSt+4, vSt+2)
    for p in range(8): e(f"v_cvt_pk_bf16_f32 v{vAcc+p}, v{vAcc+2*p}, v{vAcc+2*p+1}")
    e(f"""s_lshl_b32 s{sT0}, s{sW4}, 11
    s_add_u32 s{sT0}, s{sT0}, {QIMG}
    v_lshl_add_u32 v{vT0}, v{vLane}, 4, s{sT0}
    ds_write_b128 v{vT0}, {vr(vAcc,4)}
    ds_write_b128 v{vT0}, {vr(vAcc+4,4)} offset:1024""")

def h_off(dst, tile_add_sreg, unit_add):
    e(f"""s_lshl_b32 s{sT0}, s{sI}, 2
    s_add_u32 s{sT0}, s{sT0}, s{tile_add_sreg}
    s_mul_i32 s{sT0}, s{sT0}, 88
    s_mul_i32 s{sT1}, s{sJ}, 6
    s_min_u32 s{sT1}, s{sT1}, 80
    s_add_u32 s{sT1}, s{sT1}, {unit_add}
    s_lshr_b32 s{dst}, s{sT1}, 2
    s_add_u32 s{sT0}, s{sT0}, s{dst}
    s_and_b32 s{sT1}, s{sT1}, 3
    s_mul_i32 s{sT1}, s{sT1}, 22
    s_add_u32 s{sT0}, s{sT0}, s{sT1}
    s_lshl_b32 s{sT0}, s{sT0}, 10
    s_add_u32 s{dst}, s{sT0}, {HIMG}""")
def h_store(acc, so):
    e(f"buffer_store_dwordx4 {vr(acc,4)}, v{vT2}, {sr(SWS,4)}, s{so} offen sc1")
    e(f"s_add_u32 s{so}, s{so}, {22*1024}")
    e(f"buffer_store_dwordx4 {vr(acc+4,4)}, v{vT2}, {sr(SWS,4)}, s{so} offen sc1")
def kv_dma(tag):
    e(f"""s_lshl_b32 s{sT0}, s{sW4}, 10
    v_lshlrev_b32 v{vT0}, 4, v{vLane}
    Lkvd_{tag}:
    s_mov_b32 m0, s{sT0}
    s_nop 0
    buffer_load_dwordx4 v{vT0}, {sr(SWS,4)}, s{sT0} offen sc1 lds
    s_add_u32 s{sT0}, s{sT0}, 4096
    s_cmp_lt_u32 s{sT0}, {36*1024}
    s_cbranch_scc1 Lkvd_{tag}""")

prologue("L")
for v in range(1, 4): e(f"s_cmp_eq_u32 s{sW}, {v}\ns_cbranch_scc1 LL{v}")
for v in range(4):
    e(f"LL{v}:")
    p1_loop("L", v, "LepiL")
e("LepiL:")
stamp(1)
e(f"s_and_b32 s{sT2}, s{sW}, 1\ns_lshl_b32 s{sT2}, s{sT2}, 1\ns_lshr_b32 s{sT3}, s{sW}, 1\ns_add_u32 s{sT2}, s{sT2}, s{sT3}")
stats_post(sT2, 1)
e(f"s_lshl_b32 s{sT1}, s{sW}, 7\ns_add_u32 s{sT1}, s{sT1}, {CSUM+128}")
cs_write(vCs, f"s{sT1}")
e(f"""s_lshr_b32 s{sT0}, s{sW}, 1
s_lshl_b32 s{sT0}, s{sT0}, 8
s_add_u32 s{sT0}, s{sT0}, {CSUM+128}
v_lshl_add_u32 v{vT3}, v{vH}, 4, s{sT0}
s_and_b32 s{sT1}, s{sW}, 1
s_lshl_b32 s{sT1}, s{sT1}, 8
s_add_u32 s{sT1}, s{sT1}, {STATM}
v_and_b32 v{vT0}, 31, v{vLane}
v_lshl_add_u32 v{vT0}, v{vT0}, 2, s{sT1}
s_waitcnt lgkmcnt(0)
s_barrier""")
stats_read(vSt+12, vT0, 0); stats_read(vSt+16, vT0, 128)
cs_read(vF, 0); cs_read(vF+16, 128)
e(f"s_and_b32 s{sT3}, s{sW}, 1\ns_lshl_b32 s{sT3}, s{sT3}, 1\ns_and_b32 s{sC0}, s{sW}, 2")
h_off(sT2, sT3, f"s{sC0}")
e(f"s_add_u32 s{sT3}, s{sT2}, {88*1024}\nv_lshlrev_b32 v{vT2}, 4, v{vLane}\ns_waitcnt lgkmcnt(0)")
stats_fin(vSt+12, vSt, vSt+1); stats_fin(vSt+16, vSt+2, vSt+3)
gelu_consts(vSt, vSt+1, vSt+4); gelu_consts(vSt+2, vSt+3, vSt+8)
for tt in range(2):
    gelu_tile(vAcc+32*tt, vAcc+32*tt+16, vF, vF+16, vSt+4+4*tt, vSt+12)
    h_store(vAcc+32*tt, sT2 if tt == 0 else sT3)
e("s_branch Lp2")

e("LproH:")
prologue("H")
for v in range(1, 4): e(f"s_cmp_eq_u32 s{sW4}, {v}\ns_cbranch_scc1 LH{v}")
for v in range(4):
    e(f"LH{v}:")
    p1_loop("H", v, "LepiH")
e("LepiH:")
stamp(1)
stats_post(sW4, 0)
e(f"v_mov_b32 v{vT2}, v{vT0}")
e(f"""s_cmp_eq_u32 s{sW4}, 3
s_cbranch_scc1 LHnocs
s_add_u32 s{sT1}, s{sW4}, 4
s_cmp_eq_u32 s{sW4}, 0
s_cselect_b32 s{sT1}, 0, s{sT1}
s_lshl_b32 s{sT1}, s{sT1}, 7
s_add_u32 s{sT1}, s{sT1}, {CSUM}""")
cs_write(vCs, f"s{sT1}")
e(f"""LHnocs:
v_mov_b32 v{vT3}, {CSUM}
v_lshl_add_u32 v{vT3}, v{vH}, 4, v{vT3}
s_waitcnt lgkmcnt(0)
s_barrier""")
stats_read(vSt+12, vT2, 0)
cs_read(vAcc+48, 0); cs_read(vF, 5*128); cs_read(vF+16, 6*128)
h_off(sT2, sW4, 4)
e(f"v_lshlrev_b32 v{vT2}, 4, v{vLane}\ns_waitcnt lgkmcnt(0)")
stats_fin(vSt+12, vSt, vSt+1)
gelu_consts(vSt, vSt+1, vSt+4)
q_epilogue(vAcc+48)
e(f"s_waitcnt vmcnt(0)\nv_readfirstlane_b32 s{sRetry}, v{vPoll}\ns_cmp_lt_u32 s{sRetry}, 16\ns_cbranch_scc1 LHnodma")
kv_dma("a")
e("LHnodma:")
stamp(13)
gelu_tile(vAcc+16, vAcc+32, vF, vF+16, vSt+4, vSt+12)
h_store(vAcc+16, sT2)
e(f"s_cmp_lt_u32 s{sRetry}, 16\ns_cbranch_scc1 Lkvwait\ns_waitcnt vmcnt(2)\ns_branch Lp2")

e("Lkvcu:")
WKV = 131072
vXf, vWk = 32, 192
sXb = sMw
e(f"""s_lshl_b32 s{sT0}, s{sW}, 11
v_lshlrev_b32 v{vWa0}, 4, v{vLane}
s_add_u32 m0, s{sT0}, {WKV}
s_lshl_b32 s{sXb}, s{sW}, 14
buffer_load_dwordx4 v{vWa0}, {sr(SWV,4)}, s{sT0} offen lds
buffer_load_dwordx4 v{vWa0}, {sr(SWV,4)}, s{sT0} offen offset:1024 lds
s_add_u32 m0, s{sT0}, {WKV+16384}
s_lshl_b32 s{sXo}, s{sI}, 17
buffer_load_dwordx4 v{vWa0}, {sr(SWK,4)}, s{sT0} offen lds
buffer_load_dwordx4 v{vWa0}, {sr(SWK,4)}, s{sT0} offen offset:1024 lds
s_lshl_b32 s{sT0}, s{sW4}, 15
s_add_u32 s{sXo}, s{sXo}, s{sT0}
s_lshr_b32 s{sT3}, s{sW}, 2
s_lshl_b32 s{sT0}, s{sT3}, 9
s_add_u32 s{sXo}, s{sXo}, s{sT0}""")
def kvx_dma(c):
    return [f"""s_add_u32 m0, s{sXb}, {4096*c+2048*hf}
        s_add_u32 s{sT0}, s{sXo}, {128*c+16384*hf}
        buffer_load_dwordx4 v{vXa0}, {sr(SX,4)}, s{sT0} offen lds
        buffer_load_dwordx4 v{vXa1}, {sr(SX,4)}, s{sT0} offen offset:1024 lds""" for hf in range(2)]
for x in kvx_dma(0): e(x)
common_init("KV")
for x in kvx_dma(1): e(x)
e("s_waitcnt vmcnt(4)\ns_barrier")
stamp(12)
def kv_reads(c):
    r = []
    for ks in range(4):
        W = vWk + 16*(c & 1) + 4*ks
        r += [f"ds_read_b128 {vr(vXf+16*c+4*ks,4)}, v{vRX+ks} offset:{4096*c}"]
        r += tr(W, vRW, (64*c+16*ks)*32) + tr(W+2, vRW, (64*c+16*ks+4)*32)
    return r
for x in kv_reads(0): e(x)
for c in range(4):
    m = []; va = []
    for ks in range(4):
        X = vXf+16*c+4*ks; W = vWk + 16*(c & 1) + 4*ks
        m += [mfma(vAcc+16, W, X), mfma16(vCs, W, vSel), mfma(vAcc+32, X, W)]
        va += stats_ops(X)
    fill = [(4, x) for x in va]
    if c < 2: fill = [(16, x) for x in kvx_dma(c+2)] + fill
    if c < 3: fill = fill[:56] + [(4, f"s_waitcnt vmcnt({4 if c < 2 else 0})")] + [(6, x) for x in kv_reads(c+1)] + fill[56:]
    e("s_waitcnt lgkmcnt(0)")
    for x in spread(m, fill): e(x)
stamp(1)
e(f"""v_add_f32 v{vSt}, v{vSt}, v{vSt+1}
v_add_f32 v{vSt+2}, v{vSt+2}, v{vSt+3}
v_mov_b32 v{vSt+1}, v{vSt}
v_mov_b32 v{vSt+3}, v{vSt+2}
v_and_b32 v{vT2}, 31, v{vLane}
v_lshlrev_b32 v{vT2}, 2, v{vT2}
v_permlane32_swap_b32 v{vSt}, v{vSt+1}
v_permlane32_swap_b32 v{vSt+2}, v{vSt+3}
v_add_u32 v{vT1}, s{sXb}, v{vT2}
s_xor_b32 s{sT2}, s{sXb}, 65536
v_add_f32 v{vSt+20}, v{vSt}, v{vSt+1}
v_add_f32 v{vSt+21}, v{vSt+2}, v{vSt+3}
ds_write_b32 v{vT1}, v{vSt+20} offset:4096
ds_write_b32 v{vT1}, v{vSt+21} offset:4224
s_add_u32 s{sT1}, s{sXb}, 4352""")
cs_write(vCs, f"s{sT1}")
e(f"""v_add_u32 v{vT0}, s{sXb}, v{vWa0}
v_add_u32 v{vWa1}, s{sT2}, v{vWa0}
v_add_u32 v{vWa2}, s{sT2}, v{vT2}
v_lshl_add_u32 v{vT3}, v{vH}, 4, s{sXb}
s_lshl_b32 s{sT0}, s{sI}, 2
s_add_u32 s{sT0}, s{sT0}, s{sW4}
s_mul_i32 s{sC0}, s{sT0}, {KVT}
s_lshl_b32 s{sQo}, s{sW}, 16
s_add_u32 s{sQo}, s{sQo}, {64*15}
s_lshl_b32 s{sMq}, s{sW}, 12
s_add_u32 s{sMq}, s{sMq}, {WKV}
s_cmp_ge_u32 s{sW}, 4
s_cbranch_scc1 LkvH""")
def wq_dma():
    for k in range(4):
        e(f"s_add_u32 m0, s{sMq}, {1024*k}\ns_add_u32 s{sT0}, s{sQo}, {16384*k}\nbuffer_load_dwordx4 v{vQa}, {sr(SWQ,4)}, s{sT0} offen lds")
for q in range(4): e(f"ds_write_b128 v{vT0}, {vr(vAcc+32+4*q,4)} offset:{1024*q}")
e(f"v_xor_b32 v{vT1}, 0x10000, v{vT3}\ns_waitcnt lgkmcnt(0)\ns_barrier")
e(f"""ds_read_b32 v{vSt+22}, v{vWa2} offset:4096
ds_read_b32 v{vSt+23}, v{vWa2} offset:4224
ds_read_b128 {vr(vWk,4)}, v{vWa1}
ds_read_b128 {vr(vWk+4,4)}, v{vWa1} offset:1024
ds_read_b128 {vr(vSt+12,4)}, v{vT3} offset:{4352+64}
ds_read_b128 {vr(vSt+16,4)}, v{vT3} offset:{4352+96}
ds_read_b128 {vr(vWk+8,4)}, v{vT1} offset:{4352+64}
ds_read_b128 {vr(vWk+12,4)}, v{vT1} offset:{4352+96}""")
wq_dma()
e(f"""v_and_b32 v{vT0}, 0x33, v{vLane}
v_bfe_u32 v{vT1}, v{vLane}, 2, 1
v_lshl_or_b32 v{vT0}, v{vT1}, 3, v{vT0}
v_bfe_u32 v{vT1}, v{vLane}, 3, 1
v_lshl_or_b32 v{vT0}, v{vT1}, 2, v{vT0}
v_lshlrev_b32 v{vT0}, 4, v{vT0}
s_waitcnt lgkmcnt(0)""")
stats_fin(vSt+20, vSt, vSt+1)
e(f"v_sub_f32 v{vSt+4}, 0, v{vSt}")
for p in range(0, 8, 2):
    e(pk("v_pk_add_f32", vAcc+24+p, [('p', vAcc+24+p), ('p', vWk+p)]))
    e(pk("v_pk_add_f32", vSt+12+p, [('p', vSt+12+p), ('p', vWk+8+p)]))
lin_fold(vAcc+24, vSt+12, vSt+4, vSt+1, 8)
for p in range(4): e(f"v_cvt_pk_bf16_f32 v{vAcc+16+p}, v{vAcc+24+2*p}, v{vAcc+25+2*p}")
e(f"buffer_store_dwordx4 {vr(vAcc+16,4)}, v{vT0}, {sr(SWS,4)}, s{sC0} offen sc1\ns_branch LkvS")
e("LkvH:")
e(f"ds_write_b128 v{vT0}, {vr(vAcc+24,4)}\nds_write_b128 v{vT0}, {vr(vAcc+28,4)} offset:1024")
e(f"v_add_u32 v{vT1}, s{sXb}, v{vT2}\ns_waitcnt lgkmcnt(0)\ns_barrier")
e(f"""ds_read_b32 v{vSt+22}, v{vWa2} offset:4096
ds_read_b32 v{vSt+23}, v{vWa2} offset:4224
ds_read_b32 v{vSt+6}, v{vT1} offset:4352
ds_read_b32 v{vSt+7}, v{vWa2} offset:4352""")
for q in range(4): e(f"ds_read_b128 {vr(vAcc+48+4*q,4)}, v{vWa1} offset:{1024*q}")
wq_dma()
e("s_waitcnt lgkmcnt(0)")
stats_fin(vSt+20, vSt, vSt+1)
e(f"ds_write_b32 v{vT1}, v{vSt} offset:4608\nds_write_b32 v{vT1}, v{vSt+1} offset:4736\ns_waitcnt lgkmcnt(0)")
for q in range(4):
    e(f"ds_read_b128 {vr(vWk+4*q,4)}, v{vT3} offset:{4608+32*q}\nds_read_b128 {vr(vWk+16+4*q,4)}, v{vT3} offset:{4736+32*q}")
e(f"v_add_f32 v{vSt+6}, v{vSt+6}, v{vSt+7}\nv_sub_f32 v{vSt+6}, 0, v{vSt+6}")
for p in range(0, 16, 2): e(pk("v_pk_add_f32", vAcc+32+p, [('p', vAcc+32+p), ('p', vAcc+48+p)]))
e("s_waitcnt lgkmcnt(0)")
for p in range(0, 16, 2): e(pk("v_pk_fma_f32", vAcc+32+p, [('p', vWk+p), ('b', vSt+6), ('p', vAcc+32+p)]))
for p in range(0, 16, 2): e(pk("v_pk_mul_f32", vAcc+32+p, [('p', vAcc+32+p), ('p', vWk+16+p)]))
for p in range(8): e(f"v_cvt_pk_bf16_f32 v{vAcc+32+p}, v{vAcc+32+2*p}, v{vAcc+33+2*p}")
v_lane_addr(vT0)
for p in range(8): e(f"v_mov_b32 v{vAcc+32+p}, 0x3f803f80")
e(f"""s_mov_b32 exec_lo, 0x1ffff
s_mov_b32 exec_hi, 0xffff
buffer_store_dwordx4 {vr(vAcc+32,4)}, v{vT0}, {sr(SWS,4)}, s{sC0} offen offset:1024 sc1
buffer_store_dwordx4 {vr(vAcc+36,4)}, v{vT0}, {sr(SWS,4)}, s{sC0} offen offset:{1024+528} sc1
s_mov_b64 exec, -1
LkvS:""")
for r in range(4): e(f"v_mov_b32 v{vCs+r}, 0")
e("s_waitcnt vmcnt(0)\ns_barrier")
signal(CNT_KV, "kv")
stamp(13)
early_init()
def q_reads(c):
    r = []
    for ks in range(4):
        W = vWk + 16*(c & 1) + 4*ks
        r += tr(W, vRQ, (64*c+16*ks)*64) + tr(W+2, vRQ, (64*c+16*ks+4)*64)
    return r
for x in q_reads(0): e(x)
for c in range(4):
    m = []
    for ks in range(4):
        X = vXf+16*c+4*ks; W = vWk + 16*(c & 1) + 4*ks
        m += [mfma(vAcc, W, X), mfma16(vCs, W, vSel)]
    e("s_waitcnt lgkmcnt(0)")
    for x in interleave(m[:4], q_reads(c+1) if c < 3 else []) + m[4:]: e(x)
e(f"""s_or_b32 s{sT2}, s{sXb}, {65536+8192}
s_lshr_b32 s{sT3}, s{sW}, 2
s_lshl_b32 s{sT3}, s{sT3}, 7
s_add_u32 s{sT1}, s{sT2}, s{sT3}
s_add_u32 s{sT1}, s{sT1}, 4096
v_add_u32 v{vWa1}, s{sT2}, v{vWa0}
v_lshl_add_u32 v{vT3}, v{vH}, 4, s{sT2}
s_nop 3""")
cs_write(vCs, f"s{sT1}")
e(f"s_cmp_ge_u32 s{sW}, 4\ns_cbranch_scc1 LkvH2\ns_waitcnt lgkmcnt(0)\ns_barrier")
for q in range(4): e(f"ds_read_b128 {vr(vWk+4*q,4)}, v{vWa1} offset:{1024*q}")
cs_read(vAcc+48, 4096); cs_read(vWk+16, 4096+128)
e("s_waitcnt lgkmcnt(0)")
for p in range(0, 16, 2):
    e(pk("v_pk_add_f32", vAcc+p, [('p', vAcc+p), ('p', vWk+p)]))
    e(pk("v_pk_add_f32", vAcc+48+p, [('p', vAcc+48+p), ('p', vWk+16+p)]))
q_epilogue(vAcc+48)
e("s_branch Lp2\nLkvH2:")
for q in range(4): e(f"ds_write_b128 v{vWa1}, {vr(vAcc+4*q,4)} offset:{1024*q}")
e("s_waitcnt lgkmcnt(0)\ns_barrier")
e("Lkvwait:")
stamp(16)
poll(CNT_KV, 16, "kv")
stamp(17)
kv_dma("b")
e("s_waitcnt vmcnt(0)")

vm = []
def vtag(tag): vm.append(tag)
def vwait_s(tag):
    idx = max(i for i, t in enumerate(vm) if t == tag)
    return f"s_waitcnt vmcnt({min(63, len(vm)-1-idx)})"
def w_dma(G):
    srdw, row = (SWD, 64*G) if G < 22 else (SWO, 64*(G-22))
    return [f"s_add_u32 m0, s{sDm}, {GSLOT[G]}", f"s_add_u32 s{sT0}, s{sDo}, {row*1024}",
            (f"g{G}", f"buffer_load_dwordx4 v{vDa}, {sr(srdw,4)}, s{sT0} offen lds")]
def w_reads(G, F):
    a = GSLOT[G]; win = a // 0xe000; off = a - win*0xe000
    r0, r1 = vRd+2*win, vRd+2*win+1
    return tr(F, r0, off) + tr(F+2, r0, off+1024) + tr(F+4, r1, off) + tr(F+6, r1, off+1024)
def emit_seq(seq):
    for x in seq:
        if isinstance(x, list): emit_seq(x)
        elif isinstance(x, tuple): vtag(x[0]); e(x[1])
        elif callable(x): e(x())
        else: e(x)
e("Lp2:")
stamp(2)
sentinel(vC); vtag("sent")
e("s_waitcnt lgkmcnt(0)\ns_barrier")
stamp(3)
e(f"""ds_read_b128 {vr(vQ,4)}, v{vAq}
ds_read_b128 {vr(vKf[0],4)}, v{vAk}
ds_read_b128 {vr(vKf[1],4)}, v{vAk} offset:{KVT}
ds_read_b128 {vr(vVl[0],4)}, v{vAv}
s_waitcnt lgkmcnt(2)""")
e(mfma(vS[0], vKf[0], vQ, "0"))
e("s_nop 11")
e(f"v_max3_f32 v{vT1}, v{vS[0]}, v{vS[0]+1}, v{vS[0]+2}")
for p in range(3, 15, 2): e(f"v_max3_f32 v{vT1}, v{vT1}, v{vS[0]+p}, v{vS[0]+p+1}")
e(f"""v_max_f32 v{vT1}, v{vT1}, v{vS[0]+15}
v_mov_b32 v{vT2}, v{vT1}
s_nop 1
v_permlane32_swap_b32 v{vT1}, v{vT2}
s_nop 1
v_max_f32 v{vT1}, v{vT1}, v{vT2}""")
for r in range(16): e(f"v_sub_f32 v{vC+r}, 0, v{vT1}")
for r in range(16): e(f"v_sub_f32 v{vS[0]+r}, v{vS[0]+r}, v{vT1}")
stamp(5)
side = {T: [] for T in range(64)}
xm = {T: [] for T in range(65)}
for n in range(12):
    side[n].append([f"s_add_u32 s{sT0}, s{sDm}, {(36+8*n)*1024}", f"s_mov_b32 m0, s{sT0}", "s_nop 0",
                    ("kv", f"buffer_load_dwordx4 v{vL16}, {sr(SWS,4)}, s{sT0} offen sc1 lds")])
for T0, Gs in ((8, range(0, 5)), (16, range(5, 7)), (24, range(7, 9)), (32, range(9, 15)), (40, range(15, 22)),
               (48, range(22, 28)), (56, range(28, 30))):
    for n, G in enumerate(Gs): side[T0 + (n//2 if T0 != 8 else n+2)].append(w_dma(G))
side[18].append([f"v_mov_b32 v{vPoll}, s{sHc}", ("poll", f"buffer_load_dword v{vPoll}, v{vPoll}, {sr(SDBG,4)}, 0 offen sc1")])
for i in range(22):
    T = 24 + (i*16)//22
    c = [f"s_add_u32 s{sC0}, s{sHo}, {1024*i}"] if i % 4 == 0 else []
    side[T].append(c + [(f"h{i}", f"buffer_load_dwordx4 {vr(vHf+4*i,4)}, v{vL16}, {sr(SWS,4)}, s{sC0} offen offset:{1024*(i%4)} sc1")])
lastm = {}
for T0, span, Gs in ((26, 6, range(0, 4)), (32, 8, range(4, 9)), (40, 8, range(9, 15)), (48, 8, range(15, 22))):
    k = len(Gs)
    for n, G in enumerate(Gs):
        F = vWf[G % 3]
        t0 = T0 + (2*n*span)//(2*k); t1 = T0 + ((2*n+1)*span)//(2*k)
        lastm[G] = t1+1
        assert G < 3 or t0 > lastm[G-3]
        for x in w_reads(G, F): side[t0].append([x])
        c0 = "0" if G == 0 else None
        w = (lambda g=G: vwait_s(f"h{g}"))
        m0, m1 = mfma(vAf[0], F, vHf+4*G, c0), mfma(vAf[1], F+4, vHf+4*G, c0)
        if G == 21:
            xm[t0+1].append([w, f"s_cmp_ge_u32 s{sKq}, 2", "s_cbranch_scc1 Lskip21", m0, m1, "Lskip21:"])
        else:
            xm[t0+1].append([w, m0]); xm[t1+1].append([m1])
for q in range(8):
    side[58 + (q*6)//8].append([f"ds_write_b128 v{vRw}, {vr(vAf[0]+4*q,4)} offset:{ASL*(q//2)+1024*(q%2)}"])
side[60].append([("x", f"buffer_load_dwordx4 {vr(vWf[0],4)}, v{vRa}, {sr(SX,4)}, s{sXf} offen")])
lastg = {16: "kv", 24: "g6", 32: "g8", 40: "g14", 48: "g21"}
for T in range(64):
    X = vS[T & 1]; Y = vS[(T+1) & 1]
    rel = T % 16
    e("s_waitcnt lgkmcnt(0)")
    if T and T % 8 == 0:
        if T == 8: e(vwait_s("sent"))
        if T in lastg: e(vwait_s(lastg[T]))
        if T == 24:
            e(vwait_s("poll"))
            e(f"v_readfirstlane_b32 s{sT1}, v{vPoll}\ns_cmp_ge_u32 s{sT1}, 16\ns_cbranch_scc1 Lhok")
            poll(f"s{sHc}", 16, "h")
            e("Lhok:")
        e("s_barrier")
        if T == 8: signal(f"s{sHs}", "h")
        if rel == 0: e(f"v_add_u32 v{vAk}, {16*KVT}, v{vAk}\nv_add_u32 v{vAv}, {16*KVT}, v{vAv}")
    if T % 2 == 0: e(f"s_setprio {3-(T%8)//2}")
    ex = [f"v_exp_f32 v{X+i}, v{X+i}" for i in range(16)]
    rd = [f"ds_read_b128 {vr(vVh,4)}, v{vAv} offset:{rel*KVT+528}"]
    if T+1 < 64: rd.append(f"ds_read_b128 {vr(vVl[(T+1)&1],4)}, v{vAv} offset:{(rel+1)*KVT}")
    if T+2 < 64: rd.append(f"ds_read_b128 {vr(vKf[T&1],4)}, v{vAk} offset:{(rel+2)*KVT}")
    seq = ex[0:2] + ([smf(vO, vVh, Y+8, vIdx)] if T else []) + interleave(ex[2:5], rd)
    if T+1 < 64: seq.append(mfma(Y, vKf[(T+1) & 1], vQ, vr(vC, 16)))
    x2 = xm[T]
    assert len(x2) <= 2
    if len(x2) == 2: tail = ex[5:8] + [x2[0]] + ex[8:11] + [smf(vO, vVl[T & 1], X, vIdx)] + ex[11:14] + [x2[1]] + ex[14:16]
    else: tail = ex[5:10] + [smf(vO, vVl[T & 1], X, vIdx)] + ex[10:14] + x2 + ex[14:16]
    if side[T]: tail = interleave(tail[:-3], side[T]) + tail[-3:]
    emit_seq(seq + tail)
assert not xm[64]
e("s_waitcnt lgkmcnt(0)\ns_nop 0")
e(smf(vO, vVh, vS[1]+8, vIdx))
e(f"s_mov_b32 s{sRetry}, 0")
e("Lfin:")
e(f"""s_nop 9
s_mov_b32 s{sC0}, {f2u(2.0**40):#x}
s_mov_b32 s{sC1}, {f2u(2.0**126):#x}
v_rcp_f32 v{vO+10}, v{vO+8}
v_max3_f32 v{vT1}, abs(v{vO}), abs(v{vO+1}), abs(v{vO+2})
v_max3_f32 v{vT1}, v{vT1}, abs(v{vO+3}), abs(v{vO+4})
v_max3_f32 v{vT1}, v{vT1}, abs(v{vO+5}), abs(v{vO+6})
v_max_f32 v{vT1}, v{vT1}, abs(v{vO+7})
v_cmp_nlt_f32 vcc, v{vO+8}, s{sC0}
v_cmp_nlt_f32 s[{sEx}:{sEx+1}], v{vT1}, s{sC1}""")
for p in range(8): e(f"v_mul_f32 v{vO+p}, v{vO+p}, v{vO+10}")
e(f"s_or_b64 vcc, vcc, s[{sEx}:{sEx+1}]")
for p in range(4): e(f"v_cvt_pk_bf16_f32 v{vO+p}, v{vO+2*p}, v{vO+2*p+1}")
for p in range(4): e(f"v_min_u32 v{vO+p}, -2, v{vO+p}")
e("s_cbranch_vccnz Lfallback\nLok:")
emit_seq([("o", f"buffer_store_dwordx4 {vr(vO,4)}, v{vL16}, {sr(SWS,4)}, s{sOp} offen sc1")])
stamp(6)

def o_loads():
    for k in range(8):
        e(f"buffer_load_dwordx4 {vr(vOf+4*k,4)}, v{vL16}, {sr(SWS,4)}, s{sOc if k<4 else sOc2} offen offset:{1024*(k%4)} sc1")
def reduce_read(acc):
    for q in range(4):
        e(f"ds_read_b128 {vr(acc+8*q,4)}, v{vRr} offset:{2048*q}\nds_read_b128 {vr(acc+8*q+4,4)}, v{vRr} offset:{2048*q+1024}")
def reduce_sum(acc):
    for p in range(0, 8, 2):
        e(pk("v_pk_add_f32", acc+p, [('p', acc+p), ('p', acc+8+p)]))
        e(pk("v_pk_add_f32", acc+16+p, [('p', acc+16+p), ('p', acc+24+p)]))
    for p in range(0, 8, 2): e(pk("v_pk_add_f32", acc+p, [('p', acc+p), ('p', acc+16+p)]))
e(vwait_s("x"))
for p in range(4):
    e(f"v_lshlrev_b32 v{vXr+2*p}, 16, v{vWf[0]+p}\nv_and_b32 v{vXr+1+2*p}, 0xffff0000, v{vWf[0]+p}")
e("s_setprio 0\ns_barrier")
stamp(8)
o_loads()
reduce_read(vAf[0])
vWo = 168
WOF = [168+8*k for k in range(7)] + [vWf[1]]
e("s_waitcnt lgkmcnt(0)")
for k in range(3):
    for x in w_reads(22+k, WOF[k]): e(x)
reduce_sum(vAf[0])
for p in range(8): e(f"v_mul_f32 v{vAf[0]+8+p}, {f2u(-1.4426950408889634):#x}, v{vAf[0]+p}")
for p in range(8): e(f"v_exp_f32 v{vAf[0]+8+p}, v{vAf[0]+8+p}")
for k in range(3, 6):
    for x in w_reads(22+k, WOF[k]): e(x)
for p in range(8): e(f"v_add_f32 v{vAf[0]+8+p}, 1.0, v{vAf[0]+8+p}")
for p in range(8): e(f"v_rcp_f32 v{vAf[0]+8+p}, v{vAf[0]+8+p}")
for k in range(6, 8):
    for x in w_reads(22+k, WOF[k]): e(x)
for p in range(8): e(f"v_mul_f32 v{vAf[0]+p}, v{vAf[0]+p}, v{vAf[0]+8+p}")
e("s_barrier")
stamp(9)
e(f"s_mov_b32 s{sT0}, 0\nLow:\ns_waitcnt vmcnt(0)")
e(f"v_max3_u32 v{vT1}, v{vOf}, v{vOf+1}, v{vOf+2}")
for p in range(3, 31, 2): e(f"v_max3_u32 v{vT1}, v{vT1}, v{vOf+p}, v{vOf+p+1}")
e(f"""v_max_u32 v{vT1}, v{vT1}, v{vOf+31}
v_cmp_eq_u32 vcc, -1, v{vT1}
s_add_u32 s{sT0}, s{sT0}, 1
s_cmp_ge_u32 s{sT0}, 100000
s_cbranch_vccz Lod
s_cbranch_scc1 Lod""")
o_loads()
e("s_branch Low\nLod:\ns_waitcnt lgkmcnt(0)")
stamp(7)
for k in range(8): e(mfma(vAs[0], WOF[k], vOf+4*k, "0" if k == 0 else None))
wr = [f"ds_write_b128 v{vRw}, {vr(vAs[0]+4*q,4)} offset:{ASL*(q//2)+1024*(q%2)}" for q in range(8)]
m1 = [mfma(vAs[1], WOF[k]+4, vOf+4*k, "0" if k == 0 else None) for k in range(8)]
for x in m1[:3] + ["s_nop 8"] + interleave(m1[3:], wr[:4]) + ["s_nop 10"] + wr[4:]: e(x)
stamp(10)
e("s_waitcnt lgkmcnt(0)\ns_barrier")
reduce_read(vAs[0])
e("s_waitcnt lgkmcnt(0)")
reduce_sum(vAs[0])
for p in range(0, 8, 2): e(pk("v_pk_mul_f32", vAs[0]+p, [('p', vAs[0]+p), ('p', vAf[0]+p)]))
e("s_nop 1")
for p in range(4): e(f"v_permlane32_swap_b32 v{vAs[0]+p}, v{vAs[0]+4+p}")
e("s_nop 1")
for p in range(0, 8, 2): e(pk("v_pk_add_f32", vAs[0]+p, [('p', vAs[0]+p), ('p', vXr+p)]))
for p in range(4): e(f"v_cvt_pk_bf16_f32 v{vAs[0]+p}, v{vAs[0]+2*p}, v{vAs[0]+2*p+1}")
e(f"buffer_store_dwordx4 {vr(vAs[0],4)}, v{vRa}, {sr(SOUT,4)}, s{sXf} offen")
stamp(11)
if RT: e(f"s_waitcnt vmcnt(0)\ns_memrealtime s[100:101]\ns_waitcnt lgkmcnt(0)\nv_mov_b32 v0, s100\nbuffer_store_dword v0, off, {sr(SWS,4)}, s{sPo} offset:56")
e("Lend:\ns_endpgm")

e("Lfallback:")
e(f"""s_cmp_lg_u32 s{sRetry}, 0
s_cbranch_scc1 Lok
s_mov_b32 s{sRetry}, 1
s_mov_b32 s{sSt}, 0
v_mov_b32 v{vT1}, 0xff800000
Lfb1:
buffer_load_dwordx4 {vr(vKf[0],4)}, v{vL16}, {sr(SWS,4)}, s{sSt} offen sc1
s_waitcnt vmcnt(0)""")
e(mfma(vS[0], vKf[0], vQ, "0"))
e("s_nop 11")
for p in range(0, 16, 2): e(f"v_max3_f32 v{vT1}, v{vT1}, v{vS[0]+p}, v{vS[0]+p+1}")
e(f"""s_add_u32 s{sSt}, s{sSt}, {KVT}
s_cmp_lt_u32 s{sSt}, {64*KVT}
s_cbranch_scc1 Lfb1
v_mov_b32 v{vT2}, v{vT1}
s_nop 1
v_permlane32_swap_b32 v{vT1}, v{vT2}
s_nop 1
v_max_f32 v{vT1}, v{vT1}, v{vT2}""")
for r in range(16): e(f"v_sub_f32 v{vC+r}, 0, v{vT1}")
for r in range(12): e(f"v_mov_b32 v{vO+r}, 0")
e(f"""v_subrev_u32 v{vAv}, {48*KVT}, v{vAv}
s_mov_b32 s{sSt}, 0
Lfb2:
buffer_load_dwordx4 {vr(vKf[0],4)}, v{vL16}, {sr(SWS,4)}, s{sSt} offen sc1
buffer_load_dwordx4 {vr(vVl[0],4)}, v{vAv}, {sr(SWS,4)}, s{sSt} offen sc1
buffer_load_dwordx4 {vr(vVh,4)}, v{vAv}, {sr(SWS,4)}, s{sSt} offen offset:528 sc1
s_waitcnt vmcnt(0)""")
e(mfma(vS[0], vKf[0], vQ, vr(vC, 16)))
e("s_nop 11")
for i in range(16): e(f"v_exp_f32 v{vS[0]+i}, v{vS[0]+i}")
e("s_nop 1")
e(smf(vO, vVl[0], vS[0], vIdx)); e(smf(vO, vVh, vS[0]+8, vIdx))
e(f"""s_add_u32 s{sSt}, s{sSt}, {KVT}
s_cmp_lt_u32 s{sSt}, {64*KVT}
s_cbranch_scc1 Lfb2
s_branch Lfin""")

L += ['.section .rodata,"a"', ".p2align 6", f".amdhsa_kernel {NAME}_kernel",
      "  .amdhsa_next_free_vgpr 256", "  .amdhsa_next_free_sgpr 102", "  .amdhsa_accum_offset 256",
      "  .amdhsa_group_segment_fixed_size 0", "  .amdhsa_kernarg_size 96", "  .amdhsa_user_sgpr_count 2",
      "  .amdhsa_user_sgpr_kernarg_segment_ptr 1", "  .amdhsa_system_sgpr_workgroup_id_x 1", ".end_amdhsa_kernel"]
open(OUT, "w").write("\n".join(L) + "\n")
print("wrote", OUT, len(L), "lines")
```

```python
import sys, struct
NAME = "recurrent_scan__grouped_kv_mqa__geglu_ffn__prompt"
PROF = "--prof" in sys.argv
OUT = [a for a in sys.argv[1:2] if not a.startswith("--")]
OUT = OUT[0] if OUT else f"cdna_kernels/{NAME}.s"

L = []
def e(s):
    for ln in s.split("\n"):
        if not ln.strip(): continue
        L.append(("    " + ln.strip()) if not ln.strip().endswith(":") else ln.strip())
def f2u(x): return struct.unpack("<I", struct.pack("<f", x))[0]
def vr(a, n): return f"v[{a}:{a+n-1}]"
def sr(a, n): return f"s[{a}:{a+n-1}]"

KVT = 2080
KVIMG = 0
HIMG = 135168
OIMG = HIMG + 64*88*1024
HFLG = OIMG + 64*32*1024
PROFO = HFLG + 256*128
WS_BYTES = PROFO + 256*8*256
CNT_KV = 0
KVRDY = 128
STG = 45056
XOFF, GOFF, UOFF, QOFF = 0, 16384, 28672, 40960
STGK, QOFFK, NBK = 24832, 20736, 5
QIMG = 135168
STATM = 160768
CSUM = 162816
MRX = 159744
ZERO = 163712
FLAG = 163776
LDS_BYTES = 163840
SX, SWQ, SWK, SWV, SWO, SWG, SWD, SOUT, SDBG, SWS = 4, 8, 12, 16, 20, 24, 28, 32, 36, 40
sI, sJ, sW, sW4 = 44, 45, 46, 47
sXo, sWo, sQo, sLb = 48, 49, 50, 51
sMx, sMw, sMq = 52, 53, 54
sSt, sDl, sT0, sT1, sT2, sT3 = 55, 56, 57, 58, 59, 60
sTB, sCS, sRetry, sRb = 61, 62, 63, 3
sEx = 88
sTm = 90
sPo = 92
sC0, sC1, sC2, sC3 = 94, 95, 96, 97
sOp = 98
TOUCH = int("--touch" in sys.argv)
vLane, vH, vT0, vT1, vT2, vT3 = 1, 2, 3, 4, 5, 6
vXa0, vXa1, vWa0, vWa1, vWa2, vQa = 7, 8, 9, 10, 11, 12
vRX = 13
vRW, vRQ = 17, 18
vSel = 20
vCs = 24
vF = 32
vAcc = 96
vSt = 160
vQ = 8; vKf = [12, 16]; vVl = [20, 24]; vVh = 28
vS = [32, 48]; vC = 64
vWf = [80, 88, 96]
vAf = [104, 120]
vHf = 136
vO = 224
vIdx, vAk, vAv, vDa, vL16, vRa = 240, 241, 242, 243, 244, 245
vPoll = 246
vAq = 7
vRd = 248
vRw, vRr = 254, 255
vOf = 136
vAs = [32, 48]
vXr = 64
sKq, sTt, sHo, sDo, sDm, sHc, sXf, sOc, sOc2, sHs = 64, 65, 66, 67, 68, 69, 70, 71, 72, 73
sNo = 86
ASL = 8320
def aslot(n): return ASL*n
SP = [135168, 143360, 151552]
GSLOT = SP + [aslot(n) for n in range(0, 8)]
GSLOT += SP + [aslot(n) for n in (0, 1, 2, 8, 9, 10, 11)]
GSLOT += [aslot(n) for n in (4, 5, 6, 7, 12, 13, 14, 15)] + [SP[0]]
RED = aslot(0)

nstamp = [0]
DBGT = "--dbgt" in sys.argv
DT = {0: 75, 12: 76, 1: 77, 2: 78, 3: 79, 6: 80, 9: 81, 7: 82, 11: 83}
def stamp(k):
    if DBGT and k in DT:
        e(f"s_memrealtime s[{sTm}:{sTm+1}]\ns_waitcnt lgkmcnt(0)\ns_sub_u32 s{DT[k]}, s{sTm}, s100")
        if k == 11:
            e(f"s_memtime s[{sTm}:{sTm+1}]\ns_waitcnt lgkmcnt(0)\ns_sub_u32 s84, s{sTm}, s92")
            e(f"s_cmp_lg_u32 s2, 64\ns_cbranch_scc1 Lend\ns_cmp_lg_u32 s{sW}, 4\ns_cbranch_scc1 Lend")
            for n, r in enumerate(range(75, 85)):
                e(f"v_mov_b32 v0, s{r}\nbuffer_store_dword v0, off, {sr(SDBG,4)}, 0 offset:{4+4*n}\ns_nop 1")
    if not PROF: return
    e(f"""s_memtime s[{sTm}:{sTm+1}]
    s_waitcnt lgkmcnt(0)
    v_mov_b32 v0, s{sTm}
    buffer_store_dword v0, off, {sr(SWS,4)}, s{sPo} offset:{4*k}""")
    if k in RTS:
        e(f"""s_memrealtime s[{sTm}:{sTm+1}]
        s_waitcnt lgkmcnt(0)
        v_mov_b32 v0, s{sTm}
        buffer_store_dword v0, off, {sr(SWS,4)}, s{sPo} offset:{4*RTS[k]}""")
RTS = {12: 24, 1: 25, 5: 26, 6: 27, 11: 28}

def tick(acc):
    if not PROF or "--notick" in sys.argv: return ""
    r = f"s_memtime s[{sTm}:{sTm+1}]\ns_waitcnt lgkmcnt(0)\n"
    if acc is not None: r += f"s_sub_u32 s99, s{sTm}, s99\ns_add_u32 s{acc}, s{acc}, s99\n"
    return r + f"s_mov_b32 s99, s{sTm}"

def interleave(main, fill):
    out = []; n = len(main); m = len(fill); k = 0
    for i, a in enumerate(main):
        out.append(a)
        t = (m * (i + 1)) // n
        out += fill[k:t]; k = t
    return out

def mfma(d, a, b, c=None):
    c = vr(d, 16) if c is None else c
    return f"v_mfma_f32_32x32x16_bf16 {vr(d,16)}, {vr(a,4)}, {vr(b,4)}, {c}"
def mfma16(d, a, b): return f"v_mfma_f32_16x16x32_bf16 {vr(d,4)}, {vr(a,4)}, {vr(b,4)}, {vr(d,4)}"
def smf(d, a, b, idx): return f"v_smfmac_f32_32x32x32_bf16 {vr(d,16)}, {vr(a,4)}, {vr(b,8)}, v{idx}"

def kv_poll_issue(): return f"buffer_load_dwordx2 {vr(vPoll,2)}, off, {sr(SDBG,4)}, 0 offset:{KVRDY} sc1"
def kv_poll_take():
    e(f"v_readfirstlane_b32 s{sNo}, v{vPoll}\nv_readfirstlane_b32 s{sNo+1}, v{vPoll+1}")
def kv_poll_loop():
    e(f"""s_mov_b32 s{sT0}, 0
    Lpoll_kv:
    {kv_poll_issue()}
    s_waitcnt vmcnt(0)""")
    kv_poll_take()
    e(f"""s_add_u32 s{sT0}, s{sT0}, 1
    s_cmp_lg_u32 s{sNo}, 0
    s_cbranch_scc1 Lpolld_kv
    s_cmp_ge_u32 s{sT0}, 100000
    s_cbranch_scc1 Lpolld_kv
    s_sleep 4
    s_branch Lpoll_kv
    Lpolld_kv:""")
def kv_signal():
    e(f"""s_cmp_lg_u32 s{sW}, 0
    s_cbranch_scc1 Lsig_kv
    v_mov_b32 v{vT1}, 1
    s_mov_b64 exec, 1
    buffer_atomic_add v{vT1}, off, {sr(SDBG,4)}, 0 offset:{CNT_KV} sc0 sc1
    s_memrealtime s[{sTm}:{sTm+1}]
    s_waitcnt vmcnt(0) lgkmcnt(0)
    v_readfirstlane_b32 s{sT0}, v{vT1}
    s_or_b32 s{sTm}, s{sTm}, 1
    v_mov_b32 v{vPoll}, s{sTm}
    v_mov_b32 v{vPoll+1}, s{sTm+1}
    s_cmp_lg_u32 s{sT0}, 15
    s_cbranch_scc1 Lsig_kv2
    buffer_store_dwordx2 {vr(vPoll,2)}, off, {sr(SDBG,4)}, 0 offset:{KVRDY} sc1
    Lsig_kv2:
    s_mov_b64 exec, -1
    Lsig_kv:""")
def h_poll_issue():
    return f"""v_and_b32 v{vPoll}, 15, v{vLane}
    v_lshlrev_b32 v{vPoll}, 7, v{vPoll}
    buffer_load_dwordx2 {vr(vPoll,2)}, v{vPoll}, {sr(SWS,4)}, s{sHc} offen sc1"""

hdr = open(f"cdna_kernels/{NAME}.s.ref").read().split("\n")
hdr = [h for h in hdr[:15] if h.startswith(";") and "@launch" not in h]
L += hdr
L.append(f"; @launch grid=(256,1,1) block=(512,1,1) lds={LDS_BYTES}")
L += ['.amdgcn_target "amdgcn-amd-amdhsa--gfx950"', ".text", f".globl {NAME}_kernel", ".p2align 8",
      f".type {NAME}_kernel,@function"]
e(f"{NAME}_kernel:")
RT = PROF and "--notick" in sys.argv
if RT: e("s_memrealtime s[100:101]\ns_memtime s[98:99]")
if DBGT: e("s_memrealtime s[100:101]\ns_memtime s[92:93]")
def busy(tag):
    e(f"s_mov_b32 s99, 16\nLbusy{tag}:")
    for i in range(64): e(f"v_exp_f32 v{200+i%8}, v{200+i%8}")
    e(f"s_sub_u32 s99, s99, 1\ns_cmp_lg_u32 s99, 0\ns_cbranch_scc1 Lbusy{tag}")
if "--busy0" in sys.argv: busy(0)
e(f"""s_cmp_ge_u32 s2, 256
s_cbranch_scc1 Lend
s_load_dwordx16 s[64:79], s[0:1], 0
s_load_dwordx8 s[80:87], s[0:1], 64
v_and_b32 v{vLane}, 63, v0
v_lshrrev_b32 v{vT0}, 6, v0
v_lshrrev_b32 v{vH}, 5, v{vLane}
v_readfirstlane_b32 s{sW}, v{vT0}
s_and_b32 s{sT0}, s2, 7
s_lshr_b32 s{sT1}, s2, 3
s_and_b32 s{sI}, s{sT0}, 1
s_lshl_b32 s{sI}, s{sI}, 3
s_and_b32 s{sT2}, s{sT1}, 7
s_add_u32 s{sI}, s{sI}, s{sT2}
s_lshr_b32 s{sJ}, s{sT0}, 1
s_lshl_b32 s{sJ}, s{sJ}, 2
s_lshr_b32 s{sT3}, s{sT1}, 3
s_sub_u32 s{sJ}, s{sJ}, s{sT3}
s_add_u32 s{sJ}, s{sJ}, 3
s_and_b32 s{sTB}, s{sT0}, 3
s_lshl_b32 s{sTB}, s{sTB}, 3
s_add_u32 s{sTB}, s{sTB}, s{sT2}
s_lshr_b32 s{sCS}, s{sT0}, 2
s_lshl_b32 s{sCS}, s{sCS}, 2
s_add_u32 s{sCS}, s{sCS}, s{sT3}
s_and_b32 s{sW4}, s{sW}, 3""")
e(f"""v_lshrrev_b32 v{vT0}, 3, v{vLane}
v_lshlrev_b32 v{vT0}, 10, v{vT0}
v_and_b32 v{vT1}, 7, v{vLane}
v_lshrrev_b32 v{vT2}, 4, v{vLane}
v_xor_b32 v{vT1}, v{vT1}, v{vT2}
v_lshl_add_u32 v{vXa0}, v{vT1}, 4, v{vT0}
v_xor_b32 v{vXa1}, 64, v{vXa0}
v_add_u32 v{vXa1}, {8192-1024}, v{vXa1}""")
for k, r in enumerate((vWa0, vWa1, vWa2)):
    e(f"""v_add_u32 v{vT0}, {64*k}, v{vLane}
    v_mul_u32_u24 v{vT1}, 43691, v{vT0}
    v_lshrrev_b32 v{vT1}, 19, v{vT1}
    v_mul_u32_u24 v{vT2}, 12, v{vT1}
    v_sub_u32 v{vT0}, v{vT0}, v{vT2}
    v_mul_u32_u24 v{vT1}, 2752, v{vT1}
    v_lshl_add_u32 v{r}, v{vT0}, 4, v{vT1}""")
    if k: e(f"v_subrev_u32 v{r}, {1024*k}, v{r}")
e(f"""v_lshrrev_b32 v{vT0}, 2, v{vLane}
v_lshlrev_b32 v{vT0}, 10, v{vT0}
v_and_b32 v{vT1}, 3, v{vLane}
v_lshl_add_u32 v{vQa}, v{vT1}, 4, v{vT0}""")
e(f"""s_lshl_b32 s{sXo}, s{sI}, 17
s_lshl_b32 s{sT0}, s{sW}, 14
s_add_u32 s{sXo}, s{sXo}, s{sT0}
s_mul_i32 s{sT0}, s{sJ}, 96
s_min_u32 s{sT0}, s{sT0}, 1280
s_lshl_b32 s{sT0}, s{sT0}, 1
s_mul_i32 s{sWo}, s{sW4}, {16*2752}
s_add_u32 s{sWo}, s{sWo}, s{sT0}
s_lshl_b32 s{sQo}, s{sW4}, 14
s_lshl_b32 s{sT0}, s{sJ}, 6
s_add_u32 s{sQo}, s{sQo}, s{sT0}
s_lshl_b32 s{sMx}, s{sW}, 11
s_mul_i32 s{sMw}, s{sW}, 3072
s_add_u32 s{sMw}, s{sMw}, {GOFF}
s_lshl_b32 s{sMq}, s{sW4}, 10
s_add_u32 s{sMq}, s{sMq}, {QOFF}
s_mov_b32 s{sLb}, 0
s_mov_b32 s{sRetry}, 0
s_mov_b32 s{sC3}, {(-2*STG) & 0xffffffff}
s_waitcnt lgkmcnt(0)""")
def srd(d, p, nbytes):
    e(f"s_mov_b32 s{d}, s{p}\ns_mov_b32 s{d+1}, s{p+1}\ns_mov_b32 s{d+2}, {nbytes}\ns_mov_b32 s{d+3}, 0x20000")
srd(SX, 64, 2048*1024); srd(SWQ, 66, 512*1024)
e(f"s_cmp_ge_u32 s{sW}, 4\ns_cselect_b32 s{SWG}, s78, s76\ns_cselect_b32 s{SWG+1}, s79, s77\ns_mov_b32 s{SWG+2}, {512*2752}\ns_mov_b32 s{SWG+3}, 0x20000")
srd(SWS, 86, WS_BYTES)
srd(SWK, 68, 16384); srd(SWV, 70, 16384); srd(SWO, 72, 512*1024)
srd(SWD, 80, 1376*1024); srd(SOUT, 82, 2048*1024); srd(SDBG, 84, 256)
if PROF:
    e(f"s_lshl_b32 s{sPo}, s2, 3\ns_add_u32 s{sPo}, s{sPo}, s{sW}\ns_lshl_b32 s{sPo}, s{sPo}, 8\ns_add_u32 s{sPo}, s{sPo}, {PROFO}")
stamp(0)
if RT: e(f"s_nop 1\nv_mov_b32 v0, s100\nbuffer_store_dword v0, off, {sr(SWS,4)}, s{sPo} offset:60\ns_nop 1\nv_mov_b32 v0, s98\nbuffer_store_dword v0, off, {sr(SWS,4)}, s{sPo} offset:16")
elif PROF: e("s_mov_b32 s100, 0\ns_mov_b32 s101, 0")
def dma_groups(kind):
    gx = [f"s_add_u32 m0, s{sLb}, s{sMx}", "s_nop 0",
          f"buffer_load_dwordx4 v{vXa0}, {sr(SX,4)}, s{sXo} offen lds"]
    gx2 = [f"buffer_load_dwordx4 v{vXa1}, {sr(SX,4)}, s{sXo} offen offset:1024 lds", f"s_add_u32 s{sXo}, s{sXo}, 128"]
    w0 = [f"s_add_u32 m0, s{sLb}, s{sMw}", "s_nop 0", f"buffer_load_dwordx4 v{vWa0}, {sr(SWG,4)}, s{sWo} offen lds"]
    w1 = [f"buffer_load_dwordx4 v{vWa1}, {sr(SWG,4)}, s{sWo} offen offset:1024 lds"]
    w2 = [f"buffer_load_dwordx4 v{vWa2}, {sr(SWG,4)}, s{sWo} offen offset:2048 lds", f"s_add_u32 s{sWo}, s{sWo}, {64*2752}"]
    q = [f"s_add_u32 m0, s{sLb}, s{sMq}", "s_nop 0", f"buffer_load_dwordx4 v{vQa}, {sr(SWQ,4)}, s{sQo} offen lds",
         f"s_add_u32 s{sQo}, s{sQo}, 65536"]
    stg, nb = (STGK, NBK) if kind[-1] == "K" else (STG, 3)
    adv = [f"s_add_u32 s{sLb}, s{sLb}, {stg}", f"s_cmp_ge_u32 s{sLb}, {nb*stg}", f"s_cselect_b32 s{sLb}, 0, s{sLb}"]
    if kind == "L": return [gx+gx2, w0+w1, w2, q+adv]
    if kind == "H": return [gx+gx2, w0, w1, w2+adv]
    if kind == "HK": return [gx, gx2, w0+[f"s_add_u32 s{sWo}, s{sWo}, 2048"], adv]
    if kind == "LK": return [gx, gx2, q, adv]
def dma_stage(kind): return sum(dma_groups(kind), [])
NDMA = {"L": 6, "H": 5, "LK": 3, "HK": 3}
NX = {"L": TOUCH, "H": TOUCH, "LK": 0, "HK": 0}

if "--pfcode" in sys.argv:
    e(f"""s_getpc_b64 s[94:95]
    Lpc0:
    s_sub_u32 s94, s94, Lpc0-{NAME}_kernel
    s_subb_u32 s95, s95, 0
    v_lshlrev_b32 v210, 7, v0
    v_min_u32 v210, Lcodeend-{NAME}_kernel-4, v210
    global_load_dword v211, v210, s[94:95]""")
if "--pfdata" in sys.argv:
    e(f"""v_lshlrev_b32 v210, 7, v0
    s_lshl_b32 s94, s{sI}, 17
    buffer_load_dword v211, v210, {sr(SX,4)}, s94 offen
    s_add_u32 s94, s94, 65536
    buffer_load_dword v211, v210, {sr(SX,4)}, s94 offen
    v_lshlrev_b32 v210, 10, v0
    s_lshl_b32 s94, s{sJ}, 6
    buffer_load_dword v211, v210, {sr(SWQ,4)}, s94 offen
    s_lshl_b32 s94, s{sCS}, 7
    buffer_load_dword v211, v210, {sr(SWO,4)}, s94 offen
    buffer_load_dword v211, v210, {sr(SWD,4)}, s94 offen
    s_add_u32 s94, s94, 524288
    buffer_load_dword v211, v210, {sr(SWD,4)}, s94 offen
    s_add_u32 s94, s94, 524288
    buffer_load_dword v211, v210, {sr(SWD,4)}, s94 offen
    v_and_b32 v210, 255, v0
    v_mul_u32_u24 v210, 2752, v210
    s_mul_i32 s94, s{sJ}, 96
    s_min_u32 s94, s94, 1280
    s_lshl_b32 s94, s94, 1
    buffer_load_dword v211, v210, {sr(SWG,4)}, s94 offen
    buffer_load_dword v211, v210, {sr(SWG,4)}, s94 offen offset:128
    s_add_u32 s94, s94, {256*2752}
    buffer_load_dword v211, v210, {sr(SWG,4)}, s94 offen
    buffer_load_dword v211, v210, {sr(SWG,4)}, s94 offen offset:128
    v_lshlrev_b32 v210, 14, v0
    buffer_load_dword v211, v210, {sr(SWS,4)}, 0 offen
    v_lshlrev_b32 v210, 12, v0
    buffer_load_dword v211, v210, {sr(SOUT,4)}, 0 offen
    buffer_load_dword v211, off, {sr(SDBG,4)}, 0 sc1""")
if "--busy2" in sys.argv: busy(2); e("s_waitcnt vmcnt(0)")
e(f"""s_cmp_eq_u32 s{sJ}, 15
s_cbranch_scc1 Lkvcu
s_cmp_ge_u32 s{sW}, 4
s_cbranch_scc1 LproH""")

def common_init(kind):
    e(f"""v_and_b32 v{vT0}, 31, v{vLane}
    v_lshrrev_b32 v{vT1}, 1, v{vT0}
    v_and_b32 v{vT1}, 7, v{vT1}
    v_xor_b32 v{vT1}, v{vT1}, v{vH}
    v_lshlrev_b32 v{vT0}, 7, v{vT0}""")
    if kind == "L": e(f"s_and_b32 s{sT0}, s{sW}, 1\ns_lshl_b32 s{sT0}, s{sT0}, 13")
    elif kind == "KV": e(f"s_lshl_b32 s{sT0}, s{sW}, 14")
    else: e(f"s_lshl_b32 s{sT0}, s{sW4}, 12")
    e(f"v_add_u32 v{vT0}, s{sT0}, v{vT0}")
    for ks in range(4):
        e(f"v_xor_b32 v{vT2}, {2*ks}, v{vT1}\nv_lshl_add_u32 v{vRX+ks}, v{vT2}, 4, v{vT0}")
    e(f"""v_bfe_u32 v{vT0}, v{vLane}, 2, 2
    v_lshl_add_u32 v{vT0}, v{vH}, 3, v{vT0}
    v_bfe_u32 v{vT1}, v{vLane}, 4, 1
    v_and_b32 v{vT2}, 3, v{vLane}
    v_lshlrev_b32 v{vT2}, 3, v{vT2}
    v_lshl_add_u32 v{vT3}, v{vT1}, 5, v{vT2}
    v_lshl_add_u32 v{vRQ}, v{vT0}, 6, v{vT3}""")
    if kind == "KV":
        e(f"""v_lshlrev_b32 v{vT1}, 14, v{vT1}
        v_lshl_add_u32 v{vRW}, v{vT0}, 5, v{vT2}
        s_lshr_b32 s{sT0}, s{sW}, 2
        s_lshl_b32 s{sT0}, s{sT0}, 13
        s_add_u32 s{sT1}, s{sT0}, 131072
        v_add3_u32 v{vRW}, v{vRW}, v{vT1}, s{sT1}
        s_add_u32 s{sT1}, s{sT1}, s{sT0}
        v_add_u32 v{vRQ}, s{sT1}, v{vRQ}""")
    else:
        e(f"v_mul_u32_u24 v{vRW}, 192, v{vT0}\nv_add_u32 v{vRW}, v{vRW}, v{vT3}")
        if kind == "L": e(f"s_lshr_b32 s{sT0}, s{sW}, 1\ns_lshl_b32 s{sT0}, s{sT0}, 6\nv_add_u32 v{vRW}, s{sT0}, v{vRW}")
        else: e(f"v_add_u32 v{vRW}, 128, v{vRW}")
    e(f"""v_bfe_u32 v{vT0}, v{vLane}, 4, 1
    v_and_b32 v{vT1}, 15, v{vLane}
    v_cmp_eq_u32 vcc, v{vT0}, v{vT1}
    v_mov_b32 v{vT2}, 0x3f803f80
    s_nop 0
    v_cndmask_b32 v{vSel}, 0, v{vT2}, vcc""")
    for k in range(1, 4): e(f"v_mov_b32 v{vSel+k}, v{vSel}")
    for r in list(range(vCs, vCs+4)) + list(range(vAcc, vAcc+(64 if kind == 'L' else 48))) + list(range(vSt, vSt+4)):
        e(f"v_mov_b32 v{r}, 0")

def stats_ops(x, regs=range(4)):
    r = []
    for k in regs:
        lo, hi = vSt+4+2*(k & 1), vSt+5+2*(k & 1)
        r += [f"v_lshlrev_b32 v{lo}, 16, v{x+k}", f"v_and_b32 v{hi}, 0xffff0000, v{x+k}",
              f"v_add_f32 v{vSt}, v{vSt}, v{lo}", f"v_add_f32 v{vSt+1}, v{vSt+1}, v{hi}",
              f"v_fmac_f32 v{vSt+2}, v{lo}, v{lo}", f"v_fmac_f32 v{vSt+3}, v{hi}, v{hi}"]
    return r

def tr(d, a, off): return [f"ds_read_b64_tr_b16 {vr(d,2)}, v{a} offset:{off}"]
def p1_reads(kind, ks, F):
    if "--noread" in sys.argv: return []
    if kind == "L":
        return [f"ds_read_b128 {vr(F,4)}, v{vRX+ks}"] + tr(F+8, vRW, GOFF+(16*ks)*192) + tr(F+10, vRW, GOFF+(16*ks+4)*192) + \
               tr(F+12, vRW, UOFF+(16*ks)*192) + tr(F+14, vRW, UOFF+(16*ks+4)*192) + \
               [f"ds_read_b128 {vr(F+4,4)}, v{vRX+ks} offset:4096"]
    if kind == "H":
        return [f"ds_read_b128 {vr(F,4)}, v{vRX+ks}"] + tr(F+4, vRQ, QOFF+(16*ks)*64) + tr(F+6, vRQ, QOFF+(16*ks+4)*64) + \
               tr(F+8, vRW, GOFF+(16*ks)*192) + tr(F+10, vRW, GOFF+(16*ks+4)*192) + \
               tr(F+12, vRW, UOFF+(16*ks)*192) + tr(F+14, vRW, UOFF+(16*ks+4)*192)
    if kind == "HK":
        return [f"ds_read_b128 {vr(F,4)}, v{vRX+ks}"] + tr(F+8, vRW, GOFF+(16*ks)*32) + tr(F+10, vRW, GOFF+(16*ks+4)*32)
    if kind == "LK":
        return [f"ds_read_b128 {vr(F,4)}, v{vRX+ks}"] + tr(F+4, vRQ, QOFFK+(16*ks)*64) + tr(F+6, vRQ, QOFFK+(16*ks+4)*64)
def p1_comp(kind, var, F):
    if kind == "L":
        m = [mfma(vAcc, F+8, F), mfma(vAcc+16, F+12, F), mfma16(vCs, F+8+4*(var & 1), vSel), mfma(vAcc+32, F+8, F+4), mfma(vAcc+48, F+12, F+4)]
        return m, stats_ops(F+4*(var >> 1), (2, 3))
    if kind == "H":
        m = [mfma(vAcc, F+4, F), mfma(vAcc+16, F+8, F), mfma(vAcc+32, F+12, F)]
        if var < 3: m.insert(1, mfma16(vCs, F+4+4*var, vSel))
        return m, stats_ops(F, (0, 1))
    if kind == "HK":
        return [mfma(vAcc+16, F+8, F), mfma16(vCs, F+8, vSel), mfma(vAcc+32, F, F+8)], stats_ops(F, (0, 1))
    if kind == "LK":
        return [mfma(vAcc, F+4, F), mfma16(vCs, F+4, vSel)], stats_ops(F, (2, 3))

BARX = "s_nop 0" if "--nobar" in sys.argv else "s_barrier"
NST = 208 if "--rep" in sys.argv else 8
def spread(m, fill):
    w = [16 if "16x16" in x else 32 for x in m]
    tot = sum(c for c, _ in fill); W = sum(w)
    out = []; k = 0; acc = 0; cw = 0
    for x, wx in zip(m, w):
        out.append(x); cw += wx
        while k < len(fill) and (acc + fill[k][0]/2) * W <= tot * cw:
            out.append(fill[k][1]); acc += fill[k][0]; k += 1
    out += [t for _, t in fill[k:]]
    return out

def p1_loop(kind, var, done_label):
    tag = f"{kind}{var}"
    n = NDMA[kind]
    dg = dma_groups(kind)
    kv = kind[-1] == "K"
    stg, nb = (STGK, NBK) if kv else (STG, 3)
    LA = nb - 1
    if kind[0] == "H" and "--noprio" not in sys.argv: e("s_setprio 1")
    e(f"s_mov_b32 s{sSt}, 0\ns_mov_b32 s{sRb}, 0\ns_mov_b64 vcc, -1\ns_waitcnt vmcnt({(LA-1)*n+NX[kind]})\ns_barrier")
    stamp(12)
    def comp(F):
        m0, v0 = p1_comp(kind, var, F); m1, v1 = p1_comp(kind, var, F+16)
        if "--nostat" in sys.argv: v0 = v1 = ["s_nop 0"]*5
        if "--nomfma" in sys.argv: m0 = m1 = ["s_nop 0"]*2
        if "--nocs" in sys.argv: m0 = [x for x in m0 if "16x16" not in x]; m1 = [x for x in m1 if "16x16" not in x]
        return m0+m1, v0+v1
    def dblk(i, g): return (4*len(g)+8, "\n".join([f"s_cbranch_vccz Lnd{i}_{tag}"] + g + [f"Lnd{i}_{tag}:"]))
    rd = p1_reads(kind, 0, vF) + p1_reads(kind, 1, vF+16)
    for x in rd + sum(dg, []): e(x)
    e(f"s_branch Lp1h_{tag}")
    e(f".p2align 3\nLp1_{tag}:")
    m, va = comp(vF+32)
    hv = len(va)//2
    fill = [(6, x) for x in rd] + [dblk(0, dg[0])] + [(4, x) for x in va[:hv]] + [dblk(1, dg[1])] + [(4, x) for x in va[hv:]] + [dblk(2, dg[2]+dg[3])]
    for x in spread(m, fill): e(x)
    e(f"Lp1h_{tag}:\ns_waitcnt lgkmcnt(0)")
    rd = p1_reads(kind, 2, vF+32) + p1_reads(kind, 3, vF+48)
    m, va = comp(vF)
    ctl = (16, f"s_add_u32 s{sRb}, s{sRb}, 1\ns_cmp_eq_u32 s{sRb}, {nb}\ns_cselect_b32 s{sDl}, s{sC3}, {stg}\ns_cselect_b32 s{sRb}, 0, s{sRb}")
    adr = [(4, f"v_add_u32 v{r}, s{sDl}, v{r}") for r in list(range(vRX, vRX+4)) + ([vRW] if kind != "LK" else []) + ([vRQ] if kind in ("H", "LK") else [])]
    ctl2 = f"s_add_u32 s{sSt}, s{sSt}, 1\ns_cmp_lt_u32 s{sSt}, {8-LA}\ns_cselect_b64 vcc, -1, 0\ns_cmp_gt_u32 s{sSt}, {8-LA}"
    sync = f"s_cbranch_scc1 Lp1w_{tag}\ns_waitcnt vmcnt({(LA-1)*n}) lgkmcnt(0)\nLp1x_{tag}:\n{BARX}\nLp1y_{tag}:"
    k = 2
    nv = 10
    for x in spread(m[:-k], [(6, x) for x in rd] + [ctl] + adr + [(4, x) for x in va[:-nv]]): e(x)
    e(ctl2); e(sync)
    for x in spread(m[-k:], [(4, x) for x in va[-nv:]]): e(x)
    e(f"s_cmp_lg_u32 s{sSt}, {NST}\ns_cbranch_scc1 Lp1_{tag}")
    if kind == "H":
        e(kv_poll_issue())
    m, va = comp(vF+32)
    for x in spread(m, [(4, x) for x in va]): e(x)
    e(f"s_branch {done_label}")
    e(f"Lp1w_{tag}:\ns_waitcnt lgkmcnt(0)\ns_cmp_eq_u32 s{sSt}, {NST}\ns_cbranch_scc1 Lp1y_{tag}")
    for st in range(9-LA, 7):
        e(f"s_waitcnt vmcnt({(7-st)*n})\ns_cmp_eq_u32 s{sSt}, {st}\ns_cbranch_scc1 Lp1x_{tag}")
    e(f"s_waitcnt vmcnt(0)\ns_branch Lp1x_{tag}")

def o_prod_off(dst):
    e(f"""s_lshl_b32 s{sT0}, s{sI}, 2
    s_lshr_b32 s{sT1}, s{sW}, 1
    s_add_u32 s{sT0}, s{sT0}, s{sT1}
    s_lshl_b32 s{sT0}, s{sT0}, 5
    s_lshl_b32 s{sT1}, s{sJ}, 1
    s_and_b32 s{dst}, s{sW}, 1
    s_add_u32 s{sT1}, s{sT1}, s{dst}
    s_lshr_b32 s{dst}, s{sT1}, 2
    s_add_u32 s{sT0}, s{sT0}, s{dst}
    s_and_b32 s{sT1}, s{sT1}, 3
    s_lshl_b32 s{sT1}, s{sT1}, 3
    s_add_u32 s{sT0}, s{sT0}, s{sT1}
    s_lshl_b32 s{sT0}, s{sT0}, 10
    s_add_u32 s{dst}, s{sT0}, {OIMG}""")

def v_lane_addr(d):
    e(f"""v_and_b32 v{d}, 15, v{vLane}
    v_lshlrev_b32 v{d}, 4, v{d}
    v_lshl_add_u32 v{d}, v{vH}, 8, v{d}
    s_mov_b32 exec_lo, 0xffff0000
    s_mov_b32 exec_hi, 0xffff0000
    v_mov_b32 v{d}, 512""")
def early_init():
    o_prod_off(sOp)
    v_lane_addr(vAv)
    e(f"""s_mov_b32 exec_lo, 0xffee0000
    s_mov_b32 exec_hi, 0xffee0000
    v_mov_b32 v{vAv}, 0x4000000
    s_mov_b64 exec, -1
    v_add_u32 v{vAv}, 1024, v{vAv}
    v_lshlrev_b32 v{vAk}, 4, v{vLane}
    v_lshlrev_b32 v{vL16}, 4, v{vLane}
    v_mov_b32 v{vIdx}, 0xdddd
    v_lshrrev_b32 v{vT0}, 3, v{vLane}
    v_lshlrev_b32 v{vT0}, 10, v{vT0}
    v_and_b32 v{vT1}, 7, v{vLane}
    v_bfe_u32 v{vT2}, v{vLane}, 4, 1
    v_lshlrev_b32 v{vT2}, 2, v{vT2}
    v_xor_b32 v{vT1}, v{vT1}, v{vT2}
    v_lshl_add_u32 v{vDa}, v{vT1}, 4, v{vT0}
    s_lshl_b32 s{sDo}, s{sW}, 13
    s_lshl_b32 s{sT1}, s{sCS}, 7
    s_add_u32 s{sDo}, s{sDo}, s{sT1}
    s_lshl_b32 s{sDm}, s{sW}, 10
    s_lshr_b32 s{sKq}, s{sW}, 1
    s_and_b32 s{sTt}, s{sW}, 1
    s_lshl_b32 s{sT0}, s{sTB}, 1
    s_add_u32 s{sT2}, s{sT0}, s{sTt}
    s_mul_i32 s{sHo}, s{sT2}, 88
    s_mul_i32 s{sT0}, s{sKq}, 22
    s_add_u32 s{sHo}, s{sHo}, s{sT0}
    s_lshl_b32 s{sHo}, s{sHo}, 10
    s_add_u32 s{sHo}, s{sHo}, {HIMG}
    s_lshl_b32 s{sT0}, s{sT2}, 2
    s_add_u32 s{sT0}, s{sT0}, s{sKq}
    s_lshl_b32 s{sT0}, s{sT0}, 13
    s_add_u32 s{sOc}, s{sT0}, {OIMG}
    s_add_u32 s{sOc2}, s{sOc}, 4096
    s_lshl_b32 s{sT0}, s{sT2}, 15
    s_add_u32 s{sT0}, s{sT0}, s{sT1}
    s_lshl_b32 s{sT1}, s{sKq}, 5
    s_add_u32 s{sXf}, s{sT0}, s{sT1}
    s_lshr_b32 s{sHc}, s{sTB}, 1
    s_lshl_b32 s{sHc}, s{sHc}, 11
    s_add_u32 s{sHc}, s{sHc}, {HFLG}
    s_lshl_b32 s{sHs}, s{sI}, 4
    s_add_u32 s{sHs}, s{sHs}, s{sJ}
    s_lshl_b32 s{sHs}, s{sHs}, 7
    s_add_u32 s{sHs}, s{sHs}, {HFLG}
    v_and_b32 v{vT0}, 31, v{vLane}
    v_lshlrev_b32 v{vT0}, 10, v{vT0}
    v_lshl_add_u32 v{vRa}, v{vH}, 4, v{vT0}
    v_bfe_u32 v{vT0}, v{vLane}, 2, 2
    v_lshl_add_u32 v{vT0}, v{vH}, 2, v{vT0}
    v_lshlrev_b32 v{vT0}, 7, v{vT0}
    v_bfe_u32 v{vT1}, v{vLane}, 4, 1
    v_lshl_add_u32 v{vT0}, v{vT1}, 5, v{vT0}
    v_and_b32 v{vT1}, 3, v{vLane}
    v_lshl_add_u32 v{vT0}, v{vT1}, 3, v{vT0}
    v_bfe_u32 v{vT1}, v{vLane}, 3, 1
    v_lshl_add_u32 v{vT0}, v{vT1}, 6, v{vT0}
    s_lshl_b32 s{sT0}, s{sKq}, 11
    v_add_u32 v{vRd}, s{sT0}, v{vT0}
    v_xor_b32 v{vRd+1}, 64, v{vRd}
    v_add_u32 v{vRd+2}, 0xe000, v{vRd}
    v_add_u32 v{vRd+3}, 0xe000, v{vRd+1}
    v_add_u32 v{vRd+4}, 0x1c000, v{vRd}
    v_add_u32 v{vRd+5}, 0x1c000, v{vRd+1}
    s_mul_i32 s{sT1}, s{sTt}, {8*ASL}
    s_add_u32 s{sT1}, s{sT1}, {RED}
    s_add_u32 s{sT0}, s{sT0}, s{sT1}
    v_add_u32 v{vRw}, s{sT0}, v{vL16}
    s_mul_i32 s{sT0}, s{sKq}, {ASL}
    s_add_u32 s{sT0}, s{sT0}, s{sT1}
    v_add_u32 v{vRr}, s{sT0}, v{vL16}""")
    for r in range(12): e(f"v_mov_b32 v{vO+r}, 0")

def prologue(kind):
    nb = NBK if kind[-1] == "K" else 3
    for x in dma_stage(kind): e(x)
    common_init(kind)
    for _ in range(nb-2):
        for x in dma_stage(kind): e(x)
    early_init()
    if "--busy3" in sys.argv: busy("3"+kind)
    if kind in ("L", "H") and TOUCH: touch(kind)
def sentinel(r):
    for k in range(4): e(f"v_mov_b32 v{r+k}, -1")
    e(f"buffer_store_dwordx4 {vr(r,4)}, v{vL16}, {sr(SWS,4)}, s{sOp} offen sc1")

def touch(kind):
    t = f"Lt{kind}"
    e(f"s_and_b32 s{sT2}, s{sI}, 7\ns_lshl_b32 s{sT2}, s{sT2}, 5\ns_add_u32 s{sT2}, s{sT2}, 256")
    for v in range(1, 4): e(f"s_cmp_eq_u32 s{sW4}, {v}\ns_cbranch_scc1 {t}{v}")
    e(f"""v_lshrrev_b32 v{vT0}, 1, v{vLane}
    v_mul_u32_u24 v{vT0}, 2752, v{vT0}
    v_and_b32 v{vT1}, 1, v{vLane}
    v_lshl_add_u32 v{vT0}, v{vT1}, 7, v{vT0}
    s_mul_i32 s{sT0}, s{sJ}, 96
    s_min_u32 s{sT0}, s{sT0}, 1280
    s_lshl_b32 s{sT0}, s{sT0}, 1
    s_mul_i32 s{sT2}, s{sT2}, 2752
    s_add_u32 s{sT0}, s{sT0}, s{sT2}
    buffer_load_dword v{vPoll}, v{vT0}, {sr(SWG,4)}, s{sT0} offen
    s_branch {t}e""")
    if kind == "L":
        e(f"""{t}1:
        v_and_b32 v{vT0}, 31, v{vLane}
        v_lshlrev_b32 v{vT0}, 10, v{vT0}
        s_lshl_b32 s{sT2}, s{sT2}, 10
        s_lshl_b32 s{sT0}, s{sJ}, 6
        s_add_u32 s{sT0}, s{sT0}, s{sT2}
        buffer_load_dword v{vPoll}, v{vT0}, {sr(SWQ,4)}, s{sT0} offen
        s_branch {t}e
        {t}2:
        {t}3:
        v_lshrrev_b32 v{vT0}, 2, v{vLane}
        v_lshlrev_b32 v{vT0}, 10, v{vT0}
        v_and_b32 v{vT1}, 3, v{vLane}
        v_lshl_add_u32 v{vT0}, v{vT1}, 7, v{vT0}
        s_lshl_b32 s{sT0}, s{sI}, 17
        s_and_b32 s{sT1}, s{sJ}, 3
        s_lshl_b32 s{sT1}, s{sT1}, 15
        s_add_u32 s{sT0}, s{sT0}, s{sT1}
        s_and_b32 s{sT1}, s{sW}, 1
        s_lshl_b32 s{sT1}, s{sT1}, 14
        s_add_u32 s{sT0}, s{sT0}, s{sT1}
        buffer_load_dword v{vPoll}, v{vT0}, {sr(SX,4)}, s{sT0} offen offset:512""")
    else:
        e(f"""{t}1:
        v_lshlrev_b32 v{vT0}, 15, v{vLane}
        buffer_load_dword v{vPoll}, v{vT0}, {sr(SWD,4)}, 0 offen
        s_branch {t}e
        {t}2:
        v_lshlrev_b32 v{vT0}, 15, v{vLane}
        buffer_load_dword v{vPoll}, v{vT0}, {sr(SWO,4)}, 0 offen
        s_branch {t}e
        {t}3:
        v_lshlrev_b32 v{vT0}, 17, v{vLane}
        buffer_load_dword v{vPoll}, v{vT0}, {sr(SWS,4)}, 0 offen""")
    e(f"{t}e:")

def cs_write(acc, slot_expr_sreg):
    e(f"""v_and_b32 v{vT0}, 1, v{vLane}
    v_lshlrev_b32 v{vT0}, 6, v{vT0}
    v_lshrrev_b32 v{vT1}, 4, v{vLane}
    v_lshl_add_u32 v{vT0}, v{vT1}, 4, v{vT0}
    v_add_u32 v{vT0}, {slot_expr_sreg}, v{vT0}
    s_mov_b32 exec_lo, 0x00030003
    s_mov_b32 exec_hi, 0x00030003
    ds_write_b128 v{vT0}, {vr(acc,4)}
    s_mov_b64 exec, -1""")

def stats_post(tile_sreg, part):
    e(f"""v_add_f32 v{vSt}, v{vSt}, v{vSt+1}
    v_add_f32 v{vSt+2}, v{vSt+2}, v{vSt+3}
    v_mov_b32 v{vSt+1}, v{vSt}
    v_mov_b32 v{vSt+3}, v{vSt+2}
    v_and_b32 v{vT0}, 31, v{vLane}
    s_lshl_b32 s{sT0}, s{tile_sreg}, 7
    v_permlane32_swap_b32 v{vSt}, v{vSt+1}
    v_permlane32_swap_b32 v{vSt+2}, v{vSt+3}
    s_add_u32 s{sT0}, s{sT0}, {STATM+1024*part}
    v_lshl_add_u32 v{vT0}, v{vT0}, 2, s{sT0}
    v_add_f32 v{vSt}, v{vSt}, v{vSt+1}
    v_add_f32 v{vSt+2}, v{vSt+2}, v{vSt+3}
    ds_write_b32 v{vT0}, v{vSt}
    ds_write_b32 v{vT0}, v{vSt+2} offset:512""")
def stats_read(d, addr, off):
    e(f"ds_read2st64_b32 {vr(d,2)}, v{addr} offset0:0 offset1:2" if off == 0 else f"ds_read2_b32 {vr(d,2)}, v{addr} offset0:{off//4} offset1:{(off+512)//4}")
    e(f"ds_read_b32 v{d+2}, v{addr} offset:{off+1024}\nds_read_b32 v{d+3}, v{addr} offset:{off+1536}")
def stats_fin(d, m, r):
    e(f"""v_add_f32 v{d}, v{d}, v{d+2}
    v_add_f32 v{d+1}, v{d+1}, v{d+3}
    v_mul_f32 v{m}, {f2u(1/512):#x}, v{d}
    v_mul_f32 v{d+1}, {f2u(1/512):#x}, v{d+1}
    v_fma_f32 v{d+1}, -v{m}, v{m}, v{d+1}
    v_max_f32 v{d+1}, 0, v{d+1}
    v_add_f32 v{d+1}, {f2u(1e-5):#x}, v{d+1}
    v_rsq_f32 v{r}, v{d+1}
    s_nop 0""")

C1 = -2*0.7978845608028654*1.4426950408889634
C3 = C1*0.044715
def gelu_consts(m, r, d):
    e(f"""v_sub_f32 v{d}, 0, v{m}
    v_mul_f32 v{d+3}, v{r}, v{r}
    v_mul_f32 v{d+1}, {f2u(C1):#x}, v{r}
    v_mul_f32 v{d+2}, {f2u(C3):#x}, v{r}
    v_mul_f32 v{d+2}, v{d+2}, v{d+3}
    v_rcp_f32 v{d+3}, v{d+3}""")
def bc(reg, pos, n):
    base = reg & ~1
    return vr(base, 2), reg & 1
def pk(op, d, srcs, neg=None):
    ops = []; lo = []; hi = []
    for t, r in srcs:
        if t == 'p': ops.append(vr(r, 2)); lo.append(0); hi.append(1)
        else: ops.append(vr(r & ~1, 2)); lo.append(r & 1); hi.append(r & 1)
    return f"{op} {vr(d,2)}, {', '.join(ops)} op_sel:[{','.join(map(str,lo))}] op_sel_hi:[{','.join(map(str,hi))}]"
def gelu_tile(g, u, csg, csu, k, tmp):
    for p in range(0, 16, 2):
        e(pk("v_pk_fma_f32", g+p, [('b', k), ('p', csg+p), ('p', g+p)]))
        e(pk("v_pk_fma_f32", u+p, [('b', k), ('p', csu+p), ('p', u+p)]))
    for p in range(0, 16, 2):
        e(pk("v_pk_mul_f32", tmp+p, [('p', g+p), ('p', g+p)]))
    for p in range(0, 16, 2):
        e(pk("v_pk_fma_f32", tmp+p, [('p', tmp+p), ('b', k+2), ('b', k+1)]))
    for p in range(0, 16, 2):
        e(pk("v_pk_mul_f32", tmp+p, [('p', tmp+p), ('p', g+p)]))
    for p in range(16): e(f"v_exp_f32 v{tmp+p}, v{tmp+p}")
    for p in range(0, 16, 2):
        e(pk("v_pk_mul_f32", u+p, [('p', u+p), ('p', g+p)]))
    for p in range(0, 16, 2):
        e(pk("v_pk_fma_f32", tmp+p, [('p', tmp+p), ('b', k+3), ('b', k+3)]))
    for p in range(16): e(f"v_rcp_f32 v{tmp+p}, v{tmp+p}")
    e("s_nop 0")
    for p in range(0, 16, 2):
        e(pk("v_pk_mul_f32", u+p, [('p', u+p), ('p', tmp+p)]))
    for p in range(8): e(f"v_cvt_pk_bf16_f32 v{g+p}, v{u+2*p}, v{u+2*p+1}")

def cs_read(d, slot_off):
    for q in range(4): e(f"ds_read_b128 {vr(d+4*q,4)}, v{vT3} offset:{slot_off+32*q}")

def lin_fold(acc, cs, negm, scale, n=16):
    for p in range(0, n, 2):
        e(pk("v_pk_fma_f32", acc+p, [('b', negm), ('p', cs+p), ('p', acc+p)]))
    for p in range(0, n, 2):
        e(pk("v_pk_mul_f32", acc+p, [('p', acc+p), ('b', scale)]))

def q_epilogue(cs):
    e(f"v_mul_f32 v{vSt+2}, {f2u(0.25*1.4426950408889634):#x}, v{vSt+1}")
    lin_fold(vAcc, cs, vSt+4, vSt+2)
    for p in range(8): e(f"v_cvt_pk_bf16_f32 v{vAcc+p}, v{vAcc+2*p}, v{vAcc+2*p+1}")
    e(f"""s_lshl_b32 s{sT0}, s{sW4}, 11
    s_add_u32 s{sT0}, s{sT0}, {QIMG}
    v_lshl_add_u32 v{vT0}, v{vLane}, 4, s{sT0}
    ds_write_b128 v{vT0}, {vr(vAcc,4)}
    ds_write_b128 v{vT0}, {vr(vAcc+4,4)} offset:1024""")

def h_off(dst, tile_add_sreg, unit_add):
    e(f"""s_lshl_b32 s{sT0}, s{sI}, 2
    s_add_u32 s{sT0}, s{sT0}, s{tile_add_sreg}
    s_mul_i32 s{sT0}, s{sT0}, 88
    s_mul_i32 s{sT1}, s{sJ}, 6
    s_min_u32 s{sT1}, s{sT1}, 80
    s_add_u32 s{sT1}, s{sT1}, {unit_add}
    s_lshr_b32 s{dst}, s{sT1}, 2
    s_add_u32 s{sT0}, s{sT0}, s{dst}
    s_and_b32 s{sT1}, s{sT1}, 3
    s_mul_i32 s{sT1}, s{sT1}, 22
    s_add_u32 s{sT0}, s{sT0}, s{sT1}
    s_lshl_b32 s{sT0}, s{sT0}, 10
    s_add_u32 s{dst}, s{sT0}, {HIMG}""")
def h_store(acc, so):
    e(f"buffer_store_dwordx4 {vr(acc,4)}, v{vT2}, {sr(SWS,4)}, s{so} offen sc1")
    e(f"s_add_u32 s{so}, s{so}, {22*1024}")
    e(f"buffer_store_dwordx4 {vr(acc+4,4)}, v{vT2}, {sr(SWS,4)}, s{so} offen sc1")
def kv_dma(tag):
    e(f"""s_lshl_b32 s{sT0}, s{sW4}, 10
    v_lshlrev_b32 v{vT0}, 4, v{vLane}
    Lkvd_{tag}:
    s_mov_b32 m0, s{sT0}
    s_nop 0
    buffer_load_dwordx4 v{vT0}, {sr(SWS,4)}, s{sT0} offen sc1 lds
    s_add_u32 s{sT0}, s{sT0}, 4096
    s_cmp_lt_u32 s{sT0}, {28*1024}
    s_cbranch_scc1 Lkvd_{tag}""")

prologue("L")
for v in range(1, 4): e(f"s_cmp_eq_u32 s{sW}, {v}\ns_cbranch_scc1 LL{v}")
for v in range(4):
    e(f"LL{v}:")
    p1_loop("L", v, "LepiL")
e("LepiL:")
stamp(1)
e(f"s_and_b32 s{sT2}, s{sW}, 1\ns_lshl_b32 s{sT2}, s{sT2}, 1\ns_lshr_b32 s{sT3}, s{sW}, 1\ns_add_u32 s{sT2}, s{sT2}, s{sT3}")
stats_post(sT2, 1)
e(f"s_lshl_b32 s{sT1}, s{sW}, 7\ns_add_u32 s{sT1}, s{sT1}, {CSUM+128}")
cs_write(vCs, f"s{sT1}")
e(f"""s_lshr_b32 s{sT0}, s{sW}, 1
s_lshl_b32 s{sT0}, s{sT0}, 8
s_add_u32 s{sT0}, s{sT0}, {CSUM+128}
v_lshl_add_u32 v{vT3}, v{vH}, 4, s{sT0}
s_and_b32 s{sT1}, s{sW}, 1
s_lshl_b32 s{sT1}, s{sT1}, 8
s_add_u32 s{sT1}, s{sT1}, {STATM}
v_and_b32 v{vT0}, 31, v{vLane}
v_lshl_add_u32 v{vT0}, v{vT0}, 2, s{sT1}
s_waitcnt lgkmcnt(0)
s_barrier""")
stats_read(vSt+12, vT0, 0); stats_read(vSt+16, vT0, 128)
cs_read(vF, 0); cs_read(vF+16, 128)
e(f"s_and_b32 s{sT3}, s{sW}, 1\ns_lshl_b32 s{sT3}, s{sT3}, 1\ns_and_b32 s{sC0}, s{sW}, 2")
h_off(sT2, sT3, f"s{sC0}")
e(f"s_add_u32 s{sT3}, s{sT2}, {88*1024}\nv_lshlrev_b32 v{vT2}, 4, v{vLane}\ns_waitcnt lgkmcnt(0)")
stats_fin(vSt+12, vSt, vSt+1); stats_fin(vSt+16, vSt+2, vSt+3)
gelu_consts(vSt, vSt+1, vSt+4); gelu_consts(vSt+2, vSt+3, vSt+8)
for tt in range(2):
    gelu_tile(vAcc+32*tt, vAcc+32*tt+16, vF, vF+16, vSt+4+4*tt, vSt+12)
    h_store(vAcc+32*tt, sT2 if tt == 0 else sT3)
e("s_branch Lp2")

e("LproH:")
prologue("H")
for v in range(1, 4): e(f"s_cmp_eq_u32 s{sW4}, {v}\ns_cbranch_scc1 LH{v}")
for v in range(4):
    e(f"LH{v}:")
    p1_loop("H", v, "LepiH")
e("LepiH:")
stamp(1)
stats_post(sW4, 0)
e(f"v_mov_b32 v{vT2}, v{vT0}")
e(f"""s_cmp_eq_u32 s{sW4}, 3
s_cbranch_scc1 LHnocs
s_add_u32 s{sT1}, s{sW4}, 4
s_cmp_eq_u32 s{sW4}, 0
s_cselect_b32 s{sT1}, 0, s{sT1}
s_lshl_b32 s{sT1}, s{sT1}, 7
s_add_u32 s{sT1}, s{sT1}, {CSUM}""")
cs_write(vCs, f"s{sT1}")
e(f"""LHnocs:
v_mov_b32 v{vT3}, {CSUM}
v_lshl_add_u32 v{vT3}, v{vH}, 4, v{vT3}
s_waitcnt lgkmcnt(0)
s_barrier""")
stats_read(vSt+12, vT2, 0)
cs_read(vAcc+48, 0); cs_read(vF, 5*128); cs_read(vF+16, 6*128)
h_off(sT2, sW4, 4)
e(f"v_lshlrev_b32 v{vT2}, 4, v{vLane}\ns_waitcnt lgkmcnt(0)")
stats_fin(vSt+12, vSt, vSt+1)
gelu_consts(vSt, vSt+1, vSt+4)
q_epilogue(vAcc+48)
e("s_waitcnt vmcnt(0)")
kv_poll_take()
e(f"s_cmp_eq_u32 s{sNo}, 0\ns_cbranch_scc1 LHnodma")
kv_dma("a")
e("LHnodma:")
stamp(13)
gelu_tile(vAcc+16, vAcc+32, vF, vF+16, vSt+4, vSt+12)
h_store(vAcc+16, sT2)
e(f"s_cmp_eq_u32 s{sNo}, 0\ns_cbranch_scc1 Lkvwait\ns_waitcnt vmcnt(2)\ns_branch Lp2")

e("Lkvcu:")
WKV = 131072
vXf, vWk = 32, 192
sXb = sMw
e(f"""s_lshl_b32 s{sT0}, s{sW}, 11
v_lshlrev_b32 v{vWa0}, 4, v{vLane}
s_add_u32 m0, s{sT0}, {WKV}
s_lshl_b32 s{sXb}, s{sW}, 14
buffer_load_dwordx4 v{vWa0}, {sr(SWV,4)}, s{sT0} offen lds
buffer_load_dwordx4 v{vWa0}, {sr(SWV,4)}, s{sT0} offen offset:1024 lds
s_add_u32 m0, s{sT0}, {WKV+16384}
s_lshl_b32 s{sXo}, s{sI}, 17
buffer_load_dwordx4 v{vWa0}, {sr(SWK,4)}, s{sT0} offen lds
buffer_load_dwordx4 v{vWa0}, {sr(SWK,4)}, s{sT0} offen offset:1024 lds
s_lshl_b32 s{sT0}, s{sW4}, 15
s_add_u32 s{sXo}, s{sXo}, s{sT0}
s_lshr_b32 s{sT3}, s{sW}, 2
s_lshl_b32 s{sT0}, s{sT3}, 9
s_add_u32 s{sXo}, s{sXo}, s{sT0}""")
def kvx_dma(c):
    return [f"""s_add_u32 m0, s{sXb}, {4096*c+2048*hf}
        s_add_u32 s{sT0}, s{sXo}, {128*c+16384*hf}
        buffer_load_dwordx4 v{vXa0}, {sr(SX,4)}, s{sT0} offen lds
        buffer_load_dwordx4 v{vXa1}, {sr(SX,4)}, s{sT0} offen offset:1024 lds""" for hf in range(2)]
for x in kvx_dma(0): e(x)
common_init("KV")
for x in kvx_dma(1): e(x)
e("s_waitcnt vmcnt(4)\ns_barrier")
stamp(12)
def kv_reads(c):
    r = []
    for ks in range(4):
        W = vWk + 16*(c & 1) + 4*ks
        r += [f"ds_read_b128 {vr(vXf+16*c+4*ks,4)}, v{vRX+ks} offset:{4096*c}"]
        r += tr(W, vRW, (64*c+16*ks)*32) + tr(W+2, vRW, (64*c+16*ks+4)*32)
    return r
for x in kv_reads(0): e(x)
for c in range(4):
    m = []; va = []
    for ks in range(4):
        X = vXf+16*c+4*ks; W = vWk + 16*(c & 1) + 4*ks
        m += [mfma(vAcc+16, W, X), mfma16(vCs, W, vSel), mfma(vAcc+32, X, W)]
        va += stats_ops(X)
    fill = [(4, x) for x in va]
    if c < 2: fill = [(16, x) for x in kvx_dma(c+2)] + fill
    if c < 3: fill = fill[:56] + [(4, f"s_waitcnt vmcnt({4 if c < 2 else 0})")] + [(6, x) for x in kv_reads(c+1)] + fill[56:]
    e("s_waitcnt lgkmcnt(0)")
    for x in spread(m, fill): e(x)
stamp(1)
e(f"""v_add_f32 v{vSt}, v{vSt}, v{vSt+1}
v_add_f32 v{vSt+2}, v{vSt+2}, v{vSt+3}
v_mov_b32 v{vSt+1}, v{vSt}
v_mov_b32 v{vSt+3}, v{vSt+2}
v_and_b32 v{vT2}, 31, v{vLane}
v_lshlrev_b32 v{vT2}, 2, v{vT2}
v_permlane32_swap_b32 v{vSt}, v{vSt+1}
v_permlane32_swap_b32 v{vSt+2}, v{vSt+3}
v_add_u32 v{vT1}, s{sXb}, v{vT2}
s_xor_b32 s{sT2}, s{sXb}, 65536
v_add_f32 v{vSt+20}, v{vSt}, v{vSt+1}
v_add_f32 v{vSt+21}, v{vSt+2}, v{vSt+3}
ds_write_b32 v{vT1}, v{vSt+20} offset:4096
ds_write_b32 v{vT1}, v{vSt+21} offset:4224
s_add_u32 s{sT1}, s{sXb}, 4352""")
cs_write(vCs, f"s{sT1}")
e(f"""v_add_u32 v{vT0}, s{sXb}, v{vWa0}
v_add_u32 v{vWa1}, s{sT2}, v{vWa0}
v_add_u32 v{vWa2}, s{sT2}, v{vT2}
v_lshl_add_u32 v{vT3}, v{vH}, 4, s{sXb}
s_lshl_b32 s{sT0}, s{sI}, 2
s_add_u32 s{sT0}, s{sT0}, s{sW4}
s_mul_i32 s{sC0}, s{sT0}, {KVT}
s_lshl_b32 s{sQo}, s{sW}, 16
s_add_u32 s{sQo}, s{sQo}, {64*15}
s_lshl_b32 s{sMq}, s{sW}, 12
s_add_u32 s{sMq}, s{sMq}, {WKV}
s_cmp_ge_u32 s{sW}, 4
s_cbranch_scc1 LkvH""")
def wq_dma():
    for k in range(4):
        e(f"s_add_u32 m0, s{sMq}, {1024*k}\ns_add_u32 s{sT0}, s{sQo}, {16384*k}\nbuffer_load_dwordx4 v{vQa}, {sr(SWQ,4)}, s{sT0} offen lds")
for q in range(4): e(f"ds_write_b128 v{vT0}, {vr(vAcc+32+4*q,4)} offset:{1024*q}")
e(f"v_xor_b32 v{vT1}, 0x10000, v{vT3}\ns_waitcnt lgkmcnt(0)\ns_barrier")
e(f"""ds_read_b32 v{vSt+22}, v{vWa2} offset:4096
ds_read_b32 v{vSt+23}, v{vWa2} offset:4224
ds_read_b128 {vr(vWk,4)}, v{vWa1}
ds_read_b128 {vr(vWk+4,4)}, v{vWa1} offset:1024
ds_read_b128 {vr(vSt+12,4)}, v{vT3} offset:{4352+64}
ds_read_b128 {vr(vSt+16,4)}, v{vT3} offset:{4352+96}
ds_read_b128 {vr(vWk+8,4)}, v{vT1} offset:{4352+64}
ds_read_b128 {vr(vWk+12,4)}, v{vT1} offset:{4352+96}""")
wq_dma()
e(f"""v_and_b32 v{vT0}, 0x33, v{vLane}
v_bfe_u32 v{vT1}, v{vLane}, 2, 1
v_lshl_or_b32 v{vT0}, v{vT1}, 3, v{vT0}
v_bfe_u32 v{vT1}, v{vLane}, 3, 1
v_lshl_or_b32 v{vT0}, v{vT1}, 2, v{vT0}
v_lshlrev_b32 v{vT0}, 4, v{vT0}
s_waitcnt lgkmcnt(0)""")
stats_fin(vSt+20, vSt, vSt+1)
e(f"v_sub_f32 v{vSt+4}, 0, v{vSt}")
for p in range(0, 8, 2):
    e(pk("v_pk_add_f32", vAcc+24+p, [('p', vAcc+24+p), ('p', vWk+p)]))
    e(pk("v_pk_add_f32", vSt+12+p, [('p', vSt+12+p), ('p', vWk+8+p)]))
lin_fold(vAcc+24, vSt+12, vSt+4, vSt+1, 8)
for p in range(4): e(f"v_cvt_pk_bf16_f32 v{vAcc+16+p}, v{vAcc+24+2*p}, v{vAcc+25+2*p}")
e(f"buffer_store_dwordx4 {vr(vAcc+16,4)}, v{vT0}, {sr(SWS,4)}, s{sC0} offen sc1\ns_branch LkvS")
e("LkvH:")
e(f"ds_write_b128 v{vT0}, {vr(vAcc+24,4)}\nds_write_b128 v{vT0}, {vr(vAcc+28,4)} offset:1024")
e(f"v_add_u32 v{vT1}, s{sXb}, v{vT2}\ns_waitcnt lgkmcnt(0)\ns_barrier")
e(f"""ds_read_b32 v{vSt+22}, v{vWa2} offset:4096
ds_read_b32 v{vSt+23}, v{vWa2} offset:4224
ds_read_b32 v{vSt+6}, v{vT1} offset:4352
ds_read_b32 v{vSt+7}, v{vWa2} offset:4352""")
for q in range(4): e(f"ds_read_b128 {vr(vAcc+48+4*q,4)}, v{vWa1} offset:{1024*q}")
wq_dma()
e("s_waitcnt lgkmcnt(0)")
stats_fin(vSt+20, vSt, vSt+1)
e(f"ds_write_b32 v{vT1}, v{vSt} offset:4608\nds_write_b32 v{vT1}, v{vSt+1} offset:4736\ns_waitcnt lgkmcnt(0)")
for q in range(4):
    e(f"ds_read_b128 {vr(vWk+4*q,4)}, v{vT3} offset:{4608+32*q}\nds_read_b128 {vr(vWk+16+4*q,4)}, v{vT3} offset:{4736+32*q}")
e(f"v_add_f32 v{vSt+6}, v{vSt+6}, v{vSt+7}\nv_sub_f32 v{vSt+6}, 0, v{vSt+6}")
for p in range(0, 16, 2): e(pk("v_pk_add_f32", vAcc+32+p, [('p', vAcc+32+p), ('p', vAcc+48+p)]))
e("s_waitcnt lgkmcnt(0)")
for p in range(0, 16, 2): e(pk("v_pk_fma_f32", vAcc+32+p, [('p', vWk+p), ('b', vSt+6), ('p', vAcc+32+p)]))
for p in range(0, 16, 2): e(pk("v_pk_mul_f32", vAcc+32+p, [('p', vAcc+32+p), ('p', vWk+16+p)]))
for p in range(8): e(f"v_cvt_pk_bf16_f32 v{vAcc+32+p}, v{vAcc+32+2*p}, v{vAcc+33+2*p}")
v_lane_addr(vT0)
for p in range(8): e(f"v_mov_b32 v{vAcc+32+p}, 0x3f803f80")
e(f"""s_mov_b32 exec_lo, 0x1ffff
s_mov_b32 exec_hi, 0xffff
buffer_store_dwordx4 {vr(vAcc+32,4)}, v{vT0}, {sr(SWS,4)}, s{sC0} offen offset:1024 sc1
buffer_store_dwordx4 {vr(vAcc+36,4)}, v{vT0}, {sr(SWS,4)}, s{sC0} offen offset:{1024+528} sc1
s_mov_b64 exec, -1
LkvS:""")
for r in range(4): e(f"v_mov_b32 v{vCs+r}, 0")
e("s_waitcnt vmcnt(0)\ns_barrier")
kv_signal()
stamp(13)
early_init()
def q_reads(c):
    r = []
    for ks in range(4):
        W = vWk + 16*(c & 1) + 4*ks
        r += tr(W, vRQ, (64*c+16*ks)*64) + tr(W+2, vRQ, (64*c+16*ks+4)*64)
    return r
for x in q_reads(0): e(x)
for c in range(4):
    m = []
    for ks in range(4):
        X = vXf+16*c+4*ks; W = vWk + 16*(c & 1) + 4*ks
        m += [mfma(vAcc, W, X), mfma16(vCs, W, vSel)]
    e("s_waitcnt lgkmcnt(0)")
    for x in interleave(m[:4], q_reads(c+1) if c < 3 else []) + m[4:]: e(x)
e(f"""s_or_b32 s{sT2}, s{sXb}, {65536+8192}
s_lshr_b32 s{sT3}, s{sW}, 2
s_lshl_b32 s{sT3}, s{sT3}, 7
s_add_u32 s{sT1}, s{sT2}, s{sT3}
s_add_u32 s{sT1}, s{sT1}, 4096
v_add_u32 v{vWa1}, s{sT2}, v{vWa0}
v_lshl_add_u32 v{vT3}, v{vH}, 4, s{sT2}
s_nop 3""")
cs_write(vCs, f"s{sT1}")
e(f"s_cmp_ge_u32 s{sW}, 4\ns_cbranch_scc1 LkvH2\ns_waitcnt lgkmcnt(0)\ns_barrier")
for q in range(4): e(f"ds_read_b128 {vr(vWk+4*q,4)}, v{vWa1} offset:{1024*q}")
cs_read(vAcc+48, 4096); cs_read(vWk+16, 4096+128)
e("s_waitcnt lgkmcnt(0)")
for p in range(0, 16, 2):
    e(pk("v_pk_add_f32", vAcc+p, [('p', vAcc+p), ('p', vWk+p)]))
    e(pk("v_pk_add_f32", vAcc+48+p, [('p', vAcc+48+p), ('p', vWk+16+p)]))
q_epilogue(vAcc+48)
e("s_branch Lp2\nLkvH2:")
for q in range(4): e(f"ds_write_b128 v{vWa1}, {vr(vAcc+4*q,4)} offset:{1024*q}")
e("s_waitcnt lgkmcnt(0)\ns_barrier")
e("Lkvwait:")
stamp(16)
kv_poll_loop()
stamp(17)
kv_dma("b")
e("s_waitcnt vmcnt(0)")

vm = []
def vtag(tag): vm.append(tag)
def vwait_s(tag):
    idx = max(i for i, t in enumerate(vm) if t == tag)
    return f"s_waitcnt vmcnt({min(63, len(vm)-1-idx)})"
def w_dma(G):
    srdw, row = (SWD, 64*G) if G < 22 else (SWO, 64*(G-22))
    return [f"s_add_u32 m0, s{sDm}, {GSLOT[G]}", f"s_add_u32 s{sT0}, s{sDo}, {row*1024}",
            (f"g{G}", f"buffer_load_dwordx4 v{vDa}, {sr(srdw,4)}, s{sT0} offen lds")]
def w_reads(G, F):
    a = GSLOT[G]; win = a // 0xe000; off = a - win*0xe000
    r0, r1 = vRd+2*win, vRd+2*win+1
    return tr(F, r0, off) + tr(F+2, r0, off+1024) + tr(F+4, r1, off) + tr(F+6, r1, off+1024)
def emit_seq(seq):
    for x in seq:
        if isinstance(x, list): emit_seq(x)
        elif isinstance(x, tuple): vtag(x[0]); e(x[1])
        elif callable(x): e(x())
        else: e(x)
e("Lp2:")
stamp(2)
sentinel(vC); vtag("sent")
e(f"s_add_u32 s{sT0}, s{sDm}, {QIMG}\nv_add_u32 v{vAq}, s{sT0}, v{vL16}")
e("s_waitcnt lgkmcnt(0)\ns_barrier")
stamp(3)
e(f"""ds_read_b128 {vr(vQ,4)}, v{vAq}
ds_read_b128 {vr(vKf[0],4)}, v{vAk}
ds_read_b128 {vr(vKf[1],4)}, v{vAk} offset:{KVT}
ds_read_b128 {vr(vVl[0],4)}, v{vAv}
s_waitcnt lgkmcnt(2)""")
e(mfma(vS[0], vKf[0], vQ, "0"))
e("s_nop 11")
e(f"v_max3_f32 v{vT1}, v{vS[0]}, v{vS[0]+1}, v{vS[0]+2}")
for p in range(3, 15, 2): e(f"v_max3_f32 v{vT1}, v{vT1}, v{vS[0]+p}, v{vS[0]+p+1}")
e(f"""v_max_f32 v{vT1}, v{vT1}, v{vS[0]+15}
v_mov_b32 v{vT2}, v{vT1}
s_nop 1
v_permlane32_swap_b32 v{vT1}, v{vT2}
s_nop 1
v_max_f32 v{vT1}, v{vT1}, v{vT2}""")
for r in range(16): e(f"v_sub_f32 v{vC+r}, 0, v{vT1}")
for r in range(16): e(f"v_sub_f32 v{vS[0]+r}, v{vS[0]+r}, v{vT1}")
stamp(5)
side = {T: [] for T in range(64)}
xm = {T: [] for T in range(65)}
for n in range(13):
    side[(n*9)//13].append([f"s_add_u32 s{sT0}, s{sDm}, {(28+8*n)*1024}", f"s_mov_b32 m0, s{sT0}", "s_nop 0",
                    ("kv", f"buffer_load_dwordx4 v{vL16}, {sr(SWS,4)}, s{sT0} offen sc1 lds")])
for T0, dt, Gs in ((13, 3, range(0, 6)), (33, 2, range(6, 11)), (48, 1, range(11, 21))):
    for n, G in enumerate(Gs): side[T0 + dt*n].append(w_dma(G))
side[20].append([f"v_lshlrev_b32 v{vT3}, 10, v{vLane}", f"s_lshl_b32 s{sT1}, s{sW}, 16", f"s_lshl_b32 s{sT0}, s{sCS}, 7",
                 f"s_add_u32 s{sT1}, s{sT1}, s{sT0}", ("t", f"buffer_load_dword v{vT2}, v{vT3}, {sr(SWO,4)}, s{sT1} offen")])
side[23].append([f"s_lshl_b32 s{sT0}, s{sCS}, 7", f"s_add_u32 s{sT0}, s{sT0}, {1344*1024}",
                 ("t", f"buffer_load_dword v{vT2}, v{vT3}, {sr(SWD,4)}, s{sT0} offen")])
HPT = 27
pollidx = []
side[HPT].append([f"s_cmp_lg_u32 s{sW}, 4", "s_cbranch_scc1 Lnohp", h_poll_issue(), lambda: (pollidx.append(len(vm)), "Lnohp:")[1]])
for i in range(22):
    T = 32 + (i*30)//22
    c = [f"s_add_u32 s{sC0}, s{sHo}, {1024*i}"] if i % 4 == 0 else []
    side[T].append(c + [(f"h{i}", f"buffer_load_dwordx4 {vr(vHf+4*i,4)}, v{vL16}, {sr(SWS,4)}, s{sC0} offen offset:{1024*(i%4)} sc1")])
lastm = {}
for T0, span, Gs in ((36, 12, range(0, 6)), (50, 12, range(6, 11))):
    k = len(Gs)
    for n, G in enumerate(Gs):
        F = vWf[G % 3]
        t0 = T0 + (2*n*span)//(2*k); t1 = T0 + ((2*n+1)*span)//(2*k)
        lastm[G] = t1+1
        assert G < 3 or t0 > lastm[G-3]
        for x in w_reads(G, F): side[t0].append([x])
        c0 = "0" if G == 0 else None
        w = (lambda g=G: vwait_s(f"h{g}"))
        xm[t0+1].append([w, mfma(vAf[0], F, vHf+4*G, c0)]); xm[t1+1].append([mfma(vAf[1], F+4, vHf+4*G, c0)])
def last_txt(c): return c[-1][1] if isinstance(c[-1], tuple) else c[-1]
def last_tag(c): return c[-1][0] if isinstance(c[-1], tuple) else ""
if "--dx" in sys.argv:
    dx = sys.argv[sys.argv.index("--dx")+1]
    vm += ["kv", "g6", "g8", "g14", "g21"] + [f"h{i}" for i in range(22)]
    for T in range(64):
        if "w" in dx: side[T] = [c for c in side[T] if not last_tag(c).startswith("g")]
        if "h" in dx: side[T] = [c for c in side[T] if not last_tag(c).startswith("h")]
        if "r" in dx: side[T] = [c for c in side[T] if "ds_" not in last_txt(c)]
        if "k" in dx: side[T] = [c for c in side[T] if last_tag(c) != "kv"]
        if "m" in dx: xm[T] = []
PRI = int(sys.argv[sys.argv.index("--pri")+1]) if "--pri" in sys.argv else 2
lastg = {12: "kv", 32: "g5", 48: "g10"}
for T in range(64):
    X = vS[T & 1]; Y = vS[(T+1) & 1]
    rel = T % 16
    e("s_waitcnt lgkmcnt(0)")
    if T in lastg:
        if "--abar" in sys.argv: stamp(32+3*list(lastg).index(T))
        e(vwait_s(lastg[T]))
        if T == 32:
            e(f"""s_cmp_lg_u32 s{sW}, 4
            s_cbranch_scc1 Lhok
            s_mov_b32 s{sT0}, 0
            s_waitcnt vmcnt({len(vm)-pollidx[0]})
            Lhp:
            v_cmp_ne_u64 vcc, s[{sNo}:{sNo+1}], {vr(vPoll,2)}
            s_add_u32 s{sT0}, s{sT0}, 1
            s_cmp_ge_u32 s{sT0}, 100000
            s_cbranch_vccz Lhok
            s_cbranch_scc1 Lhok
            s_sleep 4
            {h_poll_issue()}
            s_waitcnt vmcnt(0)
            s_branch Lhp
            Lhok:""")
        if "--abar" in sys.argv: stamp(33+3*list(lastg).index(T))
        e("s_barrier")
        if "--abar" in sys.argv: stamp(34+3*list(lastg).index(T))
        if T == 12:
            e(f"""s_cmp_lg_u32 s{sW}, 4
            s_cbranch_scc1 Lsig_h
            v_mov_b32 v{vPoll}, s{sNo}
            v_mov_b32 v{vPoll+1}, s{sNo+1}
            s_mov_b64 exec, 1
            buffer_store_dwordx2 {vr(vPoll,2)}, off, {sr(SWS,4)}, s{sHs} sc1
            s_mov_b64 exec, -1
            Lsig_h:""")
    if T and rel == 0: e(f"v_add_u32 v{vAk}, {16*KVT}, v{vAk}\nv_add_u32 v{vAv}, {16*KVT}, v{vAv}")
    seg0 = max([0] + [t for t in lastg if t <= T]); seg1 = min([64] + [t for t in lastg if t > T])
    if PRI == 2:
        if (seg1 - T) % 2 == 0: e(f"s_setprio {((seg1-T)//2 - 1) % 4}")
    ex = [f"v_exp_f32 v{X+i}, v{X+i}" for i in range(16)]
    rd = [f"ds_read_b128 {vr(vVh,4)}, v{vAv} offset:{rel*KVT+528}"]
    if T+1 < 64: rd.append(f"ds_read_b128 {vr(vVl[(T+1)&1],4)}, v{vAv} offset:{(rel+1)*KVT}")
    if T+2 < 64: rd.append(f"ds_read_b128 {vr(vKf[T&1],4)}, v{vAk} offset:{(rel+2)*KVT}")
    seq = ex[0:2] + ([smf(vO, vVh, Y+8, vIdx)] if T else []) + interleave(ex[2:5], rd)
    if T+1 < 64: seq.append(mfma(Y, vKf[(T+1) & 1], vQ, vr(vC, 16)))
    x2 = xm[T]
    assert len(x2) <= 2
    if len(x2) == 2: tail = ex[5:8] + [x2[0]] + ex[8:11] + [smf(vO, vVl[T & 1], X, vIdx)] + ex[11:14] + [x2[1]] + ex[14:16]
    else: tail = ex[5:10] + [smf(vO, vVl[T & 1], X, vIdx)] + ex[10:14] + x2 + ex[14:16]
    if "--nord" in sys.argv and T > 2: seq = [x for x in seq if "ds_read" not in x]
    if side[T]: tail = interleave(tail[:-3], side[T]) + tail[-3:]
    emit_seq(seq + tail)
assert not xm[64]
e("s_waitcnt lgkmcnt(0)\ns_nop 0")
e(smf(vO, vVh, vS[1]+8, vIdx))
e(f"s_mov_b32 s{sRetry}, 0")
e("Lfin:")
e(f"""s_nop 9
s_mov_b32 s{sC0}, {f2u(2.0**40):#x}
s_mov_b32 s{sC1}, {f2u(2.0**126):#x}
v_rcp_f32 v{vO+10}, v{vO+8}
v_max3_f32 v{vT1}, abs(v{vO}), abs(v{vO+1}), abs(v{vO+2})
v_max3_f32 v{vT1}, v{vT1}, abs(v{vO+3}), abs(v{vO+4})
v_max3_f32 v{vT1}, v{vT1}, abs(v{vO+5}), abs(v{vO+6})
v_max_f32 v{vT1}, v{vT1}, abs(v{vO+7})
v_cmp_nlt_f32 vcc, v{vO+8}, s{sC0}
v_cmp_nlt_f32 s[{sEx}:{sEx+1}], v{vT1}, s{sC1}""")
for p in range(8): e(f"v_mul_f32 v{vO+p}, v{vO+p}, v{vO+10}")
e(f"s_or_b64 vcc, vcc, s[{sEx}:{sEx+1}]")
for p in range(4): e(f"v_cvt_pk_bf16_f32 v{vO+p}, v{vO+2*p}, v{vO+2*p+1}")
for p in range(4): e(f"v_min_u32 v{vO+p}, -2, v{vO+p}")
e("s_cbranch_vccnz Lfallback\nLok:" if "--noside" not in sys.argv and "--dx" not in sys.argv else "Lok:")
emit_seq([("o", f"buffer_store_dwordx4 {vr(vO,4)}, v{vL16}, {sr(SWS,4)}, s{sOp} offen sc1")])
stamp(6)

def o_loads():
    for k in range(8):
        e(f"buffer_load_dwordx4 {vr(vOf+4*k,4)}, v{vL16}, {sr(SWS,4)}, s{sOc if k<4 else sOc2} offen offset:{1024*(k%4)} sc1")
def reduce_read(acc):
    for q in range(4):
        e(f"ds_read_b128 {vr(acc+8*q,4)}, v{vRr} offset:{2048*q}\nds_read_b128 {vr(acc+8*q+4,4)}, v{vRr} offset:{2048*q+1024}")
def reduce_sum(acc):
    for p in range(0, 8, 2):
        e(pk("v_pk_add_f32", acc+p, [('p', acc+p), ('p', acc+8+p)]))
        e(pk("v_pk_add_f32", acc+16+p, [('p', acc+16+p), ('p', acc+24+p)]))
    for p in range(0, 8, 2): e(pk("v_pk_add_f32", acc+p, [('p', acc+p), ('p', acc+16+p)]))
def reduce_write(acc):
    return [f"ds_write_b128 v{vRw}, {vr(acc+4*q,4)} offset:{ASL*(q//2)+1024*(q%2)}" for q in range(8)]
e(vwait_s("g20"))
e("s_setprio 0\ns_barrier")
stamp(8)
for x in w_reads(11, vWf[11 % 3]) + w_reads(12, vWf[12 % 3]): e(x)
for G in range(11, 22):
    F = vWf[G % 3]
    post = []
    if G == 20:
        e("s_waitcnt lgkmcnt(0)"); e(vwait_s("g21")); e("s_barrier")
        post = w_reads(21, vWf[0]) + [w_dma(29)]
    elif G == 21: e("s_waitcnt lgkmcnt(0)")
    else:
        e("s_waitcnt lgkmcnt(4)")
        if G+2 <= 20: post = w_reads(G+2, vWf[(G+2) % 3])
    if G < 15: post = post + [w_dma(21+2*(G-11)), w_dma(22+2*(G-11))]
    if G == 15: post = post + [("x", f"buffer_load_dwordx4 {vr(vS[1],4)}, v{vRa}, {sr(SX,4)}, s{sXf} offen")]
    e(vwait_s(f"h{G}"))
    if G == 21: e(f"s_cmp_ge_u32 s{sKq}, 2\ns_cbranch_scc1 Lskip21")
    emit_seq(interleave([mfma(vAf[0], F, vHf+4*G), mfma(vAf[1], F+4, vHf+4*G)], post))
e("Lskip21:")
o_loads()
e("s_nop 3")
for x in reduce_write(vAf[0]): e(x)
e("s_waitcnt vmcnt(8) lgkmcnt(0)\ns_barrier")
reduce_read(vAf[0])
for p in range(4):
    e(f"v_lshlrev_b32 v{vXr+2*p}, 16, v{vS[1]+p}\nv_and_b32 v{vXr+1+2*p}, 0xffff0000, v{vS[1]+p}")
WOF = [168+8*k for k in range(7)] + [vWf[1]]
e("s_waitcnt lgkmcnt(0)")
for k in range(3):
    for x in w_reads(22+k, WOF[k]): e(x)
e("s_barrier")
reduce_sum(vAf[0])
for p in range(8): e(f"v_mul_f32 v{vAf[0]+8+p}, {f2u(-1.4426950408889634):#x}, v{vAf[0]+p}")
for p in range(8): e(f"v_exp_f32 v{vAf[0]+8+p}, v{vAf[0]+8+p}")
for k in range(3, 6):
    for x in w_reads(22+k, WOF[k]): e(x)
for p in range(8): e(f"v_add_f32 v{vAf[0]+8+p}, 1.0, v{vAf[0]+8+p}")
for p in range(8): e(f"v_rcp_f32 v{vAf[0]+8+p}, v{vAf[0]+8+p}")
for k in range(6, 8):
    for x in w_reads(22+k, WOF[k]): e(x)
for p in range(8): e(f"v_mul_f32 v{vAf[0]+p}, v{vAf[0]+p}, v{vAf[0]+8+p}")
stamp(9)
e(f"s_mov_b32 s{sT0}, 0\ns_waitcnt vmcnt(0) lgkmcnt(0)")
for k in range(8):
    B = vOf+4*k
    e(f"""Loc{k}:
    v_max3_u32 v{vT1}, v{B}, v{B+1}, v{B+2}
    v_max_u32 v{vT1}, v{vT1}, v{B+3}
    v_cmp_eq_u32 vcc, -1, v{vT1}
    s_cbranch_vccnz Lor{k}
    Log{k}:""")
    e(mfma(vAs[0], WOF[k], B, "0" if k == 0 else None))
stamp(7)
wr = [f"ds_write_b128 v{vRw}, {vr(vAs[0]+4*q,4)} offset:{ASL*(q//2)+1024*(q%2)}" for q in range(8)]
m1 = [mfma(vAs[1], WOF[k]+4, vOf+4*k, "0" if k == 0 else None) for k in range(8)]
for x in m1[:3] + ["s_nop 8"] + interleave(m1[3:], wr[:4]) + ["s_nop 10"] + wr[4:]: e(x)
stamp(10)
e("s_waitcnt lgkmcnt(0)\ns_barrier")
reduce_read(vAs[0])
e("s_waitcnt lgkmcnt(0)")
reduce_sum(vAs[0])
for p in range(0, 8, 2): e(pk("v_pk_mul_f32", vAs[0]+p, [('p', vAs[0]+p), ('p', vAf[0]+p)]))
e("s_nop 1")
for p in range(4): e(f"v_permlane32_swap_b32 v{vAs[0]+p}, v{vAs[0]+4+p}")
e("s_nop 1")
for p in range(0, 8, 2): e(pk("v_pk_add_f32", vAs[0]+p, [('p', vAs[0]+p), ('p', vXr+p)]))
for p in range(4): e(f"v_cvt_pk_bf16_f32 v{vAs[0]+p}, v{vAs[0]+2*p}, v{vAs[0]+2*p+1}")
e(f"buffer_store_dwordx4 {vr(vAs[0],4)}, v{vRa}, {sr(SOUT,4)}, s{sXf} offen")
if "--busy1" in sys.argv: busy(1)
stamp(11)
if RT: e(f"s_waitcnt vmcnt(0)\ns_memrealtime s[100:101]\ns_waitcnt lgkmcnt(0)\nv_mov_b32 v0, s100\nbuffer_store_dword v0, off, {sr(SWS,4)}, s{sPo} offset:56")
e("Lend:\ns_endpgm")

for k in range(8):
    e(f"""Lor{k}:
    s_add_u32 s{sT0}, s{sT0}, 1
    s_cmp_ge_u32 s{sT0}, 200000
    s_cbranch_scc1 Log{k}""")
    for k2 in range(k, 8):
        e(f"buffer_load_dwordx4 {vr(vOf+4*k2,4)}, v{vL16}, {sr(SWS,4)}, s{sOc if k2<4 else sOc2} offen offset:{1024*(k2%4)} sc1")
    e(f"s_waitcnt vmcnt(0)\ns_branch Loc{k}")
e("Lfallback:")
e(f"""s_cmp_lg_u32 s{sRetry}, 0
s_cbranch_scc1 Lok
s_mov_b32 s{sRetry}, 1
s_mov_b32 s{sSt}, 0
v_mov_b32 v{vT1}, 0xff800000
Lfb1:
buffer_load_dwordx4 {vr(vKf[0],4)}, v{vL16}, {sr(SWS,4)}, s{sSt} offen sc1
s_waitcnt vmcnt(0)""")
e(mfma(vS[0], vKf[0], vQ, "0"))
e("s_nop 11")
for p in range(0, 16, 2): e(f"v_max3_f32 v{vT1}, v{vT1}, v{vS[0]+p}, v{vS[0]+p+1}")
e(f"""s_add_u32 s{sSt}, s{sSt}, {KVT}
s_cmp_lt_u32 s{sSt}, {64*KVT}
s_cbranch_scc1 Lfb1
v_mov_b32 v{vT2}, v{vT1}
s_nop 1
v_permlane32_swap_b32 v{vT1}, v{vT2}
s_nop 1
v_max_f32 v{vT1}, v{vT1}, v{vT2}""")
for r in range(16): e(f"v_sub_f32 v{vC+r}, 0, v{vT1}")
for r in range(12): e(f"v_mov_b32 v{vO+r}, 0")
e(f"""v_subrev_u32 v{vAv}, {48*KVT}, v{vAv}
s_mov_b32 s{sSt}, 0
Lfb2:
buffer_load_dwordx4 {vr(vKf[0],4)}, v{vL16}, {sr(SWS,4)}, s{sSt} offen sc1
buffer_load_dwordx4 {vr(vVl[0],4)}, v{vAv}, {sr(SWS,4)}, s{sSt} offen sc1
buffer_load_dwordx4 {vr(vVh,4)}, v{vAv}, {sr(SWS,4)}, s{sSt} offen offset:528 sc1
s_waitcnt vmcnt(0)""")
e(mfma(vS[0], vKf[0], vQ, vr(vC, 16)))
e("s_nop 11")
for i in range(16): e(f"v_exp_f32 v{vS[0]+i}, v{vS[0]+i}")
e("s_nop 1")
e(smf(vO, vVl[0], vS[0], vIdx)); e(smf(vO, vVh, vS[0]+8, vIdx))
e(f"""s_add_u32 s{sSt}, s{sSt}, {KVT}
s_cmp_lt_u32 s{sSt}, {64*KVT}
s_cbranch_scc1 Lfb2
s_branch Lfin
Lcodeend:""")

L += ['.section .rodata,"a"', ".p2align 6", f".amdhsa_kernel {NAME}_kernel",
      "  .amdhsa_next_free_vgpr 256", "  .amdhsa_next_free_sgpr 102", "  .amdhsa_accum_offset 256",
      "  .amdhsa_group_segment_fixed_size 0", "  .amdhsa_kernarg_size 96", "  .amdhsa_user_sgpr_count 2",
      "  .amdhsa_user_sgpr_kernarg_segment_ptr 1", "  .amdhsa_system_sgpr_workgroup_id_x 1", ".end_amdhsa_kernel"]
open(OUT, "w").write("\n".join(L) + "\n")
print("wrote", OUT, len(L), "lines")
```

```python
import sys, struct
NAME = "recurrent_scan__grouped_kv_mqa__geglu_ffn__prompt"
PROF = "--prof" in sys.argv
OUT = [a for a in sys.argv[1:2] if not a.startswith("--")]
OUT = OUT[0] if OUT else f"cdna_kernels/{NAME}.s"

L = []
def e(s):
    for ln in s.split("\n"):
        if not ln.strip(): continue
        L.append(("    " + ln.strip()) if not ln.strip().endswith(":") else ln.strip())
def f2u(x): return struct.unpack("<I", struct.pack("<f", x))[0]
def vr(a, n): return f"v[{a}:{a+n-1}]"
def sr(a, n): return f"s[{a}:{a+n-1}]"

KVT = 2080
KVIMG = 0
HIMG = 135168
OIMG = HIMG + 64*88*1024
HFLG = OIMG + 64*32*1024
PROFO = HFLG + 256*128
WS_BYTES = PROFO + 256*8*256
CNT_KV = 0
KVRDY = 128
STG = 45056
XOFF, GOFF, UOFF, QOFF = 0, 16384, 28672, 40960
STGK, QOFFK, NBK = 24832, 20736, 5
QIMG = 135168
STATM = 160768
CSUM = 162816
MRX = 159744
ZERO = 163712
FLAG = 163776
LDS_BYTES = 163840
SX, SWQ, SWK, SWV, SWO, SWG, SWD, SOUT, SDBG, SWS = 4, 8, 12, 16, 20, 24, 28, 32, 36, 40
sI, sJ, sW, sW4 = 44, 45, 46, 47
sXo, sWo, sQo, sLb = 48, 49, 50, 51
sMx, sMw, sMq = 52, 53, 54
sSt, sDl, sT0, sT1, sT2, sT3 = 55, 56, 57, 58, 59, 60
sTB, sCS, sRetry, sRb = 61, 62, 63, 3
sEx = 88
sTm = 90
sPo = 92
sC0, sC1, sC2, sC3 = 94, 95, 96, 97
sOp = 98
TOUCH = int("--touch" in sys.argv)
vLane, vH, vT0, vT1, vT2, vT3 = 1, 2, 3, 4, 5, 6
vXa0, vXa1, vWa0, vWa1, vWa2, vQa = 7, 8, 9, 10, 11, 12
vRX = 13
vRW, vRQ = 17, 18
vSel = 20
vCs = 24
vF = 32
vAcc = 96
vSt = 160
vQ = 8; vKf = [12, 16]; vVl = [20, 24]; vVh = 28
vS = [32, 48]; vC = 64
vWf = [80, 88, 96]
vAf = [104, 120]
vHf = 136
vO = 224
vIdx, vAk, vAv, vDa, vL16, vRa = 240, 241, 242, 243, 244, 245
vPoll = 246
vAq = 7
vRd = 248
vRw, vRr = 254, 255
vOf = 136
vAs = [32, 48]
vXr = 64
sKq, sTt, sHo, sDo, sDm, sHc, sXf, sOc, sOc2, sHs = 64, 65, 66, 67, 68, 69, 70, 71, 72, 73
sNo = 86
ASL = 8320
def aslot(n): return ASL*n
SP = [135168, 143360, 151552]
GSLOT = SP + [aslot(n) for n in range(0, 8)]
GSLOT += SP + [aslot(n) for n in (0, 1, 2, 8, 9, 10, 11)]
GSLOT += [aslot(n) for n in (4, 5, 6, 7, 12, 13, 14, 15)] + [SP[0]]
RED = aslot(0)

nstamp = [0]
DBGT = "--dbgt" in sys.argv
DT = {0: 75, 12: 76, 1: 77, 2: 78, 3: 79, 6: 80, 9: 81, 7: 82, 11: 83}
def stamp(k):
    if DBGT and k in DT:
        e(f"s_memrealtime s[{sTm}:{sTm+1}]\ns_waitcnt lgkmcnt(0)\ns_sub_u32 s{DT[k]}, s{sTm}, s100")
        if k == 11:
            e(f"s_memtime s[{sTm}:{sTm+1}]\ns_waitcnt lgkmcnt(0)\ns_sub_u32 s84, s{sTm}, s92")
            e(f"s_cmp_lg_u32 s2, 64\ns_cbranch_scc1 Lend\ns_cmp_lg_u32 s{sW}, 4\ns_cbranch_scc1 Lend")
            for n, r in enumerate(range(75, 85)):
                e(f"v_mov_b32 v0, s{r}\nbuffer_store_dword v0, off, {sr(SDBG,4)}, 0 offset:{4+4*n}\ns_nop 1")
    if not PROF: return
    e(f"""s_memtime s[{sTm}:{sTm+1}]
    s_waitcnt lgkmcnt(0)
    v_mov_b32 v0, s{sTm}
    buffer_store_dword v0, off, {sr(SWS,4)}, s{sPo} offset:{4*k}""")
    if k in RTS:
        e(f"""s_memrealtime s[{sTm}:{sTm+1}]
        s_waitcnt lgkmcnt(0)
        v_mov_b32 v0, s{sTm}
        buffer_store_dword v0, off, {sr(SWS,4)}, s{sPo} offset:{4*RTS[k]}""")
RTS = {12: 24, 1: 25, 5: 26, 6: 27, 11: 28}

def tick(acc):
    if not PROF or "--notick" in sys.argv: return ""
    r = f"s_memtime s[{sTm}:{sTm+1}]\ns_waitcnt lgkmcnt(0)\n"
    if acc is not None: r += f"s_sub_u32 s99, s{sTm}, s99\ns_add_u32 s{acc}, s{acc}, s99\n"
    return r + f"s_mov_b32 s99, s{sTm}"

def interleave(main, fill):
    out = []; n = len(main); m = len(fill); k = 0
    for i, a in enumerate(main):
        out.append(a)
        t = (m * (i + 1)) // n
        out += fill[k:t]; k = t
    return out

def mfma(d, a, b, c=None):
    c = vr(d, 16) if c is None else c
    return f"v_mfma_f32_32x32x16_bf16 {vr(d,16)}, {vr(a,4)}, {vr(b,4)}, {c}"
def mfma16(d, a, b): return f"v_mfma_f32_16x16x32_bf16 {vr(d,4)}, {vr(a,4)}, {vr(b,4)}, {vr(d,4)}"
def smf(d, a, b, idx): return f"v_smfmac_f32_32x32x32_bf16 {vr(d,16)}, {vr(a,4)}, {vr(b,8)}, v{idx}"

def kv_poll_issue(): return f"buffer_load_dwordx2 {vr(vPoll,2)}, off, {sr(SDBG,4)}, 0 offset:{KVRDY} sc1"
def kv_poll_take():
    e(f"v_readfirstlane_b32 s{sNo}, v{vPoll}\nv_readfirstlane_b32 s{sNo+1}, v{vPoll+1}")
def kv_poll_loop():
    e(f"""s_mov_b32 s{sT0}, 0
    Lpoll_kv:
    {kv_poll_issue()}
    s_waitcnt vmcnt(0)""")
    kv_poll_take()
    e(f"""s_add_u32 s{sT0}, s{sT0}, 1
    s_cmp_lg_u32 s{sNo}, 0
    s_cbranch_scc1 Lpolld_kv
    s_cmp_ge_u32 s{sT0}, 100000
    s_cbranch_scc1 Lpolld_kv
    s_sleep 4
    s_branch Lpoll_kv
    Lpolld_kv:""")
def kv_signal():
    e(f"""s_cmp_lg_u32 s{sW}, 0
    s_cbranch_scc1 Lsig_kv
    v_mov_b32 v{vT1}, 1
    s_mov_b64 exec, 1
    buffer_atomic_add v{vT1}, off, {sr(SDBG,4)}, 0 offset:{CNT_KV} sc0 sc1
    s_memrealtime s[{sTm}:{sTm+1}]
    s_waitcnt vmcnt(0) lgkmcnt(0)
    v_readfirstlane_b32 s{sT0}, v{vT1}
    s_or_b32 s{sTm}, s{sTm}, 1
    v_mov_b32 v{vPoll}, s{sTm}
    v_mov_b32 v{vPoll+1}, s{sTm+1}
    s_cmp_lg_u32 s{sT0}, 15
    s_cbranch_scc1 Lsig_kv2
    buffer_store_dwordx2 {vr(vPoll,2)}, off, {sr(SDBG,4)}, 0 offset:{KVRDY} sc1
    Lsig_kv2:
    s_mov_b64 exec, -1
    Lsig_kv:""")
def h_poll_issue():
    return f"""v_and_b32 v{vPoll}, 15, v{vLane}
    v_lshlrev_b32 v{vPoll}, 7, v{vPoll}
    buffer_load_dwordx2 {vr(vPoll,2)}, v{vPoll}, {sr(SWS,4)}, s{sHc} offen sc1"""

hdr = open(f"cdna_kernels/{NAME}.s.ref").read().split("\n")
hdr = [h for h in hdr[:15] if h.startswith(";") and "@launch" not in h]
L += hdr
L.append(f"; @launch grid=(256,1,1) block=(512,1,1) lds={LDS_BYTES}")
L += ['.amdgcn_target "amdgcn-amd-amdhsa--gfx950"', ".text", f".globl {NAME}_kernel", ".p2align 8",
      f".type {NAME}_kernel,@function"]
e(f"{NAME}_kernel:")
RT = PROF and "--notick" in sys.argv
if RT: e("s_memrealtime s[100:101]\ns_memtime s[98:99]")
if DBGT: e("s_memrealtime s[100:101]\ns_memtime s[92:93]")
def busy(tag):
    e(f"s_mov_b32 s99, 16\nLbusy{tag}:")
    for i in range(64): e(f"v_exp_f32 v{200+i%8}, v{200+i%8}")
    e(f"s_sub_u32 s99, s99, 1\ns_cmp_lg_u32 s99, 0\ns_cbranch_scc1 Lbusy{tag}")
if "--busy0" in sys.argv: busy(0)
e(f"""s_cmp_ge_u32 s2, 256
s_cbranch_scc1 Lend
s_load_dwordx16 s[64:79], s[0:1], 0
s_load_dwordx8 s[80:87], s[0:1], 64
v_and_b32 v{vLane}, 63, v0
v_lshrrev_b32 v{vT0}, 6, v0
v_lshrrev_b32 v{vH}, 5, v{vLane}
v_readfirstlane_b32 s{sW}, v{vT0}
s_and_b32 s{sT0}, s2, 7
s_lshr_b32 s{sT1}, s2, 3
s_and_b32 s{sI}, s{sT0}, 1
s_lshl_b32 s{sI}, s{sI}, 3
s_and_b32 s{sT2}, s{sT1}, 7
s_add_u32 s{sI}, s{sI}, s{sT2}
s_lshr_b32 s{sJ}, s{sT0}, 1
s_lshl_b32 s{sJ}, s{sJ}, 2
s_lshr_b32 s{sT3}, s{sT1}, 3
s_sub_u32 s{sJ}, s{sJ}, s{sT3}
s_add_u32 s{sJ}, s{sJ}, 3
s_and_b32 s{sTB}, s{sT0}, 3
s_lshl_b32 s{sTB}, s{sTB}, 3
s_add_u32 s{sTB}, s{sTB}, s{sT2}
s_lshr_b32 s{sCS}, s{sT0}, 2
s_lshl_b32 s{sCS}, s{sCS}, 2
s_add_u32 s{sCS}, s{sCS}, s{sT3}
s_and_b32 s{sW4}, s{sW}, 3""")
e(f"""v_lshrrev_b32 v{vT0}, 3, v{vLane}
v_lshlrev_b32 v{vT0}, 10, v{vT0}
v_and_b32 v{vT1}, 7, v{vLane}
v_lshrrev_b32 v{vT2}, 4, v{vLane}
v_xor_b32 v{vT1}, v{vT1}, v{vT2}
v_lshl_add_u32 v{vXa0}, v{vT1}, 4, v{vT0}
v_xor_b32 v{vXa1}, 64, v{vXa0}
v_add_u32 v{vXa1}, {8192-1024}, v{vXa1}""")
for k, r in enumerate((vWa0, vWa1, vWa2)):
    e(f"""v_add_u32 v{vT0}, {64*k}, v{vLane}
    v_mul_u32_u24 v{vT1}, 43691, v{vT0}
    v_lshrrev_b32 v{vT1}, 19, v{vT1}
    v_mul_u32_u24 v{vT2}, 12, v{vT1}
    v_sub_u32 v{vT0}, v{vT0}, v{vT2}
    v_mul_u32_u24 v{vT1}, 2752, v{vT1}
    v_lshl_add_u32 v{r}, v{vT0}, 4, v{vT1}""")
    if k: e(f"v_subrev_u32 v{r}, {1024*k}, v{r}")
e(f"""v_lshrrev_b32 v{vT0}, 2, v{vLane}
v_lshlrev_b32 v{vT0}, 10, v{vT0}
v_and_b32 v{vT1}, 3, v{vLane}
v_lshl_add_u32 v{vQa}, v{vT1}, 4, v{vT0}""")
e(f"""s_lshl_b32 s{sXo}, s{sI}, 17
s_lshl_b32 s{sT0}, s{sW}, 14
s_add_u32 s{sXo}, s{sXo}, s{sT0}
s_mul_i32 s{sT0}, s{sJ}, 96
s_min_u32 s{sT0}, s{sT0}, 1280
s_lshl_b32 s{sT0}, s{sT0}, 1
s_mul_i32 s{sWo}, s{sW4}, {16*2752}
s_add_u32 s{sWo}, s{sWo}, s{sT0}
s_lshl_b32 s{sQo}, s{sW4}, 14
s_lshl_b32 s{sT0}, s{sJ}, 6
s_add_u32 s{sQo}, s{sQo}, s{sT0}
s_lshl_b32 s{sMx}, s{sW}, 11
s_mul_i32 s{sMw}, s{sW}, 3072
s_add_u32 s{sMw}, s{sMw}, {GOFF}
s_lshl_b32 s{sMq}, s{sW4}, 10
s_add_u32 s{sMq}, s{sMq}, {QOFF}
s_mov_b32 s{sLb}, 0
s_mov_b32 s{sRetry}, 0
s_mov_b32 s{sC3}, {(-2*STG) & 0xffffffff}
s_waitcnt lgkmcnt(0)""")
def srd(d, p, nbytes):
    e(f"s_mov_b32 s{d}, s{p}\ns_mov_b32 s{d+1}, s{p+1}\ns_mov_b32 s{d+2}, {nbytes}\ns_mov_b32 s{d+3}, 0x20000")
srd(SX, 64, 2048*1024); srd(SWQ, 66, 512*1024)
e(f"s_cmp_ge_u32 s{sW}, 4\ns_cselect_b32 s{SWG}, s78, s76\ns_cselect_b32 s{SWG+1}, s79, s77\ns_mov_b32 s{SWG+2}, {512*2752}\ns_mov_b32 s{SWG+3}, 0x20000")
srd(SWS, 86, WS_BYTES)
srd(SWK, 68, 16384); srd(SWV, 70, 16384); srd(SWO, 72, 512*1024)
srd(SWD, 80, 1376*1024); srd(SOUT, 82, 2048*1024); srd(SDBG, 84, 256)
if PROF:
    e(f"s_lshl_b32 s{sPo}, s2, 3\ns_add_u32 s{sPo}, s{sPo}, s{sW}\ns_lshl_b32 s{sPo}, s{sPo}, 8\ns_add_u32 s{sPo}, s{sPo}, {PROFO}")
stamp(0)
if RT: e(f"s_nop 1\nv_mov_b32 v0, s100\nbuffer_store_dword v0, off, {sr(SWS,4)}, s{sPo} offset:60\ns_nop 1\nv_mov_b32 v0, s98\nbuffer_store_dword v0, off, {sr(SWS,4)}, s{sPo} offset:16")
elif PROF: e("s_mov_b32 s100, 0\ns_mov_b32 s101, 0")
def dma_groups(kind):
    gx = [f"s_add_u32 m0, s{sLb}, s{sMx}", "s_nop 0",
          f"buffer_load_dwordx4 v{vXa0}, {sr(SX,4)}, s{sXo} offen lds"]
    gx2 = [f"buffer_load_dwordx4 v{vXa1}, {sr(SX,4)}, s{sXo} offen offset:1024 lds", f"s_add_u32 s{sXo}, s{sXo}, 128"]
    w0 = [f"s_add_u32 m0, s{sLb}, s{sMw}", "s_nop 0", f"buffer_load_dwordx4 v{vWa0}, {sr(SWG,4)}, s{sWo} offen lds"]
    w1 = [f"buffer_load_dwordx4 v{vWa1}, {sr(SWG,4)}, s{sWo} offen offset:1024 lds"]
    w2 = [f"buffer_load_dwordx4 v{vWa2}, {sr(SWG,4)}, s{sWo} offen offset:2048 lds", f"s_add_u32 s{sWo}, s{sWo}, {64*2752}"]
    q = [f"s_add_u32 m0, s{sLb}, s{sMq}", "s_nop 0", f"buffer_load_dwordx4 v{vQa}, {sr(SWQ,4)}, s{sQo} offen lds",
         f"s_add_u32 s{sQo}, s{sQo}, 65536"]
    stg, nb = (STGK, NBK) if kind[-1] == "K" else (STG, 3)
    adv = [f"s_add_u32 s{sLb}, s{sLb}, {stg}", f"s_cmp_ge_u32 s{sLb}, {nb*stg}", f"s_cselect_b32 s{sLb}, 0, s{sLb}"]
    if kind == "L": return [gx+gx2, w0+w1, w2, q+adv]
    if kind == "H": return [gx+gx2, w0, w1, w2+adv]
    if kind == "HK": return [gx, gx2, w0+[f"s_add_u32 s{sWo}, s{sWo}, 2048"], adv]
    if kind == "LK": return [gx, gx2, q, adv]
def dma_stage(kind): return sum(dma_groups(kind), [])
NDMA = {"L": 6, "H": 5, "LK": 3, "HK": 3}
NX = {"L": TOUCH, "H": TOUCH, "LK": 0, "HK": 0}

if "--pfcode" in sys.argv:
    e(f"""s_getpc_b64 s[94:95]
    Lpc0:
    s_sub_u32 s94, s94, Lpc0-{NAME}_kernel
    s_subb_u32 s95, s95, 0
    v_lshlrev_b32 v210, 7, v0
    v_min_u32 v210, Lcodeend-{NAME}_kernel-4, v210
    global_load_dword v211, v210, s[94:95]""")
if "--pfdata" in sys.argv:
    e(f"""v_lshlrev_b32 v210, 7, v0
    s_lshl_b32 s94, s{sI}, 17
    buffer_load_dword v211, v210, {sr(SX,4)}, s94 offen
    s_add_u32 s94, s94, 65536
    buffer_load_dword v211, v210, {sr(SX,4)}, s94 offen
    v_lshlrev_b32 v210, 10, v0
    s_lshl_b32 s94, s{sJ}, 6
    buffer_load_dword v211, v210, {sr(SWQ,4)}, s94 offen
    s_lshl_b32 s94, s{sCS}, 7
    buffer_load_dword v211, v210, {sr(SWO,4)}, s94 offen
    buffer_load_dword v211, v210, {sr(SWD,4)}, s94 offen
    s_add_u32 s94, s94, 524288
    buffer_load_dword v211, v210, {sr(SWD,4)}, s94 offen
    s_add_u32 s94, s94, 524288
    buffer_load_dword v211, v210, {sr(SWD,4)}, s94 offen
    v_and_b32 v210, 255, v0
    v_mul_u32_u24 v210, 2752, v210
    s_mul_i32 s94, s{sJ}, 96
    s_min_u32 s94, s94, 1280
    s_lshl_b32 s94, s94, 1
    buffer_load_dword v211, v210, {sr(SWG,4)}, s94 offen
    buffer_load_dword v211, v210, {sr(SWG,4)}, s94 offen offset:128
    s_add_u32 s94, s94, {256*2752}
    buffer_load_dword v211, v210, {sr(SWG,4)}, s94 offen
    buffer_load_dword v211, v210, {sr(SWG,4)}, s94 offen offset:128
    v_lshlrev_b32 v210, 14, v0
    buffer_load_dword v211, v210, {sr(SWS,4)}, 0 offen
    v_lshlrev_b32 v210, 12, v0
    buffer_load_dword v211, v210, {sr(SOUT,4)}, 0 offen
    buffer_load_dword v211, off, {sr(SDBG,4)}, 0 sc1""")
if "--busy2" in sys.argv: busy(2); e("s_waitcnt vmcnt(0)")
e(f"""s_cmp_eq_u32 s{sJ}, 15
s_cbranch_scc1 Lkvcu
s_cmp_ge_u32 s{sW}, 4
s_cbranch_scc1 LproH""")

def common_init(kind):
    e(f"""v_and_b32 v{vT0}, 31, v{vLane}
    v_lshrrev_b32 v{vT1}, 1, v{vT0}
    v_and_b32 v{vT1}, 7, v{vT1}
    v_xor_b32 v{vT1}, v{vT1}, v{vH}
    v_lshlrev_b32 v{vT0}, 7, v{vT0}""")
    if kind == "L": e(f"s_and_b32 s{sT0}, s{sW}, 1\ns_lshl_b32 s{sT0}, s{sT0}, 13")
    elif kind == "KV": e(f"s_lshl_b32 s{sT0}, s{sW}, 14")
    else: e(f"s_lshl_b32 s{sT0}, s{sW4}, 12")
    e(f"v_add_u32 v{vT0}, s{sT0}, v{vT0}")
    for ks in range(4):
        e(f"v_xor_b32 v{vT2}, {2*ks}, v{vT1}\nv_lshl_add_u32 v{vRX+ks}, v{vT2}, 4, v{vT0}")
    e(f"""v_bfe_u32 v{vT0}, v{vLane}, 2, 2
    v_lshl_add_u32 v{vT0}, v{vH}, 3, v{vT0}
    v_bfe_u32 v{vT1}, v{vLane}, 4, 1
    v_and_b32 v{vT2}, 3, v{vLane}
    v_lshlrev_b32 v{vT2}, 3, v{vT2}
    v_lshl_add_u32 v{vT3}, v{vT1}, 5, v{vT2}
    v_lshl_add_u32 v{vRQ}, v{vT0}, 6, v{vT3}""")
    if kind == "KV":
        e(f"""v_lshlrev_b32 v{vT1}, 14, v{vT1}
        v_lshl_add_u32 v{vRW}, v{vT0}, 5, v{vT2}
        s_lshr_b32 s{sT0}, s{sW}, 2
        s_lshl_b32 s{sT0}, s{sT0}, 13
        s_add_u32 s{sT1}, s{sT0}, 131072
        v_add3_u32 v{vRW}, v{vRW}, v{vT1}, s{sT1}
        s_add_u32 s{sT1}, s{sT1}, s{sT0}
        v_add_u32 v{vRQ}, s{sT1}, v{vRQ}""")
    else:
        e(f"v_mul_u32_u24 v{vRW}, 192, v{vT0}\nv_add_u32 v{vRW}, v{vRW}, v{vT3}")
        if kind == "L": e(f"s_lshr_b32 s{sT0}, s{sW}, 1\ns_lshl_b32 s{sT0}, s{sT0}, 6\nv_add_u32 v{vRW}, s{sT0}, v{vRW}")
        else: e(f"v_add_u32 v{vRW}, 128, v{vRW}")
    e(f"""v_bfe_u32 v{vT0}, v{vLane}, 4, 1
    v_and_b32 v{vT1}, 15, v{vLane}
    v_cmp_eq_u32 vcc, v{vT0}, v{vT1}
    v_mov_b32 v{vT2}, 0x3f803f80
    s_nop 0
    v_cndmask_b32 v{vSel}, 0, v{vT2}, vcc""")
    for k in range(1, 4): e(f"v_mov_b32 v{vSel+k}, v{vSel}")
    for r in list(range(vCs, vCs+4)) + list(range(vAcc, vAcc+(64 if kind == 'L' else 48))) + list(range(vSt, vSt+4)):
        e(f"v_mov_b32 v{r}, 0")

def stats_ops(x, regs=range(4)):
    r = []
    for k in regs:
        lo, hi = vSt+4+2*(k & 1), vSt+5+2*(k & 1)
        r += [f"v_lshlrev_b32 v{lo}, 16, v{x+k}", f"v_and_b32 v{hi}, 0xffff0000, v{x+k}",
              f"v_add_f32 v{vSt}, v{vSt}, v{lo}", f"v_add_f32 v{vSt+1}, v{vSt+1}, v{hi}",
              f"v_fmac_f32 v{vSt+2}, v{lo}, v{lo}", f"v_fmac_f32 v{vSt+3}, v{hi}, v{hi}"]
    return r

def tr(d, a, off): return [f"ds_read_b64_tr_b16 {vr(d,2)}, v{a} offset:{off}"]
def p1_reads(kind, ks, F):
    if "--noread" in sys.argv: return []
    if kind == "L":
        return [f"ds_read_b128 {vr(F,4)}, v{vRX+ks}"] + tr(F+8, vRW, GOFF+(16*ks)*192) + tr(F+10, vRW, GOFF+(16*ks+4)*192) + \
               tr(F+12, vRW, UOFF+(16*ks)*192) + tr(F+14, vRW, UOFF+(16*ks+4)*192) + \
               [f"ds_read_b128 {vr(F+4,4)}, v{vRX+ks} offset:4096"]
    if kind == "H":
        return [f"ds_read_b128 {vr(F,4)}, v{vRX+ks}"] + tr(F+4, vRQ, QOFF+(16*ks)*64) + tr(F+6, vRQ, QOFF+(16*ks+4)*64) + \
               tr(F+8, vRW, GOFF+(16*ks)*192) + tr(F+10, vRW, GOFF+(16*ks+4)*192) + \
               tr(F+12, vRW, UOFF+(16*ks)*192) + tr(F+14, vRW, UOFF+(16*ks+4)*192)
    if kind == "HK":
        return [f"ds_read_b128 {vr(F,4)}, v{vRX+ks}"] + tr(F+8, vRW, GOFF+(16*ks)*32) + tr(F+10, vRW, GOFF+(16*ks+4)*32)
    if kind == "LK":
        return [f"ds_read_b128 {vr(F,4)}, v{vRX+ks}"] + tr(F+4, vRQ, QOFFK+(16*ks)*64) + tr(F+6, vRQ, QOFFK+(16*ks+4)*64)
def p1_comp(kind, var, F):
    if kind == "L":
        m = [mfma(vAcc, F+8, F), mfma(vAcc+16, F+12, F), mfma16(vCs, F+8+4*(var & 1), vSel), mfma(vAcc+32, F+8, F+4), mfma(vAcc+48, F+12, F+4)]
        return m, stats_ops(F+4*(var >> 1), (2, 3))
    if kind == "H":
        m = [mfma(vAcc, F+4, F), mfma(vAcc+16, F+8, F), mfma(vAcc+32, F+12, F)]
        if var < 3: m.insert(1, mfma16(vCs, F+4+4*var, vSel))
        return m, stats_ops(F, (0, 1))
    if kind == "HK":
        return [mfma(vAcc+16, F+8, F), mfma16(vCs, F+8, vSel), mfma(vAcc+32, F, F+8)], stats_ops(F, (0, 1))
    if kind == "LK":
        return [mfma(vAcc, F+4, F), mfma16(vCs, F+4, vSel)], stats_ops(F, (2, 3))

BARX = "s_nop 0" if "--nobar" in sys.argv else "s_barrier"
NST = 208 if "--rep" in sys.argv else 8
def spread(m, fill):
    w = [16 if "16x16" in x else 32 for x in m]
    tot = sum(c for c, _ in fill); W = sum(w)
    out = []; k = 0; acc = 0; cw = 0
    for x, wx in zip(m, w):
        out.append(x); cw += wx
        while k < len(fill) and (acc + fill[k][0]/2) * W <= tot * cw:
            out.append(fill[k][1]); acc += fill[k][0]; k += 1
    out += [t for _, t in fill[k:]]
    return out

def p1_loop(kind, var, done_label):
    tag = f"{kind}{var}"
    n = NDMA[kind]
    dg = dma_groups(kind)
    kv = kind[-1] == "K"
    stg, nb = (STGK, NBK) if kv else (STG, 3)
    LA = nb - 1
    if kind[0] == "H" and "--noprio" not in sys.argv: e("s_setprio 1")
    e(f"s_mov_b32 s{sSt}, 0\ns_mov_b32 s{sRb}, 0\ns_mov_b64 vcc, -1\ns_waitcnt vmcnt({(LA-1)*n+NX[kind]})\ns_barrier")
    stamp(12)
    def comp(F):
        m0, v0 = p1_comp(kind, var, F); m1, v1 = p1_comp(kind, var, F+16)
        if "--nostat" in sys.argv: v0 = v1 = ["s_nop 0"]*5
        if "--nomfma" in sys.argv: m0 = m1 = ["s_nop 0"]*2
        if "--nocs" in sys.argv: m0 = [x for x in m0 if "16x16" not in x]; m1 = [x for x in m1 if "16x16" not in x]
        return m0+m1, v0+v1
    def dblk(i, g): return (4*len(g)+8, "\n".join([f"s_cbranch_vccz Lnd{i}_{tag}"] + g + [f"Lnd{i}_{tag}:"]))
    rd = p1_reads(kind, 0, vF) + p1_reads(kind, 1, vF+16)
    for x in rd + sum(dg, []): e(x)
    e(f"s_branch Lp1h_{tag}")
    e(f".p2align 3\nLp1_{tag}:")
    m, va = comp(vF+32)
    hv = len(va)//2
    fill = [(6, x) for x in rd] + [dblk(0, dg[0])] + [(4, x) for x in va[:hv]] + [dblk(1, dg[1])] + [(4, x) for x in va[hv:]] + [dblk(2, dg[2]+dg[3])]
    for x in spread(m, fill): e(x)
    e(f"Lp1h_{tag}:\ns_waitcnt lgkmcnt(0)")
    rd = p1_reads(kind, 2, vF+32) + p1_reads(kind, 3, vF+48)
    m, va = comp(vF)
    ctl = (16, f"s_add_u32 s{sRb}, s{sRb}, 1\ns_cmp_eq_u32 s{sRb}, {nb}\ns_cselect_b32 s{sDl}, s{sC3}, {stg}\ns_cselect_b32 s{sRb}, 0, s{sRb}")
    adr = [(4, f"v_add_u32 v{r}, s{sDl}, v{r}") for r in list(range(vRX, vRX+4)) + ([vRW] if kind != "LK" else []) + ([vRQ] if kind in ("H", "LK") else [])]
    ctl2 = f"s_add_u32 s{sSt}, s{sSt}, 1\ns_cmp_lt_u32 s{sSt}, {8-LA}\ns_cselect_b64 vcc, -1, 0\ns_cmp_gt_u32 s{sSt}, {8-LA}"
    sync = f"s_cbranch_scc1 Lp1w_{tag}\ns_waitcnt vmcnt({(LA-1)*n}) lgkmcnt(0)\nLp1x_{tag}:\n{BARX}\nLp1y_{tag}:"
    k = 2
    nv = 10
    for x in spread(m[:-k], [(6, x) for x in rd] + [ctl] + adr + [(4, x) for x in va[:-nv]]): e(x)
    e(ctl2); e(sync)
    for x in spread(m[-k:], [(4, x) for x in va[-nv:]]): e(x)
    e(f"s_cmp_lg_u32 s{sSt}, {NST}\ns_cbranch_scc1 Lp1_{tag}")
    if kind == "H":
        e(kv_poll_issue())
    m, va = comp(vF+32)
    for x in spread(m, [(4, x) for x in va]): e(x)
    e(f"s_branch {done_label}")
    e(f"Lp1w_{tag}:\ns_waitcnt lgkmcnt(0)\ns_cmp_eq_u32 s{sSt}, {NST}\ns_cbranch_scc1 Lp1y_{tag}")
    for st in range(9-LA, 7):
        e(f"s_waitcnt vmcnt({(7-st)*n})\ns_cmp_eq_u32 s{sSt}, {st}\ns_cbranch_scc1 Lp1x_{tag}")
    e(f"s_waitcnt vmcnt(0)\ns_branch Lp1x_{tag}")

def o_prod_off(dst):
    e(f"""s_lshl_b32 s{sT0}, s{sI}, 2
    s_lshr_b32 s{sT1}, s{sW}, 1
    s_add_u32 s{sT0}, s{sT0}, s{sT1}
    s_lshl_b32 s{sT0}, s{sT0}, 5
    s_lshl_b32 s{sT1}, s{sJ}, 1
    s_and_b32 s{dst}, s{sW}, 1
    s_add_u32 s{sT1}, s{sT1}, s{dst}
    s_lshr_b32 s{dst}, s{sT1}, 2
    s_add_u32 s{sT0}, s{sT0}, s{dst}
    s_and_b32 s{sT1}, s{sT1}, 3
    s_lshl_b32 s{sT1}, s{sT1}, 3
    s_add_u32 s{sT0}, s{sT0}, s{sT1}
    s_lshl_b32 s{sT0}, s{sT0}, 10
    s_add_u32 s{dst}, s{sT0}, {OIMG}""")

def v_lane_addr(d):
    e(f"""v_and_b32 v{d}, 15, v{vLane}
    v_lshlrev_b32 v{d}, 4, v{d}
    v_lshl_add_u32 v{d}, v{vH}, 8, v{d}
    s_mov_b32 exec_lo, 0xffff0000
    s_mov_b32 exec_hi, 0xffff0000
    v_mov_b32 v{d}, 512""")
def early_init():
    o_prod_off(sOp)
    v_lane_addr(vAv)
    e(f"""s_mov_b32 exec_lo, 0xffee0000
    s_mov_b32 exec_hi, 0xffee0000
    v_mov_b32 v{vAv}, 0x4000000
    s_mov_b64 exec, -1
    v_add_u32 v{vAv}, 1024, v{vAv}
    v_lshlrev_b32 v{vAk}, 4, v{vLane}
    v_lshlrev_b32 v{vL16}, 4, v{vLane}
    v_mov_b32 v{vIdx}, 0xdddd
    v_lshrrev_b32 v{vT0}, 3, v{vLane}
    v_lshlrev_b32 v{vT0}, 10, v{vT0}
    v_and_b32 v{vT1}, 7, v{vLane}
    v_bfe_u32 v{vT2}, v{vLane}, 4, 1
    v_lshlrev_b32 v{vT2}, 2, v{vT2}
    v_xor_b32 v{vT1}, v{vT1}, v{vT2}
    v_lshl_add_u32 v{vDa}, v{vT1}, 4, v{vT0}
    s_lshl_b32 s{sDo}, s{sW}, 13
    s_lshl_b32 s{sT1}, s{sCS}, 7
    s_add_u32 s{sDo}, s{sDo}, s{sT1}
    s_lshl_b32 s{sDm}, s{sW}, 10
    s_lshr_b32 s{sKq}, s{sW}, 1
    s_and_b32 s{sTt}, s{sW}, 1
    s_lshl_b32 s{sT0}, s{sTB}, 1
    s_add_u32 s{sT2}, s{sT0}, s{sTt}
    s_mul_i32 s{sHo}, s{sT2}, 88
    s_mul_i32 s{sT0}, s{sKq}, 22
    s_add_u32 s{sHo}, s{sHo}, s{sT0}
    s_lshl_b32 s{sHo}, s{sHo}, 10
    s_add_u32 s{sHo}, s{sHo}, {HIMG}
    s_lshl_b32 s{sT0}, s{sT2}, 2
    s_add_u32 s{sT0}, s{sT0}, s{sKq}
    s_lshl_b32 s{sT0}, s{sT0}, 13
    s_add_u32 s{sOc}, s{sT0}, {OIMG}
    s_add_u32 s{sOc2}, s{sOc}, 4096
    s_lshl_b32 s{sT0}, s{sT2}, 15
    s_add_u32 s{sT0}, s{sT0}, s{sT1}
    s_lshl_b32 s{sT1}, s{sKq}, 5
    s_add_u32 s{sXf}, s{sT0}, s{sT1}
    s_lshr_b32 s{sHc}, s{sTB}, 1
    s_lshl_b32 s{sHc}, s{sHc}, 11
    s_add_u32 s{sHc}, s{sHc}, {HFLG}
    s_lshl_b32 s{sHs}, s{sI}, 4
    s_add_u32 s{sHs}, s{sHs}, s{sJ}
    s_lshl_b32 s{sHs}, s{sHs}, 7
    s_add_u32 s{sHs}, s{sHs}, {HFLG}
    v_and_b32 v{vT0}, 31, v{vLane}
    v_lshlrev_b32 v{vT0}, 10, v{vT0}
    v_lshl_add_u32 v{vRa}, v{vH}, 4, v{vT0}
    v_bfe_u32 v{vT0}, v{vLane}, 2, 2
    v_lshl_add_u32 v{vT0}, v{vH}, 2, v{vT0}
    v_lshlrev_b32 v{vT0}, 7, v{vT0}
    v_bfe_u32 v{vT1}, v{vLane}, 4, 1
    v_lshl_add_u32 v{vT0}, v{vT1}, 5, v{vT0}
    v_and_b32 v{vT1}, 3, v{vLane}
    v_lshl_add_u32 v{vT0}, v{vT1}, 3, v{vT0}
    v_bfe_u32 v{vT1}, v{vLane}, 3, 1
    v_lshl_add_u32 v{vT0}, v{vT1}, 6, v{vT0}
    s_lshl_b32 s{sT0}, s{sKq}, 11
    v_add_u32 v{vRd}, s{sT0}, v{vT0}
    v_xor_b32 v{vRd+1}, 64, v{vRd}
    v_add_u32 v{vRd+2}, 0xe000, v{vRd}
    v_add_u32 v{vRd+3}, 0xe000, v{vRd+1}
    v_add_u32 v{vRd+4}, 0x1c000, v{vRd}
    v_add_u32 v{vRd+5}, 0x1c000, v{vRd+1}
    s_mul_i32 s{sT1}, s{sTt}, {8*ASL}
    s_add_u32 s{sT1}, s{sT1}, {RED}
    s_add_u32 s{sT0}, s{sT0}, s{sT1}
    v_add_u32 v{vRw}, s{sT0}, v{vL16}
    s_mul_i32 s{sT0}, s{sKq}, {ASL}
    s_add_u32 s{sT0}, s{sT0}, s{sT1}
    v_add_u32 v{vRr}, s{sT0}, v{vL16}""")
    for r in range(12): e(f"v_mov_b32 v{vO+r}, 0")

def prologue(kind):
    nb = NBK if kind[-1] == "K" else 3
    for x in dma_stage(kind): e(x)
    common_init(kind)
    for _ in range(nb-2):
        for x in dma_stage(kind): e(x)
    early_init()
    if "--busy3" in sys.argv: busy("3"+kind)
    if kind in ("L", "H") and TOUCH: touch(kind)
def sentinel(r):
    for k in range(4): e(f"v_mov_b32 v{r+k}, -1")
    e(f"buffer_store_dwordx4 {vr(r,4)}, v{vL16}, {sr(SWS,4)}, s{sOp} offen sc1")

def touch(kind):
    t = f"Lt{kind}"
    e(f"s_and_b32 s{sT2}, s{sI}, 7\ns_lshl_b32 s{sT2}, s{sT2}, 5\ns_add_u32 s{sT2}, s{sT2}, 256")
    for v in range(1, 4): e(f"s_cmp_eq_u32 s{sW4}, {v}\ns_cbranch_scc1 {t}{v}")
    e(f"""v_lshrrev_b32 v{vT0}, 1, v{vLane}
    v_mul_u32_u24 v{vT0}, 2752, v{vT0}
    v_and_b32 v{vT1}, 1, v{vLane}
    v_lshl_add_u32 v{vT0}, v{vT1}, 7, v{vT0}
    s_mul_i32 s{sT0}, s{sJ}, 96
    s_min_u32 s{sT0}, s{sT0}, 1280
    s_lshl_b32 s{sT0}, s{sT0}, 1
    s_mul_i32 s{sT2}, s{sT2}, 2752
    s_add_u32 s{sT0}, s{sT0}, s{sT2}
    buffer_load_dword v{vPoll}, v{vT0}, {sr(SWG,4)}, s{sT0} offen
    s_branch {t}e""")
    if kind == "L":
        e(f"""{t}1:
        v_and_b32 v{vT0}, 31, v{vLane}
        v_lshlrev_b32 v{vT0}, 10, v{vT0}
        s_lshl_b32 s{sT2}, s{sT2}, 10
        s_lshl_b32 s{sT0}, s{sJ}, 6
        s_add_u32 s{sT0}, s{sT0}, s{sT2}
        buffer_load_dword v{vPoll}, v{vT0}, {sr(SWQ,4)}, s{sT0} offen
        s_branch {t}e
        {t}2:
        {t}3:
        v_lshrrev_b32 v{vT0}, 2, v{vLane}
        v_lshlrev_b32 v{vT0}, 10, v{vT0}
        v_and_b32 v{vT1}, 3, v{vLane}
        v_lshl_add_u32 v{vT0}, v{vT1}, 7, v{vT0}
        s_lshl_b32 s{sT0}, s{sI}, 17
        s_and_b32 s{sT1}, s{sJ}, 3
        s_lshl_b32 s{sT1}, s{sT1}, 15
        s_add_u32 s{sT0}, s{sT0}, s{sT1}
        s_and_b32 s{sT1}, s{sW}, 1
        s_lshl_b32 s{sT1}, s{sT1}, 14
        s_add_u32 s{sT0}, s{sT0}, s{sT1}
        buffer_load_dword v{vPoll}, v{vT0}, {sr(SX,4)}, s{sT0} offen offset:512""")
    else:
        e(f"""{t}1:
        v_lshlrev_b32 v{vT0}, 15, v{vLane}
        buffer_load_dword v{vPoll}, v{vT0}, {sr(SWD,4)}, 0 offen
        s_branch {t}e
        {t}2:
        v_lshlrev_b32 v{vT0}, 15, v{vLane}
        buffer_load_dword v{vPoll}, v{vT0}, {sr(SWO,4)}, 0 offen
        s_branch {t}e
        {t}3:
        v_lshlrev_b32 v{vT0}, 17, v{vLane}
        buffer_load_dword v{vPoll}, v{vT0}, {sr(SWS,4)}, 0 offen""")
    e(f"{t}e:")

def cs_write(acc, slot_expr_sreg):
    e(f"""v_and_b32 v{vT0}, 1, v{vLane}
    v_lshlrev_b32 v{vT0}, 6, v{vT0}
    v_lshrrev_b32 v{vT1}, 4, v{vLane}
    v_lshl_add_u32 v{vT0}, v{vT1}, 4, v{vT0}
    v_add_u32 v{vT0}, {slot_expr_sreg}, v{vT0}
    s_mov_b32 exec_lo, 0x00030003
    s_mov_b32 exec_hi, 0x00030003
    ds_write_b128 v{vT0}, {vr(acc,4)}
    s_mov_b64 exec, -1""")

def stats_post(tile_sreg, part):
    e(f"""v_add_f32 v{vSt}, v{vSt}, v{vSt+1}
    v_add_f32 v{vSt+2}, v{vSt+2}, v{vSt+3}
    v_mov_b32 v{vSt+1}, v{vSt}
    v_mov_b32 v{vSt+3}, v{vSt+2}
    v_and_b32 v{vT0}, 31, v{vLane}
    s_lshl_b32 s{sT0}, s{tile_sreg}, 7
    v_permlane32_swap_b32 v{vSt}, v{vSt+1}
    v_permlane32_swap_b32 v{vSt+2}, v{vSt+3}
    s_add_u32 s{sT0}, s{sT0}, {STATM+1024*part}
    v_lshl_add_u32 v{vT0}, v{vT0}, 2, s{sT0}
    v_add_f32 v{vSt}, v{vSt}, v{vSt+1}
    v_add_f32 v{vSt+2}, v{vSt+2}, v{vSt+3}
    ds_write_b32 v{vT0}, v{vSt}
    ds_write_b32 v{vT0}, v{vSt+2} offset:512""")
def stats_read(d, addr, off):
    e(f"ds_read2st64_b32 {vr(d,2)}, v{addr} offset0:0 offset1:2" if off == 0 else f"ds_read2_b32 {vr(d,2)}, v{addr} offset0:{off//4} offset1:{(off+512)//4}")
    e(f"ds_read_b32 v{d+2}, v{addr} offset:{off+1024}\nds_read_b32 v{d+3}, v{addr} offset:{off+1536}")
def stats_fin(d, m, r):
    e(f"""v_add_f32 v{d}, v{d}, v{d+2}
    v_add_f32 v{d+1}, v{d+1}, v{d+3}
    v_mul_f32 v{m}, {f2u(1/512):#x}, v{d}
    v_mul_f32 v{d+1}, {f2u(1/512):#x}, v{d+1}
    v_fma_f32 v{d+1}, -v{m}, v{m}, v{d+1}
    v_max_f32 v{d+1}, 0, v{d+1}
    v_add_f32 v{d+1}, {f2u(1e-5):#x}, v{d+1}
    v_rsq_f32 v{r}, v{d+1}
    s_nop 0""")

C1 = -2*0.7978845608028654*1.4426950408889634
C3 = C1*0.044715
def gelu_consts(m, r, d):
    e(f"""v_sub_f32 v{d}, 0, v{m}
    v_mul_f32 v{d+3}, v{r}, v{r}
    v_mul_f32 v{d+1}, {f2u(C1):#x}, v{r}
    v_mul_f32 v{d+2}, {f2u(C3):#x}, v{r}
    v_mul_f32 v{d+2}, v{d+2}, v{d+3}
    v_rcp_f32 v{d+3}, v{d+3}""")
def bc(reg, pos, n):
    base = reg & ~1
    return vr(base, 2), reg & 1
def pk(op, d, srcs, neg=None):
    ops = []; lo = []; hi = []
    for t, r in srcs:
        if t == 'p': ops.append(vr(r, 2)); lo.append(0); hi.append(1)
        else: ops.append(vr(r & ~1, 2)); lo.append(r & 1); hi.append(r & 1)
    return f"{op} {vr(d,2)}, {', '.join(ops)} op_sel:[{','.join(map(str,lo))}] op_sel_hi:[{','.join(map(str,hi))}]"
def gelu_tile(g, u, csg, csu, k, tmp):
    for p in range(0, 16, 2):
        e(pk("v_pk_fma_f32", g+p, [('b', k), ('p', csg+p), ('p', g+p)]))
        e(pk("v_pk_fma_f32", u+p, [('b', k), ('p', csu+p), ('p', u+p)]))
    for p in range(0, 16, 2):
        e(pk("v_pk_mul_f32", tmp+p, [('p', g+p), ('p', g+p)]))
    for p in range(0, 16, 2):
        e(pk("v_pk_fma_f32", tmp+p, [('p', tmp+p), ('b', k+2), ('b', k+1)]))
    for p in range(0, 16, 2):
        e(pk("v_pk_mul_f32", tmp+p, [('p', tmp+p), ('p', g+p)]))
    for p in range(16): e(f"v_exp_f32 v{tmp+p}, v{tmp+p}")
    for p in range(0, 16, 2):
        e(pk("v_pk_mul_f32", u+p, [('p', u+p), ('p', g+p)]))
    for p in range(0, 16, 2):
        e(pk("v_pk_fma_f32", tmp+p, [('p', tmp+p), ('b', k+3), ('b', k+3)]))
    for p in range(16): e(f"v_rcp_f32 v{tmp+p}, v{tmp+p}")
    e("s_nop 0")
    for p in range(0, 16, 2):
        e(pk("v_pk_mul_f32", u+p, [('p', u+p), ('p', tmp+p)]))
    for p in range(8): e(f"v_cvt_pk_bf16_f32 v{g+p}, v{u+2*p}, v{u+2*p+1}")

def cs_read(d, slot_off):
    for q in range(4): e(f"ds_read_b128 {vr(d+4*q,4)}, v{vT3} offset:{slot_off+32*q}")

def lin_fold(acc, cs, negm, scale, n=16):
    for p in range(0, n, 2):
        e(pk("v_pk_fma_f32", acc+p, [('b', negm), ('p', cs+p), ('p', acc+p)]))
    for p in range(0, n, 2):
        e(pk("v_pk_mul_f32", acc+p, [('p', acc+p), ('b', scale)]))

def q_epilogue(cs):
    e(f"v_mul_f32 v{vSt+2}, {f2u(0.25*1.4426950408889634):#x}, v{vSt+1}")
    lin_fold(vAcc, cs, vSt+4, vSt+2)
    for p in range(8): e(f"v_cvt_pk_bf16_f32 v{vAcc+p}, v{vAcc+2*p}, v{vAcc+2*p+1}")
    e(f"""s_lshl_b32 s{sT0}, s{sW4}, 11
    s_add_u32 s{sT0}, s{sT0}, {QIMG}
    v_lshl_add_u32 v{vT0}, v{vLane}, 4, s{sT0}
    ds_write_b128 v{vT0}, {vr(vAcc,4)}
    ds_write_b128 v{vT0}, {vr(vAcc+4,4)} offset:1024""")

def h_off(dst, tile_add_sreg, unit_add):
    e(f"""s_lshl_b32 s{sT0}, s{sI}, 2
    s_add_u32 s{sT0}, s{sT0}, s{tile_add_sreg}
    s_mul_i32 s{sT0}, s{sT0}, 88
    s_mul_i32 s{sT1}, s{sJ}, 6
    s_min_u32 s{sT1}, s{sT1}, 80
    s_add_u32 s{sT1}, s{sT1}, {unit_add}
    s_lshr_b32 s{dst}, s{sT1}, 2
    s_add_u32 s{sT0}, s{sT0}, s{dst}
    s_and_b32 s{sT1}, s{sT1}, 3
    s_mul_i32 s{sT1}, s{sT1}, 22
    s_add_u32 s{sT0}, s{sT0}, s{sT1}
    s_lshl_b32 s{sT0}, s{sT0}, 10
    s_add_u32 s{dst}, s{sT0}, {HIMG}""")
def h_store(acc, so):
    e(f"buffer_store_dwordx4 {vr(acc,4)}, v{vT2}, {sr(SWS,4)}, s{so} offen sc1")
    e(f"s_add_u32 s{so}, s{so}, {22*1024}")
    e(f"buffer_store_dwordx4 {vr(acc+4,4)}, v{vT2}, {sr(SWS,4)}, s{so} offen sc1")
def kv_dma(tag):
    e(f"""s_lshl_b32 s{sT0}, s{sW4}, 10
    v_lshlrev_b32 v{vT0}, 4, v{vLane}
    Lkvd_{tag}:
    s_mov_b32 m0, s{sT0}
    s_nop 0
    buffer_load_dwordx4 v{vT0}, {sr(SWS,4)}, s{sT0} offen sc1 lds
    s_add_u32 s{sT0}, s{sT0}, 4096
    s_cmp_lt_u32 s{sT0}, {28*1024}
    s_cbranch_scc1 Lkvd_{tag}""")

prologue("L")
for v in range(1, 4): e(f"s_cmp_eq_u32 s{sW}, {v}\ns_cbranch_scc1 LL{v}")
for v in range(4):
    e(f"LL{v}:")
    p1_loop("L", v, "LepiL")
e("LepiL:")
stamp(1)
e(f"s_and_b32 s{sT2}, s{sW}, 1\ns_lshl_b32 s{sT2}, s{sT2}, 1\ns_lshr_b32 s{sT3}, s{sW}, 1\ns_add_u32 s{sT2}, s{sT2}, s{sT3}")
stats_post(sT2, 1)
e(f"s_lshl_b32 s{sT1}, s{sW}, 7\ns_add_u32 s{sT1}, s{sT1}, {CSUM+128}")
cs_write(vCs, f"s{sT1}")
e(f"""s_lshr_b32 s{sT0}, s{sW}, 1
s_lshl_b32 s{sT0}, s{sT0}, 8
s_add_u32 s{sT0}, s{sT0}, {CSUM+128}
v_lshl_add_u32 v{vT3}, v{vH}, 4, s{sT0}
s_and_b32 s{sT1}, s{sW}, 1
s_lshl_b32 s{sT1}, s{sT1}, 8
s_add_u32 s{sT1}, s{sT1}, {STATM}
v_and_b32 v{vT0}, 31, v{vLane}
v_lshl_add_u32 v{vT0}, v{vT0}, 2, s{sT1}
s_waitcnt lgkmcnt(0)
s_barrier""")
stats_read(vSt+12, vT0, 0); stats_read(vSt+16, vT0, 128)
cs_read(vF, 0); cs_read(vF+16, 128)
e(f"s_and_b32 s{sT3}, s{sW}, 1\ns_lshl_b32 s{sT3}, s{sT3}, 1\ns_and_b32 s{sC0}, s{sW}, 2")
h_off(sT2, sT3, f"s{sC0}")
e(f"s_add_u32 s{sT3}, s{sT2}, {88*1024}\nv_lshlrev_b32 v{vT2}, 4, v{vLane}\ns_waitcnt lgkmcnt(0)")
stats_fin(vSt+12, vSt, vSt+1); stats_fin(vSt+16, vSt+2, vSt+3)
gelu_consts(vSt, vSt+1, vSt+4); gelu_consts(vSt+2, vSt+3, vSt+8)
for tt in range(2):
    gelu_tile(vAcc+32*tt, vAcc+32*tt+16, vF, vF+16, vSt+4+4*tt, vSt+12)
    h_store(vAcc+32*tt, sT2 if tt == 0 else sT3)
e("s_branch Lp2")

e("LproH:")
prologue("H")
for v in range(1, 4): e(f"s_cmp_eq_u32 s{sW4}, {v}\ns_cbranch_scc1 LH{v}")
for v in range(4):
    e(f"LH{v}:")
    p1_loop("H", v, "LepiH")
e("LepiH:")
stamp(1)
stats_post(sW4, 0)
e(f"v_mov_b32 v{vT2}, v{vT0}")
e(f"""s_cmp_eq_u32 s{sW4}, 3
s_cbranch_scc1 LHnocs
s_add_u32 s{sT1}, s{sW4}, 4
s_cmp_eq_u32 s{sW4}, 0
s_cselect_b32 s{sT1}, 0, s{sT1}
s_lshl_b32 s{sT1}, s{sT1}, 7
s_add_u32 s{sT1}, s{sT1}, {CSUM}""")
cs_write(vCs, f"s{sT1}")
e(f"""LHnocs:
v_mov_b32 v{vT3}, {CSUM}
v_lshl_add_u32 v{vT3}, v{vH}, 4, v{vT3}
s_waitcnt lgkmcnt(0)
s_barrier""")
stats_read(vSt+12, vT2, 0)
cs_read(vAcc+48, 0); cs_read(vF, 5*128); cs_read(vF+16, 6*128)
h_off(sT2, sW4, 4)
e(f"v_lshlrev_b32 v{vT2}, 4, v{vLane}\ns_waitcnt lgkmcnt(0)")
stats_fin(vSt+12, vSt, vSt+1)
gelu_consts(vSt, vSt+1, vSt+4)
q_epilogue(vAcc+48)
e("s_waitcnt vmcnt(0)")
kv_poll_take()
e(f"s_cmp_eq_u32 s{sNo}, 0\ns_cbranch_scc1 LHnodma")
kv_dma("a")
e("LHnodma:")
stamp(13)
gelu_tile(vAcc+16, vAcc+32, vF, vF+16, vSt+4, vSt+12)
h_store(vAcc+16, sT2)
e(f"s_cmp_eq_u32 s{sNo}, 0\ns_cbranch_scc1 Lkvwait\ns_waitcnt vmcnt(2)\ns_branch Lp2")

e("Lkvcu:")
WKV = 131072
vXf, vWk = 32, 192
sXb = sMw
e(f"""s_lshl_b32 s{sT0}, s{sW}, 11
v_lshlrev_b32 v{vWa0}, 4, v{vLane}
s_add_u32 m0, s{sT0}, {WKV}
s_lshl_b32 s{sXb}, s{sW}, 14
buffer_load_dwordx4 v{vWa0}, {sr(SWV,4)}, s{sT0} offen lds
buffer_load_dwordx4 v{vWa0}, {sr(SWV,4)}, s{sT0} offen offset:1024 lds
s_add_u32 m0, s{sT0}, {WKV+16384}
s_lshl_b32 s{sXo}, s{sI}, 17
buffer_load_dwordx4 v{vWa0}, {sr(SWK,4)}, s{sT0} offen lds
buffer_load_dwordx4 v{vWa0}, {sr(SWK,4)}, s{sT0} offen offset:1024 lds
s_lshl_b32 s{sT0}, s{sW4}, 15
s_add_u32 s{sXo}, s{sXo}, s{sT0}
s_lshr_b32 s{sT3}, s{sW}, 2
s_lshl_b32 s{sT0}, s{sT3}, 9
s_add_u32 s{sXo}, s{sXo}, s{sT0}""")
def kvx_dma(c):
    return [f"""s_add_u32 m0, s{sXb}, {4096*c+2048*hf}
        s_add_u32 s{sT0}, s{sXo}, {128*c+16384*hf}
        buffer_load_dwordx4 v{vXa0}, {sr(SX,4)}, s{sT0} offen lds
        buffer_load_dwordx4 v{vXa1}, {sr(SX,4)}, s{sT0} offen offset:1024 lds""" for hf in range(2)]
for x in kvx_dma(0): e(x)
common_init("KV")
for x in kvx_dma(1): e(x)
e("s_waitcnt vmcnt(4)\ns_barrier")
stamp(12)
def kv_reads(c):
    r = []
    for ks in range(4):
        W = vWk + 16*(c & 1) + 4*ks
        r += [f"ds_read_b128 {vr(vXf+16*c+4*ks,4)}, v{vRX+ks} offset:{4096*c}"]
        r += tr(W, vRW, (64*c+16*ks)*32) + tr(W+2, vRW, (64*c+16*ks+4)*32)
    return r
for x in kv_reads(0): e(x)
for c in range(4):
    m = []; va = []
    for ks in range(4):
        X = vXf+16*c+4*ks; W = vWk + 16*(c & 1) + 4*ks
        m += [mfma(vAcc+16, W, X), mfma16(vCs, W, vSel), mfma(vAcc+32, X, W)]
        va += stats_ops(X)
    fill = [(4, x) for x in va]
    if c < 2: fill = [(16, x) for x in kvx_dma(c+2)] + fill
    if c < 3: fill = fill[:56] + [(4, f"s_waitcnt vmcnt({4 if c < 2 else 0})")] + [(6, x) for x in kv_reads(c+1)] + fill[56:]
    e("s_waitcnt lgkmcnt(0)")
    for x in spread(m, fill): e(x)
stamp(1)
e(f"""v_add_f32 v{vSt}, v{vSt}, v{vSt+1}
v_add_f32 v{vSt+2}, v{vSt+2}, v{vSt+3}
v_mov_b32 v{vSt+1}, v{vSt}
v_mov_b32 v{vSt+3}, v{vSt+2}
v_and_b32 v{vT2}, 31, v{vLane}
v_lshlrev_b32 v{vT2}, 2, v{vT2}
v_permlane32_swap_b32 v{vSt}, v{vSt+1}
v_permlane32_swap_b32 v{vSt+2}, v{vSt+3}
v_add_u32 v{vT1}, s{sXb}, v{vT2}
s_xor_b32 s{sT2}, s{sXb}, 65536
v_add_f32 v{vSt+20}, v{vSt}, v{vSt+1}
v_add_f32 v{vSt+21}, v{vSt+2}, v{vSt+3}
ds_write_b32 v{vT1}, v{vSt+20} offset:4096
ds_write_b32 v{vT1}, v{vSt+21} offset:4224
s_add_u32 s{sT1}, s{sXb}, 4352""")
cs_write(vCs, f"s{sT1}")
e(f"""v_add_u32 v{vT0}, s{sXb}, v{vWa0}
v_add_u32 v{vWa1}, s{sT2}, v{vWa0}
v_add_u32 v{vWa2}, s{sT2}, v{vT2}
v_lshl_add_u32 v{vT3}, v{vH}, 4, s{sXb}
s_lshl_b32 s{sT0}, s{sI}, 2
s_add_u32 s{sT0}, s{sT0}, s{sW4}
s_mul_i32 s{sC0}, s{sT0}, {KVT}
s_lshl_b32 s{sQo}, s{sW}, 16
s_add_u32 s{sQo}, s{sQo}, {64*15}
s_lshl_b32 s{sMq}, s{sW}, 12
s_add_u32 s{sMq}, s{sMq}, {WKV}
s_cmp_ge_u32 s{sW}, 4
s_cbranch_scc1 LkvH""")
def wq_dma():
    for k in range(4):
        e(f"s_add_u32 m0, s{sMq}, {1024*k}\ns_add_u32 s{sT0}, s{sQo}, {16384*k}\nbuffer_load_dwordx4 v{vQa}, {sr(SWQ,4)}, s{sT0} offen lds")
for q in range(4): e(f"ds_write_b128 v{vT0}, {vr(vAcc+32+4*q,4)} offset:{1024*q}")
e(f"v_xor_b32 v{vT1}, 0x10000, v{vT3}\ns_waitcnt lgkmcnt(0)\ns_barrier")
e(f"""ds_read_b32 v{vSt+22}, v{vWa2} offset:4096
ds_read_b32 v{vSt+23}, v{vWa2} offset:4224
ds_read_b128 {vr(vWk,4)}, v{vWa1}
ds_read_b128 {vr(vWk+4,4)}, v{vWa1} offset:1024
ds_read_b128 {vr(vSt+12,4)}, v{vT3} offset:{4352+64}
ds_read_b128 {vr(vSt+16,4)}, v{vT3} offset:{4352+96}
ds_read_b128 {vr(vWk+8,4)}, v{vT1} offset:{4352+64}
ds_read_b128 {vr(vWk+12,4)}, v{vT1} offset:{4352+96}""")
wq_dma()
e(f"""v_and_b32 v{vT0}, 0x33, v{vLane}
v_bfe_u32 v{vT1}, v{vLane}, 2, 1
v_lshl_or_b32 v{vT0}, v{vT1}, 3, v{vT0}
v_bfe_u32 v{vT1}, v{vLane}, 3, 1
v_lshl_or_b32 v{vT0}, v{vT1}, 2, v{vT0}
v_lshlrev_b32 v{vT0}, 4, v{vT0}
s_waitcnt lgkmcnt(0)""")
stats_fin(vSt+20, vSt, vSt+1)
e(f"v_sub_f32 v{vSt+4}, 0, v{vSt}")
for p in range(0, 8, 2):
    e(pk("v_pk_add_f32", vAcc+24+p, [('p', vAcc+24+p), ('p', vWk+p)]))
    e(pk("v_pk_add_f32", vSt+12+p, [('p', vSt+12+p), ('p', vWk+8+p)]))
lin_fold(vAcc+24, vSt+12, vSt+4, vSt+1, 8)
for p in range(4): e(f"v_cvt_pk_bf16_f32 v{vAcc+16+p}, v{vAcc+24+2*p}, v{vAcc+25+2*p}")
e(f"buffer_store_dwordx4 {vr(vAcc+16,4)}, v{vT0}, {sr(SWS,4)}, s{sC0} offen sc1\ns_branch LkvS")
e("LkvH:")
e(f"ds_write_b128 v{vT0}, {vr(vAcc+24,4)}\nds_write_b128 v{vT0}, {vr(vAcc+28,4)} offset:1024")
e(f"v_add_u32 v{vT1}, s{sXb}, v{vT2}\ns_waitcnt lgkmcnt(0)\ns_barrier")
e(f"""ds_read_b32 v{vSt+22}, v{vWa2} offset:4096
ds_read_b32 v{vSt+23}, v{vWa2} offset:4224
ds_read_b32 v{vSt+6}, v{vT1} offset:4352
ds_read_b32 v{vSt+7}, v{vWa2} offset:4352""")
for q in range(4): e(f"ds_read_b128 {vr(vAcc+48+4*q,4)}, v{vWa1} offset:{1024*q}")
wq_dma()
e("s_waitcnt lgkmcnt(0)")
stats_fin(vSt+20, vSt, vSt+1)
e(f"ds_write_b32 v{vT1}, v{vSt} offset:4608\nds_write_b32 v{vT1}, v{vSt+1} offset:4736\ns_waitcnt lgkmcnt(0)")
for q in range(4):
    e(f"ds_read_b128 {vr(vWk+4*q,4)}, v{vT3} offset:{4608+32*q}\nds_read_b128 {vr(vWk+16+4*q,4)}, v{vT3} offset:{4736+32*q}")
e(f"v_add_f32 v{vSt+6}, v{vSt+6}, v{vSt+7}\nv_sub_f32 v{vSt+6}, 0, v{vSt+6}")
for p in range(0, 16, 2): e(pk("v_pk_add_f32", vAcc+32+p, [('p', vAcc+32+p), ('p', vAcc+48+p)]))
e("s_waitcnt lgkmcnt(0)")
for p in range(0, 16, 2): e(pk("v_pk_fma_f32", vAcc+32+p, [('p', vWk+p), ('b', vSt+6), ('p', vAcc+32+p)]))
for p in range(0, 16, 2): e(pk("v_pk_mul_f32", vAcc+32+p, [('p', vAcc+32+p), ('p', vWk+16+p)]))
for p in range(8): e(f"v_cvt_pk_bf16_f32 v{vAcc+32+p}, v{vAcc+32+2*p}, v{vAcc+33+2*p}")
v_lane_addr(vT0)
for p in range(8): e(f"v_mov_b32 v{vAcc+32+p}, 0x3f803f80")
e(f"""s_mov_b32 exec_lo, 0x1ffff
s_mov_b32 exec_hi, 0xffff
buffer_store_dwordx4 {vr(vAcc+32,4)}, v{vT0}, {sr(SWS,4)}, s{sC0} offen offset:1024 sc1
buffer_store_dwordx4 {vr(vAcc+36,4)}, v{vT0}, {sr(SWS,4)}, s{sC0} offen offset:{1024+528} sc1
s_mov_b64 exec, -1
LkvS:""")
for r in range(4): e(f"v_mov_b32 v{vCs+r}, 0")
e("s_waitcnt vmcnt(0)\ns_barrier")
kv_signal()
stamp(13)
early_init()
def q_reads(c):
    r = []
    for ks in range(4):
        W = vWk + 16*(c & 1) + 4*ks
        r += tr(W, vRQ, (64*c+16*ks)*64) + tr(W+2, vRQ, (64*c+16*ks+4)*64)
    return r
for x in q_reads(0): e(x)
for c in range(4):
    m = []
    for ks in range(4):
        X = vXf+16*c+4*ks; W = vWk + 16*(c & 1) + 4*ks
        m += [mfma(vAcc, W, X), mfma16(vCs, W, vSel)]
    e("s_waitcnt lgkmcnt(0)")
    for x in interleave(m[:4], q_reads(c+1) if c < 3 else []) + m[4:]: e(x)
e(f"""s_or_b32 s{sT2}, s{sXb}, {65536+8192}
s_lshr_b32 s{sT3}, s{sW}, 2
s_lshl_b32 s{sT3}, s{sT3}, 7
s_add_u32 s{sT1}, s{sT2}, s{sT3}
s_add_u32 s{sT1}, s{sT1}, 4096
v_add_u32 v{vWa1}, s{sT2}, v{vWa0}
v_lshl_add_u32 v{vT3}, v{vH}, 4, s{sT2}
s_nop 3""")
cs_write(vCs, f"s{sT1}")
e(f"s_cmp_ge_u32 s{sW}, 4\ns_cbranch_scc1 LkvH2\ns_waitcnt lgkmcnt(0)\ns_barrier")
for q in range(4): e(f"ds_read_b128 {vr(vWk+4*q,4)}, v{vWa1} offset:{1024*q}")
cs_read(vAcc+48, 4096); cs_read(vWk+16, 4096+128)
e("s_waitcnt lgkmcnt(0)")
for p in range(0, 16, 2):
    e(pk("v_pk_add_f32", vAcc+p, [('p', vAcc+p), ('p', vWk+p)]))
    e(pk("v_pk_add_f32", vAcc+48+p, [('p', vAcc+48+p), ('p', vWk+16+p)]))
q_epilogue(vAcc+48)
e("s_branch Lp2\nLkvH2:")
for q in range(4): e(f"ds_write_b128 v{vWa1}, {vr(vAcc+4*q,4)} offset:{1024*q}")
e("s_waitcnt lgkmcnt(0)\ns_barrier")
e("Lkvwait:")
stamp(16)
kv_poll_loop()
stamp(17)
kv_dma("b")
e("s_waitcnt vmcnt(0)")

vm = []
def vtag(tag): vm.append(tag)
def vwait_s(tag):
    idx = max(i for i, t in enumerate(vm) if t == tag)
    return f"s_waitcnt vmcnt({min(63, len(vm)-1-idx)})"
def w_dma(G):
    srdw, row = (SWD, 64*G) if G < 22 else (SWO, 64*(G-22))
    return [f"s_add_u32 m0, s{sDm}, {GSLOT[G]}", f"s_add_u32 s{sT0}, s{sDo}, {row*1024}",
            (f"g{G}", f"buffer_load_dwordx4 v{vDa}, {sr(srdw,4)}, s{sT0} offen lds")]
def w_reads(G, F):
    a = GSLOT[G]; win = a // 0xe000; off = a - win*0xe000
    r0, r1 = vRd+2*win, vRd+2*win+1
    return tr(F, r0, off) + tr(F+2, r0, off+1024) + tr(F+4, r1, off) + tr(F+6, r1, off+1024)
def emit_seq(seq):
    for x in seq:
        if isinstance(x, list): emit_seq(x)
        elif isinstance(x, tuple): vtag(x[0]); e(x[1])
        elif callable(x): e(x())
        else: e(x)
e("Lp2:")
stamp(2)
sentinel(vC); vtag("sent")
e(f"s_add_u32 s{sT0}, s{sDm}, {QIMG}\nv_add_u32 v{vAq}, s{sT0}, v{vL16}")
e("s_waitcnt lgkmcnt(0)\ns_barrier")
stamp(3)
e(f"""ds_read_b128 {vr(vQ,4)}, v{vAq}
ds_read_b128 {vr(vKf[0],4)}, v{vAk}
ds_read_b128 {vr(vKf[1],4)}, v{vAk} offset:{KVT}
ds_read_b128 {vr(vVl[0],4)}, v{vAv}
s_waitcnt lgkmcnt(2)""")
e(mfma(vS[0], vKf[0], vQ, "0"))
e("s_nop 11")
e(f"v_max3_f32 v{vT1}, v{vS[0]}, v{vS[0]+1}, v{vS[0]+2}")
for p in range(3, 15, 2): e(f"v_max3_f32 v{vT1}, v{vT1}, v{vS[0]+p}, v{vS[0]+p+1}")
e(f"""v_max_f32 v{vT1}, v{vT1}, v{vS[0]+15}
v_mov_b32 v{vT2}, v{vT1}
s_nop 1
v_permlane32_swap_b32 v{vT1}, v{vT2}
s_nop 1
v_max_f32 v{vT1}, v{vT1}, v{vT2}""")
for r in range(16): e(f"v_sub_f32 v{vC+r}, 0, v{vT1}")
for r in range(16): e(f"v_sub_f32 v{vS[0]+r}, v{vS[0]+r}, v{vT1}")
stamp(5)
side = {T: [] for T in range(64)}
xm = {T: [] for T in range(65)}
for n in range(13):
    side[(n*9)//13].append([f"s_add_u32 s{sT0}, s{sDm}, {(28+8*n)*1024}", f"s_mov_b32 m0, s{sT0}", "s_nop 0",
                    ("kv", f"buffer_load_dwordx4 v{vL16}, {sr(SWS,4)}, s{sT0} offen sc1 lds")])
for T0, dt, Gs in ((13, 3, range(0, 6)), (33, 2, range(6, 11)), (48, 1, range(11, 21))):
    for n, G in enumerate(Gs): side[T0 + dt*n].append(w_dma(G))
side[20].append([f"v_lshlrev_b32 v{vT3}, 10, v{vLane}", f"s_lshl_b32 s{sT1}, s{sW}, 16", f"s_lshl_b32 s{sT0}, s{sCS}, 7",
                 f"s_add_u32 s{sT1}, s{sT1}, s{sT0}", ("t", f"buffer_load_dword v{vT2}, v{vT3}, {sr(SWO,4)}, s{sT1} offen")])
side[23].append([f"s_lshl_b32 s{sT0}, s{sCS}, 7", f"s_add_u32 s{sT0}, s{sT0}, {1344*1024}",
                 ("t", f"buffer_load_dword v{vT2}, v{vT3}, {sr(SWD,4)}, s{sT0} offen")])
HPT = 27
pollidx = []
side[HPT].append([f"s_cmp_lg_u32 s{sW}, 4", "s_cbranch_scc1 Lnohp", h_poll_issue(), lambda: (pollidx.append(len(vm)), "Lnohp:")[1]])
for i in range(22):
    T = 32 + (i*30)//22
    c = [f"s_add_u32 s{sC0}, s{sHo}, {1024*i}"] if i % 4 == 0 else []
    side[T].append(c + [(f"h{i}", f"buffer_load_dwordx4 {vr(vHf+4*i,4)}, v{vL16}, {sr(SWS,4)}, s{sC0} offen offset:{1024*(i%4)} sc1")])
lastm = {}
for T0, span, Gs in ((36, 12, range(0, 6)), (50, 12, range(6, 11))):
    k = len(Gs)
    for n, G in enumerate(Gs):
        F = vWf[G % 3]
        t0 = T0 + (2*n*span)//(2*k); t1 = T0 + ((2*n+1)*span)//(2*k)
        lastm[G] = t1+1
        assert G < 3 or t0 > lastm[G-3]
        for x in w_reads(G, F): side[t0].append([x])
        c0 = "0" if G == 0 else None
        w = (lambda g=G: vwait_s(f"h{g}"))
        xm[t0+1].append([w, mfma(vAf[0], F, vHf+4*G, c0)]); xm[t1+1].append([mfma(vAf[1], F+4, vHf+4*G, c0)])
def last_txt(c): return c[-1][1] if isinstance(c[-1], tuple) else c[-1]
def last_tag(c): return c[-1][0] if isinstance(c[-1], tuple) else ""
if "--dx" in sys.argv:
    dx = sys.argv[sys.argv.index("--dx")+1]
    vm += ["kv", "g6", "g8", "g14", "g21"] + [f"h{i}" for i in range(22)]
    for T in range(64):
        if "w" in dx: side[T] = [c for c in side[T] if not last_tag(c).startswith("g")]
        if "h" in dx: side[T] = [c for c in side[T] if not last_tag(c).startswith("h")]
        if "r" in dx: side[T] = [c for c in side[T] if "ds_" not in last_txt(c)]
        if "k" in dx: side[T] = [c for c in side[T] if last_tag(c) != "kv"]
        if "m" in dx: xm[T] = []
PRI = int(sys.argv[sys.argv.index("--pri")+1]) if "--pri" in sys.argv else 2
lastg = {12: "kv", 32: "g5", 48: "g10"}
for T in range(64):
    X = vS[T & 1]; Y = vS[(T+1) & 1]
    rel = T % 16
    e("s_waitcnt lgkmcnt(0)")
    if T in lastg:
        if "--abar" in sys.argv: stamp(32+3*list(lastg).index(T))
        e(vwait_s(lastg[T]))
        if T == 32:
            e(f"""s_cmp_lg_u32 s{sW}, 4
            s_cbranch_scc1 Lhok
            s_mov_b32 s{sT0}, 0
            s_waitcnt vmcnt({len(vm)-pollidx[0]})
            Lhp:
            v_cmp_ne_u64 vcc, s[{sNo}:{sNo+1}], {vr(vPoll,2)}
            s_add_u32 s{sT0}, s{sT0}, 1
            s_cmp_ge_u32 s{sT0}, 100000
            s_cbranch_vccz Lhok
            s_cbranch_scc1 Lhok
            s_sleep 4
            {h_poll_issue()}
            s_waitcnt vmcnt(0)
            s_branch Lhp
            Lhok:""")
        if "--abar" in sys.argv: stamp(33+3*list(lastg).index(T))
        e("s_barrier")
        if "--abar" in sys.argv: stamp(34+3*list(lastg).index(T))
        if T == 12:
            e(f"""s_cmp_lg_u32 s{sW}, 4
            s_cbranch_scc1 Lsig_h
            v_mov_b32 v{vPoll}, s{sNo}
            v_mov_b32 v{vPoll+1}, s{sNo+1}
            s_mov_b64 exec, 1
            buffer_store_dwordx2 {vr(vPoll,2)}, off, {sr(SWS,4)}, s{sHs} sc1
            s_mov_b64 exec, -1
            Lsig_h:""")
    if T and rel == 0: e(f"v_add_u32 v{vAk}, {16*KVT}, v{vAk}\nv_add_u32 v{vAv}, {16*KVT}, v{vAv}")
    seg0 = max([0] + [t for t in lastg if t <= T]); seg1 = min([64] + [t for t in lastg if t > T])
    if PRI == 2:
        if (seg1 - T) % 2 == 0: e(f"s_setprio {((seg1-T)//2 - 1) % 4}")
    ex = [f"v_exp_f32 v{X+i}, v{X+i}" for i in range(16)]
    rd = [f"ds_read_b128 {vr(vVh,4)}, v{vAv} offset:{rel*KVT+528}"]
    if T+1 < 64: rd.append(f"ds_read_b128 {vr(vVl[(T+1)&1],4)}, v{vAv} offset:{(rel+1)*KVT}")
    if T+2 < 64: rd.append(f"ds_read_b128 {vr(vKf[T&1],4)}, v{vAk} offset:{(rel+2)*KVT}")
    seq = ex[0:2] + ([smf(vO, vVh, Y+8, vIdx)] if T else []) + interleave(ex[2:5], rd)
    if T+1 < 64: seq.append(mfma(Y, vKf[(T+1) & 1], vQ, vr(vC, 16)))
    x2 = xm[T]
    assert len(x2) <= 2
    if len(x2) == 2: tail = ex[5:8] + [x2[0]] + ex[8:11] + [smf(vO, vVl[T & 1], X, vIdx)] + ex[11:14] + [x2[1]] + ex[14:16]
    else: tail = ex[5:10] + [smf(vO, vVl[T & 1], X, vIdx)] + ex[10:14] + x2 + ex[14:16]
    if "--nord" in sys.argv and T > 2: seq = [x for x in seq if "ds_read" not in x]
    if side[T]: tail = interleave(tail[:-3], side[T]) + tail[-3:]
    emit_seq(seq + tail)
assert not xm[64]
e("s_waitcnt lgkmcnt(0)\ns_nop 0")
e(smf(vO, vVh, vS[1]+8, vIdx))
e(f"s_mov_b32 s{sRetry}, 0")
e("Lfin:")
e(f"""s_nop 9
s_mov_b32 s{sC0}, {f2u(2.0**40):#x}
s_mov_b32 s{sC1}, {f2u(2.0**126):#x}
v_rcp_f32 v{vO+10}, v{vO+8}
v_max3_f32 v{vT1}, abs(v{vO}), abs(v{vO+1}), abs(v{vO+2})
v_max3_f32 v{vT1}, v{vT1}, abs(v{vO+3}), abs(v{vO+4})
v_max3_f32 v{vT1}, v{vT1}, abs(v{vO+5}), abs(v{vO+6})
v_max_f32 v{vT1}, v{vT1}, abs(v{vO+7})
v_cmp_nlt_f32 vcc, v{vO+8}, s{sC0}
v_cmp_nlt_f32 s[{sEx}:{sEx+1}], v{vT1}, s{sC1}""")
for p in range(8): e(f"v_mul_f32 v{vO+p}, v{vO+p}, v{vO+10}")
e(f"s_or_b64 vcc, vcc, s[{sEx}:{sEx+1}]")
for p in range(4): e(f"v_cvt_pk_bf16_f32 v{vO+p}, v{vO+2*p}, v{vO+2*p+1}")
for p in range(4): e(f"v_min_u32 v{vO+p}, -2, v{vO+p}")
e("s_cbranch_vccnz Lfallback\nLok:" if "--noside" not in sys.argv and "--dx" not in sys.argv else "Lok:")
emit_seq([("o", f"buffer_store_dwordx4 {vr(vO,4)}, v{vL16}, {sr(SWS,4)}, s{sOp} offen sc1")])
stamp(6)

def o_loads():
    for k in range(8):
        e(f"buffer_load_dwordx4 {vr(vOf+4*k,4)}, v{vL16}, {sr(SWS,4)}, s{sOc if k<4 else sOc2} offen offset:{1024*(k%4)} sc1")
def reduce_read(acc):
    for q in range(4):
        e(f"ds_read_b128 {vr(acc+8*q,4)}, v{vRr} offset:{2048*q}\nds_read_b128 {vr(acc+8*q+4,4)}, v{vRr} offset:{2048*q+1024}")
def reduce_sum(acc):
    for p in range(0, 8, 2):
        e(pk("v_pk_add_f32", acc+p, [('p', acc+p), ('p', acc+8+p)]))
        e(pk("v_pk_add_f32", acc+16+p, [('p', acc+16+p), ('p', acc+24+p)]))
    for p in range(0, 8, 2): e(pk("v_pk_add_f32", acc+p, [('p', acc+p), ('p', acc+16+p)]))
def reduce_write(acc):
    return [f"ds_write_b128 v{vRw}, {vr(acc+4*q,4)} offset:{ASL*(q//2)+1024*(q%2)}" for q in range(8)]
e(vwait_s("g20"))
e("s_setprio 0\ns_barrier")
stamp(8)
for x in w_reads(11, vWf[11 % 3]) + w_reads(12, vWf[12 % 3]): e(x)
for G in range(11, 22):
    F = vWf[G % 3]
    post = []
    if G == 20:
        e("s_waitcnt lgkmcnt(0)"); e(vwait_s("g21")); e("s_barrier")
        post = w_reads(21, vWf[0]) + [w_dma(29)]
    elif G == 21: e("s_waitcnt lgkmcnt(0)")
    else:
        e("s_waitcnt lgkmcnt(4)")
        if G+2 <= 20: post = w_reads(G+2, vWf[(G+2) % 3])
    if G < 15: post = post + [w_dma(21+2*(G-11)), w_dma(22+2*(G-11))]
    if G == 15: post = post + [("x", f"buffer_load_dwordx4 {vr(vS[1],4)}, v{vRa}, {sr(SX,4)}, s{sXf} offen")]
    e(vwait_s(f"h{G}"))
    if G == 21: e(f"s_cmp_ge_u32 s{sKq}, 2\ns_cbranch_scc1 Lskip21")
    emit_seq(interleave([mfma(vAf[0], F, vHf+4*G), mfma(vAf[1], F+4, vHf+4*G)], post))
e("Lskip21:")
o_loads()
e("s_nop 3")
for x in reduce_write(vAf[0]): e(x)
e("s_waitcnt vmcnt(8) lgkmcnt(0)\ns_barrier")
reduce_read(vAf[0])
for p in range(4):
    e(f"v_lshlrev_b32 v{vXr+2*p}, 16, v{vS[1]+p}\nv_and_b32 v{vXr+1+2*p}, 0xffff0000, v{vS[1]+p}")
WOF = [168+8*k for k in range(7)] + [vWf[1]]
e("s_waitcnt lgkmcnt(0)")
for k in range(3):
    for x in w_reads(22+k, WOF[k]): e(x)
e("s_barrier")
reduce_sum(vAf[0])
for p in range(8): e(f"v_mul_f32 v{vAf[0]+8+p}, {f2u(-1.4426950408889634):#x}, v{vAf[0]+p}")
for p in range(8): e(f"v_exp_f32 v{vAf[0]+8+p}, v{vAf[0]+8+p}")
for k in range(3, 6):
    for x in w_reads(22+k, WOF[k]): e(x)
for p in range(8): e(f"v_add_f32 v{vAf[0]+8+p}, 1.0, v{vAf[0]+8+p}")
for p in range(8): e(f"v_rcp_f32 v{vAf[0]+8+p}, v{vAf[0]+8+p}")
for k in range(6, 8):
    for x in w_reads(22+k, WOF[k]): e(x)
for p in range(8): e(f"v_mul_f32 v{vAf[0]+p}, v{vAf[0]+p}, v{vAf[0]+8+p}")
stamp(9)
e(f"s_mov_b32 s{sT0}, 0\ns_waitcnt vmcnt(0) lgkmcnt(0)")
for k in range(8):
    B = vOf+4*k
    e(f"""Loc{k}:
    v_max3_u32 v{vT1}, v{B}, v{B+1}, v{B+2}
    v_max_u32 v{vT1}, v{vT1}, v{B+3}
    v_cmp_eq_u32 vcc, -1, v{vT1}
    s_cbranch_vccnz Lor{k}
    Log{k}:""")
    e(mfma(vAs[0], WOF[k], B, "0" if k == 0 else None))
stamp(7)
wr = [f"ds_write_b128 v{vRw}, {vr(vAs[0]+4*q,4)} offset:{ASL*(q//2)+1024*(q%2)}" for q in range(8)]
m1 = [mfma(vAs[1], WOF[k]+4, vOf+4*k, "0" if k == 0 else None) for k in range(8)]
for x in m1[:3] + ["s_nop 8"] + interleave(m1[3:], wr[:4]) + ["s_nop 10"] + wr[4:]: e(x)
stamp(10)
e("s_waitcnt lgkmcnt(0)\ns_barrier")
reduce_read(vAs[0])
e("s_waitcnt lgkmcnt(0)")
reduce_sum(vAs[0])
for p in range(0, 8, 2): e(pk("v_pk_mul_f32", vAs[0]+p, [('p', vAs[0]+p), ('p', vAf[0]+p)]))
e("s_nop 1")
for p in range(4): e(f"v_permlane32_swap_b32 v{vAs[0]+p}, v{vAs[0]+4+p}")
e("s_nop 1")
for p in range(0, 8, 2): e(pk("v_pk_add_f32", vAs[0]+p, [('p', vAs[0]+p), ('p', vXr+p)]))
for p in range(4): e(f"v_cvt_pk_bf16_f32 v{vAs[0]+p}, v{vAs[0]+2*p}, v{vAs[0]+2*p+1}")
e(f"buffer_store_dwordx4 {vr(vAs[0],4)}, v{vRa}, {sr(SOUT,4)}, s{sXf} offen")
if "--busy1" in sys.argv: busy(1)
if "--busym" in sys.argv:
    e("s_mov_b32 s99, 16\nLbusym:")
    for i in range(16): e(mfma(104+16*(i%2), WOF[i%7]+4*(i//8), vOf+4*((i*3)%8)))
    e("s_sub_u32 s99, s99, 1\ns_cmp_lg_u32 s99, 0\ns_cbranch_scc1 Lbusym")
stamp(11)
if RT: e(f"s_waitcnt vmcnt(0)\ns_memrealtime s[100:101]\ns_waitcnt lgkmcnt(0)\nv_mov_b32 v0, s100\nbuffer_store_dword v0, off, {sr(SWS,4)}, s{sPo} offset:56")
e("Lend:\ns_endpgm")

for k in range(8):
    e(f"""Lor{k}:
    s_add_u32 s{sT0}, s{sT0}, 1
    s_cmp_ge_u32 s{sT0}, 200000
    s_cbranch_scc1 Log{k}""")
    for k2 in range(k, 8):
        e(f"buffer_load_dwordx4 {vr(vOf+4*k2,4)}, v{vL16}, {sr(SWS,4)}, s{sOc if k2<4 else sOc2} offen offset:{1024*(k2%4)} sc1")
    e(f"s_waitcnt vmcnt(0)\ns_branch Loc{k}")
e("Lfallback:")
e(f"""s_cmp_lg_u32 s{sRetry}, 0
s_cbranch_scc1 Lok
s_mov_b32 s{sRetry}, 1
s_mov_b32 s{sSt}, 0
v_mov_b32 v{vT1}, 0xff800000
Lfb1:
buffer_load_dwordx4 {vr(vKf[0],4)}, v{vL16}, {sr(SWS,4)}, s{sSt} offen sc1
s_waitcnt vmcnt(0)""")
e(mfma(vS[0], vKf[0], vQ, "0"))
e("s_nop 11")
for p in range(0, 16, 2): e(f"v_max3_f32 v{vT1}, v{vT1}, v{vS[0]+p}, v{vS[0]+p+1}")
e(f"""s_add_u32 s{sSt}, s{sSt}, {KVT}
s_cmp_lt_u32 s{sSt}, {64*KVT}
s_cbranch_scc1 Lfb1
v_mov_b32 v{vT2}, v{vT1}
s_nop 1
v_permlane32_swap_b32 v{vT1}, v{vT2}
s_nop 1
v_max_f32 v{vT1}, v{vT1}, v{vT2}""")
for r in range(16): e(f"v_sub_f32 v{vC+r}, 0, v{vT1}")
for r in range(12): e(f"v_mov_b32 v{vO+r}, 0")
e(f"""v_subrev_u32 v{vAv}, {48*KVT}, v{vAv}
s_mov_b32 s{sSt}, 0
Lfb2:
buffer_load_dwordx4 {vr(vKf[0],4)}, v{vL16}, {sr(SWS,4)}, s{sSt} offen sc1
buffer_load_dwordx4 {vr(vVl[0],4)}, v{vAv}, {sr(SWS,4)}, s{sSt} offen sc1
buffer_load_dwordx4 {vr(vVh,4)}, v{vAv}, {sr(SWS,4)}, s{sSt} offen offset:528 sc1
s_waitcnt vmcnt(0)""")
e(mfma(vS[0], vKf[0], vQ, vr(vC, 16)))
e("s_nop 11")
for i in range(16): e(f"v_exp_f32 v{vS[0]+i}, v{vS[0]+i}")
e("s_nop 1")
e(smf(vO, vVl[0], vS[0], vIdx)); e(smf(vO, vVh, vS[0]+8, vIdx))
e(f"""s_add_u32 s{sSt}, s{sSt}, {KVT}
s_cmp_lt_u32 s{sSt}, {64*KVT}
s_cbranch_scc1 Lfb2
s_branch Lfin
Lcodeend:""")

L += ['.section .rodata,"a"', ".p2align 6", f".amdhsa_kernel {NAME}_kernel",
      "  .amdhsa_next_free_vgpr 256", "  .amdhsa_next_free_sgpr 102", "  .amdhsa_accum_offset 256",
      "  .amdhsa_group_segment_fixed_size 0", "  .amdhsa_kernarg_size 96", "  .amdhsa_user_sgpr_count 2",
      "  .amdhsa_user_sgpr_kernarg_segment_ptr 1", "  .amdhsa_system_sgpr_workgroup_id_x 1", ".end_amdhsa_kernel"]
open(OUT, "w").write("\n".join(L) + "\n")
print("wrote", OUT, len(L), "lines")
```

```python
import sys, struct
NAME = "recurrent_scan__grouped_kv_mqa__geglu_ffn__prompt"
PROF = "--prof" in sys.argv
OUT = [a for a in sys.argv[1:2] if not a.startswith("--")]
OUT = OUT[0] if OUT else f"cdna_kernels/{NAME}.s"

L = []
def e(s):
    for ln in s.split("\n"):
        if not ln.strip(): continue
        L.append(("    " + ln.strip()) if not ln.strip().endswith(":") else ln.strip())
def f2u(x): return struct.unpack("<I", struct.pack("<f", x))[0]
def vr(a, n): return f"v[{a}:{a+n-1}]"
def sr(a, n): return f"s[{a}:{a+n-1}]"

KVT = 2080
KVIMG = 0
HIMG = 135168
OIMG = HIMG + 64*88*1024
HFLG = OIMG + 64*32*1024
PROFO = HFLG + 256*128
WS_BYTES = PROFO + 256*8*256
CNT_KV = 0
KVRDY = 128
STG = 45056
XOFF, GOFF, UOFF, QOFF = 0, 16384, 28672, 40960
STGK, QOFFK, NBK = 24832, 20736, 5
QIMG = 135168
STATM = 160768
CSUM = 162816
MRX = 159744
ZERO = 163712
FLAG = 163776
LDS_BYTES = 163840
SX, SWQ, SWK, SWV, SWO, SWG, SWD, SOUT, SDBG, SWS = 4, 8, 12, 16, 20, 24, 28, 32, 36, 40
sI, sJ, sW, sW4 = 44, 45, 46, 47
sXo, sWo, sQo, sLb = 48, 49, 50, 51
sMx, sMw, sMq = 52, 53, 54
sSt, sDl, sT0, sT1, sT2, sT3 = 55, 56, 57, 58, 59, 60
sTB, sCS, sRetry, sRb = 61, 62, 63, 3
sEx = 88
sTm = 90
sPo = 92
sC0, sC1, sC2, sC3 = 94, 95, 96, 97
sOp = 98
TOUCH = int("--touch" in sys.argv)
vLane, vH, vT0, vT1, vT2, vT3 = 1, 2, 3, 4, 5, 6
vXa0, vXa1, vWa0, vWa1, vWa2, vQa = 7, 8, 9, 10, 11, 12
vRX = 13
vRW, vRQ = 17, 18
vSel = 20
vCs = 24
vF = 32
vAcc = 96
vSt = 160
vQ = 8; vKf = [12, 16]; vVl = [20, 24]; vVh = 28
vS = [32, 48]; vC = 64
vWf = [80, 88, 96]
vAf = [104, 120]
vHf = 136
vO = 224
vIdx, vAk, vAv, vDa, vL16, vRa = 240, 241, 242, 243, 244, 245
vPoll = 246
vAq = 7
vRd = 248
vRw, vRr = 254, 255
vOf = 136
vAs = [32, 48]
vXr = 64
sKq, sTt, sHo, sDo, sDm, sHc, sXf, sOc, sOc2, sHs = 64, 65, 66, 67, 68, 69, 70, 71, 72, 73
sNo = 86
ASL = 8320
def aslot(n): return ASL*n
SP = [135168, 143360, 151552]
GSLOT = SP + [aslot(n) for n in range(0, 8)]
GSLOT += SP + [aslot(n) for n in (0, 1, 2, 3, 8, 9, 10, 11)]
GSLOT += [aslot(n) for n in (4, 5, 6, 7, 12, 13, 14, 15)]
RED = aslot(0)

nstamp = [0]
DBGT = "--dbgt" in sys.argv
DT = {0: 75, 12: 76, 1: 77, 2: 78, 3: 79, 6: 80, 9: 81, 7: 82, 11: 83}
PAD = (int(sys.argv[sys.argv.index("--pad")+1]), int(sys.argv[sys.argv.index("--pad")+2])) if "--pad" in sys.argv else None
npad = [0]
def stamp(k):
    if PAD and PAD[0] == k:
        npad[0] += 1
        e(f"Lpad{npad[0]}:\ns_memrealtime s[{sTm}:{sTm+1}]\ns_waitcnt lgkmcnt(0)\ns_sub_u32 s{sTm}, s{sTm}, s100\ns_cmp_lt_u32 s{sTm}, {PAD[1]}\ns_cbranch_scc1 Lpad{npad[0]}")
    if DBGT and k in DT:
        e(f"s_memrealtime s[{sTm}:{sTm+1}]\ns_waitcnt lgkmcnt(0)\ns_sub_u32 s{DT[k]}, s{sTm}, s100")
        if k == 11:
            e(f"s_memtime s[{sTm}:{sTm+1}]\ns_waitcnt lgkmcnt(0)\ns_sub_u32 s84, s{sTm}, s92")
            e(f"s_cmp_lg_u32 s2, 64\ns_cbranch_scc1 Lend\ns_cmp_lg_u32 s{sW}, 4\ns_cbranch_scc1 Lend")
            for n, r in enumerate(range(75, 85)):
                e(f"v_mov_b32 v0, s{r}\nbuffer_store_dword v0, off, {sr(SDBG,4)}, 0 offset:{4+4*n}\ns_nop 1")
    if not PROF: return
    e(f"""s_memtime s[{sTm}:{sTm+1}]
    s_waitcnt lgkmcnt(0)
    v_mov_b32 v0, s{sTm}
    buffer_store_dword v0, off, {sr(SWS,4)}, s{sPo} offset:{4*k}""")
    if k in RTS:
        e(f"""s_memrealtime s[{sTm}:{sTm+1}]
        s_waitcnt lgkmcnt(0)
        v_mov_b32 v0, s{sTm}
        buffer_store_dword v0, off, {sr(SWS,4)}, s{sPo} offset:{4*RTS[k]}""")
RTS = {12: 24, 1: 25, 5: 26, 6: 27, 11: 28}

TS = []
def tstamp(k):
    if not PROF: return
    r = 74 + len(TS); TS.append((k, r))
    e(f"s_memtime s[{sTm}:{sTm+1}]\ns_waitcnt lgkmcnt(0)\ns_mov_b32 s{r}, s{sTm}")
def tflush():
    for k, r in TS: e(f"v_mov_b32 v0, s{r}\nbuffer_store_dword v0, off, {sr(SWS,4)}, s{sPo} offset:{4*k}\ns_nop 1")
def tick(acc):
    if not PROF or "--notick" in sys.argv: return ""
    r = f"s_memtime s[{sTm}:{sTm+1}]\ns_waitcnt lgkmcnt(0)\n"
    if acc is not None: r += f"s_sub_u32 s99, s{sTm}, s99\ns_add_u32 s{acc}, s{acc}, s99\n"
    return r + f"s_mov_b32 s99, s{sTm}"

def interleave(main, fill):
    out = []; n = len(main); m = len(fill); k = 0
    for i, a in enumerate(main):
        out.append(a)
        t = (m * (i + 1)) // n
        out += fill[k:t]; k = t
    return out

def mfma(d, a, b, c=None):
    c = vr(d, 16) if c is None else c
    return f"v_mfma_f32_32x32x16_bf16 {vr(d,16)}, {vr(a,4)}, {vr(b,4)}, {c}"
def mfma16(d, a, b): return f"v_mfma_f32_16x16x32_bf16 {vr(d,4)}, {vr(a,4)}, {vr(b,4)}, {vr(d,4)}"
def smf(d, a, b, idx): return f"v_smfmac_f32_32x32x32_bf16 {vr(d,16)}, {vr(a,4)}, {vr(b,8)}, v{idx}"

def kv_poll_issue(): return f"buffer_load_dwordx2 {vr(vPoll,2)}, off, {sr(SDBG,4)}, 0 offset:{KVRDY} sc1"
def kv_poll_take():
    e(f"v_readfirstlane_b32 s{sNo}, v{vPoll}\nv_readfirstlane_b32 s{sNo+1}, v{vPoll+1}")
def kv_poll_loop():
    e(f"""s_mov_b32 s{sT0}, 0
    Lpoll_kv:
    {kv_poll_issue()}
    s_waitcnt vmcnt(0)""")
    kv_poll_take()
    e(f"""s_add_u32 s{sT0}, s{sT0}, 1
    s_cmp_lg_u32 s{sNo}, 0
    s_cbranch_scc1 Lpolld_kv
    s_cmp_ge_u32 s{sT0}, 100000
    s_cbranch_scc1 Lpolld_kv
    s_sleep 4
    s_branch Lpoll_kv
    Lpolld_kv:""")
def kv_signal():
    e(f"""s_cmp_lg_u32 s{sW}, 0
    s_cbranch_scc1 Lsig_kv
    v_mov_b32 v{vT1}, 1
    s_mov_b64 exec, 1
    buffer_atomic_add v{vT1}, off, {sr(SDBG,4)}, 0 offset:{CNT_KV} sc0 sc1
    s_memrealtime s[{sTm}:{sTm+1}]
    s_waitcnt vmcnt(0) lgkmcnt(0)
    v_readfirstlane_b32 s{sT0}, v{vT1}
    s_or_b32 s{sTm}, s{sTm}, 1
    v_mov_b32 v{vPoll}, s{sTm}
    v_mov_b32 v{vPoll+1}, s{sTm+1}
    s_cmp_lg_u32 s{sT0}, 15
    s_cbranch_scc1 Lsig_kv2
    buffer_store_dwordx2 {vr(vPoll,2)}, off, {sr(SDBG,4)}, 0 offset:{KVRDY} sc1
    Lsig_kv2:
    s_mov_b64 exec, -1
    Lsig_kv:""")
def h_poll_issue():
    return f"""v_and_b32 v{vPoll}, 15, v{vLane}
    v_lshlrev_b32 v{vPoll}, 7, v{vPoll}
    buffer_load_dwordx2 {vr(vPoll,2)}, v{vPoll}, {sr(SWS,4)}, s{sHc} offen sc1"""

hdr = open(f"cdna_kernels/{NAME}.s.ref").read().split("\n")
hdr = [h for h in hdr[:15] if h.startswith(";") and "@launch" not in h]
L += hdr
L.append(f"; @launch grid=(256,1,1) block=(512,1,1) lds={LDS_BYTES}")
L += ['.amdgcn_target "amdgcn-amd-amdhsa--gfx950"', ".text", f".globl {NAME}_kernel", ".p2align 8",
      f".type {NAME}_kernel,@function"]
e(f"{NAME}_kernel:")
RT = PROF and "--notick" in sys.argv
if RT: e("s_memrealtime s[100:101]\ns_memtime s[98:99]")
if DBGT or PAD: e("s_memrealtime s[100:101]\ns_memtime s[92:93]")
def busy(tag):
    e(f"s_mov_b32 s99, 16\nLbusy{tag}:")
    for i in range(64): e(f"v_exp_f32 v{200+i%8}, v{200+i%8}")
    e(f"s_sub_u32 s99, s99, 1\ns_cmp_lg_u32 s99, 0\ns_cbranch_scc1 Lbusy{tag}")
if "--busy0" in sys.argv: busy(0)
e(f"""s_cmp_ge_u32 s2, 256
s_cbranch_scc1 Lend
s_load_dwordx16 s[64:79], s[0:1], 0
s_load_dwordx8 s[80:87], s[0:1], 64
v_and_b32 v{vLane}, 63, v0
v_lshrrev_b32 v{vT0}, 6, v0
v_lshrrev_b32 v{vH}, 5, v{vLane}
v_readfirstlane_b32 s{sW}, v{vT0}
s_and_b32 s{sT0}, s2, 7
s_lshr_b32 s{sT1}, s2, 3
s_and_b32 s{sI}, s{sT0}, 1
s_lshl_b32 s{sI}, s{sI}, 3
s_and_b32 s{sT2}, s{sT1}, 7
s_add_u32 s{sI}, s{sI}, s{sT2}
s_lshr_b32 s{sJ}, s{sT0}, 1
s_lshl_b32 s{sJ}, s{sJ}, 2
s_lshr_b32 s{sT3}, s{sT1}, 3
s_sub_u32 s{sJ}, s{sJ}, s{sT3}
s_add_u32 s{sJ}, s{sJ}, 3
s_and_b32 s{sTB}, s{sT0}, 3
s_lshl_b32 s{sTB}, s{sTB}, 3
s_add_u32 s{sTB}, s{sTB}, s{sT2}
s_lshr_b32 s{sCS}, s{sT0}, 2
s_lshl_b32 s{sCS}, s{sCS}, 2
s_add_u32 s{sCS}, s{sCS}, s{sT3}
s_and_b32 s{sW4}, s{sW}, 3""")
e(f"""v_lshrrev_b32 v{vT0}, 3, v{vLane}
v_lshlrev_b32 v{vT0}, 10, v{vT0}
v_and_b32 v{vT1}, 7, v{vLane}
v_lshrrev_b32 v{vT2}, 4, v{vLane}
v_xor_b32 v{vT1}, v{vT1}, v{vT2}
v_lshl_add_u32 v{vXa0}, v{vT1}, 4, v{vT0}
v_xor_b32 v{vXa1}, 64, v{vXa0}
v_add_u32 v{vXa1}, {8192-1024}, v{vXa1}""")
for k, r in enumerate((vWa0, vWa1, vWa2)):
    e(f"""v_add_u32 v{vT0}, {64*k}, v{vLane}
    v_mul_u32_u24 v{vT1}, 43691, v{vT0}
    v_lshrrev_b32 v{vT1}, 19, v{vT1}
    v_mul_u32_u24 v{vT2}, 12, v{vT1}
    v_sub_u32 v{vT0}, v{vT0}, v{vT2}
    v_mul_u32_u24 v{vT1}, 2752, v{vT1}
    v_lshl_add_u32 v{r}, v{vT0}, 4, v{vT1}""")
    if k: e(f"v_subrev_u32 v{r}, {1024*k}, v{r}")
e(f"""v_lshrrev_b32 v{vT0}, 2, v{vLane}
v_lshlrev_b32 v{vT0}, 10, v{vT0}
v_and_b32 v{vT1}, 3, v{vLane}
v_lshl_add_u32 v{vQa}, v{vT1}, 4, v{vT0}""")
e(f"""s_lshl_b32 s{sXo}, s{sI}, 17
s_lshl_b32 s{sT0}, s{sW}, 14
s_add_u32 s{sXo}, s{sXo}, s{sT0}
s_mul_i32 s{sT0}, s{sJ}, 96
s_min_u32 s{sT0}, s{sT0}, 1280
s_lshl_b32 s{sT0}, s{sT0}, 1
s_mul_i32 s{sWo}, s{sW4}, {16*2752}
s_add_u32 s{sWo}, s{sWo}, s{sT0}
s_lshl_b32 s{sQo}, s{sW4}, 14
s_lshl_b32 s{sT0}, s{sJ}, 6
s_add_u32 s{sQo}, s{sQo}, s{sT0}
s_lshl_b32 s{sMx}, s{sW}, 11
s_mul_i32 s{sMw}, s{sW}, 3072
s_add_u32 s{sMw}, s{sMw}, {GOFF}
s_lshl_b32 s{sMq}, s{sW4}, 10
s_add_u32 s{sMq}, s{sMq}, {QOFF}
s_mov_b32 s{sLb}, 0
s_mov_b32 s{sRetry}, 0
s_mov_b32 s{sC3}, {(-2*STG) & 0xffffffff}
s_waitcnt lgkmcnt(0)""")
def srd(d, p, nbytes):
    e(f"s_mov_b32 s{d}, s{p}\ns_mov_b32 s{d+1}, s{p+1}\ns_mov_b32 s{d+2}, {nbytes}\ns_mov_b32 s{d+3}, 0x20000")
srd(SX, 64, 2048*1024); srd(SWQ, 66, 512*1024)
e(f"s_cmp_ge_u32 s{sW}, 4\ns_cselect_b32 s{SWG}, s78, s76\ns_cselect_b32 s{SWG+1}, s79, s77\ns_mov_b32 s{SWG+2}, {512*2752}\ns_mov_b32 s{SWG+3}, 0x20000")
srd(SWS, 86, WS_BYTES)
srd(SWK, 68, 16384); srd(SWV, 70, 16384); srd(SWO, 72, 512*1024)
srd(SWD, 80, 1376*1024); srd(SOUT, 82, 2048*1024); srd(SDBG, 84, 256)
if PROF:
    e(f"s_lshl_b32 s{sPo}, s2, 3\ns_add_u32 s{sPo}, s{sPo}, s{sW}\ns_lshl_b32 s{sPo}, s{sPo}, 8\ns_add_u32 s{sPo}, s{sPo}, {PROFO}")
stamp(0)
if RT: e(f"s_nop 1\nv_mov_b32 v0, s100\nbuffer_store_dword v0, off, {sr(SWS,4)}, s{sPo} offset:60\ns_nop 1\nv_mov_b32 v0, s98\nbuffer_store_dword v0, off, {sr(SWS,4)}, s{sPo} offset:16")
elif PROF: e("s_mov_b32 s100, 0\ns_mov_b32 s101, 0")
def dma_groups(kind):
    gx = [f"s_add_u32 m0, s{sLb}, s{sMx}", "s_nop 0",
          f"buffer_load_dwordx4 v{vXa0}, {sr(SX,4)}, s{sXo} offen lds"]
    gx2 = [f"buffer_load_dwordx4 v{vXa1}, {sr(SX,4)}, s{sXo} offen offset:1024 lds", f"s_add_u32 s{sXo}, s{sXo}, 128"]
    w0 = [f"s_add_u32 m0, s{sLb}, s{sMw}", "s_nop 0", f"buffer_load_dwordx4 v{vWa0}, {sr(SWG,4)}, s{sWo} offen lds"]
    w1 = [f"buffer_load_dwordx4 v{vWa1}, {sr(SWG,4)}, s{sWo} offen offset:1024 lds"]
    w2 = [f"buffer_load_dwordx4 v{vWa2}, {sr(SWG,4)}, s{sWo} offen offset:2048 lds", f"s_add_u32 s{sWo}, s{sWo}, {64*2752}"]
    q = [f"s_add_u32 m0, s{sLb}, s{sMq}", "s_nop 0", f"buffer_load_dwordx4 v{vQa}, {sr(SWQ,4)}, s{sQo} offen lds",
         f"s_add_u32 s{sQo}, s{sQo}, 65536"]
    stg, nb = (STGK, NBK) if kind[-1] == "K" else (STG, 3)
    adv = [f"s_add_u32 s{sLb}, s{sLb}, {stg}", f"s_cmp_ge_u32 s{sLb}, {nb*stg}", f"s_cselect_b32 s{sLb}, 0, s{sLb}"]
    if kind == "L": return [gx+gx2, w0+w1, w2, q+adv]
    if kind == "H": return [gx+gx2, w0, w1, w2+adv]
    if kind == "HK": return [gx, gx2, w0+[f"s_add_u32 s{sWo}, s{sWo}, 2048"], adv]
    if kind == "LK": return [gx, gx2, q, adv]
def dma_stage(kind): return sum(dma_groups(kind), [])
NDMA = {"L": 6, "H": 5, "LK": 3, "HK": 3}
NX = {"L": TOUCH, "H": TOUCH, "LK": 0, "HK": 0}

if "--pfcode" in sys.argv:
    e(f"""s_getpc_b64 s[94:95]
    Lpc0:
    s_sub_u32 s94, s94, Lpc0-{NAME}_kernel
    s_subb_u32 s95, s95, 0
    v_lshlrev_b32 v210, 7, v0
    v_min_u32 v210, Lcodeend-{NAME}_kernel-4, v210
    global_load_dword v211, v210, s[94:95]""")
if "--pfdata" in sys.argv:
    e(f"""v_lshlrev_b32 v210, 7, v0
    s_lshl_b32 s94, s{sI}, 17
    buffer_load_dword v211, v210, {sr(SX,4)}, s94 offen
    s_add_u32 s94, s94, 65536
    buffer_load_dword v211, v210, {sr(SX,4)}, s94 offen
    v_lshlrev_b32 v210, 10, v0
    s_lshl_b32 s94, s{sJ}, 6
    buffer_load_dword v211, v210, {sr(SWQ,4)}, s94 offen
    s_lshl_b32 s94, s{sCS}, 7
    buffer_load_dword v211, v210, {sr(SWO,4)}, s94 offen
    buffer_load_dword v211, v210, {sr(SWD,4)}, s94 offen
    s_add_u32 s94, s94, 524288
    buffer_load_dword v211, v210, {sr(SWD,4)}, s94 offen
    s_add_u32 s94, s94, 524288
    buffer_load_dword v211, v210, {sr(SWD,4)}, s94 offen
    v_and_b32 v210, 255, v0
    v_mul_u32_u24 v210, 2752, v210
    s_mul_i32 s94, s{sJ}, 96
    s_min_u32 s94, s94, 1280
    s_lshl_b32 s94, s94, 1
    buffer_load_dword v211, v210, {sr(SWG,4)}, s94 offen
    buffer_load_dword v211, v210, {sr(SWG,4)}, s94 offen offset:128
    s_add_u32 s94, s94, {256*2752}
    buffer_load_dword v211, v210, {sr(SWG,4)}, s94 offen
    buffer_load_dword v211, v210, {sr(SWG,4)}, s94 offen offset:128
    v_lshlrev_b32 v210, 14, v0
    buffer_load_dword v211, v210, {sr(SWS,4)}, 0 offen
    v_lshlrev_b32 v210, 12, v0
    buffer_load_dword v211, v210, {sr(SOUT,4)}, 0 offen
    buffer_load_dword v211, off, {sr(SDBG,4)}, 0 sc1""")
if "--busy2" in sys.argv: busy(2); e("s_waitcnt vmcnt(0)")
e(f"""s_cmp_eq_u32 s{sJ}, 15
s_cbranch_scc1 Lkvcu
s_cmp_ge_u32 s{sW}, 4
s_cbranch_scc1 LproH""")

def common_init(kind):
    e(f"""v_and_b32 v{vT0}, 31, v{vLane}
    v_lshrrev_b32 v{vT1}, 1, v{vT0}
    v_and_b32 v{vT1}, 7, v{vT1}
    v_xor_b32 v{vT1}, v{vT1}, v{vH}
    v_lshlrev_b32 v{vT0}, 7, v{vT0}""")
    if kind == "L": e(f"s_and_b32 s{sT0}, s{sW}, 1\ns_lshl_b32 s{sT0}, s{sT0}, 13")
    elif kind == "KV": e(f"s_lshl_b32 s{sT0}, s{sW}, 14")
    else: e(f"s_lshl_b32 s{sT0}, s{sW4}, 12")
    e(f"v_add_u32 v{vT0}, s{sT0}, v{vT0}")
    for ks in range(4):
        e(f"v_xor_b32 v{vT2}, {2*ks}, v{vT1}\nv_lshl_add_u32 v{vRX+ks}, v{vT2}, 4, v{vT0}")
    e(f"""v_bfe_u32 v{vT0}, v{vLane}, 2, 2
    v_lshl_add_u32 v{vT0}, v{vH}, 3, v{vT0}
    v_bfe_u32 v{vT1}, v{vLane}, 4, 1
    v_and_b32 v{vT2}, 3, v{vLane}
    v_lshlrev_b32 v{vT2}, 3, v{vT2}
    v_lshl_add_u32 v{vT3}, v{vT1}, 5, v{vT2}
    v_lshl_add_u32 v{vRQ}, v{vT0}, 6, v{vT3}""")
    if kind == "KV":
        e(f"""v_lshlrev_b32 v{vT1}, 14, v{vT1}
        v_lshl_add_u32 v{vRW}, v{vT0}, 5, v{vT2}
        s_lshr_b32 s{sT0}, s{sW}, 2
        s_lshl_b32 s{sT0}, s{sT0}, 13
        s_add_u32 s{sT1}, s{sT0}, 131072
        v_add3_u32 v{vRW}, v{vRW}, v{vT1}, s{sT1}
        s_add_u32 s{sT1}, s{sT1}, s{sT0}
        v_add_u32 v{vRQ}, s{sT1}, v{vRQ}""")
    else:
        e(f"v_mul_u32_u24 v{vRW}, 192, v{vT0}\nv_add_u32 v{vRW}, v{vRW}, v{vT3}")
        if kind == "L": e(f"s_lshr_b32 s{sT0}, s{sW}, 1\ns_lshl_b32 s{sT0}, s{sT0}, 6\nv_add_u32 v{vRW}, s{sT0}, v{vRW}")
        else: e(f"v_add_u32 v{vRW}, 128, v{vRW}")
    e(f"""v_bfe_u32 v{vT0}, v{vLane}, 4, 1
    v_and_b32 v{vT1}, 15, v{vLane}
    v_cmp_eq_u32 vcc, v{vT0}, v{vT1}
    v_mov_b32 v{vT2}, 0x3f803f80
    s_nop 0
    v_cndmask_b32 v{vSel}, 0, v{vT2}, vcc""")
    for k in range(1, 4): e(f"v_mov_b32 v{vSel+k}, v{vSel}")
    for r in list(range(vCs, vCs+4)) + list(range(vAcc, vAcc+(64 if kind == 'L' else 48))) + list(range(vSt, vSt+4)):
        e(f"v_mov_b32 v{r}, 0")

def stats_ops(x, regs=range(4)):
    r = []
    for k in regs:
        lo, hi = vSt+4+2*(k & 1), vSt+5+2*(k & 1)
        r += [f"v_lshlrev_b32 v{lo}, 16, v{x+k}", f"v_and_b32 v{hi}, 0xffff0000, v{x+k}",
              f"v_add_f32 v{vSt}, v{vSt}, v{lo}", f"v_add_f32 v{vSt+1}, v{vSt+1}, v{hi}",
              f"v_fmac_f32 v{vSt+2}, v{lo}, v{lo}", f"v_fmac_f32 v{vSt+3}, v{hi}, v{hi}"]
    return r

def tr(d, a, off): return [f"ds_read_b64_tr_b16 {vr(d,2)}, v{a} offset:{off}"]
def p1_reads(kind, ks, F):
    if "--noread" in sys.argv: return []
    if kind == "L":
        return [f"ds_read_b128 {vr(F,4)}, v{vRX+ks}"] + tr(F+8, vRW, GOFF+(16*ks)*192) + tr(F+10, vRW, GOFF+(16*ks+4)*192) + \
               tr(F+12, vRW, UOFF+(16*ks)*192) + tr(F+14, vRW, UOFF+(16*ks+4)*192) + \
               [f"ds_read_b128 {vr(F+4,4)}, v{vRX+ks} offset:4096"]
    if kind == "H":
        return [f"ds_read_b128 {vr(F,4)}, v{vRX+ks}"] + tr(F+4, vRQ, QOFF+(16*ks)*64) + tr(F+6, vRQ, QOFF+(16*ks+4)*64) + \
               tr(F+8, vRW, GOFF+(16*ks)*192) + tr(F+10, vRW, GOFF+(16*ks+4)*192) + \
               tr(F+12, vRW, UOFF+(16*ks)*192) + tr(F+14, vRW, UOFF+(16*ks+4)*192)
    if kind == "HK":
        return [f"ds_read_b128 {vr(F,4)}, v{vRX+ks}"] + tr(F+8, vRW, GOFF+(16*ks)*32) + tr(F+10, vRW, GOFF+(16*ks+4)*32)
    if kind == "LK":
        return [f"ds_read_b128 {vr(F,4)}, v{vRX+ks}"] + tr(F+4, vRQ, QOFFK+(16*ks)*64) + tr(F+6, vRQ, QOFFK+(16*ks+4)*64)
def p1_comp(kind, var, F):
    if kind == "L":
        m = [mfma(vAcc, F+8, F), mfma(vAcc+16, F+12, F), mfma16(vCs, F+8+4*(var & 1), vSel), mfma(vAcc+32, F+8, F+4), mfma(vAcc+48, F+12, F+4)]
        return m, stats_ops(F+4*(var >> 1), (2, 3))
    if kind == "H":
        m = [mfma(vAcc, F+4, F), mfma(vAcc+16, F+8, F), mfma(vAcc+32, F+12, F)]
        if var < 3: m.insert(1, mfma16(vCs, F+4+4*var, vSel))
        return m, stats_ops(F, (0, 1))
    if kind == "HK":
        return [mfma(vAcc+16, F+8, F), mfma16(vCs, F+8, vSel), mfma(vAcc+32, F, F+8)], stats_ops(F, (0, 1))
    if kind == "LK":
        return [mfma(vAcc, F+4, F), mfma16(vCs, F+4, vSel)], stats_ops(F, (2, 3))

BARX = "s_nop 0" if "--nobar" in sys.argv else "s_barrier"
NST = 208 if "--rep" in sys.argv else 8
def spread(m, fill):
    w = [16 if "16x16" in x else 32 for x in m]
    tot = sum(c for c, _ in fill); W = sum(w)
    out = []; k = 0; acc = 0; cw = 0
    for x, wx in zip(m, w):
        out.append(x); cw += wx
        while k < len(fill) and (acc + fill[k][0]/2) * W <= tot * cw:
            out.append(fill[k][1]); acc += fill[k][0]; k += 1
    out += [t for _, t in fill[k:]]
    return out

def p1_loop(kind, var, done_label):
    tag = f"{kind}{var}"
    n = NDMA[kind]
    dg = dma_groups(kind)
    kv = kind[-1] == "K"
    stg, nb = (STGK, NBK) if kv else (STG, 3)
    LA = nb - 1
    if kind[0] == "H" and "--noprio" not in sys.argv: e("s_setprio 1")
    e(f"s_mov_b32 s{sSt}, 0\ns_mov_b32 s{sRb}, 0\ns_mov_b64 vcc, -1\ns_waitcnt vmcnt({(LA-1)*n+NX[kind]})\ns_barrier")
    stamp(12)
    def comp(F):
        m0, v0 = p1_comp(kind, var, F); m1, v1 = p1_comp(kind, var, F+16)
        if "--nostat" in sys.argv: v0 = v1 = ["s_nop 0"]*5
        if "--nomfma" in sys.argv: m0 = m1 = ["s_nop 0"]*2
        if "--nocs" in sys.argv: m0 = [x for x in m0 if "16x16" not in x]; m1 = [x for x in m1 if "16x16" not in x]
        return m0+m1, v0+v1
    def dblk(i, g): return (4*len(g)+8, "\n".join([f"s_cbranch_vccz Lnd{i}_{tag}"] + g + [f"Lnd{i}_{tag}:"]))
    rd = p1_reads(kind, 0, vF) + p1_reads(kind, 1, vF+16)
    for x in rd + sum(dg, []): e(x)
    e(f"s_branch Lp1h_{tag}")
    e(f".p2align 3\nLp1_{tag}:")
    m, va = comp(vF+32)
    hv = len(va)//2
    fill = [(6, x) for x in rd] + [dblk(0, dg[0])] + [(4, x) for x in va[:hv]] + [dblk(1, dg[1])] + [(4, x) for x in va[hv:]] + [dblk(2, dg[2]+dg[3])]
    for x in spread(m, fill): e(x)
    e(f"Lp1h_{tag}:\ns_waitcnt lgkmcnt(0)")
    rd = p1_reads(kind, 2, vF+32) + p1_reads(kind, 3, vF+48)
    m, va = comp(vF)
    ctl = (16, f"s_add_u32 s{sRb}, s{sRb}, 1\ns_cmp_eq_u32 s{sRb}, {nb}\ns_cselect_b32 s{sDl}, s{sC3}, {stg}\ns_cselect_b32 s{sRb}, 0, s{sRb}")
    adr = [(4, f"v_add_u32 v{r}, s{sDl}, v{r}") for r in list(range(vRX, vRX+4)) + ([vRW] if kind != "LK" else []) + ([vRQ] if kind in ("H", "LK") else [])]
    ctl2 = f"s_add_u32 s{sSt}, s{sSt}, 1\ns_cmp_lt_u32 s{sSt}, {8-LA}\ns_cselect_b64 vcc, -1, 0\ns_cmp_gt_u32 s{sSt}, {8-LA}"
    sync = f"s_cbranch_scc1 Lp1w_{tag}\ns_waitcnt vmcnt({(LA-1)*n}) lgkmcnt(0)\nLp1x_{tag}:\n{BARX}\nLp1y_{tag}:"
    k = 2
    nv = 10
    for x in spread(m[:-k], [(6, x) for x in rd] + [ctl] + adr + [(4, x) for x in va[:-nv]]): e(x)
    e(ctl2); e(sync)
    for x in spread(m[-k:], [(4, x) for x in va[-nv:]]): e(x)
    e(f"s_cmp_lg_u32 s{sSt}, {NST}\ns_cbranch_scc1 Lp1_{tag}")
    if kind == "H":
        e(kv_poll_issue())
    m, va = comp(vF+32)
    for x in spread(m, [(4, x) for x in va]): e(x)
    e(f"s_branch {done_label}")
    e(f"Lp1w_{tag}:\ns_waitcnt lgkmcnt(0)\ns_cmp_eq_u32 s{sSt}, {NST}\ns_cbranch_scc1 Lp1y_{tag}")
    for st in range(9-LA, 7):
        e(f"s_waitcnt vmcnt({(7-st)*n})\ns_cmp_eq_u32 s{sSt}, {st}\ns_cbranch_scc1 Lp1x_{tag}")
    e(f"s_waitcnt vmcnt(0)\ns_branch Lp1x_{tag}")

def o_prod_off(dst):
    e(f"""s_lshl_b32 s{sT0}, s{sI}, 2
    s_lshr_b32 s{sT1}, s{sW}, 1
    s_add_u32 s{sT0}, s{sT0}, s{sT1}
    s_lshl_b32 s{sT0}, s{sT0}, 5
    s_lshl_b32 s{sT1}, s{sJ}, 1
    s_and_b32 s{dst}, s{sW}, 1
    s_add_u32 s{sT1}, s{sT1}, s{dst}
    s_lshr_b32 s{dst}, s{sT1}, 2
    s_add_u32 s{sT0}, s{sT0}, s{dst}
    s_and_b32 s{sT1}, s{sT1}, 3
    s_lshl_b32 s{sT1}, s{sT1}, 3
    s_add_u32 s{sT0}, s{sT0}, s{sT1}
    s_lshl_b32 s{sT0}, s{sT0}, 10
    s_add_u32 s{dst}, s{sT0}, {OIMG}""")

def v_lane_addr(d):
    e(f"""v_and_b32 v{d}, 15, v{vLane}
    v_lshlrev_b32 v{d}, 4, v{d}
    v_lshl_add_u32 v{d}, v{vH}, 8, v{d}
    s_mov_b32 exec_lo, 0xffff0000
    s_mov_b32 exec_hi, 0xffff0000
    v_mov_b32 v{d}, 512""")
def early_init():
    o_prod_off(sOp)
    v_lane_addr(vAv)
    e(f"""s_mov_b32 exec_lo, 0xffee0000
    s_mov_b32 exec_hi, 0xffee0000
    v_mov_b32 v{vAv}, 0x4000000
    s_mov_b64 exec, -1
    v_add_u32 v{vAv}, 1024, v{vAv}
    v_lshlrev_b32 v{vAk}, 4, v{vLane}
    v_lshlrev_b32 v{vL16}, 4, v{vLane}
    v_mov_b32 v{vIdx}, 0xdddd
    v_lshrrev_b32 v{vT0}, 3, v{vLane}
    v_lshlrev_b32 v{vT0}, 10, v{vT0}
    v_and_b32 v{vT1}, 7, v{vLane}
    v_bfe_u32 v{vT2}, v{vLane}, 4, 1
    v_lshlrev_b32 v{vT2}, 2, v{vT2}
    v_xor_b32 v{vT1}, v{vT1}, v{vT2}
    v_lshl_add_u32 v{vDa}, v{vT1}, 4, v{vT0}
    s_lshl_b32 s{sDo}, s{sW}, 13
    s_lshl_b32 s{sT1}, s{sCS}, 7
    s_add_u32 s{sDo}, s{sDo}, s{sT1}
    s_lshl_b32 s{sDm}, s{sW}, 10
    s_lshr_b32 s{sKq}, s{sW}, 1
    s_and_b32 s{sTt}, s{sW}, 1
    s_lshl_b32 s{sT0}, s{sTB}, 1
    s_add_u32 s{sT2}, s{sT0}, s{sTt}
    s_mul_i32 s{sHo}, s{sT2}, 88
    s_mul_i32 s{sT0}, s{sKq}, 22
    s_add_u32 s{sHo}, s{sHo}, s{sT0}
    s_lshl_b32 s{sHo}, s{sHo}, 10
    s_add_u32 s{sHo}, s{sHo}, {HIMG}
    s_lshl_b32 s{sT0}, s{sT2}, 2
    s_add_u32 s{sT0}, s{sT0}, s{sKq}
    s_lshl_b32 s{sT0}, s{sT0}, 13
    s_add_u32 s{sOc}, s{sT0}, {OIMG}
    s_add_u32 s{sOc2}, s{sOc}, 4096
    s_lshl_b32 s{sT0}, s{sT2}, 15
    s_add_u32 s{sT0}, s{sT0}, s{sT1}
    s_lshl_b32 s{sT1}, s{sKq}, 5
    s_add_u32 s{sXf}, s{sT0}, s{sT1}
    s_lshr_b32 s{sHc}, s{sTB}, 1
    s_lshl_b32 s{sHc}, s{sHc}, 11
    s_add_u32 s{sHc}, s{sHc}, {HFLG}
    s_lshl_b32 s{sHs}, s{sI}, 4
    s_add_u32 s{sHs}, s{sHs}, s{sJ}
    s_lshl_b32 s{sHs}, s{sHs}, 7
    s_add_u32 s{sHs}, s{sHs}, {HFLG}
    v_and_b32 v{vT0}, 31, v{vLane}
    v_lshlrev_b32 v{vT0}, 10, v{vT0}
    v_lshl_add_u32 v{vRa}, v{vH}, 4, v{vT0}
    v_bfe_u32 v{vT0}, v{vLane}, 2, 2
    v_lshl_add_u32 v{vT0}, v{vH}, 2, v{vT0}
    v_lshlrev_b32 v{vT0}, 7, v{vT0}
    v_bfe_u32 v{vT1}, v{vLane}, 4, 1
    v_lshl_add_u32 v{vT0}, v{vT1}, 5, v{vT0}
    v_and_b32 v{vT1}, 3, v{vLane}
    v_lshl_add_u32 v{vT0}, v{vT1}, 3, v{vT0}
    v_bfe_u32 v{vT1}, v{vLane}, 3, 1
    v_lshl_add_u32 v{vT0}, v{vT1}, 6, v{vT0}
    s_lshl_b32 s{sT0}, s{sKq}, 11
    v_add_u32 v{vRd}, s{sT0}, v{vT0}
    v_xor_b32 v{vRd+1}, 64, v{vRd}
    v_add_u32 v{vRd+2}, 0xe000, v{vRd}
    v_add_u32 v{vRd+3}, 0xe000, v{vRd+1}
    v_add_u32 v{vRd+4}, 0x1c000, v{vRd}
    v_add_u32 v{vRd+5}, 0x1c000, v{vRd+1}
    s_mul_i32 s{sT1}, s{sTt}, {8*ASL}
    s_add_u32 s{sT1}, s{sT1}, {RED}
    s_add_u32 s{sT0}, s{sT0}, s{sT1}
    v_add_u32 v{vRw}, s{sT0}, v{vL16}
    s_mul_i32 s{sT0}, s{sKq}, {ASL}
    s_add_u32 s{sT0}, s{sT0}, s{sT1}
    v_add_u32 v{vRr}, s{sT0}, v{vL16}""")
    for r in range(12): e(f"v_mov_b32 v{vO+r}, 0")

def prologue(kind):
    nb = NBK if kind[-1] == "K" else 3
    for x in dma_stage(kind): e(x)
    common_init(kind)
    for _ in range(nb-2):
        for x in dma_stage(kind): e(x)
    early_init()
    if "--busy3" in sys.argv: busy("3"+kind)
    if kind in ("L", "H") and TOUCH: touch(kind)
def sentinel(r):
    for k in range(4): e(f"v_mov_b32 v{r+k}, -1")
    e(f"buffer_store_dwordx4 {vr(r,4)}, v{vL16}, {sr(SWS,4)}, s{sOp} offen sc1")

def touch(kind):
    t = f"Lt{kind}"
    e(f"s_and_b32 s{sT2}, s{sI}, 7\ns_lshl_b32 s{sT2}, s{sT2}, 5\ns_add_u32 s{sT2}, s{sT2}, 256")
    for v in range(1, 4): e(f"s_cmp_eq_u32 s{sW4}, {v}\ns_cbranch_scc1 {t}{v}")
    e(f"""v_lshrrev_b32 v{vT0}, 1, v{vLane}
    v_mul_u32_u24 v{vT0}, 2752, v{vT0}
    v_and_b32 v{vT1}, 1, v{vLane}
    v_lshl_add_u32 v{vT0}, v{vT1}, 7, v{vT0}
    s_mul_i32 s{sT0}, s{sJ}, 96
    s_min_u32 s{sT0}, s{sT0}, 1280
    s_lshl_b32 s{sT0}, s{sT0}, 1
    s_mul_i32 s{sT2}, s{sT2}, 2752
    s_add_u32 s{sT0}, s{sT0}, s{sT2}
    buffer_load_dword v{vPoll}, v{vT0}, {sr(SWG,4)}, s{sT0} offen
    s_branch {t}e""")
    if kind == "L":
        e(f"""{t}1:
        v_and_b32 v{vT0}, 31, v{vLane}
        v_lshlrev_b32 v{vT0}, 10, v{vT0}
        s_lshl_b32 s{sT2}, s{sT2}, 10
        s_lshl_b32 s{sT0}, s{sJ}, 6
        s_add_u32 s{sT0}, s{sT0}, s{sT2}
        buffer_load_dword v{vPoll}, v{vT0}, {sr(SWQ,4)}, s{sT0} offen
        s_branch {t}e
        {t}2:
        {t}3:
        v_lshrrev_b32 v{vT0}, 2, v{vLane}
        v_lshlrev_b32 v{vT0}, 10, v{vT0}
        v_and_b32 v{vT1}, 3, v{vLane}
        v_lshl_add_u32 v{vT0}, v{vT1}, 7, v{vT0}
        s_lshl_b32 s{sT0}, s{sI}, 17
        s_and_b32 s{sT1}, s{sJ}, 3
        s_lshl_b32 s{sT1}, s{sT1}, 15
        s_add_u32 s{sT0}, s{sT0}, s{sT1}
        s_and_b32 s{sT1}, s{sW}, 1
        s_lshl_b32 s{sT1}, s{sT1}, 14
        s_add_u32 s{sT0}, s{sT0}, s{sT1}
        buffer_load_dword v{vPoll}, v{vT0}, {sr(SX,4)}, s{sT0} offen offset:512""")
    else:
        e(f"""{t}1:
        v_lshlrev_b32 v{vT0}, 15, v{vLane}
        buffer_load_dword v{vPoll}, v{vT0}, {sr(SWD,4)}, 0 offen
        s_branch {t}e
        {t}2:
        v_lshlrev_b32 v{vT0}, 15, v{vLane}
        buffer_load_dword v{vPoll}, v{vT0}, {sr(SWO,4)}, 0 offen
        s_branch {t}e
        {t}3:
        v_lshlrev_b32 v{vT0}, 17, v{vLane}
        buffer_load_dword v{vPoll}, v{vT0}, {sr(SWS,4)}, 0 offen""")
    e(f"{t}e:")

def cs_write(acc, slot_expr_sreg):
    e(f"""v_and_b32 v{vT0}, 1, v{vLane}
    v_lshlrev_b32 v{vT0}, 6, v{vT0}
    v_lshrrev_b32 v{vT1}, 4, v{vLane}
    v_lshl_add_u32 v{vT0}, v{vT1}, 4, v{vT0}
    v_add_u32 v{vT0}, {slot_expr_sreg}, v{vT0}
    s_mov_b32 exec_lo, 0x00030003
    s_mov_b32 exec_hi, 0x00030003
    ds_write_b128 v{vT0}, {vr(acc,4)}
    s_mov_b64 exec, -1""")

def stats_post(tile_sreg, part):
    e(f"""v_add_f32 v{vSt}, v{vSt}, v{vSt+1}
    v_add_f32 v{vSt+2}, v{vSt+2}, v{vSt+3}
    v_mov_b32 v{vSt+1}, v{vSt}
    v_mov_b32 v{vSt+3}, v{vSt+2}
    v_and_b32 v{vT0}, 31, v{vLane}
    s_lshl_b32 s{sT0}, s{tile_sreg}, 7
    v_permlane32_swap_b32 v{vSt}, v{vSt+1}
    v_permlane32_swap_b32 v{vSt+2}, v{vSt+3}
    s_add_u32 s{sT0}, s{sT0}, {STATM+1024*part}
    v_lshl_add_u32 v{vT0}, v{vT0}, 2, s{sT0}
    v_add_f32 v{vSt}, v{vSt}, v{vSt+1}
    v_add_f32 v{vSt+2}, v{vSt+2}, v{vSt+3}
    ds_write_b32 v{vT0}, v{vSt}
    ds_write_b32 v{vT0}, v{vSt+2} offset:512""")
def stats_read(d, addr, off):
    e(f"ds_read2st64_b32 {vr(d,2)}, v{addr} offset0:0 offset1:2" if off == 0 else f"ds_read2_b32 {vr(d,2)}, v{addr} offset0:{off//4} offset1:{(off+512)//4}")
    e(f"ds_read_b32 v{d+2}, v{addr} offset:{off+1024}\nds_read_b32 v{d+3}, v{addr} offset:{off+1536}")
def stats_fin(d, m, r):
    e(f"""v_add_f32 v{d}, v{d}, v{d+2}
    v_add_f32 v{d+1}, v{d+1}, v{d+3}
    v_mul_f32 v{m}, {f2u(1/512):#x}, v{d}
    v_mul_f32 v{d+1}, {f2u(1/512):#x}, v{d+1}
    v_fma_f32 v{d+1}, -v{m}, v{m}, v{d+1}
    v_max_f32 v{d+1}, 0, v{d+1}
    v_add_f32 v{d+1}, {f2u(1e-5):#x}, v{d+1}
    v_rsq_f32 v{r}, v{d+1}
    s_nop 0""")

C1 = -2*0.7978845608028654*1.4426950408889634
C3 = C1*0.044715
def gelu_consts(m, r, d):
    e(f"""v_sub_f32 v{d}, 0, v{m}
    v_mul_f32 v{d+3}, v{r}, v{r}
    v_mul_f32 v{d+1}, {f2u(C1):#x}, v{r}
    v_mul_f32 v{d+2}, {f2u(C3):#x}, v{r}
    v_mul_f32 v{d+2}, v{d+2}, v{d+3}
    v_rcp_f32 v{d+3}, v{d+3}""")
def bc(reg, pos, n):
    base = reg & ~1
    return vr(base, 2), reg & 1
def pk(op, d, srcs, neg=None):
    ops = []; lo = []; hi = []
    for t, r in srcs:
        if t == 'p': ops.append(vr(r, 2)); lo.append(0); hi.append(1)
        else: ops.append(vr(r & ~1, 2)); lo.append(r & 1); hi.append(r & 1)
    return f"{op} {vr(d,2)}, {', '.join(ops)} op_sel:[{','.join(map(str,lo))}] op_sel_hi:[{','.join(map(str,hi))}]"
def gelu_tile(g, u, csg, csu, k, tmp):
    for p in range(0, 16, 2):
        e(pk("v_pk_fma_f32", g+p, [('b', k), ('p', csg+p), ('p', g+p)]))
        e(pk("v_pk_fma_f32", u+p, [('b', k), ('p', csu+p), ('p', u+p)]))
    for p in range(0, 16, 2):
        e(pk("v_pk_mul_f32", tmp+p, [('p', g+p), ('p', g+p)]))
    for p in range(0, 16, 2):
        e(pk("v_pk_fma_f32", tmp+p, [('p', tmp+p), ('b', k+2), ('b', k+1)]))
    for p in range(0, 16, 2):
        e(pk("v_pk_mul_f32", tmp+p, [('p', tmp+p), ('p', g+p)]))
    for p in range(16): e(f"v_exp_f32 v{tmp+p}, v{tmp+p}")
    for p in range(0, 16, 2):
        e(pk("v_pk_mul_f32", u+p, [('p', u+p), ('p', g+p)]))
    for p in range(0, 16, 2):
        e(pk("v_pk_fma_f32", tmp+p, [('p', tmp+p), ('b', k+3), ('b', k+3)]))
    for p in range(16): e(f"v_rcp_f32 v{tmp+p}, v{tmp+p}")
    e("s_nop 0")
    for p in range(0, 16, 2):
        e(pk("v_pk_mul_f32", u+p, [('p', u+p), ('p', tmp+p)]))
    for p in range(8): e(f"v_cvt_pk_bf16_f32 v{g+p}, v{u+2*p}, v{u+2*p+1}")

def cs_read(d, slot_off):
    for q in range(4): e(f"ds_read_b128 {vr(d+4*q,4)}, v{vT3} offset:{slot_off+32*q}")

def lin_fold(acc, cs, negm, scale, n=16):
    for p in range(0, n, 2):
        e(pk("v_pk_fma_f32", acc+p, [('b', negm), ('p', cs+p), ('p', acc+p)]))
    for p in range(0, n, 2):
        e(pk("v_pk_mul_f32", acc+p, [('p', acc+p), ('b', scale)]))

def q_epilogue(cs):
    e(f"v_mul_f32 v{vSt+2}, {f2u(0.25*1.4426950408889634):#x}, v{vSt+1}")
    lin_fold(vAcc, cs, vSt+4, vSt+2)
    for p in range(8): e(f"v_cvt_pk_bf16_f32 v{vAcc+p}, v{vAcc+2*p}, v{vAcc+2*p+1}")
    e(f"""s_lshl_b32 s{sT0}, s{sW4}, 11
    s_add_u32 s{sT0}, s{sT0}, {QIMG}
    v_lshl_add_u32 v{vT0}, v{vLane}, 4, s{sT0}
    ds_write_b128 v{vT0}, {vr(vAcc,4)}
    ds_write_b128 v{vT0}, {vr(vAcc+4,4)} offset:1024""")

def h_off(dst, tile_add_sreg, unit_add):
    e(f"""s_lshl_b32 s{sT0}, s{sI}, 2
    s_add_u32 s{sT0}, s{sT0}, s{tile_add_sreg}
    s_mul_i32 s{sT0}, s{sT0}, 88
    s_mul_i32 s{sT1}, s{sJ}, 6
    s_min_u32 s{sT1}, s{sT1}, 80
    s_add_u32 s{sT1}, s{sT1}, {unit_add}
    s_lshr_b32 s{dst}, s{sT1}, 2
    s_add_u32 s{sT0}, s{sT0}, s{dst}
    s_and_b32 s{sT1}, s{sT1}, 3
    s_mul_i32 s{sT1}, s{sT1}, 22
    s_add_u32 s{sT0}, s{sT0}, s{sT1}
    s_lshl_b32 s{sT0}, s{sT0}, 10
    s_add_u32 s{dst}, s{sT0}, {HIMG}""")
def h_store(acc, so):
    e(f"buffer_store_dwordx4 {vr(acc,4)}, v{vT2}, {sr(SWS,4)}, s{so} offen sc1")
    e(f"s_add_u32 s{so}, s{so}, {22*1024}")
    e(f"buffer_store_dwordx4 {vr(acc+4,4)}, v{vT2}, {sr(SWS,4)}, s{so} offen sc1")
def kv_dma(tag):
    e(f"""s_lshl_b32 s{sT0}, s{sW4}, 10
    v_lshlrev_b32 v{vT0}, 4, v{vLane}
    Lkvd_{tag}:
    s_mov_b32 m0, s{sT0}
    s_nop 0
    buffer_load_dwordx4 v{vT0}, {sr(SWS,4)}, s{sT0} offen sc1 lds
    s_add_u32 s{sT0}, s{sT0}, 4096
    s_cmp_lt_u32 s{sT0}, {36*1024}
    s_cbranch_scc1 Lkvd_{tag}""")

prologue("L")
for v in range(1, 4): e(f"s_cmp_eq_u32 s{sW}, {v}\ns_cbranch_scc1 LL{v}")
for v in range(4):
    e(f"LL{v}:")
    p1_loop("L", v, "LepiL")
e("LepiL:")
stamp(1)
e(f"s_and_b32 s{sT2}, s{sW}, 1\ns_lshl_b32 s{sT2}, s{sT2}, 1\ns_lshr_b32 s{sT3}, s{sW}, 1\ns_add_u32 s{sT2}, s{sT2}, s{sT3}")
stats_post(sT2, 1)
e(f"s_lshl_b32 s{sT1}, s{sW}, 7\ns_add_u32 s{sT1}, s{sT1}, {CSUM+128}")
cs_write(vCs, f"s{sT1}")
e(f"""s_lshr_b32 s{sT0}, s{sW}, 1
s_lshl_b32 s{sT0}, s{sT0}, 8
s_add_u32 s{sT0}, s{sT0}, {CSUM+128}
v_lshl_add_u32 v{vT3}, v{vH}, 4, s{sT0}
s_and_b32 s{sT1}, s{sW}, 1
s_lshl_b32 s{sT1}, s{sT1}, 8
s_add_u32 s{sT1}, s{sT1}, {STATM}
v_and_b32 v{vT0}, 31, v{vLane}
v_lshl_add_u32 v{vT0}, v{vT0}, 2, s{sT1}
s_waitcnt lgkmcnt(0)
s_barrier""")
stats_read(vSt+12, vT0, 0); stats_read(vSt+16, vT0, 128)
cs_read(vF, 0); cs_read(vF+16, 128)
e(f"s_and_b32 s{sT3}, s{sW}, 1\ns_lshl_b32 s{sT3}, s{sT3}, 1\ns_and_b32 s{sC0}, s{sW}, 2")
h_off(sT2, sT3, f"s{sC0}")
e(f"s_add_u32 s{sT3}, s{sT2}, {88*1024}\nv_lshlrev_b32 v{vT2}, 4, v{vLane}\ns_waitcnt lgkmcnt(0)")
stats_fin(vSt+12, vSt, vSt+1); stats_fin(vSt+16, vSt+2, vSt+3)
gelu_consts(vSt, vSt+1, vSt+4); gelu_consts(vSt+2, vSt+3, vSt+8)
for tt in range(2):
    gelu_tile(vAcc+32*tt, vAcc+32*tt+16, vF, vF+16, vSt+4+4*tt, vSt+12)
    h_store(vAcc+32*tt, sT2 if tt == 0 else sT3)
e("s_branch Lp2")

e("LproH:")
prologue("H")
for v in range(1, 4): e(f"s_cmp_eq_u32 s{sW4}, {v}\ns_cbranch_scc1 LH{v}")
for v in range(4):
    e(f"LH{v}:")
    p1_loop("H", v, "LepiH")
e("LepiH:")
stamp(1)
stats_post(sW4, 0)
e(f"v_mov_b32 v{vT2}, v{vT0}")
e(f"""s_cmp_eq_u32 s{sW4}, 3
s_cbranch_scc1 LHnocs
s_add_u32 s{sT1}, s{sW4}, 4
s_cmp_eq_u32 s{sW4}, 0
s_cselect_b32 s{sT1}, 0, s{sT1}
s_lshl_b32 s{sT1}, s{sT1}, 7
s_add_u32 s{sT1}, s{sT1}, {CSUM}""")
cs_write(vCs, f"s{sT1}")
e(f"""LHnocs:
v_mov_b32 v{vT3}, {CSUM}
v_lshl_add_u32 v{vT3}, v{vH}, 4, v{vT3}
s_waitcnt lgkmcnt(0)
s_barrier""")
stats_read(vSt+12, vT2, 0)
cs_read(vAcc+48, 0); cs_read(vF, 5*128); cs_read(vF+16, 6*128)
h_off(sT2, sW4, 4)
e(f"v_lshlrev_b32 v{vT2}, 4, v{vLane}\ns_waitcnt lgkmcnt(0)")
stats_fin(vSt+12, vSt, vSt+1)
gelu_consts(vSt, vSt+1, vSt+4)
q_epilogue(vAcc+48)
e("s_waitcnt vmcnt(0)")
kv_poll_take()
e(f"s_cmp_eq_u32 s{sNo}, 0\ns_cbranch_scc1 LHnodma")
kv_dma("a")
e("LHnodma:")
stamp(13)
gelu_tile(vAcc+16, vAcc+32, vF, vF+16, vSt+4, vSt+12)
h_store(vAcc+16, sT2)
e(f"s_cmp_eq_u32 s{sNo}, 0\ns_cbranch_scc1 Lkvwait\ns_waitcnt vmcnt(2)\ns_branch Lp2")

e("Lkvcu:")
WKV = 131072
vXf, vWk = 32, 192
sXb = sMw
e(f"""s_lshl_b32 s{sT0}, s{sW}, 11
v_lshlrev_b32 v{vWa0}, 4, v{vLane}
s_add_u32 m0, s{sT0}, {WKV}
s_lshl_b32 s{sXb}, s{sW}, 14
buffer_load_dwordx4 v{vWa0}, {sr(SWV,4)}, s{sT0} offen lds
buffer_load_dwordx4 v{vWa0}, {sr(SWV,4)}, s{sT0} offen offset:1024 lds
s_add_u32 m0, s{sT0}, {WKV+16384}
s_lshl_b32 s{sXo}, s{sI}, 17
buffer_load_dwordx4 v{vWa0}, {sr(SWK,4)}, s{sT0} offen lds
buffer_load_dwordx4 v{vWa0}, {sr(SWK,4)}, s{sT0} offen offset:1024 lds
s_lshl_b32 s{sT0}, s{sW4}, 15
s_add_u32 s{sXo}, s{sXo}, s{sT0}
s_lshr_b32 s{sT3}, s{sW}, 2
s_lshl_b32 s{sT0}, s{sT3}, 9
s_add_u32 s{sXo}, s{sXo}, s{sT0}""")
def kvx_dma(c):
    return [f"""s_add_u32 m0, s{sXb}, {4096*c+2048*hf}
        s_add_u32 s{sT0}, s{sXo}, {128*c+16384*hf}
        buffer_load_dwordx4 v{vXa0}, {sr(SX,4)}, s{sT0} offen lds
        buffer_load_dwordx4 v{vXa1}, {sr(SX,4)}, s{sT0} offen offset:1024 lds""" for hf in range(2)]
for x in kvx_dma(0): e(x)
common_init("KV")
for x in kvx_dma(1): e(x)
e("s_waitcnt vmcnt(4)\ns_barrier")
stamp(12)
def kv_reads(c):
    r = []
    for ks in range(4):
        W = vWk + 16*(c & 1) + 4*ks
        r += [f"ds_read_b128 {vr(vXf+16*c+4*ks,4)}, v{vRX+ks} offset:{4096*c}"]
        r += tr(W, vRW, (64*c+16*ks)*32) + tr(W+2, vRW, (64*c+16*ks+4)*32)
    return r
for x in kv_reads(0): e(x)
for c in range(4):
    m = []; va = []
    for ks in range(4):
        X = vXf+16*c+4*ks; W = vWk + 16*(c & 1) + 4*ks
        m += [mfma(vAcc+16, W, X), mfma16(vCs, W, vSel), mfma(vAcc+32, X, W)]
        va += stats_ops(X)
    fill = [(4, x) for x in va]
    if c < 2: fill = [(16, x) for x in kvx_dma(c+2)] + fill
    if c < 3: fill = fill[:56] + [(4, f"s_waitcnt vmcnt({4 if c < 2 else 0})")] + [(6, x) for x in kv_reads(c+1)] + fill[56:]
    e("s_waitcnt lgkmcnt(0)")
    for x in spread(m, fill): e(x)
stamp(1)
e(f"""v_add_f32 v{vSt}, v{vSt}, v{vSt+1}
v_add_f32 v{vSt+2}, v{vSt+2}, v{vSt+3}
v_mov_b32 v{vSt+1}, v{vSt}
v_mov_b32 v{vSt+3}, v{vSt+2}
v_and_b32 v{vT2}, 31, v{vLane}
v_lshlrev_b32 v{vT2}, 2, v{vT2}
v_permlane32_swap_b32 v{vSt}, v{vSt+1}
v_permlane32_swap_b32 v{vSt+2}, v{vSt+3}
v_add_u32 v{vT1}, s{sXb}, v{vT2}
s_xor_b32 s{sT2}, s{sXb}, 65536
v_add_f32 v{vSt+20}, v{vSt}, v{vSt+1}
v_add_f32 v{vSt+21}, v{vSt+2}, v{vSt+3}
ds_write_b32 v{vT1}, v{vSt+20} offset:4096
ds_write_b32 v{vT1}, v{vSt+21} offset:4224
s_add_u32 s{sT1}, s{sXb}, 4352""")
cs_write(vCs, f"s{sT1}")
e(f"""v_add_u32 v{vT0}, s{sXb}, v{vWa0}
v_add_u32 v{vWa1}, s{sT2}, v{vWa0}
v_add_u32 v{vWa2}, s{sT2}, v{vT2}
v_lshl_add_u32 v{vT3}, v{vH}, 4, s{sXb}
s_lshl_b32 s{sT0}, s{sI}, 2
s_add_u32 s{sT0}, s{sT0}, s{sW4}
s_mul_i32 s{sC0}, s{sT0}, {KVT}
s_lshl_b32 s{sQo}, s{sW}, 16
s_add_u32 s{sQo}, s{sQo}, {64*15}
s_lshl_b32 s{sMq}, s{sW}, 12
s_add_u32 s{sMq}, s{sMq}, {WKV}
s_cmp_ge_u32 s{sW}, 4
s_cbranch_scc1 LkvH""")
def wq_dma():
    for k in range(4):
        e(f"s_add_u32 m0, s{sMq}, {1024*k}\ns_add_u32 s{sT0}, s{sQo}, {16384*k}\nbuffer_load_dwordx4 v{vQa}, {sr(SWQ,4)}, s{sT0} offen lds")
for q in range(4): e(f"ds_write_b128 v{vT0}, {vr(vAcc+32+4*q,4)} offset:{1024*q}")
e(f"v_xor_b32 v{vT1}, 0x10000, v{vT3}\ns_waitcnt lgkmcnt(0)\ns_barrier")
e(f"""ds_read_b32 v{vSt+22}, v{vWa2} offset:4096
ds_read_b32 v{vSt+23}, v{vWa2} offset:4224
ds_read_b128 {vr(vWk,4)}, v{vWa1}
ds_read_b128 {vr(vWk+4,4)}, v{vWa1} offset:1024
ds_read_b128 {vr(vSt+12,4)}, v{vT3} offset:{4352+64}
ds_read_b128 {vr(vSt+16,4)}, v{vT3} offset:{4352+96}
ds_read_b128 {vr(vWk+8,4)}, v{vT1} offset:{4352+64}
ds_read_b128 {vr(vWk+12,4)}, v{vT1} offset:{4352+96}""")
wq_dma()
e(f"""v_and_b32 v{vT0}, 0x33, v{vLane}
v_bfe_u32 v{vT1}, v{vLane}, 2, 1
v_lshl_or_b32 v{vT0}, v{vT1}, 3, v{vT0}
v_bfe_u32 v{vT1}, v{vLane}, 3, 1
v_lshl_or_b32 v{vT0}, v{vT1}, 2, v{vT0}
v_lshlrev_b32 v{vT0}, 4, v{vT0}
s_waitcnt lgkmcnt(0)""")
stats_fin(vSt+20, vSt, vSt+1)
e(f"v_sub_f32 v{vSt+4}, 0, v{vSt}")
for p in range(0, 8, 2):
    e(pk("v_pk_add_f32", vAcc+24+p, [('p', vAcc+24+p), ('p', vWk+p)]))
    e(pk("v_pk_add_f32", vSt+12+p, [('p', vSt+12+p), ('p', vWk+8+p)]))
lin_fold(vAcc+24, vSt+12, vSt+4, vSt+1, 8)
for p in range(4): e(f"v_cvt_pk_bf16_f32 v{vAcc+16+p}, v{vAcc+24+2*p}, v{vAcc+25+2*p}")
e(f"buffer_store_dwordx4 {vr(vAcc+16,4)}, v{vT0}, {sr(SWS,4)}, s{sC0} offen sc1\ns_branch LkvS")
e("LkvH:")
e(f"ds_write_b128 v{vT0}, {vr(vAcc+24,4)}\nds_write_b128 v{vT0}, {vr(vAcc+28,4)} offset:1024")
e(f"v_add_u32 v{vT1}, s{sXb}, v{vT2}\ns_waitcnt lgkmcnt(0)\ns_barrier")
e(f"""ds_read_b32 v{vSt+22}, v{vWa2} offset:4096
ds_read_b32 v{vSt+23}, v{vWa2} offset:4224
ds_read_b32 v{vSt+6}, v{vT1} offset:4352
ds_read_b32 v{vSt+7}, v{vWa2} offset:4352""")
for q in range(4): e(f"ds_read_b128 {vr(vAcc+48+4*q,4)}, v{vWa1} offset:{1024*q}")
wq_dma()
e("s_waitcnt lgkmcnt(0)")
stats_fin(vSt+20, vSt, vSt+1)
e(f"ds_write_b32 v{vT1}, v{vSt} offset:4608\nds_write_b32 v{vT1}, v{vSt+1} offset:4736\ns_waitcnt lgkmcnt(0)")
for q in range(4):
    e(f"ds_read_b128 {vr(vWk+4*q,4)}, v{vT3} offset:{4608+32*q}\nds_read_b128 {vr(vWk+16+4*q,4)}, v{vT3} offset:{4736+32*q}")
e(f"v_add_f32 v{vSt+6}, v{vSt+6}, v{vSt+7}\nv_sub_f32 v{vSt+6}, 0, v{vSt+6}")
for p in range(0, 16, 2): e(pk("v_pk_add_f32", vAcc+32+p, [('p', vAcc+32+p), ('p', vAcc+48+p)]))
e("s_waitcnt lgkmcnt(0)")
for p in range(0, 16, 2): e(pk("v_pk_fma_f32", vAcc+32+p, [('p', vWk+p), ('b', vSt+6), ('p', vAcc+32+p)]))
for p in range(0, 16, 2): e(pk("v_pk_mul_f32", vAcc+32+p, [('p', vAcc+32+p), ('p', vWk+16+p)]))
for p in range(8): e(f"v_cvt_pk_bf16_f32 v{vAcc+32+p}, v{vAcc+32+2*p}, v{vAcc+33+2*p}")
v_lane_addr(vT0)
for p in range(8): e(f"v_mov_b32 v{vAcc+32+p}, 0x3f803f80")
e(f"""s_mov_b32 exec_lo, 0x1ffff
s_mov_b32 exec_hi, 0xffff
buffer_store_dwordx4 {vr(vAcc+32,4)}, v{vT0}, {sr(SWS,4)}, s{sC0} offen offset:1024 sc1
buffer_store_dwordx4 {vr(vAcc+36,4)}, v{vT0}, {sr(SWS,4)}, s{sC0} offen offset:{1024+528} sc1
s_mov_b64 exec, -1
LkvS:""")
for r in range(4): e(f"v_mov_b32 v{vCs+r}, 0")
e("s_waitcnt vmcnt(0)\ns_barrier")
kv_signal()
stamp(13)
early_init()
def q_reads(c):
    r = []
    for ks in range(4):
        W = vWk + 16*(c & 1) + 4*ks
        r += tr(W, vRQ, (64*c+16*ks)*64) + tr(W+2, vRQ, (64*c+16*ks+4)*64)
    return r
for x in q_reads(0): e(x)
for c in range(4):
    m = []
    for ks in range(4):
        X = vXf+16*c+4*ks; W = vWk + 16*(c & 1) + 4*ks
        m += [mfma(vAcc, W, X), mfma16(vCs, W, vSel)]
    e("s_waitcnt lgkmcnt(0)")
    for x in interleave(m[:4], q_reads(c+1) if c < 3 else []) + m[4:]: e(x)
e(f"""s_or_b32 s{sT2}, s{sXb}, {65536+8192}
s_lshr_b32 s{sT3}, s{sW}, 2
s_lshl_b32 s{sT3}, s{sT3}, 7
s_add_u32 s{sT1}, s{sT2}, s{sT3}
s_add_u32 s{sT1}, s{sT1}, 4096
v_add_u32 v{vWa1}, s{sT2}, v{vWa0}
v_lshl_add_u32 v{vT3}, v{vH}, 4, s{sT2}
s_nop 3""")
cs_write(vCs, f"s{sT1}")
e(f"s_cmp_ge_u32 s{sW}, 4\ns_cbranch_scc1 LkvH2\ns_waitcnt lgkmcnt(0)\ns_barrier")
for q in range(4): e(f"ds_read_b128 {vr(vWk+4*q,4)}, v{vWa1} offset:{1024*q}")
cs_read(vAcc+48, 4096); cs_read(vWk+16, 4096+128)
e("s_waitcnt lgkmcnt(0)")
for p in range(0, 16, 2):
    e(pk("v_pk_add_f32", vAcc+p, [('p', vAcc+p), ('p', vWk+p)]))
    e(pk("v_pk_add_f32", vAcc+48+p, [('p', vAcc+48+p), ('p', vWk+16+p)]))
q_epilogue(vAcc+48)
e("s_branch Lp2\nLkvH2:")
for q in range(4): e(f"ds_write_b128 v{vWa1}, {vr(vAcc+4*q,4)} offset:{1024*q}")
e("s_waitcnt lgkmcnt(0)\ns_barrier")
e("Lkvwait:")
stamp(16)
kv_poll_loop()
stamp(17)
kv_dma("b")
e("s_waitcnt vmcnt(0)")

vm = []
def vtag(tag): vm.append(tag)
def vwait_s(tag):
    idx = max(i for i, t in enumerate(vm) if t == tag)
    return f"s_waitcnt vmcnt({min(63, len(vm)-1-idx)})"
def w_dma(G):
    srdw, row = (SWD, 64*G) if G < 22 else (SWO, 64*(G-22))
    return [f"s_add_u32 m0, s{sDm}, {GSLOT[G]}", f"s_add_u32 s{sT0}, s{sDo}, {row*1024}",
            (f"g{G}", f"buffer_load_dwordx4 v{vDa}, {sr(srdw,4)}, s{sT0} offen lds")]
def w_reads(G, F):
    a = GSLOT[G]; win = a // 0xe000; off = a - win*0xe000
    r0, r1 = vRd+2*win, vRd+2*win+1
    return tr(F, r0, off) + tr(F+2, r0, off+1024) + tr(F+4, r1, off) + tr(F+6, r1, off+1024)
def emit_seq(seq):
    for x in seq:
        if isinstance(x, list): emit_seq(x)
        elif isinstance(x, tuple): vtag(x[0]); e(x[1])
        elif callable(x): e(x())
        else: e(x)
e("Lp2:")
stamp(2)
sentinel(vC); vtag("sent")
e(f"s_add_u32 s{sT0}, s{sDm}, {QIMG}\nv_add_u32 v{vAq}, s{sT0}, v{vL16}")
e("s_waitcnt lgkmcnt(0)\ns_barrier")
stamp(3)
e(f"""ds_read_b128 {vr(vQ,4)}, v{vAq}
ds_read_b128 {vr(vKf[0],4)}, v{vAk}
ds_read_b128 {vr(vKf[1],4)}, v{vAk} offset:{KVT}
ds_read_b128 {vr(vVl[0],4)}, v{vAv}
s_waitcnt lgkmcnt(2)""")
e(mfma(vS[0], vKf[0], vQ, "0"))
e("s_nop 11")
e(f"v_max3_f32 v{vT1}, v{vS[0]}, v{vS[0]+1}, v{vS[0]+2}")
for p in range(3, 15, 2): e(f"v_max3_f32 v{vT1}, v{vT1}, v{vS[0]+p}, v{vS[0]+p+1}")
e(f"""v_max_f32 v{vT1}, v{vT1}, v{vS[0]+15}
v_mov_b32 v{vT2}, v{vT1}
s_nop 1
v_permlane32_swap_b32 v{vT1}, v{vT2}
s_nop 1
v_max_f32 v{vT1}, v{vT1}, v{vT2}""")
for r in range(16): e(f"v_sub_f32 v{vC+r}, 0, v{vT1}")
for r in range(16): e(f"v_sub_f32 v{vS[0]+r}, v{vS[0]+r}, v{vT1}")
stamp(5)
side = {T: [] for T in range(64)}
xm = {T: [] for T in range(65)}
for n in range(12):
    side[n].append([f"s_add_u32 s{sT0}, s{sDm}, {(36+8*n)*1024}", f"s_mov_b32 m0, s{sT0}", "s_nop 0",
                    ("kv", f"buffer_load_dwordx4 v{vL16}, {sr(SWS,4)}, s{sT0} offen sc1 lds")])
for T0, dt, Gs in ((16, 2, range(0, 7)), (33, 3, range(7, 11)), (48, 1, range(11, 22))):
    for n, G in enumerate(Gs): side[T0 + dt*n].append(w_dma(G))
side[21].append([f"v_lshlrev_b32 v{vT3}, 10, v{vLane}", f"s_lshl_b32 s{sT1}, s{sW}, 16", f"s_lshl_b32 s{sT0}, s{sCS}, 7",
                 f"s_add_u32 s{sT1}, s{sT1}, s{sT0}", ("t", f"buffer_load_dword v{vT2}, v{vT3}, {sr(SWO,4)}, s{sT1} offen")])
HPT = 28
pollidx = []
side[HPT].append([f"s_cmp_lg_u32 s{sW}, 4", "s_cbranch_scc1 Lnohp", h_poll_issue(), lambda: (pollidx.append(len(vm)), "Lnohp:")[1]])
for i in range(22):
    T = 32 + (i*30)//22
    c = [f"s_add_u32 s{sC0}, s{sHo}, {1024*i}"] if i % 4 == 0 else []
    side[T].append(c + [(f"h{i}", f"buffer_load_dwordx4 {vr(vHf+4*i,4)}, v{vL16}, {sr(SWS,4)}, s{sC0} offen offset:{1024*(i%4)} sc1")])
side[46].append([("x", f"buffer_load_dwordx4 {vr(vHf,4)}, v{vRa}, {sr(SX,4)}, s{sXf} offen")])
lastm = {}
for T0, span, Gs in ((35, 13, range(0, 7)), (50, 12, range(7, 11))):
    k = len(Gs)
    for n, G in enumerate(Gs):
        F = vWf[G % 3]
        t0 = T0 + (2*n*span)//(2*k); t1 = T0 + ((2*n+1)*span)//(2*k)
        lastm[G] = t1+1
        assert G < 3 or t0 > lastm[G-3]
        for x in w_reads(G, F): side[t0].append([x])
        c0 = "0" if G == 0 else None
        w = (lambda g=G: vwait_s(f"h{g}"))
        xm[t0+1].append([w, mfma(vAf[0], F, vHf+4*G, c0)]); xm[t1+1].append([mfma(vAf[1], F+4, vHf+4*G, c0)])
def last_txt(c): return c[-1][1] if isinstance(c[-1], tuple) else c[-1]
def last_tag(c): return c[-1][0] if isinstance(c[-1], tuple) else ""
if "--dx" in sys.argv:
    dx = sys.argv[sys.argv.index("--dx")+1]
    vm += ["kv", "g6", "g8", "g14", "g21"] + [f"h{i}" for i in range(22)]
    for T in range(64):
        if "w" in dx: side[T] = [c for c in side[T] if not last_tag(c).startswith("g")]
        if "h" in dx: side[T] = [c for c in side[T] if not last_tag(c).startswith("h")]
        if "r" in dx: side[T] = [c for c in side[T] if "ds_" not in last_txt(c)]
        if "k" in dx: side[T] = [c for c in side[T] if last_tag(c) != "kv"]
        if "m" in dx: xm[T] = []
PRI = int(sys.argv[sys.argv.index("--pri")+1]) if "--pri" in sys.argv else 2
lastg = {16: "kv", 32: "g6", 48: "g10"}
for T in range(64):
    X = vS[T & 1]; Y = vS[(T+1) & 1]
    rel = T % 16
    e("s_waitcnt lgkmcnt(0)")
    if T in lastg:
        if "--abar" in sys.argv: stamp(32+3*list(lastg).index(T))
        e(vwait_s(lastg[T]))
        if T == 32:
            e(f"""s_cmp_lg_u32 s{sW}, 4
            s_cbranch_scc1 Lhok
            s_mov_b32 s{sT0}, 0
            s_waitcnt vmcnt({len(vm)-pollidx[0]})
            Lhp:
            v_cmp_ne_u64 vcc, s[{sNo}:{sNo+1}], {vr(vPoll,2)}
            s_add_u32 s{sT0}, s{sT0}, 1
            s_cmp_ge_u32 s{sT0}, 100000
            s_cbranch_vccz Lhok
            s_cbranch_scc1 Lhok
            s_sleep 4
            {h_poll_issue()}
            s_waitcnt vmcnt(0)
            s_branch Lhp
            Lhok:""")
        if "--abar" in sys.argv: stamp(33+3*list(lastg).index(T))
        e("s_barrier")
        if "--abar" in sys.argv: stamp(34+3*list(lastg).index(T))
        if T == 16:
            e(f"""s_cmp_lg_u32 s{sW}, 4
            s_cbranch_scc1 Lsig_h
            v_mov_b32 v{vPoll}, s{sNo}
            v_mov_b32 v{vPoll+1}, s{sNo+1}
            s_mov_b64 exec, 1
            buffer_store_dwordx2 {vr(vPoll,2)}, off, {sr(SWS,4)}, s{sHs} sc1
            s_mov_b64 exec, -1
            Lsig_h:""")
    if T and rel == 0: e(f"v_add_u32 v{vAk}, {16*KVT}, v{vAk}\nv_add_u32 v{vAv}, {16*KVT}, v{vAv}")
    seg0 = max([0] + [t for t in lastg if t <= T]); seg1 = min([64] + [t for t in lastg if t > T])
    if PRI == 2:
        if (seg1 - T) % 2 == 0: e(f"s_setprio {((seg1-T)//2 - 1) % 4}")
    ex = [f"v_exp_f32 v{X+i}, v{X+i}" for i in range(16)]
    rd = [f"ds_read_b128 {vr(vVh,4)}, v{vAv} offset:{rel*KVT+528}"]
    if T+1 < 64: rd.append(f"ds_read_b128 {vr(vVl[(T+1)&1],4)}, v{vAv} offset:{(rel+1)*KVT}")
    if T+2 < 64: rd.append(f"ds_read_b128 {vr(vKf[T&1],4)}, v{vAk} offset:{(rel+2)*KVT}")
    seq = ex[0:2] + ([smf(vO, vVh, Y+8, vIdx)] if T else []) + interleave(ex[2:5], rd)
    if T+1 < 64: seq.append(mfma(Y, vKf[(T+1) & 1], vQ, vr(vC, 16)))
    x2 = xm[T]
    assert len(x2) <= 2
    if len(x2) == 2: tail = ex[5:8] + [x2[0]] + ex[8:11] + [smf(vO, vVl[T & 1], X, vIdx)] + ex[11:14] + [x2[1]] + ex[14:16]
    else: tail = ex[5:10] + [smf(vO, vVl[T & 1], X, vIdx)] + ex[10:14] + x2 + ex[14:16]
    if "--nord" in sys.argv and T > 2: seq = [x for x in seq if "ds_read" not in x]
    if side[T]: tail = interleave(tail[:-3], side[T]) + tail[-3:]
    emit_seq(seq + tail)
assert not xm[64]
e("s_waitcnt lgkmcnt(0)\ns_nop 0")
e(smf(vO, vVh, vS[1]+8, vIdx))
e(f"s_mov_b32 s{sRetry}, 0")
e("Lfin:")
e(f"""s_nop 9
s_mov_b32 s{sC0}, {f2u(2.0**40):#x}
s_mov_b32 s{sC1}, {f2u(2.0**126):#x}
v_rcp_f32 v{vO+10}, v{vO+8}
v_max3_f32 v{vT1}, abs(v{vO}), abs(v{vO+1}), abs(v{vO+2})
v_max3_f32 v{vT1}, v{vT1}, abs(v{vO+3}), abs(v{vO+4})
v_max3_f32 v{vT1}, v{vT1}, abs(v{vO+5}), abs(v{vO+6})
v_max_f32 v{vT1}, v{vT1}, abs(v{vO+7})
v_cmp_nlt_f32 vcc, v{vO+8}, s{sC0}
v_cmp_nlt_f32 s[{sEx}:{sEx+1}], v{vT1}, s{sC1}""")
for p in range(8): e(f"v_mul_f32 v{vO+p}, v{vO+p}, v{vO+10}")
e(f"s_or_b64 vcc, vcc, s[{sEx}:{sEx+1}]")
for p in range(4): e(f"v_cvt_pk_bf16_f32 v{vO+p}, v{vO+2*p}, v{vO+2*p+1}")
for p in range(4): e(f"v_min_u32 v{vO+p}, -2, v{vO+p}")
e("s_cbranch_vccnz Lfallback\nLok:" if "--noside" not in sys.argv and "--dx" not in sys.argv else "Lok:")
emit_seq([("o", f"buffer_store_dwordx4 {vr(vO,4)}, v{vL16}, {sr(SWS,4)}, s{sOp} offen sc1")])
stamp(6)

def o_loads():
    for k in range(8):
        e(f"buffer_load_dwordx4 {vr(vOf+4*k,4)}, v{vL16}, {sr(SWS,4)}, s{sOc if k<4 else sOc2} offen offset:{1024*(k%4)} sc1")
def reduce_read(acc, off=0):
    return [f"ds_read_b128 {vr(acc+4*q,4)}, v{vRr} offset:{off+2048*(q//2)+1024*(q%2)}" for q in range(8)]
def reduce_write(acc, off=0):
    return [f"ds_write_b128 v{vRw}, {vr(acc+4*q,4)} offset:{off+ASL*(q//2)+1024*(q%2)}" for q in range(8)]
e(vwait_s("g21"))
e("s_setprio 0\ns_barrier")
stamp(8)
for x in w_reads(11, vWf[11 % 3]) + w_reads(12, vWf[12 % 3]): e(x)
for G in range(11, 22):
    F = vWf[G % 3]
    e("s_waitcnt lgkmcnt(4)" if G < 21 else "s_waitcnt lgkmcnt(0)")
    post = w_reads(G+2, vWf[(G+2) % 3]) if G+2 <= 21 else []
    if G < 15: post = post + [w_dma(22+2*(G-11)), w_dma(23+2*(G-11))]
    if G == 16: post = post + sum([[f"v_lshlrev_b32 v{vXr+2*p}, 16, v{vHf+p}", f"v_and_b32 v{vXr+1+2*p}, 0xffff0000, v{vHf+p}"] for p in range(4)], [])
    e(vwait_s(f"h{G}"))
    if G == 21:
        tstamp(18); e(vwait_s("g29")); tstamp(19); e("s_barrier"); tstamp(20)
        e(f"s_cmp_ge_u32 s{sKq}, 2\ns_cbranch_scc1 Lskip21")
    emit_seq(interleave([mfma(vAf[0], F, vHf+4*G), mfma(vAf[1], F+4, vHf+4*G)], post))
e("Lskip21:")
WOF = [168+8*k for k in range(6)] + [vWf[1], vWf[2]]
rdw = sum([w_reads(22+k, WOF[k]) for k in range(8)], [])
ol = [f"buffer_load_dwordx4 {vr(vOf+4*k,4)}, v{vL16}, {sr(SWS,4)}, s{sOc if k<4 else sOc2} offen offset:{1024*(k%4)} sc1" for k in range(8)]
for x in interleave(ol, rdw[:12] + interleave(reduce_write(vAf[0]), rdw[12:])): e(x)
e("s_waitcnt lgkmcnt(0)"); tstamp(22); e("s_barrier")
stamp(9)
tflush()
for x in reduce_read(vAf[0]): e(x)
e(f"s_mov_b32 s{sT0}, 0\ns_waitcnt vmcnt(0)")
f0 = vAf[0]
sil = ["s_waitcnt lgkmcnt(0)"]
sil += sum([[f"v_add_f32 v{f0+p}, v{f0+p}, v{f0+8+p}", f"v_add_f32 v{f0+16+p}, v{f0+16+p}, v{f0+24+p}"] for p in range(8)], [])
sil += [f"v_add_f32 v{f0+p}, v{f0+p}, v{f0+16+p}" for p in range(8)]
sil += [f"v_mul_f32 v{f0+8+p}, {f2u(-1.4426950408889634):#x}, v{f0+p}" for p in range(8)]
sil += [f"v_exp_f32 v{f0+8+p}, v{f0+8+p}" for p in range(8)]
sil2 = [f"v_add_f32 v{f0+8+p}, 1.0, v{f0+8+p}" for p in range(8)]
sil2 += [f"v_rcp_f32 v{f0+8+p}, v{f0+8+p}" for p in range(8)]
sil2 += [f"v_mul_f32 v{f0+p}, v{f0+p}, v{f0+8+p}" for p in range(8)]
for k in range(8):
    B = vOf+4*k
    e(f"""Loc{k}:
    v_max3_u32 v{vT1}, v{B}, v{B+1}, v{B+2}
    v_max_u32 v{vT1}, v{vT1}, v{B+3}
    v_cmp_eq_u32 vcc, -1, v{vT1}
    s_cbranch_vccnz Lor{k}
    Log{k}:""")
    e(mfma(vAs[0], WOF[k], B, "0" if k == 0 else None))
    if k >= 2:
        for x in sil[(k-2)*3:(k-1)*3]: e(x)
stamp(7)
wr = reduce_write(vAs[0], 4*ASL)
m1 = [mfma(vAs[1], WOF[k]+4, vOf+4*k, "0" if k == 0 else None) for k in range(8)]
for x in interleave(m1[:4], sil[18:]) + interleave(m1[4:], wr[:4]) + sil2[:12] + interleave(wr[4:], sil2[12:]): e(x)
stamp(10)
e("s_waitcnt lgkmcnt(0)\ns_barrier")
for x in reduce_read(vAs[0], 4*ASL): e(x)
e("s_waitcnt lgkmcnt(0)")
for p in range(0, 8, 2):
    e(pk("v_pk_add_f32", vAs[0]+p, [('p', vAs[0]+p), ('p', vAs[0]+8+p)]))
    e(pk("v_pk_add_f32", vAs[0]+16+p, [('p', vAs[0]+16+p), ('p', vAs[0]+24+p)]))
for p in range(0, 8, 2): e(pk("v_pk_add_f32", vAs[0]+p, [('p', vAs[0]+p), ('p', vAs[0]+16+p)]))
for p in range(0, 8, 2): e(pk("v_pk_mul_f32", vAs[0]+p, [('p', vAs[0]+p), ('p', vAf[0]+p)]))
e("s_nop 1")
for p in range(4): e(f"v_permlane32_swap_b32 v{vAs[0]+p}, v{vAs[0]+4+p}")
e("s_nop 1")
for p in range(0, 8, 2): e(pk("v_pk_add_f32", vAs[0]+p, [('p', vAs[0]+p), ('p', vXr+p)]))
for p in range(4): e(f"v_cvt_pk_bf16_f32 v{vAs[0]+p}, v{vAs[0]+2*p}, v{vAs[0]+2*p+1}")
e(f"buffer_store_dwordx4 {vr(vAs[0],4)}, v{vRa}, {sr(SOUT,4)}, s{sXf} offen")
if "--busy1" in sys.argv: busy(1)
if "--busym" in sys.argv:
    e("s_mov_b32 s99, 16\nLbusym:")
    for i in range(16): e(mfma(104+16*(i%2), WOF[i%7]+4*(i//8), vOf+4*((i*3)%8)))
    e("s_sub_u32 s99, s99, 1\ns_cmp_lg_u32 s99, 0\ns_cbranch_scc1 Lbusym")
stamp(11)
if RT: e(f"s_waitcnt vmcnt(0)\ns_memrealtime s[100:101]\ns_waitcnt lgkmcnt(0)\nv_mov_b32 v0, s100\nbuffer_store_dword v0, off, {sr(SWS,4)}, s{sPo} offset:56")
e("Lend:\ns_endpgm")

for k in range(8):
    e(f"""Lor{k}:
    s_add_u32 s{sT0}, s{sT0}, 1
    s_cmp_ge_u32 s{sT0}, 200000
    s_cbranch_scc1 Log{k}""")
    for k2 in range(k, 8):
        e(f"buffer_load_dwordx4 {vr(vOf+4*k2,4)}, v{vL16}, {sr(SWS,4)}, s{sOc if k2<4 else sOc2} offen offset:{1024*(k2%4)} sc1")
    e(f"s_waitcnt vmcnt(0)\ns_branch Loc{k}")
e("Lfallback:")
e(f"""s_cmp_lg_u32 s{sRetry}, 0
s_cbranch_scc1 Lok
s_mov_b32 s{sRetry}, 1
s_mov_b32 s{sSt}, 0
v_mov_b32 v{vT1}, 0xff800000
Lfb1:
buffer_load_dwordx4 {vr(vKf[0],4)}, v{vL16}, {sr(SWS,4)}, s{sSt} offen sc1
s_waitcnt vmcnt(0)""")
e(mfma(vS[0], vKf[0], vQ, "0"))
e("s_nop 11")
for p in range(0, 16, 2): e(f"v_max3_f32 v{vT1}, v{vT1}, v{vS[0]+p}, v{vS[0]+p+1}")
e(f"""s_add_u32 s{sSt}, s{sSt}, {KVT}
s_cmp_lt_u32 s{sSt}, {64*KVT}
s_cbranch_scc1 Lfb1
v_mov_b32 v{vT2}, v{vT1}
s_nop 1
v_permlane32_swap_b32 v{vT1}, v{vT2}
s_nop 1
v_max_f32 v{vT1}, v{vT1}, v{vT2}""")
for r in range(16): e(f"v_sub_f32 v{vC+r}, 0, v{vT1}")
for r in range(12): e(f"v_mov_b32 v{vO+r}, 0")
e(f"""v_subrev_u32 v{vAv}, {48*KVT}, v{vAv}
s_mov_b32 s{sSt}, 0
Lfb2:
buffer_load_dwordx4 {vr(vKf[0],4)}, v{vL16}, {sr(SWS,4)}, s{sSt} offen sc1
buffer_load_dwordx4 {vr(vVl[0],4)}, v{vAv}, {sr(SWS,4)}, s{sSt} offen sc1
buffer_load_dwordx4 {vr(vVh,4)}, v{vAv}, {sr(SWS,4)}, s{sSt} offen offset:528 sc1
s_waitcnt vmcnt(0)""")
e(mfma(vS[0], vKf[0], vQ, vr(vC, 16)))
e("s_nop 11")
for i in range(16): e(f"v_exp_f32 v{vS[0]+i}, v{vS[0]+i}")
e("s_nop 1")
e(smf(vO, vVl[0], vS[0], vIdx)); e(smf(vO, vVh, vS[0]+8, vIdx))
e(f"""s_add_u32 s{sSt}, s{sSt}, {KVT}
s_cmp_lt_u32 s{sSt}, {64*KVT}
s_cbranch_scc1 Lfb2
s_branch Lfin
Lcodeend:""")

L += ['.section .rodata,"a"', ".p2align 6", f".amdhsa_kernel {NAME}_kernel",
      "  .amdhsa_next_free_vgpr 256", "  .amdhsa_next_free_sgpr 102", "  .amdhsa_accum_offset 256",
      "  .amdhsa_group_segment_fixed_size 0", "  .amdhsa_kernarg_size 96", "  .amdhsa_user_sgpr_count 2",
      "  .amdhsa_user_sgpr_kernarg_segment_ptr 1", "  .amdhsa_system_sgpr_workgroup_id_x 1", ".end_amdhsa_kernel"]
open(OUT, "w").write("\n".join(L) + "\n")
print("wrote", OUT, len(L), "lines")
```

```python
import sys, struct
NAME = "recurrent_scan__grouped_kv_mqa__geglu_ffn__prompt"
PROF = "--prof" in sys.argv
OUT = [a for a in sys.argv[1:2] if not a.startswith("--")]
OUT = OUT[0] if OUT else f"cdna_kernels/{NAME}.s"

L = []
def e(s):
    for ln in s.split("\n"):
        if not ln.strip(): continue
        L.append(("    " + ln.strip()) if not ln.strip().endswith(":") else ln.strip())
def f2u(x): return struct.unpack("<I", struct.pack("<f", x))[0]
def vr(a, n): return f"v[{a}:{a+n-1}]"
def sr(a, n): return f"s[{a}:{a+n-1}]"

KVT = 2080
KVIMG = 0
HIMG = 135168
OIMG = HIMG + 64*88*1024
HFLG = OIMG + 64*32*1024
KFLG = HFLG + 256*128
STATG = KFLG + 16*128
PROFO = STATG + 2048*16
WS_BYTES = PROFO + 256*8*256
CNT_KV = 0
KVRDY = 128
STG = 45056
XOFF, GOFF, UOFF, QOFF = 0, 16384, 28672, 40960
STGK, QOFFK, NBK = 24832, 20736, 5
QIMG = 135168
STATM = 160768
CSUM = 162816
MRX = 159744
ZERO = 163712
FLAG = 163776
LDS_BYTES = 163840
SX, SWQ, SWK, SWV, SWO, SWG, SWD, SOUT, SDBG, SWS = 4, 8, 12, 16, 20, 24, 28, 32, 36, 40
sI, sJ, sW, sW4 = 44, 45, 46, 47
sXo, sWo, sQo, sLb = 48, 49, 50, 51
sMx, sMw, sMq = 52, 53, 54
sSt, sDl, sT0, sT1, sT2, sT3 = 55, 56, 57, 58, 59, 60
sTB, sCS, sRetry, sRb = 61, 62, 63, 3
sEx = 88
sTm = 90
sPo = 92
sC0, sC1, sC2, sC3 = 94, 95, 96, 97
sOp = 98
TOUCH = int("--touch" in sys.argv)
vLane, vH, vT0, vT1, vT2, vT3 = 1, 2, 3, 4, 5, 6
vXa0, vXa1, vWa0, vWa1, vWa2, vQa = 7, 8, 9, 10, 11, 12
vRX = 13
vRW, vRQ = 17, 18
vSel = 20
vCs = 24
vF = 32
vAcc = 96
vSt = 160
vQ = 8; vKf = [12, 16]; vVl = [20, 24]; vVh = 28
vS = [32, 48]; vC = 64
vWf = [80, 88, 96]
vAf = [104, 120]
vHf = 136
vO = 224
vIdx, vAk, vAv, vDa, vL16, vRa = 240, 241, 242, 243, 244, 245
vPoll = 246
vAq = 7
vRd = 248
vRw, vRr = 254, 255
vOf = 136
vAs = [32, 48]
vXr = 64
sKq, sTt, sHo, sDo, sDm, sHc, sXf, sOc, sOc2, sHs = 64, 65, 66, 67, 68, 69, 70, 71, 72, 73
sNo = 86
sRow, sKf, sWd = 63, 85, 83
ASL = 8320
def aslot(n): return ASL*n
SP = [135168, 143360, 151552]
GSLOT = SP + [aslot(n) for n in range(0, 8)]
GSLOT += SP + [aslot(n) for n in (0, 1, 2, 3, 8, 9, 10, 11)]
GSLOT += [aslot(n) for n in (4, 5, 6, 7, 12, 13, 14, 15)]
RED = aslot(0)

nstamp = [0]
DBGT = "--dbgt" in sys.argv
DT = {0: 75, 12: 76, 1: 77, 2: 78, 3: 79, 6: 80, 9: 81, 7: 82, 11: 83}
PAD = (int(sys.argv[sys.argv.index("--pad")+1]), int(sys.argv[sys.argv.index("--pad")+2])) if "--pad" in sys.argv else None
npad = [0]
def stamp(k):
    if PAD and PAD[0] == k:
        npad[0] += 1
        e(f"Lpad{npad[0]}:\ns_memrealtime s[{sTm}:{sTm+1}]\ns_waitcnt lgkmcnt(0)\ns_sub_u32 s{sTm}, s{sTm}, s100\ns_cmp_lt_u32 s{sTm}, {PAD[1]}\ns_cbranch_scc1 Lpad{npad[0]}")
    if DBGT and k in DT:
        e(f"s_memrealtime s[{sTm}:{sTm+1}]\ns_waitcnt lgkmcnt(0)\ns_sub_u32 s{DT[k]}, s{sTm}, s100")
        if k == 11:
            e(f"s_memtime s[{sTm}:{sTm+1}]\ns_waitcnt lgkmcnt(0)\ns_sub_u32 s84, s{sTm}, s92")
            e(f"s_cmp_lg_u32 s2, 64\ns_cbranch_scc1 Lend\ns_cmp_lg_u32 s{sW}, 4\ns_cbranch_scc1 Lend")
            for n, r in enumerate(range(75, 85)):
                e(f"v_mov_b32 v0, s{r}\nbuffer_store_dword v0, off, {sr(SDBG,4)}, 0 offset:{4+4*n}\ns_nop 1")
    if not PROF: return
    e(f"""s_memtime s[{sTm}:{sTm+1}]
    s_waitcnt lgkmcnt(0)
    v_mov_b32 v0, s{sTm}
    buffer_store_dword v0, off, {sr(SWS,4)}, s{sPo} offset:{4*k}""")
    if k in RTS:
        e(f"""s_memrealtime s[{sTm}:{sTm+1}]
        s_waitcnt lgkmcnt(0)
        v_mov_b32 v0, s{sTm}
        buffer_store_dword v0, off, {sr(SWS,4)}, s{sPo} offset:{4*RTS[k]}""")
RTS = {12: 24, 1: 25, 5: 26, 6: 27, 11: 28}

TS = []
def tstamp(k):
    if not PROF: return
    r = 74 + len(TS); TS.append((k, r))
    e(f"s_memtime s[{sTm}:{sTm+1}]\ns_waitcnt lgkmcnt(0)\ns_mov_b32 s{r}, s{sTm}")
def tflush():
    for k, r in TS: e(f"v_mov_b32 v0, s{r}\nbuffer_store_dword v0, off, {sr(SWS,4)}, s{sPo} offset:{4*k}\ns_nop 1")
def tick(acc):
    if not PROF or "--notick" in sys.argv: return ""
    r = f"s_memtime s[{sTm}:{sTm+1}]\ns_waitcnt lgkmcnt(0)\n"
    if acc is not None: r += f"s_sub_u32 s99, s{sTm}, s99\ns_add_u32 s{acc}, s{acc}, s99\n"
    return r + f"s_mov_b32 s99, s{sTm}"

def interleave(main, fill):
    out = []; n = len(main); m = len(fill); k = 0
    for i, a in enumerate(main):
        out.append(a)
        t = (m * (i + 1)) // n
        out += fill[k:t]; k = t
    return out

def mfma(d, a, b, c=None):
    c = vr(d, 16) if c is None else c
    return f"v_mfma_f32_32x32x16_bf16 {vr(d,16)}, {vr(a,4)}, {vr(b,4)}, {c}"
def mfma16(d, a, b): return f"v_mfma_f32_16x16x32_bf16 {vr(d,4)}, {vr(a,4)}, {vr(b,4)}, {vr(d,4)}"
def smf(d, a, b, idx): return f"v_smfmac_f32_32x32x32_bf16 {vr(d,16)}, {vr(a,4)}, {vr(b,8)}, v{idx}"

TK = PROF and "--tk" in sys.argv
def tk(acc):
    if not TK: return ""
    r = f"s_memtime s[{sTm}:{sTm+1}]\ns_waitcnt lgkmcnt(0)\n"
    if acc is not None: r += f"s_sub_u32 s82, s{sTm}, s82\ns_add_u32 s{acc}, s{acc}, s82\n"
    return r + f"s_mov_b32 s82, s{sTm}"
def tkout():
    if TK: e(f"v_mov_b32 v0, s80\nbuffer_store_dword v0, off, {sr(SWS,4)}, s{sPo} offset:{4*29}\ns_nop 1\nv_mov_b32 v0, s81\nbuffer_store_dword v0, off, {sr(SWS,4)}, s{sPo} offset:{4*30}")
def tr(d, a, off): return [f"ds_read_b64_tr_b16 {vr(d,2)}, v{a} offset:{off}"]
def tag_issue(): return f"buffer_load_dwordx2 {vr(vPoll,2)}, off, {sr(SDBG,4)}, 0 sc1"
def tag_wait(tag, first_wait):
    e(f"""s_mov_b32 s{sT0}, 0
    s_waitcnt vmcnt({first_wait})
    Ltag_{tag}:
    v_readfirstlane_b32 s{sNo}, v{vPoll}
    v_readfirstlane_b32 s{sNo+1}, v{vPoll+1}
    s_add_u32 s{sT0}, s{sT0}, 1
    s_cmp_lg_u32 s{sNo}, 0
    s_cbranch_scc1 Ltagd_{tag}
    s_cmp_ge_u32 s{sT0}, 100000
    s_cbranch_scc1 Ltagd_{tag}
    s_sleep 1
    {tag_issue()}
    s_waitcnt vmcnt(0)
    s_branch Ltag_{tag}
    Ltagd_{tag}:""")
def flags_issue(base):
    return f"""v_and_b32 v{vPoll}, 15, v{vLane}
    v_lshlrev_b32 v{vPoll}, 7, v{vPoll}
    buffer_load_dwordx2 {vr(vPoll,2)}, v{vPoll}, {sr(SWS,4)}, s{base} offen sc1"""
def h_poll_issue(): return flags_issue(sHc)
def flags_wait(base, tag, first_wait):
    e(f"""s_mov_b32 s{sT0}, 0
    s_waitcnt vmcnt({first_wait})
    Lfw_{tag}:
    v_cmp_ne_u64 vcc, s[{sNo}:{sNo+1}], {vr(vPoll,2)}
    s_add_u32 s{sT0}, s{sT0}, 1
    s_cmp_ge_u32 s{sT0}, 100000
    s_cbranch_vccz Lfwd_{tag}
    s_cbranch_scc1 Lfwd_{tag}
    s_sleep 3
    {flags_issue(base)}
    s_waitcnt vmcnt(0)
    s_branch Lfw_{tag}
    Lfwd_{tag}:""")
def flag_set(off_sreg, tag):
    e(f"""s_cmp_lg_u32 s{sW}, 0
    s_cbranch_scc1 Lsig_{tag}
    v_mov_b32 v{vPoll}, s{sNo}
    v_mov_b32 v{vPoll+1}, s{sNo+1}
    s_mov_b64 exec, 1
    buffer_store_dwordx2 {vr(vPoll,2)}, off, {sr(SWS,4)}, s{off_sreg} sc1
    s_mov_b64 exec, -1
    Lsig_{tag}:""")

hdr = open(f"cdna_kernels/{NAME}.s.ref").read().split("\n")
hdr = [h for h in hdr[:15] if h.startswith(";") and "@launch" not in h]
L += hdr
L.append(f"; @launch grid=(256,1,1) block=(512,1,1) lds={LDS_BYTES}")
L += ['.amdgcn_target "amdgcn-amd-amdhsa--gfx950"', ".text", f".globl {NAME}_kernel", ".p2align 8",
      f".type {NAME}_kernel,@function"]
e(f"{NAME}_kernel:")
RT = PROF
if RT: e("s_memrealtime s[100:101]\ns_memtime s[98:99]")
if DBGT or PAD: e("s_memrealtime s[100:101]\ns_memtime s[92:93]")
PFC = "" if "--nopfc" in sys.argv else f"""s_cmp_lg_u32 s{sW}, 7
s_cbranch_scc1 Lnop0
s_getpc_b64 s[94:95]
Lpc0:
s_bfe_u32 s{sT0}, s2, 0x20003
s_lshl_b32 s{sT0}, s{sT0}, 13
v_lshl_add_u32 v{vT1}, v{vLane}, 7, s{sT0}
v_min_u32 v{vT1}, Lcodeend-Lpc0-4, v{vT1}
global_load_dword v223, v{vT1}, s[94:95]"""
e(f"""s_cmp_ge_u32 s2, 256
s_cbranch_scc1 Lend
s_load_dwordx16 s[64:79], s[0:1], 0
s_load_dwordx8 s[80:87], s[0:1], 64
s_memrealtime s[{sTm}:{sTm+1}]
v_and_b32 v{vLane}, 63, v0
v_lshrrev_b32 v{vT0}, 6, v0
v_lshrrev_b32 v{vH}, 5, v{vLane}
v_readfirstlane_b32 s{sW}, v{vT0}
s_cmp_lt_u32 s{sW}, 4
s_cbranch_scc1 Lnop0
s_setprio 2
{PFC}
Lnop0:
s_and_b32 s{sT0}, s2, 7
s_lshr_b32 s{sT1}, s2, 3
s_and_b32 s{sI}, s{sT0}, 1
s_lshl_b32 s{sI}, s{sI}, 3
s_and_b32 s{sT2}, s{sT1}, 7
s_add_u32 s{sI}, s{sI}, s{sT2}
s_lshr_b32 s{sJ}, s{sT0}, 1
s_lshl_b32 s{sJ}, s{sJ}, 2
s_lshr_b32 s{sT3}, s{sT1}, 3
s_sub_u32 s{sJ}, s{sJ}, s{sT3}
s_add_u32 s{sJ}, s{sJ}, 3
s_and_b32 s{sTB}, s{sT0}, 3
s_lshl_b32 s{sTB}, s{sTB}, 3
s_add_u32 s{sTB}, s{sTB}, s{sT2}
s_lshr_b32 s{sCS}, s{sT0}, 2
s_lshl_b32 s{sCS}, s{sCS}, 2
s_add_u32 s{sCS}, s{sCS}, s{sT3}
s_and_b32 s{sW4}, s{sW}, 3
v_lshrrev_b32 v{vT0}, 3, v{vLane}
v_lshlrev_b32 v{vT0}, 10, v{vT0}
v_and_b32 v{vT1}, 7, v{vLane}
v_lshrrev_b32 v{vT2}, 4, v{vLane}
v_xor_b32 v{vT1}, v{vT1}, v{vT2}
v_lshl_add_u32 v{vXa0}, v{vT1}, 4, v{vT0}
v_xor_b32 v{vXa1}, 64, v{vXa0}
v_add_u32 v{vXa1}, {8192-1024}, v{vXa1}
v_lshlrev_b32 v{vL16}, 4, v{vLane}
s_lshl_b32 s{sXo}, s{sI}, 17
s_lshl_b32 s{sT0}, s{sW4}, 15
s_add_u32 s{sXo}, s{sXo}, s{sT0}
s_lshl_b32 s{sRow}, s{sI}, 4
s_add_u32 s{sRow}, s{sRow}, s{sJ}
s_lshl_b32 s{sRow}, s{sRow}, 2
s_add_u32 s{sRow}, s{sRow}, s{sW4}
s_or_b32 s{sT0}, s2, s{sW}
s_waitcnt lgkmcnt(0)""")
def srd(d, p, nbytes):
    e(f"s_mov_b32 s{d}, s{p}\ns_mov_b32 s{d+1}, s{p+1}\ns_mov_b32 s{d+2}, {nbytes}\ns_mov_b32 s{d+3}, 0x20000")
srd(SX, 64, 2048*1024)
vRs = 144
e(f"""s_cmp_lt_u32 s{sW}, 4
s_cbranch_scc1 Lnorow
s_lshl_b32 s{sT1}, s{sRow}, 11
buffer_load_dwordx4 {vr(vRs,4)}, v{vL16}, {sr(SX,4)}, s{sT1} offen
buffer_load_dwordx4 {vr(vRs+4,4)}, v{vL16}, {sr(SX,4)}, s{sT1} offen offset:1024
Lnorow:""")
srd(SDBG, 84, 256)
e(f"""s_cmp_lg_u32 s{sT0}, 0
s_cbranch_scc1 Lnotag
s_or_b32 s{sTm}, s{sTm}, 1
v_mov_b32 v{vPoll}, s{sTm}
v_mov_b32 v{vPoll+1}, s{sTm+1}
s_mov_b64 exec, 1
buffer_store_dwordx2 {vr(vPoll,2)}, off, {sr(SDBG,4)}, 0 sc1
s_mov_b64 exec, -1
Lnotag:""")
SWU = SWK
srd(SWQ, 66, 512*1024); srd(SWG, 76, 512*2752)
e(f"s_cmp_eq_u32 s{sJ}, 15\ns_cselect_b32 s{SWK}, s68, s78\ns_cselect_b32 s{SWK+1}, s69, s79\ns_mov_b32 s{sT1}, {512*2752}\ns_cselect_b32 s{SWK+2}, 16384, s{sT1}\ns_mov_b32 s{SWK+3}, 0x20000")
srd(SWV, 70, 16384); srd(SWS, 86, WS_BYTES); srd(SWO, 72, 512*1024); srd(SWD, 80, 1376*1024); srd(SOUT, 82, 2048*1024)
if PROF:
    e(f"s_lshl_b32 s{sPo}, s2, 3\ns_add_u32 s{sPo}, s{sPo}, s{sW}\ns_lshl_b32 s{sPo}, s{sPo}, 8\ns_add_u32 s{sPo}, s{sPo}, {PROFO}")
stamp(0)
if TK: e("s_mov_b32 s80, 1\ns_mov_b32 s81, 1")
if RT: e(f"s_nop 1\nv_mov_b32 v0, s100\nbuffer_store_dword v0, off, {sr(SWS,4)}, s{sPo} offset:60\ns_nop 1\nv_mov_b32 v0, s98\nbuffer_store_dword v0, off, {sr(SWS,4)}, s{sPo} offset:16")
e(f"""s_cmp_eq_u32 s{sJ}, 15
s_cbranch_scc1 Lkvcu
s_cmp_ge_u32 s{sW}, 4
s_cbranch_scc1 Lcomp""")

def o_prod_off(dst):
    e(f"""s_lshl_b32 s{sT0}, s{sI}, 2
    s_lshr_b32 s{sT1}, s{sW}, 1
    s_add_u32 s{sT0}, s{sT0}, s{sT1}
    s_lshl_b32 s{sT0}, s{sT0}, 5
    s_lshl_b32 s{sT1}, s{sJ}, 1
    s_and_b32 s{dst}, s{sW}, 1
    s_add_u32 s{sT1}, s{sT1}, s{dst}
    s_lshr_b32 s{dst}, s{sT1}, 2
    s_add_u32 s{sT0}, s{sT0}, s{dst}
    s_and_b32 s{sT1}, s{sT1}, 3
    s_lshl_b32 s{sT1}, s{sT1}, 3
    s_add_u32 s{sT0}, s{sT0}, s{sT1}
    s_lshl_b32 s{sT0}, s{sT0}, 10
    s_add_u32 s{dst}, s{sT0}, {OIMG}""")

def v_lane_addr(d):
    e(f"""v_and_b32 v{d}, 15, v{vLane}
    v_lshlrev_b32 v{d}, 4, v{d}
    v_lshl_add_u32 v{d}, v{vH}, 8, v{d}
    s_mov_b32 exec_lo, 0xffff0000
    s_mov_b32 exec_hi, 0xffff0000
    v_mov_b32 v{d}, 512""")
def early_init():
    o_prod_off(sOp)
    v_lane_addr(vAv)
    e(f"""s_mov_b32 exec_lo, 0xffee0000
    s_mov_b32 exec_hi, 0xffee0000
    v_mov_b32 v{vAv}, 0x4000000
    s_mov_b64 exec, -1
    v_add_u32 v{vAv}, 1024, v{vAv}
    v_lshlrev_b32 v{vAk}, 4, v{vLane}
    v_mov_b32 v{vIdx}, 0xdddd
    v_lshrrev_b32 v{vT0}, 3, v{vLane}
    v_lshlrev_b32 v{vT0}, 10, v{vT0}
    v_and_b32 v{vT1}, 7, v{vLane}
    v_bfe_u32 v{vT2}, v{vLane}, 4, 1
    v_lshlrev_b32 v{vT2}, 2, v{vT2}
    v_xor_b32 v{vT1}, v{vT1}, v{vT2}
    v_lshl_add_u32 v{vDa}, v{vT1}, 4, v{vT0}
    s_lshl_b32 s{sDo}, s{sW}, 13
    s_lshl_b32 s{sT1}, s{sCS}, 7
    s_add_u32 s{sDo}, s{sDo}, s{sT1}
    s_lshl_b32 s{sDm}, s{sW}, 10
    s_lshr_b32 s{sKq}, s{sW}, 1
    s_and_b32 s{sTt}, s{sW}, 1
    s_lshl_b32 s{sT0}, s{sTB}, 1
    s_add_u32 s{sT2}, s{sT0}, s{sTt}
    s_mul_i32 s{sHo}, s{sT2}, 88
    s_mul_i32 s{sT0}, s{sKq}, 22
    s_add_u32 s{sHo}, s{sHo}, s{sT0}
    s_lshl_b32 s{sHo}, s{sHo}, 10
    s_add_u32 s{sHo}, s{sHo}, {HIMG}
    s_lshl_b32 s{sT0}, s{sT2}, 2
    s_add_u32 s{sT0}, s{sT0}, s{sKq}
    s_lshl_b32 s{sT0}, s{sT0}, 13
    s_add_u32 s{sOc}, s{sT0}, {OIMG}
    s_add_u32 s{sOc2}, s{sOc}, 4096
    s_lshl_b32 s{sT0}, s{sT2}, 15
    s_add_u32 s{sT0}, s{sT0}, s{sT1}
    s_lshl_b32 s{sT1}, s{sKq}, 5
    s_add_u32 s{sXf}, s{sT0}, s{sT1}
    s_lshr_b32 s{sHc}, s{sTB}, 1
    s_lshl_b32 s{sHc}, s{sHc}, 11
    s_add_u32 s{sHc}, s{sHc}, {HFLG}
    s_lshl_b32 s{sHs}, s{sI}, 4
    s_add_u32 s{sHs}, s{sHs}, s{sJ}
    s_lshl_b32 s{sHs}, s{sHs}, 7
    s_add_u32 s{sHs}, s{sHs}, {HFLG}
    v_and_b32 v{vT0}, 31, v{vLane}
    v_lshlrev_b32 v{vT0}, 10, v{vT0}
    v_lshl_add_u32 v{vRa}, v{vH}, 4, v{vT0}
    v_bfe_u32 v{vT0}, v{vLane}, 2, 2
    v_lshl_add_u32 v{vT0}, v{vH}, 2, v{vT0}
    v_lshlrev_b32 v{vT0}, 7, v{vT0}
    v_bfe_u32 v{vT1}, v{vLane}, 4, 1
    v_lshl_add_u32 v{vT0}, v{vT1}, 5, v{vT0}
    v_and_b32 v{vT1}, 3, v{vLane}
    v_lshl_add_u32 v{vT0}, v{vT1}, 3, v{vT0}
    v_bfe_u32 v{vT1}, v{vLane}, 3, 1
    v_lshl_add_u32 v{vT0}, v{vT1}, 6, v{vT0}
    s_lshl_b32 s{sT0}, s{sKq}, 11
    s_and_b32 s{sT1}, s{sKq}, 1
    s_lshl_b32 s{sWd}, s{sT1}, 10
    s_sub_u32 s{sT1}, s{sT0}, s{sWd}
    v_add_u32 v{vRd}, s{sT1}, v{vT0}
    v_xor_b32 v{vRd+1}, 64, v{vRd}
    v_add_u32 v{vRd+2}, 0xe000, v{vRd}
    v_add_u32 v{vRd+3}, 0xe000, v{vRd+1}
    v_add_u32 v{vRd+4}, 0x1c000, v{vRd}
    v_add_u32 v{vRd+5}, 0x1c000, v{vRd+1}
    s_mul_i32 s{sT1}, s{sTt}, {8*ASL}
    s_add_u32 s{sT1}, s{sT1}, {RED}
    s_add_u32 s{sT0}, s{sT0}, s{sT1}
    v_add_u32 v{vRw}, s{sT0}, v{vL16}
    s_mul_i32 s{sT0}, s{sKq}, {ASL}
    s_add_u32 s{sT0}, s{sT0}, s{sT1}
    v_add_u32 v{vRr}, s{sT0}, v{vL16}""")
    for r in range(12): e(f"v_mov_b32 v{vO+r}, 0")


def spread(m, fill):
    w = [16 if "16x16" in x else 32 for x in m]
    tot = sum(c for c, _ in fill); W = sum(w)
    out = []; k = 0; acc = 0; cw = 0
    for x, wx in zip(m, w):
        out.append(x); cw += wx
        while k < len(fill) and (acc + fill[k][0]/2) * W <= tot * cw:
            out.append(fill[k][1]); acc += fill[k][0]; k += 1
    out += [t for _, t in fill[k:]]
    return out


C1 = -2*0.7978845608028654*1.4426950408889634
C3 = C1*0.044715
def gelu_consts(m, r, d):
    e(f"""v_sub_f32 v{d}, 0, v{m}
    v_mul_f32 v{d+3}, v{r}, v{r}
    v_mul_f32 v{d+1}, {f2u(C1):#x}, v{r}
    v_mul_f32 v{d+2}, {f2u(C3):#x}, v{r}
    v_mul_f32 v{d+2}, v{d+2}, v{d+3}
    v_rcp_f32 v{d+3}, v{d+3}""")
def bc(reg, pos, n):
    base = reg & ~1
    return vr(base, 2), reg & 1
def pk(op, d, srcs, neg=None):
    ops = []; lo = []; hi = []
    for t, r in srcs:
        if t == 'p': ops.append(vr(r, 2)); lo.append(0); hi.append(1)
        else: ops.append(vr(r & ~1, 2)); lo.append(r & 1); hi.append(r & 1)
    return f"{op} {vr(d,2)}, {', '.join(ops)} op_sel:[{','.join(map(str,lo))}] op_sel_hi:[{','.join(map(str,hi))}]"
def gelu_tile(g, u, csg, csu, k, tmp, n=16):
    for p in range(0, n, 2):
        e(pk("v_pk_fma_f32", g+p, [('b', k), ('p', csg+p), ('p', g+p)]))
        e(pk("v_pk_fma_f32", u+p, [('b', k), ('p', csu+p), ('p', u+p)]))
    for p in range(0, n, 2):
        e(pk("v_pk_mul_f32", tmp+p, [('p', g+p), ('p', g+p)]))
    for p in range(0, n, 2):
        e(pk("v_pk_fma_f32", tmp+p, [('p', tmp+p), ('b', k+2), ('b', k+1)]))
    for p in range(0, n, 2):
        e(pk("v_pk_mul_f32", tmp+p, [('p', tmp+p), ('p', g+p)]))
    for p in range(n): e(f"v_exp_f32 v{tmp+p}, v{tmp+p}")
    for p in range(0, n, 2):
        e(pk("v_pk_mul_f32", u+p, [('p', u+p), ('p', g+p)]))
    for p in range(0, n, 2):
        e(pk("v_pk_fma_f32", tmp+p, [('p', tmp+p), ('b', k+3), ('b', k+3)]))
    for p in range(n): e(f"v_rcp_f32 v{tmp+p}, v{tmp+p}")
    e("s_nop 0")
    for p in range(0, n, 2):
        e(pk("v_pk_mul_f32", u+p, [('p', u+p), ('p', tmp+p)]))
    for p in range(n//2): e(f"v_cvt_pk_bf16_f32 v{g+p}, v{u+2*p}, v{u+2*p+1}")

def cs_read(d, slot_off):
    for q in range(4): e(f"ds_read_b128 {vr(d+4*q,4)}, v{vT3} offset:{slot_off+32*q}")

def lin_fold(acc, cs, negm, scale, n=16):
    for p in range(0, n, 2):
        e(pk("v_pk_fma_f32", acc+p, [('b', negm), ('p', cs+p), ('p', acc+p)]))
    for p in range(0, n, 2):
        e(pk("v_pk_mul_f32", acc+p, [('p', acc+p), ('b', scale)]))

def q_epilogue(cs):
    e(f"v_mul_f32 v{vSt+2}, {f2u(0.25*1.4426950408889634):#x}, v{vSt+1}")
    lin_fold(vAcc, cs, vSt+4, vSt+2)
    for p in range(8): e(f"v_cvt_pk_bf16_f32 v{vAcc+p}, v{vAcc+2*p}, v{vAcc+2*p+1}")
    e(f"""s_lshl_b32 s{sT0}, s{sW4}, 11
    s_add_u32 s{sT0}, s{sT0}, {QIMG}
    v_lshl_add_u32 v{vT0}, v{vLane}, 4, s{sT0}
    ds_write_b128 v{vT0}, {vr(vAcc,4)}
    ds_write_b128 v{vT0}, {vr(vAcc+4,4)} offset:1024""")


def rowstat_finish():
    a = vRs+8
    e(f"v_mov_b32 v{vT0}, 0x3f803f80")
    for k in range(4):
        for r in range(2):
            x = vRs+4*r+k
            c0 = "0" if k == 0 else f"v{a+2*r}"; c1 = "0" if k == 0 else f"v{a+2*r+1}"
            e(f"v_dot2_f32_bf16 v{a+2*r}, v{x}, v{vT0}, {c0}\nv_dot2_f32_bf16 v{a+2*r+1}, v{x}, v{x}, {c1}")
    e("s_nop 2")
    for ctl in ("row_shr:1", "row_shr:2", "row_shr:4", "row_shr:8"):
        for k in range(4): e(f"v_add_f32_dpp v{a+k}, v{a+k}, v{a+k} {ctl} row_mask:0xf bank_mask:0xf bound_ctrl:0")
    for ctl in ("row_bcast:15 row_mask:0xa", "row_bcast:31 row_mask:0xc"):
        for k in range(4): e(f"v_add_f32_dpp v{a+k}, v{a+k}, v{a+k} {ctl} bank_mask:0xf")
    for r in range(2):
        d = vRs+4*r
        e(f"""v_mul_f32 v{d}, {f2u(1/512):#x}, v{a+2*r}
        v_mul_f32 v{d+1}, {f2u(1/512):#x}, v{a+2*r+1}
        v_fma_f32 v{d+1}, -v{d}, v{d}, v{d+1}
        v_max_f32 v{d+1}, 0, v{d+1}
        v_add_f32 v{d+1}, {f2u(1e-5):#x}, v{d+1}
        v_rsq_f32 v{d+1}, v{d+1}
        v_mov_b32 v{d+2}, s{sNo}
        v_mov_b32 v{d+3}, s{sNo+1}""")
    e(f"""s_lshl_b32 s{sT0}, s{sRow}, 5
    s_add_u32 s{sT0}, s{sT0}, {STATG}
    s_mov_b32 exec_lo, 0
    s_brev_b32 exec_hi, 1
    buffer_store_dwordx4 {vr(vRs,4)}, off, {sr(SWS,4)}, s{sT0} sc1
    buffer_store_dwordx4 {vr(vRs+4,4)}, off, {sr(SWS,4)}, s{sT0} offset:16 sc1
    s_mov_b64 exec, -1""")
def sentinel(r):
    for k in range(4): e(f"v_mov_b32 v{r+k}, -1")
    e(f"buffer_store_dwordx4 {vr(r,4)}, v{vL16}, {sr(SWS,4)}, s{sOp} offen sc1")
def kv_dma(tag):
    e(f"""s_lshl_b32 s{sT0}, s{sW4}, 10
    Lkvd_{tag}:
    s_mov_b32 m0, s{sT0}
    s_nop 0
    buffer_load_dwordx4 v{vL16}, {sr(SWS,4)}, s{sT0} offen sc1 lds
    s_add_u32 s{sT0}, s{sT0}, 4096
    s_cmp_lt_u32 s{sT0}, {36*1024}
    s_cbranch_scc1 Lkvd_{tag}""")
def tr_lane(rowmul, d):
    e(f"""v_lshrrev_b32 v{vT0}, 4, v{vLane}
    v_bfe_u32 v{vT1}, v{vLane}, 2, 2
    v_lshl_add_u32 v{vT0}, v{vT0}, 3, v{vT1}
    v_mul_u32_u24 v{vT0}, {rowmul}, v{vT0}
    v_bfe_u32 v{vT1}, v{vLane}, 4, 1
    v_lshl_add_u32 v{vT0}, v{vT1}, 5, v{vT0}
    v_and_b32 v{vT1}, 3, v{vLane}
    v_lshl_add_u32 v{d}, v{vT1}, 3, v{vT0}""")
def ones_col0(d):
    e(f"""v_and_b32 v{vT0}, 15, v{vLane}
    v_cmp_eq_u32 vcc, 0, v{vT0}
    v_mov_b32 v{vT1}, 0x3f803f80
    s_nop 0
    v_cndmask_b32 v{d}, 0, v{vT1}, vcc""")
    for k in range(1, 4): e(f"v_mov_b32 v{d+k}, v{d}")
def rot_delta():
    return f"s_add_u32 s{sRb}, s{sRb}, 1\ns_cmp_eq_u32 s{sRb}, 3\ns_cselect_b32 s{sDl}, s{sC3}, {STG}\ns_cselect_b32 s{sRb}, 0, s{sRb}"
def cs16_write(accs, slot0_sreg, stride):
    e(f"v_add_u32 v{vT0}, s{slot0_sreg}, v{vLane}\ns_mov_b32 exec_lo, 0x00010001\ns_mov_b32 exec_hi, 0x00010001")
    for n, a in enumerate(accs): e(f"ds_write_b128 v{vT0}, {vr(a,4)} offset:{stride*n}")
    e("s_mov_b64 exec, -1")

ROT = int(sys.argv[sys.argv.index("--rot")+1]) if "--rot" in sys.argv else 7
sKs = 84
def dma_x():
    return [f"s_add_u32 m0, s{sLb}, s{sMx}", f"s_add_u32 s{sT0}, s{sXo}, 16384",
            f"buffer_load_dwordx4 v{vXa0}, {sr(SX,4)}, s{sXo} offen lds",
            f"buffer_load_dwordx4 v{vXa1}, {sr(SX,4)}, s{sXo} offen offset:1024 lds",
            "s_add_u32 m0, m0, 2048", f"s_add_u32 s{sXo}, s{sXo}, 128",
            f"buffer_load_dwordx4 v{vXa0}, {sr(SX,4)}, s{sT0} offen lds",
            f"buffer_load_dwordx4 v{vXa1}, {sr(SX,4)}, s{sT0} offen offset:1024 lds"]
def dma_w():
    r = []
    for k, sd in enumerate((SWG, SWU)):
        r += [f"s_add_u32 m0, s{sLb}, s{sMw}" if k == 0 else f"s_add_u32 m0, m0, {UOFF-GOFF}", "s_nop 0",
              f"buffer_load_dwordx4 v{vWa0}, {sr(sd,4)}, s{sWo} offen lds",
              f"buffer_load_dwordx4 v{vWa1}, {sr(sd,4)}, s{sWo} offen offset:1024 lds",
              f"buffer_load_dwordx4 v{vWa2}, {sr(sd,4)}, s{sWo} offen offset:2048 lds"]
    r += [f"s_add_u32 m0, s{sLb}, s{sMq}", f"s_add_u32 s{sWo}, s{sWo}, {64*2752}",
          f"buffer_load_dwordx4 v{vQa}, {sr(SWQ,4)}, s{sQo} offen lds", f"s_add_u32 s{sQo}, s{sQo}, 65536",
          f"s_add_u32 s{sLb}, s{sLb}, {STG}", f"s_cmp_ge_u32 s{sLb}, {3*STG}", f"s_cselect_b32 s{sLb}, 0, s{sLb}"]
    if ROT:
        r += [f"s_add_u32 s{sKs}, s{sKs}, 1", f"s_cmp_eq_u32 s{sKs}, 8",
              f"s_cselect_b32 s{sT0}, 1024, 0", f"s_cselect_b32 s{sT1}, {512*2752}, 0", f"s_cselect_b32 s{sT2}, {512*1024}, 0",
              f"s_sub_u32 s{sXo}, s{sXo}, s{sT0}", f"s_sub_u32 s{sWo}, s{sWo}, s{sT1}", f"s_sub_u32 s{sQo}, s{sQo}, s{sT2}"]
    return r
e(f"s_mov_b32 s{sLb}, 0\ns_lshl_b32 s{sMx}, s{sW4}, 12")
if ROT: e(f"s_lshl_b32 s{sKs}, s{sJ}, 1\ns_add_u32 s{sKs}, s{sKs}, s{sI}\ns_and_b32 s{sKs}, s{sKs}, {ROT}\ns_lshl_b32 s{sT0}, s{sKs}, 7\ns_add_u32 s{sXo}, s{sXo}, s{sT0}")
for x in dma_x(): e(x)
for k, r in enumerate((vWa0, vWa1, vWa2)):
    e(f"""v_add_u32 v{vT0}, {64*k}, v{vLane}
    v_mul_u32_u24 v{vT1}, 43691, v{vT0}
    v_lshrrev_b32 v{vT1}, 19, v{vT1}
    v_mul_u32_u24 v{vT2}, 12, v{vT1}
    v_sub_u32 v{vT0}, v{vT0}, v{vT2}
    v_lshrrev_b32 v{vT2}, 2, v{vT1}
    v_and_b32 v{vT2}, 2, v{vT2}
    v_xor_b32 v{vT0}, v{vT0}, v{vT2}
    v_mul_u32_u24 v{vT1}, 2752, v{vT1}
    v_lshl_add_u32 v{r}, v{vT0}, 4, v{vT1}""")
    if k: e(f"v_subrev_u32 v{r}, {1024*k}, v{r}")
e(f"""v_lshrrev_b32 v{vT0}, 2, v{vLane}
v_lshlrev_b32 v{vT0}, 10, v{vT0}
v_and_b32 v{vT1}, 3, v{vLane}
v_lshlrev_b32 v{vT2}, 1, v{vH}
v_xor_b32 v{vT1}, v{vT1}, v{vT2}
v_lshl_add_u32 v{vQa}, v{vT1}, 4, v{vT0}
s_mul_i32 s{sT0}, s{sJ}, 96
s_min_u32 s{sT0}, s{sT0}, 1280
s_lshl_b32 s{sT0}, s{sT0}, 1
s_mul_i32 s{sWo}, s{sW4}, {16*2752}
s_add_u32 s{sWo}, s{sWo}, s{sT0}
s_lshl_b32 s{sQo}, s{sW4}, 14
s_lshl_b32 s{sT0}, s{sJ}, 6
s_add_u32 s{sQo}, s{sQo}, s{sT0}
s_mul_i32 s{sMw}, s{sW4}, 3072
s_add_u32 s{sMw}, s{sMw}, {GOFF}
s_lshl_b32 s{sMq}, s{sW4}, 10
s_add_u32 s{sMq}, s{sMq}, {QOFF}""")
if ROT: e(f"s_mul_i32 s{sT0}, s{sKs}, {64*2752}\ns_add_u32 s{sWo}, s{sWo}, s{sT0}\ns_lshl_b32 s{sT0}, s{sKs}, 16\ns_add_u32 s{sQo}, s{sQo}, s{sT0}")
for x in dma_w() + dma_x() + dma_w(): e(x)
hW, hC, hO, hA = 32, 64, 80, 84
tr_lane(192, hA)
e(f"s_and_b32 s{sT0}, s{sW}, 1\ns_mul_i32 s{sT0}, s{sT0}, {UOFF-GOFF}\ns_add_u32 s{sT0}, s{sT0}, {GOFF}\nv_add_u32 v{hA}, s{sT0}, v{hA}\nv_xor_b32 v{hA+1}, 32, v{hA}")
ones_col0(hO)
for r in range(16): e(f"v_mov_b32 v{hC+r}, 0")
e(f"s_mov_b32 s{sSt}, 0\ns_mov_b32 s{sRb}, 0\ns_mov_b32 s{sC3}, {(-2*STG) & 0xffffffff}")
e("s_setprio 3")
tstamp(21); e("s_waitcnt vmcnt(11)"); tstamp(23); e("s_barrier")
stamp(12); tflush(); TS.clear()
def helper_cs(tag):
    e(f"s_cmp_lt_u32 s{sW}, 2\ns_cbranch_scc1 Lhn_{tag}")
    for k2 in range(2):
        for t in range(4):
            o = 32*k2*192 + (t >> 1)*64
            for x in tr(hW+16*k2+4*t, hA+(t & 1), o) + tr(hW+16*k2+4*t+2, hA+(t & 1), o+4*192): e(x)
    e(rot_delta())
    e("s_waitcnt lgkmcnt(8)")
    for t in range(4): e(mfma16(hC+4*t, hW+4*t, hO))
    e(f"v_add_u32 v{hA}, s{sDl}, v{hA}\nv_add_u32 v{hA+1}, s{sDl}, v{hA+1}\ns_waitcnt lgkmcnt(0)")
    for t in range(4): e(mfma16(hC+4*t, hW+16+4*t, hO))
    e(f"Lhn_{tag}:")
def cs_parts():
    rd = []
    for k2 in range(2):
        for t in range(4):
            o = 32*k2*192 + (t >> 1)*64
            rd += tr(hW+16*k2+4*t, hA+(t & 1), o) + tr(hW+16*k2+4*t+2, hA+(t & 1), o+4*192)
    m = [mfma16(hC+4*t, hW+16*k2+4*t, hO) for k2 in range(2) for t in range(4)]
    return rd, m
def helper_loop(cs):
    t = "c" if cs else "n"
    e(f"Lhl{t}:")
    if cs:
        rd, m = cs_parts()
        for x in rd: e(x)
        e(rot_delta())
        for x in dma_x(): e(x)
        e(f"v_add_u32 v{hA}, s{sDl}, v{hA}\nv_add_u32 v{hA+1}, s{sDl}, v{hA+1}\ns_waitcnt lgkmcnt(0)")
        w = dma_w(); k = 0
        for x in w:
            e(x)
            if "buffer_load" in x: e(m[k]); k += 1
        for x in m[k:]: e(x)
    else:
        for x in dma_x() + dma_w(): e(x)
    e(f"""s_add_u32 s{sSt}, s{sSt}, 1
    {tk(None)}
    s_waitcnt vmcnt(11)
    {tk(80)}
    s_barrier
    {tk(81)}
    s_cmp_lt_u32 s{sSt}, 6
    s_cbranch_scc1 Lhl{t}""")
e(f"s_cmp_lt_u32 s{sW}, 2\ns_cbranch_scc1 Lhln")
helper_loop(True)
e("s_branch Lh6")
helper_loop(False)
e("Lh6:")
tkout()
e(tag_issue())
helper_cs("b")
e("s_setprio 0")
early_init()
e("s_setprio 3")
tag_wait("h", 0)
e("s_barrier")
e(f"s_cmp_lg_u32 s{sW}, 1\ns_cbranch_scc1 Lhns\ns_lshl_b32 s{sT1}, s{sI}, 11\ns_add_u32 s{sT1}, s{sT1}, {STATG}\ns_mov_b32 s{sT0}, 0\nLhs:")
e(f"""buffer_load_dwordx4 {vr(hW,4)}, v{vL16}, {sr(SWS,4)}, s{sT1} offen sc1
buffer_load_dwordx4 {vr(hW+4,4)}, v{vL16}, {sr(SWS,4)}, s{sT1} offen offset:1024 sc1
s_add_u32 s{sT0}, s{sT0}, 1
s_waitcnt vmcnt(0)
v_cmp_ne_u64 vcc, s[{sNo}:{sNo+1}], {vr(hW+2,2)}
v_cmp_ne_u64 s[{sEx}:{sEx+1}], s[{sNo}:{sNo+1}], {vr(hW+6,2)}
s_or_b64 vcc, vcc, s[{sEx}:{sEx+1}]
s_cmp_ge_u32 s{sT0}, 100000
s_cbranch_scc1 Lhsd
s_cbranch_vccnz Lhs
Lhsd:""")
gelu_consts(hW, hW+1, hW+8); gelu_consts(hW+4, hW+5, hW+12)
e(f"""v_add_u32 v{vT0}, {STATM}, v{vL16}
ds_write_b128 v{vT0}, {vr(hW+8,4)}
ds_write_b128 v{vT0}, {vr(hW+12,4)} offset:1024
Lhns:
s_mov_b32 s{sKf}, {KFLG}""")
e(flags_issue(sKf))
helper_cs("c")
e("s_barrier")
e(f"s_cmp_lt_u32 s{sW}, 2\ns_cbranch_scc1 Lhnw\ns_and_b32 s{sT1}, s{sW}, 1\ns_lshl_b32 s{sT1}, s{sT1}, 8\ns_add_u32 s{sT1}, s{sT1}, {CSUM}\ns_nop 2")
cs16_write([hC+4*t for t in range(4)], sT1, 64)
e("Lhnw:\ns_waitcnt lgkmcnt(0)")
stamp(1)
e("s_barrier")
e("s_branch Lkvwait")

cX = [8, 24]; cW = 40; cRX, cRW, cRQ = 72, 74, 76; cCs = 80; cO = 92; cA = 96
e("Lcomp:")
e(tag_issue())
e(f"""v_and_b32 v{vT0}, 15, v{vLane}
v_lshrrev_b32 v{vT1}, 1, v{vT0}
v_lshrrev_b32 v{vT2}, 4, v{vLane}
v_xor_b32 v{vT1}, v{vT1}, v{vT2}
v_lshlrev_b32 v{vT0}, 7, v{vT0}
s_and_b32 s{sT0}, s{sW}, 1
s_lshl_b32 s{sT0}, s{sT0}, 13
v_add_u32 v{vT0}, s{sT0}, v{vT0}
v_lshl_add_u32 v{cRX}, v{vT1}, 4, v{vT0}
v_xor_b32 v{cRX+1}, 64, v{cRX}""")
tr_lane(192, cRW); e(f"v_xor_b32 v{cRW+1}, 32, v{cRW}")
tr_lane(64, cRQ); e(f"v_xor_b32 v{cRQ+1}, 32, v{cRQ}")
ones_col0(cO)
early_init()
for r in list(range(cCs, cCs+12, 2)) + [r for r in range(cA, cA+128, 2) if not vRs <= r < vRs+16]: e(f"v_mov_b64 {vr(r,2)}, 0")
tstamp(13)
tag_wait("c", 0)
tstamp(21)
rowstat_finish()
tstamp(23); tflush(); TS.clear()
if "--touch" in sys.argv:
    e(f"""s_and_b32 s{sT2}, s{sI}, 7
    s_mul_i32 s{sT2}, s{sT2}, 48
    s_add_u32 s{sT2}, s{sT2}, 128
    s_cmp_ge_u32 s{sW}, 6
    s_cbranch_scc1 Ltc6
    v_lshrrev_b32 v{vT0}, 1, v{vLane}
    v_mul_u32_u24 v{vT0}, 2752, v{vT0}
    v_and_b32 v{vT1}, 1, v{vLane}
    v_lshl_add_u32 v{vT0}, v{vT1}, 7, v{vT0}
    s_mul_i32 s{sT0}, s{sJ}, 96
    s_min_u32 s{sT0}, s{sT0}, 1280
    s_lshl_b32 s{sT0}, s{sT0}, 1
    s_mul_i32 s{sT2}, s{sT2}, 2752
    s_add_u32 s{sT0}, s{sT0}, s{sT2}
    s_add_u32 s{sT1}, s{sT0}, {32*2752}
    s_cmp_eq_u32 s{sW}, 5
    s_cbranch_scc1 Ltc5
    buffer_load_dword v79, v{vT0}, {sr(SWG,4)}, s{sT0} offen
    s_mov_b32 exec_hi, 0
    buffer_load_dword v79, v{vT0}, {sr(SWG,4)}, s{sT1} offen
    s_branch Ltce
    Ltc5:
    buffer_load_dword v79, v{vT0}, {sr(SWU,4)}, s{sT0} offen
    s_mov_b32 exec_hi, 0
    buffer_load_dword v79, v{vT0}, {sr(SWU,4)}, s{sT1} offen
    s_branch Ltce
    Ltc6:
    s_cmp_eq_u32 s{sW}, 7
    s_cbranch_scc1 Ltc7
    v_lshrrev_b32 v{vT0}, 1, v{vLane}
    v_lshlrev_b32 v{vT0}, 10, v{vT0}
    v_and_b32 v{vT1}, 1, v{vLane}
    v_lshl_add_u32 v{vT0}, v{vT1}, 7, v{vT0}
    s_lshl_b32 s{sT0}, s{sI}, 17
    s_and_b32 s{sT1}, s{sJ}, 3
    s_lshl_b32 s{sT1}, s{sT1}, 15
    s_add_u32 s{sT0}, s{sT0}, s{sT1}
    buffer_load_dword v79, v{vT0}, {sr(SX,4)}, s{sT0} offen offset:256
    buffer_load_dword v79, v{vT0}, {sr(SX,4)}, s{sT0} offen offset:512
    buffer_load_dword v79, v{vT0}, {sr(SX,4)}, s{sT0} offen offset:768
    s_branch Ltce
    Ltc7:
    v_lshlrev_b32 v{vT0}, 10, v{vLane}
    s_lshl_b32 s{sT2}, s{sT2}, 10
    s_lshl_b32 s{sT0}, s{sJ}, 6
    s_add_u32 s{sT0}, s{sT0}, s{sT2}
    s_mov_b32 exec_hi, 0xffff
    buffer_load_dword v79, v{vT0}, {sr(SWQ,4)}, s{sT0} offen
    Ltce:
    s_mov_b64 exec, -1""")
e("s_nop 1")
for r in range(vRs, vRs+16, 2): e(f"v_mov_b64 {vr(r,2)}, 0")
e(f"s_mov_b32 s{sSt}, 0\ns_mov_b32 s{sRb}, 0\ns_mov_b32 s{sC3}, {(-2*STG) & 0xffffffff}\ns_setprio 2")
e(f"s_cmp_eq_u32 s{sW}, 6\ns_cbranch_scc1 Lcl0\ns_cmp_eq_u32 s{sW}, 7\ns_cbranch_scc1 Lcl1")
def comp_loop(kind, var):
    heavy = kind == "h"
    nf = 8 if heavy else 6
    tag = f"{kind}{var}"
    def wrd(n, k2):
        if heavy: a, o, rs = cRW+(n & 1), (GOFF if n < 4 else UOFF) + ((n & 3) >> 1)*64, 192
        elif n < 2: a, o, rs = cRQ+(n & 1), QOFF, 64
        else: a, o, rs = cRW+(n & 1), (GOFF if n < 4 else UOFF) + 128, 192
        return tr(cW+4*n, a, o+32*k2*rs) + tr(cW+4*n+2, a, o+(32*k2+4)*rs)
    def xrd(k2): return [f"ds_read_b128 {vr(cX[k2]+4*u,4)}, v{cRX+k2} offset:{2048*u}" for u in range(4)]
    def mm(n, k2):
        r = [mfma16(cA+4*nf*u+4*n, cW+4*n, cX[k2]+4*u) for u in range(4)]
        if not heavy and (n & 1) == var: r.append(mfma16(cCs+4*(n >> 1), cW+4*n, cO))
        return r
    N = 10 if heavy else 8
    e("s_barrier")
    stamp(12)
    for x in xrd(0) + sum([wrd(n, 0) for n in range(nf)], []): e(x)
    e(f"s_waitcnt lgkmcnt(0)\n.p2align 3\nLc_{tag}:")
    pend = xrd(1)
    for n in range(nf):
        e(f"s_waitcnt lgkmcnt({N})")
        for x in interleave(mm(n, 0), pend): e(x)
        pend = wrd(n, 1)
    adr = [f"v_add_u32 v{r}, s{sDl}, v{r}" for r in [cRX, cRX+1, cRW, cRW+1] + ([] if heavy else [cRQ, cRQ+1])]
    for n in range(nf):
        if n < 2: e(f"s_waitcnt lgkmcnt({N})")
        if n == 0: pend = pend + [rot_delta(), f"s_add_u32 s{sSt}, s{sSt}, 1"]
        if n == 1: pend = adr
        if n == 2:
            e(f"s_waitcnt lgkmcnt(0)\n{tk(None)}\ns_barrier\n{tk(81)}")
            pend = xrd(0) + wrd(0, 0) + wrd(1, 0)
        for x in interleave(mm(n, 1), pend): e(x)
        pend = wrd(n, 0)
    for x in pend: e(x)
    e(f"s_cmp_lt_u32 s{sSt}, 8\ns_cbranch_scc1 Lc_{tag}")
    tkout()
def h_base(du_add):
    e(f"""s_lshl_b32 s{sT0}, s{sI}, 2
    s_and_b32 s{sT1}, s{sW}, 1
    s_lshl_b32 s{sT1}, s{sT1}, 1
    s_add_u32 s{sT0}, s{sT0}, s{sT1}
    s_mul_i32 s{sT0}, s{sT0}, 88
    s_mul_i32 s{sT1}, s{sJ}, 3
    s_min_u32 s{sT1}, s{sT1}, 40""")
    for k, (dst, add) in enumerate(du_add):
        e(f"""s_add_u32 s{sT3}, s{sT1}, {add}
        s_lshr_b32 s{dst}, s{sT3}, 1
        s_add_u32 s{dst}, s{dst}, s{sT0}
        s_and_b32 s{sT3}, s{sT3}, 1
        s_mul_i32 s{sT3}, s{sT3}, 44
        s_add_u32 s{dst}, s{dst}, s{sT3}
        s_lshl_b32 s{dst}, s{dst}, 10
        s_add_u32 s{dst}, s{dst}, {HIMG}""")
    e(f"""v_mul_u32_u24 v{vT2}, {22*1024}, v{vH}
    v_bfe_u32 v{vT0}, v{vLane}, 4, 1
    v_lshl_add_u32 v{vT2}, v{vT0}, 9, v{vT2}
    v_and_b32 v{vT0}, 15, v{vLane}
    v_lshl_add_u32 v{vT2}, v{vT0}, 4, v{vT2}""")
def epi_addr():
    e(f"""v_and_b32 v{vT3}, 48, v{vLane}
    v_add_u32 v{vT3}, {CSUM}, v{vT3}
    s_and_b32 s{sT0}, s{sW}, 1
    s_lshl_b32 s{sT0}, s{sT0}, 10
    s_add_u32 s{sT0}, s{sT0}, {STATM}
    v_and_b32 v{vT1}, 15, v{vLane}
    v_lshl_add_u32 v{vT1}, v{vT1}, 4, s{sT0}""")
eC, eK, eT = 8, 40, 56
comp_loop("h", 0)
stamp(1)
h_base([(sC0, 0), (sC1, 1)])
epi_addr()
e("s_waitcnt vmcnt(0) lgkmcnt(0)\ns_barrier")
for u in range(4): e(f"ds_read_b128 {vr(eK+4*u,4)}, v{vT1} offset:{256*u}")
for n in range(8): e(f"ds_read_b128 {vr(eC+4*n,4)}, v{vT3} offset:{64*n}")
e("s_waitcnt lgkmcnt(0)")
for u in range(4):
    g = cA+32*u
    gelu_tile(g, g+16, eC, eC+16, eK+4*u, eT)
    if u == 2: e(f"s_add_u32 s{sC0}, s{sC0}, {88*1024}\ns_add_u32 s{sC1}, s{sC1}, {88*1024}")
    e(f"buffer_store_dwordx4 {vr(g,4)}, v{vT2}, {sr(SWS,4)}, s{sC0} offen offset:{256*(u&1)} sc1")
    e(f"buffer_store_dwordx4 {vr(g+4,4)}, v{vT2}, {sr(SWS,4)}, s{sC1} offen offset:{256*(u&1)} sc1")
e("s_branch Lp2")
e("Lcl0:"); comp_loop("l", 0); e("s_branch Lcle")
e("Lcl1:"); comp_loop("l", 1)
e("Lcle:")
stamp(1)
h_base([(sC0, 2)])
e(f"s_and_b32 s{sT1}, s{sW}, 1\ns_lshl_b32 s{sT1}, s{sT1}, 6\ns_add_u32 s{sT1}, s{sT1}, {CSUM+512}")
cs16_write([cCs, cCs+4, cCs+8], sT1, 128)
epi_addr()
e("s_waitcnt vmcnt(0) lgkmcnt(0)\ns_barrier")
for u in range(4): e(f"ds_read_b128 {vr(eK+4*u,4)}, v{vT1} offset:{256*u}")
for n in range(6): e(f"ds_read_b128 {vr(eC+4*n,4)}, v{vT3} offset:{512+64*n}")
e(f"""s_and_b32 s{sT0}, s{sW}, 1
s_lshl_b32 s{sT0}, s{sT0}, 12
s_add_u32 s{sT0}, s{sT0}, {QIMG}
v_bfe_u32 v{vT0}, v{vLane}, 4, 1
v_lshlrev_b32 v{vT0}, 9, v{vT0}
v_lshl_add_u32 v{vT0}, v{vH}, 3, v{vT0}
v_and_b32 v{vT1}, 15, v{vLane}
v_lshl_add_u32 v{vT0}, v{vT1}, 4, v{vT0}
v_add_u32 v{vT0}, s{sT0}, v{vT0}
s_waitcnt lgkmcnt(0)""")
for u in range(4):
    q = cA+24*u
    e(f"v_mul_f32 v{eT}, {f2u(0.25*1.4426950408889634/C1):#x}, v{eK+4*u+1}")
    lin_fold(q, eC, eK+4*u, eT, 8)
    for p in range(4): e(f"v_cvt_pk_bf16_f32 v{q+p}, v{q+2*p}, v{q+2*p+1}")
    for hd in range(2): e(f"ds_write_b64 v{vT0}, {vr(q+2*hd,2)} offset:{2048*(u>>1)+1024*hd+256*(u&1)}")
for u in range(4):
    g = cA+24*u+8
    gelu_tile(g, g+8, eC+8, eC+16, eK+4*u, eT, 8)
    if u == 2: e(f"s_add_u32 s{sC0}, s{sC0}, {88*1024}")
    e(f"buffer_store_dwordx4 {vr(g,4)}, v{vT2}, {sr(SWS,4)}, s{sC0} offen offset:{256*(u&1)} sc1")
e("s_branch Lp2")

def cs_write(acc, slot_expr_sreg):
    e(f"""v_and_b32 v{vT0}, 1, v{vLane}
    v_lshlrev_b32 v{vT0}, 6, v{vT0}
    v_lshrrev_b32 v{vT1}, 4, v{vLane}
    v_lshl_add_u32 v{vT0}, v{vT1}, 4, v{vT0}
    v_add_u32 v{vT0}, {slot_expr_sreg}, v{vT0}
    s_mov_b32 exec_lo, 0x00030003
    s_mov_b32 exec_hi, 0x00030003
    ds_write_b128 v{vT0}, {vr(acc,4)}
    s_mov_b64 exec, -1""")
e("Lkvcu:\ns_setprio 0")
WKV = 131072
vXf, vWk = 32, 192
sXb = sMw
e(f"""s_lshl_b32 s{sT0}, s{sW}, 11
s_add_u32 m0, s{sT0}, {WKV}
s_lshl_b32 s{sXb}, s{sW}, 14
buffer_load_dwordx4 v{vL16}, {sr(SWV,4)}, s{sT0} offen lds
buffer_load_dwordx4 v{vL16}, {sr(SWV,4)}, s{sT0} offen offset:1024 lds
s_add_u32 m0, s{sT0}, {WKV+16384}
s_lshr_b32 s{sT3}, s{sW}, 2
buffer_load_dwordx4 v{vL16}, {sr(SWK,4)}, s{sT0} offen lds
buffer_load_dwordx4 v{vL16}, {sr(SWK,4)}, s{sT0} offen offset:1024 lds
s_lshl_b32 s{sT0}, s{sT3}, 9
s_add_u32 s{sXo}, s{sXo}, s{sT0}""")
def kvx_dma(c):
    return [f"""s_add_u32 m0, s{sXb}, {4096*c+2048*hf}
        s_add_u32 s{sT0}, s{sXo}, {128*c+16384*hf}
        buffer_load_dwordx4 v{vXa0}, {sr(SX,4)}, s{sT0} offen lds
        buffer_load_dwordx4 v{vXa1}, {sr(SX,4)}, s{sT0} offen offset:1024 lds""" for hf in range(2)]
for x in kvx_dma(0): e(x)
e(tag_issue())
for x in kvx_dma(1): e(x)
e(f"""v_and_b32 v{vT0}, 31, v{vLane}
v_lshrrev_b32 v{vT1}, 1, v{vT0}
v_and_b32 v{vT1}, 7, v{vT1}
v_xor_b32 v{vT1}, v{vT1}, v{vH}
v_lshlrev_b32 v{vT0}, 7, v{vT0}
v_add_u32 v{vT0}, s{sXb}, v{vT0}""")
for ks in range(4):
    e(f"v_xor_b32 v{vT2}, {2*ks}, v{vT1}\nv_lshl_add_u32 v{vRX+ks}, v{vT2}, 4, v{vT0}")
e(f"""v_bfe_u32 v{vT0}, v{vLane}, 2, 2
v_lshl_add_u32 v{vT0}, v{vH}, 3, v{vT0}
v_bfe_u32 v{vT1}, v{vLane}, 4, 1
v_and_b32 v{vT2}, 3, v{vLane}
v_lshlrev_b32 v{vT2}, 3, v{vT2}
v_lshl_add_u32 v{vT3}, v{vT1}, 5, v{vT2}
v_lshl_add_u32 v{vRQ}, v{vT0}, 6, v{vT3}
v_lshlrev_b32 v{vT1}, 14, v{vT1}
v_lshl_add_u32 v{vRW}, v{vT0}, 5, v{vT2}
s_lshr_b32 s{sT0}, s{sW}, 2
s_lshl_b32 s{sT0}, s{sT0}, 13
s_add_u32 s{sT1}, s{sT0}, {WKV}
v_add3_u32 v{vRW}, v{vRW}, v{vT1}, s{sT1}
s_add_u32 s{sT1}, s{sT1}, s{sT0}
v_add_u32 v{vRQ}, s{sT1}, v{vRQ}
v_lshrrev_b32 v{vT0}, 2, v{vLane}
v_lshlrev_b32 v{vT0}, 10, v{vT0}
v_and_b32 v{vT1}, 3, v{vLane}
v_lshl_add_u32 v{vQa}, v{vT1}, 4, v{vT0}
v_bfe_u32 v{vT0}, v{vLane}, 4, 1
v_and_b32 v{vT1}, 15, v{vLane}
v_cmp_eq_u32 vcc, v{vT0}, v{vT1}
v_mov_b32 v{vT2}, 0x3f803f80
s_nop 0
v_cndmask_b32 v{vSel}, 0, v{vT2}, vcc""")
for k in range(1, 4): e(f"v_mov_b32 v{vSel+k}, v{vSel}")
for r in range(vCs, vCs+4): e(f"v_mov_b32 v{r}, 0")
tag_wait("k", 4)
e(f"s_cmp_lt_u32 s{sW}, 4\ns_cbranch_scc1 Lkvr1")
rowstat_finish()
e("Lkvr1:\ns_barrier")
stamp(12)
def kv_reads(c):
    r = []
    for ks in range(4):
        W = vWk + 16*(c & 1) + 4*ks
        r += [f"ds_read_b128 {vr(vXf+16*c+4*ks,4)}, v{vRX+ks} offset:{4096*c}"]
        r += tr(W, vRW, (64*c+16*ks)*32) + tr(W+2, vRW, (64*c+16*ks+4)*32)
    return r
def kstat_issue():
    return f"buffer_load_dwordx4 {vr(vSt,4)}, v{vWa0}, {sr(SWS,4)}, s{sC1} offen sc1"
for x in kv_reads(0) + kvx_dma(2) + kvx_dma(3): e(x)
e(f"""v_and_b32 v{vWa0}, 31, v{vLane}
v_lshlrev_b32 v{vWa0}, 4, v{vWa0}
s_lshl_b32 s{sT0}, s{sI}, 2
s_add_u32 s{sT0}, s{sT0}, s{sW4}
s_mul_i32 s{sC0}, s{sT0}, {KVT}
s_lshl_b32 s{sC1}, s{sT0}, 9
s_add_u32 s{sC1}, s{sC1}, {STATG}""")
for c in range(4):
    m = []
    for ks in range(4):
        X = vXf+16*c+4*ks; W = vWk + 16*(c & 1) + 4*ks
        z = "0" if c == 0 and ks == 0 else None
        m += [mfma(vAcc+16, W, X, z), mfma16(vCs, W, vSel), mfma(vAcc+32, X, W, z)]
    e("s_waitcnt lgkmcnt(0)")
    if c < 3:
        for x in m[:3] + [f"s_waitcnt vmcnt({8-4*c})"] + interleave(m[3:9], kv_reads(c+1)) + m[9:]: e(x)
    else:
        e(kstat_issue())
        for x in m: e(x)
stamp(1)
e(f"""v_and_b32 v{vT2}, 31, v{vLane}
v_lshlrev_b32 v{vT2}, 2, v{vT2}
s_xor_b32 s{sT2}, s{sXb}, 65536
s_add_u32 s{sT1}, s{sXb}, 4352
s_lshl_b32 s{sQo}, s{sW}, 16
s_add_u32 s{sQo}, s{sQo}, {64*15}
s_lshl_b32 s{sMq}, s{sW}, 12
s_add_u32 s{sMq}, s{sMq}, {WKV}""")
cs_write(vCs, f"s{sT1}")
e(f"""v_add_u32 v{vT0}, s{sXb}, v{vL16}
v_add_u32 v{vWa1}, s{sT2}, v{vL16}
v_add_u32 v{vWa2}, s{sT2}, v{vT2}
v_lshl_add_u32 v{vT3}, v{vH}, 4, s{sXb}
s_cmp_ge_u32 s{sW}, 4
s_cbranch_scc1 LkvH""")
def wq_dma():
    for k in range(4):
        e(f"s_add_u32 m0, s{sMq}, {1024*k}\ns_add_u32 s{sT0}, s{sQo}, {16384*k}\nbuffer_load_dwordx4 v{vQa}, {sr(SWQ,4)}, s{sT0} offen lds")
def kstat_wait(tag):
    e(f"""s_mov_b32 s{sT0}, 0
    s_waitcnt vmcnt(4)
    Lks_{tag}:
    v_cmp_ne_u64 vcc, s[{sNo}:{sNo+1}], {vr(vSt+2,2)}
    s_add_u32 s{sT0}, s{sT0}, 1
    s_cmp_ge_u32 s{sT0}, 100000
    s_cbranch_vccz Lksd_{tag}
    s_cbranch_scc1 Lksd_{tag}
    {kstat_issue()}
    s_waitcnt vmcnt(0)
    s_branch Lks_{tag}
    Lksd_{tag}:""")
for q in range(4): e(f"ds_write_b128 v{vT0}, {vr(vAcc+32+4*q,4)} offset:{1024*q}")
e(f"v_xor_b32 v{vT1}, 0x10000, v{vT3}\ns_waitcnt lgkmcnt(0)\ns_barrier")
e(f"""ds_read_b128 {vr(vWk,4)}, v{vWa1}
ds_read_b128 {vr(vWk+4,4)}, v{vWa1} offset:1024
ds_read_b128 {vr(vSt+12,4)}, v{vT3} offset:{4352+64}
ds_read_b128 {vr(vSt+16,4)}, v{vT3} offset:{4352+96}
ds_read_b128 {vr(vWk+8,4)}, v{vT1} offset:{4352+64}
ds_read_b128 {vr(vWk+12,4)}, v{vT1} offset:{4352+96}""")
wq_dma()
e(f"""v_and_b32 v{vT0}, 0x33, v{vLane}
v_bfe_u32 v{vT1}, v{vLane}, 2, 1
v_lshl_or_b32 v{vT0}, v{vT1}, 3, v{vT0}
v_bfe_u32 v{vT1}, v{vLane}, 3, 1
v_lshl_or_b32 v{vT0}, v{vT1}, 2, v{vT0}
v_lshlrev_b32 v{vT0}, 4, v{vT0}
s_waitcnt lgkmcnt(0)""")
for p in range(0, 8, 2):
    e(pk("v_pk_add_f32", vAcc+24+p, [('p', vAcc+24+p), ('p', vWk+p)]))
    e(pk("v_pk_add_f32", vSt+12+p, [('p', vSt+12+p), ('p', vWk+8+p)]))
kstat_wait("l")
e(f"v_sub_f32 v{vSt+4}, 0, v{vSt}")
lin_fold(vAcc+24, vSt+12, vSt+4, vSt+1, 8)
for p in range(4): e(f"v_cvt_pk_bf16_f32 v{vAcc+16+p}, v{vAcc+24+2*p}, v{vAcc+25+2*p}")
e(f"buffer_store_dwordx4 {vr(vAcc+16,4)}, v{vT0}, {sr(SWS,4)}, s{sC0} offen sc1\ns_branch LkvS")
e("LkvH:")
e(f"ds_write_b128 v{vT0}, {vr(vAcc+24,4)}\nds_write_b128 v{vT0}, {vr(vAcc+28,4)} offset:1024")
e(f"v_add_u32 v{vT1}, s{sXb}, v{vT2}\ns_waitcnt lgkmcnt(0)\ns_barrier")
e(f"ds_read_b32 v{vSt+6}, v{vT1} offset:4352\nds_read_b32 v{vSt+7}, v{vWa2} offset:4352")
for q in range(4): e(f"ds_read_b128 {vr(vAcc+48+4*q,4)}, v{vWa1} offset:{1024*q}")
wq_dma()
kstat_wait("h")
e(f"ds_write_b32 v{vT1}, v{vSt} offset:4608\nds_write_b32 v{vT1}, v{vSt+1} offset:4736\ns_waitcnt lgkmcnt(0)")
for q in range(4):
    e(f"ds_read_b128 {vr(vWk+4*q,4)}, v{vT3} offset:{4608+32*q}\nds_read_b128 {vr(vWk+16+4*q,4)}, v{vT3} offset:{4736+32*q}")
e(f"v_add_f32 v{vSt+6}, v{vSt+6}, v{vSt+7}\nv_sub_f32 v{vSt+6}, 0, v{vSt+6}")
for p in range(0, 16, 2): e(pk("v_pk_add_f32", vAcc+32+p, [('p', vAcc+32+p), ('p', vAcc+48+p)]))
e("s_waitcnt lgkmcnt(0)")
for p in range(0, 16, 2): e(pk("v_pk_fma_f32", vAcc+32+p, [('p', vWk+p), ('b', vSt+6), ('p', vAcc+32+p)]))
for p in range(0, 16, 2): e(pk("v_pk_mul_f32", vAcc+32+p, [('p', vAcc+32+p), ('p', vWk+16+p)]))
for p in range(8): e(f"v_cvt_pk_bf16_f32 v{vAcc+32+p}, v{vAcc+32+2*p}, v{vAcc+33+2*p}")
v_lane_addr(vT0)
for p in range(8): e(f"v_mov_b32 v{vAcc+32+p}, 0x3f803f80")
e(f"""s_mov_b32 exec_lo, 0x1ffff
s_mov_b32 exec_hi, 0xffff
buffer_store_dwordx4 {vr(vAcc+32,4)}, v{vT0}, {sr(SWS,4)}, s{sC0} offen offset:1024 sc1
buffer_store_dwordx4 {vr(vAcc+36,4)}, v{vT0}, {sr(SWS,4)}, s{sC0} offen offset:{1024+528} sc1
s_mov_b64 exec, -1
LkvS:""")
for r in range(4): e(f"v_mov_b32 v{vCs+r}, 0")
e(f"s_lshl_b32 s{sT2}, s{sI}, 7\ns_add_u32 s{sT2}, s{sT2}, {KFLG}\ns_waitcnt vmcnt(0)\ns_barrier")
flag_set(sT2, "kv")
stamp(13)
early_init()
def q_reads(c):
    r = []
    for ks in range(4):
        W = vWk + 16*(c & 1) + 4*ks
        r += tr(W, vRQ, (64*c+16*ks)*64) + tr(W+2, vRQ, (64*c+16*ks+4)*64)
    return r
for x in q_reads(0): e(x)
for c in range(4):
    m = []
    for ks in range(4):
        X = vXf+16*c+4*ks; W = vWk + 16*(c & 1) + 4*ks
        m += [mfma(vAcc, W, X, "0" if c == 0 and ks == 0 else None), mfma16(vCs, W, vSel)]
    e("s_waitcnt lgkmcnt(0)")
    for x in interleave(m[:4], q_reads(c+1) if c < 3 else []) + m[4:]: e(x)
e(f"""s_or_b32 s{sT2}, s{sXb}, {65536+8192}
s_lshr_b32 s{sT3}, s{sW}, 2
s_lshl_b32 s{sT3}, s{sT3}, 7
s_add_u32 s{sT1}, s{sT2}, s{sT3}
s_add_u32 s{sT1}, s{sT1}, 4096
v_add_u32 v{vWa1}, s{sT2}, v{vL16}
v_lshl_add_u32 v{vT3}, v{vH}, 4, s{sT2}
s_nop 3""")
cs_write(vCs, f"s{sT1}")
e(f"s_cmp_ge_u32 s{sW}, 4\ns_cbranch_scc1 LkvH2\ns_waitcnt lgkmcnt(0)\ns_barrier")
for q in range(4): e(f"ds_read_b128 {vr(vWk+4*q,4)}, v{vWa1} offset:{1024*q}")
cs_read(vAcc+48, 4096); cs_read(vWk+16, 4096+128)
e("s_waitcnt lgkmcnt(0)")
for p in range(0, 16, 2):
    e(pk("v_pk_add_f32", vAcc+p, [('p', vAcc+p), ('p', vWk+p)]))
    e(pk("v_pk_add_f32", vAcc+48+p, [('p', vAcc+48+p), ('p', vWk+16+p)]))
q_epilogue(vAcc+48)
e("s_branch Lp2\nLkvH2:")
for q in range(4): e(f"ds_write_b128 v{vWa1}, {vr(vAcc+4*q,4)} offset:{1024*q}")
e(f"s_mov_b32 s{sKf}, {KFLG}")
e(flags_issue(sKf))
e("s_waitcnt lgkmcnt(0)\ns_barrier")
e("Lkvwait:")
stamp(16)
flags_wait(sKf, "kv", 0)
stamp(17)
kv_dma("b")
e("s_waitcnt vmcnt(0)")

vm = []
def vtag(tag): vm.append(tag)
def vwait_s(tag):
    idx = max(i for i, t in enumerate(vm) if t == tag)
    return f"s_waitcnt vmcnt({min(63, len(vm)-1-idx)})"
def w_dma(G):
    srdw, row = (SWD, 64*G) if G < 22 else (SWO, 64*(G-22))
    return [f"s_add_u32 m0, s{sDm}, {GSLOT[G]}", f"s_add_u32 s{sT0}, s{sDo}, {row*1024}",
            (f"g{G}", f"buffer_load_dwordx4 v{vDa}, {sr(srdw,4)}, s{sT0} offen lds")]
def w_reads(G, F):
    a = GSLOT[G]; win = a // 0xe000; off = a - win*0xe000
    r0, r1 = vRd+2*win, vRd+2*win+1
    d = 2048 if G < 22 else 1024
    return tr(F, r0, off) + tr(F+2, r0, off+d) + tr(F+4, r1, off) + tr(F+6, r1, off+d)
def emit_seq(seq):
    for x in seq:
        if isinstance(x, list): emit_seq(x)
        elif isinstance(x, tuple): vtag(x[0]); e(x[1])
        elif callable(x): e(x())
        else: e(x)
e("Lp2:")
stamp(2)
sentinel(vC); vtag("sent")
e(f"s_add_u32 s{sT0}, s{sDm}, {QIMG}\nv_add_u32 v{vAq}, s{sT0}, v{vL16}")
e("s_waitcnt lgkmcnt(0)\ns_barrier")
stamp(3)
e(f"""ds_read_b128 {vr(vQ,4)}, v{vAq}
ds_read_b128 {vr(vKf[0],4)}, v{vAk}
ds_read_b128 {vr(vKf[1],4)}, v{vAk} offset:{KVT}
ds_read_b128 {vr(vVl[0],4)}, v{vAv}
s_waitcnt lgkmcnt(2)""")
e(mfma(vS[0], vKf[0], vQ, "0"))
e("s_nop 11")
e(f"v_max3_f32 v{vT1}, v{vS[0]}, v{vS[0]+1}, v{vS[0]+2}")
for p in range(3, 15, 2): e(f"v_max3_f32 v{vT1}, v{vT1}, v{vS[0]+p}, v{vS[0]+p+1}")
e(f"""v_max_f32 v{vT1}, v{vT1}, v{vS[0]+15}
v_mov_b32 v{vT2}, v{vT1}
s_nop 1
v_permlane32_swap_b32 v{vT1}, v{vT2}
s_nop 1
v_max_f32 v{vT1}, v{vT1}, v{vT2}""")
for r in range(16): e(f"v_sub_f32 v{vC+r}, 0, v{vT1}")
for r in range(16): e(f"v_sub_f32 v{vS[0]+r}, v{vS[0]+r}, v{vT1}")
stamp(5)
side = {T: [] for T in range(64)}
xm = {T: [] for T in range(65)}
for n in range(12):
    side[n].append([f"s_add_u32 s{sT0}, s{sDm}, {(36+8*n)*1024}", f"s_mov_b32 m0, s{sT0}", "s_nop 0",
                    ("kv", f"buffer_load_dwordx4 v{vL16}, {sr(SWS,4)}, s{sT0} offen sc1 lds")])
for T0, dt, Gs in ((16, 2, range(0, 7)), (33, 3, range(7, 11)), (48, 1, range(11, 22))):
    for n, G in enumerate(Gs): side[T0 + dt*n].append(w_dma(G))
side[21].append([f"v_lshlrev_b32 v{vT3}, 10, v{vLane}", f"s_lshl_b32 s{sT1}, s{sW}, 16", f"s_lshl_b32 s{sT0}, s{sCS}, 7",
                 f"s_add_u32 s{sT1}, s{sT1}, s{sT0}", ("t", f"buffer_load_dword v{vT2}, v{vT3}, {sr(SWO,4)}, s{sT1} offen")])
HPT = 28
pollidx = []
side[HPT].append([f"s_cmp_lg_u32 s{sW}, 0", "s_cbranch_scc1 Lnohp", h_poll_issue(), lambda: (pollidx.append(len(vm)), "Lnohp:")[1]])
for i in range(22):
    T = 32 + (i*30)//22
    c = [f"s_add_u32 s{sC0}, s{sHo}, {1024*i}"] if i % 4 == 0 else []
    side[T].append(c + [(f"h{i}", f"buffer_load_dwordx4 {vr(vHf+4*i,4)}, v{vL16}, {sr(SWS,4)}, s{sC0} offen offset:{1024*(i%4)} sc1")])
side[46].append([("x", f"buffer_load_dwordx4 {vr(vHf,4)}, v{vRa}, {sr(SX,4)}, s{sXf} offen")])
lastm = {}
for T0, span, Gs in ((35, 13, range(0, 7)), (50, 12, range(7, 11))):
    k = len(Gs)
    for n, G in enumerate(Gs):
        F = vWf[G % 3]
        t0 = T0 + (2*n*span)//(2*k); t1 = T0 + ((2*n+1)*span)//(2*k)
        lastm[G] = t1+1
        assert G < 3 or t0 > lastm[G-3]
        for x in w_reads(G, F): side[t0].append([x])
        c0 = "0" if G == 0 else None
        w = (lambda g=G: vwait_s(f"h{g}"))
        xm[t0+1].append([w, mfma(vAf[0], F, vHf+4*G, c0)]); xm[t1+1].append([mfma(vAf[1], F+4, vHf+4*G, c0)])
def last_txt(c): return c[-1][1] if isinstance(c[-1], tuple) else c[-1]
def last_tag(c): return c[-1][0] if isinstance(c[-1], tuple) else ""
if "--dx" in sys.argv:
    dx = sys.argv[sys.argv.index("--dx")+1]
    vm += ["kv", "g6", "g8", "g14", "g21"] + [f"h{i}" for i in range(22)]
    for T in range(64):
        if "w" in dx: side[T] = [c for c in side[T] if not last_tag(c).startswith("g")]
        if "h" in dx: side[T] = [c for c in side[T] if not last_tag(c).startswith("h")]
        if "r" in dx: side[T] = [c for c in side[T] if "ds_" not in last_txt(c)]
        if "k" in dx: side[T] = [c for c in side[T] if last_tag(c) != "kv"]
        if "m" in dx: xm[T] = []
PRI = int(sys.argv[sys.argv.index("--pri")+1]) if "--pri" in sys.argv else 2
lastg = {16: "kv", 32: "g6", 48: "g10"}
for T in range(64):
    X = vS[T & 1]; Y = vS[(T+1) & 1]
    rel = T % 16
    e("s_waitcnt lgkmcnt(0)")
    if T in lastg:
        if "--abar" in sys.argv: stamp(32+3*list(lastg).index(T))
        e(vwait_s(lastg[T]))
        if T == 32:
            e(f"""s_cmp_lg_u32 s{sW}, 0
            s_cbranch_scc1 Lhok
            s_mov_b32 s{sT0}, 0
            s_waitcnt vmcnt({len(vm)-pollidx[0]})
            Lhp:
            v_cmp_ne_u64 vcc, s[{sNo}:{sNo+1}], {vr(vPoll,2)}
            s_add_u32 s{sT0}, s{sT0}, 1
            s_cmp_ge_u32 s{sT0}, 100000
            s_cbranch_vccz Lhok
            s_cbranch_scc1 Lhok
            s_sleep 4
            {h_poll_issue()}
            s_waitcnt vmcnt(0)
            s_branch Lhp
            Lhok:""")
        if "--abar" in sys.argv: stamp(33+3*list(lastg).index(T))
        e("s_barrier")
        if "--abar" in sys.argv: stamp(34+3*list(lastg).index(T))
        if T == 16:
            e(f"""s_cmp_lg_u32 s{sW}, 0
            s_cbranch_scc1 Lsig_h
            v_mov_b32 v{vPoll}, s{sNo}
            v_mov_b32 v{vPoll+1}, s{sNo+1}
            s_mov_b64 exec, 1
            buffer_store_dwordx2 {vr(vPoll,2)}, off, {sr(SWS,4)}, s{sHs} sc1
            s_mov_b64 exec, -1
            Lsig_h:""")
    if T and rel == 0: e(f"v_add_u32 v{vAk}, {16*KVT}, v{vAk}\nv_add_u32 v{vAv}, {16*KVT}, v{vAv}")
    seg0 = max([0] + [t for t in lastg if t <= T]); seg1 = min([64] + [t for t in lastg if t > T])
    if PRI == 2:
        if (seg1 - T) % 2 == 0: e(f"s_setprio {((seg1-T)//2 - 1) % 4}")
    ex = [f"v_exp_f32 v{X+i}, v{X+i}" for i in range(16)]
    rd = [f"ds_read_b128 {vr(vVh,4)}, v{vAv} offset:{rel*KVT+528}"]
    if T+1 < 64: rd.append(f"ds_read_b128 {vr(vVl[(T+1)&1],4)}, v{vAv} offset:{(rel+1)*KVT}")
    if T+2 < 64: rd.append(f"ds_read_b128 {vr(vKf[T&1],4)}, v{vAk} offset:{(rel+2)*KVT}")
    seq = ex[0:2] + ([smf(vO, vVh, Y+8, vIdx)] if T else []) + interleave(ex[2:5], rd)
    if T+1 < 64: seq.append(mfma(Y, vKf[(T+1) & 1], vQ, vr(vC, 16)))
    x2 = xm[T]
    assert len(x2) <= 2
    if len(x2) == 2: tail = ex[5:8] + [x2[0]] + ex[8:11] + [smf(vO, vVl[T & 1], X, vIdx)] + ex[11:14] + [x2[1]] + ex[14:16]
    else: tail = ex[5:10] + [smf(vO, vVl[T & 1], X, vIdx)] + ex[10:14] + x2 + ex[14:16]
    if "--nord" in sys.argv and T > 2: seq = [x for x in seq if "ds_read" not in x]
    if side[T]: tail = interleave(tail[:-3], side[T]) + tail[-3:]
    emit_seq(seq + tail)
assert not xm[64]
e("s_waitcnt lgkmcnt(0)\ns_nop 0")
e(smf(vO, vVh, vS[1]+8, vIdx))
e(f"s_mov_b32 s{sRetry}, 0")
e("Lfin:")
e(f"""s_nop 9
s_mov_b32 s{sC0}, {f2u(2.0**40):#x}
s_mov_b32 s{sC1}, {f2u(2.0**126):#x}
v_rcp_f32 v{vO+10}, v{vO+8}
v_max3_f32 v{vT1}, abs(v{vO}), abs(v{vO+1}), abs(v{vO+2})
v_max3_f32 v{vT1}, v{vT1}, abs(v{vO+3}), abs(v{vO+4})
v_max3_f32 v{vT1}, v{vT1}, abs(v{vO+5}), abs(v{vO+6})
v_max_f32 v{vT1}, v{vT1}, abs(v{vO+7})
v_cmp_nlt_f32 vcc, v{vO+8}, s{sC0}
v_cmp_nlt_f32 s[{sEx}:{sEx+1}], v{vT1}, s{sC1}""")
for p in range(8): e(f"v_mul_f32 v{vO+p}, v{vO+p}, v{vO+10}")
e(f"s_or_b64 vcc, vcc, s[{sEx}:{sEx+1}]")
for p in range(4): e(f"v_cvt_pk_bf16_f32 v{vO+p}, v{vO+2*p}, v{vO+2*p+1}")
for p in range(4): e(f"v_min_u32 v{vO+p}, -2, v{vO+p}")
e("s_cbranch_vccnz Lfallback\nLok:" if "--noside" not in sys.argv and "--dx" not in sys.argv else "Lok:")
emit_seq([("o", f"buffer_store_dwordx4 {vr(vO,4)}, v{vL16}, {sr(SWS,4)}, s{sOp} offen sc1")])
stamp(6)

def o_loads():
    for k in range(8):
        e(f"buffer_load_dwordx4 {vr(vOf+4*k,4)}, v{vL16}, {sr(SWS,4)}, s{sOc if k<4 else sOc2} offen offset:{1024*(k%4)} sc1")
def reduce_read(acc, off=0):
    return [f"ds_read_b128 {vr(acc+4*q,4)}, v{vRr} offset:{off+2048*(q//2)+1024*(q%2)}" for q in range(8)]
def reduce_write(acc, off=0):
    return [f"ds_write_b128 v{vRw}, {vr(acc+4*q,4)} offset:{off+ASL*(q//2)+1024*(q%2)}" for q in range(8)]
e(vwait_s("g21"))
e("s_setprio 0\ns_barrier")
stamp(8)
for x in w_reads(11, vWf[11 % 3]) + w_reads(12, vWf[12 % 3]): e(x)
for G in range(11, 22):
    F = vWf[G % 3]
    e("s_waitcnt lgkmcnt(4)" if G < 21 else "s_waitcnt lgkmcnt(0)")
    post = w_reads(G+2, vWf[(G+2) % 3]) if G+2 <= 21 else []
    if G < 15: post = post + [w_dma(22+2*(G-11)), w_dma(23+2*(G-11))]
    if G == 16: post = post + sum([[f"v_lshlrev_b32 v{vXr+2*p}, 16, v{vHf+p}", f"v_and_b32 v{vXr+1+2*p}, 0xffff0000, v{vHf+p}"] for p in range(4)], [])
    e(vwait_s(f"h{G}"))
    if G == 20: post = post + [f"v_add_u32 v{vRd+r}, s{sWd}, v{vRd+r}" for r in range(6)]
    if G == 21:
        tstamp(18); e(vwait_s("g29")); tstamp(19); e("s_barrier"); tstamp(20)
        e(f"s_cmp_ge_u32 s{sKq}, 2\ns_cbranch_scc1 Lskip21")
    emit_seq(interleave([mfma(vAf[0], F, vHf+4*G), mfma(vAf[1], F+4, vHf+4*G)], post))
e("Lskip21:")
WOF = [168+8*k for k in range(6)] + [vWf[1], vWf[2]]
rdw = sum([w_reads(22+k, WOF[k]) for k in range(8)], [])
ol = [f"buffer_load_dwordx4 {vr(vOf+4*k,4)}, v{vL16}, {sr(SWS,4)}, s{sOc if k<4 else sOc2} offen offset:{1024*(k%4)} sc1" for k in range(8)]
for x in interleave(ol, rdw[:12] + interleave(reduce_write(vAf[0]), rdw[12:])): e(x)
e("s_waitcnt lgkmcnt(0)"); tstamp(22); e("s_barrier")
stamp(9)
tflush()
for x in reduce_read(vAf[0]): e(x)
e(f"s_mov_b32 s{sT0}, 0\ns_waitcnt vmcnt(0)")
f0 = vAf[0]
sil = ["s_waitcnt lgkmcnt(0)"]
sil += sum([[f"v_add_f32 v{f0+p}, v{f0+p}, v{f0+8+p}", f"v_add_f32 v{f0+16+p}, v{f0+16+p}, v{f0+24+p}"] for p in range(8)], [])
sil += [f"v_add_f32 v{f0+p}, v{f0+p}, v{f0+16+p}" for p in range(8)]
sil += [f"v_mul_f32 v{f0+8+p}, {f2u(-1.4426950408889634):#x}, v{f0+p}" for p in range(8)]
sil += [f"v_exp_f32 v{f0+8+p}, v{f0+8+p}" for p in range(8)]
sil2 = [f"v_add_f32 v{f0+8+p}, 1.0, v{f0+8+p}" for p in range(8)]
sil2 += [f"v_rcp_f32 v{f0+8+p}, v{f0+8+p}" for p in range(8)]
sil2 += [f"v_mul_f32 v{f0+p}, v{f0+p}, v{f0+8+p}" for p in range(8)]
for k in range(8):
    B = vOf+4*k
    e(f"""Loc{k}:
    v_max3_u32 v{vT1}, v{B}, v{B+1}, v{B+2}
    v_max_u32 v{vT1}, v{vT1}, v{B+3}
    v_cmp_eq_u32 vcc, -1, v{vT1}
    s_cbranch_vccnz Lor{k}
    Log{k}:""")
    e(mfma(vAs[0], WOF[k], B, "0" if k == 0 else None))
    if k >= 2:
        for x in sil[(k-2)*3:(k-1)*3]: e(x)
stamp(7)
wr = reduce_write(vAs[0], 4*ASL)
m1 = [mfma(vAs[1], WOF[k]+4, vOf+4*k, "0" if k == 0 else None) for k in range(8)]
for x in interleave(m1[:4], sil[18:]) + interleave(m1[4:], wr[:4]) + sil2[:12] + interleave(wr[4:], sil2[12:]): e(x)
stamp(10)
e("s_waitcnt lgkmcnt(0)\ns_barrier")
for x in reduce_read(vAs[0], 4*ASL): e(x)
e("s_waitcnt lgkmcnt(0)")
for p in range(0, 8, 2):
    e(pk("v_pk_add_f32", vAs[0]+p, [('p', vAs[0]+p), ('p', vAs[0]+8+p)]))
    e(pk("v_pk_add_f32", vAs[0]+16+p, [('p', vAs[0]+16+p), ('p', vAs[0]+24+p)]))
for p in range(0, 8, 2): e(pk("v_pk_add_f32", vAs[0]+p, [('p', vAs[0]+p), ('p', vAs[0]+16+p)]))
for p in range(0, 8, 2): e(pk("v_pk_mul_f32", vAs[0]+p, [('p', vAs[0]+p), ('p', vAf[0]+p)]))
e("s_nop 1")
for p in range(4): e(f"v_permlane32_swap_b32 v{vAs[0]+p}, v{vAs[0]+4+p}")
e("s_nop 1")
for p in range(0, 8, 2): e(pk("v_pk_add_f32", vAs[0]+p, [('p', vAs[0]+p), ('p', vXr+p)]))
for p in range(4): e(f"v_cvt_pk_bf16_f32 v{vAs[0]+p}, v{vAs[0]+2*p}, v{vAs[0]+2*p+1}")
e(f"buffer_store_dwordx4 {vr(vAs[0],4)}, v{vRa}, {sr(SOUT,4)}, s{sXf} offen")
if "--busym" in sys.argv:
    e("s_mov_b32 s99, 16\nLbusym:")
    for i in range(16): e(mfma(104+16*(i%2), WOF[i%7]+4*(i//8), vOf+4*((i*3)%8)))
    e("s_sub_u32 s99, s99, 1\ns_cmp_lg_u32 s99, 0\ns_cbranch_scc1 Lbusym")
stamp(11)
if RT: e(f"s_waitcnt vmcnt(0)\ns_memrealtime s[100:101]\ns_waitcnt lgkmcnt(0)\nv_mov_b32 v0, s100\nbuffer_store_dword v0, off, {sr(SWS,4)}, s{sPo} offset:56")
e("Lend:\ns_endpgm")

for k in range(8):
    e(f"""Lor{k}:
    s_add_u32 s{sT0}, s{sT0}, 1
    s_cmp_ge_u32 s{sT0}, 200000
    s_cbranch_scc1 Log{k}""")
    for k2 in range(k, 8):
        e(f"buffer_load_dwordx4 {vr(vOf+4*k2,4)}, v{vL16}, {sr(SWS,4)}, s{sOc if k2<4 else sOc2} offen offset:{1024*(k2%4)} sc1")
    e(f"s_waitcnt vmcnt(0)\ns_branch Loc{k}")
e("Lfallback:")
e(f"""s_cmp_lg_u32 s{sRetry}, 0
s_cbranch_scc1 Lok
s_mov_b32 s{sRetry}, 1
s_mov_b32 s{sSt}, 0
v_mov_b32 v{vT1}, 0xff800000
Lfb1:
buffer_load_dwordx4 {vr(vKf[0],4)}, v{vL16}, {sr(SWS,4)}, s{sSt} offen sc1
s_waitcnt vmcnt(0)""")
e(mfma(vS[0], vKf[0], vQ, "0"))
e("s_nop 11")
for p in range(0, 16, 2): e(f"v_max3_f32 v{vT1}, v{vT1}, v{vS[0]+p}, v{vS[0]+p+1}")
e(f"""s_add_u32 s{sSt}, s{sSt}, {KVT}
s_cmp_lt_u32 s{sSt}, {64*KVT}
s_cbranch_scc1 Lfb1
v_mov_b32 v{vT2}, v{vT1}
s_nop 1
v_permlane32_swap_b32 v{vT1}, v{vT2}
s_nop 1
v_max_f32 v{vT1}, v{vT1}, v{vT2}""")
for r in range(16): e(f"v_sub_f32 v{vC+r}, 0, v{vT1}")
for r in range(12): e(f"v_mov_b32 v{vO+r}, 0")
e(f"""v_subrev_u32 v{vAv}, {48*KVT}, v{vAv}
s_mov_b32 s{sSt}, 0
Lfb2:
buffer_load_dwordx4 {vr(vKf[0],4)}, v{vL16}, {sr(SWS,4)}, s{sSt} offen sc1
buffer_load_dwordx4 {vr(vVl[0],4)}, v{vAv}, {sr(SWS,4)}, s{sSt} offen sc1
buffer_load_dwordx4 {vr(vVh,4)}, v{vAv}, {sr(SWS,4)}, s{sSt} offen offset:528 sc1
s_waitcnt vmcnt(0)""")
e(mfma(vS[0], vKf[0], vQ, vr(vC, 16)))
e("s_nop 11")
for i in range(16): e(f"v_exp_f32 v{vS[0]+i}, v{vS[0]+i}")
e("s_nop 1")
e(smf(vO, vVl[0], vS[0], vIdx)); e(smf(vO, vVh, vS[0]+8, vIdx))
e(f"""s_add_u32 s{sSt}, s{sSt}, {KVT}
s_cmp_lt_u32 s{sSt}, {64*KVT}
s_cbranch_scc1 Lfb2
s_branch Lfin
Lcodeend:""")

L += ['.section .rodata,"a"', ".p2align 6", f".amdhsa_kernel {NAME}_kernel",
      "  .amdhsa_next_free_vgpr 256", "  .amdhsa_next_free_sgpr 102", "  .amdhsa_accum_offset 256",
      "  .amdhsa_group_segment_fixed_size 0", "  .amdhsa_kernarg_size 96", "  .amdhsa_user_sgpr_count 2",
      "  .amdhsa_user_sgpr_kernarg_segment_ptr 1", "  .amdhsa_system_sgpr_workgroup_id_x 1", ".end_amdhsa_kernel"]
open(OUT, "w").write("\n".join(L) + "\n")
print("wrote", OUT, len(L), "lines")
```

```python
import sys, struct
NAME = "recurrent_scan__grouped_kv_mqa__geglu_ffn__prompt"
PROF = "--prof" in sys.argv
OUT = [a for a in sys.argv[1:2] if not a.startswith("--")]
OUT = OUT[0] if OUT else f"cdna_kernels/{NAME}.s"

L = []
def e(s):
    for ln in s.split("\n"):
        if not ln.strip(): continue
        L.append(("    " + ln.strip()) if not ln.strip().endswith(":") else ln.strip())
def f2u(x): return struct.unpack("<I", struct.pack("<f", x))[0]
def vr(a, n): return f"v[{a}:{a+n-1}]"
def sr(a, n): return f"s[{a}:{a+n-1}]"

KVT = 2080
KVIMG = 0
HIMG = 135168
OIMG = HIMG + 64*88*1024
HFLG = OIMG + 64*32*1024
KFLG = HFLG + 256*128
STATG = KFLG + 16*128
PROFO = STATG + 2048*16
WS_BYTES = PROFO + 256*8*256
CNT_KV = 0
KVRDY = 128
STG = 45056
XOFF, GOFF, UOFF, QOFF = 0, 16384, 28672, 40960
STGK, QOFFK, NBK = 24832, 20736, 5
QIMG = 135168
STATM = 160768
CSUM = 162816
MRX = 159744
STL = 163712
FLAG = 163776
LDS_BYTES = 163840
SX, SWQ, SWK, SWV, SWO, SWG, SWD, SOUT, SDBG, SWS = 4, 8, 12, 16, 20, 24, 28, 32, 36, 40
sI, sJ, sW, sW4 = 44, 45, 46, 47
sXo, sWo, sQo, sLb = 48, 49, 50, 51
sMx, sMw, sMq = 52, 53, 54
sSt, sDl, sT0, sT1, sT2, sT3 = 55, 56, 57, 58, 59, 60
sTB, sCS, sRetry, sRb = 61, 62, 63, 3
sEx = 88
sTm = 90
sPo = 92
sC0, sC1, sC2, sC3 = 94, 95, 96, 97
sOp = 98
TOUCH = int("--touch" in sys.argv)
vLane, vH, vT0, vT1, vT2, vT3 = 1, 2, 3, 4, 5, 6
vXa0, vXa1, vWa0, vWa1, vWa2, vQa = 7, 8, 9, 10, 11, 12
vRX = 13
vRW, vRQ = 17, 18
vSel = 20
vCs = 24
vF = 32
vAcc = 96
vSt = 160
vQ = 8; vKf = [12, 16]; vVl = [20, 24]; vVh = 28
vS = [32, 48]; vC = 64
vWf = [80, 88, 96]
vAf = [104, 120]
vHf = 136
vO = 224
vIdx, vAk, vAv, vDa, vL16, vRa = 240, 241, 242, 243, 244, 245
vPoll = 246
vAq = 7
vRd = 248
vRw, vRr = 254, 255
vOf = 136
vAs = [32, 48]
vXr = 64
sKq, sTt, sHo, sDo, sDm, sHc, sXf, sOc, sOc2, sHs = 64, 65, 66, 67, 68, 69, 70, 71, 72, 73
sNo = 86
sRow, sKf, sWd = 63, 85, 83
ASL = 8320
def aslot(n): return ASL*n
SP = [135168, 143360, 151552]
GSLOT = SP + [aslot(n) for n in range(0, 8)]
GSLOT += SP + [aslot(n) for n in (0, 1, 2, 3, 8, 9, 10, 11)]
GSLOT += [aslot(n) for n in (4, 5, 6, 7, 12, 13, 14, 15)]
RED = aslot(0)

nstamp = [0]
DBGT = "--dbgt" in sys.argv
DT = {0: 75, 12: 76, 1: 77, 2: 78, 3: 79, 6: 80, 9: 81, 7: 82, 11: 83}
PAD = (int(sys.argv[sys.argv.index("--pad")+1]), int(sys.argv[sys.argv.index("--pad")+2])) if "--pad" in sys.argv else None
npad = [0]
def stamp(k):
    if PAD and PAD[0] == k:
        npad[0] += 1
        e(f"Lpad{npad[0]}:\ns_memrealtime s[{sTm}:{sTm+1}]\ns_waitcnt lgkmcnt(0)\ns_sub_u32 s{sTm}, s{sTm}, s100\ns_cmp_lt_u32 s{sTm}, {PAD[1]}\ns_cbranch_scc1 Lpad{npad[0]}")
    if DBGT and k in DT:
        e(f"s_memrealtime s[{sTm}:{sTm+1}]\ns_waitcnt lgkmcnt(0)\ns_sub_u32 s{DT[k]}, s{sTm}, s100")
        if k == 11:
            e(f"s_memtime s[{sTm}:{sTm+1}]\ns_waitcnt lgkmcnt(0)\ns_sub_u32 s84, s{sTm}, s92")
            e(f"s_cmp_lg_u32 s2, 64\ns_cbranch_scc1 Lend\ns_cmp_lg_u32 s{sW}, 4\ns_cbranch_scc1 Lend")
            for n, r in enumerate(range(75, 85)):
                e(f"v_mov_b32 v0, s{r}\nbuffer_store_dword v0, off, {sr(SDBG,4)}, 0 offset:{4+4*n}\ns_nop 1")
    if not PROF: return
    e(f"""s_memtime s[{sTm}:{sTm+1}]
    s_waitcnt lgkmcnt(0)
    v_mov_b32 v0, s{sTm}
    buffer_store_dword v0, off, {sr(SWS,4)}, s{sPo} offset:{4*k}""")
    if k in RTS:
        e(f"""s_memrealtime s[{sTm}:{sTm+1}]
        s_waitcnt lgkmcnt(0)
        v_mov_b32 v0, s{sTm}
        buffer_store_dword v0, off, {sr(SWS,4)}, s{sPo} offset:{4*RTS[k]}""")
RTS = {12: 24, 1: 25, 5: 26, 6: 27, 11: 28}

TS = []
def tstamp(k):
    if not PROF: return
    r = 74 + len(TS); TS.append((k, r))
    e(f"s_memtime s[{sTm}:{sTm+1}]\ns_waitcnt lgkmcnt(0)\ns_mov_b32 s{r}, s{sTm}")
def tflush():
    for k, r in TS: e(f"v_mov_b32 v0, s{r}\nbuffer_store_dword v0, off, {sr(SWS,4)}, s{sPo} offset:{4*k}\ns_nop 1")
def tick(acc):
    if not PROF or "--notick" in sys.argv: return ""
    r = f"s_memtime s[{sTm}:{sTm+1}]\ns_waitcnt lgkmcnt(0)\n"
    if acc is not None: r += f"s_sub_u32 s99, s{sTm}, s99\ns_add_u32 s{acc}, s{acc}, s99\n"
    return r + f"s_mov_b32 s99, s{sTm}"

def interleave(main, fill):
    out = []; n = len(main); m = len(fill); k = 0
    for i, a in enumerate(main):
        out.append(a)
        t = (m * (i + 1)) // n
        out += fill[k:t]; k = t
    return out

def mfma(d, a, b, c=None):
    c = vr(d, 16) if c is None else c
    return f"v_mfma_f32_32x32x16_bf16 {vr(d,16)}, {vr(a,4)}, {vr(b,4)}, {c}"
def mfma16(d, a, b): return f"v_mfma_f32_16x16x32_bf16 {vr(d,4)}, {vr(a,4)}, {vr(b,4)}, {vr(d,4)}"
def smf(d, a, b, idx): return f"v_smfmac_f32_32x32x32_bf16 {vr(d,16)}, {vr(a,4)}, {vr(b,8)}, v{idx}"

TK = PROF and "--tk" in sys.argv
def tk(acc):
    if not TK: return ""
    r = f"s_memtime s[{sTm}:{sTm+1}]\ns_waitcnt lgkmcnt(0)\n"
    if acc is not None: r += f"s_sub_u32 s82, s{sTm}, s82\ns_add_u32 s{acc}, s{acc}, s82\n"
    return r + f"s_mov_b32 s82, s{sTm}"
def tkout():
    if TK: e(f"v_mov_b32 v0, s80\nbuffer_store_dword v0, off, {sr(SWS,4)}, s{sPo} offset:{4*29}\ns_nop 1\nv_mov_b32 v0, s81\nbuffer_store_dword v0, off, {sr(SWS,4)}, s{sPo} offset:{4*30}")
def tr(d, a, off): return [f"ds_read_b64_tr_b16 {vr(d,2)}, v{a} offset:{off}"]
def tag_issue(): return f"buffer_load_dwordx2 {vr(vPoll,2)}, off, {sr(SDBG,4)}, 0 sc1"
def tag_wait(tag, first_wait):
    e(f"""s_mov_b32 s{sT0}, 0
    s_waitcnt vmcnt({first_wait})
    Ltag_{tag}:
    v_readfirstlane_b32 s{sNo}, v{vPoll}
    v_readfirstlane_b32 s{sNo+1}, v{vPoll+1}
    s_add_u32 s{sT0}, s{sT0}, 1
    s_cmp_lg_u32 s{sNo}, 0
    s_cbranch_scc1 Ltagd_{tag}
    s_cmp_ge_u32 s{sT0}, 100000
    s_cbranch_scc1 Ltagd_{tag}
    s_sleep 1
    {tag_issue()}
    s_waitcnt vmcnt(0)
    s_branch Ltag_{tag}
    Ltagd_{tag}:""")
def flags_issue(base):
    return f"""v_and_b32 v{vPoll}, 15, v{vLane}
    v_lshlrev_b32 v{vPoll}, 7, v{vPoll}
    buffer_load_dwordx2 {vr(vPoll,2)}, v{vPoll}, {sr(SWS,4)}, s{base} offen sc1"""
def h_poll_issue(): return flags_issue(sHc)
def flags_wait(base, tag, first_wait):
    e(f"""s_mov_b32 s{sT0}, 0
    s_waitcnt vmcnt({first_wait})
    Lfw_{tag}:
    v_cmp_ne_u64 vcc, s[{sNo}:{sNo+1}], {vr(vPoll,2)}
    s_add_u32 s{sT0}, s{sT0}, 1
    s_cmp_ge_u32 s{sT0}, 100000
    s_cbranch_vccz Lfwd_{tag}
    s_cbranch_scc1 Lfwd_{tag}
    s_sleep 3
    {flags_issue(base)}
    s_waitcnt vmcnt(0)
    s_branch Lfw_{tag}
    Lfwd_{tag}:""")
def flag_set(off_sreg, tag):
    e(f"""s_cmp_lg_u32 s{sW}, 0
    s_cbranch_scc1 Lsig_{tag}
    v_mov_b32 v{vPoll}, s{sNo}
    v_mov_b32 v{vPoll+1}, s{sNo+1}
    s_mov_b64 exec, 1
    buffer_store_dwordx2 {vr(vPoll,2)}, off, {sr(SWS,4)}, s{off_sreg} sc1
    s_mov_b64 exec, -1
    Lsig_{tag}:""")

hdr = open(f"cdna_kernels/{NAME}.s.ref").read().split("\n")
hdr = [h for h in hdr[:15] if h.startswith(";") and "@launch" not in h]
L += hdr
L.append(f"; @launch grid=(256,1,1) block=(512,1,1) lds={LDS_BYTES}")
L += ['.amdgcn_target "amdgcn-amd-amdhsa--gfx950"', ".text", f".globl {NAME}_kernel", ".p2align 8",
      f".type {NAME}_kernel,@function"]
e(f"{NAME}_kernel:")
RT = PROF
if RT: e("s_memrealtime s[100:101]\ns_memtime s[98:99]")
if DBGT or PAD: e("s_memrealtime s[100:101]\ns_memtime s[92:93]")
PFC = "" if "--nopfc" in sys.argv else f"""s_cmp_lg_u32 s{sW}, 7
s_cbranch_scc1 Lnop0
s_getpc_b64 s[94:95]
Lpc0:
s_bfe_u32 s{sT0}, s2, 0x20003
s_lshl_b32 s{sT0}, s{sT0}, 13
v_lshl_add_u32 v{vT1}, v{vLane}, 7, s{sT0}
v_min_u32 v{vT1}, Lcodeend-Lpc0-4, v{vT1}
global_load_dword v223, v{vT1}, s[94:95]"""
e(f"""s_cmp_ge_u32 s2, 256
s_cbranch_scc1 Lend
s_load_dwordx16 s[64:79], s[0:1], 0
s_load_dwordx8 s[80:87], s[0:1], 64
s_memrealtime s[{sTm}:{sTm+1}]
v_and_b32 v{vLane}, 63, v0
v_lshrrev_b32 v{vT0}, 6, v0
v_lshrrev_b32 v{vH}, 5, v{vLane}
v_readfirstlane_b32 s{sW}, v{vT0}
s_cmp_lt_u32 s{sW}, 4
s_cbranch_scc1 Lnop0
s_setprio 2
{PFC}
Lnop0:
s_and_b32 s{sT0}, s2, 7
s_lshr_b32 s{sT1}, s2, 3
s_and_b32 s{sI}, s{sT0}, 1
s_lshl_b32 s{sI}, s{sI}, 3
s_and_b32 s{sT2}, s{sT1}, 7
s_add_u32 s{sI}, s{sI}, s{sT2}
s_lshr_b32 s{sJ}, s{sT0}, 1
s_lshl_b32 s{sJ}, s{sJ}, 2
s_lshr_b32 s{sT3}, s{sT1}, 3
s_add_u32 s{sJ}, s{sJ}, s{sT3}
s_sub_u32 s{sJ}, 15, s{sJ}
s_and_b32 s{sTB}, s{sT0}, 3
s_lshl_b32 s{sTB}, s{sTB}, 3
s_add_u32 s{sTB}, s{sTB}, s{sT2}
s_lshr_b32 s{sCS}, s{sT0}, 2
s_lshl_b32 s{sCS}, s{sCS}, 2
s_add_u32 s{sCS}, s{sCS}, s{sT3}
s_and_b32 s{sW4}, s{sW}, 3
v_lshrrev_b32 v{vT0}, 3, v{vLane}
v_lshlrev_b32 v{vT0}, 10, v{vT0}
v_and_b32 v{vT1}, 7, v{vLane}
v_lshrrev_b32 v{vT2}, 4, v{vLane}
v_xor_b32 v{vT1}, v{vT1}, v{vT2}
v_lshl_add_u32 v{vXa0}, v{vT1}, 4, v{vT0}
v_xor_b32 v{vXa1}, 64, v{vXa0}
v_add_u32 v{vXa1}, {8192-1024}, v{vXa1}
v_lshlrev_b32 v{vL16}, 4, v{vLane}
s_lshl_b32 s{sXo}, s{sI}, 17
s_lshl_b32 s{sT0}, s{sW4}, 15
s_add_u32 s{sXo}, s{sXo}, s{sT0}
s_lshl_b32 s{sRow}, s{sI}, 4
s_add_u32 s{sRow}, s{sRow}, s{sJ}
s_lshl_b32 s{sRow}, s{sRow}, 2
s_add_u32 s{sRow}, s{sRow}, s{sW4}
s_or_b32 s{sT0}, s2, s{sW}
s_waitcnt lgkmcnt(0)""")
def srd(d, p, nbytes):
    e(f"s_mov_b32 s{d}, s{p}\ns_mov_b32 s{d+1}, s{p+1}\ns_mov_b32 s{d+2}, {nbytes}\ns_mov_b32 s{d+3}, 0x20000")
srd(SX, 64, 2048*1024)
vRs = 144
e(f"""s_cmp_lt_u32 s{sW}, 4
s_cbranch_scc1 Lnorow
s_lshl_b32 s{sT1}, s{sRow}, 11
buffer_load_dwordx4 {vr(vRs,4)}, v{vL16}, {sr(SX,4)}, s{sT1} offen
buffer_load_dwordx4 {vr(vRs+4,4)}, v{vL16}, {sr(SX,4)}, s{sT1} offen offset:1024
Lnorow:""")
srd(SDBG, 84, 256)
e(f"""s_cmp_lg_u32 s{sT0}, 0
s_cbranch_scc1 Lnotag
s_or_b32 s{sTm}, s{sTm}, 1
v_mov_b32 v{vPoll}, s{sTm}
v_mov_b32 v{vPoll+1}, s{sTm+1}
s_mov_b64 exec, 1
buffer_store_dwordx2 {vr(vPoll,2)}, off, {sr(SDBG,4)}, 0 sc1
s_mov_b64 exec, -1
Lnotag:""")
SWU = SWK
srd(SWQ, 66, 512*1024); srd(SWG, 76, 512*2752)
e(f"s_cmp_eq_u32 s{sJ}, 15\ns_cselect_b32 s{SWK}, s68, s78\ns_cselect_b32 s{SWK+1}, s69, s79\ns_mov_b32 s{sT1}, {512*2752}\ns_cselect_b32 s{SWK+2}, 16384, s{sT1}\ns_mov_b32 s{SWK+3}, 0x20000")
srd(SWV, 70, 16384); srd(SWS, 86, WS_BYTES); srd(SWO, 72, 512*1024); srd(SWD, 80, 1376*1024); srd(SOUT, 82, 2048*1024)
if PROF:
    e(f"s_lshl_b32 s{sPo}, s2, 3\ns_add_u32 s{sPo}, s{sPo}, s{sW}\ns_lshl_b32 s{sPo}, s{sPo}, 8\ns_add_u32 s{sPo}, s{sPo}, {PROFO}")
stamp(0)
if TK: e("s_mov_b32 s80, 1\ns_mov_b32 s81, 1")
if RT: e(f"s_nop 1\nv_mov_b32 v0, s100\nbuffer_store_dword v0, off, {sr(SWS,4)}, s{sPo} offset:60\ns_nop 1\nv_mov_b32 v0, s98\nbuffer_store_dword v0, off, {sr(SWS,4)}, s{sPo} offset:16")
e(f"""s_cmp_eq_u32 s{sJ}, 15
s_cbranch_scc1 Lkvcu
s_cmp_ge_u32 s{sW}, 4
s_cbranch_scc1 Lcomp""")

def o_prod_off(dst):
    e(f"""s_lshl_b32 s{sT0}, s{sI}, 2
    s_lshr_b32 s{sT1}, s{sW}, 1
    s_add_u32 s{sT0}, s{sT0}, s{sT1}
    s_lshl_b32 s{sT0}, s{sT0}, 5
    s_lshl_b32 s{sT1}, s{sJ}, 1
    s_and_b32 s{dst}, s{sW}, 1
    s_add_u32 s{sT1}, s{sT1}, s{dst}
    s_lshr_b32 s{dst}, s{sT1}, 2
    s_add_u32 s{sT0}, s{sT0}, s{dst}
    s_and_b32 s{sT1}, s{sT1}, 3
    s_lshl_b32 s{sT1}, s{sT1}, 3
    s_add_u32 s{sT0}, s{sT0}, s{sT1}
    s_lshl_b32 s{sT0}, s{sT0}, 10
    s_add_u32 s{dst}, s{sT0}, {OIMG}""")

def v_lane_addr(d):
    e(f"""v_and_b32 v{d}, 15, v{vLane}
    v_lshlrev_b32 v{d}, 4, v{d}
    v_lshl_add_u32 v{d}, v{vH}, 8, v{d}
    s_mov_b32 exec_lo, 0xffff0000
    s_mov_b32 exec_hi, 0xffff0000
    v_mov_b32 v{d}, 512""")
def early_init():
    o_prod_off(sOp)
    v_lane_addr(vAv)
    e(f"""s_mov_b32 exec_lo, 0xffee0000
    s_mov_b32 exec_hi, 0xffee0000
    v_mov_b32 v{vAv}, 0x4000000
    s_mov_b64 exec, -1
    v_add_u32 v{vAv}, 1024, v{vAv}
    v_lshlrev_b32 v{vAk}, 4, v{vLane}
    v_mov_b32 v{vIdx}, 0xdddd
    v_lshrrev_b32 v{vT0}, 3, v{vLane}
    v_lshlrev_b32 v{vT0}, 10, v{vT0}
    v_and_b32 v{vT1}, 7, v{vLane}
    v_bfe_u32 v{vT2}, v{vLane}, 4, 1
    v_lshlrev_b32 v{vT2}, 2, v{vT2}
    v_xor_b32 v{vT1}, v{vT1}, v{vT2}
    v_lshl_add_u32 v{vDa}, v{vT1}, 4, v{vT0}
    s_lshl_b32 s{sDo}, s{sW}, 13
    s_lshl_b32 s{sT1}, s{sCS}, 7
    s_add_u32 s{sDo}, s{sDo}, s{sT1}
    s_lshl_b32 s{sDm}, s{sW}, 10
    s_lshr_b32 s{sKq}, s{sW}, 1
    s_and_b32 s{sTt}, s{sW}, 1
    s_lshl_b32 s{sT0}, s{sTB}, 1
    s_add_u32 s{sT2}, s{sT0}, s{sTt}
    s_mul_i32 s{sHo}, s{sT2}, 88
    s_mul_i32 s{sT0}, s{sKq}, 22
    s_add_u32 s{sHo}, s{sHo}, s{sT0}
    s_lshl_b32 s{sHo}, s{sHo}, 10
    s_add_u32 s{sHo}, s{sHo}, {HIMG}
    s_lshl_b32 s{sT0}, s{sT2}, 2
    s_add_u32 s{sT0}, s{sT0}, s{sKq}
    s_lshl_b32 s{sT0}, s{sT0}, 13
    s_add_u32 s{sOc}, s{sT0}, {OIMG}
    s_add_u32 s{sOc2}, s{sOc}, 4096
    s_lshl_b32 s{sT0}, s{sT2}, 15
    s_add_u32 s{sT0}, s{sT0}, s{sT1}
    s_lshl_b32 s{sT1}, s{sKq}, 5
    s_add_u32 s{sXf}, s{sT0}, s{sT1}
    s_lshr_b32 s{sHc}, s{sTB}, 1
    s_lshl_b32 s{sHc}, s{sHc}, 11
    s_add_u32 s{sHc}, s{sHc}, {HFLG}
    s_lshl_b32 s{sHs}, s{sI}, 4
    s_add_u32 s{sHs}, s{sHs}, s{sJ}
    s_lshl_b32 s{sHs}, s{sHs}, 7
    s_add_u32 s{sHs}, s{sHs}, {HFLG}
    v_and_b32 v{vT0}, 31, v{vLane}
    v_lshlrev_b32 v{vT0}, 10, v{vT0}
    v_lshl_add_u32 v{vRa}, v{vH}, 4, v{vT0}
    v_bfe_u32 v{vT0}, v{vLane}, 2, 2
    v_lshl_add_u32 v{vT0}, v{vH}, 2, v{vT0}
    v_lshlrev_b32 v{vT0}, 7, v{vT0}
    v_bfe_u32 v{vT1}, v{vLane}, 4, 1
    v_lshl_add_u32 v{vT0}, v{vT1}, 5, v{vT0}
    v_and_b32 v{vT1}, 3, v{vLane}
    v_lshl_add_u32 v{vT0}, v{vT1}, 3, v{vT0}
    v_bfe_u32 v{vT1}, v{vLane}, 3, 1
    v_lshl_add_u32 v{vT0}, v{vT1}, 6, v{vT0}
    s_lshl_b32 s{sT0}, s{sKq}, 11
    v_add_u32 v{vRd}, s{sT0}, v{vT0}
    v_xor_b32 v{vRd+1}, 64, v{vRd}
    v_add_u32 v{vRd+2}, 0xe000, v{vRd}
    v_add_u32 v{vRd+3}, 0xe000, v{vRd+1}
    v_add_u32 v{vRd+4}, 0x1c000, v{vRd}
    v_add_u32 v{vRd+5}, 0x1c000, v{vRd+1}
    s_mul_i32 s{sT1}, s{sTt}, {8*ASL}
    s_add_u32 s{sT1}, s{sT1}, {RED}
    s_add_u32 s{sT0}, s{sT0}, s{sT1}
    v_add_u32 v{vRw}, s{sT0}, v{vL16}
    s_mul_i32 s{sT0}, s{sKq}, {ASL}
    s_add_u32 s{sT0}, s{sT0}, s{sT1}
    v_add_u32 v{vRr}, s{sT0}, v{vL16}""")
    for r in range(12): e(f"v_mov_b32 v{vO+r}, 0")


def spread(m, fill):
    w = [16 if "16x16" in x else 32 for x in m]
    tot = sum(c for c, _ in fill); W = sum(w)
    out = []; k = 0; acc = 0; cw = 0
    for x, wx in zip(m, w):
        out.append(x); cw += wx
        while k < len(fill) and (acc + fill[k][0]/2) * W <= tot * cw:
            out.append(fill[k][1]); acc += fill[k][0]; k += 1
    out += [t for _, t in fill[k:]]
    return out


C1 = -2*0.7978845608028654*1.4426950408889634
C3 = C1*0.044715
def gelu_consts(m, r, d):
    e(f"""v_sub_f32 v{d}, 0, v{m}
    v_mul_f32 v{d+3}, v{r}, v{r}
    v_mul_f32 v{d+1}, {f2u(C1):#x}, v{r}
    v_mul_f32 v{d+2}, {f2u(C3):#x}, v{r}
    v_mul_f32 v{d+2}, v{d+2}, v{d+3}
    v_rcp_f32 v{d+3}, v{d+3}""")
def bc(reg, pos, n):
    base = reg & ~1
    return vr(base, 2), reg & 1
def pk(op, d, srcs, neg=None):
    ops = []; lo = []; hi = []
    for t, r in srcs:
        if t == 'p': ops.append(vr(r, 2)); lo.append(0); hi.append(1)
        else: ops.append(vr(r & ~1, 2)); lo.append(r & 1); hi.append(r & 1)
    return f"{op} {vr(d,2)}, {', '.join(ops)} op_sel:[{','.join(map(str,lo))}] op_sel_hi:[{','.join(map(str,hi))}]"
def gelu_tile(g, u, csg, csu, k, tmp, n=16, dst=None):
    for p in range(0, n, 2):
        e(pk("v_pk_fma_f32", g+p, [('b', k), ('p', csg+p), ('p', g+p)]))
        e(pk("v_pk_fma_f32", u+p, [('b', k), ('p', csu+p), ('p', u+p)]))
    for p in range(0, n, 2):
        e(pk("v_pk_mul_f32", tmp+p, [('p', g+p), ('p', g+p)]))
    for p in range(0, n, 2):
        e(pk("v_pk_fma_f32", tmp+p, [('p', tmp+p), ('b', k+2), ('b', k+1)]))
    for p in range(0, n, 2):
        e(pk("v_pk_mul_f32", tmp+p, [('p', tmp+p), ('p', g+p)]))
    for p in range(n): e(f"v_exp_f32 v{tmp+p}, v{tmp+p}")
    for p in range(0, n, 2):
        e(pk("v_pk_mul_f32", u+p, [('p', u+p), ('p', g+p)]))
    for p in range(0, n, 2):
        e(pk("v_pk_fma_f32", tmp+p, [('p', tmp+p), ('b', k+3), ('b', k+3)]))
    for p in range(n): e(f"v_rcp_f32 v{tmp+p}, v{tmp+p}")
    e("s_nop 0")
    for p in range(0, n, 2):
        e(pk("v_pk_mul_f32", u+p, [('p', u+p), ('p', tmp+p)]))
    for p in range(n//2): e(f"v_cvt_pk_bf16_f32 v{dst[p] if dst else g+p}, v{u+2*p}, v{u+2*p+1}")

def cs_read(d, slot_off):
    for q in range(4): e(f"ds_read_b128 {vr(d+4*q,4)}, v{vT3} offset:{slot_off+32*q}")

def lin_fold(acc, cs, negm, scale, n=16):
    for p in range(0, n, 2):
        e(pk("v_pk_fma_f32", acc+p, [('b', negm), ('p', cs+p), ('p', acc+p)]))
    for p in range(0, n, 2):
        e(pk("v_pk_mul_f32", acc+p, [('p', acc+p), ('b', scale)]))

def q_epilogue(cs):
    e(f"v_mul_f32 v{vSt+2}, {f2u(0.25*1.4426950408889634):#x}, v{vSt+1}")
    lin_fold(vAcc, cs, vSt+4, vSt+2)
    for p in range(8): e(f"v_cvt_pk_bf16_f32 v{vAcc+p}, v{vAcc+2*p}, v{vAcc+2*p+1}")
    e(f"""s_lshl_b32 s{sT0}, s{sW4}, 11
    s_add_u32 s{sT0}, s{sT0}, {QIMG}
    v_lshl_add_u32 v{vT0}, v{vLane}, 4, s{sT0}
    ds_write_b128 v{vT0}, {vr(vAcc,4)}
    ds_write_b128 v{vT0}, {vr(vAcc+4,4)} offset:1024""")


def rowstat_finish():
    a = vRs+8
    e(f"v_mov_b32 v{vT0}, 0x3f803f80")
    for k in range(4):
        for r in range(2):
            x = vRs+4*r+k
            c0 = "0" if k == 0 else f"v{a+2*r}"; c1 = "0" if k == 0 else f"v{a+2*r+1}"
            e(f"v_dot2_f32_bf16 v{a+2*r}, v{x}, v{vT0}, {c0}\nv_dot2_f32_bf16 v{a+2*r+1}, v{x}, v{x}, {c1}")
    e("s_nop 2")
    for ctl in ("row_shr:1", "row_shr:2", "row_shr:4", "row_shr:8"):
        for k in range(4): e(f"v_add_f32_dpp v{a+k}, v{a+k}, v{a+k} {ctl} row_mask:0xf bank_mask:0xf bound_ctrl:0")
    for ctl in ("row_bcast:15 row_mask:0xa", "row_bcast:31 row_mask:0xc"):
        for k in range(4): e(f"v_add_f32_dpp v{a+k}, v{a+k}, v{a+k} {ctl} bank_mask:0xf")
    for r in range(2):
        d = vRs+4*r
        e(f"""v_mul_f32 v{d}, {f2u(1/512):#x}, v{a+2*r}
        v_mul_f32 v{d+1}, {f2u(1/512):#x}, v{a+2*r+1}
        v_fma_f32 v{d+1}, -v{d}, v{d}, v{d+1}
        v_max_f32 v{d+1}, 0, v{d+1}
        v_add_f32 v{d+1}, {f2u(1e-5):#x}, v{d+1}
        v_rsq_f32 v{d+1}, v{d+1}""")
def rowstat_post():
    e(f"""s_lshl_b32 s{sT0}, s{sW4}, 4
    s_add_u32 s{sT0}, s{sT0}, {STL}
    v_mov_b32 v{vT0}, s{sT0}
    s_mov_b32 exec_lo, 0
    s_brev_b32 exec_hi, 1
    ds_write_b64 v{vT0}, {vr(vRs,2)}
    ds_write_b64 v{vT0}, {vr(vRs+4,2)} offset:8
    s_mov_b64 exec, -1""")
def rowstat_store():
    for r in range(2): e(f"v_mov_b32 v{vRs+4*r+2}, s{sNo}\nv_mov_b32 v{vRs+4*r+3}, s{sNo+1}")
    e(f"""s_lshl_b32 s{sT0}, s{sRow}, 5
    s_add_u32 s{sT0}, s{sT0}, {STATG}
    s_mov_b32 exec_lo, 0
    s_brev_b32 exec_hi, 1
    buffer_store_dwordx4 {vr(vRs,4)}, off, {sr(SWS,4)}, s{sT0} sc1
    buffer_store_dwordx4 {vr(vRs+4,4)}, off, {sr(SWS,4)}, s{sT0} offset:16 sc1
    s_mov_b64 exec, -1""")
def sentinel(r):
    for k in range(4): e(f"v_mov_b32 v{r+k}, -1")
    e(f"buffer_store_dwordx4 {vr(r,4)}, v{vL16}, {sr(SWS,4)}, s{sOp} offen sc1")
def kv_dma(tag):
    e(f"""s_lshl_b32 s{sT0}, s{sW4}, 10
    Lkvd_{tag}:
    s_mov_b32 m0, s{sT0}
    s_nop 0
    buffer_load_dwordx4 v{vL16}, {sr(SWS,4)}, s{sT0} offen sc1 lds
    s_add_u32 s{sT0}, s{sT0}, 4096
    s_cmp_lt_u32 s{sT0}, {36*1024}
    s_cbranch_scc1 Lkvd_{tag}""")
def tr_lane(rowmul, d):
    e(f"""v_lshrrev_b32 v{vT0}, 4, v{vLane}
    v_bfe_u32 v{vT1}, v{vLane}, 2, 2
    v_lshl_add_u32 v{vT0}, v{vT0}, 3, v{vT1}
    v_mul_u32_u24 v{vT0}, {rowmul}, v{vT0}
    v_bfe_u32 v{vT1}, v{vLane}, 4, 1
    v_lshl_add_u32 v{vT0}, v{vT1}, 5, v{vT0}
    v_and_b32 v{vT1}, 3, v{vLane}
    v_lshl_add_u32 v{d}, v{vT1}, 3, v{vT0}""")
def ones_col0(d):
    e(f"""v_and_b32 v{vT0}, 15, v{vLane}
    v_cmp_eq_u32 vcc, 0, v{vT0}
    v_mov_b32 v{vT1}, 0x3f803f80
    s_nop 0
    v_cndmask_b32 v{d}, 0, v{vT1}, vcc""")
    for k in range(1, 4): e(f"v_mov_b32 v{d+k}, v{d}")
def rot_delta():
    return f"s_add_u32 s{sRb}, s{sRb}, 1\ns_cmp_eq_u32 s{sRb}, 3\ns_cselect_b32 s{sDl}, s{sC3}, {STG}\ns_cselect_b32 s{sRb}, 0, s{sRb}"
def cs16_write(accs, slot0_sreg, stride):
    e(f"v_add_u32 v{vT0}, s{slot0_sreg}, v{vLane}\ns_mov_b32 exec_lo, 0x00010001\ns_mov_b32 exec_hi, 0x00010001")
    for n, a in enumerate(accs): e(f"ds_write_b128 v{vT0}, {vr(a,4)} offset:{stride*n}")
    e("s_mov_b64 exec, -1")

ROT = int(sys.argv[sys.argv.index("--rot")+1]) if "--rot" in sys.argv else 7
sKs = 84
def dma_x():
    return [f"s_add_u32 m0, s{sLb}, s{sMx}", f"s_add_u32 s{sT0}, s{sXo}, 16384",
            f"buffer_load_dwordx4 v{vXa0}, {sr(SX,4)}, s{sXo} offen lds",
            f"buffer_load_dwordx4 v{vXa1}, {sr(SX,4)}, s{sXo} offen offset:1024 lds",
            "s_add_u32 m0, m0, 2048", f"s_add_u32 s{sXo}, s{sXo}, 128",
            f"buffer_load_dwordx4 v{vXa0}, {sr(SX,4)}, s{sT0} offen lds",
            f"buffer_load_dwordx4 v{vXa1}, {sr(SX,4)}, s{sT0} offen offset:1024 lds"]
def dma_w():
    r = []
    for k, sd in enumerate((SWG, SWU)):
        r += [f"s_add_u32 m0, s{sLb}, s{sMw}" if k == 0 else f"s_add_u32 m0, m0, {UOFF-GOFF}", "s_nop 0",
              f"buffer_load_dwordx4 v{vWa0}, {sr(sd,4)}, s{sWo} offen lds",
              f"buffer_load_dwordx4 v{vWa1}, {sr(sd,4)}, s{sWo} offen offset:1024 lds",
              f"buffer_load_dwordx4 v{vWa2}, {sr(sd,4)}, s{sWo} offen offset:2048 lds"]
    r += [f"s_add_u32 m0, s{sLb}, s{sMq}", f"s_add_u32 s{sWo}, s{sWo}, {64*2752}",
          f"buffer_load_dwordx4 v{vQa}, {sr(SWQ,4)}, s{sQo} offen lds", f"s_add_u32 s{sQo}, s{sQo}, 65536",
          f"s_add_u32 s{sLb}, s{sLb}, {STG}", f"s_cmp_ge_u32 s{sLb}, {3*STG}", f"s_cselect_b32 s{sLb}, 0, s{sLb}"]
    if ROT:
        r += [f"s_add_u32 s{sKs}, s{sKs}, 1", f"s_cmp_eq_u32 s{sKs}, 8",
              f"s_cselect_b32 s{sT0}, 1024, 0", f"s_cselect_b32 s{sT1}, {512*2752}, 0", f"s_cselect_b32 s{sT2}, {512*1024}, 0",
              f"s_sub_u32 s{sXo}, s{sXo}, s{sT0}", f"s_sub_u32 s{sWo}, s{sWo}, s{sT1}", f"s_sub_u32 s{sQo}, s{sQo}, s{sT2}"]
    return r
e(f"s_mov_b32 s{sLb}, 0\ns_lshl_b32 s{sMx}, s{sW4}, 12")
if ROT: e(f"s_lshl_b32 s{sKs}, s{sJ}, 1\ns_add_u32 s{sKs}, s{sKs}, s{sI}\ns_and_b32 s{sKs}, s{sKs}, {ROT}\ns_lshl_b32 s{sT0}, s{sKs}, 7\ns_add_u32 s{sXo}, s{sXo}, s{sT0}")
for x in dma_x(): e(x)
for k, r in enumerate((vWa0, vWa1, vWa2)):
    e(f"""v_add_u32 v{vT0}, {64*k}, v{vLane}
    v_mul_u32_u24 v{vT1}, 43691, v{vT0}
    v_lshrrev_b32 v{vT1}, 19, v{vT1}
    v_mul_u32_u24 v{vT2}, 12, v{vT1}
    v_sub_u32 v{vT0}, v{vT0}, v{vT2}
    v_lshrrev_b32 v{vT2}, 2, v{vT1}
    v_and_b32 v{vT2}, 2, v{vT2}
    v_xor_b32 v{vT0}, v{vT0}, v{vT2}
    v_mul_u32_u24 v{vT1}, 2752, v{vT1}
    v_lshl_add_u32 v{r}, v{vT0}, 4, v{vT1}""")
    if k: e(f"v_subrev_u32 v{r}, {1024*k}, v{r}")
e(f"""v_lshrrev_b32 v{vT0}, 2, v{vLane}
v_lshlrev_b32 v{vT0}, 10, v{vT0}
v_and_b32 v{vT1}, 3, v{vLane}
v_lshlrev_b32 v{vT2}, 1, v{vH}
v_xor_b32 v{vT1}, v{vT1}, v{vT2}
v_lshl_add_u32 v{vQa}, v{vT1}, 4, v{vT0}
s_mul_i32 s{sT0}, s{sJ}, 96
s_min_u32 s{sT0}, s{sT0}, 1280
s_lshl_b32 s{sT0}, s{sT0}, 1
s_mul_i32 s{sWo}, s{sW4}, {16*2752}
s_add_u32 s{sWo}, s{sWo}, s{sT0}
s_lshl_b32 s{sQo}, s{sW4}, 14
s_lshl_b32 s{sT0}, s{sJ}, 6
s_add_u32 s{sQo}, s{sQo}, s{sT0}
s_mul_i32 s{sMw}, s{sW4}, 3072
s_add_u32 s{sMw}, s{sMw}, {GOFF}
s_lshl_b32 s{sMq}, s{sW4}, 10
s_add_u32 s{sMq}, s{sMq}, {QOFF}""")
if ROT: e(f"s_mul_i32 s{sT0}, s{sKs}, {64*2752}\ns_add_u32 s{sWo}, s{sWo}, s{sT0}\ns_lshl_b32 s{sT0}, s{sKs}, 16\ns_add_u32 s{sQo}, s{sQo}, s{sT0}")
for x in dma_w() + dma_x() + dma_w(): e(x)
e(tag_issue())
hW = 32
e(f"s_mov_b32 s{sSt}, 0\ns_mov_b32 s{sRb}, 0\ns_mov_b32 s{sC3}, {(-2*STG) & 0xffffffff}")
if "--hp3" in sys.argv: e("s_setprio 3")
tstamp(21); e("s_waitcnt vmcnt(12)"); tstamp(23); e("s_barrier")
stamp(12); tflush(); TS.clear()
def helper_loop(cs):
    t = "c" if cs else "n"
    e(f"Lhl{t}:")
    if cs:
        rd, m = cs_parts()
        for x in rd: e(x)
        e(rot_delta())
        for x in dma_x(): e(x)
        e(f"v_add_u32 v{hA}, s{sDl}, v{hA}\nv_add_u32 v{hA+1}, s{sDl}, v{hA+1}\ns_waitcnt lgkmcnt(0)")
        w = dma_w(); k = 0
        for x in w:
            e(x)
            if "buffer_load" in x: e(m[k]); k += 1
        for x in m[k:]: e(x)
    else:
        for x in dma_x() + dma_w():
            if "--nodma" in sys.argv and "buffer_load" in x: continue
            e(x)
            if "--pace" in sys.argv and "buffer_load" in x: e("s_sleep 1")
        e(f"s_or_b32 s{sT0}, s{sSt}, s{sW}\ns_cmp_lg_u32 s{sT0}, 0\ns_cbranch_scc1 Lnpub")
        e(f"v_lshlrev_b32 v{vT0}, 3, v{vLane}\nv_add_u32 v{vT0}, {STL}, v{vT0}\nds_read_b64 {vr(hW,2)}, v{vT0}")
        tag_wait("p", 11)
        e(f"""v_mov_b32 v{hW+2}, s{sNo}
        v_mov_b32 v{hW+3}, s{sNo+1}
        s_lshl_b32 s{sT0}, s{sRow}, 5
        s_add_u32 s{sT0}, s{sT0}, {STATG}
        s_mov_b64 exec, 0xff
        s_waitcnt lgkmcnt(0)
        buffer_store_dwordx4 {vr(hW,4)}, v{vL16}, {sr(SWS,4)}, s{sT0} offen sc1
        s_mov_b64 exec, -1
        Lnpub:""")
    e(f"""s_add_u32 s{sSt}, s{sSt}, 1
    {tk(None)}
    s_waitcnt vmcnt(11)
    {tk(80)}
    s_barrier
    {tk(81)}
    s_cmp_lt_u32 s{sSt}, 6
    s_cbranch_scc1 Lhl{t}""")
helper_loop(False)
tkout()
e("s_setprio 0")
early_init()
tag_wait("h", 0)
e(f"s_mov_b32 s{sKf}, {KFLG}")
e("s_barrier")
e(flags_issue(sKf))
e(f"s_cmp_lg_u32 s{sW}, 1\ns_cbranch_scc1 Lhns\ns_lshl_b32 s{sT1}, s{sI}, 11\ns_add_u32 s{sT1}, s{sT1}, {STATG}\ns_mov_b32 s{sT0}, 0\nLhs:")
e(f"""buffer_load_dwordx4 {vr(hW,4)}, v{vL16}, {sr(SWS,4)}, s{sT1} offen sc1
buffer_load_dwordx4 {vr(hW+4,4)}, v{vL16}, {sr(SWS,4)}, s{sT1} offen offset:1024 sc1
s_add_u32 s{sT0}, s{sT0}, 1
s_waitcnt vmcnt(0)
v_cmp_ne_u64 vcc, s[{sNo}:{sNo+1}], {vr(hW+2,2)}
v_cmp_ne_u64 s[{sEx}:{sEx+1}], s[{sNo}:{sNo+1}], {vr(hW+6,2)}
s_or_b64 vcc, vcc, s[{sEx}:{sEx+1}]
s_cmp_ge_u32 s{sT0}, 100000
s_cbranch_scc1 Lhsd
s_cbranch_vccnz Lhs
Lhsd:""")
gelu_consts(hW, hW+1, hW+8); gelu_consts(hW+4, hW+5, hW+12)
e(f"""v_add_u32 v{vT0}, {STATM}, v{vL16}
ds_write_b128 v{vT0}, {vr(hW+8,4)}
ds_write_b128 v{vT0}, {vr(hW+12,4)} offset:1024
Lhns:""")
e(f"""s_waitcnt vmcnt(0)
v_cmp_ne_u64 vcc, s[{sNo}:{sNo+1}], {vr(vPoll,2)}
s_mov_b32 s{sSt}, 1
s_cbranch_vccnz Lhnk""")
kv_dma("a")
e(f"s_mov_b32 s{sSt}, 0\ns_branch Lhnk2\nLhnk:")
e(flags_issue(sKf))
e("Lhnk2:\ns_barrier\ns_waitcnt lgkmcnt(0)")
stamp(1)
e("s_barrier")
e(f"s_cmp_lg_u32 s{sSt}, 0\ns_cbranch_scc1 Lkvwait\ns_waitcnt vmcnt(0)\ns_branch Lp2")

cX = [8, 24]; cW = 40; cRX, cRW, cRQ = 68, 70, 72; cCs = 76; cO = 92; cA = 96
e("Lcomp:")
e(f"""v_and_b32 v{vT0}, 15, v{vLane}
v_lshrrev_b32 v{vT1}, 1, v{vT0}
v_lshrrev_b32 v{vT2}, 4, v{vLane}
v_xor_b32 v{vT1}, v{vT1}, v{vT2}
v_lshlrev_b32 v{vT0}, 7, v{vT0}
s_and_b32 s{sT0}, s{sW}, 1
s_lshl_b32 s{sT0}, s{sT0}, 13
v_add_u32 v{vT0}, s{sT0}, v{vT0}
v_lshl_add_u32 v{cRX}, v{vT1}, 4, v{vT0}
v_xor_b32 v{cRX+1}, 64, v{cRX}""")
tr_lane(192, cRW)
e(f"""s_lshl_b32 s{sT1}, s{sW}, 4
s_and_b32 s{sT1}, s{sT1}, 32
v_xor_b32 v{cRW}, s{sT1}, v{cRW}
v_xor_b32 v{cRW+1}, 32, v{cRW}
s_lshl_b32 s{sT2}, s{sT1}, 1
v_add_u32 v{cRW}, s{sT2}, v{cRW}
s_lshl_b32 s{sT2}, s{sT1}, 2
v_add_u32 v{cRW+1}, s{sT2}, v{cRW+1}""")
tr_lane(64, cRQ); e(f"v_xor_b32 v{cRQ}, s{sT1}, v{cRQ}")
ones_col0(cO)
cEh, cEs, cEq = 73, 74, 75
e(f"""s_lshl_b32 s{sT0}, s{sI}, 2
s_and_b32 s{sT1}, s{sW}, 1
s_lshl_b32 s{sT1}, s{sT1}, 1
s_add_u32 s{sT0}, s{sT0}, s{sT1}
s_mul_i32 s{sT0}, s{sT0}, 88
s_mul_i32 s{sT1}, s{sJ}, 6
s_min_u32 s{sT1}, s{sT1}, 80
s_bfe_u32 s{sT2}, s{sW}, 0x10001
s_mul_i32 s{sT2}, s{sT2}, 3
s_add_u32 s{sT1}, s{sT1}, s{sT2}
s_and_b32 s{sT2}, s{sW}, 2""")
for add, dst in enumerate((sC0, sC1, sC2)):
    e(f"""s_add_u32 s{sT3}, s{sT1}, {add}
    s_lshr_b32 s{dst}, s{sT3}, 2
    s_add_u32 s{dst}, s{dst}, s{sT0}
    s_and_b32 s{sT3}, s{sT3}, 3
    s_mul_i32 s{sT3}, s{sT3}, 22
    s_add_u32 s{dst}, s{dst}, s{sT3}
    s_lshl_b32 s{dst}, s{dst}, 10
    s_add_u32 s{dst}, s{dst}, {HIMG}""")
e(f"""v_bfe_u32 v{vT0}, v{vLane}, 4, 1
v_lshlrev_b32 v{vT0}, 9, v{vT0}
v_and_b32 v{vT1}, 15, v{vLane}
v_lshl_add_u32 v{vT0}, v{vT1}, 4, v{vT0}
v_lshl_add_u32 v{cEh}, v{vH}, 8, v{vT0}
s_and_b32 s{sT0}, s{sW}, 1
s_lshl_b32 s{sT1}, s{sT0}, 10
s_add_u32 s{sT1}, s{sT1}, {STATM}
v_lshl_add_u32 v{cEs}, v{vT1}, 4, s{sT1}
s_lshl_b32 s{sT0}, s{sT0}, 12
s_lshl_b32 s{sT2}, s{sT2}, 9
s_add_u32 s{sT0}, s{sT0}, s{sT2}
s_add_u32 s{sT0}, s{sT0}, {QIMG}
v_lshl_add_u32 v{vT0}, v{vH}, 3, v{vT0}
v_add_u32 v{cEq}, s{sT0}, v{vT0}""")
early_init()
for r in list(range(cCs, cCs+16, 2)) + [r for r in range(cA, cA+112, 2) if not vRs <= r < vRs+16]: e(f"v_mov_b64 {vr(r,2)}, 0")
tstamp(13)
e("s_waitcnt vmcnt(0)")
tstamp(21)
rowstat_finish()
rowstat_post()
tstamp(23); tflush(); TS.clear()
if "--touch" in sys.argv:
    e(f"""s_and_b32 s{sT2}, s{sI}, 7
    s_mul_i32 s{sT2}, s{sT2}, 48
    s_add_u32 s{sT2}, s{sT2}, 128
    s_cmp_ge_u32 s{sW}, 6
    s_cbranch_scc1 Ltc6
    v_lshrrev_b32 v{vT0}, 1, v{vLane}
    v_mul_u32_u24 v{vT0}, 2752, v{vT0}
    v_and_b32 v{vT1}, 1, v{vLane}
    v_lshl_add_u32 v{vT0}, v{vT1}, 7, v{vT0}
    s_mul_i32 s{sT0}, s{sJ}, 96
    s_min_u32 s{sT0}, s{sT0}, 1280
    s_lshl_b32 s{sT0}, s{sT0}, 1
    s_mul_i32 s{sT2}, s{sT2}, 2752
    s_add_u32 s{sT0}, s{sT0}, s{sT2}
    s_add_u32 s{sT1}, s{sT0}, {32*2752}
    s_cmp_eq_u32 s{sW}, 5
    s_cbranch_scc1 Ltc5
    buffer_load_dword v79, v{vT0}, {sr(SWG,4)}, s{sT0} offen
    s_mov_b32 exec_hi, 0
    buffer_load_dword v79, v{vT0}, {sr(SWG,4)}, s{sT1} offen
    s_branch Ltce
    Ltc5:
    buffer_load_dword v79, v{vT0}, {sr(SWU,4)}, s{sT0} offen
    s_mov_b32 exec_hi, 0
    buffer_load_dword v79, v{vT0}, {sr(SWU,4)}, s{sT1} offen
    s_branch Ltce
    Ltc6:
    s_cmp_eq_u32 s{sW}, 7
    s_cbranch_scc1 Ltc7
    v_lshrrev_b32 v{vT0}, 1, v{vLane}
    v_lshlrev_b32 v{vT0}, 10, v{vT0}
    v_and_b32 v{vT1}, 1, v{vLane}
    v_lshl_add_u32 v{vT0}, v{vT1}, 7, v{vT0}
    s_lshl_b32 s{sT0}, s{sI}, 17
    s_and_b32 s{sT1}, s{sJ}, 3
    s_lshl_b32 s{sT1}, s{sT1}, 15
    s_add_u32 s{sT0}, s{sT0}, s{sT1}
    buffer_load_dword v79, v{vT0}, {sr(SX,4)}, s{sT0} offen offset:256
    buffer_load_dword v79, v{vT0}, {sr(SX,4)}, s{sT0} offen offset:512
    buffer_load_dword v79, v{vT0}, {sr(SX,4)}, s{sT0} offen offset:768
    s_branch Ltce
    Ltc7:
    v_lshlrev_b32 v{vT0}, 10, v{vLane}
    s_lshl_b32 s{sT2}, s{sT2}, 10
    s_lshl_b32 s{sT0}, s{sJ}, 6
    s_add_u32 s{sT0}, s{sT0}, s{sT2}
    s_mov_b32 exec_hi, 0xffff
    buffer_load_dword v79, v{vT0}, {sr(SWQ,4)}, s{sT0} offen
    Ltce:
    s_mov_b64 exec, -1""")
e("s_nop 1")
for r in range(vRs, vRs+16, 2): e(f"v_mov_b64 {vr(r,2)}, 0")
e(f"s_mov_b32 s{sSt}, 0\ns_mov_b32 s{sRb}, 0\ns_mov_b32 s{sC3}, {(-2*STG) & 0xffffffff}\ns_setprio 2")
e(f"s_bitcmp1_b32 s{sW}, 0\ns_cbranch_scc1 Lcl1")
NF = 7
def comp_loop(var):
    tag = f"{var}"
    def wrd(n, k2):
        if n == 0: a, o, rs = cRQ, QOFF, 64
        else:
            t = (n-1) % 3
            a, o, rs = cRW+(t & 1), (GOFF if n < 4 else UOFF) + (t >> 1)*64, 192
        return tr(cW+4*n, a, o+32*k2*rs) + tr(cW+4*n+2, a, o+(32*k2+4)*rs)
    def xrd(k2): return [f"ds_read_b128 {vr(cX[k2]+4*u,4)}, v{cRX+k2} offset:{2048*u}" for u in range(4)]
    def mm(n, k2):
        r = [mfma16(cA+28*u+4*n, cW+4*n, cX[k2]+4*u) for u in range(4)]
        if (n & 1) == var: r.append(mfma16(cCs+4*(n >> 1), cW+4*n, cO))
        return r
    e("s_waitcnt lgkmcnt(0)\ns_barrier")
    stamp(12)
    for x in xrd(0) + sum([wrd(n, 0) for n in range(NF)], []): e(x)
    e(f"s_waitcnt lgkmcnt(0)\n.p2align 3\nLc_{tag}:")
    adr = [f"v_add_u32 v{r}, s{sDl}, v{r}" for r in (cRX, cRX+1, cRW, cRW+1, cRQ)]
    ctl = rot_delta().split("\n") + [f"s_add_u32 s{sSt}, s{sSt}, 1"]
    BARG = 2
    def build(order0):
        out = []; q = []; issued = list(order0)
        def need(tagname):
            idx = max(i for i, t in enumerate(issued) if t == tagname)
            return len(issued)-1-idx
        def push(tagname, lst): q.extend((tagname, x) for x in lst)
        lastN = [99]
        for k2 in range(2):
            if k2 == 0: push("x1", xrd(1))
            for n in range(NF):
                if k2 == 1 and n == BARG:
                    while q:
                        t, x = q.pop(0); out.append(x)
                        if t: issued.append(t)
                    out.append(f"s_waitcnt lgkmcnt(0)\n{tk(None)}\ns_barrier\n{tk(81)}")
                    issued.clear(); issued.extend(["done"])
                    push("x0", xrd(0))
                    for m in range(BARG): push(f"w{m}0", wrd(m, 0))
                reqs = [f"w{n}{k2}"] + ([f"x{k2}"] if n == 0 else [])
                for r in reqs: assert all(t != r for t, _ in q), (r, k2, n)
                ns = [need(r) for r in reqs if r in issued]
                if ns and n % 2 == 0 or ns and min(ns) < lastN[0]:
                    nxt = f"w{n+1}{k2}"
                    if nxt in issued and all(t != nxt for t, _ in q): ns.append(need(nxt))
                    N = min(min(ns), 15); out.append(f"s_waitcnt lgkmcnt({N})"); lastN[0] = N
                for x in mm(n, k2):
                    out.append(x)
                    if q:
                        t, y = q.pop(0); out.append(y)
                        if t: issued.append(t); lastN[0] += 1
                if k2 == 0:
                    push(f"w{n}1", wrd(n, 1))
                    if n == 3: push(None, ctl)
                    if n == NF-1: push(None, adr)
                elif n >= BARG: push(f"w{n}0", wrd(n, 0))
        while q:
            t, x = q.pop(0); out.append(x)
            if t: issued.append(t)
        return out, issued
    _, steady = build([])
    out, _ = build(steady)
    for x in out: e(x)
    e(f"s_cmp_lt_u32 s{sSt}, 8\ns_cbranch_scc1 Lc_{tag}")
    tkout()
eC, eK, eT = 8, 40, 56
comp_loop(0)
e("s_branch Lcle\nLcl1:")
comp_loop(1)
e("Lcle:")
tstamp(1)
e(f"""s_bfe_u32 s{sT2}, s{sW}, 0x10001
s_mul_i32 s{sT2}, s{sT2}, 448
s_add_u32 s{sT2}, s{sT2}, {CSUM}
s_and_b32 s{sT1}, s{sW}, 1
s_lshl_b32 s{sT1}, s{sT1}, 6
s_add_u32 s{sT1}, s{sT1}, s{sT2}
v_and_b32 v{vT3}, 48, v{vLane}
v_add_u32 v{vT3}, s{sT2}, v{vT3}
v_add_u32 v{vT0}, s{sT1}, v{vLane}
s_mov_b32 exec_lo, 0x00010001
s_mov_b32 exec_hi, 0x00010001
ds_write_b128 v{vT0}, {vr(cCs,4)}
ds_write_b128 v{vT0}, {vr(cCs+4,4)} offset:128
ds_write_b128 v{vT0}, {vr(cCs+8,4)} offset:256
s_bitcmp1_b32 s{sW}, 0
s_cbranch_scc1 Lnc3
ds_write_b128 v{vT0}, {vr(cCs+12,4)} offset:384
Lnc3:
s_mov_b64 exec, -1
s_waitcnt vmcnt(0) lgkmcnt(0)
s_barrier""")
for u in range(4): e(f"ds_read_b128 {vr(eK+4*u,4)}, v{cEs} offset:{256*u}")
for n in range(NF): e(f"ds_read_b128 {vr(eC+4*n,4)}, v{vT3} offset:{64*n}")
e("s_waitcnt lgkmcnt(6)")
for u in range(4): e(f"v_mul_f32 v{eT+u}, {f2u(0.25*1.4426950408889634/C1):#x}, v{eK+4*u+1}")
for u in range(4):
    for p in (0, 2): e(pk("v_pk_fma_f32", cA+28*u+p, [('b', eK+4*u), ('p', eC+p), ('p', cA+28*u+p)]))
for u in range(4):
    for p in (0, 2): e(pk("v_pk_mul_f32", cA+28*u+p, [('p', cA+28*u+p), ('b', eT+u)]))
for u in range(4):
    q = cA+28*u
    e(f"v_cvt_pk_bf16_f32 v{q}, v{q}, v{q+1}\nv_cvt_pk_bf16_f32 v{q+1}, v{q+2}, v{q+3}")
for u in range(4): e(f"ds_write_b64 v{cEq}, {vr(cA+28*u,2)} offset:{2048*(u>>1)+256*(u&1)}")
EB1 = "--eb1" in sys.argv
e("s_waitcnt lgkmcnt(0)\ns_barrier" if EB1 else "s_waitcnt lgkmcnt(4)")
for u in range(4):
    g = cA+28*u+4; P = cA+28*(u & 2)+4
    gelu_tile(g, g+12, eC+4, eC+16, eK+4*u, eT, 12, [P+4*(p//2)+2*(u & 1)+(p & 1) for p in range(6)])
    if u & 1:
        e("s_nop 0")
        for t in range(3):
            e(f"v_permlane32_swap_b32 v{P+4*t}, v{P+4*t+2}\nv_permlane32_swap_b32 v{P+4*t+1}, v{P+4*t+3}")
        for t, so in enumerate((sC0, sC1, sC2)):
            e(f"buffer_store_dwordx4 {vr(P+4*t,4)}, v{cEh}, {sr(SWS,4)}, s{so} offen sc1")
        if u == 1: e(f"v_add_u32 v{cEh}, {88*1024}, v{cEh}")
if EB1:
    stamp(2)
    sentinel(vC)
tflush(); TS.clear()
e("s_branch Lp2b" if EB1 else "s_branch Lp2")

def cs_write(acc, slot_expr_sreg):
    e(f"""v_and_b32 v{vT0}, 1, v{vLane}
    v_lshlrev_b32 v{vT0}, 6, v{vT0}
    v_lshrrev_b32 v{vT1}, 4, v{vLane}
    v_lshl_add_u32 v{vT0}, v{vT1}, 4, v{vT0}
    v_add_u32 v{vT0}, {slot_expr_sreg}, v{vT0}
    s_mov_b32 exec_lo, 0x00030003
    s_mov_b32 exec_hi, 0x00030003
    ds_write_b128 v{vT0}, {vr(acc,4)}
    s_mov_b64 exec, -1""")
e("Lkvcu:\ns_setprio 0")
WKV = 131072
vXf, vWk = 32, 192
sXb = sMw
e(f"""s_lshl_b32 s{sT0}, s{sW}, 11
s_add_u32 m0, s{sT0}, {WKV}
s_lshl_b32 s{sXb}, s{sW}, 14
buffer_load_dwordx4 v{vL16}, {sr(SWV,4)}, s{sT0} offen lds
buffer_load_dwordx4 v{vL16}, {sr(SWV,4)}, s{sT0} offen offset:1024 lds
s_add_u32 m0, s{sT0}, {WKV+16384}
s_lshr_b32 s{sT3}, s{sW}, 2
buffer_load_dwordx4 v{vL16}, {sr(SWK,4)}, s{sT0} offen lds
buffer_load_dwordx4 v{vL16}, {sr(SWK,4)}, s{sT0} offen offset:1024 lds
s_lshl_b32 s{sT0}, s{sT3}, 9
s_add_u32 s{sXo}, s{sXo}, s{sT0}""")
def kvx_dma(c):
    return [f"""s_add_u32 m0, s{sXb}, {4096*c+2048*hf}
        s_add_u32 s{sT0}, s{sXo}, {128*c+16384*hf}
        buffer_load_dwordx4 v{vXa0}, {sr(SX,4)}, s{sT0} offen lds
        buffer_load_dwordx4 v{vXa1}, {sr(SX,4)}, s{sT0} offen offset:1024 lds""" for hf in range(2)]
for x in kvx_dma(0): e(x)
e(tag_issue())
for x in kvx_dma(1): e(x)
e(f"""v_and_b32 v{vT0}, 31, v{vLane}
v_lshrrev_b32 v{vT1}, 1, v{vT0}
v_and_b32 v{vT1}, 7, v{vT1}
v_xor_b32 v{vT1}, v{vT1}, v{vH}
v_lshlrev_b32 v{vT0}, 7, v{vT0}
v_add_u32 v{vT0}, s{sXb}, v{vT0}""")
for ks in range(4):
    e(f"v_xor_b32 v{vT2}, {2*ks}, v{vT1}\nv_lshl_add_u32 v{vRX+ks}, v{vT2}, 4, v{vT0}")
e(f"""v_bfe_u32 v{vT0}, v{vLane}, 2, 2
v_lshl_add_u32 v{vT0}, v{vH}, 3, v{vT0}
v_bfe_u32 v{vT1}, v{vLane}, 4, 1
v_and_b32 v{vT2}, 3, v{vLane}
v_lshlrev_b32 v{vT2}, 3, v{vT2}
v_lshl_add_u32 v{vT3}, v{vT1}, 5, v{vT2}
v_lshl_add_u32 v{vRQ}, v{vT0}, 6, v{vT3}
v_lshlrev_b32 v{vT1}, 14, v{vT1}
v_lshl_add_u32 v{vRW}, v{vT0}, 5, v{vT2}
s_lshr_b32 s{sT0}, s{sW}, 2
s_lshl_b32 s{sT0}, s{sT0}, 13
s_add_u32 s{sT1}, s{sT0}, {WKV}
v_add3_u32 v{vRW}, v{vRW}, v{vT1}, s{sT1}
s_add_u32 s{sT1}, s{sT1}, s{sT0}
v_add_u32 v{vRQ}, s{sT1}, v{vRQ}
v_lshrrev_b32 v{vT0}, 2, v{vLane}
v_lshlrev_b32 v{vT0}, 10, v{vT0}
v_and_b32 v{vT1}, 3, v{vLane}
v_lshl_add_u32 v{vQa}, v{vT1}, 4, v{vT0}
v_bfe_u32 v{vT0}, v{vLane}, 4, 1
v_and_b32 v{vT1}, 15, v{vLane}
v_cmp_eq_u32 vcc, v{vT0}, v{vT1}
v_mov_b32 v{vT2}, 0x3f803f80
s_nop 0
v_cndmask_b32 v{vSel}, 0, v{vT2}, vcc""")
for k in range(1, 4): e(f"v_mov_b32 v{vSel+k}, v{vSel}")
for r in range(vCs, vCs+4): e(f"v_mov_b32 v{r}, 0")
e(f"s_waitcnt vmcnt(5)\ns_cmp_lt_u32 s{sW}, 4\ns_cbranch_scc1 Lkvr1")
rowstat_finish()
e("Lkvr1:\ns_barrier")
stamp(12)
def kv_reads(c):
    r = []
    for ks in range(4):
        W = vWk + 16*(c & 1) + 4*ks
        r += [f"ds_read_b128 {vr(vXf+16*c+4*ks,4)}, v{vRX+ks} offset:{4096*c}"]
        r += tr(W, vRW, (64*c+16*ks)*32) + tr(W+2, vRW, (64*c+16*ks+4)*32)
    return r
def kstat_issue():
    return f"buffer_load_dwordx4 {vr(vSt,4)}, v{vWa0}, {sr(SWS,4)}, s{sC1} offen sc1"
for x in kv_reads(0) + kvx_dma(2) + kvx_dma(3): e(x)
e(f"""v_and_b32 v{vWa0}, 31, v{vLane}
v_lshlrev_b32 v{vWa0}, 4, v{vWa0}
s_lshl_b32 s{sT0}, s{sI}, 2
s_add_u32 s{sT0}, s{sT0}, s{sW4}
s_mul_i32 s{sC0}, s{sT0}, {KVT}
s_lshl_b32 s{sC1}, s{sT0}, 9
s_add_u32 s{sC1}, s{sC1}, {STATG}""")
for c in range(4):
    m = []
    for ks in range(4):
        X = vXf+16*c+4*ks; W = vWk + 16*(c & 1) + 4*ks
        z = "0" if c == 0 and ks == 0 else None
        m += [mfma(vAcc+16, W, X, z), mfma16(vCs, W, vSel), mfma(vAcc+32, X, W, z)]
    e("s_waitcnt lgkmcnt(0)")
    if c < 3:
        for x in m[:3] + [f"s_waitcnt vmcnt({8-4*c})"] + interleave(m[3:9], kv_reads(c+1)) + m[9:]: e(x)
        if c == 0:
            tag_wait("k", 8)
            e(f"s_cmp_lt_u32 s{sW}, 4\ns_cbranch_scc1 Lkvr2")
            rowstat_store()
            e("Lkvr2:")
    else:
        e(kstat_issue())
        for x in m: e(x)
tstamp(1)
e(f"""v_and_b32 v{vT2}, 31, v{vLane}
v_lshlrev_b32 v{vT2}, 2, v{vT2}
s_xor_b32 s{sT2}, s{sXb}, 65536
s_add_u32 s{sT1}, s{sXb}, 4352
s_lshl_b32 s{sQo}, s{sW}, 16
s_add_u32 s{sQo}, s{sQo}, {64*15}
s_lshl_b32 s{sMq}, s{sW}, 12
s_add_u32 s{sMq}, s{sMq}, {WKV}""")
cs_write(vCs, f"s{sT1}")
e(f"""v_add_u32 v{vT0}, s{sXb}, v{vL16}
v_add_u32 v{vWa1}, s{sT2}, v{vL16}
v_add_u32 v{vWa2}, s{sT2}, v{vT2}
v_lshl_add_u32 v{vT3}, v{vH}, 4, s{sXb}
s_cmp_ge_u32 s{sW}, 4
s_cbranch_scc1 LkvH""")
def wq_dma():
    for k in range(4):
        e(f"s_add_u32 m0, s{sMq}, {1024*k}\ns_add_u32 s{sT0}, s{sQo}, {16384*k}\nbuffer_load_dwordx4 v{vQa}, {sr(SWQ,4)}, s{sT0} offen lds")
def kstat_wait(tag):
    e(f"""s_mov_b32 s{sT0}, 0
    s_waitcnt vmcnt(0)
    Lks_{tag}:
    v_cmp_ne_u64 vcc, s[{sNo}:{sNo+1}], {vr(vSt+2,2)}
    s_add_u32 s{sT0}, s{sT0}, 1
    s_cmp_ge_u32 s{sT0}, 100000
    s_cbranch_vccz Lksd_{tag}
    s_cbranch_scc1 Lksd_{tag}
    {kstat_issue()}
    s_waitcnt vmcnt(0)
    s_branch Lks_{tag}
    Lksd_{tag}:""")
for q in range(4): e(f"ds_write_b128 v{vT0}, {vr(vAcc+32+4*q,4)} offset:{1024*q}")
e(f"v_xor_b32 v{vT1}, 0x10000, v{vT3}\ns_waitcnt lgkmcnt(0)\ns_barrier")
e(f"""ds_read_b128 {vr(vWk,4)}, v{vWa1}
ds_read_b128 {vr(vWk+4,4)}, v{vWa1} offset:1024
ds_read_b128 {vr(vSt+12,4)}, v{vT3} offset:{4352+64}
ds_read_b128 {vr(vSt+16,4)}, v{vT3} offset:{4352+96}
ds_read_b128 {vr(vWk+8,4)}, v{vT1} offset:{4352+64}
ds_read_b128 {vr(vWk+12,4)}, v{vT1} offset:{4352+96}""")
e(f"""v_and_b32 v{vT0}, 0x33, v{vLane}
v_bfe_u32 v{vT1}, v{vLane}, 2, 1
v_lshl_or_b32 v{vT0}, v{vT1}, 3, v{vT0}
v_bfe_u32 v{vT1}, v{vLane}, 3, 1
v_lshl_or_b32 v{vT0}, v{vT1}, 2, v{vT0}
v_lshlrev_b32 v{vT0}, 4, v{vT0}
s_waitcnt lgkmcnt(0)""")
for p in range(0, 8, 2):
    e(pk("v_pk_add_f32", vAcc+24+p, [('p', vAcc+24+p), ('p', vWk+p)]))
    e(pk("v_pk_add_f32", vSt+12+p, [('p', vSt+12+p), ('p', vWk+8+p)]))
kstat_wait("l")
e(f"v_sub_f32 v{vSt+4}, 0, v{vSt}")
lin_fold(vAcc+24, vSt+12, vSt+4, vSt+1, 8)
for p in range(4): e(f"v_cvt_pk_bf16_f32 v{vAcc+16+p}, v{vAcc+24+2*p}, v{vAcc+25+2*p}")
e(f"buffer_store_dwordx4 {vr(vAcc+16,4)}, v{vT0}, {sr(SWS,4)}, s{sC0} offen sc1\ns_branch LkvS")
e("LkvH:")
e(f"ds_write_b128 v{vT0}, {vr(vAcc+24,4)}\nds_write_b128 v{vT0}, {vr(vAcc+28,4)} offset:1024")
e(f"v_add_u32 v{vT1}, s{sXb}, v{vT2}\ns_waitcnt lgkmcnt(0)\ns_barrier")
e(f"ds_read_b32 v{vSt+6}, v{vT1} offset:4352\nds_read_b32 v{vSt+7}, v{vWa2} offset:4352")
for q in range(4): e(f"ds_read_b128 {vr(vAcc+48+4*q,4)}, v{vWa1} offset:{1024*q}")
tstamp(21)
kstat_wait("h")
tstamp(23)
e(f"ds_write_b32 v{vT1}, v{vSt} offset:4608\nds_write_b32 v{vT1}, v{vSt+1} offset:4736\ns_waitcnt lgkmcnt(0)")
for q in range(4):
    e(f"ds_read_b128 {vr(vWk+4*q,4)}, v{vT3} offset:{4608+32*q}\nds_read_b128 {vr(vWk+16+4*q,4)}, v{vT3} offset:{4736+32*q}")
e(f"v_add_f32 v{vSt+6}, v{vSt+6}, v{vSt+7}\nv_sub_f32 v{vSt+6}, 0, v{vSt+6}")
for p in range(0, 16, 2): e(pk("v_pk_add_f32", vAcc+32+p, [('p', vAcc+32+p), ('p', vAcc+48+p)]))
e("s_waitcnt lgkmcnt(0)")
for p in range(0, 16, 2): e(pk("v_pk_fma_f32", vAcc+32+p, [('p', vWk+p), ('b', vSt+6), ('p', vAcc+32+p)]))
for p in range(0, 16, 2): e(pk("v_pk_mul_f32", vAcc+32+p, [('p', vAcc+32+p), ('p', vWk+16+p)]))
for p in range(8): e(f"v_cvt_pk_bf16_f32 v{vAcc+32+p}, v{vAcc+32+2*p}, v{vAcc+33+2*p}")
v_lane_addr(vT0)
for p in range(8): e(f"v_mov_b32 v{vAcc+32+p}, 0x3f803f80")
e(f"""s_mov_b32 exec_lo, 0x1ffff
s_mov_b32 exec_hi, 0xffff
buffer_store_dwordx4 {vr(vAcc+32,4)}, v{vT0}, {sr(SWS,4)}, s{sC0} offen offset:1024 sc1
buffer_store_dwordx4 {vr(vAcc+36,4)}, v{vT0}, {sr(SWS,4)}, s{sC0} offen offset:{1024+528} sc1
s_mov_b64 exec, -1""")
tstamp(29)
e("LkvS:")
wq_dma()
for r in range(4): e(f"v_mov_b32 v{vCs+r}, 0")
e(f"s_lshl_b32 s{sT2}, s{sI}, 7\ns_add_u32 s{sT2}, s{sT2}, {KFLG}\ns_waitcnt vmcnt(4)\ns_barrier")
flag_set(sT2, "kv")
stamp(13)
tflush(); TS.clear()
early_init()
e("s_waitcnt vmcnt(0)\ns_barrier")
def q_reads(c):
    r = []
    for ks in range(4):
        W = vWk + 16*(c & 1) + 4*ks
        r += tr(W, vRQ, (64*c+16*ks)*64) + tr(W+2, vRQ, (64*c+16*ks+4)*64)
    return r
for x in q_reads(0): e(x)
for c in range(4):
    m = []
    for ks in range(4):
        X = vXf+16*c+4*ks; W = vWk + 16*(c & 1) + 4*ks
        m += [mfma(vAcc, W, X, "0" if c == 0 and ks == 0 else None), mfma16(vCs, W, vSel)]
    e("s_waitcnt lgkmcnt(0)")
    for x in interleave(m[:4], q_reads(c+1) if c < 3 else []) + m[4:]: e(x)
e(f"""s_or_b32 s{sT2}, s{sXb}, {65536+8192}
s_lshr_b32 s{sT3}, s{sW}, 2
s_lshl_b32 s{sT3}, s{sT3}, 7
s_add_u32 s{sT1}, s{sT2}, s{sT3}
s_add_u32 s{sT1}, s{sT1}, 4096
v_add_u32 v{vWa1}, s{sT2}, v{vL16}
v_lshl_add_u32 v{vT3}, v{vH}, 4, s{sT2}
s_nop 3""")
cs_write(vCs, f"s{sT1}")
e(f"s_cmp_ge_u32 s{sW}, 4\ns_cbranch_scc1 LkvH2\ns_waitcnt lgkmcnt(0)\ns_barrier")
for q in range(4): e(f"ds_read_b128 {vr(vWk+4*q,4)}, v{vWa1} offset:{1024*q}")
cs_read(vAcc+48, 4096); cs_read(vWk+16, 4096+128)
e("s_waitcnt lgkmcnt(0)")
for p in range(0, 16, 2):
    e(pk("v_pk_add_f32", vAcc+p, [('p', vAcc+p), ('p', vWk+p)]))
    e(pk("v_pk_add_f32", vAcc+48+p, [('p', vAcc+48+p), ('p', vWk+16+p)]))
q_epilogue(vAcc+48)
e("s_branch Lp2\nLkvH2:")
for q in range(4): e(f"ds_write_b128 v{vWa1}, {vr(vAcc+4*q,4)} offset:{1024*q}")
e(f"s_mov_b32 s{sKf}, {KFLG}")
e(flags_issue(sKf))
e("s_waitcnt lgkmcnt(0)\ns_barrier")
e("Lkvwait:")
stamp(16)
flags_wait(sKf, "kv", 0)
stamp(17)
kv_dma("b")
e("s_waitcnt vmcnt(0)")

vm = []
def vtag(tag): vm.append(tag)
def vwait_s(tag):
    idx = max(i for i, t in enumerate(vm) if t == tag)
    return f"s_waitcnt vmcnt({min(63, len(vm)-1-idx)})"
def w_dma(G):
    srdw, row = (SWD, 64*G) if G < 22 else (SWO, 64*(G-22))
    return [f"s_add_u32 m0, s{sDm}, {GSLOT[G]}", f"s_add_u32 s{sT0}, s{sDo}, {row*1024}",
            (f"g{G}", f"buffer_load_dwordx4 v{vDa}, {sr(srdw,4)}, s{sT0} offen lds")]
def w_reads(G, F):
    a = GSLOT[G]; win = a // 0xe000; off = a - win*0xe000
    r0, r1 = vRd+2*win, vRd+2*win+1
    d = 1024
    return tr(F, r0, off) + tr(F+2, r0, off+d) + tr(F+4, r1, off) + tr(F+6, r1, off+d)
def emit_seq(seq):
    for x in seq:
        if isinstance(x, list): emit_seq(x)
        elif isinstance(x, tuple): vtag(x[0]); e(x[1])
        elif callable(x): e(x())
        else: e(x)
e("Lp2:")
stamp(2)
sentinel(vC); vtag("sent")
e("s_waitcnt lgkmcnt(0)\ns_barrier")
e("Lp2b:")
e(f"s_add_u32 s{sT0}, s{sDm}, {QIMG}\nv_add_u32 v{vAq}, s{sT0}, v{vL16}")
stamp(3)
e(f"""ds_read_b128 {vr(vQ,4)}, v{vAq}
ds_read_b128 {vr(vKf[0],4)}, v{vAk}
ds_read_b128 {vr(vKf[1],4)}, v{vAk} offset:{KVT}
ds_read_b128 {vr(vVl[0],4)}, v{vAv}
s_waitcnt lgkmcnt(2)""")
e(mfma(vS[0], vKf[0], vQ, "0"))
e("s_nop 11")
e(f"v_max3_f32 v{vT1}, v{vS[0]}, v{vS[0]+1}, v{vS[0]+2}")
for p in range(3, 15, 2): e(f"v_max3_f32 v{vT1}, v{vT1}, v{vS[0]+p}, v{vS[0]+p+1}")
e(f"""v_max_f32 v{vT1}, v{vT1}, v{vS[0]+15}
v_mov_b32 v{vT2}, v{vT1}
s_nop 1
v_permlane32_swap_b32 v{vT1}, v{vT2}
s_nop 1
v_max_f32 v{vT1}, v{vT1}, v{vT2}""")
for r in range(16): e(f"v_sub_f32 v{vC+r}, 0, v{vT1}")
for r in range(16): e(f"v_sub_f32 v{vS[0]+r}, v{vS[0]+r}, v{vT1}")
stamp(5)
side = {T: [] for T in range(64)}
xm = {T: [] for T in range(65)}
for n in range(12):
    side[n].append([f"s_add_u32 s{sT0}, s{sDm}, {(36+8*n)*1024}", f"s_mov_b32 m0, s{sT0}", "s_nop 0",
                    ("kv", f"buffer_load_dwordx4 v{vL16}, {sr(SWS,4)}, s{sT0} offen sc1 lds")])
for T0, dt, Gs in ((16, 2, range(0, 7)), (33, 3, range(7, 11)), (48, 1, range(11, 22))):
    for n, G in enumerate(Gs): side[T0 + dt*n].append(w_dma(G))
side[21].append([f"v_lshlrev_b32 v{vT3}, 10, v{vLane}", f"s_lshl_b32 s{sT1}, s{sW}, 16", f"s_lshl_b32 s{sT0}, s{sCS}, 7",
                 f"s_add_u32 s{sT1}, s{sT1}, s{sT0}", ("t", f"buffer_load_dword v{vT2}, v{vT3}, {sr(SWO,4)}, s{sT1} offen")])
if "--notlb" not in sys.argv:
    side[24].append([("t", f"buffer_load_dword v{vT2}, off, {sr(SOUT,4)}, s{sXf}")])
    side[25].append([("t", f"buffer_load_dword v{vT2}, off, {sr(SWS,4)}, s{sOc} sc1")])
    side[26].append([("t", f"buffer_load_dword v{vT2}, off, {sr(SWS,4)}, s{sHo} sc1")])
HPT = 28
pollidx = []
side[HPT].append([f"s_cmp_lg_u32 s{sW}, 0", "s_cbranch_scc1 Lnohp", h_poll_issue(), lambda: (pollidx.append(len(vm)), "Lnohp:")[1]])
for i in range(22):
    T = 32 + (i*30)//22
    c = [f"s_add_u32 s{sC0}, s{sHo}, {1024*i}"] if i % 4 == 0 else []
    side[T].append(c + [(f"h{i}", f"buffer_load_dwordx4 {vr(vHf+4*i,4)}, v{vL16}, {sr(SWS,4)}, s{sC0} offen offset:{1024*(i%4)} sc1")])
side[46].append([("x", f"buffer_load_dwordx4 {vr(vHf,4)}, v{vRa}, {sr(SX,4)}, s{sXf} offen")])
lastm = {}
for T0, span, Gs in ((35, 13, range(0, 7)), (50, 12, range(7, 11))):
    k = len(Gs)
    for n, G in enumerate(Gs):
        F = vWf[G % 3]
        t0 = T0 + (2*n*span)//(2*k); t1 = T0 + ((2*n+1)*span)//(2*k)
        lastm[G] = t1+1
        assert G < 3 or t0 > lastm[G-3]
        for x in w_reads(G, F): side[t0].append([x])
        c0 = "0" if G == 0 else None
        w = (lambda g=G: vwait_s(f"h{g}"))
        xm[t0+1].append([w, mfma(vAf[0], F, vHf+4*G, c0)]); xm[t1+1].append([mfma(vAf[1], F+4, vHf+4*G, c0)])
def last_txt(c): return c[-1][1] if isinstance(c[-1], tuple) else c[-1]
def last_tag(c): return c[-1][0] if isinstance(c[-1], tuple) else ""
if "--dx" in sys.argv:
    dx = sys.argv[sys.argv.index("--dx")+1]
    vm += ["kv", "g6", "g8", "g14", "g21"] + [f"h{i}" for i in range(22)]
    for T in range(64):
        if "w" in dx: side[T] = [c for c in side[T] if not last_tag(c).startswith("g")]
        if "h" in dx: side[T] = [c for c in side[T] if not last_tag(c).startswith("h")]
        if "r" in dx: side[T] = [c for c in side[T] if "ds_" not in last_txt(c)]
        if "k" in dx: side[T] = [c for c in side[T] if last_tag(c) != "kv"]
        if "m" in dx: xm[T] = []
PRI = int(sys.argv[sys.argv.index("--pri")+1]) if "--pri" in sys.argv else 2
lastg = {16: "kv", 32: "g6", 48: "g10"}
for T in range(64):
    X = vS[T & 1]; Y = vS[(T+1) & 1]
    rel = T % 16
    e("s_waitcnt lgkmcnt(0)")
    if T in lastg:
        if "--abar" in sys.argv: stamp(32+3*list(lastg).index(T))
        e(vwait_s(lastg[T]))
        if T == 32:
            e(f"""s_cmp_lg_u32 s{sW}, 0
            s_cbranch_scc1 Lhok
            s_mov_b32 s{sT0}, 0
            s_waitcnt vmcnt({len(vm)-pollidx[0]})
            Lhp:
            v_cmp_ne_u64 vcc, s[{sNo}:{sNo+1}], {vr(vPoll,2)}
            s_add_u32 s{sT0}, s{sT0}, 1
            s_cmp_ge_u32 s{sT0}, 100000
            s_cbranch_vccz Lhok
            s_cbranch_scc1 Lhok
            s_sleep 4
            {h_poll_issue()}
            s_waitcnt vmcnt(0)
            s_branch Lhp
            Lhok:""")
        if "--abar" in sys.argv: stamp(33+3*list(lastg).index(T))
        e("s_barrier")
        if "--abar" in sys.argv: stamp(34+3*list(lastg).index(T))
        if T == 16:
            e(f"""s_cmp_lg_u32 s{sW}, 0
            s_cbranch_scc1 Lsig_h
            v_mov_b32 v{vPoll}, s{sNo}
            v_mov_b32 v{vPoll+1}, s{sNo+1}
            s_mov_b64 exec, 1
            buffer_store_dwordx2 {vr(vPoll,2)}, off, {sr(SWS,4)}, s{sHs} sc1
            s_mov_b64 exec, -1
            Lsig_h:""")
    if T and rel == 0: e(f"v_add_u32 v{vAk}, {16*KVT}, v{vAk}\nv_add_u32 v{vAv}, {16*KVT}, v{vAv}")
    seg0 = max([0] + [t for t in lastg if t <= T]); seg1 = min([64] + [t for t in lastg if t > T])
    if PRI == 2:
        if (seg1 - T) % 2 == 0: e(f"s_setprio {((seg1-T)//2 - 1) % 4}")
    ex = [f"v_exp_f32 v{X+i}, v{X+i}" for i in range(16)]
    rd = [f"ds_read_b128 {vr(vVh,4)}, v{vAv} offset:{rel*KVT+528}"]
    if T+1 < 64: rd.append(f"ds_read_b128 {vr(vVl[(T+1)&1],4)}, v{vAv} offset:{(rel+1)*KVT}")
    if T+2 < 64: rd.append(f"ds_read_b128 {vr(vKf[T&1],4)}, v{vAk} offset:{(rel+2)*KVT}")
    seq = ex[0:2] + ([smf(vO, vVh, Y+8, vIdx)] if T else []) + interleave(ex[2:5], rd)
    if T+1 < 64: seq.append(mfma(Y, vKf[(T+1) & 1], vQ, vr(vC, 16)))
    x2 = xm[T]
    assert len(x2) <= 2
    if len(x2) == 2: tail = ex[5:8] + [x2[0]] + ex[8:11] + [smf(vO, vVl[T & 1], X, vIdx)] + ex[11:14] + [x2[1]] + ex[14:16]
    else: tail = ex[5:10] + [smf(vO, vVl[T & 1], X, vIdx)] + ex[10:14] + x2 + ex[14:16]
    if "--nord" in sys.argv and T > 2: seq = [x for x in seq if "ds_read" not in x]
    if side[T]: tail = interleave(tail[:-3], side[T]) + tail[-3:]
    emit_seq(seq + tail)
assert not xm[64]
e("s_waitcnt lgkmcnt(0)\ns_nop 0")
e(smf(vO, vVh, vS[1]+8, vIdx))
e(f"s_mov_b32 s{sRetry}, 0")
e("Lfin:")
e(f"""s_nop 9
s_mov_b32 s{sC0}, {f2u(2.0**40):#x}
s_mov_b32 s{sC1}, {f2u(2.0**126):#x}
v_rcp_f32 v{vO+10}, v{vO+8}
v_max3_f32 v{vT1}, abs(v{vO}), abs(v{vO+1}), abs(v{vO+2})
v_max3_f32 v{vT1}, v{vT1}, abs(v{vO+3}), abs(v{vO+4})
v_max3_f32 v{vT1}, v{vT1}, abs(v{vO+5}), abs(v{vO+6})
v_max_f32 v{vT1}, v{vT1}, abs(v{vO+7})
v_cmp_nlt_f32 vcc, v{vO+8}, s{sC0}
v_cmp_nlt_f32 s[{sEx}:{sEx+1}], v{vT1}, s{sC1}""")
for p in range(8): e(f"v_mul_f32 v{vO+p}, v{vO+p}, v{vO+10}")
e(f"s_or_b64 vcc, vcc, s[{sEx}:{sEx+1}]")
for p in range(4): e(f"v_cvt_pk_bf16_f32 v{vO+p}, v{vO+2*p}, v{vO+2*p+1}")
for p in range(4): e(f"v_min_u32 v{vO+p}, -2, v{vO+p}")
e("s_cbranch_vccnz Lfallback\nLok:" if "--noside" not in sys.argv and "--dx" not in sys.argv else "Lok:")
emit_seq([("o", f"buffer_store_dwordx4 {vr(vO,4)}, v{vL16}, {sr(SWS,4)}, s{sOp} offen sc1")])
stamp(6)

def o_loads():
    for k in range(8):
        e(f"buffer_load_dwordx4 {vr(vOf+4*k,4)}, v{vL16}, {sr(SWS,4)}, s{sOc if k<4 else sOc2} offen offset:{1024*(k%4)} sc1")
def reduce_read(acc, off=0):
    return [f"ds_read_b128 {vr(acc+4*q,4)}, v{vRr} offset:{off+2048*(q//2)+1024*(q%2)}" for q in range(8)]
def reduce_write(acc, off=0):
    return [f"ds_write_b128 v{vRw}, {vr(acc+4*q,4)} offset:{off+ASL*(q//2)+1024*(q%2)}" for q in range(8)]
e(vwait_s("g21"))
e("s_setprio 0\ns_barrier")
stamp(8)
for x in w_reads(11, vWf[11 % 3]) + w_reads(12, vWf[12 % 3]): e(x)
for G in range(11, 22):
    F = vWf[G % 3]
    e("s_waitcnt lgkmcnt(4)" if G < 21 else "s_waitcnt lgkmcnt(0)")
    post = w_reads(G+2, vWf[(G+2) % 3]) if G+2 <= 21 else []
    if G < 15: post = post + [w_dma(22+2*(G-11)), w_dma(23+2*(G-11))]
    if G == 16: post = post + sum([[f"v_lshlrev_b32 v{vXr+2*p}, 16, v{vHf+p}", f"v_and_b32 v{vXr+1+2*p}, 0xffff0000, v{vHf+p}"] for p in range(4)], [])
    e(vwait_s(f"h{G}"))
    if G == 21:
        tstamp(18); e(vwait_s("g29")); tstamp(19); e("s_barrier"); tstamp(20)
        e(f"s_cmp_ge_u32 s{sKq}, 2\ns_cbranch_scc1 Lskip21")
    emit_seq(interleave([mfma(vAf[0], F, vHf+4*G), mfma(vAf[1], F+4, vHf+4*G)], post))
e("Lskip21:")
WOF = [168+8*k for k in range(6)] + [vWf[1], vWf[2]]
rdw = sum([w_reads(22+k, WOF[k]) for k in range(8)], [])
ol = [f"buffer_load_dwordx4 {vr(vOf+4*k,4)}, v{vL16}, {sr(SWS,4)}, s{sOc if k<4 else sOc2} offen offset:{1024*(k%4)} sc1" for k in range(8)]
for x in interleave(ol, rdw[:12] + interleave(reduce_write(vAf[0]), rdw[12:])): e(x)
e("s_waitcnt lgkmcnt(0)"); tstamp(22); e("s_barrier")
stamp(9)
tflush()
for x in reduce_read(vAf[0]): e(x)
e(f"s_mov_b32 s{sT0}, 0\ns_waitcnt vmcnt(0)")
f0 = vAf[0]
sil = ["s_waitcnt lgkmcnt(0)"]
sil += sum([[f"v_add_f32 v{f0+p}, v{f0+p}, v{f0+8+p}", f"v_add_f32 v{f0+16+p}, v{f0+16+p}, v{f0+24+p}"] for p in range(8)], [])
sil += [f"v_add_f32 v{f0+p}, v{f0+p}, v{f0+16+p}" for p in range(8)]
sil += [f"v_mul_f32 v{f0+8+p}, {f2u(-1.4426950408889634):#x}, v{f0+p}" for p in range(8)]
sil += [f"v_exp_f32 v{f0+8+p}, v{f0+8+p}" for p in range(8)]
sil2 = [f"v_add_f32 v{f0+8+p}, 1.0, v{f0+8+p}" for p in range(8)]
sil2 += [f"v_rcp_f32 v{f0+8+p}, v{f0+8+p}" for p in range(8)]
sil2 += [f"v_mul_f32 v{f0+p}, v{f0+p}, v{f0+8+p}" for p in range(8)]
for k in range(8):
    B = vOf+4*k
    e(f"""Loc{k}:
    v_max3_u32 v{vT1}, v{B}, v{B+1}, v{B+2}
    v_max_u32 v{vT1}, v{vT1}, v{B+3}
    v_cmp_eq_u32 vcc, -1, v{vT1}
    s_cbranch_vccnz Lor{k}
    Log{k}:""")
    e(mfma(vAs[0], WOF[k], B, "0" if k == 0 else None))
    if k >= 2:
        for x in sil[(k-2)*3:(k-1)*3]: e(x)
stamp(7)
wr = reduce_write(vAs[0], 4*ASL)
m1 = [mfma(vAs[1], WOF[k]+4, vOf+4*k, "0" if k == 0 else None) for k in range(8)]
for x in interleave(m1[:4], sil[18:]) + interleave(m1[4:], wr[:4]) + sil2[:12] + interleave(wr[4:], sil2[12:]): e(x)
stamp(10)
e("s_waitcnt lgkmcnt(0)\ns_barrier")
for x in reduce_read(vAs[0], 4*ASL): e(x)
e("s_waitcnt lgkmcnt(0)")
for p in range(0, 8, 2):
    e(pk("v_pk_add_f32", vAs[0]+p, [('p', vAs[0]+p), ('p', vAs[0]+8+p)]))
    e(pk("v_pk_add_f32", vAs[0]+16+p, [('p', vAs[0]+16+p), ('p', vAs[0]+24+p)]))
for p in range(0, 8, 2): e(pk("v_pk_add_f32", vAs[0]+p, [('p', vAs[0]+p), ('p', vAs[0]+16+p)]))
for p in range(0, 8, 2): e(pk("v_pk_mul_f32", vAs[0]+p, [('p', vAs[0]+p), ('p', vAf[0]+p)]))
e("s_nop 1")
for p in range(4): e(f"v_permlane32_swap_b32 v{vAs[0]+p}, v{vAs[0]+4+p}")
e("s_nop 1")
for p in range(0, 8, 2): e(pk("v_pk_add_f32", vAs[0]+p, [('p', vAs[0]+p), ('p', vXr+p)]))
for p in range(4): e(f"v_cvt_pk_bf16_f32 v{vAs[0]+p}, v{vAs[0]+2*p}, v{vAs[0]+2*p+1}")
e(f"buffer_store_dwordx4 {vr(vAs[0],4)}, v{vRa}, {sr(SOUT,4)}, s{sXf} offen")
if "--busym" in sys.argv:
    e("s_mov_b32 s99, 16\nLbusym:")
    for i in range(16): e(mfma(104+16*(i%2), WOF[i%7]+4*(i//8), vOf+4*((i*3)%8)))
    e("s_sub_u32 s99, s99, 1\ns_cmp_lg_u32 s99, 0\ns_cbranch_scc1 Lbusym")
stamp(11)
if RT: e(f"s_waitcnt vmcnt(0)\ns_memrealtime s[100:101]\ns_waitcnt lgkmcnt(0)\nv_mov_b32 v0, s100\nbuffer_store_dword v0, off, {sr(SWS,4)}, s{sPo} offset:56")
e("Lend:\ns_endpgm")

for k in range(8):
    e(f"""Lor{k}:
    s_add_u32 s{sT0}, s{sT0}, 1
    s_cmp_ge_u32 s{sT0}, 200000
    s_cbranch_scc1 Log{k}""")
    for k2 in range(k, 8):
        e(f"buffer_load_dwordx4 {vr(vOf+4*k2,4)}, v{vL16}, {sr(SWS,4)}, s{sOc if k2<4 else sOc2} offen offset:{1024*(k2%4)} sc1")
    e(f"s_waitcnt vmcnt(0)\ns_branch Loc{k}")
e("Lfallback:")
e(f"""s_cmp_lg_u32 s{sRetry}, 0
s_cbranch_scc1 Lok
s_mov_b32 s{sRetry}, 1
s_mov_b32 s{sSt}, 0
v_mov_b32 v{vT1}, 0xff800000
Lfb1:
buffer_load_dwordx4 {vr(vKf[0],4)}, v{vL16}, {sr(SWS,4)}, s{sSt} offen sc1
s_waitcnt vmcnt(0)""")
e(mfma(vS[0], vKf[0], vQ, "0"))
e("s_nop 11")
for p in range(0, 16, 2): e(f"v_max3_f32 v{vT1}, v{vT1}, v{vS[0]+p}, v{vS[0]+p+1}")
e(f"""s_add_u32 s{sSt}, s{sSt}, {KVT}
s_cmp_lt_u32 s{sSt}, {64*KVT}
s_cbranch_scc1 Lfb1
v_mov_b32 v{vT2}, v{vT1}
s_nop 1
v_permlane32_swap_b32 v{vT1}, v{vT2}
s_nop 1
v_max_f32 v{vT1}, v{vT1}, v{vT2}""")
for r in range(16): e(f"v_sub_f32 v{vC+r}, 0, v{vT1}")
for r in range(12): e(f"v_mov_b32 v{vO+r}, 0")
e(f"""v_subrev_u32 v{vAv}, {48*KVT}, v{vAv}
s_mov_b32 s{sSt}, 0
Lfb2:
buffer_load_dwordx4 {vr(vKf[0],4)}, v{vL16}, {sr(SWS,4)}, s{sSt} offen sc1
buffer_load_dwordx4 {vr(vVl[0],4)}, v{vAv}, {sr(SWS,4)}, s{sSt} offen sc1
buffer_load_dwordx4 {vr(vVh,4)}, v{vAv}, {sr(SWS,4)}, s{sSt} offen offset:528 sc1
s_waitcnt vmcnt(0)""")
e(mfma(vS[0], vKf[0], vQ, vr(vC, 16)))
e("s_nop 11")
for i in range(16): e(f"v_exp_f32 v{vS[0]+i}, v{vS[0]+i}")
e("s_nop 1")
e(smf(vO, vVl[0], vS[0], vIdx)); e(smf(vO, vVh, vS[0]+8, vIdx))
e(f"""s_add_u32 s{sSt}, s{sSt}, {KVT}
s_cmp_lt_u32 s{sSt}, {64*KVT}
s_cbranch_scc1 Lfb2
s_branch Lfin
Lcodeend:""")

L += ['.section .rodata,"a"', ".p2align 6", f".amdhsa_kernel {NAME}_kernel",
      "  .amdhsa_next_free_vgpr 256", "  .amdhsa_next_free_sgpr 102", "  .amdhsa_accum_offset 256",
      "  .amdhsa_group_segment_fixed_size 0", "  .amdhsa_kernarg_size 96", "  .amdhsa_user_sgpr_count 2",
      "  .amdhsa_user_sgpr_kernarg_segment_ptr 1", "  .amdhsa_system_sgpr_workgroup_id_x 1", ".end_amdhsa_kernel"]
open(OUT, "w").write("\n".join(L) + "\n")
print("wrote", OUT, len(L), "lines")
```

```python
import sys, struct
NAME = "recurrent_scan__grouped_kv_mqa__geglu_ffn__prompt"
PROF = "--prof" in sys.argv
OUT = [a for a in sys.argv[1:2] if not a.startswith("--")]
OUT = OUT[0] if OUT else f"cdna_kernels/{NAME}.s"

L = []
def e(s):
    for ln in s.split("\n"):
        if not ln.strip(): continue
        L.append(("    " + ln.strip()) if not ln.strip().endswith(":") else ln.strip())
def f2u(x): return struct.unpack("<I", struct.pack("<f", x))[0]
def vr(a, n): return f"v[{a}:{a+n-1}]"
def sr(a, n): return f"s[{a}:{a+n-1}]"

KVT = 2080
KVIMG = 0
HIMG = 135168
OIMG = HIMG + 64*88*1024
HFLG = OIMG + 64*32*1024
KFLG = HFLG + 256*128
STATG = KFLG + 16*128
PROFO = STATG + 2048*16
WS_BYTES = PROFO + 256*8*256
CNT_KV = 0
KVRDY = 128
STG = 45056
XOFF, GOFF, UOFF, QOFF = 0, 16384, 28672, 40960
STGK, QOFFK, NBK = 24832, 20736, 5
QIMG = 135168
STATM = 160768
CSUM = 162816
MRX = 159744
STL = 163712
FLAG = 163776
LDS_BYTES = 163840
SX, SWQ, SWK, SWV, SWO, SWG, SWD, SOUT, SDBG, SWS = 4, 8, 12, 16, 20, 24, 28, 32, 36, 40
sI, sJ, sW, sW4 = 44, 45, 46, 47
sXo, sWo, sQo, sLb = 48, 49, 50, 51
sMx, sMw, sMq = 52, 53, 54
sSt, sDl, sT0, sT1, sT2, sT3 = 55, 56, 57, 58, 59, 60
sTB, sCS, sRetry, sRb = 61, 62, 63, 3
sEx = 88
sTm = 90
sPo = 92
sC0, sC1, sC2, sC3 = 94, 95, 96, 97
sOp = 98
TOUCH = int("--touch" in sys.argv)
vLane, vH, vT0, vT1, vT2, vT3 = 1, 2, 3, 4, 5, 6
vXa0, vXa1, vWa0, vWa1, vWa2, vQa = 7, 8, 9, 10, 11, 12
vRX = 13
vRW, vRQ = 17, 18
vSel = 20
vCs = 24
vF = 32
vAcc = 96
vSt = 160
aQ = [8, 12]; aK = [16, 20]; aVl = [24, 28]; aVh = [32, 36]; aS = [40, 56]; aC = [72, 88]; aO = [104, 120]
fA, fWo, fWb, fH, fX, fG = 8, 72, [136, 144], 152, 200, 204
fS, fO, fR = 136, 8, 8
vIdx, vAk, vAv, vDa, vL16, vRa = 240, 241, 242, 243, 244, 245
vPoll = 246
vRd = 248
vRw, vRr, vRr2, vDa2 = 252, 253, 254, 255
vRw2 = 238
vAq = 237
sKq, sTt, sHo, sDo, sDm, sHc, sXf, sOc, sOc2, sHs = 64, 65, 66, 67, 68, 69, 70, 71, 72, 73
sOc3, sOc4, sOp2 = 80, 81, 99
sXf2 = 64
sNo = 86
sRow, sKf = 63, 85
ASL = 8320
def aslot(n): return ASL*n
SP = [135168, 143360, 151552]

nstamp = [0]
DBGT = "--dbgt" in sys.argv
DT = {0: 75, 12: 76, 1: 77, 2: 78, 3: 79, 6: 80, 9: 81, 7: 82, 11: 83}
PAD = (int(sys.argv[sys.argv.index("--pad")+1]), int(sys.argv[sys.argv.index("--pad")+2])) if "--pad" in sys.argv else None
npad = [0]
PADB = sNo if "--padg" in sys.argv else 100
def stamp(k):
    if PAD and PAD[0] == k:
        npad[0] += 1
        e(f"Lpad{npad[0]}:\ns_memrealtime s[{sTm}:{sTm+1}]\ns_waitcnt lgkmcnt(0)\ns_sub_u32 s{sTm}, s{sTm}, s{PADB}\ns_sleep 8\ns_cmp_lt_u32 s{sTm}, {PAD[1]}\ns_cbranch_scc1 Lpad{npad[0]}")
    if DBGT and k in DT:
        e(f"s_memrealtime s[{sTm}:{sTm+1}]\ns_waitcnt lgkmcnt(0)\ns_sub_u32 s{DT[k]}, s{sTm}, s100")
        if k == 11:
            e(f"s_memtime s[{sTm}:{sTm+1}]\ns_waitcnt lgkmcnt(0)\ns_sub_u32 s84, s{sTm}, s92")
            e(f"s_cmp_lg_u32 s2, 64\ns_cbranch_scc1 Lend\ns_cmp_lg_u32 s{sW}, 4\ns_cbranch_scc1 Lend")
            for n, r in enumerate(range(75, 85)):
                e(f"v_mov_b32 v0, s{r}\nbuffer_store_dword v0, off, {sr(SDBG,4)}, 0 offset:{4+4*n}\ns_nop 1")
    if not PROF: return
    e(f"""s_memtime s[{sTm}:{sTm+1}]
    s_waitcnt lgkmcnt(0)
    v_mov_b32 v0, s{sTm}
    buffer_store_dword v0, off, {sr(SWS,4)}, s{sPo} offset:{4*k}""")
    if k in RTS:
        e(f"""s_memrealtime s[{sTm}:{sTm+1}]
        s_waitcnt lgkmcnt(0)
        v_mov_b32 v0, s{sTm}
        buffer_store_dword v0, off, {sr(SWS,4)}, s{sPo} offset:{4*RTS[k]}""")
RTS = {12: 24, 1: 25, 5: 26, 6: 27, 11: 28}

TS = []
def tstamp(k):
    if not PROF: return
    r = 74 + len(TS); TS.append((k, r))
    e(f"s_memtime s[{sTm}:{sTm+1}]\ns_waitcnt lgkmcnt(0)\ns_mov_b32 s{r}, s{sTm}")
def tflush():
    for k, r in TS: e(f"v_mov_b32 v0, s{r}\nbuffer_store_dword v0, off, {sr(SWS,4)}, s{sPo} offset:{4*k}\ns_nop 1")
def tick(acc):
    if not PROF or "--notick" in sys.argv: return ""
    r = f"s_memtime s[{sTm}:{sTm+1}]\ns_waitcnt lgkmcnt(0)\n"
    if acc is not None: r += f"s_sub_u32 s99, s{sTm}, s99\ns_add_u32 s{acc}, s{acc}, s99\n"
    return r + f"s_mov_b32 s99, s{sTm}"

def interleave(main, fill):
    out = []; n = len(main); m = len(fill); k = 0
    for i, a in enumerate(main):
        out.append(a)
        t = (m * (i + 1)) // n
        out += fill[k:t]; k = t
    return out

def mfma(d, a, b, c=None):
    c = vr(d, 16) if c is None else c
    return f"v_mfma_f32_32x32x16_bf16 {vr(d,16)}, {vr(a,4)}, {vr(b,4)}, {c}"
def mfma16(d, a, b): return f"v_mfma_f32_16x16x32_bf16 {vr(d,4)}, {vr(a,4)}, {vr(b,4)}, {vr(d,4)}"
def smf(d, a, b, idx): return f"v_smfmac_f32_32x32x32_bf16 {vr(d,16)}, {vr(a,4)}, {vr(b,8)}, v{idx}"

TK = PROF and "--tk" in sys.argv
def tk(acc):
    if not TK: return ""
    r = f"s_memtime s[{sTm}:{sTm+1}]\ns_waitcnt lgkmcnt(0)\n"
    if acc is not None: r += f"s_sub_u32 s82, s{sTm}, s82\ns_add_u32 s{acc}, s{acc}, s82\n"
    return r + f"s_mov_b32 s82, s{sTm}"
def tkout():
    if TK: e(f"v_mov_b32 v0, s80\nbuffer_store_dword v0, off, {sr(SWS,4)}, s{sPo} offset:{4*29}\ns_nop 1\nv_mov_b32 v0, s81\nbuffer_store_dword v0, off, {sr(SWS,4)}, s{sPo} offset:{4*30}")
def tr(d, a, off): return [f"ds_read_b64_tr_b16 {vr(d,2)}, v{a} offset:{off}"]
def tag_issue(): return f"buffer_load_dwordx2 {vr(vPoll,2)}, off, {sr(SDBG,4)}, 0 sc1"
def tag_wait(tag, first_wait):
    e(f"""s_mov_b32 s{sT0}, 0
    s_waitcnt vmcnt({first_wait})
    Ltag_{tag}:
    v_readfirstlane_b32 s{sNo}, v{vPoll}
    v_readfirstlane_b32 s{sNo+1}, v{vPoll+1}
    s_add_u32 s{sT0}, s{sT0}, 1
    s_cmp_lg_u32 s{sNo}, 0
    s_cbranch_scc1 Ltagd_{tag}
    s_cmp_ge_u32 s{sT0}, 100000
    s_cbranch_scc1 Ltagd_{tag}
    s_sleep 1
    {tag_issue()}
    s_waitcnt vmcnt(0)
    s_branch Ltag_{tag}
    Ltagd_{tag}:""")
def flags_issue(base):
    return f"""v_and_b32 v{vPoll}, 15, v{vLane}
    v_lshlrev_b32 v{vPoll}, 7, v{vPoll}
    buffer_load_dwordx2 {vr(vPoll,2)}, v{vPoll}, {sr(SWS,4)}, s{base} offen sc1"""
def h_poll_issue(): return flags_issue(sHc)
def flags_wait(base, tag, first_wait):
    e(f"""s_mov_b32 s{sT0}, 0
    s_waitcnt vmcnt({first_wait})
    Lfw_{tag}:
    v_cmp_ne_u64 vcc, s[{sNo}:{sNo+1}], {vr(vPoll,2)}
    s_add_u32 s{sT0}, s{sT0}, 1
    s_cmp_ge_u32 s{sT0}, 100000
    s_cbranch_vccz Lfwd_{tag}
    s_cbranch_scc1 Lfwd_{tag}
    s_sleep 3
    {flags_issue(base)}
    s_waitcnt vmcnt(0)
    s_branch Lfw_{tag}
    Lfwd_{tag}:""")
def flag_set(off_sreg, tag, wave=0):
    e(f"""s_cmp_lg_u32 s{sW}, {wave}
    s_cbranch_scc1 Lsig_{tag}
    v_mov_b32 v{vPoll}, s{sNo}
    v_mov_b32 v{vPoll+1}, s{sNo+1}
    s_mov_b64 exec, 1
    buffer_store_dwordx2 {vr(vPoll,2)}, off, {sr(SWS,4)}, s{off_sreg} sc1
    s_mov_b64 exec, -1
    Lsig_{tag}:""")

hdr = open(f"cdna_kernels/{NAME}.s.ref").read().split("\n")
hdr = [h for h in hdr[:15] if h.startswith(";") and "@launch" not in h]
L += hdr
L.append(f"; @launch grid=(256,1,1) block=(512,1,1) lds={LDS_BYTES}")
L += ['.amdgcn_target "amdgcn-amd-amdhsa--gfx950"', ".text", f".globl {NAME}_kernel", ".p2align 8",
      f".type {NAME}_kernel,@function"]
e(f"{NAME}_kernel:")
RT = PROF
if RT: e("s_memrealtime s[100:101]\ns_memtime s[98:99]")
if DBGT or PAD: e("s_memrealtime s[100:101]\ns_memtime s[92:93]")
MAP84 = f"""s_and_b32 s{sI}, s{sT0}, 1
s_lshl_b32 s{sI}, s{sI}, 3
s_and_b32 s{sT2}, s{sT1}, 7
s_add_u32 s{sI}, s{sI}, s{sT2}
s_lshr_b32 s{sJ}, s{sT0}, 1
s_lshl_b32 s{sJ}, s{sJ}, 2
s_lshr_b32 s{sT3}, s{sT1}, 3
s_add_u32 s{sJ}, s{sJ}, s{sT3}
s_sub_u32 s{sJ}, 15, s{sJ}
s_and_b32 s{sTB}, s{sT0}, 3
s_lshl_b32 s{sTB}, s{sTB}, 3
s_add_u32 s{sTB}, s{sTB}, s{sT2}
s_lshr_b32 s{sCS}, s{sT0}, 2
s_lshl_b32 s{sCS}, s{sCS}, 2
s_add_u32 s{sCS}, s{sCS}, s{sT3}"""
MAP48 = f"""s_lshr_b32 s{sT2}, s{sT0}, 1
s_lshl_b32 s{sI}, s{sT2}, 2
s_and_b32 s{sT3}, s{sT1}, 3
s_add_u32 s{sI}, s{sI}, s{sT3}
s_lshl_b32 s{sTB}, s{sT2}, 3
s_and_b32 s{sT3}, s{sT1}, 7
s_add_u32 s{sTB}, s{sTB}, s{sT3}
s_and_b32 s{sT0}, s{sT0}, 1
s_lshl_b32 s{sJ}, s{sT0}, 3
s_lshr_b32 s{sT3}, s{sT1}, 2
s_add_u32 s{sJ}, s{sJ}, s{sT3}
s_sub_u32 s{sJ}, 15, s{sJ}
s_lshl_b32 s{sCS}, s{sT0}, 2
s_lshr_b32 s{sT3}, s{sT1}, 3
s_add_u32 s{sCS}, s{sCS}, s{sT3}"""
M48 = "--m48" in sys.argv
MAP = MAP48 if M48 else MAP84
PFC = "" if "--nopfc" in sys.argv else f"""s_cmp_lg_u32 s{sW}, 7
s_cbranch_scc1 Lnop0
s_getpc_b64 s[94:95]
Lpc0:
s_bfe_u32 s{sT0}, s2, 0x20003
s_lshl_b32 s{sT0}, s{sT0}, 13
v_lshl_add_u32 v{vT1}, v{vLane}, 7, s{sT0}
v_min_u32 v{vT1}, Lcodeend-Lpc0-4, v{vT1}
global_load_dword v223, v{vT1}, s[94:95]"""
e(f"""s_cmp_ge_u32 s2, 256
s_cbranch_scc1 Lend
s_load_dwordx16 s[64:79], s[0:1], 0
s_load_dwordx8 s[80:87], s[0:1], 64
s_memrealtime s[{sTm}:{sTm+1}]
v_and_b32 v{vLane}, 63, v0
v_lshrrev_b32 v{vT0}, 6, v0
v_lshrrev_b32 v{vH}, 5, v{vLane}
v_readfirstlane_b32 s{sW}, v{vT0}
s_cmp_lt_u32 s{sW}, 4
s_cbranch_scc1 Lnop0
s_setprio 2
{PFC}
Lnop0:
s_and_b32 s{sT0}, s2, 7
s_lshr_b32 s{sT1}, s2, 3
{MAP}
s_and_b32 s{sW4}, s{sW}, 3
v_lshrrev_b32 v{vT0}, 3, v{vLane}
v_lshlrev_b32 v{vT0}, 10, v{vT0}
v_and_b32 v{vT1}, 7, v{vLane}
v_lshrrev_b32 v{vT2}, 4, v{vLane}
v_xor_b32 v{vT1}, v{vT1}, v{vT2}
v_lshl_add_u32 v{vXa0}, v{vT1}, 4, v{vT0}
v_xor_b32 v{vXa1}, 64, v{vXa0}
v_add_u32 v{vXa1}, {8192-1024}, v{vXa1}
v_lshlrev_b32 v{vL16}, 4, v{vLane}
s_lshl_b32 s{sXo}, s{sI}, 17
s_lshl_b32 s{sT0}, s{sW4}, 15
s_add_u32 s{sXo}, s{sXo}, s{sT0}
s_lshl_b32 s{sRow}, s{sI}, 4
s_add_u32 s{sRow}, s{sRow}, s{sJ}
s_lshl_b32 s{sRow}, s{sRow}, 2
s_add_u32 s{sRow}, s{sRow}, s{sW4}
s_or_b32 s{sT0}, s2, s{sW}
s_waitcnt lgkmcnt(0)""")
def srd(d, p, nbytes):
    e(f"s_mov_b32 s{d}, s{p}\ns_mov_b32 s{d+1}, s{p+1}\ns_mov_b32 s{d+2}, {nbytes}\ns_mov_b32 s{d+3}, 0x20000")
srd(SX, 64, 2048*1024)
vRs = 144
e(f"""s_cmp_lt_u32 s{sW}, 4
s_cbranch_scc1 Lnorow
s_lshl_b32 s{sT1}, s{sRow}, 11
buffer_load_dwordx4 {vr(vRs,4)}, v{vL16}, {sr(SX,4)}, s{sT1} offen
buffer_load_dwordx4 {vr(vRs+4,4)}, v{vL16}, {sr(SX,4)}, s{sT1} offen offset:1024
Lnorow:""")
srd(SDBG, 84, 256)
e(f"""s_cmp_lg_u32 s{sT0}, 0
s_cbranch_scc1 Lnotag
s_or_b32 s{sTm}, s{sTm}, 1
v_mov_b32 v{vPoll}, s{sTm}
v_mov_b32 v{vPoll+1}, s{sTm+1}
s_mov_b64 exec, 1
buffer_store_dwordx2 {vr(vPoll,2)}, off, {sr(SDBG,4)}, 0 sc1
s_mov_b64 exec, -1
Lnotag:""")
SWU = SWK
srd(SWQ, 66, 512*1024); srd(SWG, 76, 512*2752)
e(f"s_cmp_eq_u32 s{sJ}, 15\ns_cselect_b32 s{SWK}, s68, s78\ns_cselect_b32 s{SWK+1}, s69, s79\ns_mov_b32 s{sT1}, {512*2752}\ns_cselect_b32 s{SWK+2}, 16384, s{sT1}\ns_mov_b32 s{SWK+3}, 0x20000")
srd(SWV, 70, 16384); srd(SWS, 86, WS_BYTES); srd(SWO, 72, 512*1024); srd(SWD, 80, 1376*1024); srd(SOUT, 82, 2048*1024)
if PROF:
    e(f"s_lshl_b32 s{sPo}, s2, 3\ns_add_u32 s{sPo}, s{sPo}, s{sW}\ns_lshl_b32 s{sPo}, s{sPo}, 8\ns_add_u32 s{sPo}, s{sPo}, {PROFO}")
stamp(0)
if TK: e("s_mov_b32 s80, 1\ns_mov_b32 s81, 1")
if RT: e(f"s_nop 1\nv_mov_b32 v0, s100\nbuffer_store_dword v0, off, {sr(SWS,4)}, s{sPo} offset:60\ns_nop 1\nv_mov_b32 v0, s98\nbuffer_store_dword v0, off, {sr(SWS,4)}, s{sPo} offset:16")
e(f"""s_cmp_eq_u32 s{sJ}, 15
s_cbranch_scc1 Lkvcu
s_cmp_ge_u32 s{sW}, 4
s_cbranch_scc1 Lcomp""")

def v_lane_addr(d):
    e(f"""v_and_b32 v{d}, 15, v{vLane}
    v_lshlrev_b32 v{d}, 4, v{d}
    v_lshl_add_u32 v{d}, v{vH}, 8, v{d}
    s_mov_b32 exec_lo, 0xffff0000
    s_mov_b32 exec_hi, 0xffff0000
    v_mov_b32 v{d}, 512""")
def fin_init():
    e(f"""s_lshl_b32 s{sT0}, s{sTB}, 16
    s_lshl_b32 s{sT1}, s{sCS}, 7
    s_add_u32 s{sT0}, s{sT0}, s{sT1}
    s_lshl_b32 s{sT1}, s{sW4}, 5
    s_add_u32 s{sXf}, s{sT0}, s{sT1}
    s_add_u32 s{sXf2}, s{sXf}, 32768
    v_and_b32 v{vT0}, 31, v{vLane}
    v_lshlrev_b32 v{vT0}, 10, v{vT0}
    v_lshl_add_u32 v{vRa}, v{vH}, 4, v{vT0}
    s_mul_i32 s{sT0}, s{sW4}, {ASL}
    v_add_u32 v{vRr2}, s{sT0}, v{vL16}
    v_add_u32 v{vRr}, {4*ASL}, v{vRr2}
    v_add_u32 v{vRr2+1}, {12*ASL}, v{vRr2}""")
def a_init(zero=True):
    e(f"""s_lshl_b32 s{sT0}, s{sI}, 2
    s_add_u32 s{sT0}, s{sT0}, s{sW4}
    s_lshl_b32 s{sT0}, s{sT0}, 5
    s_lshr_b32 s{sT1}, s{sJ}, 1
    s_add_u32 s{sT0}, s{sT0}, s{sT1}
    s_and_b32 s{sT1}, s{sJ}, 1
    s_lshl_b32 s{sT1}, s{sT1}, 4
    s_add_u32 s{sT0}, s{sT0}, s{sT1}
    s_lshl_b32 s{sT0}, s{sT0}, 10
    s_add_u32 s{sOp}, s{sT0}, {OIMG}
    s_add_u32 s{sOp2}, s{sOp}, 8192
    v_mov_b64 v[232:233], -1
    v_mov_b64 v[234:235], -1
    buffer_store_dwordx4 v[232:235], v{vL16}, {sr(SWS,4)}, s{sOp} offen sc1
    buffer_store_dwordx4 v[232:235], v{vL16}, {sr(SWS,4)}, s{sOp2} offen sc1""")
    v_lane_addr(vAv)
    e(f"""s_mov_b32 exec_lo, 0xffee0000
    s_mov_b32 exec_hi, 0xffee0000
    v_mov_b32 v{vAv}, 0x4000000
    s_mov_b64 exec, -1
    v_add_u32 v{vAv}, 1024, v{vAv}
    v_mov_b32 v{vAk}, v{vL16}
    v_mov_b32 v{vIdx}, 0xdddd
    s_lshl_b32 s{sT0}, s{sW4}, 11
    s_add_u32 s{sT0}, s{sT0}, {QIMG}
    v_add_u32 v{vAq}, s{sT0}, v{vL16}""")
    if zero: a_zero()
def a_zero():
    for b in range(2):
        for r in range(0, 12, 2): e(f"v_mov_b64 {vr(aO[b]+r,2)}, 0")
def f_init():
    e(f"""v_lshrrev_b32 v{vT0}, 3, v{vLane}
    v_lshlrev_b32 v{vT0}, 10, v{vT0}
    v_and_b32 v{vT1}, 7, v{vLane}
    v_bfe_u32 v{vT2}, v{vLane}, 4, 1
    v_lshlrev_b32 v{vT2}, 2, v{vT2}
    v_xor_b32 v{vT1}, v{vT1}, v{vT2}
    v_lshl_add_u32 v{vDa}, v{vT1}, 4, v{vT0}
    v_add_u32 v{vDa2}, {8192-1024}, v{vDa}
    s_lshl_b32 s{sDo}, s{sW4}, 14
    s_lshl_b32 s{sT1}, s{sCS}, 7
    s_add_u32 s{sDo}, s{sDo}, s{sT1}
    s_lshl_b32 s{sDm}, s{sW4}, 11
    s_mul_i32 s{sHo}, s{sTB}, 176
    s_mul_i32 s{sT0}, s{sW4}, 22
    s_add_u32 s{sHo}, s{sHo}, s{sT0}
    s_lshl_b32 s{sHo}, s{sHo}, 10
    s_add_u32 s{sHo}, s{sHo}, {HIMG}
    s_lshl_b32 s{sT0}, s{sTB}, 3
    s_add_u32 s{sT0}, s{sT0}, s{sW4}
    s_lshl_b32 s{sT0}, s{sT0}, 13
    s_add_u32 s{sOc}, s{sT0}, {OIMG}
    s_add_u32 s{sOc2}, s{sOc}, 4096
    s_add_u32 s{sOc3}, s{sOc}, 32768
    s_add_u32 s{sOc4}, s{sOc}, {32768+4096}
    s_lshr_b32 s{sHc}, s{sTB}, 1
    s_lshl_b32 s{sHc}, s{sHc}, 11
    s_add_u32 s{sHc}, s{sHc}, {HFLG}
    s_lshl_b32 s{sHs}, s{sI}, 4
    s_add_u32 s{sHs}, s{sHs}, s{sJ}
    s_lshl_b32 s{sHs}, s{sHs}, 7
    s_add_u32 s{sHs}, s{sHs}, {HFLG}
    v_bfe_u32 v{vT0}, v{vLane}, 2, 2
    v_lshl_add_u32 v{vT0}, v{vH}, 2, v{vT0}
    v_lshlrev_b32 v{vT0}, 7, v{vT0}
    v_bfe_u32 v{vT1}, v{vLane}, 4, 1
    v_lshl_add_u32 v{vT0}, v{vT1}, 5, v{vT0}
    v_and_b32 v{vT1}, 3, v{vLane}
    v_lshl_add_u32 v{vT0}, v{vT1}, 3, v{vT0}
    v_bfe_u32 v{vT1}, v{vLane}, 3, 1
    v_lshl_add_u32 v{vT0}, v{vT1}, 6, v{vT0}
    v_add_u32 v{vRd}, s{sDm}, v{vT0}
    v_xor_b32 v{vRd+1}, 64, v{vRd}
    v_add_u32 v{vRd+2}, {SP[0]}, v{vRd}
    v_add_u32 v{vRd+3}, {SP[0]}, v{vRd+1}
    v_add_u32 v{vRw2}, s{sDm}, v{vL16}
    v_add_u32 v{vRw}, {4*ASL}, v{vRw2}
    v_add_u32 v{vRw2+1}, {12*ASL}, v{vRw2}""")
def kv_rest(tag):
    e(f"""s_lshl_b32 s{sT0}, s{sW4}, 10
    s_add_u32 s{sT0}, s{sT0}, {36*1024}
    Lkvr_{tag}:
    s_mov_b32 m0, s{sT0}
    s_nop 0
    buffer_load_dwordx4 v{vL16}, {sr(SWS,4)}, s{sT0} offen sc1 lds
    s_add_u32 s{sT0}, s{sT0}, 4096
    s_cmp_lt_u32 s{sT0}, {132*1024}
    s_cbranch_scc1 Lkvr_{tag}""")
    e(tag_issue())

def spread(m, fill):
    w = [16 if "16x16" in x else 32 for x in m]
    tot = sum(c for c, _ in fill); W = sum(w)
    out = []; k = 0; acc = 0; cw = 0
    for x, wx in zip(m, w):
        out.append(x); cw += wx
        while k < len(fill) and (acc + fill[k][0]/2) * W <= tot * cw:
            out.append(fill[k][1]); acc += fill[k][0]; k += 1
    out += [t for _, t in fill[k:]]
    return out


C1 = -2*0.7978845608028654*1.4426950408889634
C3 = C1*0.044715
def gelu_consts(m, r, d):
    e(f"""v_sub_f32 v{d}, 0, v{m}
    v_mul_f32 v{d+3}, v{r}, v{r}
    v_mul_f32 v{d+1}, {f2u(C1):#x}, v{r}
    v_mul_f32 v{d+2}, {f2u(C3):#x}, v{r}
    v_mul_f32 v{d+2}, v{d+2}, v{d+3}
    v_rcp_f32 v{d+3}, v{d+3}""")
def bc(reg, pos, n):
    base = reg & ~1
    return vr(base, 2), reg & 1
def pk(op, d, srcs, neg=None):
    ops = []; lo = []; hi = []
    for t, r in srcs:
        if t == 'p': ops.append(vr(r, 2)); lo.append(0); hi.append(1)
        else: ops.append(vr(r & ~1, 2)); lo.append(r & 1); hi.append(r & 1)
    return f"{op} {vr(d,2)}, {', '.join(ops)} op_sel:[{','.join(map(str,lo))}] op_sel_hi:[{','.join(map(str,hi))}]"
def gelu_tile(g, u, csg, csu, k, tmp, n=16, dst=None):
    for p in range(0, n, 2):
        e(pk("v_pk_fma_f32", g+p, [('b', k), ('p', csg+p), ('p', g+p)]))
        e(pk("v_pk_fma_f32", u+p, [('b', k), ('p', csu+p), ('p', u+p)]))
    for p in range(0, n, 2):
        e(pk("v_pk_mul_f32", tmp+p, [('p', g+p), ('p', g+p)]))
    for p in range(0, n, 2):
        e(pk("v_pk_fma_f32", tmp+p, [('p', tmp+p), ('b', k+2), ('b', k+1)]))
    for p in range(0, n, 2):
        e(pk("v_pk_mul_f32", tmp+p, [('p', tmp+p), ('p', g+p)]))
    for p in range(n): e(f"v_exp_f32 v{tmp+p}, v{tmp+p}")
    for p in range(0, n, 2):
        e(pk("v_pk_mul_f32", u+p, [('p', u+p), ('p', g+p)]))
    for p in range(0, n, 2):
        e(pk("v_pk_fma_f32", tmp+p, [('p', tmp+p), ('b', k+3), ('b', k+3)]))
    for p in range(n): e(f"v_rcp_f32 v{tmp+p}, v{tmp+p}")
    e("s_nop 0")
    for p in range(0, n, 2):
        e(pk("v_pk_mul_f32", u+p, [('p', u+p), ('p', tmp+p)]))
    for p in range(n//2): e(f"v_cvt_pk_bf16_f32 v{dst[p] if dst else g+p}, v{u+2*p}, v{u+2*p+1}")

def cs_read(d, slot_off):
    for q in range(4): e(f"ds_read_b128 {vr(d+4*q,4)}, v{vT3} offset:{slot_off+32*q}")

def lin_fold(acc, cs, negm, scale, n=16):
    for p in range(0, n, 2):
        e(pk("v_pk_fma_f32", acc+p, [('b', negm), ('p', cs+p), ('p', acc+p)]))
    for p in range(0, n, 2):
        e(pk("v_pk_mul_f32", acc+p, [('p', acc+p), ('b', scale)]))

def q_epilogue(cs):
    e(f"v_mul_f32 v{vSt+2}, {f2u(0.25*1.4426950408889634):#x}, v{vSt+1}")
    lin_fold(vAcc, cs, vSt+4, vSt+2)
    for p in range(8): e(f"v_cvt_pk_bf16_f32 v{vAcc+p}, v{vAcc+2*p}, v{vAcc+2*p+1}")
    e(f"""s_lshl_b32 s{sT0}, s{sW4}, 11
    s_add_u32 s{sT0}, s{sT0}, {QIMG}
    v_lshl_add_u32 v{vT0}, v{vLane}, 4, s{sT0}
    ds_write_b128 v{vT0}, {vr(vAcc,4)}
    ds_write_b128 v{vT0}, {vr(vAcc+4,4)} offset:1024""")


def rowstat_finish():
    a = vRs+8
    e(f"v_mov_b32 v{vT0}, 0x3f803f80")
    for k in range(4):
        for r in range(2):
            x = vRs+4*r+k
            c0 = "0" if k == 0 else f"v{a+2*r}"; c1 = "0" if k == 0 else f"v{a+2*r+1}"
            e(f"v_dot2_f32_bf16 v{a+2*r}, v{x}, v{vT0}, {c0}\nv_dot2_f32_bf16 v{a+2*r+1}, v{x}, v{x}, {c1}")
    e("s_nop 2")
    for ctl in ("row_shr:1", "row_shr:2", "row_shr:4", "row_shr:8"):
        for k in range(4): e(f"v_add_f32_dpp v{a+k}, v{a+k}, v{a+k} {ctl} row_mask:0xf bank_mask:0xf bound_ctrl:0")
    for ctl in ("row_bcast:15 row_mask:0xa", "row_bcast:31 row_mask:0xc"):
        for k in range(4): e(f"v_add_f32_dpp v{a+k}, v{a+k}, v{a+k} {ctl} bank_mask:0xf")
    for r in range(2):
        d = vRs+4*r
        e(f"""v_mul_f32 v{d}, {f2u(1/512):#x}, v{a+2*r}
        v_mul_f32 v{d+1}, {f2u(1/512):#x}, v{a+2*r+1}
        v_fma_f32 v{d+1}, -v{d}, v{d}, v{d+1}
        v_max_f32 v{d+1}, 0, v{d+1}
        v_add_f32 v{d+1}, {f2u(1e-5):#x}, v{d+1}
        v_rsq_f32 v{d+1}, v{d+1}""")
def rowstat_post():
    e(f"""s_lshl_b32 s{sT0}, s{sW4}, 4
    s_add_u32 s{sT0}, s{sT0}, {STL}
    v_mov_b32 v{vT0}, s{sT0}
    s_mov_b32 exec_lo, 0
    s_brev_b32 exec_hi, 1
    ds_write_b64 v{vT0}, {vr(vRs,2)}
    ds_write_b64 v{vT0}, {vr(vRs+4,2)} offset:8
    s_mov_b64 exec, -1""")
def rowstat_store():
    for r in range(2): e(f"v_mov_b32 v{vRs+4*r+2}, s{sNo}\nv_mov_b32 v{vRs+4*r+3}, s{sNo+1}")
    e(f"""s_lshl_b32 s{sT0}, s{sRow}, 5
    s_add_u32 s{sT0}, s{sT0}, {STATG}
    s_mov_b32 exec_lo, 0
    s_brev_b32 exec_hi, 1
    buffer_store_dwordx4 {vr(vRs,4)}, off, {sr(SWS,4)}, s{sT0} sc1
    buffer_store_dwordx4 {vr(vRs+4,4)}, off, {sr(SWS,4)}, s{sT0} offset:16 sc1
    s_mov_b64 exec, -1""")
def kv_dma(tag):
    e(f"""s_lshl_b32 s{sT0}, s{sW4}, 10
    Lkvd_{tag}:
    s_mov_b32 m0, s{sT0}
    s_nop 0
    buffer_load_dwordx4 v{vL16}, {sr(SWS,4)}, s{sT0} offen sc1 lds
    s_add_u32 s{sT0}, s{sT0}, 4096
    s_cmp_lt_u32 s{sT0}, {36*1024}
    s_cbranch_scc1 Lkvd_{tag}""")
def tr_lane(rowmul, d):
    e(f"""v_lshrrev_b32 v{vT0}, 4, v{vLane}
    v_bfe_u32 v{vT1}, v{vLane}, 2, 2
    v_lshl_add_u32 v{vT0}, v{vT0}, 3, v{vT1}
    v_mul_u32_u24 v{vT0}, {rowmul}, v{vT0}
    v_bfe_u32 v{vT1}, v{vLane}, 4, 1
    v_lshl_add_u32 v{vT0}, v{vT1}, 5, v{vT0}
    v_and_b32 v{vT1}, 3, v{vLane}
    v_lshl_add_u32 v{d}, v{vT1}, 3, v{vT0}""")
def ones_col0(d):
    e(f"""v_and_b32 v{vT0}, 15, v{vLane}
    v_cmp_eq_u32 vcc, 0, v{vT0}
    v_mov_b32 v{vT1}, 0x3f803f80
    s_nop 0
    v_cndmask_b32 v{d}, 0, v{vT1}, vcc""")
    for k in range(1, 4): e(f"v_mov_b32 v{d+k}, v{d}")
def rot_delta():
    return f"s_add_u32 s{sRb}, s{sRb}, 1\ns_cmp_eq_u32 s{sRb}, 3\ns_cselect_b32 s{sDl}, s{sC3}, {STG}\ns_cselect_b32 s{sRb}, 0, s{sRb}"
def cs16_write(accs, slot0_sreg, stride):
    e(f"v_add_u32 v{vT0}, s{slot0_sreg}, v{vLane}\ns_mov_b32 exec_lo, 0x00010001\ns_mov_b32 exec_hi, 0x00010001")
    for n, a in enumerate(accs): e(f"ds_write_b128 v{vT0}, {vr(a,4)} offset:{stride*n}")
    e("s_mov_b64 exec, -1")

ROT = int(sys.argv[sys.argv.index("--rot")+1]) if "--rot" in sys.argv else 7
sKs = 84
def dma_x():
    return [f"s_add_u32 m0, s{sLb}, s{sMx}", f"s_add_u32 s{sT0}, s{sXo}, 16384",
            f"buffer_load_dwordx4 v{vXa0}, {sr(SX,4)}, s{sXo} offen lds",
            f"buffer_load_dwordx4 v{vXa1}, {sr(SX,4)}, s{sXo} offen offset:1024 lds",
            "s_add_u32 m0, m0, 2048", f"s_add_u32 s{sXo}, s{sXo}, 128",
            f"buffer_load_dwordx4 v{vXa0}, {sr(SX,4)}, s{sT0} offen lds",
            f"buffer_load_dwordx4 v{vXa1}, {sr(SX,4)}, s{sT0} offen offset:1024 lds"]
def dma_w():
    r = []
    for k, sd in enumerate((SWG, SWU)):
        r += [f"s_add_u32 m0, s{sLb}, s{sMw}" if k == 0 else f"s_add_u32 m0, m0, {UOFF-GOFF}", "s_nop 0",
              f"buffer_load_dwordx4 v{vWa0}, {sr(sd,4)}, s{sWo} offen lds",
              f"buffer_load_dwordx4 v{vWa1}, {sr(sd,4)}, s{sWo} offen offset:1024 lds",
              f"buffer_load_dwordx4 v{vWa2}, {sr(sd,4)}, s{sWo} offen offset:2048 lds"]
    r += [f"s_add_u32 m0, s{sLb}, s{sMq}", f"s_add_u32 s{sWo}, s{sWo}, {64*2752}",
          f"buffer_load_dwordx4 v{vQa}, {sr(SWQ,4)}, s{sQo} offen lds", f"s_add_u32 s{sQo}, s{sQo}, 65536",
          f"s_add_u32 s{sLb}, s{sLb}, {STG}", f"s_cmp_ge_u32 s{sLb}, {3*STG}", f"s_cselect_b32 s{sLb}, 0, s{sLb}"]
    if ROT:
        r += [f"s_add_u32 s{sKs}, s{sKs}, 1", f"s_cmp_eq_u32 s{sKs}, 8",
              f"s_cselect_b32 s{sT0}, 1024, 0", f"s_cselect_b32 s{sT1}, {512*2752}, 0", f"s_cselect_b32 s{sT2}, {512*1024}, 0",
              f"s_sub_u32 s{sXo}, s{sXo}, s{sT0}", f"s_sub_u32 s{sWo}, s{sWo}, s{sT1}", f"s_sub_u32 s{sQo}, s{sQo}, s{sT2}"]
    return r
e(f"s_mov_b32 s{sLb}, 0\ns_lshl_b32 s{sMx}, s{sW4}, 12")
if ROT: e(f"s_lshl_b32 s{sKs}, s{sI if M48 else sJ}, 1\ns_add_u32 s{sKs}, s{sKs}, s{sJ if M48 else sI}\ns_and_b32 s{sKs}, s{sKs}, {ROT}\ns_lshl_b32 s{sT0}, s{sKs}, 7\ns_add_u32 s{sXo}, s{sXo}, s{sT0}")
for x in dma_x(): e(x)
for k, r in enumerate((vWa0, vWa1, vWa2)):
    e(f"""v_add_u32 v{vT0}, {64*k}, v{vLane}
    v_mul_u32_u24 v{vT1}, 43691, v{vT0}
    v_lshrrev_b32 v{vT1}, 19, v{vT1}
    v_mul_u32_u24 v{vT2}, 12, v{vT1}
    v_sub_u32 v{vT0}, v{vT0}, v{vT2}
    v_lshrrev_b32 v{vT2}, 2, v{vT1}
    v_and_b32 v{vT2}, 2, v{vT2}
    v_xor_b32 v{vT0}, v{vT0}, v{vT2}
    v_mul_u32_u24 v{vT1}, 2752, v{vT1}
    v_lshl_add_u32 v{r}, v{vT0}, 4, v{vT1}""")
    if k: e(f"v_subrev_u32 v{r}, {1024*k}, v{r}")
e(f"""v_lshrrev_b32 v{vT0}, 2, v{vLane}
v_lshlrev_b32 v{vT0}, 10, v{vT0}
v_and_b32 v{vT1}, 3, v{vLane}
v_lshlrev_b32 v{vT2}, 1, v{vH}
v_xor_b32 v{vT1}, v{vT1}, v{vT2}
v_lshl_add_u32 v{vQa}, v{vT1}, 4, v{vT0}
s_mul_i32 s{sT0}, s{sJ}, 96
s_min_u32 s{sT0}, s{sT0}, 1280
s_lshl_b32 s{sT0}, s{sT0}, 1
s_mul_i32 s{sWo}, s{sW4}, {16*2752}
s_add_u32 s{sWo}, s{sWo}, s{sT0}
s_lshl_b32 s{sQo}, s{sW4}, 14
s_lshl_b32 s{sT0}, s{sJ}, 6
s_add_u32 s{sQo}, s{sQo}, s{sT0}
s_mul_i32 s{sMw}, s{sW4}, 3072
s_add_u32 s{sMw}, s{sMw}, {GOFF}
s_lshl_b32 s{sMq}, s{sW4}, 10
s_add_u32 s{sMq}, s{sMq}, {QOFF}""")
if ROT: e(f"s_mul_i32 s{sT0}, s{sKs}, {64*2752}\ns_add_u32 s{sWo}, s{sWo}, s{sT0}\ns_lshl_b32 s{sT0}, s{sKs}, 16\ns_add_u32 s{sQo}, s{sQo}, s{sT0}")
for x in dma_w() + dma_x() + dma_w(): e(x)
e(tag_issue())
hW = 32
e(f"s_mov_b32 s{sSt}, 0\ns_mov_b32 s{sRb}, 0\ns_mov_b32 s{sC3}, {(-2*STG) & 0xffffffff}")
if "--hp3" in sys.argv: e("s_setprio 3")
tstamp(21); e("s_waitcnt vmcnt(12)"); tstamp(23); e("s_barrier")
stamp(12); tflush(); TS.clear()
def helper_loop(cs):
    t = "c" if cs else "n"
    e(f"Lhl{t}:")
    if cs:
        rd, m = cs_parts()
        for x in rd: e(x)
        e(rot_delta())
        for x in dma_x(): e(x)
        e(f"v_add_u32 v{hA}, s{sDl}, v{hA}\nv_add_u32 v{hA+1}, s{sDl}, v{hA+1}\ns_waitcnt lgkmcnt(0)")
        w = dma_w(); k = 0
        for x in w:
            e(x)
            if "buffer_load" in x: e(m[k]); k += 1
        for x in m[k:]: e(x)
    else:
        for x in dma_x() + dma_w():
            if "--nodma" in sys.argv and "buffer_load" in x: continue
            e(x)
            if "--pace" in sys.argv and "buffer_load" in x: e("s_sleep 1")
        e(f"s_or_b32 s{sT0}, s{sSt}, s{sW}\ns_cmp_lg_u32 s{sT0}, 0\ns_cbranch_scc1 Lnpub")
        e(f"v_lshlrev_b32 v{vT0}, 3, v{vLane}\nv_add_u32 v{vT0}, {STL}, v{vT0}\nds_read_b64 {vr(hW,2)}, v{vT0}")
        tag_wait("p", 11)
        e(f"""v_mov_b32 v{hW+2}, s{sNo}
        v_mov_b32 v{hW+3}, s{sNo+1}
        s_lshl_b32 s{sT0}, s{sRow}, 5
        s_add_u32 s{sT0}, s{sT0}, {STATG}
        s_mov_b64 exec, 0xff
        s_waitcnt lgkmcnt(0)
        buffer_store_dwordx4 {vr(hW,4)}, v{vL16}, {sr(SWS,4)}, s{sT0} offen sc1
        s_mov_b64 exec, -1
        Lnpub:""")
    e(f"""s_add_u32 s{sSt}, s{sSt}, 1
    {tk(None)}
    s_waitcnt vmcnt(11)
    {tk(80)}
    s_barrier
    {tk(81)}
    s_cmp_lt_u32 s{sSt}, 6
    s_cbranch_scc1 Lhl{t}""")
helper_loop(False)
tkout()
tag_wait("h", 0)
a_init(); fin_init()
e(f"s_mov_b32 s{sKf}, {KFLG}")
e("s_barrier")
e(flags_issue(sKf))
e(f"s_cmp_lg_u32 s{sW}, 1\ns_cbranch_scc1 Lhns\ns_lshl_b32 s{sT1}, s{sI}, 11\ns_add_u32 s{sT1}, s{sT1}, {STATG}\ns_mov_b32 s{sT0}, 0\nLhs:")
e(f"""buffer_load_dwordx4 {vr(hW,4)}, v{vL16}, {sr(SWS,4)}, s{sT1} offen sc1
buffer_load_dwordx4 {vr(hW+4,4)}, v{vL16}, {sr(SWS,4)}, s{sT1} offen offset:1024 sc1
s_add_u32 s{sT0}, s{sT0}, 1
s_waitcnt vmcnt(0)
v_cmp_ne_u64 vcc, s[{sNo}:{sNo+1}], {vr(hW+2,2)}
v_cmp_ne_u64 s[{sEx}:{sEx+1}], s[{sNo}:{sNo+1}], {vr(hW+6,2)}
s_or_b64 vcc, vcc, s[{sEx}:{sEx+1}]
s_cmp_ge_u32 s{sT0}, 100000
s_cbranch_scc1 Lhsd
s_cbranch_vccnz Lhs
Lhsd:""")
gelu_consts(hW, hW+1, hW+8); gelu_consts(hW+4, hW+5, hW+12)
e(f"""v_add_u32 v{vT0}, {STATM}, v{vL16}
ds_write_b128 v{vT0}, {vr(hW+8,4)}
ds_write_b128 v{vT0}, {vr(hW+12,4)} offset:1024
Lhns:""")
e(f"""s_waitcnt vmcnt(0)
v_cmp_ne_u64 vcc, s[{sNo}:{sNo+1}], {vr(vPoll,2)}
s_mov_b32 s{sSt}, 1
s_cbranch_vccnz Lhnk""")
kv_dma("a")
e(f"s_mov_b32 s{sSt}, 0\ns_branch Lhnk2\nLhnk:")
e(flags_issue(sKf))
e("Lhnk2:\ns_barrier\ns_waitcnt lgkmcnt(0)")
stamp(1)
e("s_barrier")
e(f"s_cmp_lg_u32 s{sSt}, 0\ns_cbranch_scc1 Lkvwait\ns_waitcnt vmcnt(0)\ns_branch Lp2")

cX = [8, 24]; cW = 40; cRX, cRW, cRQ = 68, 70, 72; cCs = 76; cO = 92; cA = 96
e("Lcomp:")
e(f"""v_and_b32 v{vT0}, 15, v{vLane}
v_lshrrev_b32 v{vT1}, 1, v{vT0}
v_lshrrev_b32 v{vT2}, 4, v{vLane}
v_xor_b32 v{vT1}, v{vT1}, v{vT2}
v_lshlrev_b32 v{vT0}, 7, v{vT0}
s_and_b32 s{sT0}, s{sW}, 1
s_lshl_b32 s{sT0}, s{sT0}, 13
v_add_u32 v{vT0}, s{sT0}, v{vT0}
v_lshl_add_u32 v{cRX}, v{vT1}, 4, v{vT0}
v_xor_b32 v{cRX+1}, 64, v{cRX}""")
tr_lane(192, cRW)
e(f"""s_lshl_b32 s{sT1}, s{sW}, 4
s_and_b32 s{sT1}, s{sT1}, 32
v_xor_b32 v{cRW}, s{sT1}, v{cRW}
v_xor_b32 v{cRW+1}, 32, v{cRW}
s_lshl_b32 s{sT2}, s{sT1}, 1
v_add_u32 v{cRW}, s{sT2}, v{cRW}
s_lshl_b32 s{sT2}, s{sT1}, 2
v_add_u32 v{cRW+1}, s{sT2}, v{cRW+1}""")
tr_lane(64, cRQ); e(f"v_xor_b32 v{cRQ}, s{sT1}, v{cRQ}")
ones_col0(cO)
cEh, cEs, cEq = 73, 74, 75
e(f"""s_lshl_b32 s{sT0}, s{sI}, 2
s_and_b32 s{sT1}, s{sW}, 1
s_lshl_b32 s{sT1}, s{sT1}, 1
s_add_u32 s{sT0}, s{sT0}, s{sT1}
s_mul_i32 s{sT0}, s{sT0}, 88
s_mul_i32 s{sT1}, s{sJ}, 6
s_min_u32 s{sT1}, s{sT1}, 80
s_bfe_u32 s{sT2}, s{sW}, 0x10001
s_mul_i32 s{sT2}, s{sT2}, 3
s_add_u32 s{sT1}, s{sT1}, s{sT2}
s_and_b32 s{sT2}, s{sW}, 2""")
for add, dst in enumerate((sC0, sC1, sC2)):
    e(f"""s_add_u32 s{sT3}, s{sT1}, {add}
    s_lshr_b32 s{dst}, s{sT3}, 2
    s_add_u32 s{dst}, s{dst}, s{sT0}
    s_and_b32 s{sT3}, s{sT3}, 3
    s_mul_i32 s{sT3}, s{sT3}, 22
    s_add_u32 s{dst}, s{dst}, s{sT3}
    s_lshl_b32 s{dst}, s{dst}, 10
    s_add_u32 s{dst}, s{dst}, {HIMG}""")
e(f"""v_bfe_u32 v{vT0}, v{vLane}, 4, 1
v_lshlrev_b32 v{vT0}, 9, v{vT0}
v_and_b32 v{vT1}, 15, v{vLane}
v_lshl_add_u32 v{vT0}, v{vT1}, 4, v{vT0}
v_lshl_add_u32 v{cEh}, v{vH}, 8, v{vT0}
s_and_b32 s{sT0}, s{sW}, 1
s_lshl_b32 s{sT1}, s{sT0}, 10
s_add_u32 s{sT1}, s{sT1}, {STATM}
v_lshl_add_u32 v{cEs}, v{vT1}, 4, s{sT1}
s_lshl_b32 s{sT0}, s{sT0}, 12
s_lshl_b32 s{sT2}, s{sT2}, 9
s_add_u32 s{sT0}, s{sT0}, s{sT2}
s_add_u32 s{sT0}, s{sT0}, {QIMG}
v_lshl_add_u32 v{vT0}, v{vH}, 3, v{vT0}
v_add_u32 v{cEq}, s{sT0}, v{vT0}""")
f_init()
for r in list(range(cCs, cCs+16, 2)) + [r for r in range(cA, cA+112, 2) if not vRs <= r < vRs+16]: e(f"v_mov_b64 {vr(r,2)}, 0")
tstamp(13)
e("s_waitcnt vmcnt(0)")
tstamp(21)
rowstat_finish()
rowstat_post()
tstamp(23); tflush(); TS.clear()
if "--touch" in sys.argv:
    e(f"""s_and_b32 s{sT2}, s{sI}, 7
    s_mul_i32 s{sT2}, s{sT2}, 48
    s_add_u32 s{sT2}, s{sT2}, 128
    s_cmp_ge_u32 s{sW}, 6
    s_cbranch_scc1 Ltc6
    v_lshrrev_b32 v{vT0}, 1, v{vLane}
    v_mul_u32_u24 v{vT0}, 2752, v{vT0}
    v_and_b32 v{vT1}, 1, v{vLane}
    v_lshl_add_u32 v{vT0}, v{vT1}, 7, v{vT0}
    s_mul_i32 s{sT0}, s{sJ}, 96
    s_min_u32 s{sT0}, s{sT0}, 1280
    s_lshl_b32 s{sT0}, s{sT0}, 1
    s_mul_i32 s{sT2}, s{sT2}, 2752
    s_add_u32 s{sT0}, s{sT0}, s{sT2}
    s_add_u32 s{sT1}, s{sT0}, {32*2752}
    s_cmp_eq_u32 s{sW}, 5
    s_cbranch_scc1 Ltc5
    buffer_load_dword v79, v{vT0}, {sr(SWG,4)}, s{sT0} offen
    s_mov_b32 exec_hi, 0
    buffer_load_dword v79, v{vT0}, {sr(SWG,4)}, s{sT1} offen
    s_branch Ltce
    Ltc5:
    buffer_load_dword v79, v{vT0}, {sr(SWU,4)}, s{sT0} offen
    s_mov_b32 exec_hi, 0
    buffer_load_dword v79, v{vT0}, {sr(SWU,4)}, s{sT1} offen
    s_branch Ltce
    Ltc6:
    s_cmp_eq_u32 s{sW}, 7
    s_cbranch_scc1 Ltc7
    v_lshrrev_b32 v{vT0}, 1, v{vLane}
    v_lshlrev_b32 v{vT0}, 10, v{vT0}
    v_and_b32 v{vT1}, 1, v{vLane}
    v_lshl_add_u32 v{vT0}, v{vT1}, 7, v{vT0}
    s_lshl_b32 s{sT0}, s{sI}, 17
    s_and_b32 s{sT1}, s{sJ}, 3
    s_lshl_b32 s{sT1}, s{sT1}, 15
    s_add_u32 s{sT0}, s{sT0}, s{sT1}
    buffer_load_dword v79, v{vT0}, {sr(SX,4)}, s{sT0} offen offset:256
    buffer_load_dword v79, v{vT0}, {sr(SX,4)}, s{sT0} offen offset:512
    buffer_load_dword v79, v{vT0}, {sr(SX,4)}, s{sT0} offen offset:768
    s_branch Ltce
    Ltc7:
    v_lshlrev_b32 v{vT0}, 10, v{vLane}
    s_lshl_b32 s{sT2}, s{sT2}, 10
    s_lshl_b32 s{sT0}, s{sJ}, 6
    s_add_u32 s{sT0}, s{sT0}, s{sT2}
    s_mov_b32 exec_hi, 0xffff
    buffer_load_dword v79, v{vT0}, {sr(SWQ,4)}, s{sT0} offen
    Ltce:
    s_mov_b64 exec, -1""")
e("s_nop 1")
for r in range(vRs, vRs+16, 2): e(f"v_mov_b64 {vr(r,2)}, 0")
e(f"s_mov_b32 s{sSt}, 0\ns_mov_b32 s{sRb}, 0\ns_mov_b32 s{sC3}, {(-2*STG) & 0xffffffff}\ns_setprio 2")
e(f"s_bitcmp1_b32 s{sW}, 0\ns_cbranch_scc1 Lcl1")
NF = 7
def comp_loop(var):
    tag = f"{var}"
    def wrd(n, k2):
        if n == 0: a, o, rs = cRQ, QOFF, 64
        else:
            t = (n-1) % 3
            a, o, rs = cRW+(t & 1), (GOFF if n < 4 else UOFF) + (t >> 1)*64, 192
        return tr(cW+4*n, a, o+32*k2*rs) + tr(cW+4*n+2, a, o+(32*k2+4)*rs)
    def xrd(k2): return [f"ds_read_b128 {vr(cX[k2]+4*u,4)}, v{cRX+k2} offset:{2048*u}" for u in range(4)]
    def mm(n, k2):
        r = [mfma16(cA+28*u+4*n, cW+4*n, cX[k2]+4*u) for u in range(4)]
        if (n & 1) == var: r.append(mfma16(cCs+4*(n >> 1), cW+4*n, cO))
        return r
    e("s_waitcnt lgkmcnt(0)\ns_barrier")
    stamp(12)
    for x in xrd(0) + sum([wrd(n, 0) for n in range(NF)], []): e(x)
    e(f"s_waitcnt lgkmcnt(0)\n.p2align 3\nLc_{tag}:")
    adr = [f"v_add_u32 v{r}, s{sDl}, v{r}" for r in (cRX, cRX+1, cRW, cRW+1, cRQ)]
    ctl = rot_delta().split("\n") + [f"s_add_u32 s{sSt}, s{sSt}, 1"]
    BARG = 2
    def build(order0):
        out = []; q = []; issued = list(order0)
        def need(tagname):
            idx = max(i for i, t in enumerate(issued) if t == tagname)
            return len(issued)-1-idx
        def push(tagname, lst): q.extend((tagname, x) for x in lst)
        lastN = [99]
        for k2 in range(2):
            if k2 == 0: push("x1", xrd(1))
            for n in range(NF):
                if k2 == 1 and n == BARG:
                    while q:
                        t, x = q.pop(0); out.append(x)
                        if t: issued.append(t)
                    out.append(f"s_waitcnt lgkmcnt(0)\n{tk(None)}\ns_barrier\n{tk(81)}")
                    issued.clear(); issued.extend(["done"])
                    push("x0", xrd(0))
                    for m in range(BARG): push(f"w{m}0", wrd(m, 0))
                reqs = [f"w{n}{k2}"] + ([f"x{k2}"] if n == 0 else [])
                for r in reqs: assert all(t != r for t, _ in q), (r, k2, n)
                ns = [need(r) for r in reqs if r in issued]
                if ns and n % 2 == 0 or ns and min(ns) < lastN[0]:
                    nxt = f"w{n+1}{k2}"
                    if nxt in issued and all(t != nxt for t, _ in q): ns.append(need(nxt))
                    N = min(min(ns), 15); out.append(f"s_waitcnt lgkmcnt({N})"); lastN[0] = N
                for x in mm(n, k2):
                    out.append(x)
                    if q:
                        t, y = q.pop(0); out.append(y)
                        if t: issued.append(t); lastN[0] += 1
                if k2 == 0:
                    push(f"w{n}1", wrd(n, 1))
                    if n == 3: push(None, ctl)
                    if n == NF-1: push(None, adr)
                elif n >= BARG: push(f"w{n}0", wrd(n, 0))
        while q:
            t, x = q.pop(0); out.append(x)
            if t: issued.append(t)
        return out, issued
    _, steady = build([])
    out, _ = build(steady)
    for x in out: e(x)
    e(f"s_cmp_lt_u32 s{sSt}, 8\ns_cbranch_scc1 Lc_{tag}")
    tkout()
eC, eK, eT = 8, 40, 56
comp_loop(0)
e("s_branch Lcle\nLcl1:")
comp_loop(1)
e("Lcle:")
tstamp(1)
e(f"""s_bfe_u32 s{sT2}, s{sW}, 0x10001
s_mul_i32 s{sT2}, s{sT2}, 448
s_add_u32 s{sT2}, s{sT2}, {CSUM}
s_and_b32 s{sT1}, s{sW}, 1
s_lshl_b32 s{sT1}, s{sT1}, 6
s_add_u32 s{sT1}, s{sT1}, s{sT2}
v_and_b32 v{vT3}, 48, v{vLane}
v_add_u32 v{vT3}, s{sT2}, v{vT3}
v_add_u32 v{vT0}, s{sT1}, v{vLane}
s_mov_b32 exec_lo, 0x00010001
s_mov_b32 exec_hi, 0x00010001
ds_write_b128 v{vT0}, {vr(cCs,4)}
ds_write_b128 v{vT0}, {vr(cCs+4,4)} offset:128
ds_write_b128 v{vT0}, {vr(cCs+8,4)} offset:256
s_bitcmp1_b32 s{sW}, 0
s_cbranch_scc1 Lnc3
ds_write_b128 v{vT0}, {vr(cCs+12,4)} offset:384
Lnc3:
s_mov_b64 exec, -1
s_waitcnt vmcnt(0) lgkmcnt(0)
s_barrier""")
for u in range(4): e(f"ds_read_b128 {vr(eK+4*u,4)}, v{cEs} offset:{256*u}")
for n in range(NF): e(f"ds_read_b128 {vr(eC+4*n,4)}, v{vT3} offset:{64*n}")
e("s_waitcnt lgkmcnt(6)")
for u in range(4): e(f"v_mul_f32 v{eT+u}, {f2u(0.25*1.4426950408889634/C1):#x}, v{eK+4*u+1}")
for u in range(4):
    for p in (0, 2): e(pk("v_pk_fma_f32", cA+28*u+p, [('b', eK+4*u), ('p', eC+p), ('p', cA+28*u+p)]))
for u in range(4):
    for p in (0, 2): e(pk("v_pk_mul_f32", cA+28*u+p, [('p', cA+28*u+p), ('b', eT+u)]))
for u in range(4):
    q = cA+28*u
    e(f"v_cvt_pk_bf16_f32 v{q}, v{q}, v{q+1}\nv_cvt_pk_bf16_f32 v{q+1}, v{q+2}, v{q+3}")
for u in range(4): e(f"ds_write_b64 v{cEq}, {vr(cA+28*u,2)} offset:{2048*(u>>1)+256*(u&1)}")
e("s_waitcnt lgkmcnt(0)\ns_barrier")
kv_rest("c")
for u in range(4):
    g = cA+28*u+4; P = cA+28*(u & 2)+4
    gelu_tile(g, g+12, eC+4, eC+16, eK+4*u, eT, 12, [P+4*(p//2)+2*(u & 1)+(p & 1) for p in range(6)])
    if u & 1:
        e("s_nop 0")
        for t in range(3):
            e(f"v_permlane32_swap_b32 v{P+4*t}, v{P+4*t+2}\nv_permlane32_swap_b32 v{P+4*t+1}, v{P+4*t+3}")
        for t, so in enumerate((sC0, sC1, sC2)):
            e(f"buffer_store_dwordx4 {vr(P+4*t,4)}, v{cEh}, {sr(SWS,4)}, s{so} offen sc1")
        if u == 1: e(f"v_add_u32 v{cEh}, {88*1024}, v{cEh}")
stamp(2)
tflush(); TS.clear()
e("s_branch LF")

def cs_write(acc, slot_expr_sreg):
    e(f"""v_and_b32 v{vT0}, 1, v{vLane}
    v_lshlrev_b32 v{vT0}, 6, v{vT0}
    v_lshrrev_b32 v{vT1}, 4, v{vLane}
    v_lshl_add_u32 v{vT0}, v{vT1}, 4, v{vT0}
    v_add_u32 v{vT0}, {slot_expr_sreg}, v{vT0}
    s_mov_b32 exec_lo, 0x00030003
    s_mov_b32 exec_hi, 0x00030003
    ds_write_b128 v{vT0}, {vr(acc,4)}
    s_mov_b64 exec, -1""")
e("Lkvcu:\ns_setprio 0")
WKV = 131072
vXf, vWk = 32, 192
sXb = sMw
e(f"""s_lshl_b32 s{sT0}, s{sW}, 11
s_add_u32 m0, s{sT0}, {WKV}
s_lshl_b32 s{sXb}, s{sW}, 14
buffer_load_dwordx4 v{vL16}, {sr(SWV,4)}, s{sT0} offen lds
buffer_load_dwordx4 v{vL16}, {sr(SWV,4)}, s{sT0} offen offset:1024 lds
s_add_u32 m0, s{sT0}, {WKV+16384}
s_lshr_b32 s{sT3}, s{sW}, 2
buffer_load_dwordx4 v{vL16}, {sr(SWK,4)}, s{sT0} offen lds
buffer_load_dwordx4 v{vL16}, {sr(SWK,4)}, s{sT0} offen offset:1024 lds
s_lshl_b32 s{sT0}, s{sT3}, 9
s_add_u32 s{sXo}, s{sXo}, s{sT0}""")
def kvx_dma(c):
    return [f"""s_add_u32 m0, s{sXb}, {4096*c+2048*hf}
        s_add_u32 s{sT0}, s{sXo}, {128*c+16384*hf}
        buffer_load_dwordx4 v{vXa0}, {sr(SX,4)}, s{sT0} offen lds
        buffer_load_dwordx4 v{vXa1}, {sr(SX,4)}, s{sT0} offen offset:1024 lds""" for hf in range(2)]
for x in kvx_dma(0): e(x)
e(tag_issue())
for x in kvx_dma(1): e(x)
e(f"""v_and_b32 v{vT0}, 31, v{vLane}
v_lshrrev_b32 v{vT1}, 1, v{vT0}
v_and_b32 v{vT1}, 7, v{vT1}
v_xor_b32 v{vT1}, v{vT1}, v{vH}
v_lshlrev_b32 v{vT0}, 7, v{vT0}
v_add_u32 v{vT0}, s{sXb}, v{vT0}""")
for ks in range(4):
    e(f"v_xor_b32 v{vT2}, {2*ks}, v{vT1}\nv_lshl_add_u32 v{vRX+ks}, v{vT2}, 4, v{vT0}")
e(f"""v_bfe_u32 v{vT0}, v{vLane}, 2, 2
v_lshl_add_u32 v{vT0}, v{vH}, 3, v{vT0}
v_bfe_u32 v{vT1}, v{vLane}, 4, 1
v_and_b32 v{vT2}, 3, v{vLane}
v_lshlrev_b32 v{vT2}, 3, v{vT2}
v_lshl_add_u32 v{vT3}, v{vT1}, 5, v{vT2}
v_lshl_add_u32 v{vRQ}, v{vT0}, 6, v{vT3}
v_lshlrev_b32 v{vT1}, 14, v{vT1}
v_lshl_add_u32 v{vRW}, v{vT0}, 5, v{vT2}
s_lshr_b32 s{sT0}, s{sW}, 2
s_lshl_b32 s{sT0}, s{sT0}, 13
s_add_u32 s{sT1}, s{sT0}, {WKV}
v_add3_u32 v{vRW}, v{vRW}, v{vT1}, s{sT1}
s_add_u32 s{sT1}, s{sT1}, s{sT0}
v_add_u32 v{vRQ}, s{sT1}, v{vRQ}
v_lshrrev_b32 v{vT0}, 2, v{vLane}
v_lshlrev_b32 v{vT0}, 10, v{vT0}
v_and_b32 v{vT1}, 3, v{vLane}
v_lshl_add_u32 v{vQa}, v{vT1}, 4, v{vT0}
v_bfe_u32 v{vT0}, v{vLane}, 4, 1
v_and_b32 v{vT1}, 15, v{vLane}
v_cmp_eq_u32 vcc, v{vT0}, v{vT1}
v_mov_b32 v{vT2}, 0x3f803f80
s_nop 0
v_cndmask_b32 v{vSel}, 0, v{vT2}, vcc""")
for k in range(1, 4): e(f"v_mov_b32 v{vSel+k}, v{vSel}")
for r in range(vCs, vCs+4): e(f"v_mov_b32 v{r}, 0")
e(f"s_waitcnt vmcnt(5)\ns_cmp_lt_u32 s{sW}, 4\ns_cbranch_scc1 Lkvr1")
rowstat_finish()
e("Lkvr1:\ns_barrier")
stamp(12)
def kv_reads(c):
    r = []
    for ks in range(4):
        W = vWk + 16*(c & 1) + 4*ks
        r += [f"ds_read_b128 {vr(vXf+16*c+4*ks,4)}, v{vRX+ks} offset:{4096*c}"]
        r += tr(W, vRW, (64*c+16*ks)*32) + tr(W+2, vRW, (64*c+16*ks+4)*32)
    return r
def kstat_issue():
    return f"buffer_load_dwordx4 {vr(vSt,4)}, v{vWa0}, {sr(SWS,4)}, s{sC1} offen sc1"
for x in kv_reads(0) + kvx_dma(2) + kvx_dma(3): e(x)
e(f"""v_and_b32 v{vWa0}, 31, v{vLane}
v_lshlrev_b32 v{vWa0}, 4, v{vWa0}
s_lshl_b32 s{sT0}, s{sI}, 2
s_add_u32 s{sT0}, s{sT0}, s{sW4}
s_mul_i32 s{sC0}, s{sT0}, {KVT}
s_lshl_b32 s{sC1}, s{sT0}, 9
s_add_u32 s{sC1}, s{sC1}, {STATG}""")
for c in range(4):
    m = []
    for ks in range(4):
        X = vXf+16*c+4*ks; W = vWk + 16*(c & 1) + 4*ks
        z = "0" if c == 0 and ks == 0 else None
        m += [mfma(vAcc+16, W, X, z), mfma16(vCs, W, vSel), mfma(vAcc+32, X, W, z)]
    e("s_waitcnt lgkmcnt(0)")
    if c < 3:
        for x in m[:3] + [f"s_waitcnt vmcnt({8-4*c})"] + interleave(m[3:9], kv_reads(c+1)) + m[9:]: e(x)
        if c == 0:
            tag_wait("k", 8)
            e(f"s_cmp_lt_u32 s{sW}, 4\ns_cbranch_scc1 Lkvr2")
            rowstat_store()
            e("Lkvr2:")
    else:
        e(kstat_issue())
        for x in m: e(x)
tstamp(1)
e(f"""v_and_b32 v{vT2}, 31, v{vLane}
v_lshlrev_b32 v{vT2}, 2, v{vT2}
s_xor_b32 s{sT2}, s{sXb}, 65536
s_add_u32 s{sT1}, s{sXb}, 4352
s_lshl_b32 s{sQo}, s{sW}, 16
s_add_u32 s{sQo}, s{sQo}, {64*15}
s_lshl_b32 s{sMq}, s{sW}, 12
s_add_u32 s{sMq}, s{sMq}, {WKV}""")
cs_write(vCs, f"s{sT1}")
e(f"""v_add_u32 v{vT0}, s{sXb}, v{vL16}
v_add_u32 v{vWa1}, s{sT2}, v{vL16}
v_add_u32 v{vWa2}, s{sT2}, v{vT2}
v_lshl_add_u32 v{vT3}, v{vH}, 4, s{sXb}
s_cmp_ge_u32 s{sW}, 4
s_cbranch_scc1 LkvH""")
def wq_dma():
    for k in range(4):
        e(f"s_add_u32 m0, s{sMq}, {1024*k}\ns_add_u32 s{sT0}, s{sQo}, {16384*k}\nbuffer_load_dwordx4 v{vQa}, {sr(SWQ,4)}, s{sT0} offen lds")
def kstat_wait(tag):
    e(f"""s_mov_b32 s{sT0}, 0
    s_waitcnt vmcnt(0)
    Lks_{tag}:
    v_cmp_ne_u64 vcc, s[{sNo}:{sNo+1}], {vr(vSt+2,2)}
    s_add_u32 s{sT0}, s{sT0}, 1
    s_cmp_ge_u32 s{sT0}, 100000
    s_cbranch_vccz Lksd_{tag}
    s_cbranch_scc1 Lksd_{tag}
    {kstat_issue()}
    s_waitcnt vmcnt(0)
    s_branch Lks_{tag}
    Lksd_{tag}:""")
for q in range(4): e(f"ds_write_b128 v{vT0}, {vr(vAcc+32+4*q,4)} offset:{1024*q}")
e(f"v_xor_b32 v{vT1}, 0x10000, v{vT3}\ns_waitcnt lgkmcnt(0)\ns_barrier")
e(f"""ds_read_b128 {vr(vWk,4)}, v{vWa1}
ds_read_b128 {vr(vWk+4,4)}, v{vWa1} offset:1024
ds_read_b128 {vr(vSt+12,4)}, v{vT3} offset:{4352+64}
ds_read_b128 {vr(vSt+16,4)}, v{vT3} offset:{4352+96}
ds_read_b128 {vr(vWk+8,4)}, v{vT1} offset:{4352+64}
ds_read_b128 {vr(vWk+12,4)}, v{vT1} offset:{4352+96}""")
e(f"""v_and_b32 v{vT0}, 0x33, v{vLane}
v_bfe_u32 v{vT1}, v{vLane}, 2, 1
v_lshl_or_b32 v{vT0}, v{vT1}, 3, v{vT0}
v_bfe_u32 v{vT1}, v{vLane}, 3, 1
v_lshl_or_b32 v{vT0}, v{vT1}, 2, v{vT0}
v_lshlrev_b32 v{vT0}, 4, v{vT0}
s_waitcnt lgkmcnt(0)""")
for p in range(0, 8, 2):
    e(pk("v_pk_add_f32", vAcc+24+p, [('p', vAcc+24+p), ('p', vWk+p)]))
    e(pk("v_pk_add_f32", vSt+12+p, [('p', vSt+12+p), ('p', vWk+8+p)]))
kstat_wait("l")
e(f"v_sub_f32 v{vSt+4}, 0, v{vSt}")
lin_fold(vAcc+24, vSt+12, vSt+4, vSt+1, 8)
for p in range(4): e(f"v_cvt_pk_bf16_f32 v{vAcc+16+p}, v{vAcc+24+2*p}, v{vAcc+25+2*p}")
e(f"buffer_store_dwordx4 {vr(vAcc+16,4)}, v{vT0}, {sr(SWS,4)}, s{sC0} offen sc1\ns_branch LkvS")
e("LkvH:")
e(f"ds_write_b128 v{vT0}, {vr(vAcc+24,4)}\nds_write_b128 v{vT0}, {vr(vAcc+28,4)} offset:1024")
e(f"v_add_u32 v{vT1}, s{sXb}, v{vT2}\ns_waitcnt lgkmcnt(0)\ns_barrier")
e(f"ds_read_b32 v{vSt+6}, v{vT1} offset:4352\nds_read_b32 v{vSt+7}, v{vWa2} offset:4352")
for q in range(4): e(f"ds_read_b128 {vr(vAcc+48+4*q,4)}, v{vWa1} offset:{1024*q}")
tstamp(21)
kstat_wait("h")
tstamp(23)
e(f"ds_write_b32 v{vT1}, v{vSt} offset:4608\nds_write_b32 v{vT1}, v{vSt+1} offset:4736\ns_waitcnt lgkmcnt(0)")
for q in range(4):
    e(f"ds_read_b128 {vr(vWk+4*q,4)}, v{vT3} offset:{4608+32*q}\nds_read_b128 {vr(vWk+16+4*q,4)}, v{vT3} offset:{4736+32*q}")
e(f"v_add_f32 v{vSt+6}, v{vSt+6}, v{vSt+7}\nv_sub_f32 v{vSt+6}, 0, v{vSt+6}")
for p in range(0, 16, 2): e(pk("v_pk_add_f32", vAcc+32+p, [('p', vAcc+32+p), ('p', vAcc+48+p)]))
e("s_waitcnt lgkmcnt(0)")
for p in range(0, 16, 2): e(pk("v_pk_fma_f32", vAcc+32+p, [('p', vWk+p), ('b', vSt+6), ('p', vAcc+32+p)]))
for p in range(0, 16, 2): e(pk("v_pk_mul_f32", vAcc+32+p, [('p', vAcc+32+p), ('p', vWk+16+p)]))
for p in range(8): e(f"v_cvt_pk_bf16_f32 v{vAcc+32+p}, v{vAcc+32+2*p}, v{vAcc+33+2*p}")
v_lane_addr(vT0)
for p in range(8): e(f"v_mov_b32 v{vAcc+32+p}, 0x3f803f80")
e(f"""s_mov_b32 exec_lo, 0x1ffff
s_mov_b32 exec_hi, 0xffff
buffer_store_dwordx4 {vr(vAcc+32,4)}, v{vT0}, {sr(SWS,4)}, s{sC0} offen offset:1024 sc1
buffer_store_dwordx4 {vr(vAcc+36,4)}, v{vT0}, {sr(SWS,4)}, s{sC0} offen offset:{1024+528} sc1
s_mov_b64 exec, -1""")
tstamp(29)
e("LkvS:")
wq_dma()
for r in range(4): e(f"v_mov_b32 v{vCs+r}, 0")
e(f"s_lshl_b32 s{sT2}, s{sI}, 7\ns_add_u32 s{sT2}, s{sT2}, {KFLG}\ns_waitcnt vmcnt(4)\ns_barrier")
flag_set(sT2, "kv")
stamp(13)
tflush(); TS.clear()
e("s_waitcnt vmcnt(0)\ns_barrier")
def q_reads(c):
    r = []
    for ks in range(4):
        W = vWk + 16*(c & 1) + 4*ks
        r += tr(W, vRQ, (64*c+16*ks)*64) + tr(W+2, vRQ, (64*c+16*ks+4)*64)
    return r
for x in q_reads(0): e(x)
for c in range(4):
    m = []
    for ks in range(4):
        X = vXf+16*c+4*ks; W = vWk + 16*(c & 1) + 4*ks
        m += [mfma(vAcc, W, X, "0" if c == 0 and ks == 0 else None), mfma16(vCs, W, vSel)]
    e("s_waitcnt lgkmcnt(0)")
    for x in interleave(m[:4], q_reads(c+1) if c < 3 else []) + m[4:]: e(x)
e(f"""s_or_b32 s{sT2}, s{sXb}, {65536+8192}
s_lshr_b32 s{sT3}, s{sW}, 2
s_lshl_b32 s{sT3}, s{sT3}, 7
s_add_u32 s{sT1}, s{sT2}, s{sT3}
s_add_u32 s{sT1}, s{sT1}, 4096
v_add_u32 v{vWa1}, s{sT2}, v{vL16}
v_lshl_add_u32 v{vT3}, v{vH}, 4, s{sT2}
s_nop 3""")
cs_write(vCs, f"s{sT1}")
e(f"s_cmp_ge_u32 s{sW}, 4\ns_cbranch_scc1 LkvH2\ns_waitcnt lgkmcnt(0)\ns_barrier")
for q in range(4): e(f"ds_read_b128 {vr(vWk+4*q,4)}, v{vWa1} offset:{1024*q}")
cs_read(vAcc+48, 4096); cs_read(vWk+16, 4096+128)
e("s_waitcnt lgkmcnt(0)")
for p in range(0, 16, 2):
    e(pk("v_pk_add_f32", vAcc+p, [('p', vAcc+p), ('p', vWk+p)]))
    e(pk("v_pk_add_f32", vAcc+48+p, [('p', vAcc+48+p), ('p', vWk+16+p)]))
q_epilogue(vAcc+48)
a_init(); fin_init()
e("s_branch Lp2\nLkvH2:")
for q in range(4): e(f"ds_write_b128 v{vWa1}, {vr(vAcc+4*q,4)} offset:{1024*q}")
e(f"s_mov_b32 s{sKf}, {KFLG}")
e(flags_issue(sKf))
e("s_waitcnt lgkmcnt(0)\ns_barrier")
f_init()
flags_wait(sKf, "kv2", 0)
kv_dma("c")
e("s_waitcnt vmcnt(0)\ns_barrier\ns_branch LFkv")
e("Lkvwait:")
stamp(16)
flags_wait(sKf, "kv", 0)
stamp(17)
kv_dma("b")
e("s_waitcnt vmcnt(0)")

vm = []
def vtag(tag): vm.append(tag)
def vwait_s(tag):
    idx = max(i for i, t in enumerate(vm) if t == tag)
    return f"s_waitcnt vmcnt({min(63, len(vm)-1-idx)})"
def emit_seq(seq):
    for x in seq:
        if isinstance(x, list): emit_seq(x)
        elif isinstance(x, tuple): vtag(x[0]); e(x[1])
        elif callable(x): e(x())
        else: e(x)
e("Lp2:")
stamp(2)
e("s_waitcnt lgkmcnt(0)\ns_barrier")
stamp(3)
e(f"""s_setprio {3 if "--ap3" in sys.argv else 1}
ds_read_b128 {vr(aQ[0],4)}, v{vAq}
ds_read_b128 {vr(aK[0],4)}, v{vAk}
ds_read_b128 {vr(aQ[1],4)}, v{vAq} offset:1024
ds_read_b128 {vr(aK[1],4)}, v{vAk} offset:{KVT}
ds_read_b128 {vr(aVl[0],4)}, v{vAv}
ds_read_b128 {vr(aVh[0],4)}, v{vAv} offset:528
s_waitcnt lgkmcnt(4)""")
e(mfma(aS[0], aK[0], aQ[0], "0"))
e("s_waitcnt lgkmcnt(3)")
e(mfma(aS[1], aK[0], aQ[1], "0"))
e("s_nop 9")
for b in range(2):
    t = vT0+2*b; S = aS[b]
    e(f"v_max3_f32 v{t}, v{S}, v{S+1}, v{S+2}")
    for p in range(3, 15, 2): e(f"v_max3_f32 v{t}, v{t}, v{S+p}, v{S+p+1}")
    e(f"v_max_f32 v{t}, v{t}, v{S+15}\nv_mov_b32 v{t+1}, v{t}")
e(f"""s_nop 1
v_permlane32_swap_b32 v{vT0}, v{vT1}
v_permlane32_swap_b32 v{vT2}, v{vT3}
s_mov_b32 s{sSt}, 0
v_max_f32 v{vT0}, v{vT0}, v{vT1}
v_max_f32 v{vT2}, v{vT2}, v{vT3}""")
for b in range(2):
    e(f"v_sub_f32 v{aC[b]}, 0, v{vT0+2*b}\nv_sub_f32 v{aC[b]+1}, 0, v{vT0+2*b}")
for r in range(16): e(f"v_sub_f32 v{aS[0]+r}, v{aS[0]+r}, v{vT0}")
for b in (1, 0):
    for r in range(2, 16, 2): e(f"v_mov_b64 {vr(aC[b]+r,2)}, {vr(aC[b],2)}")
stamp(5)
e(f"v_exp_f32 v{aS[0]}, v{aS[0]}\nv_exp_f32 v{aS[0]+1}, v{aS[0]+1}\ns_branch La1\n.p2align 3\nLa0:")
for n in range(32):
    b = n & 1; T = n >> 1
    X = aS[b]; Y = aS[b ^ 1]
    ex = [f"v_exp_f32 v{X+i}, v{X+i}" for i in range(16)]
    Tp = (n-1) >> 1; Tn = (n+1) >> 1
    seq = ex[0:2] + [smf(aO[b ^ 1], aVh[Tp & 1], Y+8, vIdx)] + (["La1:"] if n == 0 else []) + ex[2:5]
    seq += [mfma(Y, aK[Tn & 1], aQ[b ^ 1], vr(aC[b ^ 1], 16))]
    if b:
        rd = [f"ds_read_b128 {vr(aVl[(T+1)&1],4)}, v{vAv} offset:{(T+1)*KVT}",
              f"ds_read_b128 {vr(aVh[(T+1)&1],4)}, v{vAv} offset:{(T+1)*KVT+528}",
              f"ds_read_b128 {vr(aK[T&1],4)}, v{vAk} offset:{(T+2)*KVT}"]
        seq += rd + ex[5:10]
    else: seq += ["s_waitcnt lgkmcnt(0)"] + ex[5:10]
    seq += [smf(aO[b], aVl[T & 1], X, vIdx)] + ex[10:16]
    for x in seq: e(x)
if PROF:
    e(f"s_memtime s[{sTm}:{sTm+1}]\ns_lshl_b32 s{sT0}, s{sSt}, 2\ns_add_u32 s{sT0}, s{sT0}, s{sPo}\ns_waitcnt lgkmcnt(0)\nv_mov_b32 v0, s{sTm}\nbuffer_store_dword v0, off, {sr(SWS,4)}, s{sT0} offset:72")
e(f"""v_add_u32 v{vAk}, {16*KVT}, v{vAk}
v_add_u32 v{vAv}, {16*KVT}, v{vAv}
s_add_u32 s{sSt}, s{sSt}, 1
s_cmp_eq_u32 s{sSt}, 1
s_cbranch_scc0 La2
{'' if PROF else 's_waitcnt vmcnt(0)'}
s_barrier
s_branch La0
La2:
s_cmp_lt_u32 s{sSt}, 4
s_cbranch_scc1 La0""")
e(smf(aO[1], aVh[1], aS[1]+8, vIdx))
e(f"s_mov_b32 s{sC0}, {f2u(2.0**40):#x}\ns_mov_b32 s{sC1}, {f2u(2.0**126):#x}")
for b in range(2):
    O = aO[b]
    e(f"s_mov_b32 s{sRetry}, 0\nLfin{b}:")
    e(f"""v_rcp_f32 v{O+10}, v{O+8}
    v_max3_f32 v{vT1}, abs(v{O}), abs(v{O+1}), abs(v{O+2})
    v_max3_f32 v{vT1}, v{vT1}, abs(v{O+3}), abs(v{O+4})
    v_max3_f32 v{vT1}, v{vT1}, abs(v{O+5}), abs(v{O+6})
    v_max_f32 v{vT1}, v{vT1}, abs(v{O+7})
    v_cmp_nlt_f32 vcc, v{O+8}, s{sC0}
    v_cmp_nlt_f32 s[{sEx}:{sEx+1}], v{vT1}, s{sC1}""")
    for p in range(8): e(f"v_mul_f32 v{O+p}, v{O+p}, v{O+10}")
    e(f"s_or_b64 vcc, vcc, s[{sEx}:{sEx+1}]")
    for p in range(4): e(f"v_cvt_pk_bf16_f32 v{O+p}, v{O+2*p}, v{O+2*p+1}")
    for p in range(4): e(f"v_min_u32 v{O+p}, -2, v{O+p}")
    e(f"s_cbranch_vccnz Lfallback{b}\nLok{b}:")
    e(f"buffer_store_dwordx4 {vr(O,4)}, v{vL16}, {sr(SWS,4)}, s{sOp if b == 0 else sOp2} offen sc1")
stamp(6)
gX = [136, 140]; gG = [144, 176]; gR = [8, 40]
e(f"buffer_load_dwordx4 {vr(gX[0],4)}, v{vRa}, {sr(SX,4)}, s{sXf} offen")
e(f"buffer_load_dwordx4 {vr(gX[1],4)}, v{vRa}, {sr(SX,4)}, s{sXf2} offen")
e("s_waitcnt lgkmcnt(0)\ns_setprio 0\ns_barrier\ns_barrier")
stamp(8)
for tt in range(2):
    for q in range(8): e(f"ds_read_b128 {vr(gG[tt]+4*q,4)}, v{vRr} offset:{4*ASL*tt+2048*(q//2)+1024*(q%2)}")
def sum4(r):
    for p in range(0, 8, 2):
        e(pk("v_pk_add_f32", r+p, [('p', r+p), ('p', r+8+p)]))
        e(pk("v_pk_add_f32", r+16+p, [('p', r+16+p), ('p', r+24+p)]))
    for p in range(0, 8, 2): e(pk("v_pk_add_f32", r+p, [('p', r+p), ('p', r+16+p)]))
for tt in range(2):
    G = gG[tt]
    e(f"s_waitcnt lgkmcnt({8*(1-tt)})")
    for p in range(8): e(f"v_add_f32 v{G+p}, v{G+p}, v{G+8+p}\nv_add_f32 v{G+16+p}, v{G+16+p}, v{G+24+p}")
    for p in range(8): e(f"v_add_f32 v{G+p}, v{G+p}, v{G+16+p}")
    for p in range(8): e(f"v_mul_f32 v{G+8+p}, {f2u(-1.4426950408889634):#x}, v{G+p}")
    for p in range(8): e(f"v_exp_f32 v{G+8+p}, v{G+8+p}")
    for p in range(8): e(f"v_add_f32 v{G+8+p}, 1.0, v{G+8+p}")
    for p in range(8): e(f"v_rcp_f32 v{G+8+p}, v{G+8+p}")
    e("s_waitcnt vmcnt(0)")
    for p in range(4): e(f"v_lshlrev_b32 v{G+16+2*p}, 16, v{gX[tt]+p}\nv_and_b32 v{G+17+2*p}, 0xffff0000, v{gX[tt]+p}")
    for p in range(8): e(f"v_mul_f32 v{G+p}, v{G+p}, v{G+8+p}")
stamp(9)
e("s_barrier")
for tt in range(2):
    for q in range(8): e(f"ds_read_b128 {vr(gR[tt]+4*q,4)}, v{vRr2+tt} offset:{2048*(q//2)+1024*(q%2)}")
for tt in range(2):
    R = gR[tt]; G = gG[tt]
    e(f"s_waitcnt lgkmcnt({8*(1-tt)})")
    sum4(R)
    for p in range(0, 8, 2): e(pk("v_pk_mul_f32", R+p, [('p', R+p), ('p', G+p)]))
    e("s_nop 1")
    for p in range(4): e(f"v_permlane32_swap_b32 v{R+p}, v{R+4+p}")
    e("s_nop 1")
    for p in range(0, 8, 2): e(pk("v_pk_add_f32", R+p, [('p', R+p), ('p', G+16+p)]))
    for p in range(4): e(f"v_cvt_pk_bf16_f32 v{R+p}, v{R+2*p}, v{R+2*p+1}")
    e(f"buffer_store_dwordx4 {vr(R,4)}, v{vRa}, {sr(SOUT,4)}, s{sXf if tt == 0 else sXf2} offen")
def the_end():
    stamp(11)
    if RT: e(f"s_waitcnt vmcnt(0)\ns_memrealtime s[100:101]\ns_waitcnt lgkmcnt(0)\nv_mov_b32 v0, s100\nbuffer_store_dword v0, off, {sr(SWS,4)}, s{sPo} offset:56")
the_end()
e("Lend:\ns_endpgm")

e("LFkv:")
kv_rest("k")
e("LF:")
tag_wait("f", 0)
e("s_setprio 0\ns_barrier")
flag_set(sHs, "h", 4)
RG = SP + [aslot(n) for n in range(4)]
def u_dma(m):
    srdw, row = (SWO, 64*m) if m < 8 else (SWD, 64*(m-8))
    return [f"s_add_u32 m0, s{sDm}, {RG[m % 7]}", f"s_add_u32 s{sT0}, s{sDo}, {row*1024}",
            (f"u{m}", f"buffer_load_dwordx4 v{vDa}, {sr(srdw,4)}, s{sT0} offen lds"),
            (f"u{m}", f"buffer_load_dwordx4 v{vDa2}, {sr(srdw,4)}, s{sT0} offen offset:1024 lds")]
def u_reads(m, F):
    a = RG[m % 7]; win = 1 if a >= SP[0] else 0; off = a - win*SP[0]
    r0, r1 = vRd+2*win, vRd+2*win+1
    return tr(F, r0, off) + tr(F+2, r0, off+1024) + tr(F+4, r1, off) + tr(F+6, r1, off+1024)
def h_loads(s):
    r = []
    if s % 4 == 0: r += [f"s_add_u32 s{sC0}, s{sHo}, {1024*s}", f"s_add_u32 s{sC1}, s{sC0}, {88*1024}"]
    for tt in range(2):
        r.append((f"h{s}", f"buffer_load_dwordx4 {vr(fH+8*(s % 6)+4*tt,4)}, v{vL16}, {sr(SWS,4)}, s{sC0 if tt == 0 else sC1} offen offset:{1024*(s%4)} sc1"))
    return r
for m in range(7): emit_seq(u_dma(m))
for m in range(8):
    e(vwait_s(f"u{m}"))
    for x in u_reads(m, fWo+8*m): e(x)
    e("s_waitcnt lgkmcnt(0)")
    emit_seq(u_dma(m+7))
tstamp(18)
e(flags_issue(sHc))
flags_wait(sHc, "h", 0)
tstamp(19)
for s in range(6): emit_seq(h_loads(s))
for x in u_reads(8, fWb[0]): e(x)
FB = int(sys.argv[sys.argv.index("--fb")+1]) if "--fb" in sys.argv else 15
for s in range(22):
    m = 8+s; W = fWb[s & 1]
    if s == FB:
        tstamp(20); e("s_barrier\ns_setprio 2"); tstamp(21)
    if s < 21:
        e(vwait_s(f"u{m+1}"))
        for x in u_reads(m+1, fWb[(s+1) & 1]): e(x)
        e("s_waitcnt lgkmcnt(4)")
    else: e("s_waitcnt lgkmcnt(0)")
    if m+7 < 30: emit_seq(u_dma(m+7))
    e(vwait_s(f"h{s}"))
    if s == 21: e(f"s_cmp_ge_u32 s{sW4}, 2\ns_cbranch_scc1 Lskip21")
    for tt in range(2):
        for ch in range(2 if "--nofm" not in sys.argv else 0): e(mfma(fA+32*tt+16*ch, W+4*ch, fH+8*(s % 6)+4*tt, "0" if s == 0 else None))
    if s+6 < 22: emit_seq(h_loads(s+6))
e("Lskip21:\ns_nop 8")
tstamp(22)
ORD = [7, 6, 5, 4, 3, 2, 1, 0] if M48 else [7, 6, 5, 4, 1, 0, 3, 2]
def o_load(k):
    tt, i = k & 1, k >> 1
    return f"buffer_load_dwordx4 {vr(opos(i)+4*tt,4)}, v{vL16}, {sr(SWS,4)}, s{(sOc, sOc2, sOc3, sOc4)[2*tt+(i>>2)]} offen offset:{1024*(i%4)} sc1"
def opos(i): return fO + 8*ORD.index(i)
zer = [f"v_mov_b64 {vr(fS+r,2)}, 0" for r in range(0, 64, 2)]
for q in range(16):
    e(f"ds_write_b128 v{vRw}, {vr(fA+4*q,4)} offset:{ASL*(q//2)+1024*(q%2)}")
    if q >= 4: e(f"s_waitcnt lgkmcnt(4)\n{o_load(2*ORD[(q-4)//2]+(q & 1))}")
e("s_waitcnt lgkmcnt(0)\ns_barrier")
for k in range(12, 16): e(o_load(2*ORD[k//2]+(k & 1)))
tstamp(9)
def o_pair(i, tag, wait):
    B = opos(i)
    if wait is not None: e(f"s_waitcnt vmcnt({wait})")
    else: e(f"s_bitcmp1_b32 s{sSt}, {i}\ns_cbranch_scc0 Lon{tag}{i}")
    e(f"""v_max3_u32 v{vT1}, v{B}, v{B+1}, v{B+2}
    v_max3_u32 v{vT1}, v{vT1}, v{B+3}, v{B+4}
    v_max3_u32 v{vT1}, v{vT1}, v{B+5}, v{B+6}
    v_max_u32 v{vT1}, v{vT1}, v{B+7}
    v_cmp_eq_u32 vcc, s{sT1}, v{vT1}
    s_cbranch_vccnz Lon{tag}{i}
    s_bitset0_b32 s{sSt}, {i}""")
    for tt in range(2):
        for ch in range(2): e(mfma(fS+32*tt+16*ch, fWo+8*i+4*ch, B+4*tt))
    e(f"Lon{tag}{i}:")
def acc_chain(tt, ch): return [mfma(fS+32*tt+16*ch, fWo+8*i+4*ch, opos(i)+4*tt, "0" if n == 0 else None) for n, i in enumerate(ORD)]
def s_wr(tt, ch): return [f"ds_write_b128 v{vRw2+tt}, {vr(fS+32*tt+16*ch+4*q,4)} offset:{ASL*(2*ch+q//2)+1024*(q%2)}" for q in range(4)]
e(f"v_mov_b32 v{vT1}, 0")
for n, x in enumerate(acc_chain(0, 0)):
    B = fO+8*n
    e(f"s_waitcnt vmcnt({14-2*n})\n{x}")
    for p in range(0, 8, 2): e(f"v_max3_u32 v{vT1}, v{vT1}, v{B+p}, v{B+p+1}")
e(f"v_cmp_eq_u32 vcc, -1, v{vT1}\ns_cbranch_vccnz Lor0")
c1, c2, c3 = acc_chain(0, 1), acc_chain(1, 0), acc_chain(1, 1)
for prev, c in (((0, 0), c1), ((0, 1), c2), ((1, 0), c3)):
    for x in [c[0], "s_nop 3", c[1], "s_nop 3", c[2]] + interleave(c[3:7], s_wr(*prev)) + c[7:]: e(x)
stamp(7)
e("s_nop 11")
for x in s_wr(1, 1): e(x)
e("Lsd:")
e("s_waitcnt lgkmcnt(0)\ns_barrier")
stamp(10); tflush(); TS.clear()
the_end()
e("s_endpgm")
e(f"Lor0:\ns_nop 8")
for x in zer: e(x)
e(f"s_mov_b32 s{sT0}, 0\ns_mov_b32 s{sSt}, 0xff\ns_mov_b32 s{sT1}, -1\ns_branch Lor2")
e("Lor:\ns_sleep 4")
for i in ORD:
    e(f"s_bitcmp1_b32 s{sSt}, {i}\ns_cbranch_scc0 Lorn{i}\n{o_load(2*i)}\n{o_load(2*i+1)}\nLorn{i}:")
e(f"""s_add_u32 s{sT0}, s{sT0}, 1
s_cmp_ge_u32 s{sT0}, 200000
s_cbranch_scc1 Lod
s_waitcnt vmcnt(0)
Lor2:""")
for i in ORD: o_pair(i, "b", None)
e(f"s_cmp_lg_u32 s{sSt}, 0\ns_cbranch_scc1 Lor\nLod:\ns_nop 6")
for tt in range(2):
    for ch in range(2):
        for x in s_wr(tt, ch): e(x)
e("s_branch Lsd")
for b in range(2):
    S = aS[0]; O = aO[b]; C = aC[b]; Q = aQ[b]
    e(f"""Lfallback{b}:
    s_cmp_lg_u32 s{sRetry}, 0
    s_cbranch_scc1 Lok{b}
    s_mov_b32 s{sRetry}, 1
    s_mov_b32 s{sSt}, 0
    v_mov_b32 v{vT1}, 0xff800000
    s_waitcnt lgkmcnt(0)
    Lfb1{b}:
    buffer_load_dwordx4 {vr(aK[0],4)}, v{vL16}, {sr(SWS,4)}, s{sSt} offen sc1
    s_waitcnt vmcnt(0)""")
    e(mfma(S, aK[0], Q, "0"))
    e("s_nop 11")
    for p in range(0, 16, 2): e(f"v_max3_f32 v{vT1}, v{vT1}, v{S+p}, v{S+p+1}")
    e(f"""s_add_u32 s{sSt}, s{sSt}, {KVT}
    s_cmp_lt_u32 s{sSt}, {64*KVT}
    s_cbranch_scc1 Lfb1{b}
    v_mov_b32 v{vT2}, v{vT1}
    s_nop 1
    v_permlane32_swap_b32 v{vT1}, v{vT2}
    s_nop 1
    v_max_f32 v{vT1}, v{vT1}, v{vT2}""")
    for r in range(16): e(f"v_sub_f32 v{C+r}, 0, v{vT1}")
    for r in range(12): e(f"v_mov_b32 v{O+r}, 0")
    e(f"""v_subrev_u32 v{vT0}, {64*KVT}, v{vAv}
    s_mov_b32 s{sSt}, 0
    Lfb2{b}:
    buffer_load_dwordx4 {vr(aK[0],4)}, v{vL16}, {sr(SWS,4)}, s{sSt} offen sc1
    buffer_load_dwordx4 {vr(aVl[0],4)}, v{vT0}, {sr(SWS,4)}, s{sSt} offen sc1
    buffer_load_dwordx4 {vr(aVh[0],4)}, v{vT0}, {sr(SWS,4)}, s{sSt} offen offset:528 sc1
    s_waitcnt vmcnt(0)""")
    e(mfma(S, aK[0], Q, vr(C, 16)))
    e("s_nop 11")
    for i in range(16): e(f"v_exp_f32 v{S+i}, v{S+i}")
    e("s_nop 1")
    e(smf(O, aVl[0], S, vIdx)); e(smf(O, aVh[0], S+8, vIdx))
    e(f"""s_add_u32 s{sSt}, s{sSt}, {KVT}
    s_cmp_lt_u32 s{sSt}, {64*KVT}
    s_cbranch_scc1 Lfb2{b}
    s_nop 9
    s_branch Lfin{b}""")
e("Lcodeend:")

L += ['.section .rodata,"a"', ".p2align 6", f".amdhsa_kernel {NAME}_kernel",
      "  .amdhsa_next_free_vgpr 256", "  .amdhsa_next_free_sgpr 102", "  .amdhsa_accum_offset 256",
      "  .amdhsa_group_segment_fixed_size 0", "  .amdhsa_kernarg_size 96", "  .amdhsa_user_sgpr_count 2",
      "  .amdhsa_user_sgpr_kernarg_segment_ptr 1", "  .amdhsa_system_sgpr_workgroup_id_x 1", ".end_amdhsa_kernel"]
open(OUT, "w").write("\n".join(L) + "\n")
print("wrote", OUT, len(L), "lines")
```

```python
import sys, struct
NAME = "recurrent_scan__grouped_kv_mqa__geglu_ffn__prompt"
PROF = "--prof" in sys.argv
OUT = [a for a in sys.argv[1:2] if not a.startswith("--")]
OUT = OUT[0] if OUT else f"cdna_kernels/{NAME}.s"

L = []
def e(s):
    for ln in s.split("\n"):
        if not ln.strip(): continue
        L.append(("    " + ln.strip()) if not ln.strip().endswith(":") else ln.strip())
def f2u(x): return struct.unpack("<I", struct.pack("<f", x))[0]
def vr(a, n): return f"v[{a}:{a+n-1}]"
def sr(a, n): return f"s[{a}:{a+n-1}]"

KVT = 2080
KVIMG = 0
HIMG = 135168
OIMG = HIMG + 64*88*1024
HFLG = OIMG + 64*32*1024
KFLG = HFLG + 256*128
STATG = KFLG + 16*128
PROFO = STATG + 2048*16
WS_BYTES = PROFO + 256*8*256
CNT_KV = 0
KVRDY = 128
STG = 45056
XOFF, GOFF, UOFF, QOFF = 0, 16384, 28672, 40960
STGK, QOFFK, NBK = 24832, 20736, 5
QIMG = 135168
STATM = 160768
CSUM = 162816
MRX = 159744
STL = 163712
FLAG = 163776
LDS_BYTES = 163840
SX, SWQ, SWK, SWV, SWO, SWG, SWD, SOUT, SDBG, SWS = 4, 8, 12, 16, 20, 24, 28, 32, 36, 40
sI, sJ, sW, sW4 = 44, 45, 46, 47
sXo, sWo, sQo, sLb = 48, 49, 50, 51
sMx, sMw, sMq = 52, 53, 54
sSt, sDl, sT0, sT1, sT2, sT3 = 55, 56, 57, 58, 59, 60
sTB, sCS, sRetry, sRb = 61, 62, 63, 3
sEx = 88
sTm = 90
sPo = 92
sC0, sC1, sC2, sC3 = 94, 95, 96, 97
sOp = 98
TOUCH = int("--touch" in sys.argv)
vLane, vH, vT0, vT1, vT2, vT3 = 1, 2, 3, 4, 5, 6
vXa0, vXa1, vWa0, vWa1, vWa2, vQa = 7, 8, 9, 10, 11, 12
vRX = 13
vRW, vRQ = 17, 18
vSel = 20
vCs = 24
vF = 32
vAcc = 96
vSt = 160
aQ = [8, 12]; aK = [16, 20]; aVl = [24, 28]; aVh = [32, 36]; aS = [40, 56]; aC = [72, 88]; aO = [104, 120]
fA, fWo, fWb, fH, fX, fG = 8, 72, [136, 144], 152, 200, 204
fS, fO, fR = 136, 8, 8
vIdx, vAk, vAv, vDa, vL16, vRa = 240, 241, 242, 243, 244, 245
vPoll = 246
vRd = 248
vRw, vRr, vRr2, vDa2 = 252, 253, 254, 255
vRw2 = 238
vAq = 237
sKq, sTt, sHo, sDo, sDm, sHc, sXf, sOc, sOc2, sHs = 64, 65, 66, 67, 68, 69, 70, 71, 72, 73
sOc3, sOc4, sOp2 = 80, 81, 99
sXf2 = 64
sNo = 86
sRow, sKf = 63, 85
ASL = 8320
XB, XK, XP = 8512, 2112, 1056
XF0, XS0, XS1 = 34048, 0, 102144
def aslot(n): return ASL*n
SP = [135168, 143360, 151552]

nstamp = [0]
DBGT = "--dbgt" in sys.argv
DT = {0: 75, 12: 76, 1: 77, 2: 78, 3: 79, 6: 80, 9: 81, 7: 82, 11: 83}
PAD = (int(sys.argv[sys.argv.index("--pad")+1]), int(sys.argv[sys.argv.index("--pad")+2])) if "--pad" in sys.argv else None
npad = [0]
PADB = sNo if "--padg" in sys.argv else 100
def stamp(k):
    if PAD and PAD[0] == k:
        npad[0] += 1
        e(f"Lpad{npad[0]}:\ns_memrealtime s[{sTm}:{sTm+1}]\ns_waitcnt lgkmcnt(0)\ns_sub_u32 s{sTm}, s{sTm}, s{PADB}\ns_sleep 8\ns_cmp_lt_u32 s{sTm}, {PAD[1]}\ns_cbranch_scc1 Lpad{npad[0]}")
    if DBGT and k in DT:
        e(f"s_memrealtime s[{sTm}:{sTm+1}]\ns_waitcnt lgkmcnt(0)\ns_sub_u32 s{DT[k]}, s{sTm}, s100")
        if k == 11:
            e(f"s_memtime s[{sTm}:{sTm+1}]\ns_waitcnt lgkmcnt(0)\ns_sub_u32 s84, s{sTm}, s92")
            e(f"s_cmp_lg_u32 s2, 64\ns_cbranch_scc1 Lend\ns_cmp_lg_u32 s{sW}, 4\ns_cbranch_scc1 Lend")
            for n, r in enumerate(range(75, 85)):
                e(f"v_mov_b32 v0, s{r}\nbuffer_store_dword v0, off, {sr(SDBG,4)}, 0 offset:{4+4*n}\ns_nop 1")
    if not PROF: return
    e(f"""s_memtime s[{sTm}:{sTm+1}]
    s_waitcnt lgkmcnt(0)
    v_mov_b32 v0, s{sTm}
    buffer_store_dword v0, off, {sr(SWS,4)}, s{sPo} offset:{4*k}""")
    if k in RTS:
        e(f"""s_memrealtime s[{sTm}:{sTm+1}]
        s_waitcnt lgkmcnt(0)
        v_mov_b32 v0, s{sTm}
        buffer_store_dword v0, off, {sr(SWS,4)}, s{sPo} offset:{4*RTS[k]}""")
RTS = {12: 24, 1: 25, 5: 26, 6: 27, 11: 28}

TS = []
def tstamp(k):
    if not PROF: return
    r = 74 + len(TS); TS.append((k, r))
    e(f"s_memtime s[{sTm}:{sTm+1}]\ns_waitcnt lgkmcnt(0)\ns_mov_b32 s{r}, s{sTm}")
def tflush():
    for k, r in TS: e(f"v_mov_b32 v0, s{r}\nbuffer_store_dword v0, off, {sr(SWS,4)}, s{sPo} offset:{4*k}\ns_nop 1")
def tick(acc):
    if not PROF or "--notick" in sys.argv: return ""
    r = f"s_memtime s[{sTm}:{sTm+1}]\ns_waitcnt lgkmcnt(0)\n"
    if acc is not None: r += f"s_sub_u32 s99, s{sTm}, s99\ns_add_u32 s{acc}, s{acc}, s99\n"
    return r + f"s_mov_b32 s99, s{sTm}"

def interleave(main, fill):
    out = []; n = len(main); m = len(fill); k = 0
    for i, a in enumerate(main):
        out.append(a)
        t = (m * (i + 1)) // n
        out += fill[k:t]; k = t
    return out

def mfma(d, a, b, c=None):
    c = vr(d, 16) if c is None else c
    return f"v_mfma_f32_32x32x16_bf16 {vr(d,16)}, {vr(a,4)}, {vr(b,4)}, {c}"
def mfma16(d, a, b): return f"v_mfma_f32_16x16x32_bf16 {vr(d,4)}, {vr(a,4)}, {vr(b,4)}, {vr(d,4)}"
def smf(d, a, b, idx): return f"v_smfmac_f32_32x32x32_bf16 {vr(d,16)}, {vr(a,4)}, {vr(b,8)}, v{idx}"

TK = PROF and "--tk" in sys.argv
def tk(acc):
    if not TK: return ""
    r = f"s_memtime s[{sTm}:{sTm+1}]\ns_waitcnt lgkmcnt(0)\n"
    if acc is not None: r += f"s_sub_u32 s82, s{sTm}, s82\ns_add_u32 s{acc}, s{acc}, s82\n"
    return r + f"s_mov_b32 s82, s{sTm}"
def tkout():
    if TK: e(f"v_mov_b32 v0, s80\nbuffer_store_dword v0, off, {sr(SWS,4)}, s{sPo} offset:{4*29}\ns_nop 1\nv_mov_b32 v0, s81\nbuffer_store_dword v0, off, {sr(SWS,4)}, s{sPo} offset:{4*30}")
def tr(d, a, off): return [f"ds_read_b64_tr_b16 {vr(d,2)}, v{a} offset:{off}"]
def tag_issue(): return f"buffer_load_dwordx2 {vr(vPoll,2)}, off, {sr(SDBG,4)}, 0 sc1"
def tag_wait(tag, first_wait):
    e(f"""s_mov_b32 s{sT0}, 0
    s_waitcnt vmcnt({first_wait})
    Ltag_{tag}:
    v_readfirstlane_b32 s{sNo}, v{vPoll}
    v_readfirstlane_b32 s{sNo+1}, v{vPoll+1}
    s_add_u32 s{sT0}, s{sT0}, 1
    s_cmp_lg_u32 s{sNo}, 0
    s_cbranch_scc1 Ltagd_{tag}
    s_cmp_ge_u32 s{sT0}, 100000
    s_cbranch_scc1 Ltagd_{tag}
    s_sleep 1
    {tag_issue()}
    s_waitcnt vmcnt(0)
    s_branch Ltag_{tag}
    Ltagd_{tag}:""")
def flags_issue(base):
    return f"""v_and_b32 v{vPoll}, 15, v{vLane}
    v_lshlrev_b32 v{vPoll}, 7, v{vPoll}
    buffer_load_dwordx2 {vr(vPoll,2)}, v{vPoll}, {sr(SWS,4)}, s{base} offen sc1"""
def h_poll_issue(): return flags_issue(sHc)
def flags_wait(base, tag, first_wait):
    e(f"""s_mov_b32 s{sT0}, 0
    s_waitcnt vmcnt({first_wait})
    Lfw_{tag}:
    v_cmp_ne_u64 vcc, s[{sNo}:{sNo+1}], {vr(vPoll,2)}
    s_add_u32 s{sT0}, s{sT0}, 1
    s_cmp_ge_u32 s{sT0}, 100000
    s_cbranch_vccz Lfwd_{tag}
    s_cbranch_scc1 Lfwd_{tag}
    s_sleep 3
    {flags_issue(base)}
    s_waitcnt vmcnt(0)
    s_branch Lfw_{tag}
    Lfwd_{tag}:""")
def flag_set(off_sreg, tag, wave=0):
    e(f"""s_cmp_lg_u32 s{sW}, {wave}
    s_cbranch_scc1 Lsig_{tag}
    v_mov_b32 v{vPoll}, s{sNo}
    v_mov_b32 v{vPoll+1}, s{sNo+1}
    s_mov_b64 exec, 1
    buffer_store_dwordx2 {vr(vPoll,2)}, off, {sr(SWS,4)}, s{off_sreg} sc1
    s_mov_b64 exec, -1
    Lsig_{tag}:""")

hdr = open(f"cdna_kernels/{NAME}.s.ref").read().split("\n")
hdr = [h for h in hdr[:15] if h.startswith(";") and "@launch" not in h]
L += hdr
L.append(f"; @launch grid=(256,1,1) block=(512,1,1) lds={LDS_BYTES}")
L += ['.amdgcn_target "amdgcn-amd-amdhsa--gfx950"', ".text", f".globl {NAME}_kernel", ".p2align 8",
      f".type {NAME}_kernel,@function"]
e(f"{NAME}_kernel:")
RT = PROF
if RT: e("s_memrealtime s[100:101]\ns_memtime s[98:99]")
if DBGT or PAD: e("s_memrealtime s[100:101]\ns_memtime s[92:93]")
MAP84 = f"""s_and_b32 s{sI}, s{sT0}, 1
s_lshl_b32 s{sI}, s{sI}, 3
s_and_b32 s{sT2}, s{sT1}, 7
s_add_u32 s{sI}, s{sI}, s{sT2}
s_lshr_b32 s{sJ}, s{sT0}, 1
s_lshl_b32 s{sJ}, s{sJ}, 2
s_lshr_b32 s{sT3}, s{sT1}, 3
s_add_u32 s{sJ}, s{sJ}, s{sT3}
s_sub_u32 s{sJ}, 15, s{sJ}
s_and_b32 s{sTB}, s{sT0}, 3
s_lshl_b32 s{sTB}, s{sTB}, 3
s_add_u32 s{sTB}, s{sTB}, s{sT2}
s_lshr_b32 s{sCS}, s{sT0}, 2
s_lshl_b32 s{sCS}, s{sCS}, 2
s_add_u32 s{sCS}, s{sCS}, s{sT3}"""
MAP48 = f"""s_lshr_b32 s{sT2}, s{sT0}, 1
s_lshl_b32 s{sI}, s{sT2}, 2
s_and_b32 s{sT3}, s{sT1}, 3
s_add_u32 s{sI}, s{sI}, s{sT3}
s_lshl_b32 s{sTB}, s{sT2}, 3
s_and_b32 s{sT3}, s{sT1}, 7
s_add_u32 s{sTB}, s{sTB}, s{sT3}
s_and_b32 s{sT0}, s{sT0}, 1
s_lshl_b32 s{sJ}, s{sT0}, 3
s_lshr_b32 s{sT3}, s{sT1}, 2
s_add_u32 s{sJ}, s{sJ}, s{sT3}
s_sub_u32 s{sJ}, 15, s{sJ}
s_lshl_b32 s{sCS}, s{sT0}, 2
s_lshr_b32 s{sT3}, s{sT1}, 3
s_add_u32 s{sCS}, s{sCS}, s{sT3}"""
M48 = "--m48" in sys.argv
MAP = MAP48 if M48 else MAP84
PFC = "" if "--nopfc" in sys.argv else f"""s_cmp_lg_u32 s{sW}, 7
s_cbranch_scc1 Lnop0
s_getpc_b64 s[94:95]
Lpc0:
s_bfe_u32 s{sT0}, s2, 0x20003
s_lshl_b32 s{sT0}, s{sT0}, 13
v_lshl_add_u32 v{vT1}, v{vLane}, 7, s{sT0}
v_min_u32 v{vT1}, Lcodeend-Lpc0-4, v{vT1}
global_load_dword v223, v{vT1}, s[94:95]"""
e(f"""s_cmp_ge_u32 s2, 256
s_cbranch_scc1 Lend
s_load_dwordx16 s[64:79], s[0:1], 0
s_load_dwordx8 s[80:87], s[0:1], 64
s_memrealtime s[{sTm}:{sTm+1}]
v_and_b32 v{vLane}, 63, v0
v_lshrrev_b32 v{vT0}, 6, v0
v_lshrrev_b32 v{vH}, 5, v{vLane}
v_readfirstlane_b32 s{sW}, v{vT0}
s_cmp_lt_u32 s{sW}, 4
s_cbranch_scc1 Lnop0
s_setprio 2
{PFC}
Lnop0:
s_and_b32 s{sT0}, s2, 7
s_lshr_b32 s{sT1}, s2, 3
{MAP}
s_and_b32 s{sW4}, s{sW}, 3
v_lshrrev_b32 v{vT0}, 3, v{vLane}
v_lshlrev_b32 v{vT0}, 10, v{vT0}
v_and_b32 v{vT1}, 7, v{vLane}
v_lshrrev_b32 v{vT2}, 4, v{vLane}
v_xor_b32 v{vT1}, v{vT1}, v{vT2}
v_lshl_add_u32 v{vXa0}, v{vT1}, 4, v{vT0}
v_xor_b32 v{vXa1}, 64, v{vXa0}
v_add_u32 v{vXa1}, {8192-1024}, v{vXa1}
v_lshlrev_b32 v{vL16}, 4, v{vLane}
s_lshl_b32 s{sXo}, s{sI}, 17
s_lshl_b32 s{sT0}, s{sW4}, 15
s_add_u32 s{sXo}, s{sXo}, s{sT0}
s_lshl_b32 s{sRow}, s{sI}, 4
s_add_u32 s{sRow}, s{sRow}, s{sJ}
s_lshl_b32 s{sRow}, s{sRow}, 2
s_add_u32 s{sRow}, s{sRow}, s{sW4}
s_or_b32 s{sT0}, s2, s{sW}
s_waitcnt lgkmcnt(0)""")
def srd(d, p, nbytes):
    e(f"s_mov_b32 s{d}, s{p}\ns_mov_b32 s{d+1}, s{p+1}\ns_mov_b32 s{d+2}, {nbytes}\ns_mov_b32 s{d+3}, 0x20000")
srd(SX, 64, 2048*1024)
vRs = 144
e(f"""s_cmp_lt_u32 s{sW}, 4
s_cbranch_scc1 Lnorow
s_lshl_b32 s{sT1}, s{sRow}, 11
buffer_load_dwordx4 {vr(vRs,4)}, v{vL16}, {sr(SX,4)}, s{sT1} offen
buffer_load_dwordx4 {vr(vRs+4,4)}, v{vL16}, {sr(SX,4)}, s{sT1} offen offset:1024
Lnorow:""")
srd(SDBG, 84, 256)
e(f"""s_cmp_lg_u32 s{sT0}, 0
s_cbranch_scc1 Lnotag
s_or_b32 s{sTm}, s{sTm}, 1
v_mov_b32 v{vPoll}, s{sTm}
v_mov_b32 v{vPoll+1}, s{sTm+1}
s_mov_b64 exec, 1
buffer_store_dwordx2 {vr(vPoll,2)}, off, {sr(SDBG,4)}, 0 sc1
s_mov_b64 exec, -1
Lnotag:""")
SWU = SWK
srd(SWQ, 66, 512*1024); srd(SWG, 76, 512*2752)
e(f"s_cmp_eq_u32 s{sJ}, 15\ns_cselect_b32 s{SWK}, s68, s78\ns_cselect_b32 s{SWK+1}, s69, s79\ns_mov_b32 s{sT1}, {512*2752}\ns_cselect_b32 s{SWK+2}, 16384, s{sT1}\ns_mov_b32 s{SWK+3}, 0x20000")
srd(SWV, 70, 16384); srd(SWS, 86, WS_BYTES); srd(SWO, 72, 512*1024); srd(SWD, 80, 1376*1024); srd(SOUT, 82, 2048*1024)
if PROF:
    e(f"s_lshl_b32 s{sPo}, s2, 3\ns_add_u32 s{sPo}, s{sPo}, s{sW}\ns_lshl_b32 s{sPo}, s{sPo}, 8\ns_add_u32 s{sPo}, s{sPo}, {PROFO}")
stamp(0)
if TK: e("s_mov_b32 s80, 1\ns_mov_b32 s81, 1")
if RT: e(f"s_nop 1\nv_mov_b32 v0, s100\nbuffer_store_dword v0, off, {sr(SWS,4)}, s{sPo} offset:60\ns_nop 1\nv_mov_b32 v0, s98\nbuffer_store_dword v0, off, {sr(SWS,4)}, s{sPo} offset:16")
e(f"""s_cmp_eq_u32 s{sJ}, 15
s_cbranch_scc1 Lkvcu
s_cmp_ge_u32 s{sW}, 4
s_cbranch_scc1 Lcomp""")

def v_lane_addr(d):
    e(f"""v_and_b32 v{d}, 15, v{vLane}
    v_lshlrev_b32 v{d}, 4, v{d}
    v_lshl_add_u32 v{d}, v{vH}, 8, v{d}
    s_mov_b32 exec_lo, 0xffff0000
    s_mov_b32 exec_hi, 0xffff0000
    v_mov_b32 v{d}, 512""")
def fin_init():
    e(f"""s_lshl_b32 s{sT0}, s{sTB}, 16
    s_lshl_b32 s{sT1}, s{sCS}, 7
    s_add_u32 s{sT0}, s{sT0}, s{sT1}
    s_lshl_b32 s{sT1}, s{sW4}, 14
    s_add_u32 s{sXf}, s{sT0}, s{sT1}
    s_add_u32 s{sXf2}, s{sXf}, 8192
    v_lshrrev_b32 v{vT0}, 3, v{vLane}
    v_and_b32 v{vT1}, 7, v{vLane}
    v_lshlrev_b32 v{vRa}, 10, v{vT0}
    v_lshl_add_u32 v{vRa}, v{vT1}, 4, v{vRa}
    v_bfe_u32 v{vT1}, v{vLane}, 1, 2
    v_mul_u32_u24 v{vT1}, {XB}, v{vT1}
    v_lshl_add_u32 v{vT0}, v{vT0}, 4, v{vT1}
    v_and_b32 v{vT1}, 1, v{vLane}
    v_mul_u32_u24 v{vT1}, {XP}, v{vT1}
    s_and_b32 s{sT0}, s{sW4}, 1
    s_lshl_b32 s{sT0}, s{sT0}, 8
    v_add3_u32 v{vT0}, v{vT0}, v{vT1}, s{sT0}
    s_lshr_b32 s{sT0}, s{sW4}, 1
    s_mul_i32 s{sT1}, s{sT0}, {4*XB}
    s_add_u32 s{sT1}, s{sT1}, {XF0}
    v_add_u32 v{vRr}, s{sT1}, v{vT0}
    s_mul_i32 s{sT1}, s{sT0}, {XS1}
    v_add_u32 v{vRr2}, s{sT1}, v{vT0}""")
def a_init(zero=True):
    e(f"""s_lshl_b32 s{sT0}, s{sI}, 2
    s_add_u32 s{sT0}, s{sT0}, s{sW4}
    s_lshl_b32 s{sT0}, s{sT0}, 5
    s_lshr_b32 s{sT1}, s{sJ}, 1
    s_add_u32 s{sT0}, s{sT0}, s{sT1}
    s_and_b32 s{sT1}, s{sJ}, 1
    s_lshl_b32 s{sT1}, s{sT1}, 4
    s_add_u32 s{sT0}, s{sT0}, s{sT1}
    s_lshl_b32 s{sT0}, s{sT0}, 10
    s_add_u32 s{sOp}, s{sT0}, {OIMG}
    s_add_u32 s{sOp2}, s{sOp}, 8192
    v_mov_b64 v[232:233], -1
    v_mov_b64 v[234:235], -1
    buffer_store_dwordx4 v[232:235], v{vL16}, {sr(SWS,4)}, s{sOp} offen sc1
    buffer_store_dwordx4 v[232:235], v{vL16}, {sr(SWS,4)}, s{sOp2} offen sc1""")
    v_lane_addr(vAv)
    e(f"""s_mov_b32 exec_lo, 0xffee0000
    s_mov_b32 exec_hi, 0xffee0000
    v_mov_b32 v{vAv}, 0x4000000
    s_mov_b64 exec, -1
    v_add_u32 v{vAv}, 1024, v{vAv}
    v_mov_b32 v{vAk}, v{vL16}
    v_mov_b32 v{vIdx}, 0xdddd
    s_lshl_b32 s{sT0}, s{sW4}, 11
    s_add_u32 s{sT0}, s{sT0}, {QIMG}
    v_add_u32 v{vAq}, s{sT0}, v{vL16}""")
    if zero: a_zero()
def a_zero():
    for b in range(2):
        for r in range(0, 12, 2): e(f"v_mov_b64 {vr(aO[b]+r,2)}, 0")
def f_init():
    e(f"""v_lshrrev_b32 v{vT0}, 3, v{vLane}
    v_lshlrev_b32 v{vT0}, 10, v{vT0}
    v_and_b32 v{vT1}, 7, v{vLane}
    v_bfe_u32 v{vT2}, v{vLane}, 4, 1
    v_lshlrev_b32 v{vT2}, 2, v{vT2}
    v_xor_b32 v{vT1}, v{vT1}, v{vT2}
    v_lshl_add_u32 v{vDa}, v{vT1}, 4, v{vT0}
    v_add_u32 v{vDa2}, {8192-1024}, v{vDa}
    s_lshl_b32 s{sDo}, s{sW4}, 14
    s_lshl_b32 s{sT1}, s{sCS}, 7
    s_add_u32 s{sDo}, s{sDo}, s{sT1}
    s_lshl_b32 s{sDm}, s{sW4}, 11
    s_mul_i32 s{sHo}, s{sTB}, 176
    s_mul_i32 s{sT0}, s{sW4}, 22
    s_add_u32 s{sHo}, s{sHo}, s{sT0}
    s_lshl_b32 s{sHo}, s{sHo}, 10
    s_add_u32 s{sHo}, s{sHo}, {HIMG}
    s_lshl_b32 s{sT0}, s{sTB}, 3
    s_add_u32 s{sT0}, s{sT0}, s{sW4}
    s_lshl_b32 s{sT0}, s{sT0}, 13
    s_add_u32 s{sOc}, s{sT0}, {OIMG}
    s_add_u32 s{sOc2}, s{sOc}, 4096
    s_add_u32 s{sOc3}, s{sOc}, 32768
    s_add_u32 s{sOc4}, s{sOc}, {32768+4096}
    s_lshr_b32 s{sHc}, s{sTB}, 1
    s_lshl_b32 s{sHc}, s{sHc}, 11
    s_add_u32 s{sHc}, s{sHc}, {HFLG}
    s_lshl_b32 s{sHs}, s{sI}, 4
    s_add_u32 s{sHs}, s{sHs}, s{sJ}
    s_lshl_b32 s{sHs}, s{sHs}, 7
    s_add_u32 s{sHs}, s{sHs}, {HFLG}
    v_bfe_u32 v{vT0}, v{vLane}, 2, 2
    v_lshl_add_u32 v{vT0}, v{vH}, 2, v{vT0}
    v_lshlrev_b32 v{vT0}, 7, v{vT0}
    v_bfe_u32 v{vT1}, v{vLane}, 4, 1
    v_lshl_add_u32 v{vT0}, v{vT1}, 5, v{vT0}
    v_and_b32 v{vT1}, 3, v{vLane}
    v_lshl_add_u32 v{vT0}, v{vT1}, 3, v{vT0}
    v_bfe_u32 v{vT1}, v{vLane}, 3, 1
    v_lshl_add_u32 v{vT0}, v{vT1}, 6, v{vT0}
    v_add_u32 v{vRd}, s{sDm}, v{vT0}
    v_xor_b32 v{vRd+1}, 64, v{vRd}
    v_add_u32 v{vRd+2}, {SP[0]}, v{vRd}
    v_add_u32 v{vRd+3}, {SP[0]}, v{vRd+1}
    s_mul_i32 s{sT0}, s{sW4}, {XK}
    v_add_u32 v{vRw2}, s{sT0}, v{vL16}
    v_add_u32 v{vRw}, {XF0}, v{vRw2}
    v_add_u32 v{vRw2+1}, {XS1}, v{vRw2}""")
def kv_rest(tag):
    e(f"""s_lshl_b32 s{sT0}, s{sW4}, 10
    s_add_u32 s{sT0}, s{sT0}, {36*1024}
    Lkvr_{tag}:
    s_mov_b32 m0, s{sT0}
    s_nop 0
    buffer_load_dwordx4 v{vL16}, {sr(SWS,4)}, s{sT0} offen sc1 lds
    s_add_u32 s{sT0}, s{sT0}, 4096
    s_cmp_lt_u32 s{sT0}, {132*1024}
    s_cbranch_scc1 Lkvr_{tag}""")
    e(tag_issue())

def spread(m, fill):
    w = [16 if "16x16" in x else 32 for x in m]
    tot = sum(c for c, _ in fill); W = sum(w)
    out = []; k = 0; acc = 0; cw = 0
    for x, wx in zip(m, w):
        out.append(x); cw += wx
        while k < len(fill) and (acc + fill[k][0]/2) * W <= tot * cw:
            out.append(fill[k][1]); acc += fill[k][0]; k += 1
    out += [t for _, t in fill[k:]]
    return out


C1 = -2*0.7978845608028654*1.4426950408889634
C3 = C1*0.044715
def gelu_consts(m, r, d):
    e(f"""v_sub_f32 v{d}, 0, v{m}
    v_mul_f32 v{d+3}, v{r}, v{r}
    v_mul_f32 v{d+1}, {f2u(C1):#x}, v{r}
    v_mul_f32 v{d+2}, {f2u(C3):#x}, v{r}
    v_mul_f32 v{d+2}, v{d+2}, v{d+3}
    v_rcp_f32 v{d+3}, v{d+3}""")
def bc(reg, pos, n):
    base = reg & ~1
    return vr(base, 2), reg & 1
def pk(op, d, srcs, neg=None):
    ops = []; lo = []; hi = []
    for t, r in srcs:
        if t == 'p': ops.append(vr(r, 2)); lo.append(0); hi.append(1)
        else: ops.append(vr(r & ~1, 2)); lo.append(r & 1); hi.append(r & 1)
    return f"{op} {vr(d,2)}, {', '.join(ops)} op_sel:[{','.join(map(str,lo))}] op_sel_hi:[{','.join(map(str,hi))}]"
def gelu_tile(g, u, csg, csu, k, tmp, n=16, dst=None):
    for p in range(0, n, 2):
        e(pk("v_pk_fma_f32", g+p, [('b', k), ('p', csg+p), ('p', g+p)]))
        e(pk("v_pk_fma_f32", u+p, [('b', k), ('p', csu+p), ('p', u+p)]))
    for p in range(0, n, 2):
        e(pk("v_pk_mul_f32", tmp+p, [('p', g+p), ('p', g+p)]))
    for p in range(0, n, 2):
        e(pk("v_pk_fma_f32", tmp+p, [('p', tmp+p), ('b', k+2), ('b', k+1)]))
    for p in range(0, n, 2):
        e(pk("v_pk_mul_f32", tmp+p, [('p', tmp+p), ('p', g+p)]))
    for p in range(n): e(f"v_exp_f32 v{tmp+p}, v{tmp+p}")
    for p in range(0, n, 2):
        e(pk("v_pk_mul_f32", u+p, [('p', u+p), ('p', g+p)]))
    for p in range(0, n, 2):
        e(pk("v_pk_fma_f32", tmp+p, [('p', tmp+p), ('b', k+3), ('b', k+3)]))
    for p in range(n): e(f"v_rcp_f32 v{tmp+p}, v{tmp+p}")
    e("s_nop 0")
    for p in range(0, n, 2):
        e(pk("v_pk_mul_f32", u+p, [('p', u+p), ('p', tmp+p)]))
    for p in range(n//2): e(f"v_cvt_pk_bf16_f32 v{dst[p] if dst else g+p}, v{u+2*p}, v{u+2*p+1}")

def cs_read(d, slot_off):
    for q in range(4): e(f"ds_read_b128 {vr(d+4*q,4)}, v{vT3} offset:{slot_off+32*q}")

def lin_fold(acc, cs, negm, scale, n=16):
    for p in range(0, n, 2):
        e(pk("v_pk_fma_f32", acc+p, [('b', negm), ('p', cs+p), ('p', acc+p)]))
    for p in range(0, n, 2):
        e(pk("v_pk_mul_f32", acc+p, [('p', acc+p), ('b', scale)]))

def q_epilogue(cs):
    e(f"v_mul_f32 v{vSt+2}, {f2u(0.25*1.4426950408889634):#x}, v{vSt+1}")
    lin_fold(vAcc, cs, vSt+4, vSt+2)
    for p in range(8): e(f"v_cvt_pk_bf16_f32 v{vAcc+p}, v{vAcc+2*p}, v{vAcc+2*p+1}")
    e(f"""s_lshl_b32 s{sT0}, s{sW4}, 11
    s_add_u32 s{sT0}, s{sT0}, {QIMG}
    v_lshl_add_u32 v{vT0}, v{vLane}, 4, s{sT0}
    ds_write_b128 v{vT0}, {vr(vAcc,4)}
    ds_write_b128 v{vT0}, {vr(vAcc+4,4)} offset:1024""")


def rowstat_finish():
    a = vRs+8
    e(f"v_mov_b32 v{vT0}, 0x3f803f80")
    for k in range(4):
        for r in range(2):
            x = vRs+4*r+k
            c0 = "0" if k == 0 else f"v{a+2*r}"; c1 = "0" if k == 0 else f"v{a+2*r+1}"
            e(f"v_dot2_f32_bf16 v{a+2*r}, v{x}, v{vT0}, {c0}\nv_dot2_f32_bf16 v{a+2*r+1}, v{x}, v{x}, {c1}")
    e("s_nop 2")
    for ctl in ("row_shr:1", "row_shr:2", "row_shr:4", "row_shr:8"):
        for k in range(4): e(f"v_add_f32_dpp v{a+k}, v{a+k}, v{a+k} {ctl} row_mask:0xf bank_mask:0xf bound_ctrl:0")
    for ctl in ("row_bcast:15 row_mask:0xa", "row_bcast:31 row_mask:0xc"):
        for k in range(4): e(f"v_add_f32_dpp v{a+k}, v{a+k}, v{a+k} {ctl} bank_mask:0xf")
    for r in range(2):
        d = vRs+4*r
        e(f"""v_mul_f32 v{d}, {f2u(1/512):#x}, v{a+2*r}
        v_mul_f32 v{d+1}, {f2u(1/512):#x}, v{a+2*r+1}
        v_fma_f32 v{d+1}, -v{d}, v{d}, v{d+1}
        v_max_f32 v{d+1}, 0, v{d+1}
        v_add_f32 v{d+1}, {f2u(1e-5):#x}, v{d+1}
        v_rsq_f32 v{d+1}, v{d+1}""")
def rowstat_post():
    e(f"""s_lshl_b32 s{sT0}, s{sW4}, 4
    s_add_u32 s{sT0}, s{sT0}, {STL}
    v_mov_b32 v{vT0}, s{sT0}
    s_mov_b32 exec_lo, 0
    s_brev_b32 exec_hi, 1
    ds_write_b64 v{vT0}, {vr(vRs,2)}
    ds_write_b64 v{vT0}, {vr(vRs+4,2)} offset:8
    s_mov_b64 exec, -1""")
def rowstat_store():
    for r in range(2): e(f"v_mov_b32 v{vRs+4*r+2}, s{sNo}\nv_mov_b32 v{vRs+4*r+3}, s{sNo+1}")
    e(f"""s_lshl_b32 s{sT0}, s{sRow}, 5
    s_add_u32 s{sT0}, s{sT0}, {STATG}
    s_mov_b32 exec_lo, 0
    s_brev_b32 exec_hi, 1
    buffer_store_dwordx4 {vr(vRs,4)}, off, {sr(SWS,4)}, s{sT0} sc1
    buffer_store_dwordx4 {vr(vRs+4,4)}, off, {sr(SWS,4)}, s{sT0} offset:16 sc1
    s_mov_b64 exec, -1""")
def kv_dma(tag):
    e(f"""s_lshl_b32 s{sT0}, s{sW4}, 10
    Lkvd_{tag}:
    s_mov_b32 m0, s{sT0}
    s_nop 0
    buffer_load_dwordx4 v{vL16}, {sr(SWS,4)}, s{sT0} offen sc1 lds
    s_add_u32 s{sT0}, s{sT0}, 4096
    s_cmp_lt_u32 s{sT0}, {36*1024}
    s_cbranch_scc1 Lkvd_{tag}""")
def tr_lane(rowmul, d):
    e(f"""v_lshrrev_b32 v{vT0}, 4, v{vLane}
    v_bfe_u32 v{vT1}, v{vLane}, 2, 2
    v_lshl_add_u32 v{vT0}, v{vT0}, 3, v{vT1}
    v_mul_u32_u24 v{vT0}, {rowmul}, v{vT0}
    v_bfe_u32 v{vT1}, v{vLane}, 4, 1
    v_lshl_add_u32 v{vT0}, v{vT1}, 5, v{vT0}
    v_and_b32 v{vT1}, 3, v{vLane}
    v_lshl_add_u32 v{d}, v{vT1}, 3, v{vT0}""")
def ones_col0(d):
    e(f"""v_and_b32 v{vT0}, 15, v{vLane}
    v_cmp_eq_u32 vcc, 0, v{vT0}
    v_mov_b32 v{vT1}, 0x3f803f80
    s_nop 0
    v_cndmask_b32 v{d}, 0, v{vT1}, vcc""")
    for k in range(1, 4): e(f"v_mov_b32 v{d+k}, v{d}")
def rot_delta():
    return f"s_add_u32 s{sRb}, s{sRb}, 1\ns_cmp_eq_u32 s{sRb}, 3\ns_cselect_b32 s{sDl}, s{sC3}, {STG}\ns_cselect_b32 s{sRb}, 0, s{sRb}"
def cs16_write(accs, slot0_sreg, stride):
    e(f"v_add_u32 v{vT0}, s{slot0_sreg}, v{vLane}\ns_mov_b32 exec_lo, 0x00010001\ns_mov_b32 exec_hi, 0x00010001")
    for n, a in enumerate(accs): e(f"ds_write_b128 v{vT0}, {vr(a,4)} offset:{stride*n}")
    e("s_mov_b64 exec, -1")

ROT = int(sys.argv[sys.argv.index("--rot")+1]) if "--rot" in sys.argv else 7
sKs = 84
def dma_x():
    return [f"s_add_u32 m0, s{sLb}, s{sMx}", f"s_add_u32 s{sT0}, s{sXo}, 16384",
            f"buffer_load_dwordx4 v{vXa0}, {sr(SX,4)}, s{sXo} offen lds",
            f"buffer_load_dwordx4 v{vXa1}, {sr(SX,4)}, s{sXo} offen offset:1024 lds",
            "s_add_u32 m0, m0, 2048", f"s_add_u32 s{sXo}, s{sXo}, 128",
            f"buffer_load_dwordx4 v{vXa0}, {sr(SX,4)}, s{sT0} offen lds",
            f"buffer_load_dwordx4 v{vXa1}, {sr(SX,4)}, s{sT0} offen offset:1024 lds"]
def dma_w():
    r = []
    for k, sd in enumerate((SWG, SWU)):
        r += [f"s_add_u32 m0, s{sLb}, s{sMw}" if k == 0 else f"s_add_u32 m0, m0, {UOFF-GOFF}", "s_nop 0",
              f"buffer_load_dwordx4 v{vWa0}, {sr(sd,4)}, s{sWo} offen lds",
              f"buffer_load_dwordx4 v{vWa1}, {sr(sd,4)}, s{sWo} offen offset:1024 lds",
              f"buffer_load_dwordx4 v{vWa2}, {sr(sd,4)}, s{sWo} offen offset:2048 lds"]
    r += [f"s_add_u32 m0, s{sLb}, s{sMq}", f"s_add_u32 s{sWo}, s{sWo}, {64*2752}",
          f"buffer_load_dwordx4 v{vQa}, {sr(SWQ,4)}, s{sQo} offen lds", f"s_add_u32 s{sQo}, s{sQo}, 65536",
          f"s_add_u32 s{sLb}, s{sLb}, {STG}", f"s_cmp_ge_u32 s{sLb}, {3*STG}", f"s_cselect_b32 s{sLb}, 0, s{sLb}"]
    if ROT:
        r += [f"s_add_u32 s{sKs}, s{sKs}, 1", f"s_cmp_eq_u32 s{sKs}, 8",
              f"s_cselect_b32 s{sT0}, 1024, 0", f"s_cselect_b32 s{sT1}, {512*2752}, 0", f"s_cselect_b32 s{sT2}, {512*1024}, 0",
              f"s_sub_u32 s{sXo}, s{sXo}, s{sT0}", f"s_sub_u32 s{sWo}, s{sWo}, s{sT1}", f"s_sub_u32 s{sQo}, s{sQo}, s{sT2}"]
    return r
e(f"s_mov_b32 s{sLb}, 0\ns_lshl_b32 s{sMx}, s{sW4}, 12")
if ROT: e(f"s_lshl_b32 s{sKs}, s{sI if M48 else sJ}, 1\ns_add_u32 s{sKs}, s{sKs}, s{sJ if M48 else sI}\ns_and_b32 s{sKs}, s{sKs}, {ROT}\ns_lshl_b32 s{sT0}, s{sKs}, 7\ns_add_u32 s{sXo}, s{sXo}, s{sT0}")
for x in dma_x(): e(x)
for k, r in enumerate((vWa0, vWa1, vWa2)):
    e(f"""v_add_u32 v{vT0}, {64*k}, v{vLane}
    v_mul_u32_u24 v{vT1}, 43691, v{vT0}
    v_lshrrev_b32 v{vT1}, 19, v{vT1}
    v_mul_u32_u24 v{vT2}, 12, v{vT1}
    v_sub_u32 v{vT0}, v{vT0}, v{vT2}
    v_lshrrev_b32 v{vT2}, 2, v{vT1}
    v_and_b32 v{vT2}, 2, v{vT2}
    v_xor_b32 v{vT0}, v{vT0}, v{vT2}
    v_mul_u32_u24 v{vT1}, 2752, v{vT1}
    v_lshl_add_u32 v{r}, v{vT0}, 4, v{vT1}""")
    if k: e(f"v_subrev_u32 v{r}, {1024*k}, v{r}")
e(f"""v_lshrrev_b32 v{vT0}, 2, v{vLane}
v_lshlrev_b32 v{vT0}, 10, v{vT0}
v_and_b32 v{vT1}, 3, v{vLane}
v_lshlrev_b32 v{vT2}, 1, v{vH}
v_xor_b32 v{vT1}, v{vT1}, v{vT2}
v_lshl_add_u32 v{vQa}, v{vT1}, 4, v{vT0}
s_mul_i32 s{sT0}, s{sJ}, 96
s_min_u32 s{sT0}, s{sT0}, 1280
s_lshl_b32 s{sT0}, s{sT0}, 1
s_mul_i32 s{sWo}, s{sW4}, {16*2752}
s_add_u32 s{sWo}, s{sWo}, s{sT0}
s_lshl_b32 s{sQo}, s{sW4}, 14
s_lshl_b32 s{sT0}, s{sJ}, 6
s_add_u32 s{sQo}, s{sQo}, s{sT0}
s_mul_i32 s{sMw}, s{sW4}, 3072
s_add_u32 s{sMw}, s{sMw}, {GOFF}
s_lshl_b32 s{sMq}, s{sW4}, 10
s_add_u32 s{sMq}, s{sMq}, {QOFF}""")
if ROT: e(f"s_mul_i32 s{sT0}, s{sKs}, {64*2752}\ns_add_u32 s{sWo}, s{sWo}, s{sT0}\ns_lshl_b32 s{sT0}, s{sKs}, 16\ns_add_u32 s{sQo}, s{sQo}, s{sT0}")
for x in dma_w() + dma_x() + dma_w(): e(x)
e(tag_issue())
hW = 32
e(f"s_mov_b32 s{sSt}, 0\ns_mov_b32 s{sRb}, 0\ns_mov_b32 s{sC3}, {(-2*STG) & 0xffffffff}")
if "--hp3" in sys.argv: e("s_setprio 3")
tstamp(21); e("s_waitcnt vmcnt(12)"); tstamp(23); e("s_barrier")
stamp(12); tflush(); TS.clear()
def helper_loop(cs):
    t = "c" if cs else "n"
    e(f"Lhl{t}:")
    if cs:
        rd, m = cs_parts()
        for x in rd: e(x)
        e(rot_delta())
        for x in dma_x(): e(x)
        e(f"v_add_u32 v{hA}, s{sDl}, v{hA}\nv_add_u32 v{hA+1}, s{sDl}, v{hA+1}\ns_waitcnt lgkmcnt(0)")
        w = dma_w(); k = 0
        for x in w:
            e(x)
            if "buffer_load" in x: e(m[k]); k += 1
        for x in m[k:]: e(x)
    else:
        for x in dma_x() + dma_w():
            if "--nodma" in sys.argv and "buffer_load" in x: continue
            e(x)
            if "--pace" in sys.argv and "buffer_load" in x: e("s_sleep 1")
        e(f"s_or_b32 s{sT0}, s{sSt}, s{sW}\ns_cmp_lg_u32 s{sT0}, 0\ns_cbranch_scc1 Lnpub")
        e(f"v_lshlrev_b32 v{vT0}, 3, v{vLane}\nv_add_u32 v{vT0}, {STL}, v{vT0}\nds_read_b64 {vr(hW,2)}, v{vT0}")
        tag_wait("p", 11)
        e(f"""v_mov_b32 v{hW+2}, s{sNo}
        v_mov_b32 v{hW+3}, s{sNo+1}
        s_lshl_b32 s{sT0}, s{sRow}, 5
        s_add_u32 s{sT0}, s{sT0}, {STATG}
        s_mov_b64 exec, 0xff
        s_waitcnt lgkmcnt(0)
        buffer_store_dwordx4 {vr(hW,4)}, v{vL16}, {sr(SWS,4)}, s{sT0} offen sc1
        s_mov_b64 exec, -1
        Lnpub:""")
    e(f"""s_add_u32 s{sSt}, s{sSt}, 1
    {tk(None)}
    s_waitcnt vmcnt(11)
    {tk(80)}
    s_barrier
    {tk(81)}
    s_cmp_lt_u32 s{sSt}, 6
    s_cbranch_scc1 Lhl{t}""")
helper_loop(False)
tkout()
tag_wait("h", 0)
a_init(); fin_init()
e(f"s_mov_b32 s{sKf}, {KFLG}")
e("s_barrier")
e(flags_issue(sKf))
e(f"s_cmp_lg_u32 s{sW}, 1\ns_cbranch_scc1 Lhns\ns_lshl_b32 s{sT1}, s{sI}, 11\ns_add_u32 s{sT1}, s{sT1}, {STATG}\ns_mov_b32 s{sT0}, 0\nLhs:")
e(f"""buffer_load_dwordx4 {vr(hW,4)}, v{vL16}, {sr(SWS,4)}, s{sT1} offen sc1
buffer_load_dwordx4 {vr(hW+4,4)}, v{vL16}, {sr(SWS,4)}, s{sT1} offen offset:1024 sc1
s_add_u32 s{sT0}, s{sT0}, 1
s_waitcnt vmcnt(0)
v_cmp_ne_u64 vcc, s[{sNo}:{sNo+1}], {vr(hW+2,2)}
v_cmp_ne_u64 s[{sEx}:{sEx+1}], s[{sNo}:{sNo+1}], {vr(hW+6,2)}
s_or_b64 vcc, vcc, s[{sEx}:{sEx+1}]
s_cmp_ge_u32 s{sT0}, 100000
s_cbranch_scc1 Lhsd
s_cbranch_vccnz Lhs
Lhsd:""")
gelu_consts(hW, hW+1, hW+8); gelu_consts(hW+4, hW+5, hW+12)
e(f"""v_add_u32 v{vT0}, {STATM}, v{vL16}
ds_write_b128 v{vT0}, {vr(hW+8,4)}
ds_write_b128 v{vT0}, {vr(hW+12,4)} offset:1024
Lhns:""")
e(f"""s_waitcnt vmcnt(0)
v_cmp_ne_u64 vcc, s[{sNo}:{sNo+1}], {vr(vPoll,2)}
s_mov_b32 s{sSt}, 1
s_cbranch_vccnz Lhnk""")
kv_dma("a")
e(f"s_mov_b32 s{sSt}, 0\ns_branch Lhnk2\nLhnk:")
e(flags_issue(sKf))
e("Lhnk2:\ns_barrier\ns_waitcnt lgkmcnt(0)")
stamp(1)
e("s_barrier")
e(f"s_cmp_lg_u32 s{sSt}, 0\ns_cbranch_scc1 Lkvwait\ns_waitcnt vmcnt(0)\ns_branch Lp2")

cX = [8, 24]; cW = 40; cRX, cRW, cRQ = 68, 70, 72; cCs = 76; cO = 92; cA = 96
e("Lcomp:")
e(f"""v_and_b32 v{vT0}, 15, v{vLane}
v_lshrrev_b32 v{vT1}, 1, v{vT0}
v_lshrrev_b32 v{vT2}, 4, v{vLane}
v_xor_b32 v{vT1}, v{vT1}, v{vT2}
v_lshlrev_b32 v{vT0}, 7, v{vT0}
s_and_b32 s{sT0}, s{sW}, 1
s_lshl_b32 s{sT0}, s{sT0}, 13
v_add_u32 v{vT0}, s{sT0}, v{vT0}
v_lshl_add_u32 v{cRX}, v{vT1}, 4, v{vT0}
v_xor_b32 v{cRX+1}, 64, v{cRX}""")
tr_lane(192, cRW)
e(f"""s_lshl_b32 s{sT1}, s{sW}, 4
s_and_b32 s{sT1}, s{sT1}, 32
v_xor_b32 v{cRW}, s{sT1}, v{cRW}
v_xor_b32 v{cRW+1}, 32, v{cRW}
s_lshl_b32 s{sT2}, s{sT1}, 1
v_add_u32 v{cRW}, s{sT2}, v{cRW}
s_lshl_b32 s{sT2}, s{sT1}, 2
v_add_u32 v{cRW+1}, s{sT2}, v{cRW+1}""")
tr_lane(64, cRQ); e(f"v_xor_b32 v{cRQ}, s{sT1}, v{cRQ}")
ones_col0(cO)
cEh, cEs, cEq = 73, 74, 75
e(f"""s_lshl_b32 s{sT0}, s{sI}, 2
s_and_b32 s{sT1}, s{sW}, 1
s_lshl_b32 s{sT1}, s{sT1}, 1
s_add_u32 s{sT0}, s{sT0}, s{sT1}
s_mul_i32 s{sT0}, s{sT0}, 88
s_mul_i32 s{sT1}, s{sJ}, 6
s_min_u32 s{sT1}, s{sT1}, 80
s_bfe_u32 s{sT2}, s{sW}, 0x10001
s_mul_i32 s{sT2}, s{sT2}, 3
s_add_u32 s{sT1}, s{sT1}, s{sT2}
s_and_b32 s{sT2}, s{sW}, 2""")
for add, dst in enumerate((sC0, sC1, sC2)):
    e(f"""s_add_u32 s{sT3}, s{sT1}, {add}
    s_lshr_b32 s{dst}, s{sT3}, 2
    s_add_u32 s{dst}, s{dst}, s{sT0}
    s_and_b32 s{sT3}, s{sT3}, 3
    s_mul_i32 s{sT3}, s{sT3}, 22
    s_add_u32 s{dst}, s{dst}, s{sT3}
    s_lshl_b32 s{dst}, s{dst}, 10
    s_add_u32 s{dst}, s{dst}, {HIMG}""")
e(f"""v_bfe_u32 v{vT0}, v{vLane}, 4, 1
v_lshlrev_b32 v{vT0}, 9, v{vT0}
v_and_b32 v{vT1}, 15, v{vLane}
v_lshl_add_u32 v{vT0}, v{vT1}, 4, v{vT0}
v_lshl_add_u32 v{cEh}, v{vH}, 8, v{vT0}
s_and_b32 s{sT0}, s{sW}, 1
s_lshl_b32 s{sT1}, s{sT0}, 10
s_add_u32 s{sT1}, s{sT1}, {STATM}
v_lshl_add_u32 v{cEs}, v{vT1}, 4, s{sT1}
s_lshl_b32 s{sT0}, s{sT0}, 12
s_lshl_b32 s{sT2}, s{sT2}, 9
s_add_u32 s{sT0}, s{sT0}, s{sT2}
s_add_u32 s{sT0}, s{sT0}, {QIMG}
v_lshl_add_u32 v{vT0}, v{vH}, 3, v{vT0}
v_add_u32 v{cEq}, s{sT0}, v{vT0}""")
f_init()
for r in list(range(cCs, cCs+16, 2)) + [r for r in range(cA, cA+112, 2) if not vRs <= r < vRs+16]: e(f"v_mov_b64 {vr(r,2)}, 0")
tstamp(13)
e("s_waitcnt vmcnt(0)")
tstamp(21)
rowstat_finish()
rowstat_post()
tstamp(23); tflush(); TS.clear()
if "--touch" in sys.argv:
    e(f"""s_and_b32 s{sT2}, s{sI}, 7
    s_mul_i32 s{sT2}, s{sT2}, 48
    s_add_u32 s{sT2}, s{sT2}, 128
    s_cmp_ge_u32 s{sW}, 6
    s_cbranch_scc1 Ltc6
    v_lshrrev_b32 v{vT0}, 1, v{vLane}
    v_mul_u32_u24 v{vT0}, 2752, v{vT0}
    v_and_b32 v{vT1}, 1, v{vLane}
    v_lshl_add_u32 v{vT0}, v{vT1}, 7, v{vT0}
    s_mul_i32 s{sT0}, s{sJ}, 96
    s_min_u32 s{sT0}, s{sT0}, 1280
    s_lshl_b32 s{sT0}, s{sT0}, 1
    s_mul_i32 s{sT2}, s{sT2}, 2752
    s_add_u32 s{sT0}, s{sT0}, s{sT2}
    s_add_u32 s{sT1}, s{sT0}, {32*2752}
    s_cmp_eq_u32 s{sW}, 5
    s_cbranch_scc1 Ltc5
    buffer_load_dword v79, v{vT0}, {sr(SWG,4)}, s{sT0} offen
    s_mov_b32 exec_hi, 0
    buffer_load_dword v79, v{vT0}, {sr(SWG,4)}, s{sT1} offen
    s_branch Ltce
    Ltc5:
    buffer_load_dword v79, v{vT0}, {sr(SWU,4)}, s{sT0} offen
    s_mov_b32 exec_hi, 0
    buffer_load_dword v79, v{vT0}, {sr(SWU,4)}, s{sT1} offen
    s_branch Ltce
    Ltc6:
    s_cmp_eq_u32 s{sW}, 7
    s_cbranch_scc1 Ltc7
    v_lshrrev_b32 v{vT0}, 1, v{vLane}
    v_lshlrev_b32 v{vT0}, 10, v{vT0}
    v_and_b32 v{vT1}, 1, v{vLane}
    v_lshl_add_u32 v{vT0}, v{vT1}, 7, v{vT0}
    s_lshl_b32 s{sT0}, s{sI}, 17
    s_and_b32 s{sT1}, s{sJ}, 3
    s_lshl_b32 s{sT1}, s{sT1}, 15
    s_add_u32 s{sT0}, s{sT0}, s{sT1}
    buffer_load_dword v79, v{vT0}, {sr(SX,4)}, s{sT0} offen offset:256
    buffer_load_dword v79, v{vT0}, {sr(SX,4)}, s{sT0} offen offset:512
    buffer_load_dword v79, v{vT0}, {sr(SX,4)}, s{sT0} offen offset:768
    s_branch Ltce
    Ltc7:
    v_lshlrev_b32 v{vT0}, 10, v{vLane}
    s_lshl_b32 s{sT2}, s{sT2}, 10
    s_lshl_b32 s{sT0}, s{sJ}, 6
    s_add_u32 s{sT0}, s{sT0}, s{sT2}
    s_mov_b32 exec_hi, 0xffff
    buffer_load_dword v79, v{vT0}, {sr(SWQ,4)}, s{sT0} offen
    Ltce:
    s_mov_b64 exec, -1""")
e("s_nop 1")
for r in range(vRs, vRs+16, 2): e(f"v_mov_b64 {vr(r,2)}, 0")
e(f"s_mov_b32 s{sSt}, 0\ns_mov_b32 s{sRb}, 0\ns_mov_b32 s{sC3}, {(-2*STG) & 0xffffffff}\ns_setprio 2")
e(f"s_bitcmp1_b32 s{sW}, 0\ns_cbranch_scc1 Lcl1")
NF = 7
def comp_loop(var):
    tag = f"{var}"
    def wrd(n, k2):
        if n == 0: a, o, rs = cRQ, QOFF, 64
        else:
            t = (n-1) % 3
            a, o, rs = cRW+(t & 1), (GOFF if n < 4 else UOFF) + (t >> 1)*64, 192
        return tr(cW+4*n, a, o+32*k2*rs) + tr(cW+4*n+2, a, o+(32*k2+4)*rs)
    def xrd(k2): return [f"ds_read_b128 {vr(cX[k2]+4*u,4)}, v{cRX+k2} offset:{2048*u}" for u in range(4)]
    def mm(n, k2):
        r = [mfma16(cA+28*u+4*n, cW+4*n, cX[k2]+4*u) for u in range(4)]
        if (n & 1) == var: r.append(mfma16(cCs+4*(n >> 1), cW+4*n, cO))
        return r
    e("s_waitcnt lgkmcnt(0)\ns_barrier")
    stamp(12)
    for x in xrd(0) + sum([wrd(n, 0) for n in range(NF)], []): e(x)
    e(f"s_waitcnt lgkmcnt(0)\n.p2align 3\nLc_{tag}:")
    adr = [f"v_add_u32 v{r}, s{sDl}, v{r}" for r in (cRX, cRX+1, cRW, cRW+1, cRQ)]
    ctl = rot_delta().split("\n") + [f"s_add_u32 s{sSt}, s{sSt}, 1"]
    BARG = 2
    def build(order0):
        out = []; q = []; issued = list(order0)
        def need(tagname):
            idx = max(i for i, t in enumerate(issued) if t == tagname)
            return len(issued)-1-idx
        def push(tagname, lst): q.extend((tagname, x) for x in lst)
        lastN = [99]
        for k2 in range(2):
            if k2 == 0: push("x1", xrd(1))
            for n in range(NF):
                if k2 == 1 and n == BARG:
                    while q:
                        t, x = q.pop(0); out.append(x)
                        if t: issued.append(t)
                    out.append(f"s_waitcnt lgkmcnt(0)\n{tk(None)}\ns_barrier\n{tk(81)}")
                    issued.clear(); issued.extend(["done"])
                    push("x0", xrd(0))
                    for m in range(BARG): push(f"w{m}0", wrd(m, 0))
                reqs = [f"w{n}{k2}"] + ([f"x{k2}"] if n == 0 else [])
                for r in reqs: assert all(t != r for t, _ in q), (r, k2, n)
                ns = [need(r) for r in reqs if r in issued]
                if ns and n % 2 == 0 or ns and min(ns) < lastN[0]:
                    nxt = f"w{n+1}{k2}"
                    if nxt in issued and all(t != nxt for t, _ in q): ns.append(need(nxt))
                    N = min(min(ns), 15); out.append(f"s_waitcnt lgkmcnt({N})"); lastN[0] = N
                for x in mm(n, k2):
                    out.append(x)
                    if q:
                        t, y = q.pop(0); out.append(y)
                        if t: issued.append(t); lastN[0] += 1
                if k2 == 0:
                    push(f"w{n}1", wrd(n, 1))
                    if n == 3: push(None, ctl)
                    if n == NF-1: push(None, adr)
                elif n >= BARG: push(f"w{n}0", wrd(n, 0))
        while q:
            t, x = q.pop(0); out.append(x)
            if t: issued.append(t)
        return out, issued
    _, steady = build([])
    out, _ = build(steady)
    for x in out: e(x)
    e(f"s_cmp_lt_u32 s{sSt}, 8\ns_cbranch_scc1 Lc_{tag}")
    tkout()
eC, eK, eT = 8, 40, 56
comp_loop(0)
e("s_branch Lcle\nLcl1:")
comp_loop(1)
e("Lcle:")
tstamp(1)
e(f"""s_bfe_u32 s{sT2}, s{sW}, 0x10001
s_mul_i32 s{sT2}, s{sT2}, 448
s_add_u32 s{sT2}, s{sT2}, {CSUM}
s_and_b32 s{sT1}, s{sW}, 1
s_lshl_b32 s{sT1}, s{sT1}, 6
s_add_u32 s{sT1}, s{sT1}, s{sT2}
v_and_b32 v{vT3}, 48, v{vLane}
v_add_u32 v{vT3}, s{sT2}, v{vT3}
v_add_u32 v{vT0}, s{sT1}, v{vLane}
s_mov_b32 exec_lo, 0x00010001
s_mov_b32 exec_hi, 0x00010001
ds_write_b128 v{vT0}, {vr(cCs,4)}
ds_write_b128 v{vT0}, {vr(cCs+4,4)} offset:128
ds_write_b128 v{vT0}, {vr(cCs+8,4)} offset:256
s_bitcmp1_b32 s{sW}, 0
s_cbranch_scc1 Lnc3
ds_write_b128 v{vT0}, {vr(cCs+12,4)} offset:384
Lnc3:
s_mov_b64 exec, -1
s_waitcnt vmcnt(0) lgkmcnt(0)
s_barrier""")
for u in range(4): e(f"ds_read_b128 {vr(eK+4*u,4)}, v{cEs} offset:{256*u}")
for n in range(NF): e(f"ds_read_b128 {vr(eC+4*n,4)}, v{vT3} offset:{64*n}")
e("s_waitcnt lgkmcnt(6)")
for u in range(4): e(f"v_mul_f32 v{eT+u}, {f2u(0.25*1.4426950408889634/C1):#x}, v{eK+4*u+1}")
for u in range(4):
    for p in (0, 2): e(pk("v_pk_fma_f32", cA+28*u+p, [('b', eK+4*u), ('p', eC+p), ('p', cA+28*u+p)]))
for u in range(4):
    for p in (0, 2): e(pk("v_pk_mul_f32", cA+28*u+p, [('p', cA+28*u+p), ('b', eT+u)]))
for u in range(4):
    q = cA+28*u
    e(f"v_cvt_pk_bf16_f32 v{q}, v{q}, v{q+1}\nv_cvt_pk_bf16_f32 v{q+1}, v{q+2}, v{q+3}")
for u in range(4): e(f"ds_write_b64 v{cEq}, {vr(cA+28*u,2)} offset:{2048*(u>>1)+256*(u&1)}")
e("s_waitcnt lgkmcnt(0)\ns_barrier")
kv_rest("c")
for u in range(4):
    g = cA+28*u+4; P = cA+28*(u & 2)+4
    gelu_tile(g, g+12, eC+4, eC+16, eK+4*u, eT, 12, [P+4*(p//2)+2*(u & 1)+(p & 1) for p in range(6)])
    if u & 1:
        e("s_nop 0")
        for t in range(3):
            e(f"v_permlane32_swap_b32 v{P+4*t}, v{P+4*t+2}\nv_permlane32_swap_b32 v{P+4*t+1}, v{P+4*t+3}")
        for t, so in enumerate((sC0, sC1, sC2)):
            e(f"buffer_store_dwordx4 {vr(P+4*t,4)}, v{cEh}, {sr(SWS,4)}, s{so} offen sc1")
        if u == 1: e(f"v_add_u32 v{cEh}, {88*1024}, v{cEh}")
stamp(2)
tflush(); TS.clear()
e("s_branch LF")

def cs_write(acc, slot_expr_sreg):
    e(f"""v_and_b32 v{vT0}, 1, v{vLane}
    v_lshlrev_b32 v{vT0}, 6, v{vT0}
    v_lshrrev_b32 v{vT1}, 4, v{vLane}
    v_lshl_add_u32 v{vT0}, v{vT1}, 4, v{vT0}
    v_add_u32 v{vT0}, {slot_expr_sreg}, v{vT0}
    s_mov_b32 exec_lo, 0x00030003
    s_mov_b32 exec_hi, 0x00030003
    ds_write_b128 v{vT0}, {vr(acc,4)}
    s_mov_b64 exec, -1""")
e("Lkvcu:\ns_setprio 0")
WKV = 131072
vXf, vWk = 32, 192
sXb = sMw
e(f"""s_lshl_b32 s{sT0}, s{sW}, 11
s_add_u32 m0, s{sT0}, {WKV}
s_lshl_b32 s{sXb}, s{sW}, 14
buffer_load_dwordx4 v{vL16}, {sr(SWV,4)}, s{sT0} offen lds
buffer_load_dwordx4 v{vL16}, {sr(SWV,4)}, s{sT0} offen offset:1024 lds
s_add_u32 m0, s{sT0}, {WKV+16384}
s_lshr_b32 s{sT3}, s{sW}, 2
buffer_load_dwordx4 v{vL16}, {sr(SWK,4)}, s{sT0} offen lds
buffer_load_dwordx4 v{vL16}, {sr(SWK,4)}, s{sT0} offen offset:1024 lds
s_lshl_b32 s{sT0}, s{sT3}, 9
s_add_u32 s{sXo}, s{sXo}, s{sT0}""")
def kvx_dma(c):
    return [f"""s_add_u32 m0, s{sXb}, {4096*c+2048*hf}
        s_add_u32 s{sT0}, s{sXo}, {128*c+16384*hf}
        buffer_load_dwordx4 v{vXa0}, {sr(SX,4)}, s{sT0} offen lds
        buffer_load_dwordx4 v{vXa1}, {sr(SX,4)}, s{sT0} offen offset:1024 lds""" for hf in range(2)]
for x in kvx_dma(0): e(x)
e(tag_issue())
for x in kvx_dma(1): e(x)
e(f"""v_and_b32 v{vT0}, 31, v{vLane}
v_lshrrev_b32 v{vT1}, 1, v{vT0}
v_and_b32 v{vT1}, 7, v{vT1}
v_xor_b32 v{vT1}, v{vT1}, v{vH}
v_lshlrev_b32 v{vT0}, 7, v{vT0}
v_add_u32 v{vT0}, s{sXb}, v{vT0}""")
for ks in range(4):
    e(f"v_xor_b32 v{vT2}, {2*ks}, v{vT1}\nv_lshl_add_u32 v{vRX+ks}, v{vT2}, 4, v{vT0}")
e(f"""v_bfe_u32 v{vT0}, v{vLane}, 2, 2
v_lshl_add_u32 v{vT0}, v{vH}, 3, v{vT0}
v_bfe_u32 v{vT1}, v{vLane}, 4, 1
v_and_b32 v{vT2}, 3, v{vLane}
v_lshlrev_b32 v{vT2}, 3, v{vT2}
v_lshl_add_u32 v{vT3}, v{vT1}, 5, v{vT2}
v_lshl_add_u32 v{vRQ}, v{vT0}, 6, v{vT3}
v_lshlrev_b32 v{vT1}, 14, v{vT1}
v_lshl_add_u32 v{vRW}, v{vT0}, 5, v{vT2}
s_lshr_b32 s{sT0}, s{sW}, 2
s_lshl_b32 s{sT0}, s{sT0}, 13
s_add_u32 s{sT1}, s{sT0}, {WKV}
v_add3_u32 v{vRW}, v{vRW}, v{vT1}, s{sT1}
s_add_u32 s{sT1}, s{sT1}, s{sT0}
v_add_u32 v{vRQ}, s{sT1}, v{vRQ}
v_lshrrev_b32 v{vT0}, 2, v{vLane}
v_lshlrev_b32 v{vT0}, 10, v{vT0}
v_and_b32 v{vT1}, 3, v{vLane}
v_lshl_add_u32 v{vQa}, v{vT1}, 4, v{vT0}
v_bfe_u32 v{vT0}, v{vLane}, 4, 1
v_and_b32 v{vT1}, 15, v{vLane}
v_cmp_eq_u32 vcc, v{vT0}, v{vT1}
v_mov_b32 v{vT2}, 0x3f803f80
s_nop 0
v_cndmask_b32 v{vSel}, 0, v{vT2}, vcc""")
for k in range(1, 4): e(f"v_mov_b32 v{vSel+k}, v{vSel}")
for r in range(vCs, vCs+4): e(f"v_mov_b32 v{r}, 0")
e(f"s_waitcnt vmcnt(5)\ns_cmp_lt_u32 s{sW}, 4\ns_cbranch_scc1 Lkvr1")
rowstat_finish()
e("Lkvr1:\ns_barrier")
stamp(12)
def kv_reads(c):
    r = []
    for ks in range(4):
        W = vWk + 16*(c & 1) + 4*ks
        r += [f"ds_read_b128 {vr(vXf+16*c+4*ks,4)}, v{vRX+ks} offset:{4096*c}"]
        r += tr(W, vRW, (64*c+16*ks)*32) + tr(W+2, vRW, (64*c+16*ks+4)*32)
    return r
def kstat_issue():
    return f"buffer_load_dwordx4 {vr(vSt,4)}, v{vWa0}, {sr(SWS,4)}, s{sC1} offen sc1"
for x in kv_reads(0) + kvx_dma(2) + kvx_dma(3): e(x)
e(f"""v_and_b32 v{vWa0}, 31, v{vLane}
v_lshlrev_b32 v{vWa0}, 4, v{vWa0}
s_lshl_b32 s{sT0}, s{sI}, 2
s_add_u32 s{sT0}, s{sT0}, s{sW4}
s_mul_i32 s{sC0}, s{sT0}, {KVT}
s_lshl_b32 s{sC1}, s{sT0}, 9
s_add_u32 s{sC1}, s{sC1}, {STATG}""")
for c in range(4):
    m = []
    for ks in range(4):
        X = vXf+16*c+4*ks; W = vWk + 16*(c & 1) + 4*ks
        z = "0" if c == 0 and ks == 0 else None
        m += [mfma(vAcc+16, W, X, z), mfma16(vCs, W, vSel), mfma(vAcc+32, X, W, z)]
    e("s_waitcnt lgkmcnt(0)")
    if c < 3:
        for x in m[:3] + [f"s_waitcnt vmcnt({8-4*c})"] + interleave(m[3:9], kv_reads(c+1)) + m[9:]: e(x)
        if c == 0:
            tag_wait("k", 8)
            e(f"s_cmp_lt_u32 s{sW}, 4\ns_cbranch_scc1 Lkvr2")
            rowstat_store()
            e("Lkvr2:")
    else:
        e(kstat_issue())
        for x in m: e(x)
tstamp(1)
e(f"""v_and_b32 v{vT2}, 31, v{vLane}
v_lshlrev_b32 v{vT2}, 2, v{vT2}
s_xor_b32 s{sT2}, s{sXb}, 65536
s_add_u32 s{sT1}, s{sXb}, 4352
s_lshl_b32 s{sQo}, s{sW}, 16
s_add_u32 s{sQo}, s{sQo}, {64*15}
s_lshl_b32 s{sMq}, s{sW}, 12
s_add_u32 s{sMq}, s{sMq}, {WKV}""")
cs_write(vCs, f"s{sT1}")
e(f"""v_add_u32 v{vT0}, s{sXb}, v{vL16}
v_add_u32 v{vWa1}, s{sT2}, v{vL16}
v_add_u32 v{vWa2}, s{sT2}, v{vT2}
v_lshl_add_u32 v{vT3}, v{vH}, 4, s{sXb}
s_cmp_ge_u32 s{sW}, 4
s_cbranch_scc1 LkvH""")
def wq_dma():
    for k in range(4):
        e(f"s_add_u32 m0, s{sMq}, {1024*k}\ns_add_u32 s{sT0}, s{sQo}, {16384*k}\nbuffer_load_dwordx4 v{vQa}, {sr(SWQ,4)}, s{sT0} offen lds")
def kstat_wait(tag):
    e(f"""s_mov_b32 s{sT0}, 0
    s_waitcnt vmcnt(0)
    Lks_{tag}:
    v_cmp_ne_u64 vcc, s[{sNo}:{sNo+1}], {vr(vSt+2,2)}
    s_add_u32 s{sT0}, s{sT0}, 1
    s_cmp_ge_u32 s{sT0}, 100000
    s_cbranch_vccz Lksd_{tag}
    s_cbranch_scc1 Lksd_{tag}
    {kstat_issue()}
    s_waitcnt vmcnt(0)
    s_branch Lks_{tag}
    Lksd_{tag}:""")
for q in range(4): e(f"ds_write_b128 v{vT0}, {vr(vAcc+32+4*q,4)} offset:{1024*q}")
e(f"v_xor_b32 v{vT1}, 0x10000, v{vT3}\ns_waitcnt lgkmcnt(0)\ns_barrier")
e(f"""ds_read_b128 {vr(vWk,4)}, v{vWa1}
ds_read_b128 {vr(vWk+4,4)}, v{vWa1} offset:1024
ds_read_b128 {vr(vSt+12,4)}, v{vT3} offset:{4352+64}
ds_read_b128 {vr(vSt+16,4)}, v{vT3} offset:{4352+96}
ds_read_b128 {vr(vWk+8,4)}, v{vT1} offset:{4352+64}
ds_read_b128 {vr(vWk+12,4)}, v{vT1} offset:{4352+96}""")
e(f"""v_and_b32 v{vT0}, 0x33, v{vLane}
v_bfe_u32 v{vT1}, v{vLane}, 2, 1
v_lshl_or_b32 v{vT0}, v{vT1}, 3, v{vT0}
v_bfe_u32 v{vT1}, v{vLane}, 3, 1
v_lshl_or_b32 v{vT0}, v{vT1}, 2, v{vT0}
v_lshlrev_b32 v{vT0}, 4, v{vT0}
s_waitcnt lgkmcnt(0)""")
for p in range(0, 8, 2):
    e(pk("v_pk_add_f32", vAcc+24+p, [('p', vAcc+24+p), ('p', vWk+p)]))
    e(pk("v_pk_add_f32", vSt+12+p, [('p', vSt+12+p), ('p', vWk+8+p)]))
kstat_wait("l")
e(f"v_sub_f32 v{vSt+4}, 0, v{vSt}")
lin_fold(vAcc+24, vSt+12, vSt+4, vSt+1, 8)
for p in range(4): e(f"v_cvt_pk_bf16_f32 v{vAcc+16+p}, v{vAcc+24+2*p}, v{vAcc+25+2*p}")
e(f"buffer_store_dwordx4 {vr(vAcc+16,4)}, v{vT0}, {sr(SWS,4)}, s{sC0} offen sc1\ns_branch LkvS")
e("LkvH:")
e(f"ds_write_b128 v{vT0}, {vr(vAcc+24,4)}\nds_write_b128 v{vT0}, {vr(vAcc+28,4)} offset:1024")
e(f"v_add_u32 v{vT1}, s{sXb}, v{vT2}\ns_waitcnt lgkmcnt(0)\ns_barrier")
e(f"ds_read_b32 v{vSt+6}, v{vT1} offset:4352\nds_read_b32 v{vSt+7}, v{vWa2} offset:4352")
for q in range(4): e(f"ds_read_b128 {vr(vAcc+48+4*q,4)}, v{vWa1} offset:{1024*q}")
tstamp(21)
kstat_wait("h")
tstamp(23)
e(f"ds_write_b32 v{vT1}, v{vSt} offset:4608\nds_write_b32 v{vT1}, v{vSt+1} offset:4736\ns_waitcnt lgkmcnt(0)")
for q in range(4):
    e(f"ds_read_b128 {vr(vWk+4*q,4)}, v{vT3} offset:{4608+32*q}\nds_read_b128 {vr(vWk+16+4*q,4)}, v{vT3} offset:{4736+32*q}")
e(f"v_add_f32 v{vSt+6}, v{vSt+6}, v{vSt+7}\nv_sub_f32 v{vSt+6}, 0, v{vSt+6}")
for p in range(0, 16, 2): e(pk("v_pk_add_f32", vAcc+32+p, [('p', vAcc+32+p), ('p', vAcc+48+p)]))
e("s_waitcnt lgkmcnt(0)")
for p in range(0, 16, 2): e(pk("v_pk_fma_f32", vAcc+32+p, [('p', vWk+p), ('b', vSt+6), ('p', vAcc+32+p)]))
for p in range(0, 16, 2): e(pk("v_pk_mul_f32", vAcc+32+p, [('p', vAcc+32+p), ('p', vWk+16+p)]))
for p in range(8): e(f"v_cvt_pk_bf16_f32 v{vAcc+32+p}, v{vAcc+32+2*p}, v{vAcc+33+2*p}")
v_lane_addr(vT0)
for p in range(8): e(f"v_mov_b32 v{vAcc+32+p}, 0x3f803f80")
e(f"""s_mov_b32 exec_lo, 0x1ffff
s_mov_b32 exec_hi, 0xffff
buffer_store_dwordx4 {vr(vAcc+32,4)}, v{vT0}, {sr(SWS,4)}, s{sC0} offen offset:1024 sc1
buffer_store_dwordx4 {vr(vAcc+36,4)}, v{vT0}, {sr(SWS,4)}, s{sC0} offen offset:{1024+528} sc1
s_mov_b64 exec, -1""")
tstamp(29)
e("LkvS:")
wq_dma()
for r in range(4): e(f"v_mov_b32 v{vCs+r}, 0")
e(f"s_lshl_b32 s{sT2}, s{sI}, 7\ns_add_u32 s{sT2}, s{sT2}, {KFLG}\ns_waitcnt vmcnt(4)\ns_barrier")
flag_set(sT2, "kv")
stamp(13)
tflush(); TS.clear()
e("s_waitcnt vmcnt(0)\ns_barrier")
def q_reads(c):
    r = []
    for ks in range(4):
        W = vWk + 16*(c & 1) + 4*ks
        r += tr(W, vRQ, (64*c+16*ks)*64) + tr(W+2, vRQ, (64*c+16*ks+4)*64)
    return r
for x in q_reads(0): e(x)
for c in range(4):
    m = []
    for ks in range(4):
        X = vXf+16*c+4*ks; W = vWk + 16*(c & 1) + 4*ks
        m += [mfma(vAcc, W, X, "0" if c == 0 and ks == 0 else None), mfma16(vCs, W, vSel)]
    e("s_waitcnt lgkmcnt(0)")
    for x in interleave(m[:4], q_reads(c+1) if c < 3 else []) + m[4:]: e(x)
e(f"""s_or_b32 s{sT2}, s{sXb}, {65536+8192}
s_lshr_b32 s{sT3}, s{sW}, 2
s_lshl_b32 s{sT3}, s{sT3}, 7
s_add_u32 s{sT1}, s{sT2}, s{sT3}
s_add_u32 s{sT1}, s{sT1}, 4096
v_add_u32 v{vWa1}, s{sT2}, v{vL16}
v_lshl_add_u32 v{vT3}, v{vH}, 4, s{sT2}
s_nop 3""")
cs_write(vCs, f"s{sT1}")
e(f"s_cmp_ge_u32 s{sW}, 4\ns_cbranch_scc1 LkvH2\ns_waitcnt lgkmcnt(0)\ns_barrier")
for q in range(4): e(f"ds_read_b128 {vr(vWk+4*q,4)}, v{vWa1} offset:{1024*q}")
cs_read(vAcc+48, 4096); cs_read(vWk+16, 4096+128)
e("s_waitcnt lgkmcnt(0)")
for p in range(0, 16, 2):
    e(pk("v_pk_add_f32", vAcc+p, [('p', vAcc+p), ('p', vWk+p)]))
    e(pk("v_pk_add_f32", vAcc+48+p, [('p', vAcc+48+p), ('p', vWk+16+p)]))
q_epilogue(vAcc+48)
a_init(); fin_init()
e("s_branch Lp2\nLkvH2:")
for q in range(4): e(f"ds_write_b128 v{vWa1}, {vr(vAcc+4*q,4)} offset:{1024*q}")
e(f"s_mov_b32 s{sKf}, {KFLG}")
e(flags_issue(sKf))
e("s_waitcnt lgkmcnt(0)\ns_barrier")
f_init()
flags_wait(sKf, "kv2", 0)
kv_dma("c")
e("s_waitcnt vmcnt(0)\ns_barrier\ns_branch LFkv")
e("Lkvwait:")
stamp(16)
flags_wait(sKf, "kv", 0)
stamp(17)
kv_dma("b")
e("s_waitcnt vmcnt(0)")

vm = []
def vtag(tag): vm.append(tag)
def vwait_s(tag):
    idx = max(i for i, t in enumerate(vm) if t == tag)
    return f"s_waitcnt vmcnt({min(63, len(vm)-1-idx)})"
def emit_seq(seq):
    for x in seq:
        if isinstance(x, list): emit_seq(x)
        elif isinstance(x, tuple): vtag(x[0]); e(x[1])
        elif callable(x): e(x())
        else: e(x)
e("Lp2:")
stamp(2)
e("s_waitcnt lgkmcnt(0)\ns_barrier")
stamp(3)
e(f"""s_setprio {3 if "--ap3" in sys.argv else 1}
ds_read_b128 {vr(aQ[0],4)}, v{vAq}
ds_read_b128 {vr(aK[0],4)}, v{vAk}
ds_read_b128 {vr(aQ[1],4)}, v{vAq} offset:1024
ds_read_b128 {vr(aK[1],4)}, v{vAk} offset:{KVT}
ds_read_b128 {vr(aVl[0],4)}, v{vAv}
ds_read_b128 {vr(aVh[0],4)}, v{vAv} offset:528
s_waitcnt lgkmcnt(4)""")
e(mfma(aS[0], aK[0], aQ[0], "0"))
e("s_waitcnt lgkmcnt(3)")
e(mfma(aS[1], aK[0], aQ[1], "0"))
e("s_nop 9")
for b in range(2):
    t = vT0+2*b; S = aS[b]
    e(f"v_max3_f32 v{t}, v{S}, v{S+1}, v{S+2}")
    for p in range(3, 15, 2): e(f"v_max3_f32 v{t}, v{t}, v{S+p}, v{S+p+1}")
    e(f"v_max_f32 v{t}, v{t}, v{S+15}\nv_mov_b32 v{t+1}, v{t}")
e(f"""s_nop 1
v_permlane32_swap_b32 v{vT0}, v{vT1}
v_permlane32_swap_b32 v{vT2}, v{vT3}
s_mov_b32 s{sSt}, 0
v_max_f32 v{vT0}, v{vT0}, v{vT1}
v_max_f32 v{vT2}, v{vT2}, v{vT3}""")
for b in range(2):
    e(f"v_sub_f32 v{aC[b]}, 0, v{vT0+2*b}\nv_sub_f32 v{aC[b]+1}, 0, v{vT0+2*b}")
for r in range(16): e(f"v_sub_f32 v{aS[0]+r}, v{aS[0]+r}, v{vT0}")
for b in (1, 0):
    for r in range(2, 16, 2): e(f"v_mov_b64 {vr(aC[b]+r,2)}, {vr(aC[b],2)}")
stamp(5)
e(f"v_exp_f32 v{aS[0]}, v{aS[0]}\nv_exp_f32 v{aS[0]+1}, v{aS[0]+1}\ns_branch La1\n.p2align 3\nLa0:")
for n in range(32):
    b = n & 1; T = n >> 1
    X = aS[b]; Y = aS[b ^ 1]
    ex = [f"v_exp_f32 v{X+i}, v{X+i}" for i in range(16)]
    Tp = (n-1) >> 1; Tn = (n+1) >> 1
    seq = ex[0:2] + [smf(aO[b ^ 1], aVh[Tp & 1], Y+8, vIdx)] + (["La1:"] if n == 0 else []) + ex[2:5]
    seq += [mfma(Y, aK[Tn & 1], aQ[b ^ 1], vr(aC[b ^ 1], 16))]
    if b:
        rd = [f"ds_read_b128 {vr(aVl[(T+1)&1],4)}, v{vAv} offset:{(T+1)*KVT}",
              f"ds_read_b128 {vr(aVh[(T+1)&1],4)}, v{vAv} offset:{(T+1)*KVT+528}",
              f"ds_read_b128 {vr(aK[T&1],4)}, v{vAk} offset:{(T+2)*KVT}"]
        seq += rd + ex[5:10]
    else: seq += ["s_waitcnt lgkmcnt(0)"] + ex[5:10]
    seq += [smf(aO[b], aVl[T & 1], X, vIdx)] + ex[10:16]
    for x in seq: e(x)
if PROF:
    e(f"s_memtime s[{sTm}:{sTm+1}]\ns_lshl_b32 s{sT0}, s{sSt}, 2\ns_add_u32 s{sT0}, s{sT0}, s{sPo}\ns_waitcnt lgkmcnt(0)\nv_mov_b32 v0, s{sTm}\nbuffer_store_dword v0, off, {sr(SWS,4)}, s{sT0} offset:72")
e(f"""v_add_u32 v{vAk}, {16*KVT}, v{vAk}
v_add_u32 v{vAv}, {16*KVT}, v{vAv}
s_add_u32 s{sSt}, s{sSt}, 1
s_cmp_eq_u32 s{sSt}, 1
s_cbranch_scc0 La2
{'' if PROF else 's_waitcnt vmcnt(0)'}
s_barrier
s_branch La0
La2:
s_cmp_lt_u32 s{sSt}, 4
s_cbranch_scc1 La0""")
e(smf(aO[1], aVh[1], aS[1]+8, vIdx))
e(f"s_mov_b32 s{sC0}, {f2u(2.0**40):#x}\ns_mov_b32 s{sC1}, {f2u(2.0**126):#x}")
for b in range(2):
    O = aO[b]
    e(f"s_mov_b32 s{sRetry}, 0\nLfin{b}:")
    e(f"""v_rcp_f32 v{O+10}, v{O+8}
    v_max3_f32 v{vT1}, abs(v{O}), abs(v{O+1}), abs(v{O+2})
    v_max3_f32 v{vT1}, v{vT1}, abs(v{O+3}), abs(v{O+4})
    v_max3_f32 v{vT1}, v{vT1}, abs(v{O+5}), abs(v{O+6})
    v_max_f32 v{vT1}, v{vT1}, abs(v{O+7})
    v_cmp_nlt_f32 vcc, v{O+8}, s{sC0}
    v_cmp_nlt_f32 s[{sEx}:{sEx+1}], v{vT1}, s{sC1}""")
    for p in range(8): e(f"v_mul_f32 v{O+p}, v{O+p}, v{O+10}")
    e(f"s_or_b64 vcc, vcc, s[{sEx}:{sEx+1}]")
    for p in range(4): e(f"v_cvt_pk_bf16_f32 v{O+p}, v{O+2*p}, v{O+2*p+1}")
    for p in range(4): e(f"v_min_u32 v{O+p}, -2, v{O+p}")
    e(f"s_cbranch_vccnz Lfallback{b}\nLok{b}:")
    e(f"buffer_store_dwordx4 {vr(O,4)}, v{vL16}, {sr(SWS,4)}, s{sOp if b == 0 else sOp2} offen sc1")
stamp(6)
OSC = " sc1" if "--osc1" in sys.argv else ""
gX = [136, 140]; gG = [144, 176]; gR = [8, 40]
e(f"buffer_load_dwordx4 {vr(gX[0],4)}, v{vRa}, {sr(SX,4)}, s{sXf} offen")
e(f"buffer_load_dwordx4 {vr(gX[1],4)}, v{vRa}, {sr(SX,4)}, s{sXf2} offen")
e("s_waitcnt lgkmcnt(0)\ns_setprio 0\ns_barrier\ns_barrier")
stamp(8)
for tt in range(2):
    for q in range(8): e(f"ds_read_b128 {vr(gG[tt]+4*q,4)}, v{vRr} offset:{128*tt+XK*(q//2)+512*(q%2)}")
def sum4(r):
    for p in range(0, 8, 2):
        e(pk("v_pk_add_f32", r+p, [('p', r+p), ('p', r+8+p)]))
        e(pk("v_pk_add_f32", r+16+p, [('p', r+16+p), ('p', r+24+p)]))
    for p in range(0, 8, 2): e(pk("v_pk_add_f32", r+p, [('p', r+p), ('p', r+16+p)]))
for tt in range(2):
    G = gG[tt]
    e(f"s_waitcnt lgkmcnt({8*(1-tt)})")
    for p in range(8): e(f"v_add_f32 v{G+p}, v{G+p}, v{G+8+p}\nv_add_f32 v{G+16+p}, v{G+16+p}, v{G+24+p}")
    for p in range(8): e(f"v_add_f32 v{G+p}, v{G+p}, v{G+16+p}")
    for p in range(8): e(f"v_mul_f32 v{G+8+p}, {f2u(-1.4426950408889634):#x}, v{G+p}")
    for p in range(8): e(f"v_exp_f32 v{G+8+p}, v{G+8+p}")
    for p in range(8): e(f"v_add_f32 v{G+8+p}, 1.0, v{G+8+p}")
    for p in range(8): e(f"v_rcp_f32 v{G+8+p}, v{G+8+p}")
    e("s_waitcnt vmcnt(0)")
    for p in range(4): e(f"v_lshlrev_b32 v{G+16+2*p}, 16, v{gX[tt]+p}\nv_and_b32 v{G+17+2*p}, 0xffff0000, v{gX[tt]+p}")
    for p in range(8): e(f"v_mul_f32 v{G+p}, v{G+p}, v{G+8+p}")
stamp(9)
e("s_barrier")
for tt in range(2):
    for q in range(8): e(f"ds_read_b128 {vr(gR[tt]+4*q,4)}, v{vRr2} offset:{128*tt+XK*(q//2)+512*(q%2)}")
for tt in range(2):
    R = gR[tt]; G = gG[tt]
    e(f"s_waitcnt lgkmcnt({8*(1-tt)})")
    sum4(R)
    for p in range(0, 8, 2): e(pk("v_pk_fma_f32", R+p, [('p', R+p), ('p', G+p), ('p', G+16+p)]))
    for p in range(4): e(f"v_cvt_pk_bf16_f32 v{R+p}, v{R+2*p}, v{R+2*p+1}")
    e(f"buffer_store_dwordx4 {vr(R,4)}, v{vRa}, {sr(SOUT,4)}, s{sXf if tt == 0 else sXf2} offen{OSC}")
def the_end():
    stamp(11)
    if RT: e(f"s_waitcnt vmcnt(0)\ns_memrealtime s[100:101]\ns_waitcnt lgkmcnt(0)\nv_mov_b32 v0, s100\nbuffer_store_dword v0, off, {sr(SWS,4)}, s{sPo} offset:56")
the_end()
e("Lend:\ns_endpgm")

e("LFkv:")
kv_rest("k")
e("LF:")
tag_wait("f", 0)
e("s_setprio 0\ns_barrier")
flag_set(sHs, "h", 4)
RG = SP + [aslot(n) for n in range(4)]
def u_dma(m):
    srdw, row = (SWO, 64*m) if m < 8 else (SWD, 64*(m-8))
    return [f"s_add_u32 m0, s{sDm}, {RG[m % 7]}", f"s_add_u32 s{sT0}, s{sDo}, {row*1024}",
            (f"u{m}", f"buffer_load_dwordx4 v{vDa}, {sr(srdw,4)}, s{sT0} offen lds"),
            (f"u{m}", f"buffer_load_dwordx4 v{vDa2}, {sr(srdw,4)}, s{sT0} offen offset:1024 lds")]
def u_reads(m, F):
    a = RG[m % 7]; win = 1 if a >= SP[0] else 0; off = a - win*SP[0]
    r0, r1 = vRd+2*win, vRd+2*win+1
    return tr(F, r0, off) + tr(F+2, r0, off+1024) + tr(F+4, r1, off) + tr(F+6, r1, off+1024)
def h_loads(s):
    r = []
    if s % 4 == 0: r += [f"s_add_u32 s{sC0}, s{sHo}, {1024*s}", f"s_add_u32 s{sC1}, s{sC0}, {88*1024}"]
    for tt in range(2):
        r.append((f"h{s}", f"buffer_load_dwordx4 {vr(fH+8*(s % 6)+4*tt,4)}, v{vL16}, {sr(SWS,4)}, s{sC0 if tt == 0 else sC1} offen offset:{1024*(s%4)} sc1"))
    return r
for m in range(7): emit_seq(u_dma(m))
for m in range(8):
    e(vwait_s(f"u{m}"))
    for x in u_reads(m, fWo+8*m): e(x)
    e("s_waitcnt lgkmcnt(0)")
    emit_seq(u_dma(m+7))
tstamp(18)
e(flags_issue(sHc))
flags_wait(sHc, "h", 0)
tstamp(19)
for s in range(6): emit_seq(h_loads(s))
for x in u_reads(8, fWb[0]): e(x)
FB = int(sys.argv[sys.argv.index("--fb")+1]) if "--fb" in sys.argv else 15
for s in range(22):
    m = 8+s; W = fWb[s & 1]
    if s == FB:
        tstamp(20); e("s_barrier\ns_setprio 2"); tstamp(21)
    if s < 21:
        e(vwait_s(f"u{m+1}"))
        for x in u_reads(m+1, fWb[(s+1) & 1]): e(x)
        e("s_waitcnt lgkmcnt(4)")
    else: e("s_waitcnt lgkmcnt(0)")
    if m+7 < 30: emit_seq(u_dma(m+7))
    e(vwait_s(f"h{s}"))
    if s == 21: e(f"s_cmp_ge_u32 s{sW4}, 2\ns_cbranch_scc1 Lskip21")
    for tt in range(2):
        for ch in range(2 if "--nofm" not in sys.argv else 0): e(mfma(fA+32*tt+16*ch, W+4*ch, fH+8*(s % 6)+4*tt, "0" if s == 0 else None))
    if s+6 < 22: emit_seq(h_loads(s+6))
e("Lskip21:\ns_nop 8")
tstamp(22)
ORD = [7, 6, 5, 4, 3, 2, 1, 0] if M48 else [7, 6, 5, 4, 1, 0, 3, 2]
def o_load(k):
    tt, i = k & 1, k >> 1
    return f"buffer_load_dwordx4 {vr(opos(i)+4*tt,4)}, v{vL16}, {sr(SWS,4)}, s{(sOc, sOc2, sOc3, sOc4)[2*tt+(i>>2)]} offen offset:{1024*(i%4)} sc1"
def opos(i): return fO + 8*ORD.index(i)
zer = [f"v_mov_b64 {vr(fS+r,2)}, 0" for r in range(0, 64, 2)]
for q in range(16):
    e(f"ds_write_b128 v{vRw}, {vr(fA+4*q,4)} offset:{XB*(q//2)+XP*(q%2)}")
    if q >= 4: e(f"s_waitcnt lgkmcnt(4)\n{o_load(2*ORD[(q-4)//2]+(q & 1))}")
e("s_waitcnt lgkmcnt(0)\ns_barrier")
for k in range(12, 16): e(o_load(2*ORD[k//2]+(k & 1)))
tstamp(9)
def o_pair(i, tag, wait):
    B = opos(i)
    if wait is not None: e(f"s_waitcnt vmcnt({wait})")
    else: e(f"s_bitcmp1_b32 s{sSt}, {i}\ns_cbranch_scc0 Lon{tag}{i}")
    e(f"""v_max3_u32 v{vT1}, v{B}, v{B+1}, v{B+2}
    v_max3_u32 v{vT1}, v{vT1}, v{B+3}, v{B+4}
    v_max3_u32 v{vT1}, v{vT1}, v{B+5}, v{B+6}
    v_max_u32 v{vT1}, v{vT1}, v{B+7}
    v_cmp_eq_u32 vcc, s{sT1}, v{vT1}
    s_cbranch_vccnz Lon{tag}{i}
    s_bitset0_b32 s{sSt}, {i}""")
    for tt in range(2):
        for ch in range(2): e(mfma(fS+32*tt+16*ch, fWo+8*i+4*ch, B+4*tt))
    e(f"Lon{tag}{i}:")
def acc_chain(tt, ch): return [mfma(fS+32*tt+16*ch, fWo+8*i+4*ch, opos(i)+4*tt, "0" if n == 0 else None) for n, i in enumerate(ORD)]
def s_wr(tt, ch): return [f"ds_write_b128 v{vRw2+tt}, {vr(fS+32*tt+16*ch+4*q,4)} offset:{XB*(2*ch+q//2)+XP*(q%2)}" for q in range(4)]
e(f"v_mov_b32 v{vT1}, 0")
for n, x in enumerate(acc_chain(0, 0)):
    B = fO+8*n
    e(f"s_waitcnt vmcnt({14-2*n})\n{x}")
    for p in range(0, 8, 2): e(f"v_max3_u32 v{vT1}, v{vT1}, v{B+p}, v{B+p+1}")
e(f"v_cmp_eq_u32 vcc, -1, v{vT1}\ns_cbranch_vccnz Lor0")
c1, c2, c3 = acc_chain(0, 1), acc_chain(1, 0), acc_chain(1, 1)
for prev, c in (((0, 0), c1), ((0, 1), c2), ((1, 0), c3)):
    for x in [c[0], "s_nop 3", c[1], "s_nop 3", c[2]] + interleave(c[3:7], s_wr(*prev)) + c[7:]: e(x)
stamp(7)
e("s_nop 11")
for x in s_wr(1, 1): e(x)
e("Lsd:")
e("s_waitcnt lgkmcnt(0)\ns_barrier")
stamp(10); tflush(); TS.clear()
the_end()
e("s_endpgm")
e(f"Lor0:\ns_nop 8")
for x in zer: e(x)
e(f"s_mov_b32 s{sT0}, 0\ns_mov_b32 s{sSt}, 0xff\ns_mov_b32 s{sT1}, -1\ns_branch Lor2")
e("Lor:\ns_sleep 4")
for i in ORD:
    e(f"s_bitcmp1_b32 s{sSt}, {i}\ns_cbranch_scc0 Lorn{i}\n{o_load(2*i)}\n{o_load(2*i+1)}\nLorn{i}:")
e(f"""s_add_u32 s{sT0}, s{sT0}, 1
s_cmp_ge_u32 s{sT0}, 200000
s_cbranch_scc1 Lod
s_waitcnt vmcnt(0)
Lor2:""")
for i in ORD: o_pair(i, "b", None)
e(f"s_cmp_lg_u32 s{sSt}, 0\ns_cbranch_scc1 Lor\nLod:\ns_nop 6")
for tt in range(2):
    for ch in range(2):
        for x in s_wr(tt, ch): e(x)
e("s_branch Lsd")
for b in range(2):
    S = aS[0]; O = aO[b]; C = aC[b]; Q = aQ[b]
    e(f"""Lfallback{b}:
    s_cmp_lg_u32 s{sRetry}, 0
    s_cbranch_scc1 Lok{b}
    s_mov_b32 s{sRetry}, 1
    s_mov_b32 s{sSt}, 0
    v_mov_b32 v{vT1}, 0xff800000
    s_waitcnt lgkmcnt(0)
    Lfb1{b}:
    buffer_load_dwordx4 {vr(aK[0],4)}, v{vL16}, {sr(SWS,4)}, s{sSt} offen sc1
    s_waitcnt vmcnt(0)""")
    e(mfma(S, aK[0], Q, "0"))
    e("s_nop 11")
    for p in range(0, 16, 2): e(f"v_max3_f32 v{vT1}, v{vT1}, v{S+p}, v{S+p+1}")
    e(f"""s_add_u32 s{sSt}, s{sSt}, {KVT}
    s_cmp_lt_u32 s{sSt}, {64*KVT}
    s_cbranch_scc1 Lfb1{b}
    v_mov_b32 v{vT2}, v{vT1}
    s_nop 1
    v_permlane32_swap_b32 v{vT1}, v{vT2}
    s_nop 1
    v_max_f32 v{vT1}, v{vT1}, v{vT2}""")
    for r in range(16): e(f"v_sub_f32 v{C+r}, 0, v{vT1}")
    for r in range(12): e(f"v_mov_b32 v{O+r}, 0")
    e(f"""v_subrev_u32 v{vT0}, {64*KVT}, v{vAv}
    s_mov_b32 s{sSt}, 0
    Lfb2{b}:
    buffer_load_dwordx4 {vr(aK[0],4)}, v{vL16}, {sr(SWS,4)}, s{sSt} offen sc1
    buffer_load_dwordx4 {vr(aVl[0],4)}, v{vT0}, {sr(SWS,4)}, s{sSt} offen sc1
    buffer_load_dwordx4 {vr(aVh[0],4)}, v{vT0}, {sr(SWS,4)}, s{sSt} offen offset:528 sc1
    s_waitcnt vmcnt(0)""")
    e(mfma(S, aK[0], Q, vr(C, 16)))
    e("s_nop 11")
    for i in range(16): e(f"v_exp_f32 v{S+i}, v{S+i}")
    e("s_nop 1")
    e(smf(O, aVl[0], S, vIdx)); e(smf(O, aVh[0], S+8, vIdx))
    e(f"""s_add_u32 s{sSt}, s{sSt}, {KVT}
    s_cmp_lt_u32 s{sSt}, {64*KVT}
    s_cbranch_scc1 Lfb2{b}
    s_nop 9
    s_branch Lfin{b}""")
e("Lcodeend:")

L += ['.section .rodata,"a"', ".p2align 6", f".amdhsa_kernel {NAME}_kernel",
      "  .amdhsa_next_free_vgpr 256", "  .amdhsa_next_free_sgpr 102", "  .amdhsa_accum_offset 256",
      "  .amdhsa_group_segment_fixed_size 0", "  .amdhsa_kernarg_size 96", "  .amdhsa_user_sgpr_count 2",
      "  .amdhsa_user_sgpr_kernarg_segment_ptr 1", "  .amdhsa_system_sgpr_workgroup_id_x 1", ".end_amdhsa_kernel"]
open(OUT, "w").write("\n".join(L) + "\n")
print("wrote", OUT, len(L), "lines")
```

```python
import sys, struct
NAME = "recurrent_scan__grouped_kv_mqa__geglu_ffn__prompt"
PROF = "--prof" in sys.argv
OUT = [a for a in sys.argv[1:2] if not a.startswith("--")]
OUT = OUT[0] if OUT else f"cdna_kernels/{NAME}.s"

L = []
def e(s):
    for ln in s.split("\n"):
        if not ln.strip(): continue
        L.append(("    " + ln.strip()) if not ln.strip().endswith(":") else ln.strip())
def f2u(x): return struct.unpack("<I", struct.pack("<f", x))[0]
def vr(a, n): return f"v[{a}:{a+n-1}]"
def sr(a, n): return f"s[{a}:{a+n-1}]"

KVT = 2080
KVIMG = 0
HIMG = 135168
OIMG = HIMG + 64*88*1024
HFLG = OIMG + 64*32*1024
KFLG = HFLG + 256*128
STATG = KFLG + 16*128
PROFO = STATG + 2048*16
WS_BYTES = PROFO + 256*8*256
CNT_KV = 0
KVRDY = 128
STG = 45056
XOFF, GOFF, UOFF, QOFF = 0, 16384, 28672, 40960
STGK, QOFFK, NBK = 24832, 20736, 5
QIMG = 135168
STATM = 160768
CSUM = 162816
MRX = 159744
STL = 163712
FLAG = 163776
LDS_BYTES = 163840
SX, SWQ, SWK, SWV, SWO, SWG, SWD, SOUT, SDBG, SWS = 4, 8, 12, 16, 20, 24, 28, 32, 36, 40
sI, sJ, sW, sW4 = 44, 45, 46, 47
sXo, sWo, sQo, sLb = 48, 49, 50, 51
sMx, sMw, sMq = 52, 53, 54
sSt, sDl, sT0, sT1, sT2, sT3 = 55, 56, 57, 58, 59, 60
sTB, sCS, sRetry, sRb = 61, 62, 63, 3
sEx = 88
sTm = 90
sPo = 92
sC0, sC1, sC2, sC3 = 94, 95, 96, 97
sOp = 98
TOUCH = int("--touch" in sys.argv)
vLane, vH, vT0, vT1, vT2, vT3 = 1, 2, 3, 4, 5, 6
vXa0, vXa1, vWa0, vWa1, vWa2, vQa = 7, 8, 9, 10, 11, 12
vRX = 13
vRW, vRQ = 17, 18
vSel = 20
vCs = 24
vF = 32
vAcc = 96
vSt = 160
aQ = [8, 12]; aK = [16, 20]; aVl = [24, 28]; aVh = [32, 36]; aS = [40, 56]; aC = [72, 88]; aO = [104, 120]
fA, fWo, fWb, fH, fX, fG = 8, 72, [136, 144], 152, 200, 204
fS, fO, fR = 136, 8, 8
vIdx, vAk, vAv, vDa, vL16, vRa = 240, 241, 242, 243, 244, 245
vPoll = 246
vRd = 248
vRw, vRr, vRr2, vDa2 = 252, 253, 254, 255
vRw2 = 238
vAq = 237
sKq, sTt, sHo, sDo, sDm, sHc, sXf, sOc, sOc2, sHs = 64, 65, 66, 67, 68, 69, 70, 71, 72, 73
sOc3, sOc4, sOp2 = 80, 81, 99
sXf2 = 64
sNo = 86
sRow, sKf = 63, 85
ASL = 8320
XB, XK, XP = 8512, 2112, 1056
XF0, XS0, XS1 = 34048, 0, 102144
def aslot(n): return ASL*n
SP = [135168, 143360, 151552]

nstamp = [0]
DBGT = "--dbgt" in sys.argv
DT = {0: 75, 12: 76, 1: 77, 2: 78, 3: 79, 6: 80, 9: 81, 7: 82, 11: 83}
PAD = (int(sys.argv[sys.argv.index("--pad")+1]), int(sys.argv[sys.argv.index("--pad")+2])) if "--pad" in sys.argv else None
npad = [0]
PADB = sNo if "--padg" in sys.argv else 100
def stamp(k):
    if PAD and PAD[0] == k:
        npad[0] += 1
        e(f"Lpad{npad[0]}:\ns_memrealtime s[{sTm}:{sTm+1}]\ns_waitcnt lgkmcnt(0)\ns_sub_u32 s{sTm}, s{sTm}, s{PADB}\ns_sleep 8\ns_cmp_lt_u32 s{sTm}, {PAD[1]}\ns_cbranch_scc1 Lpad{npad[0]}")
    if DBGT and k in DT:
        e(f"s_memrealtime s[{sTm}:{sTm+1}]\ns_waitcnt lgkmcnt(0)\ns_sub_u32 s{DT[k]}, s{sTm}, s100")
        if k == 11:
            e(f"s_memtime s[{sTm}:{sTm+1}]\ns_waitcnt lgkmcnt(0)\ns_sub_u32 s84, s{sTm}, s92")
            e(f"s_cmp_lg_u32 s2, 64\ns_cbranch_scc1 Lend\ns_cmp_lg_u32 s{sW}, 4\ns_cbranch_scc1 Lend")
            for n, r in enumerate(range(75, 85)):
                e(f"v_mov_b32 v0, s{r}\nbuffer_store_dword v0, off, {sr(SDBG,4)}, 0 offset:{4+4*n}\ns_nop 1")
    if not PROF: return
    e(f"""s_memtime s[{sTm}:{sTm+1}]
    s_waitcnt lgkmcnt(0)
    v_mov_b32 v0, s{sTm}
    buffer_store_dword v0, off, {sr(SWS,4)}, s{sPo} offset:{4*k}""")
    if k in RTS:
        e(f"""s_memrealtime s[{sTm}:{sTm+1}]
        s_waitcnt lgkmcnt(0)
        v_mov_b32 v0, s{sTm}
        buffer_store_dword v0, off, {sr(SWS,4)}, s{sPo} offset:{4*RTS[k]}""")
RTS = {12: 24, 1: 25, 5: 26, 6: 27, 11: 28}

TS = []
def tstamp(k):
    if not PROF: return
    r = 74 + len(TS); TS.append((k, r))
    e(f"s_memtime s[{sTm}:{sTm+1}]\ns_waitcnt lgkmcnt(0)\ns_mov_b32 s{r}, s{sTm}")
def tflush():
    for k, r in TS: e(f"v_mov_b32 v0, s{r}\nbuffer_store_dword v0, off, {sr(SWS,4)}, s{sPo} offset:{4*k}\ns_nop 1")
def tick(acc):
    if not PROF or "--notick" in sys.argv: return ""
    r = f"s_memtime s[{sTm}:{sTm+1}]\ns_waitcnt lgkmcnt(0)\n"
    if acc is not None: r += f"s_sub_u32 s99, s{sTm}, s99\ns_add_u32 s{acc}, s{acc}, s99\n"
    return r + f"s_mov_b32 s99, s{sTm}"

def interleave(main, fill):
    out = []; n = len(main); m = len(fill); k = 0
    for i, a in enumerate(main):
        out.append(a)
        t = (m * (i + 1)) // n
        out += fill[k:t]; k = t
    return out

def mfma(d, a, b, c=None):
    c = vr(d, 16) if c is None else c
    return f"v_mfma_f32_32x32x16_bf16 {vr(d,16)}, {vr(a,4)}, {vr(b,4)}, {c}"
def mfma16(d, a, b): return f"v_mfma_f32_16x16x32_bf16 {vr(d,4)}, {vr(a,4)}, {vr(b,4)}, {vr(d,4)}"
def smf(d, a, b, idx): return f"v_smfmac_f32_32x32x32_bf16 {vr(d,16)}, {vr(a,4)}, {vr(b,8)}, v{idx}"

TK = PROF and "--tk" in sys.argv
def tk(acc):
    if not TK: return ""
    r = f"s_memtime s[{sTm}:{sTm+1}]\ns_waitcnt lgkmcnt(0)\n"
    if acc is not None: r += f"s_sub_u32 s82, s{sTm}, s82\ns_add_u32 s{acc}, s{acc}, s82\n"
    return r + f"s_mov_b32 s82, s{sTm}"
def tkout():
    if TK: e(f"v_mov_b32 v0, s80\nbuffer_store_dword v0, off, {sr(SWS,4)}, s{sPo} offset:{4*29}\ns_nop 1\nv_mov_b32 v0, s81\nbuffer_store_dword v0, off, {sr(SWS,4)}, s{sPo} offset:{4*30}")
def tr(d, a, off): return [f"ds_read_b64_tr_b16 {vr(d,2)}, v{a} offset:{off}"]
def tag_issue(): return f"buffer_load_dwordx2 {vr(vPoll,2)}, off, {sr(SDBG,4)}, 0 sc1"
def tag_wait(tag, first_wait):
    e(f"""s_mov_b32 s{sT0}, 0
    s_waitcnt vmcnt({first_wait})
    Ltag_{tag}:
    v_readfirstlane_b32 s{sNo}, v{vPoll}
    v_readfirstlane_b32 s{sNo+1}, v{vPoll+1}
    s_add_u32 s{sT0}, s{sT0}, 1
    s_cmp_lg_u32 s{sNo}, 0
    s_cbranch_scc1 Ltagd_{tag}
    s_cmp_ge_u32 s{sT0}, 100000
    s_cbranch_scc1 Ltagd_{tag}
    s_sleep 1
    {tag_issue()}
    s_waitcnt vmcnt(0)
    s_branch Ltag_{tag}
    Ltagd_{tag}:""")
def flags_issue(base):
    return f"""v_and_b32 v{vPoll}, 15, v{vLane}
    v_lshlrev_b32 v{vPoll}, 7, v{vPoll}
    buffer_load_dwordx2 {vr(vPoll,2)}, v{vPoll}, {sr(SWS,4)}, s{base} offen sc1"""
def h_poll_issue(): return flags_issue(sHc)
def flags_wait(base, tag, first_wait):
    e(f"""s_mov_b32 s{sT0}, 0
    s_waitcnt vmcnt({first_wait})
    Lfw_{tag}:
    v_cmp_ne_u64 vcc, s[{sNo}:{sNo+1}], {vr(vPoll,2)}
    s_add_u32 s{sT0}, s{sT0}, 1
    s_cmp_ge_u32 s{sT0}, 100000
    s_cbranch_vccz Lfwd_{tag}
    s_cbranch_scc1 Lfwd_{tag}
    s_sleep 3
    {flags_issue(base)}
    s_waitcnt vmcnt(0)
    s_branch Lfw_{tag}
    Lfwd_{tag}:""")
def flag_set(off_sreg, tag, wave=0):
    e(f"""s_cmp_lg_u32 s{sW}, {wave}
    s_cbranch_scc1 Lsig_{tag}
    v_mov_b32 v{vPoll}, s{sNo}
    v_mov_b32 v{vPoll+1}, s{sNo+1}
    s_mov_b64 exec, 1
    buffer_store_dwordx2 {vr(vPoll,2)}, off, {sr(SWS,4)}, s{off_sreg} sc1
    s_mov_b64 exec, -1
    Lsig_{tag}:""")

hdr = open(f"cdna_kernels/{NAME}.s.ref").read().split("\n")
hdr = [h for h in hdr[:15] if h.startswith(";") and "@launch" not in h]
L += hdr
L.append(f"; @launch grid=(256,1,1) block=(512,1,1) lds={LDS_BYTES}")
L += ['.amdgcn_target "amdgcn-amd-amdhsa--gfx950"', ".text", f".globl {NAME}_kernel", ".p2align 8",
      f".type {NAME}_kernel,@function"]
e(f"{NAME}_kernel:")
RT = PROF
if RT: e("s_memrealtime s[100:101]\ns_memtime s[98:99]")
if DBGT or PAD: e("s_memrealtime s[100:101]\ns_memtime s[92:93]")
MAP84 = f"""s_and_b32 s{sI}, s{sT0}, 1
s_lshl_b32 s{sI}, s{sI}, 3
s_and_b32 s{sT2}, s{sT1}, 7
s_add_u32 s{sI}, s{sI}, s{sT2}
s_lshr_b32 s{sJ}, s{sT0}, 1
s_lshl_b32 s{sJ}, s{sJ}, 2
s_lshr_b32 s{sT3}, s{sT1}, 3
s_add_u32 s{sJ}, s{sJ}, s{sT3}
s_sub_u32 s{sJ}, 15, s{sJ}
s_and_b32 s{sTB}, s{sT0}, 3
s_lshl_b32 s{sTB}, s{sTB}, 3
s_add_u32 s{sTB}, s{sTB}, s{sT2}
s_lshr_b32 s{sCS}, s{sT0}, 2
s_lshl_b32 s{sCS}, s{sCS}, 2
s_add_u32 s{sCS}, s{sCS}, s{sT3}"""
MAP48 = f"""s_lshr_b32 s{sT2}, s{sT0}, 1
s_lshl_b32 s{sI}, s{sT2}, 2
s_and_b32 s{sT3}, s{sT1}, 3
s_add_u32 s{sI}, s{sI}, s{sT3}
s_lshl_b32 s{sTB}, s{sT2}, 3
s_and_b32 s{sT3}, s{sT1}, 7
s_add_u32 s{sTB}, s{sTB}, s{sT3}
s_and_b32 s{sT0}, s{sT0}, 1
s_lshl_b32 s{sJ}, s{sT0}, 3
s_lshr_b32 s{sT3}, s{sT1}, 2
s_add_u32 s{sJ}, s{sJ}, s{sT3}
s_sub_u32 s{sJ}, 15, s{sJ}
s_lshl_b32 s{sCS}, s{sT0}, 2
s_lshr_b32 s{sT3}, s{sT1}, 3
s_add_u32 s{sCS}, s{sCS}, s{sT3}"""
M48 = "--m48" in sys.argv
MAP = MAP48 if M48 else MAP84
PFC = "" if "--nopfc" in sys.argv else f"""s_cmp_lg_u32 s{sW}, 7
s_cbranch_scc1 Lnop0
s_getpc_b64 s[94:95]
Lpc0:
s_bfe_u32 s{sT0}, s2, 0x20003
s_lshl_b32 s{sT0}, s{sT0}, 13
v_lshl_add_u32 v{vT1}, v{vLane}, 7, s{sT0}
v_min_u32 v{vT1}, Lcodeend-Lpc0-4, v{vT1}
global_load_dword v223, v{vT1}, s[94:95]"""
e(f"""s_cmp_ge_u32 s2, 256
s_cbranch_scc1 Lend
s_load_dwordx2 s[{SX}:{SX+1}], s[0:1], 0
s_load_dwordx2 s[{SWG}:{SWG+1}], s[0:1], 48
s_load_dwordx2 s[{SWQ}:{SWQ+1}], s[0:1], 8
s_load_dwordx2 s[{SWV}:{SWV+1}], s[0:1], 24
s_load_dwordx2 s[{SDBG}:{SDBG+1}], s[0:1], 80
s_load_dwordx2 s[{SWS}:{SWS+1}], s[0:1], 88
v_and_b32 v{vLane}, 63, v0
v_lshrrev_b32 v{vT0}, 6, v0
v_lshrrev_b32 v{vH}, 5, v{vLane}
v_readfirstlane_b32 s{sW}, v{vT0}
{PFC}
Lnop0:
s_and_b32 s{sT0}, s2, 7
s_lshr_b32 s{sT1}, s2, 3
{MAP}
s_and_b32 s{sW4}, s{sW}, 3
v_lshrrev_b32 v{vT0}, 3, v{vLane}
v_lshlrev_b32 v{vT0}, 10, v{vT0}
v_and_b32 v{vT1}, 7, v{vLane}
v_lshrrev_b32 v{vT2}, 4, v{vLane}
v_xor_b32 v{vT1}, v{vT1}, v{vT2}
v_lshl_add_u32 v{vXa0}, v{vT1}, 4, v{vT0}
v_xor_b32 v{vXa1}, 64, v{vXa0}
v_add_u32 v{vXa1}, {8192-1024}, v{vXa1}
v_lshlrev_b32 v{vL16}, 4, v{vLane}
s_lshl_b32 s{sXo}, s{sI}, 17
s_lshl_b32 s{sT0}, s{sW4}, 15
s_add_u32 s{sXo}, s{sXo}, s{sT0}
s_lshl_b32 s{sRow}, s{sI}, 4
s_add_u32 s{sRow}, s{sRow}, s{sJ}
s_lshl_b32 s{sRow}, s{sRow}, 2
s_add_u32 s{sRow}, s{sRow}, s{sW4}
s_cmp_eq_u32 s{sJ}, 15
s_cselect_b32 s{sT0}, 16, 56
s_load_dwordx2 s[{SWK}:{SWK+1}], s[0:1], s{sT0}
s_mov_b32 s{sT1}, {512*2752}
s_cselect_b32 s{SWK+2}, 16384, s{sT1}
s_mov_b32 s{SWK+3}, 0x20000""")
SWU = SWK
vRs = 144
for d, nbytes in ((SX, 2048*1024), (SWG, 512*2752), (SWQ, 512*1024), (SWV, 16384), (SDBG, 256), (SWS, WS_BYTES)):
    e(f"s_mov_b32 s{d+2}, {nbytes}\ns_mov_b32 s{d+3}, 0x20000")
def late_srd(lst):
    for d, off, nbytes in lst:
        e(f"s_load_dwordx2 s[{d}:{d+1}], s[0:1], {off}\ns_mov_b32 s{d+2}, {nbytes}\ns_mov_b32 s{d+3}, 0x20000")
LS_A = [(SOUT, 72, 2048*1024)]; LS_F = [(SWO, 32, 512*1024), (SWD, 64, 1376*1024)]
def entry_stamp(defer=False):
    if PROF:
        e(f"s_lshl_b32 s{sPo}, s2, 3\ns_add_u32 s{sPo}, s{sPo}, s{sW}\ns_lshl_b32 s{sPo}, s{sPo}, 8\ns_add_u32 s{sPo}, s{sPo}, {PROFO}")
    if defer: tstamp(0); return
    stamp(0); rt_out()
def rt_out():
    if RT: e(f"s_nop 1\nv_mov_b32 v0, s100\nbuffer_store_dword v0, off, {sr(SWS,4)}, s{sPo} offset:60\ns_nop 1\nv_mov_b32 v0, s98\nbuffer_store_dword v0, off, {sr(SWS,4)}, s{sPo} offset:16")
def row_loads():
    e(f"""s_lshl_b32 s{sT1}, s{sRow}, 11
    buffer_load_dwordx4 {vr(vRs,4)}, v{vL16}, {sr(SX,4)}, s{sT1} offen
    buffer_load_dwordx4 {vr(vRs+4,4)}, v{vL16}, {sr(SX,4)}, s{sT1} offen offset:1024""")
WKV = 131072
vXf, vWk = 32, 192
sXb = sMw
def kvx_dma(c):
    return [f"""s_add_u32 m0, s{sXb}, {4096*c+2048*hf}
        s_add_u32 s{sT0}, s{sXo}, {128*c+16384*hf}
        buffer_load_dwordx4 v{vXa0}, {sr(SX,4)}, s{sT0} offen lds
        buffer_load_dwordx4 v{vXa1}, {sr(SX,4)}, s{sT0} offen offset:1024 lds""" for hf in range(2)]
e(f"""s_cselect_b32 s{sT2}, 1, 0
s_cmp_lt_u32 s{sW}, 4
s_cbranch_scc1 Lnorow
s_waitcnt lgkmcnt(0)""")
row_loads()
e(f"""s_cmp_eq_u32 s{sJ}, 15
s_cbranch_scc0 Lcomp
Lnorow:
s_cmp_eq_u32 s{sJ}, 15
s_cbranch_scc0 Lhelp
s_memrealtime s[{sTm}:{sTm+1}]
s_lshl_b32 s{sXb}, s{sW}, 14
s_lshr_b32 s{sT3}, s{sW}, 2
s_lshl_b32 s{sT0}, s{sT3}, 9
s_add_u32 s{sXo}, s{sXo}, s{sT0}
s_or_b32 s{sT0}, s2, s{sW}
s_cmp_lg_u32 s{sT0}, 0
s_waitcnt lgkmcnt(0)
s_cbranch_scc1 Lnotag
s_or_b32 s{sTm}, s{sTm}, 1
v_mov_b32 v{vPoll}, s{sTm}
v_mov_b32 v{vPoll+1}, s{sTm+1}
s_mov_b64 exec, 1
buffer_store_dwordx2 {vr(vPoll,2)}, off, {sr(SDBG,4)}, 0 sc1
s_mov_b64 exec, -1
Lnotag:
s_lshl_b32 s{sT0}, s{sW}, 11
s_add_u32 m0, s{sT0}, {WKV}
s_nop 0
buffer_load_dwordx4 v{vL16}, {sr(SWV,4)}, s{sT0} offen lds
buffer_load_dwordx4 v{vL16}, {sr(SWV,4)}, s{sT0} offen offset:1024 lds
s_add_u32 m0, s{sT0}, {WKV+16384}
s_nop 0
buffer_load_dwordx4 v{vL16}, {sr(SWK,4)}, s{sT0} offen lds
buffer_load_dwordx4 v{vL16}, {sr(SWK,4)}, s{sT0} offen offset:1024 lds""")
for x in kvx_dma(0): e(x)
e("s_branch Lkvcu\nLhelp:")

def v_lane_addr(d):
    e(f"""v_and_b32 v{d}, 15, v{vLane}
    v_lshlrev_b32 v{d}, 4, v{d}
    v_lshl_add_u32 v{d}, v{vH}, 8, v{d}
    s_mov_b32 exec_lo, 0xffff0000
    s_mov_b32 exec_hi, 0xffff0000
    v_mov_b32 v{d}, 512""")
def fin_init():
    e(f"""s_lshl_b32 s{sT0}, s{sTB}, 16
    s_lshl_b32 s{sT1}, s{sCS}, 7
    s_add_u32 s{sT0}, s{sT0}, s{sT1}
    s_lshl_b32 s{sT1}, s{sW4}, 14
    s_add_u32 s{sXf}, s{sT0}, s{sT1}
    s_add_u32 s{sXf2}, s{sXf}, 8192
    v_lshrrev_b32 v{vT0}, 3, v{vLane}
    v_and_b32 v{vT1}, 7, v{vLane}
    v_lshlrev_b32 v{vRa}, 10, v{vT0}
    v_lshl_add_u32 v{vRa}, v{vT1}, 4, v{vRa}
    v_bfe_u32 v{vT1}, v{vLane}, 1, 2
    v_mul_u32_u24 v{vT1}, {XB}, v{vT1}
    v_lshl_add_u32 v{vT0}, v{vT0}, 4, v{vT1}
    v_and_b32 v{vT1}, 1, v{vLane}
    v_mul_u32_u24 v{vT1}, {XP}, v{vT1}
    s_and_b32 s{sT0}, s{sW4}, 1
    s_lshl_b32 s{sT0}, s{sT0}, 8
    v_add3_u32 v{vT0}, v{vT0}, v{vT1}, s{sT0}
    s_lshr_b32 s{sT0}, s{sW4}, 1
    s_mul_i32 s{sT1}, s{sT0}, {4*XB}
    s_add_u32 s{sT1}, s{sT1}, {XF0}
    v_add_u32 v{vRr}, s{sT1}, v{vT0}
    s_mul_i32 s{sT1}, s{sT0}, {XS1}
    v_add_u32 v{vRr2}, s{sT1}, v{vT0}""")
def a_init(zero=True):
    e(f"""s_lshl_b32 s{sT0}, s{sI}, 2
    s_add_u32 s{sT0}, s{sT0}, s{sW4}
    s_lshl_b32 s{sT0}, s{sT0}, 5
    s_lshr_b32 s{sT1}, s{sJ}, 1
    s_add_u32 s{sT0}, s{sT0}, s{sT1}
    s_and_b32 s{sT1}, s{sJ}, 1
    s_lshl_b32 s{sT1}, s{sT1}, 4
    s_add_u32 s{sT0}, s{sT0}, s{sT1}
    s_lshl_b32 s{sT0}, s{sT0}, 10
    s_add_u32 s{sOp}, s{sT0}, {OIMG}
    s_add_u32 s{sOp2}, s{sOp}, 8192
    v_mov_b64 v[232:233], -1
    v_mov_b64 v[234:235], -1
    buffer_store_dwordx4 v[232:235], v{vL16}, {sr(SWS,4)}, s{sOp} offen sc1
    buffer_store_dwordx4 v[232:235], v{vL16}, {sr(SWS,4)}, s{sOp2} offen sc1""")
    v_lane_addr(vAv)
    e(f"""s_mov_b32 exec_lo, 0xffee0000
    s_mov_b32 exec_hi, 0xffee0000
    v_mov_b32 v{vAv}, 0x4000000
    s_mov_b64 exec, -1
    v_add_u32 v{vAv}, 1024, v{vAv}
    v_mov_b32 v{vAk}, v{vL16}
    v_mov_b32 v{vIdx}, 0xdddd
    s_lshl_b32 s{sT0}, s{sW4}, 11
    s_add_u32 s{sT0}, s{sT0}, {QIMG}
    v_add_u32 v{vAq}, s{sT0}, v{vL16}""")
    if zero: a_zero()
def a_zero():
    for b in range(2):
        for r in range(0, 12, 2): e(f"v_mov_b64 {vr(aO[b]+r,2)}, 0")
def f_init():
    e(f"""v_lshrrev_b32 v{vT0}, 3, v{vLane}
    v_lshlrev_b32 v{vT0}, 10, v{vT0}
    v_and_b32 v{vT1}, 7, v{vLane}
    v_bfe_u32 v{vT2}, v{vLane}, 4, 1
    v_lshlrev_b32 v{vT2}, 2, v{vT2}
    v_xor_b32 v{vT1}, v{vT1}, v{vT2}
    v_lshl_add_u32 v{vDa}, v{vT1}, 4, v{vT0}
    v_add_u32 v{vDa2}, {8192-1024}, v{vDa}
    s_lshl_b32 s{sDo}, s{sW4}, 14
    s_lshl_b32 s{sT1}, s{sCS}, 7
    s_add_u32 s{sDo}, s{sDo}, s{sT1}
    s_lshl_b32 s{sDm}, s{sW4}, 11
    s_mul_i32 s{sHo}, s{sTB}, 176
    s_mul_i32 s{sT0}, s{sW4}, 22
    s_add_u32 s{sHo}, s{sHo}, s{sT0}
    s_lshl_b32 s{sHo}, s{sHo}, 10
    s_add_u32 s{sHo}, s{sHo}, {HIMG}
    s_lshl_b32 s{sT0}, s{sTB}, 3
    s_add_u32 s{sT0}, s{sT0}, s{sW4}
    s_lshl_b32 s{sT0}, s{sT0}, 13
    s_add_u32 s{sOc}, s{sT0}, {OIMG}
    s_add_u32 s{sOc2}, s{sOc}, 4096
    s_add_u32 s{sOc3}, s{sOc}, 32768
    s_add_u32 s{sOc4}, s{sOc}, {32768+4096}
    s_lshr_b32 s{sHc}, s{sTB}, 1
    s_lshl_b32 s{sHc}, s{sHc}, 11
    s_add_u32 s{sHc}, s{sHc}, {HFLG}
    s_lshl_b32 s{sHs}, s{sI}, 4
    s_add_u32 s{sHs}, s{sHs}, s{sJ}
    s_lshl_b32 s{sHs}, s{sHs}, 7
    s_add_u32 s{sHs}, s{sHs}, {HFLG}
    v_bfe_u32 v{vT0}, v{vLane}, 2, 2
    v_lshl_add_u32 v{vT0}, v{vH}, 2, v{vT0}
    v_lshlrev_b32 v{vT0}, 7, v{vT0}
    v_bfe_u32 v{vT1}, v{vLane}, 4, 1
    v_lshl_add_u32 v{vT0}, v{vT1}, 5, v{vT0}
    v_and_b32 v{vT1}, 3, v{vLane}
    v_lshl_add_u32 v{vT0}, v{vT1}, 3, v{vT0}
    v_bfe_u32 v{vT1}, v{vLane}, 3, 1
    v_lshl_add_u32 v{vT0}, v{vT1}, 6, v{vT0}
    v_add_u32 v{vRd}, s{sDm}, v{vT0}
    v_xor_b32 v{vRd+1}, 64, v{vRd}
    v_add_u32 v{vRd+2}, {SP[0]}, v{vRd}
    v_add_u32 v{vRd+3}, {SP[0]}, v{vRd+1}
    s_mul_i32 s{sT0}, s{sW4}, {XK}
    v_add_u32 v{vRw2}, s{sT0}, v{vL16}
    v_add_u32 v{vRw}, {XF0}, v{vRw2}
    v_add_u32 v{vRw2+1}, {XS1}, v{vRw2}""")
def kv_rest(tag):
    e(f"s_setprio 0\ns_lshl_b32 s{sT1}, s{sW4}, 12")
    for n in range(6):
        e(f"s_add_u32 s{sT0}, s{sT1}, {36*1024+16384*n}\ns_mov_b32 m0, s{sT0}\ns_nop 0")
        for k in range(4): e(f"buffer_load_dwordx4 v{vL16}, {sr(SWS,4)}, s{sT0} offen offset:{1024*k} sc1 lds")
    e(tag_issue())
    e("s_setprio 2")

def spread(m, fill):
    w = [16 if "16x16" in x else 32 for x in m]
    tot = sum(c for c, _ in fill); W = sum(w)
    out = []; k = 0; acc = 0; cw = 0
    for x, wx in zip(m, w):
        out.append(x); cw += wx
        while k < len(fill) and (acc + fill[k][0]/2) * W <= tot * cw:
            out.append(fill[k][1]); acc += fill[k][0]; k += 1
    out += [t for _, t in fill[k:]]
    return out


C1 = -2*0.7978845608028654*1.4426950408889634
C3 = C1*0.044715
def gelu_consts(m, r, d):
    e(f"""v_sub_f32 v{d}, 0, v{m}
    v_mul_f32 v{d+3}, v{r}, v{r}
    v_mul_f32 v{d+1}, {f2u(C1):#x}, v{r}
    v_mul_f32 v{d+2}, {f2u(C3):#x}, v{r}
    v_mul_f32 v{d+2}, v{d+2}, v{d+3}
    v_rcp_f32 v{d+3}, v{d+3}""")
def bc(reg, pos, n):
    base = reg & ~1
    return vr(base, 2), reg & 1
def pk(op, d, srcs, neg=None):
    ops = []; lo = []; hi = []
    for t, r in srcs:
        if t == 'p': ops.append(vr(r, 2)); lo.append(0); hi.append(1)
        else: ops.append(vr(r & ~1, 2)); lo.append(r & 1); hi.append(r & 1)
    return f"{op} {vr(d,2)}, {', '.join(ops)} op_sel:[{','.join(map(str,lo))}] op_sel_hi:[{','.join(map(str,hi))}]"
def gelu_tile(g, u, csg, csu, k, tmp, n=16, dst=None):
    for p in range(0, n, 2):
        e(pk("v_pk_fma_f32", g+p, [('b', k), ('p', csg+p), ('p', g+p)]))
        e(pk("v_pk_fma_f32", u+p, [('b', k), ('p', csu+p), ('p', u+p)]))
    for p in range(0, n, 2):
        e(pk("v_pk_mul_f32", tmp+p, [('p', g+p), ('p', g+p)]))
    for p in range(0, n, 2):
        e(pk("v_pk_fma_f32", tmp+p, [('p', tmp+p), ('b', k+2), ('b', k+1)]))
    for p in range(0, n, 2):
        e(pk("v_pk_mul_f32", tmp+p, [('p', tmp+p), ('p', g+p)]))
    for p in range(n): e(f"v_exp_f32 v{tmp+p}, v{tmp+p}")
    for p in range(0, n, 2):
        e(pk("v_pk_mul_f32", u+p, [('p', u+p), ('p', g+p)]))
    for p in range(0, n, 2):
        e(pk("v_pk_fma_f32", tmp+p, [('p', tmp+p), ('b', k+3), ('b', k+3)]))
    for p in range(n): e(f"v_rcp_f32 v{tmp+p}, v{tmp+p}")
    e("s_nop 0")
    for p in range(0, n, 2):
        e(pk("v_pk_mul_f32", u+p, [('p', u+p), ('p', tmp+p)]))
    for p in range(n//2): e(f"v_cvt_pk_bf16_f32 v{dst[p] if dst else g+p}, v{u+2*p}, v{u+2*p+1}")

def cs_read(d, slot_off):
    for q in range(4): e(f"ds_read_b128 {vr(d+4*q,4)}, v{vT3} offset:{slot_off+32*q}")

def lin_fold(acc, cs, negm, scale, n=16):
    for p in range(0, n, 2):
        e(pk("v_pk_fma_f32", acc+p, [('b', negm), ('p', cs+p), ('p', acc+p)]))
    for p in range(0, n, 2):
        e(pk("v_pk_mul_f32", acc+p, [('p', acc+p), ('b', scale)]))

def q_epilogue(cs):
    e(f"v_mul_f32 v{vSt+2}, {f2u(0.25*1.4426950408889634):#x}, v{vSt+1}")
    lin_fold(vAcc, cs, vSt+4, vSt+2)
    for p in range(8): e(f"v_cvt_pk_bf16_f32 v{vAcc+p}, v{vAcc+2*p}, v{vAcc+2*p+1}")
    e(f"""s_lshl_b32 s{sT0}, s{sW4}, 11
    s_add_u32 s{sT0}, s{sT0}, {QIMG}
    v_lshl_add_u32 v{vT0}, v{vLane}, 4, s{sT0}
    ds_write_b128 v{vT0}, {vr(vAcc,4)}
    ds_write_b128 v{vT0}, {vr(vAcc+4,4)} offset:1024""")


def rowstat_finish():
    a = vRs+8
    e(f"v_mov_b32 v{vT0}, 0x3f803f80")
    for k in range(4):
        for r in range(2):
            x = vRs+4*r+k
            c0 = "0" if k == 0 else f"v{a+2*r}"; c1 = "0" if k == 0 else f"v{a+2*r+1}"
            e(f"v_dot2_f32_bf16 v{a+2*r}, v{x}, v{vT0}, {c0}\nv_dot2_f32_bf16 v{a+2*r+1}, v{x}, v{x}, {c1}")
    e("s_nop 2")
    for ctl in ("row_shr:1", "row_shr:2", "row_shr:4", "row_shr:8"):
        for k in range(4): e(f"v_add_f32_dpp v{a+k}, v{a+k}, v{a+k} {ctl} row_mask:0xf bank_mask:0xf bound_ctrl:0")
    for ctl in ("row_bcast:15 row_mask:0xa", "row_bcast:31 row_mask:0xc"):
        for k in range(4): e(f"v_add_f32_dpp v{a+k}, v{a+k}, v{a+k} {ctl} bank_mask:0xf")
    for r in range(2):
        d = vRs+4*r
        e(f"""v_mul_f32 v{d}, {f2u(1/512):#x}, v{a+2*r}
        v_mul_f32 v{d+1}, {f2u(1/512):#x}, v{a+2*r+1}
        v_fma_f32 v{d+1}, -v{d}, v{d}, v{d+1}
        v_max_f32 v{d+1}, 0, v{d+1}
        v_add_f32 v{d+1}, {f2u(1e-5):#x}, v{d+1}
        v_rsq_f32 v{d+1}, v{d+1}""")
def rowstat_post():
    e(f"""s_lshl_b32 s{sT0}, s{sW4}, 4
    s_add_u32 s{sT0}, s{sT0}, {STL}
    v_mov_b32 v{vT0}, s{sT0}
    s_mov_b32 exec_lo, 0
    s_brev_b32 exec_hi, 1
    ds_write_b64 v{vT0}, {vr(vRs,2)}
    ds_write_b64 v{vT0}, {vr(vRs+4,2)} offset:8
    s_mov_b64 exec, -1""")
def rowstat_store():
    for r in range(2): e(f"v_mov_b32 v{vRs+4*r+2}, s{sNo}\nv_mov_b32 v{vRs+4*r+3}, s{sNo+1}")
    e(f"""s_lshl_b32 s{sT0}, s{sRow}, 5
    s_add_u32 s{sT0}, s{sT0}, {STATG}
    s_mov_b32 exec_lo, 0
    s_brev_b32 exec_hi, 1
    buffer_store_dwordx4 {vr(vRs,4)}, off, {sr(SWS,4)}, s{sT0} sc1
    buffer_store_dwordx4 {vr(vRs+4,4)}, off, {sr(SWS,4)}, s{sT0} offset:16 sc1
    s_mov_b64 exec, -1""")
def kv_dma(tag):
    e(f"s_mul_i32 s{sT1}, s{sW4}, 3072")
    for n in range(3):
        e(f"s_add_u32 s{sT0}, s{sT1}, {12288*n}\ns_mov_b32 m0, s{sT0}\ns_nop 0")
        for k in range(3): e(f"buffer_load_dwordx4 v{vL16}, {sr(SWS,4)}, s{sT0} offen offset:{1024*k} sc1 lds")
def tr_lane(rowmul, d):
    e(f"""v_lshrrev_b32 v{vT0}, 4, v{vLane}
    v_bfe_u32 v{vT1}, v{vLane}, 2, 2
    v_lshl_add_u32 v{vT0}, v{vT0}, 3, v{vT1}
    v_mul_u32_u24 v{vT0}, {rowmul}, v{vT0}
    v_bfe_u32 v{vT1}, v{vLane}, 4, 1
    v_lshl_add_u32 v{vT0}, v{vT1}, 5, v{vT0}
    v_and_b32 v{vT1}, 3, v{vLane}
    v_lshl_add_u32 v{d}, v{vT1}, 3, v{vT0}""")
def ones_col0(d):
    e(f"""v_and_b32 v{vT0}, 15, v{vLane}
    v_cmp_eq_u32 vcc, 0, v{vT0}
    v_mov_b32 v{vT1}, 0x3f803f80
    s_nop 0
    v_cndmask_b32 v{d}, 0, v{vT1}, vcc""")
    for k in range(1, 4): e(f"v_mov_b32 v{d+k}, v{d}")
def rot_delta():
    return f"s_add_u32 s{sRb}, s{sRb}, 1\ns_cmp_eq_u32 s{sRb}, 3\ns_cselect_b32 s{sDl}, s{sC3}, {STG}\ns_cselect_b32 s{sRb}, 0, s{sRb}"
def cs16_write(accs, slot0_sreg, stride):
    e(f"v_add_u32 v{vT0}, s{slot0_sreg}, v{vLane}\ns_mov_b32 exec_lo, 0x00010001\ns_mov_b32 exec_hi, 0x00010001")
    for n, a in enumerate(accs): e(f"ds_write_b128 v{vT0}, {vr(a,4)} offset:{stride*n}")
    e("s_mov_b64 exec, -1")

ROT = int(sys.argv[sys.argv.index("--rot")+1]) if "--rot" in sys.argv else 7
sKs = 84
C0 = "--noc0" not in sys.argv
NR = 7 if C0 else 8
def dma_x():
    return [f"s_add_u32 m0, s{sLb}, s{sMx}", f"s_add_u32 s{sT0}, s{sXo}, 16384",
            f"buffer_load_dwordx4 v{vXa0}, {sr(SX,4)}, s{sXo} offen lds",
            f"buffer_load_dwordx4 v{vXa1}, {sr(SX,4)}, s{sXo} offen offset:1024 lds",
            "s_add_u32 m0, m0, 2048", f"s_add_u32 s{sXo}, s{sXo}, 128",
            f"buffer_load_dwordx4 v{vXa0}, {sr(SX,4)}, s{sT0} offen lds",
            f"buffer_load_dwordx4 v{vXa1}, {sr(SX,4)}, s{sT0} offen offset:1024 lds"]
def dma_w():
    r = []
    for k, sd in enumerate((SWG, SWU)):
        r += [f"s_add_u32 m0, s{sLb}, s{sMw}" if k == 0 else f"s_add_u32 m0, m0, {UOFF-GOFF}", "s_nop 0",
              f"buffer_load_dwordx4 v{vWa0}, {sr(sd,4)}, s{sWo} offen lds",
              f"buffer_load_dwordx4 v{vWa1}, {sr(sd,4)}, s{sWo} offen offset:1024 lds",
              f"buffer_load_dwordx4 v{vWa2}, {sr(sd,4)}, s{sWo} offen offset:2048 lds"]
    r += [f"s_add_u32 m0, s{sLb}, s{sMq}", f"s_add_u32 s{sWo}, s{sWo}, {64*2752}",
          f"buffer_load_dwordx4 v{vQa}, {sr(SWQ,4)}, s{sQo} offen lds", f"s_add_u32 s{sQo}, s{sQo}, 65536",
          f"s_add_u32 s{sLb}, s{sLb}, {STG}", f"s_cmp_ge_u32 s{sLb}, {3*STG}", f"s_cselect_b32 s{sLb}, 0, s{sLb}"]
    if ROT:
        r += [f"s_add_u32 s{sKs}, s{sKs}, 1", f"s_cmp_eq_u32 s{sKs}, 8",
              f"s_cselect_b32 s{sT0}, {128*NR}, 0", f"s_cselect_b32 s{sT1}, {64*NR*2752}, 0", f"s_cselect_b32 s{sT2}, {64*NR*1024}, 0",
              f"s_sub_u32 s{sXo}, s{sXo}, s{sT0}", f"s_sub_u32 s{sWo}, s{sWo}, s{sT1}", f"s_sub_u32 s{sQo}, s{sQo}, s{sT2}"]
    return r
e(f"s_mov_b32 s{sLb}, 0\ns_lshl_b32 s{sMx}, s{sW4}, 12")
if ROT: e(f"s_lshl_b32 s{sKs}, s{sI if M48 else sJ}, 1\ns_add_u32 s{sKs}, s{sKs}, s{sJ if M48 else sI}\ns_and_b32 s{sKs}, s{sKs}, {ROT}")
RM = sys.argv[sys.argv.index("--rm")+1] if "--rm" in sys.argv else ""
if RM == "a":
    e(f"""s_xor_b32 s{sKs}, s{sI}, s{sJ}
    s_and_b32 s{sKs}, s{sKs}, 1
    s_lshl_b32 s{sKs}, s{sKs}, 2
    s_lshr_b32 s{sT0}, s{sI}, 1
    s_xor_b32 s{sT0}, s{sT0}, s{sJ}
    s_lshr_b32 s{sT0}, s{sT0}, 1
    s_and_b32 s{sT0}, s{sT0}, 2
    s_or_b32 s{sKs}, s{sKs}, s{sT0}""")
if RM == "b":
    e(f"""s_add_u32 s{sKs}, s{sI}, s{sJ}
    s_and_b32 s{sKs}, s{sKs}, 3
    s_lshl_b32 s{sKs}, s{sKs}, 1
    s_lshr_b32 s{sT0}, s{sI}, 1
    s_xor_b32 s{sT0}, s{sT0}, s{sJ}
    s_bfe_u32 s{sT0}, s{sT0}, 0x10002
    s_or_b32 s{sKs}, s{sKs}, s{sT0}""")
if RM == "c":
    e(f"""s_lshr_b32 s{sKs}, s{sI}, 3
    s_lshl_b32 s{sKs}, s{sKs}, 2
    s_lshr_b32 s{sT0}, s{sJ}, 2
    s_lshl_b32 s{sT0}, s{sT0}, 1
    s_add_u32 s{sKs}, s{sKs}, s{sT0}
    s_and_b32 s{sKs}, s{sKs}, 7""")
if ROT and C0: e(f"s_cmp_eq_u32 s{sKs}, 7\ns_cselect_b32 s{sKs}, 3, s{sKs}")
def rot_x(): e(f"s_lshl_b32 s{sT0}, s{sKs}, 7\ns_add_u32 s{sXo}, s{sXo}, s{sT0}")
def rot_w(): e(f"s_mul_i32 s{sT0}, s{sKs}, {64*2752}\ns_add_u32 s{sWo}, s{sWo}, s{sT0}\ns_lshl_b32 s{sT0}, s{sKs}, 16\ns_add_u32 s{sQo}, s{sQo}, s{sT0}")
if ROT and not C0: rot_x()
for k, r in enumerate((vWa0, vWa1, vWa2)):
    e(f"""v_add_u32 v{vT0}, {64*k}, v{vLane}
    v_mul_u32_u24 v{vT1}, 43691, v{vT0}
    v_lshrrev_b32 v{vT1}, 19, v{vT1}
    v_mul_u32_u24 v{vT2}, 12, v{vT1}
    v_sub_u32 v{vT0}, v{vT0}, v{vT2}
    v_lshrrev_b32 v{vT2}, 2, v{vT1}
    v_and_b32 v{vT2}, 2, v{vT2}
    v_xor_b32 v{vT0}, v{vT0}, v{vT2}
    v_mul_u32_u24 v{vT1}, 2752, v{vT1}
    v_lshl_add_u32 v{r}, v{vT0}, 4, v{vT1}""")
    if k: e(f"v_subrev_u32 v{r}, {1024*k}, v{r}")
e(f"""v_lshrrev_b32 v{vT0}, 2, v{vLane}
v_lshlrev_b32 v{vT0}, 10, v{vT0}
v_and_b32 v{vT1}, 3, v{vLane}
v_lshlrev_b32 v{vT2}, 1, v{vH}
v_xor_b32 v{vT1}, v{vT1}, v{vT2}
v_lshl_add_u32 v{vQa}, v{vT1}, 4, v{vT0}
s_mul_i32 s{sT0}, s{sJ}, 96
s_min_u32 s{sT0}, s{sT0}, 1280
s_lshl_b32 s{sT0}, s{sT0}, 1
s_mul_i32 s{sWo}, s{sW4}, {16*2752}
s_add_u32 s{sWo}, s{sWo}, s{sT0}
s_lshl_b32 s{sQo}, s{sW4}, 14
s_lshl_b32 s{sT0}, s{sJ}, 6
s_add_u32 s{sQo}, s{sQo}, s{sT0}
s_mul_i32 s{sMw}, s{sW4}, 3072
s_add_u32 s{sMw}, s{sMw}, {GOFF}
s_lshl_b32 s{sMq}, s{sW4}, 10
s_add_u32 s{sMq}, s{sMq}, {QOFF}""")
if ROT and not C0: rot_w()
e("s_waitcnt lgkmcnt(0)")
entry_stamp()
for x in dma_x(): e(x)
w0 = dma_w()
if ROT and C0:
    k = w0.index(f"s_add_u32 s{sKs}, s{sKs}, 1")
    for x in w0[:k]: e(x)
    rot_x(); rot_w(); e(w0[k])
else:
    for x in w0: e(x)
for x in dma_x() + dma_w(): e(x)
e(tag_issue())
late_srd(LS_A)
hW = 32
e(f"s_mov_b32 s{sSt}, 0\ns_mov_b32 s{sRb}, 0\ns_mov_b32 s{sC3}, {(-2*STG) & 0xffffffff}")
if "--hp3" in sys.argv: e("s_setprio 3")
tstamp(21); e("s_waitcnt vmcnt(12) lgkmcnt(0)"); tstamp(23); e("s_barrier")
stamp(12); tflush(); TS.clear()
def helper_loop(cs):
    t = "c" if cs else "n"
    e(f"Lhl{t}:")
    if cs:
        rd, m = cs_parts()
        for x in rd: e(x)
        e(rot_delta())
        for x in dma_x(): e(x)
        e(f"v_add_u32 v{hA}, s{sDl}, v{hA}\nv_add_u32 v{hA+1}, s{sDl}, v{hA+1}\ns_waitcnt lgkmcnt(0)")
        w = dma_w(); k = 0
        for x in w:
            e(x)
            if "buffer_load" in x: e(m[k]); k += 1
        for x in m[k:]: e(x)
    else:
        for x in dma_x() + dma_w():
            if "--nodma" in sys.argv and "buffer_load" in x: continue
            e(x)
            if "--pace" in sys.argv and "buffer_load" in x: e("s_sleep 1")
        e(f"s_or_b32 s{sT0}, s{sSt}, s{sW}\ns_cmp_lg_u32 s{sT0}, 0\ns_cbranch_scc1 Lnpub")
        e(f"v_lshlrev_b32 v{vT0}, 3, v{vLane}\nv_add_u32 v{vT0}, {STL}, v{vT0}\nds_read_b64 {vr(hW,2)}, v{vT0}")
        tag_wait("p", 11)
        e(f"""v_mov_b32 v{hW+2}, s{sNo}
        v_mov_b32 v{hW+3}, s{sNo+1}
        s_lshl_b32 s{sT0}, s{sRow}, 5
        s_add_u32 s{sT0}, s{sT0}, {STATG}
        s_mov_b64 exec, 0xff
        s_waitcnt lgkmcnt(0)
        buffer_store_dwordx4 {vr(hW,4)}, v{vL16}, {sr(SWS,4)}, s{sT0} offen sc1
        s_mov_b64 exec, -1
        Lnpub:""")
    e(f"""s_add_u32 s{sSt}, s{sSt}, 1
    {tk(None)}
    s_waitcnt vmcnt(11)
    {tk(80)}
    s_barrier
    {tk(81)}
    s_cmp_lt_u32 s{sSt}, 6
    s_cbranch_scc1 Lhl{t}""")
helper_loop(False)
tkout()
tag_wait("h", 0)
a_init(); fin_init()
e(f"s_mov_b32 s{sKf}, {KFLG}")
e("s_barrier")
e(flags_issue(sKf))
e(f"s_cmp_lg_u32 s{sW}, 1\ns_cbranch_scc1 Lhns\ns_lshl_b32 s{sT1}, s{sI}, 11\ns_add_u32 s{sT1}, s{sT1}, {STATG}\ns_mov_b32 s{sT0}, 0\nLhs:")
e(f"""buffer_load_dwordx4 {vr(hW,4)}, v{vL16}, {sr(SWS,4)}, s{sT1} offen sc1
buffer_load_dwordx4 {vr(hW+4,4)}, v{vL16}, {sr(SWS,4)}, s{sT1} offen offset:1024 sc1
s_add_u32 s{sT0}, s{sT0}, 1
s_waitcnt vmcnt(0)
v_cmp_ne_u64 vcc, s[{sNo}:{sNo+1}], {vr(hW+2,2)}
v_cmp_ne_u64 s[{sEx}:{sEx+1}], s[{sNo}:{sNo+1}], {vr(hW+6,2)}
s_or_b64 vcc, vcc, s[{sEx}:{sEx+1}]
s_cmp_ge_u32 s{sT0}, 100000
s_cbranch_scc1 Lhsd
s_cbranch_vccnz Lhs
Lhsd:""")
gelu_consts(hW, hW+1, hW+8); gelu_consts(hW+4, hW+5, hW+12)
e(f"""v_add_u32 v{vT0}, {STATM}, v{vL16}
ds_write_b128 v{vT0}, {vr(hW+8,4)}
ds_write_b128 v{vT0}, {vr(hW+12,4)} offset:1024
Lhns:""")
e(f"""s_waitcnt vmcnt(0)
v_cmp_ne_u64 vcc, s[{sNo}:{sNo+1}], {vr(vPoll,2)}
s_mov_b32 s{sSt}, 1
s_cbranch_vccnz Lhnk""")
kv_dma("a")
e(f"s_mov_b32 s{sSt}, 0\ns_branch Lhnk2\nLhnk:")
e(flags_issue(sKf))
e("Lhnk2:\ns_barrier\ns_waitcnt lgkmcnt(0)")
stamp(1)
e("s_barrier")
e(f"s_cmp_lg_u32 s{sSt}, 0\ns_cbranch_scc1 Lkvwait\ns_waitcnt vmcnt(0)\ns_branch Lp2")

cX = [8, 24]; cW = 40; cRX, cRW, cRQ = 68, 70, 72; cCs = 76; cO = 92; cA = 96
e("Lcomp:")
entry_stamp(True)
late_srd(LS_F)
e(f"""v_and_b32 v{vT0}, 15, v{vLane}
v_lshrrev_b32 v{vT1}, 1, v{vT0}
v_lshrrev_b32 v{vT2}, 4, v{vLane}
v_xor_b32 v{vT1}, v{vT1}, v{vT2}
v_lshlrev_b32 v{vT0}, 7, v{vT0}
s_and_b32 s{sT0}, s{sW}, 1
s_lshl_b32 s{sT0}, s{sT0}, 13
v_add_u32 v{vT0}, s{sT0}, v{vT0}
v_lshl_add_u32 v{cRX}, v{vT1}, 4, v{vT0}
v_xor_b32 v{cRX+1}, 64, v{cRX}""")
tr_lane(192, cRW)
e(f"""s_lshl_b32 s{sT1}, s{sW}, 4
s_and_b32 s{sT1}, s{sT1}, 32
v_xor_b32 v{cRW}, s{sT1}, v{cRW}
v_xor_b32 v{cRW+1}, 32, v{cRW}
s_lshl_b32 s{sT2}, s{sT1}, 1
v_add_u32 v{cRW}, s{sT2}, v{cRW}
s_lshl_b32 s{sT2}, s{sT1}, 2
v_add_u32 v{cRW+1}, s{sT2}, v{cRW+1}""")
tr_lane(64, cRQ); e(f"v_xor_b32 v{cRQ}, s{sT1}, v{cRQ}")
ones_col0(cO)
cEh, cEs, cEq = 73, 74, 75
e(f"""s_lshl_b32 s{sT0}, s{sI}, 2
s_and_b32 s{sT1}, s{sW}, 1
s_lshl_b32 s{sT1}, s{sT1}, 1
s_add_u32 s{sT0}, s{sT0}, s{sT1}
s_mul_i32 s{sT0}, s{sT0}, 88
s_mul_i32 s{sT1}, s{sJ}, 6
s_min_u32 s{sT1}, s{sT1}, 80
s_bfe_u32 s{sT2}, s{sW}, 0x10001
s_mul_i32 s{sT2}, s{sT2}, 3
s_add_u32 s{sT1}, s{sT1}, s{sT2}
s_and_b32 s{sT2}, s{sW}, 2""")
for add, dst in enumerate((sC0, sC1, sC2)):
    e(f"""s_add_u32 s{sT3}, s{sT1}, {add}
    s_lshr_b32 s{dst}, s{sT3}, 2
    s_add_u32 s{dst}, s{dst}, s{sT0}
    s_and_b32 s{sT3}, s{sT3}, 3
    s_mul_i32 s{sT3}, s{sT3}, 22
    s_add_u32 s{dst}, s{dst}, s{sT3}
    s_lshl_b32 s{dst}, s{dst}, 10
    s_add_u32 s{dst}, s{dst}, {HIMG}""")
e(f"""v_bfe_u32 v{vT0}, v{vLane}, 4, 1
v_lshlrev_b32 v{vT0}, 9, v{vT0}
v_and_b32 v{vT1}, 15, v{vLane}
v_lshl_add_u32 v{vT0}, v{vT1}, 4, v{vT0}
v_lshl_add_u32 v{cEh}, v{vH}, 8, v{vT0}
s_and_b32 s{sT0}, s{sW}, 1
s_lshl_b32 s{sT1}, s{sT0}, 10
s_add_u32 s{sT1}, s{sT1}, {STATM}
v_lshl_add_u32 v{cEs}, v{vT1}, 4, s{sT1}
s_lshl_b32 s{sT0}, s{sT0}, 12
s_lshl_b32 s{sT2}, s{sT2}, 9
s_add_u32 s{sT0}, s{sT0}, s{sT2}
s_add_u32 s{sT0}, s{sT0}, {QIMG}
v_lshl_add_u32 v{vT0}, v{vH}, 3, v{vT0}
v_add_u32 v{cEq}, s{sT0}, v{vT0}""")
f_init()
for r in list(range(cCs, cCs+16, 2)) + [r for r in range(cA, cA+112, 2) if not vRs <= r < vRs+16]: e(f"v_mov_b64 {vr(r,2)}, 0")
tstamp(13)
e("s_waitcnt vmcnt(0)")
tstamp(21)
rowstat_finish()
rowstat_post()
tstamp(23)
if "--touch" in sys.argv:
    e(f"""s_and_b32 s{sT2}, s{sI}, 7
    s_mul_i32 s{sT2}, s{sT2}, 48
    s_add_u32 s{sT2}, s{sT2}, 128
    s_cmp_ge_u32 s{sW}, 6
    s_cbranch_scc1 Ltc6
    v_lshrrev_b32 v{vT0}, 1, v{vLane}
    v_mul_u32_u24 v{vT0}, 2752, v{vT0}
    v_and_b32 v{vT1}, 1, v{vLane}
    v_lshl_add_u32 v{vT0}, v{vT1}, 7, v{vT0}
    s_mul_i32 s{sT0}, s{sJ}, 96
    s_min_u32 s{sT0}, s{sT0}, 1280
    s_lshl_b32 s{sT0}, s{sT0}, 1
    s_mul_i32 s{sT2}, s{sT2}, 2752
    s_add_u32 s{sT0}, s{sT0}, s{sT2}
    s_add_u32 s{sT1}, s{sT0}, {32*2752}
    s_cmp_eq_u32 s{sW}, 5
    s_cbranch_scc1 Ltc5
    buffer_load_dword v79, v{vT0}, {sr(SWG,4)}, s{sT0} offen
    s_mov_b32 exec_hi, 0
    buffer_load_dword v79, v{vT0}, {sr(SWG,4)}, s{sT1} offen
    s_branch Ltce
    Ltc5:
    buffer_load_dword v79, v{vT0}, {sr(SWU,4)}, s{sT0} offen
    s_mov_b32 exec_hi, 0
    buffer_load_dword v79, v{vT0}, {sr(SWU,4)}, s{sT1} offen
    s_branch Ltce
    Ltc6:
    s_cmp_eq_u32 s{sW}, 7
    s_cbranch_scc1 Ltc7
    v_lshrrev_b32 v{vT0}, 1, v{vLane}
    v_lshlrev_b32 v{vT0}, 10, v{vT0}
    v_and_b32 v{vT1}, 1, v{vLane}
    v_lshl_add_u32 v{vT0}, v{vT1}, 7, v{vT0}
    s_lshl_b32 s{sT0}, s{sI}, 17
    s_and_b32 s{sT1}, s{sJ}, 3
    s_lshl_b32 s{sT1}, s{sT1}, 15
    s_add_u32 s{sT0}, s{sT0}, s{sT1}
    buffer_load_dword v79, v{vT0}, {sr(SX,4)}, s{sT0} offen offset:256
    buffer_load_dword v79, v{vT0}, {sr(SX,4)}, s{sT0} offen offset:512
    buffer_load_dword v79, v{vT0}, {sr(SX,4)}, s{sT0} offen offset:768
    s_branch Ltce
    Ltc7:
    v_lshlrev_b32 v{vT0}, 10, v{vLane}
    s_lshl_b32 s{sT2}, s{sT2}, 10
    s_lshl_b32 s{sT0}, s{sJ}, 6
    s_add_u32 s{sT0}, s{sT0}, s{sT2}
    s_mov_b32 exec_hi, 0xffff
    buffer_load_dword v79, v{vT0}, {sr(SWQ,4)}, s{sT0} offen
    Ltce:
    s_mov_b64 exec, -1""")
e("s_nop 1")
for r in range(vRs, vRs+16, 2): e(f"v_mov_b64 {vr(r,2)}, 0")
e(f"s_mov_b32 s{sSt}, 0\ns_mov_b32 s{sRb}, 0\ns_mov_b32 s{sC3}, {(-2*STG) & 0xffffffff}\ns_setprio 2")
e(f"s_bitcmp1_b32 s{sW}, 0\ns_cbranch_scc1 Lcl1")
NF = 7
def comp_loop(var):
    tag = f"{var}"
    def wrd(n, k2):
        if n == 0: a, o, rs = cRQ, QOFF, 64
        else:
            t = (n-1) % 3
            a, o, rs = cRW+(t & 1), (GOFF if n < 4 else UOFF) + (t >> 1)*64, 192
        return tr(cW+4*n, a, o+32*k2*rs) + tr(cW+4*n+2, a, o+(32*k2+4)*rs)
    def xrd(k2): return [f"ds_read_b128 {vr(cX[k2]+4*u,4)}, v{cRX+k2} offset:{2048*u}" for u in range(4)]
    def mm(n, k2):
        r = [mfma16(cA+28*u+4*n, cW+4*n, cX[k2]+4*u) for u in range(4)]
        if (n & 1) == var: r.append(mfma16(cCs+4*(n >> 1), cW+4*n, cO))
        return r
    e("s_waitcnt lgkmcnt(0)\ns_barrier")
    for x in xrd(0) + sum([wrd(n, 0) for n in range(NF)], []): e(x)
    e(f"s_waitcnt lgkmcnt(0)\n.p2align 3\nLc_{tag}:")
    adr = [f"v_add_u32 v{r}, s{sDl}, v{r}" for r in (cRX, cRX+1, cRW, cRW+1, cRQ)]
    ctl = rot_delta().split("\n") + [f"s_add_u32 s{sSt}, s{sSt}, 1"]
    BARG = 2
    def build(order0):
        out = []; q = []; issued = list(order0)
        def need(tagname):
            idx = max(i for i, t in enumerate(issued) if t == tagname)
            return len(issued)-1-idx
        def push(tagname, lst): q.extend((tagname, x) for x in lst)
        lastN = [99]
        for k2 in range(2):
            if k2 == 0: push("x1", xrd(1))
            for n in range(NF):
                if k2 == 1 and n == BARG:
                    while q:
                        t, x = q.pop(0); out.append(x)
                        if t: issued.append(t)
                    out.append(f"s_waitcnt lgkmcnt(0)\n{tk(None)}\ns_barrier\n{tk(81)}")
                    issued.clear(); issued.extend(["done"])
                    push("x0", xrd(0))
                    for m in range(BARG): push(f"w{m}0", wrd(m, 0))
                reqs = [f"w{n}{k2}"] + ([f"x{k2}"] if n == 0 else [])
                for r in reqs: assert all(t != r for t, _ in q), (r, k2, n)
                ns = [need(r) for r in reqs if r in issued]
                if ns and n % 2 == 0 or ns and min(ns) < lastN[0]:
                    nxt = f"w{n+1}{k2}"
                    if nxt in issued and all(t != nxt for t, _ in q): ns.append(need(nxt))
                    N = min(min(ns), 15); out.append(f"s_waitcnt lgkmcnt({N})"); lastN[0] = N
                for x in mm(n, k2):
                    out.append(x)
                    if q:
                        t, y = q.pop(0); out.append(y)
                        if t: issued.append(t); lastN[0] += 1
                if k2 == 0:
                    push(f"w{n}1", wrd(n, 1))
                    if n == 3: push(None, ctl)
                    if n == NF-1: push(None, adr)
                elif n >= BARG: push(f"w{n}0", wrd(n, 0))
        while q:
            t, x = q.pop(0); out.append(x)
            if t: issued.append(t)
        return out, issued
    _, steady = build([])
    out, _ = build(steady)
    for x in out: e(x)
    e(f"s_cmp_lt_u32 s{sSt}, 8\ns_cbranch_scc1 Lc_{tag}")
    tkout()
eC, eK, eT = 8, 40, 56
comp_loop(0)
e("s_branch Lcle\nLcl1:")
comp_loop(1)
e("Lcle:")
tstamp(1)
e(f"""s_bfe_u32 s{sT2}, s{sW}, 0x10001
s_mul_i32 s{sT2}, s{sT2}, 448
s_add_u32 s{sT2}, s{sT2}, {CSUM}
s_and_b32 s{sT1}, s{sW}, 1
s_lshl_b32 s{sT1}, s{sT1}, 6
s_add_u32 s{sT1}, s{sT1}, s{sT2}
v_and_b32 v{vT3}, 48, v{vLane}
v_add_u32 v{vT3}, s{sT2}, v{vT3}
v_add_u32 v{vT0}, s{sT1}, v{vLane}
s_mov_b32 exec_lo, 0x00010001
s_mov_b32 exec_hi, 0x00010001
ds_write_b128 v{vT0}, {vr(cCs,4)}
ds_write_b128 v{vT0}, {vr(cCs+4,4)} offset:128
ds_write_b128 v{vT0}, {vr(cCs+8,4)} offset:256
s_bitcmp1_b32 s{sW}, 0
s_cbranch_scc1 Lnc3
ds_write_b128 v{vT0}, {vr(cCs+12,4)} offset:384
Lnc3:
s_mov_b64 exec, -1
s_waitcnt vmcnt(0) lgkmcnt(0)
s_barrier""")
for u in range(4): e(f"ds_read_b128 {vr(eK+4*u,4)}, v{cEs} offset:{256*u}")
for n in range(NF): e(f"ds_read_b128 {vr(eC+4*n,4)}, v{vT3} offset:{64*n}")
e("s_waitcnt lgkmcnt(6)")
for u in range(4): e(f"v_mul_f32 v{eT+u}, {f2u(0.25*1.4426950408889634/C1):#x}, v{eK+4*u+1}")
for u in range(4):
    for p in (0, 2): e(pk("v_pk_fma_f32", cA+28*u+p, [('b', eK+4*u), ('p', eC+p), ('p', cA+28*u+p)]))
for u in range(4):
    for p in (0, 2): e(pk("v_pk_mul_f32", cA+28*u+p, [('p', cA+28*u+p), ('b', eT+u)]))
for u in range(4):
    q = cA+28*u
    e(f"v_cvt_pk_bf16_f32 v{q}, v{q}, v{q+1}\nv_cvt_pk_bf16_f32 v{q+1}, v{q+2}, v{q+3}")
for u in range(4): e(f"ds_write_b64 v{cEq}, {vr(cA+28*u,2)} offset:{2048*(u>>1)+256*(u&1)}")
e("s_waitcnt lgkmcnt(0)\ns_barrier")
kv_rest("c")
GA = int(sys.argv[sys.argv.index("--ga")+1]) if "--ga" in sys.argv else -1
if GA >= 0:
    e(".p2align 3")
    for _ in range(GA): e("s_nop 0")
for u in range(4):
    g = cA+28*u+4; P = cA+28*(u & 2)+4
    gelu_tile(g, g+12, eC+4, eC+16, eK+4*u, eT, 12, [P+4*(p//2)+2*(u & 1)+(p & 1) for p in range(6)])
    if u & 1:
        e("s_nop 0")
        for t in range(3):
            e(f"v_permlane32_swap_b32 v{P+4*t}, v{P+4*t+2}\nv_permlane32_swap_b32 v{P+4*t+1}, v{P+4*t+3}")
        for t, so in enumerate((sC0, sC1, sC2)):
            e(f"buffer_store_dwordx4 {vr(P+4*t,4)}, v{cEh}, {sr(SWS,4)}, s{so} offen sc1")
        if u == 1: e(f"v_add_u32 v{cEh}, {88*1024}, v{cEh}")
stamp(2)
tflush(); TS.clear(); rt_out()
e("s_branch LF")

def cs_write(acc, slot_expr_sreg):
    e(f"""v_and_b32 v{vT0}, 1, v{vLane}
    v_lshlrev_b32 v{vT0}, 6, v{vT0}
    v_lshrrev_b32 v{vT1}, 4, v{vLane}
    v_lshl_add_u32 v{vT0}, v{vT1}, 4, v{vT0}
    v_add_u32 v{vT0}, {slot_expr_sreg}, v{vT0}
    s_mov_b32 exec_lo, 0x00030003
    s_mov_b32 exec_hi, 0x00030003
    ds_write_b128 v{vT0}, {vr(acc,4)}
    s_mov_b64 exec, -1""")
e("Lkvcu:")
entry_stamp(True)
e(tag_issue())
for x in kvx_dma(1): e(x)
late_srd(LS_A + LS_F)
e(f"""v_and_b32 v{vT0}, 31, v{vLane}
v_lshrrev_b32 v{vT1}, 1, v{vT0}
v_and_b32 v{vT1}, 7, v{vT1}
v_xor_b32 v{vT1}, v{vT1}, v{vH}
v_lshlrev_b32 v{vT0}, 7, v{vT0}
v_add_u32 v{vT0}, s{sXb}, v{vT0}""")
for ks in range(4):
    e(f"v_xor_b32 v{vT2}, {2*ks}, v{vT1}\nv_lshl_add_u32 v{vRX+ks}, v{vT2}, 4, v{vT0}")
e(f"""v_bfe_u32 v{vT0}, v{vLane}, 2, 2
v_lshl_add_u32 v{vT0}, v{vH}, 3, v{vT0}
v_bfe_u32 v{vT1}, v{vLane}, 4, 1
v_and_b32 v{vT2}, 3, v{vLane}
v_lshlrev_b32 v{vT2}, 3, v{vT2}
v_lshl_add_u32 v{vT3}, v{vT1}, 5, v{vT2}
v_lshl_add_u32 v{vRQ}, v{vT0}, 6, v{vT3}
v_lshlrev_b32 v{vT1}, 14, v{vT1}
v_lshl_add_u32 v{vRW}, v{vT0}, 5, v{vT2}
s_lshr_b32 s{sT0}, s{sW}, 2
s_lshl_b32 s{sT0}, s{sT0}, 13
s_add_u32 s{sT1}, s{sT0}, {WKV}
v_add3_u32 v{vRW}, v{vRW}, v{vT1}, s{sT1}
s_add_u32 s{sT1}, s{sT1}, s{sT0}
v_add_u32 v{vRQ}, s{sT1}, v{vRQ}
v_lshrrev_b32 v{vT0}, 2, v{vLane}
v_lshlrev_b32 v{vT0}, 10, v{vT0}
v_and_b32 v{vT1}, 3, v{vLane}
v_lshl_add_u32 v{vQa}, v{vT1}, 4, v{vT0}
v_bfe_u32 v{vT0}, v{vLane}, 4, 1
v_and_b32 v{vT1}, 15, v{vLane}
v_cmp_eq_u32 vcc, v{vT0}, v{vT1}
v_mov_b32 v{vT2}, 0x3f803f80
s_nop 0
v_cndmask_b32 v{vSel}, 0, v{vT2}, vcc""")
for k in range(1, 4): e(f"v_mov_b32 v{vSel+k}, v{vSel}")
for r in range(vCs, vCs+4): e(f"v_mov_b32 v{r}, 0")
e(f"s_waitcnt vmcnt(5) lgkmcnt(0)\ns_cmp_lt_u32 s{sW}, 4\ns_cbranch_scc1 Lkvr1")
rowstat_finish()
e("Lkvr1:\ns_barrier")
tstamp(12)
def kv_reads(c):
    r = []
    for ks in range(4):
        W = vWk + 16*(c & 1) + 4*ks
        r += [f"ds_read_b128 {vr(vXf+16*c+4*ks,4)}, v{vRX+ks} offset:{4096*c}"]
        r += tr(W, vRW, (64*c+16*ks)*32) + tr(W+2, vRW, (64*c+16*ks+4)*32)
    return r
def kstat_issue():
    return f"buffer_load_dwordx4 {vr(vSt,4)}, v{vWa0}, {sr(SWS,4)}, s{sC1} offen sc1"
for x in kv_reads(0) + kvx_dma(2) + kvx_dma(3): e(x)
e(f"""v_and_b32 v{vWa0}, 31, v{vLane}
v_lshlrev_b32 v{vWa0}, 4, v{vWa0}
s_lshl_b32 s{sT0}, s{sI}, 2
s_add_u32 s{sT0}, s{sT0}, s{sW4}
s_mul_i32 s{sC0}, s{sT0}, {KVT}
s_lshl_b32 s{sC1}, s{sT0}, 9
s_add_u32 s{sC1}, s{sC1}, {STATG}""")
for c in range(4):
    m = []
    for ks in range(4):
        X = vXf+16*c+4*ks; W = vWk + 16*(c & 1) + 4*ks
        z = "0" if c == 0 and ks == 0 else None
        m += [mfma(vAcc+16, W, X, z), mfma16(vCs, W, vSel), mfma(vAcc+32, X, W, z)]
    e("s_waitcnt lgkmcnt(0)")
    if c < 3:
        for x in m[:3] + [f"s_waitcnt vmcnt({8-4*c})"] + interleave(m[3:9], kv_reads(c+1)) + m[9:]: e(x)
        if c == 0:
            tag_wait("k", 8)
            e(f"s_cmp_lt_u32 s{sW}, 4\ns_cbranch_scc1 Lkvr2")
            rowstat_store()
            e("Lkvr2:")
    else:
        e(kstat_issue())
        for x in m: e(x)
tstamp(1)
e(f"""v_and_b32 v{vT2}, 31, v{vLane}
v_lshlrev_b32 v{vT2}, 2, v{vT2}
s_xor_b32 s{sT2}, s{sXb}, 65536
s_add_u32 s{sT1}, s{sXb}, 4352
s_lshl_b32 s{sQo}, s{sW}, 16
s_add_u32 s{sQo}, s{sQo}, {64*15}
s_lshl_b32 s{sMq}, s{sW}, 12
s_add_u32 s{sMq}, s{sMq}, {WKV}""")
cs_write(vCs, f"s{sT1}")
e(f"""v_add_u32 v{vT0}, s{sXb}, v{vL16}
v_add_u32 v{vWa1}, s{sT2}, v{vL16}
v_add_u32 v{vWa2}, s{sT2}, v{vT2}
v_lshl_add_u32 v{vT3}, v{vH}, 4, s{sXb}
s_cmp_ge_u32 s{sW}, 4
s_cbranch_scc1 LkvH""")
def wq_dma():
    for k in range(4):
        e(f"s_add_u32 m0, s{sMq}, {1024*k}\ns_add_u32 s{sT0}, s{sQo}, {16384*k}\nbuffer_load_dwordx4 v{vQa}, {sr(SWQ,4)}, s{sT0} offen lds")
def kstat_wait(tag):
    e(f"""s_mov_b32 s{sT0}, 0
    s_waitcnt vmcnt(0)
    Lks_{tag}:
    v_cmp_ne_u64 vcc, s[{sNo}:{sNo+1}], {vr(vSt+2,2)}
    s_add_u32 s{sT0}, s{sT0}, 1
    s_cmp_ge_u32 s{sT0}, 100000
    s_cbranch_vccz Lksd_{tag}
    s_cbranch_scc1 Lksd_{tag}
    {kstat_issue()}
    s_waitcnt vmcnt(0)
    s_branch Lks_{tag}
    Lksd_{tag}:""")
for q in range(4): e(f"ds_write_b128 v{vT0}, {vr(vAcc+32+4*q,4)} offset:{1024*q}")
e(f"v_xor_b32 v{vT1}, 0x10000, v{vT3}\ns_waitcnt lgkmcnt(0)\ns_barrier")
e(f"""ds_read_b128 {vr(vWk,4)}, v{vWa1}
ds_read_b128 {vr(vWk+4,4)}, v{vWa1} offset:1024
ds_read_b128 {vr(vSt+12,4)}, v{vT3} offset:{4352+64}
ds_read_b128 {vr(vSt+16,4)}, v{vT3} offset:{4352+96}
ds_read_b128 {vr(vWk+8,4)}, v{vT1} offset:{4352+64}
ds_read_b128 {vr(vWk+12,4)}, v{vT1} offset:{4352+96}""")
e(f"""v_and_b32 v{vT0}, 0x33, v{vLane}
v_bfe_u32 v{vT1}, v{vLane}, 2, 1
v_lshl_or_b32 v{vT0}, v{vT1}, 3, v{vT0}
v_bfe_u32 v{vT1}, v{vLane}, 3, 1
v_lshl_or_b32 v{vT0}, v{vT1}, 2, v{vT0}
v_lshlrev_b32 v{vT0}, 4, v{vT0}
s_waitcnt lgkmcnt(0)""")
for p in range(0, 8, 2):
    e(pk("v_pk_add_f32", vAcc+24+p, [('p', vAcc+24+p), ('p', vWk+p)]))
    e(pk("v_pk_add_f32", vSt+12+p, [('p', vSt+12+p), ('p', vWk+8+p)]))
kstat_wait("l")
e(f"v_sub_f32 v{vSt+4}, 0, v{vSt}")
lin_fold(vAcc+24, vSt+12, vSt+4, vSt+1, 8)
for p in range(4): e(f"v_cvt_pk_bf16_f32 v{vAcc+16+p}, v{vAcc+24+2*p}, v{vAcc+25+2*p}")
e(f"buffer_store_dwordx4 {vr(vAcc+16,4)}, v{vT0}, {sr(SWS,4)}, s{sC0} offen sc1\ns_branch LkvS")
e("LkvH:")
e(f"ds_write_b128 v{vT0}, {vr(vAcc+24,4)}\nds_write_b128 v{vT0}, {vr(vAcc+28,4)} offset:1024")
e(f"v_add_u32 v{vT1}, s{sXb}, v{vT2}\ns_waitcnt lgkmcnt(0)\ns_barrier")
e(f"ds_read_b32 v{vSt+6}, v{vT1} offset:4352\nds_read_b32 v{vSt+7}, v{vWa2} offset:4352")
for q in range(4): e(f"ds_read_b128 {vr(vAcc+48+4*q,4)}, v{vWa1} offset:{1024*q}")
tstamp(21)
kstat_wait("h")
tstamp(23)
e(f"ds_write_b32 v{vT1}, v{vSt} offset:4608\nds_write_b32 v{vT1}, v{vSt+1} offset:4736\ns_waitcnt lgkmcnt(0)")
for q in range(4):
    e(f"ds_read_b128 {vr(vWk+4*q,4)}, v{vT3} offset:{4608+32*q}\nds_read_b128 {vr(vWk+16+4*q,4)}, v{vT3} offset:{4736+32*q}")
e(f"v_add_f32 v{vSt+6}, v{vSt+6}, v{vSt+7}\nv_sub_f32 v{vSt+6}, 0, v{vSt+6}")
for p in range(0, 16, 2): e(pk("v_pk_add_f32", vAcc+32+p, [('p', vAcc+32+p), ('p', vAcc+48+p)]))
e("s_waitcnt lgkmcnt(0)")
for p in range(0, 16, 2): e(pk("v_pk_fma_f32", vAcc+32+p, [('p', vWk+p), ('b', vSt+6), ('p', vAcc+32+p)]))
for p in range(0, 16, 2): e(pk("v_pk_mul_f32", vAcc+32+p, [('p', vAcc+32+p), ('p', vWk+16+p)]))
for p in range(8): e(f"v_cvt_pk_bf16_f32 v{vAcc+32+p}, v{vAcc+32+2*p}, v{vAcc+33+2*p}")
v_lane_addr(vT0)
for p in range(8): e(f"v_mov_b32 v{vAcc+32+p}, 0x3f803f80")
e(f"""s_mov_b32 exec_lo, 0x1ffff
s_mov_b32 exec_hi, 0xffff
buffer_store_dwordx4 {vr(vAcc+32,4)}, v{vT0}, {sr(SWS,4)}, s{sC0} offen offset:1024 sc1
buffer_store_dwordx4 {vr(vAcc+36,4)}, v{vT0}, {sr(SWS,4)}, s{sC0} offen offset:{1024+528} sc1
s_mov_b64 exec, -1""")
tstamp(29)
e("LkvS:")
wq_dma()
for r in range(4): e(f"v_mov_b32 v{vCs+r}, 0")
e(f"s_lshl_b32 s{sT2}, s{sI}, 7\ns_add_u32 s{sT2}, s{sT2}, {KFLG}\ns_waitcnt vmcnt(4)\ns_barrier")
flag_set(sT2, "kv")
stamp(13)
tflush(); TS.clear(); rt_out()
e("s_waitcnt vmcnt(0)\ns_barrier")
def q_reads(c):
    r = []
    for ks in range(4):
        W = vWk + 16*(c & 1) + 4*ks
        r += tr(W, vRQ, (64*c+16*ks)*64) + tr(W+2, vRQ, (64*c+16*ks+4)*64)
    return r
for x in q_reads(0): e(x)
for c in range(4):
    m = []
    for ks in range(4):
        X = vXf+16*c+4*ks; W = vWk + 16*(c & 1) + 4*ks
        m += [mfma(vAcc, W, X, "0" if c == 0 and ks == 0 else None), mfma16(vCs, W, vSel)]
    e("s_waitcnt lgkmcnt(0)")
    for x in interleave(m[:4], q_reads(c+1) if c < 3 else []) + m[4:]: e(x)
e(f"""s_or_b32 s{sT2}, s{sXb}, {65536+8192}
s_lshr_b32 s{sT3}, s{sW}, 2
s_lshl_b32 s{sT3}, s{sT3}, 7
s_add_u32 s{sT1}, s{sT2}, s{sT3}
s_add_u32 s{sT1}, s{sT1}, 4096
v_add_u32 v{vWa1}, s{sT2}, v{vL16}
v_lshl_add_u32 v{vT3}, v{vH}, 4, s{sT2}
s_nop 3""")
cs_write(vCs, f"s{sT1}")
e(f"s_cmp_ge_u32 s{sW}, 4\ns_cbranch_scc1 LkvH2\ns_waitcnt lgkmcnt(0)\ns_barrier")
for q in range(4): e(f"ds_read_b128 {vr(vWk+4*q,4)}, v{vWa1} offset:{1024*q}")
cs_read(vAcc+48, 4096); cs_read(vWk+16, 4096+128)
e("s_waitcnt lgkmcnt(0)")
for p in range(0, 16, 2):
    e(pk("v_pk_add_f32", vAcc+p, [('p', vAcc+p), ('p', vWk+p)]))
    e(pk("v_pk_add_f32", vAcc+48+p, [('p', vAcc+48+p), ('p', vWk+16+p)]))
q_epilogue(vAcc+48)
a_init(); fin_init()
e("s_branch Lp2\nLkvH2:")
for q in range(4): e(f"ds_write_b128 v{vWa1}, {vr(vAcc+4*q,4)} offset:{1024*q}")
e(f"s_mov_b32 s{sKf}, {KFLG}")
e(flags_issue(sKf))
e("s_waitcnt lgkmcnt(0)\ns_barrier")
f_init()
flags_wait(sKf, "kv2", 0)
kv_dma("c")
e("s_waitcnt vmcnt(0)\ns_barrier\ns_branch LFkv")
e("Lkvwait:")
stamp(16)
flags_wait(sKf, "kv", 0)
stamp(17)
kv_dma("b")
e("s_waitcnt vmcnt(0)")

AAL = 6 if "--a6" in sys.argv else 3
vm = []
def vtag(tag): vm.append(tag)
def vwait_s(tag):
    idx = max(i for i, t in enumerate(vm) if t == tag)
    return f"s_waitcnt vmcnt({min(63, len(vm)-1-idx)})"
def emit_seq(seq):
    for x in seq:
        if isinstance(x, list): emit_seq(x)
        elif isinstance(x, tuple): vtag(x[0]); e(x[1])
        elif callable(x): e(x())
        else: e(x)
e("Lp2:")
stamp(2)
e("s_waitcnt lgkmcnt(0)\ns_barrier")
stamp(3)
e(f"""s_setprio {3 if "--ap3" in sys.argv else 1}
ds_read_b128 {vr(aQ[0],4)}, v{vAq}
ds_read_b128 {vr(aK[0],4)}, v{vAk}
ds_read_b128 {vr(aQ[1],4)}, v{vAq} offset:1024
ds_read_b128 {vr(aK[1],4)}, v{vAk} offset:{KVT}
ds_read_b128 {vr(aVl[0],4)}, v{vAv}
ds_read_b128 {vr(aVh[0],4)}, v{vAv} offset:528
s_waitcnt lgkmcnt(4)""")
e(mfma(aS[0], aK[0], aQ[0], "0"))
e("s_waitcnt lgkmcnt(3)")
e(mfma(aS[1], aK[0], aQ[1], "0"))
e("s_nop 9")
for b in range(2):
    t = vT0+2*b; S = aS[b]
    e(f"v_max3_f32 v{t}, v{S}, v{S+1}, v{S+2}")
    for p in range(3, 15, 2): e(f"v_max3_f32 v{t}, v{t}, v{S+p}, v{S+p+1}")
    e(f"v_max_f32 v{t}, v{t}, v{S+15}\nv_mov_b32 v{t+1}, v{t}")
e(f"""s_nop 1
v_permlane32_swap_b32 v{vT0}, v{vT1}
v_permlane32_swap_b32 v{vT2}, v{vT3}
s_mov_b32 s{sSt}, 0
v_max_f32 v{vT0}, v{vT0}, v{vT1}
v_max_f32 v{vT2}, v{vT2}, v{vT3}""")
for b in range(2):
    e(f"v_sub_f32 v{aC[b]}, 0, v{vT0+2*b}\nv_sub_f32 v{aC[b]+1}, 0, v{vT0+2*b}")
for r in range(16): e(f"v_sub_f32 v{aS[0]+r}, v{aS[0]+r}, v{vT0}")
for b in (1, 0):
    for r in range(2, 16, 2): e(f"v_mov_b64 {vr(aC[b]+r,2)}, {vr(aC[b],2)}")
stamp(5)
e(f"v_exp_f32 v{aS[0]}, v{aS[0]}\nv_exp_f32 v{aS[0]+1}, v{aS[0]+1}\ns_branch La1\n.p2align {AAL}\nLa0:")
for n in range(32):
    b = n & 1; T = n >> 1
    X = aS[b]; Y = aS[b ^ 1]
    ex = [f"v_exp_f32 v{X+i}, v{X+i}" for i in range(16)]
    Tp = (n-1) >> 1; Tn = (n+1) >> 1
    seq = ex[0:2] + [smf(aO[b ^ 1], aVh[Tp & 1], Y+8, vIdx)] + (["La1:"] if n == 0 else []) + ex[2:5]
    seq += [mfma(Y, aK[Tn & 1], aQ[b ^ 1], vr(aC[b ^ 1], 16))]
    if b:
        rd = [f"ds_read_b128 {vr(aVl[(T+1)&1],4)}, v{vAv} offset:{(T+1)*KVT}",
              f"ds_read_b128 {vr(aVh[(T+1)&1],4)}, v{vAv} offset:{(T+1)*KVT+528}",
              f"ds_read_b128 {vr(aK[T&1],4)}, v{vAk} offset:{(T+2)*KVT}"]
        seq += rd + ex[5:10]
    else: seq += ["s_waitcnt lgkmcnt(0)"] + ex[5:10]
    seq += [smf(aO[b], aVl[T & 1], X, vIdx)] + ex[10:16]
    for x in seq: e(x)
if PROF:
    e(f"s_memtime s[{sTm}:{sTm+1}]\ns_lshl_b32 s{sT0}, s{sSt}, 2\ns_add_u32 s{sT0}, s{sT0}, s{sPo}\ns_waitcnt lgkmcnt(0)\nv_mov_b32 v0, s{sTm}\nbuffer_store_dword v0, off, {sr(SWS,4)}, s{sT0} offset:72")
e(f"""v_add_u32 v{vAk}, {16*KVT}, v{vAk}
v_add_u32 v{vAv}, {16*KVT}, v{vAv}
s_add_u32 s{sSt}, s{sSt}, 1
s_cmp_eq_u32 s{sSt}, 1
s_cbranch_scc0 La2
{'' if PROF else 's_waitcnt vmcnt(0)'}
s_barrier
s_branch La0
La2:
s_cmp_lt_u32 s{sSt}, 4
s_cbranch_scc1 La0""")
e(smf(aO[1], aVh[1], aS[1]+8, vIdx))
e(f"s_mov_b32 s{sC0}, {f2u(2.0**40):#x}\ns_mov_b32 s{sC1}, {f2u(2.0**126):#x}")
for b in range(2):
    O = aO[b]
    e(f"s_mov_b32 s{sRetry}, 0\nLfin{b}:")
    e(f"""v_rcp_f32 v{O+10}, v{O+8}
    v_max3_f32 v{vT1}, abs(v{O}), abs(v{O+1}), abs(v{O+2})
    v_max3_f32 v{vT1}, v{vT1}, abs(v{O+3}), abs(v{O+4})
    v_max3_f32 v{vT1}, v{vT1}, abs(v{O+5}), abs(v{O+6})
    v_max_f32 v{vT1}, v{vT1}, abs(v{O+7})
    v_cmp_nlt_f32 vcc, v{O+8}, s{sC0}
    v_cmp_nlt_f32 s[{sEx}:{sEx+1}], v{vT1}, s{sC1}""")
    for p in range(8): e(f"v_mul_f32 v{O+p}, v{O+p}, v{O+10}")
    e(f"s_or_b64 vcc, vcc, s[{sEx}:{sEx+1}]")
    for p in range(4): e(f"v_cvt_pk_bf16_f32 v{O+p}, v{O+2*p}, v{O+2*p+1}")
    for p in range(4): e(f"v_min_u32 v{O+p}, -2, v{O+p}")
    e(f"s_cbranch_vccnz Lfallback{b}\nLok{b}:")
    e(f"buffer_store_dwordx4 {vr(O,4)}, v{vL16}, {sr(SWS,4)}, s{sOp if b == 0 else sOp2} offen sc1")
stamp(6)
OSC = " sc1"
gX = [136, 140]; gG = [144, 176]; gR = [8, 40]
e(f"buffer_load_dwordx4 {vr(gX[0],4)}, v{vRa}, {sr(SX,4)}, s{sXf} offen")
e(f"buffer_load_dwordx4 {vr(gX[1],4)}, v{vRa}, {sr(SX,4)}, s{sXf2} offen")
e("s_waitcnt lgkmcnt(0)\ns_setprio 0\ns_barrier\ns_barrier")
stamp(8)
for tt in range(2):
    for q in range(8): e(f"ds_read_b128 {vr(gG[tt]+4*q,4)}, v{vRr} offset:{128*tt+XK*(q//2)+512*(q%2)}")
def sum4(r):
    for p in range(0, 8, 2):
        e(pk("v_pk_add_f32", r+p, [('p', r+p), ('p', r+8+p)]))
        e(pk("v_pk_add_f32", r+16+p, [('p', r+16+p), ('p', r+24+p)]))
    for p in range(0, 8, 2): e(pk("v_pk_add_f32", r+p, [('p', r+p), ('p', r+16+p)]))
for tt in range(2):
    G = gG[tt]
    e(f"s_waitcnt lgkmcnt({8*(1-tt)})")
    for p in range(8): e(f"v_add_f32 v{G+p}, v{G+p}, v{G+8+p}\nv_add_f32 v{G+16+p}, v{G+16+p}, v{G+24+p}")
    for p in range(8): e(f"v_add_f32 v{G+p}, v{G+p}, v{G+16+p}")
    for p in range(8): e(f"v_mul_f32 v{G+8+p}, {f2u(-1.4426950408889634):#x}, v{G+p}")
    for p in range(8): e(f"v_exp_f32 v{G+8+p}, v{G+8+p}")
    for p in range(8): e(f"v_add_f32 v{G+8+p}, 1.0, v{G+8+p}")
    for p in range(8): e(f"v_rcp_f32 v{G+8+p}, v{G+8+p}")
    e("s_waitcnt vmcnt(0)")
    for p in range(4): e(f"v_lshlrev_b32 v{G+16+2*p}, 16, v{gX[tt]+p}\nv_and_b32 v{G+17+2*p}, 0xffff0000, v{gX[tt]+p}")
    for p in range(8): e(f"v_mul_f32 v{G+p}, v{G+p}, v{G+8+p}")
stamp(9)
e("s_barrier")
for tt in range(2):
    for q in range(8): e(f"ds_read_b128 {vr(gR[tt]+4*q,4)}, v{vRr2} offset:{128*tt+XK*(q//2)+512*(q%2)}")
for tt in range(2):
    R = gR[tt]; G = gG[tt]
    e(f"s_waitcnt lgkmcnt({8*(1-tt)})")
    sum4(R)
    for p in range(0, 8, 2): e(pk("v_pk_fma_f32", R+p, [('p', R+p), ('p', G+p), ('p', G+16+p)]))
    for p in range(4): e(f"v_cvt_pk_bf16_f32 v{R+p}, v{R+2*p}, v{R+2*p+1}")
    e(f"buffer_store_dwordx4 {vr(R,4)}, v{vRa}, {sr(SOUT,4)}, s{sXf if tt == 0 else sXf2} offen{OSC}")
def the_end():
    stamp(11)
    if RT: e(f"s_waitcnt vmcnt(0)\ns_memrealtime s[100:101]\ns_waitcnt lgkmcnt(0)\nv_mov_b32 v0, s100\nbuffer_store_dword v0, off, {sr(SWS,4)}, s{sPo} offset:56")
the_end()
e("Lend:\ns_endpgm")

e("LFkv:")
kv_rest("k")
e("LF:")
tag_wait("f", 0)
e("s_setprio 0\ns_barrier")
flag_set(sHs, "h", 4)
RG = SP + [aslot(n) for n in range(4)]
def u_dma(m):
    srdw, row = (SWO, 64*m) if m < 8 else (SWD, 64*(m-8))
    return [f"s_add_u32 m0, s{sDm}, {RG[m % 7]}", f"s_add_u32 s{sT0}, s{sDo}, {row*1024}",
            (f"u{m}", f"buffer_load_dwordx4 v{vDa}, {sr(srdw,4)}, s{sT0} offen lds"),
            (f"u{m}", f"buffer_load_dwordx4 v{vDa2}, {sr(srdw,4)}, s{sT0} offen offset:1024 lds")]
def u_reads(m, F):
    a = RG[m % 7]; win = 1 if a >= SP[0] else 0; off = a - win*SP[0]
    r0, r1 = vRd+2*win, vRd+2*win+1
    return tr(F, r0, off) + tr(F+2, r0, off+1024) + tr(F+4, r1, off) + tr(F+6, r1, off+1024)
def h_loads(s):
    r = []
    if s % 4 == 0: r += [f"s_add_u32 s{sC0}, s{sHo}, {1024*s}", f"s_add_u32 s{sC1}, s{sC0}, {88*1024}"]
    for tt in range(2):
        r.append((f"h{s}", f"buffer_load_dwordx4 {vr(fH+8*(s % 6)+4*tt,4)}, v{vL16}, {sr(SWS,4)}, s{sC0 if tt == 0 else sC1} offen offset:{1024*(s%4)} sc1"))
    return r
for m in range(7): emit_seq(u_dma(m))
for m in range(8):
    e(vwait_s(f"u{m}"))
    for x in u_reads(m, fWo+8*m): e(x)
    e("s_waitcnt lgkmcnt(0)")
    emit_seq(u_dma(m+7))
tstamp(18)
e(flags_issue(sHc))
flags_wait(sHc, "h", 0)
tstamp(19)
for s in range(6): emit_seq(h_loads(s))
for x in u_reads(8, fWb[0]): e(x)
FB = int(sys.argv[sys.argv.index("--fb")+1]) if "--fb" in sys.argv else 15
for s in range(22):
    m = 8+s; W = fWb[s & 1]
    if s == FB:
        tstamp(20); e("s_barrier\ns_setprio 2"); tstamp(21)
    if s < 21:
        e(vwait_s(f"u{m+1}"))
        for x in u_reads(m+1, fWb[(s+1) & 1]): e(x)
        e("s_waitcnt lgkmcnt(4)")
    else: e("s_waitcnt lgkmcnt(0)")
    if m+7 < 30: emit_seq(u_dma(m+7))
    e(vwait_s(f"h{s}"))
    if s == 21: e(f"s_cmp_ge_u32 s{sW4}, 2\ns_cbranch_scc1 Lskip21")
    for tt in range(2):
        for ch in range(2 if "--nofm" not in sys.argv else 0): e(mfma(fA+32*tt+16*ch, W+4*ch, fH+8*(s % 6)+4*tt, "0" if s == 0 else None))
    if s+6 < 22: emit_seq(h_loads(s+6))
e("Lskip21:\ns_nop 8")
tstamp(22)
ORD = [7, 6, 5, 4, 3, 2, 1, 0] if M48 else [7, 6, 5, 4, 1, 0, 3, 2]
def o_load(k):
    tt, i = k & 1, k >> 1
    return f"buffer_load_dwordx4 {vr(opos(i)+4*tt,4)}, v{vL16}, {sr(SWS,4)}, s{(sOc, sOc2, sOc3, sOc4)[2*tt+(i>>2)]} offen offset:{1024*(i%4)} sc1"
def opos(i): return fO + 8*ORD.index(i)
zer = [f"v_mov_b64 {vr(fS+r,2)}, 0" for r in range(0, 64, 2)]
for q in range(16):
    e(f"ds_write_b128 v{vRw}, {vr(fA+4*q,4)} offset:{XB*(q//2)+XP*(q%2)}")
    if q >= 4: e(f"s_waitcnt lgkmcnt(4)\n{o_load(2*ORD[(q-4)//2]+(q & 1))}")
e("s_waitcnt lgkmcnt(0)\ns_barrier")
for k in range(12, 16): e(o_load(2*ORD[k//2]+(k & 1)))
tstamp(9)
def o_pair(i, tag, wait):
    B = opos(i)
    if wait is not None: e(f"s_waitcnt vmcnt({wait})")
    else: e(f"s_bitcmp1_b32 s{sSt}, {i}\ns_cbranch_scc0 Lon{tag}{i}")
    e(f"""v_max3_u32 v{vT1}, v{B}, v{B+1}, v{B+2}
    v_max3_u32 v{vT1}, v{vT1}, v{B+3}, v{B+4}
    v_max3_u32 v{vT1}, v{vT1}, v{B+5}, v{B+6}
    v_max_u32 v{vT1}, v{vT1}, v{B+7}
    v_cmp_eq_u32 vcc, s{sT1}, v{vT1}
    s_cbranch_vccnz Lon{tag}{i}
    s_bitset0_b32 s{sSt}, {i}""")
    for tt in range(2):
        for ch in range(2): e(mfma(fS+32*tt+16*ch, fWo+8*i+4*ch, B+4*tt))
    e(f"Lon{tag}{i}:")
def acc_chain(tt, ch): return [mfma(fS+32*tt+16*ch, fWo+8*i+4*ch, opos(i)+4*tt, "0" if n == 0 else None) for n, i in enumerate(ORD)]
def s_wr(tt, ch): return [f"ds_write_b128 v{vRw2+tt}, {vr(fS+32*tt+16*ch+4*q,4)} offset:{XB*(2*ch+q//2)+XP*(q%2)}" for q in range(4)]
e(f"v_mov_b32 v{vT1}, 0")
for n, x in enumerate(acc_chain(0, 0)):
    B = fO+8*n
    e(f"s_waitcnt vmcnt({14-2*n})\n{x}")
    for p in range(0, 8, 2): e(f"v_max3_u32 v{vT1}, v{vT1}, v{B+p}, v{B+p+1}")
e(f"v_cmp_eq_u32 vcc, -1, v{vT1}\ns_cbranch_vccnz Lor0")
c1, c2, c3 = acc_chain(0, 1), acc_chain(1, 0), acc_chain(1, 1)
for prev, c in (((0, 0), c1), ((0, 1), c2), ((1, 0), c3)):
    for x in [c[0], "s_nop 3", c[1], "s_nop 3", c[2]] + interleave(c[3:7], s_wr(*prev)) + c[7:]: e(x)
stamp(7)
e("s_nop 11")
for x in s_wr(1, 1): e(x)
e("Lsd:")
e("s_waitcnt lgkmcnt(0)\ns_barrier")
stamp(10); tflush(); TS.clear()
the_end()
e("s_endpgm")
e(f"Lor0:\ns_nop 8")
for x in zer: e(x)
e(f"s_mov_b32 s{sT0}, 0\ns_mov_b32 s{sSt}, 0xff\ns_mov_b32 s{sT1}, -1\ns_branch Lor2")
e("Lor:\ns_sleep 4")
for i in ORD:
    e(f"s_bitcmp1_b32 s{sSt}, {i}\ns_cbranch_scc0 Lorn{i}\n{o_load(2*i)}\n{o_load(2*i+1)}\nLorn{i}:")
e(f"""s_add_u32 s{sT0}, s{sT0}, 1
s_cmp_ge_u32 s{sT0}, 200000
s_cbranch_scc1 Lod
s_waitcnt vmcnt(0)
Lor2:""")
for i in ORD: o_pair(i, "b", None)
e(f"s_cmp_lg_u32 s{sSt}, 0\ns_cbranch_scc1 Lor\nLod:\ns_nop 6")
for tt in range(2):
    for ch in range(2):
        for x in s_wr(tt, ch): e(x)
e("s_branch Lsd")
for b in range(2):
    S = aS[0]; O = aO[b]; C = aC[b]; Q = aQ[b]
    e(f"""Lfallback{b}:
    s_cmp_lg_u32 s{sRetry}, 0
    s_cbranch_scc1 Lok{b}
    s_mov_b32 s{sRetry}, 1
    s_mov_b32 s{sSt}, 0
    v_mov_b32 v{vT1}, 0xff800000
    s_waitcnt lgkmcnt(0)
    Lfb1{b}:
    buffer_load_dwordx4 {vr(aK[0],4)}, v{vL16}, {sr(SWS,4)}, s{sSt} offen sc1
    s_waitcnt vmcnt(0)""")
    e(mfma(S, aK[0], Q, "0"))
    e("s_nop 11")
    for p in range(0, 16, 2): e(f"v_max3_f32 v{vT1}, v{vT1}, v{S+p}, v{S+p+1}")
    e(f"""s_add_u32 s{sSt}, s{sSt}, {KVT}
    s_cmp_lt_u32 s{sSt}, {64*KVT}
    s_cbranch_scc1 Lfb1{b}
    v_mov_b32 v{vT2}, v{vT1}
    s_nop 1
    v_permlane32_swap_b32 v{vT1}, v{vT2}
    s_nop 1
    v_max_f32 v{vT1}, v{vT1}, v{vT2}""")
    for r in range(16): e(f"v_sub_f32 v{C+r}, 0, v{vT1}")
    for r in range(12): e(f"v_mov_b32 v{O+r}, 0")
    e(f"""v_subrev_u32 v{vT0}, {64*KVT}, v{vAv}
    s_mov_b32 s{sSt}, 0
    Lfb2{b}:
    buffer_load_dwordx4 {vr(aK[0],4)}, v{vL16}, {sr(SWS,4)}, s{sSt} offen sc1
    buffer_load_dwordx4 {vr(aVl[0],4)}, v{vT0}, {sr(SWS,4)}, s{sSt} offen sc1
    buffer_load_dwordx4 {vr(aVh[0],4)}, v{vT0}, {sr(SWS,4)}, s{sSt} offen offset:528 sc1
    s_waitcnt vmcnt(0)""")
    e(mfma(S, aK[0], Q, vr(C, 16)))
    e("s_nop 11")
    for i in range(16): e(f"v_exp_f32 v{S+i}, v{S+i}")
    e("s_nop 1")
    e(smf(O, aVl[0], S, vIdx)); e(smf(O, aVh[0], S+8, vIdx))
    e(f"""s_add_u32 s{sSt}, s{sSt}, {KVT}
    s_cmp_lt_u32 s{sSt}, {64*KVT}
    s_cbranch_scc1 Lfb2{b}
    s_nop 9
    s_branch Lfin{b}""")
e("Lcodeend:")

L += ['.section .rodata,"a"', ".p2align 6", f".amdhsa_kernel {NAME}_kernel",
      "  .amdhsa_next_free_vgpr 256", "  .amdhsa_next_free_sgpr 102", "  .amdhsa_accum_offset 256",
      "  .amdhsa_group_segment_fixed_size 0", "  .amdhsa_kernarg_size 96", "  .amdhsa_user_sgpr_count 2",
      "  .amdhsa_user_sgpr_kernarg_segment_ptr 1", "  .amdhsa_system_sgpr_workgroup_id_x 1", ".end_amdhsa_kernel"]
open(OUT, "w").write("\n".join(L) + "\n")
print("wrote", OUT, len(L), "lines")
```

```python
import sys, struct
NAME = "recurrent_scan__grouped_kv_mqa__geglu_ffn__prompt"
PROF = "--prof" in sys.argv
OUT = [a for a in sys.argv[1:2] if not a.startswith("--")]
OUT = OUT[0] if OUT else f"cdna_kernels/{NAME}.s"

L = []
def e(s):
    for ln in s.split("\n"):
        if not ln.strip(): continue
        L.append(("    " + ln.strip()) if not ln.strip().endswith(":") else ln.strip())
def f2u(x): return struct.unpack("<I", struct.pack("<f", x))[0]
def vr(a, n): return f"v[{a}:{a+n-1}]"
def sr(a, n): return f"s[{a}:{a+n-1}]"

KVT = 2080
KVIMG = 0
HIMG = 135168
OIMG = HIMG + 64*88*1024
HFLG = OIMG + 64*32*1024
KFLG = HFLG + 256*128
STATG = KFLG + 16*128
PROFO = STATG + 2048*16
WS_BYTES = PROFO + 256*8*256
CNT_KV = 0
KVRDY = 128
STG = 45056
XOFF, GOFF, UOFF, QOFF = 0, 16384, 28672, 40960
STGK, QOFFK, NBK = 24832, 20736, 5
QIMG = 135168
STATM = 160768
CSUM = 162816
MRX = 159744
STL = 163712
FLAG = 163776
LDS_BYTES = 163840
SX, SWQ, SWK, SWV, SWO, SWG, SWD, SOUT, SDBG, SWS = 4, 8, 12, 16, 20, 24, 28, 32, 36, 40
sI, sJ, sW, sW4 = 44, 45, 46, 47
sXo, sWo, sQo, sLb = 48, 49, 50, 51
sMx, sMw, sMq = 52, 53, 54
sSt, sDl, sT0, sT1, sT2, sT3 = 55, 56, 57, 58, 59, 60
sTB, sCS, sRetry, sRb = 61, 62, 63, 3
sEx = 88
sTm = 90
sPo = 92
sC0, sC1, sC2, sC3 = 94, 95, 96, 97
sOp = 98
TOUCH = int("--touch" in sys.argv)
vLane, vH, vT0, vT1, vT2, vT3 = 1, 2, 3, 4, 5, 6
vXa0, vXa1, vWa0, vWa1, vWa2, vQa = 7, 8, 9, 10, 11, 12
vRX = 13
vRW, vRQ = 17, 18
vSel = 20
vCs = 24
vF = 32
vAcc = 96
vSt = 160
aQ = [8, 12]; aK = [16, 20]; aVl = [24, 28]; aVh = [32, 36]; aS = [40, 56]; aC = [72, 88]; aO = [104, 120]
fA, fWo, fWb, fH, fX, fG = 8, 72, [136, 144], 152, 200, 204
fS, fO, fR = 136, 8, 8
vIdx, vAk, vAv, vDa, vL16, vRa = 240, 241, 242, 243, 244, 245
vPoll = 246
vRd = 248
vRw, vRr, vRr2, vDa2 = 252, 253, 254, 255
vRw2 = 238
vAq = 237
sKq, sTt, sHo, sDo, sDm, sHc, sXf, sOc, sOc2, sHs = 64, 65, 66, 67, 68, 69, 70, 71, 72, 73
sOc3, sOc4, sOp2 = 80, 81, 99
sXf2 = 64
sNo = 86
sRow, sKf = 63, 85
ASL = 8320
XB, XK, XP = 8512, 2112, 1056
XF0, XS0, XS1 = 34048, 0, 102144
def aslot(n): return ASL*n
SP = [135168, 143360, 151552]

nstamp = [0]
DBGT = "--dbgt" in sys.argv
DT = {0: 75, 12: 76, 1: 77, 2: 78, 3: 79, 6: 80, 9: 81, 7: 82, 11: 83}
PAD = (int(sys.argv[sys.argv.index("--pad")+1]), int(sys.argv[sys.argv.index("--pad")+2])) if "--pad" in sys.argv else None
npad = [0]
PADB = sNo if "--padg" in sys.argv else 100
def stamp(k):
    if PAD and PAD[0] == k:
        npad[0] += 1
        e(f"Lpad{npad[0]}:\ns_memrealtime s[{sTm}:{sTm+1}]\ns_waitcnt lgkmcnt(0)\ns_sub_u32 s{sTm}, s{sTm}, s{PADB}\ns_sleep 8\ns_cmp_lt_u32 s{sTm}, {PAD[1]}\ns_cbranch_scc1 Lpad{npad[0]}")
    if DBGT and k in DT:
        e(f"s_memrealtime s[{sTm}:{sTm+1}]\ns_waitcnt lgkmcnt(0)\ns_sub_u32 s{DT[k]}, s{sTm}, s100")
        if k == 11:
            e(f"s_memtime s[{sTm}:{sTm+1}]\ns_waitcnt lgkmcnt(0)\ns_sub_u32 s84, s{sTm}, s92")
            e(f"s_cmp_lg_u32 s2, 64\ns_cbranch_scc1 Lend\ns_cmp_lg_u32 s{sW}, 4\ns_cbranch_scc1 Lend")
            for n, r in enumerate(range(75, 85)):
                e(f"v_mov_b32 v0, s{r}\nbuffer_store_dword v0, off, {sr(SDBG,4)}, 0 offset:{4+4*n}\ns_nop 1")
    if not PROF: return
    e(f"""s_memtime s[{sTm}:{sTm+1}]
    s_waitcnt lgkmcnt(0)
    v_mov_b32 v0, s{sTm}
    buffer_store_dword v0, off, {sr(SWS,4)}, s{sPo} offset:{4*k}""")
    if k in RTS:
        e(f"""s_memrealtime s[{sTm}:{sTm+1}]
        s_waitcnt lgkmcnt(0)
        v_mov_b32 v0, s{sTm}
        buffer_store_dword v0, off, {sr(SWS,4)}, s{sPo} offset:{4*RTS[k]}""")
RTS = {12: 24, 1: 25, 5: 26, 6: 27, 11: 28}

TS = []
def tstamp(k):
    if not PROF: return
    r = 74 + len(TS); TS.append((k, r))
    e(f"s_memtime s[{sTm}:{sTm+1}]\ns_waitcnt lgkmcnt(0)\ns_mov_b32 s{r}, s{sTm}")
def tflush():
    for k, r in TS: e(f"v_mov_b32 v0, s{r}\nbuffer_store_dword v0, off, {sr(SWS,4)}, s{sPo} offset:{4*k}\ns_nop 1")
def tick(acc):
    if not PROF or "--notick" in sys.argv: return ""
    r = f"s_memtime s[{sTm}:{sTm+1}]\ns_waitcnt lgkmcnt(0)\n"
    if acc is not None: r += f"s_sub_u32 s99, s{sTm}, s99\ns_add_u32 s{acc}, s{acc}, s99\n"
    return r + f"s_mov_b32 s99, s{sTm}"

def interleave(main, fill):
    out = []; n = len(main); m = len(fill); k = 0
    for i, a in enumerate(main):
        out.append(a)
        t = (m * (i + 1)) // n
        out += fill[k:t]; k = t
    return out

def mfma(d, a, b, c=None):
    c = vr(d, 16) if c is None else c
    return f"v_mfma_f32_32x32x16_bf16 {vr(d,16)}, {vr(a,4)}, {vr(b,4)}, {c}"
def mfma16(d, a, b): return f"v_mfma_f32_16x16x32_bf16 {vr(d,4)}, {vr(a,4)}, {vr(b,4)}, {vr(d,4)}"
def smf(d, a, b, idx): return f"v_smfmac_f32_32x32x32_bf16 {vr(d,16)}, {vr(a,4)}, {vr(b,8)}, v{idx}"

TK = PROF and "--tk" in sys.argv
def tk(acc):
    if not TK: return ""
    r = f"s_memtime s[{sTm}:{sTm+1}]\ns_waitcnt lgkmcnt(0)\n"
    if acc is not None: r += f"s_sub_u32 s82, s{sTm}, s82\ns_add_u32 s{acc}, s{acc}, s82\n"
    return r + f"s_mov_b32 s82, s{sTm}"
def tkout():
    if TK: e(f"v_mov_b32 v0, s80\nbuffer_store_dword v0, off, {sr(SWS,4)}, s{sPo} offset:{4*29}\ns_nop 1\nv_mov_b32 v0, s81\nbuffer_store_dword v0, off, {sr(SWS,4)}, s{sPo} offset:{4*30}")
def tr(d, a, off): return [f"ds_read_b64_tr_b16 {vr(d,2)}, v{a} offset:{off}"]
def tag_issue(): return f"buffer_load_dwordx2 {vr(vPoll,2)}, off, {sr(SDBG,4)}, 0 sc1"
def tag_wait(tag, first_wait):
    e(f"""s_mov_b32 s{sT0}, 0
    s_waitcnt vmcnt({first_wait})
    Ltag_{tag}:
    v_readfirstlane_b32 s{sNo}, v{vPoll}
    v_readfirstlane_b32 s{sNo+1}, v{vPoll+1}
    s_add_u32 s{sT0}, s{sT0}, 1
    s_cmp_lg_u32 s{sNo}, 0
    s_cbranch_scc1 Ltagd_{tag}
    s_cmp_ge_u32 s{sT0}, 100000
    s_cbranch_scc1 Ltagd_{tag}
    s_sleep 1
    {tag_issue()}
    s_waitcnt vmcnt(0)
    s_branch Ltag_{tag}
    Ltagd_{tag}:""")
def flags_issue(base):
    return f"""v_and_b32 v{vPoll}, 15, v{vLane}
    v_lshlrev_b32 v{vPoll}, 7, v{vPoll}
    buffer_load_dwordx2 {vr(vPoll,2)}, v{vPoll}, {sr(SWS,4)}, s{base} offen sc1"""
def h_poll_issue(): return flags_issue(sHc)
def flags_wait(base, tag, first_wait):
    e(f"""s_mov_b32 s{sT0}, 0
    s_waitcnt vmcnt({first_wait})
    Lfw_{tag}:
    v_cmp_ne_u64 vcc, s[{sNo}:{sNo+1}], {vr(vPoll,2)}
    s_add_u32 s{sT0}, s{sT0}, 1
    s_cmp_ge_u32 s{sT0}, 100000
    s_cbranch_vccz Lfwd_{tag}
    s_cbranch_scc1 Lfwd_{tag}
    s_sleep 3
    {flags_issue(base)}
    s_waitcnt vmcnt(0)
    s_branch Lfw_{tag}
    Lfwd_{tag}:""")
def flag_set(off_sreg, tag, wave=0):
    e(f"""s_cmp_lg_u32 s{sW}, {wave}
    s_cbranch_scc1 Lsig_{tag}
    v_mov_b32 v{vPoll}, s{sNo}
    v_mov_b32 v{vPoll+1}, s{sNo+1}
    s_mov_b64 exec, 1
    buffer_store_dwordx2 {vr(vPoll,2)}, off, {sr(SWS,4)}, s{off_sreg} sc1
    s_mov_b64 exec, -1
    Lsig_{tag}:""")

hdr = open(f"cdna_kernels/{NAME}.s.ref").read().split("\n")
hdr = [h for h in hdr[:15] if h.startswith(";") and "@launch" not in h]
L += hdr
L.append(f"; @launch grid=(256,1,1) block=(512,1,1) lds={LDS_BYTES}")
L += ['.amdgcn_target "amdgcn-amd-amdhsa--gfx950"', ".text", f".globl {NAME}_kernel", ".p2align 8",
      f".type {NAME}_kernel,@function"]
e(f"{NAME}_kernel:")
RT = PROF
if RT: e("s_memrealtime s[100:101]\ns_memtime s[98:99]")
if DBGT or PAD: e("s_memrealtime s[100:101]\ns_memtime s[92:93]")
MAP84 = f"""s_and_b32 s{sI}, s{sT0}, 1
s_lshl_b32 s{sI}, s{sI}, 3
s_and_b32 s{sT2}, s{sT1}, 7
s_add_u32 s{sI}, s{sI}, s{sT2}
s_lshr_b32 s{sJ}, s{sT0}, 1
s_lshl_b32 s{sJ}, s{sJ}, 2
s_lshr_b32 s{sT3}, s{sT1}, 3
s_add_u32 s{sJ}, s{sJ}, s{sT3}
s_sub_u32 s{sJ}, 15, s{sJ}
s_and_b32 s{sTB}, s{sT0}, 3
s_lshl_b32 s{sTB}, s{sTB}, 3
s_add_u32 s{sTB}, s{sTB}, s{sT2}
s_lshr_b32 s{sCS}, s{sT0}, 2
s_lshl_b32 s{sCS}, s{sCS}, 2
s_add_u32 s{sCS}, s{sCS}, s{sT3}"""
MAP48 = f"""s_lshr_b32 s{sT2}, s{sT0}, 1
s_lshl_b32 s{sI}, s{sT2}, 2
s_and_b32 s{sT3}, s{sT1}, 3
s_add_u32 s{sI}, s{sI}, s{sT3}
s_lshl_b32 s{sTB}, s{sT2}, 3
s_and_b32 s{sT3}, s{sT1}, 7
s_add_u32 s{sTB}, s{sTB}, s{sT3}
s_and_b32 s{sT0}, s{sT0}, 1
s_lshl_b32 s{sJ}, s{sT0}, 3
s_lshr_b32 s{sT3}, s{sT1}, 2
s_add_u32 s{sJ}, s{sJ}, s{sT3}
s_sub_u32 s{sJ}, 15, s{sJ}
s_lshl_b32 s{sCS}, s{sT0}, 2
s_lshr_b32 s{sT3}, s{sT1}, 3
s_add_u32 s{sCS}, s{sCS}, s{sT3}"""
M48 = "--m48" in sys.argv
MAP = MAP48 if M48 else MAP84
PFC = "" if "--nopfc" in sys.argv else f"""s_cmp_lg_u32 s{sW}, 7
s_cbranch_scc1 Lnop0
s_getpc_b64 s[94:95]
Lpc0:
s_bfe_u32 s{sT0}, s2, 0x20003
s_lshl_b32 s{sT0}, s{sT0}, 13
v_lshl_add_u32 v{vT1}, v{vLane}, 7, s{sT0}
v_min_u32 v{vT1}, Lcodeend-Lpc0-4, v{vT1}
global_load_dword v223, v{vT1}, s[94:95]"""
e(f"""s_cmp_ge_u32 s2, 256
s_cbranch_scc1 Lend
s_load_dwordx2 s[{SX}:{SX+1}], s[0:1], 0
s_load_dwordx2 s[{SWG}:{SWG+1}], s[0:1], 48
s_load_dwordx2 s[{SWQ}:{SWQ+1}], s[0:1], 8
s_load_dwordx2 s[{SWV}:{SWV+1}], s[0:1], 24
s_load_dwordx2 s[{SDBG}:{SDBG+1}], s[0:1], 80
s_load_dwordx2 s[{SWS}:{SWS+1}], s[0:1], 88
v_and_b32 v{vLane}, 63, v0
v_lshrrev_b32 v{vT0}, 6, v0
v_lshrrev_b32 v{vH}, 5, v{vLane}
v_readfirstlane_b32 s{sW}, v{vT0}
{PFC}
Lnop0:
s_and_b32 s{sT0}, s2, 7
s_lshr_b32 s{sT1}, s2, 3
{MAP}
s_and_b32 s{sW4}, s{sW}, 3
v_lshrrev_b32 v{vT0}, 3, v{vLane}
v_lshlrev_b32 v{vT0}, 10, v{vT0}
v_and_b32 v{vT1}, 7, v{vLane}
v_lshrrev_b32 v{vT2}, 4, v{vLane}
v_xor_b32 v{vT1}, v{vT1}, v{vT2}
v_lshl_add_u32 v{vXa0}, v{vT1}, 4, v{vT0}
v_xor_b32 v{vXa1}, 64, v{vXa0}
v_add_u32 v{vXa1}, {8192-1024}, v{vXa1}
v_lshlrev_b32 v{vL16}, 4, v{vLane}
s_lshl_b32 s{sXo}, s{sI}, 17
s_lshl_b32 s{sT0}, s{sW4}, 15
s_add_u32 s{sXo}, s{sXo}, s{sT0}
s_lshl_b32 s{sRow}, s{sI}, 4
s_add_u32 s{sRow}, s{sRow}, s{sJ}
s_lshl_b32 s{sRow}, s{sRow}, 2
s_add_u32 s{sRow}, s{sRow}, s{sW4}
s_cmp_eq_u32 s{sJ}, 15
s_cselect_b32 s{sT0}, 16, 56
s_load_dwordx2 s[{SWK}:{SWK+1}], s[0:1], s{sT0}
s_mov_b32 s{sT1}, {512*2752}
s_cselect_b32 s{SWK+2}, 16384, s{sT1}
s_mov_b32 s{SWK+3}, 0x20000""")
SWU = SWK
vRs = 144
for d, nbytes in ((SX, 2048*1024), (SWG, 512*2752), (SWQ, 512*1024), (SWV, 16384), (SDBG, 256), (SWS, WS_BYTES)):
    e(f"s_mov_b32 s{d+2}, {nbytes}\ns_mov_b32 s{d+3}, 0x20000")
def late_srd(lst):
    for d, off, nbytes in lst:
        e(f"s_load_dwordx2 s[{d}:{d+1}], s[0:1], {off}\ns_mov_b32 s{d+2}, {nbytes}\ns_mov_b32 s{d+3}, 0x20000")
LS_A = [(SOUT, 72, 2048*1024)]; LS_F = [(SWO, 32, 512*1024), (SWD, 64, 1376*1024)]
def entry_stamp(defer=False):
    if PROF:
        e(f"s_lshl_b32 s{sPo}, s2, 3\ns_add_u32 s{sPo}, s{sPo}, s{sW}\ns_lshl_b32 s{sPo}, s{sPo}, 8\ns_add_u32 s{sPo}, s{sPo}, {PROFO}")
    if defer: tstamp(0); return
    stamp(0); rt_out()
def rt_out():
    if RT: e(f"s_nop 1\nv_mov_b32 v0, s100\nbuffer_store_dword v0, off, {sr(SWS,4)}, s{sPo} offset:60\ns_nop 1\nv_mov_b32 v0, s98\nbuffer_store_dword v0, off, {sr(SWS,4)}, s{sPo} offset:16")
def row_loads():
    e(f"""s_lshl_b32 s{sT1}, s{sRow}, 11
    buffer_load_dwordx4 {vr(vRs,4)}, v{vL16}, {sr(SX,4)}, s{sT1} offen
    buffer_load_dwordx4 {vr(vRs+4,4)}, v{vL16}, {sr(SX,4)}, s{sT1} offen offset:1024""")
WKV = 131072
vXf, vWk = 32, 192
sXb = sMw
def kvx_dma(c):
    return [f"""s_add_u32 m0, s{sXb}, {4096*c+2048*hf}
        s_add_u32 s{sT0}, s{sXo}, {128*c+16384*hf}
        buffer_load_dwordx4 v{vXa0}, {sr(SX,4)}, s{sT0} offen lds
        buffer_load_dwordx4 v{vXa1}, {sr(SX,4)}, s{sT0} offen offset:1024 lds""" for hf in range(2)]
e(f"""s_cselect_b32 s{sT2}, 1, 0
s_cmp_lt_u32 s{sW}, 4
s_cbranch_scc1 Lnorow
s_waitcnt lgkmcnt(0)""")
row_loads()
e(f"""s_cmp_eq_u32 s{sJ}, 15
s_cbranch_scc0 Lcomp
Lnorow:
s_cmp_eq_u32 s{sJ}, 15
s_cbranch_scc0 Lhelp
s_memrealtime s[{sTm}:{sTm+1}]
s_lshl_b32 s{sXb}, s{sW}, 14
s_lshr_b32 s{sT3}, s{sW}, 2
s_lshl_b32 s{sT0}, s{sT3}, 9
s_add_u32 s{sXo}, s{sXo}, s{sT0}
s_or_b32 s{sT0}, s2, s{sW}
s_cmp_lg_u32 s{sT0}, 0
s_waitcnt lgkmcnt(0)
s_cbranch_scc1 Lnotag
s_or_b32 s{sTm}, s{sTm}, 1
v_mov_b32 v{vPoll}, s{sTm}
v_mov_b32 v{vPoll+1}, s{sTm+1}
s_mov_b64 exec, 1
buffer_store_dwordx2 {vr(vPoll,2)}, off, {sr(SDBG,4)}, 0 sc1
s_mov_b64 exec, -1
Lnotag:
s_lshl_b32 s{sT0}, s{sW}, 11
s_add_u32 m0, s{sT0}, {WKV}
s_nop 0
buffer_load_dwordx4 v{vL16}, {sr(SWV,4)}, s{sT0} offen lds
buffer_load_dwordx4 v{vL16}, {sr(SWV,4)}, s{sT0} offen offset:1024 lds
s_add_u32 m0, s{sT0}, {WKV+16384}
s_nop 0
buffer_load_dwordx4 v{vL16}, {sr(SWK,4)}, s{sT0} offen lds
buffer_load_dwordx4 v{vL16}, {sr(SWK,4)}, s{sT0} offen offset:1024 lds""")
for x in kvx_dma(0): e(x)
e("s_branch Lkvcu\nLhelp:")

def v_lane_addr(d):
    e(f"""v_and_b32 v{d}, 15, v{vLane}
    v_lshlrev_b32 v{d}, 4, v{d}
    v_lshl_add_u32 v{d}, v{vH}, 8, v{d}
    s_mov_b32 exec_lo, 0xffff0000
    s_mov_b32 exec_hi, 0xffff0000
    v_mov_b32 v{d}, 512""")
def fin_init():
    e(f"""s_lshl_b32 s{sT0}, s{sTB}, 16
    s_lshl_b32 s{sT1}, s{sCS}, 7
    s_add_u32 s{sT0}, s{sT0}, s{sT1}
    s_lshl_b32 s{sT1}, s{sW4}, 14
    s_add_u32 s{sXf}, s{sT0}, s{sT1}
    s_add_u32 s{sXf2}, s{sXf}, 8192
    v_lshrrev_b32 v{vT0}, 3, v{vLane}
    v_and_b32 v{vT1}, 7, v{vLane}
    v_lshlrev_b32 v{vRa}, 10, v{vT0}
    v_lshl_add_u32 v{vRa}, v{vT1}, 4, v{vRa}
    v_bfe_u32 v{vT1}, v{vLane}, 1, 2
    v_mul_u32_u24 v{vT1}, {XB}, v{vT1}
    v_lshl_add_u32 v{vT0}, v{vT0}, 4, v{vT1}
    v_and_b32 v{vT1}, 1, v{vLane}
    v_mul_u32_u24 v{vT1}, {XP}, v{vT1}
    s_and_b32 s{sT0}, s{sW4}, 1
    s_lshl_b32 s{sT0}, s{sT0}, 8
    v_add3_u32 v{vT0}, v{vT0}, v{vT1}, s{sT0}
    s_lshr_b32 s{sT0}, s{sW4}, 1
    s_mul_i32 s{sT1}, s{sT0}, {4*XB}
    s_add_u32 s{sT1}, s{sT1}, {XF0}
    v_add_u32 v{vRr}, s{sT1}, v{vT0}
    s_mul_i32 s{sT1}, s{sT0}, {XS1}
    v_add_u32 v{vRr2}, s{sT1}, v{vT0}""")
def a_init(zero=True):
    e(f"""s_lshl_b32 s{sT0}, s{sI}, 2
    s_add_u32 s{sT0}, s{sT0}, s{sW4}
    s_lshl_b32 s{sT0}, s{sT0}, 5
    s_lshr_b32 s{sT1}, s{sJ}, 1
    s_add_u32 s{sT0}, s{sT0}, s{sT1}
    s_and_b32 s{sT1}, s{sJ}, 1
    s_lshl_b32 s{sT1}, s{sT1}, 4
    s_add_u32 s{sT0}, s{sT0}, s{sT1}
    s_lshl_b32 s{sT0}, s{sT0}, 10
    s_add_u32 s{sOp}, s{sT0}, {OIMG}
    s_add_u32 s{sOp2}, s{sOp}, 8192
    v_mov_b64 v[232:233], -1
    v_mov_b64 v[234:235], -1
    buffer_store_dwordx4 v[232:235], v{vL16}, {sr(SWS,4)}, s{sOp} offen sc1
    buffer_store_dwordx4 v[232:235], v{vL16}, {sr(SWS,4)}, s{sOp2} offen sc1""")
    v_lane_addr(vAv)
    e(f"""s_mov_b32 exec_lo, 0xffee0000
    s_mov_b32 exec_hi, 0xffee0000
    v_mov_b32 v{vAv}, 0x4000000
    s_mov_b64 exec, -1
    v_add_u32 v{vAv}, 1024, v{vAv}
    v_mov_b32 v{vAk}, v{vL16}
    v_mov_b32 v{vIdx}, 0xdddd
    s_lshl_b32 s{sT0}, s{sW4}, 11
    s_add_u32 s{sT0}, s{sT0}, {QIMG}
    v_add_u32 v{vAq}, s{sT0}, v{vL16}""")
    if zero: a_zero()
def a_zero():
    for b in range(2):
        for r in range(0, 12, 2): e(f"v_mov_b64 {vr(aO[b]+r,2)}, 0")
def f_init():
    e(f"""v_lshrrev_b32 v{vT0}, 3, v{vLane}
    v_lshlrev_b32 v{vT0}, 10, v{vT0}
    v_and_b32 v{vT1}, 7, v{vLane}
    v_bfe_u32 v{vT2}, v{vLane}, 4, 1
    v_lshlrev_b32 v{vT2}, 2, v{vT2}
    v_xor_b32 v{vT1}, v{vT1}, v{vT2}
    v_lshl_add_u32 v{vDa}, v{vT1}, 4, v{vT0}
    v_add_u32 v{vDa2}, {8192-1024}, v{vDa}
    s_lshl_b32 s{sDo}, s{sW4}, 14
    s_lshl_b32 s{sT1}, s{sCS}, 7
    s_add_u32 s{sDo}, s{sDo}, s{sT1}
    s_lshl_b32 s{sDm}, s{sW4}, 11
    s_mul_i32 s{sHo}, s{sTB}, 176
    s_mul_i32 s{sT0}, s{sW4}, 22
    s_add_u32 s{sHo}, s{sHo}, s{sT0}
    s_lshl_b32 s{sHo}, s{sHo}, 10
    s_add_u32 s{sHo}, s{sHo}, {HIMG}
    s_lshl_b32 s{sT0}, s{sTB}, 3
    s_add_u32 s{sT0}, s{sT0}, s{sW4}
    s_lshl_b32 s{sT0}, s{sT0}, 13
    s_add_u32 s{sOc}, s{sT0}, {OIMG}
    s_add_u32 s{sOc2}, s{sOc}, 4096
    s_add_u32 s{sOc3}, s{sOc}, 32768
    s_add_u32 s{sOc4}, s{sOc}, {32768+4096}
    s_lshr_b32 s{sHc}, s{sTB}, 1
    s_lshl_b32 s{sHc}, s{sHc}, 11
    s_add_u32 s{sHc}, s{sHc}, {HFLG}
    s_lshl_b32 s{sHs}, s{sI}, 4
    s_add_u32 s{sHs}, s{sHs}, s{sJ}
    s_lshl_b32 s{sHs}, s{sHs}, 7
    s_add_u32 s{sHs}, s{sHs}, {HFLG}
    v_bfe_u32 v{vT0}, v{vLane}, 2, 2
    v_lshl_add_u32 v{vT0}, v{vH}, 2, v{vT0}
    v_lshlrev_b32 v{vT0}, 7, v{vT0}
    v_bfe_u32 v{vT1}, v{vLane}, 4, 1
    v_lshl_add_u32 v{vT0}, v{vT1}, 5, v{vT0}
    v_and_b32 v{vT1}, 3, v{vLane}
    v_lshl_add_u32 v{vT0}, v{vT1}, 3, v{vT0}
    v_bfe_u32 v{vT1}, v{vLane}, 3, 1
    v_lshl_add_u32 v{vT0}, v{vT1}, 6, v{vT0}
    v_add_u32 v{vRd}, s{sDm}, v{vT0}
    v_xor_b32 v{vRd+1}, 64, v{vRd}
    v_add_u32 v{vRd+2}, {SP[0]}, v{vRd}
    v_add_u32 v{vRd+3}, {SP[0]}, v{vRd+1}
    s_mul_i32 s{sT0}, s{sW4}, {XK}
    v_add_u32 v{vRw2}, s{sT0}, v{vL16}
    v_add_u32 v{vRw}, {XF0}, v{vRw2}
    v_add_u32 v{vRw2+1}, {XS1}, v{vRw2}""")
def kv_rest(tag):
    e(f"s_setprio 0\ns_lshl_b32 s{sT1}, s{sW4}, 12")
    for n in range(6):
        e(f"s_add_u32 s{sT0}, s{sT1}, {36*1024+16384*n}\ns_mov_b32 m0, s{sT0}\ns_nop 0")
        for k in range(4): e(f"buffer_load_dwordx4 v{vL16}, {sr(SWS,4)}, s{sT0} offen offset:{1024*k} sc1 lds")
    e(tag_issue())
    e("s_setprio 2")

def spread(m, fill):
    w = [16 if "16x16" in x else 32 for x in m]
    tot = sum(c for c, _ in fill); W = sum(w)
    out = []; k = 0; acc = 0; cw = 0
    for x, wx in zip(m, w):
        out.append(x); cw += wx
        while k < len(fill) and (acc + fill[k][0]/2) * W <= tot * cw:
            out.append(fill[k][1]); acc += fill[k][0]; k += 1
    out += [t for _, t in fill[k:]]
    return out


C1 = -2*0.7978845608028654*1.4426950408889634
C3 = C1*0.044715
def gelu_consts(m, r, d):
    e(f"""v_sub_f32 v{d}, 0, v{m}
    v_mul_f32 v{d+3}, v{r}, v{r}
    v_mul_f32 v{d+1}, {f2u(C1):#x}, v{r}
    v_mul_f32 v{d+2}, {f2u(C3):#x}, v{r}
    v_mul_f32 v{d+2}, v{d+2}, v{d+3}
    v_rcp_f32 v{d+3}, v{d+3}""")
def bc(reg, pos, n):
    base = reg & ~1
    return vr(base, 2), reg & 1
def pk(op, d, srcs, neg=None):
    ops = []; lo = []; hi = []
    for t, r in srcs:
        if t == 'p': ops.append(vr(r, 2)); lo.append(0); hi.append(1)
        else: ops.append(vr(r & ~1, 2)); lo.append(r & 1); hi.append(r & 1)
    return f"{op} {vr(d,2)}, {', '.join(ops)} op_sel:[{','.join(map(str,lo))}] op_sel_hi:[{','.join(map(str,hi))}]"
def gelu_tile(g, u, csg, csu, k, tmp, n=16, dst=None):
    for p in range(0, n, 2):
        e(pk("v_pk_fma_f32", g+p, [('b', k), ('p', csg+p), ('p', g+p)]))
        e(pk("v_pk_fma_f32", u+p, [('b', k), ('p', csu+p), ('p', u+p)]))
    for p in range(0, n, 2):
        e(pk("v_pk_mul_f32", tmp+p, [('p', g+p), ('p', g+p)]))
    for p in range(0, n, 2):
        e(pk("v_pk_fma_f32", tmp+p, [('p', tmp+p), ('b', k+2), ('b', k+1)]))
    for p in range(0, n, 2):
        e(pk("v_pk_mul_f32", tmp+p, [('p', tmp+p), ('p', g+p)]))
    for p in range(n): e(f"v_exp_f32 v{tmp+p}, v{tmp+p}")
    for p in range(0, n, 2):
        e(pk("v_pk_mul_f32", u+p, [('p', u+p), ('p', g+p)]))
    for p in range(0, n, 2):
        e(pk("v_pk_fma_f32", tmp+p, [('p', tmp+p), ('b', k+3), ('b', k+3)]))
    for p in range(n): e(f"v_rcp_f32 v{tmp+p}, v{tmp+p}")
    e("s_nop 0")
    for p in range(0, n, 2):
        e(pk("v_pk_mul_f32", u+p, [('p', u+p), ('p', tmp+p)]))
    for p in range(n//2): e(f"v_cvt_pk_bf16_f32 v{dst[p] if dst else g+p}, v{u+2*p}, v{u+2*p+1}")

def cs_read(d, slot_off):
    for q in range(4): e(f"ds_read_b128 {vr(d+4*q,4)}, v{vT3} offset:{slot_off+32*q}")

def lin_fold(acc, cs, negm, scale, n=16):
    for p in range(0, n, 2):
        e(pk("v_pk_fma_f32", acc+p, [('b', negm), ('p', cs+p), ('p', acc+p)]))
    for p in range(0, n, 2):
        e(pk("v_pk_mul_f32", acc+p, [('p', acc+p), ('b', scale)]))

def q_epilogue(cs):
    e(f"v_mul_f32 v{vSt+2}, {f2u(0.25*1.4426950408889634):#x}, v{vSt+1}")
    lin_fold(vAcc, cs, vSt+4, vSt+2)
    for p in range(8): e(f"v_cvt_pk_bf16_f32 v{vAcc+p}, v{vAcc+2*p}, v{vAcc+2*p+1}")
    e(f"""s_lshl_b32 s{sT0}, s{sW4}, 11
    s_add_u32 s{sT0}, s{sT0}, {QIMG}
    v_lshl_add_u32 v{vT0}, v{vLane}, 4, s{sT0}
    ds_write_b128 v{vT0}, {vr(vAcc,4)}
    ds_write_b128 v{vT0}, {vr(vAcc+4,4)} offset:1024""")


def rowstat_finish():
    a = vRs+8
    e(f"v_mov_b32 v{vT0}, 0x3f803f80")
    for k in range(4):
        for r in range(2):
            x = vRs+4*r+k
            c0 = "0" if k == 0 else f"v{a+2*r}"; c1 = "0" if k == 0 else f"v{a+2*r+1}"
            e(f"v_dot2_f32_bf16 v{a+2*r}, v{x}, v{vT0}, {c0}\nv_dot2_f32_bf16 v{a+2*r+1}, v{x}, v{x}, {c1}")
    e("s_nop 2")
    for ctl in ("row_shr:1", "row_shr:2", "row_shr:4", "row_shr:8"):
        for k in range(4): e(f"v_add_f32_dpp v{a+k}, v{a+k}, v{a+k} {ctl} row_mask:0xf bank_mask:0xf bound_ctrl:0")
    for ctl in ("row_bcast:15 row_mask:0xa", "row_bcast:31 row_mask:0xc"):
        for k in range(4): e(f"v_add_f32_dpp v{a+k}, v{a+k}, v{a+k} {ctl} bank_mask:0xf")
    for r in range(2):
        d = vRs+4*r
        e(f"""v_mul_f32 v{d}, {f2u(1/512):#x}, v{a+2*r}
        v_mul_f32 v{d+1}, {f2u(1/512):#x}, v{a+2*r+1}
        v_fma_f32 v{d+1}, -v{d}, v{d}, v{d+1}
        v_max_f32 v{d+1}, 0, v{d+1}
        v_add_f32 v{d+1}, {f2u(1e-5):#x}, v{d+1}
        v_rsq_f32 v{d+1}, v{d+1}""")
def rowstat_post():
    e(f"""s_lshl_b32 s{sT0}, s{sW4}, 4
    s_add_u32 s{sT0}, s{sT0}, {STL}
    v_mov_b32 v{vT0}, s{sT0}
    s_mov_b32 exec_lo, 0
    s_brev_b32 exec_hi, 1
    ds_write_b64 v{vT0}, {vr(vRs,2)}
    ds_write_b64 v{vT0}, {vr(vRs+4,2)} offset:8
    s_mov_b64 exec, -1""")
def rowstat_store():
    for r in range(2): e(f"v_mov_b32 v{vRs+4*r+2}, s{sNo}\nv_mov_b32 v{vRs+4*r+3}, s{sNo+1}")
    e(f"""s_lshl_b32 s{sT0}, s{sRow}, 5
    s_add_u32 s{sT0}, s{sT0}, {STATG}
    s_mov_b32 exec_lo, 0
    s_brev_b32 exec_hi, 1
    buffer_store_dwordx4 {vr(vRs,4)}, off, {sr(SWS,4)}, s{sT0} sc1
    buffer_store_dwordx4 {vr(vRs+4,4)}, off, {sr(SWS,4)}, s{sT0} offset:16 sc1
    s_mov_b64 exec, -1""")
def kv_dma(tag):
    e(f"s_mul_i32 s{sT1}, s{sW4}, 3072")
    for n in range(3):
        e(f"s_add_u32 s{sT0}, s{sT1}, {12288*n}\ns_mov_b32 m0, s{sT0}\ns_nop 0")
        for k in range(3): e(f"buffer_load_dwordx4 v{vL16}, {sr(SWS,4)}, s{sT0} offen offset:{1024*k} sc1 lds")
def tr_lane(rowmul, d):
    e(f"""v_lshrrev_b32 v{vT0}, 4, v{vLane}
    v_bfe_u32 v{vT1}, v{vLane}, 2, 2
    v_lshl_add_u32 v{vT0}, v{vT0}, 3, v{vT1}
    v_mul_u32_u24 v{vT0}, {rowmul}, v{vT0}
    v_bfe_u32 v{vT1}, v{vLane}, 4, 1
    v_lshl_add_u32 v{vT0}, v{vT1}, 5, v{vT0}
    v_and_b32 v{vT1}, 3, v{vLane}
    v_lshl_add_u32 v{d}, v{vT1}, 3, v{vT0}""")
def ones_col0(d):
    e(f"""v_and_b32 v{vT0}, 15, v{vLane}
    v_cmp_eq_u32 vcc, 0, v{vT0}
    v_mov_b32 v{vT1}, 0x3f803f80
    s_nop 0
    v_cndmask_b32 v{d}, 0, v{vT1}, vcc""")
    for k in range(1, 4): e(f"v_mov_b32 v{d+k}, v{d}")
def rot_delta():
    return f"s_add_u32 s{sRb}, s{sRb}, 1\ns_cmp_eq_u32 s{sRb}, 3\ns_cselect_b32 s{sDl}, s{sC3}, {STG}\ns_cselect_b32 s{sRb}, 0, s{sRb}"
def cs16_write(accs, slot0_sreg, stride):
    e(f"v_add_u32 v{vT0}, s{slot0_sreg}, v{vLane}\ns_mov_b32 exec_lo, 0x00010001\ns_mov_b32 exec_hi, 0x00010001")
    for n, a in enumerate(accs): e(f"ds_write_b128 v{vT0}, {vr(a,4)} offset:{stride*n}")
    e("s_mov_b64 exec, -1")

ROT = int(sys.argv[sys.argv.index("--rot")+1]) if "--rot" in sys.argv else 7
sKs = 84
C0 = "--c0" in sys.argv
NR = 7 if C0 else 8
def dma_x():
    return [f"s_add_u32 m0, s{sLb}, s{sMx}", f"s_add_u32 s{sT0}, s{sXo}, 16384",
            f"buffer_load_dwordx4 v{vXa0}, {sr(SX,4)}, s{sXo} offen lds",
            f"buffer_load_dwordx4 v{vXa1}, {sr(SX,4)}, s{sXo} offen offset:1024 lds",
            "s_add_u32 m0, m0, 2048", f"s_add_u32 s{sXo}, s{sXo}, 128",
            f"buffer_load_dwordx4 v{vXa0}, {sr(SX,4)}, s{sT0} offen lds",
            f"buffer_load_dwordx4 v{vXa1}, {sr(SX,4)}, s{sT0} offen offset:1024 lds"]
def dma_w():
    r = []
    for k, sd in enumerate((SWG, SWU)):
        r += [f"s_add_u32 m0, s{sLb}, s{sMw}" if k == 0 else f"s_add_u32 m0, m0, {UOFF-GOFF}", "s_nop 0",
              f"buffer_load_dwordx4 v{vWa0}, {sr(sd,4)}, s{sWo} offen lds",
              f"buffer_load_dwordx4 v{vWa1}, {sr(sd,4)}, s{sWo} offen offset:1024 lds",
              f"buffer_load_dwordx4 v{vWa2}, {sr(sd,4)}, s{sWo} offen offset:2048 lds"]
    r += [f"s_add_u32 m0, s{sLb}, s{sMq}", f"s_add_u32 s{sWo}, s{sWo}, {64*2752}",
          f"buffer_load_dwordx4 v{vQa}, {sr(SWQ,4)}, s{sQo} offen lds", f"s_add_u32 s{sQo}, s{sQo}, 65536",
          f"s_add_u32 s{sLb}, s{sLb}, {STG}", f"s_cmp_ge_u32 s{sLb}, {3*STG}", f"s_cselect_b32 s{sLb}, 0, s{sLb}"]
    if ROT:
        r += [f"s_add_u32 s{sKs}, s{sKs}, 1", f"s_cmp_eq_u32 s{sKs}, 8",
              f"s_cselect_b32 s{sT0}, {128*NR}, 0", f"s_cselect_b32 s{sT1}, {64*NR*2752}, 0", f"s_cselect_b32 s{sT2}, {64*NR*1024}, 0",
              f"s_sub_u32 s{sXo}, s{sXo}, s{sT0}", f"s_sub_u32 s{sWo}, s{sWo}, s{sT1}", f"s_sub_u32 s{sQo}, s{sQo}, s{sT2}"]
    return r
e(f"s_mov_b32 s{sLb}, 0\ns_lshl_b32 s{sMx}, s{sW4}, 12")
if ROT and "--rm" in sys.argv: e(f"s_lshl_b32 s{sKs}, s{sI if M48 else sJ}, 1\ns_add_u32 s{sKs}, s{sKs}, s{sJ if M48 else sI}\ns_and_b32 s{sKs}, s{sKs}, {ROT}")
RM = sys.argv[sys.argv.index("--rm")+1] if "--rm" in sys.argv else "a"
if RM == "a":
    e(f"""s_xor_b32 s{sKs}, s{sI}, s{sJ}
    s_and_b32 s{sKs}, s{sKs}, 1
    s_lshl_b32 s{sKs}, s{sKs}, 2
    s_lshr_b32 s{sT0}, s{sI}, 1
    s_xor_b32 s{sT0}, s{sT0}, s{sJ}
    s_lshr_b32 s{sT0}, s{sT0}, 1
    s_and_b32 s{sT0}, s{sT0}, 2
    s_or_b32 s{sKs}, s{sKs}, s{sT0}""")
if RM == "b":
    e(f"""s_add_u32 s{sKs}, s{sI}, s{sJ}
    s_and_b32 s{sKs}, s{sKs}, 3
    s_lshl_b32 s{sKs}, s{sKs}, 1
    s_lshr_b32 s{sT0}, s{sI}, 1
    s_xor_b32 s{sT0}, s{sT0}, s{sJ}
    s_bfe_u32 s{sT0}, s{sT0}, 0x10002
    s_or_b32 s{sKs}, s{sKs}, s{sT0}""")
if RM == "c":
    e(f"""s_lshr_b32 s{sKs}, s{sI}, 3
    s_lshl_b32 s{sKs}, s{sKs}, 2
    s_lshr_b32 s{sT0}, s{sJ}, 2
    s_lshl_b32 s{sT0}, s{sT0}, 1
    s_add_u32 s{sKs}, s{sKs}, s{sT0}
    s_and_b32 s{sKs}, s{sKs}, 7""")
if ROT and C0: e(f"s_cmp_eq_u32 s{sKs}, 7\ns_cselect_b32 s{sKs}, 3, s{sKs}")
def rot_x(): e(f"s_lshl_b32 s{sT0}, s{sKs}, 7\ns_add_u32 s{sXo}, s{sXo}, s{sT0}")
def rot_w(): e(f"s_mul_i32 s{sT0}, s{sKs}, {64*2752}\ns_add_u32 s{sWo}, s{sWo}, s{sT0}\ns_lshl_b32 s{sT0}, s{sKs}, 16\ns_add_u32 s{sQo}, s{sQo}, s{sT0}")
if ROT and not C0: rot_x()
for k, r in enumerate((vWa0, vWa1, vWa2)):
    e(f"""v_add_u32 v{vT0}, {64*k}, v{vLane}
    v_mul_u32_u24 v{vT1}, 43691, v{vT0}
    v_lshrrev_b32 v{vT1}, 19, v{vT1}
    v_mul_u32_u24 v{vT2}, 12, v{vT1}
    v_sub_u32 v{vT0}, v{vT0}, v{vT2}
    v_lshrrev_b32 v{vT2}, 2, v{vT1}
    v_and_b32 v{vT2}, 2, v{vT2}
    v_xor_b32 v{vT0}, v{vT0}, v{vT2}
    v_mul_u32_u24 v{vT1}, 2752, v{vT1}
    v_lshl_add_u32 v{r}, v{vT0}, 4, v{vT1}""")
    if k: e(f"v_subrev_u32 v{r}, {1024*k}, v{r}")
e(f"""v_lshrrev_b32 v{vT0}, 2, v{vLane}
v_lshlrev_b32 v{vT0}, 10, v{vT0}
v_and_b32 v{vT1}, 3, v{vLane}
v_lshlrev_b32 v{vT2}, 1, v{vH}
v_xor_b32 v{vT1}, v{vT1}, v{vT2}
v_lshl_add_u32 v{vQa}, v{vT1}, 4, v{vT0}
s_mul_i32 s{sT0}, s{sJ}, 96
s_min_u32 s{sT0}, s{sT0}, 1280
s_lshl_b32 s{sT0}, s{sT0}, 1
s_mul_i32 s{sWo}, s{sW4}, {16*2752}
s_add_u32 s{sWo}, s{sWo}, s{sT0}
s_lshl_b32 s{sQo}, s{sW4}, 14
s_lshl_b32 s{sT0}, s{sJ}, 6
s_add_u32 s{sQo}, s{sQo}, s{sT0}
s_mul_i32 s{sMw}, s{sW4}, 3072
s_add_u32 s{sMw}, s{sMw}, {GOFF}
s_lshl_b32 s{sMq}, s{sW4}, 10
s_add_u32 s{sMq}, s{sMq}, {QOFF}""")
if ROT and not C0: rot_w()
e("s_waitcnt lgkmcnt(0)")
entry_stamp()
for x in dma_x(): e(x)
w0 = dma_w()
if ROT and C0:
    k = w0.index(f"s_add_u32 s{sKs}, s{sKs}, 1")
    for x in w0[:k]: e(x)
    rot_x(); rot_w(); e(w0[k])
else:
    for x in w0: e(x)
for x in dma_x() + dma_w(): e(x)
e(tag_issue())
late_srd(LS_A)
hW = 32
e(f"s_mov_b32 s{sSt}, 0\ns_mov_b32 s{sRb}, 0\ns_mov_b32 s{sC3}, {(-2*STG) & 0xffffffff}")
if "--hp3" in sys.argv: e("s_setprio 3")
tstamp(21); e("s_waitcnt vmcnt(12) lgkmcnt(0)"); tstamp(23); e("s_barrier")
stamp(12); tflush(); TS.clear()
def helper_loop(cs):
    t = "c" if cs else "n"
    e(f"Lhl{t}:")
    if cs:
        rd, m = cs_parts()
        for x in rd: e(x)
        e(rot_delta())
        for x in dma_x(): e(x)
        e(f"v_add_u32 v{hA}, s{sDl}, v{hA}\nv_add_u32 v{hA+1}, s{sDl}, v{hA+1}\ns_waitcnt lgkmcnt(0)")
        w = dma_w(); k = 0
        for x in w:
            e(x)
            if "buffer_load" in x: e(m[k]); k += 1
        for x in m[k:]: e(x)
    else:
        for x in dma_x() + dma_w():
            if "--nodma" in sys.argv and "buffer_load" in x: continue
            e(x)
            if "--pace" in sys.argv and "buffer_load" in x: e("s_sleep 1")
        e(f"s_or_b32 s{sT0}, s{sSt}, s{sW}\ns_cmp_lg_u32 s{sT0}, 0\ns_cbranch_scc1 Lnpub")
        e(f"v_lshlrev_b32 v{vT0}, 3, v{vLane}\nv_add_u32 v{vT0}, {STL}, v{vT0}\nds_read_b64 {vr(hW,2)}, v{vT0}")
        tag_wait("p", 11)
        e(f"""v_mov_b32 v{hW+2}, s{sNo}
        v_mov_b32 v{hW+3}, s{sNo+1}
        s_lshl_b32 s{sT0}, s{sRow}, 5
        s_add_u32 s{sT0}, s{sT0}, {STATG}
        s_mov_b64 exec, 0xff
        s_waitcnt lgkmcnt(0)
        buffer_store_dwordx4 {vr(hW,4)}, v{vL16}, {sr(SWS,4)}, s{sT0} offen sc1
        s_mov_b64 exec, -1
        Lnpub:""")
    e(f"""s_add_u32 s{sSt}, s{sSt}, 1
    {tk(None)}
    s_waitcnt vmcnt(11)
    {tk(80)}
    s_barrier
    {tk(81)}
    s_cmp_lt_u32 s{sSt}, 6
    s_cbranch_scc1 Lhl{t}""")
helper_loop(False)
tkout()
tag_wait("h", 0)
a_init(); fin_init()
e(f"s_mov_b32 s{sKf}, {KFLG}")
e("s_barrier")
e(flags_issue(sKf))
e(f"s_cmp_lg_u32 s{sW}, 1\ns_cbranch_scc1 Lhns\ns_lshl_b32 s{sT1}, s{sI}, 11\ns_add_u32 s{sT1}, s{sT1}, {STATG}\ns_mov_b32 s{sT0}, 0\nLhs:")
e(f"""buffer_load_dwordx4 {vr(hW,4)}, v{vL16}, {sr(SWS,4)}, s{sT1} offen sc1
buffer_load_dwordx4 {vr(hW+4,4)}, v{vL16}, {sr(SWS,4)}, s{sT1} offen offset:1024 sc1
s_add_u32 s{sT0}, s{sT0}, 1
s_waitcnt vmcnt(0)
v_cmp_ne_u64 vcc, s[{sNo}:{sNo+1}], {vr(hW+2,2)}
v_cmp_ne_u64 s[{sEx}:{sEx+1}], s[{sNo}:{sNo+1}], {vr(hW+6,2)}
s_or_b64 vcc, vcc, s[{sEx}:{sEx+1}]
s_cmp_ge_u32 s{sT0}, 100000
s_cbranch_scc1 Lhsd
s_cbranch_vccnz Lhs
Lhsd:""")
gelu_consts(hW, hW+1, hW+8); gelu_consts(hW+4, hW+5, hW+12)
e(f"""v_add_u32 v{vT0}, {STATM}, v{vL16}
ds_write_b128 v{vT0}, {vr(hW+8,4)}
ds_write_b128 v{vT0}, {vr(hW+12,4)} offset:1024
Lhns:""")
e(f"""s_waitcnt vmcnt(0)
v_cmp_ne_u64 vcc, s[{sNo}:{sNo+1}], {vr(vPoll,2)}
s_mov_b32 s{sSt}, 1
s_cbranch_vccnz Lhnk""")
kv_dma("a")
e(f"s_mov_b32 s{sSt}, 0\ns_branch Lhnk2\nLhnk:")
e(flags_issue(sKf))
e("Lhnk2:\ns_barrier\ns_waitcnt lgkmcnt(0)")
stamp(1)
e("s_barrier")
e(f"s_cmp_lg_u32 s{sSt}, 0\ns_cbranch_scc1 Lkvwait\ns_waitcnt vmcnt(0)\ns_branch Lp2")

cX = [8, 24]; cW = 40; cRX, cRW, cRQ = 68, 70, 72; cCs = 76; cO = 92; cA = 96
e("Lcomp:")
entry_stamp(True)
late_srd(LS_F)
e(f"""v_and_b32 v{vT0}, 15, v{vLane}
v_lshrrev_b32 v{vT1}, 1, v{vT0}
v_lshrrev_b32 v{vT2}, 4, v{vLane}
v_xor_b32 v{vT1}, v{vT1}, v{vT2}
v_lshlrev_b32 v{vT0}, 7, v{vT0}
s_and_b32 s{sT0}, s{sW}, 1
s_lshl_b32 s{sT0}, s{sT0}, 13
v_add_u32 v{vT0}, s{sT0}, v{vT0}
v_lshl_add_u32 v{cRX}, v{vT1}, 4, v{vT0}
v_xor_b32 v{cRX+1}, 64, v{cRX}""")
tr_lane(192, cRW)
e(f"""s_lshl_b32 s{sT1}, s{sW}, 4
s_and_b32 s{sT1}, s{sT1}, 32
v_xor_b32 v{cRW}, s{sT1}, v{cRW}
v_xor_b32 v{cRW+1}, 32, v{cRW}
s_lshl_b32 s{sT2}, s{sT1}, 1
v_add_u32 v{cRW}, s{sT2}, v{cRW}
s_lshl_b32 s{sT2}, s{sT1}, 2
v_add_u32 v{cRW+1}, s{sT2}, v{cRW+1}""")
tr_lane(64, cRQ); e(f"v_xor_b32 v{cRQ}, s{sT1}, v{cRQ}")
ones_col0(cO)
cEh, cEs, cEq = 73, 74, 75
e(f"""s_lshl_b32 s{sT0}, s{sI}, 2
s_and_b32 s{sT1}, s{sW}, 1
s_lshl_b32 s{sT1}, s{sT1}, 1
s_add_u32 s{sT0}, s{sT0}, s{sT1}
s_mul_i32 s{sT0}, s{sT0}, 88
s_mul_i32 s{sT1}, s{sJ}, 6
s_min_u32 s{sT1}, s{sT1}, 80
s_bfe_u32 s{sT2}, s{sW}, 0x10001
s_mul_i32 s{sT2}, s{sT2}, 3
s_add_u32 s{sT1}, s{sT1}, s{sT2}
s_and_b32 s{sT2}, s{sW}, 2""")
for add, dst in enumerate((sC0, sC1, sC2)):
    e(f"""s_add_u32 s{sT3}, s{sT1}, {add}
    s_lshr_b32 s{dst}, s{sT3}, 2
    s_add_u32 s{dst}, s{dst}, s{sT0}
    s_and_b32 s{sT3}, s{sT3}, 3
    s_mul_i32 s{sT3}, s{sT3}, 22
    s_add_u32 s{dst}, s{dst}, s{sT3}
    s_lshl_b32 s{dst}, s{dst}, 10
    s_add_u32 s{dst}, s{dst}, {HIMG}""")
e(f"""v_bfe_u32 v{vT0}, v{vLane}, 4, 1
v_lshlrev_b32 v{vT0}, 9, v{vT0}
v_and_b32 v{vT1}, 15, v{vLane}
v_lshl_add_u32 v{vT0}, v{vT1}, 4, v{vT0}
v_lshl_add_u32 v{cEh}, v{vH}, 8, v{vT0}
s_and_b32 s{sT0}, s{sW}, 1
s_lshl_b32 s{sT1}, s{sT0}, 10
s_add_u32 s{sT1}, s{sT1}, {STATM}
v_lshl_add_u32 v{cEs}, v{vT1}, 4, s{sT1}
s_lshl_b32 s{sT0}, s{sT0}, 12
s_lshl_b32 s{sT2}, s{sT2}, 9
s_add_u32 s{sT0}, s{sT0}, s{sT2}
s_add_u32 s{sT0}, s{sT0}, {QIMG}
v_lshl_add_u32 v{vT0}, v{vH}, 3, v{vT0}
v_add_u32 v{cEq}, s{sT0}, v{vT0}""")
f_init()
for r in list(range(cCs, cCs+16, 2)) + [r for r in range(cA, cA+112, 2) if not vRs <= r < vRs+16]: e(f"v_mov_b64 {vr(r,2)}, 0")
tstamp(13)
e("s_waitcnt vmcnt(0)")
tstamp(21)
rowstat_finish()
rowstat_post()
tstamp(23)
if "--touch" in sys.argv:
    e(f"""s_and_b32 s{sT2}, s{sI}, 7
    s_mul_i32 s{sT2}, s{sT2}, 48
    s_add_u32 s{sT2}, s{sT2}, 128
    s_cmp_ge_u32 s{sW}, 6
    s_cbranch_scc1 Ltc6
    v_lshrrev_b32 v{vT0}, 1, v{vLane}
    v_mul_u32_u24 v{vT0}, 2752, v{vT0}
    v_and_b32 v{vT1}, 1, v{vLane}
    v_lshl_add_u32 v{vT0}, v{vT1}, 7, v{vT0}
    s_mul_i32 s{sT0}, s{sJ}, 96
    s_min_u32 s{sT0}, s{sT0}, 1280
    s_lshl_b32 s{sT0}, s{sT0}, 1
    s_mul_i32 s{sT2}, s{sT2}, 2752
    s_add_u32 s{sT0}, s{sT0}, s{sT2}
    s_add_u32 s{sT1}, s{sT0}, {32*2752}
    s_cmp_eq_u32 s{sW}, 5
    s_cbranch_scc1 Ltc5
    buffer_load_dword v79, v{vT0}, {sr(SWG,4)}, s{sT0} offen
    s_mov_b32 exec_hi, 0
    buffer_load_dword v79, v{vT0}, {sr(SWG,4)}, s{sT1} offen
    s_branch Ltce
    Ltc5:
    buffer_load_dword v79, v{vT0}, {sr(SWU,4)}, s{sT0} offen
    s_mov_b32 exec_hi, 0
    buffer_load_dword v79, v{vT0}, {sr(SWU,4)}, s{sT1} offen
    s_branch Ltce
    Ltc6:
    s_cmp_eq_u32 s{sW}, 7
    s_cbranch_scc1 Ltc7
    v_lshrrev_b32 v{vT0}, 1, v{vLane}
    v_lshlrev_b32 v{vT0}, 10, v{vT0}
    v_and_b32 v{vT1}, 1, v{vLane}
    v_lshl_add_u32 v{vT0}, v{vT1}, 7, v{vT0}
    s_lshl_b32 s{sT0}, s{sI}, 17
    s_and_b32 s{sT1}, s{sJ}, 3
    s_lshl_b32 s{sT1}, s{sT1}, 15
    s_add_u32 s{sT0}, s{sT0}, s{sT1}
    buffer_load_dword v79, v{vT0}, {sr(SX,4)}, s{sT0} offen offset:256
    buffer_load_dword v79, v{vT0}, {sr(SX,4)}, s{sT0} offen offset:512
    buffer_load_dword v79, v{vT0}, {sr(SX,4)}, s{sT0} offen offset:768
    s_branch Ltce
    Ltc7:
    v_lshlrev_b32 v{vT0}, 10, v{vLane}
    s_lshl_b32 s{sT2}, s{sT2}, 10
    s_lshl_b32 s{sT0}, s{sJ}, 6
    s_add_u32 s{sT0}, s{sT0}, s{sT2}
    s_mov_b32 exec_hi, 0xffff
    buffer_load_dword v79, v{vT0}, {sr(SWQ,4)}, s{sT0} offen
    Ltce:
    s_mov_b64 exec, -1""")
e("s_nop 1")
for r in range(vRs, vRs+16, 2): e(f"v_mov_b64 {vr(r,2)}, 0")
e(f"s_mov_b32 s{sSt}, 0\ns_mov_b32 s{sRb}, 0\ns_mov_b32 s{sC3}, {(-2*STG) & 0xffffffff}\ns_setprio 2")
e(f"s_bitcmp1_b32 s{sW}, 0\ns_cbranch_scc1 Lcl1")
NF = 7
def comp_loop(var):
    tag = f"{var}"
    def wrd(n, k2):
        if n == 0: a, o, rs = cRQ, QOFF, 64
        else:
            t = (n-1) % 3
            a, o, rs = cRW+(t & 1), (GOFF if n < 4 else UOFF) + (t >> 1)*64, 192
        return tr(cW+4*n, a, o+32*k2*rs) + tr(cW+4*n+2, a, o+(32*k2+4)*rs)
    def xrd(k2): return [f"ds_read_b128 {vr(cX[k2]+4*u,4)}, v{cRX+k2} offset:{2048*u}" for u in range(4)]
    def mm(n, k2):
        r = [mfma16(cA+28*u+4*n, cW+4*n, cX[k2]+4*u) for u in range(4)]
        if (n & 1) == var: r.append(mfma16(cCs+4*(n >> 1), cW+4*n, cO))
        return r
    e("s_waitcnt lgkmcnt(0)\ns_barrier")
    for x in xrd(0) + sum([wrd(n, 0) for n in range(NF)], []): e(x)
    e(f"s_waitcnt lgkmcnt(0)\n.p2align 3\nLc_{tag}:")
    adr = [f"v_add_u32 v{r}, s{sDl}, v{r}" for r in (cRX, cRX+1, cRW, cRW+1, cRQ)]
    ctl = rot_delta().split("\n") + [f"s_add_u32 s{sSt}, s{sSt}, 1"]
    BARG = 2
    def build(order0):
        out = []; q = []; issued = list(order0)
        def need(tagname):
            idx = max(i for i, t in enumerate(issued) if t == tagname)
            return len(issued)-1-idx
        def push(tagname, lst): q.extend((tagname, x) for x in lst)
        lastN = [99]
        for k2 in range(2):
            if k2 == 0: push("x1", xrd(1))
            for n in range(NF):
                if k2 == 1 and n == BARG:
                    while q:
                        t, x = q.pop(0); out.append(x)
                        if t: issued.append(t)
                    out.append(f"s_waitcnt lgkmcnt(0)\n{tk(None)}\ns_barrier\n{tk(81)}")
                    issued.clear(); issued.extend(["done"])
                    push("x0", xrd(0))
                    for m in range(BARG): push(f"w{m}0", wrd(m, 0))
                reqs = [f"w{n}{k2}"] + ([f"x{k2}"] if n == 0 else [])
                for r in reqs: assert all(t != r for t, _ in q), (r, k2, n)
                ns = [need(r) for r in reqs if r in issued]
                if ns and n % 2 == 0 or ns and min(ns) < lastN[0]:
                    nxt = f"w{n+1}{k2}"
                    if nxt in issued and all(t != nxt for t, _ in q): ns.append(need(nxt))
                    N = min(min(ns), 15); out.append(f"s_waitcnt lgkmcnt({N})"); lastN[0] = N
                for x in mm(n, k2):
                    out.append(x)
                    if q:
                        t, y = q.pop(0); out.append(y)
                        if t: issued.append(t); lastN[0] += 1
                if k2 == 0:
                    push(f"w{n}1", wrd(n, 1))
                    if n == 3: push(None, ctl)
                    if n == NF-1: push(None, adr)
                elif n >= BARG: push(f"w{n}0", wrd(n, 0))
        while q:
            t, x = q.pop(0); out.append(x)
            if t: issued.append(t)
        return out, issued
    _, steady = build([])
    out, _ = build(steady)
    for x in out: e(x)
    e(f"s_cmp_lt_u32 s{sSt}, 8\ns_cbranch_scc1 Lc_{tag}")
    tkout()
eC, eK, eT = 8, 40, 56
comp_loop(0)
e("s_branch Lcle\nLcl1:")
comp_loop(1)
e("Lcle:")
tstamp(1)
e(f"""s_bfe_u32 s{sT2}, s{sW}, 0x10001
s_mul_i32 s{sT2}, s{sT2}, 448
s_add_u32 s{sT2}, s{sT2}, {CSUM}
s_and_b32 s{sT1}, s{sW}, 1
s_lshl_b32 s{sT1}, s{sT1}, 6
s_add_u32 s{sT1}, s{sT1}, s{sT2}
v_and_b32 v{vT3}, 48, v{vLane}
v_add_u32 v{vT3}, s{sT2}, v{vT3}
v_add_u32 v{vT0}, s{sT1}, v{vLane}
s_mov_b32 exec_lo, 0x00010001
s_mov_b32 exec_hi, 0x00010001
ds_write_b128 v{vT0}, {vr(cCs,4)}
ds_write_b128 v{vT0}, {vr(cCs+4,4)} offset:128
ds_write_b128 v{vT0}, {vr(cCs+8,4)} offset:256
s_bitcmp1_b32 s{sW}, 0
s_cbranch_scc1 Lnc3
ds_write_b128 v{vT0}, {vr(cCs+12,4)} offset:384
Lnc3:
s_mov_b64 exec, -1
s_waitcnt vmcnt(0) lgkmcnt(0)
s_barrier""")
for u in range(4): e(f"ds_read_b128 {vr(eK+4*u,4)}, v{cEs} offset:{256*u}")
for n in range(NF): e(f"ds_read_b128 {vr(eC+4*n,4)}, v{vT3} offset:{64*n}")
e("s_waitcnt lgkmcnt(6)")
for u in range(4): e(f"v_mul_f32 v{eT+u}, {f2u(0.25*1.4426950408889634/C1):#x}, v{eK+4*u+1}")
for u in range(4):
    for p in (0, 2): e(pk("v_pk_fma_f32", cA+28*u+p, [('b', eK+4*u), ('p', eC+p), ('p', cA+28*u+p)]))
for u in range(4):
    for p in (0, 2): e(pk("v_pk_mul_f32", cA+28*u+p, [('p', cA+28*u+p), ('b', eT+u)]))
for u in range(4):
    q = cA+28*u
    e(f"v_cvt_pk_bf16_f32 v{q}, v{q}, v{q+1}\nv_cvt_pk_bf16_f32 v{q+1}, v{q+2}, v{q+3}")
for u in range(4): e(f"ds_write_b64 v{cEq}, {vr(cA+28*u,2)} offset:{2048*(u>>1)+256*(u&1)}")
e("s_waitcnt lgkmcnt(0)\ns_barrier")
KVI = "--nokvi" not in sys.argv
if not KVI: kv_rest("c")
gl0 = len(L)
GA = int(sys.argv[sys.argv.index("--ga")+1]) if "--ga" in sys.argv else -1
if GA >= 0:
    e(".p2align 3")
    for _ in range(GA): e("s_nop 0")
for u in range(4):
    g = cA+28*u+4; P = cA+28*(u & 2)+4
    gelu_tile(g, g+12, eC+4, eC+16, eK+4*u, eT, 12, [P+4*(p//2)+2*(u & 1)+(p & 1) for p in range(6)])
    if u & 1:
        e("s_nop 0")
        for t in range(3):
            e(f"v_permlane32_swap_b32 v{P+4*t}, v{P+4*t+2}\nv_permlane32_swap_b32 v{P+4*t+1}, v{P+4*t+3}")
        for t, so in enumerate((sC0, sC1, sC2)):
            e(f"buffer_store_dwordx4 {vr(P+4*t,4)}, v{cEh}, {sr(SWS,4)}, s{so} offen sc1")
        if u == 1: e(f"v_add_u32 v{cEh}, {88*1024}, v{cEh}")
if KVI:
    body = L[gl0:]; del L[gl0:]
    e(f"s_lshl_b32 s{sT1}, s{sW4}, 12")
    items = []
    for n in range(6):
        for k in range(4):
            pre = f"s_add_u32 s{sT0}, s{sT1}, {36*1024+16384*n}\ns_mov_b32 m0, s{sT0}\ns_nop 0\n" if k == 0 else ""
            items.append(pre + f"buffer_load_dwordx4 v{vL16}, {sr(SWS,4)}, s{sT0} offen offset:{1024*k} sc1 lds")
    cut = (len(body)*3)//4
    for x in interleave(body[:cut], items) + body[cut:]: e(x)
    e(tag_issue())
stamp(2)
tflush(); TS.clear(); rt_out()
e("s_branch LF")

def cs_write(acc, slot_expr_sreg):
    e(f"""v_and_b32 v{vT0}, 1, v{vLane}
    v_lshlrev_b32 v{vT0}, 6, v{vT0}
    v_lshrrev_b32 v{vT1}, 4, v{vLane}
    v_lshl_add_u32 v{vT0}, v{vT1}, 4, v{vT0}
    v_add_u32 v{vT0}, {slot_expr_sreg}, v{vT0}
    s_mov_b32 exec_lo, 0x00030003
    s_mov_b32 exec_hi, 0x00030003
    ds_write_b128 v{vT0}, {vr(acc,4)}
    s_mov_b64 exec, -1""")
e("Lkvcu:")
entry_stamp(True)
e(tag_issue())
for x in kvx_dma(1): e(x)
late_srd(LS_A + LS_F)
e(f"""v_and_b32 v{vT0}, 31, v{vLane}
v_lshrrev_b32 v{vT1}, 1, v{vT0}
v_and_b32 v{vT1}, 7, v{vT1}
v_xor_b32 v{vT1}, v{vT1}, v{vH}
v_lshlrev_b32 v{vT0}, 7, v{vT0}
v_add_u32 v{vT0}, s{sXb}, v{vT0}""")
for ks in range(4):
    e(f"v_xor_b32 v{vT2}, {2*ks}, v{vT1}\nv_lshl_add_u32 v{vRX+ks}, v{vT2}, 4, v{vT0}")
e(f"""v_bfe_u32 v{vT0}, v{vLane}, 2, 2
v_lshl_add_u32 v{vT0}, v{vH}, 3, v{vT0}
v_bfe_u32 v{vT1}, v{vLane}, 4, 1
v_and_b32 v{vT2}, 3, v{vLane}
v_lshlrev_b32 v{vT2}, 3, v{vT2}
v_lshl_add_u32 v{vT3}, v{vT1}, 5, v{vT2}
v_lshl_add_u32 v{vRQ}, v{vT0}, 6, v{vT3}
v_lshlrev_b32 v{vT1}, 14, v{vT1}
v_lshl_add_u32 v{vRW}, v{vT0}, 5, v{vT2}
s_lshr_b32 s{sT0}, s{sW}, 2
s_lshl_b32 s{sT0}, s{sT0}, 13
s_add_u32 s{sT1}, s{sT0}, {WKV}
v_add3_u32 v{vRW}, v{vRW}, v{vT1}, s{sT1}
s_add_u32 s{sT1}, s{sT1}, s{sT0}
v_add_u32 v{vRQ}, s{sT1}, v{vRQ}
v_lshrrev_b32 v{vT0}, 2, v{vLane}
v_lshlrev_b32 v{vT0}, 10, v{vT0}
v_and_b32 v{vT1}, 3, v{vLane}
v_lshl_add_u32 v{vQa}, v{vT1}, 4, v{vT0}
v_bfe_u32 v{vT0}, v{vLane}, 4, 1
v_and_b32 v{vT1}, 15, v{vLane}
v_cmp_eq_u32 vcc, v{vT0}, v{vT1}
v_mov_b32 v{vT2}, 0x3f803f80
s_nop 0
v_cndmask_b32 v{vSel}, 0, v{vT2}, vcc""")
for k in range(1, 4): e(f"v_mov_b32 v{vSel+k}, v{vSel}")
for r in range(vCs, vCs+4): e(f"v_mov_b32 v{r}, 0")
e(f"s_waitcnt vmcnt(5) lgkmcnt(0)\ns_cmp_lt_u32 s{sW}, 4\ns_cbranch_scc1 Lkvr1")
rowstat_finish()
e("Lkvr1:\ns_barrier")
tstamp(12)
def kv_reads(c):
    r = []
    for ks in range(4):
        W = vWk + 16*(c & 1) + 4*ks
        r += [f"ds_read_b128 {vr(vXf+16*c+4*ks,4)}, v{vRX+ks} offset:{4096*c}"]
        r += tr(W, vRW, (64*c+16*ks)*32) + tr(W+2, vRW, (64*c+16*ks+4)*32)
    return r
def kstat_issue():
    return f"buffer_load_dwordx4 {vr(vSt,4)}, v{vWa0}, {sr(SWS,4)}, s{sC1} offen sc1"
for x in kv_reads(0) + kvx_dma(2) + kvx_dma(3): e(x)
e(f"""v_and_b32 v{vWa0}, 31, v{vLane}
v_lshlrev_b32 v{vWa0}, 4, v{vWa0}
s_lshl_b32 s{sT0}, s{sI}, 2
s_add_u32 s{sT0}, s{sT0}, s{sW4}
s_mul_i32 s{sC0}, s{sT0}, {KVT}
s_lshl_b32 s{sC1}, s{sT0}, 9
s_add_u32 s{sC1}, s{sC1}, {STATG}""")
for c in range(4):
    m = []
    for ks in range(4):
        X = vXf+16*c+4*ks; W = vWk + 16*(c & 1) + 4*ks
        z = "0" if c == 0 and ks == 0 else None
        m += [mfma(vAcc+16, W, X, z), mfma16(vCs, W, vSel), mfma(vAcc+32, X, W, z)]
    e("s_waitcnt lgkmcnt(0)")
    if c < 3:
        for x in m[:3] + [f"s_waitcnt vmcnt({8-4*c})"] + interleave(m[3:9], kv_reads(c+1)) + m[9:]: e(x)
        if c == 0:
            tag_wait("k", 8)
            e(f"s_cmp_lt_u32 s{sW}, 4\ns_cbranch_scc1 Lkvr2")
            rowstat_store()
            e("Lkvr2:")
    else:
        e(kstat_issue())
        for x in m: e(x)
tstamp(1)
e(f"""v_and_b32 v{vT2}, 31, v{vLane}
v_lshlrev_b32 v{vT2}, 2, v{vT2}
s_xor_b32 s{sT2}, s{sXb}, 65536
s_add_u32 s{sT1}, s{sXb}, 4352
s_lshl_b32 s{sQo}, s{sW}, 16
s_add_u32 s{sQo}, s{sQo}, {64*15}
s_lshl_b32 s{sMq}, s{sW}, 12
s_add_u32 s{sMq}, s{sMq}, {WKV}""")
cs_write(vCs, f"s{sT1}")
e(f"""v_add_u32 v{vT0}, s{sXb}, v{vL16}
v_add_u32 v{vWa1}, s{sT2}, v{vL16}
v_add_u32 v{vWa2}, s{sT2}, v{vT2}
v_lshl_add_u32 v{vT3}, v{vH}, 4, s{sXb}
s_cmp_ge_u32 s{sW}, 4
s_cbranch_scc1 LkvH""")
def wq_dma():
    for k in range(4):
        e(f"s_add_u32 m0, s{sMq}, {1024*k}\ns_add_u32 s{sT0}, s{sQo}, {16384*k}\nbuffer_load_dwordx4 v{vQa}, {sr(SWQ,4)}, s{sT0} offen lds")
def kstat_wait(tag):
    e(f"""s_mov_b32 s{sT0}, 0
    s_waitcnt vmcnt(0)
    Lks_{tag}:
    v_cmp_ne_u64 vcc, s[{sNo}:{sNo+1}], {vr(vSt+2,2)}
    s_add_u32 s{sT0}, s{sT0}, 1
    s_cmp_ge_u32 s{sT0}, 100000
    s_cbranch_vccz Lksd_{tag}
    s_cbranch_scc1 Lksd_{tag}
    {kstat_issue()}
    s_waitcnt vmcnt(0)
    s_branch Lks_{tag}
    Lksd_{tag}:""")
for q in range(4): e(f"ds_write_b128 v{vT0}, {vr(vAcc+32+4*q,4)} offset:{1024*q}")
e(f"v_xor_b32 v{vT1}, 0x10000, v{vT3}\ns_waitcnt lgkmcnt(0)\ns_barrier")
e(f"""ds_read_b128 {vr(vWk,4)}, v{vWa1}
ds_read_b128 {vr(vWk+4,4)}, v{vWa1} offset:1024
ds_read_b128 {vr(vSt+12,4)}, v{vT3} offset:{4352+64}
ds_read_b128 {vr(vSt+16,4)}, v{vT3} offset:{4352+96}
ds_read_b128 {vr(vWk+8,4)}, v{vT1} offset:{4352+64}
ds_read_b128 {vr(vWk+12,4)}, v{vT1} offset:{4352+96}""")
e(f"""v_and_b32 v{vT0}, 0x33, v{vLane}
v_bfe_u32 v{vT1}, v{vLane}, 2, 1
v_lshl_or_b32 v{vT0}, v{vT1}, 3, v{vT0}
v_bfe_u32 v{vT1}, v{vLane}, 3, 1
v_lshl_or_b32 v{vT0}, v{vT1}, 2, v{vT0}
v_lshlrev_b32 v{vT0}, 4, v{vT0}
s_waitcnt lgkmcnt(0)""")
for p in range(0, 8, 2):
    e(pk("v_pk_add_f32", vAcc+24+p, [('p', vAcc+24+p), ('p', vWk+p)]))
    e(pk("v_pk_add_f32", vSt+12+p, [('p', vSt+12+p), ('p', vWk+8+p)]))
kstat_wait("l")
e(f"v_sub_f32 v{vSt+4}, 0, v{vSt}")
lin_fold(vAcc+24, vSt+12, vSt+4, vSt+1, 8)
for p in range(4): e(f"v_cvt_pk_bf16_f32 v{vAcc+16+p}, v{vAcc+24+2*p}, v{vAcc+25+2*p}")
e(f"buffer_store_dwordx4 {vr(vAcc+16,4)}, v{vT0}, {sr(SWS,4)}, s{sC0} offen sc1\ns_branch LkvS")
e("LkvH:")
e(f"ds_write_b128 v{vT0}, {vr(vAcc+24,4)}\nds_write_b128 v{vT0}, {vr(vAcc+28,4)} offset:1024")
e(f"v_add_u32 v{vT1}, s{sXb}, v{vT2}\ns_waitcnt lgkmcnt(0)\ns_barrier")
e(f"ds_read_b32 v{vSt+6}, v{vT1} offset:4352\nds_read_b32 v{vSt+7}, v{vWa2} offset:4352")
for q in range(4): e(f"ds_read_b128 {vr(vAcc+48+4*q,4)}, v{vWa1} offset:{1024*q}")
tstamp(21)
kstat_wait("h")
tstamp(23)
e(f"ds_write_b32 v{vT1}, v{vSt} offset:4608\nds_write_b32 v{vT1}, v{vSt+1} offset:4736\ns_waitcnt lgkmcnt(0)")
for q in range(4):
    e(f"ds_read_b128 {vr(vWk+4*q,4)}, v{vT3} offset:{4608+32*q}\nds_read_b128 {vr(vWk+16+4*q,4)}, v{vT3} offset:{4736+32*q}")
e(f"v_add_f32 v{vSt+6}, v{vSt+6}, v{vSt+7}\nv_sub_f32 v{vSt+6}, 0, v{vSt+6}")
for p in range(0, 16, 2): e(pk("v_pk_add_f32", vAcc+32+p, [('p', vAcc+32+p), ('p', vAcc+48+p)]))
e("s_waitcnt lgkmcnt(0)")
for p in range(0, 16, 2): e(pk("v_pk_fma_f32", vAcc+32+p, [('p', vWk+p), ('b', vSt+6), ('p', vAcc+32+p)]))
for p in range(0, 16, 2): e(pk("v_pk_mul_f32", vAcc+32+p, [('p', vAcc+32+p), ('p', vWk+16+p)]))
for p in range(8): e(f"v_cvt_pk_bf16_f32 v{vAcc+32+p}, v{vAcc+32+2*p}, v{vAcc+33+2*p}")
v_lane_addr(vT0)
for p in range(8): e(f"v_mov_b32 v{vAcc+32+p}, 0x3f803f80")
e(f"""s_mov_b32 exec_lo, 0x1ffff
s_mov_b32 exec_hi, 0xffff
buffer_store_dwordx4 {vr(vAcc+32,4)}, v{vT0}, {sr(SWS,4)}, s{sC0} offen offset:1024 sc1
buffer_store_dwordx4 {vr(vAcc+36,4)}, v{vT0}, {sr(SWS,4)}, s{sC0} offen offset:{1024+528} sc1
s_mov_b64 exec, -1""")
tstamp(29)
e("LkvS:")
wq_dma()
for r in range(4): e(f"v_mov_b32 v{vCs+r}, 0")
e(f"s_lshl_b32 s{sT2}, s{sI}, 7\ns_add_u32 s{sT2}, s{sT2}, {KFLG}\ns_waitcnt vmcnt(4)\ns_barrier")
flag_set(sT2, "kv")
stamp(13)
tflush(); TS.clear(); rt_out()
e("s_waitcnt vmcnt(0)\ns_barrier")
def q_reads(c):
    r = []
    for ks in range(4):
        W = vWk + 16*(c & 1) + 4*ks
        r += tr(W, vRQ, (64*c+16*ks)*64) + tr(W+2, vRQ, (64*c+16*ks+4)*64)
    return r
for x in q_reads(0): e(x)
for c in range(4):
    m = []
    for ks in range(4):
        X = vXf+16*c+4*ks; W = vWk + 16*(c & 1) + 4*ks
        m += [mfma(vAcc, W, X, "0" if c == 0 and ks == 0 else None), mfma16(vCs, W, vSel)]
    e("s_waitcnt lgkmcnt(0)")
    for x in interleave(m[:4], q_reads(c+1) if c < 3 else []) + m[4:]: e(x)
e(f"""s_or_b32 s{sT2}, s{sXb}, {65536+8192}
s_lshr_b32 s{sT3}, s{sW}, 2
s_lshl_b32 s{sT3}, s{sT3}, 7
s_add_u32 s{sT1}, s{sT2}, s{sT3}
s_add_u32 s{sT1}, s{sT1}, 4096
v_add_u32 v{vWa1}, s{sT2}, v{vL16}
v_lshl_add_u32 v{vT3}, v{vH}, 4, s{sT2}
s_nop 3""")
cs_write(vCs, f"s{sT1}")
e(f"s_cmp_ge_u32 s{sW}, 4\ns_cbranch_scc1 LkvH2\ns_waitcnt lgkmcnt(0)\ns_barrier")
for q in range(4): e(f"ds_read_b128 {vr(vWk+4*q,4)}, v{vWa1} offset:{1024*q}")
cs_read(vAcc+48, 4096); cs_read(vWk+16, 4096+128)
e("s_waitcnt lgkmcnt(0)")
for p in range(0, 16, 2):
    e(pk("v_pk_add_f32", vAcc+p, [('p', vAcc+p), ('p', vWk+p)]))
    e(pk("v_pk_add_f32", vAcc+48+p, [('p', vAcc+48+p), ('p', vWk+16+p)]))
q_epilogue(vAcc+48)
a_init(); fin_init()
e("s_branch Lp2\nLkvH2:")
for q in range(4): e(f"ds_write_b128 v{vWa1}, {vr(vAcc+4*q,4)} offset:{1024*q}")
e(f"s_mov_b32 s{sKf}, {KFLG}")
e(flags_issue(sKf))
e("s_waitcnt lgkmcnt(0)\ns_barrier")
f_init()
flags_wait(sKf, "kv2", 0)
kv_dma("c")
e("s_waitcnt vmcnt(0)\ns_barrier\ns_branch LFkv")
e("Lkvwait:")
stamp(16)
flags_wait(sKf, "kv", 0)
stamp(17)
kv_dma("b")
e("s_waitcnt vmcnt(0)")

AAL = 6 if "--a6" in sys.argv else 3
vm = []
def vtag(tag): vm.append(tag)
def vwait_s(tag):
    idx = max(i for i, t in enumerate(vm) if t == tag)
    return f"s_waitcnt vmcnt({min(63, len(vm)-1-idx)})"
def emit_seq(seq):
    for x in seq:
        if isinstance(x, list): emit_seq(x)
        elif isinstance(x, tuple): vtag(x[0]); e(x[1])
        elif callable(x): e(x())
        else: e(x)
e("Lp2:")
stamp(2)
e("s_waitcnt lgkmcnt(0)\ns_barrier")
stamp(3)
e(f"""s_setprio {3 if "--ap3" in sys.argv else 1}
ds_read_b128 {vr(aQ[0],4)}, v{vAq}
ds_read_b128 {vr(aK[0],4)}, v{vAk}
ds_read_b128 {vr(aQ[1],4)}, v{vAq} offset:1024
ds_read_b128 {vr(aK[1],4)}, v{vAk} offset:{KVT}
ds_read_b128 {vr(aVl[0],4)}, v{vAv}
ds_read_b128 {vr(aVh[0],4)}, v{vAv} offset:528
s_waitcnt lgkmcnt(4)""")
e(mfma(aS[0], aK[0], aQ[0], "0"))
e("s_waitcnt lgkmcnt(3)")
e(mfma(aS[1], aK[0], aQ[1], "0"))
e("s_nop 9")
for b in range(2):
    t = vT0+2*b; S = aS[b]
    e(f"v_max3_f32 v{t}, v{S}, v{S+1}, v{S+2}")
    for p in range(3, 15, 2): e(f"v_max3_f32 v{t}, v{t}, v{S+p}, v{S+p+1}")
    e(f"v_max_f32 v{t}, v{t}, v{S+15}\nv_mov_b32 v{t+1}, v{t}")
e(f"""s_nop 1
v_permlane32_swap_b32 v{vT0}, v{vT1}
v_permlane32_swap_b32 v{vT2}, v{vT3}
s_mov_b32 s{sSt}, 0
v_max_f32 v{vT0}, v{vT0}, v{vT1}
v_max_f32 v{vT2}, v{vT2}, v{vT3}""")
for b in range(2):
    e(f"v_sub_f32 v{aC[b]}, 0, v{vT0+2*b}\nv_sub_f32 v{aC[b]+1}, 0, v{vT0+2*b}")
for r in range(16): e(f"v_sub_f32 v{aS[0]+r}, v{aS[0]+r}, v{vT0}")
for b in (1, 0):
    for r in range(2, 16, 2): e(f"v_mov_b64 {vr(aC[b]+r,2)}, {vr(aC[b],2)}")
stamp(5)
e(f"v_exp_f32 v{aS[0]}, v{aS[0]}\nv_exp_f32 v{aS[0]+1}, v{aS[0]+1}\ns_branch La1\n.p2align {AAL}\nLa0:")
for n in range(32):
    b = n & 1; T = n >> 1
    X = aS[b]; Y = aS[b ^ 1]
    ex = [f"v_exp_f32 v{X+i}, v{X+i}" for i in range(16)]
    Tp = (n-1) >> 1; Tn = (n+1) >> 1
    seq = ex[0:2] + [smf(aO[b ^ 1], aVh[Tp & 1], Y+8, vIdx)] + (["La1:"] if n == 0 else []) + ex[2:5]
    seq += [mfma(Y, aK[Tn & 1], aQ[b ^ 1], vr(aC[b ^ 1], 16))]
    if b:
        rd = [f"ds_read_b128 {vr(aVl[(T+1)&1],4)}, v{vAv} offset:{(T+1)*KVT}",
              f"ds_read_b128 {vr(aVh[(T+1)&1],4)}, v{vAv} offset:{(T+1)*KVT+528}",
              f"ds_read_b128 {vr(aK[T&1],4)}, v{vAk} offset:{(T+2)*KVT}"]
        seq += rd + ex[5:10]
    else: seq += ["s_waitcnt lgkmcnt(0)"] + ex[5:10]
    seq += [smf(aO[b], aVl[T & 1], X, vIdx)] + ex[10:16]
    for x in seq: e(x)
if PROF:
    e(f"s_memtime s[{sTm}:{sTm+1}]\ns_lshl_b32 s{sT0}, s{sSt}, 2\ns_add_u32 s{sT0}, s{sT0}, s{sPo}\ns_waitcnt lgkmcnt(0)\nv_mov_b32 v0, s{sTm}\nbuffer_store_dword v0, off, {sr(SWS,4)}, s{sT0} offset:72")
e(f"""v_add_u32 v{vAk}, {16*KVT}, v{vAk}
v_add_u32 v{vAv}, {16*KVT}, v{vAv}
s_add_u32 s{sSt}, s{sSt}, 1
s_cmp_eq_u32 s{sSt}, 1
s_cbranch_scc0 La2
{'' if PROF else 's_waitcnt vmcnt(0)'}
s_barrier
s_branch La0
La2:
s_cmp_lt_u32 s{sSt}, 4
s_cbranch_scc1 La0""")
e(smf(aO[1], aVh[1], aS[1]+8, vIdx))
e(f"s_mov_b32 s{sC0}, {f2u(2.0**40):#x}\ns_mov_b32 s{sC1}, {f2u(2.0**126):#x}")
for b in range(2):
    O = aO[b]
    e(f"s_mov_b32 s{sRetry}, 0\nLfin{b}:")
    e(f"""v_rcp_f32 v{O+10}, v{O+8}
    v_max3_f32 v{vT1}, abs(v{O}), abs(v{O+1}), abs(v{O+2})
    v_max3_f32 v{vT1}, v{vT1}, abs(v{O+3}), abs(v{O+4})
    v_max3_f32 v{vT1}, v{vT1}, abs(v{O+5}), abs(v{O+6})
    v_max_f32 v{vT1}, v{vT1}, abs(v{O+7})
    v_cmp_nlt_f32 vcc, v{O+8}, s{sC0}
    v_cmp_nlt_f32 s[{sEx}:{sEx+1}], v{vT1}, s{sC1}""")
    for p in range(8): e(f"v_mul_f32 v{O+p}, v{O+p}, v{O+10}")
    e(f"s_or_b64 vcc, vcc, s[{sEx}:{sEx+1}]")
    for p in range(4): e(f"v_cvt_pk_bf16_f32 v{O+p}, v{O+2*p}, v{O+2*p+1}")
    for p in range(4): e(f"v_min_u32 v{O+p}, -2, v{O+p}")
    e(f"s_cbranch_vccnz Lfallback{b}\nLok{b}:")
    e(f"buffer_store_dwordx4 {vr(O,4)}, v{vL16}, {sr(SWS,4)}, s{sOp if b == 0 else sOp2} offen sc1")
stamp(6)
OSC = " sc1"
gX = [136, 140]; gG = [144, 176]; gR = [8, 40]
e(f"buffer_load_dwordx4 {vr(gX[0],4)}, v{vRa}, {sr(SX,4)}, s{sXf} offen")
e(f"buffer_load_dwordx4 {vr(gX[1],4)}, v{vRa}, {sr(SX,4)}, s{sXf2} offen")
e("s_waitcnt lgkmcnt(0)\ns_setprio 0\ns_barrier\ns_barrier")
stamp(8)
for tt in range(2):
    for q in range(8): e(f"ds_read_b128 {vr(gG[tt]+4*q,4)}, v{vRr} offset:{128*tt+XK*(q//2)+512*(q%2)}")
def sum4(r):
    for p in range(0, 8, 2):
        e(pk("v_pk_add_f32", r+p, [('p', r+p), ('p', r+8+p)]))
        e(pk("v_pk_add_f32", r+16+p, [('p', r+16+p), ('p', r+24+p)]))
    for p in range(0, 8, 2): e(pk("v_pk_add_f32", r+p, [('p', r+p), ('p', r+16+p)]))
for tt in range(2):
    G = gG[tt]
    e(f"s_waitcnt lgkmcnt({8*(1-tt)})")
    for p in range(8): e(f"v_add_f32 v{G+p}, v{G+p}, v{G+8+p}\nv_add_f32 v{G+16+p}, v{G+16+p}, v{G+24+p}")
    for p in range(8): e(f"v_add_f32 v{G+p}, v{G+p}, v{G+16+p}")
    for p in range(8): e(f"v_mul_f32 v{G+8+p}, {f2u(-1.4426950408889634):#x}, v{G+p}")
    for p in range(8): e(f"v_exp_f32 v{G+8+p}, v{G+8+p}")
    for p in range(8): e(f"v_add_f32 v{G+8+p}, 1.0, v{G+8+p}")
    for p in range(8): e(f"v_rcp_f32 v{G+8+p}, v{G+8+p}")
    e("s_waitcnt vmcnt(0)")
    for p in range(4): e(f"v_lshlrev_b32 v{G+16+2*p}, 16, v{gX[tt]+p}\nv_and_b32 v{G+17+2*p}, 0xffff0000, v{gX[tt]+p}")
    for p in range(8): e(f"v_mul_f32 v{G+p}, v{G+p}, v{G+8+p}")
stamp(9)
e("s_barrier")
for tt in range(2):
    for q in range(8): e(f"ds_read_b128 {vr(gR[tt]+4*q,4)}, v{vRr2} offset:{128*tt+XK*(q//2)+512*(q%2)}")
for tt in range(2):
    R = gR[tt]; G = gG[tt]
    e(f"s_waitcnt lgkmcnt({8*(1-tt)})")
    sum4(R)
    for p in range(0, 8, 2): e(pk("v_pk_fma_f32", R+p, [('p', R+p), ('p', G+p), ('p', G+16+p)]))
    for p in range(4): e(f"v_cvt_pk_bf16_f32 v{R+p}, v{R+2*p}, v{R+2*p+1}")
    e(f"buffer_store_dwordx4 {vr(R,4)}, v{vRa}, {sr(SOUT,4)}, s{sXf if tt == 0 else sXf2} offen{OSC}")
def the_end():
    stamp(11)
    if RT: e(f"s_waitcnt vmcnt(0)\ns_memrealtime s[100:101]\ns_waitcnt lgkmcnt(0)\nv_mov_b32 v0, s100\nbuffer_store_dword v0, off, {sr(SWS,4)}, s{sPo} offset:56")
the_end()
e("Lend:\ns_endpgm")

e("LFkv:")
kv_rest("k")
e("LF:")
tag_wait("f", 0)
e("s_setprio 0\ns_barrier")
flag_set(sHs, "h", 4)
RG = SP + [aslot(n) for n in range(4)]
def u_dma(m):
    srdw, row = (SWO, 64*m) if m < 8 else (SWD, 64*(m-8))
    return [f"s_add_u32 m0, s{sDm}, {RG[m % 7]}", f"s_add_u32 s{sT0}, s{sDo}, {row*1024}",
            (f"u{m}", f"buffer_load_dwordx4 v{vDa}, {sr(srdw,4)}, s{sT0} offen lds"),
            (f"u{m}", f"buffer_load_dwordx4 v{vDa2}, {sr(srdw,4)}, s{sT0} offen offset:1024 lds")]
def u_reads(m, F):
    a = RG[m % 7]; win = 1 if a >= SP[0] else 0; off = a - win*SP[0]
    r0, r1 = vRd+2*win, vRd+2*win+1
    return tr(F, r0, off) + tr(F+2, r0, off+1024) + tr(F+4, r1, off) + tr(F+6, r1, off+1024)
def h_loads(s):
    r = []
    if s % 4 == 0: r += [f"s_add_u32 s{sC0}, s{sHo}, {1024*s}", f"s_add_u32 s{sC1}, s{sC0}, {88*1024}"]
    for tt in range(2):
        r.append((f"h{s}", f"buffer_load_dwordx4 {vr(fH+8*(s % 6)+4*tt,4)}, v{vL16}, {sr(SWS,4)}, s{sC0 if tt == 0 else sC1} offen offset:{1024*(s%4)} sc1"))
    return r
for m in range(7): emit_seq(u_dma(m))
for m in range(8):
    e(vwait_s(f"u{m}"))
    for x in u_reads(m, fWo+8*m): e(x)
    e("s_waitcnt lgkmcnt(0)")
    emit_seq(u_dma(m+7))
tstamp(18)
e(flags_issue(sHc))
flags_wait(sHc, "h", 0)
tstamp(19)
for s in range(6): emit_seq(h_loads(s))
for x in u_reads(8, fWb[0]): e(x)
FB = int(sys.argv[sys.argv.index("--fb")+1]) if "--fb" in sys.argv else 15
for s in range(22):
    m = 8+s; W = fWb[s & 1]
    if s == FB:
        tstamp(20); e("s_barrier\ns_setprio 2"); tstamp(21)
    if s < 21:
        e(vwait_s(f"u{m+1}"))
        for x in u_reads(m+1, fWb[(s+1) & 1]): e(x)
        e("s_waitcnt lgkmcnt(4)")
    else: e("s_waitcnt lgkmcnt(0)")
    if m+7 < 30: emit_seq(u_dma(m+7))
    e(vwait_s(f"h{s}"))
    if s == 21: e(f"s_cmp_ge_u32 s{sW4}, 2\ns_cbranch_scc1 Lskip21")
    for tt in range(2):
        for ch in range(2 if "--nofm" not in sys.argv else 0): e(mfma(fA+32*tt+16*ch, W+4*ch, fH+8*(s % 6)+4*tt, "0" if s == 0 else None))
    if s+6 < 22: emit_seq(h_loads(s+6))
e("Lskip21:\ns_nop 8")
tstamp(22)
ORD = [7, 6, 5, 4, 3, 2, 1, 0] if M48 else [7, 6, 5, 4, 1, 0, 3, 2]
def o_load(k):
    tt, i = k & 1, k >> 1
    return f"buffer_load_dwordx4 {vr(opos(i)+4*tt,4)}, v{vL16}, {sr(SWS,4)}, s{(sOc, sOc2, sOc3, sOc4)[2*tt+(i>>2)]} offen offset:{1024*(i%4)} sc1"
def opos(i): return fO + 8*ORD.index(i)
zer = [f"v_mov_b64 {vr(fS+r,2)}, 0" for r in range(0, 64, 2)]
for q in range(16):
    e(f"ds_write_b128 v{vRw}, {vr(fA+4*q,4)} offset:{XB*(q//2)+XP*(q%2)}")
    if q >= 4: e(f"s_waitcnt lgkmcnt(4)\n{o_load(2*ORD[(q-4)//2]+(q & 1))}")
e("s_waitcnt lgkmcnt(0)\ns_barrier")
for k in range(12, 16): e(o_load(2*ORD[k//2]+(k & 1)))
tstamp(9)
def o_pair(i, tag, wait):
    B = opos(i)
    if wait is not None: e(f"s_waitcnt vmcnt({wait})")
    else: e(f"s_bitcmp1_b32 s{sSt}, {i}\ns_cbranch_scc0 Lon{tag}{i}")
    e(f"""v_max3_u32 v{vT1}, v{B}, v{B+1}, v{B+2}
    v_max3_u32 v{vT1}, v{vT1}, v{B+3}, v{B+4}
    v_max3_u32 v{vT1}, v{vT1}, v{B+5}, v{B+6}
    v_max_u32 v{vT1}, v{vT1}, v{B+7}
    v_cmp_eq_u32 vcc, s{sT1}, v{vT1}
    s_cbranch_vccnz Lon{tag}{i}
    s_bitset0_b32 s{sSt}, {i}""")
    for tt in range(2):
        for ch in range(2): e(mfma(fS+32*tt+16*ch, fWo+8*i+4*ch, B+4*tt))
    e(f"Lon{tag}{i}:")
def acc_chain(tt, ch): return [mfma(fS+32*tt+16*ch, fWo+8*i+4*ch, opos(i)+4*tt, "0" if n == 0 else None) for n, i in enumerate(ORD)]
def s_wr(tt, ch): return [f"ds_write_b128 v{vRw2+tt}, {vr(fS+32*tt+16*ch+4*q,4)} offset:{XB*(2*ch+q//2)+XP*(q%2)}" for q in range(4)]
e(f"v_mov_b32 v{vT1}, 0")
for n, x in enumerate(acc_chain(0, 0)):
    B = fO+8*n
    e(f"s_waitcnt vmcnt({14-2*n})\n{x}")
    for p in range(0, 8, 2): e(f"v_max3_u32 v{vT1}, v{vT1}, v{B+p}, v{B+p+1}")
e(f"v_cmp_eq_u32 vcc, -1, v{vT1}\ns_cbranch_vccnz Lor0")
c1, c2, c3 = acc_chain(0, 1), acc_chain(1, 0), acc_chain(1, 1)
for prev, c in (((0, 0), c1), ((0, 1), c2), ((1, 0), c3)):
    for x in [c[0], "s_nop 3", c[1], "s_nop 3", c[2]] + interleave(c[3:7], s_wr(*prev)) + c[7:]: e(x)
stamp(7)
e("s_nop 11")
for x in s_wr(1, 1): e(x)
e("Lsd:")
e("s_waitcnt lgkmcnt(0)\ns_barrier")
stamp(10); tflush(); TS.clear()
the_end()
e("s_endpgm")
e(f"Lor0:\ns_nop 8")
for x in zer: e(x)
e(f"s_mov_b32 s{sT0}, 0\ns_mov_b32 s{sSt}, 0xff\ns_mov_b32 s{sT1}, -1\ns_branch Lor2")
e("Lor:\ns_sleep 4")
for i in ORD:
    e(f"s_bitcmp1_b32 s{sSt}, {i}\ns_cbranch_scc0 Lorn{i}\n{o_load(2*i)}\n{o_load(2*i+1)}\nLorn{i}:")
e(f"""s_add_u32 s{sT0}, s{sT0}, 1
s_cmp_ge_u32 s{sT0}, 200000
s_cbranch_scc1 Lod
s_waitcnt vmcnt(0)
Lor2:""")
for i in ORD: o_pair(i, "b", None)
e(f"s_cmp_lg_u32 s{sSt}, 0\ns_cbranch_scc1 Lor\nLod:\ns_nop 6")
for tt in range(2):
    for ch in range(2):
        for x in s_wr(tt, ch): e(x)
e("s_branch Lsd")
for b in range(2):
    S = aS[0]; O = aO[b]; C = aC[b]; Q = aQ[b]
    e(f"""Lfallback{b}:
    s_cmp_lg_u32 s{sRetry}, 0
    s_cbranch_scc1 Lok{b}
    s_mov_b32 s{sRetry}, 1
    s_mov_b32 s{sSt}, 0
    v_mov_b32 v{vT1}, 0xff800000
    s_waitcnt lgkmcnt(0)
    Lfb1{b}:
    buffer_load_dwordx4 {vr(aK[0],4)}, v{vL16}, {sr(SWS,4)}, s{sSt} offen sc1
    s_waitcnt vmcnt(0)""")
    e(mfma(S, aK[0], Q, "0"))
    e("s_nop 11")
    for p in range(0, 16, 2): e(f"v_max3_f32 v{vT1}, v{vT1}, v{S+p}, v{S+p+1}")
    e(f"""s_add_u32 s{sSt}, s{sSt}, {KVT}
    s_cmp_lt_u32 s{sSt}, {64*KVT}
    s_cbranch_scc1 Lfb1{b}
    v_mov_b32 v{vT2}, v{vT1}
    s_nop 1
    v_permlane32_swap_b32 v{vT1}, v{vT2}
    s_nop 1
    v_max_f32 v{vT1}, v{vT1}, v{vT2}""")
    for r in range(16): e(f"v_sub_f32 v{C+r}, 0, v{vT1}")
    for r in range(12): e(f"v_mov_b32 v{O+r}, 0")
    e(f"""v_subrev_u32 v{vT0}, {64*KVT}, v{vAv}
    s_mov_b32 s{sSt}, 0
    Lfb2{b}:
    buffer_load_dwordx4 {vr(aK[0],4)}, v{vL16}, {sr(SWS,4)}, s{sSt} offen sc1
    buffer_load_dwordx4 {vr(aVl[0],4)}, v{vT0}, {sr(SWS,4)}, s{sSt} offen sc1
    buffer_load_dwordx4 {vr(aVh[0],4)}, v{vT0}, {sr(SWS,4)}, s{sSt} offen offset:528 sc1
    s_waitcnt vmcnt(0)""")
    e(mfma(S, aK[0], Q, vr(C, 16)))
    e("s_nop 11")
    for i in range(16): e(f"v_exp_f32 v{S+i}, v{S+i}")
    e("s_nop 1")
    e(smf(O, aVl[0], S, vIdx)); e(smf(O, aVh[0], S+8, vIdx))
    e(f"""s_add_u32 s{sSt}, s{sSt}, {KVT}
    s_cmp_lt_u32 s{sSt}, {64*KVT}
    s_cbranch_scc1 Lfb2{b}
    s_nop 9
    s_branch Lfin{b}""")
e("Lcodeend:")

L += ['.section .rodata,"a"', ".p2align 6", f".amdhsa_kernel {NAME}_kernel",
      "  .amdhsa_next_free_vgpr 256", "  .amdhsa_next_free_sgpr 102", "  .amdhsa_accum_offset 256",
      "  .amdhsa_group_segment_fixed_size 0", "  .amdhsa_kernarg_size 96", "  .amdhsa_user_sgpr_count 2",
      "  .amdhsa_user_sgpr_kernarg_segment_ptr 1", "  .amdhsa_system_sgpr_workgroup_id_x 1", ".end_amdhsa_kernel"]
open(OUT, "w").write("\n".join(L) + "\n")
print("wrote", OUT, len(L), "lines")
```

```python
import sys, struct
NAME = "recurrent_scan__grouped_kv_mqa__geglu_ffn__prompt"
PROF = "--prof" in sys.argv
OUT = [a for a in sys.argv[1:2] if not a.startswith("--")]
OUT = OUT[0] if OUT else f"cdna_kernels/{NAME}.s"

L = []
def e(s):
    for ln in s.split("\n"):
        if not ln.strip(): continue
        L.append(("    " + ln.strip()) if not ln.strip().endswith(":") else ln.strip())
def f2u(x): return struct.unpack("<I", struct.pack("<f", x))[0]
def vr(a, n): return f"v[{a}:{a+n-1}]"
def sr(a, n): return f"s[{a}:{a+n-1}]"

KVT = 2080
KVIMG = 0
HIMG = 135168
OIMG = HIMG + 64*88*1024
HFLG = OIMG + 64*32*1024
KFLG = HFLG + 256*128
STATG = KFLG + 16*128
PROFO = STATG + 2048*16
WS_BYTES = PROFO + 256*8*256
CNT_KV = 0
KVRDY = 128
STG = 45056
XOFF, GOFF, UOFF, QOFF = 0, 16384, 28672, 40960
STGK, QOFFK, NBK = 24832, 20736, 5
QIMG = 135168
STATM = 160768
CSUM = 162816
MRX = 159744
STL = 163712
KFL = 163776
LDS_BYTES = 163840
SX, SWQ, SWK, SWV, SWO, SWG, SWD, SOUT, SDBG, SWS = 4, 8, 12, 16, 20, 24, 28, 32, 36, 40
sI, sJ, sW, sW4 = 44, 45, 46, 47
sXo, sWo, sQo, sLb = 48, 49, 50, 51
sMx, sMw, sMq = 52, 53, 54
sSt, sDl, sT0, sT1, sT2, sT3 = 55, 56, 57, 58, 59, 60
sTB, sCS, sRetry, sRb = 61, 62, 63, 3
sEx = 88
sTm = 90
sPo = 92
sC0, sC1, sC2, sC3 = 94, 95, 96, 97
sOp = 98
TOUCH = int("--touch" in sys.argv)
vLane, vH, vT0, vT1, vT2, vT3 = 1, 2, 3, 4, 5, 6
vXa0, vXa1, vWa0, vWa1, vWa2, vQa = 7, 8, 9, 10, 11, 12
vRX = 13
vRW, vRQ = 17, 18
vSel = 20
vCs = 24
vF = 32
vAcc = 96
vSt = 160
aQ = [8, 12]; aK = [16, 20]; aVl = [24, 28]; aVh = [32, 36]; aS = [40, 56]; aC = [72, 88]; aO = [104, 120]
fA, fWo, fWb, fH, fX, fG = 8, 72, [136, 144], 152, 200, 204
fS, fO, fR = 136, 8, 8
vIdx, vAk, vAv, vDa, vL16, vRa = 240, 241, 242, 243, 244, 245
vPoll = 246
vRd = 248
vRw, vRr, vRr2, vDa2 = 252, 253, 254, 255
vRw2 = 238
vAq = 237
sKq, sTt, sHo, sDo, sDm, sHc, sXf, sOc, sOc2, sHs = 64, 65, 66, 67, 68, 69, 70, 71, 72, 73
sOc3, sOc4, sOp2 = 80, 81, 99
sXf2 = 64
sNo = 86
sRow, sKf = 63, 85
ASL = 8320
XB, XK, XP = 8512, 2112, 1056
XF0, XS0, XS1 = 34048, 0, 102144
def aslot(n): return ASL*n
SP = [135168, 143360, 151552]

nstamp = [0]
DBGT = "--dbgt" in sys.argv
DT = {0: 75, 12: 76, 1: 77, 2: 78, 3: 79, 6: 80, 9: 81, 7: 82, 11: 83}
PAD = (int(sys.argv[sys.argv.index("--pad")+1]), int(sys.argv[sys.argv.index("--pad")+2])) if "--pad" in sys.argv else None
npad = [0]
PADB = sNo if "--padg" in sys.argv else 100
def stamp(k):
    if PAD and PAD[0] == k:
        npad[0] += 1
        e(f"Lpad{npad[0]}:\ns_memrealtime s[{sTm}:{sTm+1}]\ns_waitcnt lgkmcnt(0)\ns_sub_u32 s{sTm}, s{sTm}, s{PADB}\ns_sleep 8\ns_cmp_lt_u32 s{sTm}, {PAD[1]}\ns_cbranch_scc1 Lpad{npad[0]}")
    if DBGT and k in DT:
        e(f"s_memrealtime s[{sTm}:{sTm+1}]\ns_waitcnt lgkmcnt(0)\ns_sub_u32 s{DT[k]}, s{sTm}, s100")
        if k == 11:
            e(f"s_memtime s[{sTm}:{sTm+1}]\ns_waitcnt lgkmcnt(0)\ns_sub_u32 s84, s{sTm}, s92")
            e(f"s_cmp_lg_u32 s2, 64\ns_cbranch_scc1 Lend\ns_cmp_lg_u32 s{sW}, 4\ns_cbranch_scc1 Lend")
            for n, r in enumerate(range(75, 85)):
                e(f"v_mov_b32 v0, s{r}\nbuffer_store_dword v0, off, {sr(SDBG,4)}, 0 offset:{4+4*n}\ns_nop 1")
    if not PROF: return
    e(f"""s_memtime s[{sTm}:{sTm+1}]
    s_waitcnt lgkmcnt(0)
    v_mov_b32 v0, s{sTm}
    buffer_store_dword v0, off, {sr(SWS,4)}, s{sPo} offset:{4*k}""")
    if k in RTS:
        e(f"""s_memrealtime s[{sTm}:{sTm+1}]
        s_waitcnt lgkmcnt(0)
        v_mov_b32 v0, s{sTm}
        buffer_store_dword v0, off, {sr(SWS,4)}, s{sPo} offset:{4*RTS[k]}""")
RTS = {12: 24, 1: 25, 5: 26, 6: 27, 11: 28}

TS = []
def tstamp(k):
    if not PROF: return
    r = 74 + len(TS); TS.append((k, r))
    e(f"s_memtime s[{sTm}:{sTm+1}]\ns_waitcnt lgkmcnt(0)\ns_mov_b32 s{r}, s{sTm}")
def tflush():
    for k, r in TS: e(f"v_mov_b32 v0, s{r}\nbuffer_store_dword v0, off, {sr(SWS,4)}, s{sPo} offset:{4*k}\ns_nop 1")
def tick(acc):
    if not PROF or "--notick" in sys.argv: return ""
    r = f"s_memtime s[{sTm}:{sTm+1}]\ns_waitcnt lgkmcnt(0)\n"
    if acc is not None: r += f"s_sub_u32 s99, s{sTm}, s99\ns_add_u32 s{acc}, s{acc}, s99\n"
    return r + f"s_mov_b32 s99, s{sTm}"

def interleave(main, fill):
    out = []; n = len(main); m = len(fill); k = 0
    for i, a in enumerate(main):
        out.append(a)
        t = (m * (i + 1)) // n
        out += fill[k:t]; k = t
    return out

def mfma(d, a, b, c=None):
    c = vr(d, 16) if c is None else c
    return f"v_mfma_f32_32x32x16_bf16 {vr(d,16)}, {vr(a,4)}, {vr(b,4)}, {c}"
def mfma16(d, a, b): return f"v_mfma_f32_16x16x32_bf16 {vr(d,4)}, {vr(a,4)}, {vr(b,4)}, {vr(d,4)}"
def smf(d, a, b, idx): return f"v_smfmac_f32_32x32x32_bf16 {vr(d,16)}, {vr(a,4)}, {vr(b,8)}, v{idx}"

TK = PROF and "--tk" in sys.argv
def tk(acc):
    if not TK: return ""
    r = f"s_memtime s[{sTm}:{sTm+1}]\ns_waitcnt lgkmcnt(0)\n"
    if acc is not None: r += f"s_sub_u32 s82, s{sTm}, s82\ns_add_u32 s{acc}, s{acc}, s82\n"
    return r + f"s_mov_b32 s82, s{sTm}"
def tkout():
    if TK: e(f"v_mov_b32 v0, s80\nbuffer_store_dword v0, off, {sr(SWS,4)}, s{sPo} offset:{4*29}\ns_nop 1\nv_mov_b32 v0, s81\nbuffer_store_dword v0, off, {sr(SWS,4)}, s{sPo} offset:{4*30}")
def tr(d, a, off): return [f"ds_read_b64_tr_b16 {vr(d,2)}, v{a} offset:{off}"]
def tag_issue(): return f"buffer_load_dwordx2 {vr(vPoll,2)}, off, {sr(SDBG,4)}, 0 sc1"
def tag_wait(tag, first_wait):
    e(f"""s_mov_b32 s{sT0}, 0
    s_waitcnt vmcnt({first_wait})
    Ltag_{tag}:
    v_readfirstlane_b32 s{sNo}, v{vPoll}
    v_readfirstlane_b32 s{sNo+1}, v{vPoll+1}
    s_add_u32 s{sT0}, s{sT0}, 1
    s_cmp_lg_u32 s{sNo}, 0
    s_cbranch_scc1 Ltagd_{tag}
    s_cmp_ge_u32 s{sT0}, 100000
    s_cbranch_scc1 Ltagd_{tag}
    s_sleep 1
    {tag_issue()}
    s_waitcnt vmcnt(0)
    s_branch Ltag_{tag}
    Ltagd_{tag}:""")
def flags_issue(base):
    return f"""v_and_b32 v{vPoll}, 15, v{vLane}
    v_lshlrev_b32 v{vPoll}, 7, v{vPoll}
    buffer_load_dwordx2 {vr(vPoll,2)}, v{vPoll}, {sr(SWS,4)}, s{base} offen sc1"""
def h_poll_issue(): return flags_issue(sHc)
def flags_wait(base, tag, first_wait):
    e(f"""s_mov_b32 s{sT0}, 0
    s_waitcnt vmcnt({first_wait})
    Lfw_{tag}:
    v_cmp_ne_u64 vcc, s[{sNo}:{sNo+1}], {vr(vPoll,2)}
    s_add_u32 s{sT0}, s{sT0}, 1
    s_cmp_ge_u32 s{sT0}, 100000
    s_cbranch_vccz Lfwd_{tag}
    s_cbranch_scc1 Lfwd_{tag}
    s_sleep 3
    {flags_issue(base)}
    s_waitcnt vmcnt(0)
    s_branch Lfw_{tag}
    Lfwd_{tag}:""")
def flag_set(off_sreg, tag, wave=0):
    e(f"""s_cmp_lg_u32 s{sW}, {wave}
    s_cbranch_scc1 Lsig_{tag}
    v_mov_b32 v{vPoll}, s{sNo}
    v_mov_b32 v{vPoll+1}, s{sNo+1}
    s_mov_b64 exec, 1
    buffer_store_dwordx2 {vr(vPoll,2)}, off, {sr(SWS,4)}, s{off_sreg} sc1
    s_mov_b64 exec, -1
    Lsig_{tag}:""")

hdr = open(f"cdna_kernels/{NAME}.s.ref").read().split("\n")
hdr = [h for h in hdr[:15] if h.startswith(";") and "@launch" not in h]
L += hdr
L.append(f"; @launch grid=(256,1,1) block=(512,1,1) lds={LDS_BYTES}")
L += ['.amdgcn_target "amdgcn-amd-amdhsa--gfx950"', ".text", f".globl {NAME}_kernel", ".p2align 8",
      f".type {NAME}_kernel,@function"]
e(f"{NAME}_kernel:")
RT = PROF
if RT: e("s_memrealtime s[100:101]\ns_memtime s[98:99]")
if DBGT or PAD: e("s_memrealtime s[100:101]\ns_memtime s[92:93]")
MAP84 = f"""s_and_b32 s{sI}, s{sT0}, 1
s_lshl_b32 s{sI}, s{sI}, 3
s_and_b32 s{sT2}, s{sT1}, 7
s_add_u32 s{sI}, s{sI}, s{sT2}
s_lshr_b32 s{sJ}, s{sT0}, 1
s_lshl_b32 s{sJ}, s{sJ}, 2
s_lshr_b32 s{sT3}, s{sT1}, 3
s_add_u32 s{sJ}, s{sJ}, s{sT3}
s_sub_u32 s{sJ}, 15, s{sJ}
s_and_b32 s{sTB}, s{sT0}, 3
s_lshl_b32 s{sTB}, s{sTB}, 3
s_add_u32 s{sTB}, s{sTB}, s{sT2}
s_lshr_b32 s{sCS}, s{sT0}, 2
s_lshl_b32 s{sCS}, s{sCS}, 2
s_add_u32 s{sCS}, s{sCS}, s{sT3}"""
MAP48 = f"""s_lshr_b32 s{sT2}, s{sT0}, 1
s_lshl_b32 s{sI}, s{sT2}, 2
s_and_b32 s{sT3}, s{sT1}, 3
s_add_u32 s{sI}, s{sI}, s{sT3}
s_lshl_b32 s{sTB}, s{sT2}, 3
s_and_b32 s{sT3}, s{sT1}, 7
s_add_u32 s{sTB}, s{sTB}, s{sT3}
s_and_b32 s{sT0}, s{sT0}, 1
s_lshl_b32 s{sJ}, s{sT0}, 3
s_lshr_b32 s{sT3}, s{sT1}, 2
s_add_u32 s{sJ}, s{sJ}, s{sT3}
s_sub_u32 s{sJ}, 15, s{sJ}
s_lshl_b32 s{sCS}, s{sT0}, 2
s_lshr_b32 s{sT3}, s{sT1}, 3
s_add_u32 s{sCS}, s{sCS}, s{sT3}"""
M48 = "--m48" in sys.argv
MAP = MAP48 if M48 else MAP84
PFC = "" if "--nopfc" in sys.argv else f"""s_cmp_lg_u32 s{sW}, 7
s_cbranch_scc1 Lnop0
s_getpc_b64 s[94:95]
Lpc0:
s_bfe_u32 s{sT0}, s2, 0x20003
s_lshl_b32 s{sT0}, s{sT0}, 13
v_lshl_add_u32 v{vT1}, v{vLane}, 7, s{sT0}
v_min_u32 v{vT1}, Lcodeend-Lpc0-4, v{vT1}
global_load_dword v223, v{vT1}, s[94:95]"""
e(f"""s_cmp_ge_u32 s2, 256
s_cbranch_scc1 Lend
s_load_dwordx2 s[{SX}:{SX+1}], s[0:1], 0
s_load_dwordx2 s[{SWG}:{SWG+1}], s[0:1], 48
s_load_dwordx2 s[{SWQ}:{SWQ+1}], s[0:1], 8
s_load_dwordx2 s[{SWV}:{SWV+1}], s[0:1], 24
s_load_dwordx2 s[{SDBG}:{SDBG+1}], s[0:1], 80
s_load_dwordx2 s[{SWS}:{SWS+1}], s[0:1], 88
v_and_b32 v{vLane}, 63, v0
v_lshrrev_b32 v{vT0}, 6, v0
v_lshrrev_b32 v{vH}, 5, v{vLane}
v_readfirstlane_b32 s{sW}, v{vT0}
{PFC}
Lnop0:
s_and_b32 s{sT0}, s2, 7
s_lshr_b32 s{sT1}, s2, 3
{MAP}
s_and_b32 s{sW4}, s{sW}, 3
v_lshrrev_b32 v{vT0}, 3, v{vLane}
v_lshlrev_b32 v{vT0}, 10, v{vT0}
v_and_b32 v{vT1}, 7, v{vLane}
v_lshrrev_b32 v{vT2}, 4, v{vLane}
v_xor_b32 v{vT1}, v{vT1}, v{vT2}
v_lshl_add_u32 v{vXa0}, v{vT1}, 4, v{vT0}
v_xor_b32 v{vXa1}, 64, v{vXa0}
v_add_u32 v{vXa1}, {8192-1024}, v{vXa1}
v_lshlrev_b32 v{vL16}, 4, v{vLane}
s_lshl_b32 s{sXo}, s{sI}, 17
s_lshl_b32 s{sT0}, s{sW4}, 15
s_add_u32 s{sXo}, s{sXo}, s{sT0}
s_lshl_b32 s{sRow}, s{sI}, 4
s_add_u32 s{sRow}, s{sRow}, s{sJ}
s_lshl_b32 s{sRow}, s{sRow}, 2
s_add_u32 s{sRow}, s{sRow}, s{sW4}
s_cmp_eq_u32 s{sJ}, 15
s_cselect_b32 s{sT0}, 16, 56
s_load_dwordx2 s[{SWK}:{SWK+1}], s[0:1], s{sT0}
s_mov_b32 s{sT1}, {512*2752}
s_cselect_b32 s{SWK+2}, 16384, s{sT1}
s_mov_b32 s{SWK+3}, 0x20000""")
SWU = SWK
vRs = 144
for d, nbytes in ((SX, 2048*1024), (SWG, 512*2752), (SWQ, 512*1024), (SWV, 16384), (SDBG, 256), (SWS, WS_BYTES)):
    e(f"s_mov_b32 s{d+2}, {nbytes}\ns_mov_b32 s{d+3}, 0x20000")
def late_srd(lst):
    for d, off, nbytes in lst:
        e(f"s_load_dwordx2 s[{d}:{d+1}], s[0:1], {off}\ns_mov_b32 s{d+2}, {nbytes}\ns_mov_b32 s{d+3}, 0x20000")
LS_A = [(SOUT, 72, 2048*1024)]; LS_F = [(SWO, 32, 512*1024), (SWD, 64, 1376*1024)]
def entry_stamp(defer=False):
    if PROF:
        e(f"s_lshl_b32 s{sPo}, s2, 3\ns_add_u32 s{sPo}, s{sPo}, s{sW}\ns_lshl_b32 s{sPo}, s{sPo}, 8\ns_add_u32 s{sPo}, s{sPo}, {PROFO}")
    if defer: tstamp(0); return
    stamp(0); rt_out()
def rt_out():
    if RT: e(f"s_nop 1\nv_mov_b32 v0, s100\nbuffer_store_dword v0, off, {sr(SWS,4)}, s{sPo} offset:60\ns_nop 1\nv_mov_b32 v0, s98\nbuffer_store_dword v0, off, {sr(SWS,4)}, s{sPo} offset:16")
def row_loads():
    e(f"""s_lshl_b32 s{sT1}, s{sRow}, 11
    buffer_load_dwordx4 {vr(vRs,4)}, v{vL16}, {sr(SX,4)}, s{sT1} offen
    buffer_load_dwordx4 {vr(vRs+4,4)}, v{vL16}, {sr(SX,4)}, s{sT1} offen offset:1024""")
WKV = 131072
vXf, vWk = 32, 192
sXb = sMw
def kvx_dma(c):
    return [f"""s_add_u32 m0, s{sXb}, {4096*c+2048*hf}
        s_add_u32 s{sT0}, s{sXo}, {128*c+16384*hf}
        buffer_load_dwordx4 v{vXa0}, {sr(SX,4)}, s{sT0} offen lds
        buffer_load_dwordx4 v{vXa1}, {sr(SX,4)}, s{sT0} offen offset:1024 lds""" for hf in range(2)]
e(f"""s_cselect_b32 s{sT2}, 1, 0
s_cmp_lt_u32 s{sW}, 4
s_cbranch_scc1 Lnorow
s_waitcnt lgkmcnt(0)""")
row_loads()
e(f"""s_cmp_eq_u32 s{sJ}, 15
s_cbranch_scc0 Lcomp
Lnorow:
s_cmp_eq_u32 s{sJ}, 15
s_cbranch_scc0 Lhelp
s_memrealtime s[{sTm}:{sTm+1}]
s_lshl_b32 s{sXb}, s{sW}, 14
s_lshr_b32 s{sT3}, s{sW}, 2
s_lshl_b32 s{sT0}, s{sT3}, 9
s_add_u32 s{sXo}, s{sXo}, s{sT0}
s_or_b32 s{sT0}, s2, s{sW}
s_cmp_lg_u32 s{sT0}, 0
s_waitcnt lgkmcnt(0)
s_cbranch_scc1 Lnotag
s_or_b32 s{sTm}, s{sTm}, 1
v_mov_b32 v{vPoll}, s{sTm}
v_mov_b32 v{vPoll+1}, s{sTm+1}
s_mov_b64 exec, 1
buffer_store_dwordx2 {vr(vPoll,2)}, off, {sr(SDBG,4)}, 0 sc1
s_mov_b64 exec, -1
Lnotag:
s_lshl_b32 s{sT0}, s{sW}, 11
s_add_u32 m0, s{sT0}, {WKV}
s_nop 0
buffer_load_dwordx4 v{vL16}, {sr(SWV,4)}, s{sT0} offen lds
buffer_load_dwordx4 v{vL16}, {sr(SWV,4)}, s{sT0} offen offset:1024 lds
s_add_u32 m0, s{sT0}, {WKV+16384}
s_nop 0
buffer_load_dwordx4 v{vL16}, {sr(SWK,4)}, s{sT0} offen lds
buffer_load_dwordx4 v{vL16}, {sr(SWK,4)}, s{sT0} offen offset:1024 lds""")
for x in kvx_dma(0): e(x)
e("s_branch Lkvcu\nLhelp:")

def v_lane_addr(d):
    e(f"""v_and_b32 v{d}, 15, v{vLane}
    v_lshlrev_b32 v{d}, 4, v{d}
    v_lshl_add_u32 v{d}, v{vH}, 8, v{d}
    s_mov_b32 exec_lo, 0xffff0000
    s_mov_b32 exec_hi, 0xffff0000
    v_mov_b32 v{d}, 512""")
def fin_init():
    e(f"""s_lshl_b32 s{sT0}, s{sTB}, 16
    s_lshl_b32 s{sT1}, s{sCS}, 7
    s_add_u32 s{sT0}, s{sT0}, s{sT1}
    s_lshl_b32 s{sT1}, s{sW4}, 14
    s_add_u32 s{sXf}, s{sT0}, s{sT1}
    s_add_u32 s{sXf2}, s{sXf}, 8192
    v_lshrrev_b32 v{vT0}, 3, v{vLane}
    v_and_b32 v{vT1}, 7, v{vLane}
    v_lshlrev_b32 v{vRa}, 10, v{vT0}
    v_lshl_add_u32 v{vRa}, v{vT1}, 4, v{vRa}
    v_bfe_u32 v{vT1}, v{vLane}, 1, 2
    v_mul_u32_u24 v{vT1}, {XB}, v{vT1}
    v_lshl_add_u32 v{vT0}, v{vT0}, 4, v{vT1}
    v_and_b32 v{vT1}, 1, v{vLane}
    v_mul_u32_u24 v{vT1}, {XP}, v{vT1}
    s_and_b32 s{sT0}, s{sW4}, 1
    s_lshl_b32 s{sT0}, s{sT0}, 8
    v_add3_u32 v{vT0}, v{vT0}, v{vT1}, s{sT0}
    s_lshr_b32 s{sT0}, s{sW4}, 1
    s_mul_i32 s{sT1}, s{sT0}, {4*XB}
    s_add_u32 s{sT1}, s{sT1}, {XF0}
    v_add_u32 v{vRr}, s{sT1}, v{vT0}
    s_mul_i32 s{sT1}, s{sT0}, {XS1}
    v_add_u32 v{vRr2}, s{sT1}, v{vT0}""")
def a_init():
    a_sent(); a_addr()
def a_sent():
    e(f"""s_lshl_b32 s{sT0}, s{sI}, 2
    s_add_u32 s{sT0}, s{sT0}, s{sW4}
    s_lshl_b32 s{sT0}, s{sT0}, 5
    s_lshr_b32 s{sT1}, s{sJ}, 1
    s_add_u32 s{sT0}, s{sT0}, s{sT1}
    s_and_b32 s{sT1}, s{sJ}, 1
    s_lshl_b32 s{sT1}, s{sT1}, 4
    s_add_u32 s{sT0}, s{sT0}, s{sT1}
    s_lshl_b32 s{sT0}, s{sT0}, 10
    s_add_u32 s{sOp}, s{sT0}, {OIMG}
    s_add_u32 s{sOp2}, s{sOp}, 8192
    v_mov_b64 v[232:233], -1
    v_mov_b64 v[234:235], -1
    buffer_store_dwordx4 v[232:235], v{vL16}, {sr(SWS,4)}, s{sOp} offen sc1
    buffer_store_dwordx4 v[232:235], v{vL16}, {sr(SWS,4)}, s{sOp2} offen sc1""")
def a_addr(zero=True):
    v_lane_addr(vAv)
    e(f"""s_mov_b32 exec_lo, 0xffee0000
    s_mov_b32 exec_hi, 0xffee0000
    v_mov_b32 v{vAv}, 0x4000000
    s_mov_b64 exec, -1
    v_add_u32 v{vAv}, 1024, v{vAv}
    v_mov_b32 v{vAk}, v{vL16}
    v_mov_b32 v{vIdx}, 0xdddd
    s_lshl_b32 s{sT0}, s{sW4}, 11
    s_add_u32 s{sT0}, s{sT0}, {QIMG}
    v_add_u32 v{vAq}, s{sT0}, v{vL16}""")
    if zero: a_zero()
def a_zero():
    for b in range(2):
        for r in range(0, 12, 2): e(f"v_mov_b64 {vr(aO[b]+r,2)}, 0")
def f_init():
    e(f"""v_lshrrev_b32 v{vT0}, 3, v{vLane}
    v_lshlrev_b32 v{vT0}, 10, v{vT0}
    v_and_b32 v{vT1}, 7, v{vLane}
    v_bfe_u32 v{vT2}, v{vLane}, 4, 1
    v_lshlrev_b32 v{vT2}, 2, v{vT2}
    v_xor_b32 v{vT1}, v{vT1}, v{vT2}
    v_lshl_add_u32 v{vDa}, v{vT1}, 4, v{vT0}
    v_add_u32 v{vDa2}, {8192-1024}, v{vDa}
    s_lshl_b32 s{sDo}, s{sW4}, 14
    s_lshl_b32 s{sT1}, s{sCS}, 7
    s_add_u32 s{sDo}, s{sDo}, s{sT1}
    s_lshl_b32 s{sDm}, s{sW4}, 11
    s_mul_i32 s{sHo}, s{sTB}, 176
    s_mul_i32 s{sT0}, s{sW4}, 22
    s_add_u32 s{sHo}, s{sHo}, s{sT0}
    s_lshl_b32 s{sHo}, s{sHo}, 10
    s_add_u32 s{sHo}, s{sHo}, {HIMG}
    s_lshl_b32 s{sT0}, s{sTB}, 3
    s_add_u32 s{sT0}, s{sT0}, s{sW4}
    s_lshl_b32 s{sT0}, s{sT0}, 13
    s_add_u32 s{sOc}, s{sT0}, {OIMG}
    s_add_u32 s{sOc2}, s{sOc}, 4096
    s_add_u32 s{sOc3}, s{sOc}, 32768
    s_add_u32 s{sOc4}, s{sOc}, {32768+4096}
    s_lshr_b32 s{sHc}, s{sTB}, 1
    s_lshl_b32 s{sHc}, s{sHc}, 11
    s_add_u32 s{sHc}, s{sHc}, {HFLG}
    s_lshl_b32 s{sHs}, s{sI}, 4
    s_add_u32 s{sHs}, s{sHs}, s{sJ}
    s_lshl_b32 s{sHs}, s{sHs}, 7
    s_add_u32 s{sHs}, s{sHs}, {HFLG}
    v_bfe_u32 v{vT0}, v{vLane}, 2, 2
    v_lshl_add_u32 v{vT0}, v{vH}, 2, v{vT0}
    v_lshlrev_b32 v{vT0}, 7, v{vT0}
    v_bfe_u32 v{vT1}, v{vLane}, 4, 1
    v_lshl_add_u32 v{vT0}, v{vT1}, 5, v{vT0}
    v_and_b32 v{vT1}, 3, v{vLane}
    v_lshl_add_u32 v{vT0}, v{vT1}, 3, v{vT0}
    v_bfe_u32 v{vT1}, v{vLane}, 3, 1
    v_lshl_add_u32 v{vT0}, v{vT1}, 6, v{vT0}
    v_add_u32 v{vRd}, s{sDm}, v{vT0}
    v_xor_b32 v{vRd+1}, 64, v{vRd}
    v_add_u32 v{vRd+2}, {SP[0]}, v{vRd}
    v_add_u32 v{vRd+3}, {SP[0]}, v{vRd+1}
    s_mul_i32 s{sT0}, s{sW4}, {XK}
    v_add_u32 v{vRw2}, s{sT0}, v{vL16}
    v_add_u32 v{vRw}, {XF0}, v{vRw2}
    v_add_u32 v{vRw2+1}, {XS1}, v{vRw2}""")
def kv_rest(tag):
    e(f"s_setprio 0\ns_lshl_b32 s{sT1}, s{sW4}, 12")
    for n in range(6):
        e(f"s_add_u32 s{sT0}, s{sT1}, {36*1024+16384*n}\ns_mov_b32 m0, s{sT0}\ns_nop 0")
        for k in range(4): e(f"buffer_load_dwordx4 v{vL16}, {sr(SWS,4)}, s{sT0} offen offset:{1024*k} sc1 lds")
    e(tag_issue())
    e("s_setprio 2")

def spread(m, fill):
    w = [16 if "16x16" in x else 32 for x in m]
    tot = sum(c for c, _ in fill); W = sum(w)
    out = []; k = 0; acc = 0; cw = 0
    for x, wx in zip(m, w):
        out.append(x); cw += wx
        while k < len(fill) and (acc + fill[k][0]/2) * W <= tot * cw:
            out.append(fill[k][1]); acc += fill[k][0]; k += 1
    out += [t for _, t in fill[k:]]
    return out


C1 = -2*0.7978845608028654*1.4426950408889634
C3 = C1*0.044715
def gelu_consts(m, r, d):
    e(f"""v_sub_f32 v{d}, 0, v{m}
    v_mul_f32 v{d+3}, v{r}, v{r}
    v_mul_f32 v{d+1}, {f2u(C1):#x}, v{r}
    v_mul_f32 v{d+2}, {f2u(C3):#x}, v{r}
    v_mul_f32 v{d+2}, v{d+2}, v{d+3}
    v_rcp_f32 v{d+3}, v{d+3}""")
def bc(reg, pos, n):
    base = reg & ~1
    return vr(base, 2), reg & 1
def pk(op, d, srcs, neg=None):
    ops = []; lo = []; hi = []
    for t, r in srcs:
        if t == 'p': ops.append(vr(r, 2)); lo.append(0); hi.append(1)
        else: ops.append(vr(r & ~1, 2)); lo.append(r & 1); hi.append(r & 1)
    return f"{op} {vr(d,2)}, {', '.join(ops)} op_sel:[{','.join(map(str,lo))}] op_sel_hi:[{','.join(map(str,hi))}]"
def gelu_tile(g, u, csg, csu, k, tmp, n=16, dst=None):
    for p in range(0, n, 2):
        e(pk("v_pk_fma_f32", g+p, [('b', k), ('p', csg+p), ('p', g+p)]))
        e(pk("v_pk_fma_f32", u+p, [('b', k), ('p', csu+p), ('p', u+p)]))
    for p in range(0, n, 2):
        e(pk("v_pk_mul_f32", tmp+p, [('p', g+p), ('p', g+p)]))
    for p in range(0, n, 2):
        e(pk("v_pk_fma_f32", tmp+p, [('p', tmp+p), ('b', k+2), ('b', k+1)]))
    for p in range(0, n, 2):
        e(pk("v_pk_mul_f32", tmp+p, [('p', tmp+p), ('p', g+p)]))
    for p in range(n): e(f"v_exp_f32 v{tmp+p}, v{tmp+p}")
    for p in range(0, n, 2):
        e(pk("v_pk_mul_f32", u+p, [('p', u+p), ('p', g+p)]))
    for p in range(0, n, 2):
        e(pk("v_pk_fma_f32", tmp+p, [('p', tmp+p), ('b', k+3), ('b', k+3)]))
    for p in range(n): e(f"v_rcp_f32 v{tmp+p}, v{tmp+p}")
    e("s_nop 0")
    for p in range(0, n, 2):
        e(pk("v_pk_mul_f32", u+p, [('p', u+p), ('p', tmp+p)]))
    for p in range(n//2): e(f"v_cvt_pk_bf16_f32 v{dst[p] if dst else g+p}, v{u+2*p}, v{u+2*p+1}")

def cs_read(d, slot_off):
    for q in range(4): e(f"ds_read_b128 {vr(d+4*q,4)}, v{vT3} offset:{slot_off+32*q}")

def lin_fold(acc, cs, negm, scale, n=16):
    for p in range(0, n, 2):
        e(pk("v_pk_fma_f32", acc+p, [('b', negm), ('p', cs+p), ('p', acc+p)]))
    for p in range(0, n, 2):
        e(pk("v_pk_mul_f32", acc+p, [('p', acc+p), ('b', scale)]))

def q_epilogue(cs):
    e(f"v_mul_f32 v{vSt+2}, {f2u(0.25*1.4426950408889634):#x}, v{vSt+1}")
    lin_fold(vAcc, cs, vSt+4, vSt+2)
    for p in range(8): e(f"v_cvt_pk_bf16_f32 v{vAcc+p}, v{vAcc+2*p}, v{vAcc+2*p+1}")
    e(f"""s_lshl_b32 s{sT0}, s{sW4}, 11
    s_add_u32 s{sT0}, s{sT0}, {QIMG}
    v_lshl_add_u32 v{vT0}, v{vLane}, 4, s{sT0}
    ds_write_b128 v{vT0}, {vr(vAcc,4)}
    ds_write_b128 v{vT0}, {vr(vAcc+4,4)} offset:1024""")


def rowstat_finish():
    a = vRs+8
    e(f"v_mov_b32 v{vT0}, 0x3f803f80")
    for k in range(4):
        for r in range(2):
            x = vRs+4*r+k
            c0 = "0" if k == 0 else f"v{a+2*r}"; c1 = "0" if k == 0 else f"v{a+2*r+1}"
            e(f"v_dot2_f32_bf16 v{a+2*r}, v{x}, v{vT0}, {c0}\nv_dot2_f32_bf16 v{a+2*r+1}, v{x}, v{x}, {c1}")
    e("s_nop 2")
    for ctl in ("row_shr:1", "row_shr:2", "row_shr:4", "row_shr:8"):
        for k in range(4): e(f"v_add_f32_dpp v{a+k}, v{a+k}, v{a+k} {ctl} row_mask:0xf bank_mask:0xf bound_ctrl:0")
    for ctl in ("row_bcast:15 row_mask:0xa", "row_bcast:31 row_mask:0xc"):
        for k in range(4): e(f"v_add_f32_dpp v{a+k}, v{a+k}, v{a+k} {ctl} bank_mask:0xf")
    for r in range(2):
        d = vRs+4*r
        e(f"""v_mul_f32 v{d}, {f2u(1/512):#x}, v{a+2*r}
        v_mul_f32 v{d+1}, {f2u(1/512):#x}, v{a+2*r+1}
        v_fma_f32 v{d+1}, -v{d}, v{d}, v{d+1}
        v_max_f32 v{d+1}, 0, v{d+1}
        v_add_f32 v{d+1}, {f2u(1e-5):#x}, v{d+1}
        v_rsq_f32 v{d+1}, v{d+1}""")
def rowstat_post():
    e(f"""s_lshl_b32 s{sT0}, s{sW4}, 4
    s_add_u32 s{sT0}, s{sT0}, {STL}
    v_mov_b32 v{vT0}, s{sT0}
    s_mov_b32 exec_lo, 0
    s_brev_b32 exec_hi, 1
    ds_write_b64 v{vT0}, {vr(vRs,2)}
    ds_write_b64 v{vT0}, {vr(vRs+4,2)} offset:8
    s_mov_b64 exec, -1""")
def rowstat_store():
    for r in range(2): e(f"v_mov_b32 v{vRs+4*r+2}, s{sNo}\nv_mov_b32 v{vRs+4*r+3}, s{sNo+1}")
    e(f"""s_lshl_b32 s{sT0}, s{sRow}, 5
    s_add_u32 s{sT0}, s{sT0}, {STATG}
    s_mov_b32 exec_lo, 0
    s_brev_b32 exec_hi, 1
    buffer_store_dwordx4 {vr(vRs,4)}, off, {sr(SWS,4)}, s{sT0} sc1
    buffer_store_dwordx4 {vr(vRs+4,4)}, off, {sr(SWS,4)}, s{sT0} offset:16 sc1
    s_mov_b64 exec, -1""")
def kv_dma(tag):
    e(f"s_mul_i32 s{sT1}, s{sW4}, 3072")
    for n in range(3):
        e(f"s_add_u32 s{sT0}, s{sT1}, {12288*n}\ns_mov_b32 m0, s{sT0}\ns_nop 0")
        for k in range(3): e(f"buffer_load_dwordx4 v{vL16}, {sr(SWS,4)}, s{sT0} offen offset:{1024*k} sc1 lds")
def tr_lane(rowmul, d):
    e(f"""v_lshrrev_b32 v{vT0}, 4, v{vLane}
    v_bfe_u32 v{vT1}, v{vLane}, 2, 2
    v_lshl_add_u32 v{vT0}, v{vT0}, 3, v{vT1}
    v_mul_u32_u24 v{vT0}, {rowmul}, v{vT0}
    v_bfe_u32 v{vT1}, v{vLane}, 4, 1
    v_lshl_add_u32 v{vT0}, v{vT1}, 5, v{vT0}
    v_and_b32 v{vT1}, 3, v{vLane}
    v_lshl_add_u32 v{d}, v{vT1}, 3, v{vT0}""")
def ones_col0(d):
    e(f"""v_and_b32 v{vT0}, 15, v{vLane}
    v_cmp_eq_u32 vcc, 0, v{vT0}
    v_mov_b32 v{vT1}, 0x3f803f80
    s_nop 0
    v_cndmask_b32 v{d}, 0, v{vT1}, vcc""")
    for k in range(1, 4): e(f"v_mov_b32 v{d+k}, v{d}")
def rot_delta():
    return f"s_add_u32 s{sRb}, s{sRb}, 1\ns_cmp_eq_u32 s{sRb}, 3\ns_cselect_b32 s{sDl}, s{sC3}, {STG}\ns_cselect_b32 s{sRb}, 0, s{sRb}"
def cs16_write(accs, slot0_sreg, stride):
    e(f"v_add_u32 v{vT0}, s{slot0_sreg}, v{vLane}\ns_mov_b32 exec_lo, 0x00010001\ns_mov_b32 exec_hi, 0x00010001")
    for n, a in enumerate(accs): e(f"ds_write_b128 v{vT0}, {vr(a,4)} offset:{stride*n}")
    e("s_mov_b64 exec, -1")

ROT = int(sys.argv[sys.argv.index("--rot")+1]) if "--rot" in sys.argv else 7
sKs = 84
C0 = "--c0" in sys.argv
NR = 7 if C0 else 8
def dma_x():
    return [f"s_add_u32 m0, s{sLb}, s{sMx}", f"s_add_u32 s{sT0}, s{sXo}, 16384",
            f"buffer_load_dwordx4 v{vXa0}, {sr(SX,4)}, s{sXo} offen lds",
            f"buffer_load_dwordx4 v{vXa1}, {sr(SX,4)}, s{sXo} offen offset:1024 lds",
            "s_add_u32 m0, m0, 2048", f"s_add_u32 s{sXo}, s{sXo}, 128",
            f"buffer_load_dwordx4 v{vXa0}, {sr(SX,4)}, s{sT0} offen lds",
            f"buffer_load_dwordx4 v{vXa1}, {sr(SX,4)}, s{sT0} offen offset:1024 lds"]
def dma_w():
    r = []
    for k, sd in enumerate((SWG, SWU)):
        r += [f"s_add_u32 m0, s{sLb}, s{sMw}" if k == 0 else f"s_add_u32 m0, m0, {UOFF-GOFF}", "s_nop 0",
              f"buffer_load_dwordx4 v{vWa0}, {sr(sd,4)}, s{sWo} offen lds",
              f"buffer_load_dwordx4 v{vWa1}, {sr(sd,4)}, s{sWo} offen offset:1024 lds",
              f"buffer_load_dwordx4 v{vWa2}, {sr(sd,4)}, s{sWo} offen offset:2048 lds"]
    r += [f"s_add_u32 m0, s{sLb}, s{sMq}", f"s_add_u32 s{sWo}, s{sWo}, {64*2752}",
          f"buffer_load_dwordx4 v{vQa}, {sr(SWQ,4)}, s{sQo} offen lds", f"s_add_u32 s{sQo}, s{sQo}, 65536",
          f"s_add_u32 s{sLb}, s{sLb}, {STG}", f"s_cmp_ge_u32 s{sLb}, {3*STG}", f"s_cselect_b32 s{sLb}, 0, s{sLb}"]
    if ROT:
        r += [f"s_add_u32 s{sKs}, s{sKs}, 1", f"s_cmp_eq_u32 s{sKs}, 8",
              f"s_cselect_b32 s{sT0}, {128*NR}, 0", f"s_cselect_b32 s{sT1}, {64*NR*2752}, 0", f"s_cselect_b32 s{sT2}, {64*NR*1024}, 0",
              f"s_sub_u32 s{sXo}, s{sXo}, s{sT0}", f"s_sub_u32 s{sWo}, s{sWo}, s{sT1}", f"s_sub_u32 s{sQo}, s{sQo}, s{sT2}"]
    return r
e(f"s_mov_b32 s{sLb}, 0\ns_lshl_b32 s{sMx}, s{sW4}, 12")
if ROT and "--rm" in sys.argv: e(f"s_lshl_b32 s{sKs}, s{sI if M48 else sJ}, 1\ns_add_u32 s{sKs}, s{sKs}, s{sJ if M48 else sI}\ns_and_b32 s{sKs}, s{sKs}, {ROT}")
RM = sys.argv[sys.argv.index("--rm")+1] if "--rm" in sys.argv else "a"
if RM == "a":
    e(f"""s_xor_b32 s{sKs}, s{sI}, s{sJ}
    s_and_b32 s{sKs}, s{sKs}, 1
    s_lshl_b32 s{sKs}, s{sKs}, 2
    s_lshr_b32 s{sT0}, s{sI}, 1
    s_xor_b32 s{sT0}, s{sT0}, s{sJ}
    s_lshr_b32 s{sT0}, s{sT0}, 1
    s_and_b32 s{sT0}, s{sT0}, 2
    s_or_b32 s{sKs}, s{sKs}, s{sT0}""")
if RM == "b":
    e(f"""s_add_u32 s{sKs}, s{sI}, s{sJ}
    s_and_b32 s{sKs}, s{sKs}, 3
    s_lshl_b32 s{sKs}, s{sKs}, 1
    s_lshr_b32 s{sT0}, s{sI}, 1
    s_xor_b32 s{sT0}, s{sT0}, s{sJ}
    s_bfe_u32 s{sT0}, s{sT0}, 0x10002
    s_or_b32 s{sKs}, s{sKs}, s{sT0}""")
if RM == "c":
    e(f"""s_lshr_b32 s{sKs}, s{sI}, 3
    s_lshl_b32 s{sKs}, s{sKs}, 2
    s_lshr_b32 s{sT0}, s{sJ}, 2
    s_lshl_b32 s{sT0}, s{sT0}, 1
    s_add_u32 s{sKs}, s{sKs}, s{sT0}
    s_and_b32 s{sKs}, s{sKs}, 7""")
if ROT and C0: e(f"s_cmp_eq_u32 s{sKs}, 7\ns_cselect_b32 s{sKs}, 3, s{sKs}")
def rot_x(): e(f"s_lshl_b32 s{sT0}, s{sKs}, 7\ns_add_u32 s{sXo}, s{sXo}, s{sT0}")
def rot_w(): e(f"s_mul_i32 s{sT0}, s{sKs}, {64*2752}\ns_add_u32 s{sWo}, s{sWo}, s{sT0}\ns_lshl_b32 s{sT0}, s{sKs}, 16\ns_add_u32 s{sQo}, s{sQo}, s{sT0}")
if ROT and not C0: rot_x()
for k, r in enumerate((vWa0, vWa1, vWa2)):
    e(f"""v_add_u32 v{vT0}, {64*k}, v{vLane}
    v_mul_u32_u24 v{vT1}, 43691, v{vT0}
    v_lshrrev_b32 v{vT1}, 19, v{vT1}
    v_mul_u32_u24 v{vT2}, 12, v{vT1}
    v_sub_u32 v{vT0}, v{vT0}, v{vT2}
    v_lshrrev_b32 v{vT2}, 2, v{vT1}
    v_and_b32 v{vT2}, 2, v{vT2}
    v_xor_b32 v{vT0}, v{vT0}, v{vT2}
    v_mul_u32_u24 v{vT1}, 2752, v{vT1}
    v_lshl_add_u32 v{r}, v{vT0}, 4, v{vT1}""")
    if k: e(f"v_subrev_u32 v{r}, {1024*k}, v{r}")
e(f"""v_lshrrev_b32 v{vT0}, 2, v{vLane}
v_lshlrev_b32 v{vT0}, 10, v{vT0}
v_and_b32 v{vT1}, 3, v{vLane}
v_lshlrev_b32 v{vT2}, 1, v{vH}
v_xor_b32 v{vT1}, v{vT1}, v{vT2}
v_lshl_add_u32 v{vQa}, v{vT1}, 4, v{vT0}
s_mul_i32 s{sT0}, s{sJ}, 96
s_min_u32 s{sT0}, s{sT0}, 1280
s_lshl_b32 s{sT0}, s{sT0}, 1
s_mul_i32 s{sWo}, s{sW4}, {16*2752}
s_add_u32 s{sWo}, s{sWo}, s{sT0}
s_lshl_b32 s{sQo}, s{sW4}, 14
s_lshl_b32 s{sT0}, s{sJ}, 6
s_add_u32 s{sQo}, s{sQo}, s{sT0}
s_mul_i32 s{sMw}, s{sW4}, 3072
s_add_u32 s{sMw}, s{sMw}, {GOFF}
s_lshl_b32 s{sMq}, s{sW4}, 10
s_add_u32 s{sMq}, s{sMq}, {QOFF}""")
if ROT and not C0: rot_w()
e("s_waitcnt lgkmcnt(0)")
entry_stamp()
for x in dma_x(): e(x)
w0 = dma_w()
if ROT and C0:
    k = w0.index(f"s_add_u32 s{sKs}, s{sKs}, 1")
    for x in w0[:k]: e(x)
    rot_x(); rot_w(); e(w0[k])
else:
    for x in w0: e(x)
for x in dma_x() + dma_w(): e(x)
e(tag_issue())
late_srd(LS_A)
hF = 30
e(f"""s_lshl_b32 s{sT0}, s{sW4}, 2
s_add_u32 s{sT0}, s{sT0}, {KFL}
v_mov_b32 v{hF}, s{sT0}
v_mov_b32 v{hF+1}, 0
v_mov_b32 v{vT0}, {KFL}
ds_write_b32 v{hF}, v{hF+1}
ds_write_b32 v{vT0}, v{hF+1} offset:16""")
hW = 32
e(f"s_mov_b32 s{sSt}, 0\ns_mov_b32 s{sRb}, 0\ns_mov_b32 s{sC3}, {(-2*STG) & 0xffffffff}")
if "--hp3" in sys.argv: e("s_setprio 3")
tstamp(21); e("s_waitcnt vmcnt(12) lgkmcnt(0)"); tstamp(23); e("s_barrier")
stamp(12); tflush(); TS.clear()
def helper_loop(cs):
    t = "c" if cs else "n"
    e(f"Lhl{t}:")
    if cs:
        rd, m = cs_parts()
        for x in rd: e(x)
        e(rot_delta())
        for x in dma_x(): e(x)
        e(f"v_add_u32 v{hA}, s{sDl}, v{hA}\nv_add_u32 v{hA+1}, s{sDl}, v{hA+1}\ns_waitcnt lgkmcnt(0)")
        w = dma_w(); k = 0
        for x in w:
            e(x)
            if "buffer_load" in x: e(m[k]); k += 1
        for x in m[k:]: e(x)
    else:
        for x in dma_x() + dma_w():
            if "--nodma" in sys.argv and "buffer_load" in x: continue
            e(x)
            if "--pace" in sys.argv and "buffer_load" in x: e("s_sleep 1")
        e(f"s_or_b32 s{sT0}, s{sSt}, s{sW}\ns_cmp_lg_u32 s{sT0}, 0\ns_cbranch_scc1 Lnpub")
        e(f"v_lshlrev_b32 v{vT0}, 3, v{vLane}\nv_add_u32 v{vT0}, {STL}, v{vT0}\nds_read_b64 {vr(hW,2)}, v{vT0}")
        tag_wait("p", 11)
        e(f"""v_mov_b32 v{hW+2}, s{sNo}
        v_mov_b32 v{hW+3}, s{sNo+1}
        s_lshl_b32 s{sT0}, s{sRow}, 5
        s_add_u32 s{sT0}, s{sT0}, {STATG}
        s_mov_b64 exec, 0xff
        s_waitcnt lgkmcnt(0)
        buffer_store_dwordx4 {vr(hW,4)}, v{vL16}, {sr(SWS,4)}, s{sT0} offen sc1
        s_mov_b64 exec, -1
        Lnpub:
        s_cmp_lg_u32 s{sSt}, 2
        s_cbranch_scc1 Lnini""")
        a_sent()
        e("Lnini:")
    e(f"""s_add_u32 s{sSt}, s{sSt}, 1
    {tk(None)}
    s_waitcnt vmcnt(11)
    {tk(80)}
    s_barrier
    {tk(81)}
    s_cmp_lt_u32 s{sSt}, 6
    s_cbranch_scc1 Lhl{t}""")
helper_loop(False)
tkout()
tag_wait("h", 11)
e(f"s_mov_b32 s{sKf}, {KFLG}\nv_mov_b32 v{hF+1}, 1")
e(f"s_cmp_lg_u32 s{sW}, 1\ns_cbranch_scc1 Lhns\ns_lshl_b32 s{sT1}, s{sI}, 11\ns_add_u32 s{sT1}, s{sT1}, {STATG}\ns_mov_b32 s{sT0}, 0\nLhs:")
e(f"""buffer_load_dwordx4 {vr(hW,4)}, v{vL16}, {sr(SWS,4)}, s{sT1} offen sc1
buffer_load_dwordx4 {vr(hW+4,4)}, v{vL16}, {sr(SWS,4)}, s{sT1} offen offset:1024 sc1
s_add_u32 s{sT0}, s{sT0}, 1
s_waitcnt vmcnt(0)
v_cmp_ne_u64 vcc, s[{sNo}:{sNo+1}], {vr(hW+2,2)}
v_cmp_ne_u64 s[{sEx}:{sEx+1}], s[{sNo}:{sNo+1}], {vr(hW+6,2)}
s_or_b64 vcc, vcc, s[{sEx}:{sEx+1}]
s_cmp_ge_u32 s{sT0}, 100000
s_cbranch_scc1 Lhns
s_cbranch_vccnz Lhs
Lhns:""")
a_addr(); fin_init()
e("s_waitcnt vmcnt(0)")
LATEP = "--earlyp" not in sys.argv
if not LATEP: e(flags_issue(sKf))
e(f"s_mov_b32 s{sSt}, 1\ns_barrier")
if LATEP: e(flags_issue(sKf))
def kv_try(tag):
    e(f"""s_cmp_eq_u32 s{sSt}, 0
    s_cbranch_scc1 Lkt2_{tag}
    s_waitcnt vmcnt(0)
    v_cmp_ne_u64 vcc, s[{sNo}:{sNo+1}], {vr(vPoll,2)}
    s_cbranch_vccnz Lkt1_{tag}""")
    kv_dma(tag)
    e(f"v_mov_b32 v{vT0}, {KFL}\nds_write_b32 v{vT0}, v{hF+1} offset:16\ns_mov_b32 s{sSt}, 0\ns_branch Lkt2_{tag}\nLkt1_{tag}:")
    e(flags_issue(sKf))
    e(f"Lkt2_{tag}:")
e(f"s_cmp_lg_u32 s{sW}, 1\ns_cbranch_scc1 Lhnc")
gelu_consts(hW, hW+1, hW+8); gelu_consts(hW+4, hW+5, hW+12)
e(f"""v_add_u32 v{vT0}, {STATM}, v{vL16}
ds_write_b128 v{vT0}, {vr(hW+8,4)}
ds_write_b128 v{vT0}, {vr(hW+12,4)} offset:1024
Lhnc:""")
kv_try("a")
e("s_waitcnt lgkmcnt(0)\ns_barrier")
if not LATEP: kv_try("b")
stamp(1)
e("s_waitcnt lgkmcnt(0)\ns_barrier\ns_branch Lp2")

cX = [8, 24]; cW = 40; cRX, cRW, cRQ = 68, 70, 72; cCs = 76; cO = 92; cA = 96
e("Lcomp:")
entry_stamp(True)
late_srd(LS_F)
e(f"""v_and_b32 v{vT0}, 15, v{vLane}
v_lshrrev_b32 v{vT1}, 1, v{vT0}
v_lshrrev_b32 v{vT2}, 4, v{vLane}
v_xor_b32 v{vT1}, v{vT1}, v{vT2}
v_lshlrev_b32 v{vT0}, 7, v{vT0}
s_and_b32 s{sT0}, s{sW}, 1
s_lshl_b32 s{sT0}, s{sT0}, 13
v_add_u32 v{vT0}, s{sT0}, v{vT0}
v_lshl_add_u32 v{cRX}, v{vT1}, 4, v{vT0}
v_xor_b32 v{cRX+1}, 64, v{cRX}""")
tr_lane(192, cRW)
e(f"""s_lshl_b32 s{sT1}, s{sW}, 4
s_and_b32 s{sT1}, s{sT1}, 32
v_xor_b32 v{cRW}, s{sT1}, v{cRW}
v_xor_b32 v{cRW+1}, 32, v{cRW}
s_lshl_b32 s{sT2}, s{sT1}, 1
v_add_u32 v{cRW}, s{sT2}, v{cRW}
s_lshl_b32 s{sT2}, s{sT1}, 2
v_add_u32 v{cRW+1}, s{sT2}, v{cRW+1}""")
tr_lane(64, cRQ); e(f"v_xor_b32 v{cRQ}, s{sT1}, v{cRQ}")
ones_col0(cO)
cO1 = 208
for k in range(4): e(f"v_mov_b32 v{cO1+k}, 0x3f803f80")
cEh, cEs, cEq = 73, 74, 75
cEc, cEw = 212, 213
e(f"""s_bfe_u32 s{sT2}, s{sW}, 0x10001
s_mul_i32 s{sT2}, s{sT2}, 448
s_add_u32 s{sT2}, s{sT2}, {CSUM}
s_and_b32 s{sT1}, s{sW}, 1
s_lshl_b32 s{sT1}, s{sT1}, 6
s_sub_u32 s{sT1}, s{sT2}, s{sT1}
v_and_b32 v{cEc}, 48, v{vLane}
v_add_u32 v{cEc}, s{sT2}, v{cEc}
v_add_u32 v{cEw}, s{sT1}, v{vLane}""")
e(f"""s_lshl_b32 s{sT0}, s{sI}, 2
s_and_b32 s{sT1}, s{sW}, 1
s_lshl_b32 s{sT1}, s{sT1}, 1
s_add_u32 s{sT0}, s{sT0}, s{sT1}
s_mul_i32 s{sT0}, s{sT0}, 88
s_mul_i32 s{sT1}, s{sJ}, 6
s_min_u32 s{sT1}, s{sT1}, 80
s_bfe_u32 s{sT2}, s{sW}, 0x10001
s_mul_i32 s{sT2}, s{sT2}, 3
s_add_u32 s{sT1}, s{sT1}, s{sT2}
s_and_b32 s{sT2}, s{sW}, 2""")
for add, dst in enumerate((sC0, sC1, sC2)):
    e(f"""s_add_u32 s{sT3}, s{sT1}, {add}
    s_lshr_b32 s{dst}, s{sT3}, 2
    s_add_u32 s{dst}, s{dst}, s{sT0}
    s_and_b32 s{sT3}, s{sT3}, 3
    s_mul_i32 s{sT3}, s{sT3}, 22
    s_add_u32 s{dst}, s{dst}, s{sT3}
    s_lshl_b32 s{dst}, s{dst}, 10
    s_add_u32 s{dst}, s{dst}, {HIMG}""")
e(f"""v_bfe_u32 v{vT0}, v{vLane}, 4, 1
v_lshlrev_b32 v{vT0}, 9, v{vT0}
v_and_b32 v{vT1}, 15, v{vLane}
v_lshl_add_u32 v{vT0}, v{vT1}, 4, v{vT0}
v_lshl_add_u32 v{cEh}, v{vH}, 8, v{vT0}
s_and_b32 s{sT0}, s{sW}, 1
s_lshl_b32 s{sT1}, s{sT0}, 10
s_add_u32 s{sT1}, s{sT1}, {STATM}
v_lshl_add_u32 v{cEs}, v{vT1}, 4, s{sT1}
s_lshl_b32 s{sT0}, s{sT0}, 12
s_lshl_b32 s{sT2}, s{sT2}, 9
s_add_u32 s{sT0}, s{sT0}, s{sT2}
s_add_u32 s{sT0}, s{sT0}, {QIMG}
v_lshl_add_u32 v{vT0}, v{vH}, 3, v{vT0}
v_add_u32 v{cEq}, s{sT0}, v{vT0}""")
f_init()
for r in list(range(cCs, cCs+16, 2)) + [r for r in range(cA, cA+112, 2) if not vRs <= r < vRs+16]: e(f"v_mov_b64 {vr(r,2)}, 0")
tstamp(13)
e("s_waitcnt vmcnt(0)")
tstamp(21)
rowstat_finish()
rowstat_post()
tstamp(23)
if "--touch" in sys.argv:
    e(f"""s_and_b32 s{sT2}, s{sI}, 7
    s_mul_i32 s{sT2}, s{sT2}, 48
    s_add_u32 s{sT2}, s{sT2}, 128
    s_cmp_ge_u32 s{sW}, 6
    s_cbranch_scc1 Ltc6
    v_lshrrev_b32 v{vT0}, 1, v{vLane}
    v_mul_u32_u24 v{vT0}, 2752, v{vT0}
    v_and_b32 v{vT1}, 1, v{vLane}
    v_lshl_add_u32 v{vT0}, v{vT1}, 7, v{vT0}
    s_mul_i32 s{sT0}, s{sJ}, 96
    s_min_u32 s{sT0}, s{sT0}, 1280
    s_lshl_b32 s{sT0}, s{sT0}, 1
    s_mul_i32 s{sT2}, s{sT2}, 2752
    s_add_u32 s{sT0}, s{sT0}, s{sT2}
    s_add_u32 s{sT1}, s{sT0}, {32*2752}
    s_cmp_eq_u32 s{sW}, 5
    s_cbranch_scc1 Ltc5
    buffer_load_dword v79, v{vT0}, {sr(SWG,4)}, s{sT0} offen
    s_mov_b32 exec_hi, 0
    buffer_load_dword v79, v{vT0}, {sr(SWG,4)}, s{sT1} offen
    s_branch Ltce
    Ltc5:
    buffer_load_dword v79, v{vT0}, {sr(SWU,4)}, s{sT0} offen
    s_mov_b32 exec_hi, 0
    buffer_load_dword v79, v{vT0}, {sr(SWU,4)}, s{sT1} offen
    s_branch Ltce
    Ltc6:
    s_cmp_eq_u32 s{sW}, 7
    s_cbranch_scc1 Ltc7
    v_lshrrev_b32 v{vT0}, 1, v{vLane}
    v_lshlrev_b32 v{vT0}, 10, v{vT0}
    v_and_b32 v{vT1}, 1, v{vLane}
    v_lshl_add_u32 v{vT0}, v{vT1}, 7, v{vT0}
    s_lshl_b32 s{sT0}, s{sI}, 17
    s_and_b32 s{sT1}, s{sJ}, 3
    s_lshl_b32 s{sT1}, s{sT1}, 15
    s_add_u32 s{sT0}, s{sT0}, s{sT1}
    buffer_load_dword v79, v{vT0}, {sr(SX,4)}, s{sT0} offen offset:256
    buffer_load_dword v79, v{vT0}, {sr(SX,4)}, s{sT0} offen offset:512
    buffer_load_dword v79, v{vT0}, {sr(SX,4)}, s{sT0} offen offset:768
    s_branch Ltce
    Ltc7:
    v_lshlrev_b32 v{vT0}, 10, v{vLane}
    s_lshl_b32 s{sT2}, s{sT2}, 10
    s_lshl_b32 s{sT0}, s{sJ}, 6
    s_add_u32 s{sT0}, s{sT0}, s{sT2}
    s_mov_b32 exec_hi, 0xffff
    buffer_load_dword v79, v{vT0}, {sr(SWQ,4)}, s{sT0} offen
    Ltce:
    s_mov_b64 exec, -1""")
e("s_nop 1")
for r in range(vRs, vRs+16, 2): e(f"v_mov_b64 {vr(r,2)}, 0")
e(f"s_mov_b32 s{sSt}, 0\ns_mov_b32 s{sRb}, 0\ns_mov_b32 s{sC3}, {(-2*STG) & 0xffffffff}\ns_setprio 2")
e(f"s_bitcmp1_b32 s{sW}, 0\ns_cbranch_scc1 Lcl1")
NF = 7
def comp_loop(var):
    tag = f"{var}"
    def wrd(n, k2):
        if n == 0: a, o, rs = cRQ, QOFF, 64
        else:
            t = (n-1) % 3
            a, o, rs = cRW+(t & 1), (GOFF if n < 4 else UOFF) + (t >> 1)*64, 192
        return tr(cW+4*n, a, o+32*k2*rs) + tr(cW+4*n+2, a, o+(32*k2+4)*rs)
    def xrd(k2): return [f"ds_read_b128 {vr(cX[k2]+4*u,4)}, v{cRX+k2} offset:{2048*u}" for u in range(4)]
    def mm(n, k2):
        r = [mfma16(cA+28*u+4*n, cW+4*n, cX[k2]+4*u) for u in range(4)]
        if n == 0: r.append(mfma16(cCs, cW, cO1))
        elif (n & 1) == var: r.append(mfma16(cCs+4*((n+1) >> 1), cW+4*n, cO))
        return r
    e("s_waitcnt lgkmcnt(0)\ns_barrier")
    for x in xrd(0) + sum([wrd(n, 0) for n in range(NF)], []): e(x)
    e(f"s_waitcnt lgkmcnt(0)\n.p2align 3\nLc_{tag}:")
    adr = [f"v_add_u32 v{r}, s{sDl}, v{r}" for r in (cRX, cRX+1, cRW, cRW+1, cRQ)]
    ctl = rot_delta().split("\n") + [f"s_add_u32 s{sSt}, s{sSt}, 1"]
    BARG = 2
    def build(order0):
        out = []; q = []; issued = list(order0)
        def need(tagname):
            idx = max(i for i, t in enumerate(issued) if t == tagname)
            return len(issued)-1-idx
        def push(tagname, lst): q.extend((tagname, x) for x in lst)
        lastN = [99]
        for k2 in range(2):
            if k2 == 0: push("x1", xrd(1))
            for n in range(NF):
                if k2 == 1 and n == BARG:
                    while q:
                        t, x = q.pop(0); out.append(x)
                        if t: issued.append(t)
                    out.append(f"s_waitcnt lgkmcnt(0)\n{tk(None)}\ns_barrier\n{tk(81)}")
                    issued.clear(); issued.extend(["done"])
                    push("x0", xrd(0))
                    for m in range(BARG): push(f"w{m}0", wrd(m, 0))
                reqs = [f"w{n}{k2}"] + ([f"x{k2}"] if n == 0 else [])
                for r in reqs: assert all(t != r for t, _ in q), (r, k2, n)
                ns = [need(r) for r in reqs if r in issued]
                if ns and n % 2 == 0 or ns and min(ns) < lastN[0]:
                    nxt = f"w{n+1}{k2}"
                    if nxt in issued and all(t != nxt for t, _ in q): ns.append(need(nxt))
                    N = min(min(ns), 15); out.append(f"s_waitcnt lgkmcnt({N})"); lastN[0] = N
                for x in mm(n, k2):
                    out.append(x)
                    if q:
                        t, y = q.pop(0); out.append(y)
                        if t: issued.append(t); lastN[0] += 1
                if k2 == 0:
                    push(f"w{n}1", wrd(n, 1))
                    if n == 3: push(None, ctl)
                    if n == NF-1: push(None, adr)
                elif n >= BARG: push(f"w{n}0", wrd(n, 0))
        while q:
            t, x = q.pop(0); out.append(x)
            if t: issued.append(t)
        return out, issued
    _, steady = build([])
    out, _ = build(steady)
    for x in out: e(x)
    e(f"s_cmp_lt_u32 s{sSt}, 8\ns_cbranch_scc1 Lc_{tag}")
    tkout()
eC, eK, eT = 8, 40, 56
comp_loop(0)
e("s_branch Lcle\nLcl1:")
comp_loop(1)
e("Lcle:")
tstamp(1)
for u in range(4): e(f"ds_read_b128 {vr(eK+4*u,4)}, v{cEs} offset:{256*u}")
e(f"""s_nop 2
s_mov_b32 exec_lo, 0x00010001
s_mov_b32 exec_hi, 0x00010001
ds_write_b128 v{cEw}, {vr(cCs+4,4)} offset:128
ds_write_b128 v{cEw}, {vr(cCs+8,4)} offset:256
ds_write_b128 v{cEw}, {vr(cCs+12,4)} offset:384
s_mov_b64 exec, -1
s_waitcnt lgkmcnt(3)""")
for u in range(4): e(f"v_mul_f32 v{eT+u}, {f2u(0.25*1.4426950408889634/C1):#x}, v{eK+4*u+1}")
for u in range(4):
    for p in (0, 2): e(pk("v_pk_fma_f32", cA+28*u+p, [('b', eK+4*u), ('p', cCs+p), ('p', cA+28*u+p)]))
for u in range(4):
    for p in (0, 2): e(pk("v_pk_mul_f32", cA+28*u+p, [('p', cA+28*u+p), ('b', eT+u)]))
for u in range(4):
    q = cA+28*u
    e(f"v_cvt_pk_bf16_f32 v{q}, v{q}, v{q+1}\nv_cvt_pk_bf16_f32 v{q+1}, v{q+2}, v{q+3}")
for u in range(4): e(f"ds_write_b64 v{cEq}, {vr(cA+28*u,2)} offset:{2048*(u>>1)+256*(u&1)}")
e(f"v_mov_b32 v{vT0}, {KFL}\ns_waitcnt lgkmcnt(0)\ns_barrier")
e(f"ds_read_b32 v{vT1}, v{vT0} offset:16")
for n in range(1, NF): e(f"ds_read_b128 {vr(eC+4*n,4)}, v{cEc} offset:{64*n}")
e(f"s_waitcnt lgkmcnt(0)\nv_cmp_ne_u32 vcc, 0, v{vT1}")
gl0 = len(L)
for u in range(4):
    g = cA+28*u+4; P = cA+28*(u & 2)+4
    gelu_tile(g, g+12, eC+4, eC+16, eK+4*u, eT, 12, [P+4*(p//2)+2*(u & 1)+(p & 1) for p in range(6)])
    if u & 1:
        e("s_nop 0")
        for t in range(3):
            e(f"v_permlane32_swap_b32 v{P+4*t}, v{P+4*t+2}\nv_permlane32_swap_b32 v{P+4*t+1}, v{P+4*t+3}")
        for t, so in enumerate((sC0, sC1, sC2)):
            e(f"buffer_store_dwordx4 {vr(P+4*t,4)}, v{cEh}, {sr(SWS,4)}, s{so} offen sc1")
        if u == 1: e(f"v_add_u32 v{cEh}, {88*1024}, v{cEh}")
body = L[gl0:]; del L[gl0:]
e(f"s_lshl_b32 s{sT1}, s{sW4}, 12")
items = []
for n in range(12):
    t = f"s_cbranch_vccz Lgk{n}\n"
    if n % 2 == 0: t += f"s_add_u32 s{sT0}, s{sT1}, {36*1024+8192*n}\ns_mov_b32 m0, s{sT0}\ns_nop 0\n"
    for k in range(2): t += f"buffer_load_dwordx4 v{vL16}, {sr(SWS,4)}, s{sT0} offen offset:{1024*(2*(n%2)+k)} sc1 lds\n"
    items.append(t + f"Lgk{n}:")
cut = (len(body)*3)//4
for x in interleave(body[:cut], items) + body[cut:]: e(x)
e(f"""s_cbranch_vccnz Lgk
s_mov_b32 s{sT0}, 0
s_setprio 0
Lgw:
s_sleep 2
ds_read_b32 v{vT1}, v{vT0} offset:16
s_add_u32 s{sT0}, s{sT0}, 1
s_waitcnt lgkmcnt(0)
v_cmp_ne_u32 vcc, 0, v{vT1}
s_cmp_ge_u32 s{sT0}, 2000000
s_cbranch_scc1 LFkv
s_cbranch_vccz Lgw
s_branch LFkv
Lgk:""")
e(tag_issue())
stamp(2)
tflush(); TS.clear(); rt_out()
e("s_branch LF")

def cs_write(acc, slot_expr_sreg):
    e(f"""v_and_b32 v{vT0}, 1, v{vLane}
    v_lshlrev_b32 v{vT0}, 6, v{vT0}
    v_lshrrev_b32 v{vT1}, 4, v{vLane}
    v_lshl_add_u32 v{vT0}, v{vT1}, 4, v{vT0}
    v_add_u32 v{vT0}, {slot_expr_sreg}, v{vT0}
    s_mov_b32 exec_lo, 0x00030003
    s_mov_b32 exec_hi, 0x00030003
    ds_write_b128 v{vT0}, {vr(acc,4)}
    s_mov_b64 exec, -1""")
e("Lkvcu:")
entry_stamp(True)
e(tag_issue())
for x in kvx_dma(1): e(x)
late_srd(LS_A + LS_F)
e(f"""v_and_b32 v{vT0}, 31, v{vLane}
v_lshrrev_b32 v{vT1}, 1, v{vT0}
v_and_b32 v{vT1}, 7, v{vT1}
v_xor_b32 v{vT1}, v{vT1}, v{vH}
v_lshlrev_b32 v{vT0}, 7, v{vT0}
v_add_u32 v{vT0}, s{sXb}, v{vT0}""")
for ks in range(4):
    e(f"v_xor_b32 v{vT2}, {2*ks}, v{vT1}\nv_lshl_add_u32 v{vRX+ks}, v{vT2}, 4, v{vT0}")
e(f"""v_bfe_u32 v{vT0}, v{vLane}, 2, 2
v_lshl_add_u32 v{vT0}, v{vH}, 3, v{vT0}
v_bfe_u32 v{vT1}, v{vLane}, 4, 1
v_and_b32 v{vT2}, 3, v{vLane}
v_lshlrev_b32 v{vT2}, 3, v{vT2}
v_lshl_add_u32 v{vT3}, v{vT1}, 5, v{vT2}
v_lshl_add_u32 v{vRQ}, v{vT0}, 6, v{vT3}
v_lshlrev_b32 v{vT1}, 14, v{vT1}
v_lshl_add_u32 v{vRW}, v{vT0}, 5, v{vT2}
s_lshr_b32 s{sT0}, s{sW}, 2
s_lshl_b32 s{sT0}, s{sT0}, 13
s_add_u32 s{sT1}, s{sT0}, {WKV}
v_add3_u32 v{vRW}, v{vRW}, v{vT1}, s{sT1}
s_add_u32 s{sT1}, s{sT1}, s{sT0}
v_add_u32 v{vRQ}, s{sT1}, v{vRQ}
v_lshrrev_b32 v{vT0}, 2, v{vLane}
v_lshlrev_b32 v{vT0}, 10, v{vT0}
v_and_b32 v{vT1}, 3, v{vLane}
v_lshl_add_u32 v{vQa}, v{vT1}, 4, v{vT0}
v_bfe_u32 v{vT0}, v{vLane}, 4, 1
v_and_b32 v{vT1}, 15, v{vLane}
v_cmp_eq_u32 vcc, v{vT0}, v{vT1}
v_mov_b32 v{vT2}, 0x3f803f80
s_nop 0
v_cndmask_b32 v{vSel}, 0, v{vT2}, vcc""")
for k in range(1, 4): e(f"v_mov_b32 v{vSel+k}, v{vSel}")
for r in range(vCs, vCs+4): e(f"v_mov_b32 v{r}, 0")
e(f"s_waitcnt vmcnt(5) lgkmcnt(0)\ns_cmp_lt_u32 s{sW}, 4\ns_cbranch_scc1 Lkvr1")
rowstat_finish()
e("Lkvr1:\ns_barrier")
tstamp(12)
def kv_reads(c):
    r = []
    for ks in range(4):
        W = vWk + 16*(c & 1) + 4*ks
        r += [f"ds_read_b128 {vr(vXf+16*c+4*ks,4)}, v{vRX+ks} offset:{4096*c}"]
        r += tr(W, vRW, (64*c+16*ks)*32) + tr(W+2, vRW, (64*c+16*ks+4)*32)
    return r
def kstat_issue():
    return f"buffer_load_dwordx4 {vr(vSt,4)}, v{vWa0}, {sr(SWS,4)}, s{sC1} offen sc1"
for x in kv_reads(0) + kvx_dma(2) + kvx_dma(3): e(x)
e(f"""v_and_b32 v{vWa0}, 31, v{vLane}
v_lshlrev_b32 v{vWa0}, 4, v{vWa0}
s_lshl_b32 s{sT0}, s{sI}, 2
s_add_u32 s{sT0}, s{sT0}, s{sW4}
s_mul_i32 s{sC0}, s{sT0}, {KVT}
s_lshl_b32 s{sC1}, s{sT0}, 9
s_add_u32 s{sC1}, s{sC1}, {STATG}""")
if "--kvt" in sys.argv: e(f"s_mov_b32 s{sT0}, {64*KVT+1024}\nbuffer_load_dword v{vSt+8}, off, {sr(SWS,4)}, s{sT0}")
for c in range(4):
    m = []
    for ks in range(4):
        X = vXf+16*c+4*ks; W = vWk + 16*(c & 1) + 4*ks
        z = "0" if c == 0 and ks == 0 else None
        m += [mfma(vAcc+16, W, X, z), mfma16(vCs, W, vSel), mfma(vAcc+32, X, W, z)]
    e("s_waitcnt lgkmcnt(0)")
    if c < 3:
        for x in m[:3] + [f"s_waitcnt vmcnt({8-4*c})"] + interleave(m[3:9], kv_reads(c+1)) + m[9:]: e(x)
        if c == 0:
            tag_wait("k", 8)
            e(f"s_cmp_lt_u32 s{sW}, 4\ns_cbranch_scc1 Lkvr2")
            rowstat_store()
            e("Lkvr2:")
    else:
        e(kstat_issue())
        for x in m: e(x)
tstamp(1)
e(f"""v_and_b32 v{vT2}, 31, v{vLane}
v_lshlrev_b32 v{vT2}, 2, v{vT2}
s_xor_b32 s{sT2}, s{sXb}, 65536
s_add_u32 s{sT1}, s{sXb}, 4352
s_lshl_b32 s{sQo}, s{sW}, 16
s_add_u32 s{sQo}, s{sQo}, {64*15}
s_lshl_b32 s{sMq}, s{sW}, 12
s_add_u32 s{sMq}, s{sMq}, {WKV}""")
cs_write(vCs, f"s{sT1}")
e(f"""v_add_u32 v{vT0}, s{sXb}, v{vL16}
v_add_u32 v{vWa1}, s{sT2}, v{vL16}
v_add_u32 v{vWa2}, s{sT2}, v{vT2}
v_lshl_add_u32 v{vT3}, v{vH}, 4, s{sXb}
s_cmp_ge_u32 s{sW}, 4
s_cbranch_scc1 LkvH""")
def wq_dma():
    for k in range(4):
        e(f"s_add_u32 m0, s{sMq}, {1024*k}\ns_add_u32 s{sT0}, s{sQo}, {16384*k}\nbuffer_load_dwordx4 v{vQa}, {sr(SWQ,4)}, s{sT0} offen lds")
def kstat_wait(tag):
    e(f"""s_mov_b32 s{sT0}, 0
    s_waitcnt vmcnt(0)
    Lks_{tag}:
    v_cmp_ne_u64 vcc, s[{sNo}:{sNo+1}], {vr(vSt+2,2)}
    s_add_u32 s{sT0}, s{sT0}, 1
    s_cmp_ge_u32 s{sT0}, 100000
    s_cbranch_vccz Lksd_{tag}
    s_cbranch_scc1 Lksd_{tag}
    {kstat_issue()}
    s_waitcnt vmcnt(0)
    s_branch Lks_{tag}
    Lksd_{tag}:""")
for q in range(4): e(f"ds_write_b128 v{vT0}, {vr(vAcc+32+4*q,4)} offset:{1024*q}")
e(f"v_xor_b32 v{vT1}, 0x10000, v{vT3}\ns_waitcnt lgkmcnt(0)\ns_barrier")
e(f"""ds_read_b128 {vr(vWk,4)}, v{vWa1}
ds_read_b128 {vr(vWk+4,4)}, v{vWa1} offset:1024
ds_read_b128 {vr(vSt+12,4)}, v{vT3} offset:{4352+64}
ds_read_b128 {vr(vSt+16,4)}, v{vT3} offset:{4352+96}
ds_read_b128 {vr(vWk+8,4)}, v{vT1} offset:{4352+64}
ds_read_b128 {vr(vWk+12,4)}, v{vT1} offset:{4352+96}""")
e(f"""v_and_b32 v{vT0}, 0x33, v{vLane}
v_bfe_u32 v{vT1}, v{vLane}, 2, 1
v_lshl_or_b32 v{vT0}, v{vT1}, 3, v{vT0}
v_bfe_u32 v{vT1}, v{vLane}, 3, 1
v_lshl_or_b32 v{vT0}, v{vT1}, 2, v{vT0}
v_lshlrev_b32 v{vT0}, 4, v{vT0}
s_waitcnt lgkmcnt(0)""")
for p in range(0, 8, 2):
    e(pk("v_pk_add_f32", vAcc+24+p, [('p', vAcc+24+p), ('p', vWk+p)]))
    e(pk("v_pk_add_f32", vSt+12+p, [('p', vSt+12+p), ('p', vWk+8+p)]))
kstat_wait("l")
e(f"v_sub_f32 v{vSt+4}, 0, v{vSt}")
lin_fold(vAcc+24, vSt+12, vSt+4, vSt+1, 8)
for p in range(4): e(f"v_cvt_pk_bf16_f32 v{vAcc+16+p}, v{vAcc+24+2*p}, v{vAcc+25+2*p}")
e(f"buffer_store_dwordx4 {vr(vAcc+16,4)}, v{vT0}, {sr(SWS,4)}, s{sC0} offen sc1\ns_branch LkvS")
e("LkvH:")
e(f"ds_write_b128 v{vT0}, {vr(vAcc+24,4)}\nds_write_b128 v{vT0}, {vr(vAcc+28,4)} offset:1024")
e(f"v_add_u32 v{vT1}, s{sXb}, v{vT2}\ns_waitcnt lgkmcnt(0)\ns_barrier")
e(f"ds_read_b32 v{vSt+6}, v{vT1} offset:4352\nds_read_b32 v{vSt+7}, v{vWa2} offset:4352")
for q in range(4): e(f"ds_read_b128 {vr(vAcc+48+4*q,4)}, v{vWa1} offset:{1024*q}")
tstamp(21)
kstat_wait("h")
tstamp(23)
e(f"ds_write_b32 v{vT1}, v{vSt} offset:4608\nds_write_b32 v{vT1}, v{vSt+1} offset:4736\ns_waitcnt lgkmcnt(0)")
for q in range(4):
    e(f"ds_read_b128 {vr(vWk+4*q,4)}, v{vT3} offset:{4608+32*q}\nds_read_b128 {vr(vWk+16+4*q,4)}, v{vT3} offset:{4736+32*q}")
e(f"v_add_f32 v{vSt+6}, v{vSt+6}, v{vSt+7}\nv_sub_f32 v{vSt+6}, 0, v{vSt+6}")
for p in range(0, 16, 2): e(pk("v_pk_add_f32", vAcc+32+p, [('p', vAcc+32+p), ('p', vAcc+48+p)]))
e("s_waitcnt lgkmcnt(0)")
for p in range(0, 16, 2): e(pk("v_pk_fma_f32", vAcc+32+p, [('p', vWk+p), ('b', vSt+6), ('p', vAcc+32+p)]))
for p in range(0, 16, 2): e(pk("v_pk_mul_f32", vAcc+32+p, [('p', vAcc+32+p), ('p', vWk+16+p)]))
for p in range(8): e(f"v_cvt_pk_bf16_f32 v{vAcc+32+p}, v{vAcc+32+2*p}, v{vAcc+33+2*p}")
v_lane_addr(vT0)
for p in range(8): e(f"v_mov_b32 v{vAcc+32+p}, 0x3f803f80")
e(f"""s_mov_b32 exec_lo, 0x1ffff
s_mov_b32 exec_hi, 0xffff
buffer_store_dwordx4 {vr(vAcc+32,4)}, v{vT0}, {sr(SWS,4)}, s{sC0} offen offset:1024 sc1
buffer_store_dwordx4 {vr(vAcc+36,4)}, v{vT0}, {sr(SWS,4)}, s{sC0} offen offset:{1024+528} sc1
s_mov_b64 exec, -1""")
tstamp(29)
e("LkvS:")
wq_dma()
for r in range(4): e(f"v_mov_b32 v{vCs+r}, 0")
e(f"s_lshl_b32 s{sT2}, s{sI}, 7\ns_add_u32 s{sT2}, s{sT2}, {KFLG}\ns_waitcnt vmcnt(4)\ns_barrier")
flag_set(sT2, "kv")
stamp(13)
tflush(); TS.clear(); rt_out()
e("s_waitcnt vmcnt(0)\ns_barrier")
def q_reads(c):
    r = []
    for ks in range(4):
        W = vWk + 16*(c & 1) + 4*ks
        r += tr(W, vRQ, (64*c+16*ks)*64) + tr(W+2, vRQ, (64*c+16*ks+4)*64)
    return r
for x in q_reads(0): e(x)
for c in range(4):
    m = []
    for ks in range(4):
        X = vXf+16*c+4*ks; W = vWk + 16*(c & 1) + 4*ks
        m += [mfma(vAcc, W, X, "0" if c == 0 and ks == 0 else None), mfma16(vCs, W, vSel)]
    e("s_waitcnt lgkmcnt(0)")
    for x in interleave(m[:4], q_reads(c+1) if c < 3 else []) + m[4:]: e(x)
e(f"""s_or_b32 s{sT2}, s{sXb}, {65536+8192}
s_lshr_b32 s{sT3}, s{sW}, 2
s_lshl_b32 s{sT3}, s{sT3}, 7
s_add_u32 s{sT1}, s{sT2}, s{sT3}
s_add_u32 s{sT1}, s{sT1}, 4096
v_add_u32 v{vWa1}, s{sT2}, v{vL16}
v_lshl_add_u32 v{vT3}, v{vH}, 4, s{sT2}
s_nop 3""")
cs_write(vCs, f"s{sT1}")
e(f"s_cmp_ge_u32 s{sW}, 4\ns_cbranch_scc1 LkvH2\ns_waitcnt lgkmcnt(0)\ns_barrier")
for q in range(4): e(f"ds_read_b128 {vr(vWk+4*q,4)}, v{vWa1} offset:{1024*q}")
cs_read(vAcc+48, 4096); cs_read(vWk+16, 4096+128)
e("s_waitcnt lgkmcnt(0)")
for p in range(0, 16, 2):
    e(pk("v_pk_add_f32", vAcc+p, [('p', vAcc+p), ('p', vWk+p)]))
    e(pk("v_pk_add_f32", vAcc+48+p, [('p', vAcc+48+p), ('p', vWk+16+p)]))
q_epilogue(vAcc+48)
a_init(); fin_init()
e("s_waitcnt lgkmcnt(0)\ns_barrier\ns_branch LaR\nLkvH2:")
for q in range(4): e(f"ds_write_b128 v{vWa1}, {vr(vAcc+4*q,4)} offset:{1024*q}")
e(f"s_mov_b32 s{sKf}, {KFLG}")
e(flags_issue(sKf))
e("s_waitcnt lgkmcnt(0)\ns_barrier")
f_init()
flags_wait(sKf, "kv2", 0)
kv_dma("c")
e("s_waitcnt vmcnt(0)\ns_barrier\ns_branch LFkv")

AAL = 6 if "--a6" in sys.argv else 3
vm = []
def vtag(tag): vm.append(tag)
def vwait_s(tag):
    idx = max(i for i, t in enumerate(vm) if t == tag)
    return f"s_waitcnt vmcnt({min(63, len(vm)-1-idx)})"
def emit_seq(seq):
    for x in seq:
        if isinstance(x, list): emit_seq(x)
        elif isinstance(x, tuple): vtag(x[0]); e(x[1])
        elif callable(x): e(x())
        else: e(x)
e(f"Lp2:\ns_setprio 3\ns_cmp_eq_u32 s{sSt}, 0\ns_cbranch_scc1 Lkvok")
stamp(16)
flags_wait(sKf, "kv", 0)
stamp(17)
kv_dma("d")
e(f"v_mov_b32 v{vT0}, {KFL}\nds_write_b32 v{vT0}, v{hF+1} offset:16")
e(f"""Lkvok:
v_mov_b32 v{vT0}, {KFL}
s_mov_b32 s{sT0}, 0
s_waitcnt vmcnt(0)
ds_write_b32 v{hF}, v{hF+1}
Lkw:
ds_read_b128 {vr(aS[0],4)}, v{vT0}
s_add_u32 s{sT0}, s{sT0}, 1
s_waitcnt lgkmcnt(0)
v_and_b32 v{aS[0]}, v{aS[0]}, v{aS[0]+1}
v_and_b32 v{aS[0]+2}, v{aS[0]+2}, v{aS[0]+3}
v_and_b32 v{aS[0]}, v{aS[0]}, v{aS[0]+2}
v_cmp_ne_u32 vcc, 0, v{aS[0]}
s_cmp_ge_u32 s{sT0}, 2000000
s_cbranch_scc1 LaR
s_cbranch_vccnz LaR
s_sleep 1
s_branch Lkw
LaR:""")
stamp(3)
e(f"""ds_read_b128 {vr(aQ[0],4)}, v{vAq}
ds_read_b128 {vr(aK[0],4)}, v{vAk}
ds_read_b128 {vr(aQ[1],4)}, v{vAq} offset:1024
ds_read_b128 {vr(aK[1],4)}, v{vAk} offset:{KVT}
ds_read_b128 {vr(aVl[0],4)}, v{vAv}
ds_read_b128 {vr(aVh[0],4)}, v{vAv} offset:528
s_waitcnt lgkmcnt(4)""")
e(mfma(aS[0], aK[0], aQ[0], "0"))
e("s_waitcnt lgkmcnt(3)")
e(mfma(aS[1], aK[0], aQ[1], "0"))
e("s_nop 9")
for b in range(2):
    t = vT0+2*b; S = aS[b]
    e(f"v_max3_f32 v{t}, v{S}, v{S+1}, v{S+2}")
    for p in range(3, 15, 2): e(f"v_max3_f32 v{t}, v{t}, v{S+p}, v{S+p+1}")
    e(f"v_max_f32 v{t}, v{t}, v{S+15}\nv_mov_b32 v{t+1}, v{t}")
e(f"""s_nop 1
v_permlane32_swap_b32 v{vT0}, v{vT1}
v_permlane32_swap_b32 v{vT2}, v{vT3}
s_mov_b32 s{sSt}, 0
v_max_f32 v{vT0}, v{vT0}, v{vT1}
v_max_f32 v{vT2}, v{vT2}, v{vT3}""")
for b in range(2):
    e(f"v_sub_f32 v{aC[b]}, 0, v{vT0+2*b}\nv_sub_f32 v{aC[b]+1}, 0, v{vT0+2*b}")
for r in range(16): e(f"v_sub_f32 v{aS[0]+r}, v{aS[0]+r}, v{vT0}")
for b in (1, 0):
    for r in range(2, 16, 2): e(f"v_mov_b64 {vr(aC[b]+r,2)}, {vr(aC[b],2)}")
e("s_setprio 1")
stamp(5)
e(f"v_exp_f32 v{aS[0]}, v{aS[0]}\nv_exp_f32 v{aS[0]+1}, v{aS[0]+1}\ns_branch La1\n.p2align {AAL}\nLa0:")
for n in range(32):
    b = n & 1; T = n >> 1
    X = aS[b]; Y = aS[b ^ 1]
    ex = [f"v_exp_f32 v{X+i}, v{X+i}" for i in range(16)]
    Tp = (n-1) >> 1; Tn = (n+1) >> 1
    seq = ex[0:2] + [smf(aO[b ^ 1], aVh[Tp & 1], Y+8, vIdx)] + (["La1:"] if n == 0 else []) + ex[2:5]
    seq += [mfma(Y, aK[Tn & 1], aQ[b ^ 1], vr(aC[b ^ 1], 16))]
    if b:
        rd = [f"ds_read_b128 {vr(aVl[(T+1)&1],4)}, v{vAv} offset:{(T+1)*KVT}",
              f"ds_read_b128 {vr(aVh[(T+1)&1],4)}, v{vAv} offset:{(T+1)*KVT+528}",
              f"ds_read_b128 {vr(aK[T&1],4)}, v{vAk} offset:{(T+2)*KVT}"]
        seq += rd + ex[5:10]
    else: seq += ["s_waitcnt lgkmcnt(0)"] + ex[5:10]
    seq += [smf(aO[b], aVl[T & 1], X, vIdx)] + ex[10:16]
    for x in seq: e(x)
if PROF:
    e(f"s_memtime s[{sTm}:{sTm+1}]\ns_lshl_b32 s{sT0}, s{sSt}, 2\ns_add_u32 s{sT0}, s{sT0}, s{sPo}\ns_waitcnt lgkmcnt(0)\nv_mov_b32 v0, s{sTm}\nbuffer_store_dword v0, off, {sr(SWS,4)}, s{sT0} offset:72")
e(f"""v_add_u32 v{vAk}, {16*KVT}, v{vAk}
v_add_u32 v{vAv}, {16*KVT}, v{vAv}
s_add_u32 s{sSt}, s{sSt}, 1
s_cmp_eq_u32 s{sSt}, 1
s_cbranch_scc0 La2
{'' if PROF else 's_waitcnt vmcnt(0)'}
s_barrier
s_branch La0
La2:
s_cmp_lt_u32 s{sSt}, 4
s_cbranch_scc1 La0""")
e(smf(aO[1], aVh[1], aS[1]+8, vIdx))
e(f"s_mov_b32 s{sC0}, {f2u(2.0**40):#x}\ns_mov_b32 s{sC1}, {f2u(2.0**126):#x}")
for b in range(2):
    O = aO[b]
    e(f"s_mov_b32 s{sRetry}, 0\nLfin{b}:")
    e(f"""v_rcp_f32 v{O+10}, v{O+8}
    v_max3_f32 v{vT1}, abs(v{O}), abs(v{O+1}), abs(v{O+2})
    v_max3_f32 v{vT1}, v{vT1}, abs(v{O+3}), abs(v{O+4})
    v_max3_f32 v{vT1}, v{vT1}, abs(v{O+5}), abs(v{O+6})
    v_max_f32 v{vT1}, v{vT1}, abs(v{O+7})
    v_cmp_nlt_f32 vcc, v{O+8}, s{sC0}
    v_cmp_nlt_f32 s[{sEx}:{sEx+1}], v{vT1}, s{sC1}""")
    for p in range(8): e(f"v_mul_f32 v{O+p}, v{O+p}, v{O+10}")
    e(f"s_or_b64 vcc, vcc, s[{sEx}:{sEx+1}]")
    for p in range(4): e(f"v_cvt_pk_bf16_f32 v{O+p}, v{O+2*p}, v{O+2*p+1}")
    for p in range(4): e(f"v_min_u32 v{O+p}, -2, v{O+p}")
    e(f"s_cbranch_vccnz Lfallback{b}\nLok{b}:")
    e(f"buffer_store_dwordx4 {vr(O,4)}, v{vL16}, {sr(SWS,4)}, s{sOp if b == 0 else sOp2} offen sc1")
stamp(6)
OSC = " sc1"
gX = [136, 140]; gG = [144, 176]; gR = [8, 40]
e(f"buffer_load_dwordx4 {vr(gX[0],4)}, v{vRa}, {sr(SX,4)}, s{sXf} offen")
e(f"buffer_load_dwordx4 {vr(gX[1],4)}, v{vRa}, {sr(SX,4)}, s{sXf2} offen")
e("s_waitcnt lgkmcnt(0)\ns_setprio 0\ns_barrier\ns_barrier")
stamp(8)
for tt in range(2):
    for q in range(8): e(f"ds_read_b128 {vr(gG[tt]+4*q,4)}, v{vRr} offset:{128*tt+XK*(q//2)+512*(q%2)}")
def sum4(r):
    for p in range(0, 8, 2):
        e(pk("v_pk_add_f32", r+p, [('p', r+p), ('p', r+8+p)]))
        e(pk("v_pk_add_f32", r+16+p, [('p', r+16+p), ('p', r+24+p)]))
    for p in range(0, 8, 2): e(pk("v_pk_add_f32", r+p, [('p', r+p), ('p', r+16+p)]))
for tt in range(2):
    G = gG[tt]
    e(f"s_waitcnt lgkmcnt({8*(1-tt)})")
    for p in range(8): e(f"v_add_f32 v{G+p}, v{G+p}, v{G+8+p}\nv_add_f32 v{G+16+p}, v{G+16+p}, v{G+24+p}")
    for p in range(8): e(f"v_add_f32 v{G+p}, v{G+p}, v{G+16+p}")
    for p in range(8): e(f"v_mul_f32 v{G+8+p}, {f2u(-1.4426950408889634):#x}, v{G+p}")
    for p in range(8): e(f"v_exp_f32 v{G+8+p}, v{G+8+p}")
    for p in range(8): e(f"v_add_f32 v{G+8+p}, 1.0, v{G+8+p}")
    for p in range(8): e(f"v_rcp_f32 v{G+8+p}, v{G+8+p}")
    e("s_waitcnt vmcnt(0)")
    for p in range(4): e(f"v_lshlrev_b32 v{G+16+2*p}, 16, v{gX[tt]+p}\nv_and_b32 v{G+17+2*p}, 0xffff0000, v{gX[tt]+p}")
    for p in range(8): e(f"v_mul_f32 v{G+p}, v{G+p}, v{G+8+p}")
stamp(9)
e("s_barrier")
for tt in range(2):
    for q in range(8): e(f"ds_read_b128 {vr(gR[tt]+4*q,4)}, v{vRr2} offset:{128*tt+XK*(q//2)+512*(q%2)}")
for tt in range(2):
    R = gR[tt]; G = gG[tt]
    e(f"s_waitcnt lgkmcnt({8*(1-tt)})")
    sum4(R)
    for p in range(0, 8, 2): e(pk("v_pk_fma_f32", R+p, [('p', R+p), ('p', G+p), ('p', G+16+p)]))
    for p in range(4): e(f"v_cvt_pk_bf16_f32 v{R+p}, v{R+2*p}, v{R+2*p+1}")
    e(f"buffer_store_dwordx4 {vr(R,4)}, v{vRa}, {sr(SOUT,4)}, s{sXf if tt == 0 else sXf2} offen{OSC}")
def the_end():
    stamp(11)
    if RT: e(f"s_waitcnt vmcnt(0)\ns_memrealtime s[100:101]\ns_waitcnt lgkmcnt(0)\nv_mov_b32 v0, s100\nbuffer_store_dword v0, off, {sr(SWS,4)}, s{sPo} offset:56")
the_end()
e("Lend:\ns_endpgm")

e("LFkv:")
kv_rest("k")
e("LF:")
tag_wait("f", 0)
e("s_setprio 0\ns_barrier")
flag_set(sHs, "h", 4)
RG = SP + [aslot(n) for n in range(4)]
def u_dma(m):
    srdw, row = (SWO, 64*m) if m < 8 else (SWD, 64*(m-8))
    return [f"s_add_u32 m0, s{sDm}, {RG[m % 7]}", f"s_add_u32 s{sT0}, s{sDo}, {row*1024}",
            (f"u{m}", f"buffer_load_dwordx4 v{vDa}, {sr(srdw,4)}, s{sT0} offen lds"),
            (f"u{m}", f"buffer_load_dwordx4 v{vDa2}, {sr(srdw,4)}, s{sT0} offen offset:1024 lds")]
def u_reads(m, F):
    a = RG[m % 7]; win = 1 if a >= SP[0] else 0; off = a - win*SP[0]
    r0, r1 = vRd+2*win, vRd+2*win+1
    return tr(F, r0, off) + tr(F+2, r0, off+1024) + tr(F+4, r1, off) + tr(F+6, r1, off+1024)
HR = int(sys.argv[sys.argv.index("--hr")+1]) if "--hr" in sys.argv else 6
def h_loads(s):
    r = []
    if s % 4 == 0: r += [f"s_add_u32 s{sC0}, s{sHo}, {1024*s}", f"s_add_u32 s{sC1}, s{sC0}, {88*1024}"]
    for tt in range(2):
        r.append((f"h{s}", f"buffer_load_dwordx4 {vr(fH+8*(s % HR)+4*tt,4)}, v{vL16}, {sr(SWS,4)}, s{sC0 if tt == 0 else sC1} offen offset:{1024*(s%4)} sc1"))
    return r
for m in range(7): emit_seq(u_dma(m))
for m in range(8):
    e(vwait_s(f"u{m}"))
    for x in u_reads(m, fWo+8*m): e(x)
    e("s_waitcnt lgkmcnt(0)")
    emit_seq(u_dma(m+7))
tstamp(18)
e(flags_issue(sHc))
flags_wait(sHc, "h", 0)
tstamp(19)
for s in range(HR): emit_seq(h_loads(s))
for x in u_reads(8, fWb[0]): e(x)
FB = int(sys.argv[sys.argv.index("--fb")+1]) if "--fb" in sys.argv else 15
for s in range(22):
    m = 8+s; W = fWb[s & 1]
    if s == FB:
        tstamp(20); e("s_barrier\ns_setprio 2"); tstamp(21)
    if s < 21:
        e(vwait_s(f"u{m+1}"))
        for x in u_reads(m+1, fWb[(s+1) & 1]): e(x)
        e("s_waitcnt lgkmcnt(4)")
    else: e("s_waitcnt lgkmcnt(0)")
    if m+7 < 30: emit_seq(u_dma(m+7))
    e(vwait_s(f"h{s}"))
    if s == 21: e(f"s_cmp_ge_u32 s{sW4}, 2\ns_cbranch_scc1 Lskip21")
    for tt in range(2):
        for ch in range(2 if "--nofm" not in sys.argv else 0): e(mfma(fA+32*tt+16*ch, W+4*ch, fH+8*(s % HR)+4*tt, "0" if s == 0 else None))
    if s+HR < 22: emit_seq(h_loads(s+HR))
e("Lskip21:\ns_nop 8")
tstamp(22)
ORD = [7, 6, 5, 4, 3, 2, 1, 0] if M48 else [7, 6, 5, 4, 1, 0, 3, 2]
def o_load(k):
    tt, i = k & 1, k >> 1
    return f"buffer_load_dwordx4 {vr(opos(i)+4*tt,4)}, v{vL16}, {sr(SWS,4)}, s{(sOc, sOc2, sOc3, sOc4)[2*tt+(i>>2)]} offen offset:{1024*(i%4)} sc1"
def opos(i): return fO + 8*ORD.index(i)
zer = [f"v_mov_b64 {vr(fS+r,2)}, 0" for r in range(0, 64, 2)]
for q in range(16):
    e(f"ds_write_b128 v{vRw}, {vr(fA+4*q,4)} offset:{XB*(q//2)+XP*(q%2)}")
    if q >= 4: e(f"s_waitcnt lgkmcnt(4)\n{o_load(2*ORD[(q-4)//2]+(q & 1))}")
e("s_waitcnt lgkmcnt(0)\ns_barrier")
for k in range(12, 16): e(o_load(2*ORD[k//2]+(k & 1)))
tstamp(9)
def o_pair(i, tag, wait):
    B = opos(i)
    if wait is not None: e(f"s_waitcnt vmcnt({wait})")
    else: e(f"s_bitcmp1_b32 s{sSt}, {i}\ns_cbranch_scc0 Lon{tag}{i}")
    e(f"""v_max3_u32 v{vT1}, v{B}, v{B+1}, v{B+2}
    v_max3_u32 v{vT1}, v{vT1}, v{B+3}, v{B+4}
    v_max3_u32 v{vT1}, v{vT1}, v{B+5}, v{B+6}
    v_max_u32 v{vT1}, v{vT1}, v{B+7}
    v_cmp_eq_u32 vcc, s{sT1}, v{vT1}
    s_cbranch_vccnz Lon{tag}{i}
    s_bitset0_b32 s{sSt}, {i}""")
    for tt in range(2):
        for ch in range(2): e(mfma(fS+32*tt+16*ch, fWo+8*i+4*ch, B+4*tt))
    e(f"Lon{tag}{i}:")
def acc_chain(tt, ch): return [mfma(fS+32*tt+16*ch, fWo+8*i+4*ch, opos(i)+4*tt, "0" if n == 0 else None) for n, i in enumerate(ORD)]
def s_wr(tt, ch): return [f"ds_write_b128 v{vRw2+tt}, {vr(fS+32*tt+16*ch+4*q,4)} offset:{XB*(2*ch+q//2)+XP*(q%2)}" for q in range(4)]
e(f"v_mov_b32 v{vT1}, 0")
for n, x in enumerate(acc_chain(0, 0)):
    B = fO+8*n
    e(f"s_waitcnt vmcnt({14-2*n})\n{x}")
    for p in range(0, 8, 2): e(f"v_max3_u32 v{vT1}, v{vT1}, v{B+p}, v{B+p+1}")
e(f"v_cmp_eq_u32 vcc, -1, v{vT1}\ns_cbranch_vccnz Lor0")
c1, c2, c3 = acc_chain(0, 1), acc_chain(1, 0), acc_chain(1, 1)
for prev, c in (((0, 0), c1), ((0, 1), c2), ((1, 0), c3)):
    for x in [c[0], "s_nop 3", c[1], "s_nop 3", c[2]] + interleave(c[3:7], s_wr(*prev)) + c[7:]: e(x)
stamp(7)
e("s_nop 11")
for x in s_wr(1, 1): e(x)
e("Lsd:")
e("s_waitcnt lgkmcnt(0)\ns_barrier")
stamp(10); tflush(); TS.clear()
the_end()
e("s_endpgm")
e(f"Lor0:\ns_nop 8")
for x in zer: e(x)
e(f"s_mov_b32 s{sT0}, 0\ns_mov_b32 s{sSt}, 0xff\ns_mov_b32 s{sT1}, -1\ns_branch Lor2")
e("Lor:\ns_sleep 4")
for i in ORD:
    e(f"s_bitcmp1_b32 s{sSt}, {i}\ns_cbranch_scc0 Lorn{i}\n{o_load(2*i)}\n{o_load(2*i+1)}\nLorn{i}:")
e(f"""s_add_u32 s{sT0}, s{sT0}, 1
s_cmp_ge_u32 s{sT0}, 200000
s_cbranch_scc1 Lod
s_waitcnt vmcnt(0)
Lor2:""")
for i in ORD: o_pair(i, "b", None)
e(f"s_cmp_lg_u32 s{sSt}, 0\ns_cbranch_scc1 Lor\nLod:\ns_nop 6")
for tt in range(2):
    for ch in range(2):
        for x in s_wr(tt, ch): e(x)
e("s_branch Lsd")
for b in range(2):
    S = aS[0]; O = aO[b]; C = aC[b]; Q = aQ[b]
    e(f"""Lfallback{b}:
    s_cmp_lg_u32 s{sRetry}, 0
    s_cbranch_scc1 Lok{b}
    s_mov_b32 s{sRetry}, 1
    s_mov_b32 s{sSt}, 0
    v_mov_b32 v{vT1}, 0xff800000
    s_waitcnt lgkmcnt(0)
    Lfb1{b}:
    buffer_load_dwordx4 {vr(aK[0],4)}, v{vL16}, {sr(SWS,4)}, s{sSt} offen sc1
    s_waitcnt vmcnt(0)""")
    e(mfma(S, aK[0], Q, "0"))
    e("s_nop 11")
    for p in range(0, 16, 2): e(f"v_max3_f32 v{vT1}, v{vT1}, v{S+p}, v{S+p+1}")
    e(f"""s_add_u32 s{sSt}, s{sSt}, {KVT}
    s_cmp_lt_u32 s{sSt}, {64*KVT}
    s_cbranch_scc1 Lfb1{b}
    v_mov_b32 v{vT2}, v{vT1}
    s_nop 1
    v_permlane32_swap_b32 v{vT1}, v{vT2}
    s_nop 1
    v_max_f32 v{vT1}, v{vT1}, v{vT2}""")
    for r in range(16): e(f"v_sub_f32 v{C+r}, 0, v{vT1}")
    for r in range(12): e(f"v_mov_b32 v{O+r}, 0")
    e(f"""v_subrev_u32 v{vT0}, {64*KVT}, v{vAv}
    s_mov_b32 s{sSt}, 0
    Lfb2{b}:
    buffer_load_dwordx4 {vr(aK[0],4)}, v{vL16}, {sr(SWS,4)}, s{sSt} offen sc1
    buffer_load_dwordx4 {vr(aVl[0],4)}, v{vT0}, {sr(SWS,4)}, s{sSt} offen sc1
    buffer_load_dwordx4 {vr(aVh[0],4)}, v{vT0}, {sr(SWS,4)}, s{sSt} offen offset:528 sc1
    s_waitcnt vmcnt(0)""")
    e(mfma(S, aK[0], Q, vr(C, 16)))
    e("s_nop 11")
    for i in range(16): e(f"v_exp_f32 v{S+i}, v{S+i}")
    e("s_nop 1")
    e(smf(O, aVl[0], S, vIdx)); e(smf(O, aVh[0], S+8, vIdx))
    e(f"""s_add_u32 s{sSt}, s{sSt}, {KVT}
    s_cmp_lt_u32 s{sSt}, {64*KVT}
    s_cbranch_scc1 Lfb2{b}
    s_nop 9
    s_branch Lfin{b}""")
e("Lcodeend:")

L += ['.section .rodata,"a"', ".p2align 6", f".amdhsa_kernel {NAME}_kernel",
      "  .amdhsa_next_free_vgpr 256", "  .amdhsa_next_free_sgpr 102", "  .amdhsa_accum_offset 256",
      "  .amdhsa_group_segment_fixed_size 0", "  .amdhsa_kernarg_size 96", "  .amdhsa_user_sgpr_count 2",
      "  .amdhsa_user_sgpr_kernarg_segment_ptr 1", "  .amdhsa_system_sgpr_workgroup_id_x 1", ".end_amdhsa_kernel"]
open(OUT, "w").write("\n".join(L) + "\n")
print("wrote", OUT, len(L), "lines")
```

```python
import sys, struct
NAME = "recurrent_scan__grouped_kv_mqa__geglu_ffn__prompt"
PROF = "--prof" in sys.argv
OUT = [a for a in sys.argv[1:2] if not a.startswith("--")]
OUT = OUT[0] if OUT else f"cdna_kernels/{NAME}.s"

L = []
def e(s):
    for ln in s.split("\n"):
        if not ln.strip(): continue
        L.append(("    " + ln.strip()) if not ln.strip().endswith(":") else ln.strip())
def f2u(x): return struct.unpack("<I", struct.pack("<f", x))[0]
def vr(a, n): return f"v[{a}:{a+n-1}]"
def sr(a, n): return f"s[{a}:{a+n-1}]"

KVT = 2080
KVIMG = 0
HIMG = 135168
OIMG = HIMG + 64*88*1024
HFLG = OIMG + 64*32*1024
KFLG = HFLG + 256*128
STATG = KFLG + 16*128
PROFO = STATG + 2048*16
WS_BYTES = PROFO + 256*8*256
CNT_KV = 0
KVRDY = 128
STG = 45056
XOFF, GOFF, UOFF, QOFF = 0, 16384, 28672, 40960
STGK, QOFFK, NBK = 24832, 20736, 5
QIMG = 135168
STATM = 160768
CSUM = 162816
MRX = 159744
STL = 163712
FLAG = 163776
LDS_BYTES = 163840
SX, SWQ, SWK, SWV, SWO, SWG, SWD, SOUT, SDBG, SWS = 4, 8, 12, 16, 20, 24, 28, 32, 36, 40
sI, sJ, sW, sW4 = 44, 45, 46, 47
sXo, sWo, sQo, sLb = 48, 49, 50, 51
sMx, sMw, sMq = 52, 53, 54
sSt, sDl, sT0, sT1, sT2, sT3 = 55, 56, 57, 58, 59, 60
sTB, sCS, sRetry, sRb = 61, 62, 63, 3
sEx = 88
sTm = 90
sPo = 92
sC0, sC1, sC2, sC3 = 94, 95, 96, 97
sOp = 98
TOUCH = int("--touch" in sys.argv)
vLane, vH, vT0, vT1, vT2, vT3 = 1, 2, 3, 4, 5, 6
vXa0, vXa1, vWa0, vWa1, vWa2, vQa = 7, 8, 9, 10, 11, 12
vRX = 13
vRW, vRQ = 17, 18
vSel = 20
vCs = 24
vF = 32
vAcc = 96
vSt = 160
aQ = [8, 12]; aK = [16, 20]; aVl = [24, 28]; aVh = [32, 36]; aS = [40, 56]; aC = [72, 88]; aO = [104, 120]
fA, fWo, fWb, fH, fX, fG = 8, 72, [136, 144], 152, 200, 204
fS, fO, fR = 136, 8, 8
vIdx, vAk, vAv, vDa, vL16, vRa = 240, 241, 242, 243, 244, 245
vPoll = 246
vRd = 248
vRw, vRr, vRr2, vDa2 = 252, 253, 254, 255
vRw2 = 238
vAq = 237
sKq, sTt, sHo, sDo, sDm, sHc, sXf, sOc, sOc2, sHs = 64, 65, 66, 67, 68, 69, 70, 71, 72, 73
sOc3, sOc4, sOp2 = 80, 81, 99
sXf2 = 64
sNo = 86
sRow, sKf = 63, 85
ASL = 8320
XB, XK, XP = 8512, 2112, 1056
XF0, XS0, XS1 = 34048, 0, 102144
def aslot(n): return ASL*n
SP = [135168, 143360, 151552]

nstamp = [0]
DBGT = "--dbgt" in sys.argv
DT = {0: 75, 12: 76, 1: 77, 2: 78, 3: 79, 6: 80, 9: 81, 7: 82, 11: 83}
PAD = (int(sys.argv[sys.argv.index("--pad")+1]), int(sys.argv[sys.argv.index("--pad")+2])) if "--pad" in sys.argv else None
npad = [0]
PADB = sNo if "--padg" in sys.argv else 100
def stamp(k):
    if PAD and PAD[0] == k:
        npad[0] += 1
        e(f"Lpad{npad[0]}:\ns_memrealtime s[{sTm}:{sTm+1}]\ns_waitcnt lgkmcnt(0)\ns_sub_u32 s{sTm}, s{sTm}, s{PADB}\ns_sleep 8\ns_cmp_lt_u32 s{sTm}, {PAD[1]}\ns_cbranch_scc1 Lpad{npad[0]}")
    if DBGT and k in DT:
        e(f"s_memrealtime s[{sTm}:{sTm+1}]\ns_waitcnt lgkmcnt(0)\ns_sub_u32 s{DT[k]}, s{sTm}, s100")
        if k == 11:
            e(f"s_memtime s[{sTm}:{sTm+1}]\ns_waitcnt lgkmcnt(0)\ns_sub_u32 s84, s{sTm}, s92")
            e(f"s_cmp_lg_u32 s2, 64\ns_cbranch_scc1 Lend\ns_cmp_lg_u32 s{sW}, 4\ns_cbranch_scc1 Lend")
            for n, r in enumerate(range(75, 85)):
                e(f"v_mov_b32 v0, s{r}\nbuffer_store_dword v0, off, {sr(SDBG,4)}, 0 offset:{4+4*n}\ns_nop 1")
    if not PROF: return
    e(f"""s_memtime s[{sTm}:{sTm+1}]
    s_waitcnt lgkmcnt(0)
    v_mov_b32 v0, s{sTm}
    buffer_store_dword v0, off, {sr(SWS,4)}, s{sPo} offset:{4*k}""")
    if k in RTS:
        e(f"""s_memrealtime s[{sTm}:{sTm+1}]
        s_waitcnt lgkmcnt(0)
        v_mov_b32 v0, s{sTm}
        buffer_store_dword v0, off, {sr(SWS,4)}, s{sPo} offset:{4*RTS[k]}""")
RTS = {12: 24, 1: 25, 5: 26, 6: 27, 11: 28}

TS = []
def tstamp(k):
    if not PROF: return
    r = 74 + len(TS); TS.append((k, r))
    e(f"s_memtime s[{sTm}:{sTm+1}]\ns_waitcnt lgkmcnt(0)\ns_mov_b32 s{r}, s{sTm}")
def tflush():
    for k, r in TS: e(f"v_mov_b32 v0, s{r}\nbuffer_store_dword v0, off, {sr(SWS,4)}, s{sPo} offset:{4*k}\ns_nop 1")
def tick(acc):
    if not PROF or "--notick" in sys.argv: return ""
    r = f"s_memtime s[{sTm}:{sTm+1}]\ns_waitcnt lgkmcnt(0)\n"
    if acc is not None: r += f"s_sub_u32 s99, s{sTm}, s99\ns_add_u32 s{acc}, s{acc}, s99\n"
    return r + f"s_mov_b32 s99, s{sTm}"

def interleave(main, fill):
    out = []; n = len(main); m = len(fill); k = 0
    for i, a in enumerate(main):
        out.append(a)
        t = (m * (i + 1)) // n
        out += fill[k:t]; k = t
    return out

def mfma(d, a, b, c=None):
    c = vr(d, 16) if c is None else c
    return f"v_mfma_f32_32x32x16_bf16 {vr(d,16)}, {vr(a,4)}, {vr(b,4)}, {c}"
def mfma16(d, a, b): return f"v_mfma_f32_16x16x32_bf16 {vr(d,4)}, {vr(a,4)}, {vr(b,4)}, {vr(d,4)}"
def smf(d, a, b, idx): return f"v_smfmac_f32_32x32x32_bf16 {vr(d,16)}, {vr(a,4)}, {vr(b,8)}, v{idx}"

TK = PROF and "--tk" in sys.argv
def tk(acc):
    if not TK: return ""
    r = f"s_memtime s[{sTm}:{sTm+1}]\ns_waitcnt lgkmcnt(0)\n"
    if acc is not None: r += f"s_sub_u32 s82, s{sTm}, s82\ns_add_u32 s{acc}, s{acc}, s82\n"
    return r + f"s_mov_b32 s82, s{sTm}"
def tkout():
    if TK: e(f"v_mov_b32 v0, s80\nbuffer_store_dword v0, off, {sr(SWS,4)}, s{sPo} offset:{4*29}\ns_nop 1\nv_mov_b32 v0, s81\nbuffer_store_dword v0, off, {sr(SWS,4)}, s{sPo} offset:{4*30}")
def tr(d, a, off): return [f"ds_read_b64_tr_b16 {vr(d,2)}, v{a} offset:{off}"]
def tag_issue(): return f"buffer_load_dwordx2 {vr(vPoll,2)}, off, {sr(SDBG,4)}, 0 sc1"
def tag_wait(tag, first_wait):
    e(f"""s_mov_b32 s{sT0}, 0
    s_waitcnt vmcnt({first_wait})
    Ltag_{tag}:
    v_readfirstlane_b32 s{sNo}, v{vPoll}
    v_readfirstlane_b32 s{sNo+1}, v{vPoll+1}
    s_add_u32 s{sT0}, s{sT0}, 1
    s_cmp_lg_u32 s{sNo}, 0
    s_cbranch_scc1 Ltagd_{tag}
    s_cmp_ge_u32 s{sT0}, 100000
    s_cbranch_scc1 Ltagd_{tag}
    s_sleep 1
    {tag_issue()}
    s_waitcnt vmcnt(0)
    s_branch Ltag_{tag}
    Ltagd_{tag}:""")
def flags_issue(base):
    return f"""v_and_b32 v{vPoll}, 15, v{vLane}
    v_lshlrev_b32 v{vPoll}, 7, v{vPoll}
    buffer_load_dwordx2 {vr(vPoll,2)}, v{vPoll}, {sr(SWS,4)}, s{base} offen sc1"""
def h_poll_issue(): return flags_issue(sHc)
def flags_wait(base, tag, first_wait):
    e(f"""s_mov_b32 s{sT0}, 0
    s_waitcnt vmcnt({first_wait})
    Lfw_{tag}:
    v_cmp_ne_u64 vcc, s[{sNo}:{sNo+1}], {vr(vPoll,2)}
    s_add_u32 s{sT0}, s{sT0}, 1
    s_cmp_ge_u32 s{sT0}, 100000
    s_cbranch_vccz Lfwd_{tag}
    s_cbranch_scc1 Lfwd_{tag}
    s_sleep 3
    {flags_issue(base)}
    s_waitcnt vmcnt(0)
    s_branch Lfw_{tag}
    Lfwd_{tag}:""")
def flag_set(off_sreg, tag, wave=0):
    e(f"""s_cmp_lg_u32 s{sW}, {wave}
    s_cbranch_scc1 Lsig_{tag}
    v_mov_b32 v{vPoll}, s{sNo}
    v_mov_b32 v{vPoll+1}, s{sNo+1}
    s_mov_b64 exec, 1
    buffer_store_dwordx2 {vr(vPoll,2)}, off, {sr(SWS,4)}, s{off_sreg} sc1
    s_mov_b64 exec, -1
    Lsig_{tag}:""")

hdr = open(f"cdna_kernels/{NAME}.s.ref").read().split("\n")
hdr = [h for h in hdr[:15] if h.startswith(";") and "@launch" not in h]
L += hdr
L.append(f"; @launch grid=(256,1,1) block=(512,1,1) lds={LDS_BYTES}")
L += ['.amdgcn_target "amdgcn-amd-amdhsa--gfx950"', ".text", f".globl {NAME}_kernel", ".p2align 8",
      f".type {NAME}_kernel,@function"]
e(f"{NAME}_kernel:")
RT = PROF
if RT: e("s_memrealtime s[100:101]\ns_memtime s[98:99]")
if DBGT or PAD: e("s_memrealtime s[100:101]\ns_memtime s[92:93]")
MAP84 = f"""s_and_b32 s{sI}, s{sT0}, 1
s_lshl_b32 s{sI}, s{sI}, 3
s_and_b32 s{sT2}, s{sT1}, 7
s_add_u32 s{sI}, s{sI}, s{sT2}
s_lshr_b32 s{sJ}, s{sT0}, 1
s_lshl_b32 s{sJ}, s{sJ}, 2
s_lshr_b32 s{sT3}, s{sT1}, 3
s_add_u32 s{sJ}, s{sJ}, s{sT3}
s_sub_u32 s{sJ}, 15, s{sJ}
s_and_b32 s{sTB}, s{sT0}, 3
s_lshl_b32 s{sTB}, s{sTB}, 3
s_add_u32 s{sTB}, s{sTB}, s{sT2}
s_lshr_b32 s{sCS}, s{sT0}, 2
s_lshl_b32 s{sCS}, s{sCS}, 2
s_add_u32 s{sCS}, s{sCS}, s{sT3}"""
MAP48 = f"""s_lshr_b32 s{sT2}, s{sT0}, 1
s_lshl_b32 s{sI}, s{sT2}, 2
s_and_b32 s{sT3}, s{sT1}, 3
s_add_u32 s{sI}, s{sI}, s{sT3}
s_lshl_b32 s{sTB}, s{sT2}, 3
s_and_b32 s{sT3}, s{sT1}, 7
s_add_u32 s{sTB}, s{sTB}, s{sT3}
s_and_b32 s{sT0}, s{sT0}, 1
s_lshl_b32 s{sJ}, s{sT0}, 3
s_lshr_b32 s{sT3}, s{sT1}, 2
s_add_u32 s{sJ}, s{sJ}, s{sT3}
s_sub_u32 s{sJ}, 15, s{sJ}
s_lshl_b32 s{sCS}, s{sT0}, 2
s_lshr_b32 s{sT3}, s{sT1}, 3
s_add_u32 s{sCS}, s{sCS}, s{sT3}"""
M48 = "--m48" in sys.argv
MAP = MAP48 if M48 else MAP84
PFC = "" if "--nopfc" in sys.argv else f"""s_cmp_lg_u32 s{sW}, 7
s_cbranch_scc1 Lnop0
s_getpc_b64 s[94:95]
Lpc0:
s_bfe_u32 s{sT0}, s2, 0x20003
s_lshl_b32 s{sT0}, s{sT0}, 13
v_lshl_add_u32 v{vT1}, v{vLane}, 7, s{sT0}
v_min_u32 v{vT1}, Lcodeend-Lpc0-4, v{vT1}
global_load_dword v223, v{vT1}, s[94:95]"""
e(f"""s_cmp_ge_u32 s2, 256
s_cbranch_scc1 Lend
s_load_dwordx2 s[{SX}:{SX+1}], s[0:1], 0
s_load_dwordx2 s[{SWG}:{SWG+1}], s[0:1], 48
s_load_dwordx2 s[{SWQ}:{SWQ+1}], s[0:1], 8
s_load_dwordx2 s[{SWV}:{SWV+1}], s[0:1], 24
s_load_dwordx2 s[{SDBG}:{SDBG+1}], s[0:1], 80
s_load_dwordx2 s[{SWS}:{SWS+1}], s[0:1], 88
v_and_b32 v{vLane}, 63, v0
v_lshrrev_b32 v{vT0}, 6, v0
v_lshrrev_b32 v{vH}, 5, v{vLane}
v_readfirstlane_b32 s{sW}, v{vT0}
{PFC}
Lnop0:
s_and_b32 s{sT0}, s2, 7
s_lshr_b32 s{sT1}, s2, 3
{MAP}
s_and_b32 s{sW4}, s{sW}, 3
v_lshrrev_b32 v{vT0}, 3, v{vLane}
v_lshlrev_b32 v{vT0}, 10, v{vT0}
v_and_b32 v{vT1}, 7, v{vLane}
v_lshrrev_b32 v{vT2}, 4, v{vLane}
v_xor_b32 v{vT1}, v{vT1}, v{vT2}
v_lshl_add_u32 v{vXa0}, v{vT1}, 4, v{vT0}
v_xor_b32 v{vXa1}, 64, v{vXa0}
v_add_u32 v{vXa1}, {8192-1024}, v{vXa1}
v_lshlrev_b32 v{vL16}, 4, v{vLane}
s_lshl_b32 s{sXo}, s{sI}, 17
s_lshl_b32 s{sT0}, s{sW4}, 15
s_add_u32 s{sXo}, s{sXo}, s{sT0}
s_lshl_b32 s{sRow}, s{sI}, 4
s_add_u32 s{sRow}, s{sRow}, s{sJ}
s_lshl_b32 s{sRow}, s{sRow}, 2
s_add_u32 s{sRow}, s{sRow}, s{sW4}
s_cmp_eq_u32 s{sJ}, 15
s_cselect_b32 s{sT0}, 16, 56
s_load_dwordx2 s[{SWK}:{SWK+1}], s[0:1], s{sT0}
s_mov_b32 s{sT1}, {512*2752}
s_cselect_b32 s{SWK+2}, 16384, s{sT1}
s_mov_b32 s{SWK+3}, 0x20000""")
SWU = SWK
vRs = 144
for d, nbytes in ((SX, 2048*1024), (SWG, 512*2752), (SWQ, 512*1024), (SWV, 16384), (SDBG, 256), (SWS, WS_BYTES)):
    e(f"s_mov_b32 s{d+2}, {nbytes}\ns_mov_b32 s{d+3}, 0x20000")
def late_srd(lst):
    for d, off, nbytes in lst:
        e(f"s_load_dwordx2 s[{d}:{d+1}], s[0:1], {off}\ns_mov_b32 s{d+2}, {nbytes}\ns_mov_b32 s{d+3}, 0x20000")
LS_A = [(SOUT, 72, 2048*1024)]; LS_F = [(SWO, 32, 512*1024), (SWD, 64, 1376*1024)]
def entry_stamp(defer=False):
    if PROF:
        e(f"s_lshl_b32 s{sPo}, s2, 3\ns_add_u32 s{sPo}, s{sPo}, s{sW}\ns_lshl_b32 s{sPo}, s{sPo}, 8\ns_add_u32 s{sPo}, s{sPo}, {PROFO}")
    if defer: tstamp(0); return
    stamp(0); rt_out()
def rt_out():
    if RT: e(f"s_nop 1\nv_mov_b32 v0, s100\nbuffer_store_dword v0, off, {sr(SWS,4)}, s{sPo} offset:60\ns_nop 1\nv_mov_b32 v0, s98\nbuffer_store_dword v0, off, {sr(SWS,4)}, s{sPo} offset:16")
def row_loads():
    e(f"""s_lshl_b32 s{sT1}, s{sRow}, 11
    buffer_load_dwordx4 {vr(vRs,4)}, v{vL16}, {sr(SX,4)}, s{sT1} offen
    buffer_load_dwordx4 {vr(vRs+4,4)}, v{vL16}, {sr(SX,4)}, s{sT1} offen offset:1024""")
WKV = 131072
vXf, vWk = 32, 192
sXb = sMw
def kvx_dma(c):
    return [f"""s_add_u32 m0, s{sXb}, {4096*c+2048*hf}
        s_add_u32 s{sT0}, s{sXo}, {128*c+16384*hf}
        buffer_load_dwordx4 v{vXa0}, {sr(SX,4)}, s{sT0} offen lds
        buffer_load_dwordx4 v{vXa1}, {sr(SX,4)}, s{sT0} offen offset:1024 lds""" for hf in range(2)]
e(f"""s_cselect_b32 s{sT2}, 1, 0
s_cmp_lt_u32 s{sW}, 4
s_cbranch_scc1 Lnorow
s_waitcnt lgkmcnt(0)""")
row_loads()
e(f"""s_cmp_eq_u32 s{sJ}, 15
s_cbranch_scc0 Lcomp
Lnorow:
s_cmp_eq_u32 s{sJ}, 15
s_cbranch_scc0 Lhelp
s_memrealtime s[{sTm}:{sTm+1}]
s_lshl_b32 s{sXb}, s{sW}, 14
s_lshr_b32 s{sT3}, s{sW}, 2
s_lshl_b32 s{sT0}, s{sT3}, 9
s_add_u32 s{sXo}, s{sXo}, s{sT0}
s_or_b32 s{sT0}, s2, s{sW}
s_cmp_lg_u32 s{sT0}, 0
s_waitcnt lgkmcnt(0)
s_cbranch_scc1 Lnotag
s_or_b32 s{sTm}, s{sTm}, 1
v_mov_b32 v{vPoll}, s{sTm}
v_mov_b32 v{vPoll+1}, s{sTm+1}
s_mov_b64 exec, 1
buffer_store_dwordx2 {vr(vPoll,2)}, off, {sr(SDBG,4)}, 0 sc1
s_mov_b64 exec, -1
Lnotag:
s_lshl_b32 s{sT0}, s{sW}, 11
s_add_u32 m0, s{sT0}, {WKV}
s_nop 0
buffer_load_dwordx4 v{vL16}, {sr(SWV,4)}, s{sT0} offen lds
buffer_load_dwordx4 v{vL16}, {sr(SWV,4)}, s{sT0} offen offset:1024 lds
s_add_u32 m0, s{sT0}, {WKV+16384}
s_nop 0
buffer_load_dwordx4 v{vL16}, {sr(SWK,4)}, s{sT0} offen lds
buffer_load_dwordx4 v{vL16}, {sr(SWK,4)}, s{sT0} offen offset:1024 lds""")
for x in kvx_dma(0): e(x)
e("s_branch Lkvcu\nLhelp:")

def v_lane_addr(d):
    e(f"""v_and_b32 v{d}, 15, v{vLane}
    v_lshlrev_b32 v{d}, 4, v{d}
    v_lshl_add_u32 v{d}, v{vH}, 8, v{d}
    s_mov_b32 exec_lo, 0xffff0000
    s_mov_b32 exec_hi, 0xffff0000
    v_mov_b32 v{d}, 512""")
def fin_init():
    e(f"""s_lshl_b32 s{sT0}, s{sTB}, 16
    s_lshl_b32 s{sT1}, s{sCS}, 7
    s_add_u32 s{sT0}, s{sT0}, s{sT1}
    s_lshl_b32 s{sT1}, s{sW4}, 14
    s_add_u32 s{sXf}, s{sT0}, s{sT1}
    s_add_u32 s{sXf2}, s{sXf}, 8192
    v_lshrrev_b32 v{vT0}, 3, v{vLane}
    v_and_b32 v{vT1}, 7, v{vLane}
    v_lshlrev_b32 v{vRa}, 10, v{vT0}
    v_lshl_add_u32 v{vRa}, v{vT1}, 4, v{vRa}
    v_bfe_u32 v{vT1}, v{vLane}, 1, 2
    v_mul_u32_u24 v{vT1}, {XB}, v{vT1}
    v_lshl_add_u32 v{vT0}, v{vT0}, 4, v{vT1}
    v_and_b32 v{vT1}, 1, v{vLane}
    v_mul_u32_u24 v{vT1}, {XP}, v{vT1}
    s_and_b32 s{sT0}, s{sW4}, 1
    s_lshl_b32 s{sT0}, s{sT0}, 8
    v_add3_u32 v{vT0}, v{vT0}, v{vT1}, s{sT0}
    s_lshr_b32 s{sT0}, s{sW4}, 1
    s_mul_i32 s{sT1}, s{sT0}, {4*XB}
    s_add_u32 s{sT1}, s{sT1}, {XF0}
    v_add_u32 v{vRr}, s{sT1}, v{vT0}
    s_mul_i32 s{sT1}, s{sT0}, {XS1}
    v_add_u32 v{vRr2}, s{sT1}, v{vT0}""")
def a_init(zero=True):
    e(f"""s_lshl_b32 s{sT0}, s{sI}, 2
    s_add_u32 s{sT0}, s{sT0}, s{sW4}
    s_lshl_b32 s{sT0}, s{sT0}, 5
    s_lshr_b32 s{sT1}, s{sJ}, 1
    s_add_u32 s{sT0}, s{sT0}, s{sT1}
    s_and_b32 s{sT1}, s{sJ}, 1
    s_lshl_b32 s{sT1}, s{sT1}, 4
    s_add_u32 s{sT0}, s{sT0}, s{sT1}
    s_lshl_b32 s{sT0}, s{sT0}, 10
    s_add_u32 s{sOp}, s{sT0}, {OIMG}
    s_add_u32 s{sOp2}, s{sOp}, 8192
    v_mov_b64 v[232:233], -1
    v_mov_b64 v[234:235], -1
    buffer_store_dwordx4 v[232:235], v{vL16}, {sr(SWS,4)}, s{sOp} offen sc1
    buffer_store_dwordx4 v[232:235], v{vL16}, {sr(SWS,4)}, s{sOp2} offen sc1""")
    v_lane_addr(vAv)
    e(f"""s_mov_b32 exec_lo, 0xffee0000
    s_mov_b32 exec_hi, 0xffee0000
    v_mov_b32 v{vAv}, 0x4000000
    s_mov_b64 exec, -1
    v_add_u32 v{vAv}, 1024, v{vAv}
    v_mov_b32 v{vAk}, v{vL16}
    v_mov_b32 v{vIdx}, 0xdddd
    s_lshl_b32 s{sT0}, s{sW4}, 11
    s_add_u32 s{sT0}, s{sT0}, {QIMG}
    v_add_u32 v{vAq}, s{sT0}, v{vL16}""")
    if zero: a_zero()
def a_zero():
    for b in range(2):
        for r in range(0, 12, 2): e(f"v_mov_b64 {vr(aO[b]+r,2)}, 0")
def f_init():
    e(f"""v_lshrrev_b32 v{vT0}, 3, v{vLane}
    v_lshlrev_b32 v{vT0}, 10, v{vT0}
    v_and_b32 v{vT1}, 7, v{vLane}
    v_bfe_u32 v{vT2}, v{vLane}, 4, 1
    v_lshlrev_b32 v{vT2}, 2, v{vT2}
    v_xor_b32 v{vT1}, v{vT1}, v{vT2}
    v_lshl_add_u32 v{vDa}, v{vT1}, 4, v{vT0}
    v_add_u32 v{vDa2}, {8192-1024}, v{vDa}
    s_lshl_b32 s{sDo}, s{sW4}, 14
    s_lshl_b32 s{sT1}, s{sCS}, 7
    s_add_u32 s{sDo}, s{sDo}, s{sT1}
    s_lshl_b32 s{sDm}, s{sW4}, 11
    s_mul_i32 s{sHo}, s{sTB}, 176
    s_mul_i32 s{sT0}, s{sW4}, 22
    s_add_u32 s{sHo}, s{sHo}, s{sT0}
    s_lshl_b32 s{sHo}, s{sHo}, 10
    s_add_u32 s{sHo}, s{sHo}, {HIMG}
    s_lshl_b32 s{sT0}, s{sTB}, 3
    s_add_u32 s{sT0}, s{sT0}, s{sW4}
    s_lshl_b32 s{sT0}, s{sT0}, 13
    s_add_u32 s{sOc}, s{sT0}, {OIMG}
    s_add_u32 s{sOc2}, s{sOc}, 4096
    s_add_u32 s{sOc3}, s{sOc}, 32768
    s_add_u32 s{sOc4}, s{sOc}, {32768+4096}
    s_lshr_b32 s{sHc}, s{sTB}, 1
    s_lshl_b32 s{sHc}, s{sHc}, 11
    s_add_u32 s{sHc}, s{sHc}, {HFLG}
    s_lshl_b32 s{sHs}, s{sI}, 4
    s_add_u32 s{sHs}, s{sHs}, s{sJ}
    s_lshl_b32 s{sHs}, s{sHs}, 7
    s_add_u32 s{sHs}, s{sHs}, {HFLG}
    v_bfe_u32 v{vT0}, v{vLane}, 2, 2
    v_lshl_add_u32 v{vT0}, v{vH}, 2, v{vT0}
    v_lshlrev_b32 v{vT0}, 7, v{vT0}
    v_bfe_u32 v{vT1}, v{vLane}, 4, 1
    v_lshl_add_u32 v{vT0}, v{vT1}, 5, v{vT0}
    v_and_b32 v{vT1}, 3, v{vLane}
    v_lshl_add_u32 v{vT0}, v{vT1}, 3, v{vT0}
    v_bfe_u32 v{vT1}, v{vLane}, 3, 1
    v_lshl_add_u32 v{vT0}, v{vT1}, 6, v{vT0}
    v_add_u32 v{vRd}, s{sDm}, v{vT0}
    v_xor_b32 v{vRd+1}, 64, v{vRd}
    v_add_u32 v{vRd+2}, {SP[0]}, v{vRd}
    v_add_u32 v{vRd+3}, {SP[0]}, v{vRd+1}
    s_mul_i32 s{sT0}, s{sW4}, {XK}
    v_add_u32 v{vRw2}, s{sT0}, v{vL16}
    v_add_u32 v{vRw}, {XF0}, v{vRw2}
    v_add_u32 v{vRw2+1}, {XS1}, v{vRw2}""")
def kv_rest(tag):
    e(f"s_setprio 0\ns_lshl_b32 s{sT1}, s{sW4}, 12")
    for n in range(6):
        e(f"s_add_u32 s{sT0}, s{sT1}, {36*1024+16384*n}\ns_mov_b32 m0, s{sT0}\ns_nop 0")
        for k in range(4): e(f"buffer_load_dwordx4 v{vL16}, {sr(SWS,4)}, s{sT0} offen offset:{1024*k} sc1 lds")
    e(tag_issue())
    e("s_setprio 2")

def spread(m, fill):
    w = [16 if "16x16" in x else 32 for x in m]
    tot = sum(c for c, _ in fill); W = sum(w)
    out = []; k = 0; acc = 0; cw = 0
    for x, wx in zip(m, w):
        out.append(x); cw += wx
        while k < len(fill) and (acc + fill[k][0]/2) * W <= tot * cw:
            out.append(fill[k][1]); acc += fill[k][0]; k += 1
    out += [t for _, t in fill[k:]]
    return out


C1 = -2*0.7978845608028654*1.4426950408889634
C3 = C1*0.044715
def gelu_consts(m, r, d):
    e(f"""v_sub_f32 v{d}, 0, v{m}
    v_mul_f32 v{d+3}, v{r}, v{r}
    v_mul_f32 v{d+1}, {f2u(C1):#x}, v{r}
    v_mul_f32 v{d+2}, {f2u(C3):#x}, v{r}
    v_mul_f32 v{d+2}, v{d+2}, v{d+3}
    v_rcp_f32 v{d+3}, v{d+3}""")
def bc(reg, pos, n):
    base = reg & ~1
    return vr(base, 2), reg & 1
def pk(op, d, srcs, neg=None):
    ops = []; lo = []; hi = []
    for t, r in srcs:
        if t == 'p': ops.append(vr(r, 2)); lo.append(0); hi.append(1)
        else: ops.append(vr(r & ~1, 2)); lo.append(r & 1); hi.append(r & 1)
    return f"{op} {vr(d,2)}, {', '.join(ops)} op_sel:[{','.join(map(str,lo))}] op_sel_hi:[{','.join(map(str,hi))}]"
def gelu_tile(g, u, csg, csu, k, tmp, n=16, dst=None):
    for p in range(0, n, 2):
        e(pk("v_pk_fma_f32", g+p, [('b', k), ('p', csg+p), ('p', g+p)]))
        e(pk("v_pk_fma_f32", u+p, [('b', k), ('p', csu+p), ('p', u+p)]))
    for p in range(0, n, 2):
        e(pk("v_pk_mul_f32", tmp+p, [('p', g+p), ('p', g+p)]))
    for p in range(0, n, 2):
        e(pk("v_pk_fma_f32", tmp+p, [('p', tmp+p), ('b', k+2), ('b', k+1)]))
    for p in range(0, n, 2):
        e(pk("v_pk_mul_f32", tmp+p, [('p', tmp+p), ('p', g+p)]))
    for p in range(n): e(f"v_exp_f32 v{tmp+p}, v{tmp+p}")
    for p in range(0, n, 2):
        e(pk("v_pk_mul_f32", u+p, [('p', u+p), ('p', g+p)]))
    for p in range(0, n, 2):
        e(pk("v_pk_fma_f32", tmp+p, [('p', tmp+p), ('b', k+3), ('b', k+3)]))
    for p in range(n): e(f"v_rcp_f32 v{tmp+p}, v{tmp+p}")
    e("s_nop 0")
    for p in range(0, n, 2):
        e(pk("v_pk_mul_f32", u+p, [('p', u+p), ('p', tmp+p)]))
    for p in range(n//2): e(f"v_cvt_pk_bf16_f32 v{dst[p] if dst else g+p}, v{u+2*p}, v{u+2*p+1}")

def cs_read(d, slot_off):
    for q in range(4): e(f"ds_read_b128 {vr(d+4*q,4)}, v{vT3} offset:{slot_off+32*q}")

def lin_fold(acc, cs, negm, scale, n=16):
    for p in range(0, n, 2):
        e(pk("v_pk_fma_f32", acc+p, [('b', negm), ('p', cs+p), ('p', acc+p)]))
    for p in range(0, n, 2):
        e(pk("v_pk_mul_f32", acc+p, [('p', acc+p), ('b', scale)]))

def q_epilogue(cs):
    e(f"v_mul_f32 v{vSt+2}, {f2u(0.25*1.4426950408889634):#x}, v{vSt+1}")
    lin_fold(vAcc, cs, vSt+4, vSt+2)
    for p in range(8): e(f"v_cvt_pk_bf16_f32 v{vAcc+p}, v{vAcc+2*p}, v{vAcc+2*p+1}")
    e(f"""s_lshl_b32 s{sT0}, s{sW4}, 11
    s_add_u32 s{sT0}, s{sT0}, {QIMG}
    v_lshl_add_u32 v{vT0}, v{vLane}, 4, s{sT0}
    ds_write_b128 v{vT0}, {vr(vAcc,4)}
    ds_write_b128 v{vT0}, {vr(vAcc+4,4)} offset:1024""")


def rowstat_finish():
    a = vRs+8
    e(f"v_mov_b32 v{vT0}, 0x3f803f80")
    for k in range(4):
        for r in range(2):
            x = vRs+4*r+k
            c0 = "0" if k == 0 else f"v{a+2*r}"; c1 = "0" if k == 0 else f"v{a+2*r+1}"
            e(f"v_dot2_f32_bf16 v{a+2*r}, v{x}, v{vT0}, {c0}\nv_dot2_f32_bf16 v{a+2*r+1}, v{x}, v{x}, {c1}")
    e("s_nop 2")
    for ctl in ("row_shr:1", "row_shr:2", "row_shr:4", "row_shr:8"):
        for k in range(4): e(f"v_add_f32_dpp v{a+k}, v{a+k}, v{a+k} {ctl} row_mask:0xf bank_mask:0xf bound_ctrl:0")
    for ctl in ("row_bcast:15 row_mask:0xa", "row_bcast:31 row_mask:0xc"):
        for k in range(4): e(f"v_add_f32_dpp v{a+k}, v{a+k}, v{a+k} {ctl} bank_mask:0xf")
    for r in range(2):
        d = vRs+4*r
        e(f"""v_mul_f32 v{d}, {f2u(1/512):#x}, v{a+2*r}
        v_mul_f32 v{d+1}, {f2u(1/512):#x}, v{a+2*r+1}
        v_fma_f32 v{d+1}, -v{d}, v{d}, v{d+1}
        v_max_f32 v{d+1}, 0, v{d+1}
        v_add_f32 v{d+1}, {f2u(1e-5):#x}, v{d+1}
        v_rsq_f32 v{d+1}, v{d+1}""")
def rowstat_post():
    e(f"""s_lshl_b32 s{sT0}, s{sW4}, 4
    s_add_u32 s{sT0}, s{sT0}, {STL}
    v_mov_b32 v{vT0}, s{sT0}
    s_mov_b32 exec_lo, 0
    s_brev_b32 exec_hi, 1
    ds_write_b64 v{vT0}, {vr(vRs,2)}
    ds_write_b64 v{vT0}, {vr(vRs+4,2)} offset:8
    s_mov_b64 exec, -1""")
def rowstat_store():
    for r in range(2): e(f"v_mov_b32 v{vRs+4*r+2}, s{sNo}\nv_mov_b32 v{vRs+4*r+3}, s{sNo+1}")
    e(f"""s_lshl_b32 s{sT0}, s{sRow}, 5
    s_add_u32 s{sT0}, s{sT0}, {STATG}
    s_mov_b32 exec_lo, 0
    s_brev_b32 exec_hi, 1
    buffer_store_dwordx4 {vr(vRs,4)}, off, {sr(SWS,4)}, s{sT0} sc1
    buffer_store_dwordx4 {vr(vRs+4,4)}, off, {sr(SWS,4)}, s{sT0} offset:16 sc1
    s_mov_b64 exec, -1""")
def kv_dma(tag):
    e(f"s_mul_i32 s{sT1}, s{sW4}, 3072")
    for n in range(3):
        e(f"s_add_u32 s{sT0}, s{sT1}, {12288*n}\ns_mov_b32 m0, s{sT0}\ns_nop 0")
        for k in range(3): e(f"buffer_load_dwordx4 v{vL16}, {sr(SWS,4)}, s{sT0} offen offset:{1024*k} sc1 lds")
def tr_lane(rowmul, d):
    e(f"""v_lshrrev_b32 v{vT0}, 4, v{vLane}
    v_bfe_u32 v{vT1}, v{vLane}, 2, 2
    v_lshl_add_u32 v{vT0}, v{vT0}, 3, v{vT1}
    v_mul_u32_u24 v{vT0}, {rowmul}, v{vT0}
    v_bfe_u32 v{vT1}, v{vLane}, 4, 1
    v_lshl_add_u32 v{vT0}, v{vT1}, 5, v{vT0}
    v_and_b32 v{vT1}, 3, v{vLane}
    v_lshl_add_u32 v{d}, v{vT1}, 3, v{vT0}""")
def ones_col0(d):
    e(f"""v_and_b32 v{vT0}, 15, v{vLane}
    v_cmp_eq_u32 vcc, 0, v{vT0}
    v_mov_b32 v{vT1}, 0x3f803f80
    s_nop 0
    v_cndmask_b32 v{d}, 0, v{vT1}, vcc""")
    for k in range(1, 4): e(f"v_mov_b32 v{d+k}, v{d}")
def rot_delta():
    return f"s_add_u32 s{sRb}, s{sRb}, 1\ns_cmp_eq_u32 s{sRb}, 3\ns_cselect_b32 s{sDl}, s{sC3}, {STG}\ns_cselect_b32 s{sRb}, 0, s{sRb}"
def cs16_write(accs, slot0_sreg, stride):
    e(f"v_add_u32 v{vT0}, s{slot0_sreg}, v{vLane}\ns_mov_b32 exec_lo, 0x00010001\ns_mov_b32 exec_hi, 0x00010001")
    for n, a in enumerate(accs): e(f"ds_write_b128 v{vT0}, {vr(a,4)} offset:{stride*n}")
    e("s_mov_b64 exec, -1")

ROT = int(sys.argv[sys.argv.index("--rot")+1]) if "--rot" in sys.argv else 7
sKs = 84
C0 = "--c0" in sys.argv
NR = 7 if C0 else 8
def dma_x():
    return [f"s_add_u32 m0, s{sLb}, s{sMx}", f"s_add_u32 s{sT0}, s{sXo}, 16384",
            f"buffer_load_dwordx4 v{vXa0}, {sr(SX,4)}, s{sXo} offen lds",
            f"buffer_load_dwordx4 v{vXa1}, {sr(SX,4)}, s{sXo} offen offset:1024 lds",
            "s_add_u32 m0, m0, 2048", f"s_add_u32 s{sXo}, s{sXo}, 128",
            f"buffer_load_dwordx4 v{vXa0}, {sr(SX,4)}, s{sT0} offen lds",
            f"buffer_load_dwordx4 v{vXa1}, {sr(SX,4)}, s{sT0} offen offset:1024 lds"]
def dma_w():
    r = []
    for k, sd in enumerate((SWG, SWU)):
        r += [f"s_add_u32 m0, s{sLb}, s{sMw}" if k == 0 else f"s_add_u32 m0, m0, {UOFF-GOFF}", "s_nop 0",
              f"buffer_load_dwordx4 v{vWa0}, {sr(sd,4)}, s{sWo} offen lds",
              f"buffer_load_dwordx4 v{vWa1}, {sr(sd,4)}, s{sWo} offen offset:1024 lds",
              f"buffer_load_dwordx4 v{vWa2}, {sr(sd,4)}, s{sWo} offen offset:2048 lds"]
    r += [f"s_add_u32 m0, s{sLb}, s{sMq}", f"s_add_u32 s{sWo}, s{sWo}, {64*2752}",
          f"buffer_load_dwordx4 v{vQa}, {sr(SWQ,4)}, s{sQo} offen lds", f"s_add_u32 s{sQo}, s{sQo}, 65536",
          f"s_add_u32 s{sLb}, s{sLb}, {STG}", f"s_cmp_ge_u32 s{sLb}, {3*STG}", f"s_cselect_b32 s{sLb}, 0, s{sLb}"]
    if ROT:
        r += [f"s_add_u32 s{sKs}, s{sKs}, 1", f"s_cmp_eq_u32 s{sKs}, 8",
              f"s_cselect_b32 s{sT0}, {128*NR}, 0", f"s_cselect_b32 s{sT1}, {64*NR*2752}, 0", f"s_cselect_b32 s{sT2}, {64*NR*1024}, 0",
              f"s_sub_u32 s{sXo}, s{sXo}, s{sT0}", f"s_sub_u32 s{sWo}, s{sWo}, s{sT1}", f"s_sub_u32 s{sQo}, s{sQo}, s{sT2}"]
    return r
e(f"s_mov_b32 s{sLb}, 0\ns_lshl_b32 s{sMx}, s{sW4}, 12")
if ROT and "--rm" in sys.argv: e(f"s_lshl_b32 s{sKs}, s{sI if M48 else sJ}, 1\ns_add_u32 s{sKs}, s{sKs}, s{sJ if M48 else sI}\ns_and_b32 s{sKs}, s{sKs}, {ROT}")
RM = sys.argv[sys.argv.index("--rm")+1] if "--rm" in sys.argv else "a"
if RM == "a":
    e(f"""s_xor_b32 s{sKs}, s{sI}, s{sJ}
    s_and_b32 s{sKs}, s{sKs}, 1
    s_lshl_b32 s{sKs}, s{sKs}, 2
    s_lshr_b32 s{sT0}, s{sI}, 1
    s_xor_b32 s{sT0}, s{sT0}, s{sJ}
    s_lshr_b32 s{sT0}, s{sT0}, 1
    s_and_b32 s{sT0}, s{sT0}, 2
    s_or_b32 s{sKs}, s{sKs}, s{sT0}""")
if RM == "b":
    e(f"""s_add_u32 s{sKs}, s{sI}, s{sJ}
    s_and_b32 s{sKs}, s{sKs}, 3
    s_lshl_b32 s{sKs}, s{sKs}, 1
    s_lshr_b32 s{sT0}, s{sI}, 1
    s_xor_b32 s{sT0}, s{sT0}, s{sJ}
    s_bfe_u32 s{sT0}, s{sT0}, 0x10002
    s_or_b32 s{sKs}, s{sKs}, s{sT0}""")
if RM == "c":
    e(f"""s_lshr_b32 s{sKs}, s{sI}, 3
    s_lshl_b32 s{sKs}, s{sKs}, 2
    s_lshr_b32 s{sT0}, s{sJ}, 2
    s_lshl_b32 s{sT0}, s{sT0}, 1
    s_add_u32 s{sKs}, s{sKs}, s{sT0}
    s_and_b32 s{sKs}, s{sKs}, 7""")
if ROT and C0: e(f"s_cmp_eq_u32 s{sKs}, 7\ns_cselect_b32 s{sKs}, 3, s{sKs}")
def rot_x(): e(f"s_lshl_b32 s{sT0}, s{sKs}, 7\ns_add_u32 s{sXo}, s{sXo}, s{sT0}")
def rot_w(): e(f"s_mul_i32 s{sT0}, s{sKs}, {64*2752}\ns_add_u32 s{sWo}, s{sWo}, s{sT0}\ns_lshl_b32 s{sT0}, s{sKs}, 16\ns_add_u32 s{sQo}, s{sQo}, s{sT0}")
if ROT and not C0: rot_x()
for k, r in enumerate((vWa0, vWa1, vWa2)):
    e(f"""v_add_u32 v{vT0}, {64*k}, v{vLane}
    v_mul_u32_u24 v{vT1}, 43691, v{vT0}
    v_lshrrev_b32 v{vT1}, 19, v{vT1}
    v_mul_u32_u24 v{vT2}, 12, v{vT1}
    v_sub_u32 v{vT0}, v{vT0}, v{vT2}
    v_lshrrev_b32 v{vT2}, 2, v{vT1}
    v_and_b32 v{vT2}, 2, v{vT2}
    v_xor_b32 v{vT0}, v{vT0}, v{vT2}
    v_mul_u32_u24 v{vT1}, 2752, v{vT1}
    v_lshl_add_u32 v{r}, v{vT0}, 4, v{vT1}""")
    if k: e(f"v_subrev_u32 v{r}, {1024*k}, v{r}")
e(f"""v_lshrrev_b32 v{vT0}, 2, v{vLane}
v_lshlrev_b32 v{vT0}, 10, v{vT0}
v_and_b32 v{vT1}, 3, v{vLane}
v_lshlrev_b32 v{vT2}, 1, v{vH}
v_xor_b32 v{vT1}, v{vT1}, v{vT2}
v_lshl_add_u32 v{vQa}, v{vT1}, 4, v{vT0}
s_mul_i32 s{sT0}, s{sJ}, 96
s_min_u32 s{sT0}, s{sT0}, 1280
s_lshl_b32 s{sT0}, s{sT0}, 1
s_mul_i32 s{sWo}, s{sW4}, {16*2752}
s_add_u32 s{sWo}, s{sWo}, s{sT0}
s_lshl_b32 s{sQo}, s{sW4}, 14
s_lshl_b32 s{sT0}, s{sJ}, 6
s_add_u32 s{sQo}, s{sQo}, s{sT0}
s_mul_i32 s{sMw}, s{sW4}, 3072
s_add_u32 s{sMw}, s{sMw}, {GOFF}
s_lshl_b32 s{sMq}, s{sW4}, 10
s_add_u32 s{sMq}, s{sMq}, {QOFF}""")
if ROT and not C0: rot_w()
e("s_waitcnt lgkmcnt(0)")
entry_stamp()
for x in dma_x(): e(x)
w0 = dma_w()
if ROT and C0:
    k = w0.index(f"s_add_u32 s{sKs}, s{sKs}, 1")
    for x in w0[:k]: e(x)
    rot_x(); rot_w(); e(w0[k])
else:
    for x in w0: e(x)
for x in dma_x() + dma_w(): e(x)
e(tag_issue())
late_srd(LS_A)
hW = 32
e(f"s_mov_b32 s{sSt}, 0\ns_mov_b32 s{sRb}, 0\ns_mov_b32 s{sC3}, {(-2*STG) & 0xffffffff}")
if "--hp3" in sys.argv: e("s_setprio 3")
tstamp(21); e("s_waitcnt vmcnt(12) lgkmcnt(0)"); tstamp(23); e("s_barrier")
stamp(12); tflush(); TS.clear()
def helper_loop(cs):
    t = "c" if cs else "n"
    e(f"Lhl{t}:")
    if cs:
        rd, m = cs_parts()
        for x in rd: e(x)
        e(rot_delta())
        for x in dma_x(): e(x)
        e(f"v_add_u32 v{hA}, s{sDl}, v{hA}\nv_add_u32 v{hA+1}, s{sDl}, v{hA+1}\ns_waitcnt lgkmcnt(0)")
        w = dma_w(); k = 0
        for x in w:
            e(x)
            if "buffer_load" in x: e(m[k]); k += 1
        for x in m[k:]: e(x)
    else:
        for x in dma_x() + dma_w():
            if "--nodma" in sys.argv and "buffer_load" in x: continue
            e(x)
            if "--pace" in sys.argv and "buffer_load" in x: e("s_sleep 1")
        e(f"s_or_b32 s{sT0}, s{sSt}, s{sW}\ns_cmp_lg_u32 s{sT0}, 0\ns_cbranch_scc1 Lnpub")
        e(f"v_lshlrev_b32 v{vT0}, 3, v{vLane}\nv_add_u32 v{vT0}, {STL}, v{vT0}\nds_read_b64 {vr(hW,2)}, v{vT0}")
        tag_wait("p", 11)
        e(f"""v_mov_b32 v{hW+2}, s{sNo}
        v_mov_b32 v{hW+3}, s{sNo+1}
        s_lshl_b32 s{sT0}, s{sRow}, 5
        s_add_u32 s{sT0}, s{sT0}, {STATG}
        s_mov_b64 exec, 0xff
        s_waitcnt lgkmcnt(0)
        buffer_store_dwordx4 {vr(hW,4)}, v{vL16}, {sr(SWS,4)}, s{sT0} offen sc1
        s_mov_b64 exec, -1
        Lnpub:""")
    e(f"""s_add_u32 s{sSt}, s{sSt}, 1
    {tk(None)}
    s_waitcnt vmcnt(11)
    {tk(80)}
    s_barrier
    {tk(81)}
    s_cmp_lt_u32 s{sSt}, 6
    s_cbranch_scc1 Lhl{t}""")
helper_loop(False)
tkout()
tag_wait("h", 0)
a_init(); fin_init()
e(f"s_mov_b32 s{sKf}, {KFLG}")
e("s_barrier")
e(flags_issue(sKf))
e(f"s_cmp_lg_u32 s{sW}, 1\ns_cbranch_scc1 Lhns\ns_lshl_b32 s{sT1}, s{sI}, 11\ns_add_u32 s{sT1}, s{sT1}, {STATG}\ns_mov_b32 s{sT0}, 0\nLhs:")
e(f"""buffer_load_dwordx4 {vr(hW,4)}, v{vL16}, {sr(SWS,4)}, s{sT1} offen sc1
buffer_load_dwordx4 {vr(hW+4,4)}, v{vL16}, {sr(SWS,4)}, s{sT1} offen offset:1024 sc1
s_add_u32 s{sT0}, s{sT0}, 1
s_waitcnt vmcnt(0)
v_cmp_ne_u64 vcc, s[{sNo}:{sNo+1}], {vr(hW+2,2)}
v_cmp_ne_u64 s[{sEx}:{sEx+1}], s[{sNo}:{sNo+1}], {vr(hW+6,2)}
s_or_b64 vcc, vcc, s[{sEx}:{sEx+1}]
s_cmp_ge_u32 s{sT0}, 100000
s_cbranch_scc1 Lhsd
s_cbranch_vccnz Lhs
Lhsd:""")
gelu_consts(hW, hW+1, hW+8); gelu_consts(hW+4, hW+5, hW+12)
e(f"""v_add_u32 v{vT0}, {STATM}, v{vL16}
ds_write_b128 v{vT0}, {vr(hW+8,4)}
ds_write_b128 v{vT0}, {vr(hW+12,4)} offset:1024
Lhns:""")
e(f"""s_waitcnt vmcnt(0)
v_cmp_ne_u64 vcc, s[{sNo}:{sNo+1}], {vr(vPoll,2)}
s_mov_b32 s{sSt}, 1
s_cbranch_vccnz Lhnk""")
kv_dma("a")
e(f"s_mov_b32 s{sSt}, 0\ns_branch Lhnk2\nLhnk:")
e(flags_issue(sKf))
e("Lhnk2:\ns_barrier\ns_waitcnt lgkmcnt(0)")
stamp(1)
e("s_barrier")
e(f"s_cmp_lg_u32 s{sSt}, 0\ns_cbranch_scc1 Lkvwait\ns_waitcnt vmcnt(0)\ns_branch Lp2")

cX = [8, 24]; cW = 40; cRX, cRW, cRQ = 68, 70, 72; cCs = 76; cO = 92; cA = 96
e("Lcomp:")
entry_stamp(True)
late_srd(LS_F)
e(f"""v_and_b32 v{vT0}, 15, v{vLane}
v_lshrrev_b32 v{vT1}, 1, v{vT0}
v_lshrrev_b32 v{vT2}, 4, v{vLane}
v_xor_b32 v{vT1}, v{vT1}, v{vT2}
v_lshlrev_b32 v{vT0}, 7, v{vT0}
s_and_b32 s{sT0}, s{sW}, 1
s_lshl_b32 s{sT0}, s{sT0}, 13
v_add_u32 v{vT0}, s{sT0}, v{vT0}
v_lshl_add_u32 v{cRX}, v{vT1}, 4, v{vT0}
v_xor_b32 v{cRX+1}, 64, v{cRX}""")
tr_lane(192, cRW)
e(f"""s_lshl_b32 s{sT1}, s{sW}, 4
s_and_b32 s{sT1}, s{sT1}, 32
v_xor_b32 v{cRW}, s{sT1}, v{cRW}
v_xor_b32 v{cRW+1}, 32, v{cRW}
s_lshl_b32 s{sT2}, s{sT1}, 1
v_add_u32 v{cRW}, s{sT2}, v{cRW}
s_lshl_b32 s{sT2}, s{sT1}, 2
v_add_u32 v{cRW+1}, s{sT2}, v{cRW+1}""")
tr_lane(64, cRQ); e(f"v_xor_b32 v{cRQ}, s{sT1}, v{cRQ}")
ones_col0(cO)
cEh, cEs, cEq = 73, 74, 75
e(f"""s_lshl_b32 s{sT0}, s{sI}, 2
s_and_b32 s{sT1}, s{sW}, 1
s_lshl_b32 s{sT1}, s{sT1}, 1
s_add_u32 s{sT0}, s{sT0}, s{sT1}
s_mul_i32 s{sT0}, s{sT0}, 88
s_mul_i32 s{sT1}, s{sJ}, 6
s_min_u32 s{sT1}, s{sT1}, 80
s_bfe_u32 s{sT2}, s{sW}, 0x10001
s_mul_i32 s{sT2}, s{sT2}, 3
s_add_u32 s{sT1}, s{sT1}, s{sT2}
s_and_b32 s{sT2}, s{sW}, 2""")
for add, dst in enumerate((sC0, sC1, sC2)):
    e(f"""s_add_u32 s{sT3}, s{sT1}, {add}
    s_lshr_b32 s{dst}, s{sT3}, 2
    s_add_u32 s{dst}, s{dst}, s{sT0}
    s_and_b32 s{sT3}, s{sT3}, 3
    s_mul_i32 s{sT3}, s{sT3}, 22
    s_add_u32 s{dst}, s{dst}, s{sT3}
    s_lshl_b32 s{dst}, s{dst}, 10
    s_add_u32 s{dst}, s{dst}, {HIMG}""")
e(f"""v_bfe_u32 v{vT0}, v{vLane}, 4, 1
v_lshlrev_b32 v{vT0}, 9, v{vT0}
v_and_b32 v{vT1}, 15, v{vLane}
v_lshl_add_u32 v{vT0}, v{vT1}, 4, v{vT0}
v_lshl_add_u32 v{cEh}, v{vH}, 8, v{vT0}
s_and_b32 s{sT0}, s{sW}, 1
s_lshl_b32 s{sT1}, s{sT0}, 10
s_add_u32 s{sT1}, s{sT1}, {STATM}
v_lshl_add_u32 v{cEs}, v{vT1}, 4, s{sT1}
s_lshl_b32 s{sT0}, s{sT0}, 12
s_lshl_b32 s{sT2}, s{sT2}, 9
s_add_u32 s{sT0}, s{sT0}, s{sT2}
s_add_u32 s{sT0}, s{sT0}, {QIMG}
v_lshl_add_u32 v{vT0}, v{vH}, 3, v{vT0}
v_add_u32 v{cEq}, s{sT0}, v{vT0}""")
f_init()
for r in list(range(cCs, cCs+16, 2)) + [r for r in range(cA, cA+112, 2) if not vRs <= r < vRs+16]: e(f"v_mov_b64 {vr(r,2)}, 0")
tstamp(13)
e("s_waitcnt vmcnt(0)")
tstamp(21)
rowstat_finish()
rowstat_post()
tstamp(23)
if "--touch" in sys.argv:
    e(f"""s_and_b32 s{sT2}, s{sI}, 7
    s_mul_i32 s{sT2}, s{sT2}, 48
    s_add_u32 s{sT2}, s{sT2}, 128
    s_cmp_ge_u32 s{sW}, 6
    s_cbranch_scc1 Ltc6
    v_lshrrev_b32 v{vT0}, 1, v{vLane}
    v_mul_u32_u24 v{vT0}, 2752, v{vT0}
    v_and_b32 v{vT1}, 1, v{vLane}
    v_lshl_add_u32 v{vT0}, v{vT1}, 7, v{vT0}
    s_mul_i32 s{sT0}, s{sJ}, 96
    s_min_u32 s{sT0}, s{sT0}, 1280
    s_lshl_b32 s{sT0}, s{sT0}, 1
    s_mul_i32 s{sT2}, s{sT2}, 2752
    s_add_u32 s{sT0}, s{sT0}, s{sT2}
    s_add_u32 s{sT1}, s{sT0}, {32*2752}
    s_cmp_eq_u32 s{sW}, 5
    s_cbranch_scc1 Ltc5
    buffer_load_dword v79, v{vT0}, {sr(SWG,4)}, s{sT0} offen
    s_mov_b32 exec_hi, 0
    buffer_load_dword v79, v{vT0}, {sr(SWG,4)}, s{sT1} offen
    s_branch Ltce
    Ltc5:
    buffer_load_dword v79, v{vT0}, {sr(SWU,4)}, s{sT0} offen
    s_mov_b32 exec_hi, 0
    buffer_load_dword v79, v{vT0}, {sr(SWU,4)}, s{sT1} offen
    s_branch Ltce
    Ltc6:
    s_cmp_eq_u32 s{sW}, 7
    s_cbranch_scc1 Ltc7
    v_lshrrev_b32 v{vT0}, 1, v{vLane}
    v_lshlrev_b32 v{vT0}, 10, v{vT0}
    v_and_b32 v{vT1}, 1, v{vLane}
    v_lshl_add_u32 v{vT0}, v{vT1}, 7, v{vT0}
    s_lshl_b32 s{sT0}, s{sI}, 17
    s_and_b32 s{sT1}, s{sJ}, 3
    s_lshl_b32 s{sT1}, s{sT1}, 15
    s_add_u32 s{sT0}, s{sT0}, s{sT1}
    buffer_load_dword v79, v{vT0}, {sr(SX,4)}, s{sT0} offen offset:256
    buffer_load_dword v79, v{vT0}, {sr(SX,4)}, s{sT0} offen offset:512
    buffer_load_dword v79, v{vT0}, {sr(SX,4)}, s{sT0} offen offset:768
    s_branch Ltce
    Ltc7:
    v_lshlrev_b32 v{vT0}, 10, v{vLane}
    s_lshl_b32 s{sT2}, s{sT2}, 10
    s_lshl_b32 s{sT0}, s{sJ}, 6
    s_add_u32 s{sT0}, s{sT0}, s{sT2}
    s_mov_b32 exec_hi, 0xffff
    buffer_load_dword v79, v{vT0}, {sr(SWQ,4)}, s{sT0} offen
    Ltce:
    s_mov_b64 exec, -1""")
e("s_nop 1")
for r in range(vRs, vRs+16, 2): e(f"v_mov_b64 {vr(r,2)}, 0")
e(f"s_mov_b32 s{sSt}, 0\ns_mov_b32 s{sRb}, 0\ns_mov_b32 s{sC3}, {(-2*STG) & 0xffffffff}\ns_setprio 2")
e(f"s_bitcmp1_b32 s{sW}, 0\ns_cbranch_scc1 Lcl1")
NF = 7
def comp_loop(var):
    tag = f"{var}"
    def wrd(n, k2):
        if n == 0: a, o, rs = cRQ, QOFF, 64
        else:
            t = (n-1) % 3
            a, o, rs = cRW+(t & 1), (GOFF if n < 4 else UOFF) + (t >> 1)*64, 192
        return tr(cW+4*n, a, o+32*k2*rs) + tr(cW+4*n+2, a, o+(32*k2+4)*rs)
    def xrd(k2): return [f"ds_read_b128 {vr(cX[k2]+4*u,4)}, v{cRX+k2} offset:{2048*u}" for u in range(4)]
    def mm(n, k2):
        r = [mfma16(cA+28*u+4*n, cW+4*n, cX[k2]+4*u) for u in range(4)]
        if (n & 1) == var: r.append(mfma16(cCs+4*(n >> 1), cW+4*n, cO))
        return r
    e("s_waitcnt lgkmcnt(0)\ns_barrier")
    for x in xrd(0) + sum([wrd(n, 0) for n in range(NF)], []): e(x)
    e(f"s_waitcnt lgkmcnt(0)\n.p2align 3\nLc_{tag}:")
    adr = [f"v_add_u32 v{r}, s{sDl}, v{r}" for r in (cRX, cRX+1, cRW, cRW+1, cRQ)]
    ctl = rot_delta().split("\n") + [f"s_add_u32 s{sSt}, s{sSt}, 1"]
    BARG = 2
    def build(order0):
        out = []; q = []; issued = list(order0)
        def need(tagname):
            idx = max(i for i, t in enumerate(issued) if t == tagname)
            return len(issued)-1-idx
        def push(tagname, lst): q.extend((tagname, x) for x in lst)
        lastN = [99]
        for k2 in range(2):
            if k2 == 0: push("x1", xrd(1))
            for n in range(NF):
                if k2 == 1 and n == BARG:
                    while q:
                        t, x = q.pop(0); out.append(x)
                        if t: issued.append(t)
                    out.append(f"s_waitcnt lgkmcnt(0)\n{tk(None)}\ns_barrier\n{tk(81)}")
                    issued.clear(); issued.extend(["done"])
                    push("x0", xrd(0))
                    for m in range(BARG): push(f"w{m}0", wrd(m, 0))
                reqs = [f"w{n}{k2}"] + ([f"x{k2}"] if n == 0 else [])
                for r in reqs: assert all(t != r for t, _ in q), (r, k2, n)
                ns = [need(r) for r in reqs if r in issued]
                if ns and n % 2 == 0 or ns and min(ns) < lastN[0]:
                    nxt = f"w{n+1}{k2}"
                    if nxt in issued and all(t != nxt for t, _ in q): ns.append(need(nxt))
                    N = min(min(ns), 15); out.append(f"s_waitcnt lgkmcnt({N})"); lastN[0] = N
                for x in mm(n, k2):
                    out.append(x)
                    if q:
                        t, y = q.pop(0); out.append(y)
                        if t: issued.append(t); lastN[0] += 1
                if k2 == 0:
                    push(f"w{n}1", wrd(n, 1))
                    if n == 3: push(None, ctl)
                    if n == NF-1: push(None, adr)
                elif n >= BARG: push(f"w{n}0", wrd(n, 0))
        while q:
            t, x = q.pop(0); out.append(x)
            if t: issued.append(t)
        return out, issued
    _, steady = build([])
    out, _ = build(steady)
    for x in out: e(x)
    e(f"s_cmp_lt_u32 s{sSt}, 8\ns_cbranch_scc1 Lc_{tag}")
    tkout()
eC, eK, eT = 8, 40, 56
comp_loop(0)
e("s_branch Lcle\nLcl1:")
comp_loop(1)
e("Lcle:")
tstamp(1)
e(f"""s_bfe_u32 s{sT2}, s{sW}, 0x10001
s_mul_i32 s{sT2}, s{sT2}, 448
s_add_u32 s{sT2}, s{sT2}, {CSUM}
s_and_b32 s{sT1}, s{sW}, 1
s_lshl_b32 s{sT1}, s{sT1}, 6
s_add_u32 s{sT1}, s{sT1}, s{sT2}
v_and_b32 v{vT3}, 48, v{vLane}
v_add_u32 v{vT3}, s{sT2}, v{vT3}
v_add_u32 v{vT0}, s{sT1}, v{vLane}
s_mov_b32 exec_lo, 0x00010001
s_mov_b32 exec_hi, 0x00010001
ds_write_b128 v{vT0}, {vr(cCs,4)}
ds_write_b128 v{vT0}, {vr(cCs+4,4)} offset:128
ds_write_b128 v{vT0}, {vr(cCs+8,4)} offset:256
s_bitcmp1_b32 s{sW}, 0
s_cbranch_scc1 Lnc3
ds_write_b128 v{vT0}, {vr(cCs+12,4)} offset:384
Lnc3:
s_mov_b64 exec, -1
s_waitcnt vmcnt(0) lgkmcnt(0)
s_barrier""")
for u in range(4): e(f"ds_read_b128 {vr(eK+4*u,4)}, v{cEs} offset:{256*u}")
for n in range(NF): e(f"ds_read_b128 {vr(eC+4*n,4)}, v{vT3} offset:{64*n}")
e("s_waitcnt lgkmcnt(6)")
for u in range(4): e(f"v_mul_f32 v{eT+u}, {f2u(0.25*1.4426950408889634/C1):#x}, v{eK+4*u+1}")
for u in range(4):
    for p in (0, 2): e(pk("v_pk_fma_f32", cA+28*u+p, [('b', eK+4*u), ('p', eC+p), ('p', cA+28*u+p)]))
for u in range(4):
    for p in (0, 2): e(pk("v_pk_mul_f32", cA+28*u+p, [('p', cA+28*u+p), ('b', eT+u)]))
for u in range(4):
    q = cA+28*u
    e(f"v_cvt_pk_bf16_f32 v{q}, v{q}, v{q+1}\nv_cvt_pk_bf16_f32 v{q+1}, v{q+2}, v{q+3}")
for u in range(4): e(f"ds_write_b64 v{cEq}, {vr(cA+28*u,2)} offset:{2048*(u>>1)+256*(u&1)}")
e("s_waitcnt lgkmcnt(0)\ns_barrier")
KVI = "--nokvi" not in sys.argv
if not KVI: kv_rest("c")
gl0 = len(L)
GA = int(sys.argv[sys.argv.index("--ga")+1]) if "--ga" in sys.argv else -1
if GA >= 0:
    e(".p2align 3")
    for _ in range(GA): e("s_nop 0")
for u in range(4):
    g = cA+28*u+4; P = cA+28*(u & 2)+4
    gelu_tile(g, g+12, eC+4, eC+16, eK+4*u, eT, 12, [P+4*(p//2)+2*(u & 1)+(p & 1) for p in range(6)])
    if u & 1:
        e("s_nop 0")
        for t in range(3):
            e(f"v_permlane32_swap_b32 v{P+4*t}, v{P+4*t+2}\nv_permlane32_swap_b32 v{P+4*t+1}, v{P+4*t+3}")
        for t, so in enumerate((sC0, sC1, sC2)):
            e(f"buffer_store_dwordx4 {vr(P+4*t,4)}, v{cEh}, {sr(SWS,4)}, s{so} offen sc1")
        if u == 1: e(f"v_add_u32 v{cEh}, {88*1024}, v{cEh}")
if KVI:
    body = L[gl0:]; del L[gl0:]
    e(f"s_lshl_b32 s{sT1}, s{sW4}, 12")
    items = []
    for n in range(6):
        for k in range(4):
            pre = f"s_add_u32 s{sT0}, s{sT1}, {36*1024+16384*n}\ns_mov_b32 m0, s{sT0}\ns_nop 0\n" if k == 0 else ""
            items.append(pre + f"buffer_load_dwordx4 v{vL16}, {sr(SWS,4)}, s{sT0} offen offset:{1024*k} sc1 lds")
    cut = (len(body)*3)//4
    for x in interleave(body[:cut], items) + body[cut:]: e(x)
    e(tag_issue())
stamp(2)
tflush(); TS.clear(); rt_out()
e("s_branch LF")

def cs_write(acc, slot_expr_sreg):
    e(f"""v_and_b32 v{vT0}, 1, v{vLane}
    v_lshlrev_b32 v{vT0}, 6, v{vT0}
    v_lshrrev_b32 v{vT1}, 4, v{vLane}
    v_lshl_add_u32 v{vT0}, v{vT1}, 4, v{vT0}
    v_add_u32 v{vT0}, {slot_expr_sreg}, v{vT0}
    s_mov_b32 exec_lo, 0x00030003
    s_mov_b32 exec_hi, 0x00030003
    ds_write_b128 v{vT0}, {vr(acc,4)}
    s_mov_b64 exec, -1""")
e("Lkvcu:")
entry_stamp(True)
e(tag_issue())
for x in kvx_dma(1): e(x)
late_srd(LS_A + LS_F)
e(f"""v_and_b32 v{vT0}, 31, v{vLane}
v_lshrrev_b32 v{vT1}, 1, v{vT0}
v_and_b32 v{vT1}, 7, v{vT1}
v_xor_b32 v{vT1}, v{vT1}, v{vH}
v_lshlrev_b32 v{vT0}, 7, v{vT0}
v_add_u32 v{vT0}, s{sXb}, v{vT0}""")
for ks in range(4):
    e(f"v_xor_b32 v{vT2}, {2*ks}, v{vT1}\nv_lshl_add_u32 v{vRX+ks}, v{vT2}, 4, v{vT0}")
e(f"""v_bfe_u32 v{vT0}, v{vLane}, 2, 2
v_lshl_add_u32 v{vT0}, v{vH}, 3, v{vT0}
v_bfe_u32 v{vT1}, v{vLane}, 4, 1
v_and_b32 v{vT2}, 3, v{vLane}
v_lshlrev_b32 v{vT2}, 3, v{vT2}
v_lshl_add_u32 v{vT3}, v{vT1}, 5, v{vT2}
v_lshl_add_u32 v{vRQ}, v{vT0}, 6, v{vT3}
v_lshlrev_b32 v{vT1}, 14, v{vT1}
v_lshl_add_u32 v{vRW}, v{vT0}, 5, v{vT2}
s_lshr_b32 s{sT0}, s{sW}, 2
s_lshl_b32 s{sT0}, s{sT0}, 13
s_add_u32 s{sT1}, s{sT0}, {WKV}
v_add3_u32 v{vRW}, v{vRW}, v{vT1}, s{sT1}
s_add_u32 s{sT1}, s{sT1}, s{sT0}
v_add_u32 v{vRQ}, s{sT1}, v{vRQ}
v_lshrrev_b32 v{vT0}, 2, v{vLane}
v_lshlrev_b32 v{vT0}, 10, v{vT0}
v_and_b32 v{vT1}, 3, v{vLane}
v_lshl_add_u32 v{vQa}, v{vT1}, 4, v{vT0}
v_bfe_u32 v{vT0}, v{vLane}, 4, 1
v_and_b32 v{vT1}, 15, v{vLane}
v_cmp_eq_u32 vcc, v{vT0}, v{vT1}
v_mov_b32 v{vT2}, 0x3f803f80
s_nop 0
v_cndmask_b32 v{vSel}, 0, v{vT2}, vcc""")
for k in range(1, 4): e(f"v_mov_b32 v{vSel+k}, v{vSel}")
for r in range(vCs, vCs+4): e(f"v_mov_b32 v{r}, 0")
e(f"s_waitcnt vmcnt(5) lgkmcnt(0)\ns_cmp_lt_u32 s{sW}, 4\ns_cbranch_scc1 Lkvr1")
rowstat_finish()
e("Lkvr1:\ns_barrier")
tstamp(12)
def kv_reads(c):
    r = []
    for ks in range(4):
        W = vWk + 16*(c & 1) + 4*ks
        r += [f"ds_read_b128 {vr(vXf+16*c+4*ks,4)}, v{vRX+ks} offset:{4096*c}"]
        r += tr(W, vRW, (64*c+16*ks)*32) + tr(W+2, vRW, (64*c+16*ks+4)*32)
    return r
def kstat_issue():
    return f"buffer_load_dwordx4 {vr(vSt,4)}, v{vWa0}, {sr(SWS,4)}, s{sC1} offen sc1"
for x in kv_reads(0) + kvx_dma(2) + kvx_dma(3): e(x)
e(f"""v_and_b32 v{vWa0}, 31, v{vLane}
v_lshlrev_b32 v{vWa0}, 4, v{vWa0}
s_lshl_b32 s{sT0}, s{sI}, 2
s_add_u32 s{sT0}, s{sT0}, s{sW4}
s_mul_i32 s{sC0}, s{sT0}, {KVT}
s_lshl_b32 s{sC1}, s{sT0}, 9
s_add_u32 s{sC1}, s{sC1}, {STATG}""")
for c in range(4):
    m = []
    for ks in range(4):
        X = vXf+16*c+4*ks; W = vWk + 16*(c & 1) + 4*ks
        z = "0" if c == 0 and ks == 0 else None
        m += [mfma(vAcc+16, W, X, z), mfma16(vCs, W, vSel), mfma(vAcc+32, X, W, z)]
    e("s_waitcnt lgkmcnt(0)")
    if c < 3:
        for x in m[:3] + [f"s_waitcnt vmcnt({8-4*c})"] + interleave(m[3:9], kv_reads(c+1)) + m[9:]: e(x)
        if c == 0:
            tag_wait("k", 8)
            e(f"s_cmp_lt_u32 s{sW}, 4\ns_cbranch_scc1 Lkvr2")
            rowstat_store()
            e("Lkvr2:")
    else:
        e(kstat_issue())
        for x in m: e(x)
tstamp(1)
e(f"""v_and_b32 v{vT2}, 31, v{vLane}
v_lshlrev_b32 v{vT2}, 2, v{vT2}
s_xor_b32 s{sT2}, s{sXb}, 65536
s_add_u32 s{sT1}, s{sXb}, 4352
s_lshl_b32 s{sQo}, s{sW}, 16
s_add_u32 s{sQo}, s{sQo}, {64*15}
s_lshl_b32 s{sMq}, s{sW}, 12
s_add_u32 s{sMq}, s{sMq}, {WKV}""")
cs_write(vCs, f"s{sT1}")
e(f"""v_add_u32 v{vT0}, s{sXb}, v{vL16}
v_add_u32 v{vWa1}, s{sT2}, v{vL16}
v_add_u32 v{vWa2}, s{sT2}, v{vT2}
v_lshl_add_u32 v{vT3}, v{vH}, 4, s{sXb}
s_cmp_ge_u32 s{sW}, 4
s_cbranch_scc1 LkvH""")
def wq_dma():
    for k in range(4):
        e(f"s_add_u32 m0, s{sMq}, {1024*k}\ns_add_u32 s{sT0}, s{sQo}, {16384*k}\nbuffer_load_dwordx4 v{vQa}, {sr(SWQ,4)}, s{sT0} offen lds")
def kstat_wait(tag):
    e(f"""s_mov_b32 s{sT0}, 0
    s_waitcnt vmcnt(0)
    Lks_{tag}:
    v_cmp_ne_u64 vcc, s[{sNo}:{sNo+1}], {vr(vSt+2,2)}
    s_add_u32 s{sT0}, s{sT0}, 1
    s_cmp_ge_u32 s{sT0}, 100000
    s_cbranch_vccz Lksd_{tag}
    s_cbranch_scc1 Lksd_{tag}
    {kstat_issue()}
    s_waitcnt vmcnt(0)
    s_branch Lks_{tag}
    Lksd_{tag}:""")
for q in range(4): e(f"ds_write_b128 v{vT0}, {vr(vAcc+32+4*q,4)} offset:{1024*q}")
e(f"v_xor_b32 v{vT1}, 0x10000, v{vT3}\ns_waitcnt lgkmcnt(0)\ns_barrier")
e(f"""ds_read_b128 {vr(vWk,4)}, v{vWa1}
ds_read_b128 {vr(vWk+4,4)}, v{vWa1} offset:1024
ds_read_b128 {vr(vSt+12,4)}, v{vT3} offset:{4352+64}
ds_read_b128 {vr(vSt+16,4)}, v{vT3} offset:{4352+96}
ds_read_b128 {vr(vWk+8,4)}, v{vT1} offset:{4352+64}
ds_read_b128 {vr(vWk+12,4)}, v{vT1} offset:{4352+96}""")
e(f"""v_and_b32 v{vT0}, 0x33, v{vLane}
v_bfe_u32 v{vT1}, v{vLane}, 2, 1
v_lshl_or_b32 v{vT0}, v{vT1}, 3, v{vT0}
v_bfe_u32 v{vT1}, v{vLane}, 3, 1
v_lshl_or_b32 v{vT0}, v{vT1}, 2, v{vT0}
v_lshlrev_b32 v{vT0}, 4, v{vT0}
s_waitcnt lgkmcnt(0)""")
for p in range(0, 8, 2):
    e(pk("v_pk_add_f32", vAcc+24+p, [('p', vAcc+24+p), ('p', vWk+p)]))
    e(pk("v_pk_add_f32", vSt+12+p, [('p', vSt+12+p), ('p', vWk+8+p)]))
kstat_wait("l")
e(f"v_sub_f32 v{vSt+4}, 0, v{vSt}")
lin_fold(vAcc+24, vSt+12, vSt+4, vSt+1, 8)
for p in range(4): e(f"v_cvt_pk_bf16_f32 v{vAcc+16+p}, v{vAcc+24+2*p}, v{vAcc+25+2*p}")
e(f"buffer_store_dwordx4 {vr(vAcc+16,4)}, v{vT0}, {sr(SWS,4)}, s{sC0} offen sc1\ns_branch LkvS")
e("LkvH:")
e(f"ds_write_b128 v{vT0}, {vr(vAcc+24,4)}\nds_write_b128 v{vT0}, {vr(vAcc+28,4)} offset:1024")
e(f"v_add_u32 v{vT1}, s{sXb}, v{vT2}\ns_waitcnt lgkmcnt(0)\ns_barrier")
e(f"ds_read_b32 v{vSt+6}, v{vT1} offset:4352\nds_read_b32 v{vSt+7}, v{vWa2} offset:4352")
for q in range(4): e(f"ds_read_b128 {vr(vAcc+48+4*q,4)}, v{vWa1} offset:{1024*q}")
tstamp(21)
kstat_wait("h")
tstamp(23)
e(f"ds_write_b32 v{vT1}, v{vSt} offset:4608\nds_write_b32 v{vT1}, v{vSt+1} offset:4736\ns_waitcnt lgkmcnt(0)")
for q in range(4):
    e(f"ds_read_b128 {vr(vWk+4*q,4)}, v{vT3} offset:{4608+32*q}\nds_read_b128 {vr(vWk+16+4*q,4)}, v{vT3} offset:{4736+32*q}")
e(f"v_add_f32 v{vSt+6}, v{vSt+6}, v{vSt+7}\nv_sub_f32 v{vSt+6}, 0, v{vSt+6}")
for p in range(0, 16, 2): e(pk("v_pk_add_f32", vAcc+32+p, [('p', vAcc+32+p), ('p', vAcc+48+p)]))
e("s_waitcnt lgkmcnt(0)")
for p in range(0, 16, 2): e(pk("v_pk_fma_f32", vAcc+32+p, [('p', vWk+p), ('b', vSt+6), ('p', vAcc+32+p)]))
for p in range(0, 16, 2): e(pk("v_pk_mul_f32", vAcc+32+p, [('p', vAcc+32+p), ('p', vWk+16+p)]))
for p in range(8): e(f"v_cvt_pk_bf16_f32 v{vAcc+32+p}, v{vAcc+32+2*p}, v{vAcc+33+2*p}")
v_lane_addr(vT0)
for p in range(8): e(f"v_mov_b32 v{vAcc+32+p}, 0x3f803f80")
e(f"""s_mov_b32 exec_lo, 0x1ffff
s_mov_b32 exec_hi, 0xffff
buffer_store_dwordx4 {vr(vAcc+32,4)}, v{vT0}, {sr(SWS,4)}, s{sC0} offen offset:1024 sc1
buffer_store_dwordx4 {vr(vAcc+36,4)}, v{vT0}, {sr(SWS,4)}, s{sC0} offen offset:{1024+528} sc1
s_mov_b64 exec, -1""")
tstamp(29)
e("LkvS:")
wq_dma()
for r in range(4): e(f"v_mov_b32 v{vCs+r}, 0")
e(f"s_lshl_b32 s{sT2}, s{sI}, 7\ns_add_u32 s{sT2}, s{sT2}, {KFLG}\ns_waitcnt vmcnt(4)\ns_barrier")
flag_set(sT2, "kv")
stamp(13)
tflush(); TS.clear(); rt_out()
e("s_waitcnt vmcnt(0)\ns_barrier")
def q_reads(c):
    r = []
    for ks in range(4):
        W = vWk + 16*(c & 1) + 4*ks
        r += tr(W, vRQ, (64*c+16*ks)*64) + tr(W+2, vRQ, (64*c+16*ks+4)*64)
    return r
for x in q_reads(0): e(x)
for c in range(4):
    m = []
    for ks in range(4):
        X = vXf+16*c+4*ks; W = vWk + 16*(c & 1) + 4*ks
        m += [mfma(vAcc, W, X, "0" if c == 0 and ks == 0 else None), mfma16(vCs, W, vSel)]
    e("s_waitcnt lgkmcnt(0)")
    for x in interleave(m[:4], q_reads(c+1) if c < 3 else []) + m[4:]: e(x)
e(f"""s_or_b32 s{sT2}, s{sXb}, {65536+8192}
s_lshr_b32 s{sT3}, s{sW}, 2
s_lshl_b32 s{sT3}, s{sT3}, 7
s_add_u32 s{sT1}, s{sT2}, s{sT3}
s_add_u32 s{sT1}, s{sT1}, 4096
v_add_u32 v{vWa1}, s{sT2}, v{vL16}
v_lshl_add_u32 v{vT3}, v{vH}, 4, s{sT2}
s_nop 3""")
cs_write(vCs, f"s{sT1}")
e(f"s_cmp_ge_u32 s{sW}, 4\ns_cbranch_scc1 LkvH2\ns_waitcnt lgkmcnt(0)\ns_barrier")
for q in range(4): e(f"ds_read_b128 {vr(vWk+4*q,4)}, v{vWa1} offset:{1024*q}")
cs_read(vAcc+48, 4096); cs_read(vWk+16, 4096+128)
e("s_waitcnt lgkmcnt(0)")
for p in range(0, 16, 2):
    e(pk("v_pk_add_f32", vAcc+p, [('p', vAcc+p), ('p', vWk+p)]))
    e(pk("v_pk_add_f32", vAcc+48+p, [('p', vAcc+48+p), ('p', vWk+16+p)]))
q_epilogue(vAcc+48)
a_init(); fin_init()
e("s_branch Lp2\nLkvH2:")
for q in range(4): e(f"ds_write_b128 v{vWa1}, {vr(vAcc+4*q,4)} offset:{1024*q}")
e(f"s_mov_b32 s{sKf}, {KFLG}")
e(flags_issue(sKf))
e("s_waitcnt lgkmcnt(0)\ns_barrier")
f_init()
flags_wait(sKf, "kv2", 0)
kv_dma("c")
e("s_waitcnt vmcnt(0)\ns_barrier\ns_branch LFkv")
e("Lkvwait:")
stamp(16)
flags_wait(sKf, "kv", 0)
stamp(17)
kv_dma("b")
e("s_waitcnt vmcnt(0)")

AAL = 6 if "--a6" in sys.argv else 3
vm = []
def vtag(tag): vm.append(tag)
def vwait_s(tag):
    idx = max(i for i, t in enumerate(vm) if t == tag)
    return f"s_waitcnt vmcnt({min(63, len(vm)-1-idx)})"
def emit_seq(seq):
    for x in seq:
        if isinstance(x, list): emit_seq(x)
        elif isinstance(x, tuple): vtag(x[0]); e(x[1])
        elif callable(x): e(x())
        else: e(x)
e("Lp2:")
stamp(2)
e("s_waitcnt lgkmcnt(0)\ns_barrier")
stamp(3)
e(f"""s_setprio {3 if "--ap3" in sys.argv else 1}
ds_read_b128 {vr(aQ[0],4)}, v{vAq}
ds_read_b128 {vr(aK[0],4)}, v{vAk}
ds_read_b128 {vr(aQ[1],4)}, v{vAq} offset:1024
ds_read_b128 {vr(aK[1],4)}, v{vAk} offset:{KVT}
ds_read_b128 {vr(aVl[0],4)}, v{vAv}
ds_read_b128 {vr(aVh[0],4)}, v{vAv} offset:528
s_waitcnt lgkmcnt(4)""")
e(mfma(aS[0], aK[0], aQ[0], "0"))
e("s_waitcnt lgkmcnt(3)")
e(mfma(aS[1], aK[0], aQ[1], "0"))
e("s_nop 9")
for b in range(2):
    t = vT0+2*b; S = aS[b]
    e(f"v_max3_f32 v{t}, v{S}, v{S+1}, v{S+2}")
    for p in range(3, 15, 2): e(f"v_max3_f32 v{t}, v{t}, v{S+p}, v{S+p+1}")
    e(f"v_max_f32 v{t}, v{t}, v{S+15}\nv_mov_b32 v{t+1}, v{t}")
e(f"""s_nop 1
v_permlane32_swap_b32 v{vT0}, v{vT1}
v_permlane32_swap_b32 v{vT2}, v{vT3}
s_mov_b32 s{sSt}, 0
v_max_f32 v{vT0}, v{vT0}, v{vT1}
v_max_f32 v{vT2}, v{vT2}, v{vT3}""")
for b in range(2):
    e(f"v_sub_f32 v{aC[b]}, 0, v{vT0+2*b}\nv_sub_f32 v{aC[b]+1}, 0, v{vT0+2*b}")
for r in range(16): e(f"v_sub_f32 v{aS[0]+r}, v{aS[0]+r}, v{vT0}")
for b in (1, 0):
    for r in range(2, 16, 2): e(f"v_mov_b64 {vr(aC[b]+r,2)}, {vr(aC[b],2)}")
stamp(5)
e(f"v_exp_f32 v{aS[0]}, v{aS[0]}\nv_exp_f32 v{aS[0]+1}, v{aS[0]+1}\ns_branch La1\n.p2align {AAL}\nLa0:")
for n in range(32):
    b = n & 1; T = n >> 1
    X = aS[b]; Y = aS[b ^ 1]
    ex = [f"v_exp_f32 v{X+i}, v{X+i}" for i in range(16)]
    Tp = (n-1) >> 1; Tn = (n+1) >> 1
    seq = ex[0:2] + [smf(aO[b ^ 1], aVh[Tp & 1], Y+8, vIdx)] + (["La1:"] if n == 0 else []) + ex[2:5]
    seq += [mfma(Y, aK[Tn & 1], aQ[b ^ 1], vr(aC[b ^ 1], 16))]
    if b:
        rd = [f"ds_read_b128 {vr(aVl[(T+1)&1],4)}, v{vAv} offset:{(T+1)*KVT}",
              f"ds_read_b128 {vr(aVh[(T+1)&1],4)}, v{vAv} offset:{(T+1)*KVT+528}",
              f"ds_read_b128 {vr(aK[T&1],4)}, v{vAk} offset:{(T+2)*KVT}"]
        seq += rd + ex[5:10]
    else: seq += ["s_waitcnt lgkmcnt(0)"] + ex[5:10]
    seq += [smf(aO[b], aVl[T & 1], X, vIdx)] + ex[10:16]
    for x in seq: e(x)
if PROF:
    e(f"s_memtime s[{sTm}:{sTm+1}]\ns_lshl_b32 s{sT0}, s{sSt}, 2\ns_add_u32 s{sT0}, s{sT0}, s{sPo}\ns_waitcnt lgkmcnt(0)\nv_mov_b32 v0, s{sTm}\nbuffer_store_dword v0, off, {sr(SWS,4)}, s{sT0} offset:72")
e(f"""v_add_u32 v{vAk}, {16*KVT}, v{vAk}
v_add_u32 v{vAv}, {16*KVT}, v{vAv}
s_add_u32 s{sSt}, s{sSt}, 1
s_cmp_eq_u32 s{sSt}, 1
s_cbranch_scc0 La2
{'' if PROF else 's_waitcnt vmcnt(0)'}
s_barrier
s_branch La0
La2:
s_cmp_lt_u32 s{sSt}, 4
s_cbranch_scc1 La0""")
e(smf(aO[1], aVh[1], aS[1]+8, vIdx))
e(f"s_mov_b32 s{sC0}, {f2u(2.0**40):#x}\ns_mov_b32 s{sC1}, {f2u(2.0**126):#x}")
for b in range(2):
    O = aO[b]
    e(f"s_mov_b32 s{sRetry}, 0\nLfin{b}:")
    e(f"""v_rcp_f32 v{O+10}, v{O+8}
    v_max3_f32 v{vT1}, abs(v{O}), abs(v{O+1}), abs(v{O+2})
    v_max3_f32 v{vT1}, v{vT1}, abs(v{O+3}), abs(v{O+4})
    v_max3_f32 v{vT1}, v{vT1}, abs(v{O+5}), abs(v{O+6})
    v_max_f32 v{vT1}, v{vT1}, abs(v{O+7})
    v_cmp_nlt_f32 vcc, v{O+8}, s{sC0}
    v_cmp_nlt_f32 s[{sEx}:{sEx+1}], v{vT1}, s{sC1}""")
    for p in range(8): e(f"v_mul_f32 v{O+p}, v{O+p}, v{O+10}")
    e(f"s_or_b64 vcc, vcc, s[{sEx}:{sEx+1}]")
    for p in range(4): e(f"v_cvt_pk_bf16_f32 v{O+p}, v{O+2*p}, v{O+2*p+1}")
    for p in range(4): e(f"v_min_u32 v{O+p}, -2, v{O+p}")
    e(f"s_cbranch_vccnz Lfallback{b}\nLok{b}:")
    e(f"buffer_store_dwordx4 {vr(O,4)}, v{vL16}, {sr(SWS,4)}, s{sOp if b == 0 else sOp2} offen sc1")
stamp(6)
OSC = " sc1"
gX = [136, 140]; gG = [144, 176]; gR = [8, 40]
e(f"buffer_load_dwordx4 {vr(gX[0],4)}, v{vRa}, {sr(SX,4)}, s{sXf} offen")
e(f"buffer_load_dwordx4 {vr(gX[1],4)}, v{vRa}, {sr(SX,4)}, s{sXf2} offen")
e("s_waitcnt lgkmcnt(0)\ns_setprio 0\ns_barrier\ns_barrier")
stamp(8)
for tt in range(2):
    for q in range(8): e(f"ds_read_b128 {vr(gG[tt]+4*q,4)}, v{vRr} offset:{128*tt+XK*(q//2)+512*(q%2)}")
def sum4(r):
    for p in range(0, 8, 2):
        e(pk("v_pk_add_f32", r+p, [('p', r+p), ('p', r+8+p)]))
        e(pk("v_pk_add_f32", r+16+p, [('p', r+16+p), ('p', r+24+p)]))
    for p in range(0, 8, 2): e(pk("v_pk_add_f32", r+p, [('p', r+p), ('p', r+16+p)]))
for tt in range(2):
    G = gG[tt]
    e(f"s_waitcnt lgkmcnt({8*(1-tt)})")
    for p in range(8): e(f"v_add_f32 v{G+p}, v{G+p}, v{G+8+p}\nv_add_f32 v{G+16+p}, v{G+16+p}, v{G+24+p}")
    for p in range(8): e(f"v_add_f32 v{G+p}, v{G+p}, v{G+16+p}")
    for p in range(8): e(f"v_mul_f32 v{G+8+p}, {f2u(-1.4426950408889634):#x}, v{G+p}")
    for p in range(8): e(f"v_exp_f32 v{G+8+p}, v{G+8+p}")
    for p in range(8): e(f"v_add_f32 v{G+8+p}, 1.0, v{G+8+p}")
    for p in range(8): e(f"v_rcp_f32 v{G+8+p}, v{G+8+p}")
    e("s_waitcnt vmcnt(0)")
    for p in range(4): e(f"v_lshlrev_b32 v{G+16+2*p}, 16, v{gX[tt]+p}\nv_and_b32 v{G+17+2*p}, 0xffff0000, v{gX[tt]+p}")
    for p in range(8): e(f"v_mul_f32 v{G+p}, v{G+p}, v{G+8+p}")
stamp(9)
e("s_barrier")
for tt in range(2):
    for q in range(8): e(f"ds_read_b128 {vr(gR[tt]+4*q,4)}, v{vRr2} offset:{128*tt+XK*(q//2)+512*(q%2)}")
for tt in range(2):
    R = gR[tt]; G = gG[tt]
    e(f"s_waitcnt lgkmcnt({8*(1-tt)})")
    sum4(R)
    for p in range(0, 8, 2): e(pk("v_pk_fma_f32", R+p, [('p', R+p), ('p', G+p), ('p', G+16+p)]))
    for p in range(4): e(f"v_cvt_pk_bf16_f32 v{R+p}, v{R+2*p}, v{R+2*p+1}")
    e(f"buffer_store_dwordx4 {vr(R,4)}, v{vRa}, {sr(SOUT,4)}, s{sXf if tt == 0 else sXf2} offen{OSC}")
def the_end():
    stamp(11)
    if RT: e(f"s_waitcnt vmcnt(0)\ns_memrealtime s[100:101]\ns_waitcnt lgkmcnt(0)\nv_mov_b32 v0, s100\nbuffer_store_dword v0, off, {sr(SWS,4)}, s{sPo} offset:56")
the_end()
e("Lend:\ns_endpgm")

e("LFkv:")
kv_rest("k")
e("LF:")
tag_wait("f", 0)
e("s_setprio 0\ns_barrier")
flag_set(sHs, "h", 4)
RG = SP + [aslot(n) for n in range(4)]
def u_dma(m):
    srdw, row = (SWO, 64*m) if m < 8 else (SWD, 64*(m-8))
    return [f"s_add_u32 m0, s{sDm}, {RG[m % 7]}", f"s_add_u32 s{sT0}, s{sDo}, {row*1024}",
            (f"u{m}", f"buffer_load_dwordx4 v{vDa}, {sr(srdw,4)}, s{sT0} offen lds"),
            (f"u{m}", f"buffer_load_dwordx4 v{vDa2}, {sr(srdw,4)}, s{sT0} offen offset:1024 lds")]
def u_reads(m, F):
    a = RG[m % 7]; win = 1 if a >= SP[0] else 0; off = a - win*SP[0]
    r0, r1 = vRd+2*win, vRd+2*win+1
    return tr(F, r0, off) + tr(F+2, r0, off+1024) + tr(F+4, r1, off) + tr(F+6, r1, off+1024)
HR = int(sys.argv[sys.argv.index("--hr")+1]) if "--hr" in sys.argv else 6
def h_loads(s):
    r = []
    if s % 4 == 0: r += [f"s_add_u32 s{sC0}, s{sHo}, {1024*s}", f"s_add_u32 s{sC1}, s{sC0}, {88*1024}"]
    for tt in range(2):
        r.append((f"h{s}", f"buffer_load_dwordx4 {vr(fH+8*(s % HR)+4*tt,4)}, v{vL16}, {sr(SWS,4)}, s{sC0 if tt == 0 else sC1} offen offset:{1024*(s%4)} sc1"))
    return r
for m in range(7): emit_seq(u_dma(m))
for m in range(8):
    e(vwait_s(f"u{m}"))
    for x in u_reads(m, fWo+8*m): e(x)
    e("s_waitcnt lgkmcnt(0)")
    emit_seq(u_dma(m+7))
tstamp(18)
e(flags_issue(sHc))
flags_wait(sHc, "h", 0)
tstamp(19)
for s in range(HR): emit_seq(h_loads(s))
for x in u_reads(8, fWb[0]): e(x)
FB = int(sys.argv[sys.argv.index("--fb")+1]) if "--fb" in sys.argv else 15
for s in range(22):
    m = 8+s; W = fWb[s & 1]
    if s == FB:
        tstamp(20); e("s_barrier\ns_setprio 2"); tstamp(21)
    if s < 21:
        e(vwait_s(f"u{m+1}"))
        for x in u_reads(m+1, fWb[(s+1) & 1]): e(x)
        e("s_waitcnt lgkmcnt(4)")
    else: e("s_waitcnt lgkmcnt(0)")
    if m+7 < 30: emit_seq(u_dma(m+7))
    e(vwait_s(f"h{s}"))
    if s == 21: e(f"s_cmp_ge_u32 s{sW4}, 2\ns_cbranch_scc1 Lskip21")
    for tt in range(2):
        for ch in range(2 if "--nofm" not in sys.argv else 0): e(mfma(fA+32*tt+16*ch, W+4*ch, fH+8*(s % HR)+4*tt, "0" if s == 0 else None))
    if s+HR < 22: emit_seq(h_loads(s+HR))
e("Lskip21:\ns_nop 8")
tstamp(22)
ORD = [7, 6, 5, 4, 3, 2, 1, 0] if M48 else [7, 6, 5, 4, 1, 0, 3, 2]
def o_load(k):
    tt, i = k & 1, k >> 1
    return f"buffer_load_dwordx4 {vr(opos(i)+4*tt,4)}, v{vL16}, {sr(SWS,4)}, s{(sOc, sOc2, sOc3, sOc4)[2*tt+(i>>2)]} offen offset:{1024*(i%4)} sc1"
def opos(i): return fO + 8*ORD.index(i)
zer = [f"v_mov_b64 {vr(fS+r,2)}, 0" for r in range(0, 64, 2)]
for q in range(16):
    e(f"ds_write_b128 v{vRw}, {vr(fA+4*q,4)} offset:{XB*(q//2)+XP*(q%2)}")
    if q >= 4: e(f"s_waitcnt lgkmcnt(4)\n{o_load(2*ORD[(q-4)//2]+(q & 1))}")
e("s_waitcnt lgkmcnt(0)\ns_barrier")
for k in range(12, 16): e(o_load(2*ORD[k//2]+(k & 1)))
tstamp(9)
def o_pair(i, tag, wait):
    B = opos(i)
    if wait is not None: e(f"s_waitcnt vmcnt({wait})")
    else: e(f"s_bitcmp1_b32 s{sSt}, {i}\ns_cbranch_scc0 Lon{tag}{i}")
    e(f"""v_max3_u32 v{vT1}, v{B}, v{B+1}, v{B+2}
    v_max3_u32 v{vT1}, v{vT1}, v{B+3}, v{B+4}
    v_max3_u32 v{vT1}, v{vT1}, v{B+5}, v{B+6}
    v_max_u32 v{vT1}, v{vT1}, v{B+7}
    v_cmp_eq_u32 vcc, s{sT1}, v{vT1}
    s_cbranch_vccnz Lon{tag}{i}
    s_bitset0_b32 s{sSt}, {i}""")
    for tt in range(2):
        for ch in range(2): e(mfma(fS+32*tt+16*ch, fWo+8*i+4*ch, B+4*tt))
    e(f"Lon{tag}{i}:")
def acc_chain(tt, ch): return [mfma(fS+32*tt+16*ch, fWo+8*i+4*ch, opos(i)+4*tt, "0" if n == 0 else None) for n, i in enumerate(ORD)]
def s_wr(tt, ch): return [f"ds_write_b128 v{vRw2+tt}, {vr(fS+32*tt+16*ch+4*q,4)} offset:{XB*(2*ch+q//2)+XP*(q%2)}" for q in range(4)]
e(f"v_mov_b32 v{vT1}, 0")
for n, x in enumerate(acc_chain(0, 0)):
    B = fO+8*n
    e(f"s_waitcnt vmcnt({14-2*n})\n{x}")
    for p in range(0, 8, 2): e(f"v_max3_u32 v{vT1}, v{vT1}, v{B+p}, v{B+p+1}")
e(f"v_cmp_eq_u32 vcc, -1, v{vT1}\ns_cbranch_vccnz Lor0")
c1, c2, c3 = acc_chain(0, 1), acc_chain(1, 0), acc_chain(1, 1)
for prev, c in (((0, 0), c1), ((0, 1), c2), ((1, 0), c3)):
    for x in [c[0], "s_nop 3", c[1], "s_nop 3", c[2]] + interleave(c[3:7], s_wr(*prev)) + c[7:]: e(x)
stamp(7)
e("s_nop 11")
for x in s_wr(1, 1): e(x)
e("Lsd:")
e("s_waitcnt lgkmcnt(0)\ns_barrier")
stamp(10); tflush(); TS.clear()
the_end()
e("s_endpgm")
e(f"Lor0:\ns_nop 8")
for x in zer: e(x)
e(f"s_mov_b32 s{sT0}, 0\ns_mov_b32 s{sSt}, 0xff\ns_mov_b32 s{sT1}, -1\ns_branch Lor2")
e("Lor:\ns_sleep 4")
for i in ORD:
    e(f"s_bitcmp1_b32 s{sSt}, {i}\ns_cbranch_scc0 Lorn{i}\n{o_load(2*i)}\n{o_load(2*i+1)}\nLorn{i}:")
e(f"""s_add_u32 s{sT0}, s{sT0}, 1
s_cmp_ge_u32 s{sT0}, 200000
s_cbranch_scc1 Lod
s_waitcnt vmcnt(0)
Lor2:""")
for i in ORD: o_pair(i, "b", None)
e(f"s_cmp_lg_u32 s{sSt}, 0\ns_cbranch_scc1 Lor\nLod:\ns_nop 6")
for tt in range(2):
    for ch in range(2):
        for x in s_wr(tt, ch): e(x)
e("s_branch Lsd")
for b in range(2):
    S = aS[0]; O = aO[b]; C = aC[b]; Q = aQ[b]
    e(f"""Lfallback{b}:
    s_cmp_lg_u32 s{sRetry}, 0
    s_cbranch_scc1 Lok{b}
    s_mov_b32 s{sRetry}, 1
    s_mov_b32 s{sSt}, 0
    v_mov_b32 v{vT1}, 0xff800000
    s_waitcnt lgkmcnt(0)
    Lfb1{b}:
    buffer_load_dwordx4 {vr(aK[0],4)}, v{vL16}, {sr(SWS,4)}, s{sSt} offen sc1
    s_waitcnt vmcnt(0)""")
    e(mfma(S, aK[0], Q, "0"))
    e("s_nop 11")
    for p in range(0, 16, 2): e(f"v_max3_f32 v{vT1}, v{vT1}, v{S+p}, v{S+p+1}")
    e(f"""s_add_u32 s{sSt}, s{sSt}, {KVT}
    s_cmp_lt_u32 s{sSt}, {64*KVT}
    s_cbranch_scc1 Lfb1{b}
    v_mov_b32 v{vT2}, v{vT1}
    s_nop 1
    v_permlane32_swap_b32 v{vT1}, v{vT2}
    s_nop 1
    v_max_f32 v{vT1}, v{vT1}, v{vT2}""")
    for r in range(16): e(f"v_sub_f32 v{C+r}, 0, v{vT1}")
    for r in range(12): e(f"v_mov_b32 v{O+r}, 0")
    e(f"""v_subrev_u32 v{vT0}, {64*KVT}, v{vAv}
    s_mov_b32 s{sSt}, 0
    Lfb2{b}:
    buffer_load_dwordx4 {vr(aK[0],4)}, v{vL16}, {sr(SWS,4)}, s{sSt} offen sc1
    buffer_load_dwordx4 {vr(aVl[0],4)}, v{vT0}, {sr(SWS,4)}, s{sSt} offen sc1
    buffer_load_dwordx4 {vr(aVh[0],4)}, v{vT0}, {sr(SWS,4)}, s{sSt} offen offset:528 sc1
    s_waitcnt vmcnt(0)""")
    e(mfma(S, aK[0], Q, vr(C, 16)))
    e("s_nop 11")
    for i in range(16): e(f"v_exp_f32 v{S+i}, v{S+i}")
    e("s_nop 1")
    e(smf(O, aVl[0], S, vIdx)); e(smf(O, aVh[0], S+8, vIdx))
    e(f"""s_add_u32 s{sSt}, s{sSt}, {KVT}
    s_cmp_lt_u32 s{sSt}, {64*KVT}
    s_cbranch_scc1 Lfb2{b}
    s_nop 9
    s_branch Lfin{b}""")
e("Lcodeend:")

L += ['.section .rodata,"a"', ".p2align 6", f".amdhsa_kernel {NAME}_kernel",
      "  .amdhsa_next_free_vgpr 256", "  .amdhsa_next_free_sgpr 102", "  .amdhsa_accum_offset 256",
      "  .amdhsa_group_segment_fixed_size 0", "  .amdhsa_kernarg_size 96", "  .amdhsa_user_sgpr_count 2",
      "  .amdhsa_user_sgpr_kernarg_segment_ptr 1", "  .amdhsa_system_sgpr_workgroup_id_x 1", ".end_amdhsa_kernel"]
open(OUT, "w").write("\n".join(L) + "\n")
print("wrote", OUT, len(L), "lines")
```

```python
import sys, struct
NAME = "recurrent_scan__grouped_kv_mqa__geglu_ffn__prompt"
PROF = "--prof" in sys.argv
OUT = [a for a in sys.argv[1:2] if not a.startswith("--")]
OUT = OUT[0] if OUT else f"cdna_kernels/{NAME}.s"

L = []
def e(s):
    for ln in s.split("\n"):
        if not ln.strip(): continue
        L.append(("    " + ln.strip()) if not ln.strip().endswith(":") else ln.strip())
def f2u(x): return struct.unpack("<I", struct.pack("<f", x))[0]
def vr(a, n): return f"v[{a}:{a+n-1}]"
def sr(a, n): return f"s[{a}:{a+n-1}]"

KVT = 2080
KVIMG = 0
HIMG = 135168
OIMG = HIMG + 64*88*1024
HFLG = OIMG + 64*32*1024
KFLG = HFLG + 256*128
STATG = KFLG + 16*128
PROFO = STATG + 2048*16
WS_BYTES = PROFO + 256*8*256
CNT_KV = 0
KVRDY = 128
STG = 45056
XOFF, GOFF, UOFF, QOFF = 0, 16384, 28672, 40960
STGK, QOFFK, NBK = 24832, 20736, 5
QIMG = 135168
STATM = 160768
CSUM = 162816
MRX = 159744
STL = 163712
KFL = 163776
LDS_BYTES = 163840
SX, SWQ, SWK, SWV, SWO, SWG, SWD, SOUT, SDBG, SWS = 4, 8, 12, 16, 20, 24, 28, 32, 36, 40
sI, sJ, sW, sW4 = 44, 45, 46, 47
sXo, sWo, sQo, sLb = 48, 49, 50, 51
sMx, sMw, sMq = 52, 53, 54
sSt, sDl, sT0, sT1, sT2, sT3 = 55, 56, 57, 58, 59, 60
sTB, sCS, sRetry, sRb = 61, 62, 63, 3
sEx = 88
sTm = 90
sPo = 92
sC0, sC1, sC2, sC3 = 94, 95, 96, 97
sOp = 98
TOUCH = int("--touch" in sys.argv)
vLane, vH, vT0, vT1, vT2, vT3 = 1, 2, 3, 4, 5, 6
vXa0, vXa1, vWa0, vWa1, vWa2, vQa = 7, 8, 9, 10, 11, 12
vRX = 13
vRW, vRQ = 17, 18
vSel = 20
vCs = 24
vF = 32
vAcc = 96
vSt = 160
aQ = [8, 12]; aK = [16, 20]; aVl = [24, 28]; aVh = [32, 36]; aS = [40, 56]; aC = [72, 88]; aO = [104, 120]
fA, fWo, fWb, fH, fX, fG = 8, 72, [136, 144], 152, 200, 204
fS, fO, fR = 136, 8, 8
vIdx, vAk, vAv, vDa, vL16, vRa = 240, 241, 242, 243, 244, 245
vPoll = 246
vRd = 248
vRw, vRr, vRr2, vDa2 = 252, 253, 254, 255
vRw2 = 238
vAq = 237
sKq, sTt, sHo, sDo, sDm, sHc, sXf, sOc, sOc2, sHs = 64, 65, 66, 67, 68, 69, 70, 71, 72, 73
sOc3, sOc4, sOp2 = 80, 81, 99
sXf2 = 64
sNo = 86
sRow, sKf = 63, 85
ASL = 8320
XB, XK, XP = 8512, 2112, 1056
XF0, XS0, XS1 = 34048, 0, 102144
def aslot(n): return ASL*n
SP = [135168, 143360, 151552]

nstamp = [0]
DBGT = "--dbgt" in sys.argv
DT = {0: 75, 12: 76, 1: 77, 2: 78, 3: 79, 6: 80, 9: 81, 7: 82, 11: 83}
PAD = (int(sys.argv[sys.argv.index("--pad")+1]), int(sys.argv[sys.argv.index("--pad")+2])) if "--pad" in sys.argv else None
npad = [0]
PADB = sNo if "--padg" in sys.argv else 100
def stamp(k):
    if PAD and PAD[0] == k:
        npad[0] += 1
        e(f"Lpad{npad[0]}:\ns_memrealtime s[{sTm}:{sTm+1}]\ns_waitcnt lgkmcnt(0)\ns_sub_u32 s{sTm}, s{sTm}, s{PADB}\ns_sleep 8\ns_cmp_lt_u32 s{sTm}, {PAD[1]}\ns_cbranch_scc1 Lpad{npad[0]}")
    if DBGT and k in DT:
        e(f"s_memrealtime s[{sTm}:{sTm+1}]\ns_waitcnt lgkmcnt(0)\ns_sub_u32 s{DT[k]}, s{sTm}, s100")
        if k == 11:
            e(f"s_memtime s[{sTm}:{sTm+1}]\ns_waitcnt lgkmcnt(0)\ns_sub_u32 s84, s{sTm}, s92")
            e(f"s_cmp_lg_u32 s2, 64\ns_cbranch_scc1 Lend\ns_cmp_lg_u32 s{sW}, 4\ns_cbranch_scc1 Lend")
            for n, r in enumerate(range(75, 85)):
                e(f"v_mov_b32 v0, s{r}\nbuffer_store_dword v0, off, {sr(SDBG,4)}, 0 offset:{4+4*n}\ns_nop 1")
    if not PROF: return
    e(f"""s_memtime s[{sTm}:{sTm+1}]
    s_waitcnt lgkmcnt(0)
    v_mov_b32 v0, s{sTm}
    buffer_store_dword v0, off, {sr(SWS,4)}, s{sPo} offset:{4*k}""")
    if k in RTS:
        e(f"""s_memrealtime s[{sTm}:{sTm+1}]
        s_waitcnt lgkmcnt(0)
        v_mov_b32 v0, s{sTm}
        buffer_store_dword v0, off, {sr(SWS,4)}, s{sPo} offset:{4*RTS[k]}""")
RTS = {12: 24, 1: 25, 5: 26, 6: 27, 11: 28}

TS = []
def tstamp(k):
    if not PROF: return
    r = 74 + len(TS); TS.append((k, r))
    e(f"s_memtime s[{sTm}:{sTm+1}]\ns_waitcnt lgkmcnt(0)\ns_mov_b32 s{r}, s{sTm}")
def tflush():
    for k, r in TS: e(f"v_mov_b32 v0, s{r}\nbuffer_store_dword v0, off, {sr(SWS,4)}, s{sPo} offset:{4*k}\ns_nop 1")
def tick(acc):
    if not PROF or "--notick" in sys.argv: return ""
    r = f"s_memtime s[{sTm}:{sTm+1}]\ns_waitcnt lgkmcnt(0)\n"
    if acc is not None: r += f"s_sub_u32 s99, s{sTm}, s99\ns_add_u32 s{acc}, s{acc}, s99\n"
    return r + f"s_mov_b32 s99, s{sTm}"

def interleave(main, fill):
    out = []; n = len(main); m = len(fill); k = 0
    for i, a in enumerate(main):
        out.append(a)
        t = (m * (i + 1)) // n
        out += fill[k:t]; k = t
    return out

def mfma(d, a, b, c=None):
    c = vr(d, 16) if c is None else c
    return f"v_mfma_f32_32x32x16_bf16 {vr(d,16)}, {vr(a,4)}, {vr(b,4)}, {c}"
def mfma16(d, a, b): return f"v_mfma_f32_16x16x32_bf16 {vr(d,4)}, {vr(a,4)}, {vr(b,4)}, {vr(d,4)}"
def smf(d, a, b, idx): return f"v_smfmac_f32_32x32x32_bf16 {vr(d,16)}, {vr(a,4)}, {vr(b,8)}, v{idx}"

TK = PROF and "--tk" in sys.argv
def tk(acc):
    if not TK: return ""
    r = f"s_memtime s[{sTm}:{sTm+1}]\ns_waitcnt lgkmcnt(0)\n"
    if acc is not None: r += f"s_sub_u32 s82, s{sTm}, s82\ns_add_u32 s{acc}, s{acc}, s82\n"
    return r + f"s_mov_b32 s82, s{sTm}"
def tkout():
    if TK: e(f"v_mov_b32 v0, s80\nbuffer_store_dword v0, off, {sr(SWS,4)}, s{sPo} offset:{4*29}\ns_nop 1\nv_mov_b32 v0, s81\nbuffer_store_dword v0, off, {sr(SWS,4)}, s{sPo} offset:{4*30}")
def tr(d, a, off): return [f"ds_read_b64_tr_b16 {vr(d,2)}, v{a} offset:{off}"]
def tag_issue(): return f"buffer_load_dwordx2 {vr(vPoll,2)}, off, {sr(SDBG,4)}, 0 sc1"
def tag_wait(tag, first_wait):
    e(f"""s_mov_b32 s{sT0}, 0
    s_waitcnt vmcnt({first_wait})
    Ltag_{tag}:
    v_readfirstlane_b32 s{sNo}, v{vPoll}
    v_readfirstlane_b32 s{sNo+1}, v{vPoll+1}
    s_add_u32 s{sT0}, s{sT0}, 1
    s_cmp_lg_u32 s{sNo}, 0
    s_cbranch_scc1 Ltagd_{tag}
    s_cmp_ge_u32 s{sT0}, 100000
    s_cbranch_scc1 Ltagd_{tag}
    s_sleep 1
    {tag_issue()}
    s_waitcnt vmcnt(0)
    s_branch Ltag_{tag}
    Ltagd_{tag}:""")
def flags_issue(base):
    return f"""v_and_b32 v{vPoll}, 15, v{vLane}
    v_lshlrev_b32 v{vPoll}, 7, v{vPoll}
    buffer_load_dwordx2 {vr(vPoll,2)}, v{vPoll}, {sr(SWS,4)}, s{base} offen sc1"""
def h_poll_issue(): return flags_issue(sHc)
def flags_wait(base, tag, first_wait):
    e(f"""s_mov_b32 s{sT0}, 0
    s_waitcnt vmcnt({first_wait})
    Lfw_{tag}:
    v_cmp_ne_u64 vcc, s[{sNo}:{sNo+1}], {vr(vPoll,2)}
    s_add_u32 s{sT0}, s{sT0}, 1
    s_cmp_ge_u32 s{sT0}, 100000
    s_cbranch_vccz Lfwd_{tag}
    s_cbranch_scc1 Lfwd_{tag}
    s_sleep 3
    {flags_issue(base)}
    s_waitcnt vmcnt(0)
    s_branch Lfw_{tag}
    Lfwd_{tag}:""")
def flag_set(off_sreg, tag, wave=0):
    e(f"""s_cmp_lg_u32 s{sW}, {wave}
    s_cbranch_scc1 Lsig_{tag}
    v_mov_b32 v{vPoll}, s{sNo}
    v_mov_b32 v{vPoll+1}, s{sNo+1}
    s_mov_b64 exec, 1
    buffer_store_dwordx2 {vr(vPoll,2)}, off, {sr(SWS,4)}, s{off_sreg} sc1
    s_mov_b64 exec, -1
    Lsig_{tag}:""")

hdr = open(f"cdna_kernels/{NAME}.s.ref").read().split("\n")
hdr = [h for h in hdr[:15] if h.startswith(";") and "@launch" not in h]
L += hdr
L.append(f"; @launch grid=(256,1,1) block=(512,1,1) lds={LDS_BYTES}")
L += ['.amdgcn_target "amdgcn-amd-amdhsa--gfx950"', ".text", f".globl {NAME}_kernel", ".p2align 8",
      f".type {NAME}_kernel,@function"]
e(f"{NAME}_kernel:")
RT = PROF
if RT: e("s_memrealtime s[100:101]\ns_memtime s[98:99]")
if DBGT or PAD: e("s_memrealtime s[100:101]\ns_memtime s[92:93]")
MAP84 = f"""s_and_b32 s{sI}, s{sT0}, 1
s_lshl_b32 s{sI}, s{sI}, 3
s_and_b32 s{sT2}, s{sT1}, 7
s_add_u32 s{sI}, s{sI}, s{sT2}
s_lshr_b32 s{sJ}, s{sT0}, 1
s_lshl_b32 s{sJ}, s{sJ}, 2
s_lshr_b32 s{sT3}, s{sT1}, 3
s_add_u32 s{sJ}, s{sJ}, s{sT3}
s_sub_u32 s{sJ}, 15, s{sJ}
s_and_b32 s{sTB}, s{sT0}, 3
s_lshl_b32 s{sTB}, s{sTB}, 3
s_add_u32 s{sTB}, s{sTB}, s{sT2}
s_lshr_b32 s{sCS}, s{sT0}, 2
s_lshl_b32 s{sCS}, s{sCS}, 2
s_add_u32 s{sCS}, s{sCS}, s{sT3}"""
MAP48 = f"""s_lshr_b32 s{sT2}, s{sT0}, 1
s_lshl_b32 s{sI}, s{sT2}, 2
s_and_b32 s{sT3}, s{sT1}, 3
s_add_u32 s{sI}, s{sI}, s{sT3}
s_lshl_b32 s{sTB}, s{sT2}, 3
s_and_b32 s{sT3}, s{sT1}, 7
s_add_u32 s{sTB}, s{sTB}, s{sT3}
s_and_b32 s{sT0}, s{sT0}, 1
s_lshl_b32 s{sJ}, s{sT0}, 3
s_lshr_b32 s{sT3}, s{sT1}, 2
s_add_u32 s{sJ}, s{sJ}, s{sT3}
s_sub_u32 s{sJ}, 15, s{sJ}
s_lshl_b32 s{sCS}, s{sT0}, 2
s_lshr_b32 s{sT3}, s{sT1}, 3
s_add_u32 s{sCS}, s{sCS}, s{sT3}"""
M48 = "--m48" in sys.argv
MAP = MAP48 if M48 else MAP84
PFC = "" if "--nopfc" in sys.argv else f"""s_cmp_lg_u32 s{sW}, 7
s_cbranch_scc1 Lnop0
s_getpc_b64 s[94:95]
Lpc0:
s_bfe_u32 s{sT0}, s2, 0x20003
s_lshl_b32 s{sT0}, s{sT0}, 13
v_lshl_add_u32 v{vT1}, v{vLane}, 7, s{sT0}
v_min_u32 v{vT1}, Lcodeend-Lpc0-4, v{vT1}
global_load_dword v223, v{vT1}, s[94:95]"""
e(f"""s_cmp_ge_u32 s2, 256
s_cbranch_scc1 Lend
s_load_dwordx2 s[{SX}:{SX+1}], s[0:1], 0
s_load_dwordx2 s[{SWG}:{SWG+1}], s[0:1], 48
s_load_dwordx2 s[{SWQ}:{SWQ+1}], s[0:1], 8
s_load_dwordx2 s[{SWV}:{SWV+1}], s[0:1], 24
s_load_dwordx2 s[{SDBG}:{SDBG+1}], s[0:1], 80
s_load_dwordx2 s[{SWS}:{SWS+1}], s[0:1], 88
v_and_b32 v{vLane}, 63, v0
v_lshrrev_b32 v{vT0}, 6, v0
v_lshrrev_b32 v{vH}, 5, v{vLane}
v_readfirstlane_b32 s{sW}, v{vT0}
{PFC}
Lnop0:
s_and_b32 s{sT0}, s2, 7
s_lshr_b32 s{sT1}, s2, 3
{MAP}
s_and_b32 s{sW4}, s{sW}, 3
v_lshrrev_b32 v{vT0}, 3, v{vLane}
v_lshlrev_b32 v{vT0}, 10, v{vT0}
v_and_b32 v{vT1}, 7, v{vLane}
v_lshrrev_b32 v{vT2}, 4, v{vLane}
v_xor_b32 v{vT1}, v{vT1}, v{vT2}
v_lshl_add_u32 v{vXa0}, v{vT1}, 4, v{vT0}
v_xor_b32 v{vXa1}, 64, v{vXa0}
v_add_u32 v{vXa1}, {8192-1024}, v{vXa1}
v_lshlrev_b32 v{vL16}, 4, v{vLane}
s_lshl_b32 s{sXo}, s{sI}, 17
s_lshl_b32 s{sT0}, s{sW4}, 15
s_add_u32 s{sXo}, s{sXo}, s{sT0}
s_lshl_b32 s{sRow}, s{sI}, 4
s_add_u32 s{sRow}, s{sRow}, s{sJ}
s_lshl_b32 s{sRow}, s{sRow}, 2
s_add_u32 s{sRow}, s{sRow}, s{sW4}
s_cmp_eq_u32 s{sJ}, 15
s_cselect_b32 s{sT0}, 16, 56
s_load_dwordx2 s[{SWK}:{SWK+1}], s[0:1], s{sT0}
s_mov_b32 s{sT1}, {512*2752}
s_cselect_b32 s{SWK+2}, 16384, s{sT1}
s_mov_b32 s{SWK+3}, 0x20000""")
SWU = SWK
vRs = 144
for d, nbytes in ((SX, 2048*1024), (SWG, 512*2752), (SWQ, 512*1024), (SWV, 16384), (SDBG, 256), (SWS, WS_BYTES)):
    e(f"s_mov_b32 s{d+2}, {nbytes}\ns_mov_b32 s{d+3}, 0x20000")
def late_srd(lst):
    for d, off, nbytes in lst:
        e(f"s_load_dwordx2 s[{d}:{d+1}], s[0:1], {off}\ns_mov_b32 s{d+2}, {nbytes}\ns_mov_b32 s{d+3}, 0x20000")
LS_A = [(SOUT, 72, 2048*1024)]; LS_F = [(SWO, 32, 512*1024), (SWD, 64, 1376*1024)]
def entry_stamp(defer=False):
    if PROF:
        e(f"s_lshl_b32 s{sPo}, s2, 3\ns_add_u32 s{sPo}, s{sPo}, s{sW}\ns_lshl_b32 s{sPo}, s{sPo}, 8\ns_add_u32 s{sPo}, s{sPo}, {PROFO}")
    if defer: tstamp(0); return
    stamp(0); rt_out()
def rt_out():
    if RT: e(f"s_nop 1\nv_mov_b32 v0, s100\nbuffer_store_dword v0, off, {sr(SWS,4)}, s{sPo} offset:60\ns_nop 1\nv_mov_b32 v0, s98\nbuffer_store_dword v0, off, {sr(SWS,4)}, s{sPo} offset:16")
def row_loads():
    e(f"""s_lshl_b32 s{sT1}, s{sRow}, 11
    buffer_load_dwordx4 {vr(vRs,4)}, v{vL16}, {sr(SX,4)}, s{sT1} offen
    buffer_load_dwordx4 {vr(vRs+4,4)}, v{vL16}, {sr(SX,4)}, s{sT1} offen offset:1024""")
WKV = 131072
vXf, vWk = 32, 192
sXb = sMw
def kvx_dma(c):
    return [f"""s_add_u32 m0, s{sXb}, {4096*c+2048*hf}
        s_add_u32 s{sT0}, s{sXo}, {128*c+16384*hf}
        buffer_load_dwordx4 v{vXa0}, {sr(SX,4)}, s{sT0} offen lds
        buffer_load_dwordx4 v{vXa1}, {sr(SX,4)}, s{sT0} offen offset:1024 lds""" for hf in range(2)]
e(f"""s_cselect_b32 s{sT2}, 1, 0
s_cmp_lt_u32 s{sW}, 4
s_cbranch_scc1 Lnorow
s_waitcnt lgkmcnt(0)""")
row_loads()
e(f"""s_cmp_eq_u32 s{sJ}, 15
s_cbranch_scc0 Lcomp
Lnorow:
s_cmp_eq_u32 s{sJ}, 15
s_cbranch_scc0 Lhelp
s_memrealtime s[{sTm}:{sTm+1}]
s_lshl_b32 s{sXb}, s{sW}, 14
s_lshr_b32 s{sT3}, s{sW}, 2
s_lshl_b32 s{sT0}, s{sT3}, 9
s_add_u32 s{sXo}, s{sXo}, s{sT0}
s_or_b32 s{sT0}, s2, s{sW}
s_cmp_lg_u32 s{sT0}, 0
s_waitcnt lgkmcnt(0)
s_cbranch_scc1 Lnotag
s_or_b32 s{sTm}, s{sTm}, 1
v_mov_b32 v{vPoll}, s{sTm}
v_mov_b32 v{vPoll+1}, s{sTm+1}
s_mov_b64 exec, 1
buffer_store_dwordx2 {vr(vPoll,2)}, off, {sr(SDBG,4)}, 0 sc1
s_mov_b64 exec, -1
Lnotag:
s_lshl_b32 s{sT0}, s{sW}, 11
s_add_u32 m0, s{sT0}, {WKV}
s_nop 0
buffer_load_dwordx4 v{vL16}, {sr(SWV,4)}, s{sT0} offen lds
buffer_load_dwordx4 v{vL16}, {sr(SWV,4)}, s{sT0} offen offset:1024 lds
s_add_u32 m0, s{sT0}, {WKV+16384}
s_nop 0
buffer_load_dwordx4 v{vL16}, {sr(SWK,4)}, s{sT0} offen lds
buffer_load_dwordx4 v{vL16}, {sr(SWK,4)}, s{sT0} offen offset:1024 lds""")
for x in kvx_dma(0): e(x)
e("s_branch Lkvcu\nLhelp:")

def v_lane_addr(d):
    e(f"""v_and_b32 v{d}, 15, v{vLane}
    v_lshlrev_b32 v{d}, 4, v{d}
    v_lshl_add_u32 v{d}, v{vH}, 8, v{d}
    s_mov_b32 exec_lo, 0xffff0000
    s_mov_b32 exec_hi, 0xffff0000
    v_mov_b32 v{d}, 512""")
def fin_init():
    e(f"""s_lshl_b32 s{sT0}, s{sTB}, 16
    s_lshl_b32 s{sT1}, s{sCS}, 7
    s_add_u32 s{sT0}, s{sT0}, s{sT1}
    s_lshl_b32 s{sT1}, s{sW4}, 14
    s_add_u32 s{sXf}, s{sT0}, s{sT1}
    s_add_u32 s{sXf2}, s{sXf}, 8192
    v_lshrrev_b32 v{vT0}, 3, v{vLane}
    v_and_b32 v{vT1}, 7, v{vLane}
    v_lshlrev_b32 v{vRa}, 10, v{vT0}
    v_lshl_add_u32 v{vRa}, v{vT1}, 4, v{vRa}
    v_bfe_u32 v{vT1}, v{vLane}, 1, 2
    v_mul_u32_u24 v{vT1}, {XB}, v{vT1}
    v_lshl_add_u32 v{vT0}, v{vT0}, 4, v{vT1}
    v_and_b32 v{vT1}, 1, v{vLane}
    v_mul_u32_u24 v{vT1}, {XP}, v{vT1}
    s_and_b32 s{sT0}, s{sW4}, 1
    s_lshl_b32 s{sT0}, s{sT0}, 8
    v_add3_u32 v{vT0}, v{vT0}, v{vT1}, s{sT0}
    s_lshr_b32 s{sT0}, s{sW4}, 1
    s_mul_i32 s{sT1}, s{sT0}, {4*XB}
    s_add_u32 s{sT1}, s{sT1}, {XF0}
    v_add_u32 v{vRr}, s{sT1}, v{vT0}
    s_mul_i32 s{sT1}, s{sT0}, {XS1}
    v_add_u32 v{vRr2}, s{sT1}, v{vT0}""")
FS = "--asent" not in sys.argv
def a_init():
    a_sent(); a_addr()
def a_sent(store=False):
    e(f"""s_lshl_b32 s{sT0}, s{sI}, 2
    s_add_u32 s{sT0}, s{sT0}, s{sW4}
    s_lshl_b32 s{sT0}, s{sT0}, 5
    s_lshr_b32 s{sT1}, s{sJ}, 1
    s_add_u32 s{sT0}, s{sT0}, s{sT1}
    s_and_b32 s{sT1}, s{sJ}, 1
    s_lshl_b32 s{sT1}, s{sT1}, 4
    s_add_u32 s{sT0}, s{sT0}, s{sT1}
    s_lshl_b32 s{sT0}, s{sT0}, 10
    s_add_u32 s{sOp}, s{sT0}, {OIMG}
    s_add_u32 s{sOp2}, s{sOp}, 8192""")
    if not FS or store: e(f"""v_mov_b64 v[232:233], -1
    v_mov_b64 v[234:235], -1
    buffer_store_dwordx4 v[232:235], v{vL16}, {sr(SWS,4)}, s{sOp} offen sc1
    buffer_store_dwordx4 v[232:235], v{vL16}, {sr(SWS,4)}, s{sOp2} offen sc1""")
    if store: return
def a_addr(zero=True):
    v_lane_addr(vAv)
    e(f"""s_mov_b32 exec_lo, 0xffee0000
    s_mov_b32 exec_hi, 0xffee0000
    v_mov_b32 v{vAv}, 0x4000000
    s_mov_b64 exec, -1
    v_add_u32 v{vAv}, 1024, v{vAv}
    v_mov_b32 v{vAk}, v{vL16}
    v_mov_b32 v{vIdx}, 0xdddd
    s_lshl_b32 s{sT0}, s{sW4}, 11
    s_add_u32 s{sT0}, s{sT0}, {QIMG}
    v_add_u32 v{vAq}, s{sT0}, v{vL16}""")
    if zero: a_zero()
def a_zero():
    for b in range(2):
        for r in range(0, 12, 2): e(f"v_mov_b64 {vr(aO[b]+r,2)}, 0")
def f_init():
    e(f"""v_lshrrev_b32 v{vT0}, 3, v{vLane}
    v_lshlrev_b32 v{vT0}, 10, v{vT0}
    v_and_b32 v{vT1}, 7, v{vLane}
    v_bfe_u32 v{vT2}, v{vLane}, 4, 1
    v_lshlrev_b32 v{vT2}, 2, v{vT2}
    v_xor_b32 v{vT1}, v{vT1}, v{vT2}
    v_lshl_add_u32 v{vDa}, v{vT1}, 4, v{vT0}
    v_add_u32 v{vDa2}, {8192-1024}, v{vDa}
    s_lshl_b32 s{sDo}, s{sW4}, 14
    s_lshl_b32 s{sT1}, s{sCS}, 7
    s_add_u32 s{sDo}, s{sDo}, s{sT1}
    s_lshl_b32 s{sDm}, s{sW4}, 11
    s_mul_i32 s{sHo}, s{sTB}, 176
    s_mul_i32 s{sT0}, s{sW4}, 22
    s_add_u32 s{sHo}, s{sHo}, s{sT0}
    s_lshl_b32 s{sHo}, s{sHo}, 10
    s_add_u32 s{sHo}, s{sHo}, {HIMG}
    s_lshl_b32 s{sT0}, s{sTB}, 3
    s_add_u32 s{sT0}, s{sT0}, s{sW4}
    s_lshl_b32 s{sT0}, s{sT0}, 13
    s_add_u32 s{sOc}, s{sT0}, {OIMG}
    s_add_u32 s{sOc2}, s{sOc}, 4096
    s_add_u32 s{sOc3}, s{sOc}, 32768
    s_add_u32 s{sOc4}, s{sOc}, {32768+4096}
    s_lshr_b32 s{sHc}, s{sTB}, 1
    s_lshl_b32 s{sHc}, s{sHc}, 11
    s_add_u32 s{sHc}, s{sHc}, {HFLG}
    s_lshl_b32 s{sHs}, s{sI}, 4
    s_add_u32 s{sHs}, s{sHs}, s{sJ}
    s_lshl_b32 s{sHs}, s{sHs}, 7
    s_add_u32 s{sHs}, s{sHs}, {HFLG}
    v_bfe_u32 v{vT0}, v{vLane}, 2, 2
    v_lshl_add_u32 v{vT0}, v{vH}, 2, v{vT0}
    v_lshlrev_b32 v{vT0}, 7, v{vT0}
    v_bfe_u32 v{vT1}, v{vLane}, 4, 1
    v_lshl_add_u32 v{vT0}, v{vT1}, 5, v{vT0}
    v_and_b32 v{vT1}, 3, v{vLane}
    v_lshl_add_u32 v{vT0}, v{vT1}, 3, v{vT0}
    v_bfe_u32 v{vT1}, v{vLane}, 3, 1
    v_lshl_add_u32 v{vT0}, v{vT1}, 6, v{vT0}
    v_add_u32 v{vRd}, s{sDm}, v{vT0}
    v_xor_b32 v{vRd+1}, 64, v{vRd}
    v_add_u32 v{vRd+2}, {SP[0]}, v{vRd}
    v_add_u32 v{vRd+3}, {SP[0]}, v{vRd+1}
    s_mul_i32 s{sT0}, s{sW4}, {XK}
    v_add_u32 v{vRw2}, s{sT0}, v{vL16}
    v_add_u32 v{vRw}, {XF0}, v{vRw2}
    v_add_u32 v{vRw2+1}, {XS1}, v{vRw2}""")
def kv_rest(tag):
    e(f"s_setprio 0\ns_lshl_b32 s{sT1}, s{sW4}, 12")
    for n in range(6):
        e(f"s_add_u32 s{sT0}, s{sT1}, {36*1024+16384*n}\ns_mov_b32 m0, s{sT0}\ns_nop 0")
        for k in range(4): e(f"buffer_load_dwordx4 v{vL16}, {sr(SWS,4)}, s{sT0} offen offset:{1024*k} sc1 lds")
    e(tag_issue())
    e("s_setprio 2")

def spread(m, fill):
    w = [16 if "16x16" in x else 32 for x in m]
    tot = sum(c for c, _ in fill); W = sum(w)
    out = []; k = 0; acc = 0; cw = 0
    for x, wx in zip(m, w):
        out.append(x); cw += wx
        while k < len(fill) and (acc + fill[k][0]/2) * W <= tot * cw:
            out.append(fill[k][1]); acc += fill[k][0]; k += 1
    out += [t for _, t in fill[k:]]
    return out


C1 = -2*0.7978845608028654*1.4426950408889634
C3 = C1*0.044715
def gelu_consts(m, r, d):
    e(f"""v_sub_f32 v{d}, 0, v{m}
    v_mul_f32 v{d+3}, v{r}, v{r}
    v_mul_f32 v{d+1}, {f2u(C1):#x}, v{r}
    v_mul_f32 v{d+2}, {f2u(C3):#x}, v{r}
    v_mul_f32 v{d+2}, v{d+2}, v{d+3}
    v_rcp_f32 v{d+3}, v{d+3}""")
def bc(reg, pos, n):
    base = reg & ~1
    return vr(base, 2), reg & 1
def pk(op, d, srcs, neg=None):
    ops = []; lo = []; hi = []
    for t, r in srcs:
        if t == 'p': ops.append(vr(r, 2)); lo.append(0); hi.append(1)
        else: ops.append(vr(r & ~1, 2)); lo.append(r & 1); hi.append(r & 1)
    return f"{op} {vr(d,2)}, {', '.join(ops)} op_sel:[{','.join(map(str,lo))}] op_sel_hi:[{','.join(map(str,hi))}]"
def gelu_tile(g, u, csg, csu, k, tmp, n=16, dst=None):
    for p in range(0, n, 2):
        e(pk("v_pk_fma_f32", g+p, [('b', k), ('p', csg+p), ('p', g+p)]))
        e(pk("v_pk_fma_f32", u+p, [('b', k), ('p', csu+p), ('p', u+p)]))
    for p in range(0, n, 2):
        e(pk("v_pk_mul_f32", tmp+p, [('p', g+p), ('p', g+p)]))
    for p in range(0, n, 2):
        e(pk("v_pk_fma_f32", tmp+p, [('p', tmp+p), ('b', k+2), ('b', k+1)]))
    for p in range(0, n, 2):
        e(pk("v_pk_mul_f32", tmp+p, [('p', tmp+p), ('p', g+p)]))
    for p in range(n): e(f"v_exp_f32 v{tmp+p}, v{tmp+p}")
    for p in range(0, n, 2):
        e(pk("v_pk_mul_f32", u+p, [('p', u+p), ('p', g+p)]))
    for p in range(0, n, 2):
        e(pk("v_pk_fma_f32", tmp+p, [('p', tmp+p), ('b', k+3), ('b', k+3)]))
    for p in range(n): e(f"v_rcp_f32 v{tmp+p}, v{tmp+p}")
    e("s_nop 0")
    for p in range(0, n, 2):
        e(pk("v_pk_mul_f32", u+p, [('p', u+p), ('p', tmp+p)]))
    for p in range(n//2): e(f"v_cvt_pk_bf16_f32 v{dst[p] if dst else g+p}, v{u+2*p}, v{u+2*p+1}")

def cs_read(d, slot_off):
    for q in range(4): e(f"ds_read_b128 {vr(d+4*q,4)}, v{vT3} offset:{slot_off+32*q}")

def lin_fold(acc, cs, negm, scale, n=16):
    for p in range(0, n, 2):
        e(pk("v_pk_fma_f32", acc+p, [('b', negm), ('p', cs+p), ('p', acc+p)]))
    for p in range(0, n, 2):
        e(pk("v_pk_mul_f32", acc+p, [('p', acc+p), ('b', scale)]))

def q_epilogue(cs):
    e(f"v_mul_f32 v{vSt+2}, {f2u(0.25*1.4426950408889634):#x}, v{vSt+1}")
    lin_fold(vAcc, cs, vSt+4, vSt+2)
    for p in range(8): e(f"v_cvt_pk_bf16_f32 v{vAcc+p}, v{vAcc+2*p}, v{vAcc+2*p+1}")
    e(f"""s_lshl_b32 s{sT0}, s{sW4}, 11
    s_add_u32 s{sT0}, s{sT0}, {QIMG}
    v_lshl_add_u32 v{vT0}, v{vLane}, 4, s{sT0}
    ds_write_b128 v{vT0}, {vr(vAcc,4)}
    ds_write_b128 v{vT0}, {vr(vAcc+4,4)} offset:1024""")


def rowstat_finish():
    a = vRs+8
    e(f"v_mov_b32 v{vT0}, 0x3f803f80")
    for k in range(4):
        for r in range(2):
            x = vRs+4*r+k
            c0 = "0" if k == 0 else f"v{a+2*r}"; c1 = "0" if k == 0 else f"v{a+2*r+1}"
            e(f"v_dot2_f32_bf16 v{a+2*r}, v{x}, v{vT0}, {c0}\nv_dot2_f32_bf16 v{a+2*r+1}, v{x}, v{x}, {c1}")
    e("s_nop 2")
    for ctl in ("row_shr:1", "row_shr:2", "row_shr:4", "row_shr:8"):
        for k in range(4): e(f"v_add_f32_dpp v{a+k}, v{a+k}, v{a+k} {ctl} row_mask:0xf bank_mask:0xf bound_ctrl:0")
    for ctl in ("row_bcast:15 row_mask:0xa", "row_bcast:31 row_mask:0xc"):
        for k in range(4): e(f"v_add_f32_dpp v{a+k}, v{a+k}, v{a+k} {ctl} bank_mask:0xf")
    for r in range(2):
        d = vRs+4*r
        e(f"""v_mul_f32 v{d}, {f2u(1/512):#x}, v{a+2*r}
        v_mul_f32 v{d+1}, {f2u(1/512):#x}, v{a+2*r+1}
        v_fma_f32 v{d+1}, -v{d}, v{d}, v{d+1}
        v_max_f32 v{d+1}, 0, v{d+1}
        v_add_f32 v{d+1}, {f2u(1e-5):#x}, v{d+1}
        v_rsq_f32 v{d+1}, v{d+1}""")
def rowstat_post():
    e(f"""s_lshl_b32 s{sT0}, s{sW4}, 4
    s_add_u32 s{sT0}, s{sT0}, {STL}
    v_mov_b32 v{vT0}, s{sT0}
    s_mov_b32 exec_lo, 0
    s_brev_b32 exec_hi, 1
    ds_write_b64 v{vT0}, {vr(vRs,2)}
    ds_write_b64 v{vT0}, {vr(vRs+4,2)} offset:8
    s_mov_b64 exec, -1""")
def rowstat_store():
    for r in range(2): e(f"v_mov_b32 v{vRs+4*r+2}, s{sNo}\nv_mov_b32 v{vRs+4*r+3}, s{sNo+1}")
    e(f"""s_lshl_b32 s{sT0}, s{sRow}, 5
    s_add_u32 s{sT0}, s{sT0}, {STATG}
    s_mov_b32 exec_lo, 0
    s_brev_b32 exec_hi, 1
    buffer_store_dwordx4 {vr(vRs,4)}, off, {sr(SWS,4)}, s{sT0} sc1
    buffer_store_dwordx4 {vr(vRs+4,4)}, off, {sr(SWS,4)}, s{sT0} offset:16 sc1
    s_mov_b64 exec, -1""")
def kv_dma(tag):
    e(f"s_mul_i32 s{sT1}, s{sW4}, 3072")
    for n in range(3):
        e(f"s_add_u32 s{sT0}, s{sT1}, {12288*n}\ns_mov_b32 m0, s{sT0}\ns_nop 0")
        for k in range(3): e(f"buffer_load_dwordx4 v{vL16}, {sr(SWS,4)}, s{sT0} offen offset:{1024*k} sc1 lds")
def tr_lane(rowmul, d):
    e(f"""v_lshrrev_b32 v{vT0}, 4, v{vLane}
    v_bfe_u32 v{vT1}, v{vLane}, 2, 2
    v_lshl_add_u32 v{vT0}, v{vT0}, 3, v{vT1}
    v_mul_u32_u24 v{vT0}, {rowmul}, v{vT0}
    v_bfe_u32 v{vT1}, v{vLane}, 4, 1
    v_lshl_add_u32 v{vT0}, v{vT1}, 5, v{vT0}
    v_and_b32 v{vT1}, 3, v{vLane}
    v_lshl_add_u32 v{d}, v{vT1}, 3, v{vT0}""")
def ones_col0(d):
    e(f"""v_and_b32 v{vT0}, 15, v{vLane}
    v_cmp_eq_u32 vcc, 0, v{vT0}
    v_mov_b32 v{vT1}, 0x3f803f80
    s_nop 0
    v_cndmask_b32 v{d}, 0, v{vT1}, vcc""")
    for k in range(1, 4): e(f"v_mov_b32 v{d+k}, v{d}")
def rot_delta():
    return f"s_add_u32 s{sRb}, s{sRb}, 1\ns_cmp_eq_u32 s{sRb}, 3\ns_cselect_b32 s{sDl}, s{sC3}, {STG}\ns_cselect_b32 s{sRb}, 0, s{sRb}"
def cs16_write(accs, slot0_sreg, stride):
    e(f"v_add_u32 v{vT0}, s{slot0_sreg}, v{vLane}\ns_mov_b32 exec_lo, 0x00010001\ns_mov_b32 exec_hi, 0x00010001")
    for n, a in enumerate(accs): e(f"ds_write_b128 v{vT0}, {vr(a,4)} offset:{stride*n}")
    e("s_mov_b64 exec, -1")

ROT = int(sys.argv[sys.argv.index("--rot")+1]) if "--rot" in sys.argv else 7
sKs = 84
C0 = "--c0" in sys.argv
NR = 7 if C0 else 8
def dma_x():
    return [f"s_add_u32 m0, s{sLb}, s{sMx}", f"s_add_u32 s{sT0}, s{sXo}, 16384",
            f"buffer_load_dwordx4 v{vXa0}, {sr(SX,4)}, s{sXo} offen lds",
            f"buffer_load_dwordx4 v{vXa1}, {sr(SX,4)}, s{sXo} offen offset:1024 lds",
            "s_add_u32 m0, m0, 2048", f"s_add_u32 s{sXo}, s{sXo}, 128",
            f"buffer_load_dwordx4 v{vXa0}, {sr(SX,4)}, s{sT0} offen lds",
            f"buffer_load_dwordx4 v{vXa1}, {sr(SX,4)}, s{sT0} offen offset:1024 lds"]
def dma_w():
    r = []
    for k, sd in enumerate((SWG, SWU)):
        r += [f"s_add_u32 m0, s{sLb}, s{sMw}" if k == 0 else f"s_add_u32 m0, m0, {UOFF-GOFF}", "s_nop 0",
              f"buffer_load_dwordx4 v{vWa0}, {sr(sd,4)}, s{sWo} offen lds",
              f"buffer_load_dwordx4 v{vWa1}, {sr(sd,4)}, s{sWo} offen offset:1024 lds",
              f"buffer_load_dwordx4 v{vWa2}, {sr(sd,4)}, s{sWo} offen offset:2048 lds"]
    r += [f"s_add_u32 m0, s{sLb}, s{sMq}", f"s_add_u32 s{sWo}, s{sWo}, {64*2752}",
          f"buffer_load_dwordx4 v{vQa}, {sr(SWQ,4)}, s{sQo} offen lds", f"s_add_u32 s{sQo}, s{sQo}, 65536",
          f"s_add_u32 s{sLb}, s{sLb}, {STG}", f"s_cmp_ge_u32 s{sLb}, {3*STG}", f"s_cselect_b32 s{sLb}, 0, s{sLb}"]
    if ROT:
        r += [f"s_add_u32 s{sKs}, s{sKs}, 1", f"s_cmp_eq_u32 s{sKs}, 8",
              f"s_cselect_b32 s{sT0}, {128*NR}, 0", f"s_cselect_b32 s{sT1}, {64*NR*2752}, 0", f"s_cselect_b32 s{sT2}, {64*NR*1024}, 0",
              f"s_sub_u32 s{sXo}, s{sXo}, s{sT0}", f"s_sub_u32 s{sWo}, s{sWo}, s{sT1}", f"s_sub_u32 s{sQo}, s{sQo}, s{sT2}"]
    return r
e(f"s_mov_b32 s{sLb}, 0\ns_lshl_b32 s{sMx}, s{sW4}, 12")
if ROT and "--rm" in sys.argv: e(f"s_lshl_b32 s{sKs}, s{sI if M48 else sJ}, 1\ns_add_u32 s{sKs}, s{sKs}, s{sJ if M48 else sI}\ns_and_b32 s{sKs}, s{sKs}, {ROT}")
RM = sys.argv[sys.argv.index("--rm")+1] if "--rm" in sys.argv else "a"
if RM == "a":
    e(f"""s_xor_b32 s{sKs}, s{sI}, s{sJ}
    s_and_b32 s{sKs}, s{sKs}, 1
    s_lshl_b32 s{sKs}, s{sKs}, 2
    s_lshr_b32 s{sT0}, s{sI}, 1
    s_xor_b32 s{sT0}, s{sT0}, s{sJ}
    s_lshr_b32 s{sT0}, s{sT0}, 1
    s_and_b32 s{sT0}, s{sT0}, 2
    s_or_b32 s{sKs}, s{sKs}, s{sT0}""")
if RM == "b":
    e(f"""s_add_u32 s{sKs}, s{sI}, s{sJ}
    s_and_b32 s{sKs}, s{sKs}, 3
    s_lshl_b32 s{sKs}, s{sKs}, 1
    s_lshr_b32 s{sT0}, s{sI}, 1
    s_xor_b32 s{sT0}, s{sT0}, s{sJ}
    s_bfe_u32 s{sT0}, s{sT0}, 0x10002
    s_or_b32 s{sKs}, s{sKs}, s{sT0}""")
if RM == "c":
    e(f"""s_lshr_b32 s{sKs}, s{sI}, 3
    s_lshl_b32 s{sKs}, s{sKs}, 2
    s_lshr_b32 s{sT0}, s{sJ}, 2
    s_lshl_b32 s{sT0}, s{sT0}, 1
    s_add_u32 s{sKs}, s{sKs}, s{sT0}
    s_and_b32 s{sKs}, s{sKs}, 7""")
if ROT and C0: e(f"s_cmp_eq_u32 s{sKs}, 7\ns_cselect_b32 s{sKs}, 3, s{sKs}")
def rot_x(): e(f"s_lshl_b32 s{sT0}, s{sKs}, 7\ns_add_u32 s{sXo}, s{sXo}, s{sT0}")
def rot_w(): e(f"s_mul_i32 s{sT0}, s{sKs}, {64*2752}\ns_add_u32 s{sWo}, s{sWo}, s{sT0}\ns_lshl_b32 s{sT0}, s{sKs}, 16\ns_add_u32 s{sQo}, s{sQo}, s{sT0}")
if ROT and not C0: rot_x()
for k, r in enumerate((vWa0, vWa1, vWa2)):
    e(f"""v_add_u32 v{vT0}, {64*k}, v{vLane}
    v_mul_u32_u24 v{vT1}, 43691, v{vT0}
    v_lshrrev_b32 v{vT1}, 19, v{vT1}
    v_mul_u32_u24 v{vT2}, 12, v{vT1}
    v_sub_u32 v{vT0}, v{vT0}, v{vT2}
    v_lshrrev_b32 v{vT2}, 2, v{vT1}
    v_and_b32 v{vT2}, 2, v{vT2}
    v_xor_b32 v{vT0}, v{vT0}, v{vT2}
    v_mul_u32_u24 v{vT1}, 2752, v{vT1}
    v_lshl_add_u32 v{r}, v{vT0}, 4, v{vT1}""")
    if k: e(f"v_subrev_u32 v{r}, {1024*k}, v{r}")
e(f"""v_lshrrev_b32 v{vT0}, 2, v{vLane}
v_lshlrev_b32 v{vT0}, 10, v{vT0}
v_and_b32 v{vT1}, 3, v{vLane}
v_lshlrev_b32 v{vT2}, 1, v{vH}
v_xor_b32 v{vT1}, v{vT1}, v{vT2}
v_lshl_add_u32 v{vQa}, v{vT1}, 4, v{vT0}
s_mul_i32 s{sT0}, s{sJ}, 96
s_min_u32 s{sT0}, s{sT0}, 1280
s_lshl_b32 s{sT0}, s{sT0}, 1
s_mul_i32 s{sWo}, s{sW4}, {16*2752}
s_add_u32 s{sWo}, s{sWo}, s{sT0}
s_lshl_b32 s{sQo}, s{sW4}, 14
s_lshl_b32 s{sT0}, s{sJ}, 6
s_add_u32 s{sQo}, s{sQo}, s{sT0}
s_mul_i32 s{sMw}, s{sW4}, 3072
s_add_u32 s{sMw}, s{sMw}, {GOFF}
s_lshl_b32 s{sMq}, s{sW4}, 10
s_add_u32 s{sMq}, s{sMq}, {QOFF}""")
if ROT and not C0: rot_w()
e("s_waitcnt lgkmcnt(0)")
entry_stamp()
for x in dma_x(): e(x)
w0 = dma_w()
if ROT and C0:
    k = w0.index(f"s_add_u32 s{sKs}, s{sKs}, 1")
    for x in w0[:k]: e(x)
    rot_x(); rot_w(); e(w0[k])
else:
    for x in w0: e(x)
for x in dma_x() + dma_w(): e(x)
e(tag_issue())
late_srd(LS_A)
hF = 30
e(f"""s_lshl_b32 s{sT0}, s{sW4}, 2
s_add_u32 s{sT0}, s{sT0}, {KFL}
v_mov_b32 v{hF}, s{sT0}
v_mov_b32 v{hF+1}, 0
v_mov_b32 v{vT0}, {KFL}
ds_write_b32 v{hF}, v{hF+1}
ds_write_b32 v{vT0}, v{hF+1} offset:16""")
hW = 32
e(f"s_mov_b32 s{sSt}, 0\ns_mov_b32 s{sRb}, 0\ns_mov_b32 s{sC3}, {(-2*STG) & 0xffffffff}")
if "--hp3" in sys.argv: e("s_setprio 3")
tstamp(21); e("s_waitcnt vmcnt(12) lgkmcnt(0)"); tstamp(23); e("s_barrier")
stamp(12); tflush(); TS.clear()
def helper_loop(cs):
    t = "c" if cs else "n"
    e(f"Lhl{t}:")
    if cs:
        rd, m = cs_parts()
        for x in rd: e(x)
        e(rot_delta())
        for x in dma_x(): e(x)
        e(f"v_add_u32 v{hA}, s{sDl}, v{hA}\nv_add_u32 v{hA+1}, s{sDl}, v{hA+1}\ns_waitcnt lgkmcnt(0)")
        w = dma_w(); k = 0
        for x in w:
            e(x)
            if "buffer_load" in x: e(m[k]); k += 1
        for x in m[k:]: e(x)
    else:
        for x in dma_x() + dma_w():
            if "--nodma" in sys.argv and "buffer_load" in x: continue
            e(x)
            if "--pace" in sys.argv and "buffer_load" in x: e("s_sleep 1")
        e(f"s_or_b32 s{sT0}, s{sSt}, s{sW}\ns_cmp_lg_u32 s{sT0}, 0\ns_cbranch_scc1 Lnpub")
        e(f"v_lshlrev_b32 v{vT0}, 3, v{vLane}\nv_add_u32 v{vT0}, {STL}, v{vT0}\nds_read_b64 {vr(hW,2)}, v{vT0}")
        tag_wait("p", 11)
        e(f"""v_mov_b32 v{hW+2}, s{sNo}
        v_mov_b32 v{hW+3}, s{sNo+1}
        s_lshl_b32 s{sT0}, s{sRow}, 5
        s_add_u32 s{sT0}, s{sT0}, {STATG}
        s_mov_b64 exec, 0xff
        s_waitcnt lgkmcnt(0)
        buffer_store_dwordx4 {vr(hW,4)}, v{vL16}, {sr(SWS,4)}, s{sT0} offen sc1
        s_mov_b64 exec, -1
        Lnpub:""")
        if not FS:
            e(f"s_cmp_lg_u32 s{sSt}, 2\ns_cbranch_scc1 Lnini")
            a_sent()
            e("Lnini:")
    e(f"""s_add_u32 s{sSt}, s{sSt}, 1
    {tk(None)}
    s_waitcnt vmcnt(11)
    {tk(80)}
    s_barrier
    {tk(81)}
    s_cmp_lt_u32 s{sSt}, 6
    s_cbranch_scc1 Lhl{t}""")
helper_loop(False)
tkout()
tag_wait("h", 11)
e(f"s_mov_b32 s{sKf}, {KFLG}\nv_mov_b32 v{hF+1}, 1")
e(f"s_cmp_lg_u32 s{sW}, 1\ns_cbranch_scc1 Lhns\ns_lshl_b32 s{sT1}, s{sI}, 11\ns_add_u32 s{sT1}, s{sT1}, {STATG}\ns_mov_b32 s{sT0}, 0\nLhs:")
e(f"""buffer_load_dwordx4 {vr(hW,4)}, v{vL16}, {sr(SWS,4)}, s{sT1} offen sc1
buffer_load_dwordx4 {vr(hW+4,4)}, v{vL16}, {sr(SWS,4)}, s{sT1} offen offset:1024 sc1
s_add_u32 s{sT0}, s{sT0}, 1
s_waitcnt vmcnt(0)
v_cmp_ne_u64 vcc, s[{sNo}:{sNo+1}], {vr(hW+2,2)}
v_cmp_ne_u64 s[{sEx}:{sEx+1}], s[{sNo}:{sNo+1}], {vr(hW+6,2)}
s_or_b64 vcc, vcc, s[{sEx}:{sEx+1}]
s_cmp_ge_u32 s{sT0}, 100000
s_cbranch_scc1 Lhns
s_cbranch_vccnz Lhs
Lhns:""")
if FS: a_sent()
a_addr(); fin_init()
e("s_waitcnt vmcnt(0)")
LATEP = "--earlyp" not in sys.argv
if not LATEP: e(flags_issue(sKf))
e(f"s_mov_b32 s{sSt}, 1\ns_barrier")
if LATEP: e(flags_issue(sKf))
def kv_try(tag):
    e(f"""s_cmp_eq_u32 s{sSt}, 0
    s_cbranch_scc1 Lkt2_{tag}
    s_waitcnt vmcnt(0)
    v_cmp_ne_u64 vcc, s[{sNo}:{sNo+1}], {vr(vPoll,2)}
    s_cbranch_vccnz Lkt1_{tag}""")
    kv_dma(tag)
    e(f"v_mov_b32 v{vT0}, {KFL}\nds_write_b32 v{vT0}, v{hF+1} offset:16\ns_mov_b32 s{sSt}, 0\ns_branch Lkt2_{tag}\nLkt1_{tag}:")
    e(flags_issue(sKf))
    e(f"Lkt2_{tag}:")
e(f"s_cmp_lg_u32 s{sW}, 1\ns_cbranch_scc1 Lhnc")
gelu_consts(hW, hW+1, hW+8); gelu_consts(hW+4, hW+5, hW+12)
e(f"""v_add_u32 v{vT0}, {STATM}, v{vL16}
ds_write_b128 v{vT0}, {vr(hW+8,4)}
ds_write_b128 v{vT0}, {vr(hW+12,4)} offset:1024
Lhnc:""")
kv_try("a")
e("s_waitcnt lgkmcnt(0)\ns_barrier")
if not LATEP: kv_try("b")
stamp(1)
e("s_waitcnt lgkmcnt(0)\ns_barrier\ns_branch Lp2")

cX = [8, 24]; cW = 40; cRX, cRW, cRQ = 68, 70, 72; cCs = 76; cO = 92; cA = 96
e("Lcomp:")
entry_stamp(True)
late_srd(LS_F)
e(f"""v_and_b32 v{vT0}, 15, v{vLane}
v_lshrrev_b32 v{vT1}, 1, v{vT0}
v_lshrrev_b32 v{vT2}, 4, v{vLane}
v_xor_b32 v{vT1}, v{vT1}, v{vT2}
v_lshlrev_b32 v{vT0}, 7, v{vT0}
s_and_b32 s{sT0}, s{sW}, 1
s_lshl_b32 s{sT0}, s{sT0}, 13
v_add_u32 v{vT0}, s{sT0}, v{vT0}
v_lshl_add_u32 v{cRX}, v{vT1}, 4, v{vT0}
v_xor_b32 v{cRX+1}, 64, v{cRX}""")
tr_lane(192, cRW)
e(f"""s_lshl_b32 s{sT1}, s{sW}, 4
s_and_b32 s{sT1}, s{sT1}, 32
v_xor_b32 v{cRW}, s{sT1}, v{cRW}
v_xor_b32 v{cRW+1}, 32, v{cRW}
s_lshl_b32 s{sT2}, s{sT1}, 1
v_add_u32 v{cRW}, s{sT2}, v{cRW}
s_lshl_b32 s{sT2}, s{sT1}, 2
v_add_u32 v{cRW+1}, s{sT2}, v{cRW+1}""")
tr_lane(64, cRQ); e(f"v_xor_b32 v{cRQ}, s{sT1}, v{cRQ}")
ones_col0(cO)
cO1 = 208
for k in range(4): e(f"v_mov_b32 v{cO1+k}, 0x3f803f80")
cEh, cEs, cEq = 73, 74, 75
cEc, cEw = 212, 213
e(f"""s_bfe_u32 s{sT2}, s{sW}, 0x10001
s_mul_i32 s{sT2}, s{sT2}, 448
s_add_u32 s{sT2}, s{sT2}, {CSUM}
s_and_b32 s{sT1}, s{sW}, 1
s_lshl_b32 s{sT1}, s{sT1}, 6
s_sub_u32 s{sT1}, s{sT2}, s{sT1}
v_and_b32 v{cEc}, 48, v{vLane}
v_add_u32 v{cEc}, s{sT2}, v{cEc}
v_add_u32 v{cEw}, s{sT1}, v{vLane}""")
e(f"""s_lshl_b32 s{sT0}, s{sI}, 2
s_and_b32 s{sT1}, s{sW}, 1
s_lshl_b32 s{sT1}, s{sT1}, 1
s_add_u32 s{sT0}, s{sT0}, s{sT1}
s_mul_i32 s{sT0}, s{sT0}, 88
s_mul_i32 s{sT1}, s{sJ}, 6
s_min_u32 s{sT1}, s{sT1}, 80
s_bfe_u32 s{sT2}, s{sW}, 0x10001
s_mul_i32 s{sT2}, s{sT2}, 3
s_add_u32 s{sT1}, s{sT1}, s{sT2}
s_and_b32 s{sT2}, s{sW}, 2""")
for add, dst in enumerate((sC0, sC1, sC2)):
    e(f"""s_add_u32 s{sT3}, s{sT1}, {add}
    s_lshr_b32 s{dst}, s{sT3}, 2
    s_add_u32 s{dst}, s{dst}, s{sT0}
    s_and_b32 s{sT3}, s{sT3}, 3
    s_mul_i32 s{sT3}, s{sT3}, 22
    s_add_u32 s{dst}, s{dst}, s{sT3}
    s_lshl_b32 s{dst}, s{dst}, 10
    s_add_u32 s{dst}, s{dst}, {HIMG}""")
e(f"""v_bfe_u32 v{vT0}, v{vLane}, 4, 1
v_lshlrev_b32 v{vT0}, 9, v{vT0}
v_and_b32 v{vT1}, 15, v{vLane}
v_lshl_add_u32 v{vT0}, v{vT1}, 4, v{vT0}
v_lshl_add_u32 v{cEh}, v{vH}, 8, v{vT0}
s_and_b32 s{sT0}, s{sW}, 1
s_lshl_b32 s{sT1}, s{sT0}, 10
s_add_u32 s{sT1}, s{sT1}, {STATM}
v_lshl_add_u32 v{cEs}, v{vT1}, 4, s{sT1}
s_lshl_b32 s{sT0}, s{sT0}, 12
s_lshl_b32 s{sT2}, s{sT2}, 9
s_add_u32 s{sT0}, s{sT0}, s{sT2}
s_add_u32 s{sT0}, s{sT0}, {QIMG}
v_lshl_add_u32 v{vT0}, v{vH}, 3, v{vT0}
v_add_u32 v{cEq}, s{sT0}, v{vT0}""")
f_init()
for r in list(range(cCs, cCs+16, 2)) + [r for r in range(cA, cA+112, 2) if not vRs <= r < vRs+16]: e(f"v_mov_b64 {vr(r,2)}, 0")
tstamp(13)
e("s_waitcnt vmcnt(0)")
tstamp(21)
rowstat_finish()
rowstat_post()
tstamp(23)
if "--touch" in sys.argv:
    e(f"""s_and_b32 s{sT2}, s{sI}, 7
    s_mul_i32 s{sT2}, s{sT2}, 48
    s_add_u32 s{sT2}, s{sT2}, 128
    s_cmp_ge_u32 s{sW}, 6
    s_cbranch_scc1 Ltc6
    v_lshrrev_b32 v{vT0}, 1, v{vLane}
    v_mul_u32_u24 v{vT0}, 2752, v{vT0}
    v_and_b32 v{vT1}, 1, v{vLane}
    v_lshl_add_u32 v{vT0}, v{vT1}, 7, v{vT0}
    s_mul_i32 s{sT0}, s{sJ}, 96
    s_min_u32 s{sT0}, s{sT0}, 1280
    s_lshl_b32 s{sT0}, s{sT0}, 1
    s_mul_i32 s{sT2}, s{sT2}, 2752
    s_add_u32 s{sT0}, s{sT0}, s{sT2}
    s_add_u32 s{sT1}, s{sT0}, {32*2752}
    s_cmp_eq_u32 s{sW}, 5
    s_cbranch_scc1 Ltc5
    buffer_load_dword v79, v{vT0}, {sr(SWG,4)}, s{sT0} offen
    s_mov_b32 exec_hi, 0
    buffer_load_dword v79, v{vT0}, {sr(SWG,4)}, s{sT1} offen
    s_branch Ltce
    Ltc5:
    buffer_load_dword v79, v{vT0}, {sr(SWU,4)}, s{sT0} offen
    s_mov_b32 exec_hi, 0
    buffer_load_dword v79, v{vT0}, {sr(SWU,4)}, s{sT1} offen
    s_branch Ltce
    Ltc6:
    s_cmp_eq_u32 s{sW}, 7
    s_cbranch_scc1 Ltc7
    v_lshrrev_b32 v{vT0}, 1, v{vLane}
    v_lshlrev_b32 v{vT0}, 10, v{vT0}
    v_and_b32 v{vT1}, 1, v{vLane}
    v_lshl_add_u32 v{vT0}, v{vT1}, 7, v{vT0}
    s_lshl_b32 s{sT0}, s{sI}, 17
    s_and_b32 s{sT1}, s{sJ}, 3
    s_lshl_b32 s{sT1}, s{sT1}, 15
    s_add_u32 s{sT0}, s{sT0}, s{sT1}
    buffer_load_dword v79, v{vT0}, {sr(SX,4)}, s{sT0} offen offset:256
    buffer_load_dword v79, v{vT0}, {sr(SX,4)}, s{sT0} offen offset:512
    buffer_load_dword v79, v{vT0}, {sr(SX,4)}, s{sT0} offen offset:768
    s_branch Ltce
    Ltc7:
    v_lshlrev_b32 v{vT0}, 10, v{vLane}
    s_lshl_b32 s{sT2}, s{sT2}, 10
    s_lshl_b32 s{sT0}, s{sJ}, 6
    s_add_u32 s{sT0}, s{sT0}, s{sT2}
    s_mov_b32 exec_hi, 0xffff
    buffer_load_dword v79, v{vT0}, {sr(SWQ,4)}, s{sT0} offen
    Ltce:
    s_mov_b64 exec, -1""")
e("s_nop 1")
for r in range(vRs, vRs+16, 2): e(f"v_mov_b64 {vr(r,2)}, 0")
e(f"s_mov_b32 s{sSt}, 0\ns_mov_b32 s{sRb}, 0\ns_mov_b32 s{sC3}, {(-2*STG) & 0xffffffff}\ns_setprio 2")
e(f"s_bitcmp1_b32 s{sW}, 0\ns_cbranch_scc1 Lcl1")
NF = 7
def comp_loop(var):
    tag = f"{var}"
    def wrd(n, k2):
        if n == 0: a, o, rs = cRQ, QOFF, 64
        else:
            t = (n-1) % 3
            a, o, rs = cRW+(t & 1), (GOFF if n < 4 else UOFF) + (t >> 1)*64, 192
        return tr(cW+4*n, a, o+32*k2*rs) + tr(cW+4*n+2, a, o+(32*k2+4)*rs)
    def xrd(k2): return [f"ds_read_b128 {vr(cX[k2]+4*u,4)}, v{cRX+k2} offset:{2048*u}" for u in range(4)]
    def mm(n, k2):
        r = [mfma16(cA+28*u+4*n, cW+4*n, cX[k2]+4*u) for u in range(4)]
        if n == 0: r.append(mfma16(cCs, cW, cO1))
        elif (n & 1) == var: r.append(mfma16(cCs+4*((n+1) >> 1), cW+4*n, cO))
        return r
    e("s_waitcnt lgkmcnt(0)\ns_barrier")
    for x in xrd(0) + sum([wrd(n, 0) for n in range(NF)], []): e(x)
    e(f"s_waitcnt lgkmcnt(0)\n.p2align 3\nLc_{tag}:")
    adr = [f"v_add_u32 v{r}, s{sDl}, v{r}" for r in (cRX, cRX+1, cRW, cRW+1, cRQ)]
    ctl = rot_delta().split("\n") + [f"s_add_u32 s{sSt}, s{sSt}, 1"]
    BARG = 2
    def build(order0):
        out = []; q = []; issued = list(order0)
        def need(tagname):
            idx = max(i for i, t in enumerate(issued) if t == tagname)
            return len(issued)-1-idx
        def push(tagname, lst): q.extend((tagname, x) for x in lst)
        lastN = [99]
        for k2 in range(2):
            if k2 == 0: push("x1", xrd(1))
            for n in range(NF):
                if k2 == 1 and n == BARG:
                    while q:
                        t, x = q.pop(0); out.append(x)
                        if t: issued.append(t)
                    out.append(f"s_waitcnt lgkmcnt(0)\n{tk(None)}\ns_barrier\n{tk(81)}")
                    issued.clear(); issued.extend(["done"])
                    push("x0", xrd(0))
                    for m in range(BARG): push(f"w{m}0", wrd(m, 0))
                reqs = [f"w{n}{k2}"] + ([f"x{k2}"] if n == 0 else [])
                for r in reqs: assert all(t != r for t, _ in q), (r, k2, n)
                ns = [need(r) for r in reqs if r in issued]
                if ns and n % 2 == 0 or ns and min(ns) < lastN[0]:
                    nxt = f"w{n+1}{k2}"
                    if nxt in issued and all(t != nxt for t, _ in q): ns.append(need(nxt))
                    N = min(min(ns), 15); out.append(f"s_waitcnt lgkmcnt({N})"); lastN[0] = N
                for x in mm(n, k2):
                    out.append(x)
                    if q:
                        t, y = q.pop(0); out.append(y)
                        if t: issued.append(t); lastN[0] += 1
                if k2 == 0:
                    push(f"w{n}1", wrd(n, 1))
                    if n == 3: push(None, ctl)
                    if n == NF-1: push(None, adr)
                elif n >= BARG: push(f"w{n}0", wrd(n, 0))
        while q:
            t, x = q.pop(0); out.append(x)
            if t: issued.append(t)
        return out, issued
    _, steady = build([])
    out, _ = build(steady)
    for x in out: e(x)
    e(f"s_cmp_lt_u32 s{sSt}, 8\ns_cbranch_scc1 Lc_{tag}")
    tkout()
eC, eK, eT = 8, 40, 56
comp_loop(0)
e("s_branch Lcle\nLcl1:")
comp_loop(1)
e("Lcle:")
tstamp(1)
for u in range(4): e(f"ds_read_b128 {vr(eK+4*u,4)}, v{cEs} offset:{256*u}")
e(f"""s_nop 2
s_mov_b32 exec_lo, 0x00010001
s_mov_b32 exec_hi, 0x00010001
ds_write_b128 v{cEw}, {vr(cCs+4,4)} offset:128
ds_write_b128 v{cEw}, {vr(cCs+8,4)} offset:256
ds_write_b128 v{cEw}, {vr(cCs+12,4)} offset:384
s_mov_b64 exec, -1
s_waitcnt lgkmcnt(3)""")
for u in range(4): e(f"v_mul_f32 v{eT+u}, {f2u(0.25*1.4426950408889634/C1):#x}, v{eK+4*u+1}")
for u in range(4):
    for p in (0, 2): e(pk("v_pk_fma_f32", cA+28*u+p, [('b', eK+4*u), ('p', cCs+p), ('p', cA+28*u+p)]))
for u in range(4):
    for p in (0, 2): e(pk("v_pk_mul_f32", cA+28*u+p, [('p', cA+28*u+p), ('b', eT+u)]))
for u in range(4):
    q = cA+28*u
    e(f"v_cvt_pk_bf16_f32 v{q}, v{q}, v{q+1}\nv_cvt_pk_bf16_f32 v{q+1}, v{q+2}, v{q+3}")
for u in range(4): e(f"ds_write_b64 v{cEq}, {vr(cA+28*u,2)} offset:{2048*(u>>1)+256*(u&1)}")
e(f"v_mov_b32 v{vT0}, {KFL}\ns_waitcnt lgkmcnt(0)\ns_barrier")
e(f"ds_read_b32 v{vT1}, v{vT0} offset:16")
for n in range(1, NF): e(f"ds_read_b128 {vr(eC+4*n,4)}, v{cEc} offset:{64*n}")
e(f"s_waitcnt lgkmcnt(0)\nv_cmp_ne_u32 vcc, 0, v{vT1}")
gl0 = len(L)
for u in range(4):
    g = cA+28*u+4; P = cA+28*(u & 2)+4
    gelu_tile(g, g+12, eC+4, eC+16, eK+4*u, eT, 12, [P+4*(p//2)+2*(u & 1)+(p & 1) for p in range(6)])
    if u & 1:
        e("s_nop 0")
        for t in range(3):
            e(f"v_permlane32_swap_b32 v{P+4*t}, v{P+4*t+2}\nv_permlane32_swap_b32 v{P+4*t+1}, v{P+4*t+3}")
        for t, so in enumerate((sC0, sC1, sC2)):
            e(f"buffer_store_dwordx4 {vr(P+4*t,4)}, v{cEh}, {sr(SWS,4)}, s{so} offen sc1")
        if u == 1: e(f"v_add_u32 v{cEh}, {88*1024}, v{cEh}")
body = L[gl0:]; del L[gl0:]
e(f"s_lshl_b32 s{sT1}, s{sW4}, 12")
items = []
for n in range(12):
    t = f"s_cbranch_vccz Lgk{n}\n"
    if n % 2 == 0: t += f"s_add_u32 s{sT0}, s{sT1}, {36*1024+8192*n}\ns_mov_b32 m0, s{sT0}\ns_nop 0\n"
    for k in range(2): t += f"buffer_load_dwordx4 v{vL16}, {sr(SWS,4)}, s{sT0} offen offset:{1024*(2*(n%2)+k)} sc1 lds\n"
    items.append(t + f"Lgk{n}:")
cut = (len(body)*3)//4
for x in interleave(body[:cut], items) + body[cut:]: e(x)
e(f"""s_cbranch_vccnz Lgk
s_mov_b32 s{sT0}, 0
s_setprio 0
Lgw:
s_sleep 2
ds_read_b32 v{vT1}, v{vT0} offset:16
s_add_u32 s{sT0}, s{sT0}, 1
s_waitcnt lgkmcnt(0)
v_cmp_ne_u32 vcc, 0, v{vT1}
s_cmp_ge_u32 s{sT0}, 2000000
s_cbranch_scc1 LFkv
s_cbranch_vccz Lgw
s_branch LFkv
Lgk:""")
e(tag_issue())
stamp(2)
tflush(); TS.clear(); rt_out()
e("s_branch LF")

def cs_write(acc, slot_expr_sreg):
    e(f"""v_and_b32 v{vT0}, 1, v{vLane}
    v_lshlrev_b32 v{vT0}, 6, v{vT0}
    v_lshrrev_b32 v{vT1}, 4, v{vLane}
    v_lshl_add_u32 v{vT0}, v{vT1}, 4, v{vT0}
    v_add_u32 v{vT0}, {slot_expr_sreg}, v{vT0}
    s_mov_b32 exec_lo, 0x00030003
    s_mov_b32 exec_hi, 0x00030003
    ds_write_b128 v{vT0}, {vr(acc,4)}
    s_mov_b64 exec, -1""")
e("Lkvcu:")
entry_stamp(True)
e(tag_issue())
for x in kvx_dma(1): e(x)
late_srd(LS_A + LS_F)
e(f"""v_and_b32 v{vT0}, 31, v{vLane}
v_lshrrev_b32 v{vT1}, 1, v{vT0}
v_and_b32 v{vT1}, 7, v{vT1}
v_xor_b32 v{vT1}, v{vT1}, v{vH}
v_lshlrev_b32 v{vT0}, 7, v{vT0}
v_add_u32 v{vT0}, s{sXb}, v{vT0}""")
for ks in range(4):
    e(f"v_xor_b32 v{vT2}, {2*ks}, v{vT1}\nv_lshl_add_u32 v{vRX+ks}, v{vT2}, 4, v{vT0}")
e(f"""v_bfe_u32 v{vT0}, v{vLane}, 2, 2
v_lshl_add_u32 v{vT0}, v{vH}, 3, v{vT0}
v_bfe_u32 v{vT1}, v{vLane}, 4, 1
v_and_b32 v{vT2}, 3, v{vLane}
v_lshlrev_b32 v{vT2}, 3, v{vT2}
v_lshl_add_u32 v{vT3}, v{vT1}, 5, v{vT2}
v_lshl_add_u32 v{vRQ}, v{vT0}, 6, v{vT3}
v_lshlrev_b32 v{vT1}, 14, v{vT1}
v_lshl_add_u32 v{vRW}, v{vT0}, 5, v{vT2}
s_lshr_b32 s{sT0}, s{sW}, 2
s_lshl_b32 s{sT0}, s{sT0}, 13
s_add_u32 s{sT1}, s{sT0}, {WKV}
v_add3_u32 v{vRW}, v{vRW}, v{vT1}, s{sT1}
s_add_u32 s{sT1}, s{sT1}, s{sT0}
v_add_u32 v{vRQ}, s{sT1}, v{vRQ}
v_lshrrev_b32 v{vT0}, 2, v{vLane}
v_lshlrev_b32 v{vT0}, 10, v{vT0}
v_and_b32 v{vT1}, 3, v{vLane}
v_lshl_add_u32 v{vQa}, v{vT1}, 4, v{vT0}
v_bfe_u32 v{vT0}, v{vLane}, 4, 1
v_and_b32 v{vT1}, 15, v{vLane}
v_cmp_eq_u32 vcc, v{vT0}, v{vT1}
v_mov_b32 v{vT2}, 0x3f803f80
s_nop 0
v_cndmask_b32 v{vSel}, 0, v{vT2}, vcc""")
for k in range(1, 4): e(f"v_mov_b32 v{vSel+k}, v{vSel}")
for r in range(vCs, vCs+4): e(f"v_mov_b32 v{r}, 0")
e(f"s_waitcnt vmcnt(5) lgkmcnt(0)\ns_cmp_lt_u32 s{sW}, 4\ns_cbranch_scc1 Lkvr1")
rowstat_finish()
e("Lkvr1:\ns_barrier")
tstamp(12)
def kv_reads(c):
    r = []
    for ks in range(4):
        W = vWk + 16*(c & 1) + 4*ks
        r += [f"ds_read_b128 {vr(vXf+16*c+4*ks,4)}, v{vRX+ks} offset:{4096*c}"]
        r += tr(W, vRW, (64*c+16*ks)*32) + tr(W+2, vRW, (64*c+16*ks+4)*32)
    return r
def kstat_issue():
    return f"buffer_load_dwordx4 {vr(vSt,4)}, v{vWa0}, {sr(SWS,4)}, s{sC1} offen sc1"
for x in kv_reads(0) + kvx_dma(2) + kvx_dma(3): e(x)
e(f"""v_and_b32 v{vWa0}, 31, v{vLane}
v_lshlrev_b32 v{vWa0}, 4, v{vWa0}
s_lshl_b32 s{sT0}, s{sI}, 2
s_add_u32 s{sT0}, s{sT0}, s{sW4}
s_mul_i32 s{sC0}, s{sT0}, {KVT}
s_lshl_b32 s{sC1}, s{sT0}, 9
s_add_u32 s{sC1}, s{sC1}, {STATG}""")
if "--kvt" in sys.argv: e(f"s_mov_b32 s{sT0}, {64*KVT+1024}\nbuffer_load_dword v{vSt+8}, off, {sr(SWS,4)}, s{sT0}")
for c in range(4):
    m = []
    for ks in range(4):
        X = vXf+16*c+4*ks; W = vWk + 16*(c & 1) + 4*ks
        z = "0" if c == 0 and ks == 0 else None
        m += [mfma(vAcc+16, W, X, z), mfma16(vCs, W, vSel), mfma(vAcc+32, X, W, z)]
    e("s_waitcnt lgkmcnt(0)")
    if c < 3:
        for x in m[:3] + [f"s_waitcnt vmcnt({8-4*c})"] + interleave(m[3:9], kv_reads(c+1)) + m[9:]: e(x)
        if c == 0:
            tag_wait("k", 8)
            e(f"s_cmp_lt_u32 s{sW}, 4\ns_cbranch_scc1 Lkvr2")
            rowstat_store()
            e("Lkvr2:")
    else:
        e(kstat_issue())
        for x in m: e(x)
tstamp(1)
e(f"""v_and_b32 v{vT2}, 31, v{vLane}
v_lshlrev_b32 v{vT2}, 2, v{vT2}
s_xor_b32 s{sT2}, s{sXb}, 65536
s_add_u32 s{sT1}, s{sXb}, 4352
s_lshl_b32 s{sQo}, s{sW}, 16
s_add_u32 s{sQo}, s{sQo}, {64*15}
s_lshl_b32 s{sMq}, s{sW}, 12
s_add_u32 s{sMq}, s{sMq}, {WKV}""")
cs_write(vCs, f"s{sT1}")
e(f"""v_add_u32 v{vT0}, s{sXb}, v{vL16}
v_add_u32 v{vWa1}, s{sT2}, v{vL16}
v_add_u32 v{vWa2}, s{sT2}, v{vT2}
v_lshl_add_u32 v{vT3}, v{vH}, 4, s{sXb}
s_cmp_ge_u32 s{sW}, 4
s_cbranch_scc1 LkvH""")
def wq_dma():
    for k in range(4):
        e(f"s_add_u32 m0, s{sMq}, {1024*k}\ns_add_u32 s{sT0}, s{sQo}, {16384*k}\nbuffer_load_dwordx4 v{vQa}, {sr(SWQ,4)}, s{sT0} offen lds")
def kstat_wait(tag):
    e(f"""s_mov_b32 s{sT0}, 0
    s_waitcnt vmcnt(0)
    Lks_{tag}:
    v_cmp_ne_u64 vcc, s[{sNo}:{sNo+1}], {vr(vSt+2,2)}
    s_add_u32 s{sT0}, s{sT0}, 1
    s_cmp_ge_u32 s{sT0}, 100000
    s_cbranch_vccz Lksd_{tag}
    s_cbranch_scc1 Lksd_{tag}
    {kstat_issue()}
    s_waitcnt vmcnt(0)
    s_branch Lks_{tag}
    Lksd_{tag}:""")
for q in range(4): e(f"ds_write_b128 v{vT0}, {vr(vAcc+32+4*q,4)} offset:{1024*q}")
e(f"v_xor_b32 v{vT1}, 0x10000, v{vT3}\ns_waitcnt lgkmcnt(0)\ns_barrier")
e(f"""ds_read_b128 {vr(vWk,4)}, v{vWa1}
ds_read_b128 {vr(vWk+4,4)}, v{vWa1} offset:1024
ds_read_b128 {vr(vSt+12,4)}, v{vT3} offset:{4352+64}
ds_read_b128 {vr(vSt+16,4)}, v{vT3} offset:{4352+96}
ds_read_b128 {vr(vWk+8,4)}, v{vT1} offset:{4352+64}
ds_read_b128 {vr(vWk+12,4)}, v{vT1} offset:{4352+96}""")
e(f"""v_and_b32 v{vT0}, 0x33, v{vLane}
v_bfe_u32 v{vT1}, v{vLane}, 2, 1
v_lshl_or_b32 v{vT0}, v{vT1}, 3, v{vT0}
v_bfe_u32 v{vT1}, v{vLane}, 3, 1
v_lshl_or_b32 v{vT0}, v{vT1}, 2, v{vT0}
v_lshlrev_b32 v{vT0}, 4, v{vT0}
s_waitcnt lgkmcnt(0)""")
for p in range(0, 8, 2):
    e(pk("v_pk_add_f32", vAcc+24+p, [('p', vAcc+24+p), ('p', vWk+p)]))
    e(pk("v_pk_add_f32", vSt+12+p, [('p', vSt+12+p), ('p', vWk+8+p)]))
kstat_wait("l")
e(f"v_sub_f32 v{vSt+4}, 0, v{vSt}")
lin_fold(vAcc+24, vSt+12, vSt+4, vSt+1, 8)
for p in range(4): e(f"v_cvt_pk_bf16_f32 v{vAcc+16+p}, v{vAcc+24+2*p}, v{vAcc+25+2*p}")
e(f"buffer_store_dwordx4 {vr(vAcc+16,4)}, v{vT0}, {sr(SWS,4)}, s{sC0} offen sc1\ns_branch LkvS")
e("LkvH:")
e(f"ds_write_b128 v{vT0}, {vr(vAcc+24,4)}\nds_write_b128 v{vT0}, {vr(vAcc+28,4)} offset:1024")
e(f"v_add_u32 v{vT1}, s{sXb}, v{vT2}\ns_waitcnt lgkmcnt(0)\ns_barrier")
e(f"ds_read_b32 v{vSt+6}, v{vT1} offset:4352\nds_read_b32 v{vSt+7}, v{vWa2} offset:4352")
for q in range(4): e(f"ds_read_b128 {vr(vAcc+48+4*q,4)}, v{vWa1} offset:{1024*q}")
tstamp(21)
kstat_wait("h")
tstamp(23)
e(f"ds_write_b32 v{vT1}, v{vSt} offset:4608\nds_write_b32 v{vT1}, v{vSt+1} offset:4736\ns_waitcnt lgkmcnt(0)")
for q in range(4):
    e(f"ds_read_b128 {vr(vWk+4*q,4)}, v{vT3} offset:{4608+32*q}\nds_read_b128 {vr(vWk+16+4*q,4)}, v{vT3} offset:{4736+32*q}")
e(f"v_add_f32 v{vSt+6}, v{vSt+6}, v{vSt+7}\nv_sub_f32 v{vSt+6}, 0, v{vSt+6}")
for p in range(0, 16, 2): e(pk("v_pk_add_f32", vAcc+32+p, [('p', vAcc+32+p), ('p', vAcc+48+p)]))
e("s_waitcnt lgkmcnt(0)")
for p in range(0, 16, 2): e(pk("v_pk_fma_f32", vAcc+32+p, [('p', vWk+p), ('b', vSt+6), ('p', vAcc+32+p)]))
for p in range(0, 16, 2): e(pk("v_pk_mul_f32", vAcc+32+p, [('p', vAcc+32+p), ('p', vWk+16+p)]))
for p in range(8): e(f"v_cvt_pk_bf16_f32 v{vAcc+32+p}, v{vAcc+32+2*p}, v{vAcc+33+2*p}")
v_lane_addr(vT0)
for p in range(8): e(f"v_mov_b32 v{vAcc+32+p}, 0x3f803f80")
e(f"""s_mov_b32 exec_lo, 0x1ffff
s_mov_b32 exec_hi, 0xffff
buffer_store_dwordx4 {vr(vAcc+32,4)}, v{vT0}, {sr(SWS,4)}, s{sC0} offen offset:1024 sc1
buffer_store_dwordx4 {vr(vAcc+36,4)}, v{vT0}, {sr(SWS,4)}, s{sC0} offen offset:{1024+528} sc1
s_mov_b64 exec, -1""")
tstamp(29)
e("LkvS:")
wq_dma()
for r in range(4): e(f"v_mov_b32 v{vCs+r}, 0")
e(f"s_lshl_b32 s{sT2}, s{sI}, 7\ns_add_u32 s{sT2}, s{sT2}, {KFLG}\ns_waitcnt vmcnt(4)\ns_barrier")
flag_set(sT2, "kv")
stamp(13)
tflush(); TS.clear(); rt_out()
e("s_waitcnt vmcnt(0)\ns_barrier")
def q_reads(c):
    r = []
    for ks in range(4):
        W = vWk + 16*(c & 1) + 4*ks
        r += tr(W, vRQ, (64*c+16*ks)*64) + tr(W+2, vRQ, (64*c+16*ks+4)*64)
    return r
for x in q_reads(0): e(x)
for c in range(4):
    m = []
    for ks in range(4):
        X = vXf+16*c+4*ks; W = vWk + 16*(c & 1) + 4*ks
        m += [mfma(vAcc, W, X, "0" if c == 0 and ks == 0 else None), mfma16(vCs, W, vSel)]
    e("s_waitcnt lgkmcnt(0)")
    for x in interleave(m[:4], q_reads(c+1) if c < 3 else []) + m[4:]: e(x)
e(f"""s_or_b32 s{sT2}, s{sXb}, {65536+8192}
s_lshr_b32 s{sT3}, s{sW}, 2
s_lshl_b32 s{sT3}, s{sT3}, 7
s_add_u32 s{sT1}, s{sT2}, s{sT3}
s_add_u32 s{sT1}, s{sT1}, 4096
v_add_u32 v{vWa1}, s{sT2}, v{vL16}
v_lshl_add_u32 v{vT3}, v{vH}, 4, s{sT2}
s_nop 3""")
cs_write(vCs, f"s{sT1}")
e(f"s_cmp_ge_u32 s{sW}, 4\ns_cbranch_scc1 LkvH2\ns_waitcnt lgkmcnt(0)\ns_barrier")
for q in range(4): e(f"ds_read_b128 {vr(vWk+4*q,4)}, v{vWa1} offset:{1024*q}")
cs_read(vAcc+48, 4096); cs_read(vWk+16, 4096+128)
e("s_waitcnt lgkmcnt(0)")
for p in range(0, 16, 2):
    e(pk("v_pk_add_f32", vAcc+p, [('p', vAcc+p), ('p', vWk+p)]))
    e(pk("v_pk_add_f32", vAcc+48+p, [('p', vAcc+48+p), ('p', vWk+16+p)]))
q_epilogue(vAcc+48)
a_init(); fin_init()
e("s_waitcnt lgkmcnt(0)\ns_barrier\ns_branch LaR\nLkvH2:")
for q in range(4): e(f"ds_write_b128 v{vWa1}, {vr(vAcc+4*q,4)} offset:{1024*q}")
e(f"s_mov_b32 s{sKf}, {KFLG}")
e(flags_issue(sKf))
e("s_waitcnt lgkmcnt(0)\ns_barrier")
f_init()
flags_wait(sKf, "kv2", 0)
kv_dma("c")
e("s_waitcnt vmcnt(0)\ns_barrier\ns_branch LFkv")

AAL = 6 if "--a6" in sys.argv else 3
vm = []
def vtag(tag): vm.append(tag)
def vwait_s(tag):
    idx = max(i for i, t in enumerate(vm) if t == tag)
    return f"s_waitcnt vmcnt({min(63, len(vm)-1-idx)})"
def emit_seq(seq):
    for x in seq:
        if isinstance(x, list): emit_seq(x)
        elif isinstance(x, tuple): vtag(x[0]); e(x[1])
        elif callable(x): e(x())
        else: e(x)
e(f"Lp2:\ns_setprio 3\ns_cmp_eq_u32 s{sSt}, 0\ns_cbranch_scc1 Lkvok")
stamp(16)
flags_wait(sKf, "kv", 0)
stamp(17)
kv_dma("d")
e(f"v_mov_b32 v{vT0}, {KFL}\nds_write_b32 v{vT0}, v{hF+1} offset:16")
e(f"""Lkvok:
v_mov_b32 v{vT0}, {KFL}
s_mov_b32 s{sT0}, 0
s_waitcnt vmcnt(0)
ds_write_b32 v{hF}, v{hF+1}
Lkw:
ds_read_b128 {vr(aS[0],4)}, v{vT0}
s_add_u32 s{sT0}, s{sT0}, 1
s_waitcnt lgkmcnt(0)
v_and_b32 v{aS[0]}, v{aS[0]}, v{aS[0]+1}
v_and_b32 v{aS[0]+2}, v{aS[0]+2}, v{aS[0]+3}
v_and_b32 v{aS[0]}, v{aS[0]}, v{aS[0]+2}
v_cmp_ne_u32 vcc, 0, v{aS[0]}
s_cmp_ge_u32 s{sT0}, 2000000
s_cbranch_scc1 LaR
s_cbranch_vccnz LaR
s_sleep 1
s_branch Lkw
LaR:""")
stamp(3)
e(f"""ds_read_b128 {vr(aQ[0],4)}, v{vAq}
ds_read_b128 {vr(aK[0],4)}, v{vAk}
ds_read_b128 {vr(aQ[1],4)}, v{vAq} offset:1024
ds_read_b128 {vr(aK[1],4)}, v{vAk} offset:{KVT}
ds_read_b128 {vr(aVl[0],4)}, v{vAv}
ds_read_b128 {vr(aVh[0],4)}, v{vAv} offset:528
s_waitcnt lgkmcnt(4)""")
e(mfma(aS[0], aK[0], aQ[0], "0"))
e("s_waitcnt lgkmcnt(3)")
e(mfma(aS[1], aK[0], aQ[1], "0"))
e("s_nop 9")
for b in range(2):
    t = vT0+2*b; S = aS[b]
    e(f"v_max3_f32 v{t}, v{S}, v{S+1}, v{S+2}")
    for p in range(3, 15, 2): e(f"v_max3_f32 v{t}, v{t}, v{S+p}, v{S+p+1}")
    e(f"v_max_f32 v{t}, v{t}, v{S+15}\nv_mov_b32 v{t+1}, v{t}")
e(f"""s_nop 1
v_permlane32_swap_b32 v{vT0}, v{vT1}
v_permlane32_swap_b32 v{vT2}, v{vT3}
s_mov_b32 s{sSt}, 0
v_max_f32 v{vT0}, v{vT0}, v{vT1}
v_max_f32 v{vT2}, v{vT2}, v{vT3}""")
for b in range(2):
    e(f"v_sub_f32 v{aC[b]}, 0, v{vT0+2*b}\nv_sub_f32 v{aC[b]+1}, 0, v{vT0+2*b}")
for r in range(16): e(f"v_sub_f32 v{aS[0]+r}, v{aS[0]+r}, v{vT0}")
for b in (1, 0):
    for r in range(2, 16, 2): e(f"v_mov_b64 {vr(aC[b]+r,2)}, {vr(aC[b],2)}")
e("s_setprio 1")
stamp(5)
e(f"v_exp_f32 v{aS[0]}, v{aS[0]}\nv_exp_f32 v{aS[0]+1}, v{aS[0]+1}\ns_branch La1\n.p2align {AAL}\nLa0:")
for n in range(32):
    b = n & 1; T = n >> 1
    X = aS[b]; Y = aS[b ^ 1]
    ex = [f"v_exp_f32 v{X+i}, v{X+i}" for i in range(16)]
    Tp = (n-1) >> 1; Tn = (n+1) >> 1
    seq = ex[0:2] + [smf(aO[b ^ 1], aVh[Tp & 1], Y+8, vIdx)] + (["La1:"] if n == 0 else []) + ex[2:5]
    seq += [mfma(Y, aK[Tn & 1], aQ[b ^ 1], vr(aC[b ^ 1], 16))]
    if b:
        rd = [f"ds_read_b128 {vr(aVl[(T+1)&1],4)}, v{vAv} offset:{(T+1)*KVT}",
              f"ds_read_b128 {vr(aVh[(T+1)&1],4)}, v{vAv} offset:{(T+1)*KVT+528}",
              f"ds_read_b128 {vr(aK[T&1],4)}, v{vAk} offset:{(T+2)*KVT}"]
        seq += rd + ex[5:10]
    else: seq += ["s_waitcnt lgkmcnt(0)"] + ex[5:10]
    seq += [smf(aO[b], aVl[T & 1], X, vIdx)] + ex[10:16]
    for x in seq: e(x)
if PROF:
    e(f"s_memtime s[{sTm}:{sTm+1}]\ns_lshl_b32 s{sT0}, s{sSt}, 2\ns_add_u32 s{sT0}, s{sT0}, s{sPo}\ns_waitcnt lgkmcnt(0)\nv_mov_b32 v0, s{sTm}\nbuffer_store_dword v0, off, {sr(SWS,4)}, s{sT0} offset:72")
e(f"""v_add_u32 v{vAk}, {16*KVT}, v{vAk}
v_add_u32 v{vAv}, {16*KVT}, v{vAv}
s_add_u32 s{sSt}, s{sSt}, 1
s_cmp_eq_u32 s{sSt}, 1
s_cbranch_scc0 La2
{'' if PROF else 's_waitcnt vmcnt(0)'}
s_barrier
s_branch La0
La2:
s_cmp_lt_u32 s{sSt}, 4
s_cbranch_scc1 La0""")
e(smf(aO[1], aVh[1], aS[1]+8, vIdx))
e(f"s_mov_b32 s{sC0}, {f2u(2.0**40):#x}\ns_mov_b32 s{sC1}, {f2u(2.0**126):#x}")
for b in range(2):
    O = aO[b]
    e(f"s_mov_b32 s{sRetry}, 0\nLfin{b}:")
    e(f"""v_rcp_f32 v{O+10}, v{O+8}
    v_max3_f32 v{vT1}, abs(v{O}), abs(v{O+1}), abs(v{O+2})
    v_max3_f32 v{vT1}, v{vT1}, abs(v{O+3}), abs(v{O+4})
    v_max3_f32 v{vT1}, v{vT1}, abs(v{O+5}), abs(v{O+6})
    v_max_f32 v{vT1}, v{vT1}, abs(v{O+7})
    v_cmp_nlt_f32 vcc, v{O+8}, s{sC0}
    v_cmp_nlt_f32 s[{sEx}:{sEx+1}], v{vT1}, s{sC1}""")
    for p in range(8): e(f"v_mul_f32 v{O+p}, v{O+p}, v{O+10}")
    e(f"s_or_b64 vcc, vcc, s[{sEx}:{sEx+1}]")
    for p in range(4): e(f"v_cvt_pk_bf16_f32 v{O+p}, v{O+2*p}, v{O+2*p+1}")
    for p in range(4): e(f"v_min_u32 v{O+p}, -2, v{O+p}")
    e(f"s_cbranch_vccnz Lfallback{b}\nLok{b}:")
    e(f"buffer_store_dwordx4 {vr(O,4)}, v{vL16}, {sr(SWS,4)}, s{sOp if b == 0 else sOp2} offen sc1")
stamp(6)
OSC = " sc1"
gX = [136, 140]; gG = [144, 176]; gR = [8, 40]
e(f"buffer_load_dwordx4 {vr(gX[0],4)}, v{vRa}, {sr(SX,4)}, s{sXf} offen")
e(f"buffer_load_dwordx4 {vr(gX[1],4)}, v{vRa}, {sr(SX,4)}, s{sXf2} offen")
e("s_waitcnt lgkmcnt(0)\ns_setprio 0\ns_barrier\ns_barrier")
stamp(8)
for tt in range(2):
    for q in range(8): e(f"ds_read_b128 {vr(gG[tt]+4*q,4)}, v{vRr} offset:{128*tt+XK*(q//2)+512*(q%2)}")
def sum4(r):
    for p in range(0, 8, 2):
        e(pk("v_pk_add_f32", r+p, [('p', r+p), ('p', r+8+p)]))
        e(pk("v_pk_add_f32", r+16+p, [('p', r+16+p), ('p', r+24+p)]))
    for p in range(0, 8, 2): e(pk("v_pk_add_f32", r+p, [('p', r+p), ('p', r+16+p)]))
for tt in range(2):
    G = gG[tt]
    e(f"s_waitcnt lgkmcnt({8*(1-tt)})")
    for p in range(8): e(f"v_add_f32 v{G+p}, v{G+p}, v{G+8+p}\nv_add_f32 v{G+16+p}, v{G+16+p}, v{G+24+p}")
    for p in range(8): e(f"v_add_f32 v{G+p}, v{G+p}, v{G+16+p}")
    for p in range(8): e(f"v_mul_f32 v{G+8+p}, {f2u(-1.4426950408889634):#x}, v{G+p}")
    for p in range(8): e(f"v_exp_f32 v{G+8+p}, v{G+8+p}")
    for p in range(8): e(f"v_add_f32 v{G+8+p}, 1.0, v{G+8+p}")
    for p in range(8): e(f"v_rcp_f32 v{G+8+p}, v{G+8+p}")
    e("s_waitcnt vmcnt(0)")
    for p in range(4): e(f"v_lshlrev_b32 v{G+16+2*p}, 16, v{gX[tt]+p}\nv_and_b32 v{G+17+2*p}, 0xffff0000, v{gX[tt]+p}")
    for p in range(8): e(f"v_mul_f32 v{G+p}, v{G+p}, v{G+8+p}")
stamp(9)
e("s_barrier")
for tt in range(2):
    for q in range(8): e(f"ds_read_b128 {vr(gR[tt]+4*q,4)}, v{vRr2} offset:{128*tt+XK*(q//2)+512*(q%2)}")
for tt in range(2):
    R = gR[tt]; G = gG[tt]
    e(f"s_waitcnt lgkmcnt({8*(1-tt)})")
    sum4(R)
    for p in range(0, 8, 2): e(pk("v_pk_fma_f32", R+p, [('p', R+p), ('p', G+p), ('p', G+16+p)]))
    for p in range(4): e(f"v_cvt_pk_bf16_f32 v{R+p}, v{R+2*p}, v{R+2*p+1}")
    e(f"buffer_store_dwordx4 {vr(R,4)}, v{vRa}, {sr(SOUT,4)}, s{sXf if tt == 0 else sXf2} offen{OSC}")
def the_end():
    stamp(11)
    if RT: e(f"s_waitcnt vmcnt(0)\ns_memrealtime s[100:101]\ns_waitcnt lgkmcnt(0)\nv_mov_b32 v0, s100\nbuffer_store_dword v0, off, {sr(SWS,4)}, s{sPo} offset:56")
the_end()
e("Lend:\ns_endpgm")

e("LFkv:")
kv_rest("k")
e("LF:")
if FS: a_sent(True)
tag_wait("f", 0)
e("s_setprio 0\ns_barrier")
flag_set(sHs, "h", 4)
RG = SP + [aslot(n) for n in range(4)]
def u_dma(m):
    srdw, row = (SWO, 64*m) if m < 8 else (SWD, 64*(m-8))
    return [f"s_add_u32 m0, s{sDm}, {RG[m % 7]}", f"s_add_u32 s{sT0}, s{sDo}, {row*1024}",
            (f"u{m}", f"buffer_load_dwordx4 v{vDa}, {sr(srdw,4)}, s{sT0} offen lds"),
            (f"u{m}", f"buffer_load_dwordx4 v{vDa2}, {sr(srdw,4)}, s{sT0} offen offset:1024 lds")]
def u_reads(m, F):
    a = RG[m % 7]; win = 1 if a >= SP[0] else 0; off = a - win*SP[0]
    r0, r1 = vRd+2*win, vRd+2*win+1
    return tr(F, r0, off) + tr(F+2, r0, off+1024) + tr(F+4, r1, off) + tr(F+6, r1, off+1024)
HR = int(sys.argv[sys.argv.index("--hr")+1]) if "--hr" in sys.argv else 8
def h_loads(s):
    r = []
    if s % 4 == 0: r += [f"s_add_u32 s{sC0}, s{sHo}, {1024*s}", f"s_add_u32 s{sC1}, s{sC0}, {88*1024}"]
    for tt in range(2):
        r.append((f"h{s}", f"buffer_load_dwordx4 {vr(fH+8*(s % HR)+4*tt,4)}, v{vL16}, {sr(SWS,4)}, s{sC0 if tt == 0 else sC1} offen offset:{1024*(s%4)} sc1"))
    return r
for m in range(7): emit_seq(u_dma(m))
for m in range(8):
    e(vwait_s(f"u{m}"))
    for x in u_reads(m, fWo+8*m): e(x)
    e("s_waitcnt lgkmcnt(0)")
    emit_seq(u_dma(m+7))
tstamp(18)
e(flags_issue(sHc))
flags_wait(sHc, "h", 0)
tstamp(19)
for s in range(HR): emit_seq(h_loads(s))
for x in u_reads(8, fWb[0]): e(x)
FB = int(sys.argv[sys.argv.index("--fb")+1]) if "--fb" in sys.argv else 14
for s in range(22):
    m = 8+s; W = fWb[s & 1]
    if s == FB:
        tstamp(20); e("s_barrier\ns_setprio 2"); tstamp(21)
    if s < 21:
        e(vwait_s(f"u{m+1}"))
        for x in u_reads(m+1, fWb[(s+1) & 1]): e(x)
        e("s_waitcnt lgkmcnt(4)")
    else: e("s_waitcnt lgkmcnt(0)")
    if m+7 < 30: emit_seq(u_dma(m+7))
    e(vwait_s(f"h{s}"))
    if s == 21: e(f"s_cmp_ge_u32 s{sW4}, 2\ns_cbranch_scc1 Lskip21")
    for tt in range(2):
        for ch in range(2 if "--nofm" not in sys.argv else 0): e(mfma(fA+32*tt+16*ch, W+4*ch, fH+8*(s % HR)+4*tt, "0" if s == 0 else None))
    if s+HR < 22: emit_seq(h_loads(s+HR))
e("Lskip21:\ns_nop 8")
tstamp(22)
ORD = [7, 6, 5, 4, 3, 2, 1, 0] if M48 else [7, 6, 5, 4, 1, 0, 3, 2]
def o_load(k):
    tt, i = k & 1, k >> 1
    return f"buffer_load_dwordx4 {vr(opos(i)+4*tt,4)}, v{vL16}, {sr(SWS,4)}, s{(sOc, sOc2, sOc3, sOc4)[2*tt+(i>>2)]} offen offset:{1024*(i%4)} sc1"
def opos(i): return fO + 8*ORD.index(i)
zer = [f"v_mov_b64 {vr(fS+r,2)}, 0" for r in range(0, 64, 2)]
for q in range(16):
    e(f"ds_write_b128 v{vRw}, {vr(fA+4*q,4)} offset:{XB*(q//2)+XP*(q%2)}")
    if q >= 4: e(f"s_waitcnt lgkmcnt(4)\n{o_load(2*ORD[(q-4)//2]+(q & 1))}")
e("s_waitcnt lgkmcnt(0)\ns_barrier")
for k in range(12, 16): e(o_load(2*ORD[k//2]+(k & 1)))
tstamp(9)
def o_pair(i, tag, wait):
    B = opos(i)
    if wait is not None: e(f"s_waitcnt vmcnt({wait})")
    else: e(f"s_bitcmp1_b32 s{sSt}, {i}\ns_cbranch_scc0 Lon{tag}{i}")
    e(f"""v_max3_u32 v{vT1}, v{B}, v{B+1}, v{B+2}
    v_max3_u32 v{vT1}, v{vT1}, v{B+3}, v{B+4}
    v_max3_u32 v{vT1}, v{vT1}, v{B+5}, v{B+6}
    v_max_u32 v{vT1}, v{vT1}, v{B+7}
    v_cmp_eq_u32 vcc, s{sT1}, v{vT1}
    s_cbranch_vccnz Lon{tag}{i}
    s_bitset0_b32 s{sSt}, {i}""")
    for tt in range(2):
        for ch in range(2): e(mfma(fS+32*tt+16*ch, fWo+8*i+4*ch, B+4*tt))
    e(f"Lon{tag}{i}:")
def acc_chain(tt, ch): return [mfma(fS+32*tt+16*ch, fWo+8*i+4*ch, opos(i)+4*tt, "0" if n == 0 else None) for n, i in enumerate(ORD)]
def s_wr(tt, ch): return [f"ds_write_b128 v{vRw2+tt}, {vr(fS+32*tt+16*ch+4*q,4)} offset:{XB*(2*ch+q//2)+XP*(q%2)}" for q in range(4)]
e(f"v_mov_b32 v{vT1}, 0")
for n, x in enumerate(acc_chain(0, 0)):
    B = fO+8*n
    e(f"s_waitcnt vmcnt({14-2*n})\n{x}")
    for p in range(0, 8, 2): e(f"v_max3_u32 v{vT1}, v{vT1}, v{B+p}, v{B+p+1}")
e(f"v_cmp_eq_u32 vcc, -1, v{vT1}\ns_cbranch_vccnz Lor0")
c1, c2, c3 = acc_chain(0, 1), acc_chain(1, 0), acc_chain(1, 1)
for prev, c in (((0, 0), c1), ((0, 1), c2), ((1, 0), c3)):
    for x in [c[0], "s_nop 3", c[1], "s_nop 3", c[2]] + interleave(c[3:7], s_wr(*prev)) + c[7:]: e(x)
stamp(7)
e("s_nop 11")
for x in s_wr(1, 1): e(x)
e("Lsd:")
e("s_waitcnt lgkmcnt(0)\ns_barrier")
stamp(10); tflush(); TS.clear()
the_end()
e("s_endpgm")
e(f"Lor0:\ns_nop 8")
for x in zer: e(x)
e(f"s_mov_b32 s{sT0}, 0\ns_mov_b32 s{sSt}, 0xff\ns_mov_b32 s{sT1}, -1\ns_branch Lor2")
e("Lor:\ns_sleep 4")
for i in ORD:
    e(f"s_bitcmp1_b32 s{sSt}, {i}\ns_cbranch_scc0 Lorn{i}\n{o_load(2*i)}\n{o_load(2*i+1)}\nLorn{i}:")
e(f"""s_add_u32 s{sT0}, s{sT0}, 1
s_cmp_ge_u32 s{sT0}, 200000
s_cbranch_scc1 Lod
s_waitcnt vmcnt(0)
Lor2:""")
for i in ORD: o_pair(i, "b", None)
e(f"s_cmp_lg_u32 s{sSt}, 0\ns_cbranch_scc1 Lor\nLod:\ns_nop 6")
for tt in range(2):
    for ch in range(2):
        for x in s_wr(tt, ch): e(x)
e("s_branch Lsd")
for b in range(2):
    S = aS[0]; O = aO[b]; C = aC[b]; Q = aQ[b]
    e(f"""Lfallback{b}:
    s_cmp_lg_u32 s{sRetry}, 0
    s_cbranch_scc1 Lok{b}
    s_mov_b32 s{sRetry}, 1
    s_mov_b32 s{sSt}, 0
    v_mov_b32 v{vT1}, 0xff800000
    s_waitcnt lgkmcnt(0)
    Lfb1{b}:
    buffer_load_dwordx4 {vr(aK[0],4)}, v{vL16}, {sr(SWS,4)}, s{sSt} offen sc1
    s_waitcnt vmcnt(0)""")
    e(mfma(S, aK[0], Q, "0"))
    e("s_nop 11")
    for p in range(0, 16, 2): e(f"v_max3_f32 v{vT1}, v{vT1}, v{S+p}, v{S+p+1}")
    e(f"""s_add_u32 s{sSt}, s{sSt}, {KVT}
    s_cmp_lt_u32 s{sSt}, {64*KVT}
    s_cbranch_scc1 Lfb1{b}
    v_mov_b32 v{vT2}, v{vT1}
    s_nop 1
    v_permlane32_swap_b32 v{vT1}, v{vT2}
    s_nop 1
    v_max_f32 v{vT1}, v{vT1}, v{vT2}""")
    for r in range(16): e(f"v_sub_f32 v{C+r}, 0, v{vT1}")
    for r in range(12): e(f"v_mov_b32 v{O+r}, 0")
    e(f"""v_subrev_u32 v{vT0}, {64*KVT}, v{vAv}
    s_mov_b32 s{sSt}, 0
    Lfb2{b}:
    buffer_load_dwordx4 {vr(aK[0],4)}, v{vL16}, {sr(SWS,4)}, s{sSt} offen sc1
    buffer_load_dwordx4 {vr(aVl[0],4)}, v{vT0}, {sr(SWS,4)}, s{sSt} offen sc1
    buffer_load_dwordx4 {vr(aVh[0],4)}, v{vT0}, {sr(SWS,4)}, s{sSt} offen offset:528 sc1
    s_waitcnt vmcnt(0)""")
    e(mfma(S, aK[0], Q, vr(C, 16)))
    e("s_nop 11")
    for i in range(16): e(f"v_exp_f32 v{S+i}, v{S+i}")
    e("s_nop 1")
    e(smf(O, aVl[0], S, vIdx)); e(smf(O, aVh[0], S+8, vIdx))
    e(f"""s_add_u32 s{sSt}, s{sSt}, {KVT}
    s_cmp_lt_u32 s{sSt}, {64*KVT}
    s_cbranch_scc1 Lfb2{b}
    s_nop 9
    s_branch Lfin{b}""")
e("Lcodeend:")

L += ['.section .rodata,"a"', ".p2align 6", f".amdhsa_kernel {NAME}_kernel",
      "  .amdhsa_next_free_vgpr 256", "  .amdhsa_next_free_sgpr 102", "  .amdhsa_accum_offset 256",
      "  .amdhsa_group_segment_fixed_size 0", "  .amdhsa_kernarg_size 96", "  .amdhsa_user_sgpr_count 2",
      "  .amdhsa_user_sgpr_kernarg_segment_ptr 1", "  .amdhsa_system_sgpr_workgroup_id_x 1", ".end_amdhsa_kernel"]
open(OUT, "w").write("\n".join(L) + "\n")
print("wrote", OUT, len(L), "lines")
```

```python
import sys, struct
NAME = "recurrent_scan__grouped_kv_mqa__geglu_ffn__prompt"
PROF = "--prof" in sys.argv
OUT = [a for a in sys.argv[1:2] if not a.startswith("--")]
OUT = OUT[0] if OUT else f"cdna_kernels/{NAME}.s"

L = []
def e(s):
    for ln in s.split("\n"):
        if not ln.strip(): continue
        L.append(("    " + ln.strip()) if not ln.strip().endswith(":") else ln.strip())
def f2u(x): return struct.unpack("<I", struct.pack("<f", x))[0]
def vr(a, n): return f"v[{a}:{a+n-1}]"
def sr(a, n): return f"s[{a}:{a+n-1}]"

KVT = 2080
KVIMG = 0
HIMG = 135168
OIMG = HIMG + 64*88*1024
HFLG = OIMG + 64*32*1024
KFLG = HFLG + 256*128
STATG = KFLG + 16*128
PROFO = STATG + 2048*16
WS_BYTES = PROFO + 256*8*256
CNT_KV = 0
KVRDY = 128
STG = 45056
XOFF, GOFF, UOFF, QOFF = 0, 16384, 28672, 40960
STGK, QOFFK, NBK = 24832, 20736, 5
QIMG = 135168
STATM = 160768
CSUM = 162816
MRX = 159744
STL = 163712
KFL = 163776
LDS_BYTES = 163840
SX, SWQ, SWK, SWV, SWO, SWG, SWD, SOUT, SDBG, SWS = 4, 8, 12, 16, 20, 24, 28, 32, 36, 40
sI, sJ, sW, sW4 = 44, 45, 46, 47
sXo, sWo, sQo, sLb = 48, 49, 50, 51
sMx, sMw, sMq = 52, 53, 54
sSt, sDl, sT0, sT1, sT2, sT3 = 55, 56, 57, 58, 59, 60
sTB, sCS, sRetry, sRb = 61, 62, 63, 3
sEx = 88
sTm = 90
sPo = 92
sC0, sC1, sC2, sC3 = 94, 95, 96, 97
sOp = 98
TOUCH = int("--touch" in sys.argv)
vLane, vH, vT0, vT1, vT2, vT3 = 1, 2, 3, 4, 5, 6
vXa0, vXa1, vWa0, vWa1, vWa2, vQa = 7, 8, 9, 10, 11, 12
vRX = 13
vRW, vRQ = 17, 18
vSel = 20
vCs = 24
vF = 32
vAcc = 96
vSt = 160
aQ = [8, 12]; aK = [16, 20]; aVl = [24, 28]; aVh = [32, 36]; aS = [40, 56]; aC = [72, 88]; aO = [104, 120]
fA, fWo, fWb, fH, fX, fG = 8, 72, [136, 144], 152, 200, 204
fS, fO, fR = 136, 8, 8
vIdx, vAk, vAv, vDa, vL16, vRa = 240, 241, 242, 243, 244, 245
vPoll = 246
vRd = 248
vRw, vRr, vRr2, vDa2 = 252, 253, 254, 255
vRw2 = 238
vAq = 237
sKq, sTt, sHo, sDo, sDm, sHc, sXf, sOc, sOc2, sHs = 64, 65, 66, 67, 68, 69, 70, 71, 72, 73
sOc3, sOc4, sOp2 = 80, 81, 99
sXf2 = 64
sNo = 86
sRow, sKf = 63, 85
ASL = 8320
XB, XK, XP = 8512, 2112, 1056
XF0, XS0, XS1 = 34048, 0, 102144
def aslot(n): return ASL*n
SP = [135168, 143360, 151552]

nstamp = [0]
DBGT = "--dbgt" in sys.argv
DT = {0: 75, 12: 76, 1: 77, 2: 78, 3: 79, 6: 80, 9: 81, 7: 82, 11: 83}
PAD = (int(sys.argv[sys.argv.index("--pad")+1]), int(sys.argv[sys.argv.index("--pad")+2])) if "--pad" in sys.argv else None
npad = [0]
PADB = sNo if "--padg" in sys.argv else 100
def stamp(k):
    if PAD and PAD[0] == k:
        npad[0] += 1
        e(f"Lpad{npad[0]}:\ns_memrealtime s[{sTm}:{sTm+1}]\ns_waitcnt lgkmcnt(0)\ns_sub_u32 s{sTm}, s{sTm}, s{PADB}\ns_sleep 8\ns_cmp_lt_u32 s{sTm}, {PAD[1]}\ns_cbranch_scc1 Lpad{npad[0]}")
    if DBGT and k in DT:
        e(f"s_memrealtime s[{sTm}:{sTm+1}]\ns_waitcnt lgkmcnt(0)\ns_sub_u32 s{DT[k]}, s{sTm}, s100")
        if k == 11:
            e(f"s_memtime s[{sTm}:{sTm+1}]\ns_waitcnt lgkmcnt(0)\ns_sub_u32 s84, s{sTm}, s92")
            e(f"s_cmp_lg_u32 s2, 64\ns_cbranch_scc1 Lend\ns_cmp_lg_u32 s{sW}, 4\ns_cbranch_scc1 Lend")
            for n, r in enumerate(range(75, 85)):
                e(f"v_mov_b32 v0, s{r}\nbuffer_store_dword v0, off, {sr(SDBG,4)}, 0 offset:{4+4*n}\ns_nop 1")
    if not PROF: return
    e(f"""s_memtime s[{sTm}:{sTm+1}]
    s_waitcnt lgkmcnt(0)
    v_mov_b32 v0, s{sTm}
    buffer_store_dword v0, off, {sr(SWS,4)}, s{sPo} offset:{4*k}""")
    if k in RTS:
        e(f"""s_memrealtime s[{sTm}:{sTm+1}]
        s_waitcnt lgkmcnt(0)
        v_mov_b32 v0, s{sTm}
        buffer_store_dword v0, off, {sr(SWS,4)}, s{sPo} offset:{4*RTS[k]}""")
RTS = {12: 24, 1: 25, 5: 26, 6: 27, 11: 28}

TS = []
def tstamp(k):
    if not PROF: return
    r = 74 + len(TS); TS.append((k, r))
    e(f"s_memtime s[{sTm}:{sTm+1}]\ns_waitcnt lgkmcnt(0)\ns_mov_b32 s{r}, s{sTm}")
def tflush():
    for k, r in TS: e(f"v_mov_b32 v0, s{r}\nbuffer_store_dword v0, off, {sr(SWS,4)}, s{sPo} offset:{4*k}\ns_nop 1")
def tick(acc):
    if not PROF or "--notick" in sys.argv: return ""
    r = f"s_memtime s[{sTm}:{sTm+1}]\ns_waitcnt lgkmcnt(0)\n"
    if acc is not None: r += f"s_sub_u32 s99, s{sTm}, s99\ns_add_u32 s{acc}, s{acc}, s99\n"
    return r + f"s_mov_b32 s99, s{sTm}"

def interleave(main, fill):
    out = []; n = len(main); m = len(fill); k = 0
    for i, a in enumerate(main):
        out.append(a)
        t = (m * (i + 1)) // n
        out += fill[k:t]; k = t
    return out

def mfma(d, a, b, c=None):
    c = vr(d, 16) if c is None else c
    return f"v_mfma_f32_32x32x16_bf16 {vr(d,16)}, {vr(a,4)}, {vr(b,4)}, {c}"
def mfma16(d, a, b): return f"v_mfma_f32_16x16x32_bf16 {vr(d,4)}, {vr(a,4)}, {vr(b,4)}, {vr(d,4)}"
def smf(d, a, b, idx): return f"v_smfmac_f32_32x32x32_bf16 {vr(d,16)}, {vr(a,4)}, {vr(b,8)}, v{idx}"

TK = PROF and "--tk" in sys.argv
def tk(acc):
    if not TK: return ""
    r = f"s_memtime s[{sTm}:{sTm+1}]\ns_waitcnt lgkmcnt(0)\n"
    if acc is not None: r += f"s_sub_u32 s82, s{sTm}, s82\ns_add_u32 s{acc}, s{acc}, s82\n"
    return r + f"s_mov_b32 s82, s{sTm}"
def tkout():
    if TK: e(f"v_mov_b32 v0, s80\nbuffer_store_dword v0, off, {sr(SWS,4)}, s{sPo} offset:{4*29}\ns_nop 1\nv_mov_b32 v0, s81\nbuffer_store_dword v0, off, {sr(SWS,4)}, s{sPo} offset:{4*30}")
def tr(d, a, off): return [f"ds_read_b64_tr_b16 {vr(d,2)}, v{a} offset:{off}"]
def tag_issue(): return f"buffer_load_dwordx2 {vr(vPoll,2)}, off, {sr(SDBG,4)}, 0 sc1"
def tag_wait(tag, first_wait):
    e(f"""s_mov_b32 s{sT0}, 0
    s_waitcnt vmcnt({first_wait})
    Ltag_{tag}:
    v_readfirstlane_b32 s{sNo}, v{vPoll}
    v_readfirstlane_b32 s{sNo+1}, v{vPoll+1}
    s_add_u32 s{sT0}, s{sT0}, 1
    s_cmp_lg_u32 s{sNo}, 0
    s_cbranch_scc1 Ltagd_{tag}
    s_cmp_ge_u32 s{sT0}, 100000
    s_cbranch_scc1 Ltagd_{tag}
    s_sleep 1
    {tag_issue()}
    s_waitcnt vmcnt(0)
    s_branch Ltag_{tag}
    Ltagd_{tag}:""")
def flags_issue(base):
    return f"""v_and_b32 v{vPoll}, 15, v{vLane}
    v_lshlrev_b32 v{vPoll}, 7, v{vPoll}
    buffer_load_dwordx2 {vr(vPoll,2)}, v{vPoll}, {sr(SWS,4)}, s{base} offen sc1"""
def h_poll_issue(): return flags_issue(sHc)
def flags_wait(base, tag, first_wait):
    e(f"""s_mov_b32 s{sT0}, 0
    s_waitcnt vmcnt({first_wait})
    Lfw_{tag}:
    v_cmp_ne_u64 vcc, s[{sNo}:{sNo+1}], {vr(vPoll,2)}
    s_add_u32 s{sT0}, s{sT0}, 1
    s_cmp_ge_u32 s{sT0}, 100000
    s_cbranch_vccz Lfwd_{tag}
    s_cbranch_scc1 Lfwd_{tag}
    s_sleep 3
    {flags_issue(base)}
    s_waitcnt vmcnt(0)
    s_branch Lfw_{tag}
    Lfwd_{tag}:""")
def flag_set(off_sreg, tag, wave=0):
    e(f"""s_cmp_lg_u32 s{sW}, {wave}
    s_cbranch_scc1 Lsig_{tag}
    v_mov_b32 v{vPoll}, s{sNo}
    v_mov_b32 v{vPoll+1}, s{sNo+1}
    s_mov_b64 exec, 1
    buffer_store_dwordx2 {vr(vPoll,2)}, off, {sr(SWS,4)}, s{off_sreg} sc1
    s_mov_b64 exec, -1
    Lsig_{tag}:""")

hdr = open(f"cdna_kernels/{NAME}.s.ref").read().split("\n")
hdr = [h for h in hdr[:15] if h.startswith(";") and "@launch" not in h]
L += hdr
L.append(f"; @launch grid=(256,1,1) block=(512,1,1) lds={LDS_BYTES}")
L += ['.amdgcn_target "amdgcn-amd-amdhsa--gfx950"', ".text", f".globl {NAME}_kernel", ".p2align 8",
      f".type {NAME}_kernel,@function"]
e(f"{NAME}_kernel:")
RT = PROF
if RT: e("s_memrealtime s[100:101]\ns_memtime s[98:99]")
if DBGT or PAD: e("s_memrealtime s[100:101]\ns_memtime s[92:93]")
MAP84 = f"""s_and_b32 s{sI}, s{sT0}, 1
s_lshl_b32 s{sI}, s{sI}, 3
s_and_b32 s{sT2}, s{sT1}, 7
s_add_u32 s{sI}, s{sI}, s{sT2}
s_lshr_b32 s{sJ}, s{sT0}, 1
s_lshl_b32 s{sJ}, s{sJ}, 2
s_lshr_b32 s{sT3}, s{sT1}, 3
s_add_u32 s{sJ}, s{sJ}, s{sT3}
s_sub_u32 s{sJ}, 15, s{sJ}
s_and_b32 s{sTB}, s{sT0}, 3
s_lshl_b32 s{sTB}, s{sTB}, 3
s_add_u32 s{sTB}, s{sTB}, s{sT2}
s_lshr_b32 s{sCS}, s{sT0}, 2
s_lshl_b32 s{sCS}, s{sCS}, 2
s_add_u32 s{sCS}, s{sCS}, s{sT3}"""
MAP48 = f"""s_lshr_b32 s{sT2}, s{sT0}, 1
s_lshl_b32 s{sI}, s{sT2}, 2
s_and_b32 s{sT3}, s{sT1}, 3
s_add_u32 s{sI}, s{sI}, s{sT3}
s_lshl_b32 s{sTB}, s{sT2}, 3
s_and_b32 s{sT3}, s{sT1}, 7
s_add_u32 s{sTB}, s{sTB}, s{sT3}
s_and_b32 s{sT0}, s{sT0}, 1
s_lshl_b32 s{sJ}, s{sT0}, 3
s_lshr_b32 s{sT3}, s{sT1}, 2
s_add_u32 s{sJ}, s{sJ}, s{sT3}
s_sub_u32 s{sJ}, 15, s{sJ}
s_lshl_b32 s{sCS}, s{sT0}, 2
s_lshr_b32 s{sT3}, s{sT1}, 3
s_add_u32 s{sCS}, s{sCS}, s{sT3}"""
M48 = "--m48" in sys.argv
MAP = MAP48 if M48 else MAP84
PFC = "" if "--nopfc" in sys.argv else f"""s_cmp_lg_u32 s{sW}, 7
s_cbranch_scc1 Lnop0
s_getpc_b64 s[94:95]
Lpc0:
s_bfe_u32 s{sT0}, s2, 0x20003
s_lshl_b32 s{sT0}, s{sT0}, 13
v_lshl_add_u32 v{vT1}, v{vLane}, 7, s{sT0}
v_min_u32 v{vT1}, Lcodeend-Lpc0-4, v{vT1}
global_load_dword v223, v{vT1}, s[94:95]"""
e(f"""s_cmp_ge_u32 s2, 256
s_cbranch_scc1 Lend
s_load_dwordx2 s[{SX}:{SX+1}], s[0:1], 0
s_load_dwordx2 s[{SWG}:{SWG+1}], s[0:1], 48
s_load_dwordx2 s[{SWQ}:{SWQ+1}], s[0:1], 8
s_load_dwordx2 s[{SWV}:{SWV+1}], s[0:1], 24
s_load_dwordx2 s[{SDBG}:{SDBG+1}], s[0:1], 80
s_load_dwordx2 s[{SWS}:{SWS+1}], s[0:1], 88
v_and_b32 v{vLane}, 63, v0
v_lshrrev_b32 v{vT0}, 6, v0
v_lshrrev_b32 v{vH}, 5, v{vLane}
v_readfirstlane_b32 s{sW}, v{vT0}
{PFC}
Lnop0:
s_and_b32 s{sT0}, s2, 7
s_lshr_b32 s{sT1}, s2, 3
{MAP}
s_and_b32 s{sW4}, s{sW}, 3
v_lshrrev_b32 v{vT0}, 3, v{vLane}
v_lshlrev_b32 v{vT0}, 10, v{vT0}
v_and_b32 v{vT1}, 7, v{vLane}
v_lshrrev_b32 v{vT2}, 4, v{vLane}
v_xor_b32 v{vT1}, v{vT1}, v{vT2}
v_lshl_add_u32 v{vXa0}, v{vT1}, 4, v{vT0}
v_xor_b32 v{vXa1}, 64, v{vXa0}
v_add_u32 v{vXa1}, {8192-1024}, v{vXa1}
v_lshlrev_b32 v{vL16}, 4, v{vLane}
s_lshl_b32 s{sXo}, s{sI}, 17
s_lshl_b32 s{sT0}, s{sW4}, 15
s_add_u32 s{sXo}, s{sXo}, s{sT0}
s_lshl_b32 s{sRow}, s{sI}, 4
s_add_u32 s{sRow}, s{sRow}, s{sJ}
s_lshl_b32 s{sRow}, s{sRow}, 2
s_add_u32 s{sRow}, s{sRow}, s{sW4}
s_cmp_eq_u32 s{sJ}, 15
s_cselect_b32 s{sT0}, 16, 56
s_load_dwordx2 s[{SWK}:{SWK+1}], s[0:1], s{sT0}
s_mov_b32 s{sT1}, {512*2752}
s_cselect_b32 s{SWK+2}, 16384, s{sT1}
s_mov_b32 s{SWK+3}, 0x20000""")
SWU = SWK
vRs = 144
for d, nbytes in ((SX, 2048*1024), (SWG, 512*2752), (SWQ, 512*1024), (SWV, 16384), (SDBG, 256), (SWS, WS_BYTES)):
    e(f"s_mov_b32 s{d+2}, {nbytes}\ns_mov_b32 s{d+3}, 0x20000")
def late_srd(lst):
    for d, off, nbytes in lst:
        e(f"s_load_dwordx2 s[{d}:{d+1}], s[0:1], {off}\ns_mov_b32 s{d+2}, {nbytes}\ns_mov_b32 s{d+3}, 0x20000")
LS_A = [(SOUT, 72, 2048*1024)]; LS_F = [(SWO, 32, 512*1024), (SWD, 64, 1376*1024)]
def entry_stamp(defer=False):
    if PROF:
        e(f"s_lshl_b32 s{sPo}, s2, 3\ns_add_u32 s{sPo}, s{sPo}, s{sW}\ns_lshl_b32 s{sPo}, s{sPo}, 8\ns_add_u32 s{sPo}, s{sPo}, {PROFO}")
    if defer: tstamp(0); return
    stamp(0); rt_out()
def rt_out():
    if RT: e(f"s_nop 1\nv_mov_b32 v0, s100\nbuffer_store_dword v0, off, {sr(SWS,4)}, s{sPo} offset:60\ns_nop 1\nv_mov_b32 v0, s98\nbuffer_store_dword v0, off, {sr(SWS,4)}, s{sPo} offset:16")
def row_loads():
    e(f"""s_lshl_b32 s{sT1}, s{sRow}, 11
    buffer_load_dwordx4 {vr(vRs,4)}, v{vL16}, {sr(SX,4)}, s{sT1} offen
    buffer_load_dwordx4 {vr(vRs+4,4)}, v{vL16}, {sr(SX,4)}, s{sT1} offen offset:1024""")
WKV = 131072
vXf, vWk = 32, 192
sXb = sMw
def kvx_dma(c):
    return [f"""s_add_u32 m0, s{sXb}, {4096*c+2048*hf}
        s_add_u32 s{sT0}, s{sXo}, {128*c+16384*hf}
        buffer_load_dwordx4 v{vXa0}, {sr(SX,4)}, s{sT0} offen lds
        buffer_load_dwordx4 v{vXa1}, {sr(SX,4)}, s{sT0} offen offset:1024 lds""" for hf in range(2)]
e(f"""s_cselect_b32 s{sT2}, 1, 0
s_cmp_lt_u32 s{sW}, 4
s_cbranch_scc1 Lnorow
s_waitcnt lgkmcnt(0)""")
row_loads()
e(f"""s_cmp_eq_u32 s{sJ}, 15
s_cbranch_scc0 Lcomp
Lnorow:
s_cmp_eq_u32 s{sJ}, 15
s_cbranch_scc0 Lhelp
s_memrealtime s[{sTm}:{sTm+1}]
s_lshl_b32 s{sXb}, s{sW}, 14
s_lshr_b32 s{sT3}, s{sW}, 2
s_lshl_b32 s{sT0}, s{sT3}, 9
s_add_u32 s{sXo}, s{sXo}, s{sT0}
s_or_b32 s{sT0}, s2, s{sW}
s_cmp_lg_u32 s{sT0}, 0
s_waitcnt lgkmcnt(0)
s_cbranch_scc1 Lnotag
s_or_b32 s{sTm}, s{sTm}, 1
v_mov_b32 v{vPoll}, s{sTm}
v_mov_b32 v{vPoll+1}, s{sTm+1}
s_mov_b64 exec, 1
buffer_store_dwordx2 {vr(vPoll,2)}, off, {sr(SDBG,4)}, 0 sc1
s_mov_b64 exec, -1
Lnotag:
s_lshl_b32 s{sT0}, s{sW}, 11
s_add_u32 m0, s{sT0}, {WKV}
s_nop 0
buffer_load_dwordx4 v{vL16}, {sr(SWV,4)}, s{sT0} offen lds
buffer_load_dwordx4 v{vL16}, {sr(SWV,4)}, s{sT0} offen offset:1024 lds
s_add_u32 m0, s{sT0}, {WKV+16384}
s_nop 0
buffer_load_dwordx4 v{vL16}, {sr(SWK,4)}, s{sT0} offen lds
buffer_load_dwordx4 v{vL16}, {sr(SWK,4)}, s{sT0} offen offset:1024 lds""")
for x in kvx_dma(0): e(x)
e("s_branch Lkvcu\nLhelp:")

def v_lane_addr(d):
    e(f"""v_and_b32 v{d}, 15, v{vLane}
    v_lshlrev_b32 v{d}, 4, v{d}
    v_lshl_add_u32 v{d}, v{vH}, 8, v{d}
    s_mov_b32 exec_lo, 0xffff0000
    s_mov_b32 exec_hi, 0xffff0000
    v_mov_b32 v{d}, 512""")
def fin_init():
    e(f"""s_lshl_b32 s{sT0}, s{sTB}, 16
    s_lshl_b32 s{sT1}, s{sCS}, 7
    s_add_u32 s{sT0}, s{sT0}, s{sT1}
    s_lshl_b32 s{sT1}, s{sW4}, 14
    s_add_u32 s{sXf}, s{sT0}, s{sT1}
    s_add_u32 s{sXf2}, s{sXf}, 8192
    v_lshrrev_b32 v{vT0}, 3, v{vLane}
    v_and_b32 v{vT1}, 7, v{vLane}
    v_lshlrev_b32 v{vRa}, 10, v{vT0}
    v_lshl_add_u32 v{vRa}, v{vT1}, 4, v{vRa}
    v_bfe_u32 v{vT1}, v{vLane}, 1, 2
    v_mul_u32_u24 v{vT1}, {XB}, v{vT1}
    v_lshl_add_u32 v{vT0}, v{vT0}, 4, v{vT1}
    v_and_b32 v{vT1}, 1, v{vLane}
    v_mul_u32_u24 v{vT1}, {XP}, v{vT1}
    s_and_b32 s{sT0}, s{sW4}, 1
    s_lshl_b32 s{sT0}, s{sT0}, 8
    v_add3_u32 v{vT0}, v{vT0}, v{vT1}, s{sT0}
    s_lshr_b32 s{sT0}, s{sW4}, 1
    s_mul_i32 s{sT1}, s{sT0}, {4*XB}
    s_add_u32 s{sT1}, s{sT1}, {XF0}
    v_add_u32 v{vRr}, s{sT1}, v{vT0}
    s_mul_i32 s{sT1}, s{sT0}, {XS1}
    v_add_u32 v{vRr2}, s{sT1}, v{vT0}""")
FS = "--asent" not in sys.argv
def a_init():
    a_sent(); a_addr()
def a_sent(store=False):
    e(f"""s_lshl_b32 s{sT0}, s{sI}, 2
    s_add_u32 s{sT0}, s{sT0}, s{sW4}
    s_lshl_b32 s{sT0}, s{sT0}, 5
    s_lshr_b32 s{sT1}, s{sJ}, 1
    s_add_u32 s{sT0}, s{sT0}, s{sT1}
    s_and_b32 s{sT1}, s{sJ}, 1
    s_lshl_b32 s{sT1}, s{sT1}, 4
    s_add_u32 s{sT0}, s{sT0}, s{sT1}
    s_lshl_b32 s{sT0}, s{sT0}, 10
    s_add_u32 s{sOp}, s{sT0}, {OIMG}
    s_add_u32 s{sOp2}, s{sOp}, 8192""")
    if not FS or store: e(f"""v_mov_b64 v[232:233], -1
    v_mov_b64 v[234:235], -1
    buffer_store_dwordx4 v[232:235], v{vL16}, {sr(SWS,4)}, s{sOp} offen sc1
    buffer_store_dwordx4 v[232:235], v{vL16}, {sr(SWS,4)}, s{sOp2} offen sc1""")
    if store: return
def a_addr(zero=True):
    v_lane_addr(vAv)
    e(f"""s_mov_b32 exec_lo, 0xffee0000
    s_mov_b32 exec_hi, 0xffee0000
    v_mov_b32 v{vAv}, 0x4000000
    s_mov_b64 exec, -1
    v_add_u32 v{vAv}, 1024, v{vAv}
    v_mov_b32 v{vAk}, v{vL16}
    v_mov_b32 v{vIdx}, 0xdddd
    s_lshl_b32 s{sT0}, s{sW4}, 11
    s_add_u32 s{sT0}, s{sT0}, {QIMG}
    v_add_u32 v{vAq}, s{sT0}, v{vL16}""")
    if zero: a_zero()
def a_zero():
    for b in range(2):
        for r in range(0, 12, 2): e(f"v_mov_b64 {vr(aO[b]+r,2)}, 0")
def f_init():
    e(f"""v_lshrrev_b32 v{vT0}, 3, v{vLane}
    v_lshlrev_b32 v{vT0}, 10, v{vT0}
    v_and_b32 v{vT1}, 7, v{vLane}
    v_bfe_u32 v{vT2}, v{vLane}, 4, 1
    v_lshlrev_b32 v{vT2}, 2, v{vT2}
    v_xor_b32 v{vT1}, v{vT1}, v{vT2}
    v_lshl_add_u32 v{vDa}, v{vT1}, 4, v{vT0}
    v_add_u32 v{vDa2}, {8192-1024}, v{vDa}
    s_lshl_b32 s{sDo}, s{sW4}, 14
    s_lshl_b32 s{sT1}, s{sCS}, 7
    s_add_u32 s{sDo}, s{sDo}, s{sT1}
    s_lshl_b32 s{sDm}, s{sW4}, 11
    s_mul_i32 s{sHo}, s{sTB}, 176
    s_mul_i32 s{sT0}, s{sW4}, 22
    s_add_u32 s{sHo}, s{sHo}, s{sT0}
    s_lshl_b32 s{sHo}, s{sHo}, 10
    s_add_u32 s{sHo}, s{sHo}, {HIMG}
    s_lshl_b32 s{sT0}, s{sTB}, 3
    s_add_u32 s{sT0}, s{sT0}, s{sW4}
    s_lshl_b32 s{sT0}, s{sT0}, 13
    s_add_u32 s{sOc}, s{sT0}, {OIMG}
    s_add_u32 s{sOc2}, s{sOc}, 4096
    s_add_u32 s{sOc3}, s{sOc}, 32768
    s_add_u32 s{sOc4}, s{sOc}, {32768+4096}
    s_lshr_b32 s{sHc}, s{sTB}, 1
    s_lshl_b32 s{sHc}, s{sHc}, 11
    s_add_u32 s{sHc}, s{sHc}, {HFLG}
    s_lshl_b32 s{sHs}, s{sI}, 4
    s_add_u32 s{sHs}, s{sHs}, s{sJ}
    s_lshl_b32 s{sHs}, s{sHs}, 7
    s_add_u32 s{sHs}, s{sHs}, {HFLG}
    v_bfe_u32 v{vT0}, v{vLane}, 2, 2
    v_lshl_add_u32 v{vT0}, v{vH}, 2, v{vT0}
    v_lshlrev_b32 v{vT0}, 7, v{vT0}
    v_bfe_u32 v{vT1}, v{vLane}, 4, 1
    v_lshl_add_u32 v{vT0}, v{vT1}, 5, v{vT0}
    v_and_b32 v{vT1}, 3, v{vLane}
    v_lshl_add_u32 v{vT0}, v{vT1}, 3, v{vT0}
    v_bfe_u32 v{vT1}, v{vLane}, 3, 1
    v_lshl_add_u32 v{vT0}, v{vT1}, 6, v{vT0}
    v_add_u32 v{vRd}, s{sDm}, v{vT0}
    v_xor_b32 v{vRd+1}, 64, v{vRd}
    v_add_u32 v{vRd+2}, {SP[0]}, v{vRd}
    v_add_u32 v{vRd+3}, {SP[0]}, v{vRd+1}
    s_mul_i32 s{sT0}, s{sW4}, {XK}
    v_add_u32 v{vRw2}, s{sT0}, v{vL16}
    v_add_u32 v{vRw}, {XF0}, v{vRw2}
    v_add_u32 v{vRw2+1}, {XS1}, v{vRw2}""")
def kv_rest(tag):
    e(f"s_setprio 0\ns_lshl_b32 s{sT1}, s{sW4}, 12")
    for n in range(6):
        e(f"s_add_u32 s{sT0}, s{sT1}, {36*1024+16384*n}\ns_mov_b32 m0, s{sT0}\ns_nop 0")
        for k in range(4): e(f"buffer_load_dwordx4 v{vL16}, {sr(SWS,4)}, s{sT0} offen offset:{1024*k} sc1 lds")
    e(tag_issue())
    e("s_setprio 2")

def spread(m, fill):
    w = [16 if "16x16" in x else 32 for x in m]
    tot = sum(c for c, _ in fill); W = sum(w)
    out = []; k = 0; acc = 0; cw = 0
    for x, wx in zip(m, w):
        out.append(x); cw += wx
        while k < len(fill) and (acc + fill[k][0]/2) * W <= tot * cw:
            out.append(fill[k][1]); acc += fill[k][0]; k += 1
    out += [t for _, t in fill[k:]]
    return out


C1 = -2*0.7978845608028654*1.4426950408889634
C3 = C1*0.044715
def gelu_consts(m, r, d):
    e(f"""v_sub_f32 v{d}, 0, v{m}
    v_mul_f32 v{d+3}, v{r}, v{r}
    v_mul_f32 v{d+1}, {f2u(C1):#x}, v{r}
    v_mul_f32 v{d+2}, {f2u(C3):#x}, v{r}
    v_mul_f32 v{d+2}, v{d+2}, v{d+3}
    v_rcp_f32 v{d+3}, v{d+3}""")
def bc(reg, pos, n):
    base = reg & ~1
    return vr(base, 2), reg & 1
def pk(op, d, srcs, neg=None):
    ops = []; lo = []; hi = []
    for t, r in srcs:
        if t == 'p': ops.append(vr(r, 2)); lo.append(0); hi.append(1)
        else: ops.append(vr(r & ~1, 2)); lo.append(r & 1); hi.append(r & 1)
    return f"{op} {vr(d,2)}, {', '.join(ops)} op_sel:[{','.join(map(str,lo))}] op_sel_hi:[{','.join(map(str,hi))}]"
def gelu_tile(g, u, csg, csu, k, tmp, n=16, dst=None):
    for p in range(0, n, 2):
        e(pk("v_pk_fma_f32", g+p, [('b', k), ('p', csg+p), ('p', g+p)]))
        e(pk("v_pk_fma_f32", u+p, [('b', k), ('p', csu+p), ('p', u+p)]))
    for p in range(0, n, 2):
        e(pk("v_pk_mul_f32", tmp+p, [('p', g+p), ('p', g+p)]))
    for p in range(0, n, 2):
        e(pk("v_pk_fma_f32", tmp+p, [('p', tmp+p), ('b', k+2), ('b', k+1)]))
    for p in range(0, n, 2):
        e(pk("v_pk_mul_f32", tmp+p, [('p', tmp+p), ('p', g+p)]))
    for p in range(n): e(f"v_exp_f32 v{tmp+p}, v{tmp+p}")
    for p in range(0, n, 2):
        e(pk("v_pk_mul_f32", u+p, [('p', u+p), ('p', g+p)]))
    for p in range(0, n, 2):
        e(pk("v_pk_fma_f32", tmp+p, [('p', tmp+p), ('b', k+3), ('b', k+3)]))
    for p in range(n): e(f"v_rcp_f32 v{tmp+p}, v{tmp+p}")
    e("s_nop 0")
    for p in range(0, n, 2):
        e(pk("v_pk_mul_f32", u+p, [('p', u+p), ('p', tmp+p)]))
    for p in range(n//2): e(f"v_cvt_pk_bf16_f32 v{dst[p] if dst else g+p}, v{u+2*p}, v{u+2*p+1}")

def cs_read(d, slot_off):
    for q in range(4): e(f"ds_read_b128 {vr(d+4*q,4)}, v{vT3} offset:{slot_off+32*q}")

def lin_fold(acc, cs, negm, scale, n=16):
    for p in range(0, n, 2):
        e(pk("v_pk_fma_f32", acc+p, [('b', negm), ('p', cs+p), ('p', acc+p)]))
    for p in range(0, n, 2):
        e(pk("v_pk_mul_f32", acc+p, [('p', acc+p), ('b', scale)]))

def q_epilogue(cs):
    e(f"v_mul_f32 v{vSt+2}, {f2u(0.25*1.4426950408889634):#x}, v{vSt+1}")
    lin_fold(vAcc, cs, vSt+4, vSt+2)
    for p in range(8): e(f"v_cvt_pk_bf16_f32 v{vAcc+p}, v{vAcc+2*p}, v{vAcc+2*p+1}")
    e(f"""s_lshl_b32 s{sT0}, s{sW4}, 11
    s_add_u32 s{sT0}, s{sT0}, {QIMG}
    v_lshl_add_u32 v{vT0}, v{vLane}, 4, s{sT0}
    ds_write_b128 v{vT0}, {vr(vAcc,4)}
    ds_write_b128 v{vT0}, {vr(vAcc+4,4)} offset:1024""")


def rowstat_finish():
    a = vRs+8
    e(f"v_mov_b32 v{vT0}, 0x3f803f80")
    for k in range(4):
        for r in range(2):
            x = vRs+4*r+k
            c0 = "0" if k == 0 else f"v{a+2*r}"; c1 = "0" if k == 0 else f"v{a+2*r+1}"
            e(f"v_dot2_f32_bf16 v{a+2*r}, v{x}, v{vT0}, {c0}\nv_dot2_f32_bf16 v{a+2*r+1}, v{x}, v{x}, {c1}")
    e("s_nop 2")
    for ctl in ("row_shr:1", "row_shr:2", "row_shr:4", "row_shr:8"):
        for k in range(4): e(f"v_add_f32_dpp v{a+k}, v{a+k}, v{a+k} {ctl} row_mask:0xf bank_mask:0xf bound_ctrl:0")
    for ctl in ("row_bcast:15 row_mask:0xa", "row_bcast:31 row_mask:0xc"):
        for k in range(4): e(f"v_add_f32_dpp v{a+k}, v{a+k}, v{a+k} {ctl} bank_mask:0xf")
    for r in range(2):
        d = vRs+4*r
        e(f"""v_mul_f32 v{d}, {f2u(1/512):#x}, v{a+2*r}
        v_mul_f32 v{d+1}, {f2u(1/512):#x}, v{a+2*r+1}
        v_fma_f32 v{d+1}, -v{d}, v{d}, v{d+1}
        v_max_f32 v{d+1}, 0, v{d+1}
        v_add_f32 v{d+1}, {f2u(1e-5):#x}, v{d+1}
        v_rsq_f32 v{d+1}, v{d+1}""")
def rowstat_post():
    e(f"""s_lshl_b32 s{sT0}, s{sW4}, 4
    s_add_u32 s{sT0}, s{sT0}, {STL}
    v_mov_b32 v{vT0}, s{sT0}
    s_mov_b32 exec_lo, 0
    s_brev_b32 exec_hi, 1
    ds_write_b64 v{vT0}, {vr(vRs,2)}
    ds_write_b64 v{vT0}, {vr(vRs+4,2)} offset:8
    s_mov_b64 exec, -1""")
def rowstat_store():
    for r in range(2): e(f"v_mov_b32 v{vRs+4*r+2}, s{sNo}\nv_mov_b32 v{vRs+4*r+3}, s{sNo+1}")
    e(f"""s_lshl_b32 s{sT0}, s{sRow}, 5
    s_add_u32 s{sT0}, s{sT0}, {STATG}
    s_mov_b32 exec_lo, 0
    s_brev_b32 exec_hi, 1
    buffer_store_dwordx4 {vr(vRs,4)}, off, {sr(SWS,4)}, s{sT0} sc1
    buffer_store_dwordx4 {vr(vRs+4,4)}, off, {sr(SWS,4)}, s{sT0} offset:16 sc1
    s_mov_b64 exec, -1""")
def kv_dma(tag):
    e(f"s_mul_i32 s{sT1}, s{sW4}, 3072")
    for n in range(3):
        e(f"s_add_u32 s{sT0}, s{sT1}, {12288*n}\ns_mov_b32 m0, s{sT0}\ns_nop 0")
        for k in range(3): e(f"buffer_load_dwordx4 v{vL16}, {sr(SWS,4)}, s{sT0} offen offset:{1024*k} sc1 lds")
def tr_lane(rowmul, d):
    e(f"""v_lshrrev_b32 v{vT0}, 4, v{vLane}
    v_bfe_u32 v{vT1}, v{vLane}, 2, 2
    v_lshl_add_u32 v{vT0}, v{vT0}, 3, v{vT1}
    v_mul_u32_u24 v{vT0}, {rowmul}, v{vT0}
    v_bfe_u32 v{vT1}, v{vLane}, 4, 1
    v_lshl_add_u32 v{vT0}, v{vT1}, 5, v{vT0}
    v_and_b32 v{vT1}, 3, v{vLane}
    v_lshl_add_u32 v{d}, v{vT1}, 3, v{vT0}""")
def ones_col0(d):
    e(f"""v_and_b32 v{vT0}, 15, v{vLane}
    v_cmp_eq_u32 vcc, 0, v{vT0}
    v_mov_b32 v{vT1}, 0x3f803f80
    s_nop 0
    v_cndmask_b32 v{d}, 0, v{vT1}, vcc""")
    for k in range(1, 4): e(f"v_mov_b32 v{d+k}, v{d}")
def rot_delta():
    return f"s_add_u32 s{sRb}, s{sRb}, 1\ns_cmp_eq_u32 s{sRb}, 3\ns_cselect_b32 s{sDl}, s{sC3}, {STG}\ns_cselect_b32 s{sRb}, 0, s{sRb}"
def cs16_write(accs, slot0_sreg, stride):
    e(f"v_add_u32 v{vT0}, s{slot0_sreg}, v{vLane}\ns_mov_b32 exec_lo, 0x00010001\ns_mov_b32 exec_hi, 0x00010001")
    for n, a in enumerate(accs): e(f"ds_write_b128 v{vT0}, {vr(a,4)} offset:{stride*n}")
    e("s_mov_b64 exec, -1")

ROT = int(sys.argv[sys.argv.index("--rot")+1]) if "--rot" in sys.argv else 7
sKs = 84
C0 = "--c0" in sys.argv
NR = 7 if C0 else 8
def dma_x():
    return [f"s_add_u32 m0, s{sLb}, s{sMx}", f"s_add_u32 s{sT0}, s{sXo}, 16384",
            f"buffer_load_dwordx4 v{vXa0}, {sr(SX,4)}, s{sXo} offen lds",
            f"buffer_load_dwordx4 v{vXa1}, {sr(SX,4)}, s{sXo} offen offset:1024 lds",
            "s_add_u32 m0, m0, 2048", f"s_add_u32 s{sXo}, s{sXo}, 128",
            f"buffer_load_dwordx4 v{vXa0}, {sr(SX,4)}, s{sT0} offen lds",
            f"buffer_load_dwordx4 v{vXa1}, {sr(SX,4)}, s{sT0} offen offset:1024 lds"]
def dma_w():
    r = []
    for k, sd in enumerate((SWG, SWU)):
        r += [f"s_add_u32 m0, s{sLb}, s{sMw}" if k == 0 else f"s_add_u32 m0, m0, {UOFF-GOFF}", "s_nop 0",
              f"buffer_load_dwordx4 v{vWa0}, {sr(sd,4)}, s{sWo} offen lds",
              f"buffer_load_dwordx4 v{vWa1}, {sr(sd,4)}, s{sWo} offen offset:1024 lds",
              f"buffer_load_dwordx4 v{vWa2}, {sr(sd,4)}, s{sWo} offen offset:2048 lds"]
    r += [f"s_add_u32 m0, s{sLb}, s{sMq}", f"s_add_u32 s{sWo}, s{sWo}, {64*2752}",
          f"buffer_load_dwordx4 v{vQa}, {sr(SWQ,4)}, s{sQo} offen lds", f"s_add_u32 s{sQo}, s{sQo}, 65536",
          f"s_add_u32 s{sLb}, s{sLb}, {STG}", f"s_cmp_ge_u32 s{sLb}, {3*STG}", f"s_cselect_b32 s{sLb}, 0, s{sLb}"]
    if ROT:
        r += [f"s_add_u32 s{sKs}, s{sKs}, 1", f"s_cmp_eq_u32 s{sKs}, 8",
              f"s_cselect_b32 s{sT0}, {128*NR}, 0", f"s_cselect_b32 s{sT1}, {64*NR*2752}, 0", f"s_cselect_b32 s{sT2}, {64*NR*1024}, 0",
              f"s_sub_u32 s{sXo}, s{sXo}, s{sT0}", f"s_sub_u32 s{sWo}, s{sWo}, s{sT1}", f"s_sub_u32 s{sQo}, s{sQo}, s{sT2}"]
    return r
e(f"s_mov_b32 s{sLb}, 0\ns_lshl_b32 s{sMx}, s{sW4}, 12")
if ROT and "--rm" in sys.argv: e(f"s_lshl_b32 s{sKs}, s{sI if M48 else sJ}, 1\ns_add_u32 s{sKs}, s{sKs}, s{sJ if M48 else sI}\ns_and_b32 s{sKs}, s{sKs}, {ROT}")
RM = sys.argv[sys.argv.index("--rm")+1] if "--rm" in sys.argv else "a"
if RM == "a":
    e(f"""s_xor_b32 s{sKs}, s{sI}, s{sJ}
    s_and_b32 s{sKs}, s{sKs}, 1
    s_lshl_b32 s{sKs}, s{sKs}, 2
    s_lshr_b32 s{sT0}, s{sI}, 1
    s_xor_b32 s{sT0}, s{sT0}, s{sJ}
    s_lshr_b32 s{sT0}, s{sT0}, 1
    s_and_b32 s{sT0}, s{sT0}, 2
    s_or_b32 s{sKs}, s{sKs}, s{sT0}""")
if RM == "b":
    e(f"""s_add_u32 s{sKs}, s{sI}, s{sJ}
    s_and_b32 s{sKs}, s{sKs}, 3
    s_lshl_b32 s{sKs}, s{sKs}, 1
    s_lshr_b32 s{sT0}, s{sI}, 1
    s_xor_b32 s{sT0}, s{sT0}, s{sJ}
    s_bfe_u32 s{sT0}, s{sT0}, 0x10002
    s_or_b32 s{sKs}, s{sKs}, s{sT0}""")
if RM == "c":
    e(f"""s_lshr_b32 s{sKs}, s{sI}, 3
    s_lshl_b32 s{sKs}, s{sKs}, 2
    s_lshr_b32 s{sT0}, s{sJ}, 2
    s_lshl_b32 s{sT0}, s{sT0}, 1
    s_add_u32 s{sKs}, s{sKs}, s{sT0}
    s_and_b32 s{sKs}, s{sKs}, 7""")
if ROT and C0: e(f"s_cmp_eq_u32 s{sKs}, 7\ns_cselect_b32 s{sKs}, 3, s{sKs}")
def rot_x(): e(f"s_lshl_b32 s{sT0}, s{sKs}, 7\ns_add_u32 s{sXo}, s{sXo}, s{sT0}")
def rot_w(): e(f"s_mul_i32 s{sT0}, s{sKs}, {64*2752}\ns_add_u32 s{sWo}, s{sWo}, s{sT0}\ns_lshl_b32 s{sT0}, s{sKs}, 16\ns_add_u32 s{sQo}, s{sQo}, s{sT0}")
if ROT and not C0: rot_x()
for k, r in enumerate((vWa0, vWa1, vWa2)):
    e(f"""v_add_u32 v{vT0}, {64*k}, v{vLane}
    v_mul_u32_u24 v{vT1}, 43691, v{vT0}
    v_lshrrev_b32 v{vT1}, 19, v{vT1}
    v_mul_u32_u24 v{vT2}, 12, v{vT1}
    v_sub_u32 v{vT0}, v{vT0}, v{vT2}
    v_lshrrev_b32 v{vT2}, 2, v{vT1}
    v_and_b32 v{vT2}, 2, v{vT2}
    v_xor_b32 v{vT0}, v{vT0}, v{vT2}
    v_mul_u32_u24 v{vT1}, 2752, v{vT1}
    v_lshl_add_u32 v{r}, v{vT0}, 4, v{vT1}""")
    if k: e(f"v_subrev_u32 v{r}, {1024*k}, v{r}")
e(f"""v_lshrrev_b32 v{vT0}, 2, v{vLane}
v_lshlrev_b32 v{vT0}, 10, v{vT0}
v_and_b32 v{vT1}, 3, v{vLane}
v_lshlrev_b32 v{vT2}, 1, v{vH}
v_xor_b32 v{vT1}, v{vT1}, v{vT2}
v_lshl_add_u32 v{vQa}, v{vT1}, 4, v{vT0}
s_mul_i32 s{sT0}, s{sJ}, 96
s_min_u32 s{sT0}, s{sT0}, 1280
s_lshl_b32 s{sT0}, s{sT0}, 1
s_mul_i32 s{sWo}, s{sW4}, {16*2752}
s_add_u32 s{sWo}, s{sWo}, s{sT0}
s_lshl_b32 s{sQo}, s{sW4}, 14
s_lshl_b32 s{sT0}, s{sJ}, 6
s_add_u32 s{sQo}, s{sQo}, s{sT0}
s_mul_i32 s{sMw}, s{sW4}, 3072
s_add_u32 s{sMw}, s{sMw}, {GOFF}
s_lshl_b32 s{sMq}, s{sW4}, 10
s_add_u32 s{sMq}, s{sMq}, {QOFF}""")
if ROT and not C0: rot_w()
e("s_waitcnt lgkmcnt(0)")
entry_stamp()
for x in dma_x(): e(x)
w0 = dma_w()
if ROT and C0:
    k = w0.index(f"s_add_u32 s{sKs}, s{sKs}, 1")
    for x in w0[:k]: e(x)
    rot_x(); rot_w(); e(w0[k])
else:
    for x in w0: e(x)
for x in dma_x() + dma_w(): e(x)
TG = "--oldtag" not in sys.argv
if TG:
    e(f"s_cmp_eq_u32 s{sW}, 0\ns_cselect_b32 s{sKf}, 2, 0\ns_cbranch_scc0 Lnt0")
    e(tag_issue())
    e("Lnt0:")
else: e(tag_issue())
late_srd(LS_A)
hF = 30
e(f"""s_lshl_b32 s{sT0}, s{sW4}, 2
s_add_u32 s{sT0}, s{sT0}, {KFL}
v_mov_b32 v{hF}, s{sT0}
v_mov_b32 v{hF+1}, 0
v_mov_b32 v{vT0}, {KFL}
ds_write_b32 v{hF}, v{hF+1}
ds_write_b32 v{vT0}, v{hF+1} offset:16""")
hW = 32
e(f"s_mov_b32 s{sSt}, 0\ns_mov_b32 s{sRb}, 0\ns_mov_b32 s{sC3}, {(-2*STG) & 0xffffffff}")
if "--hp3" in sys.argv: e("s_setprio 3")
tstamp(21)
if TG: e(f"s_waitcnt vmcnt(12) lgkmcnt(0)\ns_cmp_eq_u32 s{sW}, 0\ns_cbranch_scc1 Lnt1\ns_waitcnt vmcnt(11)\nLnt1:")
else: e("s_waitcnt vmcnt(12) lgkmcnt(0)")
tstamp(23); e("s_barrier")
stamp(12); tflush(); TS.clear()
W11 = f"s_waitcnt vmcnt(12)\ns_cmp_le_u32 s{sSt}, s{sKf}\ns_cbranch_scc1 Lw12\ns_waitcnt vmcnt(11)\nLw12:" if TG else "s_waitcnt vmcnt(11)"
def helper_loop(cs):
    t = "c" if cs else "n"
    e(f"Lhl{t}:")
    if cs:
        rd, m = cs_parts()
        for x in rd: e(x)
        e(rot_delta())
        for x in dma_x(): e(x)
        e(f"v_add_u32 v{hA}, s{sDl}, v{hA}\nv_add_u32 v{hA+1}, s{sDl}, v{hA+1}\ns_waitcnt lgkmcnt(0)")
        w = dma_w(); k = 0
        for x in w:
            e(x)
            if "buffer_load" in x: e(m[k]); k += 1
        for x in m[k:]: e(x)
    else:
        for x in dma_x() + dma_w():
            if "--nodma" in sys.argv and "buffer_load" in x: continue
            e(x)
            if "--pace" in sys.argv and "buffer_load" in x: e("s_sleep 1")
        e(f"s_or_b32 s{sT0}, s{sSt}, s{sW}\ns_cmp_lg_u32 s{sT0}, 0\ns_cbranch_scc1 Lnpub")
        e(f"v_lshlrev_b32 v{vT0}, 3, v{vLane}\nv_add_u32 v{vT0}, {STL}, v{vT0}\nds_read_b64 {vr(hW,2)}, v{vT0}")
        tag_wait("p", 11)
        e(f"""v_mov_b32 v{hW+2}, s{sNo}
        v_mov_b32 v{hW+3}, s{sNo+1}
        s_lshl_b32 s{sT0}, s{sRow}, 5
        s_add_u32 s{sT0}, s{sT0}, {STATG}
        s_mov_b64 exec, 0xff
        s_waitcnt lgkmcnt(0)
        buffer_store_dwordx4 {vr(hW,4)}, v{vL16}, {sr(SWS,4)}, s{sT0} offen sc1
        s_mov_b64 exec, -1
        Lnpub:""")
        if not FS:
            e(f"s_cmp_lg_u32 s{sSt}, 2\ns_cbranch_scc1 Lnini")
            a_sent()
            e("Lnini:")
    e(f"""s_add_u32 s{sSt}, s{sSt}, 1
    {W11}
    s_barrier
    {tk(81)}
    s_cmp_lt_u32 s{sSt}, 6
    s_cbranch_scc1 Lhl{t}""")
helper_loop(False)
tkout()
def st_loads():
    return f"""buffer_load_dwordx4 {vr(hW,4)}, v{vL16}, {sr(SWS,4)}, s{sC0} offen sc1
    buffer_load_dwordx4 {vr(hW+4,4)}, v{vL16}, {sr(SWS,4)}, s{sC0} offen offset:1024 sc1"""
e(f"s_lshl_b32 s{sC0}, s{sI}, 11\ns_add_u32 s{sC0}, s{sC0}, {STATG}\ns_mov_b32 s{sKf}, {KFLG}\nv_mov_b32 v{hF+1}, 1")
if TG: e(tag_issue())
e(f"s_cmp_lg_u32 s{sW}, 1\ns_cbranch_scc1 Lhn0\n{st_loads()}\nLhn0:")
if FS: a_sent()
a_addr(); fin_init()
tag_wait("h", 0)
e(f"""s_cmp_lg_u32 s{sW}, 1
s_cbranch_scc1 Lhns
s_mov_b32 s{sT0}, 0
s_branch Lhs1
Lhs:
{st_loads()}
s_waitcnt vmcnt(0)
Lhs1:
s_add_u32 s{sT0}, s{sT0}, 1
v_cmp_ne_u64 vcc, s[{sNo}:{sNo+1}], {vr(hW+2,2)}
v_cmp_ne_u64 s[{sEx}:{sEx+1}], s[{sNo}:{sNo+1}], {vr(hW+6,2)}
s_or_b64 vcc, vcc, s[{sEx}:{sEx+1}]
s_cmp_ge_u32 s{sT0}, 100000
s_cbranch_scc1 Lhns
s_cbranch_vccnz Lhs
Lhns:""")
LATEP = "--latep" in sys.argv
if not LATEP: e(flags_issue(sKf))
e(f"s_mov_b32 s{sSt}, 1\ns_barrier")
if LATEP: e(flags_issue(sKf))
def kv_try(tag):
    e(f"""s_cmp_eq_u32 s{sSt}, 0
    s_cbranch_scc1 Lkt2_{tag}
    s_waitcnt vmcnt(0)
    v_cmp_ne_u64 vcc, s[{sNo}:{sNo+1}], {vr(vPoll,2)}
    s_cbranch_vccnz Lkt1_{tag}""")
    kv_dma(tag)
    e(f"v_mov_b32 v{vT0}, {KFL}\nds_write_b32 v{vT0}, v{hF+1} offset:16\ns_mov_b32 s{sSt}, 0\ns_branch Lkt2_{tag}\nLkt1_{tag}:")
    e(flags_issue(sKf))
    e(f"Lkt2_{tag}:")
e(f"s_cmp_lg_u32 s{sW}, 1\ns_cbranch_scc1 Lhnc")
gelu_consts(hW, hW+1, hW+8); gelu_consts(hW+4, hW+5, hW+12)
e(f"""v_add_u32 v{vT0}, {STATM}, v{vL16}
ds_write_b128 v{vT0}, {vr(hW+8,4)}
ds_write_b128 v{vT0}, {vr(hW+12,4)} offset:1024
Lhnc:""")
kv_try("a")
e("s_waitcnt lgkmcnt(0)\ns_barrier")
if not LATEP: kv_try("b")
stamp(1)
e("s_waitcnt lgkmcnt(0)\ns_barrier\ns_branch Lp2")

cX = [8, 24]; cW = 40; cRX, cRW, cRQ = 68, 70, 72; cCs = 76; cO = 92; cA = 96
e("Lcomp:")
entry_stamp(True)
late_srd(LS_F)
e(f"""v_and_b32 v{vT0}, 15, v{vLane}
v_lshrrev_b32 v{vT1}, 1, v{vT0}
v_lshrrev_b32 v{vT2}, 4, v{vLane}
v_xor_b32 v{vT1}, v{vT1}, v{vT2}
v_lshlrev_b32 v{vT0}, 7, v{vT0}
s_and_b32 s{sT0}, s{sW}, 1
s_lshl_b32 s{sT0}, s{sT0}, 13
v_add_u32 v{vT0}, s{sT0}, v{vT0}
v_lshl_add_u32 v{cRX}, v{vT1}, 4, v{vT0}
v_xor_b32 v{cRX+1}, 64, v{cRX}""")
tr_lane(192, cRW)
e(f"""s_lshl_b32 s{sT1}, s{sW}, 4
s_and_b32 s{sT1}, s{sT1}, 32
v_xor_b32 v{cRW}, s{sT1}, v{cRW}
v_xor_b32 v{cRW+1}, 32, v{cRW}
s_lshl_b32 s{sT2}, s{sT1}, 1
v_add_u32 v{cRW}, s{sT2}, v{cRW}
s_lshl_b32 s{sT2}, s{sT1}, 2
v_add_u32 v{cRW+1}, s{sT2}, v{cRW+1}""")
tr_lane(64, cRQ); e(f"v_xor_b32 v{cRQ}, s{sT1}, v{cRQ}")
ones_col0(cO)
cO1 = 208
for k in range(4): e(f"v_mov_b32 v{cO1+k}, 0x3f803f80")
cEh, cEs, cEq = 73, 74, 75
cEc, cEw = 212, 213
e(f"""s_bfe_u32 s{sT2}, s{sW}, 0x10001
s_mul_i32 s{sT2}, s{sT2}, 448
s_add_u32 s{sT2}, s{sT2}, {CSUM}
s_and_b32 s{sT1}, s{sW}, 1
s_lshl_b32 s{sT1}, s{sT1}, 6
s_sub_u32 s{sT1}, s{sT2}, s{sT1}
v_and_b32 v{cEc}, 48, v{vLane}
v_add_u32 v{cEc}, s{sT2}, v{cEc}
v_add_u32 v{cEw}, s{sT1}, v{vLane}""")
e(f"""s_lshl_b32 s{sT0}, s{sI}, 2
s_and_b32 s{sT1}, s{sW}, 1
s_lshl_b32 s{sT1}, s{sT1}, 1
s_add_u32 s{sT0}, s{sT0}, s{sT1}
s_mul_i32 s{sT0}, s{sT0}, 88
s_mul_i32 s{sT1}, s{sJ}, 6
s_min_u32 s{sT1}, s{sT1}, 80
s_bfe_u32 s{sT2}, s{sW}, 0x10001
s_mul_i32 s{sT2}, s{sT2}, 3
s_add_u32 s{sT1}, s{sT1}, s{sT2}
s_and_b32 s{sT2}, s{sW}, 2""")
for add, dst in enumerate((sC0, sC1, sC2)):
    e(f"""s_add_u32 s{sT3}, s{sT1}, {add}
    s_lshr_b32 s{dst}, s{sT3}, 2
    s_add_u32 s{dst}, s{dst}, s{sT0}
    s_and_b32 s{sT3}, s{sT3}, 3
    s_mul_i32 s{sT3}, s{sT3}, 22
    s_add_u32 s{dst}, s{dst}, s{sT3}
    s_lshl_b32 s{dst}, s{dst}, 10
    s_add_u32 s{dst}, s{dst}, {HIMG}""")
e(f"""v_bfe_u32 v{vT0}, v{vLane}, 4, 1
v_lshlrev_b32 v{vT0}, 9, v{vT0}
v_and_b32 v{vT1}, 15, v{vLane}
v_lshl_add_u32 v{vT0}, v{vT1}, 4, v{vT0}
v_lshl_add_u32 v{cEh}, v{vH}, 8, v{vT0}
s_and_b32 s{sT0}, s{sW}, 1
s_lshl_b32 s{sT1}, s{sT0}, 10
s_add_u32 s{sT1}, s{sT1}, {STATM}
v_lshl_add_u32 v{cEs}, v{vT1}, 4, s{sT1}
s_lshl_b32 s{sT0}, s{sT0}, 12
s_lshl_b32 s{sT2}, s{sT2}, 9
s_add_u32 s{sT0}, s{sT0}, s{sT2}
s_add_u32 s{sT0}, s{sT0}, {QIMG}
v_lshl_add_u32 v{vT0}, v{vH}, 3, v{vT0}
v_add_u32 v{cEq}, s{sT0}, v{vT0}""")
f_init()
for r in list(range(cCs, cCs+16, 2)) + [r for r in range(cA, cA+112, 2) if not vRs <= r < vRs+16]: e(f"v_mov_b64 {vr(r,2)}, 0")
tstamp(13)
e("s_waitcnt vmcnt(0)")
tstamp(21)
rowstat_finish()
rowstat_post()
tstamp(23)
if "--touch" in sys.argv:
    e(f"""s_and_b32 s{sT2}, s{sI}, 7
    s_mul_i32 s{sT2}, s{sT2}, 48
    s_add_u32 s{sT2}, s{sT2}, 128
    s_cmp_ge_u32 s{sW}, 6
    s_cbranch_scc1 Ltc6
    v_lshrrev_b32 v{vT0}, 1, v{vLane}
    v_mul_u32_u24 v{vT0}, 2752, v{vT0}
    v_and_b32 v{vT1}, 1, v{vLane}
    v_lshl_add_u32 v{vT0}, v{vT1}, 7, v{vT0}
    s_mul_i32 s{sT0}, s{sJ}, 96
    s_min_u32 s{sT0}, s{sT0}, 1280
    s_lshl_b32 s{sT0}, s{sT0}, 1
    s_mul_i32 s{sT2}, s{sT2}, 2752
    s_add_u32 s{sT0}, s{sT0}, s{sT2}
    s_add_u32 s{sT1}, s{sT0}, {32*2752}
    s_cmp_eq_u32 s{sW}, 5
    s_cbranch_scc1 Ltc5
    buffer_load_dword v79, v{vT0}, {sr(SWG,4)}, s{sT0} offen
    s_mov_b32 exec_hi, 0
    buffer_load_dword v79, v{vT0}, {sr(SWG,4)}, s{sT1} offen
    s_branch Ltce
    Ltc5:
    buffer_load_dword v79, v{vT0}, {sr(SWU,4)}, s{sT0} offen
    s_mov_b32 exec_hi, 0
    buffer_load_dword v79, v{vT0}, {sr(SWU,4)}, s{sT1} offen
    s_branch Ltce
    Ltc6:
    s_cmp_eq_u32 s{sW}, 7
    s_cbranch_scc1 Ltc7
    v_lshrrev_b32 v{vT0}, 1, v{vLane}
    v_lshlrev_b32 v{vT0}, 10, v{vT0}
    v_and_b32 v{vT1}, 1, v{vLane}
    v_lshl_add_u32 v{vT0}, v{vT1}, 7, v{vT0}
    s_lshl_b32 s{sT0}, s{sI}, 17
    s_and_b32 s{sT1}, s{sJ}, 3
    s_lshl_b32 s{sT1}, s{sT1}, 15
    s_add_u32 s{sT0}, s{sT0}, s{sT1}
    buffer_load_dword v79, v{vT0}, {sr(SX,4)}, s{sT0} offen offset:256
    buffer_load_dword v79, v{vT0}, {sr(SX,4)}, s{sT0} offen offset:512
    buffer_load_dword v79, v{vT0}, {sr(SX,4)}, s{sT0} offen offset:768
    s_branch Ltce
    Ltc7:
    v_lshlrev_b32 v{vT0}, 10, v{vLane}
    s_lshl_b32 s{sT2}, s{sT2}, 10
    s_lshl_b32 s{sT0}, s{sJ}, 6
    s_add_u32 s{sT0}, s{sT0}, s{sT2}
    s_mov_b32 exec_hi, 0xffff
    buffer_load_dword v79, v{vT0}, {sr(SWQ,4)}, s{sT0} offen
    Ltce:
    s_mov_b64 exec, -1""")
e("s_nop 1")
for r in range(vRs, vRs+16, 2): e(f"v_mov_b64 {vr(r,2)}, 0")
e(f"s_mov_b32 s{sSt}, 0\ns_mov_b32 s{sRb}, 0\ns_mov_b32 s{sC3}, {(-2*STG) & 0xffffffff}\ns_setprio 2")
e(f"s_bitcmp1_b32 s{sW}, 0\ns_cbranch_scc1 Lcl1")
NF = 7
def comp_loop(var):
    tag = f"{var}"
    def wrd(n, k2):
        if n == 0: a, o, rs = cRQ, QOFF, 64
        else:
            t = (n-1) % 3
            a, o, rs = cRW+(t & 1), (GOFF if n < 4 else UOFF) + (t >> 1)*64, 192
        return tr(cW+4*n, a, o+32*k2*rs) + tr(cW+4*n+2, a, o+(32*k2+4)*rs)
    def xrd(k2): return [f"ds_read_b128 {vr(cX[k2]+4*u,4)}, v{cRX+k2} offset:{2048*u}" for u in range(4)]
    def mm(n, k2):
        r = [mfma16(cA+28*u+4*n, cW+4*n, cX[k2]+4*u) for u in range(4)]
        if n == 0: r.append(mfma16(cCs, cW, cO1))
        elif (n & 1) == var: r.append(mfma16(cCs+4*((n+1) >> 1), cW+4*n, cO))
        return r
    e("s_waitcnt lgkmcnt(0)\ns_barrier")
    for x in xrd(0) + sum([wrd(n, 0) for n in range(NF)], []): e(x)
    e(f"s_waitcnt lgkmcnt(0)\n.p2align 3\nLc_{tag}:")
    adr = [f"v_add_u32 v{r}, s{sDl}, v{r}" for r in (cRX, cRX+1, cRW, cRW+1, cRQ)]
    ctl = rot_delta().split("\n") + [f"s_add_u32 s{sSt}, s{sSt}, 1"]
    BARG = 2
    def build(order0):
        out = []; q = []; issued = list(order0)
        def need(tagname):
            idx = max(i for i, t in enumerate(issued) if t == tagname)
            return len(issued)-1-idx
        def push(tagname, lst): q.extend((tagname, x) for x in lst)
        lastN = [99]
        for k2 in range(2):
            if k2 == 0: push("x1", xrd(1))
            for n in range(NF):
                if k2 == 1 and n == BARG:
                    while q:
                        t, x = q.pop(0); out.append(x)
                        if t: issued.append(t)
                    out.append(f"s_waitcnt lgkmcnt(0)\n{tk(None)}\ns_barrier\n{tk(81)}")
                    issued.clear(); issued.extend(["done"])
                    push("x0", xrd(0))
                    for m in range(BARG): push(f"w{m}0", wrd(m, 0))
                reqs = [f"w{n}{k2}"] + ([f"x{k2}"] if n == 0 else [])
                for r in reqs: assert all(t != r for t, _ in q), (r, k2, n)
                ns = [need(r) for r in reqs if r in issued]
                if ns and n % 2 == 0 or ns and min(ns) < lastN[0]:
                    nxt = f"w{n+1}{k2}"
                    if nxt in issued and all(t != nxt for t, _ in q): ns.append(need(nxt))
                    N = min(min(ns), 15); out.append(f"s_waitcnt lgkmcnt({N})"); lastN[0] = N
                for x in mm(n, k2):
                    out.append(x)
                    if q:
                        t, y = q.pop(0); out.append(y)
                        if t: issued.append(t); lastN[0] += 1
                if k2 == 0:
                    push(f"w{n}1", wrd(n, 1))
                    if n == 3: push(None, ctl)
                    if n == NF-1: push(None, adr)
                elif n >= BARG: push(f"w{n}0", wrd(n, 0))
        while q:
            t, x = q.pop(0); out.append(x)
            if t: issued.append(t)
        return out, issued
    _, steady = build([])
    out, _ = build(steady)
    for x in out: e(x)
    e(f"s_cmp_lt_u32 s{sSt}, 8\ns_cbranch_scc1 Lc_{tag}")
    tkout()
eC, eK, eT = 8, 40, 56
comp_loop(0)
e("s_branch Lcle\nLcl1:")
comp_loop(1)
e("Lcle:")
tstamp(1)
for u in range(4): e(f"ds_read_b128 {vr(eK+4*u,4)}, v{cEs} offset:{256*u}")
e(f"""s_nop 2
s_mov_b32 exec_lo, 0x00010001
s_mov_b32 exec_hi, 0x00010001
ds_write_b128 v{cEw}, {vr(cCs+4,4)} offset:128
ds_write_b128 v{cEw}, {vr(cCs+8,4)} offset:256
ds_write_b128 v{cEw}, {vr(cCs+12,4)} offset:384
s_mov_b64 exec, -1
s_waitcnt lgkmcnt(3)""")
for u in range(4): e(f"v_mul_f32 v{eT+u}, {f2u(0.25*1.4426950408889634/C1):#x}, v{eK+4*u+1}")
for u in range(4):
    for p in (0, 2): e(pk("v_pk_fma_f32", cA+28*u+p, [('b', eK+4*u), ('p', cCs+p), ('p', cA+28*u+p)]))
for u in range(4):
    for p in (0, 2): e(pk("v_pk_mul_f32", cA+28*u+p, [('p', cA+28*u+p), ('b', eT+u)]))
for u in range(4):
    q = cA+28*u
    e(f"v_cvt_pk_bf16_f32 v{q}, v{q}, v{q+1}\nv_cvt_pk_bf16_f32 v{q+1}, v{q+2}, v{q+3}")
for u in range(4): e(f"ds_write_b64 v{cEq}, {vr(cA+28*u,2)} offset:{2048*(u>>1)+256*(u&1)}")
e(f"v_mov_b32 v{vT0}, {KFL}\ns_waitcnt lgkmcnt(0)\ns_barrier")
e(f"ds_read_b32 v{vT1}, v{vT0} offset:16")
for n in range(1, NF): e(f"ds_read_b128 {vr(eC+4*n,4)}, v{cEc} offset:{64*n}")
e(f"s_waitcnt lgkmcnt(0)\nv_cmp_ne_u32 vcc, 0, v{vT1}")
gl0 = len(L)
for u in range(4):
    g = cA+28*u+4; P = cA+28*(u & 2)+4
    gelu_tile(g, g+12, eC+4, eC+16, eK+4*u, eT, 12, [P+4*(p//2)+2*(u & 1)+(p & 1) for p in range(6)])
    if u & 1:
        e("s_nop 0")
        for t in range(3):
            e(f"v_permlane32_swap_b32 v{P+4*t}, v{P+4*t+2}\nv_permlane32_swap_b32 v{P+4*t+1}, v{P+4*t+3}")
        for t, so in enumerate((sC0, sC1, sC2)):
            e(f"buffer_store_dwordx4 {vr(P+4*t,4)}, v{cEh}, {sr(SWS,4)}, s{so} offen sc1")
        if u == 1: e(f"v_add_u32 v{cEh}, {88*1024}, v{cEh}")
body = L[gl0:]; del L[gl0:]
e(f"s_lshl_b32 s{sT1}, s{sW4}, 12")
items = []
for n in range(12):
    t = f"s_cbranch_vccz Lgk{n}\n"
    if n % 2 == 0: t += f"s_add_u32 s{sT0}, s{sT1}, {36*1024+8192*n}\ns_mov_b32 m0, s{sT0}\ns_nop 0\n"
    for k in range(2): t += f"buffer_load_dwordx4 v{vL16}, {sr(SWS,4)}, s{sT0} offen offset:{1024*(2*(n%2)+k)} sc1 lds\n"
    items.append(t + f"Lgk{n}:")
cut = (len(body)*3)//4
for x in interleave(body[:cut], items) + body[cut:]: e(x)
e(f"""s_cbranch_vccnz Lgk
s_mov_b32 s{sT0}, 0
s_setprio 0
Lgw:
s_sleep 2
ds_read_b32 v{vT1}, v{vT0} offset:16
s_add_u32 s{sT0}, s{sT0}, 1
s_waitcnt lgkmcnt(0)
v_cmp_ne_u32 vcc, 0, v{vT1}
s_cmp_ge_u32 s{sT0}, 2000000
s_cbranch_scc1 LFkv
s_cbranch_vccz Lgw
s_branch LFkv
Lgk:""")
e(tag_issue())
stamp(2)
tflush(); TS.clear(); rt_out()
e("s_branch LF")

def cs_write(acc, slot_expr_sreg):
    e(f"""v_and_b32 v{vT0}, 1, v{vLane}
    v_lshlrev_b32 v{vT0}, 6, v{vT0}
    v_lshrrev_b32 v{vT1}, 4, v{vLane}
    v_lshl_add_u32 v{vT0}, v{vT1}, 4, v{vT0}
    v_add_u32 v{vT0}, {slot_expr_sreg}, v{vT0}
    s_mov_b32 exec_lo, 0x00030003
    s_mov_b32 exec_hi, 0x00030003
    ds_write_b128 v{vT0}, {vr(acc,4)}
    s_mov_b64 exec, -1""")
e("Lkvcu:")
entry_stamp(True)
e(tag_issue())
for x in kvx_dma(1): e(x)
late_srd(LS_A + LS_F)
e(f"""v_and_b32 v{vT0}, 31, v{vLane}
v_lshrrev_b32 v{vT1}, 1, v{vT0}
v_and_b32 v{vT1}, 7, v{vT1}
v_xor_b32 v{vT1}, v{vT1}, v{vH}
v_lshlrev_b32 v{vT0}, 7, v{vT0}
v_add_u32 v{vT0}, s{sXb}, v{vT0}""")
for ks in range(4):
    e(f"v_xor_b32 v{vT2}, {2*ks}, v{vT1}\nv_lshl_add_u32 v{vRX+ks}, v{vT2}, 4, v{vT0}")
e(f"""v_bfe_u32 v{vT0}, v{vLane}, 2, 2
v_lshl_add_u32 v{vT0}, v{vH}, 3, v{vT0}
v_bfe_u32 v{vT1}, v{vLane}, 4, 1
v_and_b32 v{vT2}, 3, v{vLane}
v_lshlrev_b32 v{vT2}, 3, v{vT2}
v_lshl_add_u32 v{vT3}, v{vT1}, 5, v{vT2}
v_lshl_add_u32 v{vRQ}, v{vT0}, 6, v{vT3}
v_lshlrev_b32 v{vT1}, 14, v{vT1}
v_lshl_add_u32 v{vRW}, v{vT0}, 5, v{vT2}
s_lshr_b32 s{sT0}, s{sW}, 2
s_lshl_b32 s{sT0}, s{sT0}, 13
s_add_u32 s{sT1}, s{sT0}, {WKV}
v_add3_u32 v{vRW}, v{vRW}, v{vT1}, s{sT1}
s_add_u32 s{sT1}, s{sT1}, s{sT0}
v_add_u32 v{vRQ}, s{sT1}, v{vRQ}
v_lshrrev_b32 v{vT0}, 2, v{vLane}
v_lshlrev_b32 v{vT0}, 10, v{vT0}
v_and_b32 v{vT1}, 3, v{vLane}
v_lshl_add_u32 v{vQa}, v{vT1}, 4, v{vT0}
v_bfe_u32 v{vT0}, v{vLane}, 4, 1
v_and_b32 v{vT1}, 15, v{vLane}
v_cmp_eq_u32 vcc, v{vT0}, v{vT1}
v_mov_b32 v{vT2}, 0x3f803f80
s_nop 0
v_cndmask_b32 v{vSel}, 0, v{vT2}, vcc""")
for k in range(1, 4): e(f"v_mov_b32 v{vSel+k}, v{vSel}")
for r in range(vCs, vCs+4): e(f"v_mov_b32 v{r}, 0")
e(f"s_waitcnt vmcnt(5) lgkmcnt(0)\ns_cmp_lt_u32 s{sW}, 4\ns_cbranch_scc1 Lkvr1")
rowstat_finish()
e("Lkvr1:\ns_barrier")
tstamp(12)
def kv_reads(c):
    r = []
    for ks in range(4):
        W = vWk + 16*(c & 1) + 4*ks
        r += [f"ds_read_b128 {vr(vXf+16*c+4*ks,4)}, v{vRX+ks} offset:{4096*c}"]
        r += tr(W, vRW, (64*c+16*ks)*32) + tr(W+2, vRW, (64*c+16*ks+4)*32)
    return r
def kstat_issue():
    return f"buffer_load_dwordx4 {vr(vSt,4)}, v{vWa0}, {sr(SWS,4)}, s{sC1} offen sc1"
for x in kv_reads(0) + kvx_dma(2) + kvx_dma(3): e(x)
e(f"""v_and_b32 v{vWa0}, 31, v{vLane}
v_lshlrev_b32 v{vWa0}, 4, v{vWa0}
s_lshl_b32 s{sT0}, s{sI}, 2
s_add_u32 s{sT0}, s{sT0}, s{sW4}
s_mul_i32 s{sC0}, s{sT0}, {KVT}
s_lshl_b32 s{sC1}, s{sT0}, 9
s_add_u32 s{sC1}, s{sC1}, {STATG}""")
if "--kvt" in sys.argv: e(f"s_mov_b32 s{sT0}, {64*KVT+1024}\nbuffer_load_dword v{vSt+8}, off, {sr(SWS,4)}, s{sT0}")
for c in range(4):
    m = []
    for ks in range(4):
        X = vXf+16*c+4*ks; W = vWk + 16*(c & 1) + 4*ks
        z = "0" if c == 0 and ks == 0 else None
        m += [mfma(vAcc+16, W, X, z), mfma16(vCs, W, vSel), mfma(vAcc+32, X, W, z)]
    e("s_waitcnt lgkmcnt(0)")
    if c < 3:
        wt = f"s_waitcnt vmcnt({8-4*c})"
        if c and "--kvw" in sys.argv:
            wt = f"s_waitcnt vmcnt({10-4*c})\ns_cmp_ge_u32 s{sW}, 4\ns_cbranch_scc1 Lkx{c}\n{wt}\nLkx{c}:"
        for x in m[:3] + [wt] + interleave(m[3:9], kv_reads(c+1)) + m[9:]: e(x)
        if c == 0:
            tag_wait("k", 8)
            e(f"s_cmp_lt_u32 s{sW}, 4\ns_cbranch_scc1 Lkvr2")
            rowstat_store()
            e("Lkvr2:")
    else:
        e(kstat_issue())
        for x in m: e(x)
tstamp(1)
e(f"""v_and_b32 v{vT2}, 31, v{vLane}
v_lshlrev_b32 v{vT2}, 2, v{vT2}
s_xor_b32 s{sT2}, s{sXb}, 65536
s_add_u32 s{sT1}, s{sXb}, 4352
s_lshl_b32 s{sQo}, s{sW}, 16
s_add_u32 s{sQo}, s{sQo}, {64*15}
s_lshl_b32 s{sMq}, s{sW}, 12
s_add_u32 s{sMq}, s{sMq}, {WKV}""")
cs_write(vCs, f"s{sT1}")
e(f"""v_add_u32 v{vT0}, s{sXb}, v{vL16}
v_add_u32 v{vWa1}, s{sT2}, v{vL16}
v_add_u32 v{vWa2}, s{sT2}, v{vT2}
v_lshl_add_u32 v{vT3}, v{vH}, 4, s{sXb}
s_cmp_ge_u32 s{sW}, 4
s_cbranch_scc1 LkvH""")
def wq_dma():
    for k in range(4):
        e(f"s_add_u32 m0, s{sMq}, {1024*k}\ns_add_u32 s{sT0}, s{sQo}, {16384*k}\nbuffer_load_dwordx4 v{vQa}, {sr(SWQ,4)}, s{sT0} offen lds")
def kstat_wait(tag):
    e(f"""s_mov_b32 s{sT0}, 0
    s_waitcnt vmcnt(0)
    Lks_{tag}:
    v_cmp_ne_u64 vcc, s[{sNo}:{sNo+1}], {vr(vSt+2,2)}
    s_add_u32 s{sT0}, s{sT0}, 1
    s_cmp_ge_u32 s{sT0}, 100000
    s_cbranch_vccz Lksd_{tag}
    s_cbranch_scc1 Lksd_{tag}
    {kstat_issue()}
    s_waitcnt vmcnt(0)
    s_branch Lks_{tag}
    Lksd_{tag}:""")
for q in range(4): e(f"ds_write_b128 v{vT0}, {vr(vAcc+32+4*q,4)} offset:{1024*q}")
e(f"v_xor_b32 v{vT1}, 0x10000, v{vT3}\ns_waitcnt lgkmcnt(0)\ns_barrier")
e(f"""ds_read_b128 {vr(vWk,4)}, v{vWa1}
ds_read_b128 {vr(vWk+4,4)}, v{vWa1} offset:1024
ds_read_b128 {vr(vSt+12,4)}, v{vT3} offset:{4352+64}
ds_read_b128 {vr(vSt+16,4)}, v{vT3} offset:{4352+96}
ds_read_b128 {vr(vWk+8,4)}, v{vT1} offset:{4352+64}
ds_read_b128 {vr(vWk+12,4)}, v{vT1} offset:{4352+96}""")
e(f"""v_and_b32 v{vT0}, 0x33, v{vLane}
v_bfe_u32 v{vT1}, v{vLane}, 2, 1
v_lshl_or_b32 v{vT0}, v{vT1}, 3, v{vT0}
v_bfe_u32 v{vT1}, v{vLane}, 3, 1
v_lshl_or_b32 v{vT0}, v{vT1}, 2, v{vT0}
v_lshlrev_b32 v{vT0}, 4, v{vT0}
s_waitcnt lgkmcnt(0)""")
for p in range(0, 8, 2):
    e(pk("v_pk_add_f32", vAcc+24+p, [('p', vAcc+24+p), ('p', vWk+p)]))
    e(pk("v_pk_add_f32", vSt+12+p, [('p', vSt+12+p), ('p', vWk+8+p)]))
kstat_wait("l")
e(f"v_sub_f32 v{vSt+4}, 0, v{vSt}")
lin_fold(vAcc+24, vSt+12, vSt+4, vSt+1, 8)
for p in range(4): e(f"v_cvt_pk_bf16_f32 v{vAcc+16+p}, v{vAcc+24+2*p}, v{vAcc+25+2*p}")
e(f"buffer_store_dwordx4 {vr(vAcc+16,4)}, v{vT0}, {sr(SWS,4)}, s{sC0} offen sc1\ns_branch LkvS")
e("LkvH:")
e(f"ds_write_b128 v{vT0}, {vr(vAcc+24,4)}\nds_write_b128 v{vT0}, {vr(vAcc+28,4)} offset:1024")
e(f"v_add_u32 v{vT1}, s{sXb}, v{vT2}\ns_waitcnt lgkmcnt(0)\ns_barrier")
e(f"ds_read_b32 v{vSt+6}, v{vT1} offset:4352\nds_read_b32 v{vSt+7}, v{vWa2} offset:4352")
for q in range(4): e(f"ds_read_b128 {vr(vAcc+48+4*q,4)}, v{vWa1} offset:{1024*q}")
tstamp(21)
kstat_wait("h")
tstamp(23)
e(f"ds_write_b32 v{vT1}, v{vSt} offset:4608\nds_write_b32 v{vT1}, v{vSt+1} offset:4736\ns_waitcnt lgkmcnt(0)")
for q in range(4):
    e(f"ds_read_b128 {vr(vWk+4*q,4)}, v{vT3} offset:{4608+32*q}\nds_read_b128 {vr(vWk+16+4*q,4)}, v{vT3} offset:{4736+32*q}")
e(f"v_add_f32 v{vSt+6}, v{vSt+6}, v{vSt+7}\nv_sub_f32 v{vSt+6}, 0, v{vSt+6}")
for p in range(0, 16, 2): e(pk("v_pk_add_f32", vAcc+32+p, [('p', vAcc+32+p), ('p', vAcc+48+p)]))
e("s_waitcnt lgkmcnt(0)")
for p in range(0, 16, 2): e(pk("v_pk_fma_f32", vAcc+32+p, [('p', vWk+p), ('b', vSt+6), ('p', vAcc+32+p)]))
for p in range(0, 16, 2): e(pk("v_pk_mul_f32", vAcc+32+p, [('p', vAcc+32+p), ('p', vWk+16+p)]))
for p in range(8): e(f"v_cvt_pk_bf16_f32 v{vAcc+32+p}, v{vAcc+32+2*p}, v{vAcc+33+2*p}")
v_lane_addr(vT0)
for p in range(8): e(f"v_mov_b32 v{vAcc+32+p}, 0x3f803f80")
e(f"""s_mov_b32 exec_lo, 0x1ffff
s_mov_b32 exec_hi, 0xffff
buffer_store_dwordx4 {vr(vAcc+32,4)}, v{vT0}, {sr(SWS,4)}, s{sC0} offen offset:1024 sc1
buffer_store_dwordx4 {vr(vAcc+36,4)}, v{vT0}, {sr(SWS,4)}, s{sC0} offen offset:{1024+528} sc1
s_mov_b64 exec, -1""")
tstamp(29)
e("LkvS:")
wq_dma()
for r in range(4): e(f"v_mov_b32 v{vCs+r}, 0")
e(f"s_lshl_b32 s{sT2}, s{sI}, 7\ns_add_u32 s{sT2}, s{sT2}, {KFLG}\ns_waitcnt vmcnt(4)\ns_barrier")
flag_set(sT2, "kv")
stamp(13)
tflush(); TS.clear(); rt_out()
e("s_waitcnt vmcnt(0)\ns_barrier")
def q_reads(c):
    r = []
    for ks in range(4):
        W = vWk + 16*(c & 1) + 4*ks
        r += tr(W, vRQ, (64*c+16*ks)*64) + tr(W+2, vRQ, (64*c+16*ks+4)*64)
    return r
for x in q_reads(0): e(x)
for c in range(4):
    m = []
    for ks in range(4):
        X = vXf+16*c+4*ks; W = vWk + 16*(c & 1) + 4*ks
        m += [mfma(vAcc, W, X, "0" if c == 0 and ks == 0 else None), mfma16(vCs, W, vSel)]
    e("s_waitcnt lgkmcnt(0)")
    for x in interleave(m[:4], q_reads(c+1) if c < 3 else []) + m[4:]: e(x)
e(f"""s_or_b32 s{sT2}, s{sXb}, {65536+8192}
s_lshr_b32 s{sT3}, s{sW}, 2
s_lshl_b32 s{sT3}, s{sT3}, 7
s_add_u32 s{sT1}, s{sT2}, s{sT3}
s_add_u32 s{sT1}, s{sT1}, 4096
v_add_u32 v{vWa1}, s{sT2}, v{vL16}
v_lshl_add_u32 v{vT3}, v{vH}, 4, s{sT2}
s_nop 3""")
cs_write(vCs, f"s{sT1}")
e(f"s_cmp_ge_u32 s{sW}, 4\ns_cbranch_scc1 LkvH2\ns_waitcnt lgkmcnt(0)\ns_barrier")
for q in range(4): e(f"ds_read_b128 {vr(vWk+4*q,4)}, v{vWa1} offset:{1024*q}")
cs_read(vAcc+48, 4096); cs_read(vWk+16, 4096+128)
e("s_waitcnt lgkmcnt(0)")
for p in range(0, 16, 2):
    e(pk("v_pk_add_f32", vAcc+p, [('p', vAcc+p), ('p', vWk+p)]))
    e(pk("v_pk_add_f32", vAcc+48+p, [('p', vAcc+48+p), ('p', vWk+16+p)]))
q_epilogue(vAcc+48)
a_init(); fin_init()
e("s_waitcnt lgkmcnt(0)\ns_barrier\ns_branch LaR\nLkvH2:")
for q in range(4): e(f"ds_write_b128 v{vWa1}, {vr(vAcc+4*q,4)} offset:{1024*q}")
e(f"s_mov_b32 s{sKf}, {KFLG}")
e(flags_issue(sKf))
e("s_waitcnt lgkmcnt(0)\ns_barrier")
f_init()
flags_wait(sKf, "kv2", 0)
kv_dma("c")
e("s_waitcnt vmcnt(0)\ns_barrier\ns_branch LFkv")

AAL = 6 if "--a6" in sys.argv else 3
vm = []
def vtag(tag): vm.append(tag)
def vwait_s(tag):
    idx = max(i for i, t in enumerate(vm) if t == tag)
    return f"s_waitcnt vmcnt({min(63, len(vm)-1-idx)})"
def emit_seq(seq):
    for x in seq:
        if isinstance(x, list): emit_seq(x)
        elif isinstance(x, tuple): vtag(x[0]); e(x[1])
        elif callable(x): e(x())
        else: e(x)
e(f"Lp2:\ns_setprio 3\ns_cmp_eq_u32 s{sSt}, 0\ns_cbranch_scc1 Lkvok")
stamp(16)
flags_wait(sKf, "kv", 0)
stamp(17)
kv_dma("d")
e(f"v_mov_b32 v{vT0}, {KFL}\nds_write_b32 v{vT0}, v{hF+1} offset:16")
e(f"""Lkvok:
v_mov_b32 v{vT0}, {KFL}
s_mov_b32 s{sT0}, 0
s_waitcnt vmcnt(0)
ds_write_b32 v{hF}, v{hF+1}
Lkw:
ds_read_b128 {vr(aS[0],4)}, v{vT0}
s_add_u32 s{sT0}, s{sT0}, 1
s_waitcnt lgkmcnt(0)
v_and_b32 v{aS[0]}, v{aS[0]}, v{aS[0]+1}
v_and_b32 v{aS[0]+2}, v{aS[0]+2}, v{aS[0]+3}
v_and_b32 v{aS[0]}, v{aS[0]}, v{aS[0]+2}
v_cmp_ne_u32 vcc, 0, v{aS[0]}
s_cmp_ge_u32 s{sT0}, 2000000
s_cbranch_scc1 LaR
s_cbranch_vccnz LaR
s_sleep 1
s_branch Lkw
LaR:""")
stamp(3)
e(f"""ds_read_b128 {vr(aQ[0],4)}, v{vAq}
ds_read_b128 {vr(aK[0],4)}, v{vAk}
ds_read_b128 {vr(aQ[1],4)}, v{vAq} offset:1024
ds_read_b128 {vr(aK[1],4)}, v{vAk} offset:{KVT}
ds_read_b128 {vr(aVl[0],4)}, v{vAv}
ds_read_b128 {vr(aVh[0],4)}, v{vAv} offset:528
s_waitcnt lgkmcnt(4)""")
e(mfma(aS[0], aK[0], aQ[0], "0"))
e("s_waitcnt lgkmcnt(3)")
e(mfma(aS[1], aK[0], aQ[1], "0"))
e("s_nop 9")
for b in range(2):
    t = vT0+2*b; S = aS[b]
    e(f"v_max3_f32 v{t}, v{S}, v{S+1}, v{S+2}")
    for p in range(3, 15, 2): e(f"v_max3_f32 v{t}, v{t}, v{S+p}, v{S+p+1}")
    e(f"v_max_f32 v{t}, v{t}, v{S+15}\nv_mov_b32 v{t+1}, v{t}")
e(f"""s_nop 1
v_permlane32_swap_b32 v{vT0}, v{vT1}
v_permlane32_swap_b32 v{vT2}, v{vT3}
s_mov_b32 s{sSt}, 0
v_max_f32 v{vT0}, v{vT0}, v{vT1}
v_max_f32 v{vT2}, v{vT2}, v{vT3}""")
for b in range(2):
    e(f"v_sub_f32 v{aC[b]}, 0, v{vT0+2*b}\nv_sub_f32 v{aC[b]+1}, 0, v{vT0+2*b}")
for r in range(16): e(f"v_sub_f32 v{aS[0]+r}, v{aS[0]+r}, v{vT0}")
for b in (1, 0):
    for r in range(2, 16, 2): e(f"v_mov_b64 {vr(aC[b]+r,2)}, {vr(aC[b],2)}")
e("s_setprio 1")
stamp(5)
e(f"v_exp_f32 v{aS[0]}, v{aS[0]}\nv_exp_f32 v{aS[0]+1}, v{aS[0]+1}\ns_branch La1\n.p2align {AAL}\nLa0:")
for n in range(32):
    b = n & 1; T = n >> 1
    X = aS[b]; Y = aS[b ^ 1]
    ex = [f"v_exp_f32 v{X+i}, v{X+i}" for i in range(16)]
    Tp = (n-1) >> 1; Tn = (n+1) >> 1
    seq = ex[0:2] + [smf(aO[b ^ 1], aVh[Tp & 1], Y+8, vIdx)] + (["La1:"] if n == 0 else []) + ex[2:5]
    seq += [mfma(Y, aK[Tn & 1], aQ[b ^ 1], vr(aC[b ^ 1], 16))]
    if b:
        rd = [f"ds_read_b128 {vr(aVl[(T+1)&1],4)}, v{vAv} offset:{(T+1)*KVT}",
              f"ds_read_b128 {vr(aVh[(T+1)&1],4)}, v{vAv} offset:{(T+1)*KVT+528}",
              f"ds_read_b128 {vr(aK[T&1],4)}, v{vAk} offset:{(T+2)*KVT}"]
        seq += rd + ex[5:10]
    else: seq += ["s_waitcnt lgkmcnt(0)"] + ex[5:10]
    seq += [smf(aO[b], aVl[T & 1], X, vIdx)] + ex[10:16]
    for x in seq: e(x)
if PROF:
    e(f"s_memtime s[{sTm}:{sTm+1}]\ns_lshl_b32 s{sT0}, s{sSt}, 2\ns_add_u32 s{sT0}, s{sT0}, s{sPo}\ns_waitcnt lgkmcnt(0)\nv_mov_b32 v0, s{sTm}\nbuffer_store_dword v0, off, {sr(SWS,4)}, s{sT0} offset:72")
e(f"""v_add_u32 v{vAk}, {16*KVT}, v{vAk}
v_add_u32 v{vAv}, {16*KVT}, v{vAv}
s_add_u32 s{sSt}, s{sSt}, 1
s_cmp_eq_u32 s{sSt}, 1
s_cbranch_scc0 La2
{'' if PROF else 's_waitcnt vmcnt(0)'}
s_barrier
s_branch La0
La2:
s_cmp_lt_u32 s{sSt}, 4
s_cbranch_scc1 La0""")
e(smf(aO[1], aVh[1], aS[1]+8, vIdx))
e(f"s_mov_b32 s{sC0}, {f2u(2.0**40):#x}\ns_mov_b32 s{sC1}, {f2u(2.0**126):#x}")
for b in range(2):
    O = aO[b]
    e(f"s_mov_b32 s{sRetry}, 0\nLfin{b}:")
    e(f"""v_rcp_f32 v{O+10}, v{O+8}
    v_max3_f32 v{vT1}, abs(v{O}), abs(v{O+1}), abs(v{O+2})
    v_max3_f32 v{vT1}, v{vT1}, abs(v{O+3}), abs(v{O+4})
    v_max3_f32 v{vT1}, v{vT1}, abs(v{O+5}), abs(v{O+6})
    v_max_f32 v{vT1}, v{vT1}, abs(v{O+7})
    v_cmp_nlt_f32 vcc, v{O+8}, s{sC0}
    v_cmp_nlt_f32 s[{sEx}:{sEx+1}], v{vT1}, s{sC1}""")
    for p in range(8): e(f"v_mul_f32 v{O+p}, v{O+p}, v{O+10}")
    e(f"s_or_b64 vcc, vcc, s[{sEx}:{sEx+1}]")
    for p in range(4): e(f"v_cvt_pk_bf16_f32 v{O+p}, v{O+2*p}, v{O+2*p+1}")
    for p in range(4): e(f"v_min_u32 v{O+p}, -2, v{O+p}")
    e(f"s_cbranch_vccnz Lfallback{b}\nLok{b}:")
    e(f"buffer_store_dwordx4 {vr(O,4)}, v{vL16}, {sr(SWS,4)}, s{sOp if b == 0 else sOp2} offen sc1")
stamp(6)
OSC = " sc1"
gX = [136, 140]; gG = [144, 176]; gR = [8, 40]
e(f"buffer_load_dwordx4 {vr(gX[0],4)}, v{vRa}, {sr(SX,4)}, s{sXf} offen")
e(f"buffer_load_dwordx4 {vr(gX[1],4)}, v{vRa}, {sr(SX,4)}, s{sXf2} offen")
e("s_waitcnt lgkmcnt(0)\ns_setprio 0\ns_barrier\ns_barrier")
stamp(8)
for tt in range(2):
    for q in range(8): e(f"ds_read_b128 {vr(gG[tt]+4*q,4)}, v{vRr} offset:{128*tt+XK*(q//2)+512*(q%2)}")
def sum4(r):
    for p in range(0, 8, 2):
        e(pk("v_pk_add_f32", r+p, [('p', r+p), ('p', r+8+p)]))
        e(pk("v_pk_add_f32", r+16+p, [('p', r+16+p), ('p', r+24+p)]))
    for p in range(0, 8, 2): e(pk("v_pk_add_f32", r+p, [('p', r+p), ('p', r+16+p)]))
for tt in range(2):
    G = gG[tt]
    e(f"s_waitcnt lgkmcnt({8*(1-tt)})")
    for p in range(8): e(f"v_add_f32 v{G+p}, v{G+p}, v{G+8+p}\nv_add_f32 v{G+16+p}, v{G+16+p}, v{G+24+p}")
    for p in range(8): e(f"v_add_f32 v{G+p}, v{G+p}, v{G+16+p}")
    for p in range(8): e(f"v_mul_f32 v{G+8+p}, {f2u(-1.4426950408889634):#x}, v{G+p}")
    for p in range(8): e(f"v_exp_f32 v{G+8+p}, v{G+8+p}")
    for p in range(8): e(f"v_add_f32 v{G+8+p}, 1.0, v{G+8+p}")
    for p in range(8): e(f"v_rcp_f32 v{G+8+p}, v{G+8+p}")
    e("s_waitcnt vmcnt(0)")
    for p in range(4): e(f"v_lshlrev_b32 v{G+16+2*p}, 16, v{gX[tt]+p}\nv_and_b32 v{G+17+2*p}, 0xffff0000, v{gX[tt]+p}")
    for p in range(8): e(f"v_mul_f32 v{G+p}, v{G+p}, v{G+8+p}")
stamp(9)
e("s_barrier")
for tt in range(2):
    for q in range(8): e(f"ds_read_b128 {vr(gR[tt]+4*q,4)}, v{vRr2} offset:{128*tt+XK*(q//2)+512*(q%2)}")
for tt in range(2):
    R = gR[tt]; G = gG[tt]
    e(f"s_waitcnt lgkmcnt({8*(1-tt)})")
    sum4(R)
    for p in range(0, 8, 2): e(pk("v_pk_fma_f32", R+p, [('p', R+p), ('p', G+p), ('p', G+16+p)]))
    for p in range(4): e(f"v_cvt_pk_bf16_f32 v{R+p}, v{R+2*p}, v{R+2*p+1}")
    e(f"buffer_store_dwordx4 {vr(R,4)}, v{vRa}, {sr(SOUT,4)}, s{sXf if tt == 0 else sXf2} offen{OSC}")
def the_end():
    stamp(11)
    if RT: e(f"s_waitcnt vmcnt(0)\ns_memrealtime s[100:101]\ns_waitcnt lgkmcnt(0)\nv_mov_b32 v0, s100\nbuffer_store_dword v0, off, {sr(SWS,4)}, s{sPo} offset:56")
the_end()
e("Lend:\ns_endpgm")

e("LFkv:")
kv_rest("k")
e("LF:")
if FS: a_sent(True)
tag_wait("f", 0)
e("s_setprio 0\ns_barrier")
flag_set(sHs, "h", 4)
RG = SP + [aslot(n) for n in range(4)]
def u_dma(m):
    srdw, row = (SWO, 64*m) if m < 8 else (SWD, 64*(m-8))
    return [f"s_add_u32 m0, s{sDm}, {RG[m % 7]}", f"s_add_u32 s{sT0}, s{sDo}, {row*1024}",
            (f"u{m}", f"buffer_load_dwordx4 v{vDa}, {sr(srdw,4)}, s{sT0} offen lds"),
            (f"u{m}", f"buffer_load_dwordx4 v{vDa2}, {sr(srdw,4)}, s{sT0} offen offset:1024 lds")]
def u_reads(m, F):
    a = RG[m % 7]; win = 1 if a >= SP[0] else 0; off = a - win*SP[0]
    r0, r1 = vRd+2*win, vRd+2*win+1
    return tr(F, r0, off) + tr(F+2, r0, off+1024) + tr(F+4, r1, off) + tr(F+6, r1, off+1024)
HR = int(sys.argv[sys.argv.index("--hr")+1]) if "--hr" in sys.argv else 8
def h_loads(s):
    r = []
    if s % 4 == 0: r += [f"s_add_u32 s{sC0}, s{sHo}, {1024*s}", f"s_add_u32 s{sC1}, s{sC0}, {88*1024}"]
    for tt in range(2):
        r.append((f"h{s}", f"buffer_load_dwordx4 {vr(fH+8*(s % HR)+4*tt,4)}, v{vL16}, {sr(SWS,4)}, s{sC0 if tt == 0 else sC1} offen offset:{1024*(s%4)} sc1"))
    return r
for m in range(7): emit_seq(u_dma(m))
for m in range(8):
    e(vwait_s(f"u{m}"))
    for x in u_reads(m, fWo+8*m): e(x)
    e("s_waitcnt lgkmcnt(0)")
    emit_seq(u_dma(m+7))
tstamp(18)
e(flags_issue(sHc))
flags_wait(sHc, "h", 0)
tstamp(19)
for s in range(HR): emit_seq(h_loads(s))
for x in u_reads(8, fWb[0]): e(x)
FB = int(sys.argv[sys.argv.index("--fb")+1]) if "--fb" in sys.argv else 14
for s in range(22):
    m = 8+s; W = fWb[s & 1]
    if s == FB:
        tstamp(20); e("s_barrier\ns_setprio 2"); tstamp(21)
    if s < 21:
        e(vwait_s(f"u{m+1}"))
        for x in u_reads(m+1, fWb[(s+1) & 1]): e(x)
        e("s_waitcnt lgkmcnt(4)")
    else: e("s_waitcnt lgkmcnt(0)")
    if m+7 < 30: emit_seq(u_dma(m+7))
    e(vwait_s(f"h{s}"))
    if s == 21: e(f"s_cmp_ge_u32 s{sW4}, 2\ns_cbranch_scc1 Lskip21")
    for tt in range(2):
        for ch in range(2 if "--nofm" not in sys.argv else 0): e(mfma(fA+32*tt+16*ch, W+4*ch, fH+8*(s % HR)+4*tt, "0" if s == 0 else None))
    if s+HR < 22: emit_seq(h_loads(s+HR))
e("Lskip21:\ns_nop 8")
tstamp(22)
ORD = [7, 6, 5, 4, 3, 2, 1, 0] if M48 else [7, 6, 5, 4, 1, 0, 3, 2]
def o_load(k):
    tt, i = k & 1, k >> 1
    return f"buffer_load_dwordx4 {vr(opos(i)+4*tt,4)}, v{vL16}, {sr(SWS,4)}, s{(sOc, sOc2, sOc3, sOc4)[2*tt+(i>>2)]} offen offset:{1024*(i%4)} sc1"
def opos(i): return fO + 8*ORD.index(i)
zer = [f"v_mov_b64 {vr(fS+r,2)}, 0" for r in range(0, 64, 2)]
for q in range(16):
    e(f"ds_write_b128 v{vRw}, {vr(fA+4*q,4)} offset:{XB*(q//2)+XP*(q%2)}")
    if q >= 4: e(f"s_waitcnt lgkmcnt(4)\n{o_load(2*ORD[(q-4)//2]+(q & 1))}")
e("s_waitcnt lgkmcnt(0)\ns_barrier")
for k in range(12, 16): e(o_load(2*ORD[k//2]+(k & 1)))
tstamp(9)
def o_pair(i, tag, wait):
    B = opos(i)
    if wait is not None: e(f"s_waitcnt vmcnt({wait})")
    else: e(f"s_bitcmp1_b32 s{sSt}, {i}\ns_cbranch_scc0 Lon{tag}{i}")
    e(f"""v_max3_u32 v{vT1}, v{B}, v{B+1}, v{B+2}
    v_max3_u32 v{vT1}, v{vT1}, v{B+3}, v{B+4}
    v_max3_u32 v{vT1}, v{vT1}, v{B+5}, v{B+6}
    v_max_u32 v{vT1}, v{vT1}, v{B+7}
    v_cmp_eq_u32 vcc, s{sT1}, v{vT1}
    s_cbranch_vccnz Lon{tag}{i}
    s_bitset0_b32 s{sSt}, {i}""")
    for tt in range(2):
        for ch in range(2): e(mfma(fS+32*tt+16*ch, fWo+8*i+4*ch, B+4*tt))
    e(f"Lon{tag}{i}:")
def acc_chain(tt, ch): return [mfma(fS+32*tt+16*ch, fWo+8*i+4*ch, opos(i)+4*tt, "0" if n == 0 else None) for n, i in enumerate(ORD)]
def s_wr(tt, ch): return [f"ds_write_b128 v{vRw2+tt}, {vr(fS+32*tt+16*ch+4*q,4)} offset:{XB*(2*ch+q//2)+XP*(q%2)}" for q in range(4)]
e(f"v_mov_b32 v{vT1}, 0")
for n, x in enumerate(acc_chain(0, 0)):
    B = fO+8*n
    e(f"s_waitcnt vmcnt({14-2*n})\n{x}")
    for p in range(0, 8, 2): e(f"v_max3_u32 v{vT1}, v{vT1}, v{B+p}, v{B+p+1}")
e(f"v_cmp_eq_u32 vcc, -1, v{vT1}\ns_cbranch_vccnz Lor0")
c1, c2, c3 = acc_chain(0, 1), acc_chain(1, 0), acc_chain(1, 1)
for prev, c in (((0, 0), c1), ((0, 1), c2), ((1, 0), c3)):
    for x in [c[0], "s_nop 3", c[1], "s_nop 3", c[2]] + interleave(c[3:7], s_wr(*prev)) + c[7:]: e(x)
stamp(7)
e("s_nop 11")
for x in s_wr(1, 1): e(x)
e("Lsd:")
e("s_waitcnt lgkmcnt(0)\ns_barrier")
stamp(10); tflush(); TS.clear()
the_end()
e("s_endpgm")
e(f"Lor0:\ns_nop 8")
for x in zer: e(x)
e(f"s_mov_b32 s{sT0}, 0\ns_mov_b32 s{sSt}, 0xff\ns_mov_b32 s{sT1}, -1\ns_branch Lor2")
e("Lor:\ns_sleep 4")
for i in ORD:
    e(f"s_bitcmp1_b32 s{sSt}, {i}\ns_cbranch_scc0 Lorn{i}\n{o_load(2*i)}\n{o_load(2*i+1)}\nLorn{i}:")
e(f"""s_add_u32 s{sT0}, s{sT0}, 1
s_cmp_ge_u32 s{sT0}, 200000
s_cbranch_scc1 Lod
s_waitcnt vmcnt(0)
Lor2:""")
for i in ORD: o_pair(i, "b", None)
e(f"s_cmp_lg_u32 s{sSt}, 0\ns_cbranch_scc1 Lor\nLod:\ns_nop 6")
for tt in range(2):
    for ch in range(2):
        for x in s_wr(tt, ch): e(x)
e("s_branch Lsd")
for b in range(2):
    S = aS[0]; O = aO[b]; C = aC[b]; Q = aQ[b]
    e(f"""Lfallback{b}:
    s_cmp_lg_u32 s{sRetry}, 0
    s_cbranch_scc1 Lok{b}
    s_mov_b32 s{sRetry}, 1
    s_mov_b32 s{sSt}, 0
    v_mov_b32 v{vT1}, 0xff800000
    s_waitcnt lgkmcnt(0)
    Lfb1{b}:
    buffer_load_dwordx4 {vr(aK[0],4)}, v{vL16}, {sr(SWS,4)}, s{sSt} offen sc1
    s_waitcnt vmcnt(0)""")
    e(mfma(S, aK[0], Q, "0"))
    e("s_nop 11")
    for p in range(0, 16, 2): e(f"v_max3_f32 v{vT1}, v{vT1}, v{S+p}, v{S+p+1}")
    e(f"""s_add_u32 s{sSt}, s{sSt}, {KVT}
    s_cmp_lt_u32 s{sSt}, {64*KVT}
    s_cbranch_scc1 Lfb1{b}
    v_mov_b32 v{vT2}, v{vT1}
    s_nop 1
    v_permlane32_swap_b32 v{vT1}, v{vT2}
    s_nop 1
    v_max_f32 v{vT1}, v{vT1}, v{vT2}""")
    for r in range(16): e(f"v_sub_f32 v{C+r}, 0, v{vT1}")
    for r in range(12): e(f"v_mov_b32 v{O+r}, 0")
    e(f"""v_subrev_u32 v{vT0}, {64*KVT}, v{vAv}
    s_mov_b32 s{sSt}, 0
    Lfb2{b}:
    buffer_load_dwordx4 {vr(aK[0],4)}, v{vL16}, {sr(SWS,4)}, s{sSt} offen sc1
    buffer_load_dwordx4 {vr(aVl[0],4)}, v{vT0}, {sr(SWS,4)}, s{sSt} offen sc1
    buffer_load_dwordx4 {vr(aVh[0],4)}, v{vT0}, {sr(SWS,4)}, s{sSt} offen offset:528 sc1
    s_waitcnt vmcnt(0)""")
    e(mfma(S, aK[0], Q, vr(C, 16)))
    e("s_nop 11")
    for i in range(16): e(f"v_exp_f32 v{S+i}, v{S+i}")
    e("s_nop 1")
    e(smf(O, aVl[0], S, vIdx)); e(smf(O, aVh[0], S+8, vIdx))
    e(f"""s_add_u32 s{sSt}, s{sSt}, {KVT}
    s_cmp_lt_u32 s{sSt}, {64*KVT}
    s_cbranch_scc1 Lfb2{b}
    s_nop 9
    s_branch Lfin{b}""")
e("Lcodeend:")

L += ['.section .rodata,"a"', ".p2align 6", f".amdhsa_kernel {NAME}_kernel",
      "  .amdhsa_next_free_vgpr 256", "  .amdhsa_next_free_sgpr 102", "  .amdhsa_accum_offset 256",
      "  .amdhsa_group_segment_fixed_size 0", "  .amdhsa_kernarg_size 96", "  .amdhsa_user_sgpr_count 2",
      "  .amdhsa_user_sgpr_kernarg_segment_ptr 1", "  .amdhsa_system_sgpr_workgroup_id_x 1", ".end_amdhsa_kernel"]
open(OUT, "w").write("\n".join(L) + "\n")
print("wrote", OUT, len(L), "lines")
```

```python
import sys, struct
NAME = "recurrent_scan__grouped_kv_mqa__geglu_ffn__prompt"
PROF = "--prof" in sys.argv
OUT = [a for a in sys.argv[1:2] if not a.startswith("--")]
OUT = OUT[0] if OUT else f"cdna_kernels/{NAME}.s"

L = []
def e(s):
    for ln in s.split("\n"):
        if not ln.strip(): continue
        L.append(("    " + ln.strip()) if not ln.strip().endswith(":") else ln.strip())
def f2u(x): return struct.unpack("<I", struct.pack("<f", x))[0]
def vr(a, n): return f"v[{a}:{a+n-1}]"
def sr(a, n): return f"s[{a}:{a+n-1}]"

KVT = 2080
KVIMG = 0
HIMG = 135168
OIMG = HIMG + 64*88*1024
HFLG = OIMG + 64*32*1024
KFLG = HFLG + 256*128
STATG = KFLG + 16*128
CSG = STATG + 2048*16
PROFO = CSG + 64*2048
WS_BYTES = PROFO + 256*8*256
CNT_KV = 0
KVRDY = 128
STG = 45056
XOFF, GOFF, UOFF, QOFF = 0, 16384, 28672, 40960
STGK, QOFFK, NBK = 24832, 20736, 5
QIMG = 135168
STATM = 160768
CSUM = 162816
MRX = 159744
STL = 163712
KFL = 163776
LDS_BYTES = 163840
SX, SWQ, SWK, SWV, SWO, SWG, SWD, SOUT, SDBG, SWS = 4, 8, 12, 16, 20, 24, 28, 32, 36, 40
sI, sJ, sW, sW4 = 44, 45, 46, 47
sXo, sWo, sQo, sLb = 48, 49, 50, 51
sMx, sMw, sMq = 52, 53, 54
sSt, sDl, sT0, sT1, sT2, sT3 = 55, 56, 57, 58, 59, 60
sTB, sCS, sRetry, sRb = 61, 62, 63, 3
sEx = 88
sTm = 90
sPo = 92
sC0, sC1, sC2, sC3 = 94, 95, 96, 97
sOp = 98
TOUCH = int("--touch" in sys.argv)
vLane, vH, vT0, vT1, vT2, vT3 = 1, 2, 3, 4, 5, 6
vXa0, vXa1, vWa0, vWa1, vWa2, vQa = 7, 8, 9, 10, 11, 12
vRX = 13
vRW, vRQ = 17, 18
vSel = 20
vCs = 24
vF = 32
vAcc = 96
vSt = 160
aQ = [8, 12]; aK = [16, 20]; aVl = [24, 28]; aVh = [32, 36]; aS = [40, 56]; aC = [72, 88]; aO = [104, 120]
fA, fWo, fWb, fH, fX, fG = 8, 72, [136, 144], 152, 200, 204
fS, fO, fR = 136, 8, 8
vIdx, vAk, vAv, vDa, vL16, vRa = 240, 241, 242, 243, 244, 245
vPoll = 246
vRd = 248
vRw, vRr, vRr2, vDa2 = 252, 253, 254, 255
vRw2 = 238
vAq = 237
sKq, sTt, sHo, sDo, sDm, sHc, sXf, sOc, sOc2, sHs = 64, 65, 66, 67, 68, 69, 70, 71, 72, 73
sOc3, sOc4, sOp2 = 80, 81, 99
sXf2 = 64
sNo = 86
sRow, sKf = 63, 85
ASL = 8320
XB, XK, XP = 8512, 2112, 1056
XF0, XS0, XS1 = 34048, 0, 102144
def aslot(n): return ASL*n
SP = [135168, 143360, 151552]

nstamp = [0]
DBGT = "--dbgt" in sys.argv
DT = {0: 75, 12: 76, 1: 77, 2: 78, 3: 79, 6: 80, 9: 81, 7: 82, 11: 83}
PAD = (int(sys.argv[sys.argv.index("--pad")+1]), int(sys.argv[sys.argv.index("--pad")+2])) if "--pad" in sys.argv else None
npad = [0]
PADB = sNo if "--padg" in sys.argv else 100
def stamp(k):
    if PAD and PAD[0] == k:
        npad[0] += 1
        e(f"Lpad{npad[0]}:\ns_memrealtime s[{sTm}:{sTm+1}]\ns_waitcnt lgkmcnt(0)\ns_sub_u32 s{sTm}, s{sTm}, s{PADB}\ns_sleep 8\ns_cmp_lt_u32 s{sTm}, {PAD[1]}\ns_cbranch_scc1 Lpad{npad[0]}")
    if DBGT and k in DT:
        e(f"s_memrealtime s[{sTm}:{sTm+1}]\ns_waitcnt lgkmcnt(0)\ns_sub_u32 s{DT[k]}, s{sTm}, s100")
        if k == 11:
            e(f"s_memtime s[{sTm}:{sTm+1}]\ns_waitcnt lgkmcnt(0)\ns_sub_u32 s84, s{sTm}, s92")
            e(f"s_cmp_lg_u32 s2, 64\ns_cbranch_scc1 Lend\ns_cmp_lg_u32 s{sW}, 4\ns_cbranch_scc1 Lend")
            for n, r in enumerate(range(75, 85)):
                e(f"v_mov_b32 v0, s{r}\nbuffer_store_dword v0, off, {sr(SDBG,4)}, 0 offset:{4+4*n}\ns_nop 1")
    if not PROF: return
    e(f"""s_memtime s[{sTm}:{sTm+1}]
    s_waitcnt lgkmcnt(0)
    v_mov_b32 v0, s{sTm}
    buffer_store_dword v0, off, {sr(SWS,4)}, s{sPo} offset:{4*k}""")
    if k in RTS:
        e(f"""s_memrealtime s[{sTm}:{sTm+1}]
        s_waitcnt lgkmcnt(0)
        v_mov_b32 v0, s{sTm}
        buffer_store_dword v0, off, {sr(SWS,4)}, s{sPo} offset:{4*RTS[k]}""")
RTS = {12: 24, 1: 25, 5: 26, 6: 27, 11: 28}

TS = []
def tstamp(k):
    if not PROF: return
    r = 74 + len(TS); TS.append((k, r))
    e(f"s_memtime s[{sTm}:{sTm+1}]\ns_waitcnt lgkmcnt(0)\ns_mov_b32 s{r}, s{sTm}")
def tflush():
    for k, r in TS: e(f"v_mov_b32 v0, s{r}\nbuffer_store_dword v0, off, {sr(SWS,4)}, s{sPo} offset:{4*k}\ns_nop 1")
def tick(acc):
    if not PROF or "--notick" in sys.argv: return ""
    r = f"s_memtime s[{sTm}:{sTm+1}]\ns_waitcnt lgkmcnt(0)\n"
    if acc is not None: r += f"s_sub_u32 s99, s{sTm}, s99\ns_add_u32 s{acc}, s{acc}, s99\n"
    return r + f"s_mov_b32 s99, s{sTm}"

def interleave(main, fill):
    out = []; n = len(main); m = len(fill); k = 0
    for i, a in enumerate(main):
        out.append(a)
        t = (m * (i + 1)) // n
        out += fill[k:t]; k = t
    return out

def mfma(d, a, b, c=None):
    c = vr(d, 16) if c is None else c
    return f"v_mfma_f32_32x32x16_bf16 {vr(d,16)}, {vr(a,4)}, {vr(b,4)}, {c}"
def mfma16(d, a, b): return f"v_mfma_f32_16x16x32_bf16 {vr(d,4)}, {vr(a,4)}, {vr(b,4)}, {vr(d,4)}"
def smf(d, a, b, idx): return f"v_smfmac_f32_32x32x32_bf16 {vr(d,16)}, {vr(a,4)}, {vr(b,8)}, v{idx}"

TK = PROF and "--tk" in sys.argv
def tk(acc):
    if not TK: return ""
    r = f"s_memtime s[{sTm}:{sTm+1}]\ns_waitcnt lgkmcnt(0)\n"
    if acc is not None: r += f"s_sub_u32 s82, s{sTm}, s82\ns_add_u32 s{acc}, s{acc}, s82\n"
    return r + f"s_mov_b32 s82, s{sTm}"
def tkout():
    if TK: e(f"v_mov_b32 v0, s80\nbuffer_store_dword v0, off, {sr(SWS,4)}, s{sPo} offset:{4*29}\ns_nop 1\nv_mov_b32 v0, s81\nbuffer_store_dword v0, off, {sr(SWS,4)}, s{sPo} offset:{4*30}")
def tr(d, a, off): return [f"ds_read_b64_tr_b16 {vr(d,2)}, v{a} offset:{off}"]
def tag_issue(): return f"buffer_load_dwordx2 {vr(vPoll,2)}, off, {sr(SDBG,4)}, 0 sc1"
def tag_wait(tag, first_wait):
    e(f"""s_mov_b32 s{sT0}, 0
    s_waitcnt vmcnt({first_wait})
    Ltag_{tag}:
    v_readfirstlane_b32 s{sNo}, v{vPoll}
    v_readfirstlane_b32 s{sNo+1}, v{vPoll+1}
    s_add_u32 s{sT0}, s{sT0}, 1
    s_cmp_lg_u32 s{sNo}, 0
    s_cbranch_scc1 Ltagd_{tag}
    s_cmp_ge_u32 s{sT0}, 100000
    s_cbranch_scc1 Ltagd_{tag}
    s_sleep 1
    {tag_issue()}
    s_waitcnt vmcnt(0)
    s_branch Ltag_{tag}
    Ltagd_{tag}:""")
def flags_issue(base):
    return f"""v_and_b32 v{vPoll}, 15, v{vLane}
    v_lshlrev_b32 v{vPoll}, 7, v{vPoll}
    buffer_load_dwordx2 {vr(vPoll,2)}, v{vPoll}, {sr(SWS,4)}, s{base} offen sc1"""
def h_poll_issue(): return flags_issue(sHc)
def flags_wait(base, tag, first_wait):
    e(f"""s_mov_b32 s{sT0}, 0
    s_waitcnt vmcnt({first_wait})
    Lfw_{tag}:
    v_cmp_ne_u64 vcc, s[{sNo}:{sNo+1}], {vr(vPoll,2)}
    s_add_u32 s{sT0}, s{sT0}, 1
    s_cmp_ge_u32 s{sT0}, 100000
    s_cbranch_vccz Lfwd_{tag}
    s_cbranch_scc1 Lfwd_{tag}
    s_sleep 3
    {flags_issue(base)}
    s_waitcnt vmcnt(0)
    s_branch Lfw_{tag}
    Lfwd_{tag}:""")
def flag_set(off_sreg, tag, wave=0):
    e(f"""s_cmp_lg_u32 s{sW}, {wave}
    s_cbranch_scc1 Lsig_{tag}
    v_mov_b32 v{vPoll}, s{sNo}
    v_mov_b32 v{vPoll+1}, s{sNo+1}
    s_mov_b64 exec, 1
    buffer_store_dwordx2 {vr(vPoll,2)}, off, {sr(SWS,4)}, s{off_sreg} sc1
    s_mov_b64 exec, -1
    Lsig_{tag}:""")

hdr = open(f"cdna_kernels/{NAME}.s.ref").read().split("\n")
hdr = [h for h in hdr[:15] if h.startswith(";") and "@launch" not in h]
L += hdr
L.append(f"; @launch grid=(256,1,1) block=(512,1,1) lds={LDS_BYTES}")
L += ['.amdgcn_target "amdgcn-amd-amdhsa--gfx950"', ".text", f".globl {NAME}_kernel", ".p2align 8",
      f".type {NAME}_kernel,@function"]
e(f"{NAME}_kernel:")
RT = PROF
if RT: e("s_memrealtime s[100:101]\ns_memtime s[98:99]")
if DBGT or PAD: e("s_memrealtime s[100:101]\ns_memtime s[92:93]")
MAP84 = f"""s_and_b32 s{sI}, s{sT0}, 1
s_lshl_b32 s{sI}, s{sI}, 3
s_and_b32 s{sT2}, s{sT1}, 7
s_add_u32 s{sI}, s{sI}, s{sT2}
s_lshr_b32 s{sJ}, s{sT0}, 1
s_lshl_b32 s{sJ}, s{sJ}, 2
s_lshr_b32 s{sT3}, s{sT1}, 3
s_add_u32 s{sJ}, s{sJ}, s{sT3}
s_sub_u32 s{sJ}, 15, s{sJ}
s_and_b32 s{sTB}, s{sT0}, 3
s_lshl_b32 s{sTB}, s{sTB}, 3
s_add_u32 s{sTB}, s{sTB}, s{sT2}
s_lshr_b32 s{sCS}, s{sT0}, 2
s_lshl_b32 s{sCS}, s{sCS}, 2
s_add_u32 s{sCS}, s{sCS}, s{sT3}"""
MAP48 = f"""s_lshr_b32 s{sT2}, s{sT0}, 1
s_lshl_b32 s{sI}, s{sT2}, 2
s_and_b32 s{sT3}, s{sT1}, 3
s_add_u32 s{sI}, s{sI}, s{sT3}
s_lshl_b32 s{sTB}, s{sT2}, 3
s_and_b32 s{sT3}, s{sT1}, 7
s_add_u32 s{sTB}, s{sTB}, s{sT3}
s_and_b32 s{sT0}, s{sT0}, 1
s_lshl_b32 s{sJ}, s{sT0}, 3
s_lshr_b32 s{sT3}, s{sT1}, 2
s_add_u32 s{sJ}, s{sJ}, s{sT3}
s_sub_u32 s{sJ}, 15, s{sJ}
s_lshl_b32 s{sCS}, s{sT0}, 2
s_lshr_b32 s{sT3}, s{sT1}, 3
s_add_u32 s{sCS}, s{sCS}, s{sT3}"""
M48 = "--m48" in sys.argv
MAP = MAP48 if M48 else MAP84
PFC = "" if "--nopfc" in sys.argv else f"""s_cmp_lg_u32 s{sW}, 7
s_cbranch_scc1 Lnop0
s_getpc_b64 s[94:95]
Lpc0:
s_bfe_u32 s{sT0}, s2, 0x20003
s_lshl_b32 s{sT0}, s{sT0}, 13
v_lshl_add_u32 v{vT1}, v{vLane}, 7, s{sT0}
v_min_u32 v{vT1}, Lcodeend-Lpc0-4, v{vT1}
global_load_dword v223, v{vT1}, s[94:95]"""
e(f"""s_cmp_ge_u32 s2, 256
s_cbranch_scc1 Lend
s_load_dwordx2 s[{SX}:{SX+1}], s[0:1], 0
s_load_dwordx2 s[{SWG}:{SWG+1}], s[0:1], 48
s_load_dwordx2 s[{SWQ}:{SWQ+1}], s[0:1], 8
s_load_dwordx2 s[{SWV}:{SWV+1}], s[0:1], 24
s_load_dwordx2 s[{SDBG}:{SDBG+1}], s[0:1], 80
s_load_dwordx2 s[{SWS}:{SWS+1}], s[0:1], 88
v_and_b32 v{vLane}, 63, v0
v_lshrrev_b32 v{vT0}, 6, v0
v_lshrrev_b32 v{vH}, 5, v{vLane}
v_readfirstlane_b32 s{sW}, v{vT0}
{PFC}
Lnop0:
s_and_b32 s{sT0}, s2, 7
s_lshr_b32 s{sT1}, s2, 3
{MAP}
s_and_b32 s{sW4}, s{sW}, 3
v_lshrrev_b32 v{vT0}, 3, v{vLane}
v_lshlrev_b32 v{vT0}, 10, v{vT0}
v_and_b32 v{vT1}, 7, v{vLane}
v_lshrrev_b32 v{vT2}, 4, v{vLane}
v_xor_b32 v{vT1}, v{vT1}, v{vT2}
v_lshl_add_u32 v{vXa0}, v{vT1}, 4, v{vT0}
v_xor_b32 v{vXa1}, 64, v{vXa0}
v_add_u32 v{vXa1}, {8192-1024}, v{vXa1}
v_lshlrev_b32 v{vL16}, 4, v{vLane}
s_lshl_b32 s{sXo}, s{sI}, 17
s_lshl_b32 s{sT0}, s{sW4}, 15
s_add_u32 s{sXo}, s{sXo}, s{sT0}
s_lshl_b32 s{sRow}, s{sI}, 4
s_add_u32 s{sRow}, s{sRow}, s{sJ}
s_lshl_b32 s{sRow}, s{sRow}, 2
s_add_u32 s{sRow}, s{sRow}, s{sW4}
s_cmp_eq_u32 s{sJ}, 15
s_cselect_b32 s{sT0}, 16, 56
s_load_dwordx2 s[{SWK}:{SWK+1}], s[0:1], s{sT0}
s_mov_b32 s{sT1}, {512*2752}
s_cselect_b32 s{SWK+2}, 16384, s{sT1}
s_mov_b32 s{SWK+3}, 0x20000""")
SWU = SWK
vRs = 144
for d, nbytes in ((SX, 2048*1024), (SWG, 512*2752), (SWQ, 512*1024), (SWV, 16384), (SDBG, 256), (SWS, WS_BYTES)):
    e(f"s_mov_b32 s{d+2}, {nbytes}\ns_mov_b32 s{d+3}, 0x20000")
def late_srd(lst):
    for d, off, nbytes in lst:
        e(f"s_load_dwordx2 s[{d}:{d+1}], s[0:1], {off}\ns_mov_b32 s{d+2}, {nbytes}\ns_mov_b32 s{d+3}, 0x20000")
LS_A = [(SOUT, 72, 2048*1024)]; LS_F = [(SWO, 32, 512*1024), (SWD, 64, 1376*1024)]
def entry_stamp(defer=False):
    if PROF:
        e(f"s_lshl_b32 s{sPo}, s2, 3\ns_add_u32 s{sPo}, s{sPo}, s{sW}\ns_lshl_b32 s{sPo}, s{sPo}, 8\ns_add_u32 s{sPo}, s{sPo}, {PROFO}")
    if defer: tstamp(0); return
    stamp(0); rt_out()
def rt_out():
    if RT: e(f"s_nop 1\nv_mov_b32 v0, s100\nbuffer_store_dword v0, off, {sr(SWS,4)}, s{sPo} offset:60\ns_nop 1\nv_mov_b32 v0, s98\nbuffer_store_dword v0, off, {sr(SWS,4)}, s{sPo} offset:16")
def row_loads():
    e(f"""s_lshl_b32 s{sT1}, s{sRow}, 11
    buffer_load_dwordx4 {vr(vRs,4)}, v{vL16}, {sr(SX,4)}, s{sT1} offen
    buffer_load_dwordx4 {vr(vRs+4,4)}, v{vL16}, {sr(SX,4)}, s{sT1} offen offset:1024""")
WKV = 131072
vXf, vWk = 32, 192
sXb = sMw
def kvx_dma(c):
    return [f"""s_add_u32 m0, s{sXb}, {4096*c+2048*hf}
        s_add_u32 s{sT0}, s{sXo}, {128*c+16384*hf}
        buffer_load_dwordx4 v{vXa0}, {sr(SX,4)}, s{sT0} offen lds
        buffer_load_dwordx4 v{vXa1}, {sr(SX,4)}, s{sT0} offen offset:1024 lds""" for hf in range(2)]
e(f"""s_cselect_b32 s{sT2}, 1, 0
s_cmp_lt_u32 s{sW}, 4
s_cbranch_scc1 Lnorow
s_waitcnt lgkmcnt(0)""")
row_loads()
e(f"""s_cmp_eq_u32 s{sJ}, 15
s_cbranch_scc0 Lcomp
Lnorow:
s_cmp_eq_u32 s{sJ}, 15
s_cbranch_scc0 Lhelp
s_memrealtime s[{sTm}:{sTm+1}]
s_lshl_b32 s{sXb}, s{sW}, 14
s_lshr_b32 s{sT3}, s{sW}, 2
s_lshl_b32 s{sT0}, s{sT3}, 9
s_add_u32 s{sXo}, s{sXo}, s{sT0}
s_or_b32 s{sT0}, s2, s{sW}
s_cmp_lg_u32 s{sT0}, 0
s_waitcnt lgkmcnt(0)
s_cbranch_scc1 Lnotag
s_or_b32 s{sTm}, s{sTm}, 1
v_mov_b32 v{vPoll}, s{sTm}
v_mov_b32 v{vPoll+1}, s{sTm+1}
s_mov_b64 exec, 1
buffer_store_dwordx2 {vr(vPoll,2)}, off, {sr(SDBG,4)}, 0 sc1
s_mov_b64 exec, -1
Lnotag:
s_lshl_b32 s{sT0}, s{sW}, 11
s_add_u32 m0, s{sT0}, {WKV}
s_nop 0
buffer_load_dwordx4 v{vL16}, {sr(SWV,4)}, s{sT0} offen lds
buffer_load_dwordx4 v{vL16}, {sr(SWV,4)}, s{sT0} offen offset:1024 lds
s_add_u32 m0, s{sT0}, {WKV+16384}
s_nop 0
buffer_load_dwordx4 v{vL16}, {sr(SWK,4)}, s{sT0} offen lds
buffer_load_dwordx4 v{vL16}, {sr(SWK,4)}, s{sT0} offen offset:1024 lds""")
for x in kvx_dma(0): e(x)
e("s_branch Lkvcu\nLhelp:")

def v_lane_addr(d):
    e(f"""v_and_b32 v{d}, 15, v{vLane}
    v_lshlrev_b32 v{d}, 4, v{d}
    v_lshl_add_u32 v{d}, v{vH}, 8, v{d}
    s_mov_b32 exec_lo, 0xffff0000
    s_mov_b32 exec_hi, 0xffff0000
    v_mov_b32 v{d}, 512""")
def fin_init():
    e(f"""s_lshl_b32 s{sT0}, s{sTB}, 16
    s_lshl_b32 s{sT1}, s{sCS}, 7
    s_add_u32 s{sT0}, s{sT0}, s{sT1}
    s_lshl_b32 s{sT1}, s{sW4}, 14
    s_add_u32 s{sXf}, s{sT0}, s{sT1}
    s_add_u32 s{sXf2}, s{sXf}, 8192
    v_lshrrev_b32 v{vT0}, 3, v{vLane}
    v_and_b32 v{vT1}, 7, v{vLane}
    v_lshlrev_b32 v{vRa}, 10, v{vT0}
    v_lshl_add_u32 v{vRa}, v{vT1}, 4, v{vRa}
    v_bfe_u32 v{vT1}, v{vLane}, 1, 2
    v_mul_u32_u24 v{vT1}, {XB}, v{vT1}
    v_lshl_add_u32 v{vT0}, v{vT0}, 4, v{vT1}
    v_and_b32 v{vT1}, 1, v{vLane}
    v_mul_u32_u24 v{vT1}, {XP}, v{vT1}
    s_and_b32 s{sT0}, s{sW4}, 1
    s_lshl_b32 s{sT0}, s{sT0}, 8
    v_add3_u32 v{vT0}, v{vT0}, v{vT1}, s{sT0}
    s_lshr_b32 s{sT0}, s{sW4}, 1
    s_mul_i32 s{sT1}, s{sT0}, {4*XB}
    s_add_u32 s{sT1}, s{sT1}, {XF0}
    v_add_u32 v{vRr}, s{sT1}, v{vT0}
    s_mul_i32 s{sT1}, s{sT0}, {XS1}
    v_add_u32 v{vRr2}, s{sT1}, v{vT0}""")
FS = "--asent" not in sys.argv
def a_init():
    a_sent(); a_addr()
def a_sent(store=False):
    e(f"""s_lshl_b32 s{sT0}, s{sI}, 2
    s_add_u32 s{sT0}, s{sT0}, s{sW4}
    s_lshl_b32 s{sT0}, s{sT0}, 5
    s_lshr_b32 s{sT1}, s{sJ}, 1
    s_add_u32 s{sT0}, s{sT0}, s{sT1}
    s_and_b32 s{sT1}, s{sJ}, 1
    s_lshl_b32 s{sT1}, s{sT1}, 4
    s_add_u32 s{sT0}, s{sT0}, s{sT1}
    s_lshl_b32 s{sT0}, s{sT0}, 10
    s_add_u32 s{sOp}, s{sT0}, {OIMG}
    s_add_u32 s{sOp2}, s{sOp}, 8192""")
    if not FS or store: e(f"""v_mov_b64 v[232:233], -1
    v_mov_b64 v[234:235], -1
    buffer_store_dwordx4 v[232:235], v{vL16}, {sr(SWS,4)}, s{sOp} offen sc1
    buffer_store_dwordx4 v[232:235], v{vL16}, {sr(SWS,4)}, s{sOp2} offen sc1""")
    if store: return
def a_addr(zero=True):
    v_lane_addr(vAv)
    e(f"""s_mov_b32 exec_lo, 0xffee0000
    s_mov_b32 exec_hi, 0xffee0000
    v_mov_b32 v{vAv}, 0x4000000
    s_mov_b64 exec, -1
    v_add_u32 v{vAv}, 1024, v{vAv}
    v_mov_b32 v{vAk}, v{vL16}
    v_mov_b32 v{vIdx}, 0xdddd
    s_lshl_b32 s{sT0}, s{sW4}, 11
    s_add_u32 s{sT0}, s{sT0}, {QIMG}
    v_add_u32 v{vAq}, s{sT0}, v{vL16}""")
    if zero: a_zero()
def a_zero():
    for b in range(2):
        for r in range(0, 12, 2): e(f"v_mov_b64 {vr(aO[b]+r,2)}, 0")
def f_init():
    e(f"""v_lshrrev_b32 v{vT0}, 3, v{vLane}
    v_lshlrev_b32 v{vT0}, 10, v{vT0}
    v_and_b32 v{vT1}, 7, v{vLane}
    v_bfe_u32 v{vT2}, v{vLane}, 4, 1
    v_lshlrev_b32 v{vT2}, 2, v{vT2}
    v_xor_b32 v{vT1}, v{vT1}, v{vT2}
    v_lshl_add_u32 v{vDa}, v{vT1}, 4, v{vT0}
    v_add_u32 v{vDa2}, {8192-1024}, v{vDa}
    s_lshl_b32 s{sDo}, s{sW4}, 14
    s_lshl_b32 s{sT1}, s{sCS}, 7
    s_add_u32 s{sDo}, s{sDo}, s{sT1}
    s_lshl_b32 s{sDm}, s{sW4}, 11
    s_mul_i32 s{sHo}, s{sTB}, 176
    s_mul_i32 s{sT0}, s{sW4}, 22
    s_add_u32 s{sHo}, s{sHo}, s{sT0}
    s_lshl_b32 s{sHo}, s{sHo}, 10
    s_add_u32 s{sHo}, s{sHo}, {HIMG}
    s_lshl_b32 s{sT0}, s{sTB}, 3
    s_add_u32 s{sT0}, s{sT0}, s{sW4}
    s_lshl_b32 s{sT0}, s{sT0}, 13
    s_add_u32 s{sOc}, s{sT0}, {OIMG}
    s_add_u32 s{sOc2}, s{sOc}, 4096
    s_add_u32 s{sOc3}, s{sOc}, 32768
    s_add_u32 s{sOc4}, s{sOc}, {32768+4096}
    s_lshr_b32 s{sHc}, s{sTB}, 1
    s_lshl_b32 s{sHc}, s{sHc}, 11
    s_add_u32 s{sHc}, s{sHc}, {HFLG}
    s_lshl_b32 s{sHs}, s{sI}, 4
    s_add_u32 s{sHs}, s{sHs}, s{sJ}
    s_lshl_b32 s{sHs}, s{sHs}, 7
    s_add_u32 s{sHs}, s{sHs}, {HFLG}
    v_bfe_u32 v{vT0}, v{vLane}, 2, 2
    v_lshl_add_u32 v{vT0}, v{vH}, 2, v{vT0}
    v_lshlrev_b32 v{vT0}, 7, v{vT0}
    v_bfe_u32 v{vT1}, v{vLane}, 4, 1
    v_lshl_add_u32 v{vT0}, v{vT1}, 5, v{vT0}
    v_and_b32 v{vT1}, 3, v{vLane}
    v_lshl_add_u32 v{vT0}, v{vT1}, 3, v{vT0}
    v_bfe_u32 v{vT1}, v{vLane}, 3, 1
    v_lshl_add_u32 v{vT0}, v{vT1}, 6, v{vT0}
    v_add_u32 v{vRd}, s{sDm}, v{vT0}
    v_xor_b32 v{vRd+1}, 64, v{vRd}
    v_add_u32 v{vRd+2}, {SP[0]}, v{vRd}
    v_add_u32 v{vRd+3}, {SP[0]}, v{vRd+1}
    s_mul_i32 s{sT0}, s{sW4}, {XK}
    v_add_u32 v{vRw2}, s{sT0}, v{vL16}
    v_add_u32 v{vRw}, {XF0}, v{vRw2}
    v_add_u32 v{vRw2+1}, {XS1}, v{vRw2}""")
def kv_rest(tag):
    e(f"s_setprio 0\ns_lshl_b32 s{sT1}, s{sW4}, 12")
    for n in range(6):
        e(f"s_add_u32 s{sT0}, s{sT1}, {36*1024+16384*n}\ns_mov_b32 m0, s{sT0}\ns_nop 0")
        for k in range(4): e(f"buffer_load_dwordx4 v{vL16}, {sr(SWS,4)}, s{sT0} offen offset:{1024*k} sc1 lds")
    e(tag_issue())
    e("s_setprio 2")

def spread(m, fill):
    w = [16 if "16x16" in x else 32 for x in m]
    tot = sum(c for c, _ in fill); W = sum(w)
    out = []; k = 0; acc = 0; cw = 0
    for x, wx in zip(m, w):
        out.append(x); cw += wx
        while k < len(fill) and (acc + fill[k][0]/2) * W <= tot * cw:
            out.append(fill[k][1]); acc += fill[k][0]; k += 1
    out += [t for _, t in fill[k:]]
    return out


C1 = -2*0.7978845608028654*1.4426950408889634
C3 = C1*0.044715
def gelu_consts(m, r, d):
    e(f"""v_sub_f32 v{d}, 0, v{m}
    v_mul_f32 v{d+3}, v{r}, v{r}
    v_mul_f32 v{d+1}, {f2u(C1):#x}, v{r}
    v_mul_f32 v{d+2}, {f2u(C3):#x}, v{r}
    v_mul_f32 v{d+2}, v{d+2}, v{d+3}
    v_rcp_f32 v{d+3}, v{d+3}""")
def bc(reg, pos, n):
    base = reg & ~1
    return vr(base, 2), reg & 1
def pk(op, d, srcs, neg=None):
    ops = []; lo = []; hi = []
    for t, r in srcs:
        if t == 'p': ops.append(vr(r, 2)); lo.append(0); hi.append(1)
        else: ops.append(vr(r & ~1, 2)); lo.append(r & 1); hi.append(r & 1)
    return f"{op} {vr(d,2)}, {', '.join(ops)} op_sel:[{','.join(map(str,lo))}] op_sel_hi:[{','.join(map(str,hi))}]"
def gelu_tile(g, u, csg, csu, k, tmp, n=16, dst=None):
    for p in range(0, n, 2):
        e(pk("v_pk_fma_f32", g+p, [('b', k), ('p', csg+p), ('p', g+p)]))
        e(pk("v_pk_fma_f32", u+p, [('b', k), ('p', csu+p), ('p', u+p)]))
    for p in range(0, n, 2):
        e(pk("v_pk_mul_f32", tmp+p, [('p', g+p), ('p', g+p)]))
    for p in range(0, n, 2):
        e(pk("v_pk_fma_f32", tmp+p, [('p', tmp+p), ('b', k+2), ('b', k+1)]))
    for p in range(0, n, 2):
        e(pk("v_pk_mul_f32", tmp+p, [('p', tmp+p), ('p', g+p)]))
    for p in range(n): e(f"v_exp_f32 v{tmp+p}, v{tmp+p}")
    for p in range(0, n, 2):
        e(pk("v_pk_mul_f32", u+p, [('p', u+p), ('p', g+p)]))
    for p in range(0, n, 2):
        e(pk("v_pk_fma_f32", tmp+p, [('p', tmp+p), ('b', k+3), ('b', k+3)]))
    for p in range(n): e(f"v_rcp_f32 v{tmp+p}, v{tmp+p}")
    e("s_nop 0")
    for p in range(0, n, 2):
        e(pk("v_pk_mul_f32", u+p, [('p', u+p), ('p', tmp+p)]))
    for p in range(n//2): e(f"v_cvt_pk_bf16_f32 v{dst[p] if dst else g+p}, v{u+2*p}, v{u+2*p+1}")

def cs_read(d, slot_off):
    for q in range(4): e(f"ds_read_b128 {vr(d+4*q,4)}, v{vT3} offset:{slot_off+32*q}")

def lin_fold(acc, cs, negm, scale, n=16):
    for p in range(0, n, 2):
        e(pk("v_pk_fma_f32", acc+p, [('b', negm), ('p', cs+p), ('p', acc+p)]))
    for p in range(0, n, 2):
        e(pk("v_pk_mul_f32", acc+p, [('p', acc+p), ('b', scale)]))

def q_epilogue(cs):
    e(f"v_mul_f32 v{vSt+2}, {f2u(0.25*1.4426950408889634):#x}, v{vSt+1}")
    lin_fold(vAcc, cs, vSt+4, vSt+2)
    for p in range(8): e(f"v_cvt_pk_bf16_f32 v{vAcc+p}, v{vAcc+2*p}, v{vAcc+2*p+1}")
    e(f"""s_lshl_b32 s{sT0}, s{sW4}, 11
    s_add_u32 s{sT0}, s{sT0}, {QIMG}
    v_lshl_add_u32 v{vT0}, v{vLane}, 4, s{sT0}
    ds_write_b128 v{vT0}, {vr(vAcc,4)}
    ds_write_b128 v{vT0}, {vr(vAcc+4,4)} offset:1024""")


def rowstat_finish():
    a = vRs+8
    e(f"v_mov_b32 v{vT0}, 0x3f803f80")
    for k in range(4):
        for r in range(2):
            x = vRs+4*r+k
            c0 = "0" if k == 0 else f"v{a+2*r}"; c1 = "0" if k == 0 else f"v{a+2*r+1}"
            e(f"v_dot2_f32_bf16 v{a+2*r}, v{x}, v{vT0}, {c0}\nv_dot2_f32_bf16 v{a+2*r+1}, v{x}, v{x}, {c1}")
    e("s_nop 2")
    for ctl in ("row_shr:1", "row_shr:2", "row_shr:4", "row_shr:8"):
        for k in range(4): e(f"v_add_f32_dpp v{a+k}, v{a+k}, v{a+k} {ctl} row_mask:0xf bank_mask:0xf bound_ctrl:0")
    for ctl in ("row_bcast:15 row_mask:0xa", "row_bcast:31 row_mask:0xc"):
        for k in range(4): e(f"v_add_f32_dpp v{a+k}, v{a+k}, v{a+k} {ctl} bank_mask:0xf")
    for r in range(2):
        d = vRs+4*r
        e(f"""v_mul_f32 v{d}, {f2u(1/512):#x}, v{a+2*r}
        v_mul_f32 v{d+1}, {f2u(1/512):#x}, v{a+2*r+1}
        v_fma_f32 v{d+1}, -v{d}, v{d}, v{d+1}
        v_max_f32 v{d+1}, 0, v{d+1}
        v_add_f32 v{d+1}, {f2u(1e-5):#x}, v{d+1}
        v_rsq_f32 v{d+1}, v{d+1}""")
def rowstat_post():
    e(f"""s_lshl_b32 s{sT0}, s{sW4}, 4
    s_add_u32 s{sT0}, s{sT0}, {STL}
    v_mov_b32 v{vT0}, s{sT0}
    s_mov_b32 exec_lo, 0
    s_brev_b32 exec_hi, 1
    ds_write_b64 v{vT0}, {vr(vRs,2)}
    ds_write_b64 v{vT0}, {vr(vRs+4,2)} offset:8
    s_mov_b64 exec, -1""")
def rowstat_store():
    for r in range(2): e(f"v_mov_b32 v{vRs+4*r+2}, s{sNo}\nv_mov_b32 v{vRs+4*r+3}, s{sNo+1}")
    e(f"""s_lshl_b32 s{sT0}, s{sRow}, 5
    s_add_u32 s{sT0}, s{sT0}, {STATG}
    s_mov_b32 exec_lo, 0
    s_brev_b32 exec_hi, 1
    buffer_store_dwordx4 {vr(vRs,4)}, off, {sr(SWS,4)}, s{sT0} sc1
    buffer_store_dwordx4 {vr(vRs+4,4)}, off, {sr(SWS,4)}, s{sT0} offset:16 sc1
    s_mov_b64 exec, -1""")
def kv_dma(tag):
    e(f"s_mul_i32 s{sT1}, s{sW4}, 3072")
    for n in range(3):
        e(f"s_add_u32 s{sT0}, s{sT1}, {12288*n}\ns_mov_b32 m0, s{sT0}\ns_nop 0")
        for k in range(3): e(f"buffer_load_dwordx4 v{vL16}, {sr(SWS,4)}, s{sT0} offen offset:{1024*k} sc1 lds")
def tr_lane(rowmul, d):
    e(f"""v_lshrrev_b32 v{vT0}, 4, v{vLane}
    v_bfe_u32 v{vT1}, v{vLane}, 2, 2
    v_lshl_add_u32 v{vT0}, v{vT0}, 3, v{vT1}
    v_mul_u32_u24 v{vT0}, {rowmul}, v{vT0}
    v_bfe_u32 v{vT1}, v{vLane}, 4, 1
    v_lshl_add_u32 v{vT0}, v{vT1}, 5, v{vT0}
    v_and_b32 v{vT1}, 3, v{vLane}
    v_lshl_add_u32 v{d}, v{vT1}, 3, v{vT0}""")
def ones_col0(d):
    e(f"""v_and_b32 v{vT0}, 15, v{vLane}
    v_cmp_eq_u32 vcc, 0, v{vT0}
    v_mov_b32 v{vT1}, 0x3f803f80
    s_nop 0
    v_cndmask_b32 v{d}, 0, v{vT1}, vcc""")
    for k in range(1, 4): e(f"v_mov_b32 v{d+k}, v{d}")
def rot_delta():
    return f"s_add_u32 s{sRb}, s{sRb}, 1\ns_cmp_eq_u32 s{sRb}, 3\ns_cselect_b32 s{sDl}, s{sC3}, {STG}\ns_cselect_b32 s{sRb}, 0, s{sRb}"
def cs16_write(accs, slot0_sreg, stride):
    e(f"v_add_u32 v{vT0}, s{slot0_sreg}, v{vLane}\ns_mov_b32 exec_lo, 0x00010001\ns_mov_b32 exec_hi, 0x00010001")
    for n, a in enumerate(accs): e(f"ds_write_b128 v{vT0}, {vr(a,4)} offset:{stride*n}")
    e("s_mov_b64 exec, -1")

ROT = int(sys.argv[sys.argv.index("--rot")+1]) if "--rot" in sys.argv else 7
sKs = 84
sM1, sM2, sPub, sCg = 66, 67, 68, 69
C0 = "--c0" in sys.argv
NR = 7 if C0 else 8
def dma_x():
    return [f"s_add_u32 m0, s{sLb}, s{sMx}", f"s_add_u32 s{sT0}, s{sXo}, 16384",
            f"buffer_load_dwordx4 v{vXa0}, {sr(SX,4)}, s{sXo} offen lds",
            f"buffer_load_dwordx4 v{vXa1}, {sr(SX,4)}, s{sXo} offen offset:1024 lds",
            "s_add_u32 m0, m0, 2048", f"s_add_u32 s{sXo}, s{sXo}, 128",
            f"buffer_load_dwordx4 v{vXa0}, {sr(SX,4)}, s{sT0} offen lds",
            f"buffer_load_dwordx4 v{vXa1}, {sr(SX,4)}, s{sT0} offen offset:1024 lds"]
def dma_w():
    r = []
    for k, sd in enumerate((SWG, SWU)):
        r += [f"s_add_u32 m0, s{sLb}, s{sMw}" if k == 0 else f"s_add_u32 m0, m0, {UOFF-GOFF}", "s_nop 0",
              f"buffer_load_dwordx4 v{vWa0}, {sr(sd,4)}, s{sWo} offen lds",
              f"buffer_load_dwordx4 v{vWa1}, {sr(sd,4)}, s{sWo} offen offset:1024 lds",
              f"buffer_load_dwordx4 v{vWa2}, {sr(sd,4)}, s{sWo} offen offset:2048 lds"]
    r += [f"s_add_u32 m0, s{sLb}, s{sMq}", f"s_add_u32 s{sWo}, s{sWo}, {64*2752}",
          f"buffer_load_dwordx4 v{vQa}, {sr(SWQ,4)}, s{sQo} offen lds", f"s_add_u32 s{sQo}, s{sQo}, 65536",
          f"s_add_u32 s{sLb}, s{sLb}, {STG}", f"s_cmp_ge_u32 s{sLb}, {3*STG}", f"s_cselect_b32 s{sLb}, 0, s{sLb}"]
    if ROT:
        r += [f"s_add_u32 s{sKs}, s{sKs}, 1", f"s_cmp_eq_u32 s{sKs}, 8",
              f"s_cselect_b32 s{sT0}, {128*NR}, 0", f"s_cselect_b32 s{sT1}, {64*NR*2752}, 0", f"s_cselect_b32 s{sT2}, {64*NR*1024}, 0",
              f"s_sub_u32 s{sXo}, s{sXo}, s{sT0}", f"s_sub_u32 s{sWo}, s{sWo}, s{sT1}", f"s_sub_u32 s{sQo}, s{sQo}, s{sT2}"]
    return r
e(f"s_mov_b32 s{sLb}, 0\ns_lshl_b32 s{sMx}, s{sW4}, 12")
if ROT and "--rm" in sys.argv: e(f"s_lshl_b32 s{sKs}, s{sI if M48 else sJ}, 1\ns_add_u32 s{sKs}, s{sKs}, s{sJ if M48 else sI}\ns_and_b32 s{sKs}, s{sKs}, {ROT}")
RM = sys.argv[sys.argv.index("--rm")+1] if "--rm" in sys.argv else "a"
if RM == "a":
    e(f"""s_xor_b32 s{sKs}, s{sI}, s{sJ}
    s_and_b32 s{sKs}, s{sKs}, 1
    s_lshl_b32 s{sKs}, s{sKs}, 2
    s_lshr_b32 s{sT0}, s{sI}, 1
    s_xor_b32 s{sT0}, s{sT0}, s{sJ}
    s_lshr_b32 s{sT0}, s{sT0}, 1
    s_and_b32 s{sT0}, s{sT0}, 2
    s_or_b32 s{sKs}, s{sKs}, s{sT0}""")
if RM == "b":
    e(f"""s_add_u32 s{sKs}, s{sI}, s{sJ}
    s_and_b32 s{sKs}, s{sKs}, 3
    s_lshl_b32 s{sKs}, s{sKs}, 1
    s_lshr_b32 s{sT0}, s{sI}, 1
    s_xor_b32 s{sT0}, s{sT0}, s{sJ}
    s_bfe_u32 s{sT0}, s{sT0}, 0x10002
    s_or_b32 s{sKs}, s{sKs}, s{sT0}""")
if RM == "c":
    e(f"""s_lshr_b32 s{sKs}, s{sI}, 3
    s_lshl_b32 s{sKs}, s{sKs}, 2
    s_lshr_b32 s{sT0}, s{sJ}, 2
    s_lshl_b32 s{sT0}, s{sT0}, 1
    s_add_u32 s{sKs}, s{sKs}, s{sT0}
    s_and_b32 s{sKs}, s{sKs}, 7""")
if ROT and C0: e(f"s_cmp_eq_u32 s{sKs}, 7\ns_cselect_b32 s{sKs}, 3, s{sKs}")
def rot_x(): e(f"s_lshl_b32 s{sT0}, s{sKs}, 7\ns_add_u32 s{sXo}, s{sXo}, s{sT0}")
def rot_w(): e(f"s_mul_i32 s{sT0}, s{sKs}, {64*2752}\ns_add_u32 s{sWo}, s{sWo}, s{sT0}\ns_lshl_b32 s{sT0}, s{sKs}, 16\ns_add_u32 s{sQo}, s{sQo}, s{sT0}")
if ROT and not C0: rot_x()
e(f"s_lshl_b32 s{sCg}, s{sJ}, 13\ns_add_u32 s{sCg}, s{sCg}, {CSG}\ns_lshl_b32 s{sC1}, s{sKs}, 10\ns_add_u32 s{sC1}, s{sC1}, s{sCg}")
for k, r in enumerate((vWa0, vWa1, vWa2)):
    e(f"""v_add_u32 v{vT0}, {64*k}, v{vLane}
    v_mul_u32_u24 v{vT1}, 43691, v{vT0}
    v_lshrrev_b32 v{vT1}, 19, v{vT1}
    v_mul_u32_u24 v{vT2}, 12, v{vT1}
    v_sub_u32 v{vT0}, v{vT0}, v{vT2}
    v_lshrrev_b32 v{vT2}, 2, v{vT1}
    v_and_b32 v{vT2}, 2, v{vT2}
    v_xor_b32 v{vT0}, v{vT0}, v{vT2}
    v_mul_u32_u24 v{vT1}, 2752, v{vT1}
    v_lshl_add_u32 v{r}, v{vT0}, 4, v{vT1}""")
    if k: e(f"v_subrev_u32 v{r}, {1024*k}, v{r}")
e(f"""v_lshrrev_b32 v{vT0}, 2, v{vLane}
v_lshlrev_b32 v{vT0}, 10, v{vT0}
v_and_b32 v{vT1}, 3, v{vLane}
v_lshlrev_b32 v{vT2}, 1, v{vH}
v_xor_b32 v{vT1}, v{vT1}, v{vT2}
v_lshl_add_u32 v{vQa}, v{vT1}, 4, v{vT0}
s_mul_i32 s{sT0}, s{sJ}, 96
s_min_u32 s{sT0}, s{sT0}, 1280
s_lshl_b32 s{sT0}, s{sT0}, 1
s_mul_i32 s{sWo}, s{sW4}, {16*2752}
s_add_u32 s{sWo}, s{sWo}, s{sT0}
s_lshl_b32 s{sQo}, s{sW4}, 14
s_lshl_b32 s{sT0}, s{sJ}, 6
s_add_u32 s{sQo}, s{sQo}, s{sT0}
s_mul_i32 s{sMw}, s{sW4}, 3072
s_add_u32 s{sMw}, s{sMw}, {GOFF}
s_lshl_b32 s{sMq}, s{sW4}, 10
s_add_u32 s{sMq}, s{sMq}, {QOFF}""")
if ROT and not C0: rot_w()
e("s_waitcnt lgkmcnt(0)")
entry_stamp()
for x in dma_x(): e(x)
w0 = dma_w()
if ROT and C0:
    k = w0.index(f"s_add_u32 s{sKs}, s{sKs}, 1")
    for x in w0[:k]: e(x)
    rot_x(); rot_w(); e(w0[k])
else:
    for x in w0: e(x)
for x in dma_x() + dma_w(): e(x)
TG = "--oldtag" not in sys.argv
if TG:
    e(f"""s_and_b32 s{sT0}, s{sI}, 6
    s_or_b32 s{sT0}, s{sT0}, s{sW}
    s_cmp_eq_u32 s{sT0}, 0
    s_cselect_b32 s{sM2}, 0x30, 0
    s_cselect_b32 s{sPub}, 3, 99
    s_cmp_eq_u32 s{sW}, 0
    s_cselect_b32 s{sM1}, 6, 0
    s_cbranch_scc0 Lnt0""")
    e(tag_issue())
    e("Lnt0:")
else: e(tag_issue())
late_srd(LS_A)
hF = 30
e(f"""s_lshl_b32 s{sT0}, s{sW4}, 2
s_add_u32 s{sT0}, s{sT0}, {KFL}
v_mov_b32 v{hF}, s{sT0}
v_mov_b32 v{hF+1}, 0
v_mov_b32 v{vT0}, {KFL}
ds_write_b32 v{hF}, v{hF+1}
ds_write_b32 v{vT0}, v{hF+1} offset:16""")
hW = 32
e(f"s_mov_b32 s{sSt}, 0\ns_mov_b32 s{sRb}, 0\ns_mov_b32 s{sC3}, {(-2*STG) & 0xffffffff}")
if "--hp3" in sys.argv: e("s_setprio 3")
tstamp(21)
if TG: e(f"s_waitcnt vmcnt(12) lgkmcnt(0)\ns_cmp_eq_u32 s{sW}, 0\ns_cbranch_scc1 Lnt1\ns_waitcnt vmcnt(11)\nLnt1:")
else: e("s_waitcnt vmcnt(12) lgkmcnt(0)")
tstamp(23); e("s_barrier")
stamp(12); tflush(); TS.clear()
W11 = f"""s_waitcnt vmcnt(13)
s_bitcmp1_b32 s{sM2}, s{sSt}
s_cbranch_scc1 Lw12
s_waitcnt vmcnt(12)
s_bitcmp1_b32 s{sM1}, s{sSt}
s_cbranch_scc1 Lw12
s_waitcnt vmcnt(11)
Lw12:"""
def helper_loop(cs):
    t = "c" if cs else "n"
    e(f"Lhl{t}:")
    if cs:
        rd, m = cs_parts()
        for x in rd: e(x)
        e(rot_delta())
        for x in dma_x(): e(x)
        e(f"v_add_u32 v{hA}, s{sDl}, v{hA}\nv_add_u32 v{hA+1}, s{sDl}, v{hA+1}\ns_waitcnt lgkmcnt(0)")
        w = dma_w(); k = 0
        for x in w:
            e(x)
            if "buffer_load" in x: e(m[k]); k += 1
        for x in m[k:]: e(x)
    else:
        for x in dma_x() + dma_w():
            if "--nodma" in sys.argv and "buffer_load" in x: continue
            e(x)
            if "--pace" in sys.argv and "buffer_load" in x: e("s_sleep 1")
        e(f"s_or_b32 s{sT0}, s{sSt}, s{sW}\ns_cmp_lg_u32 s{sT0}, 0\ns_cbranch_scc1 Lnpub")
        e(f"v_lshlrev_b32 v{vT0}, 3, v{vLane}\nv_add_u32 v{vT0}, {STL}, v{vT0}\nds_read_b64 {vr(hW,2)}, v{vT0}")
        tag_wait("p", 11)
        e(f"""v_mov_b32 v{hW+2}, s{sNo}
        v_mov_b32 v{hW+3}, s{sNo+1}
        s_lshl_b32 s{sT0}, s{sRow}, 5
        s_add_u32 s{sT0}, s{sT0}, {STATG}
        s_mov_b64 exec, 0xff
        s_waitcnt lgkmcnt(0)
        buffer_store_dwordx4 {vr(hW,4)}, v{vL16}, {sr(SWS,4)}, s{sT0} offen sc1
        s_mov_b64 exec, -1
        Lnpub:
        s_cmp_lg_u32 s{sSt}, s{sPub}
        s_cbranch_scc1 Lnpc
        v_lshlrev_b32 v{vT0}, 3, v{vLane}
        v_add_u32 v{vT0}, {CSUM}, v{vT0}
        ds_read_b64 {vr(hW,2)}, v{vT0}
        ds_read_b64 {vr(hW+4,2)}, v{vT0} offset:512
        v_mov_b32 v{hW+2}, s{sNo}
        v_mov_b32 v{hW+3}, s{sNo+1}
        v_mov_b32 v{hW+6}, s{sNo}
        v_mov_b32 v{hW+7}, s{sNo+1}
        s_waitcnt lgkmcnt(0)
        buffer_store_dwordx4 {vr(hW,4)}, v{vL16}, {sr(SWS,4)}, s{sC1} offen sc1
        buffer_store_dwordx4 {vr(hW+4,4)}, v{vL16}, {sr(SWS,4)}, s{sC1} offen offset:1024 sc1
        Lnpc:""")
        if not FS:
            e(f"s_cmp_lg_u32 s{sSt}, 2\ns_cbranch_scc1 Lnini")
            a_sent()
            e("Lnini:")
    e(f"""s_add_u32 s{sSt}, s{sSt}, 1
    {W11}
    s_barrier
    {tk(81)}
    s_cmp_lt_u32 s{sSt}, 6
    s_cbranch_scc1 Lhl{t}""")
helper_loop(False)
tkout()
def st_loads():
    return f"""buffer_load_dwordx4 {vr(hW,4)}, v{vL16}, {sr(SWS,4)}, s{sC0} offen sc1
    buffer_load_dwordx4 {vr(hW+4,4)}, v{vL16}, {sr(SWS,4)}, s{sC0} offen offset:1024 sc1"""
e(f"s_lshl_b32 s{sC0}, s{sI}, 11\ns_add_u32 s{sC0}, s{sC0}, {STATG}\ns_mov_b32 s{sKf}, {KFLG}\nv_mov_b32 v{hF+1}, 1")
if TG: e(tag_issue())
e(f"s_cmp_lg_u32 s{sW}, 1\ns_cbranch_scc1 Lhn0\n{st_loads()}\nLhn0:")
if FS: a_sent()
a_addr(); fin_init()
tag_wait("h", 0)
e(f"""s_cmp_lg_u32 s{sW}, 1
s_cbranch_scc1 Lhns
s_mov_b32 s{sT0}, 0
s_branch Lhs1
Lhs:
{st_loads()}
s_waitcnt vmcnt(0)
Lhs1:
s_add_u32 s{sT0}, s{sT0}, 1
v_cmp_ne_u64 vcc, s[{sNo}:{sNo+1}], {vr(hW+2,2)}
v_cmp_ne_u64 s[{sEx}:{sEx+1}], s[{sNo}:{sNo+1}], {vr(hW+6,2)}
s_or_b64 vcc, vcc, s[{sEx}:{sEx+1}]
s_cmp_ge_u32 s{sT0}, 100000
s_cbranch_scc1 Lhns
s_cbranch_vccnz Lhs
Lhns:""")
LATEP = "--latep" in sys.argv
def cs_loads():
    return "\n".join(f"buffer_load_dwordx4 {vr(hW+4*c,4)}, v{vL16}, {sr(SWS,4)}, s{sCg if c < 2 else sC1} offen offset:{2048*(c & 1)} sc1" for c in range(4))
e(f"""s_cmp_lt_u32 s{sW}, 2
s_cbranch_scc1 Lhc0
s_and_b32 s{sT0}, s{sW}, 1
s_lshl_b32 s{sT0}, s{sT0}, 10
s_add_u32 s{sCg}, s{sCg}, s{sT0}
s_add_u32 s{sC1}, s{sCg}, 4096
{cs_loads()}
Lhc0:""")
if not LATEP: e(flags_issue(sKf))
e(f"s_mov_b32 s{sSt}, 1\ns_barrier")
if LATEP: e(flags_issue(sKf))
def kv_try(tag):
    e(f"""s_cmp_eq_u32 s{sSt}, 0
    s_cbranch_scc1 Lkt2_{tag}
    s_waitcnt vmcnt(0)
    v_cmp_ne_u64 vcc, s[{sNo}:{sNo+1}], {vr(vPoll,2)}
    s_cbranch_vccnz Lkt1_{tag}""")
    kv_dma(tag)
    e(f"v_mov_b32 v{vT0}, {KFL}\nds_write_b32 v{vT0}, v{hF+1} offset:16\ns_mov_b32 s{sSt}, 0\ns_branch Lkt2_{tag}\nLkt1_{tag}:")
    e(flags_issue(sKf))
    e(f"Lkt2_{tag}:")
e(f"s_cmp_lg_u32 s{sW}, 1\ns_cbranch_scc1 Lhnc")
gelu_consts(hW, hW+1, hW+8); gelu_consts(hW+4, hW+5, hW+12)
e(f"""v_add_u32 v{vT0}, {STATM}, v{vL16}
ds_write_b128 v{vT0}, {vr(hW+8,4)}
ds_write_b128 v{vT0}, {vr(hW+12,4)} offset:1024
Lhnc:""")
kv_try("a")
e(f"""s_cmp_lt_u32 s{sW}, 2
s_cbranch_scc1 Lhc3
s_mov_b32 s{sT0}, 0
s_branch Lhc2
Lhc1:
s_sleep 2
{cs_loads()}
s_waitcnt vmcnt(0)
Lhc2:
s_add_u32 s{sT0}, s{sT0}, 1
v_cmp_ne_u64 vcc, s[{sNo}:{sNo+1}], {vr(hW+2,2)}
v_cmp_ne_u64 s[{sEx}:{sEx+1}], s[{sNo}:{sNo+1}], {vr(hW+6,2)}
s_or_b64 vcc, vcc, s[{sEx}:{sEx+1}]
v_cmp_ne_u64 s[{sEx}:{sEx+1}], s[{sNo}:{sNo+1}], {vr(hW+10,2)}
s_or_b64 vcc, vcc, s[{sEx}:{sEx+1}]
v_cmp_ne_u64 s[{sEx}:{sEx+1}], s[{sNo}:{sNo+1}], {vr(hW+14,2)}
s_or_b64 vcc, vcc, s[{sEx}:{sEx+1}]
s_cmp_ge_u32 s{sT0}, 100000
s_cbranch_scc1 Lhc4
s_cbranch_vccnz Lhc1
Lhc4:
v_add_f32 v{hW}, v{hW}, v{hW+4}
v_add_f32 v{hW+1}, v{hW+1}, v{hW+5}
v_add_f32 v{hW+8}, v{hW+8}, v{hW+12}
v_add_f32 v{hW+9}, v{hW+9}, v{hW+13}
s_and_b32 s{sT0}, s{sW}, 1
s_lshl_b32 s{sT0}, s{sT0}, 9
s_add_u32 s{sT0}, s{sT0}, {CSUM}
v_lshl_add_u32 v{vT0}, v{vLane}, 3, s{sT0}
v_add_f32 v{hW}, v{hW}, v{hW+8}
v_add_f32 v{hW+1}, v{hW+1}, v{hW+9}
v_cmp_gt_u32 vcc, {CSUM+896}, v{vT0}
s_and_saveexec_b64 s[{sEx}:{sEx+1}], vcc
ds_write_b64 v{vT0}, {vr(hW,2)}
s_mov_b64 exec, -1
Lhc3:""")
e("s_waitcnt lgkmcnt(0)\ns_barrier")
if not LATEP: kv_try("b")
stamp(1)
e("s_waitcnt lgkmcnt(0)\ns_barrier\ns_branch Lp2")

cX = [8, 24]; cW = 40; cRX, cRW, cRQ = 68, 70, 72; cCs = 76; cO = 92; cA = 96
e("Lcomp:")
entry_stamp(True)
late_srd(LS_F)
e(f"""v_and_b32 v{vT0}, 15, v{vLane}
v_lshrrev_b32 v{vT1}, 1, v{vT0}
v_lshrrev_b32 v{vT2}, 4, v{vLane}
v_xor_b32 v{vT1}, v{vT1}, v{vT2}
v_lshlrev_b32 v{vT0}, 7, v{vT0}
s_and_b32 s{sT0}, s{sW}, 1
s_lshl_b32 s{sT0}, s{sT0}, 13
v_add_u32 v{vT0}, s{sT0}, v{vT0}
v_lshl_add_u32 v{cRX}, v{vT1}, 4, v{vT0}
v_xor_b32 v{cRX+1}, 64, v{cRX}""")
tr_lane(192, cRW)
e(f"""s_lshl_b32 s{sT1}, s{sW}, 4
s_and_b32 s{sT1}, s{sT1}, 32
v_xor_b32 v{cRW}, s{sT1}, v{cRW}
v_xor_b32 v{cRW+1}, 32, v{cRW}
s_lshl_b32 s{sT2}, s{sT1}, 1
v_add_u32 v{cRW}, s{sT2}, v{cRW}
s_lshl_b32 s{sT2}, s{sT1}, 2
v_add_u32 v{cRW+1}, s{sT2}, v{cRW+1}""")
tr_lane(64, cRQ); e(f"v_xor_b32 v{cRQ}, s{sT1}, v{cRQ}")
ones_col0(cO)
cEh, cEs, cEq = 73, 74, 75
cEc, cEw = 212, 213
e(f"""s_bfe_u32 s{sT2}, s{sW}, 0x10001
s_mul_i32 s{sT2}, s{sT2}, 448
s_add_u32 s{sT2}, s{sT2}, {CSUM}
s_and_b32 s{sT1}, s{sW}, 1
s_lshl_b32 s{sT1}, s{sT1}, 6
s_add_u32 s{sT1}, s{sT2}, s{sT1}
v_and_b32 v{cEc}, 48, v{vLane}
v_add_u32 v{cEc}, s{sT2}, v{cEc}
v_add_u32 v{cEw}, s{sT1}, v{vLane}""")
e(f"""s_lshl_b32 s{sT0}, s{sI}, 2
s_and_b32 s{sT1}, s{sW}, 1
s_lshl_b32 s{sT1}, s{sT1}, 1
s_add_u32 s{sT0}, s{sT0}, s{sT1}
s_mul_i32 s{sT0}, s{sT0}, 88
s_mul_i32 s{sT1}, s{sJ}, 6
s_min_u32 s{sT1}, s{sT1}, 80
s_bfe_u32 s{sT2}, s{sW}, 0x10001
s_mul_i32 s{sT2}, s{sT2}, 3
s_add_u32 s{sT1}, s{sT1}, s{sT2}
s_and_b32 s{sT2}, s{sW}, 2""")
for add, dst in enumerate((sC0, sC1, sC2)):
    e(f"""s_add_u32 s{sT3}, s{sT1}, {add}
    s_lshr_b32 s{dst}, s{sT3}, 2
    s_add_u32 s{dst}, s{dst}, s{sT0}
    s_and_b32 s{sT3}, s{sT3}, 3
    s_mul_i32 s{sT3}, s{sT3}, 22
    s_add_u32 s{dst}, s{dst}, s{sT3}
    s_lshl_b32 s{dst}, s{dst}, 10
    s_add_u32 s{dst}, s{dst}, {HIMG}""")
e(f"""v_bfe_u32 v{vT0}, v{vLane}, 4, 1
v_lshlrev_b32 v{vT0}, 9, v{vT0}
v_and_b32 v{vT1}, 15, v{vLane}
v_lshl_add_u32 v{vT0}, v{vT1}, 4, v{vT0}
v_lshl_add_u32 v{cEh}, v{vH}, 8, v{vT0}
s_and_b32 s{sT0}, s{sW}, 1
s_lshl_b32 s{sT1}, s{sT0}, 10
s_add_u32 s{sT1}, s{sT1}, {STATM}
v_lshl_add_u32 v{cEs}, v{vT1}, 4, s{sT1}
s_lshl_b32 s{sT0}, s{sT0}, 12
s_lshl_b32 s{sT2}, s{sT2}, 9
s_add_u32 s{sT0}, s{sT0}, s{sT2}
s_add_u32 s{sT0}, s{sT0}, {QIMG}
v_lshl_add_u32 v{vT0}, v{vH}, 3, v{vT0}
v_add_u32 v{cEq}, s{sT0}, v{vT0}""")
f_init()
for r in list(range(cCs, cCs+16, 2)) + [r for r in range(cA, cA+112, 2) if not vRs <= r < vRs+16]: e(f"v_mov_b64 {vr(r,2)}, 0")
tstamp(13)
e("s_waitcnt vmcnt(0)")
tstamp(21)
rowstat_finish()
rowstat_post()
tstamp(23)
if "--touch" in sys.argv:
    e(f"""s_and_b32 s{sT2}, s{sI}, 7
    s_mul_i32 s{sT2}, s{sT2}, 48
    s_add_u32 s{sT2}, s{sT2}, 128
    s_cmp_ge_u32 s{sW}, 6
    s_cbranch_scc1 Ltc6
    v_lshrrev_b32 v{vT0}, 1, v{vLane}
    v_mul_u32_u24 v{vT0}, 2752, v{vT0}
    v_and_b32 v{vT1}, 1, v{vLane}
    v_lshl_add_u32 v{vT0}, v{vT1}, 7, v{vT0}
    s_mul_i32 s{sT0}, s{sJ}, 96
    s_min_u32 s{sT0}, s{sT0}, 1280
    s_lshl_b32 s{sT0}, s{sT0}, 1
    s_mul_i32 s{sT2}, s{sT2}, 2752
    s_add_u32 s{sT0}, s{sT0}, s{sT2}
    s_add_u32 s{sT1}, s{sT0}, {32*2752}
    s_cmp_eq_u32 s{sW}, 5
    s_cbranch_scc1 Ltc5
    buffer_load_dword v79, v{vT0}, {sr(SWG,4)}, s{sT0} offen
    s_mov_b32 exec_hi, 0
    buffer_load_dword v79, v{vT0}, {sr(SWG,4)}, s{sT1} offen
    s_branch Ltce
    Ltc5:
    buffer_load_dword v79, v{vT0}, {sr(SWU,4)}, s{sT0} offen
    s_mov_b32 exec_hi, 0
    buffer_load_dword v79, v{vT0}, {sr(SWU,4)}, s{sT1} offen
    s_branch Ltce
    Ltc6:
    s_cmp_eq_u32 s{sW}, 7
    s_cbranch_scc1 Ltc7
    v_lshrrev_b32 v{vT0}, 1, v{vLane}
    v_lshlrev_b32 v{vT0}, 10, v{vT0}
    v_and_b32 v{vT1}, 1, v{vLane}
    v_lshl_add_u32 v{vT0}, v{vT1}, 7, v{vT0}
    s_lshl_b32 s{sT0}, s{sI}, 17
    s_and_b32 s{sT1}, s{sJ}, 3
    s_lshl_b32 s{sT1}, s{sT1}, 15
    s_add_u32 s{sT0}, s{sT0}, s{sT1}
    buffer_load_dword v79, v{vT0}, {sr(SX,4)}, s{sT0} offen offset:256
    buffer_load_dword v79, v{vT0}, {sr(SX,4)}, s{sT0} offen offset:512
    buffer_load_dword v79, v{vT0}, {sr(SX,4)}, s{sT0} offen offset:768
    s_branch Ltce
    Ltc7:
    v_lshlrev_b32 v{vT0}, 10, v{vLane}
    s_lshl_b32 s{sT2}, s{sT2}, 10
    s_lshl_b32 s{sT0}, s{sJ}, 6
    s_add_u32 s{sT0}, s{sT0}, s{sT2}
    s_mov_b32 exec_hi, 0xffff
    buffer_load_dword v79, v{vT0}, {sr(SWQ,4)}, s{sT0} offen
    Ltce:
    s_mov_b64 exec, -1""")
e("s_nop 1")
for r in range(vRs, vRs+16, 2): e(f"v_mov_b64 {vr(r,2)}, 0")
e(f"s_mov_b32 s{sSt}, 0\ns_mov_b32 s{sRb}, 0\ns_mov_b32 s{sC3}, {(-2*STG) & 0xffffffff}\ns_setprio 2")
NF = 7
def comp_loop(var):
    tag = f"{var}"
    def wrd(n, k2):
        if n == 0: a, o, rs = cRQ, QOFF, 64
        else:
            t = (n-1) % 3
            a, o, rs = cRW+(t & 1), (GOFF if n < 4 else UOFF) + (t >> 1)*64, 192
        return tr(cW+4*n, a, o+32*k2*rs) + tr(cW+4*n+2, a, o+(32*k2+4)*rs)
    def xrd(k2): return [f"ds_read_b128 {vr(cX[k2]+4*u,4)}, v{cRX+k2} offset:{2048*u}" for u in range(4)]
    def mm(n, k2):
        r = [mfma16(cA+28*u+4*n, cW+4*n, cX[k2]+4*u) for u in range(4)]
        if var < 2 and (n & 1) == var: r.append(mfma16(cCs+4*(n >> 1), cW+4*n, cO))
        return r
    if var == 0:
        e("s_waitcnt lgkmcnt(0)\ns_barrier")
        for x in xrd(0) + sum([wrd(n, 0) for n in range(NF)], []): e(x)
        e(f"s_and_b32 s{sT0}, s{sI}, 6\ns_cmp_lg_u32 s{sT0}, 0\ns_waitcnt lgkmcnt(0)\ns_cbranch_scc1 Lc_2\ns_bitcmp1_b32 s{sW}, 0\ns_cbranch_scc1 Lc_1")
    e(f".p2align 3\nLc_{tag}:")
    adr = [f"v_add_u32 v{r}, s{sDl}, v{r}" for r in (cRX, cRX+1, cRW, cRW+1, cRQ)]
    ctl = rot_delta().split("\n") + [f"s_add_u32 s{sSt}, s{sSt}, 1"]
    BARG = 2
    def build(order0):
        out = []; q = []; issued = list(order0)
        def need(tagname):
            idx = max(i for i, t in enumerate(issued) if t == tagname)
            return len(issued)-1-idx
        def push(tagname, lst): q.extend((tagname, x) for x in lst)
        lastN = [99]
        for k2 in range(2):
            if k2 == 0: push("x1", xrd(1))
            for n in range(NF):
                if k2 == 1 and n == BARG:
                    while q:
                        t, x = q.pop(0); out.append(x)
                        if t: issued.append(t)
                    out.append(f"s_waitcnt lgkmcnt(0)\n{tk(None)}\ns_barrier\n{tk(81)}")
                    issued.clear(); issued.extend(["done"])
                    push("x0", xrd(0))
                    for m in range(BARG): push(f"w{m}0", wrd(m, 0))
                reqs = [f"w{n}{k2}"] + ([f"x{k2}"] if n == 0 else [])
                for r in reqs: assert all(t != r for t, _ in q), (r, k2, n)
                ns = [need(r) for r in reqs if r in issued]
                if ns and n % 2 == 0 or ns and min(ns) < lastN[0]:
                    nxt = f"w{n+1}{k2}"
                    if nxt in issued and all(t != nxt for t, _ in q): ns.append(need(nxt))
                    N = min(min(ns), 15); out.append(f"s_waitcnt lgkmcnt({N})"); lastN[0] = N
                for x in mm(n, k2):
                    out.append(x)
                    if q:
                        t, y = q.pop(0); out.append(y)
                        if t: issued.append(t); lastN[0] += 1
                if k2 == 0:
                    push(f"w{n}1", wrd(n, 1))
                    if n == 3: push(None, ctl)
                    if n == NF-1: push(None, adr)
                elif n >= BARG: push(f"w{n}0", wrd(n, 0))
        while q:
            t, x = q.pop(0); out.append(x)
            if t: issued.append(t)
        return out, issued
    _, steady = build([])
    out, _ = build(steady)
    for x in out: e(x)
    e(f"s_cmp_lt_u32 s{sSt}, {2 if var < 2 else 8}\ns_cbranch_scc1 Lc_{tag}")
    if var < 2:
        e(f"s_nop 2\ns_mov_b32 exec_lo, 0x00010001\ns_mov_b32 exec_hi, 0x00010001")
        for k in range(4-var): e(f"ds_write_b128 v{cEw}, {vr(cCs+4*k,4)} offset:{128*k}")
        e("s_mov_b64 exec, -1")
        if var == 0: e("s_branch Lc_2")
    tkout()
eC, eK, eT = 8, 40, 56
comp_loop(0); comp_loop(1); comp_loop(2)
tstamp(1)
for u in range(4): e(f"ds_read_b128 {vr(eK+4*u,4)}, v{cEs} offset:{256*u}")
for n in range(NF): e(f"ds_read_b128 {vr(eC+4*n,4)}, v{cEc} offset:{64*n}")
e("s_waitcnt lgkmcnt(6)")
for u in range(4): e(f"v_mul_f32 v{eT+u}, {f2u(0.25*1.4426950408889634/C1):#x}, v{eK+4*u+1}")
for u in range(4):
    for p in (0, 2): e(pk("v_pk_fma_f32", cA+28*u+p, [('b', eK+4*u), ('p', eC+p), ('p', cA+28*u+p)]))
for u in range(4):
    for p in (0, 2): e(pk("v_pk_mul_f32", cA+28*u+p, [('p', cA+28*u+p), ('b', eT+u)]))
for u in range(4):
    q = cA+28*u
    e(f"v_cvt_pk_bf16_f32 v{q}, v{q}, v{q+1}\nv_cvt_pk_bf16_f32 v{q+1}, v{q+2}, v{q+3}")
for u in range(4): e(f"ds_write_b64 v{cEq}, {vr(cA+28*u,2)} offset:{2048*(u>>1)+256*(u&1)}")
e(f"v_mov_b32 v{vT0}, {KFL}\ns_waitcnt lgkmcnt(0)\ns_barrier")
e(f"ds_read_b32 v{vT1}, v{vT0} offset:16")
ES = "--es" in sys.argv
if ES: a_sent(True)
e(f"s_waitcnt lgkmcnt(0)\nv_cmp_ne_u32 vcc, 0, v{vT1}")
gl0 = len(L)
for u in range(4):
    g = cA+28*u+4; P = cA+28*(u & 2)+4
    gelu_tile(g, g+12, eC+4, eC+16, eK+4*u, eT, 12, [P+4*(p//2)+2*(u & 1)+(p & 1) for p in range(6)])
    if u & 1:
        e("s_nop 0")
        for t in range(3):
            e(f"v_permlane32_swap_b32 v{P+4*t}, v{P+4*t+2}\nv_permlane32_swap_b32 v{P+4*t+1}, v{P+4*t+3}")
        for t, so in enumerate((sC0, sC1, sC2)):
            e(f"buffer_store_dwordx4 {vr(P+4*t,4)}, v{cEh}, {sr(SWS,4)}, s{so} offen sc1")
        if u == 1: e(f"v_add_u32 v{cEh}, {88*1024}, v{cEh}")
body = L[gl0:]; del L[gl0:]
e(f"s_lshl_b32 s{sT1}, s{sW4}, 12")
items = []
for n in range(12):
    t = f"s_cbranch_vccz Lgk{n}\n"
    if n % 2 == 0: t += f"s_add_u32 s{sT0}, s{sT1}, {36*1024+8192*n}\ns_mov_b32 m0, s{sT0}\ns_nop 0\n"
    for k in range(2): t += f"buffer_load_dwordx4 v{vL16}, {sr(SWS,4)}, s{sT0} offen offset:{1024*(2*(n%2)+k)} sc1 lds\n"
    items.append(t + f"Lgk{n}:")
cut = (len(body)*3)//4
for x in interleave(body[:cut], items) + body[cut:]: e(x)
e(f"""s_cbranch_vccnz Lgk
s_mov_b32 s{sT0}, 0
s_setprio 0
Lgw:
s_sleep 2
ds_read_b32 v{vT1}, v{vT0} offset:16
s_add_u32 s{sT0}, s{sT0}, 1
s_waitcnt lgkmcnt(0)
v_cmp_ne_u32 vcc, 0, v{vT1}
s_cmp_ge_u32 s{sT0}, 2000000
s_cbranch_scc1 LFkv
s_cbranch_vccz Lgw
s_branch LFkv
Lgk:""")
e(tag_issue())
stamp(2)
tflush(); TS.clear(); rt_out()
e("s_branch LF")

def cs_write(acc, slot_expr_sreg):
    e(f"""v_and_b32 v{vT0}, 1, v{vLane}
    v_lshlrev_b32 v{vT0}, 6, v{vT0}
    v_lshrrev_b32 v{vT1}, 4, v{vLane}
    v_lshl_add_u32 v{vT0}, v{vT1}, 4, v{vT0}
    v_add_u32 v{vT0}, {slot_expr_sreg}, v{vT0}
    s_mov_b32 exec_lo, 0x00030003
    s_mov_b32 exec_hi, 0x00030003
    ds_write_b128 v{vT0}, {vr(acc,4)}
    s_mov_b64 exec, -1""")
e("Lkvcu:")
entry_stamp(True)
e(tag_issue())
for x in kvx_dma(1): e(x)
late_srd(LS_A + LS_F)
e(f"""v_and_b32 v{vT0}, 31, v{vLane}
v_lshrrev_b32 v{vT1}, 1, v{vT0}
v_and_b32 v{vT1}, 7, v{vT1}
v_xor_b32 v{vT1}, v{vT1}, v{vH}
v_lshlrev_b32 v{vT0}, 7, v{vT0}
v_add_u32 v{vT0}, s{sXb}, v{vT0}""")
for ks in range(4):
    e(f"v_xor_b32 v{vT2}, {2*ks}, v{vT1}\nv_lshl_add_u32 v{vRX+ks}, v{vT2}, 4, v{vT0}")
e(f"""v_bfe_u32 v{vT0}, v{vLane}, 2, 2
v_lshl_add_u32 v{vT0}, v{vH}, 3, v{vT0}
v_bfe_u32 v{vT1}, v{vLane}, 4, 1
v_and_b32 v{vT2}, 3, v{vLane}
v_lshlrev_b32 v{vT2}, 3, v{vT2}
v_lshl_add_u32 v{vT3}, v{vT1}, 5, v{vT2}
v_lshl_add_u32 v{vRQ}, v{vT0}, 6, v{vT3}
v_lshlrev_b32 v{vT1}, 14, v{vT1}
v_lshl_add_u32 v{vRW}, v{vT0}, 5, v{vT2}
s_lshr_b32 s{sT0}, s{sW}, 2
s_lshl_b32 s{sT0}, s{sT0}, 13
s_add_u32 s{sT1}, s{sT0}, {WKV}
v_add3_u32 v{vRW}, v{vRW}, v{vT1}, s{sT1}
s_add_u32 s{sT1}, s{sT1}, s{sT0}
v_add_u32 v{vRQ}, s{sT1}, v{vRQ}
v_lshrrev_b32 v{vT0}, 2, v{vLane}
v_lshlrev_b32 v{vT0}, 10, v{vT0}
v_and_b32 v{vT1}, 3, v{vLane}
v_lshl_add_u32 v{vQa}, v{vT1}, 4, v{vT0}
v_bfe_u32 v{vT0}, v{vLane}, 4, 1
v_and_b32 v{vT1}, 15, v{vLane}
v_cmp_eq_u32 vcc, v{vT0}, v{vT1}
v_mov_b32 v{vT2}, 0x3f803f80
s_nop 0
v_cndmask_b32 v{vSel}, 0, v{vT2}, vcc""")
for k in range(1, 4): e(f"v_mov_b32 v{vSel+k}, v{vSel}")
for r in range(vCs, vCs+4): e(f"v_mov_b32 v{r}, 0")
e(f"s_waitcnt vmcnt(5) lgkmcnt(0)\ns_cmp_lt_u32 s{sW}, 4\ns_cbranch_scc1 Lkvr1")
rowstat_finish()
e("Lkvr1:\ns_barrier")
tstamp(12)
def kv_reads(c):
    r = []
    for ks in range(4):
        W = vWk + 16*(c & 1) + 4*ks
        r += [f"ds_read_b128 {vr(vXf+16*c+4*ks,4)}, v{vRX+ks} offset:{4096*c}"]
        r += tr(W, vRW, (64*c+16*ks)*32) + tr(W+2, vRW, (64*c+16*ks+4)*32)
    return r
def kstat_issue():
    return f"buffer_load_dwordx4 {vr(vSt,4)}, v{vWa0}, {sr(SWS,4)}, s{sC1} offen sc1"
for x in kv_reads(0) + kvx_dma(2) + kvx_dma(3): e(x)
e(f"""v_and_b32 v{vWa0}, 31, v{vLane}
v_lshlrev_b32 v{vWa0}, 4, v{vWa0}
s_lshl_b32 s{sT0}, s{sI}, 2
s_add_u32 s{sT0}, s{sT0}, s{sW4}
s_mul_i32 s{sC0}, s{sT0}, {KVT}
s_lshl_b32 s{sC1}, s{sT0}, 9
s_add_u32 s{sC1}, s{sC1}, {STATG}""")
if "--kvt" in sys.argv: e(f"s_mov_b32 s{sT0}, {64*KVT+1024}\nbuffer_load_dword v{vSt+8}, off, {sr(SWS,4)}, s{sT0}")
for c in range(4):
    m = []
    for ks in range(4):
        X = vXf+16*c+4*ks; W = vWk + 16*(c & 1) + 4*ks
        z = "0" if c == 0 and ks == 0 else None
        m += [mfma(vAcc+16, W, X, z), mfma16(vCs, W, vSel), mfma(vAcc+32, X, W, z)]
    e("s_waitcnt lgkmcnt(0)")
    if c < 3:
        wt = f"s_waitcnt vmcnt({8-4*c})"
        if c:
            wt = f"s_waitcnt vmcnt({10-4*c})\ns_cmp_ge_u32 s{sW}, 4\ns_cbranch_scc1 Lkx{c}\n{wt}\nLkx{c}:"
        for x in m[:3] + [wt] + interleave(m[3:9], kv_reads(c+1)) + m[9:]: e(x)
        if c == 0:
            tag_wait("k", 8)
            e(f"s_cmp_lt_u32 s{sW}, 4\ns_cbranch_scc1 Lkvr2")
            rowstat_store()
            e("Lkvr2:")
    else:
        e(kstat_issue())
        for x in m: e(x)
tstamp(1)
e(f"""v_and_b32 v{vT2}, 31, v{vLane}
v_lshlrev_b32 v{vT2}, 2, v{vT2}
s_xor_b32 s{sT2}, s{sXb}, 65536
s_add_u32 s{sT1}, s{sXb}, 4352
s_lshl_b32 s{sQo}, s{sW}, 16
s_add_u32 s{sQo}, s{sQo}, {64*15}
s_lshl_b32 s{sMq}, s{sW}, 12
s_add_u32 s{sMq}, s{sMq}, {WKV}""")
cs_write(vCs, f"s{sT1}")
e(f"""v_add_u32 v{vT0}, s{sXb}, v{vL16}
v_add_u32 v{vWa1}, s{sT2}, v{vL16}
v_add_u32 v{vWa2}, s{sT2}, v{vT2}
v_lshl_add_u32 v{vT3}, v{vH}, 4, s{sXb}
s_cmp_ge_u32 s{sW}, 4
s_cbranch_scc1 LkvH""")
def wq_dma():
    for k in range(4):
        e(f"s_add_u32 m0, s{sMq}, {1024*k}\ns_add_u32 s{sT0}, s{sQo}, {16384*k}\nbuffer_load_dwordx4 v{vQa}, {sr(SWQ,4)}, s{sT0} offen lds")
def kstat_wait(tag):
    e(f"""s_mov_b32 s{sT0}, 0
    s_waitcnt vmcnt(0)
    Lks_{tag}:
    v_cmp_ne_u64 vcc, s[{sNo}:{sNo+1}], {vr(vSt+2,2)}
    s_add_u32 s{sT0}, s{sT0}, 1
    s_cmp_ge_u32 s{sT0}, 100000
    s_cbranch_vccz Lksd_{tag}
    s_cbranch_scc1 Lksd_{tag}
    {kstat_issue()}
    s_waitcnt vmcnt(0)
    s_branch Lks_{tag}
    Lksd_{tag}:""")
for q in range(4): e(f"ds_write_b128 v{vT0}, {vr(vAcc+32+4*q,4)} offset:{1024*q}")
e(f"v_xor_b32 v{vT1}, 0x10000, v{vT3}\ns_waitcnt lgkmcnt(0)\ns_barrier")
e(f"""ds_read_b128 {vr(vWk,4)}, v{vWa1}
ds_read_b128 {vr(vWk+4,4)}, v{vWa1} offset:1024
ds_read_b128 {vr(vSt+12,4)}, v{vT3} offset:{4352+64}
ds_read_b128 {vr(vSt+16,4)}, v{vT3} offset:{4352+96}
ds_read_b128 {vr(vWk+8,4)}, v{vT1} offset:{4352+64}
ds_read_b128 {vr(vWk+12,4)}, v{vT1} offset:{4352+96}""")
e(f"""v_and_b32 v{vT0}, 0x33, v{vLane}
v_bfe_u32 v{vT1}, v{vLane}, 2, 1
v_lshl_or_b32 v{vT0}, v{vT1}, 3, v{vT0}
v_bfe_u32 v{vT1}, v{vLane}, 3, 1
v_lshl_or_b32 v{vT0}, v{vT1}, 2, v{vT0}
v_lshlrev_b32 v{vT0}, 4, v{vT0}
s_waitcnt lgkmcnt(0)""")
for p in range(0, 8, 2):
    e(pk("v_pk_add_f32", vAcc+24+p, [('p', vAcc+24+p), ('p', vWk+p)]))
    e(pk("v_pk_add_f32", vSt+12+p, [('p', vSt+12+p), ('p', vWk+8+p)]))
kstat_wait("l")
e(f"v_sub_f32 v{vSt+4}, 0, v{vSt}")
lin_fold(vAcc+24, vSt+12, vSt+4, vSt+1, 8)
for p in range(4): e(f"v_cvt_pk_bf16_f32 v{vAcc+16+p}, v{vAcc+24+2*p}, v{vAcc+25+2*p}")
e(f"buffer_store_dwordx4 {vr(vAcc+16,4)}, v{vT0}, {sr(SWS,4)}, s{sC0} offen sc1\ns_branch LkvS")
e("LkvH:")
e(f"ds_write_b128 v{vT0}, {vr(vAcc+24,4)}\nds_write_b128 v{vT0}, {vr(vAcc+28,4)} offset:1024")
e(f"v_add_u32 v{vT1}, s{sXb}, v{vT2}\ns_waitcnt lgkmcnt(0)\ns_barrier")
e(f"ds_read_b32 v{vSt+6}, v{vT1} offset:4352\nds_read_b32 v{vSt+7}, v{vWa2} offset:4352")
for q in range(4): e(f"ds_read_b128 {vr(vAcc+48+4*q,4)}, v{vWa1} offset:{1024*q}")
tstamp(21)
kstat_wait("h")
tstamp(23)
e(f"ds_write_b32 v{vT1}, v{vSt} offset:4608\nds_write_b32 v{vT1}, v{vSt+1} offset:4736\ns_waitcnt lgkmcnt(0)")
for q in range(4):
    e(f"ds_read_b128 {vr(vWk+4*q,4)}, v{vT3} offset:{4608+32*q}\nds_read_b128 {vr(vWk+16+4*q,4)}, v{vT3} offset:{4736+32*q}")
e(f"v_add_f32 v{vSt+6}, v{vSt+6}, v{vSt+7}\nv_sub_f32 v{vSt+6}, 0, v{vSt+6}")
for p in range(0, 16, 2): e(pk("v_pk_add_f32", vAcc+32+p, [('p', vAcc+32+p), ('p', vAcc+48+p)]))
e("s_waitcnt lgkmcnt(0)")
for p in range(0, 16, 2): e(pk("v_pk_fma_f32", vAcc+32+p, [('p', vWk+p), ('b', vSt+6), ('p', vAcc+32+p)]))
for p in range(0, 16, 2): e(pk("v_pk_mul_f32", vAcc+32+p, [('p', vAcc+32+p), ('p', vWk+16+p)]))
for p in range(8): e(f"v_cvt_pk_bf16_f32 v{vAcc+32+p}, v{vAcc+32+2*p}, v{vAcc+33+2*p}")
v_lane_addr(vT0)
for p in range(8): e(f"v_mov_b32 v{vAcc+32+p}, 0x3f803f80")
e(f"""s_mov_b32 exec_lo, 0x1ffff
s_mov_b32 exec_hi, 0xffff
buffer_store_dwordx4 {vr(vAcc+32,4)}, v{vT0}, {sr(SWS,4)}, s{sC0} offen offset:1024 sc1
buffer_store_dwordx4 {vr(vAcc+36,4)}, v{vT0}, {sr(SWS,4)}, s{sC0} offen offset:{1024+528} sc1
s_mov_b64 exec, -1""")
tstamp(29)
e("LkvS:")
wq_dma()
for r in range(4): e(f"v_mov_b32 v{vCs+r}, 0")
e(f"s_lshl_b32 s{sT2}, s{sI}, 7\ns_add_u32 s{sT2}, s{sT2}, {KFLG}\ns_waitcnt vmcnt(4)\ns_barrier")
if "--dkv" in sys.argv:
    for _ in range(3): e("s_sleep 127")
flag_set(sT2, "kv")
stamp(13)
tflush(); TS.clear(); rt_out()
e("s_waitcnt vmcnt(0)\ns_barrier")
def q_reads(c):
    r = []
    for ks in range(4):
        W = vWk + 16*(c & 1) + 4*ks
        r += tr(W, vRQ, (64*c+16*ks)*64) + tr(W+2, vRQ, (64*c+16*ks+4)*64)
    return r
for x in q_reads(0): e(x)
for c in range(4):
    m = []
    for ks in range(4):
        X = vXf+16*c+4*ks; W = vWk + 16*(c & 1) + 4*ks
        m += [mfma(vAcc, W, X, "0" if c == 0 and ks == 0 else None), mfma16(vCs, W, vSel)]
    e("s_waitcnt lgkmcnt(0)")
    for x in interleave(m[:4], q_reads(c+1) if c < 3 else []) + m[4:]: e(x)
e(f"""s_or_b32 s{sT2}, s{sXb}, {65536+8192}
s_lshr_b32 s{sT3}, s{sW}, 2
s_lshl_b32 s{sT3}, s{sT3}, 7
s_add_u32 s{sT1}, s{sT2}, s{sT3}
s_add_u32 s{sT1}, s{sT1}, 4096
v_add_u32 v{vWa1}, s{sT2}, v{vL16}
v_lshl_add_u32 v{vT3}, v{vH}, 4, s{sT2}
s_nop 3""")
cs_write(vCs, f"s{sT1}")
e(f"s_cmp_ge_u32 s{sW}, 4\ns_cbranch_scc1 LkvH2\ns_waitcnt lgkmcnt(0)\ns_barrier")
for q in range(4): e(f"ds_read_b128 {vr(vWk+4*q,4)}, v{vWa1} offset:{1024*q}")
cs_read(vAcc+48, 4096); cs_read(vWk+16, 4096+128)
e("s_waitcnt lgkmcnt(0)")
for p in range(0, 16, 2):
    e(pk("v_pk_add_f32", vAcc+p, [('p', vAcc+p), ('p', vWk+p)]))
    e(pk("v_pk_add_f32", vAcc+48+p, [('p', vAcc+48+p), ('p', vWk+16+p)]))
q_epilogue(vAcc+48)
a_init(); fin_init()
e("s_waitcnt lgkmcnt(0)\ns_barrier\ns_branch LaR\nLkvH2:")
for q in range(4): e(f"ds_write_b128 v{vWa1}, {vr(vAcc+4*q,4)} offset:{1024*q}")
e(f"s_mov_b32 s{sKf}, {KFLG}")
e(flags_issue(sKf))
e("s_waitcnt lgkmcnt(0)\ns_barrier")
f_init()
flags_wait(sKf, "kv2", 0)
kv_dma("c")
e("s_waitcnt vmcnt(0)\ns_barrier")
if ES: a_sent(True)
e("s_branch LFkv")

AAL = 6 if "--a6" in sys.argv else 3
vm = []
def vtag(tag): vm.append(tag)
def vwait_s(tag):
    idx = max(i for i, t in enumerate(vm) if t == tag)
    return f"s_waitcnt vmcnt({min(63, len(vm)-1-idx)})"
def emit_seq(seq):
    for x in seq:
        if isinstance(x, list): emit_seq(x)
        elif isinstance(x, tuple): vtag(x[0]); e(x[1])
        elif callable(x): e(x())
        else: e(x)
e(f"Lp2:\ns_setprio 3\ns_cmp_eq_u32 s{sSt}, 0\ns_cbranch_scc1 Lkvok")
stamp(16)
flags_wait(sKf, "kv", 0)
stamp(17)
kv_dma("d")
e(f"v_mov_b32 v{vT0}, {KFL}\nds_write_b32 v{vT0}, v{hF+1} offset:16")
e(f"""Lkvok:
v_mov_b32 v{vT0}, {KFL}
s_mov_b32 s{sT0}, 0
s_waitcnt vmcnt(0)
ds_write_b32 v{hF}, v{hF+1}
Lkw:
ds_read_b128 {vr(aS[0],4)}, v{vT0}
s_add_u32 s{sT0}, s{sT0}, 1
s_waitcnt lgkmcnt(0)
v_and_b32 v{aS[0]}, v{aS[0]}, v{aS[0]+1}
v_and_b32 v{aS[0]+2}, v{aS[0]+2}, v{aS[0]+3}
v_and_b32 v{aS[0]}, v{aS[0]}, v{aS[0]+2}
v_cmp_ne_u32 vcc, 0, v{aS[0]}
s_cmp_ge_u32 s{sT0}, 2000000
s_cbranch_scc1 LaR
s_cbranch_vccnz LaR
s_sleep 1
s_branch Lkw
LaR:""")
stamp(3)
e(f"""ds_read_b128 {vr(aQ[0],4)}, v{vAq}
ds_read_b128 {vr(aK[0],4)}, v{vAk}
ds_read_b128 {vr(aQ[1],4)}, v{vAq} offset:1024
ds_read_b128 {vr(aK[1],4)}, v{vAk} offset:{KVT}
ds_read_b128 {vr(aVl[0],4)}, v{vAv}
ds_read_b128 {vr(aVh[0],4)}, v{vAv} offset:528
s_waitcnt lgkmcnt(4)""")
e(mfma(aS[0], aK[0], aQ[0], "0"))
e("s_waitcnt lgkmcnt(3)")
e(mfma(aS[1], aK[0], aQ[1], "0"))
e("s_nop 9")
for b in range(2):
    t = vT0+2*b; S = aS[b]
    e(f"v_max3_f32 v{t}, v{S}, v{S+1}, v{S+2}")
    for p in range(3, 15, 2): e(f"v_max3_f32 v{t}, v{t}, v{S+p}, v{S+p+1}")
    e(f"v_max_f32 v{t}, v{t}, v{S+15}\nv_mov_b32 v{t+1}, v{t}")
e(f"""s_nop 1
v_permlane32_swap_b32 v{vT0}, v{vT1}
v_permlane32_swap_b32 v{vT2}, v{vT3}
s_mov_b32 s{sSt}, 0
v_max_f32 v{vT0}, v{vT0}, v{vT1}
v_max_f32 v{vT2}, v{vT2}, v{vT3}""")
for b in range(2):
    e(f"v_sub_f32 v{aC[b]}, 0, v{vT0+2*b}\nv_sub_f32 v{aC[b]+1}, 0, v{vT0+2*b}")
for r in range(16): e(f"v_sub_f32 v{aS[0]+r}, v{aS[0]+r}, v{vT0}")
for b in (1, 0):
    for r in range(2, 16, 2): e(f"v_mov_b64 {vr(aC[b]+r,2)}, {vr(aC[b],2)}")
e("s_setprio 1")
stamp(5)
e(f"v_exp_f32 v{aS[0]}, v{aS[0]}\nv_exp_f32 v{aS[0]+1}, v{aS[0]+1}\ns_branch La1\n.p2align {AAL}\nLa0:")
for n in range(32):
    b = n & 1; T = n >> 1
    X = aS[b]; Y = aS[b ^ 1]
    ex = [f"v_exp_f32 v{X+i}, v{X+i}" for i in range(16)]
    Tp = (n-1) >> 1; Tn = (n+1) >> 1
    seq = ex[0:2] + [smf(aO[b ^ 1], aVh[Tp & 1], Y+8, vIdx)] + (["La1:"] if n == 0 else []) + ex[2:5]
    seq += [mfma(Y, aK[Tn & 1], aQ[b ^ 1], vr(aC[b ^ 1], 16))]
    if b:
        rd = [f"ds_read_b128 {vr(aVl[(T+1)&1],4)}, v{vAv} offset:{(T+1)*KVT}",
              f"ds_read_b128 {vr(aVh[(T+1)&1],4)}, v{vAv} offset:{(T+1)*KVT+528}",
              f"ds_read_b128 {vr(aK[T&1],4)}, v{vAk} offset:{(T+2)*KVT}"]
        seq += rd + ex[5:10]
    else: seq += ["s_waitcnt lgkmcnt(0)"] + ex[5:10]
    seq += [smf(aO[b], aVl[T & 1], X, vIdx)] + ex[10:16]
    for x in seq: e(x)
if PROF:
    e(f"s_memtime s[{sTm}:{sTm+1}]\ns_lshl_b32 s{sT0}, s{sSt}, 2\ns_add_u32 s{sT0}, s{sT0}, s{sPo}\ns_waitcnt lgkmcnt(0)\nv_mov_b32 v0, s{sTm}\nbuffer_store_dword v0, off, {sr(SWS,4)}, s{sT0} offset:72")
e(f"""v_add_u32 v{vAk}, {16*KVT}, v{vAk}
v_add_u32 v{vAv}, {16*KVT}, v{vAv}
s_add_u32 s{sSt}, s{sSt}, 1
s_cmp_eq_u32 s{sSt}, 1
s_cbranch_scc0 La2
{'' if PROF else 's_waitcnt vmcnt(0)'}
s_barrier
s_branch La0
La2:
s_cmp_lt_u32 s{sSt}, 4
s_cbranch_scc1 La0""")
e(smf(aO[1], aVh[1], aS[1]+8, vIdx))
if "--dA" in sys.argv:
    e(f"s_and_b32 s{sT0}, s2, 0x29\ns_cmp_lg_u32 s{sT0}, 0\ns_cbranch_scc1 LdA\ns_sleep 127\ns_sleep 127\nLdA:")
e(f"s_mov_b32 s{sC0}, {f2u(2.0**40):#x}\ns_mov_b32 s{sC1}, {f2u(2.0**126):#x}")
for b in range(2):
    O = aO[b]
    e(f"s_mov_b32 s{sRetry}, 0\nLfin{b}:")
    e(f"""v_rcp_f32 v{O+10}, v{O+8}
    v_max3_f32 v{vT1}, abs(v{O}), abs(v{O+1}), abs(v{O+2})
    v_max3_f32 v{vT1}, v{vT1}, abs(v{O+3}), abs(v{O+4})
    v_max3_f32 v{vT1}, v{vT1}, abs(v{O+5}), abs(v{O+6})
    v_max_f32 v{vT1}, v{vT1}, abs(v{O+7})
    v_cmp_nlt_f32 vcc, v{O+8}, s{sC0}
    v_cmp_nlt_f32 s[{sEx}:{sEx+1}], v{vT1}, s{sC1}""")
    for p in range(8): e(f"v_mul_f32 v{O+p}, v{O+p}, v{O+10}")
    e(f"s_or_b64 vcc, vcc, s[{sEx}:{sEx+1}]")
    for p in range(4): e(f"v_cvt_pk_bf16_f32 v{O+p}, v{O+2*p}, v{O+2*p+1}")
    for p in range(4): e(f"v_min_u32 v{O+p}, -2, v{O+p}")
    e(f"s_cbranch_vccnz Lfallback{b}\nLok{b}:")
    e(f"buffer_store_dwordx4 {vr(O,4)}, v{vL16}, {sr(SWS,4)}, s{sOp if b == 0 else sOp2} offen sc1")
stamp(6)
OSC = " sc1"
gX = [136, 140]; gG = [144, 176]; gR = [8, 40]
e(f"buffer_load_dwordx4 {vr(gX[0],4)}, v{vRa}, {sr(SX,4)}, s{sXf} offen")
e(f"buffer_load_dwordx4 {vr(gX[1],4)}, v{vRa}, {sr(SX,4)}, s{sXf2} offen")
e("s_waitcnt lgkmcnt(0)\ns_setprio 0\ns_barrier\ns_barrier")
stamp(8)
for tt in range(2):
    for q in range(8): e(f"ds_read_b128 {vr(gG[tt]+4*q,4)}, v{vRr} offset:{128*tt+XK*(q//2)+512*(q%2)}")
def sum4(r):
    for p in range(0, 8, 2):
        e(pk("v_pk_add_f32", r+p, [('p', r+p), ('p', r+8+p)]))
        e(pk("v_pk_add_f32", r+16+p, [('p', r+16+p), ('p', r+24+p)]))
    for p in range(0, 8, 2): e(pk("v_pk_add_f32", r+p, [('p', r+p), ('p', r+16+p)]))
for tt in range(2):
    G = gG[tt]
    e(f"s_waitcnt lgkmcnt({8*(1-tt)})")
    for p in range(8): e(f"v_add_f32 v{G+p}, v{G+p}, v{G+8+p}\nv_add_f32 v{G+16+p}, v{G+16+p}, v{G+24+p}")
    for p in range(8): e(f"v_add_f32 v{G+p}, v{G+p}, v{G+16+p}")
    for p in range(8): e(f"v_mul_f32 v{G+8+p}, {f2u(-1.4426950408889634):#x}, v{G+p}")
    for p in range(8): e(f"v_exp_f32 v{G+8+p}, v{G+8+p}")
    for p in range(8): e(f"v_add_f32 v{G+8+p}, 1.0, v{G+8+p}")
    for p in range(8): e(f"v_rcp_f32 v{G+8+p}, v{G+8+p}")
    e("s_waitcnt vmcnt(0)")
    for p in range(4): e(f"v_lshlrev_b32 v{G+16+2*p}, 16, v{gX[tt]+p}\nv_and_b32 v{G+17+2*p}, 0xffff0000, v{gX[tt]+p}")
    for p in range(8): e(f"v_mul_f32 v{G+p}, v{G+p}, v{G+8+p}")
stamp(9)
e("s_barrier")
for tt in range(2):
    for q in range(8): e(f"ds_read_b128 {vr(gR[tt]+4*q,4)}, v{vRr2} offset:{128*tt+XK*(q//2)+512*(q%2)}")
for tt in range(2):
    R = gR[tt]; G = gG[tt]
    e(f"s_waitcnt lgkmcnt({8*(1-tt)})")
    sum4(R)
    for p in range(0, 8, 2): e(pk("v_pk_fma_f32", R+p, [('p', R+p), ('p', G+p), ('p', G+16+p)]))
    for p in range(4): e(f"v_cvt_pk_bf16_f32 v{R+p}, v{R+2*p}, v{R+2*p+1}")
    e(f"buffer_store_dwordx4 {vr(R,4)}, v{vRa}, {sr(SOUT,4)}, s{sXf if tt == 0 else sXf2} offen{OSC}")
def the_end():
    stamp(11)
    if RT: e(f"s_waitcnt vmcnt(0)\ns_memrealtime s[100:101]\ns_waitcnt lgkmcnt(0)\nv_mov_b32 v0, s100\nbuffer_store_dword v0, off, {sr(SWS,4)}, s{sPo} offset:56")
the_end()
e("Lend:\ns_endpgm")

e("LFkv:")
kv_rest("k")
e("LF:")
if FS and not ES: a_sent(True)
tag_wait("f", 0)
e("s_setprio 0\ns_barrier")
flag_set(sHs, "h", 4)
RG = SP + [aslot(n) for n in range(4)]
def u_dma(m):
    srdw, row = (SWO, 64*m) if m < 8 else (SWD, 64*(m-8))
    return [f"s_add_u32 m0, s{sDm}, {RG[m % 7]}", f"s_add_u32 s{sT0}, s{sDo}, {row*1024}",
            (f"u{m}", f"buffer_load_dwordx4 v{vDa}, {sr(srdw,4)}, s{sT0} offen lds"),
            (f"u{m}", f"buffer_load_dwordx4 v{vDa2}, {sr(srdw,4)}, s{sT0} offen offset:1024 lds")]
def u_reads(m, F):
    a = RG[m % 7]; win = 1 if a >= SP[0] else 0; off = a - win*SP[0]
    r0, r1 = vRd+2*win, vRd+2*win+1
    return tr(F, r0, off) + tr(F+2, r0, off+1024) + tr(F+4, r1, off) + tr(F+6, r1, off+1024)
HR = int(sys.argv[sys.argv.index("--hr")+1]) if "--hr" in sys.argv else 8
def h_loads(s):
    r = []
    if s % 4 == 0: r += [f"s_add_u32 s{sC0}, s{sHo}, {1024*s}", f"s_add_u32 s{sC1}, s{sC0}, {88*1024}"]
    for tt in range(2):
        r.append((f"h{s}", f"buffer_load_dwordx4 {vr(fH+8*(s % HR)+4*tt,4)}, v{vL16}, {sr(SWS,4)}, s{sC0 if tt == 0 else sC1} offen offset:{1024*(s%4)} sc1"))
    return r
for m in range(7): emit_seq(u_dma(m))
for m in range(8):
    e(vwait_s(f"u{m}"))
    for x in u_reads(m, fWo+8*m): e(x)
    e("s_waitcnt lgkmcnt(0)")
    emit_seq(u_dma(m+7))
tstamp(18)
e(flags_issue(sHc))
flags_wait(sHc, "h", 0)
tstamp(19)
for s in range(HR): emit_seq(h_loads(s))
for x in u_reads(8, fWb[0]): e(x)
FB = int(sys.argv[sys.argv.index("--fb")+1]) if "--fb" in sys.argv else 15
for s in range(22):
    m = 8+s; W = fWb[s & 1]
    if s == FB:
        tstamp(20); e("s_barrier\ns_setprio 2"); tstamp(21)
    if s < 21:
        e(vwait_s(f"u{m+1}"))
        for x in u_reads(m+1, fWb[(s+1) & 1]): e(x)
        e("s_waitcnt lgkmcnt(4)")
    else: e("s_waitcnt lgkmcnt(0)")
    if m+7 < 30: emit_seq(u_dma(m+7))
    e(vwait_s(f"h{s}"))
    if s == 21: e(f"s_cmp_ge_u32 s{sW4}, 2\ns_cbranch_scc1 Lskip21")
    for tt in range(2):
        for ch in range(2 if "--nofm" not in sys.argv else 0): e(mfma(fA+32*tt+16*ch, W+4*ch, fH+8*(s % HR)+4*tt, "0" if s == 0 else None))
    if s+HR < 22: emit_seq(h_loads(s+HR))
e("Lskip21:\ns_nop 8")
tstamp(22)
ORD = [7, 6, 5, 4, 3, 2, 1, 0] if M48 else [7, 6, 5, 4, 1, 0, 3, 2]
def o_load(k):
    tt, i = k & 1, k >> 1
    return f"buffer_load_dwordx4 {vr(opos(i)+4*tt,4)}, v{vL16}, {sr(SWS,4)}, s{(sOc, sOc2, sOc3, sOc4)[2*tt+(i>>2)]} offen offset:{1024*(i%4)} sc1"
def opos(i): return fO + 8*ORD.index(i)
zer = [f"v_mov_b64 {vr(fS+r,2)}, 0" for r in range(0, 64, 2)]
for q in range(16):
    e(f"ds_write_b128 v{vRw}, {vr(fA+4*q,4)} offset:{XB*(q//2)+XP*(q%2)}")
    if q >= 4: e(f"s_waitcnt lgkmcnt(4)\n{o_load(2*ORD[(q-4)//2]+(q & 1))}")
e("s_waitcnt lgkmcnt(0)\ns_barrier")
for k in range(12, 16): e(o_load(2*ORD[k//2]+(k & 1)))
tstamp(9)
def o_pair(i, tag, wait):
    B = opos(i)
    if wait is not None: e(f"s_waitcnt vmcnt({wait})")
    else: e(f"s_bitcmp1_b32 s{sSt}, {i}\ns_cbranch_scc0 Lon{tag}{i}")
    e(f"""v_max3_u32 v{vT1}, v{B}, v{B+1}, v{B+2}
    v_max3_u32 v{vT1}, v{vT1}, v{B+3}, v{B+4}
    v_max3_u32 v{vT1}, v{vT1}, v{B+5}, v{B+6}
    v_max_u32 v{vT1}, v{vT1}, v{B+7}
    v_cmp_eq_u32 vcc, s{sT1}, v{vT1}
    s_cbranch_vccnz Lon{tag}{i}
    s_bitset0_b32 s{sSt}, {i}""")
    for tt in range(2):
        for ch in range(2): e(mfma(fS+32*tt+16*ch, fWo+8*i+4*ch, B+4*tt))
    e(f"Lon{tag}{i}:")
def acc_chain(tt, ch): return [mfma(fS+32*tt+16*ch, fWo+8*i+4*ch, opos(i)+4*tt, "0" if n == 0 else None) for n, i in enumerate(ORD)]
def s_wr(tt, ch): return [f"ds_write_b128 v{vRw2+tt}, {vr(fS+32*tt+16*ch+4*q,4)} offset:{XB*(2*ch+q//2)+XP*(q%2)}" for q in range(4)]
e(f"v_mov_b32 v{vT1}, 0")
for n, x in enumerate(acc_chain(0, 0)):
    B = fO+8*n
    e(f"s_waitcnt vmcnt({14-2*n})\n{x}")
    for p in range(0, 8, 2): e(f"v_max3_u32 v{vT1}, v{vT1}, v{B+p}, v{B+p+1}")
e(f"v_cmp_eq_u32 vcc, -1, v{vT1}\ns_cbranch_vccnz Lor0")
c1, c2, c3 = acc_chain(0, 1), acc_chain(1, 0), acc_chain(1, 1)
for prev, c in (((0, 0), c1), ((0, 1), c2), ((1, 0), c3)):
    for x in [c[0], "s_nop 3", c[1], "s_nop 3", c[2]] + interleave(c[3:7], s_wr(*prev)) + c[7:]: e(x)
stamp(7)
e("s_nop 11")
for x in s_wr(1, 1): e(x)
e("Lsd:")
e("s_waitcnt lgkmcnt(0)\ns_barrier")
stamp(10); tflush(); TS.clear()
the_end()
e("s_endpgm")
e(f"Lor0:\ns_nop 8")
for x in zer: e(x)
e(f"s_mov_b32 s{sT0}, 0\ns_mov_b32 s{sSt}, 0xff\ns_mov_b32 s{sT1}, -1\ns_branch Lor2")
e("Lor:\ns_sleep 4")
for i in ORD:
    e(f"s_bitcmp1_b32 s{sSt}, {i}\ns_cbranch_scc0 Lorn{i}\n{o_load(2*i)}\n{o_load(2*i+1)}\nLorn{i}:")
e(f"""s_add_u32 s{sT0}, s{sT0}, 1
s_cmp_ge_u32 s{sT0}, 200000
s_cbranch_scc1 Lod
s_waitcnt vmcnt(0)
Lor2:""")
for i in ORD: o_pair(i, "b", None)
e(f"s_cmp_lg_u32 s{sSt}, 0\ns_cbranch_scc1 Lor\nLod:\ns_nop 6")
for tt in range(2):
    for ch in range(2):
        for x in s_wr(tt, ch): e(x)
e("s_branch Lsd")
for b in range(2):
    S = aS[0]; O = aO[b]; C = aC[b]; Q = aQ[b]
    e(f"""Lfallback{b}:
    s_cmp_lg_u32 s{sRetry}, 0
    s_cbranch_scc1 Lok{b}
    s_mov_b32 s{sRetry}, 1
    s_mov_b32 s{sSt}, 0
    v_mov_b32 v{vT1}, 0xff800000
    s_waitcnt lgkmcnt(0)
    Lfb1{b}:
    buffer_load_dwordx4 {vr(aK[0],4)}, v{vL16}, {sr(SWS,4)}, s{sSt} offen sc1
    s_waitcnt vmcnt(0)""")
    e(mfma(S, aK[0], Q, "0"))
    e("s_nop 11")
    for p in range(0, 16, 2): e(f"v_max3_f32 v{vT1}, v{vT1}, v{S+p}, v{S+p+1}")
    e(f"""s_add_u32 s{sSt}, s{sSt}, {KVT}
    s_cmp_lt_u32 s{sSt}, {64*KVT}
    s_cbranch_scc1 Lfb1{b}
    v_mov_b32 v{vT2}, v{vT1}
    s_nop 1
    v_permlane32_swap_b32 v{vT1}, v{vT2}
    s_nop 1
    v_max_f32 v{vT1}, v{vT1}, v{vT2}""")
    for r in range(16): e(f"v_sub_f32 v{C+r}, 0, v{vT1}")
    for r in range(12): e(f"v_mov_b32 v{O+r}, 0")
    e(f"""v_subrev_u32 v{vT0}, {64*KVT}, v{vAv}
    s_mov_b32 s{sSt}, 0
    Lfb2{b}:
    buffer_load_dwordx4 {vr(aK[0],4)}, v{vL16}, {sr(SWS,4)}, s{sSt} offen sc1
    buffer_load_dwordx4 {vr(aVl[0],4)}, v{vT0}, {sr(SWS,4)}, s{sSt} offen sc1
    buffer_load_dwordx4 {vr(aVh[0],4)}, v{vT0}, {sr(SWS,4)}, s{sSt} offen offset:528 sc1
    s_waitcnt vmcnt(0)""")
    e(mfma(S, aK[0], Q, vr(C, 16)))
    e("s_nop 11")
    for i in range(16): e(f"v_exp_f32 v{S+i}, v{S+i}")
    e("s_nop 1")
    e(smf(O, aVl[0], S, vIdx)); e(smf(O, aVh[0], S+8, vIdx))
    e(f"""s_add_u32 s{sSt}, s{sSt}, {KVT}
    s_cmp_lt_u32 s{sSt}, {64*KVT}
    s_cbranch_scc1 Lfb2{b}
    s_nop 9
    s_branch Lfin{b}""")
e("Lcodeend:")

L += ['.section .rodata,"a"', ".p2align 6", f".amdhsa_kernel {NAME}_kernel",
      "  .amdhsa_next_free_vgpr 256", "  .amdhsa_next_free_sgpr 102", "  .amdhsa_accum_offset 256",
      "  .amdhsa_group_segment_fixed_size 0", "  .amdhsa_kernarg_size 96", "  .amdhsa_user_sgpr_count 2",
      "  .amdhsa_user_sgpr_kernarg_segment_ptr 1", "  .amdhsa_system_sgpr_workgroup_id_x 1", ".end_amdhsa_kernel"]
open(OUT, "w").write("\n".join(L) + "\n")
print("wrote", OUT, len(L), "lines")
```

```python
import sys, struct
NAME = "recurrent_scan__grouped_kv_mqa__geglu_ffn__prompt"
PROF = "--prof" in sys.argv
OUT = [a for a in sys.argv[1:2] if not a.startswith("--")]
OUT = OUT[0] if OUT else f"cdna_kernels/{NAME}.s"

L = []
def e(s):
    for ln in s.split("\n"):
        if not ln.strip(): continue
        L.append(("    " + ln.strip()) if not ln.strip().endswith(":") else ln.strip())
def f2u(x): return struct.unpack("<I", struct.pack("<f", x))[0]
def vr(a, n): return f"v[{a}:{a+n-1}]"
def sr(a, n): return f"s[{a}:{a+n-1}]"

KVT = 2080
KVIMG = 0
HIMG = 135168
OIMG = HIMG + 64*88*1024
HFLG = OIMG + 64*32*1024
KFLG = HFLG + 256*128
STATG = KFLG + 16*128
CSG = STATG + 2048*16
PROFO = CSG + 64*2048
WS_BYTES = PROFO + 256*8*256
CNT_KV = 0
KVRDY = 128
STG = 45056
XOFF, GOFF, UOFF, QOFF = 0, 16384, 28672, 40960
STGK, QOFFK, NBK = 24832, 20736, 5
QIMG = 135168
STATM = 160768
CSUM = 162816
MRX = 159744
STL = 163712
KFL = 163776
LDS_BYTES = 163840
SX, SWQ, SWK, SWV, SWO, SWG, SWD, SOUT, SDBG, SWS = 4, 8, 12, 16, 20, 24, 28, 32, 36, 40
sI, sJ, sW, sW4 = 44, 45, 46, 47
sXo, sWo, sQo, sLb = 48, 49, 50, 51
sMx, sMw, sMq = 52, 53, 54
sSt, sDl, sT0, sT1, sT2, sT3 = 55, 56, 57, 58, 59, 60
sTB, sCS, sRetry, sRb = 61, 62, 63, 3
sEx = 88
sTm = 90
sPo = 92
sC0, sC1, sC2, sC3 = 94, 95, 96, 97
sOp = 98
TOUCH = int("--touch" in sys.argv)
vLane, vH, vT0, vT1, vT2, vT3 = 1, 2, 3, 4, 5, 6
vXa0, vXa1, vWa0, vWa1, vWa2, vQa = 7, 8, 9, 10, 11, 12
vRX = 13
vRW, vRQ = 17, 18
vSel = 20
vCs = 24
vF = 32
vAcc = 96
vSt = 160
aQ = [8, 12]; aK = [16, 20]; aVl = [24, 28]; aVh = [32, 36]; aS = [40, 56]; aC = [72, 88]; aO = [104, 120]
fA, fWo, fWb, fH, fX, fG = 8, 72, [136, 144], 152, 200, 204
fS, fO, fR = 136, 8, 8
vIdx, vAk, vAv, vDa, vL16, vRa = 240, 241, 242, 243, 244, 245
vPoll = 246
vRd = 248
vRw, vRr, vRr2, vDa2 = 252, 253, 254, 255
vRw2 = 238
vAq = 237
sKq, sTt, sHo, sDo, sDm, sHc, sXf, sOc, sOc2, sHs = 64, 65, 66, 67, 68, 69, 70, 71, 72, 73
sOc3, sOc4, sOp2 = 80, 81, 99
sXf2 = 64
sNo = 86
sRow, sKf = 63, 85
ASL = 8320
XB, XK, XP = 8512, 2112, 1056
XF0, XS0, XS1 = 34048, 0, 102144
def aslot(n): return ASL*n
SP = [135168, 143360, 151552]

nstamp = [0]
DBGT = "--dbgt" in sys.argv
DT = {0: 75, 12: 76, 1: 77, 2: 78, 3: 79, 6: 80, 9: 81, 7: 82, 11: 83}
PAD = (int(sys.argv[sys.argv.index("--pad")+1]), int(sys.argv[sys.argv.index("--pad")+2])) if "--pad" in sys.argv else None
npad = [0]
PADB = sNo if "--padg" in sys.argv else 100
def stamp(k):
    if PAD and PAD[0] == k:
        npad[0] += 1
        e(f"Lpad{npad[0]}:\ns_memrealtime s[{sTm}:{sTm+1}]\ns_waitcnt lgkmcnt(0)\ns_sub_u32 s{sTm}, s{sTm}, s{PADB}\ns_sleep 8\ns_cmp_lt_u32 s{sTm}, {PAD[1]}\ns_cbranch_scc1 Lpad{npad[0]}")
    if DBGT and k in DT:
        e(f"s_memrealtime s[{sTm}:{sTm+1}]\ns_waitcnt lgkmcnt(0)\ns_sub_u32 s{DT[k]}, s{sTm}, s100")
        if k == 11:
            e(f"s_memtime s[{sTm}:{sTm+1}]\ns_waitcnt lgkmcnt(0)\ns_sub_u32 s84, s{sTm}, s92")
            e(f"s_cmp_lg_u32 s2, 64\ns_cbranch_scc1 Lend\ns_cmp_lg_u32 s{sW}, 4\ns_cbranch_scc1 Lend")
            for n, r in enumerate(range(75, 85)):
                e(f"v_mov_b32 v0, s{r}\nbuffer_store_dword v0, off, {sr(SDBG,4)}, 0 offset:{4+4*n}\ns_nop 1")
    if not PROF: return
    e(f"""s_memtime s[{sTm}:{sTm+1}]
    s_waitcnt lgkmcnt(0)
    v_mov_b32 v0, s{sTm}
    buffer_store_dword v0, off, {sr(SWS,4)}, s{sPo} offset:{4*k}""")
    if k in RTS:
        e(f"""s_memrealtime s[{sTm}:{sTm+1}]
        s_waitcnt lgkmcnt(0)
        v_mov_b32 v0, s{sTm}
        buffer_store_dword v0, off, {sr(SWS,4)}, s{sPo} offset:{4*RTS[k]}""")
RTS = {12: 24, 1: 25, 5: 26, 6: 27, 11: 28}

TS = []
def tstamp(k):
    if not PROF: return
    r = 74 + len(TS); TS.append((k, r))
    e(f"s_memtime s[{sTm}:{sTm+1}]\ns_waitcnt lgkmcnt(0)\ns_mov_b32 s{r}, s{sTm}")
def tflush():
    for k, r in TS: e(f"v_mov_b32 v0, s{r}\nbuffer_store_dword v0, off, {sr(SWS,4)}, s{sPo} offset:{4*k}\ns_nop 1")
def tick(acc):
    if not PROF or "--notick" in sys.argv: return ""
    r = f"s_memtime s[{sTm}:{sTm+1}]\ns_waitcnt lgkmcnt(0)\n"
    if acc is not None: r += f"s_sub_u32 s99, s{sTm}, s99\ns_add_u32 s{acc}, s{acc}, s99\n"
    return r + f"s_mov_b32 s99, s{sTm}"

def interleave(main, fill):
    out = []; n = len(main); m = len(fill); k = 0
    for i, a in enumerate(main):
        out.append(a)
        t = (m * (i + 1)) // n
        out += fill[k:t]; k = t
    return out

def mfma(d, a, b, c=None):
    c = vr(d, 16) if c is None else c
    return f"v_mfma_f32_32x32x16_bf16 {vr(d,16)}, {vr(a,4)}, {vr(b,4)}, {c}"
def mfma16(d, a, b): return f"v_mfma_f32_16x16x32_bf16 {vr(d,4)}, {vr(a,4)}, {vr(b,4)}, {vr(d,4)}"
def smf(d, a, b, idx): return f"v_smfmac_f32_32x32x32_bf16 {vr(d,16)}, {vr(a,4)}, {vr(b,8)}, v{idx}"

TK = PROF and "--tk" in sys.argv
def tk(acc):
    if not TK: return ""
    r = f"s_memtime s[{sTm}:{sTm+1}]\ns_waitcnt lgkmcnt(0)\n"
    if acc is not None: r += f"s_sub_u32 s82, s{sTm}, s82\ns_add_u32 s{acc}, s{acc}, s82\n"
    return r + f"s_mov_b32 s82, s{sTm}"
def tkout():
    if TK: e(f"v_mov_b32 v0, s80\nbuffer_store_dword v0, off, {sr(SWS,4)}, s{sPo} offset:{4*29}\ns_nop 1\nv_mov_b32 v0, s81\nbuffer_store_dword v0, off, {sr(SWS,4)}, s{sPo} offset:{4*30}")
def tr(d, a, off): return [f"ds_read_b64_tr_b16 {vr(d,2)}, v{a} offset:{off}"]
def tag_issue(): return f"buffer_load_dwordx2 {vr(vPoll,2)}, off, {sr(SDBG,4)}, 0 sc1"
def tag_wait(tag, first_wait):
    e(f"""s_mov_b32 s{sT0}, 0
    s_waitcnt vmcnt({first_wait})
    Ltag_{tag}:
    v_readfirstlane_b32 s{sNo}, v{vPoll}
    v_readfirstlane_b32 s{sNo+1}, v{vPoll+1}
    s_add_u32 s{sT0}, s{sT0}, 1
    s_cmp_lg_u32 s{sNo}, 0
    s_cbranch_scc1 Ltagd_{tag}
    s_cmp_ge_u32 s{sT0}, 100000
    s_cbranch_scc1 Ltagd_{tag}
    s_sleep 1
    {tag_issue()}
    s_waitcnt vmcnt(0)
    s_branch Ltag_{tag}
    Ltagd_{tag}:""")
def flags_issue(base):
    return f"""v_and_b32 v{vPoll}, 15, v{vLane}
    v_lshlrev_b32 v{vPoll}, 7, v{vPoll}
    buffer_load_dwordx2 {vr(vPoll,2)}, v{vPoll}, {sr(SWS,4)}, s{base} offen sc1"""
def h_poll_issue(): return flags_issue(sHc)
def flags_wait(base, tag, first_wait):
    e(f"""s_mov_b32 s{sT0}, 0
    s_waitcnt vmcnt({first_wait})
    Lfw_{tag}:
    v_cmp_ne_u64 vcc, s[{sNo}:{sNo+1}], {vr(vPoll,2)}
    s_add_u32 s{sT0}, s{sT0}, 1
    s_cmp_ge_u32 s{sT0}, 100000
    s_cbranch_vccz Lfwd_{tag}
    s_cbranch_scc1 Lfwd_{tag}
    s_sleep 3
    {flags_issue(base)}
    s_waitcnt vmcnt(0)
    s_branch Lfw_{tag}
    Lfwd_{tag}:""")
def flag_set(off_sreg, tag, wave=0):
    e(f"""s_cmp_lg_u32 s{sW}, {wave}
    s_cbranch_scc1 Lsig_{tag}
    v_mov_b32 v{vPoll}, s{sNo}
    v_mov_b32 v{vPoll+1}, s{sNo+1}
    s_mov_b64 exec, 1
    buffer_store_dwordx2 {vr(vPoll,2)}, off, {sr(SWS,4)}, s{off_sreg} sc1
    s_mov_b64 exec, -1
    Lsig_{tag}:""")

hdr = open(f"cdna_kernels/{NAME}.s.ref").read().split("\n")
hdr = [h for h in hdr[:15] if h.startswith(";") and "@launch" not in h]
L += hdr
L.append(f"; @launch grid=(256,1,1) block=(512,1,1) lds={LDS_BYTES}")
L += """;
; One persistent launch, 256 workgroups (one per CU) x 8 waves; written with a generator script.
;  workgroup (i, j): 128-token row block i, column group j (2 heads of Q, 96 gate/up columns); j = 15 makes K/V instead.
;  P1  x @ [wq | w_gate | w_up]: waves 4-7 MFMA (16x16x32), waves 0-3 LDS-DMA; LayerNorm folded into the epilogue
;      (row mean / rstd and weight column sums are computed once and exchanged through d_ws).
;  P2  waves 0-3: attention, S^T = K Q^T - m (m = row max of the first key tile, as the MFMA C operand), exp2, and
;      P V plus the row sum by the sparse MFMA straight from the f32 registers; a run-time check of the row sum and of
;      the accumulators falls back to the true row max.  waves 4-7: GELU gate, down projection, output projection.
;  P3  out = x + s * silu(f) on a 64x64 tile per workgroup.
;  Hand-offs: write-through stores + sc1 loads; flags carry a per-launch tag published in d_debug; the attention
;  output is pre-filled with a sentinel.  Every wait is bounded.""".split("\n")
L += ['.amdgcn_target "amdgcn-amd-amdhsa--gfx950"', ".text", f".globl {NAME}_kernel", ".p2align 8",
      f".type {NAME}_kernel,@function"]
e(f"{NAME}_kernel:")
RT = PROF
if RT: e("s_memrealtime s[100:101]\ns_memtime s[98:99]")
if DBGT or PAD: e("s_memrealtime s[100:101]\ns_memtime s[92:93]")
MAP84 = f"""s_and_b32 s{sI}, s{sT0}, 1
s_lshl_b32 s{sI}, s{sI}, 3
s_and_b32 s{sT2}, s{sT1}, 7
s_add_u32 s{sI}, s{sI}, s{sT2}
s_lshr_b32 s{sJ}, s{sT0}, 1
s_lshl_b32 s{sJ}, s{sJ}, 2
s_lshr_b32 s{sT3}, s{sT1}, 3
s_add_u32 s{sJ}, s{sJ}, s{sT3}
s_sub_u32 s{sJ}, 15, s{sJ}
s_and_b32 s{sTB}, s{sT0}, 3
s_lshl_b32 s{sTB}, s{sTB}, 3
s_add_u32 s{sTB}, s{sTB}, s{sT2}
s_lshr_b32 s{sCS}, s{sT0}, 2
s_lshl_b32 s{sCS}, s{sCS}, 2
s_add_u32 s{sCS}, s{sCS}, s{sT3}"""
MAP48 = f"""s_lshr_b32 s{sT2}, s{sT0}, 1
s_lshl_b32 s{sI}, s{sT2}, 2
s_and_b32 s{sT3}, s{sT1}, 3
s_add_u32 s{sI}, s{sI}, s{sT3}
s_lshl_b32 s{sTB}, s{sT2}, 3
s_and_b32 s{sT3}, s{sT1}, 7
s_add_u32 s{sTB}, s{sTB}, s{sT3}
s_and_b32 s{sT0}, s{sT0}, 1
s_lshl_b32 s{sJ}, s{sT0}, 3
s_lshr_b32 s{sT3}, s{sT1}, 2
s_add_u32 s{sJ}, s{sJ}, s{sT3}
s_sub_u32 s{sJ}, 15, s{sJ}
s_lshl_b32 s{sCS}, s{sT0}, 2
s_lshr_b32 s{sT3}, s{sT1}, 3
s_add_u32 s{sCS}, s{sCS}, s{sT3}"""
JX = int(sys.argv[sys.argv.index("--jx")+1]) if "--jx" in sys.argv else 0
if JX: MAP84 = MAP84.replace(f"s_lshr_b32 s{sJ}, s{sT0}, 1\n", f"s_lshr_b32 s{sJ}, s{sT0}, 1\ns_xor_b32 s{sJ}, s{sJ}, {JX}\n")
M48 = "--m48" in sys.argv
MAP = MAP48 if M48 else MAP84
PFC = "" if "--nopfc" in sys.argv else f"""s_cmp_lg_u32 s{sW}, 7
s_cbranch_scc1 Lnop0
s_getpc_b64 s[94:95]
Lpc0:
s_bfe_u32 s{sT0}, s2, 0x20003
s_lshl_b32 s{sT0}, s{sT0}, 13
v_lshl_add_u32 v{vT1}, v{vLane}, 7, s{sT0}
v_min_u32 v{vT1}, Lcodeend-Lpc0-4, v{vT1}
global_load_dword v223, v{vT1}, s[94:95]"""
e(f"""s_cmp_ge_u32 s2, 256
s_cbranch_scc1 Lend
s_load_dwordx2 s[{SX}:{SX+1}], s[0:1], 0
s_load_dwordx2 s[{SWG}:{SWG+1}], s[0:1], 48
s_load_dwordx2 s[{SWQ}:{SWQ+1}], s[0:1], 8
s_load_dwordx2 s[{SWV}:{SWV+1}], s[0:1], 24
s_load_dwordx2 s[{SDBG}:{SDBG+1}], s[0:1], 80
s_load_dwordx2 s[{SWS}:{SWS+1}], s[0:1], 88
v_and_b32 v{vLane}, 63, v0
v_lshrrev_b32 v{vT0}, 6, v0
v_lshrrev_b32 v{vH}, 5, v{vLane}
v_readfirstlane_b32 s{sW}, v{vT0}
{PFC}
Lnop0:
s_and_b32 s{sT0}, s2, 7
s_lshr_b32 s{sT1}, s2, 3
{MAP}
s_and_b32 s{sW4}, s{sW}, 3
v_lshrrev_b32 v{vT0}, 3, v{vLane}
v_lshlrev_b32 v{vT0}, 10, v{vT0}
v_and_b32 v{vT1}, 7, v{vLane}
v_lshrrev_b32 v{vT2}, 4, v{vLane}
v_xor_b32 v{vT1}, v{vT1}, v{vT2}
v_lshl_add_u32 v{vXa0}, v{vT1}, 4, v{vT0}
v_xor_b32 v{vXa1}, 64, v{vXa0}
v_add_u32 v{vXa1}, {8192-1024}, v{vXa1}
v_lshlrev_b32 v{vL16}, 4, v{vLane}
s_lshl_b32 s{sXo}, s{sI}, 17
s_lshl_b32 s{sT0}, s{sW4}, 15
s_add_u32 s{sXo}, s{sXo}, s{sT0}
s_lshl_b32 s{sRow}, s{sI}, 4
s_add_u32 s{sRow}, s{sRow}, s{sJ}
s_lshl_b32 s{sRow}, s{sRow}, 2
s_add_u32 s{sRow}, s{sRow}, s{sW4}
s_cmp_eq_u32 s{sJ}, 15
s_cselect_b32 s{sT0}, 16, 56
s_load_dwordx2 s[{SWK}:{SWK+1}], s[0:1], s{sT0}
s_mov_b32 s{sT1}, {512*2752}
s_cselect_b32 s{SWK+2}, 16384, s{sT1}
s_mov_b32 s{SWK+3}, 0x20000""")
SWU = SWK
vRs = 144
for d, nbytes in ((SX, 2048*1024), (SWG, 512*2752), (SWQ, 512*1024), (SWV, 16384), (SDBG, 256), (SWS, WS_BYTES)):
    e(f"s_mov_b32 s{d+2}, {nbytes}\ns_mov_b32 s{d+3}, 0x20000")
def late_srd(lst):
    for d, off, nbytes in lst:
        e(f"s_load_dwordx2 s[{d}:{d+1}], s[0:1], {off}\ns_mov_b32 s{d+2}, {nbytes}\ns_mov_b32 s{d+3}, 0x20000")
LS_A = [(SOUT, 72, 2048*1024)]; LS_F = [(SWO, 32, 512*1024), (SWD, 64, 1376*1024)]
def entry_stamp(defer=False):
    if PROF:
        e(f"s_lshl_b32 s{sPo}, s2, 3\ns_add_u32 s{sPo}, s{sPo}, s{sW}\ns_lshl_b32 s{sPo}, s{sPo}, 8\ns_add_u32 s{sPo}, s{sPo}, {PROFO}")
    if defer: tstamp(0); return
    stamp(0); rt_out()
def rt_out():
    if RT: e(f"s_nop 1\nv_mov_b32 v0, s100\nbuffer_store_dword v0, off, {sr(SWS,4)}, s{sPo} offset:60\ns_nop 1\nv_mov_b32 v0, s98\nbuffer_store_dword v0, off, {sr(SWS,4)}, s{sPo} offset:16")
def row_loads():
    e(f"""s_lshl_b32 s{sT1}, s{sRow}, 11
    buffer_load_dwordx4 {vr(vRs,4)}, v{vL16}, {sr(SX,4)}, s{sT1} offen
    buffer_load_dwordx4 {vr(vRs+4,4)}, v{vL16}, {sr(SX,4)}, s{sT1} offen offset:1024""")
WKV = 131072
vXf, vWk = 32, 192
sXb = sMw
def kvx_dma(c):
    return [f"""s_add_u32 m0, s{sXb}, {4096*c+2048*hf}
        s_add_u32 s{sT0}, s{sXo}, {128*c+16384*hf}
        buffer_load_dwordx4 v{vXa0}, {sr(SX,4)}, s{sT0} offen lds
        buffer_load_dwordx4 v{vXa1}, {sr(SX,4)}, s{sT0} offen offset:1024 lds""" for hf in range(2)]
e(f"""s_cselect_b32 s{sT2}, 1, 0
s_cmp_lt_u32 s{sW}, 4
s_cbranch_scc1 Lnorow
s_waitcnt lgkmcnt(0)""")
row_loads()
e(f"""s_cmp_eq_u32 s{sJ}, 15
s_cbranch_scc0 Lcomp
Lnorow:
s_cmp_eq_u32 s{sJ}, 15
s_cbranch_scc0 Lhelp
s_memrealtime s[{sTm}:{sTm+1}]
s_lshl_b32 s{sXb}, s{sW}, 14
s_lshr_b32 s{sT3}, s{sW}, 2
s_lshl_b32 s{sT0}, s{sT3}, 9
s_add_u32 s{sXo}, s{sXo}, s{sT0}
s_or_b32 s{sT0}, s2, s{sW}
s_cmp_lg_u32 s{sT0}, 0
s_waitcnt lgkmcnt(0)
s_cbranch_scc1 Lnotag
s_or_b32 s{sTm}, s{sTm}, 1
v_mov_b32 v{vPoll}, s{sTm}
v_mov_b32 v{vPoll+1}, s{sTm+1}
s_mov_b64 exec, 1
buffer_store_dwordx2 {vr(vPoll,2)}, off, {sr(SDBG,4)}, 0 sc1
s_mov_b64 exec, -1
Lnotag:
s_lshl_b32 s{sT0}, s{sW}, 11
s_add_u32 m0, s{sT0}, {WKV}
s_nop 0
buffer_load_dwordx4 v{vL16}, {sr(SWV,4)}, s{sT0} offen lds
buffer_load_dwordx4 v{vL16}, {sr(SWV,4)}, s{sT0} offen offset:1024 lds
s_add_u32 m0, s{sT0}, {WKV+16384}
s_nop 0
buffer_load_dwordx4 v{vL16}, {sr(SWK,4)}, s{sT0} offen lds
buffer_load_dwordx4 v{vL16}, {sr(SWK,4)}, s{sT0} offen offset:1024 lds""")
for x in kvx_dma(0): e(x)
e("s_branch Lkvcu\nLhelp:")

def v_lane_addr(d):
    e(f"""v_and_b32 v{d}, 15, v{vLane}
    v_lshlrev_b32 v{d}, 4, v{d}
    v_lshl_add_u32 v{d}, v{vH}, 8, v{d}
    s_mov_b32 exec_lo, 0xffff0000
    s_mov_b32 exec_hi, 0xffff0000
    v_mov_b32 v{d}, 512""")
def fin_init():
    e(f"""s_lshl_b32 s{sT0}, s{sTB}, 16
    s_lshl_b32 s{sT1}, s{sCS}, 7
    s_add_u32 s{sT0}, s{sT0}, s{sT1}
    s_lshl_b32 s{sT1}, s{sW4}, 14
    s_add_u32 s{sXf}, s{sT0}, s{sT1}
    s_add_u32 s{sXf2}, s{sXf}, 8192
    v_lshrrev_b32 v{vT0}, 3, v{vLane}
    v_and_b32 v{vT1}, 7, v{vLane}
    v_lshlrev_b32 v{vRa}, 10, v{vT0}
    v_lshl_add_u32 v{vRa}, v{vT1}, 4, v{vRa}
    v_bfe_u32 v{vT1}, v{vLane}, 1, 2
    v_mul_u32_u24 v{vT1}, {XB}, v{vT1}
    v_lshl_add_u32 v{vT0}, v{vT0}, 4, v{vT1}
    v_and_b32 v{vT1}, 1, v{vLane}
    v_mul_u32_u24 v{vT1}, {XP}, v{vT1}
    s_and_b32 s{sT0}, s{sW4}, 1
    s_lshl_b32 s{sT0}, s{sT0}, 8
    v_add3_u32 v{vT0}, v{vT0}, v{vT1}, s{sT0}
    s_lshr_b32 s{sT0}, s{sW4}, 1
    s_mul_i32 s{sT1}, s{sT0}, {4*XB}
    s_add_u32 s{sT1}, s{sT1}, {XF0}
    v_add_u32 v{vRr}, s{sT1}, v{vT0}
    s_mul_i32 s{sT1}, s{sT0}, {XS1}
    v_add_u32 v{vRr2}, s{sT1}, v{vT0}""")
FS = "--asent" not in sys.argv
def a_init():
    a_sent(); a_addr()
def a_sent(store=False):
    e(f"""s_lshl_b32 s{sT0}, s{sI}, 2
    s_add_u32 s{sT0}, s{sT0}, s{sW4}
    s_lshl_b32 s{sT0}, s{sT0}, 5
    s_lshr_b32 s{sT1}, s{sJ}, 1
    s_add_u32 s{sT0}, s{sT0}, s{sT1}
    s_and_b32 s{sT1}, s{sJ}, 1
    s_lshl_b32 s{sT1}, s{sT1}, 4
    s_add_u32 s{sT0}, s{sT0}, s{sT1}
    s_lshl_b32 s{sT0}, s{sT0}, 10
    s_add_u32 s{sOp}, s{sT0}, {OIMG}
    s_add_u32 s{sOp2}, s{sOp}, 8192""")
    if not FS or store: e(f"""v_mov_b64 v[232:233], -1
    v_mov_b64 v[234:235], -1
    buffer_store_dwordx4 v[232:235], v{vL16}, {sr(SWS,4)}, s{sOp} offen sc1
    buffer_store_dwordx4 v[232:235], v{vL16}, {sr(SWS,4)}, s{sOp2} offen sc1""")
    if store: return
def a_addr(zero=True):
    v_lane_addr(vAv)
    e(f"""s_mov_b32 exec_lo, 0xffee0000
    s_mov_b32 exec_hi, 0xffee0000
    v_mov_b32 v{vAv}, 0x4000000
    s_mov_b64 exec, -1
    v_add_u32 v{vAv}, 1024, v{vAv}
    v_mov_b32 v{vAk}, v{vL16}
    v_mov_b32 v{vIdx}, 0xdddd
    s_lshl_b32 s{sT0}, s{sW4}, 11
    s_add_u32 s{sT0}, s{sT0}, {QIMG}
    v_add_u32 v{vAq}, s{sT0}, v{vL16}""")
    if zero: a_zero()
def a_zero():
    for b in range(2):
        for r in range(0, 12, 2): e(f"v_mov_b64 {vr(aO[b]+r,2)}, 0")
def f_init():
    e(f"""v_lshrrev_b32 v{vT0}, 3, v{vLane}
    v_lshlrev_b32 v{vT0}, 10, v{vT0}
    v_and_b32 v{vT1}, 7, v{vLane}
    v_bfe_u32 v{vT2}, v{vLane}, 4, 1
    v_lshlrev_b32 v{vT2}, 2, v{vT2}
    v_xor_b32 v{vT1}, v{vT1}, v{vT2}
    v_lshl_add_u32 v{vDa}, v{vT1}, 4, v{vT0}
    v_add_u32 v{vDa2}, {8192-1024}, v{vDa}
    s_lshl_b32 s{sDo}, s{sW4}, 14
    s_lshl_b32 s{sT1}, s{sCS}, 7
    s_add_u32 s{sDo}, s{sDo}, s{sT1}
    s_lshl_b32 s{sDm}, s{sW4}, 11
    s_mul_i32 s{sHo}, s{sTB}, 176
    s_mul_i32 s{sT0}, s{sW4}, 22
    s_add_u32 s{sHo}, s{sHo}, s{sT0}
    s_lshl_b32 s{sHo}, s{sHo}, 10
    s_add_u32 s{sHo}, s{sHo}, {HIMG}
    s_lshl_b32 s{sT0}, s{sTB}, 3
    s_add_u32 s{sT0}, s{sT0}, s{sW4}
    s_lshl_b32 s{sT0}, s{sT0}, 13
    s_add_u32 s{sOc}, s{sT0}, {OIMG}
    s_add_u32 s{sOc2}, s{sOc}, 4096
    s_add_u32 s{sOc3}, s{sOc}, 32768
    s_add_u32 s{sOc4}, s{sOc}, {32768+4096}
    s_lshr_b32 s{sHc}, s{sTB}, 1
    s_lshl_b32 s{sHc}, s{sHc}, 11
    s_add_u32 s{sHc}, s{sHc}, {HFLG}
    s_lshl_b32 s{sHs}, s{sI}, 4
    s_add_u32 s{sHs}, s{sHs}, s{sJ}
    s_lshl_b32 s{sHs}, s{sHs}, 7
    s_add_u32 s{sHs}, s{sHs}, {HFLG}
    v_bfe_u32 v{vT0}, v{vLane}, 2, 2
    v_lshl_add_u32 v{vT0}, v{vH}, 2, v{vT0}
    v_lshlrev_b32 v{vT0}, 7, v{vT0}
    v_bfe_u32 v{vT1}, v{vLane}, 4, 1
    v_lshl_add_u32 v{vT0}, v{vT1}, 5, v{vT0}
    v_and_b32 v{vT1}, 3, v{vLane}
    v_lshl_add_u32 v{vT0}, v{vT1}, 3, v{vT0}
    v_bfe_u32 v{vT1}, v{vLane}, 3, 1
    v_lshl_add_u32 v{vT0}, v{vT1}, 6, v{vT0}
    v_add_u32 v{vRd}, s{sDm}, v{vT0}
    v_xor_b32 v{vRd+1}, 64, v{vRd}
    v_add_u32 v{vRd+2}, {SP[0]}, v{vRd}
    v_add_u32 v{vRd+3}, {SP[0]}, v{vRd+1}
    s_mul_i32 s{sT0}, s{sW4}, {XK}
    v_add_u32 v{vRw2}, s{sT0}, v{vL16}
    v_add_u32 v{vRw}, {XF0}, v{vRw2}
    v_add_u32 v{vRw2+1}, {XS1}, v{vRw2}""")
def kv_rest(tag):
    e(f"s_setprio 0\ns_lshl_b32 s{sT1}, s{sW4}, 12")
    for n in range(6):
        e(f"s_add_u32 s{sT0}, s{sT1}, {36*1024+16384*n}\ns_mov_b32 m0, s{sT0}\ns_nop 0")
        for k in range(4): e(f"buffer_load_dwordx4 v{vL16}, {sr(SWS,4)}, s{sT0} offen offset:{1024*k} sc1 lds")
    e(tag_issue())
    e("s_setprio 2")

def spread(m, fill):
    w = [16 if "16x16" in x else 32 for x in m]
    tot = sum(c for c, _ in fill); W = sum(w)
    out = []; k = 0; acc = 0; cw = 0
    for x, wx in zip(m, w):
        out.append(x); cw += wx
        while k < len(fill) and (acc + fill[k][0]/2) * W <= tot * cw:
            out.append(fill[k][1]); acc += fill[k][0]; k += 1
    out += [t for _, t in fill[k:]]
    return out


C1 = -2*0.7978845608028654*1.4426950408889634
C3 = C1*0.044715
def gelu_consts(m, r, d):
    e(f"""v_sub_f32 v{d}, 0, v{m}
    v_mul_f32 v{d+3}, v{r}, v{r}
    v_mul_f32 v{d+1}, {f2u(C1):#x}, v{r}
    v_mul_f32 v{d+2}, {f2u(C3):#x}, v{r}
    v_mul_f32 v{d+2}, v{d+2}, v{d+3}
    v_rcp_f32 v{d+3}, v{d+3}""")
def bc(reg, pos, n):
    base = reg & ~1
    return vr(base, 2), reg & 1
def pk(op, d, srcs, neg=None):
    ops = []; lo = []; hi = []
    for t, r in srcs:
        if t == 'p': ops.append(vr(r, 2)); lo.append(0); hi.append(1)
        else: ops.append(vr(r & ~1, 2)); lo.append(r & 1); hi.append(r & 1)
    return f"{op} {vr(d,2)}, {', '.join(ops)} op_sel:[{','.join(map(str,lo))}] op_sel_hi:[{','.join(map(str,hi))}]"
def gelu_tile(g, u, csg, csu, k, tmp, n=16, dst=None):
    for p in range(0, n, 2):
        e(pk("v_pk_fma_f32", g+p, [('b', k), ('p', csg+p), ('p', g+p)]))
        e(pk("v_pk_fma_f32", u+p, [('b', k), ('p', csu+p), ('p', u+p)]))
    for p in range(0, n, 2):
        e(pk("v_pk_mul_f32", tmp+p, [('p', g+p), ('p', g+p)]))
    for p in range(0, n, 2):
        e(pk("v_pk_fma_f32", tmp+p, [('p', tmp+p), ('b', k+2), ('b', k+1)]))
    for p in range(0, n, 2):
        e(pk("v_pk_mul_f32", tmp+p, [('p', tmp+p), ('p', g+p)]))
    for p in range(n): e(f"v_exp_f32 v{tmp+p}, v{tmp+p}")
    for p in range(0, n, 2):
        e(pk("v_pk_mul_f32", u+p, [('p', u+p), ('p', g+p)]))
    for p in range(0, n, 2):
        e(pk("v_pk_fma_f32", tmp+p, [('p', tmp+p), ('b', k+3), ('b', k+3)]))
    for p in range(n): e(f"v_rcp_f32 v{tmp+p}, v{tmp+p}")
    e("s_nop 0")
    for p in range(0, n, 2):
        e(pk("v_pk_mul_f32", u+p, [('p', u+p), ('p', tmp+p)]))
    for p in range(n//2): e(f"v_cvt_pk_bf16_f32 v{dst[p] if dst else g+p}, v{u+2*p}, v{u+2*p+1}")

def cs_read(d, slot_off):
    for q in range(4): e(f"ds_read_b128 {vr(d+4*q,4)}, v{vT3} offset:{slot_off+32*q}")

def lin_fold(acc, cs, negm, scale, n=16):
    for p in range(0, n, 2):
        e(pk("v_pk_fma_f32", acc+p, [('b', negm), ('p', cs+p), ('p', acc+p)]))
    for p in range(0, n, 2):
        e(pk("v_pk_mul_f32", acc+p, [('p', acc+p), ('b', scale)]))

def q_epilogue(cs):
    e(f"v_mul_f32 v{vSt+2}, {f2u(0.25*1.4426950408889634):#x}, v{vSt+1}")
    lin_fold(vAcc, cs, vSt+4, vSt+2)
    for p in range(8): e(f"v_cvt_pk_bf16_f32 v{vAcc+p}, v{vAcc+2*p}, v{vAcc+2*p+1}")
    e(f"""s_lshl_b32 s{sT0}, s{sW4}, 11
    s_add_u32 s{sT0}, s{sT0}, {QIMG}
    v_lshl_add_u32 v{vT0}, v{vLane}, 4, s{sT0}
    ds_write_b128 v{vT0}, {vr(vAcc,4)}
    ds_write_b128 v{vT0}, {vr(vAcc+4,4)} offset:1024""")


def rowstat_finish():
    a = vRs+8
    e(f"v_mov_b32 v{vT0}, 0x3f803f80")
    for k in range(4):
        for r in range(2):
            x = vRs+4*r+k
            c0 = "0" if k == 0 else f"v{a+2*r}"; c1 = "0" if k == 0 else f"v{a+2*r+1}"
            e(f"v_dot2_f32_bf16 v{a+2*r}, v{x}, v{vT0}, {c0}\nv_dot2_f32_bf16 v{a+2*r+1}, v{x}, v{x}, {c1}")
    e("s_nop 2")
    for ctl in ("row_shr:1", "row_shr:2", "row_shr:4", "row_shr:8"):
        for k in range(4): e(f"v_add_f32_dpp v{a+k}, v{a+k}, v{a+k} {ctl} row_mask:0xf bank_mask:0xf bound_ctrl:0")
    for ctl in ("row_bcast:15 row_mask:0xa", "row_bcast:31 row_mask:0xc"):
        for k in range(4): e(f"v_add_f32_dpp v{a+k}, v{a+k}, v{a+k} {ctl} bank_mask:0xf")
    for r in range(2):
        d = vRs+4*r
        e(f"""v_mul_f32 v{d}, {f2u(1/512):#x}, v{a+2*r}
        v_mul_f32 v{d+1}, {f2u(1/512):#x}, v{a+2*r+1}
        v_fma_f32 v{d+1}, -v{d}, v{d}, v{d+1}
        v_max_f32 v{d+1}, 0, v{d+1}
        v_add_f32 v{d+1}, {f2u(1e-5):#x}, v{d+1}
        v_rsq_f32 v{d+1}, v{d+1}""")
def rowstat_post():
    e(f"""s_lshl_b32 s{sT0}, s{sW4}, 4
    s_add_u32 s{sT0}, s{sT0}, {STL}
    v_mov_b32 v{vT0}, s{sT0}
    s_mov_b32 exec_lo, 0
    s_brev_b32 exec_hi, 1
    ds_write_b64 v{vT0}, {vr(vRs,2)}
    ds_write_b64 v{vT0}, {vr(vRs+4,2)} offset:8
    s_mov_b64 exec, -1""")
def rowstat_store():
    for r in range(2): e(f"v_mov_b32 v{vRs+4*r+2}, s{sNo}\nv_mov_b32 v{vRs+4*r+3}, s{sNo+1}")
    e(f"""s_lshl_b32 s{sT0}, s{sRow}, 5
    s_add_u32 s{sT0}, s{sT0}, {STATG}
    s_mov_b32 exec_lo, 0
    s_brev_b32 exec_hi, 1
    buffer_store_dwordx4 {vr(vRs,4)}, off, {sr(SWS,4)}, s{sT0} sc1
    buffer_store_dwordx4 {vr(vRs+4,4)}, off, {sr(SWS,4)}, s{sT0} offset:16 sc1
    s_mov_b64 exec, -1""")
def kv_dma(tag):
    e(f"s_mul_i32 s{sT1}, s{sW4}, 3072")
    for n in range(3):
        e(f"s_add_u32 s{sT0}, s{sT1}, {12288*n}\ns_mov_b32 m0, s{sT0}\ns_nop 0")
        for k in range(3): e(f"buffer_load_dwordx4 v{vL16}, {sr(SWS,4)}, s{sT0} offen offset:{1024*k} sc1 lds")
def tr_lane(rowmul, d):
    e(f"""v_lshrrev_b32 v{vT0}, 4, v{vLane}
    v_bfe_u32 v{vT1}, v{vLane}, 2, 2
    v_lshl_add_u32 v{vT0}, v{vT0}, 3, v{vT1}
    v_mul_u32_u24 v{vT0}, {rowmul}, v{vT0}
    v_bfe_u32 v{vT1}, v{vLane}, 4, 1
    v_lshl_add_u32 v{vT0}, v{vT1}, 5, v{vT0}
    v_and_b32 v{vT1}, 3, v{vLane}
    v_lshl_add_u32 v{d}, v{vT1}, 3, v{vT0}""")
def ones_col0(d):
    e(f"""v_and_b32 v{vT0}, 15, v{vLane}
    v_cmp_eq_u32 vcc, 0, v{vT0}
    v_mov_b32 v{vT1}, 0x3f803f80
    s_nop 0
    v_cndmask_b32 v{d}, 0, v{vT1}, vcc""")
    for k in range(1, 4): e(f"v_mov_b32 v{d+k}, v{d}")
def rot_delta():
    return f"s_add_u32 s{sRb}, s{sRb}, 1\ns_cmp_eq_u32 s{sRb}, 3\ns_cselect_b32 s{sDl}, s{sC3}, {STG}\ns_cselect_b32 s{sRb}, 0, s{sRb}"
def cs16_write(accs, slot0_sreg, stride):
    e(f"v_add_u32 v{vT0}, s{slot0_sreg}, v{vLane}\ns_mov_b32 exec_lo, 0x00010001\ns_mov_b32 exec_hi, 0x00010001")
    for n, a in enumerate(accs): e(f"ds_write_b128 v{vT0}, {vr(a,4)} offset:{stride*n}")
    e("s_mov_b64 exec, -1")

ROT = int(sys.argv[sys.argv.index("--rot")+1]) if "--rot" in sys.argv else 7
sKs = 84
sM1, sM2, sPub, sCg = 66, 67, 68, 69
C0 = "--c0" in sys.argv
NR = 7 if C0 else 8
def dma_x():
    return [f"s_add_u32 m0, s{sLb}, s{sMx}", f"s_add_u32 s{sT0}, s{sXo}, 16384",
            f"buffer_load_dwordx4 v{vXa0}, {sr(SX,4)}, s{sXo} offen lds",
            f"buffer_load_dwordx4 v{vXa1}, {sr(SX,4)}, s{sXo} offen offset:1024 lds",
            "s_add_u32 m0, m0, 2048", f"s_add_u32 s{sXo}, s{sXo}, 128",
            f"buffer_load_dwordx4 v{vXa0}, {sr(SX,4)}, s{sT0} offen lds",
            f"buffer_load_dwordx4 v{vXa1}, {sr(SX,4)}, s{sT0} offen offset:1024 lds"]
def dma_w():
    r = []
    for k, sd in enumerate((SWG, SWU)):
        r += [f"s_add_u32 m0, s{sLb}, s{sMw}" if k == 0 else f"s_add_u32 m0, m0, {UOFF-GOFF}", "s_nop 0",
              f"buffer_load_dwordx4 v{vWa0}, {sr(sd,4)}, s{sWo} offen lds",
              f"buffer_load_dwordx4 v{vWa1}, {sr(sd,4)}, s{sWo} offen offset:1024 lds",
              f"buffer_load_dwordx4 v{vWa2}, {sr(sd,4)}, s{sWo} offen offset:2048 lds"]
    r += [f"s_add_u32 m0, s{sLb}, s{sMq}", f"s_add_u32 s{sWo}, s{sWo}, {64*2752}",
          f"buffer_load_dwordx4 v{vQa}, {sr(SWQ,4)}, s{sQo} offen lds", f"s_add_u32 s{sQo}, s{sQo}, 65536",
          f"s_add_u32 s{sLb}, s{sLb}, {STG}", f"s_cmp_ge_u32 s{sLb}, {3*STG}", f"s_cselect_b32 s{sLb}, 0, s{sLb}"]
    if ROT:
        r += [f"s_add_u32 s{sKs}, s{sKs}, 1", f"s_cmp_eq_u32 s{sKs}, 8",
              f"s_cselect_b32 s{sT0}, {128*NR}, 0", f"s_cselect_b32 s{sT1}, {64*NR*2752}, 0", f"s_cselect_b32 s{sT2}, {64*NR*1024}, 0",
              f"s_sub_u32 s{sXo}, s{sXo}, s{sT0}", f"s_sub_u32 s{sWo}, s{sWo}, s{sT1}", f"s_sub_u32 s{sQo}, s{sQo}, s{sT2}"]
    return r
e(f"s_mov_b32 s{sLb}, 0\ns_lshl_b32 s{sMx}, s{sW4}, 12")
if ROT and "--rm" in sys.argv: e(f"s_lshl_b32 s{sKs}, s{sI if M48 else sJ}, 1\ns_add_u32 s{sKs}, s{sKs}, s{sJ if M48 else sI}\ns_and_b32 s{sKs}, s{sKs}, {ROT}")
RM = sys.argv[sys.argv.index("--rm")+1] if "--rm" in sys.argv else "a"
if RM == "a":
    e(f"""s_xor_b32 s{sKs}, s{sI}, s{sJ}
    s_and_b32 s{sKs}, s{sKs}, 1
    s_lshl_b32 s{sKs}, s{sKs}, 2
    s_lshr_b32 s{sT0}, s{sI}, 1
    s_xor_b32 s{sT0}, s{sT0}, s{sJ}
    s_lshr_b32 s{sT0}, s{sT0}, 1
    s_and_b32 s{sT0}, s{sT0}, 2
    s_or_b32 s{sKs}, s{sKs}, s{sT0}""")
if RM == "b":
    e(f"""s_add_u32 s{sKs}, s{sI}, s{sJ}
    s_and_b32 s{sKs}, s{sKs}, 3
    s_lshl_b32 s{sKs}, s{sKs}, 1
    s_lshr_b32 s{sT0}, s{sI}, 1
    s_xor_b32 s{sT0}, s{sT0}, s{sJ}
    s_bfe_u32 s{sT0}, s{sT0}, 0x10002
    s_or_b32 s{sKs}, s{sKs}, s{sT0}""")
if RM == "c":
    e(f"""s_lshr_b32 s{sKs}, s{sI}, 3
    s_lshl_b32 s{sKs}, s{sKs}, 2
    s_lshr_b32 s{sT0}, s{sJ}, 2
    s_lshl_b32 s{sT0}, s{sT0}, 1
    s_add_u32 s{sKs}, s{sKs}, s{sT0}
    s_and_b32 s{sKs}, s{sKs}, 7""")
if ROT and C0: e(f"s_cmp_eq_u32 s{sKs}, 7\ns_cselect_b32 s{sKs}, 3, s{sKs}")
def rot_x(): e(f"s_lshl_b32 s{sT0}, s{sKs}, 7\ns_add_u32 s{sXo}, s{sXo}, s{sT0}")
def rot_w(): e(f"s_mul_i32 s{sT0}, s{sKs}, {64*2752}\ns_add_u32 s{sWo}, s{sWo}, s{sT0}\ns_lshl_b32 s{sT0}, s{sKs}, 16\ns_add_u32 s{sQo}, s{sQo}, s{sT0}")
if ROT and not C0: rot_x()
e(f"s_lshl_b32 s{sCg}, s{sJ}, 13\ns_add_u32 s{sCg}, s{sCg}, {CSG}\ns_lshl_b32 s{sC1}, s{sKs}, 10\ns_add_u32 s{sC1}, s{sC1}, s{sCg}")
for k, r in enumerate((vWa0, vWa1, vWa2)):
    e(f"""v_add_u32 v{vT0}, {64*k}, v{vLane}
    v_mul_u32_u24 v{vT1}, 43691, v{vT0}
    v_lshrrev_b32 v{vT1}, 19, v{vT1}
    v_mul_u32_u24 v{vT2}, 12, v{vT1}
    v_sub_u32 v{vT0}, v{vT0}, v{vT2}
    v_lshrrev_b32 v{vT2}, 2, v{vT1}
    v_and_b32 v{vT2}, 2, v{vT2}
    v_xor_b32 v{vT0}, v{vT0}, v{vT2}
    v_mul_u32_u24 v{vT1}, 2752, v{vT1}
    v_lshl_add_u32 v{r}, v{vT0}, 4, v{vT1}""")
    if k: e(f"v_subrev_u32 v{r}, {1024*k}, v{r}")
e(f"""v_lshrrev_b32 v{vT0}, 2, v{vLane}
v_lshlrev_b32 v{vT0}, 10, v{vT0}
v_and_b32 v{vT1}, 3, v{vLane}
v_lshlrev_b32 v{vT2}, 1, v{vH}
v_xor_b32 v{vT1}, v{vT1}, v{vT2}
v_lshl_add_u32 v{vQa}, v{vT1}, 4, v{vT0}
s_mul_i32 s{sT0}, s{sJ}, 96
s_min_u32 s{sT0}, s{sT0}, 1280
s_lshl_b32 s{sT0}, s{sT0}, 1
s_mul_i32 s{sWo}, s{sW4}, {16*2752}
s_add_u32 s{sWo}, s{sWo}, s{sT0}
s_lshl_b32 s{sQo}, s{sW4}, 14
s_lshl_b32 s{sT0}, s{sJ}, 6
s_add_u32 s{sQo}, s{sQo}, s{sT0}
s_mul_i32 s{sMw}, s{sW4}, 3072
s_add_u32 s{sMw}, s{sMw}, {GOFF}
s_lshl_b32 s{sMq}, s{sW4}, 10
s_add_u32 s{sMq}, s{sMq}, {QOFF}""")
if ROT and not C0: rot_w()
if JX:
    e(f"""s_memrealtime s[{sTm}:{sTm+1}]
    s_or_b32 s{sT0}, s2, s{sW}
    s_cmp_lg_u32 s{sT0}, 0
    s_waitcnt lgkmcnt(0)
    s_cbranch_scc1 Lnotag2
    s_or_b32 s{sTm}, s{sTm}, 1
    v_mov_b32 v{vPoll}, s{sTm}
    v_mov_b32 v{vPoll+1}, s{sTm+1}
    s_mov_b64 exec, 1
    buffer_store_dwordx2 {vr(vPoll,2)}, off, {sr(SDBG,4)}, 0 sc1
    s_mov_b64 exec, -1
    Lnotag2:""")
else: e("s_waitcnt lgkmcnt(0)")
entry_stamp()
for x in dma_x(): e(x)
w0 = dma_w()
if ROT and C0:
    k = w0.index(f"s_add_u32 s{sKs}, s{sKs}, 1")
    for x in w0[:k]: e(x)
    rot_x(); rot_w(); e(w0[k])
else:
    for x in w0: e(x)
for x in dma_x() + dma_w(): e(x)
TG = "--oldtag" not in sys.argv
if TG:
    e(f"""s_and_b32 s{sT0}, s{sI}, 6
    s_or_b32 s{sT0}, s{sT0}, s{sW}
    s_cmp_eq_u32 s{sT0}, 0
    s_cselect_b32 s{sM2}, 0x30, 0
    s_cselect_b32 s{sPub}, 3, 99
    s_cmp_eq_u32 s{sW}, 0
    s_cselect_b32 s{sM1}, 6, 0
    s_cbranch_scc0 Lnt0""")
    e(tag_issue())
    e("Lnt0:")
else: e(tag_issue())
late_srd(LS_A)
hF = 30
e(f"""s_lshl_b32 s{sT0}, s{sW4}, 2
s_add_u32 s{sT0}, s{sT0}, {KFL}
v_mov_b32 v{hF}, s{sT0}
v_mov_b32 v{hF+1}, 0
v_mov_b32 v{vT0}, {KFL}
ds_write_b32 v{hF}, v{hF+1}
ds_write_b32 v{vT0}, v{hF+1} offset:16""")
hW = 32
e(f"s_mov_b32 s{sSt}, 0\ns_mov_b32 s{sRb}, 0\ns_mov_b32 s{sC3}, {(-2*STG) & 0xffffffff}")
if "--hp3" in sys.argv: e("s_setprio 3")
tstamp(21)
if TG: e(f"s_waitcnt vmcnt(12) lgkmcnt(0)\ns_cmp_eq_u32 s{sW}, 0\ns_cbranch_scc1 Lnt1\ns_waitcnt vmcnt(11)\nLnt1:")
else: e("s_waitcnt vmcnt(12) lgkmcnt(0)")
tstamp(23); e("s_barrier")
stamp(12); tflush(); TS.clear()
W11 = f"""s_waitcnt vmcnt(13)
s_bitcmp1_b32 s{sM2}, s{sSt}
s_cbranch_scc1 Lw12
s_waitcnt vmcnt(12)
s_bitcmp1_b32 s{sM1}, s{sSt}
s_cbranch_scc1 Lw12
s_waitcnt vmcnt(11)
Lw12:"""
def helper_loop(cs):
    t = "c" if cs else "n"
    e(f"Lhl{t}:")
    if cs:
        rd, m = cs_parts()
        for x in rd: e(x)
        e(rot_delta())
        for x in dma_x(): e(x)
        e(f"v_add_u32 v{hA}, s{sDl}, v{hA}\nv_add_u32 v{hA+1}, s{sDl}, v{hA+1}\ns_waitcnt lgkmcnt(0)")
        w = dma_w(); k = 0
        for x in w:
            e(x)
            if "buffer_load" in x: e(m[k]); k += 1
        for x in m[k:]: e(x)
    else:
        for x in dma_x() + dma_w():
            if "--nodma" in sys.argv and "buffer_load" in x: continue
            e(x)
            if "--pace" in sys.argv and "buffer_load" in x: e("s_sleep 1")
        e(f"s_or_b32 s{sT0}, s{sSt}, s{sW}\ns_cmp_lg_u32 s{sT0}, 0\ns_cbranch_scc1 Lnpub")
        e(f"v_lshlrev_b32 v{vT0}, 3, v{vLane}\nv_add_u32 v{vT0}, {STL}, v{vT0}\nds_read_b64 {vr(hW,2)}, v{vT0}")
        tag_wait("p", 11)
        e(f"""v_mov_b32 v{hW+2}, s{sNo}
        v_mov_b32 v{hW+3}, s{sNo+1}
        s_lshl_b32 s{sT0}, s{sRow}, 5
        s_add_u32 s{sT0}, s{sT0}, {STATG}
        s_mov_b64 exec, 0xff
        s_waitcnt lgkmcnt(0)
        buffer_store_dwordx4 {vr(hW,4)}, v{vL16}, {sr(SWS,4)}, s{sT0} offen sc1
        s_mov_b64 exec, -1
        Lnpub:
        s_cmp_lg_u32 s{sSt}, s{sPub}
        s_cbranch_scc1 Lnpc
        v_lshlrev_b32 v{vT0}, 3, v{vLane}
        v_add_u32 v{vT0}, {CSUM}, v{vT0}
        ds_read_b64 {vr(hW,2)}, v{vT0}
        ds_read_b64 {vr(hW+4,2)}, v{vT0} offset:512
        v_mov_b32 v{hW+2}, s{sNo}
        v_mov_b32 v{hW+3}, s{sNo+1}
        v_mov_b32 v{hW+6}, s{sNo}
        v_mov_b32 v{hW+7}, s{sNo+1}
        s_waitcnt lgkmcnt(0)
        buffer_store_dwordx4 {vr(hW,4)}, v{vL16}, {sr(SWS,4)}, s{sC1} offen sc1
        buffer_store_dwordx4 {vr(hW+4,4)}, v{vL16}, {sr(SWS,4)}, s{sC1} offen offset:1024 sc1
        Lnpc:""")
        if not FS:
            e(f"s_cmp_lg_u32 s{sSt}, 2\ns_cbranch_scc1 Lnini")
            a_sent()
            e("Lnini:")
    e(f"""s_add_u32 s{sSt}, s{sSt}, 1
    {W11}
    s_barrier
    {tk(81)}
    s_cmp_lt_u32 s{sSt}, 6
    s_cbranch_scc1 Lhl{t}""")
helper_loop(False)
tkout()
def st_loads():
    return f"""buffer_load_dwordx4 {vr(hW,4)}, v{vL16}, {sr(SWS,4)}, s{sC0} offen sc1
    buffer_load_dwordx4 {vr(hW+4,4)}, v{vL16}, {sr(SWS,4)}, s{sC0} offen offset:1024 sc1"""
e(f"s_lshl_b32 s{sC0}, s{sI}, 11\ns_add_u32 s{sC0}, s{sC0}, {STATG}\ns_mov_b32 s{sKf}, {KFLG}\nv_mov_b32 v{hF+1}, 1")
if TG: e(tag_issue())
e(f"s_cmp_lg_u32 s{sW}, 1\ns_cbranch_scc1 Lhn0\n{st_loads()}\nLhn0:")
if FS: a_sent()
a_addr(); fin_init()
tag_wait("h", 0)
e(f"""s_cmp_lg_u32 s{sW}, 1
s_cbranch_scc1 Lhns
s_mov_b32 s{sT0}, 0
s_branch Lhs1
Lhs:
{st_loads()}
s_waitcnt vmcnt(0)
Lhs1:
s_add_u32 s{sT0}, s{sT0}, 1
v_cmp_ne_u64 vcc, s[{sNo}:{sNo+1}], {vr(hW+2,2)}
v_cmp_ne_u64 s[{sEx}:{sEx+1}], s[{sNo}:{sNo+1}], {vr(hW+6,2)}
s_or_b64 vcc, vcc, s[{sEx}:{sEx+1}]
s_cmp_ge_u32 s{sT0}, 100000
s_cbranch_scc1 Lhns
s_cbranch_vccnz Lhs
Lhns:""")
LATEP = "--latep" in sys.argv
def cs_loads():
    return "\n".join(f"buffer_load_dwordx4 {vr(hW+4*c,4)}, v{vL16}, {sr(SWS,4)}, s{sCg if c < 2 else sC1} offen offset:{2048*(c & 1)} sc1" for c in range(4))
e(f"""s_cmp_lt_u32 s{sW}, 2
s_cbranch_scc1 Lhc0
s_and_b32 s{sT0}, s{sW}, 1
s_lshl_b32 s{sT0}, s{sT0}, 10
s_add_u32 s{sCg}, s{sCg}, s{sT0}
s_add_u32 s{sC1}, s{sCg}, 4096
{cs_loads()}
Lhc0:""")
if not LATEP: e(flags_issue(sKf))
e(f"s_mov_b32 s{sSt}, 1\ns_barrier")
if LATEP: e(flags_issue(sKf))
def kv_try(tag):
    e(f"""s_cmp_eq_u32 s{sSt}, 0
    s_cbranch_scc1 Lkt2_{tag}
    s_waitcnt vmcnt(0)
    v_cmp_ne_u64 vcc, s[{sNo}:{sNo+1}], {vr(vPoll,2)}
    s_cbranch_vccnz Lkt1_{tag}""")
    kv_dma(tag)
    e(f"v_mov_b32 v{vT0}, {KFL}\nds_write_b32 v{vT0}, v{hF+1} offset:16\ns_mov_b32 s{sSt}, 0\ns_branch Lkt2_{tag}\nLkt1_{tag}:")
    e(flags_issue(sKf))
    e(f"Lkt2_{tag}:")
e(f"s_cmp_lg_u32 s{sW}, 1\ns_cbranch_scc1 Lhnc")
gelu_consts(hW, hW+1, hW+8); gelu_consts(hW+4, hW+5, hW+12)
e(f"""v_add_u32 v{vT0}, {STATM}, v{vL16}
ds_write_b128 v{vT0}, {vr(hW+8,4)}
ds_write_b128 v{vT0}, {vr(hW+12,4)} offset:1024
Lhnc:""")
kv_try("a")
e(f"""s_cmp_lt_u32 s{sW}, 2
s_cbranch_scc1 Lhc3
s_mov_b32 s{sT0}, 0
s_branch Lhc2
Lhc1:
s_sleep 2
{cs_loads()}
s_waitcnt vmcnt(0)
Lhc2:
s_add_u32 s{sT0}, s{sT0}, 1
v_cmp_ne_u64 vcc, s[{sNo}:{sNo+1}], {vr(hW+2,2)}
v_cmp_ne_u64 s[{sEx}:{sEx+1}], s[{sNo}:{sNo+1}], {vr(hW+6,2)}
s_or_b64 vcc, vcc, s[{sEx}:{sEx+1}]
v_cmp_ne_u64 s[{sEx}:{sEx+1}], s[{sNo}:{sNo+1}], {vr(hW+10,2)}
s_or_b64 vcc, vcc, s[{sEx}:{sEx+1}]
v_cmp_ne_u64 s[{sEx}:{sEx+1}], s[{sNo}:{sNo+1}], {vr(hW+14,2)}
s_or_b64 vcc, vcc, s[{sEx}:{sEx+1}]
s_cmp_ge_u32 s{sT0}, 100000
s_cbranch_scc1 Lhc4
s_cbranch_vccnz Lhc1
Lhc4:
v_add_f32 v{hW}, v{hW}, v{hW+4}
v_add_f32 v{hW+1}, v{hW+1}, v{hW+5}
v_add_f32 v{hW+8}, v{hW+8}, v{hW+12}
v_add_f32 v{hW+9}, v{hW+9}, v{hW+13}
s_and_b32 s{sT0}, s{sW}, 1
s_lshl_b32 s{sT0}, s{sT0}, 9
s_add_u32 s{sT0}, s{sT0}, {CSUM}
v_lshl_add_u32 v{vT0}, v{vLane}, 3, s{sT0}
v_add_f32 v{hW}, v{hW}, v{hW+8}
v_add_f32 v{hW+1}, v{hW+1}, v{hW+9}
v_cmp_gt_u32 vcc, {CSUM+896}, v{vT0}
s_and_saveexec_b64 s[{sEx}:{sEx+1}], vcc
ds_write_b64 v{vT0}, {vr(hW,2)}
s_mov_b64 exec, -1
Lhc3:""")
e("s_waitcnt lgkmcnt(0)\ns_barrier")
if not LATEP: kv_try("b")
stamp(1)
e("s_waitcnt lgkmcnt(0)\ns_barrier\ns_branch Lp2")

cX = [8, 24]; cW = 40; cRX, cRW, cRQ = 68, 70, 72; cCs = 76; cO = 92; cA = 96
e("Lcomp:")
entry_stamp(True)
late_srd(LS_F)
e(f"""v_and_b32 v{vT0}, 15, v{vLane}
v_lshrrev_b32 v{vT1}, 1, v{vT0}
v_lshrrev_b32 v{vT2}, 4, v{vLane}
v_xor_b32 v{vT1}, v{vT1}, v{vT2}
v_lshlrev_b32 v{vT0}, 7, v{vT0}
s_and_b32 s{sT0}, s{sW}, 1
s_lshl_b32 s{sT0}, s{sT0}, 13
v_add_u32 v{vT0}, s{sT0}, v{vT0}
v_lshl_add_u32 v{cRX}, v{vT1}, 4, v{vT0}
v_xor_b32 v{cRX+1}, 64, v{cRX}""")
tr_lane(192, cRW)
e(f"""s_lshl_b32 s{sT1}, s{sW}, 4
s_and_b32 s{sT1}, s{sT1}, 32
v_xor_b32 v{cRW}, s{sT1}, v{cRW}
v_xor_b32 v{cRW+1}, 32, v{cRW}
s_lshl_b32 s{sT2}, s{sT1}, 1
v_add_u32 v{cRW}, s{sT2}, v{cRW}
s_lshl_b32 s{sT2}, s{sT1}, 2
v_add_u32 v{cRW+1}, s{sT2}, v{cRW+1}""")
tr_lane(64, cRQ); e(f"v_xor_b32 v{cRQ}, s{sT1}, v{cRQ}")
ones_col0(cO)
cEh, cEs, cEq = 73, 74, 75
cEc, cEw = 212, 213
e(f"""s_bfe_u32 s{sT2}, s{sW}, 0x10001
s_mul_i32 s{sT2}, s{sT2}, 448
s_add_u32 s{sT2}, s{sT2}, {CSUM}
s_and_b32 s{sT1}, s{sW}, 1
s_lshl_b32 s{sT1}, s{sT1}, 6
s_add_u32 s{sT1}, s{sT2}, s{sT1}
v_and_b32 v{cEc}, 48, v{vLane}
v_add_u32 v{cEc}, s{sT2}, v{cEc}
v_add_u32 v{cEw}, s{sT1}, v{vLane}""")
e(f"""s_lshl_b32 s{sT0}, s{sI}, 2
s_and_b32 s{sT1}, s{sW}, 1
s_lshl_b32 s{sT1}, s{sT1}, 1
s_add_u32 s{sT0}, s{sT0}, s{sT1}
s_mul_i32 s{sT0}, s{sT0}, 88
s_mul_i32 s{sT1}, s{sJ}, 6
s_min_u32 s{sT1}, s{sT1}, 80
s_bfe_u32 s{sT2}, s{sW}, 0x10001
s_mul_i32 s{sT2}, s{sT2}, 3
s_add_u32 s{sT1}, s{sT1}, s{sT2}
s_and_b32 s{sT2}, s{sW}, 2""")
for add, dst in enumerate((sC0, sC1, sC2)):
    e(f"""s_add_u32 s{sT3}, s{sT1}, {add}
    s_lshr_b32 s{dst}, s{sT3}, 2
    s_add_u32 s{dst}, s{dst}, s{sT0}
    s_and_b32 s{sT3}, s{sT3}, 3
    s_mul_i32 s{sT3}, s{sT3}, 22
    s_add_u32 s{dst}, s{dst}, s{sT3}
    s_lshl_b32 s{dst}, s{dst}, 10
    s_add_u32 s{dst}, s{dst}, {HIMG}""")
e(f"""v_bfe_u32 v{vT0}, v{vLane}, 4, 1
v_lshlrev_b32 v{vT0}, 9, v{vT0}
v_and_b32 v{vT1}, 15, v{vLane}
v_lshl_add_u32 v{vT0}, v{vT1}, 4, v{vT0}
v_lshl_add_u32 v{cEh}, v{vH}, 8, v{vT0}
s_and_b32 s{sT0}, s{sW}, 1
s_lshl_b32 s{sT1}, s{sT0}, 10
s_add_u32 s{sT1}, s{sT1}, {STATM}
v_lshl_add_u32 v{cEs}, v{vT1}, 4, s{sT1}
s_lshl_b32 s{sT0}, s{sT0}, 12
s_lshl_b32 s{sT2}, s{sT2}, 9
s_add_u32 s{sT0}, s{sT0}, s{sT2}
s_add_u32 s{sT0}, s{sT0}, {QIMG}
v_lshl_add_u32 v{vT0}, v{vH}, 3, v{vT0}
v_add_u32 v{cEq}, s{sT0}, v{vT0}""")
f_init()
for r in list(range(cCs, cCs+16, 2)) + [r for r in range(cA, cA+112, 2) if not vRs <= r < vRs+16]: e(f"v_mov_b64 {vr(r,2)}, 0")
tstamp(13)
e("s_waitcnt vmcnt(0)")
tstamp(21)
rowstat_finish()
rowstat_post()
tstamp(23)
if "--touch" in sys.argv:
    e(f"""s_and_b32 s{sT2}, s{sI}, 7
    s_mul_i32 s{sT2}, s{sT2}, 48
    s_add_u32 s{sT2}, s{sT2}, 128
    s_cmp_ge_u32 s{sW}, 6
    s_cbranch_scc1 Ltc6
    v_lshrrev_b32 v{vT0}, 1, v{vLane}
    v_mul_u32_u24 v{vT0}, 2752, v{vT0}
    v_and_b32 v{vT1}, 1, v{vLane}
    v_lshl_add_u32 v{vT0}, v{vT1}, 7, v{vT0}
    s_mul_i32 s{sT0}, s{sJ}, 96
    s_min_u32 s{sT0}, s{sT0}, 1280
    s_lshl_b32 s{sT0}, s{sT0}, 1
    s_mul_i32 s{sT2}, s{sT2}, 2752
    s_add_u32 s{sT0}, s{sT0}, s{sT2}
    s_add_u32 s{sT1}, s{sT0}, {32*2752}
    s_cmp_eq_u32 s{sW}, 5
    s_cbranch_scc1 Ltc5
    buffer_load_dword v79, v{vT0}, {sr(SWG,4)}, s{sT0} offen
    s_mov_b32 exec_hi, 0
    buffer_load_dword v79, v{vT0}, {sr(SWG,4)}, s{sT1} offen
    s_branch Ltce
    Ltc5:
    buffer_load_dword v79, v{vT0}, {sr(SWU,4)}, s{sT0} offen
    s_mov_b32 exec_hi, 0
    buffer_load_dword v79, v{vT0}, {sr(SWU,4)}, s{sT1} offen
    s_branch Ltce
    Ltc6:
    s_cmp_eq_u32 s{sW}, 7
    s_cbranch_scc1 Ltc7
    v_lshrrev_b32 v{vT0}, 1, v{vLane}
    v_lshlrev_b32 v{vT0}, 10, v{vT0}
    v_and_b32 v{vT1}, 1, v{vLane}
    v_lshl_add_u32 v{vT0}, v{vT1}, 7, v{vT0}
    s_lshl_b32 s{sT0}, s{sI}, 17
    s_and_b32 s{sT1}, s{sJ}, 3
    s_lshl_b32 s{sT1}, s{sT1}, 15
    s_add_u32 s{sT0}, s{sT0}, s{sT1}
    buffer_load_dword v79, v{vT0}, {sr(SX,4)}, s{sT0} offen offset:256
    buffer_load_dword v79, v{vT0}, {sr(SX,4)}, s{sT0} offen offset:512
    buffer_load_dword v79, v{vT0}, {sr(SX,4)}, s{sT0} offen offset:768
    s_branch Ltce
    Ltc7:
    v_lshlrev_b32 v{vT0}, 10, v{vLane}
    s_lshl_b32 s{sT2}, s{sT2}, 10
    s_lshl_b32 s{sT0}, s{sJ}, 6
    s_add_u32 s{sT0}, s{sT0}, s{sT2}
    s_mov_b32 exec_hi, 0xffff
    buffer_load_dword v79, v{vT0}, {sr(SWQ,4)}, s{sT0} offen
    Ltce:
    s_mov_b64 exec, -1""")
e("s_nop 1")
for r in range(vRs, vRs+16, 2): e(f"v_mov_b64 {vr(r,2)}, 0")
e(f"s_mov_b32 s{sSt}, 0\ns_mov_b32 s{sRb}, 0\ns_mov_b32 s{sC3}, {(-2*STG) & 0xffffffff}\ns_setprio 2")
NF = 7
def comp_loop(var):
    tag = f"{var}"
    def wrd(n, k2):
        if n == 0: a, o, rs = cRQ, QOFF, 64
        else:
            t = (n-1) % 3
            a, o, rs = cRW+(t & 1), (GOFF if n < 4 else UOFF) + (t >> 1)*64, 192
        return tr(cW+4*n, a, o+32*k2*rs) + tr(cW+4*n+2, a, o+(32*k2+4)*rs)
    def xrd(k2): return [f"ds_read_b128 {vr(cX[k2]+4*u,4)}, v{cRX+k2} offset:{2048*u}" for u in range(4)]
    def mm(n, k2):
        r = [mfma16(cA+28*u+4*n, cW+4*n, cX[k2]+4*u) for u in range(4)]
        if var < 2 and (n & 1) == var: r.append(mfma16(cCs+4*(n >> 1), cW+4*n, cO))
        return r
    if var == 0:
        e("s_waitcnt lgkmcnt(0)\ns_barrier")
        for x in xrd(0) + sum([wrd(n, 0) for n in range(NF)], []): e(x)
        e(f"s_and_b32 s{sT0}, s{sI}, 6\ns_cmp_lg_u32 s{sT0}, 0\ns_waitcnt lgkmcnt(0)\ns_cbranch_scc1 Lc_2\ns_bitcmp1_b32 s{sW}, 0\ns_cbranch_scc1 Lc_1")
    e(f".p2align 3\nLc_{tag}:")
    adr = [f"v_add_u32 v{r}, s{sDl}, v{r}" for r in (cRX, cRX+1, cRW, cRW+1, cRQ)]
    ctl = rot_delta().split("\n") + [f"s_add_u32 s{sSt}, s{sSt}, 1"]
    BARG = 2
    def build(order0):
        out = []; q = []; issued = list(order0)
        def need(tagname):
            idx = max(i for i, t in enumerate(issued) if t == tagname)
            return len(issued)-1-idx
        def push(tagname, lst): q.extend((tagname, x) for x in lst)
        lastN = [99]
        for k2 in range(2):
            if k2 == 0: push("x1", xrd(1))
            for n in range(NF):
                if k2 == 1 and n == BARG:
                    while q:
                        t, x = q.pop(0); out.append(x)
                        if t: issued.append(t)
                    out.append(f"s_waitcnt lgkmcnt(0)\n{tk(None)}\ns_barrier\n{tk(81)}")
                    issued.clear(); issued.extend(["done"])
                    push("x0", xrd(0))
                    for m in range(BARG): push(f"w{m}0", wrd(m, 0))
                reqs = [f"w{n}{k2}"] + ([f"x{k2}"] if n == 0 else [])
                for r in reqs: assert all(t != r for t, _ in q), (r, k2, n)
                ns = [need(r) for r in reqs if r in issued]
                if ns and n % 2 == 0 or ns and min(ns) < lastN[0]:
                    nxt = f"w{n+1}{k2}"
                    if nxt in issued and all(t != nxt for t, _ in q): ns.append(need(nxt))
                    N = min(min(ns), 15); out.append(f"s_waitcnt lgkmcnt({N})"); lastN[0] = N
                for x in mm(n, k2):
                    out.append(x)
                    if q:
                        t, y = q.pop(0); out.append(y)
                        if t: issued.append(t); lastN[0] += 1
                if k2 == 0:
                    push(f"w{n}1", wrd(n, 1))
                    if n == 3: push(None, ctl)
                    if n == NF-1: push(None, adr)
                elif n >= BARG: push(f"w{n}0", wrd(n, 0))
        while q:
            t, x = q.pop(0); out.append(x)
            if t: issued.append(t)
        return out, issued
    _, steady = build([])
    out, _ = build(steady)
    for x in out: e(x)
    e(f"s_cmp_lt_u32 s{sSt}, {2 if var < 2 else 8}\ns_cbranch_scc1 Lc_{tag}")
    if var < 2:
        e(f"s_nop 2\ns_mov_b32 exec_lo, 0x00010001\ns_mov_b32 exec_hi, 0x00010001")
        for k in range(4-var): e(f"ds_write_b128 v{cEw}, {vr(cCs+4*k,4)} offset:{128*k}")
        e("s_mov_b64 exec, -1")
        if var == 0: e("s_branch Lc_2")
    tkout()
eC, eK, eT = 8, 40, 56
comp_loop(0); comp_loop(1); comp_loop(2)
tstamp(1)
for u in range(4): e(f"ds_read_b128 {vr(eK+4*u,4)}, v{cEs} offset:{256*u}")
for n in range(NF): e(f"ds_read_b128 {vr(eC+4*n,4)}, v{cEc} offset:{64*n}")
e("s_waitcnt lgkmcnt(6)")
for u in range(4): e(f"v_mul_f32 v{eT+u}, {f2u(0.25*1.4426950408889634/C1):#x}, v{eK+4*u+1}")
for u in range(4):
    for p in (0, 2): e(pk("v_pk_fma_f32", cA+28*u+p, [('b', eK+4*u), ('p', eC+p), ('p', cA+28*u+p)]))
for u in range(4):
    for p in (0, 2): e(pk("v_pk_mul_f32", cA+28*u+p, [('p', cA+28*u+p), ('b', eT+u)]))
for u in range(4):
    q = cA+28*u
    e(f"v_cvt_pk_bf16_f32 v{q}, v{q}, v{q+1}\nv_cvt_pk_bf16_f32 v{q+1}, v{q+2}, v{q+3}")
for u in range(4): e(f"ds_write_b64 v{cEq}, {vr(cA+28*u,2)} offset:{2048*(u>>1)+256*(u&1)}")
e(f"v_mov_b32 v{vT0}, {KFL}\ns_waitcnt lgkmcnt(0)\ns_barrier")
e(f"ds_read_b32 v{vT1}, v{vT0} offset:16")
ES = "--es" in sys.argv
if ES: a_sent(True)
e(f"s_waitcnt lgkmcnt(0)\nv_cmp_ne_u32 vcc, 0, v{vT1}")
gl0 = len(L)
for u in range(4):
    g = cA+28*u+4; P = cA+28*(u & 2)+4
    gelu_tile(g, g+12, eC+4, eC+16, eK+4*u, eT, 12, [P+4*(p//2)+2*(u & 1)+(p & 1) for p in range(6)])
    if u & 1:
        e("s_nop 0")
        for t in range(3):
            e(f"v_permlane32_swap_b32 v{P+4*t}, v{P+4*t+2}\nv_permlane32_swap_b32 v{P+4*t+1}, v{P+4*t+3}")
        for t, so in enumerate((sC0, sC1, sC2)):
            e(f"buffer_store_dwordx4 {vr(P+4*t,4)}, v{cEh}, {sr(SWS,4)}, s{so} offen sc1")
        if u == 1: e(f"v_add_u32 v{cEh}, {88*1024}, v{cEh}")
body = L[gl0:]; del L[gl0:]
e(f"s_lshl_b32 s{sT1}, s{sW4}, 12")
items = []
for n in range(12):
    t = f"s_cbranch_vccz Lgk{n}\n"
    if n % 2 == 0: t += f"s_add_u32 s{sT0}, s{sT1}, {36*1024+8192*n}\ns_mov_b32 m0, s{sT0}\ns_nop 0\n"
    for k in range(2): t += f"buffer_load_dwordx4 v{vL16}, {sr(SWS,4)}, s{sT0} offen offset:{1024*(2*(n%2)+k)} sc1 lds\n"
    items.append(t + f"Lgk{n}:")
cut = (len(body)*3)//4
for x in interleave(body[:cut], items) + body[cut:]: e(x)
e(f"""s_cbranch_vccnz Lgk
s_mov_b32 s{sT0}, 0
s_setprio 0
Lgw:
s_sleep 2
ds_read_b32 v{vT1}, v{vT0} offset:16
s_add_u32 s{sT0}, s{sT0}, 1
s_waitcnt lgkmcnt(0)
v_cmp_ne_u32 vcc, 0, v{vT1}
s_cmp_ge_u32 s{sT0}, 2000000
s_cbranch_scc1 LFkv
s_cbranch_vccz Lgw
s_branch LFkv
Lgk:""")
e(tag_issue())
stamp(2)
tflush(); TS.clear(); rt_out()
e("s_branch LF")

def cs_write(acc, slot_expr_sreg):
    e(f"""v_and_b32 v{vT0}, 1, v{vLane}
    v_lshlrev_b32 v{vT0}, 6, v{vT0}
    v_lshrrev_b32 v{vT1}, 4, v{vLane}
    v_lshl_add_u32 v{vT0}, v{vT1}, 4, v{vT0}
    v_add_u32 v{vT0}, {slot_expr_sreg}, v{vT0}
    s_mov_b32 exec_lo, 0x00030003
    s_mov_b32 exec_hi, 0x00030003
    ds_write_b128 v{vT0}, {vr(acc,4)}
    s_mov_b64 exec, -1""")
e("Lkvcu:")
entry_stamp(True)
e(tag_issue())
for x in kvx_dma(1): e(x)
late_srd(LS_A + LS_F)
e(f"""v_and_b32 v{vT0}, 31, v{vLane}
v_lshrrev_b32 v{vT1}, 1, v{vT0}
v_and_b32 v{vT1}, 7, v{vT1}
v_xor_b32 v{vT1}, v{vT1}, v{vH}
v_lshlrev_b32 v{vT0}, 7, v{vT0}
v_add_u32 v{vT0}, s{sXb}, v{vT0}""")
for ks in range(4):
    e(f"v_xor_b32 v{vT2}, {2*ks}, v{vT1}\nv_lshl_add_u32 v{vRX+ks}, v{vT2}, 4, v{vT0}")
e(f"""v_bfe_u32 v{vT0}, v{vLane}, 2, 2
v_lshl_add_u32 v{vT0}, v{vH}, 3, v{vT0}
v_bfe_u32 v{vT1}, v{vLane}, 4, 1
v_and_b32 v{vT2}, 3, v{vLane}
v_lshlrev_b32 v{vT2}, 3, v{vT2}
v_lshl_add_u32 v{vT3}, v{vT1}, 5, v{vT2}
v_lshl_add_u32 v{vRQ}, v{vT0}, 6, v{vT3}
v_lshlrev_b32 v{vT1}, 14, v{vT1}
v_lshl_add_u32 v{vRW}, v{vT0}, 5, v{vT2}
s_lshr_b32 s{sT0}, s{sW}, 2
s_lshl_b32 s{sT0}, s{sT0}, 13
s_add_u32 s{sT1}, s{sT0}, {WKV}
v_add3_u32 v{vRW}, v{vRW}, v{vT1}, s{sT1}
s_add_u32 s{sT1}, s{sT1}, s{sT0}
v_add_u32 v{vRQ}, s{sT1}, v{vRQ}
v_lshrrev_b32 v{vT0}, 2, v{vLane}
v_lshlrev_b32 v{vT0}, 10, v{vT0}
v_and_b32 v{vT1}, 3, v{vLane}
v_lshl_add_u32 v{vQa}, v{vT1}, 4, v{vT0}
v_bfe_u32 v{vT0}, v{vLane}, 4, 1
v_and_b32 v{vT1}, 15, v{vLane}
v_cmp_eq_u32 vcc, v{vT0}, v{vT1}
v_mov_b32 v{vT2}, 0x3f803f80
s_nop 0
v_cndmask_b32 v{vSel}, 0, v{vT2}, vcc""")
for k in range(1, 4): e(f"v_mov_b32 v{vSel+k}, v{vSel}")
for r in range(vCs, vCs+4): e(f"v_mov_b32 v{r}, 0")
e(f"s_waitcnt vmcnt(5) lgkmcnt(0)\ns_cmp_lt_u32 s{sW}, 4\ns_cbranch_scc1 Lkvr1")
rowstat_finish()
e("Lkvr1:\ns_barrier")
tstamp(12)
def kv_reads(c):
    r = []
    for ks in range(4):
        W = vWk + 16*(c & 1) + 4*ks
        r += [f"ds_read_b128 {vr(vXf+16*c+4*ks,4)}, v{vRX+ks} offset:{4096*c}"]
        r += tr(W, vRW, (64*c+16*ks)*32) + tr(W+2, vRW, (64*c+16*ks+4)*32)
    return r
def kstat_issue():
    return f"buffer_load_dwordx4 {vr(vSt,4)}, v{vWa0}, {sr(SWS,4)}, s{sC1} offen sc1"
for x in kv_reads(0) + kvx_dma(2) + kvx_dma(3): e(x)
e(f"""v_and_b32 v{vWa0}, 31, v{vLane}
v_lshlrev_b32 v{vWa0}, 4, v{vWa0}
s_lshl_b32 s{sT0}, s{sI}, 2
s_add_u32 s{sT0}, s{sT0}, s{sW4}
s_mul_i32 s{sC0}, s{sT0}, {KVT}
s_lshl_b32 s{sC1}, s{sT0}, 9
s_add_u32 s{sC1}, s{sC1}, {STATG}""")
if "--kvt" in sys.argv: e(f"s_mov_b32 s{sT0}, {64*KVT+1024}\nbuffer_load_dword v{vSt+8}, off, {sr(SWS,4)}, s{sT0}")
for c in range(4):
    m = []
    for ks in range(4):
        X = vXf+16*c+4*ks; W = vWk + 16*(c & 1) + 4*ks
        z = "0" if c == 0 and ks == 0 else None
        m += [mfma(vAcc+16, W, X, z), mfma16(vCs, W, vSel), mfma(vAcc+32, X, W, z)]
    e("s_waitcnt lgkmcnt(0)")
    if c < 3:
        wt = f"s_waitcnt vmcnt({8-4*c})"
        if c:
            wt = f"s_waitcnt vmcnt({10-4*c})\ns_cmp_ge_u32 s{sW}, 4\ns_cbranch_scc1 Lkx{c}\n{wt}\nLkx{c}:"
        for x in m[:3] + [wt] + interleave(m[3:9], kv_reads(c+1)) + m[9:]: e(x)
        if c == 0:
            tag_wait("k", 8)
            e(f"s_cmp_lt_u32 s{sW}, 4\ns_cbranch_scc1 Lkvr2")
            rowstat_store()
            e("Lkvr2:")
    else:
        e(kstat_issue())
        for x in m: e(x)
tstamp(1)
e(f"""v_and_b32 v{vT2}, 31, v{vLane}
v_lshlrev_b32 v{vT2}, 2, v{vT2}
s_xor_b32 s{sT2}, s{sXb}, 65536
s_add_u32 s{sT1}, s{sXb}, 4352
s_lshl_b32 s{sQo}, s{sW}, 16
s_add_u32 s{sQo}, s{sQo}, {64*15}
s_lshl_b32 s{sMq}, s{sW}, 12
s_add_u32 s{sMq}, s{sMq}, {WKV}""")
cs_write(vCs, f"s{sT1}")
e(f"""v_add_u32 v{vT0}, s{sXb}, v{vL16}
v_add_u32 v{vWa1}, s{sT2}, v{vL16}
v_add_u32 v{vWa2}, s{sT2}, v{vT2}
v_lshl_add_u32 v{vT3}, v{vH}, 4, s{sXb}
s_cmp_ge_u32 s{sW}, 4
s_cbranch_scc1 LkvH""")
def wq_dma():
    for k in range(4):
        e(f"s_add_u32 m0, s{sMq}, {1024*k}\ns_add_u32 s{sT0}, s{sQo}, {16384*k}\nbuffer_load_dwordx4 v{vQa}, {sr(SWQ,4)}, s{sT0} offen lds")
def kstat_wait(tag):
    e(f"""s_mov_b32 s{sT0}, 0
    s_waitcnt vmcnt(0)
    Lks_{tag}:
    v_cmp_ne_u64 vcc, s[{sNo}:{sNo+1}], {vr(vSt+2,2)}
    s_add_u32 s{sT0}, s{sT0}, 1
    s_cmp_ge_u32 s{sT0}, 100000
    s_cbranch_vccz Lksd_{tag}
    s_cbranch_scc1 Lksd_{tag}
    {kstat_issue()}
    s_waitcnt vmcnt(0)
    s_branch Lks_{tag}
    Lksd_{tag}:""")
for q in range(4): e(f"ds_write_b128 v{vT0}, {vr(vAcc+32+4*q,4)} offset:{1024*q}")
e(f"v_xor_b32 v{vT1}, 0x10000, v{vT3}\ns_waitcnt lgkmcnt(0)\ns_barrier")
e(f"""ds_read_b128 {vr(vWk,4)}, v{vWa1}
ds_read_b128 {vr(vWk+4,4)}, v{vWa1} offset:1024
ds_read_b128 {vr(vSt+12,4)}, v{vT3} offset:{4352+64}
ds_read_b128 {vr(vSt+16,4)}, v{vT3} offset:{4352+96}
ds_read_b128 {vr(vWk+8,4)}, v{vT1} offset:{4352+64}
ds_read_b128 {vr(vWk+12,4)}, v{vT1} offset:{4352+96}""")
e(f"""v_and_b32 v{vT0}, 0x33, v{vLane}
v_bfe_u32 v{vT1}, v{vLane}, 2, 1
v_lshl_or_b32 v{vT0}, v{vT1}, 3, v{vT0}
v_bfe_u32 v{vT1}, v{vLane}, 3, 1
v_lshl_or_b32 v{vT0}, v{vT1}, 2, v{vT0}
v_lshlrev_b32 v{vT0}, 4, v{vT0}
s_waitcnt lgkmcnt(0)""")
for p in range(0, 8, 2):
    e(pk("v_pk_add_f32", vAcc+24+p, [('p', vAcc+24+p), ('p', vWk+p)]))
    e(pk("v_pk_add_f32", vSt+12+p, [('p', vSt+12+p), ('p', vWk+8+p)]))
kstat_wait("l")
e(f"v_sub_f32 v{vSt+4}, 0, v{vSt}")
lin_fold(vAcc+24, vSt+12, vSt+4, vSt+1, 8)
for p in range(4): e(f"v_cvt_pk_bf16_f32 v{vAcc+16+p}, v{vAcc+24+2*p}, v{vAcc+25+2*p}")
e(f"buffer_store_dwordx4 {vr(vAcc+16,4)}, v{vT0}, {sr(SWS,4)}, s{sC0} offen sc1\ns_branch LkvS")
e("LkvH:")
e(f"ds_write_b128 v{vT0}, {vr(vAcc+24,4)}\nds_write_b128 v{vT0}, {vr(vAcc+28,4)} offset:1024")
e(f"v_add_u32 v{vT1}, s{sXb}, v{vT2}\ns_waitcnt lgkmcnt(0)\ns_barrier")
e(f"ds_read_b32 v{vSt+6}, v{vT1} offset:4352\nds_read_b32 v{vSt+7}, v{vWa2} offset:4352")
for q in range(4): e(f"ds_read_b128 {vr(vAcc+48+4*q,4)}, v{vWa1} offset:{1024*q}")
tstamp(21)
kstat_wait("h")
tstamp(23)
e(f"ds_write_b32 v{vT1}, v{vSt} offset:4608\nds_write_b32 v{vT1}, v{vSt+1} offset:4736\ns_waitcnt lgkmcnt(0)")
for q in range(4):
    e(f"ds_read_b128 {vr(vWk+4*q,4)}, v{vT3} offset:{4608+32*q}\nds_read_b128 {vr(vWk+16+4*q,4)}, v{vT3} offset:{4736+32*q}")
e(f"v_add_f32 v{vSt+6}, v{vSt+6}, v{vSt+7}\nv_sub_f32 v{vSt+6}, 0, v{vSt+6}")
for p in range(0, 16, 2): e(pk("v_pk_add_f32", vAcc+32+p, [('p', vAcc+32+p), ('p', vAcc+48+p)]))
e("s_waitcnt lgkmcnt(0)")
for p in range(0, 16, 2): e(pk("v_pk_fma_f32", vAcc+32+p, [('p', vWk+p), ('b', vSt+6), ('p', vAcc+32+p)]))
for p in range(0, 16, 2): e(pk("v_pk_mul_f32", vAcc+32+p, [('p', vAcc+32+p), ('p', vWk+16+p)]))
for p in range(8): e(f"v_cvt_pk_bf16_f32 v{vAcc+32+p}, v{vAcc+32+2*p}, v{vAcc+33+2*p}")
v_lane_addr(vT0)
for p in range(8): e(f"v_mov_b32 v{vAcc+32+p}, 0x3f803f80")
e(f"""s_mov_b32 exec_lo, 0x1ffff
s_mov_b32 exec_hi, 0xffff
buffer_store_dwordx4 {vr(vAcc+32,4)}, v{vT0}, {sr(SWS,4)}, s{sC0} offen offset:1024 sc1
buffer_store_dwordx4 {vr(vAcc+36,4)}, v{vT0}, {sr(SWS,4)}, s{sC0} offen offset:{1024+528} sc1
s_mov_b64 exec, -1""")
tstamp(29)
e("LkvS:")
wq_dma()
for r in range(4): e(f"v_mov_b32 v{vCs+r}, 0")
e(f"s_lshl_b32 s{sT2}, s{sI}, 7\ns_add_u32 s{sT2}, s{sT2}, {KFLG}\ns_waitcnt vmcnt(4)\ns_barrier")
if "--dkv" in sys.argv:
    for _ in range(3): e("s_sleep 127")
flag_set(sT2, "kv")
stamp(13)
tflush(); TS.clear(); rt_out()
e("s_waitcnt vmcnt(0)\ns_barrier")
def q_reads(c):
    r = []
    for ks in range(4):
        W = vWk + 16*(c & 1) + 4*ks
        r += tr(W, vRQ, (64*c+16*ks)*64) + tr(W+2, vRQ, (64*c+16*ks+4)*64)
    return r
for x in q_reads(0): e(x)
for c in range(4):
    m = []
    for ks in range(4):
        X = vXf+16*c+4*ks; W = vWk + 16*(c & 1) + 4*ks
        m += [mfma(vAcc, W, X, "0" if c == 0 and ks == 0 else None), mfma16(vCs, W, vSel)]
    e("s_waitcnt lgkmcnt(0)")
    for x in interleave(m[:4], q_reads(c+1) if c < 3 else []) + m[4:]: e(x)
e(f"""s_or_b32 s{sT2}, s{sXb}, {65536+8192}
s_lshr_b32 s{sT3}, s{sW}, 2
s_lshl_b32 s{sT3}, s{sT3}, 7
s_add_u32 s{sT1}, s{sT2}, s{sT3}
s_add_u32 s{sT1}, s{sT1}, 4096
v_add_u32 v{vWa1}, s{sT2}, v{vL16}
v_lshl_add_u32 v{vT3}, v{vH}, 4, s{sT2}
s_nop 3""")
cs_write(vCs, f"s{sT1}")
e(f"s_cmp_ge_u32 s{sW}, 4\ns_cbranch_scc1 LkvH2\ns_waitcnt lgkmcnt(0)\ns_barrier")
for q in range(4): e(f"ds_read_b128 {vr(vWk+4*q,4)}, v{vWa1} offset:{1024*q}")
cs_read(vAcc+48, 4096); cs_read(vWk+16, 4096+128)
e("s_waitcnt lgkmcnt(0)")
for p in range(0, 16, 2):
    e(pk("v_pk_add_f32", vAcc+p, [('p', vAcc+p), ('p', vWk+p)]))
    e(pk("v_pk_add_f32", vAcc+48+p, [('p', vAcc+48+p), ('p', vWk+16+p)]))
q_epilogue(vAcc+48)
a_init(); fin_init()
e("s_waitcnt lgkmcnt(0)\ns_barrier\ns_branch LaR\nLkvH2:")
for q in range(4): e(f"ds_write_b128 v{vWa1}, {vr(vAcc+4*q,4)} offset:{1024*q}")
e(f"s_mov_b32 s{sKf}, {KFLG}")
e(flags_issue(sKf))
e("s_waitcnt lgkmcnt(0)\ns_barrier")
f_init()
flags_wait(sKf, "kv2", 0)
kv_dma("c")
e("s_waitcnt vmcnt(0)\ns_barrier")
if ES: a_sent(True)
e("s_branch LFkv")

AAL = 6 if "--a6" in sys.argv else 3
vm = []
def vtag(tag): vm.append(tag)
def vwait_s(tag):
    idx = max(i for i, t in enumerate(vm) if t == tag)
    return f"s_waitcnt vmcnt({min(63, len(vm)-1-idx)})"
def emit_seq(seq):
    for x in seq:
        if isinstance(x, list): emit_seq(x)
        elif isinstance(x, tuple): vtag(x[0]); e(x[1])
        elif callable(x): e(x())
        else: e(x)
e(f"Lp2:\ns_setprio 3\ns_cmp_eq_u32 s{sSt}, 0\ns_cbranch_scc1 Lkvok")
stamp(16)
flags_wait(sKf, "kv", 0)
stamp(17)
kv_dma("d")
e(f"v_mov_b32 v{vT0}, {KFL}\nds_write_b32 v{vT0}, v{hF+1} offset:16")
e(f"""Lkvok:
v_mov_b32 v{vT0}, {KFL}
s_mov_b32 s{sT0}, 0
s_waitcnt vmcnt(0)
ds_write_b32 v{hF}, v{hF+1}
Lkw:
ds_read_b128 {vr(aS[0],4)}, v{vT0}
s_add_u32 s{sT0}, s{sT0}, 1
s_waitcnt lgkmcnt(0)
v_and_b32 v{aS[0]}, v{aS[0]}, v{aS[0]+1}
v_and_b32 v{aS[0]+2}, v{aS[0]+2}, v{aS[0]+3}
v_and_b32 v{aS[0]}, v{aS[0]}, v{aS[0]+2}
v_cmp_ne_u32 vcc, 0, v{aS[0]}
s_cmp_ge_u32 s{sT0}, 2000000
s_cbranch_scc1 LaR
s_cbranch_vccnz LaR
s_sleep 1
s_branch Lkw
LaR:""")
stamp(3)
e(f"""ds_read_b128 {vr(aQ[0],4)}, v{vAq}
ds_read_b128 {vr(aK[0],4)}, v{vAk}
ds_read_b128 {vr(aQ[1],4)}, v{vAq} offset:1024
ds_read_b128 {vr(aK[1],4)}, v{vAk} offset:{KVT}
ds_read_b128 {vr(aVl[0],4)}, v{vAv}
ds_read_b128 {vr(aVh[0],4)}, v{vAv} offset:528
s_waitcnt lgkmcnt(4)""")
e(mfma(aS[0], aK[0], aQ[0], "0"))
e("s_waitcnt lgkmcnt(3)")
e(mfma(aS[1], aK[0], aQ[1], "0"))
e("s_nop 9")
for b in range(2):
    t = vT0+2*b; S = aS[b]
    e(f"v_max3_f32 v{t}, v{S}, v{S+1}, v{S+2}")
    for p in range(3, 15, 2): e(f"v_max3_f32 v{t}, v{t}, v{S+p}, v{S+p+1}")
    e(f"v_max_f32 v{t}, v{t}, v{S+15}\nv_mov_b32 v{t+1}, v{t}")
e(f"""s_nop 1
v_permlane32_swap_b32 v{vT0}, v{vT1}
v_permlane32_swap_b32 v{vT2}, v{vT3}
s_mov_b32 s{sSt}, 0
v_max_f32 v{vT0}, v{vT0}, v{vT1}
v_max_f32 v{vT2}, v{vT2}, v{vT3}""")
for b in range(2):
    e(f"v_sub_f32 v{aC[b]}, 0, v{vT0+2*b}\nv_sub_f32 v{aC[b]+1}, 0, v{vT0+2*b}")
for r in range(16): e(f"v_sub_f32 v{aS[0]+r}, v{aS[0]+r}, v{vT0}")
for b in (1, 0):
    for r in range(2, 16, 2): e(f"v_mov_b64 {vr(aC[b]+r,2)}, {vr(aC[b],2)}")
e("s_setprio 1")
stamp(5)
e(f"v_exp_f32 v{aS[0]}, v{aS[0]}\nv_exp_f32 v{aS[0]+1}, v{aS[0]+1}\ns_branch La1\n.p2align {AAL}\nLa0:")
for n in range(32):
    b = n & 1; T = n >> 1
    X = aS[b]; Y = aS[b ^ 1]
    ex = [f"v_exp_f32 v{X+i}, v{X+i}" for i in range(16)]
    Tp = (n-1) >> 1; Tn = (n+1) >> 1
    seq = ex[0:2] + [smf(aO[b ^ 1], aVh[Tp & 1], Y+8, vIdx)] + (["La1:"] if n == 0 else []) + ex[2:5]
    seq += [mfma(Y, aK[Tn & 1], aQ[b ^ 1], vr(aC[b ^ 1], 16))]
    if b:
        rd = [f"ds_read_b128 {vr(aVl[(T+1)&1],4)}, v{vAv} offset:{(T+1)*KVT}",
              f"ds_read_b128 {vr(aVh[(T+1)&1],4)}, v{vAv} offset:{(T+1)*KVT+528}",
              f"ds_read_b128 {vr(aK[T&1],4)}, v{vAk} offset:{(T+2)*KVT}"]
        seq += rd + ex[5:10]
    else: seq += ["s_waitcnt lgkmcnt(0)"] + ex[5:10]
    seq += [smf(aO[b], aVl[T & 1], X, vIdx)] + ex[10:16]
    for x in seq: e(x)
if PROF:
    e(f"s_memtime s[{sTm}:{sTm+1}]\ns_lshl_b32 s{sT0}, s{sSt}, 2\ns_add_u32 s{sT0}, s{sT0}, s{sPo}\ns_waitcnt lgkmcnt(0)\nv_mov_b32 v0, s{sTm}\nbuffer_store_dword v0, off, {sr(SWS,4)}, s{sT0} offset:72")
e(f"""v_add_u32 v{vAk}, {16*KVT}, v{vAk}
v_add_u32 v{vAv}, {16*KVT}, v{vAv}
s_add_u32 s{sSt}, s{sSt}, 1
s_cmp_eq_u32 s{sSt}, 1
s_cbranch_scc0 La2
{'' if PROF else 's_waitcnt vmcnt(0)'}
s_barrier
s_branch La0
La2:
s_cmp_lt_u32 s{sSt}, 4
s_cbranch_scc1 La0""")
e(smf(aO[1], aVh[1], aS[1]+8, vIdx))
if "--dA" in sys.argv:
    e(f"s_and_b32 s{sT0}, s2, 0x29\ns_cmp_lg_u32 s{sT0}, 0\ns_cbranch_scc1 LdA\ns_sleep 127\ns_sleep 127\nLdA:")
e(f"s_mov_b32 s{sC0}, {f2u(2.0**40):#x}\ns_mov_b32 s{sC1}, {f2u(2.0**126):#x}")
for b in range(2):
    O = aO[b]
    e(f"s_mov_b32 s{sRetry}, 0\nLfin{b}:")
    e(f"""v_rcp_f32 v{O+10}, v{O+8}
    v_max3_f32 v{vT1}, abs(v{O}), abs(v{O+1}), abs(v{O+2})
    v_max3_f32 v{vT1}, v{vT1}, abs(v{O+3}), abs(v{O+4})
    v_max3_f32 v{vT1}, v{vT1}, abs(v{O+5}), abs(v{O+6})
    v_max_f32 v{vT1}, v{vT1}, abs(v{O+7})
    v_cmp_nlt_f32 vcc, v{O+8}, s{sC0}
    v_cmp_nlt_f32 s[{sEx}:{sEx+1}], v{vT1}, s{sC1}""")
    for p in range(8): e(f"v_mul_f32 v{O+p}, v{O+p}, v{O+10}")
    e(f"s_or_b64 vcc, vcc, s[{sEx}:{sEx+1}]")
    for p in range(4): e(f"v_cvt_pk_bf16_f32 v{O+p}, v{O+2*p}, v{O+2*p+1}")
    for p in range(4): e(f"v_min_u32 v{O+p}, -2, v{O+p}")
    e(f"s_cbranch_vccnz Lfallback{b}\nLok{b}:")
    e(f"buffer_store_dwordx4 {vr(O,4)}, v{vL16}, {sr(SWS,4)}, s{sOp if b == 0 else sOp2} offen sc1")
stamp(6)
OSC = " sc1"
gX = [136, 140]; gG = [144, 176]; gR = [8, 40]
e(f"buffer_load_dwordx4 {vr(gX[0],4)}, v{vRa}, {sr(SX,4)}, s{sXf} offen")
e(f"buffer_load_dwordx4 {vr(gX[1],4)}, v{vRa}, {sr(SX,4)}, s{sXf2} offen")
e("s_waitcnt lgkmcnt(0)\ns_setprio 0\ns_barrier\ns_barrier")
stamp(8)
for tt in range(2):
    for q in range(8): e(f"ds_read_b128 {vr(gG[tt]+4*q,4)}, v{vRr} offset:{128*tt+XK*(q//2)+512*(q%2)}")
def sum4(r):
    for p in range(0, 8, 2):
        e(pk("v_pk_add_f32", r+p, [('p', r+p), ('p', r+8+p)]))
        e(pk("v_pk_add_f32", r+16+p, [('p', r+16+p), ('p', r+24+p)]))
    for p in range(0, 8, 2): e(pk("v_pk_add_f32", r+p, [('p', r+p), ('p', r+16+p)]))
for tt in range(2):
    G = gG[tt]
    e(f"s_waitcnt lgkmcnt({8*(1-tt)})")
    for p in range(8): e(f"v_add_f32 v{G+p}, v{G+p}, v{G+8+p}\nv_add_f32 v{G+16+p}, v{G+16+p}, v{G+24+p}")
    for p in range(8): e(f"v_add_f32 v{G+p}, v{G+p}, v{G+16+p}")
    for p in range(8): e(f"v_mul_f32 v{G+8+p}, {f2u(-1.4426950408889634):#x}, v{G+p}")
    for p in range(8): e(f"v_exp_f32 v{G+8+p}, v{G+8+p}")
    for p in range(8): e(f"v_add_f32 v{G+8+p}, 1.0, v{G+8+p}")
    for p in range(8): e(f"v_rcp_f32 v{G+8+p}, v{G+8+p}")
    e("s_waitcnt vmcnt(0)")
    for p in range(4): e(f"v_lshlrev_b32 v{G+16+2*p}, 16, v{gX[tt]+p}\nv_and_b32 v{G+17+2*p}, 0xffff0000, v{gX[tt]+p}")
    for p in range(8): e(f"v_mul_f32 v{G+p}, v{G+p}, v{G+8+p}")
stamp(9)
e("s_barrier")
for tt in range(2):
    for q in range(8): e(f"ds_read_b128 {vr(gR[tt]+4*q,4)}, v{vRr2} offset:{128*tt+XK*(q//2)+512*(q%2)}")
for tt in range(2):
    R = gR[tt]; G = gG[tt]
    e(f"s_waitcnt lgkmcnt({8*(1-tt)})")
    sum4(R)
    for p in range(0, 8, 2): e(pk("v_pk_fma_f32", R+p, [('p', R+p), ('p', G+p), ('p', G+16+p)]))
    for p in range(4): e(f"v_cvt_pk_bf16_f32 v{R+p}, v{R+2*p}, v{R+2*p+1}")
    e(f"buffer_store_dwordx4 {vr(R,4)}, v{vRa}, {sr(SOUT,4)}, s{sXf if tt == 0 else sXf2} offen{OSC}")
def the_end():
    stamp(11)
    if RT: e(f"s_waitcnt vmcnt(0)\ns_memrealtime s[100:101]\ns_waitcnt lgkmcnt(0)\nv_mov_b32 v0, s100\nbuffer_store_dword v0, off, {sr(SWS,4)}, s{sPo} offset:56")
the_end()
e("Lend:\ns_endpgm")

e("LFkv:")
kv_rest("k")
e("LF:")
if FS and not ES: a_sent(True)
tag_wait("f", 0)
e("s_setprio 0\ns_barrier")
flag_set(sHs, "h", 4)
RG = SP + [aslot(n) for n in range(4)]
def u_dma(m):
    srdw, row = (SWO, 64*m) if m < 8 else (SWD, 64*(m-8))
    return [f"s_add_u32 m0, s{sDm}, {RG[m % 7]}", f"s_add_u32 s{sT0}, s{sDo}, {row*1024}",
            (f"u{m}", f"buffer_load_dwordx4 v{vDa}, {sr(srdw,4)}, s{sT0} offen lds"),
            (f"u{m}", f"buffer_load_dwordx4 v{vDa2}, {sr(srdw,4)}, s{sT0} offen offset:1024 lds")]
def u_reads(m, F):
    a = RG[m % 7]; win = 1 if a >= SP[0] else 0; off = a - win*SP[0]
    r0, r1 = vRd+2*win, vRd+2*win+1
    return tr(F, r0, off) + tr(F+2, r0, off+1024) + tr(F+4, r1, off) + tr(F+6, r1, off+1024)
HR = int(sys.argv[sys.argv.index("--hr")+1]) if "--hr" in sys.argv else 8
def h_loads(s):
    r = []
    if s % 4 == 0: r += [f"s_add_u32 s{sC0}, s{sHo}, {1024*s}", f"s_add_u32 s{sC1}, s{sC0}, {88*1024}"]
    for tt in range(2):
        r.append((f"h{s}", f"buffer_load_dwordx4 {vr(fH+8*(s % HR)+4*tt,4)}, v{vL16}, {sr(SWS,4)}, s{sC0 if tt == 0 else sC1} offen offset:{1024*(s%4)} sc1"))
    return r
for m in range(7): emit_seq(u_dma(m))
for m in range(8):
    e(vwait_s(f"u{m}"))
    for x in u_reads(m, fWo+8*m): e(x)
    e("s_waitcnt lgkmcnt(0)")
    emit_seq(u_dma(m+7))
tstamp(18)
e(flags_issue(sHc))
flags_wait(sHc, "h", 0)
tstamp(19)
for s in range(HR): emit_seq(h_loads(s))
for x in u_reads(8, fWb[0]): e(x)
FB = int(sys.argv[sys.argv.index("--fb")+1]) if "--fb" in sys.argv else 15
for s in range(22):
    m = 8+s; W = fWb[s & 1]
    if s == FB:
        tstamp(20); e("s_barrier\ns_setprio 2"); tstamp(21)
    if s < 21:
        e(vwait_s(f"u{m+1}"))
        for x in u_reads(m+1, fWb[(s+1) & 1]): e(x)
        e("s_waitcnt lgkmcnt(4)")
    else: e("s_waitcnt lgkmcnt(0)")
    if m+7 < 30: emit_seq(u_dma(m+7))
    e(vwait_s(f"h{s}"))
    if s == 21: e(f"s_cmp_ge_u32 s{sW4}, 2\ns_cbranch_scc1 Lskip21")
    for tt in range(2):
        for ch in range(2 if "--nofm" not in sys.argv else 0): e(mfma(fA+32*tt+16*ch, W+4*ch, fH+8*(s % HR)+4*tt, "0" if s == 0 else None))
    if s+HR < 22: emit_seq(h_loads(s+HR))
e("Lskip21:\ns_nop 8")
tstamp(22)
ORD = [7, 6, 5, 4, 3, 2, 1, 0] if M48 else [i ^ (2*JX) for i in [7, 6, 5, 4, 1, 0, 3, 2]]
def o_load(k):
    tt, i = k & 1, k >> 1
    return f"buffer_load_dwordx4 {vr(opos(i)+4*tt,4)}, v{vL16}, {sr(SWS,4)}, s{(sOc, sOc2, sOc3, sOc4)[2*tt+(i>>2)]} offen offset:{1024*(i%4)} sc1"
def opos(i): return fO + 8*ORD.index(i)
zer = [f"v_mov_b64 {vr(fS+r,2)}, 0" for r in range(0, 64, 2)]
for q in range(16):
    e(f"ds_write_b128 v{vRw}, {vr(fA+4*q,4)} offset:{XB*(q//2)+XP*(q%2)}")
    if q >= 4: e(f"s_waitcnt lgkmcnt(4)\n{o_load(2*ORD[(q-4)//2]+(q & 1))}")
e("s_waitcnt lgkmcnt(0)\ns_barrier")
for k in range(12, 16): e(o_load(2*ORD[k//2]+(k & 1)))
tstamp(9)
def o_pair(i, tag, wait):
    B = opos(i)
    if wait is not None: e(f"s_waitcnt vmcnt({wait})")
    else: e(f"s_bitcmp1_b32 s{sSt}, {i}\ns_cbranch_scc0 Lon{tag}{i}")
    e(f"""v_max3_u32 v{vT1}, v{B}, v{B+1}, v{B+2}
    v_max3_u32 v{vT1}, v{vT1}, v{B+3}, v{B+4}
    v_max3_u32 v{vT1}, v{vT1}, v{B+5}, v{B+6}
    v_max_u32 v{vT1}, v{vT1}, v{B+7}
    v_cmp_eq_u32 vcc, s{sT1}, v{vT1}
    s_cbranch_vccnz Lon{tag}{i}
    s_bitset0_b32 s{sSt}, {i}""")
    for tt in range(2):
        for ch in range(2): e(mfma(fS+32*tt+16*ch, fWo+8*i+4*ch, B+4*tt))
    e(f"Lon{tag}{i}:")
def acc_chain(tt, ch): return [mfma(fS+32*tt+16*ch, fWo+8*i+4*ch, opos(i)+4*tt, "0" if n == 0 else None) for n, i in enumerate(ORD)]
def s_wr(tt, ch): return [f"ds_write_b128 v{vRw2+tt}, {vr(fS+32*tt+16*ch+4*q,4)} offset:{XB*(2*ch+q//2)+XP*(q%2)}" for q in range(4)]
e(f"v_mov_b32 v{vT1}, 0")
for n, x in enumerate(acc_chain(0, 0)):
    B = fO+8*n
    e(f"s_waitcnt vmcnt({14-2*n})\n{x}")
    for p in range(0, 8, 2): e(f"v_max3_u32 v{vT1}, v{vT1}, v{B+p}, v{B+p+1}")
e(f"v_cmp_eq_u32 vcc, -1, v{vT1}\ns_cbranch_vccnz Lor0")
c1, c2, c3 = acc_chain(0, 1), acc_chain(1, 0), acc_chain(1, 1)
for prev, c in (((0, 0), c1), ((0, 1), c2), ((1, 0), c3)):
    for x in [c[0], "s_nop 3", c[1], "s_nop 3", c[2]] + interleave(c[3:7], s_wr(*prev)) + c[7:]: e(x)
stamp(7)
e("s_nop 11")
for x in s_wr(1, 1): e(x)
e("Lsd:")
e("s_waitcnt lgkmcnt(0)\ns_barrier")
stamp(10); tflush(); TS.clear()
the_end()
e("s_endpgm")
e(f"Lor0:\ns_nop 8")
for x in zer: e(x)
e(f"s_mov_b32 s{sT0}, 0\ns_mov_b32 s{sSt}, 0xff\ns_mov_b32 s{sT1}, -1\ns_branch Lor2")
e("Lor:\ns_sleep 4")
for i in ORD:
    e(f"s_bitcmp1_b32 s{sSt}, {i}\ns_cbranch_scc0 Lorn{i}\n{o_load(2*i)}\n{o_load(2*i+1)}\nLorn{i}:")
e(f"""s_add_u32 s{sT0}, s{sT0}, 1
s_cmp_ge_u32 s{sT0}, 200000
s_cbranch_scc1 Lod
s_waitcnt vmcnt(0)
Lor2:""")
for i in ORD: o_pair(i, "b", None)
e(f"s_cmp_lg_u32 s{sSt}, 0\ns_cbranch_scc1 Lor\nLod:\ns_nop 6")
for tt in range(2):
    for ch in range(2):
        for x in s_wr(tt, ch): e(x)
e("s_branch Lsd")
for b in range(2):
    S = aS[0]; O = aO[b]; C = aC[b]; Q = aQ[b]
    e(f"""Lfallback{b}:
    s_cmp_lg_u32 s{sRetry}, 0
    s_cbranch_scc1 Lok{b}
    s_mov_b32 s{sRetry}, 1
    s_mov_b32 s{sSt}, 0
    v_mov_b32 v{vT1}, 0xff800000
    s_waitcnt lgkmcnt(0)
    Lfb1{b}:
    buffer_load_dwordx4 {vr(aK[0],4)}, v{vL16}, {sr(SWS,4)}, s{sSt} offen sc1
    s_waitcnt vmcnt(0)""")
    e(mfma(S, aK[0], Q, "0"))
    e("s_nop 11")
    for p in range(0, 16, 2): e(f"v_max3_f32 v{vT1}, v{vT1}, v{S+p}, v{S+p+1}")
    e(f"""s_add_u32 s{sSt}, s{sSt}, {KVT}
    s_cmp_lt_u32 s{sSt}, {64*KVT}
    s_cbranch_scc1 Lfb1{b}
    v_mov_b32 v{vT2}, v{vT1}
    s_nop 1
    v_permlane32_swap_b32 v{vT1}, v{vT2}
    s_nop 1
    v_max_f32 v{vT1}, v{vT1}, v{vT2}""")
    for r in range(16): e(f"v_sub_f32 v{C+r}, 0, v{vT1}")
    for r in range(12): e(f"v_mov_b32 v{O+r}, 0")
    e(f"""v_subrev_u32 v{vT0}, {64*KVT}, v{vAv}
    s_mov_b32 s{sSt}, 0
    Lfb2{b}:
    buffer_load_dwordx4 {vr(aK[0],4)}, v{vL16}, {sr(SWS,4)}, s{sSt} offen sc1
    buffer_load_dwordx4 {vr(aVl[0],4)}, v{vT0}, {sr(SWS,4)}, s{sSt} offen sc1
    buffer_load_dwordx4 {vr(aVh[0],4)}, v{vT0}, {sr(SWS,4)}, s{sSt} offen offset:528 sc1
    s_waitcnt vmcnt(0)""")
    e(mfma(S, aK[0], Q, vr(C, 16)))
    e("s_nop 11")
    for i in range(16): e(f"v_exp_f32 v{S+i}, v{S+i}")
    e("s_nop 1")
    e(smf(O, aVl[0], S, vIdx)); e(smf(O, aVh[0], S+8, vIdx))
    e(f"""s_add_u32 s{sSt}, s{sSt}, {KVT}
    s_cmp_lt_u32 s{sSt}, {64*KVT}
    s_cbranch_scc1 Lfb2{b}
    s_nop 9
    s_branch Lfin{b}""")
e("Lcodeend:")

L += ['.section .rodata,"a"', ".p2align 6", f".amdhsa_kernel {NAME}_kernel",
      "  .amdhsa_next_free_vgpr 256", "  .amdhsa_next_free_sgpr 102", "  .amdhsa_accum_offset 256",
      "  .amdhsa_group_segment_fixed_size 0", "  .amdhsa_kernarg_size 96", "  .amdhsa_user_sgpr_count 2",
      "  .amdhsa_user_sgpr_kernarg_segment_ptr 1", "  .amdhsa_system_sgpr_workgroup_id_x 1", ".end_amdhsa_kernel"]
open(OUT, "w").write("\n".join(L) + "\n")
print("wrote", OUT, len(L), "lines")
```

```python
import sys, struct
NAME = "recurrent_scan__grouped_kv_mqa__geglu_ffn__prompt"
PROF = "--prof" in sys.argv
OUT = [a for a in sys.argv[1:2] if not a.startswith("--")]
OUT = OUT[0] if OUT else f"cdna_kernels/{NAME}.s"

L = []
def e(s):
    for ln in s.split("\n"):
        if not ln.strip(): continue
        L.append(("    " + ln.strip()) if not ln.strip().endswith(":") else ln.strip())
def f2u(x): return struct.unpack("<I", struct.pack("<f", x))[0]
def vr(a, n): return f"v[{a}:{a+n-1}]"
def sr(a, n): return f"s[{a}:{a+n-1}]"

KVT = 2080
KVIMG = 0
HIMG = 135168
OIMG = HIMG + 64*88*1024
HFLG = OIMG + 64*32*1024
KFLG = HFLG + 256*128
STATG = KFLG + 16*128
CSG = STATG + 2048*16
PROFO = CSG + 64*2048
WS_BYTES = PROFO + 256*8*256
CNT_KV = 0
KVRDY = 128
STG = 45056
XOFF, GOFF, UOFF, QOFF = 0, 16384, 28672, 40960
STGK, QOFFK, NBK = 24832, 20736, 5
QIMG = 135168
STATM = 160768
CSUM = 162816
MRX = 159744
STL = 163712
KFL = 163776
LDS_BYTES = 163840
SX, SWQ, SWK, SWV, SWO, SWG, SWD, SOUT, SDBG, SWS = 4, 8, 12, 16, 20, 24, 28, 32, 36, 40
sI, sJ, sW, sW4 = 44, 45, 46, 47
sXo, sWo, sQo, sLb = 48, 49, 50, 51
sMx, sMw, sMq = 52, 53, 54
sSt, sDl, sT0, sT1, sT2, sT3 = 55, 56, 57, 58, 59, 60
sTB, sCS, sRetry, sRb = 61, 62, 63, 3
sEx = 88
sTm = 90
sPo = 92
sC0, sC1, sC2, sC3 = 94, 95, 96, 97
sOp = 98
TOUCH = int("--touch" in sys.argv)
vLane, vH, vT0, vT1, vT2, vT3 = 1, 2, 3, 4, 5, 6
vXa0, vXa1, vWa0, vWa1, vWa2, vQa = 7, 8, 9, 10, 11, 12
vRX = 13
vRW, vRQ = 17, 18
vSel = 20
vCs = 24
vF = 32
vAcc = 96
vSt = 160
aQ = [8, 12]; aK = [16, 20]; aVl = [24, 28]; aVh = [32, 36]; aS = [40, 56]; aC = [72, 88]; aO = [104, 120]
fA, fWo, fWb, fH, fX, fG = 8, 72, [136, 144], 152, 200, 204
fS, fO, fR = 136, 8, 8
vIdx, vAk, vAv, vDa, vL16, vRa = 240, 241, 242, 243, 244, 245
vPoll = 246
vRd = 248
vRw, vRr, vRr2, vDa2 = 252, 253, 254, 255
vRw2 = 238
vAq = 237
sKq, sTt, sHo, sDo, sDm, sHc, sXf, sOc, sOc2, sHs = 64, 65, 66, 67, 68, 69, 70, 71, 72, 73
sOc3, sOc4, sOp2 = 80, 81, 99
sXf2 = 64
sNo = 86
sRow, sKf = 63, 85
ASL = 8320
XB, XK, XP = 8512, 2112, 1056
XF0, XS0, XS1 = 34048, 0, 102144
def aslot(n): return ASL*n
SP = [135168, 143360, 151552]

nstamp = [0]
DBGT = "--dbgt" in sys.argv
DT = {0: 75, 12: 76, 1: 77, 2: 78, 3: 79, 6: 80, 9: 81, 7: 82, 11: 83}
PAD = (int(sys.argv[sys.argv.index("--pad")+1]), int(sys.argv[sys.argv.index("--pad")+2])) if "--pad" in sys.argv else None
npad = [0]
PADB = sNo if "--padg" in sys.argv else 100
def stamp(k):
    if PAD and PAD[0] == k:
        npad[0] += 1
        e(f"Lpad{npad[0]}:\ns_memrealtime s[{sTm}:{sTm+1}]\ns_waitcnt lgkmcnt(0)\ns_sub_u32 s{sTm}, s{sTm}, s{PADB}\ns_sleep 8\ns_cmp_lt_u32 s{sTm}, {PAD[1]}\ns_cbranch_scc1 Lpad{npad[0]}")
    if DBGT and k in DT:
        e(f"s_memrealtime s[{sTm}:{sTm+1}]\ns_waitcnt lgkmcnt(0)\ns_sub_u32 s{DT[k]}, s{sTm}, s100")
        if k == 11:
            e(f"s_memtime s[{sTm}:{sTm+1}]\ns_waitcnt lgkmcnt(0)\ns_sub_u32 s84, s{sTm}, s92")
            e(f"s_cmp_lg_u32 s2, 64\ns_cbranch_scc1 Lend\ns_cmp_lg_u32 s{sW}, 4\ns_cbranch_scc1 Lend")
            for n, r in enumerate(range(75, 85)):
                e(f"v_mov_b32 v0, s{r}\nbuffer_store_dword v0, off, {sr(SDBG,4)}, 0 offset:{4+4*n}\ns_nop 1")
    if not PROF: return
    e(f"""s_memtime s[{sTm}:{sTm+1}]
    s_waitcnt lgkmcnt(0)
    v_mov_b32 v0, s{sTm}
    buffer_store_dword v0, off, {sr(SWS,4)}, s{sPo} offset:{4*k}""")
    if k in RTS:
        e(f"""s_memrealtime s[{sTm}:{sTm+1}]
        s_waitcnt lgkmcnt(0)
        v_mov_b32 v0, s{sTm}
        buffer_store_dword v0, off, {sr(SWS,4)}, s{sPo} offset:{4*RTS[k]}""")
RTS = {12: 24, 1: 25, 5: 26, 6: 27, 11: 28}

TS = []
def tstamp(k):
    if not PROF: return
    r = 74 + len(TS); TS.append((k, r))
    e(f"s_memtime s[{sTm}:{sTm+1}]\ns_waitcnt lgkmcnt(0)\ns_mov_b32 s{r}, s{sTm}")
def tflush():
    for k, r in TS: e(f"v_mov_b32 v0, s{r}\nbuffer_store_dword v0, off, {sr(SWS,4)}, s{sPo} offset:{4*k}\ns_nop 1")
def tick(acc):
    if not PROF or "--notick" in sys.argv: return ""
    r = f"s_memtime s[{sTm}:{sTm+1}]\ns_waitcnt lgkmcnt(0)\n"
    if acc is not None: r += f"s_sub_u32 s99, s{sTm}, s99\ns_add_u32 s{acc}, s{acc}, s99\n"
    return r + f"s_mov_b32 s99, s{sTm}"

def interleave(main, fill):
    out = []; n = len(main); m = len(fill); k = 0
    for i, a in enumerate(main):
        out.append(a)
        t = (m * (i + 1)) // n
        out += fill[k:t]; k = t
    return out

def mfma(d, a, b, c=None):
    c = vr(d, 16) if c is None else c
    return f"v_mfma_f32_32x32x16_bf16 {vr(d,16)}, {vr(a,4)}, {vr(b,4)}, {c}"
def mfma16(d, a, b): return f"v_mfma_f32_16x16x32_bf16 {vr(d,4)}, {vr(a,4)}, {vr(b,4)}, {vr(d,4)}"
def smf(d, a, b, idx): return f"v_smfmac_f32_32x32x32_bf16 {vr(d,16)}, {vr(a,4)}, {vr(b,8)}, v{idx}"

TK = PROF and "--tk" in sys.argv
def tk(acc):
    if not TK: return ""
    r = f"s_memtime s[{sTm}:{sTm+1}]\ns_waitcnt lgkmcnt(0)\n"
    if acc is not None: r += f"s_sub_u32 s82, s{sTm}, s82\ns_add_u32 s{acc}, s{acc}, s82\n"
    return r + f"s_mov_b32 s82, s{sTm}"
def tkout():
    if TK: e(f"v_mov_b32 v0, s80\nbuffer_store_dword v0, off, {sr(SWS,4)}, s{sPo} offset:{4*29}\ns_nop 1\nv_mov_b32 v0, s81\nbuffer_store_dword v0, off, {sr(SWS,4)}, s{sPo} offset:{4*30}")
def tr(d, a, off): return [f"ds_read_b64_tr_b16 {vr(d,2)}, v{a} offset:{off}"]
def tag_issue(): return f"buffer_load_dwordx2 {vr(vPoll,2)}, off, {sr(SDBG,4)}, 0 sc1"
def tag_wait(tag, first_wait, early=False):
    chk = f"""s_memrealtime s[{sTm}:{sTm+1}]
    s_waitcnt lgkmcnt(0)
    s_sub_u32 s{sTm}, s{sTm}, s{sNo}
    s_add_u32 s{sTm}, s{sTm}, 200
    s_cmp_lt_u32 s{sTm}, 2000
    s_cselect_b32 s{sTm}, 99, s{sT0}
    s_cmp_lt_u32 s{sTm}, 40
    s_cbranch_scc1 Ltagr_{tag}""" if early else ""
    e(f"""s_mov_b32 s{sT0}, 0
    s_waitcnt vmcnt({first_wait})
    Ltag_{tag}:
    v_readfirstlane_b32 s{sNo}, v{vPoll}
    v_readfirstlane_b32 s{sNo+1}, v{vPoll+1}
    s_add_u32 s{sT0}, s{sT0}, 1
    {chk}
    s_cmp_lg_u32 s{sNo}, 0
    s_cbranch_scc1 Ltagd_{tag}
    s_cmp_ge_u32 s{sT0}, 100000
    s_cbranch_scc1 Ltagd_{tag}
    Ltagr_{tag}:
    s_sleep 1
    {tag_issue()}
    s_waitcnt vmcnt(0)
    s_branch Ltag_{tag}
    Ltagd_{tag}:""")
def flags_issue(base):
    return f"""v_and_b32 v{vPoll}, 15, v{vLane}
    v_lshlrev_b32 v{vPoll}, 7, v{vPoll}
    buffer_load_dwordx2 {vr(vPoll,2)}, v{vPoll}, {sr(SWS,4)}, s{base} offen sc1"""
def h_poll_issue(): return flags_issue(sHc)
def flags_wait(base, tag, first_wait):
    e(f"""s_mov_b32 s{sT0}, 0
    s_waitcnt vmcnt({first_wait})
    Lfw_{tag}:
    v_cmp_ne_u64 vcc, s[{sNo}:{sNo+1}], {vr(vPoll,2)}
    s_add_u32 s{sT0}, s{sT0}, 1
    s_cmp_ge_u32 s{sT0}, 100000
    s_cbranch_vccz Lfwd_{tag}
    s_cbranch_scc1 Lfwd_{tag}
    s_sleep 3
    {flags_issue(base)}
    s_waitcnt vmcnt(0)
    s_branch Lfw_{tag}
    Lfwd_{tag}:""")
def flag_set(off_sreg, tag, wave=0):
    e(f"""s_cmp_lg_u32 s{sW}, {wave}
    s_cbranch_scc1 Lsig_{tag}
    v_mov_b32 v{vPoll}, s{sNo}
    v_mov_b32 v{vPoll+1}, s{sNo+1}
    s_mov_b64 exec, 1
    buffer_store_dwordx2 {vr(vPoll,2)}, off, {sr(SWS,4)}, s{off_sreg} sc1
    s_mov_b64 exec, -1
    Lsig_{tag}:""")

hdr = open(f"cdna_kernels/{NAME}.s.ref").read().split("\n")
hdr = [h for h in hdr[:15] if h.startswith(";") and "@launch" not in h]
L += hdr
L.append(f"; @launch grid=(256,1,1) block=(512,1,1) lds={LDS_BYTES}")
L += """;
; One persistent launch, 256 workgroups (one per CU) x 8 waves; written with a generator script.
;  workgroup (i, j): 128-token row block i, column group j (2 heads of Q, 96 gate/up columns); j = 15 makes K/V instead.
;  P1  x @ [wq | w_gate | w_up]: waves 4-7 MFMA (16x16x32), waves 0-3 LDS-DMA; LayerNorm folded into the epilogue
;      (row mean / rstd and weight column sums are computed once and exchanged through d_ws).
;  P2  waves 0-3: attention, S^T = K Q^T - m (m = row max of the first key tile, as the MFMA C operand), exp2, and
;      P V plus the row sum by the sparse MFMA straight from the f32 registers; a run-time check of the row sum and of
;      the accumulators falls back to the true row max.  waves 4-7: GELU gate, down projection, output projection.
;  P3  out = x + s * silu(f) on a 64x64 tile per workgroup.
;  Hand-offs: write-through stores + sc1 loads; flags carry a per-launch tag published in d_debug; the attention
;  output is pre-filled with a sentinel.  Every wait is bounded.""".split("\n")
L += ['.amdgcn_target "amdgcn-amd-amdhsa--gfx950"', ".text", f".globl {NAME}_kernel", ".p2align 8",
      f".type {NAME}_kernel,@function"]
e(f"{NAME}_kernel:")
RT = PROF
if RT: e("s_memrealtime s[100:101]\ns_memtime s[98:99]")
if DBGT or PAD: e("s_memrealtime s[100:101]\ns_memtime s[92:93]")
MAP84 = f"""s_and_b32 s{sI}, s{sT0}, 1
s_lshl_b32 s{sI}, s{sI}, 3
s_and_b32 s{sT2}, s{sT1}, 7
s_add_u32 s{sI}, s{sI}, s{sT2}
s_lshr_b32 s{sJ}, s{sT0}, 1
s_lshl_b32 s{sJ}, s{sJ}, 2
s_lshr_b32 s{sT3}, s{sT1}, 3
s_add_u32 s{sJ}, s{sJ}, s{sT3}
s_sub_u32 s{sJ}, 15, s{sJ}
s_and_b32 s{sTB}, s{sT0}, 3
s_lshl_b32 s{sTB}, s{sTB}, 3
s_add_u32 s{sTB}, s{sTB}, s{sT2}
s_lshr_b32 s{sCS}, s{sT0}, 2
s_lshl_b32 s{sCS}, s{sCS}, 2
s_add_u32 s{sCS}, s{sCS}, s{sT3}"""
MAP48 = f"""s_lshr_b32 s{sT2}, s{sT0}, 1
s_lshl_b32 s{sI}, s{sT2}, 2
s_and_b32 s{sT3}, s{sT1}, 3
s_add_u32 s{sI}, s{sI}, s{sT3}
s_lshl_b32 s{sTB}, s{sT2}, 3
s_and_b32 s{sT3}, s{sT1}, 7
s_add_u32 s{sTB}, s{sTB}, s{sT3}
s_and_b32 s{sT0}, s{sT0}, 1
s_lshl_b32 s{sJ}, s{sT0}, 3
s_lshr_b32 s{sT3}, s{sT1}, 2
s_add_u32 s{sJ}, s{sJ}, s{sT3}
s_sub_u32 s{sJ}, 15, s{sJ}
s_lshl_b32 s{sCS}, s{sT0}, 2
s_lshr_b32 s{sT3}, s{sT1}, 3
s_add_u32 s{sCS}, s{sCS}, s{sT3}"""
JX = int(sys.argv[sys.argv.index("--jx")+1]) if "--jx" in sys.argv else 0
if JX: MAP84 = MAP84.replace(f"s_lshr_b32 s{sJ}, s{sT0}, 1\n", f"s_lshr_b32 s{sJ}, s{sT0}, 1\ns_xor_b32 s{sJ}, s{sJ}, {JX}\n")
M48 = "--m48" in sys.argv
MAP = MAP48 if M48 else MAP84
PFC = "" if "--nopfc" in sys.argv else f"""s_cmp_lg_u32 s{sW}, 7
s_cbranch_scc1 Lnop0
s_getpc_b64 s[94:95]
Lpc0:
s_bfe_u32 s{sT0}, s2, 0x20003
s_lshl_b32 s{sT0}, s{sT0}, 13
v_lshl_add_u32 v{vT1}, v{vLane}, 7, s{sT0}
v_min_u32 v{vT1}, Lcodeend-Lpc0-4, v{vT1}
global_load_dword v223, v{vT1}, s[94:95]"""
e(f"""s_cmp_ge_u32 s2, 256
s_cbranch_scc1 Lend
s_load_dwordx2 s[{SX}:{SX+1}], s[0:1], 0
s_load_dwordx2 s[{SWG}:{SWG+1}], s[0:1], 48
s_load_dwordx2 s[{SWQ}:{SWQ+1}], s[0:1], 8
s_load_dwordx2 s[{SWV}:{SWV+1}], s[0:1], 24
s_load_dwordx2 s[{SDBG}:{SDBG+1}], s[0:1], 80
s_load_dwordx2 s[{SWS}:{SWS+1}], s[0:1], 88
v_and_b32 v{vLane}, 63, v0
v_lshrrev_b32 v{vT0}, 6, v0
v_lshrrev_b32 v{vH}, 5, v{vLane}
v_readfirstlane_b32 s{sW}, v{vT0}
{PFC}
Lnop0:
s_and_b32 s{sT0}, s2, 7
s_lshr_b32 s{sT1}, s2, 3
{MAP}
s_and_b32 s{sW4}, s{sW}, 3
v_lshrrev_b32 v{vT0}, 3, v{vLane}
v_lshlrev_b32 v{vT0}, 10, v{vT0}
v_and_b32 v{vT1}, 7, v{vLane}
v_lshrrev_b32 v{vT2}, 4, v{vLane}
v_xor_b32 v{vT1}, v{vT1}, v{vT2}
v_lshl_add_u32 v{vXa0}, v{vT1}, 4, v{vT0}
v_xor_b32 v{vXa1}, 64, v{vXa0}
v_add_u32 v{vXa1}, {8192-1024}, v{vXa1}
v_lshlrev_b32 v{vL16}, 4, v{vLane}
s_lshl_b32 s{sXo}, s{sI}, 17
s_lshl_b32 s{sT0}, s{sW4}, 15
s_add_u32 s{sXo}, s{sXo}, s{sT0}
s_lshl_b32 s{sRow}, s{sI}, 4
s_add_u32 s{sRow}, s{sRow}, s{sJ}
s_lshl_b32 s{sRow}, s{sRow}, 2
s_add_u32 s{sRow}, s{sRow}, s{sW4}
s_cmp_eq_u32 s{sJ}, 15
s_cselect_b32 s{sT0}, 16, 56
s_load_dwordx2 s[{SWK}:{SWK+1}], s[0:1], s{sT0}
s_mov_b32 s{sT1}, {512*2752}
s_cselect_b32 s{SWK+2}, 16384, s{sT1}
s_mov_b32 s{SWK+3}, 0x20000""")
SWU = SWK
vRs = 144
for d, nbytes in ((SX, 2048*1024), (SWG, 512*2752), (SWQ, 512*1024), (SWV, 16384), (SDBG, 256), (SWS, WS_BYTES)):
    e(f"s_mov_b32 s{d+2}, {nbytes}\ns_mov_b32 s{d+3}, 0x20000")
def late_srd(lst):
    for d, off, nbytes in lst:
        e(f"s_load_dwordx2 s[{d}:{d+1}], s[0:1], {off}\ns_mov_b32 s{d+2}, {nbytes}\ns_mov_b32 s{d+3}, 0x20000")
LS_A = [(SOUT, 72, 2048*1024)]; LS_F = [(SWO, 32, 512*1024), (SWD, 64, 1376*1024)]
def entry_stamp(defer=False):
    if PROF:
        e(f"s_lshl_b32 s{sPo}, s2, 3\ns_add_u32 s{sPo}, s{sPo}, s{sW}\ns_lshl_b32 s{sPo}, s{sPo}, 8\ns_add_u32 s{sPo}, s{sPo}, {PROFO}")
    if defer: tstamp(0); return
    stamp(0); rt_out()
def rt_out():
    if RT: e(f"s_nop 1\nv_mov_b32 v0, s100\nbuffer_store_dword v0, off, {sr(SWS,4)}, s{sPo} offset:60\ns_nop 1\nv_mov_b32 v0, s98\nbuffer_store_dword v0, off, {sr(SWS,4)}, s{sPo} offset:16")
def row_loads():
    e(f"""s_lshl_b32 s{sT1}, s{sRow}, 11
    buffer_load_dwordx4 {vr(vRs,4)}, v{vL16}, {sr(SX,4)}, s{sT1} offen
    buffer_load_dwordx4 {vr(vRs+4,4)}, v{vL16}, {sr(SX,4)}, s{sT1} offen offset:1024""")
WKV = 131072
vXf, vWk = 32, 192
sXb = sMw
def kvx_dma(c):
    return [f"""s_add_u32 m0, s{sXb}, {4096*c+2048*hf}
        s_add_u32 s{sT0}, s{sXo}, {128*c+16384*hf}
        buffer_load_dwordx4 v{vXa0}, {sr(SX,4)}, s{sT0} offen lds
        buffer_load_dwordx4 v{vXa1}, {sr(SX,4)}, s{sT0} offen offset:1024 lds""" for hf in range(2)]
e(f"""s_cselect_b32 s{sT2}, 1, 0
s_cmp_lt_u32 s{sW}, 4
s_cbranch_scc1 Lnorow
s_waitcnt lgkmcnt(0)""")
row_loads()
e(f"""s_cmp_eq_u32 s{sJ}, 15
s_cbranch_scc0 Lcomp
Lnorow:
s_cmp_eq_u32 s{sJ}, 15
s_cbranch_scc0 Lhelp
s_memrealtime s[{sTm}:{sTm+1}]
s_lshl_b32 s{sXb}, s{sW}, 14
s_lshr_b32 s{sT3}, s{sW}, 2
s_lshl_b32 s{sT0}, s{sT3}, 9
s_add_u32 s{sXo}, s{sXo}, s{sT0}
s_or_b32 s{sT0}, s2, s{sW}
s_cmp_lg_u32 s{sT0}, 0
s_waitcnt lgkmcnt(0)
s_cbranch_scc1 Lnotag
s_or_b32 s{sTm}, s{sTm}, 1
v_mov_b32 v{vPoll}, s{sTm}
v_mov_b32 v{vPoll+1}, s{sTm+1}
s_mov_b64 exec, 1
buffer_store_dwordx2 {vr(vPoll,2)}, off, {sr(SDBG,4)}, 0 sc1
s_mov_b64 exec, -1
Lnotag:
s_lshl_b32 s{sT0}, s{sW}, 11
s_add_u32 m0, s{sT0}, {WKV}
s_nop 0
buffer_load_dwordx4 v{vL16}, {sr(SWV,4)}, s{sT0} offen lds
buffer_load_dwordx4 v{vL16}, {sr(SWV,4)}, s{sT0} offen offset:1024 lds
s_add_u32 m0, s{sT0}, {WKV+16384}
s_nop 0
buffer_load_dwordx4 v{vL16}, {sr(SWK,4)}, s{sT0} offen lds
buffer_load_dwordx4 v{vL16}, {sr(SWK,4)}, s{sT0} offen offset:1024 lds""")
for x in kvx_dma(0): e(x)
e("s_branch Lkvcu\nLhelp:")

def v_lane_addr(d):
    e(f"""v_and_b32 v{d}, 15, v{vLane}
    v_lshlrev_b32 v{d}, 4, v{d}
    v_lshl_add_u32 v{d}, v{vH}, 8, v{d}
    s_mov_b32 exec_lo, 0xffff0000
    s_mov_b32 exec_hi, 0xffff0000
    v_mov_b32 v{d}, 512""")
def fin_init():
    e(f"""s_lshl_b32 s{sT0}, s{sTB}, 16
    s_lshl_b32 s{sT1}, s{sCS}, 7
    s_add_u32 s{sT0}, s{sT0}, s{sT1}
    s_lshl_b32 s{sT1}, s{sW4}, 14
    s_add_u32 s{sXf}, s{sT0}, s{sT1}
    s_add_u32 s{sXf2}, s{sXf}, 8192
    v_lshrrev_b32 v{vT0}, 3, v{vLane}
    v_and_b32 v{vT1}, 7, v{vLane}
    v_lshlrev_b32 v{vRa}, 10, v{vT0}
    v_lshl_add_u32 v{vRa}, v{vT1}, 4, v{vRa}
    v_bfe_u32 v{vT1}, v{vLane}, 1, 2
    v_mul_u32_u24 v{vT1}, {XB}, v{vT1}
    v_lshl_add_u32 v{vT0}, v{vT0}, 4, v{vT1}
    v_and_b32 v{vT1}, 1, v{vLane}
    v_mul_u32_u24 v{vT1}, {XP}, v{vT1}
    s_and_b32 s{sT0}, s{sW4}, 1
    s_lshl_b32 s{sT0}, s{sT0}, 8
    v_add3_u32 v{vT0}, v{vT0}, v{vT1}, s{sT0}
    s_lshr_b32 s{sT0}, s{sW4}, 1
    s_mul_i32 s{sT1}, s{sT0}, {4*XB}
    s_add_u32 s{sT1}, s{sT1}, {XF0}
    v_add_u32 v{vRr}, s{sT1}, v{vT0}
    s_mul_i32 s{sT1}, s{sT0}, {XS1}
    v_add_u32 v{vRr2}, s{sT1}, v{vT0}""")
FS = "--asent" not in sys.argv
def a_init():
    a_sent(); a_addr()
def a_sent(store=False):
    e(f"""s_lshl_b32 s{sT0}, s{sI}, 2
    s_add_u32 s{sT0}, s{sT0}, s{sW4}
    s_lshl_b32 s{sT0}, s{sT0}, 5
    s_lshr_b32 s{sT1}, s{sJ}, 1
    s_add_u32 s{sT0}, s{sT0}, s{sT1}
    s_and_b32 s{sT1}, s{sJ}, 1
    s_lshl_b32 s{sT1}, s{sT1}, 4
    s_add_u32 s{sT0}, s{sT0}, s{sT1}
    s_lshl_b32 s{sT0}, s{sT0}, 10
    s_add_u32 s{sOp}, s{sT0}, {OIMG}
    s_add_u32 s{sOp2}, s{sOp}, 8192""")
    if not FS or store: e(f"""v_mov_b64 v[232:233], -1
    v_mov_b64 v[234:235], -1
    buffer_store_dwordx4 v[232:235], v{vL16}, {sr(SWS,4)}, s{sOp} offen sc1
    buffer_store_dwordx4 v[232:235], v{vL16}, {sr(SWS,4)}, s{sOp2} offen sc1""")
    if store: return
def a_addr(zero=True):
    v_lane_addr(vAv)
    e(f"""s_mov_b32 exec_lo, 0xffee0000
    s_mov_b32 exec_hi, 0xffee0000
    v_mov_b32 v{vAv}, 0x4000000
    s_mov_b64 exec, -1
    v_add_u32 v{vAv}, 1024, v{vAv}
    v_mov_b32 v{vAk}, v{vL16}
    v_mov_b32 v{vIdx}, 0xdddd
    s_lshl_b32 s{sT0}, s{sW4}, 11
    s_add_u32 s{sT0}, s{sT0}, {QIMG}
    v_add_u32 v{vAq}, s{sT0}, v{vL16}""")
    if zero: a_zero()
def a_zero():
    for b in range(2):
        for r in range(0, 12, 2): e(f"v_mov_b64 {vr(aO[b]+r,2)}, 0")
def f_init():
    e(f"""v_lshrrev_b32 v{vT0}, 3, v{vLane}
    v_lshlrev_b32 v{vT0}, 10, v{vT0}
    v_and_b32 v{vT1}, 7, v{vLane}
    v_bfe_u32 v{vT2}, v{vLane}, 4, 1
    v_lshlrev_b32 v{vT2}, 2, v{vT2}
    v_xor_b32 v{vT1}, v{vT1}, v{vT2}
    v_lshl_add_u32 v{vDa}, v{vT1}, 4, v{vT0}
    v_add_u32 v{vDa2}, {8192-1024}, v{vDa}
    s_lshl_b32 s{sDo}, s{sW4}, 14
    s_lshl_b32 s{sT1}, s{sCS}, 7
    s_add_u32 s{sDo}, s{sDo}, s{sT1}
    s_lshl_b32 s{sDm}, s{sW4}, 11
    s_mul_i32 s{sHo}, s{sTB}, 176
    s_mul_i32 s{sT0}, s{sW4}, 22
    s_add_u32 s{sHo}, s{sHo}, s{sT0}
    s_lshl_b32 s{sHo}, s{sHo}, 10
    s_add_u32 s{sHo}, s{sHo}, {HIMG}
    s_lshl_b32 s{sT0}, s{sTB}, 3
    s_add_u32 s{sT0}, s{sT0}, s{sW4}
    s_lshl_b32 s{sT0}, s{sT0}, 13
    s_add_u32 s{sOc}, s{sT0}, {OIMG}
    s_add_u32 s{sOc2}, s{sOc}, 4096
    s_add_u32 s{sOc3}, s{sOc}, 32768
    s_add_u32 s{sOc4}, s{sOc}, {32768+4096}
    s_lshr_b32 s{sHc}, s{sTB}, 1
    s_lshl_b32 s{sHc}, s{sHc}, 11
    s_add_u32 s{sHc}, s{sHc}, {HFLG}
    s_lshl_b32 s{sHs}, s{sI}, 4
    s_add_u32 s{sHs}, s{sHs}, s{sJ}
    s_lshl_b32 s{sHs}, s{sHs}, 7
    s_add_u32 s{sHs}, s{sHs}, {HFLG}
    v_bfe_u32 v{vT0}, v{vLane}, 2, 2
    v_lshl_add_u32 v{vT0}, v{vH}, 2, v{vT0}
    v_lshlrev_b32 v{vT0}, 7, v{vT0}
    v_bfe_u32 v{vT1}, v{vLane}, 4, 1
    v_lshl_add_u32 v{vT0}, v{vT1}, 5, v{vT0}
    v_and_b32 v{vT1}, 3, v{vLane}
    v_lshl_add_u32 v{vT0}, v{vT1}, 3, v{vT0}
    v_bfe_u32 v{vT1}, v{vLane}, 3, 1
    v_lshl_add_u32 v{vT0}, v{vT1}, 6, v{vT0}
    v_add_u32 v{vRd}, s{sDm}, v{vT0}
    v_xor_b32 v{vRd+1}, 64, v{vRd}
    v_add_u32 v{vRd+2}, {SP[0]}, v{vRd}
    v_add_u32 v{vRd+3}, {SP[0]}, v{vRd+1}
    s_mul_i32 s{sT0}, s{sW4}, {XK}
    v_add_u32 v{vRw2}, s{sT0}, v{vL16}
    v_add_u32 v{vRw}, {XF0}, v{vRw2}
    v_add_u32 v{vRw2+1}, {XS1}, v{vRw2}""")
def kv_rest(tag):
    e(f"s_setprio 0\ns_lshl_b32 s{sT1}, s{sW4}, 12")
    for n in range(6):
        e(f"s_add_u32 s{sT0}, s{sT1}, {36*1024+16384*n}\ns_mov_b32 m0, s{sT0}\ns_nop 0")
        for k in range(4): e(f"buffer_load_dwordx4 v{vL16}, {sr(SWS,4)}, s{sT0} offen offset:{1024*k} sc1 lds")
    e(tag_issue())
    e("s_setprio 2")

def spread(m, fill):
    w = [16 if "16x16" in x else 32 for x in m]
    tot = sum(c for c, _ in fill); W = sum(w)
    out = []; k = 0; acc = 0; cw = 0
    for x, wx in zip(m, w):
        out.append(x); cw += wx
        while k < len(fill) and (acc + fill[k][0]/2) * W <= tot * cw:
            out.append(fill[k][1]); acc += fill[k][0]; k += 1
    out += [t for _, t in fill[k:]]
    return out


C1 = -2*0.7978845608028654*1.4426950408889634
C3 = C1*0.044715
def gelu_consts(m, r, d):
    e(f"""v_sub_f32 v{d}, 0, v{m}
    v_mul_f32 v{d+3}, v{r}, v{r}
    v_mul_f32 v{d+1}, {f2u(C1):#x}, v{r}
    v_mul_f32 v{d+2}, {f2u(C3):#x}, v{r}
    v_mul_f32 v{d+2}, v{d+2}, v{d+3}
    v_rcp_f32 v{d+3}, v{d+3}""")
def bc(reg, pos, n):
    base = reg & ~1
    return vr(base, 2), reg & 1
def pk(op, d, srcs, neg=None):
    ops = []; lo = []; hi = []
    for t, r in srcs:
        if t == 'p': ops.append(vr(r, 2)); lo.append(0); hi.append(1)
        else: ops.append(vr(r & ~1, 2)); lo.append(r & 1); hi.append(r & 1)
    return f"{op} {vr(d,2)}, {', '.join(ops)} op_sel:[{','.join(map(str,lo))}] op_sel_hi:[{','.join(map(str,hi))}]"
def gelu_tile(g, u, csg, csu, k, tmp, n=16, dst=None):
    for p in range(0, n, 2):
        e(pk("v_pk_fma_f32", g+p, [('b', k), ('p', csg+p), ('p', g+p)]))
        e(pk("v_pk_fma_f32", u+p, [('b', k), ('p', csu+p), ('p', u+p)]))
    for p in range(0, n, 2):
        e(pk("v_pk_mul_f32", tmp+p, [('p', g+p), ('p', g+p)]))
    for p in range(0, n, 2):
        e(pk("v_pk_fma_f32", tmp+p, [('p', tmp+p), ('b', k+2), ('b', k+1)]))
    for p in range(0, n, 2):
        e(pk("v_pk_mul_f32", tmp+p, [('p', tmp+p), ('p', g+p)]))
    for p in range(n): e(f"v_exp_f32 v{tmp+p}, v{tmp+p}")
    for p in range(0, n, 2):
        e(pk("v_pk_mul_f32", u+p, [('p', u+p), ('p', g+p)]))
    for p in range(0, n, 2):
        e(pk("v_pk_fma_f32", tmp+p, [('p', tmp+p), ('b', k+3), ('b', k+3)]))
    for p in range(n): e(f"v_rcp_f32 v{tmp+p}, v{tmp+p}")
    e("s_nop 0")
    for p in range(0, n, 2):
        e(pk("v_pk_mul_f32", u+p, [('p', u+p), ('p', tmp+p)]))
    for p in range(n//2): e(f"v_cvt_pk_bf16_f32 v{dst[p] if dst else g+p}, v{u+2*p}, v{u+2*p+1}")

def cs_read(d, slot_off):
    for q in range(4): e(f"ds_read_b128 {vr(d+4*q,4)}, v{vT3} offset:{slot_off+32*q}")

def lin_fold(acc, cs, negm, scale, n=16):
    for p in range(0, n, 2):
        e(pk("v_pk_fma_f32", acc+p, [('b', negm), ('p', cs+p), ('p', acc+p)]))
    for p in range(0, n, 2):
        e(pk("v_pk_mul_f32", acc+p, [('p', acc+p), ('b', scale)]))

def q_epilogue(cs):
    e(f"v_mul_f32 v{vSt+2}, {f2u(0.25*1.4426950408889634):#x}, v{vSt+1}")
    lin_fold(vAcc, cs, vSt+4, vSt+2)
    for p in range(8): e(f"v_cvt_pk_bf16_f32 v{vAcc+p}, v{vAcc+2*p}, v{vAcc+2*p+1}")
    e(f"""s_lshl_b32 s{sT0}, s{sW4}, 11
    s_add_u32 s{sT0}, s{sT0}, {QIMG}
    v_lshl_add_u32 v{vT0}, v{vLane}, 4, s{sT0}
    ds_write_b128 v{vT0}, {vr(vAcc,4)}
    ds_write_b128 v{vT0}, {vr(vAcc+4,4)} offset:1024""")


def rowstat_finish():
    a = vRs+8
    e(f"v_mov_b32 v{vT0}, 0x3f803f80")
    for k in range(4):
        for r in range(2):
            x = vRs+4*r+k
            c0 = "0" if k == 0 else f"v{a+2*r}"; c1 = "0" if k == 0 else f"v{a+2*r+1}"
            e(f"v_dot2_f32_bf16 v{a+2*r}, v{x}, v{vT0}, {c0}\nv_dot2_f32_bf16 v{a+2*r+1}, v{x}, v{x}, {c1}")
    e("s_nop 2")
    for ctl in ("row_shr:1", "row_shr:2", "row_shr:4", "row_shr:8"):
        for k in range(4): e(f"v_add_f32_dpp v{a+k}, v{a+k}, v{a+k} {ctl} row_mask:0xf bank_mask:0xf bound_ctrl:0")
    for ctl in ("row_bcast:15 row_mask:0xa", "row_bcast:31 row_mask:0xc"):
        for k in range(4): e(f"v_add_f32_dpp v{a+k}, v{a+k}, v{a+k} {ctl} bank_mask:0xf")
    for r in range(2):
        d = vRs+4*r
        e(f"""v_mul_f32 v{d}, {f2u(1/512):#x}, v{a+2*r}
        v_mul_f32 v{d+1}, {f2u(1/512):#x}, v{a+2*r+1}
        v_fma_f32 v{d+1}, -v{d}, v{d}, v{d+1}
        v_max_f32 v{d+1}, 0, v{d+1}
        v_add_f32 v{d+1}, {f2u(1e-5):#x}, v{d+1}
        v_rsq_f32 v{d+1}, v{d+1}""")
def rowstat_post():
    e(f"""s_lshl_b32 s{sT0}, s{sW4}, 4
    s_add_u32 s{sT0}, s{sT0}, {STL}
    v_mov_b32 v{vT0}, s{sT0}
    s_mov_b32 exec_lo, 0
    s_brev_b32 exec_hi, 1
    ds_write_b64 v{vT0}, {vr(vRs,2)}
    ds_write_b64 v{vT0}, {vr(vRs+4,2)} offset:8
    s_mov_b64 exec, -1""")
def rowstat_store():
    for r in range(2): e(f"v_mov_b32 v{vRs+4*r+2}, s{sNo}\nv_mov_b32 v{vRs+4*r+3}, s{sNo+1}")
    e(f"""s_lshl_b32 s{sT0}, s{sRow}, 5
    s_add_u32 s{sT0}, s{sT0}, {STATG}
    s_mov_b32 exec_lo, 0
    s_brev_b32 exec_hi, 1
    buffer_store_dwordx4 {vr(vRs,4)}, off, {sr(SWS,4)}, s{sT0} sc1
    buffer_store_dwordx4 {vr(vRs+4,4)}, off, {sr(SWS,4)}, s{sT0} offset:16 sc1
    s_mov_b64 exec, -1""")
def kv_dma(tag):
    e(f"s_mul_i32 s{sT1}, s{sW4}, 3072")
    for n in range(3):
        e(f"s_add_u32 s{sT0}, s{sT1}, {12288*n}\ns_mov_b32 m0, s{sT0}\ns_nop 0")
        for k in range(3): e(f"buffer_load_dwordx4 v{vL16}, {sr(SWS,4)}, s{sT0} offen offset:{1024*k} sc1 lds")
def tr_lane(rowmul, d):
    e(f"""v_lshrrev_b32 v{vT0}, 4, v{vLane}
    v_bfe_u32 v{vT1}, v{vLane}, 2, 2
    v_lshl_add_u32 v{vT0}, v{vT0}, 3, v{vT1}
    v_mul_u32_u24 v{vT0}, {rowmul}, v{vT0}
    v_bfe_u32 v{vT1}, v{vLane}, 4, 1
    v_lshl_add_u32 v{vT0}, v{vT1}, 5, v{vT0}
    v_and_b32 v{vT1}, 3, v{vLane}
    v_lshl_add_u32 v{d}, v{vT1}, 3, v{vT0}""")
def ones_col0(d):
    e(f"""v_and_b32 v{vT0}, 15, v{vLane}
    v_cmp_eq_u32 vcc, 0, v{vT0}
    v_mov_b32 v{vT1}, 0x3f803f80
    s_nop 0
    v_cndmask_b32 v{d}, 0, v{vT1}, vcc""")
    for k in range(1, 4): e(f"v_mov_b32 v{d+k}, v{d}")
def rot_delta():
    return f"s_add_u32 s{sRb}, s{sRb}, 1\ns_cmp_eq_u32 s{sRb}, 3\ns_cselect_b32 s{sDl}, s{sC3}, {STG}\ns_cselect_b32 s{sRb}, 0, s{sRb}"
def cs16_write(accs, slot0_sreg, stride):
    e(f"v_add_u32 v{vT0}, s{slot0_sreg}, v{vLane}\ns_mov_b32 exec_lo, 0x00010001\ns_mov_b32 exec_hi, 0x00010001")
    for n, a in enumerate(accs): e(f"ds_write_b128 v{vT0}, {vr(a,4)} offset:{stride*n}")
    e("s_mov_b64 exec, -1")

ROT = int(sys.argv[sys.argv.index("--rot")+1]) if "--rot" in sys.argv else 7
sKs = 84
sM1, sM2, sPub, sCg = 66, 67, 68, 69
C0 = "--c0" in sys.argv
NR = 7 if C0 else 8
def dma_x():
    return [f"s_add_u32 m0, s{sLb}, s{sMx}", f"s_add_u32 s{sT0}, s{sXo}, 16384",
            f"buffer_load_dwordx4 v{vXa0}, {sr(SX,4)}, s{sXo} offen lds",
            f"buffer_load_dwordx4 v{vXa1}, {sr(SX,4)}, s{sXo} offen offset:1024 lds",
            "s_add_u32 m0, m0, 2048", f"s_add_u32 s{sXo}, s{sXo}, 128",
            f"buffer_load_dwordx4 v{vXa0}, {sr(SX,4)}, s{sT0} offen lds",
            f"buffer_load_dwordx4 v{vXa1}, {sr(SX,4)}, s{sT0} offen offset:1024 lds"]
def dma_w():
    r = []
    for k, sd in enumerate((SWG, SWU)):
        r += [f"s_add_u32 m0, s{sLb}, s{sMw}" if k == 0 else f"s_add_u32 m0, m0, {UOFF-GOFF}", "s_nop 0",
              f"buffer_load_dwordx4 v{vWa0}, {sr(sd,4)}, s{sWo} offen lds",
              f"buffer_load_dwordx4 v{vWa1}, {sr(sd,4)}, s{sWo} offen offset:1024 lds",
              f"buffer_load_dwordx4 v{vWa2}, {sr(sd,4)}, s{sWo} offen offset:2048 lds"]
    r += [f"s_add_u32 m0, s{sLb}, s{sMq}", f"s_add_u32 s{sWo}, s{sWo}, {64*2752}",
          f"buffer_load_dwordx4 v{vQa}, {sr(SWQ,4)}, s{sQo} offen lds", f"s_add_u32 s{sQo}, s{sQo}, 65536",
          f"s_add_u32 s{sLb}, s{sLb}, {STG}", f"s_cmp_ge_u32 s{sLb}, {3*STG}", f"s_cselect_b32 s{sLb}, 0, s{sLb}"]
    if ROT:
        r += [f"s_add_u32 s{sKs}, s{sKs}, 1", f"s_cmp_eq_u32 s{sKs}, 8",
              f"s_cselect_b32 s{sT0}, {128*NR}, 0", f"s_cselect_b32 s{sT1}, {64*NR*2752}, 0", f"s_cselect_b32 s{sT2}, {64*NR*1024}, 0",
              f"s_sub_u32 s{sXo}, s{sXo}, s{sT0}", f"s_sub_u32 s{sWo}, s{sWo}, s{sT1}", f"s_sub_u32 s{sQo}, s{sQo}, s{sT2}"]
    return r
e(f"s_mov_b32 s{sLb}, 0\ns_lshl_b32 s{sMx}, s{sW4}, 12")
if ROT and "--rm" in sys.argv: e(f"s_lshl_b32 s{sKs}, s{sI if M48 else sJ}, 1\ns_add_u32 s{sKs}, s{sKs}, s{sJ if M48 else sI}\ns_and_b32 s{sKs}, s{sKs}, {ROT}")
RM = sys.argv[sys.argv.index("--rm")+1] if "--rm" in sys.argv else "a"
if RM == "a":
    e(f"""s_xor_b32 s{sKs}, s{sI}, s{sJ}
    s_and_b32 s{sKs}, s{sKs}, 1
    s_lshl_b32 s{sKs}, s{sKs}, 2
    s_lshr_b32 s{sT0}, s{sI}, 1
    s_xor_b32 s{sT0}, s{sT0}, s{sJ}
    s_lshr_b32 s{sT0}, s{sT0}, 1
    s_and_b32 s{sT0}, s{sT0}, 2
    s_or_b32 s{sKs}, s{sKs}, s{sT0}""")
if RM == "b":
    e(f"""s_add_u32 s{sKs}, s{sI}, s{sJ}
    s_and_b32 s{sKs}, s{sKs}, 3
    s_lshl_b32 s{sKs}, s{sKs}, 1
    s_lshr_b32 s{sT0}, s{sI}, 1
    s_xor_b32 s{sT0}, s{sT0}, s{sJ}
    s_bfe_u32 s{sT0}, s{sT0}, 0x10002
    s_or_b32 s{sKs}, s{sKs}, s{sT0}""")
if RM == "c":
    e(f"""s_lshr_b32 s{sKs}, s{sI}, 3
    s_lshl_b32 s{sKs}, s{sKs}, 2
    s_lshr_b32 s{sT0}, s{sJ}, 2
    s_lshl_b32 s{sT0}, s{sT0}, 1
    s_add_u32 s{sKs}, s{sKs}, s{sT0}
    s_and_b32 s{sKs}, s{sKs}, 7""")
if ROT and C0: e(f"s_cmp_eq_u32 s{sKs}, 7\ns_cselect_b32 s{sKs}, 3, s{sKs}")
def rot_x(): e(f"s_lshl_b32 s{sT0}, s{sKs}, 7\ns_add_u32 s{sXo}, s{sXo}, s{sT0}")
def rot_w(): e(f"s_mul_i32 s{sT0}, s{sKs}, {64*2752}\ns_add_u32 s{sWo}, s{sWo}, s{sT0}\ns_lshl_b32 s{sT0}, s{sKs}, 16\ns_add_u32 s{sQo}, s{sQo}, s{sT0}")
if ROT and not C0: rot_x()
e(f"s_lshl_b32 s{sCg}, s{sJ}, 13\ns_add_u32 s{sCg}, s{sCg}, {CSG}\ns_lshl_b32 s{sC1}, s{sKs}, 10\ns_add_u32 s{sC1}, s{sC1}, s{sCg}")
LZ = "--nolz" not in sys.argv
if LZ: e(f"s_cmp_eq_u32 s{sJ}, 14\ns_cselect_b32 s{sT3}, 8, 0\nv_mov_b32 v{vT3}, 0x40000000")
for k, r in enumerate((vWa0, vWa1, vWa2)):
    e(f"""v_add_u32 v{vT0}, {64*k}, v{vLane}
    v_mul_u32_u24 v{vT1}, 43691, v{vT0}
    v_lshrrev_b32 v{vT1}, 19, v{vT1}
    v_mul_u32_u24 v{vT2}, 12, v{vT1}
    v_sub_u32 v{vT0}, v{vT0}, v{vT2}
    v_lshrrev_b32 v{vT2}, 2, v{vT1}
    v_and_b32 v{vT2}, 2, v{vT2}
    v_xor_b32 v{vT0}, v{vT0}, v{vT2}
    v_mul_u32_u24 v{vT1}, 2752, v{vT1}
    v_lshl_add_u32 v{r}, v{vT0}, 4, v{vT1}""")
    if LZ: e(f"v_cmp_gt_u32 vcc, s{sT3}, v{vT0}")
    if k: e(f"v_subrev_u32 v{r}, {1024*k}, v{r}")
    if LZ: e(f"s_nop 1\nv_cndmask_b32 v{r}, v{r}, v{vT3}, vcc")
e(f"""v_lshrrev_b32 v{vT0}, 2, v{vLane}
v_lshlrev_b32 v{vT0}, 10, v{vT0}
v_and_b32 v{vT1}, 3, v{vLane}
v_lshlrev_b32 v{vT2}, 1, v{vH}
v_xor_b32 v{vT1}, v{vT1}, v{vT2}
v_lshl_add_u32 v{vQa}, v{vT1}, 4, v{vT0}
s_mul_i32 s{sT0}, s{sJ}, 96
s_min_u32 s{sT0}, s{sT0}, 1280
s_lshl_b32 s{sT0}, s{sT0}, 1
s_mul_i32 s{sWo}, s{sW4}, {16*2752}
s_add_u32 s{sWo}, s{sWo}, s{sT0}
s_lshl_b32 s{sQo}, s{sW4}, 14
s_lshl_b32 s{sT0}, s{sJ}, 6
s_add_u32 s{sQo}, s{sQo}, s{sT0}
s_mul_i32 s{sMw}, s{sW4}, 3072
s_add_u32 s{sMw}, s{sMw}, {GOFF}
s_lshl_b32 s{sMq}, s{sW4}, 10
s_add_u32 s{sMq}, s{sMq}, {QOFF}""")
if ROT and not C0: rot_w()
if JX:
    e(f"""s_memrealtime s[{sTm}:{sTm+1}]
    s_or_b32 s{sT0}, s2, s{sW}
    s_cmp_lg_u32 s{sT0}, 0
    s_waitcnt lgkmcnt(0)
    s_cbranch_scc1 Lnotag2
    s_or_b32 s{sTm}, s{sTm}, 1
    v_mov_b32 v{vPoll}, s{sTm}
    v_mov_b32 v{vPoll+1}, s{sTm+1}
    s_mov_b64 exec, 1
    buffer_store_dwordx2 {vr(vPoll,2)}, off, {sr(SDBG,4)}, 0 sc1
    s_mov_b64 exec, -1
    Lnotag2:""")
else: e("s_waitcnt lgkmcnt(0)")
entry_stamp()
for x in dma_x(): e(x)
w0 = dma_w()
if ROT and C0:
    k = w0.index(f"s_add_u32 s{sKs}, s{sKs}, 1")
    for x in w0[:k]: e(x)
    rot_x(); rot_w(); e(w0[k])
else:
    for x in w0: e(x)
for x in dma_x() + dma_w(): e(x)
TG = "--oldtag" not in sys.argv
if TG:
    e(f"""s_and_b32 s{sT0}, s{sI}, 6
    s_or_b32 s{sT0}, s{sT0}, s{sW}
    s_cmp_eq_u32 s{sT0}, 0
    s_cselect_b32 s{sM2}, 0x30, 0
    s_cselect_b32 s{sPub}, 3, 99
    s_cmp_eq_u32 s{sW}, 0
    s_cselect_b32 s{sM1}, 6, 0
    s_cbranch_scc0 Lnt0""")
    e(tag_issue())
    e("Lnt0:")
else: e(tag_issue())
late_srd(LS_A)
hF = 30
e(f"""s_lshl_b32 s{sT0}, s{sW4}, 2
s_add_u32 s{sT0}, s{sT0}, {KFL}
v_mov_b32 v{hF}, s{sT0}
v_mov_b32 v{hF+1}, 0
v_mov_b32 v{vT0}, {KFL}
ds_write_b32 v{hF}, v{hF+1}
ds_write_b32 v{vT0}, v{hF+1} offset:16""")
hW = 32
e(f"s_mov_b32 s{sSt}, 0\ns_mov_b32 s{sRb}, 0\ns_mov_b32 s{sC3}, {(-2*STG) & 0xffffffff}")
if "--hp3" in sys.argv: e("s_setprio 3")
tstamp(21)
if TG: e(f"s_waitcnt vmcnt(12) lgkmcnt(0)\ns_cmp_eq_u32 s{sW}, 0\ns_cbranch_scc1 Lnt1\ns_waitcnt vmcnt(11)\nLnt1:")
else: e("s_waitcnt vmcnt(12) lgkmcnt(0)")
tstamp(23); e("s_barrier")
stamp(12); tflush(); TS.clear()
W11 = f"""s_waitcnt vmcnt(13)
s_bitcmp1_b32 s{sM2}, s{sSt}
s_cbranch_scc1 Lw12
s_waitcnt vmcnt(12)
s_bitcmp1_b32 s{sM1}, s{sSt}
s_cbranch_scc1 Lw12
s_waitcnt vmcnt(11)
Lw12:"""
def helper_loop(cs):
    t = "c" if cs else "n"
    e(f"Lhl{t}:")
    if cs:
        rd, m = cs_parts()
        for x in rd: e(x)
        e(rot_delta())
        for x in dma_x(): e(x)
        e(f"v_add_u32 v{hA}, s{sDl}, v{hA}\nv_add_u32 v{hA+1}, s{sDl}, v{hA+1}\ns_waitcnt lgkmcnt(0)")
        w = dma_w(); k = 0
        for x in w:
            e(x)
            if "buffer_load" in x: e(m[k]); k += 1
        for x in m[k:]: e(x)
    else:
        for x in dma_x() + dma_w():
            if "--nodma" in sys.argv and "buffer_load" in x: continue
            e(x)
            if "--pace" in sys.argv and "buffer_load" in x: e("s_sleep 1")
        e(f"s_or_b32 s{sT0}, s{sSt}, s{sW}\ns_cmp_lg_u32 s{sT0}, 0\ns_cbranch_scc1 Lnpub")
        e(f"v_lshlrev_b32 v{vT0}, 3, v{vLane}\nv_add_u32 v{vT0}, {STL}, v{vT0}\nds_read_b64 {vr(hW,2)}, v{vT0}")
        tag_wait("p", 11, True)
        e(f"""v_mov_b32 v{hW+2}, s{sNo}
        v_mov_b32 v{hW+3}, s{sNo+1}
        s_lshl_b32 s{sT0}, s{sRow}, 5
        s_add_u32 s{sT0}, s{sT0}, {STATG}
        s_mov_b64 exec, 0xff
        s_waitcnt lgkmcnt(0)
        buffer_store_dwordx4 {vr(hW,4)}, v{vL16}, {sr(SWS,4)}, s{sT0} offen sc1
        s_mov_b64 exec, -1
        Lnpub:
        s_cmp_lg_u32 s{sSt}, s{sPub}
        s_cbranch_scc1 Lnpc
        v_lshlrev_b32 v{vT0}, 3, v{vLane}
        v_add_u32 v{vT0}, {CSUM}, v{vT0}
        ds_read_b64 {vr(hW,2)}, v{vT0}
        ds_read_b64 {vr(hW+4,2)}, v{vT0} offset:512
        v_mov_b32 v{hW+2}, s{sNo}
        v_mov_b32 v{hW+3}, s{sNo+1}
        v_mov_b32 v{hW+6}, s{sNo}
        v_mov_b32 v{hW+7}, s{sNo+1}
        s_waitcnt lgkmcnt(0)
        buffer_store_dwordx4 {vr(hW,4)}, v{vL16}, {sr(SWS,4)}, s{sC1} offen sc1
        buffer_store_dwordx4 {vr(hW+4,4)}, v{vL16}, {sr(SWS,4)}, s{sC1} offen offset:1024 sc1
        Lnpc:""")
        if not FS:
            e(f"s_cmp_lg_u32 s{sSt}, 2\ns_cbranch_scc1 Lnini")
            a_sent()
            e("Lnini:")
    e(f"""s_add_u32 s{sSt}, s{sSt}, 1
    {W11}
    s_barrier
    {tk(81)}
    s_cmp_lt_u32 s{sSt}, 6
    s_cbranch_scc1 Lhl{t}""")
helper_loop(False)
tkout()
def st_loads():
    return f"""buffer_load_dwordx4 {vr(hW,4)}, v{vL16}, {sr(SWS,4)}, s{sC0} offen sc1
    buffer_load_dwordx4 {vr(hW+4,4)}, v{vL16}, {sr(SWS,4)}, s{sC0} offen offset:1024 sc1"""
e(f"s_lshl_b32 s{sC0}, s{sI}, 11\ns_add_u32 s{sC0}, s{sC0}, {STATG}\ns_mov_b32 s{sKf}, {KFLG}\nv_mov_b32 v{hF+1}, 1")
if TG: e(tag_issue())
e(f"s_cmp_lg_u32 s{sW}, 1\ns_cbranch_scc1 Lhn0\n{st_loads()}\nLhn0:")
if FS: a_sent()
a_addr(); fin_init()
tag_wait("h", 0)
e(f"""s_cmp_lg_u32 s{sW}, 1
s_cbranch_scc1 Lhns
s_mov_b32 s{sT0}, 0
s_branch Lhs1
Lhs:
{st_loads()}
s_waitcnt vmcnt(0)
Lhs1:
s_add_u32 s{sT0}, s{sT0}, 1
v_cmp_ne_u64 vcc, s[{sNo}:{sNo+1}], {vr(hW+2,2)}
v_cmp_ne_u64 s[{sEx}:{sEx+1}], s[{sNo}:{sNo+1}], {vr(hW+6,2)}
s_or_b64 vcc, vcc, s[{sEx}:{sEx+1}]
s_cmp_ge_u32 s{sT0}, 100000
s_cbranch_scc1 Lhns
s_cbranch_vccnz Lhs
Lhns:""")
LATEP = "--latep" in sys.argv
def cs_loads():
    return "\n".join(f"buffer_load_dwordx4 {vr(hW+4*c,4)}, v{vL16}, {sr(SWS,4)}, s{sCg if c < 2 else sC1} offen offset:{2048*(c & 1)} sc1" for c in range(4))
e(f"""s_cmp_lt_u32 s{sW}, 2
s_cbranch_scc1 Lhc0
s_and_b32 s{sT0}, s{sW}, 1
s_lshl_b32 s{sT0}, s{sT0}, 10
s_add_u32 s{sCg}, s{sCg}, s{sT0}
s_add_u32 s{sC1}, s{sCg}, 4096
{cs_loads()}
Lhc0:""")
if not LATEP: e(flags_issue(sKf))
e(f"s_mov_b32 s{sSt}, 1\ns_barrier")
if LATEP: e(flags_issue(sKf))
def kv_try(tag):
    e(f"""s_cmp_eq_u32 s{sSt}, 0
    s_cbranch_scc1 Lkt2_{tag}
    s_waitcnt vmcnt(0)
    v_cmp_ne_u64 vcc, s[{sNo}:{sNo+1}], {vr(vPoll,2)}
    s_cbranch_vccnz Lkt1_{tag}""")
    kv_dma(tag)
    e(f"v_mov_b32 v{vT0}, {KFL}\nds_write_b32 v{vT0}, v{hF+1} offset:16\ns_mov_b32 s{sSt}, 0\ns_branch Lkt2_{tag}\nLkt1_{tag}:")
    e(flags_issue(sKf))
    e(f"Lkt2_{tag}:")
e(f"s_cmp_lg_u32 s{sW}, 1\ns_cbranch_scc1 Lhnc")
gelu_consts(hW, hW+1, hW+8); gelu_consts(hW+4, hW+5, hW+12)
e(f"""v_add_u32 v{vT0}, {STATM}, v{vL16}
ds_write_b128 v{vT0}, {vr(hW+8,4)}
ds_write_b128 v{vT0}, {vr(hW+12,4)} offset:1024
Lhnc:""")
kv_try("a")
e(f"""s_cmp_lt_u32 s{sW}, 2
s_cbranch_scc1 Lhc3
s_mov_b32 s{sT0}, 0
s_branch Lhc2
Lhc1:
s_sleep 2
{cs_loads()}
s_waitcnt vmcnt(0)
Lhc2:
s_add_u32 s{sT0}, s{sT0}, 1
v_cmp_ne_u64 vcc, s[{sNo}:{sNo+1}], {vr(hW+2,2)}
v_cmp_ne_u64 s[{sEx}:{sEx+1}], s[{sNo}:{sNo+1}], {vr(hW+6,2)}
s_or_b64 vcc, vcc, s[{sEx}:{sEx+1}]
v_cmp_ne_u64 s[{sEx}:{sEx+1}], s[{sNo}:{sNo+1}], {vr(hW+10,2)}
s_or_b64 vcc, vcc, s[{sEx}:{sEx+1}]
v_cmp_ne_u64 s[{sEx}:{sEx+1}], s[{sNo}:{sNo+1}], {vr(hW+14,2)}
s_or_b64 vcc, vcc, s[{sEx}:{sEx+1}]
s_cmp_ge_u32 s{sT0}, 100000
s_cbranch_scc1 Lhc4
s_cbranch_vccnz Lhc1
Lhc4:
v_add_f32 v{hW}, v{hW}, v{hW+4}
v_add_f32 v{hW+1}, v{hW+1}, v{hW+5}
v_add_f32 v{hW+8}, v{hW+8}, v{hW+12}
v_add_f32 v{hW+9}, v{hW+9}, v{hW+13}
s_and_b32 s{sT0}, s{sW}, 1
s_lshl_b32 s{sT0}, s{sT0}, 9
s_add_u32 s{sT0}, s{sT0}, {CSUM}
v_lshl_add_u32 v{vT0}, v{vLane}, 3, s{sT0}
v_add_f32 v{hW}, v{hW}, v{hW+8}
v_add_f32 v{hW+1}, v{hW+1}, v{hW+9}
v_cmp_gt_u32 vcc, {CSUM+896}, v{vT0}
s_and_saveexec_b64 s[{sEx}:{sEx+1}], vcc
ds_write_b64 v{vT0}, {vr(hW,2)}
s_mov_b64 exec, -1
Lhc3:""")
e("s_waitcnt lgkmcnt(0)\ns_barrier")
if not LATEP: kv_try("b")
stamp(1)
e("s_waitcnt lgkmcnt(0)\ns_barrier\ns_branch Lp2")

cX = [8, 24]; cW = 40; cRX, cRW, cRQ = 68, 70, 72; cCs = 76; cO = 92; cA = 96
e("Lcomp:")
entry_stamp(True)
late_srd(LS_F)
e(f"""v_and_b32 v{vT0}, 15, v{vLane}
v_lshrrev_b32 v{vT1}, 1, v{vT0}
v_lshrrev_b32 v{vT2}, 4, v{vLane}
v_xor_b32 v{vT1}, v{vT1}, v{vT2}
v_lshlrev_b32 v{vT0}, 7, v{vT0}
s_and_b32 s{sT0}, s{sW}, 1
s_lshl_b32 s{sT0}, s{sT0}, 13
v_add_u32 v{vT0}, s{sT0}, v{vT0}
v_lshl_add_u32 v{cRX}, v{vT1}, 4, v{vT0}
v_xor_b32 v{cRX+1}, 64, v{cRX}""")
tr_lane(192, cRW)
e(f"""s_lshl_b32 s{sT1}, s{sW}, 4
s_and_b32 s{sT1}, s{sT1}, 32
v_xor_b32 v{cRW}, s{sT1}, v{cRW}
v_xor_b32 v{cRW+1}, 32, v{cRW}
s_lshl_b32 s{sT2}, s{sT1}, 1
v_add_u32 v{cRW}, s{sT2}, v{cRW}
s_lshl_b32 s{sT2}, s{sT1}, 2
v_add_u32 v{cRW+1}, s{sT2}, v{cRW+1}""")
tr_lane(64, cRQ); e(f"v_xor_b32 v{cRQ}, s{sT1}, v{cRQ}")
ones_col0(cO)
cEh, cEs, cEq = 73, 74, 75
cEc, cEw = 212, 213
e(f"""s_bfe_u32 s{sT2}, s{sW}, 0x10001
s_mul_i32 s{sT2}, s{sT2}, 448
s_add_u32 s{sT2}, s{sT2}, {CSUM}
s_and_b32 s{sT1}, s{sW}, 1
s_lshl_b32 s{sT1}, s{sT1}, 6
s_add_u32 s{sT1}, s{sT2}, s{sT1}
v_and_b32 v{cEc}, 48, v{vLane}
v_add_u32 v{cEc}, s{sT2}, v{cEc}
v_add_u32 v{cEw}, s{sT1}, v{vLane}""")
e(f"""s_lshl_b32 s{sT0}, s{sI}, 2
s_and_b32 s{sT1}, s{sW}, 1
s_lshl_b32 s{sT1}, s{sT1}, 1
s_add_u32 s{sT0}, s{sT0}, s{sT1}
s_mul_i32 s{sT0}, s{sT0}, 88
s_mul_i32 s{sT1}, s{sJ}, 6
s_min_u32 s{sT1}, s{sT1}, 80
s_bfe_u32 s{sT2}, s{sW}, 0x10001
s_mul_i32 s{sT2}, s{sT2}, 3
s_add_u32 s{sT1}, s{sT1}, s{sT2}
s_and_b32 s{sT2}, s{sW}, 2""")
for add, dst in enumerate((sC0, sC1, sC2)):
    e(f"""s_add_u32 s{sT3}, s{sT1}, {add}
    s_lshr_b32 s{dst}, s{sT3}, 2
    s_add_u32 s{dst}, s{dst}, s{sT0}
    s_and_b32 s{sT3}, s{sT3}, 3
    s_mul_i32 s{sT3}, s{sT3}, 22
    s_add_u32 s{dst}, s{dst}, s{sT3}
    s_lshl_b32 s{dst}, s{dst}, 10
    s_add_u32 s{dst}, s{dst}, {HIMG}""")
    if LZ: e(f"""s_mul_i32 s{sT3}, s{sJ}, 6
    s_sub_u32 s{sT3}, s{sT3}, {add}
    s_cmp_lt_i32 s{sT1}, s{sT3}
    s_cselect_b32 s{dst}, {PROFO+262144}, s{dst}""")
e(f"""v_bfe_u32 v{vT0}, v{vLane}, 4, 1
v_lshlrev_b32 v{vT0}, 9, v{vT0}
v_and_b32 v{vT1}, 15, v{vLane}
v_lshl_add_u32 v{vT0}, v{vT1}, 4, v{vT0}
v_lshl_add_u32 v{cEh}, v{vH}, 8, v{vT0}
s_and_b32 s{sT0}, s{sW}, 1
s_lshl_b32 s{sT1}, s{sT0}, 10
s_add_u32 s{sT1}, s{sT1}, {STATM}
v_lshl_add_u32 v{cEs}, v{vT1}, 4, s{sT1}
s_lshl_b32 s{sT0}, s{sT0}, 12
s_lshl_b32 s{sT2}, s{sT2}, 9
s_add_u32 s{sT0}, s{sT0}, s{sT2}
s_add_u32 s{sT0}, s{sT0}, {QIMG}
v_lshl_add_u32 v{vT0}, v{vH}, 3, v{vT0}
v_add_u32 v{cEq}, s{sT0}, v{vT0}""")
f_init()
for r in list(range(cCs, cCs+16, 2)) + [r for r in range(cA, cA+112, 2) if not vRs <= r < vRs+16]: e(f"v_mov_b64 {vr(r,2)}, 0")
tstamp(13)
e("s_waitcnt vmcnt(0)")
tstamp(21)
rowstat_finish()
rowstat_post()
tstamp(23)
if "--touch" in sys.argv:
    e(f"""s_and_b32 s{sT2}, s{sI}, 7
    s_mul_i32 s{sT2}, s{sT2}, 48
    s_add_u32 s{sT2}, s{sT2}, 128
    s_cmp_ge_u32 s{sW}, 6
    s_cbranch_scc1 Ltc6
    v_lshrrev_b32 v{vT0}, 1, v{vLane}
    v_mul_u32_u24 v{vT0}, 2752, v{vT0}
    v_and_b32 v{vT1}, 1, v{vLane}
    v_lshl_add_u32 v{vT0}, v{vT1}, 7, v{vT0}
    s_mul_i32 s{sT0}, s{sJ}, 96
    s_min_u32 s{sT0}, s{sT0}, 1280
    s_lshl_b32 s{sT0}, s{sT0}, 1
    s_mul_i32 s{sT2}, s{sT2}, 2752
    s_add_u32 s{sT0}, s{sT0}, s{sT2}
    s_add_u32 s{sT1}, s{sT0}, {32*2752}
    s_cmp_eq_u32 s{sW}, 5
    s_cbranch_scc1 Ltc5
    buffer_load_dword v79, v{vT0}, {sr(SWG,4)}, s{sT0} offen
    s_mov_b32 exec_hi, 0
    buffer_load_dword v79, v{vT0}, {sr(SWG,4)}, s{sT1} offen
    s_branch Ltce
    Ltc5:
    buffer_load_dword v79, v{vT0}, {sr(SWU,4)}, s{sT0} offen
    s_mov_b32 exec_hi, 0
    buffer_load_dword v79, v{vT0}, {sr(SWU,4)}, s{sT1} offen
    s_branch Ltce
    Ltc6:
    s_cmp_eq_u32 s{sW}, 7
    s_cbranch_scc1 Ltc7
    v_lshrrev_b32 v{vT0}, 1, v{vLane}
    v_lshlrev_b32 v{vT0}, 10, v{vT0}
    v_and_b32 v{vT1}, 1, v{vLane}
    v_lshl_add_u32 v{vT0}, v{vT1}, 7, v{vT0}
    s_lshl_b32 s{sT0}, s{sI}, 17
    s_and_b32 s{sT1}, s{sJ}, 3
    s_lshl_b32 s{sT1}, s{sT1}, 15
    s_add_u32 s{sT0}, s{sT0}, s{sT1}
    buffer_load_dword v79, v{vT0}, {sr(SX,4)}, s{sT0} offen offset:256
    buffer_load_dword v79, v{vT0}, {sr(SX,4)}, s{sT0} offen offset:512
    buffer_load_dword v79, v{vT0}, {sr(SX,4)}, s{sT0} offen offset:768
    s_branch Ltce
    Ltc7:
    v_lshlrev_b32 v{vT0}, 10, v{vLane}
    s_lshl_b32 s{sT2}, s{sT2}, 10
    s_lshl_b32 s{sT0}, s{sJ}, 6
    s_add_u32 s{sT0}, s{sT0}, s{sT2}
    s_mov_b32 exec_hi, 0xffff
    buffer_load_dword v79, v{vT0}, {sr(SWQ,4)}, s{sT0} offen
    Ltce:
    s_mov_b64 exec, -1""")
e("s_nop 1")
for r in range(vRs, vRs+16, 2): e(f"v_mov_b64 {vr(r,2)}, 0")
e(f"s_mov_b32 s{sSt}, 0\ns_mov_b32 s{sRb}, 0\ns_mov_b32 s{sC3}, {(-2*STG) & 0xffffffff}\ns_setprio 2")
NF = 7
def comp_loop(var):
    tag = f"{var}"
    def wrd(n, k2):
        if n == 0: a, o, rs = cRQ, QOFF, 64
        else:
            t = (n-1) % 3
            a, o, rs = cRW+(t & 1), (GOFF if n < 4 else UOFF) + (t >> 1)*64, 192
        return tr(cW+4*n, a, o+32*k2*rs) + tr(cW+4*n+2, a, o+(32*k2+4)*rs)
    def xrd(k2): return [f"ds_read_b128 {vr(cX[k2]+4*u,4)}, v{cRX+k2} offset:{2048*u}" for u in range(4)]
    def mm(n, k2):
        r = [mfma16(cA+28*u+4*n, cW+4*n, cX[k2]+4*u) for u in range(4)]
        if var < 2 and (n & 1) == var: r.append(mfma16(cCs+4*(n >> 1), cW+4*n, cO))
        return r
    if var == 0:
        e("s_waitcnt lgkmcnt(0)\ns_barrier")
        for x in xrd(0) + sum([wrd(n, 0) for n in range(NF)], []): e(x)
        e(f"s_and_b32 s{sT0}, s{sI}, 6\ns_cmp_lg_u32 s{sT0}, 0\ns_waitcnt lgkmcnt(0)\ns_cbranch_scc1 Lc_2\ns_bitcmp1_b32 s{sW}, 0\ns_cbranch_scc1 Lc_1")
    e(f".p2align 3\nLc_{tag}:")
    adr = [f"v_add_u32 v{r}, s{sDl}, v{r}" for r in (cRX, cRX+1, cRW, cRW+1, cRQ)]
    ctl = rot_delta().split("\n") + [f"s_add_u32 s{sSt}, s{sSt}, 1"]
    BARG = 2
    def build(order0):
        out = []; q = []; issued = list(order0)
        def need(tagname):
            idx = max(i for i, t in enumerate(issued) if t == tagname)
            return len(issued)-1-idx
        def push(tagname, lst): q.extend((tagname, x) for x in lst)
        lastN = [99]
        for k2 in range(2):
            if k2 == 0: push("x1", xrd(1))
            for n in range(NF):
                if k2 == 1 and n == BARG:
                    while q:
                        t, x = q.pop(0); out.append(x)
                        if t: issued.append(t)
                    out.append(f"s_waitcnt lgkmcnt(0)\n{tk(None)}\ns_barrier\n{tk(81)}")
                    issued.clear(); issued.extend(["done"])
                    push("x0", xrd(0))
                    for m in range(BARG): push(f"w{m}0", wrd(m, 0))
                reqs = [f"w{n}{k2}"] + ([f"x{k2}"] if n == 0 else [])
                for r in reqs: assert all(t != r for t, _ in q), (r, k2, n)
                ns = [need(r) for r in reqs if r in issued]
                if ns and n % 2 == 0 or ns and min(ns) < lastN[0]:
                    nxt = f"w{n+1}{k2}"
                    if nxt in issued and all(t != nxt for t, _ in q): ns.append(need(nxt))
                    N = min(min(ns), 15); out.append(f"s_waitcnt lgkmcnt({N})"); lastN[0] = N
                for x in mm(n, k2):
                    out.append(x)
                    if q:
                        t, y = q.pop(0); out.append(y)
                        if t: issued.append(t); lastN[0] += 1
                if k2 == 0:
                    push(f"w{n}1", wrd(n, 1))
                    if n == 3: push(None, ctl)
                    if n == NF-1: push(None, adr)
                elif n >= BARG: push(f"w{n}0", wrd(n, 0))
        while q:
            t, x = q.pop(0); out.append(x)
            if t: issued.append(t)
        return out, issued
    _, steady = build([])
    out, _ = build(steady)
    for x in out: e(x)
    e(f"s_cmp_lt_u32 s{sSt}, {2 if var < 2 else 8}\ns_cbranch_scc1 Lc_{tag}")
    if var < 2:
        e(f"s_nop 2\ns_mov_b32 exec_lo, 0x00010001\ns_mov_b32 exec_hi, 0x00010001")
        for k in range(4-var): e(f"ds_write_b128 v{cEw}, {vr(cCs+4*k,4)} offset:{128*k}")
        e("s_mov_b64 exec, -1")
        if var == 0: e("s_branch Lc_2")
    tkout()
eC, eK, eT = 8, 40, 56
comp_loop(0); comp_loop(1); comp_loop(2)
tstamp(1)
for u in range(4): e(f"ds_read_b128 {vr(eK+4*u,4)}, v{cEs} offset:{256*u}")
for n in range(NF): e(f"ds_read_b128 {vr(eC+4*n,4)}, v{cEc} offset:{64*n}")
e("s_waitcnt lgkmcnt(6)")
for u in range(4): e(f"v_mul_f32 v{eT+u}, {f2u(0.25*1.4426950408889634/C1):#x}, v{eK+4*u+1}")
for u in range(4):
    for p in (0, 2): e(pk("v_pk_fma_f32", cA+28*u+p, [('b', eK+4*u), ('p', eC+p), ('p', cA+28*u+p)]))
for u in range(4):
    for p in (0, 2): e(pk("v_pk_mul_f32", cA+28*u+p, [('p', cA+28*u+p), ('b', eT+u)]))
for u in range(4):
    q = cA+28*u
    e(f"v_cvt_pk_bf16_f32 v{q}, v{q}, v{q+1}\nv_cvt_pk_bf16_f32 v{q+1}, v{q+2}, v{q+3}")
for u in range(4): e(f"ds_write_b64 v{cEq}, {vr(cA+28*u,2)} offset:{2048*(u>>1)+256*(u&1)}")
e(f"v_mov_b32 v{vT0}, {KFL}\ns_waitcnt lgkmcnt(0)\ns_barrier")
e(f"ds_read_b32 v{vT1}, v{vT0} offset:16")
ES = "--es" in sys.argv
if ES: a_sent(True)
e(f"s_waitcnt lgkmcnt(0)\nv_cmp_ne_u32 vcc, 0, v{vT1}")
gl0 = len(L)
for u in range(4):
    g = cA+28*u+4; P = cA+28*(u & 2)+4
    gelu_tile(g, g+12, eC+4, eC+16, eK+4*u, eT, 12, [P+4*(p//2)+2*(u & 1)+(p & 1) for p in range(6)])
    if u & 1:
        e("s_nop 0")
        for t in range(3):
            e(f"v_permlane32_swap_b32 v{P+4*t}, v{P+4*t+2}\nv_permlane32_swap_b32 v{P+4*t+1}, v{P+4*t+3}")
        for t, so in enumerate((sC0, sC1, sC2)):
            st = f"buffer_store_dwordx4 {vr(P+4*t,4)}, v{cEh}, {sr(SWS,4)}, s{so} offen sc1"
            if LZ: L.append(f"s_cmp_eq_u32 s{so}, {PROFO+262144}\ns_cbranch_scc1 Lns{u}{t}\n{st}\nLns{u}{t}:")
            else: e(st)
        if u == 1: e(f"v_add_u32 v{cEh}, {88*1024}, v{cEh}")
body = L[gl0:]; del L[gl0:]
e(f"s_lshl_b32 s{sT1}, s{sW4}, 12")
items = []
for n in range(12):
    t = f"s_cbranch_vccz Lgk{n}\n"
    if n % 2 == 0: t += f"s_add_u32 s{sT0}, s{sT1}, {36*1024+8192*n}\ns_mov_b32 m0, s{sT0}\ns_nop 0\n"
    for k in range(2): t += f"buffer_load_dwordx4 v{vL16}, {sr(SWS,4)}, s{sT0} offen offset:{1024*(2*(n%2)+k)} sc1 lds\n"
    items.append(t + f"Lgk{n}:")
cut = (len(body)*3)//4
for x in interleave(body[:cut], items) + body[cut:]: e(x)
e(f"""s_cbranch_vccnz Lgk
s_mov_b32 s{sT0}, 0
s_setprio 0
Lgw:
s_sleep 2
ds_read_b32 v{vT1}, v{vT0} offset:16
s_add_u32 s{sT0}, s{sT0}, 1
s_waitcnt lgkmcnt(0)
v_cmp_ne_u32 vcc, 0, v{vT1}
s_cmp_ge_u32 s{sT0}, 2000000
s_cbranch_scc1 LFkv
s_cbranch_vccz Lgw
s_branch LFkv
Lgk:""")
e(tag_issue())
stamp(2)
tflush(); TS.clear(); rt_out()
e("s_branch LF")

def cs_write(acc, slot_expr_sreg):
    e(f"""v_and_b32 v{vT0}, 1, v{vLane}
    v_lshlrev_b32 v{vT0}, 6, v{vT0}
    v_lshrrev_b32 v{vT1}, 4, v{vLane}
    v_lshl_add_u32 v{vT0}, v{vT1}, 4, v{vT0}
    v_add_u32 v{vT0}, {slot_expr_sreg}, v{vT0}
    s_mov_b32 exec_lo, 0x00030003
    s_mov_b32 exec_hi, 0x00030003
    ds_write_b128 v{vT0}, {vr(acc,4)}
    s_mov_b64 exec, -1""")
e("Lkvcu:")
entry_stamp(True)
e(tag_issue())
for x in kvx_dma(1): e(x)
late_srd(LS_A + LS_F)
e(f"""v_and_b32 v{vT0}, 31, v{vLane}
v_lshrrev_b32 v{vT1}, 1, v{vT0}
v_and_b32 v{vT1}, 7, v{vT1}
v_xor_b32 v{vT1}, v{vT1}, v{vH}
v_lshlrev_b32 v{vT0}, 7, v{vT0}
v_add_u32 v{vT0}, s{sXb}, v{vT0}""")
for ks in range(4):
    e(f"v_xor_b32 v{vT2}, {2*ks}, v{vT1}\nv_lshl_add_u32 v{vRX+ks}, v{vT2}, 4, v{vT0}")
e(f"""v_bfe_u32 v{vT0}, v{vLane}, 2, 2
v_lshl_add_u32 v{vT0}, v{vH}, 3, v{vT0}
v_bfe_u32 v{vT1}, v{vLane}, 4, 1
v_and_b32 v{vT2}, 3, v{vLane}
v_lshlrev_b32 v{vT2}, 3, v{vT2}
v_lshl_add_u32 v{vT3}, v{vT1}, 5, v{vT2}
v_lshl_add_u32 v{vRQ}, v{vT0}, 6, v{vT3}
v_lshlrev_b32 v{vT1}, 14, v{vT1}
v_lshl_add_u32 v{vRW}, v{vT0}, 5, v{vT2}
s_lshr_b32 s{sT0}, s{sW}, 2
s_lshl_b32 s{sT0}, s{sT0}, 13
s_add_u32 s{sT1}, s{sT0}, {WKV}
v_add3_u32 v{vRW}, v{vRW}, v{vT1}, s{sT1}
s_add_u32 s{sT1}, s{sT1}, s{sT0}
v_add_u32 v{vRQ}, s{sT1}, v{vRQ}
v_lshrrev_b32 v{vT0}, 2, v{vLane}
v_lshlrev_b32 v{vT0}, 10, v{vT0}
v_and_b32 v{vT1}, 3, v{vLane}
v_lshl_add_u32 v{vQa}, v{vT1}, 4, v{vT0}
v_bfe_u32 v{vT0}, v{vLane}, 4, 1
v_and_b32 v{vT1}, 15, v{vLane}
v_cmp_eq_u32 vcc, v{vT0}, v{vT1}
v_mov_b32 v{vT2}, 0x3f803f80
s_nop 0
v_cndmask_b32 v{vSel}, 0, v{vT2}, vcc""")
for k in range(1, 4): e(f"v_mov_b32 v{vSel+k}, v{vSel}")
for r in range(vCs, vCs+4): e(f"v_mov_b32 v{r}, 0")
e(f"s_waitcnt vmcnt(5) lgkmcnt(0)\ns_cmp_lt_u32 s{sW}, 4\ns_cbranch_scc1 Lkvr1")
rowstat_finish()
e("Lkvr1:\ns_barrier")
tstamp(12)
def kv_reads(c):
    r = []
    for ks in range(4):
        W = vWk + 16*(c & 1) + 4*ks
        r += [f"ds_read_b128 {vr(vXf+16*c+4*ks,4)}, v{vRX+ks} offset:{4096*c}"]
        r += tr(W, vRW, (64*c+16*ks)*32) + tr(W+2, vRW, (64*c+16*ks+4)*32)
    return r
def kstat_issue():
    return f"buffer_load_dwordx4 {vr(vSt,4)}, v{vWa0}, {sr(SWS,4)}, s{sC1} offen sc1"
for x in kv_reads(0) + kvx_dma(2) + kvx_dma(3): e(x)
e(f"""v_and_b32 v{vWa0}, 31, v{vLane}
v_lshlrev_b32 v{vWa0}, 4, v{vWa0}
s_lshl_b32 s{sT0}, s{sI}, 2
s_add_u32 s{sT0}, s{sT0}, s{sW4}
s_mul_i32 s{sC0}, s{sT0}, {KVT}
s_lshl_b32 s{sC1}, s{sT0}, 9
s_add_u32 s{sC1}, s{sC1}, {STATG}""")
if "--kvt" in sys.argv: e(f"s_mov_b32 s{sT0}, {64*KVT+1024}\nbuffer_load_dword v{vSt+8}, off, {sr(SWS,4)}, s{sT0}")
for c in range(4):
    m = []
    for ks in range(4):
        X = vXf+16*c+4*ks; W = vWk + 16*(c & 1) + 4*ks
        z = "0" if c == 0 and ks == 0 else None
        m += [mfma(vAcc+16, W, X, z), mfma16(vCs, W, vSel), mfma(vAcc+32, X, W, z)]
    e("s_waitcnt lgkmcnt(0)")
    if c < 3:
        wt = f"s_waitcnt vmcnt({8-4*c})"
        if c:
            wt = f"s_waitcnt vmcnt({10-4*c})\ns_cmp_ge_u32 s{sW}, 4\ns_cbranch_scc1 Lkx{c}\n{wt}\nLkx{c}:"
        for x in m[:3] + [wt] + interleave(m[3:9], kv_reads(c+1)) + m[9:]: e(x)
        if c == 0:
            tag_wait("k", 8, True)
            e(f"s_cmp_lt_u32 s{sW}, 4\ns_cbranch_scc1 Lkvr2")
            rowstat_store()
            e("Lkvr2:")
    else:
        e(kstat_issue())
        for x in m: e(x)
tstamp(1)
e(f"""v_and_b32 v{vT2}, 31, v{vLane}
v_lshlrev_b32 v{vT2}, 2, v{vT2}
s_xor_b32 s{sT2}, s{sXb}, 65536
s_add_u32 s{sT1}, s{sXb}, 4352
s_lshl_b32 s{sQo}, s{sW}, 16
s_add_u32 s{sQo}, s{sQo}, {64*15}
s_lshl_b32 s{sMq}, s{sW}, 12
s_add_u32 s{sMq}, s{sMq}, {WKV}""")
cs_write(vCs, f"s{sT1}")
e(f"""v_add_u32 v{vT0}, s{sXb}, v{vL16}
v_add_u32 v{vWa1}, s{sT2}, v{vL16}
v_add_u32 v{vWa2}, s{sT2}, v{vT2}
v_lshl_add_u32 v{vT3}, v{vH}, 4, s{sXb}
s_cmp_ge_u32 s{sW}, 4
s_cbranch_scc1 LkvH""")
def wq_dma():
    for k in range(4):
        e(f"s_add_u32 m0, s{sMq}, {1024*k}\ns_add_u32 s{sT0}, s{sQo}, {16384*k}\nbuffer_load_dwordx4 v{vQa}, {sr(SWQ,4)}, s{sT0} offen lds")
def kstat_wait(tag):
    e(f"""s_mov_b32 s{sT0}, 0
    s_waitcnt vmcnt(0)
    Lks_{tag}:
    v_cmp_ne_u64 vcc, s[{sNo}:{sNo+1}], {vr(vSt+2,2)}
    s_add_u32 s{sT0}, s{sT0}, 1
    s_cmp_ge_u32 s{sT0}, 100000
    s_cbranch_vccz Lksd_{tag}
    s_cbranch_scc1 Lksd_{tag}
    {kstat_issue()}
    s_waitcnt vmcnt(0)
    s_branch Lks_{tag}
    Lksd_{tag}:""")
for q in range(4): e(f"ds_write_b128 v{vT0}, {vr(vAcc+32+4*q,4)} offset:{1024*q}")
e(f"v_xor_b32 v{vT1}, 0x10000, v{vT3}\ns_waitcnt lgkmcnt(0)\ns_barrier")
e(f"""ds_read_b128 {vr(vWk,4)}, v{vWa1}
ds_read_b128 {vr(vWk+4,4)}, v{vWa1} offset:1024
ds_read_b128 {vr(vSt+12,4)}, v{vT3} offset:{4352+64}
ds_read_b128 {vr(vSt+16,4)}, v{vT3} offset:{4352+96}
ds_read_b128 {vr(vWk+8,4)}, v{vT1} offset:{4352+64}
ds_read_b128 {vr(vWk+12,4)}, v{vT1} offset:{4352+96}""")
e(f"""v_and_b32 v{vT0}, 0x33, v{vLane}
v_bfe_u32 v{vT1}, v{vLane}, 2, 1
v_lshl_or_b32 v{vT0}, v{vT1}, 3, v{vT0}
v_bfe_u32 v{vT1}, v{vLane}, 3, 1
v_lshl_or_b32 v{vT0}, v{vT1}, 2, v{vT0}
v_lshlrev_b32 v{vT0}, 4, v{vT0}
s_waitcnt lgkmcnt(0)""")
for p in range(0, 8, 2):
    e(pk("v_pk_add_f32", vAcc+24+p, [('p', vAcc+24+p), ('p', vWk+p)]))
    e(pk("v_pk_add_f32", vSt+12+p, [('p', vSt+12+p), ('p', vWk+8+p)]))
kstat_wait("l")
e(f"v_sub_f32 v{vSt+4}, 0, v{vSt}")
lin_fold(vAcc+24, vSt+12, vSt+4, vSt+1, 8)
for p in range(4): e(f"v_cvt_pk_bf16_f32 v{vAcc+16+p}, v{vAcc+24+2*p}, v{vAcc+25+2*p}")
e(f"buffer_store_dwordx4 {vr(vAcc+16,4)}, v{vT0}, {sr(SWS,4)}, s{sC0} offen sc1\ns_branch LkvS")
e("LkvH:")
e(f"ds_write_b128 v{vT0}, {vr(vAcc+24,4)}\nds_write_b128 v{vT0}, {vr(vAcc+28,4)} offset:1024")
e(f"v_add_u32 v{vT1}, s{sXb}, v{vT2}\ns_waitcnt lgkmcnt(0)\ns_barrier")
e(f"ds_read_b32 v{vSt+6}, v{vT1} offset:4352\nds_read_b32 v{vSt+7}, v{vWa2} offset:4352")
for q in range(4): e(f"ds_read_b128 {vr(vAcc+48+4*q,4)}, v{vWa1} offset:{1024*q}")
tstamp(21)
kstat_wait("h")
tstamp(23)
e(f"ds_write_b32 v{vT1}, v{vSt} offset:4608\nds_write_b32 v{vT1}, v{vSt+1} offset:4736\ns_waitcnt lgkmcnt(0)")
for q in range(4):
    e(f"ds_read_b128 {vr(vWk+4*q,4)}, v{vT3} offset:{4608+32*q}\nds_read_b128 {vr(vWk+16+4*q,4)}, v{vT3} offset:{4736+32*q}")
e(f"v_add_f32 v{vSt+6}, v{vSt+6}, v{vSt+7}\nv_sub_f32 v{vSt+6}, 0, v{vSt+6}")
for p in range(0, 16, 2): e(pk("v_pk_add_f32", vAcc+32+p, [('p', vAcc+32+p), ('p', vAcc+48+p)]))
e("s_waitcnt lgkmcnt(0)")
for p in range(0, 16, 2): e(pk("v_pk_fma_f32", vAcc+32+p, [('p', vWk+p), ('b', vSt+6), ('p', vAcc+32+p)]))
for p in range(0, 16, 2): e(pk("v_pk_mul_f32", vAcc+32+p, [('p', vAcc+32+p), ('p', vWk+16+p)]))
for p in range(8): e(f"v_cvt_pk_bf16_f32 v{vAcc+32+p}, v{vAcc+32+2*p}, v{vAcc+33+2*p}")
v_lane_addr(vT0)
for p in range(8): e(f"v_mov_b32 v{vAcc+32+p}, 0x3f803f80")
e(f"""s_mov_b32 exec_lo, 0x1ffff
s_mov_b32 exec_hi, 0xffff
buffer_store_dwordx4 {vr(vAcc+32,4)}, v{vT0}, {sr(SWS,4)}, s{sC0} offen offset:1024 sc1
buffer_store_dwordx4 {vr(vAcc+36,4)}, v{vT0}, {sr(SWS,4)}, s{sC0} offen offset:{1024+528} sc1
s_mov_b64 exec, -1""")
tstamp(29)
e("LkvS:")
wq_dma()
for r in range(4): e(f"v_mov_b32 v{vCs+r}, 0")
e(f"s_lshl_b32 s{sT2}, s{sI}, 7\ns_add_u32 s{sT2}, s{sT2}, {KFLG}\ns_waitcnt vmcnt(4)\ns_barrier")
if "--dkv" in sys.argv:
    for _ in range(3): e("s_sleep 127")
flag_set(sT2, "kv")
stamp(13)
tflush(); TS.clear(); rt_out()
e("s_waitcnt vmcnt(0)\ns_barrier")
def q_reads(c):
    r = []
    for ks in range(4):
        W = vWk + 16*(c & 1) + 4*ks
        r += tr(W, vRQ, (64*c+16*ks)*64) + tr(W+2, vRQ, (64*c+16*ks+4)*64)
    return r
for x in q_reads(0): e(x)
for c in range(4):
    m = []
    for ks in range(4):
        X = vXf+16*c+4*ks; W = vWk + 16*(c & 1) + 4*ks
        m += [mfma(vAcc, W, X, "0" if c == 0 and ks == 0 else None), mfma16(vCs, W, vSel)]
    e("s_waitcnt lgkmcnt(0)")
    for x in interleave(m[:4], q_reads(c+1) if c < 3 else []) + m[4:]: e(x)
e(f"""s_or_b32 s{sT2}, s{sXb}, {65536+8192}
s_lshr_b32 s{sT3}, s{sW}, 2
s_lshl_b32 s{sT3}, s{sT3}, 7
s_add_u32 s{sT1}, s{sT2}, s{sT3}
s_add_u32 s{sT1}, s{sT1}, 4096
v_add_u32 v{vWa1}, s{sT2}, v{vL16}
v_lshl_add_u32 v{vT3}, v{vH}, 4, s{sT2}
s_nop 3""")
cs_write(vCs, f"s{sT1}")
e(f"s_cmp_ge_u32 s{sW}, 4\ns_cbranch_scc1 LkvH2\ns_waitcnt lgkmcnt(0)\ns_barrier")
for q in range(4): e(f"ds_read_b128 {vr(vWk+4*q,4)}, v{vWa1} offset:{1024*q}")
cs_read(vAcc+48, 4096); cs_read(vWk+16, 4096+128)
e("s_waitcnt lgkmcnt(0)")
for p in range(0, 16, 2):
    e(pk("v_pk_add_f32", vAcc+p, [('p', vAcc+p), ('p', vWk+p)]))
    e(pk("v_pk_add_f32", vAcc+48+p, [('p', vAcc+48+p), ('p', vWk+16+p)]))
q_epilogue(vAcc+48)
a_init(); fin_init()
e("s_waitcnt lgkmcnt(0)\ns_barrier\ns_branch LaR\nLkvH2:")
for q in range(4): e(f"ds_write_b128 v{vWa1}, {vr(vAcc+4*q,4)} offset:{1024*q}")
e(f"s_mov_b32 s{sKf}, {KFLG}")
e(flags_issue(sKf))
e("s_waitcnt lgkmcnt(0)\ns_barrier")
f_init()
flags_wait(sKf, "kv2", 0)
kv_dma("c")
e("s_waitcnt vmcnt(0)\ns_barrier")
if ES: a_sent(True)
e("s_branch LFkv")

AAL = 6 if "--a6" in sys.argv else 3
vm = []
def vtag(tag): vm.append(tag)
def vwait_s(tag):
    idx = max(i for i, t in enumerate(vm) if t == tag)
    return f"s_waitcnt vmcnt({min(63, len(vm)-1-idx)})"
def emit_seq(seq):
    for x in seq:
        if isinstance(x, list): emit_seq(x)
        elif isinstance(x, tuple): vtag(x[0]); e(x[1])
        elif callable(x): e(x())
        else: e(x)
e(f"Lp2:\ns_setprio 3\ns_cmp_eq_u32 s{sSt}, 0\ns_cbranch_scc1 Lkvok")
stamp(16)
flags_wait(sKf, "kv", 0)
stamp(17)
kv_dma("d")
e(f"v_mov_b32 v{vT0}, {KFL}\nds_write_b32 v{vT0}, v{hF+1} offset:16")
e(f"""Lkvok:
v_mov_b32 v{vT0}, {KFL}
s_mov_b32 s{sT0}, 0
s_waitcnt vmcnt(0)
ds_write_b32 v{hF}, v{hF+1}
Lkw:
ds_read_b128 {vr(aS[0],4)}, v{vT0}
s_add_u32 s{sT0}, s{sT0}, 1
s_waitcnt lgkmcnt(0)
v_and_b32 v{aS[0]}, v{aS[0]}, v{aS[0]+1}
v_and_b32 v{aS[0]+2}, v{aS[0]+2}, v{aS[0]+3}
v_and_b32 v{aS[0]}, v{aS[0]}, v{aS[0]+2}
v_cmp_ne_u32 vcc, 0, v{aS[0]}
s_cmp_ge_u32 s{sT0}, 2000000
s_cbranch_scc1 LaR
s_cbranch_vccnz LaR
s_sleep 1
s_branch Lkw
LaR:""")
stamp(3)
e(f"""ds_read_b128 {vr(aQ[0],4)}, v{vAq}
ds_read_b128 {vr(aK[0],4)}, v{vAk}
ds_read_b128 {vr(aQ[1],4)}, v{vAq} offset:1024
ds_read_b128 {vr(aK[1],4)}, v{vAk} offset:{KVT}
ds_read_b128 {vr(aVl[0],4)}, v{vAv}
ds_read_b128 {vr(aVh[0],4)}, v{vAv} offset:528
s_waitcnt lgkmcnt(4)""")
e(mfma(aS[0], aK[0], aQ[0], "0"))
e("s_waitcnt lgkmcnt(3)")
e(mfma(aS[1], aK[0], aQ[1], "0"))
e("s_nop 9")
for b in range(2):
    t = vT0+2*b; S = aS[b]
    e(f"v_max3_f32 v{t}, v{S}, v{S+1}, v{S+2}")
    for p in range(3, 15, 2): e(f"v_max3_f32 v{t}, v{t}, v{S+p}, v{S+p+1}")
    e(f"v_max_f32 v{t}, v{t}, v{S+15}\nv_mov_b32 v{t+1}, v{t}")
e(f"""s_nop 1
v_permlane32_swap_b32 v{vT0}, v{vT1}
v_permlane32_swap_b32 v{vT2}, v{vT3}
s_mov_b32 s{sSt}, 0
v_max_f32 v{vT0}, v{vT0}, v{vT1}
v_max_f32 v{vT2}, v{vT2}, v{vT3}""")
for b in range(2):
    e(f"v_sub_f32 v{aC[b]}, 0, v{vT0+2*b}\nv_sub_f32 v{aC[b]+1}, 0, v{vT0+2*b}")
for r in range(16): e(f"v_sub_f32 v{aS[0]+r}, v{aS[0]+r}, v{vT0}")
for b in (1, 0):
    for r in range(2, 16, 2): e(f"v_mov_b64 {vr(aC[b]+r,2)}, {vr(aC[b],2)}")
e("s_setprio 1")
stamp(5)
e(f"v_exp_f32 v{aS[0]}, v{aS[0]}\nv_exp_f32 v{aS[0]+1}, v{aS[0]+1}\ns_branch La1\n.p2align {AAL}\nLa0:")
for n in range(32):
    b = n & 1; T = n >> 1
    X = aS[b]; Y = aS[b ^ 1]
    ex = [f"v_exp_f32 v{X+i}, v{X+i}" for i in range(16)]
    Tp = (n-1) >> 1; Tn = (n+1) >> 1
    seq = ex[0:2] + [smf(aO[b ^ 1], aVh[Tp & 1], Y+8, vIdx)] + (["La1:"] if n == 0 else []) + ex[2:5]
    seq += [mfma(Y, aK[Tn & 1], aQ[b ^ 1], vr(aC[b ^ 1], 16))]
    if b:
        rd = [f"ds_read_b128 {vr(aVl[(T+1)&1],4)}, v{vAv} offset:{(T+1)*KVT}",
              f"ds_read_b128 {vr(aVh[(T+1)&1],4)}, v{vAv} offset:{(T+1)*KVT+528}",
              f"ds_read_b128 {vr(aK[T&1],4)}, v{vAk} offset:{(T+2)*KVT}"]
        seq += rd + ex[5:10]
    else: seq += ["s_waitcnt lgkmcnt(0)"] + ex[5:10]
    seq += [smf(aO[b], aVl[T & 1], X, vIdx)] + ex[10:16]
    for x in seq: e(x)
if PROF:
    e(f"s_memtime s[{sTm}:{sTm+1}]\ns_lshl_b32 s{sT0}, s{sSt}, 2\ns_add_u32 s{sT0}, s{sT0}, s{sPo}\ns_waitcnt lgkmcnt(0)\nv_mov_b32 v0, s{sTm}\nbuffer_store_dword v0, off, {sr(SWS,4)}, s{sT0} offset:72")
e(f"""v_add_u32 v{vAk}, {16*KVT}, v{vAk}
v_add_u32 v{vAv}, {16*KVT}, v{vAv}
s_add_u32 s{sSt}, s{sSt}, 1
s_cmp_eq_u32 s{sSt}, 1
s_cbranch_scc0 La2
{'' if PROF else 's_waitcnt vmcnt(0)'}
s_barrier
s_branch La0
La2:
s_cmp_lt_u32 s{sSt}, 4
s_cbranch_scc1 La0""")
e(smf(aO[1], aVh[1], aS[1]+8, vIdx))
if "--dA" in sys.argv:
    e(f"s_and_b32 s{sT0}, s2, 0x29\ns_cmp_lg_u32 s{sT0}, 0\ns_cbranch_scc1 LdA\ns_sleep 127\ns_sleep 127\nLdA:")
e(f"s_mov_b32 s{sC0}, {f2u(2.0**40):#x}\ns_mov_b32 s{sC1}, {f2u(2.0**126):#x}")
for b in range(2):
    O = aO[b]
    e(f"s_mov_b32 s{sRetry}, 0\nLfin{b}:")
    e(f"""v_rcp_f32 v{O+10}, v{O+8}
    v_max3_f32 v{vT1}, abs(v{O}), abs(v{O+1}), abs(v{O+2})
    v_max3_f32 v{vT1}, v{vT1}, abs(v{O+3}), abs(v{O+4})
    v_max3_f32 v{vT1}, v{vT1}, abs(v{O+5}), abs(v{O+6})
    v_max_f32 v{vT1}, v{vT1}, abs(v{O+7})
    v_cmp_nlt_f32 vcc, v{O+8}, s{sC0}
    v_cmp_nlt_f32 s[{sEx}:{sEx+1}], v{vT1}, s{sC1}""")
    for p in range(8): e(f"v_mul_f32 v{O+p}, v{O+p}, v{O+10}")
    e(f"s_or_b64 vcc, vcc, s[{sEx}:{sEx+1}]")
    for p in range(4): e(f"v_cvt_pk_bf16_f32 v{O+p}, v{O+2*p}, v{O+2*p+1}")
    for p in range(4): e(f"v_min_u32 v{O+p}, -2, v{O+p}")
    e(f"s_cbranch_vccnz Lfallback{b}\nLok{b}:")
    e(f"buffer_store_dwordx4 {vr(O,4)}, v{vL16}, {sr(SWS,4)}, s{sOp if b == 0 else sOp2} offen sc1")
stamp(6)
OSC = " sc1"
gX = [136, 140]; gG = [144, 176]; gR = [8, 40]
e(f"buffer_load_dwordx4 {vr(gX[0],4)}, v{vRa}, {sr(SX,4)}, s{sXf} offen")
e(f"buffer_load_dwordx4 {vr(gX[1],4)}, v{vRa}, {sr(SX,4)}, s{sXf2} offen")
e("s_waitcnt lgkmcnt(0)\ns_setprio 0\ns_barrier\ns_barrier")
stamp(8)
for tt in range(2):
    for q in range(8): e(f"ds_read_b128 {vr(gG[tt]+4*q,4)}, v{vRr} offset:{128*tt+XK*(q//2)+512*(q%2)}")
def sum4(r):
    for p in range(0, 8, 2):
        e(pk("v_pk_add_f32", r+p, [('p', r+p), ('p', r+8+p)]))
        e(pk("v_pk_add_f32", r+16+p, [('p', r+16+p), ('p', r+24+p)]))
    for p in range(0, 8, 2): e(pk("v_pk_add_f32", r+p, [('p', r+p), ('p', r+16+p)]))
for tt in range(2):
    G = gG[tt]
    e(f"s_waitcnt lgkmcnt({8*(1-tt)})")
    for p in range(8): e(f"v_add_f32 v{G+p}, v{G+p}, v{G+8+p}\nv_add_f32 v{G+16+p}, v{G+16+p}, v{G+24+p}")
    for p in range(8): e(f"v_add_f32 v{G+p}, v{G+p}, v{G+16+p}")
    for p in range(8): e(f"v_mul_f32 v{G+8+p}, {f2u(-1.4426950408889634):#x}, v{G+p}")
    for p in range(8): e(f"v_exp_f32 v{G+8+p}, v{G+8+p}")
    for p in range(8): e(f"v_add_f32 v{G+8+p}, 1.0, v{G+8+p}")
    for p in range(8): e(f"v_rcp_f32 v{G+8+p}, v{G+8+p}")
    e("s_waitcnt vmcnt(0)")
    for p in range(4): e(f"v_lshlrev_b32 v{G+16+2*p}, 16, v{gX[tt]+p}\nv_and_b32 v{G+17+2*p}, 0xffff0000, v{gX[tt]+p}")
    for p in range(8): e(f"v_mul_f32 v{G+p}, v{G+p}, v{G+8+p}")
stamp(9)
e("s_barrier")
for tt in range(2):
    for q in range(8): e(f"ds_read_b128 {vr(gR[tt]+4*q,4)}, v{vRr2} offset:{128*tt+XK*(q//2)+512*(q%2)}")
for tt in range(2):
    R = gR[tt]; G = gG[tt]
    e(f"s_waitcnt lgkmcnt({8*(1-tt)})")
    sum4(R)
    for p in range(0, 8, 2): e(pk("v_pk_fma_f32", R+p, [('p', R+p), ('p', G+p), ('p', G+16+p)]))
    for p in range(4): e(f"v_cvt_pk_bf16_f32 v{R+p}, v{R+2*p}, v{R+2*p+1}")
    e(f"buffer_store_dwordx4 {vr(R,4)}, v{vRa}, {sr(SOUT,4)}, s{sXf if tt == 0 else sXf2} offen{OSC}")
def the_end():
    stamp(11)
    if RT: e(f"s_waitcnt vmcnt(0)\ns_memrealtime s[100:101]\ns_waitcnt lgkmcnt(0)\nv_mov_b32 v0, s100\nbuffer_store_dword v0, off, {sr(SWS,4)}, s{sPo} offset:56")
the_end()
e("Lend:\ns_endpgm")

e("LFkv:")
kv_rest("k")
e("LF:")
if FS and not ES: a_sent(True)
tag_wait("f", 0)
e("s_setprio 0\ns_barrier")
flag_set(sHs, "h", 4)
RG = SP + [aslot(n) for n in range(4)]
def u_dma(m):
    srdw, row = (SWO, 64*m) if m < 8 else (SWD, 64*(m-8))
    return [f"s_add_u32 m0, s{sDm}, {RG[m % 7]}", f"s_add_u32 s{sT0}, s{sDo}, {row*1024}",
            (f"u{m}", f"buffer_load_dwordx4 v{vDa}, {sr(srdw,4)}, s{sT0} offen lds"),
            (f"u{m}", f"buffer_load_dwordx4 v{vDa2}, {sr(srdw,4)}, s{sT0} offen offset:1024 lds")]
def u_reads(m, F):
    a = RG[m % 7]; win = 1 if a >= SP[0] else 0; off = a - win*SP[0]
    r0, r1 = vRd+2*win, vRd+2*win+1
    return tr(F, r0, off) + tr(F+2, r0, off+1024) + tr(F+4, r1, off) + tr(F+6, r1, off+1024)
HR = int(sys.argv[sys.argv.index("--hr")+1]) if "--hr" in sys.argv else 8
def h_loads(s):
    r = []
    if s % 4 == 0: r += [f"s_add_u32 s{sC0}, s{sHo}, {1024*s}", f"s_add_u32 s{sC1}, s{sC0}, {88*1024}"]
    for tt in range(2):
        r.append((f"h{s}", f"buffer_load_dwordx4 {vr(fH+8*(s % HR)+4*tt,4)}, v{vL16}, {sr(SWS,4)}, s{sC0 if tt == 0 else sC1} offen offset:{1024*(s%4)} sc1"))
    return r
for m in range(7): emit_seq(u_dma(m))
for m in range(8):
    e(vwait_s(f"u{m}"))
    for x in u_reads(m, fWo+8*m): e(x)
    e("s_waitcnt lgkmcnt(0)")
    emit_seq(u_dma(m+7))
tstamp(18)
e(flags_issue(sHc))
flags_wait(sHc, "h", 0)
tstamp(19)
for s in range(HR): emit_seq(h_loads(s))
for x in u_reads(8, fWb[0]): e(x)
FB = int(sys.argv[sys.argv.index("--fb")+1]) if "--fb" in sys.argv else 15
for s in range(22):
    m = 8+s; W = fWb[s & 1]
    if s == FB:
        tstamp(20); e("s_barrier\ns_setprio 2"); tstamp(21)
    if s < 21:
        e(vwait_s(f"u{m+1}"))
        for x in u_reads(m+1, fWb[(s+1) & 1]): e(x)
        e("s_waitcnt lgkmcnt(4)")
    else: e("s_waitcnt lgkmcnt(0)")
    if m+7 < 30: emit_seq(u_dma(m+7))
    e(vwait_s(f"h{s}"))
    if s == 21: e(f"s_cmp_ge_u32 s{sW4}, 2\ns_cbranch_scc1 Lskip21")
    for tt in range(2):
        for ch in range(2 if "--nofm" not in sys.argv else 0): e(mfma(fA+32*tt+16*ch, W+4*ch, fH+8*(s % HR)+4*tt, "0" if s == 0 else None))
    if s+HR < 22: emit_seq(h_loads(s+HR))
e("Lskip21:\ns_nop 8")
tstamp(22)
ORD = [7, 6, 5, 4, 3, 2, 1, 0] if M48 else [i ^ (2*JX) for i in [7, 6, 5, 4, 1, 0, 3, 2]]
def o_load(k):
    tt, i = k & 1, k >> 1
    return f"buffer_load_dwordx4 {vr(opos(i)+4*tt,4)}, v{vL16}, {sr(SWS,4)}, s{(sOc, sOc2, sOc3, sOc4)[2*tt+(i>>2)]} offen offset:{1024*(i%4)} sc1"
def opos(i): return fO + 8*ORD.index(i)
zer = [f"v_mov_b64 {vr(fS+r,2)}, 0" for r in range(0, 64, 2)]
for q in range(16):
    e(f"ds_write_b128 v{vRw}, {vr(fA+4*q,4)} offset:{XB*(q//2)+XP*(q%2)}")
    if q >= 4: e(f"s_waitcnt lgkmcnt(4)\n{o_load(2*ORD[(q-4)//2]+(q & 1))}")
e("s_waitcnt lgkmcnt(0)\ns_barrier")
for k in range(12, 16): e(o_load(2*ORD[k//2]+(k & 1)))
tstamp(9)
def o_pair(i, tag, wait):
    B = opos(i)
    if wait is not None: e(f"s_waitcnt vmcnt({wait})")
    else: e(f"s_bitcmp1_b32 s{sSt}, {i}\ns_cbranch_scc0 Lon{tag}{i}")
    e(f"""v_max3_u32 v{vT1}, v{B}, v{B+1}, v{B+2}
    v_max3_u32 v{vT1}, v{vT1}, v{B+3}, v{B+4}
    v_max3_u32 v{vT1}, v{vT1}, v{B+5}, v{B+6}
    v_max_u32 v{vT1}, v{vT1}, v{B+7}
    v_cmp_eq_u32 vcc, s{sT1}, v{vT1}
    s_cbranch_vccnz Lon{tag}{i}
    s_bitset0_b32 s{sSt}, {i}""")
    for tt in range(2):
        for ch in range(2): e(mfma(fS+32*tt+16*ch, fWo+8*i+4*ch, B+4*tt))
    e(f"Lon{tag}{i}:")
def acc_chain(tt, ch): return [mfma(fS+32*tt+16*ch, fWo+8*i+4*ch, opos(i)+4*tt, "0" if n == 0 else None) for n, i in enumerate(ORD)]
def s_wr(tt, ch): return [f"ds_write_b128 v{vRw2+tt}, {vr(fS+32*tt+16*ch+4*q,4)} offset:{XB*(2*ch+q//2)+XP*(q%2)}" for q in range(4)]
e(f"v_mov_b32 v{vT1}, 0")
for n, x in enumerate(acc_chain(0, 0)):
    B = fO+8*n
    e(f"s_waitcnt vmcnt({14-2*n})\n{x}")
    for p in range(0, 8, 2): e(f"v_max3_u32 v{vT1}, v{vT1}, v{B+p}, v{B+p+1}")
e(f"v_cmp_eq_u32 vcc, -1, v{vT1}\ns_cbranch_vccnz Lor0")
c1, c2, c3 = acc_chain(0, 1), acc_chain(1, 0), acc_chain(1, 1)
for prev, c in (((0, 0), c1), ((0, 1), c2), ((1, 0), c3)):
    for x in [c[0], "s_nop 3", c[1], "s_nop 3", c[2]] + interleave(c[3:7], s_wr(*prev)) + c[7:]: e(x)
stamp(7)
e("s_nop 11")
for x in s_wr(1, 1): e(x)
e("Lsd:")
e("s_waitcnt lgkmcnt(0)\ns_barrier")
stamp(10); tflush(); TS.clear()
the_end()
e("s_endpgm")
e(f"Lor0:\ns_nop 8")
for x in zer: e(x)
e(f"s_mov_b32 s{sT0}, 0\ns_mov_b32 s{sSt}, 0xff\ns_mov_b32 s{sT1}, -1\ns_branch Lor2")
e("Lor:\ns_sleep 4")
for i in ORD:
    e(f"s_bitcmp1_b32 s{sSt}, {i}\ns_cbranch_scc0 Lorn{i}\n{o_load(2*i)}\n{o_load(2*i+1)}\nLorn{i}:")
e(f"""s_add_u32 s{sT0}, s{sT0}, 1
s_cmp_ge_u32 s{sT0}, 200000
s_cbranch_scc1 Lod
s_waitcnt vmcnt(0)
Lor2:""")
for i in ORD: o_pair(i, "b", None)
e(f"s_cmp_lg_u32 s{sSt}, 0\ns_cbranch_scc1 Lor\nLod:\ns_nop 6")
for tt in range(2):
    for ch in range(2):
        for x in s_wr(tt, ch): e(x)
e("s_branch Lsd")
for b in range(2):
    S = aS[0]; O = aO[b]; C = aC[b]; Q = aQ[b]
    e(f"""Lfallback{b}:
    s_cmp_lg_u32 s{sRetry}, 0
    s_cbranch_scc1 Lok{b}
    s_mov_b32 s{sRetry}, 1
    s_mov_b32 s{sSt}, 0
    v_mov_b32 v{vT1}, 0xff800000
    s_waitcnt lgkmcnt(0)
    Lfb1{b}:
    buffer_load_dwordx4 {vr(aK[0],4)}, v{vL16}, {sr(SWS,4)}, s{sSt} offen sc1
    s_waitcnt vmcnt(0)""")
    e(mfma(S, aK[0], Q, "0"))
    e("s_nop 11")
    for p in range(0, 16, 2): e(f"v_max3_f32 v{vT1}, v{vT1}, v{S+p}, v{S+p+1}")
    e(f"""s_add_u32 s{sSt}, s{sSt}, {KVT}
    s_cmp_lt_u32 s{sSt}, {64*KVT}
    s_cbranch_scc1 Lfb1{b}
    v_mov_b32 v{vT2}, v{vT1}
    s_nop 1
    v_permlane32_swap_b32 v{vT1}, v{vT2}
    s_nop 1
    v_max_f32 v{vT1}, v{vT1}, v{vT2}""")
    for r in range(16): e(f"v_sub_f32 v{C+r}, 0, v{vT1}")
    for r in range(12): e(f"v_mov_b32 v{O+r}, 0")
    e(f"""v_subrev_u32 v{vT0}, {64*KVT}, v{vAv}
    s_mov_b32 s{sSt}, 0
    Lfb2{b}:
    buffer_load_dwordx4 {vr(aK[0],4)}, v{vL16}, {sr(SWS,4)}, s{sSt} offen sc1
    buffer_load_dwordx4 {vr(aVl[0],4)}, v{vT0}, {sr(SWS,4)}, s{sSt} offen sc1
    buffer_load_dwordx4 {vr(aVh[0],4)}, v{vT0}, {sr(SWS,4)}, s{sSt} offen offset:528 sc1
    s_waitcnt vmcnt(0)""")
    e(mfma(S, aK[0], Q, vr(C, 16)))
    e("s_nop 11")
    for i in range(16): e(f"v_exp_f32 v{S+i}, v{S+i}")
    e("s_nop 1")
    e(smf(O, aVl[0], S, vIdx)); e(smf(O, aVh[0], S+8, vIdx))
    e(f"""s_add_u32 s{sSt}, s{sSt}, {KVT}
    s_cmp_lt_u32 s{sSt}, {64*KVT}
    s_cbranch_scc1 Lfb2{b}
    s_nop 9
    s_branch Lfin{b}""")
e("Lcodeend:")

L += ['.section .rodata,"a"', ".p2align 6", f".amdhsa_kernel {NAME}_kernel",
      "  .amdhsa_next_free_vgpr 256", "  .amdhsa_next_free_sgpr 102", "  .amdhsa_accum_offset 256",
      "  .amdhsa_group_segment_fixed_size 0", "  .amdhsa_kernarg_size 96", "  .amdhsa_user_sgpr_count 2",
      "  .amdhsa_user_sgpr_kernarg_segment_ptr 1", "  .amdhsa_system_sgpr_workgroup_id_x 1", ".end_amdhsa_kernel"]
open(OUT, "w").write("\n".join(L) + "\n")
print("wrote", OUT, len(L), "lines")
```

```python
import sys, struct
NAME = "recurrent_scan__grouped_kv_mqa__geglu_ffn__prompt"
PROF = "--prof" in sys.argv
OUT = [a for a in sys.argv[1:2] if not a.startswith("--")]
OUT = OUT[0] if OUT else f"cdna_kernels/{NAME}.s"

L = []
def e(s):
    for ln in s.split("\n"):
        if not ln.strip(): continue
        L.append(("    " + ln.strip()) if not ln.strip().endswith(":") else ln.strip())
def f2u(x): return struct.unpack("<I", struct.pack("<f", x))[0]
def vr(a, n): return f"v[{a}:{a+n-1}]"
def sr(a, n): return f"s[{a}:{a+n-1}]"

KVT = 2080
KVIMG = 0
HIMG = 135168
OIMG = HIMG + 64*88*1024
HFLG = OIMG + 64*32*1024
KFLG = HFLG + 256*128
STATG = KFLG + 16*128
CSG = STATG + 2048*16
PROFO = CSG + 64*2048
WS_BYTES = PROFO + 256*8*256
CNT_KV = 0
KVRDY = 128
STG = 45056
XOFF, GOFF, UOFF, QOFF = 0, 16384, 28672, 40960
STGK, QOFFK, NBK = 24832, 20736, 5
QIMG = 135168
STATM = 160768
CSUM = 162816
MRX = 159744
STL = 163712
KFL = 163776
LDS_BYTES = 163840
SX, SWQ, SWK, SWV, SWO, SWG, SWD, SOUT, SDBG, SWS = 4, 8, 12, 16, 20, 24, 28, 32, 36, 40
sI, sJ, sW, sW4 = 44, 45, 46, 47
sXo, sWo, sQo, sLb = 48, 49, 50, 51
sMx, sMw, sMq = 52, 53, 54
sSt, sDl, sT0, sT1, sT2, sT3 = 55, 56, 57, 58, 59, 60
sTB, sCS, sRetry, sRb = 61, 62, 63, 3
sEx = 88
sTm = 90
sPo = 92
sC0, sC1, sC2, sC3 = 94, 95, 96, 97
sOp = 98
TOUCH = int("--touch" in sys.argv)
vLane, vH, vT0, vT1, vT2, vT3 = 1, 2, 3, 4, 5, 6
vXa0, vXa1, vWa0, vWa1, vWa2, vQa = 7, 8, 9, 10, 11, 12
vRX = 13
vRW, vRQ = 17, 18
vSel = 20
vCs = 24
vF = 32
vAcc = 96
vSt = 160
aQ = [8, 12]; aK = [16, 20]; aVl = [24, 28]; aVh = [32, 36]; aS = [40, 56]; aC = [72, 88]; aO = [104, 120]
fA, fWo, fWb, fH, fX, fG = 8, 72, [136, 144], 152, 200, 204
fS, fO, fR = 136, 8, 8
vIdx, vAk, vAv, vDa, vL16, vRa = 240, 241, 242, 243, 244, 245
vPoll = 246
vRd = 248
vRw, vRr, vRr2, vDa2 = 252, 253, 254, 255
vRw2 = 238
vAq = 237
sKq, sTt, sHo, sDo, sDm, sHc, sXf, sOc, sOc2, sHs = 64, 65, 66, 67, 68, 69, 70, 71, 72, 73
sOc3, sOc4, sOp2 = 80, 81, 99
sXf2 = 64
sNo = 86
sRow, sKf = 63, 85
ASL = 8320
XB, XK, XP = 8512, 2112, 1056
XF0, XS0, XS1 = 34048, 0, 102144
def aslot(n): return ASL*n
SP = [135168, 143360, 151552]

nstamp = [0]
DBGT = "--dbgt" in sys.argv
DT = {0: 75, 12: 76, 1: 77, 2: 78, 3: 79, 6: 80, 9: 81, 7: 82, 11: 83}
PAD = (int(sys.argv[sys.argv.index("--pad")+1]), int(sys.argv[sys.argv.index("--pad")+2])) if "--pad" in sys.argv else None
npad = [0]
PADB = sNo if "--padg" in sys.argv else 100
def stamp(k):
    if PAD and PAD[0] == k:
        npad[0] += 1
        e(f"Lpad{npad[0]}:\ns_memrealtime s[{sTm}:{sTm+1}]\ns_waitcnt lgkmcnt(0)\ns_sub_u32 s{sTm}, s{sTm}, s{PADB}\ns_sleep 8\ns_cmp_lt_u32 s{sTm}, {PAD[1]}\ns_cbranch_scc1 Lpad{npad[0]}")
    if DBGT and k in DT:
        e(f"s_memrealtime s[{sTm}:{sTm+1}]\ns_waitcnt lgkmcnt(0)\ns_sub_u32 s{DT[k]}, s{sTm}, s100")
        if k == 11:
            e(f"s_memtime s[{sTm}:{sTm+1}]\ns_waitcnt lgkmcnt(0)\ns_sub_u32 s84, s{sTm}, s92")
            e(f"s_cmp_lg_u32 s2, 64\ns_cbranch_scc1 Lend\ns_cmp_lg_u32 s{sW}, 4\ns_cbranch_scc1 Lend")
            for n, r in enumerate(range(75, 85)):
                e(f"v_mov_b32 v0, s{r}\nbuffer_store_dword v0, off, {sr(SDBG,4)}, 0 offset:{4+4*n}\ns_nop 1")
    if not PROF: return
    e(f"""s_memtime s[{sTm}:{sTm+1}]
    s_waitcnt lgkmcnt(0)
    v_mov_b32 v0, s{sTm}
    buffer_store_dword v0, off, {sr(SWS,4)}, s{sPo} offset:{4*k}""")
    if k in RTS:
        e(f"""s_memrealtime s[{sTm}:{sTm+1}]
        s_waitcnt lgkmcnt(0)
        v_mov_b32 v0, s{sTm}
        buffer_store_dword v0, off, {sr(SWS,4)}, s{sPo} offset:{4*RTS[k]}""")
RTS = {12: 24, 1: 25, 5: 26, 6: 27, 11: 28}

TS = []
def tstamp(k):
    if not PROF: return
    r = 74 + len(TS); TS.append((k, r))
    e(f"s_memtime s[{sTm}:{sTm+1}]\ns_waitcnt lgkmcnt(0)\ns_mov_b32 s{r}, s{sTm}")
def tflush():
    for k, r in TS: e(f"v_mov_b32 v0, s{r}\nbuffer_store_dword v0, off, {sr(SWS,4)}, s{sPo} offset:{4*k}\ns_nop 1")
def tick(acc):
    if not PROF or "--notick" in sys.argv: return ""
    r = f"s_memtime s[{sTm}:{sTm+1}]\ns_waitcnt lgkmcnt(0)\n"
    if acc is not None: r += f"s_sub_u32 s99, s{sTm}, s99\ns_add_u32 s{acc}, s{acc}, s99\n"
    return r + f"s_mov_b32 s99, s{sTm}"

def interleave(main, fill):
    out = []; n = len(main); m = len(fill); k = 0
    for i, a in enumerate(main):
        out.append(a)
        t = (m * (i + 1)) // n
        out += fill[k:t]; k = t
    return out

def mfma(d, a, b, c=None):
    c = vr(d, 16) if c is None else c
    return f"v_mfma_f32_32x32x16_bf16 {vr(d,16)}, {vr(a,4)}, {vr(b,4)}, {c}"
def mfma16(d, a, b): return f"v_mfma_f32_16x16x32_bf16 {vr(d,4)}, {vr(a,4)}, {vr(b,4)}, {vr(d,4)}"
def smf(d, a, b, idx): return f"v_smfmac_f32_32x32x32_bf16 {vr(d,16)}, {vr(a,4)}, {vr(b,8)}, v{idx}"

TK = PROF and "--tk" in sys.argv
def tk(acc):
    if not TK: return ""
    r = f"s_memtime s[{sTm}:{sTm+1}]\ns_waitcnt lgkmcnt(0)\n"
    if acc is not None: r += f"s_sub_u32 s82, s{sTm}, s82\ns_add_u32 s{acc}, s{acc}, s82\n"
    return r + f"s_mov_b32 s82, s{sTm}"
def tkout():
    if TK: e(f"v_mov_b32 v0, s80\nbuffer_store_dword v0, off, {sr(SWS,4)}, s{sPo} offset:{4*29}\ns_nop 1\nv_mov_b32 v0, s81\nbuffer_store_dword v0, off, {sr(SWS,4)}, s{sPo} offset:{4*30}")
def tr(d, a, off): return [f"ds_read_b64_tr_b16 {vr(d,2)}, v{a} offset:{off}"]
def tag_issue(): return f"buffer_load_dwordx2 {vr(vPoll,2)}, off, {sr(SDBG,4)}, 0 sc1"
def tag_wait(tag, first_wait, early=False):
    chk = f"""s_memrealtime s[{sTm}:{sTm+1}]
    s_waitcnt lgkmcnt(0)
    s_sub_u32 s{sTm}, s{sTm}, s{sNo}
    s_add_u32 s{sTm}, s{sTm}, 200
    s_cmp_lt_u32 s{sTm}, 2000
    s_cselect_b32 s{sTm}, 99, s{sT0}
    s_cmp_lt_u32 s{sTm}, 40
    s_cbranch_scc1 Ltagr_{tag}""" if early else ""
    e(f"""s_mov_b32 s{sT0}, 0
    s_waitcnt vmcnt({first_wait})
    Ltag_{tag}:
    v_readfirstlane_b32 s{sNo}, v{vPoll}
    v_readfirstlane_b32 s{sNo+1}, v{vPoll+1}
    s_add_u32 s{sT0}, s{sT0}, 1
    {chk}
    s_cmp_lg_u32 s{sNo}, 0
    s_cbranch_scc1 Ltagd_{tag}
    s_cmp_ge_u32 s{sT0}, 100000
    s_cbranch_scc1 Ltagd_{tag}
    Ltagr_{tag}:
    s_sleep 1
    {tag_issue()}
    s_waitcnt vmcnt(0)
    s_branch Ltag_{tag}
    Ltagd_{tag}:""")
def flags_issue(base):
    return f"""v_and_b32 v{vPoll}, 15, v{vLane}
    v_lshlrev_b32 v{vPoll}, 7, v{vPoll}
    buffer_load_dwordx2 {vr(vPoll,2)}, v{vPoll}, {sr(SWS,4)}, s{base} offen sc1"""
def h_poll_issue(): return flags_issue(sHc)
def flags_wait(base, tag, first_wait):
    e(f"""s_mov_b32 s{sT0}, 0
    s_waitcnt vmcnt({first_wait})
    Lfw_{tag}:
    v_cmp_ne_u64 vcc, s[{sNo}:{sNo+1}], {vr(vPoll,2)}
    s_add_u32 s{sT0}, s{sT0}, 1
    s_cmp_ge_u32 s{sT0}, 100000
    s_cbranch_vccz Lfwd_{tag}
    s_cbranch_scc1 Lfwd_{tag}
    s_sleep 3
    {flags_issue(base)}
    s_waitcnt vmcnt(0)
    s_branch Lfw_{tag}
    Lfwd_{tag}:""")
def flag_set(off_sreg, tag, wave=0):
    e(f"""s_cmp_lg_u32 s{sW}, {wave}
    s_cbranch_scc1 Lsig_{tag}
    v_mov_b32 v{vPoll}, s{sNo}
    v_mov_b32 v{vPoll+1}, s{sNo+1}
    s_mov_b64 exec, 1
    buffer_store_dwordx2 {vr(vPoll,2)}, off, {sr(SWS,4)}, s{off_sreg} sc1
    s_mov_b64 exec, -1
    Lsig_{tag}:""")

hdr = open(f"cdna_kernels/{NAME}.s.ref").read().split("\n")
hdr = [h for h in hdr[:15] if h.startswith(";") and "@launch" not in h]
L += hdr
L.append(f"; @launch grid=(256,1,1) block=(512,1,1) lds={LDS_BYTES}")
L += """;
; One persistent launch, 256 workgroups (one per CU) x 8 waves; written with a generator script.
;  workgroup (i, j): 128-token row block i, column group j (2 heads of Q, 96 gate/up columns); j = 15 makes K/V instead.
;  P1  x @ [wq | w_gate | w_up]: waves 4-7 MFMA (16x16x32), waves 0-3 LDS-DMA; LayerNorm folded into the epilogue
;      (row mean / rstd and weight column sums are computed once and exchanged through d_ws).
;  P2  waves 0-3: attention, S^T = K Q^T - m (m = row max of the first key tile, as the MFMA C operand), exp2, and
;      P V plus the row sum by the sparse MFMA straight from the f32 registers; a run-time check of the row sum and of
;      the accumulators falls back to the true row max.  waves 4-7: GELU gate, down projection, output projection.
;  P3  out = x + s * silu(f) on a 64x64 tile per workgroup.
;  Hand-offs: write-through stores + sc1 loads; flags carry a per-launch tag published in d_debug; the attention
;  output is pre-filled with a sentinel.  Every wait is bounded.""".split("\n")
L += ['.amdgcn_target "amdgcn-amd-amdhsa--gfx950"', ".text", f".globl {NAME}_kernel", ".p2align 8",
      f".type {NAME}_kernel,@function"]
e(f"{NAME}_kernel:")
RT = PROF
if RT: e("s_memrealtime s[100:101]\ns_memtime s[98:99]")
if DBGT or PAD: e("s_memrealtime s[100:101]\ns_memtime s[92:93]")
MAP84 = f"""s_and_b32 s{sI}, s{sT0}, 1
s_lshl_b32 s{sI}, s{sI}, 3
s_and_b32 s{sT2}, s{sT1}, 7
s_add_u32 s{sI}, s{sI}, s{sT2}
s_lshr_b32 s{sJ}, s{sT0}, 1
s_lshl_b32 s{sJ}, s{sJ}, 2
s_lshr_b32 s{sT3}, s{sT1}, 3
s_add_u32 s{sJ}, s{sJ}, s{sT3}
s_sub_u32 s{sJ}, 15, s{sJ}
s_and_b32 s{sTB}, s{sT0}, 3
s_lshl_b32 s{sTB}, s{sTB}, 3
s_add_u32 s{sTB}, s{sTB}, s{sT2}
s_lshr_b32 s{sCS}, s{sT0}, 2
s_lshl_b32 s{sCS}, s{sCS}, 2
s_add_u32 s{sCS}, s{sCS}, s{sT3}"""
MAP48 = f"""s_lshr_b32 s{sT2}, s{sT0}, 1
s_lshl_b32 s{sI}, s{sT2}, 2
s_and_b32 s{sT3}, s{sT1}, 3
s_add_u32 s{sI}, s{sI}, s{sT3}
s_lshl_b32 s{sTB}, s{sT2}, 3
s_and_b32 s{sT3}, s{sT1}, 7
s_add_u32 s{sTB}, s{sTB}, s{sT3}
s_and_b32 s{sT0}, s{sT0}, 1
s_lshl_b32 s{sJ}, s{sT0}, 3
s_lshr_b32 s{sT3}, s{sT1}, 2
s_add_u32 s{sJ}, s{sJ}, s{sT3}
s_sub_u32 s{sJ}, 15, s{sJ}
s_lshl_b32 s{sCS}, s{sT0}, 2
s_lshr_b32 s{sT3}, s{sT1}, 3
s_add_u32 s{sCS}, s{sCS}, s{sT3}"""
JX = int(sys.argv[sys.argv.index("--jx")+1]) if "--jx" in sys.argv else 0
if JX: MAP84 = MAP84.replace(f"s_lshr_b32 s{sJ}, s{sT0}, 1\n", f"s_lshr_b32 s{sJ}, s{sT0}, 1\ns_xor_b32 s{sJ}, s{sJ}, {JX}\n")
M48 = "--m48" in sys.argv
MAP = MAP48 if M48 else MAP84
PFC = "" if "--nopfc" in sys.argv else f"""s_cmp_lg_u32 s{sW}, 7
s_cbranch_scc1 Lnop0
s_getpc_b64 s[94:95]
Lpc0:
s_bfe_u32 s{sT0}, s2, 0x20003
s_lshl_b32 s{sT0}, s{sT0}, 13
v_lshl_add_u32 v{vT1}, v{vLane}, 7, s{sT0}
v_min_u32 v{vT1}, Lcodeend-Lpc0-4, v{vT1}
global_load_dword v223, v{vT1}, s[94:95]"""
e(f"""s_cmp_ge_u32 s2, 256
s_cbranch_scc1 Lend
s_load_dwordx2 s[{SX}:{SX+1}], s[0:1], 0
s_load_dwordx2 s[{SWG}:{SWG+1}], s[0:1], 48
s_load_dwordx2 s[{SWQ}:{SWQ+1}], s[0:1], 8
s_load_dwordx2 s[{SWV}:{SWV+1}], s[0:1], 24
s_load_dwordx2 s[{SDBG}:{SDBG+1}], s[0:1], 80
s_load_dwordx2 s[{SWS}:{SWS+1}], s[0:1], 88
v_and_b32 v{vLane}, 63, v0
v_lshrrev_b32 v{vT0}, 6, v0
v_lshrrev_b32 v{vH}, 5, v{vLane}
v_readfirstlane_b32 s{sW}, v{vT0}
{PFC}
Lnop0:
s_and_b32 s{sT0}, s2, 7
s_lshr_b32 s{sT1}, s2, 3
{MAP}
s_and_b32 s{sW4}, s{sW}, 3
v_lshrrev_b32 v{vT0}, 3, v{vLane}
v_lshlrev_b32 v{vT0}, 10, v{vT0}
v_and_b32 v{vT1}, 7, v{vLane}
v_lshrrev_b32 v{vT2}, 4, v{vLane}
v_xor_b32 v{vT1}, v{vT1}, v{vT2}
v_lshl_add_u32 v{vXa0}, v{vT1}, 4, v{vT0}
v_xor_b32 v{vXa1}, 64, v{vXa0}
v_add_u32 v{vXa1}, {8192-1024}, v{vXa1}
v_lshlrev_b32 v{vL16}, 4, v{vLane}
s_lshl_b32 s{sXo}, s{sI}, 17
s_lshl_b32 s{sT0}, s{sW4}, 15
s_add_u32 s{sXo}, s{sXo}, s{sT0}
s_lshl_b32 s{sRow}, s{sI}, 4
s_add_u32 s{sRow}, s{sRow}, s{sJ}
s_lshl_b32 s{sRow}, s{sRow}, 2
s_add_u32 s{sRow}, s{sRow}, s{sW4}
s_cmp_eq_u32 s{sJ}, 15
s_cselect_b32 s{sT0}, 16, 56
s_load_dwordx2 s[{SWK}:{SWK+1}], s[0:1], s{sT0}
s_mov_b32 s{sT1}, {512*2752}
s_cselect_b32 s{SWK+2}, 16384, s{sT1}
s_mov_b32 s{SWK+3}, 0x20000""")
SWU = SWK
vRs = 144
for d, nbytes in ((SX, 2048*1024), (SWG, 512*2752), (SWQ, 512*1024), (SWV, 16384), (SDBG, 256), (SWS, WS_BYTES)):
    e(f"s_mov_b32 s{d+2}, {nbytes}\ns_mov_b32 s{d+3}, 0x20000")
def late_srd(lst):
    for d, off, nbytes in lst:
        e(f"s_load_dwordx2 s[{d}:{d+1}], s[0:1], {off}\ns_mov_b32 s{d+2}, {nbytes}\ns_mov_b32 s{d+3}, 0x20000")
LS_A = [(SOUT, 72, 2048*1024)]; LS_F = [(SWO, 32, 512*1024), (SWD, 64, 1376*1024)]
def entry_stamp(defer=False):
    if PROF:
        e(f"s_lshl_b32 s{sPo}, s2, 3\ns_add_u32 s{sPo}, s{sPo}, s{sW}\ns_lshl_b32 s{sPo}, s{sPo}, 8\ns_add_u32 s{sPo}, s{sPo}, {PROFO}")
    if defer: tstamp(0); return
    stamp(0); rt_out()
def rt_out():
    if RT: e(f"s_nop 1\nv_mov_b32 v0, s100\nbuffer_store_dword v0, off, {sr(SWS,4)}, s{sPo} offset:60\ns_nop 1\nv_mov_b32 v0, s98\nbuffer_store_dword v0, off, {sr(SWS,4)}, s{sPo} offset:16")
def row_loads():
    e(f"""s_lshl_b32 s{sT1}, s{sRow}, 11
    buffer_load_dwordx4 {vr(vRs,4)}, v{vL16}, {sr(SX,4)}, s{sT1} offen
    buffer_load_dwordx4 {vr(vRs+4,4)}, v{vL16}, {sr(SX,4)}, s{sT1} offen offset:1024""")
WKV = 131072
vXf, vWk = 32, 192
sXb = sMw
def kvx_dma(c):
    return [f"""s_add_u32 m0, s{sXb}, {4096*c+2048*hf}
        s_add_u32 s{sT0}, s{sXo}, {128*c+16384*hf}
        buffer_load_dwordx4 v{vXa0}, {sr(SX,4)}, s{sT0} offen lds
        buffer_load_dwordx4 v{vXa1}, {sr(SX,4)}, s{sT0} offen offset:1024 lds""" for hf in range(2)]
e(f"""s_cselect_b32 s{sT2}, 1, 0
s_cmp_lt_u32 s{sW}, 4
s_cbranch_scc1 Lnorow
s_waitcnt lgkmcnt(0)""")
row_loads()
e(f"""s_cmp_eq_u32 s{sJ}, 15
s_cbranch_scc0 Lcomp
Lnorow:
s_cmp_eq_u32 s{sJ}, 15
s_cbranch_scc0 Lhelp
s_memrealtime s[{sTm}:{sTm+1}]
s_lshl_b32 s{sXb}, s{sW}, 14
s_lshr_b32 s{sT3}, s{sW}, 2
s_lshl_b32 s{sT0}, s{sT3}, 9
s_add_u32 s{sXo}, s{sXo}, s{sT0}
s_or_b32 s{sT0}, s2, s{sW}
s_cmp_lg_u32 s{sT0}, 0
s_waitcnt lgkmcnt(0)
s_cbranch_scc1 Lnotag
s_or_b32 s{sTm}, s{sTm}, 1
v_mov_b32 v{vPoll}, s{sTm}
v_mov_b32 v{vPoll+1}, s{sTm+1}
s_mov_b64 exec, 1
buffer_store_dwordx2 {vr(vPoll,2)}, off, {sr(SDBG,4)}, 0 sc1
s_mov_b64 exec, -1
Lnotag:
s_lshl_b32 s{sT0}, s{sW}, 11
s_add_u32 m0, s{sT0}, {WKV}
s_nop 0
buffer_load_dwordx4 v{vL16}, {sr(SWV,4)}, s{sT0} offen lds
buffer_load_dwordx4 v{vL16}, {sr(SWV,4)}, s{sT0} offen offset:1024 lds
s_add_u32 m0, s{sT0}, {WKV+16384}
s_nop 0
buffer_load_dwordx4 v{vL16}, {sr(SWK,4)}, s{sT0} offen lds
buffer_load_dwordx4 v{vL16}, {sr(SWK,4)}, s{sT0} offen offset:1024 lds""")
for x in kvx_dma(0): e(x)
e("s_branch Lkvcu\nLhelp:")

def v_lane_addr(d):
    e(f"""v_and_b32 v{d}, 15, v{vLane}
    v_lshlrev_b32 v{d}, 4, v{d}
    v_lshl_add_u32 v{d}, v{vH}, 8, v{d}
    s_mov_b32 exec_lo, 0xffff0000
    s_mov_b32 exec_hi, 0xffff0000
    v_mov_b32 v{d}, 512""")
def fin_init():
    e(f"""s_lshl_b32 s{sT0}, s{sTB}, 16
    s_lshl_b32 s{sT1}, s{sCS}, 7
    s_add_u32 s{sT0}, s{sT0}, s{sT1}
    s_lshl_b32 s{sT1}, s{sW4}, 14
    s_add_u32 s{sXf}, s{sT0}, s{sT1}
    s_add_u32 s{sXf2}, s{sXf}, 8192
    v_lshrrev_b32 v{vT0}, 3, v{vLane}
    v_and_b32 v{vT1}, 7, v{vLane}
    v_lshlrev_b32 v{vRa}, 10, v{vT0}
    v_lshl_add_u32 v{vRa}, v{vT1}, 4, v{vRa}
    v_bfe_u32 v{vT1}, v{vLane}, 1, 2
    v_mul_u32_u24 v{vT1}, {XB}, v{vT1}
    v_lshl_add_u32 v{vT0}, v{vT0}, 4, v{vT1}
    v_and_b32 v{vT1}, 1, v{vLane}
    v_mul_u32_u24 v{vT1}, {XP}, v{vT1}
    s_and_b32 s{sT0}, s{sW4}, 1
    s_lshl_b32 s{sT0}, s{sT0}, 8
    v_add3_u32 v{vT0}, v{vT0}, v{vT1}, s{sT0}
    s_lshr_b32 s{sT0}, s{sW4}, 1
    s_mul_i32 s{sT1}, s{sT0}, {4*XB}
    s_add_u32 s{sT1}, s{sT1}, {XF0}
    v_add_u32 v{vRr}, s{sT1}, v{vT0}
    s_mul_i32 s{sT1}, s{sT0}, {XS1}
    v_add_u32 v{vRr2}, s{sT1}, v{vT0}""")
FS = "--asent" not in sys.argv
def a_init():
    a_sent(); a_addr()
def a_sent(store=False):
    e(f"""s_lshl_b32 s{sT0}, s{sI}, 2
    s_add_u32 s{sT0}, s{sT0}, s{sW4}
    s_lshl_b32 s{sT0}, s{sT0}, 5
    s_lshr_b32 s{sT1}, s{sJ}, 1
    s_add_u32 s{sT0}, s{sT0}, s{sT1}
    s_and_b32 s{sT1}, s{sJ}, 1
    s_lshl_b32 s{sT1}, s{sT1}, 4
    s_add_u32 s{sT0}, s{sT0}, s{sT1}
    s_lshl_b32 s{sT0}, s{sT0}, 10
    s_add_u32 s{sOp}, s{sT0}, {OIMG}
    s_add_u32 s{sOp2}, s{sOp}, 8192""")
    if not FS or store: e(f"""v_mov_b64 v[232:233], -1
    v_mov_b64 v[234:235], -1
    buffer_store_dwordx4 v[232:235], v{vL16}, {sr(SWS,4)}, s{sOp} offen sc1
    buffer_store_dwordx4 v[232:235], v{vL16}, {sr(SWS,4)}, s{sOp2} offen sc1""")
    if store: return
def a_addr(zero=True):
    v_lane_addr(vAv)
    e(f"""s_mov_b32 exec_lo, 0xffee0000
    s_mov_b32 exec_hi, 0xffee0000
    v_mov_b32 v{vAv}, 0x4000000
    s_mov_b64 exec, -1
    v_add_u32 v{vAv}, 1024, v{vAv}
    v_mov_b32 v{vAk}, v{vL16}
    v_mov_b32 v{vIdx}, 0xdddd
    s_lshl_b32 s{sT0}, s{sW4}, 11
    s_add_u32 s{sT0}, s{sT0}, {QIMG}
    v_add_u32 v{vAq}, s{sT0}, v{vL16}""")
    if zero: a_zero()
def a_zero():
    for b in range(2):
        for r in range(0, 12, 2): e(f"v_mov_b64 {vr(aO[b]+r,2)}, 0")
def f_init():
    e(f"""v_lshrrev_b32 v{vT0}, 3, v{vLane}
    v_lshlrev_b32 v{vT0}, 10, v{vT0}
    v_and_b32 v{vT1}, 7, v{vLane}
    v_bfe_u32 v{vT2}, v{vLane}, 4, 1
    v_lshlrev_b32 v{vT2}, 2, v{vT2}
    v_xor_b32 v{vT1}, v{vT1}, v{vT2}
    v_lshl_add_u32 v{vDa}, v{vT1}, 4, v{vT0}
    v_add_u32 v{vDa2}, {8192-1024}, v{vDa}
    s_lshl_b32 s{sDo}, s{sW4}, 14
    s_lshl_b32 s{sT1}, s{sCS}, 7
    s_add_u32 s{sDo}, s{sDo}, s{sT1}
    s_lshl_b32 s{sDm}, s{sW4}, 11
    s_mul_i32 s{sHo}, s{sTB}, 176
    s_mul_i32 s{sT0}, s{sW4}, 22
    s_add_u32 s{sHo}, s{sHo}, s{sT0}
    s_lshl_b32 s{sHo}, s{sHo}, 10
    s_add_u32 s{sHo}, s{sHo}, {HIMG}
    s_lshl_b32 s{sT0}, s{sTB}, 3
    s_add_u32 s{sT0}, s{sT0}, s{sW4}
    s_lshl_b32 s{sT0}, s{sT0}, 13
    s_add_u32 s{sOc}, s{sT0}, {OIMG}
    s_add_u32 s{sOc2}, s{sOc}, 4096
    s_add_u32 s{sOc3}, s{sOc}, 32768
    s_add_u32 s{sOc4}, s{sOc}, {32768+4096}
    s_lshr_b32 s{sHc}, s{sTB}, 1
    s_lshl_b32 s{sHc}, s{sHc}, 11
    s_add_u32 s{sHc}, s{sHc}, {HFLG}
    s_lshl_b32 s{sHs}, s{sI}, 4
    s_add_u32 s{sHs}, s{sHs}, s{sJ}
    s_lshl_b32 s{sHs}, s{sHs}, 7
    s_add_u32 s{sHs}, s{sHs}, {HFLG}
    v_bfe_u32 v{vT0}, v{vLane}, 2, 2
    v_lshl_add_u32 v{vT0}, v{vH}, 2, v{vT0}
    v_lshlrev_b32 v{vT0}, 7, v{vT0}
    v_bfe_u32 v{vT1}, v{vLane}, 4, 1
    v_lshl_add_u32 v{vT0}, v{vT1}, 5, v{vT0}
    v_and_b32 v{vT1}, 3, v{vLane}
    v_lshl_add_u32 v{vT0}, v{vT1}, 3, v{vT0}
    v_bfe_u32 v{vT1}, v{vLane}, 3, 1
    v_lshl_add_u32 v{vT0}, v{vT1}, 6, v{vT0}
    v_add_u32 v{vRd}, s{sDm}, v{vT0}
    v_xor_b32 v{vRd+1}, 64, v{vRd}
    v_add_u32 v{vRd+2}, {SP[0]}, v{vRd}
    v_add_u32 v{vRd+3}, {SP[0]}, v{vRd+1}
    s_mul_i32 s{sT0}, s{sW4}, {XK}
    v_add_u32 v{vRw2}, s{sT0}, v{vL16}
    v_add_u32 v{vRw}, {XF0}, v{vRw2}
    v_add_u32 v{vRw2+1}, {XS1}, v{vRw2}""")
def kv_rest(tag):
    e(f"s_setprio 0\ns_lshl_b32 s{sT1}, s{sW4}, 12")
    for n in range(6):
        e(f"s_add_u32 s{sT0}, s{sT1}, {36*1024+16384*n}\ns_mov_b32 m0, s{sT0}\ns_nop 0")
        for k in range(4): e(f"buffer_load_dwordx4 v{vL16}, {sr(SWS,4)}, s{sT0} offen offset:{1024*k} sc1 lds")
    e(tag_issue())
    e("s_setprio 2")

def spread(m, fill):
    w = [16 if "16x16" in x else 32 for x in m]
    tot = sum(c for c, _ in fill); W = sum(w)
    out = []; k = 0; acc = 0; cw = 0
    for x, wx in zip(m, w):
        out.append(x); cw += wx
        while k < len(fill) and (acc + fill[k][0]/2) * W <= tot * cw:
            out.append(fill[k][1]); acc += fill[k][0]; k += 1
    out += [t for _, t in fill[k:]]
    return out


C1 = -2*0.7978845608028654*1.4426950408889634
C3 = C1*0.044715
def gelu_consts(m, r, d):
    e(f"""v_sub_f32 v{d}, 0, v{m}
    v_mul_f32 v{d+3}, v{r}, v{r}
    v_mul_f32 v{d+1}, {f2u(C1):#x}, v{r}
    v_mul_f32 v{d+2}, {f2u(C3):#x}, v{r}
    v_mul_f32 v{d+2}, v{d+2}, v{d+3}
    v_rcp_f32 v{d+3}, v{d+3}""")
def bc(reg, pos, n):
    base = reg & ~1
    return vr(base, 2), reg & 1
def pk(op, d, srcs, neg=None):
    ops = []; lo = []; hi = []
    for t, r in srcs:
        if t == 'p': ops.append(vr(r, 2)); lo.append(0); hi.append(1)
        else: ops.append(vr(r & ~1, 2)); lo.append(r & 1); hi.append(r & 1)
    return f"{op} {vr(d,2)}, {', '.join(ops)} op_sel:[{','.join(map(str,lo))}] op_sel_hi:[{','.join(map(str,hi))}]"
def gelu_tile(g, u, csg, csu, k, tmp, n=16, dst=None):
    for p in range(0, n, 2):
        e(pk("v_pk_fma_f32", g+p, [('b', k), ('p', csg+p), ('p', g+p)]))
        e(pk("v_pk_fma_f32", u+p, [('b', k), ('p', csu+p), ('p', u+p)]))
    for p in range(0, n, 2):
        e(pk("v_pk_mul_f32", tmp+p, [('p', g+p), ('p', g+p)]))
    for p in range(0, n, 2):
        e(pk("v_pk_fma_f32", tmp+p, [('p', tmp+p), ('b', k+2), ('b', k+1)]))
    for p in range(0, n, 2):
        e(pk("v_pk_mul_f32", tmp+p, [('p', tmp+p), ('p', g+p)]))
    for p in range(n): e(f"v_exp_f32 v{tmp+p}, v{tmp+p}")
    for p in range(0, n, 2):
        e(pk("v_pk_mul_f32", u+p, [('p', u+p), ('p', g+p)]))
    for p in range(0, n, 2):
        e(pk("v_pk_fma_f32", tmp+p, [('p', tmp+p), ('b', k+3), ('b', k+3)]))
    for p in range(n): e(f"v_rcp_f32 v{tmp+p}, v{tmp+p}")
    e("s_nop 0")
    for p in range(0, n, 2):
        e(pk("v_pk_mul_f32", u+p, [('p', u+p), ('p', tmp+p)]))
    for p in range(n//2): e(f"v_cvt_pk_bf16_f32 v{dst[p] if dst else g+p}, v{u+2*p}, v{u+2*p+1}")

def cs_read(d, slot_off):
    for q in range(4): e(f"ds_read_b128 {vr(d+4*q,4)}, v{vT3} offset:{slot_off+32*q}")

def lin_fold(acc, cs, negm, scale, n=16):
    for p in range(0, n, 2):
        e(pk("v_pk_fma_f32", acc+p, [('b', negm), ('p', cs+p), ('p', acc+p)]))
    for p in range(0, n, 2):
        e(pk("v_pk_mul_f32", acc+p, [('p', acc+p), ('b', scale)]))

def q_epilogue(cs):
    e(f"v_mul_f32 v{vSt+2}, {f2u(0.25*1.4426950408889634):#x}, v{vSt+1}")
    lin_fold(vAcc, cs, vSt+4, vSt+2)
    for p in range(8): e(f"v_cvt_pk_bf16_f32 v{vAcc+p}, v{vAcc+2*p}, v{vAcc+2*p+1}")
    e(f"""s_lshl_b32 s{sT0}, s{sW4}, 11
    s_add_u32 s{sT0}, s{sT0}, {QIMG}
    v_lshl_add_u32 v{vT0}, v{vLane}, 4, s{sT0}
    ds_write_b128 v{vT0}, {vr(vAcc,4)}
    ds_write_b128 v{vT0}, {vr(vAcc+4,4)} offset:1024""")


def rowstat_finish():
    a = vRs+8
    e(f"v_mov_b32 v{vT0}, 0x3f803f80")
    for k in range(4):
        for r in range(2):
            x = vRs+4*r+k
            c0 = "0" if k == 0 else f"v{a+2*r}"; c1 = "0" if k == 0 else f"v{a+2*r+1}"
            e(f"v_dot2_f32_bf16 v{a+2*r}, v{x}, v{vT0}, {c0}\nv_dot2_f32_bf16 v{a+2*r+1}, v{x}, v{x}, {c1}")
    e("s_nop 2")
    for ctl in ("row_shr:1", "row_shr:2", "row_shr:4", "row_shr:8"):
        for k in range(4): e(f"v_add_f32_dpp v{a+k}, v{a+k}, v{a+k} {ctl} row_mask:0xf bank_mask:0xf bound_ctrl:0")
    for ctl in ("row_bcast:15 row_mask:0xa", "row_bcast:31 row_mask:0xc"):
        for k in range(4): e(f"v_add_f32_dpp v{a+k}, v{a+k}, v{a+k} {ctl} bank_mask:0xf")
    for r in range(2):
        d = vRs+4*r
        e(f"""v_mul_f32 v{d}, {f2u(1/512):#x}, v{a+2*r}
        v_mul_f32 v{d+1}, {f2u(1/512):#x}, v{a+2*r+1}
        v_fma_f32 v{d+1}, -v{d}, v{d}, v{d+1}
        v_max_f32 v{d+1}, 0, v{d+1}
        v_add_f32 v{d+1}, {f2u(1e-5):#x}, v{d+1}
        v_rsq_f32 v{d+1}, v{d+1}""")
def rowstat_post():
    e(f"""s_lshl_b32 s{sT0}, s{sW4}, 4
    s_add_u32 s{sT0}, s{sT0}, {STL}
    v_mov_b32 v{vT0}, s{sT0}
    s_mov_b32 exec_lo, 0
    s_brev_b32 exec_hi, 1
    ds_write_b64 v{vT0}, {vr(vRs,2)}
    ds_write_b64 v{vT0}, {vr(vRs+4,2)} offset:8
    s_mov_b64 exec, -1""")
def rowstat_store():
    for r in range(2): e(f"v_mov_b32 v{vRs+4*r+2}, s{sNo}\nv_mov_b32 v{vRs+4*r+3}, s{sNo+1}")
    e(f"""s_lshl_b32 s{sT0}, s{sRow}, 5
    s_add_u32 s{sT0}, s{sT0}, {STATG}
    s_mov_b32 exec_lo, 0
    s_brev_b32 exec_hi, 1
    buffer_store_dwordx4 {vr(vRs,4)}, off, {sr(SWS,4)}, s{sT0} sc1
    buffer_store_dwordx4 {vr(vRs+4,4)}, off, {sr(SWS,4)}, s{sT0} offset:16 sc1
    s_mov_b64 exec, -1""")
def kv_dma(tag):
    e(f"s_mul_i32 s{sT1}, s{sW4}, 3072")
    for n in range(3):
        e(f"s_add_u32 s{sT0}, s{sT1}, {12288*n}\ns_mov_b32 m0, s{sT0}\ns_nop 0")
        for k in range(3): e(f"buffer_load_dwordx4 v{vL16}, {sr(SWS,4)}, s{sT0} offen offset:{1024*k} sc1 lds")
def tr_lane(rowmul, d):
    e(f"""v_lshrrev_b32 v{vT0}, 4, v{vLane}
    v_bfe_u32 v{vT1}, v{vLane}, 2, 2
    v_lshl_add_u32 v{vT0}, v{vT0}, 3, v{vT1}
    v_mul_u32_u24 v{vT0}, {rowmul}, v{vT0}
    v_bfe_u32 v{vT1}, v{vLane}, 4, 1
    v_lshl_add_u32 v{vT0}, v{vT1}, 5, v{vT0}
    v_and_b32 v{vT1}, 3, v{vLane}
    v_lshl_add_u32 v{d}, v{vT1}, 3, v{vT0}""")
def ones_col0(d):
    e(f"""v_and_b32 v{vT0}, 15, v{vLane}
    v_cmp_eq_u32 vcc, 0, v{vT0}
    v_mov_b32 v{vT1}, 0x3f803f80
    s_nop 0
    v_cndmask_b32 v{d}, 0, v{vT1}, vcc""")
    for k in range(1, 4): e(f"v_mov_b32 v{d+k}, v{d}")
def rot_delta():
    return f"s_add_u32 s{sRb}, s{sRb}, 1\ns_cmp_eq_u32 s{sRb}, 3\ns_cselect_b32 s{sDl}, s{sC3}, {STG}\ns_cselect_b32 s{sRb}, 0, s{sRb}"
def cs16_write(accs, slot0_sreg, stride):
    e(f"v_add_u32 v{vT0}, s{slot0_sreg}, v{vLane}\ns_mov_b32 exec_lo, 0x00010001\ns_mov_b32 exec_hi, 0x00010001")
    for n, a in enumerate(accs): e(f"ds_write_b128 v{vT0}, {vr(a,4)} offset:{stride*n}")
    e("s_mov_b64 exec, -1")

ROT = int(sys.argv[sys.argv.index("--rot")+1]) if "--rot" in sys.argv else 7
sKs = 84
sM1, sM2, sPub, sCg = 66, 67, 68, 69
C0 = "--c0" in sys.argv
NR = 7 if C0 else 8
def dma_x():
    return [f"s_add_u32 m0, s{sLb}, s{sMx}", f"s_add_u32 s{sT0}, s{sXo}, 16384",
            f"buffer_load_dwordx4 v{vXa0}, {sr(SX,4)}, s{sXo} offen lds",
            f"buffer_load_dwordx4 v{vXa1}, {sr(SX,4)}, s{sXo} offen offset:1024 lds",
            "s_add_u32 m0, m0, 2048", f"s_add_u32 s{sXo}, s{sXo}, 128",
            f"buffer_load_dwordx4 v{vXa0}, {sr(SX,4)}, s{sT0} offen lds",
            f"buffer_load_dwordx4 v{vXa1}, {sr(SX,4)}, s{sT0} offen offset:1024 lds"]
def dma_w():
    r = []
    for k, sd in enumerate((SWG, SWU)):
        r += [f"s_add_u32 m0, s{sLb}, s{sMw}" if k == 0 else f"s_add_u32 m0, m0, {UOFF-GOFF}", "s_nop 0",
              f"buffer_load_dwordx4 v{vWa0}, {sr(sd,4)}, s{sWo} offen lds",
              f"buffer_load_dwordx4 v{vWa1}, {sr(sd,4)}, s{sWo} offen offset:1024 lds",
              f"buffer_load_dwordx4 v{vWa2}, {sr(sd,4)}, s{sWo} offen offset:2048 lds"]
    r += [f"s_add_u32 m0, s{sLb}, s{sMq}", f"s_add_u32 s{sWo}, s{sWo}, {64*2752}",
          f"buffer_load_dwordx4 v{vQa}, {sr(SWQ,4)}, s{sQo} offen lds", f"s_add_u32 s{sQo}, s{sQo}, 65536",
          f"s_add_u32 s{sLb}, s{sLb}, {STG}", f"s_cmp_ge_u32 s{sLb}, {3*STG}", f"s_cselect_b32 s{sLb}, 0, s{sLb}"]
    if ROT:
        r += [f"s_add_u32 s{sKs}, s{sKs}, 1", f"s_cmp_eq_u32 s{sKs}, 8",
              f"s_cselect_b32 s{sT0}, {128*NR}, 0", f"s_cselect_b32 s{sT1}, {64*NR*2752}, 0", f"s_cselect_b32 s{sT2}, {64*NR*1024}, 0",
              f"s_sub_u32 s{sXo}, s{sXo}, s{sT0}", f"s_sub_u32 s{sWo}, s{sWo}, s{sT1}", f"s_sub_u32 s{sQo}, s{sQo}, s{sT2}"]
    return r
e(f"s_mov_b32 s{sLb}, 0\ns_lshl_b32 s{sMx}, s{sW4}, 12")
if ROT and "--rm" in sys.argv: e(f"s_lshl_b32 s{sKs}, s{sI if M48 else sJ}, 1\ns_add_u32 s{sKs}, s{sKs}, s{sJ if M48 else sI}\ns_and_b32 s{sKs}, s{sKs}, {ROT}")
RM = sys.argv[sys.argv.index("--rm")+1] if "--rm" in sys.argv else "a"
if RM == "a":
    e(f"""s_xor_b32 s{sKs}, s{sI}, s{sJ}
    s_and_b32 s{sKs}, s{sKs}, 1
    s_lshl_b32 s{sKs}, s{sKs}, 2
    s_lshr_b32 s{sT0}, s{sI}, 1
    s_xor_b32 s{sT0}, s{sT0}, s{sJ}
    s_lshr_b32 s{sT0}, s{sT0}, 1
    s_and_b32 s{sT0}, s{sT0}, 2
    s_or_b32 s{sKs}, s{sKs}, s{sT0}""")
if RM == "b":
    e(f"""s_add_u32 s{sKs}, s{sI}, s{sJ}
    s_and_b32 s{sKs}, s{sKs}, 3
    s_lshl_b32 s{sKs}, s{sKs}, 1
    s_lshr_b32 s{sT0}, s{sI}, 1
    s_xor_b32 s{sT0}, s{sT0}, s{sJ}
    s_bfe_u32 s{sT0}, s{sT0}, 0x10002
    s_or_b32 s{sKs}, s{sKs}, s{sT0}""")
if RM == "c":
    e(f"""s_lshr_b32 s{sKs}, s{sI}, 3
    s_lshl_b32 s{sKs}, s{sKs}, 2
    s_lshr_b32 s{sT0}, s{sJ}, 2
    s_lshl_b32 s{sT0}, s{sT0}, 1
    s_add_u32 s{sKs}, s{sKs}, s{sT0}
    s_and_b32 s{sKs}, s{sKs}, 7""")
if ROT and C0: e(f"s_cmp_eq_u32 s{sKs}, 7\ns_cselect_b32 s{sKs}, 3, s{sKs}")
def rot_x(): e(f"s_lshl_b32 s{sT0}, s{sKs}, 7\ns_add_u32 s{sXo}, s{sXo}, s{sT0}")
def rot_w(): e(f"s_mul_i32 s{sT0}, s{sKs}, {64*2752}\ns_add_u32 s{sWo}, s{sWo}, s{sT0}\ns_lshl_b32 s{sT0}, s{sKs}, 16\ns_add_u32 s{sQo}, s{sQo}, s{sT0}")
if ROT and not C0: rot_x()
e(f"s_lshl_b32 s{sCg}, s{sJ}, 13\ns_add_u32 s{sCg}, s{sCg}, {CSG}\ns_lshl_b32 s{sC1}, s{sKs}, 10\ns_add_u32 s{sC1}, s{sC1}, s{sCg}")
LZ = "--nolz" not in sys.argv
if LZ: e(f"s_cmp_eq_u32 s{sJ}, 14\ns_cselect_b32 s{sT3}, 8, 0\nv_mov_b32 v{vT3}, 0x40000000")
for k, r in enumerate((vWa0, vWa1, vWa2)):
    e(f"""v_add_u32 v{vT0}, {64*k}, v{vLane}
    v_mul_u32_u24 v{vT1}, 43691, v{vT0}
    v_lshrrev_b32 v{vT1}, 19, v{vT1}
    v_mul_u32_u24 v{vT2}, 12, v{vT1}
    v_sub_u32 v{vT0}, v{vT0}, v{vT2}
    v_lshrrev_b32 v{vT2}, 2, v{vT1}
    v_and_b32 v{vT2}, 2, v{vT2}
    v_xor_b32 v{vT0}, v{vT0}, v{vT2}
    v_mul_u32_u24 v{vT1}, 2752, v{vT1}
    v_lshl_add_u32 v{r}, v{vT0}, 4, v{vT1}""")
    if LZ: e(f"v_cmp_gt_u32 vcc, s{sT3}, v{vT0}")
    if k: e(f"v_subrev_u32 v{r}, {1024*k}, v{r}")
    if LZ: e(f"s_nop 1\nv_cndmask_b32 v{r}, v{r}, v{vT3}, vcc")
e(f"""v_lshrrev_b32 v{vT0}, 2, v{vLane}
v_lshlrev_b32 v{vT0}, 10, v{vT0}
v_and_b32 v{vT1}, 3, v{vLane}
v_lshlrev_b32 v{vT2}, 1, v{vH}
v_xor_b32 v{vT1}, v{vT1}, v{vT2}
v_lshl_add_u32 v{vQa}, v{vT1}, 4, v{vT0}
s_mul_i32 s{sT0}, s{sJ}, 96
s_min_u32 s{sT0}, s{sT0}, 1280
s_lshl_b32 s{sT0}, s{sT0}, 1
s_mul_i32 s{sWo}, s{sW4}, {16*2752}
s_add_u32 s{sWo}, s{sWo}, s{sT0}
s_lshl_b32 s{sQo}, s{sW4}, 14
s_lshl_b32 s{sT0}, s{sJ}, 6
s_add_u32 s{sQo}, s{sQo}, s{sT0}
s_mul_i32 s{sMw}, s{sW4}, 3072
s_add_u32 s{sMw}, s{sMw}, {GOFF}
s_lshl_b32 s{sMq}, s{sW4}, 10
s_add_u32 s{sMq}, s{sMq}, {QOFF}""")
if ROT and not C0: rot_w()
if JX:
    e(f"""s_memrealtime s[{sTm}:{sTm+1}]
    s_or_b32 s{sT0}, s2, s{sW}
    s_cmp_lg_u32 s{sT0}, 0
    s_waitcnt lgkmcnt(0)
    s_cbranch_scc1 Lnotag2
    s_or_b32 s{sTm}, s{sTm}, 1
    v_mov_b32 v{vPoll}, s{sTm}
    v_mov_b32 v{vPoll+1}, s{sTm+1}
    s_mov_b64 exec, 1
    buffer_store_dwordx2 {vr(vPoll,2)}, off, {sr(SDBG,4)}, 0 sc1
    s_mov_b64 exec, -1
    Lnotag2:""")
else: e("s_waitcnt lgkmcnt(0)")
entry_stamp()
for x in dma_x(): e(x)
w0 = dma_w()
if ROT and C0:
    k = w0.index(f"s_add_u32 s{sKs}, s{sKs}, 1")
    for x in w0[:k]: e(x)
    rot_x(); rot_w(); e(w0[k])
else:
    for x in w0: e(x)
for x in dma_x() + dma_w(): e(x)
TG = "--oldtag" not in sys.argv
if TG:
    e(f"""s_and_b32 s{sT0}, s{sI}, 6
    s_or_b32 s{sT0}, s{sT0}, s{sW}
    s_cmp_eq_u32 s{sT0}, 0
    s_cselect_b32 s{sM2}, 0x30, 0
    s_cselect_b32 s{sPub}, 3, 99
    s_cmp_eq_u32 s{sW}, 0
    s_cselect_b32 s{sM1}, 6, 0
    s_cbranch_scc0 Lnt0""")
    e(tag_issue())
    e("Lnt0:")
else: e(tag_issue())
late_srd(LS_A)
hF = 30
e(f"""s_lshl_b32 s{sT0}, s{sW4}, 2
s_add_u32 s{sT0}, s{sT0}, {KFL}
v_mov_b32 v{hF}, s{sT0}
v_mov_b32 v{hF+1}, 0
v_mov_b32 v{vT0}, {KFL}
ds_write_b32 v{hF}, v{hF+1}
ds_write_b32 v{vT0}, v{hF+1} offset:16""")
hW = 32
e(f"s_mov_b32 s{sSt}, 0\ns_mov_b32 s{sRb}, 0\ns_mov_b32 s{sC3}, {(-2*STG) & 0xffffffff}")
if "--hp3" in sys.argv: e("s_setprio 3")
tstamp(21)
if TG: e(f"s_waitcnt vmcnt(12) lgkmcnt(0)\ns_cmp_eq_u32 s{sW}, 0\ns_cbranch_scc1 Lnt1\ns_waitcnt vmcnt(11)\nLnt1:")
else: e("s_waitcnt vmcnt(12) lgkmcnt(0)")
tstamp(23); e("s_barrier")
stamp(12); tflush(); TS.clear()
W11 = f"""s_waitcnt vmcnt(13)
s_bitcmp1_b32 s{sM2}, s{sSt}
s_cbranch_scc1 Lw12
s_waitcnt vmcnt(12)
s_bitcmp1_b32 s{sM1}, s{sSt}
s_cbranch_scc1 Lw12
s_waitcnt vmcnt(11)
Lw12:"""
def helper_loop(cs):
    t = "c" if cs else "n"
    e(f"Lhl{t}:")
    if cs:
        rd, m = cs_parts()
        for x in rd: e(x)
        e(rot_delta())
        for x in dma_x(): e(x)
        e(f"v_add_u32 v{hA}, s{sDl}, v{hA}\nv_add_u32 v{hA+1}, s{sDl}, v{hA+1}\ns_waitcnt lgkmcnt(0)")
        w = dma_w(); k = 0
        for x in w:
            e(x)
            if "buffer_load" in x: e(m[k]); k += 1
        for x in m[k:]: e(x)
    else:
        for x in dma_x() + dma_w():
            if "--nodma" in sys.argv and "buffer_load" in x: continue
            e(x)
            if "--pace" in sys.argv and "buffer_load" in x: e("s_sleep 1")
        e(f"s_or_b32 s{sT0}, s{sSt}, s{sW}\ns_cmp_lg_u32 s{sT0}, 0\ns_cbranch_scc1 Lnpub")
        e(f"v_lshlrev_b32 v{vT0}, 3, v{vLane}\nv_add_u32 v{vT0}, {STL}, v{vT0}\nds_read_b64 {vr(hW,2)}, v{vT0}")
        tag_wait("p", 11, True)
        e(f"""v_mov_b32 v{hW+2}, s{sNo}
        v_mov_b32 v{hW+3}, s{sNo+1}
        s_lshl_b32 s{sT0}, s{sRow}, 5
        s_add_u32 s{sT0}, s{sT0}, {STATG}
        s_mov_b64 exec, 0xff
        s_waitcnt lgkmcnt(0)
        buffer_store_dwordx4 {vr(hW,4)}, v{vL16}, {sr(SWS,4)}, s{sT0} offen sc1
        s_mov_b64 exec, -1
        Lnpub:
        s_cmp_lg_u32 s{sSt}, s{sPub}
        s_cbranch_scc1 Lnpc
        v_lshlrev_b32 v{vT0}, 3, v{vLane}
        v_add_u32 v{vT0}, {CSUM}, v{vT0}
        ds_read_b64 {vr(hW,2)}, v{vT0}
        ds_read_b64 {vr(hW+4,2)}, v{vT0} offset:512
        v_mov_b32 v{hW+2}, s{sNo}
        v_mov_b32 v{hW+3}, s{sNo+1}
        v_mov_b32 v{hW+6}, s{sNo}
        v_mov_b32 v{hW+7}, s{sNo+1}
        s_waitcnt lgkmcnt(0)
        buffer_store_dwordx4 {vr(hW,4)}, v{vL16}, {sr(SWS,4)}, s{sC1} offen sc1
        buffer_store_dwordx4 {vr(hW+4,4)}, v{vL16}, {sr(SWS,4)}, s{sC1} offen offset:1024 sc1
        Lnpc:""")
        if not FS:
            e(f"s_cmp_lg_u32 s{sSt}, 2\ns_cbranch_scc1 Lnini")
            a_sent()
            e("Lnini:")
    e(f"""s_add_u32 s{sSt}, s{sSt}, 1
    {W11}
    s_barrier
    {tk(81)}
    s_cmp_lt_u32 s{sSt}, 6
    s_cbranch_scc1 Lhl{t}""")
helper_loop(False)
tkout()
def st_loads():
    return f"""buffer_load_dwordx4 {vr(hW,4)}, v{vL16}, {sr(SWS,4)}, s{sC0} offen sc1
    buffer_load_dwordx4 {vr(hW+4,4)}, v{vL16}, {sr(SWS,4)}, s{sC0} offen offset:1024 sc1"""
e(f"s_lshl_b32 s{sC0}, s{sI}, 11\ns_add_u32 s{sC0}, s{sC0}, {STATG}\ns_mov_b32 s{sKf}, {KFLG}\nv_mov_b32 v{hF+1}, 1")
if TG: e(tag_issue())
e(f"s_cmp_lg_u32 s{sW}, 1\ns_cbranch_scc1 Lhn0\n{st_loads()}\nLhn0:")
if FS: a_sent()
a_addr(); fin_init()
tag_wait("h", 0)
e(f"""s_cmp_lg_u32 s{sW}, 1
s_cbranch_scc1 Lhns
s_mov_b32 s{sT0}, 0
s_branch Lhs1
Lhs:
{st_loads()}
s_waitcnt vmcnt(0)
Lhs1:
s_add_u32 s{sT0}, s{sT0}, 1
v_cmp_ne_u64 vcc, s[{sNo}:{sNo+1}], {vr(hW+2,2)}
v_cmp_ne_u64 s[{sEx}:{sEx+1}], s[{sNo}:{sNo+1}], {vr(hW+6,2)}
s_or_b64 vcc, vcc, s[{sEx}:{sEx+1}]
s_cmp_ge_u32 s{sT0}, 100000
s_cbranch_scc1 Lhns
s_cbranch_vccnz Lhs
Lhns:""")
LATEP = "--earlyp" not in sys.argv
def cs_loads():
    return "\n".join(f"buffer_load_dwordx4 {vr(hW+4*c,4)}, v{vL16}, {sr(SWS,4)}, s{sCg if c < 2 else sC1} offen offset:{2048*(c & 1)} sc1" for c in range(4))
e(f"""s_cmp_lt_u32 s{sW}, 2
s_cbranch_scc1 Lhc0
s_and_b32 s{sT0}, s{sW}, 1
s_lshl_b32 s{sT0}, s{sT0}, 10
s_add_u32 s{sCg}, s{sCg}, s{sT0}
s_add_u32 s{sC1}, s{sCg}, 4096
{cs_loads()}
Lhc0:""")
if not LATEP: e(flags_issue(sKf))
e(f"s_mov_b32 s{sSt}, 1\ns_barrier")
if LATEP: e(flags_issue(sKf))
def kv_try(tag):
    e(f"""s_cmp_eq_u32 s{sSt}, 0
    s_cbranch_scc1 Lkt2_{tag}
    s_waitcnt vmcnt(0)
    v_cmp_ne_u64 vcc, s[{sNo}:{sNo+1}], {vr(vPoll,2)}
    s_cbranch_vccnz Lkt1_{tag}""")
    kv_dma(tag)
    e(f"v_mov_b32 v{vT0}, {KFL}\nds_write_b32 v{vT0}, v{hF+1} offset:16\ns_mov_b32 s{sSt}, 0\ns_branch Lkt2_{tag}\nLkt1_{tag}:")
    e(flags_issue(sKf))
    e(f"Lkt2_{tag}:")
e(f"s_cmp_lg_u32 s{sW}, 1\ns_cbranch_scc1 Lhnc")
gelu_consts(hW, hW+1, hW+8); gelu_consts(hW+4, hW+5, hW+12)
e(f"""v_add_u32 v{vT0}, {STATM}, v{vL16}
ds_write_b128 v{vT0}, {vr(hW+8,4)}
ds_write_b128 v{vT0}, {vr(hW+12,4)} offset:1024
Lhnc:""")
kv_try("a")
e(f"""s_cmp_lt_u32 s{sW}, 2
s_cbranch_scc1 Lhc3
s_mov_b32 s{sT0}, 0
s_branch Lhc2
Lhc1:
s_sleep 2
{cs_loads()}
s_waitcnt vmcnt(0)
Lhc2:
s_add_u32 s{sT0}, s{sT0}, 1
v_cmp_ne_u64 vcc, s[{sNo}:{sNo+1}], {vr(hW+2,2)}
v_cmp_ne_u64 s[{sEx}:{sEx+1}], s[{sNo}:{sNo+1}], {vr(hW+6,2)}
s_or_b64 vcc, vcc, s[{sEx}:{sEx+1}]
v_cmp_ne_u64 s[{sEx}:{sEx+1}], s[{sNo}:{sNo+1}], {vr(hW+10,2)}
s_or_b64 vcc, vcc, s[{sEx}:{sEx+1}]
v_cmp_ne_u64 s[{sEx}:{sEx+1}], s[{sNo}:{sNo+1}], {vr(hW+14,2)}
s_or_b64 vcc, vcc, s[{sEx}:{sEx+1}]
s_cmp_ge_u32 s{sT0}, 100000
s_cbranch_scc1 Lhc4
s_cbranch_vccnz Lhc1
Lhc4:
v_add_f32 v{hW}, v{hW}, v{hW+4}
v_add_f32 v{hW+1}, v{hW+1}, v{hW+5}
v_add_f32 v{hW+8}, v{hW+8}, v{hW+12}
v_add_f32 v{hW+9}, v{hW+9}, v{hW+13}
s_and_b32 s{sT0}, s{sW}, 1
s_lshl_b32 s{sT0}, s{sT0}, 9
s_add_u32 s{sT0}, s{sT0}, {CSUM}
v_lshl_add_u32 v{vT0}, v{vLane}, 3, s{sT0}
v_add_f32 v{hW}, v{hW}, v{hW+8}
v_add_f32 v{hW+1}, v{hW+1}, v{hW+9}
v_cmp_gt_u32 vcc, {CSUM+896}, v{vT0}
s_and_saveexec_b64 s[{sEx}:{sEx+1}], vcc
ds_write_b64 v{vT0}, {vr(hW,2)}
s_mov_b64 exec, -1
Lhc3:""")
e("s_waitcnt lgkmcnt(0)\ns_barrier")
if not LATEP and "--tryb" in sys.argv: kv_try("b")
stamp(1)
e("s_waitcnt lgkmcnt(0)\ns_barrier\ns_branch Lp2")

cX = [8, 24]; cW = 40; cRX, cRW, cRQ = 68, 70, 72; cCs = 76; cO = 92; cA = 96
e("Lcomp:")
entry_stamp(True)
late_srd(LS_F)
e(f"""v_and_b32 v{vT0}, 15, v{vLane}
v_lshrrev_b32 v{vT1}, 1, v{vT0}
v_lshrrev_b32 v{vT2}, 4, v{vLane}
v_xor_b32 v{vT1}, v{vT1}, v{vT2}
v_lshlrev_b32 v{vT0}, 7, v{vT0}
s_and_b32 s{sT0}, s{sW}, 1
s_lshl_b32 s{sT0}, s{sT0}, 13
v_add_u32 v{vT0}, s{sT0}, v{vT0}
v_lshl_add_u32 v{cRX}, v{vT1}, 4, v{vT0}
v_xor_b32 v{cRX+1}, 64, v{cRX}""")
tr_lane(192, cRW)
e(f"""s_lshl_b32 s{sT1}, s{sW}, 4
s_and_b32 s{sT1}, s{sT1}, 32
v_xor_b32 v{cRW}, s{sT1}, v{cRW}
v_xor_b32 v{cRW+1}, 32, v{cRW}
s_lshl_b32 s{sT2}, s{sT1}, 1
v_add_u32 v{cRW}, s{sT2}, v{cRW}
s_lshl_b32 s{sT2}, s{sT1}, 2
v_add_u32 v{cRW+1}, s{sT2}, v{cRW+1}""")
tr_lane(64, cRQ); e(f"v_xor_b32 v{cRQ}, s{sT1}, v{cRQ}")
ones_col0(cO)
cEh, cEs, cEq = 73, 74, 75
cEc, cEw = 212, 213
e(f"""s_bfe_u32 s{sT2}, s{sW}, 0x10001
s_mul_i32 s{sT2}, s{sT2}, 448
s_add_u32 s{sT2}, s{sT2}, {CSUM}
s_and_b32 s{sT1}, s{sW}, 1
s_lshl_b32 s{sT1}, s{sT1}, 6
s_add_u32 s{sT1}, s{sT2}, s{sT1}
v_and_b32 v{cEc}, 48, v{vLane}
v_add_u32 v{cEc}, s{sT2}, v{cEc}
v_add_u32 v{cEw}, s{sT1}, v{vLane}""")
e(f"""s_lshl_b32 s{sT0}, s{sI}, 2
s_and_b32 s{sT1}, s{sW}, 1
s_lshl_b32 s{sT1}, s{sT1}, 1
s_add_u32 s{sT0}, s{sT0}, s{sT1}
s_mul_i32 s{sT0}, s{sT0}, 88
s_mul_i32 s{sT1}, s{sJ}, 6
s_min_u32 s{sT1}, s{sT1}, 80
s_bfe_u32 s{sT2}, s{sW}, 0x10001
s_mul_i32 s{sT2}, s{sT2}, 3
s_add_u32 s{sT1}, s{sT1}, s{sT2}
s_and_b32 s{sT2}, s{sW}, 2""")
for add, dst in enumerate((sC0, sC1, sC2)):
    e(f"""s_add_u32 s{sT3}, s{sT1}, {add}
    s_lshr_b32 s{dst}, s{sT3}, 2
    s_add_u32 s{dst}, s{dst}, s{sT0}
    s_and_b32 s{sT3}, s{sT3}, 3
    s_mul_i32 s{sT3}, s{sT3}, 22
    s_add_u32 s{dst}, s{dst}, s{sT3}
    s_lshl_b32 s{dst}, s{dst}, 10
    s_add_u32 s{dst}, s{dst}, {HIMG}""")
    if LZ: e(f"""s_mul_i32 s{sT3}, s{sJ}, 6
    s_sub_u32 s{sT3}, s{sT3}, {add}
    s_cmp_lt_i32 s{sT1}, s{sT3}
    s_cselect_b32 s{dst}, {PROFO+262144}, s{dst}""")
e(f"""v_bfe_u32 v{vT0}, v{vLane}, 4, 1
v_lshlrev_b32 v{vT0}, 9, v{vT0}
v_and_b32 v{vT1}, 15, v{vLane}
v_lshl_add_u32 v{vT0}, v{vT1}, 4, v{vT0}
v_lshl_add_u32 v{cEh}, v{vH}, 8, v{vT0}
s_and_b32 s{sT0}, s{sW}, 1
s_lshl_b32 s{sT1}, s{sT0}, 10
s_add_u32 s{sT1}, s{sT1}, {STATM}
v_lshl_add_u32 v{cEs}, v{vT1}, 4, s{sT1}
s_lshl_b32 s{sT0}, s{sT0}, 12
s_lshl_b32 s{sT2}, s{sT2}, 9
s_add_u32 s{sT0}, s{sT0}, s{sT2}
s_add_u32 s{sT0}, s{sT0}, {QIMG}
v_lshl_add_u32 v{vT0}, v{vH}, 3, v{vT0}
v_add_u32 v{cEq}, s{sT0}, v{vT0}""")
f_init()
for r in list(range(cCs, cCs+16, 2)) + [r for r in range(cA, cA+112, 2) if not vRs <= r < vRs+16]: e(f"v_mov_b64 {vr(r,2)}, 0")
tstamp(13)
e("s_waitcnt vmcnt(0)")
tstamp(21)
rowstat_finish()
rowstat_post()
tstamp(23)
if "--touch" in sys.argv:
    e(f"""s_and_b32 s{sT2}, s{sI}, 7
    s_mul_i32 s{sT2}, s{sT2}, 48
    s_add_u32 s{sT2}, s{sT2}, 128
    s_cmp_ge_u32 s{sW}, 6
    s_cbranch_scc1 Ltc6
    v_lshrrev_b32 v{vT0}, 1, v{vLane}
    v_mul_u32_u24 v{vT0}, 2752, v{vT0}
    v_and_b32 v{vT1}, 1, v{vLane}
    v_lshl_add_u32 v{vT0}, v{vT1}, 7, v{vT0}
    s_mul_i32 s{sT0}, s{sJ}, 96
    s_min_u32 s{sT0}, s{sT0}, 1280
    s_lshl_b32 s{sT0}, s{sT0}, 1
    s_mul_i32 s{sT2}, s{sT2}, 2752
    s_add_u32 s{sT0}, s{sT0}, s{sT2}
    s_add_u32 s{sT1}, s{sT0}, {32*2752}
    s_cmp_eq_u32 s{sW}, 5
    s_cbranch_scc1 Ltc5
    buffer_load_dword v79, v{vT0}, {sr(SWG,4)}, s{sT0} offen
    s_mov_b32 exec_hi, 0
    buffer_load_dword v79, v{vT0}, {sr(SWG,4)}, s{sT1} offen
    s_branch Ltce
    Ltc5:
    buffer_load_dword v79, v{vT0}, {sr(SWU,4)}, s{sT0} offen
    s_mov_b32 exec_hi, 0
    buffer_load_dword v79, v{vT0}, {sr(SWU,4)}, s{sT1} offen
    s_branch Ltce
    Ltc6:
    s_cmp_eq_u32 s{sW}, 7
    s_cbranch_scc1 Ltc7
    v_lshrrev_b32 v{vT0}, 1, v{vLane}
    v_lshlrev_b32 v{vT0}, 10, v{vT0}
    v_and_b32 v{vT1}, 1, v{vLane}
    v_lshl_add_u32 v{vT0}, v{vT1}, 7, v{vT0}
    s_lshl_b32 s{sT0}, s{sI}, 17
    s_and_b32 s{sT1}, s{sJ}, 3
    s_lshl_b32 s{sT1}, s{sT1}, 15
    s_add_u32 s{sT0}, s{sT0}, s{sT1}
    buffer_load_dword v79, v{vT0}, {sr(SX,4)}, s{sT0} offen offset:256
    buffer_load_dword v79, v{vT0}, {sr(SX,4)}, s{sT0} offen offset:512
    buffer_load_dword v79, v{vT0}, {sr(SX,4)}, s{sT0} offen offset:768
    s_branch Ltce
    Ltc7:
    v_lshlrev_b32 v{vT0}, 10, v{vLane}
    s_lshl_b32 s{sT2}, s{sT2}, 10
    s_lshl_b32 s{sT0}, s{sJ}, 6
    s_add_u32 s{sT0}, s{sT0}, s{sT2}
    s_mov_b32 exec_hi, 0xffff
    buffer_load_dword v79, v{vT0}, {sr(SWQ,4)}, s{sT0} offen
    Ltce:
    s_mov_b64 exec, -1""")
e("s_nop 1")
for r in range(vRs, vRs+16, 2): e(f"v_mov_b64 {vr(r,2)}, 0")
e(f"s_mov_b32 s{sSt}, 0\ns_mov_b32 s{sRb}, 0\ns_mov_b32 s{sC3}, {(-2*STG) & 0xffffffff}\ns_setprio 2")
NF = 7
def comp_loop(var):
    tag = f"{var}"
    def wrd(n, k2):
        if n == 0: a, o, rs = cRQ, QOFF, 64
        else:
            t = (n-1) % 3
            a, o, rs = cRW+(t & 1), (GOFF if n < 4 else UOFF) + (t >> 1)*64, 192
        return tr(cW+4*n, a, o+32*k2*rs) + tr(cW+4*n+2, a, o+(32*k2+4)*rs)
    def xrd(k2): return [f"ds_read_b128 {vr(cX[k2]+4*u,4)}, v{cRX+k2} offset:{2048*u}" for u in range(4)]
    def mm(n, k2):
        r = [mfma16(cA+28*u+4*n, cW+4*n, cX[k2]+4*u) for u in range(4)]
        if var < 2 and (n & 1) == var: r.append(mfma16(cCs+4*(n >> 1), cW+4*n, cO))
        return r
    if var == 0:
        e("s_waitcnt lgkmcnt(0)\ns_barrier")
        for x in xrd(0) + sum([wrd(n, 0) for n in range(NF)], []): e(x)
        e(f"s_and_b32 s{sT0}, s{sI}, 6\ns_cmp_lg_u32 s{sT0}, 0\ns_waitcnt lgkmcnt(0)\ns_cbranch_scc1 Lc_2\ns_bitcmp1_b32 s{sW}, 0\ns_cbranch_scc1 Lc_1")
    e(f".p2align 3\nLc_{tag}:")
    adr = [f"v_add_u32 v{r}, s{sDl}, v{r}" for r in (cRX, cRX+1, cRW, cRW+1, cRQ)]
    ctl = rot_delta().split("\n") + [f"s_add_u32 s{sSt}, s{sSt}, 1"]
    BARG = 2
    def build(order0):
        out = []; q = []; issued = list(order0)
        def need(tagname):
            idx = max(i for i, t in enumerate(issued) if t == tagname)
            return len(issued)-1-idx
        def push(tagname, lst): q.extend((tagname, x) for x in lst)
        lastN = [99]
        for k2 in range(2):
            if k2 == 0: push("x1", xrd(1))
            for n in range(NF):
                if k2 == 1 and n == BARG:
                    while q:
                        t, x = q.pop(0); out.append(x)
                        if t: issued.append(t)
                    out.append(f"s_waitcnt lgkmcnt(0)\n{tk(None)}\ns_barrier\n{tk(81)}")
                    issued.clear(); issued.extend(["done"])
                    push("x0", xrd(0))
                    for m in range(BARG): push(f"w{m}0", wrd(m, 0))
                reqs = [f"w{n}{k2}"] + ([f"x{k2}"] if n == 0 else [])
                for r in reqs: assert all(t != r for t, _ in q), (r, k2, n)
                ns = [need(r) for r in reqs if r in issued]
                if ns and n % 2 == 0 or ns and min(ns) < lastN[0]:
                    nxt = f"w{n+1}{k2}"
                    if nxt in issued and all(t != nxt for t, _ in q): ns.append(need(nxt))
                    N = min(min(ns), 15); out.append(f"s_waitcnt lgkmcnt({N})"); lastN[0] = N
                for x in mm(n, k2):
                    out.append(x)
                    if q:
                        t, y = q.pop(0); out.append(y)
                        if t: issued.append(t); lastN[0] += 1
                if k2 == 0:
                    push(f"w{n}1", wrd(n, 1))
                    if n == 3: push(None, ctl)
                    if n == NF-1: push(None, adr)
                elif n >= BARG: push(f"w{n}0", wrd(n, 0))
        while q:
            t, x = q.pop(0); out.append(x)
            if t: issued.append(t)
        return out, issued
    _, steady = build([])
    out, _ = build(steady)
    for x in out: e(x)
    e(f"s_cmp_lt_u32 s{sSt}, {2 if var < 2 else 8}\ns_cbranch_scc1 Lc_{tag}")
    if var < 2:
        e(f"s_nop 2\ns_mov_b32 exec_lo, 0x00010001\ns_mov_b32 exec_hi, 0x00010001")
        for k in range(4-var): e(f"ds_write_b128 v{cEw}, {vr(cCs+4*k,4)} offset:{128*k}")
        e("s_mov_b64 exec, -1")
        if var == 0: e("s_branch Lc_2")
    tkout()
eC, eK, eT = 8, 40, 56
comp_loop(0); comp_loop(1); comp_loop(2)
tstamp(1)
for u in range(4): e(f"ds_read_b128 {vr(eK+4*u,4)}, v{cEs} offset:{256*u}")
for n in range(NF): e(f"ds_read_b128 {vr(eC+4*n,4)}, v{cEc} offset:{64*n}")
e("s_waitcnt lgkmcnt(6)")
for u in range(4): e(f"v_mul_f32 v{eT+u}, {f2u(0.25*1.4426950408889634/C1):#x}, v{eK+4*u+1}")
for u in range(4):
    for p in (0, 2): e(pk("v_pk_fma_f32", cA+28*u+p, [('b', eK+4*u), ('p', eC+p), ('p', cA+28*u+p)]))
for u in range(4):
    for p in (0, 2): e(pk("v_pk_mul_f32", cA+28*u+p, [('p', cA+28*u+p), ('b', eT+u)]))
for u in range(4):
    q = cA+28*u
    e(f"v_cvt_pk_bf16_f32 v{q}, v{q}, v{q+1}\nv_cvt_pk_bf16_f32 v{q+1}, v{q+2}, v{q+3}")
for u in range(4): e(f"ds_write_b64 v{cEq}, {vr(cA+28*u,2)} offset:{2048*(u>>1)+256*(u&1)}")
e(f"v_mov_b32 v{vT0}, {KFL}\ns_waitcnt lgkmcnt(0)\ns_barrier")
e(f"ds_read_b32 v{vT1}, v{vT0} offset:16")
ES = "--es" in sys.argv
if ES: a_sent(True)
e(f"s_waitcnt lgkmcnt(0)\nv_cmp_ne_u32 vcc, 0, v{vT1}")
CK = "--nock" not in sys.argv
e(f"s_cmp_eq_u64 vcc, 0\ns_cselect_b32 s{sSt}, 1, 0")
gl0 = len(L)
for u in range(4):
    g = cA+28*u+4; P = cA+28*(u & 2)+4
    gelu_tile(g, g+12, eC+4, eC+16, eK+4*u, eT, 12, [P+4*(p//2)+2*(u & 1)+(p & 1) for p in range(6)])
    if u & 1:
        e("s_nop 0")
        for t in range(3):
            e(f"v_permlane32_swap_b32 v{P+4*t}, v{P+4*t+2}\nv_permlane32_swap_b32 v{P+4*t+1}, v{P+4*t+3}")
        for t, so in enumerate((sC0, sC1, sC2)):
            st = f"buffer_store_dwordx4 {vr(P+4*t,4)}, v{cEh}, {sr(SWS,4)}, s{so} offen sc1"
            if LZ: L.append(f"s_cmp_eq_u32 s{so}, {PROFO+262144}\ns_cbranch_scc1 Lns{u}{t}\n{st}\nLns{u}{t}:")
            else: e(st)
        if u == 1: e(f"v_add_u32 v{cEh}, {88*1024}, v{cEh}")
    if CK and u < 3: L.append(f"s_cmp_lg_u32 s{sSt}, 0\ns_cbranch_scc1 Lck{u}\nLckr{u}:")
body = L[gl0:]; del L[gl0:]
e(f"s_lshl_b32 s{sT1}, s{sW4}, 12")
items = []
for n in range(12):
    t = f"s_cbranch_vccz Lgk{n}\n"
    if n % 2 == 0: t += f"s_add_u32 s{sT0}, s{sT1}, {36*1024+8192*n}\ns_mov_b32 m0, s{sT0}\ns_nop 0\n"
    for k in range(2): t += f"buffer_load_dwordx4 v{vL16}, {sr(SWS,4)}, s{sT0} offen offset:{1024*(2*(n%2)+k)} sc1 lds\n"
    items.append(t + f"Lgk{n}:")
cut = (len(body)*3)//4
for x in interleave(body[:cut], items) + body[cut:]: e(x)
e(f"""s_cmp_eq_u32 s{sSt}, 0
s_cbranch_scc1 Lgk
s_mov_b32 s{sT0}, 0
s_setprio 0
Lgw:
s_sleep 2
ds_read_b32 v{vT1}, v{vT0} offset:16
s_add_u32 s{sT0}, s{sT0}, 1
s_waitcnt lgkmcnt(0)
v_cmp_ne_u32 vcc, 0, v{vT1}
s_cmp_ge_u32 s{sT0}, 2000000
s_cbranch_scc1 LFkv
s_cbranch_vccz Lgw
s_branch LFkv
Lgk:""")
e(tag_issue())
stamp(2)
tflush(); TS.clear(); rt_out()
e("s_branch LF")
if CK:
    for u in range(3):
        e(f"""Lck{u}:
        ds_read_b32 v{vT1}, v{vT0} offset:16
        s_waitcnt lgkmcnt(0)
        v_readfirstlane_b32 s{sT0}, v{vT1}
        s_cmp_eq_u32 s{sT0}, 0
        s_cbranch_scc1 Lckr{u}
        s_mov_b32 s{sSt}, 0""")
        kv_rest(f"c{u}")
        e(f"s_branch Lckr{u}")

def cs_write(acc, slot_expr_sreg):
    e(f"""v_and_b32 v{vT0}, 1, v{vLane}
    v_lshlrev_b32 v{vT0}, 6, v{vT0}
    v_lshrrev_b32 v{vT1}, 4, v{vLane}
    v_lshl_add_u32 v{vT0}, v{vT1}, 4, v{vT0}
    v_add_u32 v{vT0}, {slot_expr_sreg}, v{vT0}
    s_mov_b32 exec_lo, 0x00030003
    s_mov_b32 exec_hi, 0x00030003
    ds_write_b128 v{vT0}, {vr(acc,4)}
    s_mov_b64 exec, -1""")
e("Lkvcu:")
entry_stamp(True)
e(tag_issue())
for x in kvx_dma(1): e(x)
late_srd(LS_A + LS_F)
e(f"""v_and_b32 v{vT0}, 31, v{vLane}
v_lshrrev_b32 v{vT1}, 1, v{vT0}
v_and_b32 v{vT1}, 7, v{vT1}
v_xor_b32 v{vT1}, v{vT1}, v{vH}
v_lshlrev_b32 v{vT0}, 7, v{vT0}
v_add_u32 v{vT0}, s{sXb}, v{vT0}""")
for ks in range(4):
    e(f"v_xor_b32 v{vT2}, {2*ks}, v{vT1}\nv_lshl_add_u32 v{vRX+ks}, v{vT2}, 4, v{vT0}")
e(f"""v_bfe_u32 v{vT0}, v{vLane}, 2, 2
v_lshl_add_u32 v{vT0}, v{vH}, 3, v{vT0}
v_bfe_u32 v{vT1}, v{vLane}, 4, 1
v_and_b32 v{vT2}, 3, v{vLane}
v_lshlrev_b32 v{vT2}, 3, v{vT2}
v_lshl_add_u32 v{vT3}, v{vT1}, 5, v{vT2}
v_lshl_add_u32 v{vRQ}, v{vT0}, 6, v{vT3}
v_lshlrev_b32 v{vT1}, 14, v{vT1}
v_lshl_add_u32 v{vRW}, v{vT0}, 5, v{vT2}
s_lshr_b32 s{sT0}, s{sW}, 2
s_lshl_b32 s{sT0}, s{sT0}, 13
s_add_u32 s{sT1}, s{sT0}, {WKV}
v_add3_u32 v{vRW}, v{vRW}, v{vT1}, s{sT1}
s_add_u32 s{sT1}, s{sT1}, s{sT0}
v_add_u32 v{vRQ}, s{sT1}, v{vRQ}
v_lshrrev_b32 v{vT0}, 2, v{vLane}
v_lshlrev_b32 v{vT0}, 10, v{vT0}
v_and_b32 v{vT1}, 3, v{vLane}
v_lshl_add_u32 v{vQa}, v{vT1}, 4, v{vT0}
v_bfe_u32 v{vT0}, v{vLane}, 4, 1
v_and_b32 v{vT1}, 15, v{vLane}
v_cmp_eq_u32 vcc, v{vT0}, v{vT1}
v_mov_b32 v{vT2}, 0x3f803f80
s_nop 0
v_cndmask_b32 v{vSel}, 0, v{vT2}, vcc""")
for k in range(1, 4): e(f"v_mov_b32 v{vSel+k}, v{vSel}")
for r in range(vCs, vCs+4): e(f"v_mov_b32 v{r}, 0")
e(f"s_waitcnt vmcnt(5) lgkmcnt(0)\ns_cmp_lt_u32 s{sW}, 4\ns_cbranch_scc1 Lkvr1")
rowstat_finish()
e("Lkvr1:\ns_barrier")
tstamp(12)
def kv_reads(c):
    r = []
    for ks in range(4):
        W = vWk + 16*(c & 1) + 4*ks
        r += [f"ds_read_b128 {vr(vXf+16*c+4*ks,4)}, v{vRX+ks} offset:{4096*c}"]
        r += tr(W, vRW, (64*c+16*ks)*32) + tr(W+2, vRW, (64*c+16*ks+4)*32)
    return r
def kstat_issue():
    return f"buffer_load_dwordx4 {vr(vSt,4)}, v{vWa0}, {sr(SWS,4)}, s{sC1} offen sc1"
for x in kv_reads(0) + kvx_dma(2) + kvx_dma(3): e(x)
e(f"""v_and_b32 v{vWa0}, 31, v{vLane}
v_lshlrev_b32 v{vWa0}, 4, v{vWa0}
s_lshl_b32 s{sT0}, s{sI}, 2
s_add_u32 s{sT0}, s{sT0}, s{sW4}
s_mul_i32 s{sC0}, s{sT0}, {KVT}
s_lshl_b32 s{sC1}, s{sT0}, 9
s_add_u32 s{sC1}, s{sC1}, {STATG}""")
if "--kvt" in sys.argv: e(f"s_mov_b32 s{sT0}, {64*KVT+1024}\nbuffer_load_dword v{vSt+8}, off, {sr(SWS,4)}, s{sT0}")
for c in range(4):
    m = []
    for ks in range(4):
        X = vXf+16*c+4*ks; W = vWk + 16*(c & 1) + 4*ks
        z = "0" if c == 0 and ks == 0 else None
        m += [mfma(vAcc+16, W, X, z), mfma16(vCs, W, vSel), mfma(vAcc+32, X, W, z)]
    e("s_waitcnt lgkmcnt(0)")
    if c < 3:
        wt = f"s_waitcnt vmcnt({8-4*c})"
        if c:
            wt = f"s_waitcnt vmcnt({10-4*c})\ns_cmp_ge_u32 s{sW}, 4\ns_cbranch_scc1 Lkx{c}\n{wt}\nLkx{c}:"
        for x in m[:3] + [wt] + interleave(m[3:9], kv_reads(c+1)) + m[9:]: e(x)
        if c == 0:
            tag_wait("k", 8, True)
            e(f"s_cmp_lt_u32 s{sW}, 4\ns_cbranch_scc1 Lkvr2")
            rowstat_store()
            e("Lkvr2:")
    else:
        e(kstat_issue())
        for x in m: e(x)
tstamp(1)
e(f"""v_and_b32 v{vT2}, 31, v{vLane}
v_lshlrev_b32 v{vT2}, 2, v{vT2}
s_xor_b32 s{sT2}, s{sXb}, 65536
s_add_u32 s{sT1}, s{sXb}, 4352
s_lshl_b32 s{sQo}, s{sW}, 16
s_add_u32 s{sQo}, s{sQo}, {64*15}
s_lshl_b32 s{sMq}, s{sW}, 12
s_add_u32 s{sMq}, s{sMq}, {WKV}""")
cs_write(vCs, f"s{sT1}")
e(f"""v_add_u32 v{vT0}, s{sXb}, v{vL16}
v_add_u32 v{vWa1}, s{sT2}, v{vL16}
v_add_u32 v{vWa2}, s{sT2}, v{vT2}
v_lshl_add_u32 v{vT3}, v{vH}, 4, s{sXb}
s_cmp_ge_u32 s{sW}, 4
s_cbranch_scc1 LkvH""")
def wq_dma():
    for k in range(4):
        e(f"s_add_u32 m0, s{sMq}, {1024*k}\ns_add_u32 s{sT0}, s{sQo}, {16384*k}\nbuffer_load_dwordx4 v{vQa}, {sr(SWQ,4)}, s{sT0} offen lds")
def kstat_wait(tag):
    e(f"""s_mov_b32 s{sT0}, 0
    s_waitcnt vmcnt(0)
    Lks_{tag}:
    v_cmp_ne_u64 vcc, s[{sNo}:{sNo+1}], {vr(vSt+2,2)}
    s_add_u32 s{sT0}, s{sT0}, 1
    s_cmp_ge_u32 s{sT0}, 100000
    s_cbranch_vccz Lksd_{tag}
    s_cbranch_scc1 Lksd_{tag}
    {kstat_issue()}
    s_waitcnt vmcnt(0)
    s_branch Lks_{tag}
    Lksd_{tag}:""")
for q in range(4): e(f"ds_write_b128 v{vT0}, {vr(vAcc+32+4*q,4)} offset:{1024*q}")
e(f"v_xor_b32 v{vT1}, 0x10000, v{vT3}\ns_waitcnt lgkmcnt(0)\ns_barrier")
e(f"""ds_read_b128 {vr(vWk,4)}, v{vWa1}
ds_read_b128 {vr(vWk+4,4)}, v{vWa1} offset:1024
ds_read_b128 {vr(vSt+12,4)}, v{vT3} offset:{4352+64}
ds_read_b128 {vr(vSt+16,4)}, v{vT3} offset:{4352+96}
ds_read_b128 {vr(vWk+8,4)}, v{vT1} offset:{4352+64}
ds_read_b128 {vr(vWk+12,4)}, v{vT1} offset:{4352+96}""")
e(f"""v_and_b32 v{vT0}, 0x33, v{vLane}
v_bfe_u32 v{vT1}, v{vLane}, 2, 1
v_lshl_or_b32 v{vT0}, v{vT1}, 3, v{vT0}
v_bfe_u32 v{vT1}, v{vLane}, 3, 1
v_lshl_or_b32 v{vT0}, v{vT1}, 2, v{vT0}
v_lshlrev_b32 v{vT0}, 4, v{vT0}
s_waitcnt lgkmcnt(0)""")
for p in range(0, 8, 2):
    e(pk("v_pk_add_f32", vAcc+24+p, [('p', vAcc+24+p), ('p', vWk+p)]))
    e(pk("v_pk_add_f32", vSt+12+p, [('p', vSt+12+p), ('p', vWk+8+p)]))
kstat_wait("l")
e(f"v_sub_f32 v{vSt+4}, 0, v{vSt}")
lin_fold(vAcc+24, vSt+12, vSt+4, vSt+1, 8)
for p in range(4): e(f"v_cvt_pk_bf16_f32 v{vAcc+16+p}, v{vAcc+24+2*p}, v{vAcc+25+2*p}")
e(f"buffer_store_dwordx4 {vr(vAcc+16,4)}, v{vT0}, {sr(SWS,4)}, s{sC0} offen sc1\ns_branch LkvS")
e("LkvH:")
e(f"ds_write_b128 v{vT0}, {vr(vAcc+24,4)}\nds_write_b128 v{vT0}, {vr(vAcc+28,4)} offset:1024")
e(f"v_add_u32 v{vT1}, s{sXb}, v{vT2}\ns_waitcnt lgkmcnt(0)\ns_barrier")
e(f"ds_read_b32 v{vSt+6}, v{vT1} offset:4352\nds_read_b32 v{vSt+7}, v{vWa2} offset:4352")
for q in range(4): e(f"ds_read_b128 {vr(vAcc+48+4*q,4)}, v{vWa1} offset:{1024*q}")
tstamp(21)
kstat_wait("h")
tstamp(23)
e(f"ds_write_b32 v{vT1}, v{vSt} offset:4608\nds_write_b32 v{vT1}, v{vSt+1} offset:4736\ns_waitcnt lgkmcnt(0)")
for q in range(4):
    e(f"ds_read_b128 {vr(vWk+4*q,4)}, v{vT3} offset:{4608+32*q}\nds_read_b128 {vr(vWk+16+4*q,4)}, v{vT3} offset:{4736+32*q}")
e(f"v_add_f32 v{vSt+6}, v{vSt+6}, v{vSt+7}\nv_sub_f32 v{vSt+6}, 0, v{vSt+6}")
for p in range(0, 16, 2): e(pk("v_pk_add_f32", vAcc+32+p, [('p', vAcc+32+p), ('p', vAcc+48+p)]))
e("s_waitcnt lgkmcnt(0)")
for p in range(0, 16, 2): e(pk("v_pk_fma_f32", vAcc+32+p, [('p', vWk+p), ('b', vSt+6), ('p', vAcc+32+p)]))
for p in range(0, 16, 2): e(pk("v_pk_mul_f32", vAcc+32+p, [('p', vAcc+32+p), ('p', vWk+16+p)]))
for p in range(8): e(f"v_cvt_pk_bf16_f32 v{vAcc+32+p}, v{vAcc+32+2*p}, v{vAcc+33+2*p}")
v_lane_addr(vT0)
for p in range(8): e(f"v_mov_b32 v{vAcc+32+p}, 0x3f803f80")
e(f"""s_mov_b32 exec_lo, 0x1ffff
s_mov_b32 exec_hi, 0xffff
buffer_store_dwordx4 {vr(vAcc+32,4)}, v{vT0}, {sr(SWS,4)}, s{sC0} offen offset:1024 sc1
buffer_store_dwordx4 {vr(vAcc+36,4)}, v{vT0}, {sr(SWS,4)}, s{sC0} offen offset:{1024+528} sc1
s_mov_b64 exec, -1""")
tstamp(29)
e("LkvS:")
wq_dma()
for r in range(4): e(f"v_mov_b32 v{vCs+r}, 0")
e(f"s_lshl_b32 s{sT2}, s{sI}, 7\ns_add_u32 s{sT2}, s{sT2}, {KFLG}\ns_waitcnt vmcnt(4)\ns_barrier")
if "--dkv" in sys.argv:
    for _ in range(3): e("s_sleep 127")
flag_set(sT2, "kv")
stamp(13)
tflush(); TS.clear(); rt_out()
e("s_waitcnt vmcnt(0)\ns_barrier")
def q_reads(c):
    r = []
    for ks in range(4):
        W = vWk + 16*(c & 1) + 4*ks
        r += tr(W, vRQ, (64*c+16*ks)*64) + tr(W+2, vRQ, (64*c+16*ks+4)*64)
    return r
for x in q_reads(0): e(x)
for c in range(4):
    m = []
    for ks in range(4):
        X = vXf+16*c+4*ks; W = vWk + 16*(c & 1) + 4*ks
        m += [mfma(vAcc, W, X, "0" if c == 0 and ks == 0 else None), mfma16(vCs, W, vSel)]
    e("s_waitcnt lgkmcnt(0)")
    for x in interleave(m[:4], q_reads(c+1) if c < 3 else []) + m[4:]: e(x)
e(f"""s_or_b32 s{sT2}, s{sXb}, {65536+8192}
s_lshr_b32 s{sT3}, s{sW}, 2
s_lshl_b32 s{sT3}, s{sT3}, 7
s_add_u32 s{sT1}, s{sT2}, s{sT3}
s_add_u32 s{sT1}, s{sT1}, 4096
v_add_u32 v{vWa1}, s{sT2}, v{vL16}
v_lshl_add_u32 v{vT3}, v{vH}, 4, s{sT2}
s_nop 3""")
cs_write(vCs, f"s{sT1}")
e(f"s_cmp_ge_u32 s{sW}, 4\ns_cbranch_scc1 LkvH2\ns_waitcnt lgkmcnt(0)\ns_barrier")
for q in range(4): e(f"ds_read_b128 {vr(vWk+4*q,4)}, v{vWa1} offset:{1024*q}")
cs_read(vAcc+48, 4096); cs_read(vWk+16, 4096+128)
e("s_waitcnt lgkmcnt(0)")
for p in range(0, 16, 2):
    e(pk("v_pk_add_f32", vAcc+p, [('p', vAcc+p), ('p', vWk+p)]))
    e(pk("v_pk_add_f32", vAcc+48+p, [('p', vAcc+48+p), ('p', vWk+16+p)]))
q_epilogue(vAcc+48)
a_init(); fin_init()
e("s_waitcnt lgkmcnt(0)\ns_barrier\ns_branch LaR\nLkvH2:")
for q in range(4): e(f"ds_write_b128 v{vWa1}, {vr(vAcc+4*q,4)} offset:{1024*q}")
e(f"s_mov_b32 s{sKf}, {KFLG}")
e(flags_issue(sKf))
e("s_waitcnt lgkmcnt(0)\ns_barrier")
f_init()
flags_wait(sKf, "kv2", 0)
kv_dma("c")
e("s_waitcnt vmcnt(0)\ns_barrier")
if ES: a_sent(True)
e("s_branch LFkv")

AAL = 6 if "--a6" in sys.argv else 3
vm = []
def vtag(tag): vm.append(tag)
def vwait_s(tag):
    idx = max(i for i, t in enumerate(vm) if t == tag)
    return f"s_waitcnt vmcnt({min(63, len(vm)-1-idx)})"
def emit_seq(seq):
    for x in seq:
        if isinstance(x, list): emit_seq(x)
        elif isinstance(x, tuple): vtag(x[0]); e(x[1])
        elif callable(x): e(x())
        else: e(x)
e(f"Lp2:\ns_setprio 3\ns_cmp_eq_u32 s{sSt}, 0\ns_cbranch_scc1 Lkvok")
stamp(16)
flags_wait(sKf, "kv", 0)
stamp(17)
kv_dma("d")
e(f"v_mov_b32 v{vT0}, {KFL}\nds_write_b32 v{vT0}, v{hF+1} offset:16")
e(f"""Lkvok:
v_mov_b32 v{vT0}, {KFL}
s_mov_b32 s{sT0}, 0
s_waitcnt vmcnt(0)
ds_write_b32 v{hF}, v{hF+1}
Lkw:
ds_read_b128 {vr(aS[0],4)}, v{vT0}
s_add_u32 s{sT0}, s{sT0}, 1
s_waitcnt lgkmcnt(0)
v_and_b32 v{aS[0]}, v{aS[0]}, v{aS[0]+1}
v_and_b32 v{aS[0]+2}, v{aS[0]+2}, v{aS[0]+3}
v_and_b32 v{aS[0]}, v{aS[0]}, v{aS[0]+2}
v_cmp_ne_u32 vcc, 0, v{aS[0]}
s_cmp_ge_u32 s{sT0}, 2000000
s_cbranch_scc1 LaR
s_cbranch_vccnz LaR
s_sleep 1
s_branch Lkw
LaR:""")
stamp(3)
e(f"""ds_read_b128 {vr(aQ[0],4)}, v{vAq}
ds_read_b128 {vr(aK[0],4)}, v{vAk}
ds_read_b128 {vr(aQ[1],4)}, v{vAq} offset:1024
ds_read_b128 {vr(aK[1],4)}, v{vAk} offset:{KVT}
ds_read_b128 {vr(aVl[0],4)}, v{vAv}
ds_read_b128 {vr(aVh[0],4)}, v{vAv} offset:528
s_waitcnt lgkmcnt(4)""")
e(mfma(aS[0], aK[0], aQ[0], "0"))
e("s_waitcnt lgkmcnt(3)")
e(mfma(aS[1], aK[0], aQ[1], "0"))
e("s_nop 9")
for b in range(2):
    t = vT0+2*b; S = aS[b]
    e(f"v_max3_f32 v{t}, v{S}, v{S+1}, v{S+2}")
    for p in range(3, 15, 2): e(f"v_max3_f32 v{t}, v{t}, v{S+p}, v{S+p+1}")
    e(f"v_max_f32 v{t}, v{t}, v{S+15}\nv_mov_b32 v{t+1}, v{t}")
e(f"""s_nop 1
v_permlane32_swap_b32 v{vT0}, v{vT1}
v_permlane32_swap_b32 v{vT2}, v{vT3}
s_mov_b32 s{sSt}, 0
v_max_f32 v{vT0}, v{vT0}, v{vT1}
v_max_f32 v{vT2}, v{vT2}, v{vT3}""")
for b in range(2):
    e(f"v_sub_f32 v{aC[b]}, 0, v{vT0+2*b}\nv_sub_f32 v{aC[b]+1}, 0, v{vT0+2*b}")
for r in range(16): e(f"v_sub_f32 v{aS[0]+r}, v{aS[0]+r}, v{vT0}")
for b in (1, 0):
    for r in range(2, 16, 2): e(f"v_mov_b64 {vr(aC[b]+r,2)}, {vr(aC[b],2)}")
e("s_setprio 1")
stamp(5)
e(f"v_exp_f32 v{aS[0]}, v{aS[0]}\nv_exp_f32 v{aS[0]+1}, v{aS[0]+1}\ns_branch La1\n.p2align {AAL}\nLa0:")
for n in range(32):
    b = n & 1; T = n >> 1
    X = aS[b]; Y = aS[b ^ 1]
    ex = [f"v_exp_f32 v{X+i}, v{X+i}" for i in range(16)]
    Tp = (n-1) >> 1; Tn = (n+1) >> 1
    seq = ex[0:2] + [smf(aO[b ^ 1], aVh[Tp & 1], Y+8, vIdx)] + (["La1:"] if n == 0 else []) + ex[2:5]
    seq += [mfma(Y, aK[Tn & 1], aQ[b ^ 1], vr(aC[b ^ 1], 16))]
    if b:
        rd = [f"ds_read_b128 {vr(aVl[(T+1)&1],4)}, v{vAv} offset:{(T+1)*KVT}",
              f"ds_read_b128 {vr(aVh[(T+1)&1],4)}, v{vAv} offset:{(T+1)*KVT+528}",
              f"ds_read_b128 {vr(aK[T&1],4)}, v{vAk} offset:{(T+2)*KVT}"]
        seq += rd + ex[5:10]
    else: seq += ["s_waitcnt lgkmcnt(0)"] + ex[5:10]
    seq += [smf(aO[b], aVl[T & 1], X, vIdx)] + ex[10:16]
    for x in seq: e(x)
if PROF:
    e(f"s_memtime s[{sTm}:{sTm+1}]\ns_lshl_b32 s{sT0}, s{sSt}, 2\ns_add_u32 s{sT0}, s{sT0}, s{sPo}\ns_waitcnt lgkmcnt(0)\nv_mov_b32 v0, s{sTm}\nbuffer_store_dword v0, off, {sr(SWS,4)}, s{sT0} offset:72")
e(f"""v_add_u32 v{vAk}, {16*KVT}, v{vAk}
v_add_u32 v{vAv}, {16*KVT}, v{vAv}
s_add_u32 s{sSt}, s{sSt}, 1
s_cmp_eq_u32 s{sSt}, 1
s_cbranch_scc0 La2
{'' if PROF else 's_waitcnt vmcnt(0)'}
s_barrier
s_branch La0
La2:
s_cmp_lt_u32 s{sSt}, 4
s_cbranch_scc1 La0""")
e(smf(aO[1], aVh[1], aS[1]+8, vIdx))
if "--dA" in sys.argv:
    e(f"s_and_b32 s{sT0}, s2, 0x29\ns_cmp_lg_u32 s{sT0}, 0\ns_cbranch_scc1 LdA\ns_sleep 127\ns_sleep 127\nLdA:")
e(f"s_mov_b32 s{sC0}, {f2u(2.0**40):#x}\ns_mov_b32 s{sC1}, {f2u(2.0**126):#x}")
for b in range(2):
    O = aO[b]
    e(f"s_mov_b32 s{sRetry}, 0\nLfin{b}:")
    e(f"""v_rcp_f32 v{O+10}, v{O+8}
    v_max3_f32 v{vT1}, abs(v{O}), abs(v{O+1}), abs(v{O+2})
    v_max3_f32 v{vT1}, v{vT1}, abs(v{O+3}), abs(v{O+4})
    v_max3_f32 v{vT1}, v{vT1}, abs(v{O+5}), abs(v{O+6})
    v_max_f32 v{vT1}, v{vT1}, abs(v{O+7})
    v_cmp_nlt_f32 vcc, v{O+8}, s{sC0}
    v_cmp_nlt_f32 s[{sEx}:{sEx+1}], v{vT1}, s{sC1}""")
    for p in range(8): e(f"v_mul_f32 v{O+p}, v{O+p}, v{O+10}")
    e(f"s_or_b64 vcc, vcc, s[{sEx}:{sEx+1}]")
    for p in range(4): e(f"v_cvt_pk_bf16_f32 v{O+p}, v{O+2*p}, v{O+2*p+1}")
    for p in range(4): e(f"v_min_u32 v{O+p}, -2, v{O+p}")
    e(f"s_cbranch_vccnz Lfallback{b}\nLok{b}:")
    e(f"buffer_store_dwordx4 {vr(O,4)}, v{vL16}, {sr(SWS,4)}, s{sOp if b == 0 else sOp2} offen sc1")
stamp(6)
OSC = " sc1"
gX = [136, 140]; gG = [144, 176]; gR = [8, 40]
e(f"buffer_load_dwordx4 {vr(gX[0],4)}, v{vRa}, {sr(SX,4)}, s{sXf} offen")
e(f"buffer_load_dwordx4 {vr(gX[1],4)}, v{vRa}, {sr(SX,4)}, s{sXf2} offen")
e("s_waitcnt lgkmcnt(0)\ns_setprio 0\ns_barrier\ns_barrier")
stamp(8)
for tt in range(2):
    for q in range(8): e(f"ds_read_b128 {vr(gG[tt]+4*q,4)}, v{vRr} offset:{128*tt+XK*(q//2)+512*(q%2)}")
def sum4(r):
    for p in range(0, 8, 2):
        e(pk("v_pk_add_f32", r+p, [('p', r+p), ('p', r+8+p)]))
        e(pk("v_pk_add_f32", r+16+p, [('p', r+16+p), ('p', r+24+p)]))
    for p in range(0, 8, 2): e(pk("v_pk_add_f32", r+p, [('p', r+p), ('p', r+16+p)]))
for tt in range(2):
    G = gG[tt]
    e(f"s_waitcnt lgkmcnt({8*(1-tt)})")
    for p in range(8): e(f"v_add_f32 v{G+p}, v{G+p}, v{G+8+p}\nv_add_f32 v{G+16+p}, v{G+16+p}, v{G+24+p}")
    for p in range(8): e(f"v_add_f32 v{G+p}, v{G+p}, v{G+16+p}")
    for p in range(8): e(f"v_mul_f32 v{G+8+p}, {f2u(-1.4426950408889634):#x}, v{G+p}")
    for p in range(8): e(f"v_exp_f32 v{G+8+p}, v{G+8+p}")
    for p in range(8): e(f"v_add_f32 v{G+8+p}, 1.0, v{G+8+p}")
    for p in range(8): e(f"v_rcp_f32 v{G+8+p}, v{G+8+p}")
    e("s_waitcnt vmcnt(0)")
    for p in range(4): e(f"v_lshlrev_b32 v{G+16+2*p}, 16, v{gX[tt]+p}\nv_and_b32 v{G+17+2*p}, 0xffff0000, v{gX[tt]+p}")
    for p in range(8): e(f"v_mul_f32 v{G+p}, v{G+p}, v{G+8+p}")
stamp(9)
e("s_barrier")
for tt in range(2):
    for q in range(8): e(f"ds_read_b128 {vr(gR[tt]+4*q,4)}, v{vRr2} offset:{128*tt+XK*(q//2)+512*(q%2)}")
for tt in range(2):
    R = gR[tt]; G = gG[tt]
    e(f"s_waitcnt lgkmcnt({8*(1-tt)})")
    sum4(R)
    for p in range(0, 8, 2): e(pk("v_pk_fma_f32", R+p, [('p', R+p), ('p', G+p), ('p', G+16+p)]))
    for p in range(4): e(f"v_cvt_pk_bf16_f32 v{R+p}, v{R+2*p}, v{R+2*p+1}")
    e(f"buffer_store_dwordx4 {vr(R,4)}, v{vRa}, {sr(SOUT,4)}, s{sXf if tt == 0 else sXf2} offen{OSC}")
def the_end():
    stamp(11)
    if RT: e(f"s_waitcnt vmcnt(0)\ns_memrealtime s[100:101]\ns_waitcnt lgkmcnt(0)\nv_mov_b32 v0, s100\nbuffer_store_dword v0, off, {sr(SWS,4)}, s{sPo} offset:56")
the_end()
e("Lend:\ns_endpgm")

e("LFkv:")
kv_rest("k")
e("LF:")
if FS and not ES: a_sent(True)
tag_wait("f", 0)
e("s_setprio 0\ns_barrier")
flag_set(sHs, "h", 4)
RG = SP + [aslot(n) for n in range(4)]
def u_dma(m):
    srdw, row = (SWO, 64*m) if m < 8 else (SWD, 64*(m-8))
    return [f"s_add_u32 m0, s{sDm}, {RG[m % 7]}", f"s_add_u32 s{sT0}, s{sDo}, {row*1024}",
            (f"u{m}", f"buffer_load_dwordx4 v{vDa}, {sr(srdw,4)}, s{sT0} offen lds"),
            (f"u{m}", f"buffer_load_dwordx4 v{vDa2}, {sr(srdw,4)}, s{sT0} offen offset:1024 lds")]
def u_reads(m, F):
    a = RG[m % 7]; win = 1 if a >= SP[0] else 0; off = a - win*SP[0]
    r0, r1 = vRd+2*win, vRd+2*win+1
    return tr(F, r0, off) + tr(F+2, r0, off+1024) + tr(F+4, r1, off) + tr(F+6, r1, off+1024)
HR = int(sys.argv[sys.argv.index("--hr")+1]) if "--hr" in sys.argv else 8
def h_loads(s):
    r = []
    if s % 4 == 0: r += [f"s_add_u32 s{sC0}, s{sHo}, {1024*s}", f"s_add_u32 s{sC1}, s{sC0}, {88*1024}"]
    for tt in range(2):
        r.append((f"h{s}", f"buffer_load_dwordx4 {vr(fH+8*(s % HR)+4*tt,4)}, v{vL16}, {sr(SWS,4)}, s{sC0 if tt == 0 else sC1} offen offset:{1024*(s%4)} sc1"))
    return r
for m in range(7): emit_seq(u_dma(m))
for m in range(8):
    e(vwait_s(f"u{m}"))
    for x in u_reads(m, fWo+8*m): e(x)
    e("s_waitcnt lgkmcnt(0)")
    emit_seq(u_dma(m+7))
tstamp(18)
e(flags_issue(sHc))
flags_wait(sHc, "h", 0)
tstamp(19)
for s in range(HR): emit_seq(h_loads(s))
for x in u_reads(8, fWb[0]): e(x)
FB = int(sys.argv[sys.argv.index("--fb")+1]) if "--fb" in sys.argv else 15
for s in range(22):
    m = 8+s; W = fWb[s & 1]
    if s == FB:
        tstamp(20); e("s_barrier\ns_setprio 2"); tstamp(21)
    if s < 21:
        e(vwait_s(f"u{m+1}"))
        for x in u_reads(m+1, fWb[(s+1) & 1]): e(x)
        e("s_waitcnt lgkmcnt(4)")
    else: e("s_waitcnt lgkmcnt(0)")
    if m+7 < 30: emit_seq(u_dma(m+7))
    e(vwait_s(f"h{s}"))
    if s == 21: e(f"s_cmp_ge_u32 s{sW4}, 2\ns_cbranch_scc1 Lskip21")
    for tt in range(2):
        for ch in range(2 if "--nofm" not in sys.argv else 0): e(mfma(fA+32*tt+16*ch, W+4*ch, fH+8*(s % HR)+4*tt, "0" if s == 0 else None))
    if s+HR < 22: emit_seq(h_loads(s+HR))
e("Lskip21:\ns_nop 8")
tstamp(22)
ORD = [7, 6, 5, 4, 3, 2, 1, 0] if M48 else [i ^ (2*JX) for i in [7, 6, 5, 4, 1, 0, 3, 2]]
def o_load(k):
    tt, i = k & 1, k >> 1
    return f"buffer_load_dwordx4 {vr(opos(i)+4*tt,4)}, v{vL16}, {sr(SWS,4)}, s{(sOc, sOc2, sOc3, sOc4)[2*tt+(i>>2)]} offen offset:{1024*(i%4)} sc1"
def opos(i): return fO + 8*ORD.index(i)
zer = [f"v_mov_b64 {vr(fS+r,2)}, 0" for r in range(0, 64, 2)]
for q in range(16):
    e(f"ds_write_b128 v{vRw}, {vr(fA+4*q,4)} offset:{XB*(q//2)+XP*(q%2)}")
    if q >= 4: e(f"s_waitcnt lgkmcnt(4)\n{o_load(2*ORD[(q-4)//2]+(q & 1))}")
e("s_waitcnt lgkmcnt(0)\ns_barrier")
for k in range(12, 16): e(o_load(2*ORD[k//2]+(k & 1)))
tstamp(9)
def o_pair(i, tag, wait):
    B = opos(i)
    if wait is not None: e(f"s_waitcnt vmcnt({wait})")
    else: e(f"s_bitcmp1_b32 s{sSt}, {i}\ns_cbranch_scc0 Lon{tag}{i}")
    e(f"""v_max3_u32 v{vT1}, v{B}, v{B+1}, v{B+2}
    v_max3_u32 v{vT1}, v{vT1}, v{B+3}, v{B+4}
    v_max3_u32 v{vT1}, v{vT1}, v{B+5}, v{B+6}
    v_max_u32 v{vT1}, v{vT1}, v{B+7}
    v_cmp_eq_u32 vcc, s{sT1}, v{vT1}
    s_cbranch_vccnz Lon{tag}{i}
    s_bitset0_b32 s{sSt}, {i}""")
    for tt in range(2):
        for ch in range(2): e(mfma(fS+32*tt+16*ch, fWo+8*i+4*ch, B+4*tt))
    e(f"Lon{tag}{i}:")
def acc_chain(tt, ch): return [mfma(fS+32*tt+16*ch, fWo+8*i+4*ch, opos(i)+4*tt, "0" if n == 0 else None) for n, i in enumerate(ORD)]
def s_wr(tt, ch): return [f"ds_write_b128 v{vRw2+tt}, {vr(fS+32*tt+16*ch+4*q,4)} offset:{XB*(2*ch+q//2)+XP*(q%2)}" for q in range(4)]
e(f"v_mov_b32 v{vT1}, 0")
for n, x in enumerate(acc_chain(0, 0)):
    B = fO+8*n
    e(f"s_waitcnt vmcnt({14-2*n})\n{x}")
    for p in range(0, 8, 2): e(f"v_max3_u32 v{vT1}, v{vT1}, v{B+p}, v{B+p+1}")
e(f"v_cmp_eq_u32 vcc, -1, v{vT1}\ns_cbranch_vccnz Lor0")
c1, c2, c3 = acc_chain(0, 1), acc_chain(1, 0), acc_chain(1, 1)
for prev, c in (((0, 0), c1), ((0, 1), c2), ((1, 0), c3)):
    for x in [c[0], "s_nop 3", c[1], "s_nop 3", c[2]] + interleave(c[3:7], s_wr(*prev)) + c[7:]: e(x)
stamp(7)
e("s_nop 11")
for x in s_wr(1, 1): e(x)
e("Lsd:")
e("s_waitcnt lgkmcnt(0)\ns_barrier")
stamp(10); tflush(); TS.clear()
the_end()
e("s_endpgm")
e(f"Lor0:\ns_nop 8")
for x in zer: e(x)
e(f"s_mov_b32 s{sT0}, 0\ns_mov_b32 s{sSt}, 0xff\ns_mov_b32 s{sT1}, -1\ns_branch Lor2")
e("Lor:\ns_sleep 4")
for i in ORD:
    e(f"s_bitcmp1_b32 s{sSt}, {i}\ns_cbranch_scc0 Lorn{i}\n{o_load(2*i)}\n{o_load(2*i+1)}\nLorn{i}:")
e(f"""s_add_u32 s{sT0}, s{sT0}, 1
s_cmp_ge_u32 s{sT0}, 200000
s_cbranch_scc1 Lod
s_waitcnt vmcnt(0)
Lor2:""")
for i in ORD: o_pair(i, "b", None)
e(f"s_cmp_lg_u32 s{sSt}, 0\ns_cbranch_scc1 Lor\nLod:\ns_nop 6")
for tt in range(2):
    for ch in range(2):
        for x in s_wr(tt, ch): e(x)
e("s_branch Lsd")
for b in range(2):
    S = aS[0]; O = aO[b]; C = aC[b]; Q = aQ[b]
    e(f"""Lfallback{b}:
    s_cmp_lg_u32 s{sRetry}, 0
    s_cbranch_scc1 Lok{b}
    s_mov_b32 s{sRetry}, 1
    s_mov_b32 s{sSt}, 0
    v_mov_b32 v{vT1}, 0xff800000
    s_waitcnt lgkmcnt(0)
    Lfb1{b}:
    buffer_load_dwordx4 {vr(aK[0],4)}, v{vL16}, {sr(SWS,4)}, s{sSt} offen sc1
    s_waitcnt vmcnt(0)""")
    e(mfma(S, aK[0], Q, "0"))
    e("s_nop 11")
    for p in range(0, 16, 2): e(f"v_max3_f32 v{vT1}, v{vT1}, v{S+p}, v{S+p+1}")
    e(f"""s_add_u32 s{sSt}, s{sSt}, {KVT}
    s_cmp_lt_u32 s{sSt}, {64*KVT}
    s_cbranch_scc1 Lfb1{b}
    v_mov_b32 v{vT2}, v{vT1}
    s_nop 1
    v_permlane32_swap_b32 v{vT1}, v{vT2}
    s_nop 1
    v_max_f32 v{vT1}, v{vT1}, v{vT2}""")
    for r in range(16): e(f"v_sub_f32 v{C+r}, 0, v{vT1}")
    for r in range(12): e(f"v_mov_b32 v{O+r}, 0")
    e(f"""v_subrev_u32 v{vT0}, {64*KVT}, v{vAv}
    s_mov_b32 s{sSt}, 0
    Lfb2{b}:
    buffer_load_dwordx4 {vr(aK[0],4)}, v{vL16}, {sr(SWS,4)}, s{sSt} offen sc1
    buffer_load_dwordx4 {vr(aVl[0],4)}, v{vT0}, {sr(SWS,4)}, s{sSt} offen sc1
    buffer_load_dwordx4 {vr(aVh[0],4)}, v{vT0}, {sr(SWS,4)}, s{sSt} offen offset:528 sc1
    s_waitcnt vmcnt(0)""")
    e(mfma(S, aK[0], Q, vr(C, 16)))
    e("s_nop 11")
    for i in range(16): e(f"v_exp_f32 v{S+i}, v{S+i}")
    e("s_nop 1")
    e(smf(O, aVl[0], S, vIdx)); e(smf(O, aVh[0], S+8, vIdx))
    e(f"""s_add_u32 s{sSt}, s{sSt}, {KVT}
    s_cmp_lt_u32 s{sSt}, {64*KVT}
    s_cbranch_scc1 Lfb2{b}
    s_nop 9
    s_branch Lfin{b}""")
e("Lcodeend:")

L += ['.section .rodata,"a"', ".p2align 6", f".amdhsa_kernel {NAME}_kernel",
      "  .amdhsa_next_free_vgpr 256", "  .amdhsa_next_free_sgpr 102", "  .amdhsa_accum_offset 256",
      "  .amdhsa_group_segment_fixed_size 0", "  .amdhsa_kernarg_size 96", "  .amdhsa_user_sgpr_count 2",
      "  .amdhsa_user_sgpr_kernarg_segment_ptr 1", "  .amdhsa_system_sgpr_workgroup_id_x 1", ".end_amdhsa_kernel"]
open(OUT, "w").write("\n".join(L) + "\n")
print("wrote", OUT, len(L), "lines")
```

```python
import sys, struct
NAME = "recurrent_scan__grouped_kv_mqa__geglu_ffn__prompt"
PROF = "--prof" in sys.argv
OUT = [a for a in sys.argv[1:2] if not a.startswith("--")]
OUT = OUT[0] if OUT else f"cdna_kernels/{NAME}.s"

L = []
def e(s):
    for ln in s.split("\n"):
        if not ln.strip(): continue
        L.append(("    " + ln.strip()) if not ln.strip().endswith(":") else ln.strip())
def f2u(x): return struct.unpack("<I", struct.pack("<f", x))[0]
def vr(a, n): return f"v[{a}:{a+n-1}]"
def sr(a, n): return f"s[{a}:{a+n-1}]"

KVT = 2080
KVIMG = 0
HIMG = 135168
OIMG = HIMG + 64*88*1024
HFLG = OIMG + 64*32*1024
KFLG = HFLG + 256*128
STATG = KFLG + 16*128
CSG = STATG + 2048*16
PROFO = CSG + 64*2048
WS_BYTES = PROFO + 256*8*256
CNT_KV = 0
KVRDY = 128
STG = 45056
XOFF, GOFF, UOFF, QOFF = 0, 16384, 28672, 40960
STGK, QOFFK, NBK = 24832, 20736, 5
QIMG = 135168
STATM = 160768
CSUM = 162816
MRX = 159744
STL = 162816
KFL = 163776
LDS_BYTES = 163840
SX, SWQ, SWK, SWV, SWO, SWG, SWD, SOUT, SDBG, SWS = 4, 8, 12, 16, 20, 24, 28, 32, 36, 40
sI, sJ, sW, sW4 = 44, 45, 46, 47
sXo, sWo, sQo, sLb = 48, 49, 50, 51
sMx, sMw, sMq = 52, 53, 54
sSt, sDl, sT0, sT1, sT2, sT3 = 55, 56, 57, 58, 59, 60
sTB, sCS, sRetry, sRb = 61, 62, 63, 3
sEx = 88
sTm = 90
sPo = 92
sC0, sC1, sC2, sC3 = 94, 95, 96, 97
sOp = 98
TOUCH = int("--touch" in sys.argv)
vLane, vH, vT0, vT1, vT2, vT3 = 1, 2, 3, 4, 5, 6
vXa0, vXa1, vWa0, vWa1, vWa2, vQa = 7, 8, 9, 10, 11, 12
vRX = 13
vRW, vRQ = 17, 18
vSel = 20
vCs = 24
vF = 32
vAcc = 96
vSt = 160
aQ = [8, 12]; aK = [16, 20]; aVl = [24, 28]; aVh = [32, 36]; aS = [40, 56]; aC = [72, 88]; aO = [104, 120]
fA, fWo, fWb, fH, fX, fG = 8, 72, [136, 144], 152, 200, 204
fS, fO, fR = 136, 8, 8
vIdx, vAk, vAv, vDa, vL16, vRa = 240, 241, 242, 243, 244, 245
vPoll = 246
vRd = 248
vRw, vRr, vRr2, vDa2 = 252, 253, 254, 255
vRw2 = 238
vAq = 237
sKq, sTt, sHo, sDo, sDm, sHc, sXf, sOc, sOc2, sHs = 64, 65, 66, 67, 68, 69, 70, 71, 72, 73
sOc3, sOc4, sOp2 = 80, 81, 99
sXf2 = 64
sNo = 86
sRow, sKf = 63, 85
ASL = 8320
XB, XK, XP = 8512, 2112, 1056
XF0, XS0, XS1 = 34048, 0, 102144
def aslot(n): return ASL*n
SP = [135168, 143360, 151552]

nstamp = [0]
DBGT = "--dbgt" in sys.argv
DT = {0: 75, 12: 76, 1: 77, 2: 78, 3: 79, 6: 80, 9: 81, 7: 82, 11: 83}
PAD = (int(sys.argv[sys.argv.index("--pad")+1]), int(sys.argv[sys.argv.index("--pad")+2])) if "--pad" in sys.argv else None
npad = [0]
PADB = sNo if "--padg" in sys.argv else 100
def stamp(k):
    if PAD and PAD[0] == k:
        npad[0] += 1
        e(f"Lpad{npad[0]}:\ns_memrealtime s[{sTm}:{sTm+1}]\ns_waitcnt lgkmcnt(0)\ns_sub_u32 s{sTm}, s{sTm}, s{PADB}\ns_sleep 8\ns_cmp_lt_u32 s{sTm}, {PAD[1]}\ns_cbranch_scc1 Lpad{npad[0]}")
    if DBGT and k in DT:
        e(f"s_memrealtime s[{sTm}:{sTm+1}]\ns_waitcnt lgkmcnt(0)\ns_sub_u32 s{DT[k]}, s{sTm}, s100")
        if k == 11:
            e(f"s_memtime s[{sTm}:{sTm+1}]\ns_waitcnt lgkmcnt(0)\ns_sub_u32 s84, s{sTm}, s92")
            e(f"s_cmp_lg_u32 s2, 64\ns_cbranch_scc1 Lend\ns_cmp_lg_u32 s{sW}, 4\ns_cbranch_scc1 Lend")
            for n, r in enumerate(range(75, 85)):
                e(f"v_mov_b32 v0, s{r}\nbuffer_store_dword v0, off, {sr(SDBG,4)}, 0 offset:{4+4*n}\ns_nop 1")
    if not PROF: return
    e(f"""s_memtime s[{sTm}:{sTm+1}]
    s_waitcnt lgkmcnt(0)
    v_mov_b32 v0, s{sTm}
    buffer_store_dword v0, off, {sr(SWS,4)}, s{sPo} offset:{4*k}""")
    if k in RTS:
        e(f"""s_memrealtime s[{sTm}:{sTm+1}]
        s_waitcnt lgkmcnt(0)
        v_mov_b32 v0, s{sTm}
        buffer_store_dword v0, off, {sr(SWS,4)}, s{sPo} offset:{4*RTS[k]}""")
RTS = {12: 24, 1: 25, 5: 26, 6: 27, 11: 28}

TS = []
def tstamp(k):
    if not PROF: return
    r = 74 + len(TS); TS.append((k, r))
    e(f"s_memtime s[{sTm}:{sTm+1}]\ns_waitcnt lgkmcnt(0)\ns_mov_b32 s{r}, s{sTm}")
def tflush():
    for k, r in TS: e(f"v_mov_b32 v0, s{r}\nbuffer_store_dword v0, off, {sr(SWS,4)}, s{sPo} offset:{4*k}\ns_nop 1")
def tick(acc):
    if not PROF or "--notick" in sys.argv: return ""
    r = f"s_memtime s[{sTm}:{sTm+1}]\ns_waitcnt lgkmcnt(0)\n"
    if acc is not None: r += f"s_sub_u32 s99, s{sTm}, s99\ns_add_u32 s{acc}, s{acc}, s99\n"
    return r + f"s_mov_b32 s99, s{sTm}"

def interleave(main, fill):
    out = []; n = len(main); m = len(fill); k = 0
    for i, a in enumerate(main):
        out.append(a)
        t = (m * (i + 1)) // n
        out += fill[k:t]; k = t
    return out

def mfma(d, a, b, c=None):
    c = vr(d, 16) if c is None else c
    return f"v_mfma_f32_32x32x16_bf16 {vr(d,16)}, {vr(a,4)}, {vr(b,4)}, {c}"
def mfma16(d, a, b): return f"v_mfma_f32_16x16x32_bf16 {vr(d,4)}, {vr(a,4)}, {vr(b,4)}, {vr(d,4)}"
def smf(d, a, b, idx): return f"v_smfmac_f32_32x32x32_bf16 {vr(d,16)}, {vr(a,4)}, {vr(b,8)}, v{idx}"

TK = PROF and "--tk" in sys.argv
def tk(acc):
    if not TK: return ""
    r = f"s_memtime s[{sTm}:{sTm+1}]\ns_waitcnt lgkmcnt(0)\n"
    if acc is not None: r += f"s_sub_u32 s82, s{sTm}, s82\ns_add_u32 s{acc}, s{acc}, s82\n"
    return r + f"s_mov_b32 s82, s{sTm}"
def tkout():
    if TK: e(f"v_mov_b32 v0, s80\nbuffer_store_dword v0, off, {sr(SWS,4)}, s{sPo} offset:{4*29}\ns_nop 1\nv_mov_b32 v0, s81\nbuffer_store_dword v0, off, {sr(SWS,4)}, s{sPo} offset:{4*30}")
def tr(d, a, off): return [f"ds_read_b64_tr_b16 {vr(d,2)}, v{a} offset:{off}"]
def tag_issue(): return f"buffer_load_dwordx2 {vr(vPoll,2)}, off, {sr(SDBG,4)}, 0 sc1"
def tag_wait(tag, first_wait, early=False):
    chk = f"""s_memrealtime s[{sTm}:{sTm+1}]
    s_waitcnt lgkmcnt(0)
    s_sub_u32 s{sTm}, s{sTm}, s{sNo}
    s_add_u32 s{sTm}, s{sTm}, 200
    s_cmp_lt_u32 s{sTm}, 2000
    s_cselect_b32 s{sTm}, 99, s{sT0}
    s_cmp_lt_u32 s{sTm}, 40
    s_cbranch_scc1 Ltagr_{tag}""" if early else ""
    e(f"""s_mov_b32 s{sT0}, 0
    s_waitcnt vmcnt({first_wait})
    Ltag_{tag}:
    v_readfirstlane_b32 s{sNo}, v{vPoll}
    v_readfirstlane_b32 s{sNo+1}, v{vPoll+1}
    s_add_u32 s{sT0}, s{sT0}, 1
    {chk}
    s_cmp_lg_u32 s{sNo}, 0
    s_cbranch_scc1 Ltagd_{tag}
    s_cmp_ge_u32 s{sT0}, 100000
    s_cbranch_scc1 Ltagd_{tag}
    Ltagr_{tag}:
    s_sleep 1
    {tag_issue()}
    s_waitcnt vmcnt(0)
    s_branch Ltag_{tag}
    Ltagd_{tag}:""")
def flags_issue(base):
    return f"""v_and_b32 v{vPoll}, 15, v{vLane}
    v_lshlrev_b32 v{vPoll}, 7, v{vPoll}
    buffer_load_dwordx2 {vr(vPoll,2)}, v{vPoll}, {sr(SWS,4)}, s{base} offen sc1"""
def h_poll_issue(): return flags_issue(sHc)
def flags_wait(base, tag, first_wait):
    e(f"""s_mov_b32 s{sT0}, 0
    s_waitcnt vmcnt({first_wait})
    Lfw_{tag}:
    v_cmp_ne_u64 vcc, s[{sNo}:{sNo+1}], {vr(vPoll,2)}
    s_add_u32 s{sT0}, s{sT0}, 1
    s_cmp_ge_u32 s{sT0}, 100000
    s_cbranch_vccz Lfwd_{tag}
    s_cbranch_scc1 Lfwd_{tag}
    s_sleep 3
    {flags_issue(base)}
    s_waitcnt vmcnt(0)
    s_branch Lfw_{tag}
    Lfwd_{tag}:""")
def flag_set(off_sreg, tag, wave=0):
    e(f"""s_cmp_lg_u32 s{sW}, {wave}
    s_cbranch_scc1 Lsig_{tag}
    v_mov_b32 v{vPoll}, s{sNo}
    v_mov_b32 v{vPoll+1}, s{sNo+1}
    s_mov_b64 exec, 1
    buffer_store_dwordx2 {vr(vPoll,2)}, off, {sr(SWS,4)}, s{off_sreg} sc1
    s_mov_b64 exec, -1
    Lsig_{tag}:""")

hdr = open(f"cdna_kernels/{NAME}.s.ref").read().split("\n")
hdr = [h for h in hdr[:15] if h.startswith(";") and "@launch" not in h]
L += hdr
L.append(f"; @launch grid=(256,1,1) block=(512,1,1) lds={LDS_BYTES}")
L += """;
; One persistent launch, 256 workgroups (one per CU) x 8 waves; written with a generator script.
;  workgroup (i, j): 128-token row block i, column group j (2 heads of Q, 96 gate/up columns); j = 15 makes K/V instead.
;  P1  x @ [wq | w_gate | w_up]: waves 4-7 MFMA (16x16x32), waves 0-3 LDS-DMA; LayerNorm folded into the epilogue
;      (row mean / rstd and weight column sums are computed once and exchanged through d_ws).
;  P2  waves 0-3: attention, S^T = K Q^T - m (m = row max of the first key tile, as the MFMA C operand), exp2, and
;      P V plus the row sum by the sparse MFMA straight from the f32 registers; a run-time check of the row sum and of
;      the accumulators falls back to the true row max.  waves 4-7: GELU gate, down projection, output projection.
;  P3  out = x + s * silu(f) on a 64x64 tile per workgroup.
;  Hand-offs: write-through stores + sc1 loads; flags carry a per-launch tag published in d_debug; the attention
;  output is pre-filled with a sentinel.  Every wait is bounded.""".split("\n")
L += ['.amdgcn_target "amdgcn-amd-amdhsa--gfx950"', ".text", f".globl {NAME}_kernel", ".p2align 8",
      f".type {NAME}_kernel,@function"]
e(f"{NAME}_kernel:")
RT = PROF
if RT: e("s_memrealtime s[100:101]\ns_memtime s[98:99]")
if DBGT or PAD: e("s_memrealtime s[100:101]\ns_memtime s[92:93]")
MAP84 = f"""s_and_b32 s{sI}, s{sT0}, 1
s_lshl_b32 s{sI}, s{sI}, 3
s_and_b32 s{sT2}, s{sT1}, 7
s_add_u32 s{sI}, s{sI}, s{sT2}
s_lshr_b32 s{sJ}, s{sT0}, 1
s_lshl_b32 s{sJ}, s{sJ}, 2
s_lshr_b32 s{sT3}, s{sT1}, 3
s_add_u32 s{sJ}, s{sJ}, s{sT3}
s_sub_u32 s{sJ}, 15, s{sJ}
s_and_b32 s{sTB}, s{sT0}, 3
s_lshl_b32 s{sTB}, s{sTB}, 3
s_add_u32 s{sTB}, s{sTB}, s{sT2}
s_lshr_b32 s{sCS}, s{sT0}, 2
s_lshl_b32 s{sCS}, s{sCS}, 2
s_add_u32 s{sCS}, s{sCS}, s{sT3}"""
MAP48 = f"""s_lshr_b32 s{sT2}, s{sT0}, 1
s_lshl_b32 s{sI}, s{sT2}, 2
s_and_b32 s{sT3}, s{sT1}, 3
s_add_u32 s{sI}, s{sI}, s{sT3}
s_lshl_b32 s{sTB}, s{sT2}, 3
s_and_b32 s{sT3}, s{sT1}, 7
s_add_u32 s{sTB}, s{sTB}, s{sT3}
s_and_b32 s{sT0}, s{sT0}, 1
s_lshl_b32 s{sJ}, s{sT0}, 3
s_lshr_b32 s{sT3}, s{sT1}, 2
s_add_u32 s{sJ}, s{sJ}, s{sT3}
s_sub_u32 s{sJ}, 15, s{sJ}
s_lshl_b32 s{sCS}, s{sT0}, 2
s_lshr_b32 s{sT3}, s{sT1}, 3
s_add_u32 s{sCS}, s{sCS}, s{sT3}"""
JX = int(sys.argv[sys.argv.index("--jx")+1]) if "--jx" in sys.argv else 0
if JX: MAP84 = MAP84.replace(f"s_lshr_b32 s{sJ}, s{sT0}, 1\n", f"s_lshr_b32 s{sJ}, s{sT0}, 1\ns_xor_b32 s{sJ}, s{sJ}, {JX}\n")
M48 = "--m48" in sys.argv
MAP = MAP48 if M48 else MAP84
PFC = "" if "--nopfc" in sys.argv else f"""s_cmp_lg_u32 s{sW}, 7
s_cbranch_scc1 Lnop0
s_getpc_b64 s[94:95]
Lpc0:
s_bfe_u32 s{sT0}, s2, 0x20003
s_lshl_b32 s{sT0}, s{sT0}, 13
v_lshl_add_u32 v{vT1}, v{vLane}, 7, s{sT0}
v_min_u32 v{vT1}, Lcodeend-Lpc0-4, v{vT1}
global_load_dword v236, v{vT1}, s[94:95]"""
e(f"""s_cmp_ge_u32 s2, 256
s_cbranch_scc1 Lend
s_load_dwordx2 s[{SX}:{SX+1}], s[0:1], 0
s_load_dwordx2 s[{SWG}:{SWG+1}], s[0:1], 48
s_load_dwordx2 s[{SWQ}:{SWQ+1}], s[0:1], 8
s_load_dwordx2 s[{SWV}:{SWV+1}], s[0:1], 24
s_load_dwordx2 s[{SDBG}:{SDBG+1}], s[0:1], 80
s_load_dwordx2 s[{SWS}:{SWS+1}], s[0:1], 88
v_and_b32 v{vLane}, 63, v0
v_lshrrev_b32 v{vT0}, 6, v0
v_lshrrev_b32 v{vH}, 5, v{vLane}
v_readfirstlane_b32 s{sW}, v{vT0}
{PFC}
Lnop0:
s_and_b32 s{sT0}, s2, 7
s_lshr_b32 s{sT1}, s2, 3
{MAP}
s_and_b32 s{sW4}, s{sW}, 3
v_lshrrev_b32 v{vT0}, 3, v{vLane}
v_lshlrev_b32 v{vT0}, 10, v{vT0}
v_and_b32 v{vT1}, 7, v{vLane}
v_lshrrev_b32 v{vT2}, 4, v{vLane}
v_xor_b32 v{vT1}, v{vT1}, v{vT2}
v_lshl_add_u32 v{vXa0}, v{vT1}, 4, v{vT0}
v_xor_b32 v{vXa1}, 64, v{vXa0}
v_add_u32 v{vXa1}, {8192-1024}, v{vXa1}
v_lshlrev_b32 v{vL16}, 4, v{vLane}
s_lshl_b32 s{sXo}, s{sI}, 17
s_lshl_b32 s{sT0}, s{sW4}, 15
s_add_u32 s{sXo}, s{sXo}, s{sT0}
s_lshl_b32 s{sRow}, s{sI}, 4
s_add_u32 s{sRow}, s{sRow}, s{sJ}
s_lshl_b32 s{sRow}, s{sRow}, 2
s_add_u32 s{sRow}, s{sRow}, s{sW4}
s_cmp_eq_u32 s{sJ}, 15
s_cselect_b32 s{sT0}, 16, 56
s_load_dwordx2 s[{SWK}:{SWK+1}], s[0:1], s{sT0}
s_mov_b32 s{sT1}, {512*2752}
s_cselect_b32 s{SWK+2}, 16384, s{sT1}
s_mov_b32 s{SWK+3}, 0x20000""")
SWU = SWK
vRs = 144
vRs2 = 216
for d, nbytes in ((SX, 2048*1024), (SWG, 512*2752), (SWQ, 512*1024), (SWV, 16384), (SDBG, 256), (SWS, WS_BYTES)):
    e(f"s_mov_b32 s{d+2}, {nbytes}\ns_mov_b32 s{d+3}, 0x20000")
def late_srd(lst):
    for d, off, nbytes in lst:
        e(f"s_load_dwordx2 s[{d}:{d+1}], s[0:1], {off}\ns_mov_b32 s{d+2}, {nbytes}\ns_mov_b32 s{d+3}, 0x20000")
LS_A = [(SOUT, 72, 2048*1024)]; LS_F = [(SWO, 32, 512*1024), (SWD, 64, 1376*1024)]
def entry_stamp(defer=False):
    if PROF:
        e(f"s_lshl_b32 s{sPo}, s2, 3\ns_add_u32 s{sPo}, s{sPo}, s{sW}\ns_lshl_b32 s{sPo}, s{sPo}, 8\ns_add_u32 s{sPo}, s{sPo}, {PROFO}")
    if defer: tstamp(0); return
    stamp(0); rt_out()
def rt_out():
    if RT: e(f"s_nop 1\nv_mov_b32 v0, s100\nbuffer_store_dword v0, off, {sr(SWS,4)}, s{sPo} offset:60\ns_nop 1\nv_mov_b32 v0, s98\nbuffer_store_dword v0, off, {sr(SWS,4)}, s{sPo} offset:16")
def row_loads():
    e(f"""s_lshl_b32 s{sT1}, s{sRow}, 11
    buffer_load_dwordx4 {vr(vRs,4)}, v{vL16}, {sr(SX,4)}, s{sT1} offen
    buffer_load_dwordx4 {vr(vRs+4,4)}, v{vL16}, {sr(SX,4)}, s{sT1} offen offset:1024""")
WKV = 131072
vXf, vWk = 32, 192
sXb = sMw
def kvx_dma(c):
    return [f"""s_add_u32 m0, s{sXb}, {4096*c+2048*hf}
        s_add_u32 s{sT0}, s{sXo}, {128*c+16384*hf}
        buffer_load_dwordx4 v{vXa0}, {sr(SX,4)}, s{sT0} offen lds
        buffer_load_dwordx4 v{vXa1}, {sr(SX,4)}, s{sT0} offen offset:1024 lds""" for hf in range(2)]
e(f"""s_cbranch_scc1 Lkv0
s_cmp_lt_u32 s{sW}, 4
s_cbranch_scc1 Lhelp
s_waitcnt lgkmcnt(0)""")
row_loads()
e(f"""s_cmp_lg_u32 s{sJ}, 14
s_cbranch_scc1 Lcomp
s_add_u32 s{sT1}, s{sT1}, 8192
buffer_load_dwordx4 {vr(vRs2,4)}, v{vL16}, {sr(SX,4)}, s{sT1} offen
buffer_load_dwordx4 {vr(vRs2+4,4)}, v{vL16}, {sr(SX,4)}, s{sT1} offen offset:1024
s_branch Lcomp
Lkv0:
s_memrealtime s[{sTm}:{sTm+1}]
s_lshl_b32 s{sXb}, s{sW}, 14
s_lshr_b32 s{sT3}, s{sW}, 2
s_lshl_b32 s{sT0}, s{sT3}, 9
s_add_u32 s{sXo}, s{sXo}, s{sT0}
s_or_b32 s{sT0}, s2, s{sW}
s_cmp_lg_u32 s{sT0}, 0
s_waitcnt lgkmcnt(0)
s_cbranch_scc1 Lnotag
s_or_b32 s{sTm}, s{sTm}, 1
v_mov_b32 v{vPoll}, s{sTm}
v_mov_b32 v{vPoll+1}, s{sTm+1}
s_mov_b64 exec, 1
buffer_store_dwordx2 {vr(vPoll,2)}, off, {sr(SDBG,4)}, 0 sc1
s_mov_b64 exec, -1
Lnotag:
s_lshl_b32 s{sT0}, s{sW}, 11
s_add_u32 m0, s{sT0}, {WKV}
s_nop 0
buffer_load_dwordx4 v{vL16}, {sr(SWV,4)}, s{sT0} offen lds
buffer_load_dwordx4 v{vL16}, {sr(SWV,4)}, s{sT0} offen offset:1024 lds
s_add_u32 m0, s{sT0}, {WKV+16384}
s_nop 0
buffer_load_dwordx4 v{vL16}, {sr(SWK,4)}, s{sT0} offen lds
buffer_load_dwordx4 v{vL16}, {sr(SWK,4)}, s{sT0} offen offset:1024 lds""")
for x in kvx_dma(0): e(x)
e("s_branch Lkvcu\nLhelp:")

def v_lane_addr(d):
    e(f"""v_and_b32 v{d}, 15, v{vLane}
    v_lshlrev_b32 v{d}, 4, v{d}
    v_lshl_add_u32 v{d}, v{vH}, 8, v{d}
    s_mov_b32 exec_lo, 0xffff0000
    s_mov_b32 exec_hi, 0xffff0000
    v_mov_b32 v{d}, 512""")
def fin_init():
    e(f"""s_lshl_b32 s{sT0}, s{sTB}, 16
    s_lshl_b32 s{sT1}, s{sCS}, 7
    s_add_u32 s{sT0}, s{sT0}, s{sT1}
    s_lshl_b32 s{sT1}, s{sW4}, 14
    s_add_u32 s{sXf}, s{sT0}, s{sT1}
    s_add_u32 s{sXf2}, s{sXf}, 8192
    v_lshrrev_b32 v{vT0}, 3, v{vLane}
    v_and_b32 v{vT1}, 7, v{vLane}
    v_lshlrev_b32 v{vRa}, 10, v{vT0}
    v_lshl_add_u32 v{vRa}, v{vT1}, 4, v{vRa}
    v_bfe_u32 v{vT1}, v{vLane}, 1, 2
    v_mul_u32_u24 v{vT1}, {XB}, v{vT1}
    v_lshl_add_u32 v{vT0}, v{vT0}, 4, v{vT1}
    v_and_b32 v{vT1}, 1, v{vLane}
    v_mul_u32_u24 v{vT1}, {XP}, v{vT1}
    s_and_b32 s{sT0}, s{sW4}, 1
    s_lshl_b32 s{sT0}, s{sT0}, 8
    v_add3_u32 v{vT0}, v{vT0}, v{vT1}, s{sT0}
    s_lshr_b32 s{sT0}, s{sW4}, 1
    s_mul_i32 s{sT1}, s{sT0}, {4*XB}
    s_add_u32 s{sT1}, s{sT1}, {XF0}
    v_add_u32 v{vRr}, s{sT1}, v{vT0}
    s_mul_i32 s{sT1}, s{sT0}, {XS1}
    v_add_u32 v{vRr2}, s{sT1}, v{vT0}""")
FS = "--asent" not in sys.argv
def a_init():
    a_sent(); a_addr()
def a_sent(store=False):
    e(f"""s_lshl_b32 s{sT0}, s{sI}, 2
    s_add_u32 s{sT0}, s{sT0}, s{sW4}
    s_lshl_b32 s{sT0}, s{sT0}, 5
    s_lshr_b32 s{sT1}, s{sJ}, 1
    s_add_u32 s{sT0}, s{sT0}, s{sT1}
    s_and_b32 s{sT1}, s{sJ}, 1
    s_lshl_b32 s{sT1}, s{sT1}, 4
    s_add_u32 s{sT0}, s{sT0}, s{sT1}
    s_lshl_b32 s{sT0}, s{sT0}, 10
    s_add_u32 s{sOp}, s{sT0}, {OIMG}
    s_add_u32 s{sOp2}, s{sOp}, 8192""")
    if not FS or store: e(f"""v_mov_b64 v[232:233], -1
    v_mov_b64 v[234:235], -1
    buffer_store_dwordx4 v[232:235], v{vL16}, {sr(SWS,4)}, s{sOp} offen sc1
    buffer_store_dwordx4 v[232:235], v{vL16}, {sr(SWS,4)}, s{sOp2} offen sc1""")
    if store: return
def a_addr(zero=True):
    v_lane_addr(vAv)
    e(f"""s_mov_b32 exec_lo, 0xffee0000
    s_mov_b32 exec_hi, 0xffee0000
    v_mov_b32 v{vAv}, 0x4000000
    s_mov_b64 exec, -1
    v_add_u32 v{vAv}, 1024, v{vAv}
    v_mov_b32 v{vAk}, v{vL16}
    v_mov_b32 v{vIdx}, 0xdddd
    s_lshl_b32 s{sT0}, s{sW4}, 11
    s_add_u32 s{sT0}, s{sT0}, {QIMG}
    v_add_u32 v{vAq}, s{sT0}, v{vL16}""")
    if zero: a_zero()
def a_zero():
    for b in range(2):
        for r in range(0, 12, 2): e(f"v_mov_b64 {vr(aO[b]+r,2)}, 0")
def f_init():
    e(f"""v_lshrrev_b32 v{vT0}, 3, v{vLane}
    v_lshlrev_b32 v{vT0}, 10, v{vT0}
    v_and_b32 v{vT1}, 7, v{vLane}
    v_bfe_u32 v{vT2}, v{vLane}, 4, 1
    v_lshlrev_b32 v{vT2}, 2, v{vT2}
    v_xor_b32 v{vT1}, v{vT1}, v{vT2}
    v_lshl_add_u32 v{vDa}, v{vT1}, 4, v{vT0}
    v_add_u32 v{vDa2}, {8192-1024}, v{vDa}
    s_lshl_b32 s{sDo}, s{sW4}, 14
    s_lshl_b32 s{sT1}, s{sCS}, 7
    s_add_u32 s{sDo}, s{sDo}, s{sT1}
    s_lshl_b32 s{sDm}, s{sW4}, 11
    s_mul_i32 s{sHo}, s{sTB}, 176
    s_mul_i32 s{sT0}, s{sW4}, 22
    s_add_u32 s{sHo}, s{sHo}, s{sT0}
    s_lshl_b32 s{sHo}, s{sHo}, 10
    s_add_u32 s{sHo}, s{sHo}, {HIMG}
    s_lshl_b32 s{sT0}, s{sTB}, 3
    s_add_u32 s{sT0}, s{sT0}, s{sW4}
    s_lshl_b32 s{sT0}, s{sT0}, 13
    s_add_u32 s{sOc}, s{sT0}, {OIMG}
    s_add_u32 s{sOc2}, s{sOc}, 4096
    s_add_u32 s{sOc3}, s{sOc}, 32768
    s_add_u32 s{sOc4}, s{sOc}, {32768+4096}
    s_lshr_b32 s{sHc}, s{sTB}, 1
    s_lshl_b32 s{sHc}, s{sHc}, 11
    s_add_u32 s{sHc}, s{sHc}, {HFLG}
    s_lshl_b32 s{sHs}, s{sI}, 4
    s_add_u32 s{sHs}, s{sHs}, s{sJ}
    s_lshl_b32 s{sHs}, s{sHs}, 7
    s_add_u32 s{sHs}, s{sHs}, {HFLG}
    v_bfe_u32 v{vT0}, v{vLane}, 2, 2
    v_lshl_add_u32 v{vT0}, v{vH}, 2, v{vT0}
    v_lshlrev_b32 v{vT0}, 7, v{vT0}
    v_bfe_u32 v{vT1}, v{vLane}, 4, 1
    v_lshl_add_u32 v{vT0}, v{vT1}, 5, v{vT0}
    v_and_b32 v{vT1}, 3, v{vLane}
    v_lshl_add_u32 v{vT0}, v{vT1}, 3, v{vT0}
    v_bfe_u32 v{vT1}, v{vLane}, 3, 1
    v_lshl_add_u32 v{vT0}, v{vT1}, 6, v{vT0}
    v_add_u32 v{vRd}, s{sDm}, v{vT0}
    v_xor_b32 v{vRd+1}, 64, v{vRd}
    v_add_u32 v{vRd+2}, {SP[0]}, v{vRd}
    v_add_u32 v{vRd+3}, {SP[0]}, v{vRd+1}
    s_mul_i32 s{sT0}, s{sW4}, {XK}
    v_add_u32 v{vRw2}, s{sT0}, v{vL16}
    v_add_u32 v{vRw}, {XF0}, v{vRw2}
    v_add_u32 v{vRw2+1}, {XS1}, v{vRw2}""")
def kv_rest(tag):
    e(f"s_setprio 0\ns_lshl_b32 s{sT1}, s{sW4}, 12")
    for n in range(6):
        e(f"s_add_u32 s{sT0}, s{sT1}, {36*1024+16384*n}\ns_mov_b32 m0, s{sT0}\ns_nop 0")
        for k in range(4): e(f"buffer_load_dwordx4 v{vL16}, {sr(SWS,4)}, s{sT0} offen offset:{1024*k} sc1 lds")
    e(tag_issue())
    e("s_setprio 2")

def spread(m, fill):
    w = [16 if "16x16" in x else 32 for x in m]
    tot = sum(c for c, _ in fill); W = sum(w)
    out = []; k = 0; acc = 0; cw = 0
    for x, wx in zip(m, w):
        out.append(x); cw += wx
        while k < len(fill) and (acc + fill[k][0]/2) * W <= tot * cw:
            out.append(fill[k][1]); acc += fill[k][0]; k += 1
    out += [t for _, t in fill[k:]]
    return out


C1 = -2*0.7978845608028654*1.4426950408889634
C3 = C1*0.044715
def gelu_consts(m, r, d):
    e(f"""v_sub_f32 v{d}, 0, v{m}
    v_mul_f32 v{d+3}, v{r}, v{r}
    v_mul_f32 v{d+1}, {f2u(C1):#x}, v{r}
    v_mul_f32 v{d+2}, {f2u(C3):#x}, v{r}
    v_mul_f32 v{d+2}, v{d+2}, v{d+3}
    v_rcp_f32 v{d+3}, v{d+3}""")
def bc(reg, pos, n):
    base = reg & ~1
    return vr(base, 2), reg & 1
def pk(op, d, srcs, neg=None):
    ops = []; lo = []; hi = []
    for t, r in srcs:
        if t == 'p': ops.append(vr(r, 2)); lo.append(0); hi.append(1)
        else: ops.append(vr(r & ~1, 2)); lo.append(r & 1); hi.append(r & 1)
    return f"{op} {vr(d,2)}, {', '.join(ops)} op_sel:[{','.join(map(str,lo))}] op_sel_hi:[{','.join(map(str,hi))}]"
def gelu_tile(g, u, csg, csu, k, tmp, n=16, dst=None):
    for p in range(0, n, 2):
        e(pk("v_pk_fma_f32", g+p, [('b', k), ('p', csg+p), ('p', g+p)]))
        e(pk("v_pk_fma_f32", u+p, [('b', k), ('p', csu+p), ('p', u+p)]))
    for p in range(0, n, 2):
        e(pk("v_pk_mul_f32", tmp+p, [('p', g+p), ('p', g+p)]))
    for p in range(0, n, 2):
        e(pk("v_pk_fma_f32", tmp+p, [('p', tmp+p), ('b', k+2), ('b', k+1)]))
    for p in range(0, n, 2):
        e(pk("v_pk_mul_f32", tmp+p, [('p', tmp+p), ('p', g+p)]))
    for p in range(n): e(f"v_exp_f32 v{tmp+p}, v{tmp+p}")
    for p in range(0, n, 2):
        e(pk("v_pk_mul_f32", u+p, [('p', u+p), ('p', g+p)]))
    for p in range(0, n, 2):
        e(pk("v_pk_fma_f32", tmp+p, [('p', tmp+p), ('b', k+3), ('b', k+3)]))
    for p in range(n): e(f"v_rcp_f32 v{tmp+p}, v{tmp+p}")
    e("s_nop 0")
    for p in range(0, n, 2):
        e(pk("v_pk_mul_f32", u+p, [('p', u+p), ('p', tmp+p)]))
    for p in range(n//2): e(f"v_cvt_pk_bf16_f32 v{dst[p] if dst else g+p}, v{u+2*p}, v{u+2*p+1}")

def cs_read(d, slot_off):
    for q in range(4): e(f"ds_read_b128 {vr(d+4*q,4)}, v{vT3} offset:{slot_off+32*q}")

def lin_fold(acc, cs, negm, scale, n=16):
    for p in range(0, n, 2):
        e(pk("v_pk_fma_f32", acc+p, [('b', negm), ('p', cs+p), ('p', acc+p)]))
    for p in range(0, n, 2):
        e(pk("v_pk_mul_f32", acc+p, [('p', acc+p), ('b', scale)]))

def q_epilogue(cs):
    e(f"v_mul_f32 v{vSt+2}, {f2u(0.25*1.4426950408889634):#x}, v{vSt+1}")
    lin_fold(vAcc, cs, vSt+4, vSt+2)
    for p in range(8): e(f"v_cvt_pk_bf16_f32 v{vAcc+p}, v{vAcc+2*p}, v{vAcc+2*p+1}")
    e(f"""s_lshl_b32 s{sT0}, s{sW4}, 11
    s_add_u32 s{sT0}, s{sT0}, {QIMG}
    v_lshl_add_u32 v{vT0}, v{vLane}, 4, s{sT0}
    ds_write_b128 v{vT0}, {vr(vAcc,4)}
    ds_write_b128 v{vT0}, {vr(vAcc+4,4)} offset:1024""")


def rowstat_finish(vRs=vRs):
    a = vRs+8
    e(f"v_mov_b32 v{vT0}, 0x3f803f80")
    for k in range(4):
        for r in range(2):
            x = vRs+4*r+k
            c0 = "0" if k == 0 else f"v{a+2*r}"; c1 = "0" if k == 0 else f"v{a+2*r+1}"
            e(f"v_dot2_f32_bf16 v{a+2*r}, v{x}, v{vT0}, {c0}\nv_dot2_f32_bf16 v{a+2*r+1}, v{x}, v{x}, {c1}")
    e("s_nop 2")
    for ctl in ("row_shr:1", "row_shr:2", "row_shr:4", "row_shr:8"):
        for k in range(4): e(f"v_add_f32_dpp v{a+k}, v{a+k}, v{a+k} {ctl} row_mask:0xf bank_mask:0xf bound_ctrl:0")
    for ctl in ("row_bcast:15 row_mask:0xa", "row_bcast:31 row_mask:0xc"):
        for k in range(4): e(f"v_add_f32_dpp v{a+k}, v{a+k}, v{a+k} {ctl} bank_mask:0xf")
    for r in range(2):
        d = vRs+4*r
        e(f"""v_mul_f32 v{d}, {f2u(1/512):#x}, v{a+2*r}
        v_mul_f32 v{d+1}, {f2u(1/512):#x}, v{a+2*r+1}
        v_fma_f32 v{d+1}, -v{d}, v{d}, v{d+1}
        v_max_f32 v{d+1}, 0, v{d+1}
        v_add_f32 v{d+1}, {f2u(1e-5):#x}, v{d+1}
        v_rsq_f32 v{d+1}, v{d+1}""")
def rowstat_post(vRs=vRs, off=0):
    e(f"""s_lshl_b32 s{sT0}, s{sW4}, 4
    s_add_u32 s{sT0}, s{sT0}, {STL+off}
    v_mov_b32 v{vT0}, s{sT0}
    s_mov_b32 exec_lo, 0
    s_brev_b32 exec_hi, 1
    ds_write_b64 v{vT0}, {vr(vRs,2)}
    ds_write_b64 v{vT0}, {vr(vRs+4,2)} offset:8
    s_mov_b64 exec, -1""")
def kv_dma(tag):
    e(f"s_mul_i32 s{sT1}, s{sW4}, 3072")
    for n in range(3):
        e(f"s_add_u32 s{sT0}, s{sT1}, {12288*n}\ns_mov_b32 m0, s{sT0}\ns_nop 0")
        for k in range(3): e(f"buffer_load_dwordx4 v{vL16}, {sr(SWS,4)}, s{sT0} offen offset:{1024*k} sc1 lds")
def tr_lane(rowmul, d):
    e(f"""v_lshrrev_b32 v{vT0}, 4, v{vLane}
    v_bfe_u32 v{vT1}, v{vLane}, 2, 2
    v_lshl_add_u32 v{vT0}, v{vT0}, 3, v{vT1}
    v_mul_u32_u24 v{vT0}, {rowmul}, v{vT0}
    v_bfe_u32 v{vT1}, v{vLane}, 4, 1
    v_lshl_add_u32 v{vT0}, v{vT1}, 5, v{vT0}
    v_and_b32 v{vT1}, 3, v{vLane}
    v_lshl_add_u32 v{d}, v{vT1}, 3, v{vT0}""")
def ones_col0(d):
    e(f"""v_and_b32 v{vT0}, 15, v{vLane}
    v_cmp_eq_u32 vcc, 0, v{vT0}
    v_mov_b32 v{vT1}, 0x3f803f80
    s_nop 0
    v_cndmask_b32 v{d}, 0, v{vT1}, vcc""")
    for k in range(1, 4): e(f"v_mov_b32 v{d+k}, v{d}")
def rot_delta():
    return f"s_add_u32 s{sRb}, s{sRb}, 1\ns_cmp_eq_u32 s{sRb}, 3\ns_cselect_b32 s{sDl}, s{sC3}, {STG}\ns_cselect_b32 s{sRb}, 0, s{sRb}"
def cs16_write(accs, slot0_sreg, stride):
    e(f"v_add_u32 v{vT0}, s{slot0_sreg}, v{vLane}\ns_mov_b32 exec_lo, 0x00010001\ns_mov_b32 exec_hi, 0x00010001")
    for n, a in enumerate(accs): e(f"ds_write_b128 v{vT0}, {vr(a,4)} offset:{stride*n}")
    e("s_mov_b64 exec, -1")

ROT = int(sys.argv[sys.argv.index("--rot")+1]) if "--rot" in sys.argv else 7
sKs = 84
sM1, sM2, sPub, sCg = 66, 67, 68, 69
C0 = "--c0" in sys.argv
NR = 7 if C0 else 8
def dma_x():
    return [f"s_add_u32 m0, s{sLb}, s{sMx}", f"s_add_u32 s{sT0}, s{sXo}, 16384",
            f"buffer_load_dwordx4 v{vXa0}, {sr(SX,4)}, s{sXo} offen lds",
            f"buffer_load_dwordx4 v{vXa1}, {sr(SX,4)}, s{sXo} offen offset:1024 lds",
            "s_add_u32 m0, m0, 2048", f"s_add_u32 s{sXo}, s{sXo}, 128",
            f"buffer_load_dwordx4 v{vXa0}, {sr(SX,4)}, s{sT0} offen lds",
            f"buffer_load_dwordx4 v{vXa1}, {sr(SX,4)}, s{sT0} offen offset:1024 lds"]
def dma_w():
    r = []
    for k, sd in enumerate((SWG, SWU)):
        r += [f"s_add_u32 m0, s{sLb}, s{sMw}" if k == 0 else f"s_add_u32 m0, m0, {UOFF-GOFF}", "s_nop 0",
              f"buffer_load_dwordx4 v{vWa0}, {sr(sd,4)}, s{sWo} offen lds",
              f"buffer_load_dwordx4 v{vWa1}, {sr(sd,4)}, s{sWo} offen offset:1024 lds",
              f"buffer_load_dwordx4 v{vWa2}, {sr(sd,4)}, s{sWo} offen offset:2048 lds"]
    r += [f"s_add_u32 m0, s{sLb}, s{sMq}", f"s_add_u32 s{sWo}, s{sWo}, {64*2752}",
          f"buffer_load_dwordx4 v{vQa}, {sr(SWQ,4)}, s{sQo} offen lds", f"s_add_u32 s{sQo}, s{sQo}, 65536",
          f"s_add_u32 s{sLb}, s{sLb}, {STG}", f"s_cmp_ge_u32 s{sLb}, {3*STG}", f"s_cselect_b32 s{sLb}, 0, s{sLb}"]
    if ROT:
        r += [f"s_add_u32 s{sKs}, s{sKs}, 1", f"s_cmp_eq_u32 s{sKs}, 8",
              f"s_cselect_b32 s{sT0}, {128*NR}, 0", f"s_cselect_b32 s{sT1}, {64*NR*2752}, 0", f"s_cselect_b32 s{sT2}, {64*NR*1024}, 0",
              f"s_sub_u32 s{sXo}, s{sXo}, s{sT0}", f"s_sub_u32 s{sWo}, s{sWo}, s{sT1}", f"s_sub_u32 s{sQo}, s{sQo}, s{sT2}"]
    return r
e(f"s_mov_b32 s{sLb}, 0\ns_lshl_b32 s{sMx}, s{sW4}, 12")
if ROT and "--rm" in sys.argv: e(f"s_lshl_b32 s{sKs}, s{sI if M48 else sJ}, 1\ns_add_u32 s{sKs}, s{sKs}, s{sJ if M48 else sI}\ns_and_b32 s{sKs}, s{sKs}, {ROT}")
RM = sys.argv[sys.argv.index("--rm")+1] if "--rm" in sys.argv else "a"
if RM == "a":
    e(f"""s_xor_b32 s{sKs}, s{sI}, s{sJ}
    s_and_b32 s{sKs}, s{sKs}, 1
    s_lshl_b32 s{sKs}, s{sKs}, 2
    s_lshr_b32 s{sT0}, s{sI}, 1
    s_xor_b32 s{sT0}, s{sT0}, s{sJ}
    s_lshr_b32 s{sT0}, s{sT0}, 1
    s_and_b32 s{sT0}, s{sT0}, 2
    s_or_b32 s{sKs}, s{sKs}, s{sT0}""")
if RM == "b":
    e(f"""s_add_u32 s{sKs}, s{sI}, s{sJ}
    s_and_b32 s{sKs}, s{sKs}, 3
    s_lshl_b32 s{sKs}, s{sKs}, 1
    s_lshr_b32 s{sT0}, s{sI}, 1
    s_xor_b32 s{sT0}, s{sT0}, s{sJ}
    s_bfe_u32 s{sT0}, s{sT0}, 0x10002
    s_or_b32 s{sKs}, s{sKs}, s{sT0}""")
if RM == "c":
    e(f"""s_lshr_b32 s{sKs}, s{sI}, 3
    s_lshl_b32 s{sKs}, s{sKs}, 2
    s_lshr_b32 s{sT0}, s{sJ}, 2
    s_lshl_b32 s{sT0}, s{sT0}, 1
    s_add_u32 s{sKs}, s{sKs}, s{sT0}
    s_and_b32 s{sKs}, s{sKs}, 7""")
if ROT and C0: e(f"s_cmp_eq_u32 s{sKs}, 7\ns_cselect_b32 s{sKs}, 3, s{sKs}")
def rot_x(): e(f"s_lshl_b32 s{sT0}, s{sKs}, 7\ns_add_u32 s{sXo}, s{sXo}, s{sT0}")
def rot_w(): e(f"s_mul_i32 s{sT0}, s{sKs}, {64*2752}\ns_add_u32 s{sWo}, s{sWo}, s{sT0}\ns_lshl_b32 s{sT0}, s{sKs}, 16\ns_add_u32 s{sQo}, s{sQo}, s{sT0}")
if ROT and not C0: rot_x()
e(f"s_lshl_b32 s{sCg}, s{sJ}, 13\ns_add_u32 s{sCg}, s{sCg}, {CSG}\ns_lshl_b32 s{sC1}, s{sKs}, 10\ns_add_u32 s{sC1}, s{sC1}, s{sCg}")
LZ = "--nolz" not in sys.argv
if LZ: e(f"s_cmp_eq_u32 s{sJ}, 14\ns_cselect_b32 s{sT3}, 8, 0\nv_mov_b32 v{vT3}, 0x40000000")
for k, r in enumerate((vWa0, vWa1, vWa2)):
    e(f"""v_add_u32 v{vT0}, {64*k}, v{vLane}
    v_mul_u32_u24 v{vT1}, 43691, v{vT0}
    v_lshrrev_b32 v{vT1}, 19, v{vT1}
    v_mul_u32_u24 v{vT2}, 12, v{vT1}
    v_sub_u32 v{vT0}, v{vT0}, v{vT2}
    v_lshrrev_b32 v{vT2}, 2, v{vT1}
    v_and_b32 v{vT2}, 2, v{vT2}
    v_xor_b32 v{vT0}, v{vT0}, v{vT2}
    v_mul_u32_u24 v{vT1}, 2752, v{vT1}
    v_lshl_add_u32 v{r}, v{vT0}, 4, v{vT1}""")
    if LZ: e(f"v_cmp_gt_u32 vcc, s{sT3}, v{vT0}")
    if k: e(f"v_subrev_u32 v{r}, {1024*k}, v{r}")
    if LZ: e(f"s_nop 1\nv_cndmask_b32 v{r}, v{r}, v{vT3}, vcc")
e(f"""v_lshrrev_b32 v{vT0}, 2, v{vLane}
v_lshlrev_b32 v{vT0}, 10, v{vT0}
v_and_b32 v{vT1}, 3, v{vLane}
v_lshlrev_b32 v{vT2}, 1, v{vH}
v_xor_b32 v{vT1}, v{vT1}, v{vT2}
v_lshl_add_u32 v{vQa}, v{vT1}, 4, v{vT0}
s_mul_i32 s{sT0}, s{sJ}, 96
s_min_u32 s{sT0}, s{sT0}, 1280
s_lshl_b32 s{sT0}, s{sT0}, 1
s_mul_i32 s{sWo}, s{sW4}, {16*2752}
s_add_u32 s{sWo}, s{sWo}, s{sT0}
s_lshl_b32 s{sQo}, s{sW4}, 14
s_lshl_b32 s{sT0}, s{sJ}, 6
s_add_u32 s{sQo}, s{sQo}, s{sT0}
s_mul_i32 s{sMw}, s{sW4}, 3072
s_add_u32 s{sMw}, s{sMw}, {GOFF}
s_lshl_b32 s{sMq}, s{sW4}, 10
s_add_u32 s{sMq}, s{sMq}, {QOFF}""")
if ROT and not C0: rot_w()
if "--noded" not in sys.argv:
    e(f"""s_lshl_b32 s{sT0}, s{sW4}, 15
    s_sub_u32 s{sXo}, s{sXo}, s{sT0}
    s_sub_u32 s{sT3}, 4, s{sW4}
    s_mul_i32 s{sT0}, s{sT3}, {16*2752}
    s_sub_u32 s{sWo}, s{sWo}, s{sT0}
    s_lshl_b32 s{sT0}, s{sT3}, 14
    s_sub_u32 s{sQo}, s{sQo}, s{sT0}
    s_mul_i32 s{sT0}, s{sT3}, 3072
    s_sub_u32 s{sMw}, s{sMw}, s{sT0}
    s_lshl_b32 s{sT0}, s{sT3}, 10
    s_sub_u32 s{sMq}, s{sMq}, s{sT0}
    s_add_u32 s{sMx}, s{sMq}, 1024""")
if JX:
    e(f"""s_memrealtime s[{sTm}:{sTm+1}]
    s_or_b32 s{sT0}, s2, s{sW}
    s_cmp_lg_u32 s{sT0}, 0
    s_waitcnt lgkmcnt(0)
    s_cbranch_scc1 Lnotag2
    s_or_b32 s{sTm}, s{sTm}, 1
    v_mov_b32 v{vPoll}, s{sTm}
    v_mov_b32 v{vPoll+1}, s{sTm+1}
    s_mov_b64 exec, 1
    buffer_store_dwordx2 {vr(vPoll,2)}, off, {sr(SDBG,4)}, 0 sc1
    s_mov_b64 exec, -1
    Lnotag2:""")
else: e("s_waitcnt lgkmcnt(0)")
DED = "--noded" not in sys.argv
hF = 30
hW = 32
TG = True
def adv():
    return [f"s_add_u32 s{sLb}, s{sLb}, {STG}", f"s_cmp_ge_u32 s{sLb}, {3*STG}", f"s_cselect_b32 s{sLb}, 0, s{sLb}",
            f"s_add_u32 s{sKs}, s{sKs}, 1", f"s_cmp_eq_u32 s{sKs}, 8"]
def ded_x():
    r = []
    for k in range(8):
        r += [f"s_add_u32 m0, s{sLb}, {2048*k}", f"s_add_u32 s{sT0}, s{sXo}, {16384*k}",
              f"buffer_load_dwordx4 v{vXa0}, {sr(SX,4)}, s{sT0} offen lds",
              f"buffer_load_dwordx4 v{vXa1}, {sr(SX,4)}, s{sT0} offen offset:1024 lds"]
    return r + adv() + [f"s_cselect_b32 s{sT0}, 1024, 0", f"s_add_u32 s{sXo}, s{sXo}, 128", f"s_sub_u32 s{sXo}, s{sXo}, s{sT0}"]
def ded_w():
    r = [f"s_add_u32 s{sT1}, s{sLb}, s{sMw}", f"s_add_u32 s{sT2}, s{sWo}, {16*2752}"]
    for hf in range(2):
        for k, sd in enumerate((SWG, SWU)):
            so = sWo if hf == 0 else sT2
            r += [f"s_add_u32 m0, s{sT1}, {3072*hf+(UOFF-GOFF)*k}", "s_nop 0",
                  f"buffer_load_dwordx4 v{vWa0}, {sr(sd,4)}, s{so} offen lds",
                  f"buffer_load_dwordx4 v{vWa1}, {sr(sd,4)}, s{so} offen offset:1024 lds",
                  f"buffer_load_dwordx4 v{vWa2}, {sr(sd,4)}, s{so} offen offset:2048 lds"]
        r += [f"s_add_u32 m0, s{sLb}, s{sMq}" if hf == 0 else f"s_add_u32 m0, s{sLb}, s{sMx}", f"s_add_u32 s{sT0}, s{sQo}, {16384*hf}",
              f"buffer_load_dwordx4 v{vQa}, {sr(SWQ,4)}, s{sT0} offen lds"]
    return r + adv() + [f"s_cselect_b32 s{sT1}, {512*2752}, 0", f"s_cselect_b32 s{sT2}, {512*1024}, 0",
                        f"s_add_u32 s{sWo}, s{sWo}, {64*2752}", f"s_add_u32 s{sQo}, s{sQo}, 65536",
                        f"s_sub_u32 s{sWo}, s{sWo}, s{sT1}", f"s_sub_u32 s{sQo}, s{sQo}, s{sT2}"]
def h_common():
    late_srd(LS_A)
    e(f"""s_lshl_b32 s{sT0}, s{sW4}, 2
    s_add_u32 s{sT0}, s{sT0}, {KFL}
    v_mov_b32 v{hF}, s{sT0}
    v_mov_b32 v{hF+1}, 0
    v_mov_b32 v{vT0}, {KFL}
    ds_write_b32 v{hF}, v{hF+1}
    ds_write_b32 v{vT0}, v{hF+1} offset:16
    s_mov_b32 s{sSt}, 0""")
def ded_loop(t, dma, n):
    for x in dma() + dma(): e(x)
    h_common()
    e(f"s_waitcnt vmcnt({n}) lgkmcnt(0)\ns_barrier\nLhl{t}:")
    for x in dma(): e(x)
    e(f"s_add_u32 s{sSt}, s{sSt}, 1\ns_waitcnt vmcnt({n})\ns_barrier\ns_cmp_lt_u32 s{sSt}, 6\ns_cbranch_scc1 Lhl{t}\ns_branch Lh6")
if DED:
    entry_stamp()
    e(f"s_cmp_lt_u32 s{sW}, 2\ns_cbranch_scc1 Lhx")
    ded_loop("w", ded_w, 14)
    e(f"Lhx:\ns_cmp_eq_u32 s{sW}, 0\ns_cbranch_scc1 Lh0")
    ded_loop("x", ded_x, 16)
    e("Lh0:")
    e(tag_issue())
    h_common()
    e(f"s_waitcnt lgkmcnt(0)\ns_barrier")
    stamp(12)
    e(f"v_lshlrev_b32 v{vT0}, 3, v{vLane}\nv_add_u32 v{vT0}, {STL}, v{vT0}\nds_read_b64 {vr(hW,2)}, v{vT0}")
    tag_wait("p", 0, True)
    e(f"""v_mov_b32 v{hW+2}, s{sNo}
    v_mov_b32 v{hW+3}, s{sNo+1}
    s_lshl_b32 s{sT0}, s{sRow}, 5
    s_add_u32 s{sT0}, s{sT0}, {STATG}
    s_cmp_eq_u32 s{sJ}, 14
    s_mov_b32 exec_hi, 0
    s_mov_b32 exec_lo, 0xff
    s_cselect_b32 exec_lo, 0xffff, exec_lo
    s_waitcnt lgkmcnt(0)
    buffer_store_dwordx4 {vr(hW,4)}, v{vL16}, {sr(SWS,4)}, s{sT0} offen sc1
    s_mov_b64 exec, -1
    s_barrier
    s_barrier
    s_barrier
    s_and_b32 s{sT0}, s{sI}, 6
    s_cmp_lg_u32 s{sT0}, 0
    s_cbranch_scc1 Lnpc
    ds_read_b64 {vr(hW+8,2)}, v{vT0}
    ds_read_b64 {vr(hW+4,2)}, v{vT0} offset:512
    v_mov_b32 v{hW+10}, s{sNo}
    v_mov_b32 v{hW+11}, s{sNo+1}
    v_mov_b32 v{hW+6}, s{sNo}
    v_mov_b32 v{hW+7}, s{sNo+1}
    s_waitcnt lgkmcnt(0)
    buffer_store_dwordx4 {vr(hW+8,4)}, v{vL16}, {sr(SWS,4)}, s{sC1} offen sc1
    buffer_store_dwordx4 {vr(hW+4,4)}, v{vL16}, {sr(SWS,4)}, s{sC1} offen offset:1024 sc1
    Lnpc:
    s_barrier
    s_barrier
    s_barrier
    Lh6:""")
else:
    entry_stamp()
    for x in dma_x(): e(x)
    w0 = dma_w()
    if ROT and C0:
        k = w0.index(f"s_add_u32 s{sKs}, s{sKs}, 1")
        for x in w0[:k]: e(x)
        rot_x(); rot_w(); e(w0[k])
    else:
        for x in w0: e(x)
    for x in dma_x() + dma_w(): e(x)
    TG = "--oldtag" not in sys.argv
    if TG:
        e(f"""s_and_b32 s{sT0}, s{sI}, 6
        s_or_b32 s{sT0}, s{sT0}, s{sW}
        s_cmp_eq_u32 s{sT0}, 0
        s_cselect_b32 s{sPub}, 3, 99
        v_mov_b64 {vr(vPoll,2)}, 0
        s_cmp_eq_u32 s{sW}, 0
        s_cbranch_scc0 Lnt0""")
        e(tag_issue())
        e("Lnt0:")
    else: e(tag_issue())
    late_srd(LS_A)
    hF = 30
    e(f"""s_lshl_b32 s{sT0}, s{sW4}, 2
    s_add_u32 s{sT0}, s{sT0}, {KFL}
    v_mov_b32 v{hF}, s{sT0}
    v_mov_b32 v{hF+1}, 0
    v_mov_b32 v{vT0}, {KFL}
    ds_write_b32 v{hF}, v{hF+1}
    ds_write_b32 v{vT0}, v{hF+1} offset:16""")
    hW = 32
    e(f"s_mov_b32 s{sSt}, 0\ns_mov_b32 s{sRb}, 0\ns_mov_b32 s{sC3}, {(-2*STG) & 0xffffffff}")
    if "--hp3" in sys.argv: e("s_setprio 3")
    tstamp(21)
    e("s_waitcnt vmcnt(11) lgkmcnt(0)")
    tstamp(23); e("s_barrier")
    stamp(12); tflush(); TS.clear()
    W11 = "s_waitcnt vmcnt(11)" if "--unsafeH" not in sys.argv else f"s_waitcnt vmcnt(13)\ns_cmp_eq_u32 s{sW}, 0\ns_cbranch_scc1 Lw12\ns_waitcnt vmcnt(11)\nLw12:"
    def helper_loop(cs):
        t = "c" if cs else "n"
        e(f"Lhl{t}:")
        if cs:
            rd, m = cs_parts()
            for x in rd: e(x)
            e(rot_delta())
            for x in dma_x(): e(x)
            e(f"v_add_u32 v{hA}, s{sDl}, v{hA}\nv_add_u32 v{hA+1}, s{sDl}, v{hA+1}\ns_waitcnt lgkmcnt(0)")
            w = dma_w(); k = 0
            for x in w:
                e(x)
                if "buffer_load" in x: e(m[k]); k += 1
            for x in m[k:]: e(x)
        else:
            for x in dma_x() + dma_w():
                if "--nodma" in sys.argv and "buffer_load" in x: continue
                e(x)
                if "--pace" in sys.argv and "buffer_load" in x: e("s_sleep 1")
            e(f"s_or_b32 s{sT0}, s{sSt}, s{sW}\ns_cmp_lg_u32 s{sT0}, 0\ns_cbranch_scc1 Lnpub")
            e(f"v_lshlrev_b32 v{vT0}, 3, v{vLane}\nv_add_u32 v{vT0}, {STL}, v{vT0}\nds_read_b64 {vr(hW,2)}, v{vT0}")
            tag_wait("p", 11, True)
            e(f"""v_mov_b32 v{hW+2}, s{sNo}
            v_mov_b32 v{hW+3}, s{sNo+1}
            s_lshl_b32 s{sT0}, s{sRow}, 5
            s_add_u32 s{sT0}, s{sT0}, {STATG}
            s_cmp_eq_u32 s{sJ}, 14
            s_mov_b32 exec_hi, 0
            s_mov_b32 exec_lo, 0xff
            s_cselect_b32 exec_lo, 0xffff, exec_lo
            s_waitcnt lgkmcnt(0)
            buffer_store_dwordx4 {vr(hW,4)}, v{vL16}, {sr(SWS,4)}, s{sT0} offen sc1
            s_mov_b64 exec, -1
            Lnpub:
            s_cmp_lg_u32 s{sSt}, s{sPub}
            s_cbranch_scc1 Lnpc
            v_lshlrev_b32 v{vT0}, 3, v{vLane}
            v_add_u32 v{vT0}, {CSUM}, v{vT0}
            ds_read_b64 {vr(hW,2)}, v{vT0}
            ds_read_b64 {vr(hW+4,2)}, v{vT0} offset:512
            v_mov_b32 v{hW+2}, s{sNo}
            v_mov_b32 v{hW+3}, s{sNo+1}
            v_mov_b32 v{hW+6}, s{sNo}
            v_mov_b32 v{hW+7}, s{sNo+1}
            s_waitcnt lgkmcnt(0)
            buffer_store_dwordx4 {vr(hW,4)}, v{vL16}, {sr(SWS,4)}, s{sC1} offen sc1
            buffer_store_dwordx4 {vr(hW+4,4)}, v{vL16}, {sr(SWS,4)}, s{sC1} offen offset:1024 sc1
            Lnpc:""")
            if not FS:
                e(f"s_cmp_lg_u32 s{sSt}, 2\ns_cbranch_scc1 Lnini")
                a_sent()
                e("Lnini:")
        e(f"""s_add_u32 s{sSt}, s{sSt}, 1
        {W11}
        s_barrier
        {tk(81)}
        s_cmp_lt_u32 s{sSt}, 6
        s_cbranch_scc1 Lhl{t}""")
    helper_loop(False)
tkout()
def st_loads():
    return f"""buffer_load_dwordx4 {vr(hW,4)}, v{vL16}, {sr(SWS,4)}, s{sC0} offen sc1
    buffer_load_dwordx4 {vr(hW+4,4)}, v{vL16}, {sr(SWS,4)}, s{sC0} offen offset:1024 sc1"""
e(f"s_lshl_b32 s{sC0}, s{sI}, 11\ns_add_u32 s{sC0}, s{sC0}, {STATG}\ns_mov_b32 s{sKf}, {KFLG}\nv_mov_b32 v{hF+1}, 1")
if TG: e(tag_issue())
e(f"s_cmp_lg_u32 s{sW}, 1\ns_cbranch_scc1 Lhn0\n{st_loads()}\nLhn0:")
if FS: a_sent()
a_addr(); fin_init()
tag_wait("h", 0)
e(f"""s_cmp_lg_u32 s{sW}, 1
s_cbranch_scc1 Lhns
s_mov_b32 s{sT0}, 0
s_branch Lhs1
Lhs:
{st_loads()}
s_waitcnt vmcnt(0)
Lhs1:
s_add_u32 s{sT0}, s{sT0}, 1
v_cmp_ne_u64 vcc, s[{sNo}:{sNo+1}], {vr(hW+2,2)}
v_cmp_ne_u64 s[{sEx}:{sEx+1}], s[{sNo}:{sNo+1}], {vr(hW+6,2)}
s_or_b64 vcc, vcc, s[{sEx}:{sEx+1}]
s_cmp_ge_u32 s{sT0}, 100000
s_cbranch_scc1 Lhns
s_cbranch_vccnz Lhs
Lhns:""")
LATEP = "--earlyp" not in sys.argv
def cs_loads():
    return "\n".join(f"buffer_load_dwordx4 {vr(hW+4*c,4)}, v{vL16}, {sr(SWS,4)}, s{sCg if c < 2 else sC1} offen offset:{2048*(c & 1)} sc1" for c in range(4))
e(f"""s_cmp_lt_u32 s{sW}, 2
s_cbranch_scc1 Lhc0
s_and_b32 s{sT0}, s{sW}, 1
s_lshl_b32 s{sT0}, s{sT0}, 10
s_add_u32 s{sCg}, s{sCg}, s{sT0}
s_add_u32 s{sC1}, s{sCg}, 4096
{cs_loads()}
Lhc0:""")
if not LATEP: e(flags_issue(sKf))
e(f"s_mov_b32 s{sSt}, 1\ns_barrier")
if LATEP: e(flags_issue(sKf))
def kv_try(tag):
    e(f"""s_cmp_eq_u32 s{sSt}, 0
    s_cbranch_scc1 Lkt2_{tag}
    s_waitcnt vmcnt(0)
    v_cmp_ne_u64 vcc, s[{sNo}:{sNo+1}], {vr(vPoll,2)}
    s_cbranch_vccnz Lkt1_{tag}""")
    kv_dma(tag)
    e(f"v_mov_b32 v{vT0}, {KFL}\nds_write_b32 v{vT0}, v{hF+1} offset:16\ns_mov_b32 s{sSt}, 0\ns_branch Lkt2_{tag}\nLkt1_{tag}:")
    e(flags_issue(sKf))
    e(f"Lkt2_{tag}:")
e(f"s_cmp_lg_u32 s{sW}, 1\ns_cbranch_scc1 Lhnc")
gelu_consts(hW, hW+1, hW+8); gelu_consts(hW+4, hW+5, hW+12)
e(f"""v_add_u32 v{vT0}, {STATM}, v{vL16}
ds_write_b128 v{vT0}, {vr(hW+8,4)}
ds_write_b128 v{vT0}, {vr(hW+12,4)} offset:1024
Lhnc:""")
kv_try("a")
e(f"""s_cmp_lt_u32 s{sW}, 2
s_cbranch_scc1 Lhc3
s_mov_b32 s{sT0}, 0
s_branch Lhc2
Lhc1:
s_sleep 2
{cs_loads()}
s_waitcnt vmcnt(0)
Lhc2:
s_add_u32 s{sT0}, s{sT0}, 1
v_cmp_ne_u64 vcc, s[{sNo}:{sNo+1}], {vr(hW+2,2)}
v_cmp_ne_u64 s[{sEx}:{sEx+1}], s[{sNo}:{sNo+1}], {vr(hW+6,2)}
s_or_b64 vcc, vcc, s[{sEx}:{sEx+1}]
v_cmp_ne_u64 s[{sEx}:{sEx+1}], s[{sNo}:{sNo+1}], {vr(hW+10,2)}
s_or_b64 vcc, vcc, s[{sEx}:{sEx+1}]
v_cmp_ne_u64 s[{sEx}:{sEx+1}], s[{sNo}:{sNo+1}], {vr(hW+14,2)}
s_or_b64 vcc, vcc, s[{sEx}:{sEx+1}]
s_cmp_ge_u32 s{sT0}, 100000
s_cbranch_scc1 Lhc4
s_cbranch_vccnz Lhc1
Lhc4:
v_add_f32 v{hW}, v{hW}, v{hW+4}
v_add_f32 v{hW+1}, v{hW+1}, v{hW+5}
v_add_f32 v{hW+8}, v{hW+8}, v{hW+12}
v_add_f32 v{hW+9}, v{hW+9}, v{hW+13}
s_and_b32 s{sT0}, s{sW}, 1
s_lshl_b32 s{sT0}, s{sT0}, 9
s_add_u32 s{sT0}, s{sT0}, {CSUM}
v_lshl_add_u32 v{vT0}, v{vLane}, 3, s{sT0}
v_add_f32 v{hW}, v{hW}, v{hW+8}
v_add_f32 v{hW+1}, v{hW+1}, v{hW+9}
v_cmp_gt_u32 vcc, {CSUM+896}, v{vT0}
s_and_saveexec_b64 s[{sEx}:{sEx+1}], vcc
ds_write_b64 v{vT0}, {vr(hW,2)}
s_mov_b64 exec, -1
Lhc3:""")
e("s_waitcnt lgkmcnt(0)\ns_barrier")
if not LATEP and "--tryb" in sys.argv: kv_try("b")
stamp(1)
e("s_waitcnt lgkmcnt(0)\ns_barrier\ns_branch Lp2")

cX = [8, 24]; cW = 40; cRX, cRW, cRQ = 68, 70, 72; cCs = 76; cO = 92; cA = 96
e("Lcomp:")
entry_stamp(True)
late_srd(LS_F)
e(f"""v_and_b32 v{vT0}, 15, v{vLane}
v_lshrrev_b32 v{vT1}, 1, v{vT0}
v_lshrrev_b32 v{vT2}, 4, v{vLane}
v_xor_b32 v{vT1}, v{vT1}, v{vT2}
v_lshlrev_b32 v{vT0}, 7, v{vT0}
s_and_b32 s{sT0}, s{sW}, 1
s_lshl_b32 s{sT0}, s{sT0}, 13
v_add_u32 v{vT0}, s{sT0}, v{vT0}
v_lshl_add_u32 v{cRX}, v{vT1}, 4, v{vT0}
v_xor_b32 v{cRX+1}, 64, v{cRX}""")
tr_lane(192, cRW)
e(f"""s_lshl_b32 s{sT1}, s{sW}, 4
s_and_b32 s{sT1}, s{sT1}, 32
v_xor_b32 v{cRW}, s{sT1}, v{cRW}
v_xor_b32 v{cRW+1}, 32, v{cRW}
s_lshl_b32 s{sT2}, s{sT1}, 1
v_add_u32 v{cRW}, s{sT2}, v{cRW}
s_lshl_b32 s{sT2}, s{sT1}, 2
v_add_u32 v{cRW+1}, s{sT2}, v{cRW+1}""")
tr_lane(64, cRQ); e(f"v_xor_b32 v{cRQ}, s{sT1}, v{cRQ}")
ones_col0(cO)
cEh, cEs, cEq = 73, 74, 75
cEc, cEw = 212, 213
e(f"""s_bfe_u32 s{sT2}, s{sW}, 0x10001
s_mul_i32 s{sT2}, s{sT2}, 448
s_add_u32 s{sT2}, s{sT2}, {CSUM}
s_and_b32 s{sT1}, s{sW}, 1
s_lshl_b32 s{sT1}, s{sT1}, 6
s_add_u32 s{sT1}, s{sT2}, s{sT1}
v_and_b32 v{cEc}, 48, v{vLane}
v_add_u32 v{cEc}, s{sT2}, v{cEc}
v_add_u32 v{cEw}, s{sT1}, v{vLane}""")
e(f"""s_lshl_b32 s{sT0}, s{sI}, 2
s_and_b32 s{sT1}, s{sW}, 1
s_lshl_b32 s{sT1}, s{sT1}, 1
s_add_u32 s{sT0}, s{sT0}, s{sT1}
s_mul_i32 s{sT0}, s{sT0}, 88
s_mul_i32 s{sT1}, s{sJ}, 6
s_min_u32 s{sT1}, s{sT1}, 80
s_bfe_u32 s{sT2}, s{sW}, 0x10001
s_mul_i32 s{sT2}, s{sT2}, 3
s_add_u32 s{sT1}, s{sT1}, s{sT2}
s_and_b32 s{sT2}, s{sW}, 2""")
for add, dst in enumerate((sC0, sC1, sC2)):
    e(f"""s_add_u32 s{sT3}, s{sT1}, {add}
    s_lshr_b32 s{dst}, s{sT3}, 2
    s_add_u32 s{dst}, s{dst}, s{sT0}
    s_and_b32 s{sT3}, s{sT3}, 3
    s_mul_i32 s{sT3}, s{sT3}, 22
    s_add_u32 s{dst}, s{dst}, s{sT3}
    s_lshl_b32 s{dst}, s{dst}, 10
    s_add_u32 s{dst}, s{dst}, {HIMG}""")
    if LZ: e(f"""s_mul_i32 s{sT3}, s{sJ}, 6
    s_sub_u32 s{sT3}, s{sT3}, {add}
    s_cmp_lt_i32 s{sT1}, s{sT3}
    s_cselect_b32 s{dst}, {PROFO+262144}, s{dst}""")
e(f"""v_bfe_u32 v{vT0}, v{vLane}, 4, 1
v_lshlrev_b32 v{vT0}, 9, v{vT0}
v_and_b32 v{vT1}, 15, v{vLane}
v_lshl_add_u32 v{vT0}, v{vT1}, 4, v{vT0}
v_lshl_add_u32 v{cEh}, v{vH}, 8, v{vT0}
s_and_b32 s{sT0}, s{sW}, 1
s_lshl_b32 s{sT1}, s{sT0}, 10
s_add_u32 s{sT1}, s{sT1}, {STATM}
v_lshl_add_u32 v{cEs}, v{vT1}, 4, s{sT1}
s_lshl_b32 s{sT0}, s{sT0}, 12
s_lshl_b32 s{sT2}, s{sT2}, 9
s_add_u32 s{sT0}, s{sT0}, s{sT2}
s_add_u32 s{sT0}, s{sT0}, {QIMG}
v_lshl_add_u32 v{vT0}, v{vH}, 3, v{vT0}
v_add_u32 v{cEq}, s{sT0}, v{vT0}""")
f_init()
for r in list(range(cCs, cCs+16, 2)) + [r for r in range(cA, cA+112, 2) if not vRs <= r < vRs+16]: e(f"v_mov_b64 {vr(r,2)}, 0")
tstamp(13)
e("s_waitcnt vmcnt(0)")
tstamp(21)
rowstat_finish()
rowstat_post()
e(f"s_cmp_lg_u32 s{sJ}, 14\ns_cbranch_scc1 Lnr2")
rowstat_finish(vRs2); rowstat_post(vRs2, 64)
e("Lnr2:")
tstamp(23)
if "--touch" in sys.argv:
    e(f"""s_and_b32 s{sT2}, s{sI}, 7
    s_mul_i32 s{sT2}, s{sT2}, 48
    s_add_u32 s{sT2}, s{sT2}, 128
    s_cmp_ge_u32 s{sW}, 6
    s_cbranch_scc1 Ltc6
    v_lshrrev_b32 v{vT0}, 1, v{vLane}
    v_mul_u32_u24 v{vT0}, 2752, v{vT0}
    v_and_b32 v{vT1}, 1, v{vLane}
    v_lshl_add_u32 v{vT0}, v{vT1}, 7, v{vT0}
    s_mul_i32 s{sT0}, s{sJ}, 96
    s_min_u32 s{sT0}, s{sT0}, 1280
    s_lshl_b32 s{sT0}, s{sT0}, 1
    s_mul_i32 s{sT2}, s{sT2}, 2752
    s_add_u32 s{sT0}, s{sT0}, s{sT2}
    s_add_u32 s{sT1}, s{sT0}, {32*2752}
    s_cmp_eq_u32 s{sW}, 5
    s_cbranch_scc1 Ltc5
    buffer_load_dword v79, v{vT0}, {sr(SWG,4)}, s{sT0} offen
    s_mov_b32 exec_hi, 0
    buffer_load_dword v79, v{vT0}, {sr(SWG,4)}, s{sT1} offen
    s_branch Ltce
    Ltc5:
    buffer_load_dword v79, v{vT0}, {sr(SWU,4)}, s{sT0} offen
    s_mov_b32 exec_hi, 0
    buffer_load_dword v79, v{vT0}, {sr(SWU,4)}, s{sT1} offen
    s_branch Ltce
    Ltc6:
    s_cmp_eq_u32 s{sW}, 7
    s_cbranch_scc1 Ltc7
    v_lshrrev_b32 v{vT0}, 1, v{vLane}
    v_lshlrev_b32 v{vT0}, 10, v{vT0}
    v_and_b32 v{vT1}, 1, v{vLane}
    v_lshl_add_u32 v{vT0}, v{vT1}, 7, v{vT0}
    s_lshl_b32 s{sT0}, s{sI}, 17
    s_and_b32 s{sT1}, s{sJ}, 3
    s_lshl_b32 s{sT1}, s{sT1}, 15
    s_add_u32 s{sT0}, s{sT0}, s{sT1}
    buffer_load_dword v79, v{vT0}, {sr(SX,4)}, s{sT0} offen offset:256
    buffer_load_dword v79, v{vT0}, {sr(SX,4)}, s{sT0} offen offset:512
    buffer_load_dword v79, v{vT0}, {sr(SX,4)}, s{sT0} offen offset:768
    s_branch Ltce
    Ltc7:
    v_lshlrev_b32 v{vT0}, 10, v{vLane}
    s_lshl_b32 s{sT2}, s{sT2}, 10
    s_lshl_b32 s{sT0}, s{sJ}, 6
    s_add_u32 s{sT0}, s{sT0}, s{sT2}
    s_mov_b32 exec_hi, 0xffff
    buffer_load_dword v79, v{vT0}, {sr(SWQ,4)}, s{sT0} offen
    Ltce:
    s_mov_b64 exec, -1""")
e("s_nop 1")
for r in range(vRs, vRs+16, 2): e(f"v_mov_b64 {vr(r,2)}, 0")
e(f"s_mov_b32 s{sSt}, 0\ns_mov_b32 s{sRb}, 0\ns_mov_b32 s{sC3}, {(-2*STG) & 0xffffffff}\ns_setprio 2")
NF = 7
def comp_loop(var):
    tag = f"{var}"
    def wrd(n, k2):
        if n == 0: a, o, rs = cRQ, QOFF, 64
        else:
            t = (n-1) % 3
            a, o, rs = cRW+(t & 1), (GOFF if n < 4 else UOFF) + (t >> 1)*64, 192
        return tr(cW+4*n, a, o+32*k2*rs) + tr(cW+4*n+2, a, o+(32*k2+4)*rs)
    def xrd(k2): return [f"ds_read_b128 {vr(cX[k2]+4*u,4)}, v{cRX+k2} offset:{2048*u}" for u in range(4)]
    def mm(n, k2):
        r = [mfma16(cA+28*u+4*n, cW+4*n, cX[k2]+4*u) for u in range(4)]
        if var < 2 and (n & 1) == var: r.append(mfma16(cCs+4*(n >> 1), cW+4*n, cO))
        return r
    if var == 0:
        e("s_waitcnt lgkmcnt(0)\ns_barrier")
        for x in xrd(0) + sum([wrd(n, 0) for n in range(NF)], []): e(x)
        e(f"s_and_b32 s{sT0}, s{sI}, 6\ns_cmp_lg_u32 s{sT0}, 0\ns_waitcnt lgkmcnt(0)\ns_cbranch_scc1 Lc_2\ns_bitcmp1_b32 s{sW}, 0\ns_cbranch_scc1 Lc_1")
    e(f".p2align 3\nLc_{tag}:")
    adr = [f"v_add_u32 v{r}, s{sDl}, v{r}" for r in (cRX, cRX+1, cRW, cRW+1, cRQ)]
    ctl = rot_delta().split("\n") + [f"s_add_u32 s{sSt}, s{sSt}, 1"]
    BARG = 2
    def build(order0):
        out = []; q = []; issued = list(order0)
        def need(tagname):
            idx = max(i for i, t in enumerate(issued) if t == tagname)
            return len(issued)-1-idx
        def push(tagname, lst): q.extend((tagname, x) for x in lst)
        lastN = [99]
        for k2 in range(2):
            if k2 == 0: push("x1", xrd(1))
            for n in range(NF):
                if k2 == 1 and n == BARG:
                    while q:
                        t, x = q.pop(0); out.append(x)
                        if t: issued.append(t)
                    out.append(f"s_waitcnt lgkmcnt(0)\n{tk(None)}\ns_barrier\n{tk(81)}")
                    issued.clear(); issued.extend(["done"])
                    push("x0", xrd(0))
                    for m in range(BARG): push(f"w{m}0", wrd(m, 0))
                reqs = [f"w{n}{k2}"] + ([f"x{k2}"] if n == 0 else [])
                for r in reqs: assert all(t != r for t, _ in q), (r, k2, n)
                ns = [need(r) for r in reqs if r in issued]
                if ns and n % 2 == 0 or ns and min(ns) < lastN[0]:
                    nxt = f"w{n+1}{k2}"
                    if nxt in issued and all(t != nxt for t, _ in q): ns.append(need(nxt))
                    N = min(min(ns), 15); out.append(f"s_waitcnt lgkmcnt({N})"); lastN[0] = N
                for x in mm(n, k2):
                    out.append(x)
                    if q:
                        t, y = q.pop(0); out.append(y)
                        if t: issued.append(t); lastN[0] += 1
                if k2 == 0:
                    push(f"w{n}1", wrd(n, 1))
                    if n == 3: push(None, ctl)
                    if n == NF-1: push(None, adr)
                elif n >= BARG: push(f"w{n}0", wrd(n, 0))
        while q:
            t, x = q.pop(0); out.append(x)
            if t: issued.append(t)
        return out, issued
    _, steady = build([])
    out, _ = build(steady)
    for x in out: e(x)
    e(f"s_cmp_lt_u32 s{sSt}, {2 if var < 2 else 8}\ns_cbranch_scc1 Lc_{tag}")
    if var < 2:
        e(f"s_nop 2\ns_mov_b32 exec_lo, 0x00010001\ns_mov_b32 exec_hi, 0x00010001")
        for k in range(4-var): e(f"ds_write_b128 v{cEw}, {vr(cCs+4*k,4)} offset:{128*k}")
        e("s_mov_b64 exec, -1")
        if var == 0: e("s_branch Lc_2")
    tkout()
eC, eK, eT = 8, 40, 56
comp_loop(0); comp_loop(1); comp_loop(2)
tstamp(1)
for u in range(4): e(f"ds_read_b128 {vr(eK+4*u,4)}, v{cEs} offset:{256*u}")
for n in range(NF): e(f"ds_read_b128 {vr(eC+4*n,4)}, v{cEc} offset:{64*n}")
e("s_waitcnt lgkmcnt(6)")
for u in range(4): e(f"v_mul_f32 v{eT+u}, {f2u(0.25*1.4426950408889634/C1):#x}, v{eK+4*u+1}")
for u in range(4):
    for p in (0, 2): e(pk("v_pk_fma_f32", cA+28*u+p, [('b', eK+4*u), ('p', eC+p), ('p', cA+28*u+p)]))
for u in range(4):
    for p in (0, 2): e(pk("v_pk_mul_f32", cA+28*u+p, [('p', cA+28*u+p), ('b', eT+u)]))
for u in range(4):
    q = cA+28*u
    e(f"v_cvt_pk_bf16_f32 v{q}, v{q}, v{q+1}\nv_cvt_pk_bf16_f32 v{q+1}, v{q+2}, v{q+3}")
for u in range(4): e(f"ds_write_b64 v{cEq}, {vr(cA+28*u,2)} offset:{2048*(u>>1)+256*(u&1)}")
e(f"v_mov_b32 v{vT0}, {KFL}\ns_waitcnt lgkmcnt(0)\ns_barrier")
e(f"ds_read_b32 v{vT1}, v{vT0} offset:16")
ES = "--es" in sys.argv
if ES: a_sent(True)
e(f"s_waitcnt lgkmcnt(0)\nv_cmp_ne_u32 vcc, 0, v{vT1}")
CK = "--nock" not in sys.argv
e(f"s_cmp_eq_u64 vcc, 0\ns_cselect_b32 s{sSt}, 1, 0")
gl0 = len(L)
for u in range(4):
    g = cA+28*u+4; P = cA+28*(u & 2)+4
    gelu_tile(g, g+12, eC+4, eC+16, eK+4*u, eT, 12, [P+4*(p//2)+2*(u & 1)+(p & 1) for p in range(6)])
    if u & 1:
        e("s_nop 0")
        for t in range(3):
            e(f"v_permlane32_swap_b32 v{P+4*t}, v{P+4*t+2}\nv_permlane32_swap_b32 v{P+4*t+1}, v{P+4*t+3}")
        for t, so in enumerate((sC0, sC1, sC2)):
            st = f"buffer_store_dwordx4 {vr(P+4*t,4)}, v{cEh}, {sr(SWS,4)}, s{so} offen sc1"
            if LZ: L.append(f"s_cmp_eq_u32 s{so}, {PROFO+262144}\ns_cbranch_scc1 Lns{u}{t}\n{st}\nLns{u}{t}:")
            else: e(st)
        if u == 1: e(f"v_add_u32 v{cEh}, {88*1024}, v{cEh}")
    if CK and u < 3: L.append(f"s_cmp_lg_u32 s{sSt}, 0\ns_cbranch_scc1 Lck{u}\nLckr{u}:")
body = L[gl0:]; del L[gl0:]
e(f"s_lshl_b32 s{sT1}, s{sW4}, 12")
items = []
for n in range(12):
    t = f"s_cbranch_vccz Lgk{n}\n"
    if n % 2 == 0: t += f"s_add_u32 s{sT0}, s{sT1}, {36*1024+8192*n}\ns_mov_b32 m0, s{sT0}\ns_nop 0\n"
    for k in range(2): t += f"buffer_load_dwordx4 v{vL16}, {sr(SWS,4)}, s{sT0} offen offset:{1024*(2*(n%2)+k)} sc1 lds\n"
    items.append(t + f"Lgk{n}:")
cut = (len(body)*3)//4
for x in interleave(body[:cut], items) + body[cut:]: e(x)
e(f"""s_cmp_eq_u32 s{sSt}, 0
s_cbranch_scc1 Lgk
s_mov_b32 s{sT0}, 0
s_setprio 0
Lgw:
s_sleep 2
ds_read_b32 v{vT1}, v{vT0} offset:16
s_add_u32 s{sT0}, s{sT0}, 1
s_waitcnt lgkmcnt(0)
v_cmp_ne_u32 vcc, 0, v{vT1}
s_cmp_ge_u32 s{sT0}, 2000000
s_cbranch_scc1 LFkv
s_cbranch_vccz Lgw
s_branch LFkv
Lgk:""")
e(tag_issue())
stamp(2)
tflush(); TS.clear(); rt_out()
e("s_branch LF")
if CK:
    for u in range(3):
        e(f"""Lck{u}:
        ds_read_b32 v{vT1}, v{vT0} offset:16
        s_waitcnt lgkmcnt(0)
        v_readfirstlane_b32 s{sT0}, v{vT1}
        s_cmp_eq_u32 s{sT0}, 0
        s_cbranch_scc1 Lckr{u}
        s_mov_b32 s{sSt}, 0""")
        kv_rest(f"c{u}")
        e(f"s_branch Lckr{u}")

def cs_write(acc, slot_expr_sreg):
    e(f"""v_and_b32 v{vT0}, 1, v{vLane}
    v_lshlrev_b32 v{vT0}, 6, v{vT0}
    v_lshrrev_b32 v{vT1}, 4, v{vLane}
    v_lshl_add_u32 v{vT0}, v{vT1}, 4, v{vT0}
    v_add_u32 v{vT0}, {slot_expr_sreg}, v{vT0}
    s_mov_b32 exec_lo, 0x00030003
    s_mov_b32 exec_hi, 0x00030003
    ds_write_b128 v{vT0}, {vr(acc,4)}
    s_mov_b64 exec, -1""")
e("Lkvcu:")
entry_stamp(True)
for x in kvx_dma(1): e(x)
late_srd(LS_A + LS_F)
e(f"""v_and_b32 v{vT0}, 31, v{vLane}
v_lshrrev_b32 v{vT1}, 1, v{vT0}
v_and_b32 v{vT1}, 7, v{vT1}
v_xor_b32 v{vT1}, v{vT1}, v{vH}
v_lshlrev_b32 v{vT0}, 7, v{vT0}
v_add_u32 v{vT0}, s{sXb}, v{vT0}""")
for ks in range(4):
    e(f"v_xor_b32 v{vT2}, {2*ks}, v{vT1}\nv_lshl_add_u32 v{vRX+ks}, v{vT2}, 4, v{vT0}")
e(f"""v_bfe_u32 v{vT0}, v{vLane}, 2, 2
v_lshl_add_u32 v{vT0}, v{vH}, 3, v{vT0}
v_bfe_u32 v{vT1}, v{vLane}, 4, 1
v_and_b32 v{vT2}, 3, v{vLane}
v_lshlrev_b32 v{vT2}, 3, v{vT2}
v_lshl_add_u32 v{vT3}, v{vT1}, 5, v{vT2}
v_lshl_add_u32 v{vRQ}, v{vT0}, 6, v{vT3}
v_lshlrev_b32 v{vT1}, 14, v{vT1}
v_lshl_add_u32 v{vRW}, v{vT0}, 5, v{vT2}
s_lshr_b32 s{sT0}, s{sW}, 2
s_lshl_b32 s{sT0}, s{sT0}, 13
s_add_u32 s{sT1}, s{sT0}, {WKV}
v_add3_u32 v{vRW}, v{vRW}, v{vT1}, s{sT1}
s_add_u32 s{sT1}, s{sT1}, s{sT0}
v_add_u32 v{vRQ}, s{sT1}, v{vRQ}
v_lshrrev_b32 v{vT0}, 2, v{vLane}
v_lshlrev_b32 v{vT0}, 10, v{vT0}
v_and_b32 v{vT1}, 3, v{vLane}
v_lshl_add_u32 v{vQa}, v{vT1}, 4, v{vT0}
v_bfe_u32 v{vT0}, v{vLane}, 4, 1
v_and_b32 v{vT1}, 15, v{vLane}
v_cmp_eq_u32 vcc, v{vT0}, v{vT1}
v_mov_b32 v{vT2}, 0x3f803f80
s_nop 0
v_cndmask_b32 v{vSel}, 0, v{vT2}, vcc""")
for k in range(1, 4): e(f"v_mov_b32 v{vSel+k}, v{vSel}")
for r in range(vCs, vCs+4): e(f"v_mov_b32 v{r}, 0")
e("s_waitcnt vmcnt(4) lgkmcnt(0)\ns_barrier")
tstamp(12)
def kv_reads(c):
    r = []
    for ks in range(4):
        W = vWk + 16*(c & 1) + 4*ks
        r += [f"ds_read_b128 {vr(vXf+16*c+4*ks,4)}, v{vRX+ks} offset:{4096*c}"]
        r += tr(W, vRW, (64*c+16*ks)*32) + tr(W+2, vRW, (64*c+16*ks+4)*32)
    return r
def kstat_issue():
    return f"buffer_load_dwordx4 {vr(vSt,4)}, v{vWa0}, {sr(SWS,4)}, s{sC1} offen sc1"
for x in kv_reads(0) + kvx_dma(2) + kvx_dma(3): e(x)
e(f"""v_and_b32 v{vWa0}, 31, v{vLane}
v_lshlrev_b32 v{vWa0}, 4, v{vWa0}
s_lshl_b32 s{sT0}, s{sI}, 2
s_add_u32 s{sT0}, s{sT0}, s{sW4}
s_mul_i32 s{sC0}, s{sT0}, {KVT}
s_lshl_b32 s{sC1}, s{sT0}, 9
s_add_u32 s{sC1}, s{sC1}, {STATG}""")
if "--kvt" in sys.argv: e(f"s_mov_b32 s{sT0}, {64*KVT+1024}\nbuffer_load_dword v{vSt+8}, off, {sr(SWS,4)}, s{sT0}")
for c in range(4):
    m = []
    for ks in range(4):
        X = vXf+16*c+4*ks; W = vWk + 16*(c & 1) + 4*ks
        z = "0" if c == 0 and ks == 0 else None
        m += [mfma(vAcc+16, W, X, z), mfma16(vCs, W, vSel), mfma(vAcc+32, X, W, z)]
    e("s_waitcnt lgkmcnt(0)")
    if c < 3:
        wt = f"s_waitcnt vmcnt({8-4*c})"
        for x in m[:3] + [wt] + interleave(m[3:9], kv_reads(c+1)) + m[9:]: e(x)
    else:
        e(tag_issue())
        e(kstat_issue())
        for x in m: e(x)
tstamp(1)
e(f"""v_and_b32 v{vT2}, 31, v{vLane}
v_lshlrev_b32 v{vT2}, 2, v{vT2}
s_xor_b32 s{sT2}, s{sXb}, 65536
s_add_u32 s{sT1}, s{sXb}, 4352
s_lshl_b32 s{sQo}, s{sW}, 16
s_add_u32 s{sQo}, s{sQo}, {64*15}
s_lshl_b32 s{sMq}, s{sW}, 12
s_add_u32 s{sMq}, s{sMq}, {WKV}""")
cs_write(vCs, f"s{sT1}")
e(f"""v_add_u32 v{vT0}, s{sXb}, v{vL16}
v_add_u32 v{vWa1}, s{sT2}, v{vL16}
v_add_u32 v{vWa2}, s{sT2}, v{vT2}
v_lshl_add_u32 v{vT3}, v{vH}, 4, s{sXb}
s_cmp_ge_u32 s{sW}, 4
s_cbranch_scc1 LkvH""")
def wq_dma():
    for k in range(4):
        e(f"s_add_u32 m0, s{sMq}, {1024*k}\ns_add_u32 s{sT0}, s{sQo}, {16384*k}\nbuffer_load_dwordx4 v{vQa}, {sr(SWQ,4)}, s{sT0} offen lds")
WQE = "--wqe" in sys.argv
def kstat_wait(tag):
    if WQE: wq_dma()
    tag_wait("k"+tag, 0)
    e(f"""s_mov_b32 s{sT0}, 0
    Lks_{tag}:
    v_cmp_ne_u64 vcc, s[{sNo}:{sNo+1}], {vr(vSt+2,2)}
    s_add_u32 s{sT0}, s{sT0}, 1
    s_cmp_ge_u32 s{sT0}, 100000
    s_cbranch_vccz Lksd_{tag}
    s_cbranch_scc1 Lksd_{tag}
    {kstat_issue()}
    s_waitcnt vmcnt(0)
    s_branch Lks_{tag}
    Lksd_{tag}:""")
for q in range(4): e(f"ds_write_b128 v{vT0}, {vr(vAcc+32+4*q,4)} offset:{1024*q}")
e(f"v_xor_b32 v{vT1}, 0x10000, v{vT3}\ns_waitcnt lgkmcnt(0)\ns_barrier")
e(f"""ds_read_b128 {vr(vWk,4)}, v{vWa1}
ds_read_b128 {vr(vWk+4,4)}, v{vWa1} offset:1024
ds_read_b128 {vr(vSt+12,4)}, v{vT3} offset:{4352+64}
ds_read_b128 {vr(vSt+16,4)}, v{vT3} offset:{4352+96}
ds_read_b128 {vr(vWk+8,4)}, v{vT1} offset:{4352+64}
ds_read_b128 {vr(vWk+12,4)}, v{vT1} offset:{4352+96}""")
e(f"""v_and_b32 v{vT0}, 0x33, v{vLane}
v_bfe_u32 v{vT1}, v{vLane}, 2, 1
v_lshl_or_b32 v{vT0}, v{vT1}, 3, v{vT0}
v_bfe_u32 v{vT1}, v{vLane}, 3, 1
v_lshl_or_b32 v{vT0}, v{vT1}, 2, v{vT0}
v_lshlrev_b32 v{vT0}, 4, v{vT0}
s_waitcnt lgkmcnt(0)""")
for p in range(0, 8, 2):
    e(pk("v_pk_add_f32", vAcc+24+p, [('p', vAcc+24+p), ('p', vWk+p)]))
    e(pk("v_pk_add_f32", vSt+12+p, [('p', vSt+12+p), ('p', vWk+8+p)]))
kstat_wait("l")
e(f"v_sub_f32 v{vSt+4}, 0, v{vSt}")
lin_fold(vAcc+24, vSt+12, vSt+4, vSt+1, 8)
for p in range(4): e(f"v_cvt_pk_bf16_f32 v{vAcc+16+p}, v{vAcc+24+2*p}, v{vAcc+25+2*p}")
e(f"buffer_store_dwordx4 {vr(vAcc+16,4)}, v{vT0}, {sr(SWS,4)}, s{sC0} offen sc1\ns_branch LkvS")
e("LkvH:")
e(f"ds_write_b128 v{vT0}, {vr(vAcc+24,4)}\nds_write_b128 v{vT0}, {vr(vAcc+28,4)} offset:1024")
e(f"v_add_u32 v{vT1}, s{sXb}, v{vT2}\ns_waitcnt lgkmcnt(0)\ns_barrier")
e(f"ds_read_b32 v{vSt+6}, v{vT1} offset:4352\nds_read_b32 v{vSt+7}, v{vWa2} offset:4352")
for q in range(4): e(f"ds_read_b128 {vr(vAcc+48+4*q,4)}, v{vWa1} offset:{1024*q}")
tstamp(21)
kstat_wait("h")
tstamp(23)
e(f"ds_write_b32 v{vT1}, v{vSt} offset:4608\nds_write_b32 v{vT1}, v{vSt+1} offset:4736\ns_waitcnt lgkmcnt(0)")
for q in range(4):
    e(f"ds_read_b128 {vr(vWk+4*q,4)}, v{vT3} offset:{4608+32*q}\nds_read_b128 {vr(vWk+16+4*q,4)}, v{vT3} offset:{4736+32*q}")
e(f"v_add_f32 v{vSt+6}, v{vSt+6}, v{vSt+7}\nv_sub_f32 v{vSt+6}, 0, v{vSt+6}")
for p in range(0, 16, 2): e(pk("v_pk_add_f32", vAcc+32+p, [('p', vAcc+32+p), ('p', vAcc+48+p)]))
e("s_waitcnt lgkmcnt(0)")
for p in range(0, 16, 2): e(pk("v_pk_fma_f32", vAcc+32+p, [('p', vWk+p), ('b', vSt+6), ('p', vAcc+32+p)]))
for p in range(0, 16, 2): e(pk("v_pk_mul_f32", vAcc+32+p, [('p', vAcc+32+p), ('p', vWk+16+p)]))
for p in range(8): e(f"v_cvt_pk_bf16_f32 v{vAcc+32+p}, v{vAcc+32+2*p}, v{vAcc+33+2*p}")
v_lane_addr(vT0)
for p in range(8): e(f"v_mov_b32 v{vAcc+32+p}, 0x3f803f80")
e(f"""s_mov_b32 exec_lo, 0x1ffff
s_mov_b32 exec_hi, 0xffff
buffer_store_dwordx4 {vr(vAcc+32,4)}, v{vT0}, {sr(SWS,4)}, s{sC0} offen offset:1024 sc1
buffer_store_dwordx4 {vr(vAcc+36,4)}, v{vT0}, {sr(SWS,4)}, s{sC0} offen offset:{1024+528} sc1
s_mov_b64 exec, -1""")
tstamp(29)
e("LkvS:")
for r in range(4): e(f"v_mov_b32 v{vCs+r}, 0")
e(f"s_lshl_b32 s{sT2}, s{sI}, 7\ns_add_u32 s{sT2}, s{sT2}, {KFLG}\ns_waitcnt vmcnt(0)\ns_barrier")
if "--dkv" in sys.argv:
    for _ in range(3): e("s_sleep 127")
if "--dkv2" in sys.argv: e("s_sleep 45")
flag_set(sT2, "kv")
if not WQE: wq_dma()
stamp(13)
tflush(); TS.clear(); rt_out()
e("s_waitcnt vmcnt(0)\ns_barrier")
def q_reads(c):
    r = []
    for ks in range(4):
        W = vWk + 16*(c & 1) + 4*ks
        r += tr(W, vRQ, (64*c+16*ks)*64) + tr(W+2, vRQ, (64*c+16*ks+4)*64)
    return r
for x in q_reads(0): e(x)
for c in range(4):
    m = []
    for ks in range(4):
        X = vXf+16*c+4*ks; W = vWk + 16*(c & 1) + 4*ks
        m += [mfma(vAcc, W, X, "0" if c == 0 and ks == 0 else None), mfma16(vCs, W, vSel)]
    e("s_waitcnt lgkmcnt(0)")
    for x in interleave(m[:4], q_reads(c+1) if c < 3 else []) + m[4:]: e(x)
e(f"""s_or_b32 s{sT2}, s{sXb}, {65536+8192}
s_lshr_b32 s{sT3}, s{sW}, 2
s_lshl_b32 s{sT3}, s{sT3}, 7
s_add_u32 s{sT1}, s{sT2}, s{sT3}
s_add_u32 s{sT1}, s{sT1}, 4096
v_add_u32 v{vWa1}, s{sT2}, v{vL16}
v_lshl_add_u32 v{vT3}, v{vH}, 4, s{sT2}
s_nop 3""")
cs_write(vCs, f"s{sT1}")
e(f"s_cmp_ge_u32 s{sW}, 4\ns_cbranch_scc1 LkvH2\ns_waitcnt lgkmcnt(0)\ns_barrier")
for q in range(4): e(f"ds_read_b128 {vr(vWk+4*q,4)}, v{vWa1} offset:{1024*q}")
cs_read(vAcc+48, 4096); cs_read(vWk+16, 4096+128)
e("s_waitcnt lgkmcnt(0)")
for p in range(0, 16, 2):
    e(pk("v_pk_add_f32", vAcc+p, [('p', vAcc+p), ('p', vWk+p)]))
    e(pk("v_pk_add_f32", vAcc+48+p, [('p', vAcc+48+p), ('p', vWk+16+p)]))
q_epilogue(vAcc+48)
a_init(); fin_init()
e("s_waitcnt lgkmcnt(0)\ns_barrier\ns_branch LaR\nLkvH2:")
for q in range(4): e(f"ds_write_b128 v{vWa1}, {vr(vAcc+4*q,4)} offset:{1024*q}")
e(f"s_mov_b32 s{sKf}, {KFLG}")
e(flags_issue(sKf))
e("s_waitcnt lgkmcnt(0)\ns_barrier")
f_init()
flags_wait(sKf, "kv2", 0)
kv_dma("c")
e("s_waitcnt vmcnt(0)\ns_barrier")
if ES: a_sent(True)
e("s_branch LFkv")

AAL = 6 if "--a6" in sys.argv else 3
UNS = "--unsafeF" in sys.argv
vm = []
def vtag(tag): vm.append(tag)
def vwait_s(tag):
    idx = max(i for i, t in enumerate(vm) if t == tag)
    return f"s_waitcnt vmcnt({min(63, sum(1 for t in vm[idx+1:] if t[0] == tag[0] or UNS))})"
def emit_seq(seq):
    for x in seq:
        if isinstance(x, list): emit_seq(x)
        elif isinstance(x, tuple): vtag(x[0]); e(x[1])
        elif callable(x): e(x())
        else: e(x)
e(f"Lp2:\ns_setprio 3\ns_cmp_eq_u32 s{sSt}, 0\ns_cbranch_scc1 Lkvok")
stamp(16)
flags_wait(sKf, "kv", 0)
stamp(17)
kv_dma("d")
e(f"v_mov_b32 v{vT0}, {KFL}\nds_write_b32 v{vT0}, v{hF+1} offset:16")
e(f"""Lkvok:
v_mov_b32 v{vT0}, {KFL}
s_mov_b32 s{sT0}, 0
s_waitcnt vmcnt(0)
ds_write_b32 v{hF}, v{hF+1}
Lkw:
ds_read_b128 {vr(aS[0],4)}, v{vT0}
s_add_u32 s{sT0}, s{sT0}, 1
s_waitcnt lgkmcnt(0)
v_and_b32 v{aS[0]}, v{aS[0]}, v{aS[0]+1}
v_and_b32 v{aS[0]+2}, v{aS[0]+2}, v{aS[0]+3}
v_and_b32 v{aS[0]}, v{aS[0]}, v{aS[0]+2}
v_cmp_ne_u32 vcc, 0, v{aS[0]}
s_cmp_ge_u32 s{sT0}, 2000000
s_cbranch_scc1 LaR
s_cbranch_vccnz LaR
s_sleep 1
s_branch Lkw
LaR:""")
stamp(3)
e(f"""ds_read_b128 {vr(aQ[0],4)}, v{vAq}
ds_read_b128 {vr(aK[0],4)}, v{vAk}
ds_read_b128 {vr(aQ[1],4)}, v{vAq} offset:1024
ds_read_b128 {vr(aK[1],4)}, v{vAk} offset:{KVT}
ds_read_b128 {vr(aVl[0],4)}, v{vAv}
ds_read_b128 {vr(aVh[0],4)}, v{vAv} offset:528
s_waitcnt lgkmcnt(4)""")
e(mfma(aS[0], aK[0], aQ[0], "0"))
e("s_waitcnt lgkmcnt(3)")
e(mfma(aS[1], aK[0], aQ[1], "0"))
e("s_nop 9")
for b in range(2):
    t = vT0+2*b; S = aS[b]
    e(f"v_max3_f32 v{t}, v{S}, v{S+1}, v{S+2}")
    for p in range(3, 15, 2): e(f"v_max3_f32 v{t}, v{t}, v{S+p}, v{S+p+1}")
    e(f"v_max_f32 v{t}, v{t}, v{S+15}\nv_mov_b32 v{t+1}, v{t}")
e(f"""s_nop 1
v_permlane32_swap_b32 v{vT0}, v{vT1}
v_permlane32_swap_b32 v{vT2}, v{vT3}
s_mov_b32 s{sSt}, 0
v_max_f32 v{vT0}, v{vT0}, v{vT1}
v_max_f32 v{vT2}, v{vT2}, v{vT3}""")
for b in range(2):
    e(f"v_sub_f32 v{aC[b]}, 0, v{vT0+2*b}\nv_sub_f32 v{aC[b]+1}, 0, v{vT0+2*b}")
for r in range(16): e(f"v_sub_f32 v{aS[0]+r}, v{aS[0]+r}, v{vT0}")
for b in (1, 0):
    for r in range(2, 16, 2): e(f"v_mov_b64 {vr(aC[b]+r,2)}, {vr(aC[b],2)}")
e("s_setprio 1")
stamp(5)
e(f"v_exp_f32 v{aS[0]}, v{aS[0]}\nv_exp_f32 v{aS[0]+1}, v{aS[0]+1}\ns_branch La1\n.p2align {AAL}\nLa0:")
for n in range(32):
    b = n & 1; T = n >> 1
    X = aS[b]; Y = aS[b ^ 1]
    ex = [f"v_exp_f32 v{X+i}, v{X+i}" for i in range(16)]
    Tp = (n-1) >> 1; Tn = (n+1) >> 1
    seq = ex[0:2] + [smf(aO[b ^ 1], aVh[Tp & 1], Y+8, vIdx)] + (["La1:"] if n == 0 else []) + ex[2:5]
    seq += [mfma(Y, aK[Tn & 1], aQ[b ^ 1], vr(aC[b ^ 1], 16))]
    if b:
        rd = [f"ds_read_b128 {vr(aVl[(T+1)&1],4)}, v{vAv} offset:{(T+1)*KVT}",
              f"ds_read_b128 {vr(aVh[(T+1)&1],4)}, v{vAv} offset:{(T+1)*KVT+528}",
              f"ds_read_b128 {vr(aK[T&1],4)}, v{vAk} offset:{(T+2)*KVT}"]
        seq += rd + ex[5:10]
    else: seq += ["s_waitcnt lgkmcnt(0)"] + ex[5:10]
    seq += [smf(aO[b], aVl[T & 1], X, vIdx)] + ex[10:16]
    for x in seq: e(x)
if PROF:
    e(f"s_memtime s[{sTm}:{sTm+1}]\ns_lshl_b32 s{sT0}, s{sSt}, 2\ns_add_u32 s{sT0}, s{sT0}, s{sPo}\ns_waitcnt lgkmcnt(0)\nv_mov_b32 v0, s{sTm}\nbuffer_store_dword v0, off, {sr(SWS,4)}, s{sT0} offset:72")
e(f"""v_add_u32 v{vAk}, {16*KVT}, v{vAk}
v_add_u32 v{vAv}, {16*KVT}, v{vAv}
s_add_u32 s{sSt}, s{sSt}, 1
s_cmp_eq_u32 s{sSt}, 1
s_cbranch_scc0 La2
{'' if PROF else 's_waitcnt vmcnt(0)'}
s_barrier
s_branch La0
La2:
s_cmp_lt_u32 s{sSt}, 4
s_cbranch_scc1 La0""")
e(smf(aO[1], aVh[1], aS[1]+8, vIdx))
if "--dA" in sys.argv:
    e(f"s_and_b32 s{sT0}, s2, 0x29\ns_cmp_lg_u32 s{sT0}, 0\ns_cbranch_scc1 LdA\ns_sleep 127\ns_sleep 127\nLdA:")
e(f"s_mov_b32 s{sC0}, {f2u(2.0**40):#x}\ns_mov_b32 s{sC1}, {f2u(2.0**126):#x}")
for b in range(2):
    O = aO[b]
    e(f"s_mov_b32 s{sRetry}, 0\nLfin{b}:")
    e(f"""v_rcp_f32 v{O+10}, v{O+8}
    v_max3_f32 v{vT1}, abs(v{O}), abs(v{O+1}), abs(v{O+2})
    v_max3_f32 v{vT1}, v{vT1}, abs(v{O+3}), abs(v{O+4})
    v_max3_f32 v{vT1}, v{vT1}, abs(v{O+5}), abs(v{O+6})
    v_max_f32 v{vT1}, v{vT1}, abs(v{O+7})
    v_cmp_nlt_f32 vcc, v{O+8}, s{sC0}
    v_cmp_nlt_f32 s[{sEx}:{sEx+1}], v{vT1}, s{sC1}""")
    for p in range(8): e(f"v_mul_f32 v{O+p}, v{O+p}, v{O+10}")
    e(f"s_or_b64 vcc, vcc, s[{sEx}:{sEx+1}]")
    for p in range(4): e(f"v_cvt_pk_bf16_f32 v{O+p}, v{O+2*p}, v{O+2*p+1}")
    for p in range(4): e(f"v_min_u32 v{O+p}, -2, v{O+p}")
    e(f"s_cbranch_vccnz Lfallback{b}\nLok{b}:")
    e(f"buffer_store_dwordx4 {vr(O,4)}, v{vL16}, {sr(SWS,4)}, s{sOp if b == 0 else sOp2} offen sc1")
stamp(6)
OSC = " sc1"
gX = [136, 140]; gG = [144, 176]; gR = [8, 40]
e(f"buffer_load_dwordx4 {vr(gX[0],4)}, v{vRa}, {sr(SX,4)}, s{sXf} offen")
e(f"buffer_load_dwordx4 {vr(gX[1],4)}, v{vRa}, {sr(SX,4)}, s{sXf2} offen")
e("s_waitcnt lgkmcnt(0)\ns_setprio 0\ns_barrier\ns_barrier")
stamp(8)
for tt in range(2):
    for q in range(8): e(f"ds_read_b128 {vr(gG[tt]+4*q,4)}, v{vRr} offset:{128*tt+XK*(q//2)+512*(q%2)}")
def sum4(r):
    for p in range(0, 8, 2):
        e(pk("v_pk_add_f32", r+p, [('p', r+p), ('p', r+8+p)]))
        e(pk("v_pk_add_f32", r+16+p, [('p', r+16+p), ('p', r+24+p)]))
    for p in range(0, 8, 2): e(pk("v_pk_add_f32", r+p, [('p', r+p), ('p', r+16+p)]))
for tt in range(2):
    G = gG[tt]
    e(f"s_waitcnt lgkmcnt({8*(1-tt)})")
    for p in range(8): e(f"v_add_f32 v{G+p}, v{G+p}, v{G+8+p}\nv_add_f32 v{G+16+p}, v{G+16+p}, v{G+24+p}")
    for p in range(8): e(f"v_add_f32 v{G+p}, v{G+p}, v{G+16+p}")
    for p in range(8): e(f"v_mul_f32 v{G+8+p}, {f2u(-1.4426950408889634):#x}, v{G+p}")
    for p in range(8): e(f"v_exp_f32 v{G+8+p}, v{G+8+p}")
    for p in range(8): e(f"v_add_f32 v{G+8+p}, 1.0, v{G+8+p}")
    for p in range(8): e(f"v_rcp_f32 v{G+8+p}, v{G+8+p}")
    e("s_waitcnt vmcnt(0)")
    for p in range(4): e(f"v_lshlrev_b32 v{G+16+2*p}, 16, v{gX[tt]+p}\nv_and_b32 v{G+17+2*p}, 0xffff0000, v{gX[tt]+p}")
    for p in range(8): e(f"v_mul_f32 v{G+p}, v{G+p}, v{G+8+p}")
stamp(9)
e("s_barrier")
for tt in range(2):
    for q in range(8): e(f"ds_read_b128 {vr(gR[tt]+4*q,4)}, v{vRr2} offset:{128*tt+XK*(q//2)+512*(q%2)}")
for tt in range(2):
    R = gR[tt]; G = gG[tt]
    e(f"s_waitcnt lgkmcnt({8*(1-tt)})")
    sum4(R)
    for p in range(0, 8, 2): e(pk("v_pk_fma_f32", R+p, [('p', R+p), ('p', G+p), ('p', G+16+p)]))
    for p in range(4): e(f"v_cvt_pk_bf16_f32 v{R+p}, v{R+2*p}, v{R+2*p+1}")
    e(f"buffer_store_dwordx4 {vr(R,4)}, v{vRa}, {sr(SOUT,4)}, s{sXf if tt == 0 else sXf2} offen{OSC}")
def the_end():
    stamp(11)
    if RT: e(f"s_waitcnt vmcnt(0)\ns_memrealtime s[100:101]\ns_waitcnt lgkmcnt(0)\nv_mov_b32 v0, s100\nbuffer_store_dword v0, off, {sr(SWS,4)}, s{sPo} offset:56")
the_end()
e("Lend:\ns_endpgm")

e("LFkv:")
kv_rest("k")
e("LF:")
if FS and not ES: a_sent(True)
tag_wait("f", 0)
e("s_setprio 0\ns_barrier")
flag_set(sHs, "h", 4)
RG = SP + [aslot(n) for n in range(4)]
def u_dma(m):
    srdw, row = (SWO, 64*m) if m < 8 else (SWD, 64*(m-8))
    so = [f"s_add_u32 s{sT0}, s{sDo}, {row*1024}"]
    if m == 29: so += [f"s_cmp_lt_u32 s{sW4}, 2", f"s_cselect_b32 s{sT0}, s{sT0}, s{sDo}"]
    return [f"s_add_u32 m0, s{sDm}, {RG[m % 7]}"] + so + [
            (f"u{m}", f"buffer_load_dwordx4 v{vDa}, {sr(srdw,4)}, s{sT0} offen lds"),
            (f"u{m}", f"buffer_load_dwordx4 v{vDa2}, {sr(srdw,4)}, s{sT0} offen offset:1024 lds")]
def u_reads(m, F):
    a = RG[m % 7]; win = 1 if a >= SP[0] else 0; off = a - win*SP[0]
    r0, r1 = vRd+2*win, vRd+2*win+1
    return tr(F, r0, off) + tr(F+2, r0, off+1024) + tr(F+4, r1, off) + tr(F+6, r1, off+1024)
HR = int(sys.argv[sys.argv.index("--hr")+1]) if "--hr" in sys.argv else 8
def h_loads(s):
    r = []
    if s % 4 == 0: r += [f"s_add_u32 s{sC0}, s{sHo}, {1024*s}", f"s_add_u32 s{sC1}, s{sC0}, {88*1024}"]
    for tt in range(2):
        r.append((f"h{s}", f"buffer_load_dwordx4 {vr(fH+8*(s % HR)+4*tt,4)}, v{vL16}, {sr(SWS,4)}, s{sC0 if tt == 0 else sC1} offen offset:{1024*(s%4)} sc1"))
    return r
for m in range(7): emit_seq(u_dma(m))
for m in range(8):
    e(vwait_s(f"u{m}"))
    for x in u_reads(m, fWo+8*m): e(x)
    e("s_waitcnt lgkmcnt(0)")
    emit_seq(u_dma(m+7))
tstamp(18)
e(flags_issue(sHc))
flags_wait(sHc, "h", 0)
tstamp(19)
for s in range(HR): emit_seq(h_loads(s))
for x in u_reads(8, fWb[0]): e(x)
FB = int(sys.argv[sys.argv.index("--fb")+1]) if "--fb" in sys.argv else 15
for s in range(22):
    m = 8+s; W = fWb[s & 1]
    if s == FB:
        tstamp(20); e("s_barrier\ns_setprio 2"); tstamp(21)
    if s < 21:
        e(vwait_s(f"u{m+1}"))
        for x in u_reads(m+1, fWb[(s+1) & 1]): e(x)
        e("s_waitcnt lgkmcnt(4)")
    else: e("s_waitcnt lgkmcnt(0)")
    if m+7 < 30: emit_seq(u_dma(m+7))
    e(vwait_s(f"h{s}"))
    if s == 21: e(f"s_cmp_ge_u32 s{sW4}, 2\ns_cbranch_scc1 Lskip21")
    for tt in range(2):
        for ch in range(2 if "--nofm" not in sys.argv else 0): e(mfma(fA+32*tt+16*ch, W+4*ch, fH+8*(s % HR)+4*tt, "0" if s == 0 else None))
    if s+HR < 22: emit_seq(h_loads(s+HR))
e("Lskip21:\ns_nop 8")
tstamp(22)
ORD = [7, 6, 5, 4, 3, 2, 1, 0] if M48 else [i ^ (2*JX) for i in [7, 6, 5, 4, 1, 0, 3, 2]]
def o_load(k):
    tt, i = k & 1, k >> 1
    return f"buffer_load_dwordx4 {vr(opos(i)+4*tt,4)}, v{vL16}, {sr(SWS,4)}, s{(sOc, sOc2, sOc3, sOc4)[2*tt+(i>>2)]} offen offset:{1024*(i%4)} sc1"
def opos(i): return fO + 8*ORD.index(i)
zer = [f"v_mov_b64 {vr(fS+r,2)}, 0" for r in range(0, 64, 2)]
for q in range(16):
    e(f"ds_write_b128 v{vRw}, {vr(fA+4*q,4)} offset:{XB*(q//2)+XP*(q%2)}")
    if q >= 4: e(f"s_waitcnt lgkmcnt(4)\n{o_load(2*ORD[(q-4)//2]+(q & 1))}")
e("s_waitcnt lgkmcnt(0)\ns_barrier")
for k in range(12, 16): e(o_load(2*ORD[k//2]+(k & 1)))
tstamp(9)
def o_pair(i, tag, wait):
    B = opos(i)
    if wait is not None: e(f"s_waitcnt vmcnt({wait})")
    else: e(f"s_bitcmp1_b32 s{sSt}, {i}\ns_cbranch_scc0 Lon{tag}{i}")
    e(f"""v_max3_u32 v{vT1}, v{B}, v{B+1}, v{B+2}
    v_max3_u32 v{vT1}, v{vT1}, v{B+3}, v{B+4}
    v_max3_u32 v{vT1}, v{vT1}, v{B+5}, v{B+6}
    v_max_u32 v{vT1}, v{vT1}, v{B+7}
    v_cmp_eq_u32 vcc, s{sT1}, v{vT1}
    s_cbranch_vccnz Lon{tag}{i}
    s_bitset0_b32 s{sSt}, {i}""")
    for tt in range(2):
        for ch in range(2): e(mfma(fS+32*tt+16*ch, fWo+8*i+4*ch, B+4*tt))
    e(f"Lon{tag}{i}:")
def acc_chain(tt, ch): return [mfma(fS+32*tt+16*ch, fWo+8*i+4*ch, opos(i)+4*tt, "0" if n == 0 else None) for n, i in enumerate(ORD)]
def s_wr(tt, ch): return [f"ds_write_b128 v{vRw2+tt}, {vr(fS+32*tt+16*ch+4*q,4)} offset:{XB*(2*ch+q//2)+XP*(q%2)}" for q in range(4)]
e(f"v_mov_b32 v{vT1}, 0")
for n, x in enumerate(acc_chain(0, 0)):
    B = fO+8*n
    e(f"s_waitcnt vmcnt({14-2*n})\n{x}")
    for p in range(0, 8, 2): e(f"v_max3_u32 v{vT1}, v{vT1}, v{B+p}, v{B+p+1}")
e(f"v_cmp_eq_u32 vcc, -1, v{vT1}\ns_cbranch_vccnz Lor0")
c1, c2, c3 = acc_chain(0, 1), acc_chain(1, 0), acc_chain(1, 1)
for prev, c in (((0, 0), c1), ((0, 1), c2), ((1, 0), c3)):
    for x in [c[0], "s_nop 3", c[1], "s_nop 3", c[2]] + interleave(c[3:7], s_wr(*prev)) + c[7:]: e(x)
stamp(7)
e("s_nop 11")
for x in s_wr(1, 1): e(x)
e("Lsd:")
e("s_waitcnt lgkmcnt(0)\ns_barrier")
stamp(10); tflush(); TS.clear()
the_end()
e("s_endpgm")
e(f"Lor0:\ns_nop 8")
for x in zer: e(x)
e(f"s_mov_b32 s{sT0}, 0\ns_mov_b32 s{sSt}, 0xff\ns_mov_b32 s{sT1}, -1\ns_branch Lor2")
e("Lor:\ns_sleep 4")
for i in ORD:
    e(f"s_bitcmp1_b32 s{sSt}, {i}\ns_cbranch_scc0 Lorn{i}\n{o_load(2*i)}\n{o_load(2*i+1)}\nLorn{i}:")
e(f"""s_add_u32 s{sT0}, s{sT0}, 1
s_cmp_ge_u32 s{sT0}, 200000
s_cbranch_scc1 Lod
s_waitcnt vmcnt(0)
Lor2:""")
for i in ORD: o_pair(i, "b", None)
e(f"s_cmp_lg_u32 s{sSt}, 0\ns_cbranch_scc1 Lor\nLod:\ns_nop 6")
for tt in range(2):
    for ch in range(2):
        for x in s_wr(tt, ch): e(x)
e("s_branch Lsd")
for b in range(2):
    S = aS[0]; O = aO[b]; C = aC[b]; Q = aQ[b]
    e(f"""Lfallback{b}:
    s_cmp_lg_u32 s{sRetry}, 0
    s_cbranch_scc1 Lok{b}
    s_mov_b32 s{sRetry}, 1
    s_mov_b32 s{sSt}, 0
    v_mov_b32 v{vT1}, 0xff800000
    s_waitcnt lgkmcnt(0)
    Lfb1{b}:
    buffer_load_dwordx4 {vr(aK[0],4)}, v{vL16}, {sr(SWS,4)}, s{sSt} offen sc1
    s_waitcnt vmcnt(0)""")
    e(mfma(S, aK[0], Q, "0"))
    e("s_nop 11")
    for p in range(0, 16, 2): e(f"v_max3_f32 v{vT1}, v{vT1}, v{S+p}, v{S+p+1}")
    e(f"""s_add_u32 s{sSt}, s{sSt}, {KVT}
    s_cmp_lt_u32 s{sSt}, {64*KVT}
    s_cbranch_scc1 Lfb1{b}
    v_mov_b32 v{vT2}, v{vT1}
    s_nop 1
    v_permlane32_swap_b32 v{vT1}, v{vT2}
    s_nop 1
    v_max_f32 v{vT1}, v{vT1}, v{vT2}""")
    for r in range(16): e(f"v_sub_f32 v{C+r}, 0, v{vT1}")
    for r in range(12): e(f"v_mov_b32 v{O+r}, 0")
    e(f"""v_subrev_u32 v{vT0}, {64*KVT}, v{vAv}
    s_mov_b32 s{sSt}, 0
    Lfb2{b}:
    buffer_load_dwordx4 {vr(aK[0],4)}, v{vL16}, {sr(SWS,4)}, s{sSt} offen sc1
    buffer_load_dwordx4 {vr(aVl[0],4)}, v{vT0}, {sr(SWS,4)}, s{sSt} offen sc1
    buffer_load_dwordx4 {vr(aVh[0],4)}, v{vT0}, {sr(SWS,4)}, s{sSt} offen offset:528 sc1
    s_waitcnt vmcnt(0)""")
    e(mfma(S, aK[0], Q, vr(C, 16)))
    e("s_nop 11")
    for i in range(16): e(f"v_exp_f32 v{S+i}, v{S+i}")
    e("s_nop 1")
    e(smf(O, aVl[0], S, vIdx)); e(smf(O, aVh[0], S+8, vIdx))
    e(f"""s_add_u32 s{sSt}, s{sSt}, {KVT}
    s_cmp_lt_u32 s{sSt}, {64*KVT}
    s_cbranch_scc1 Lfb2{b}
    s_nop 9
    s_branch Lfin{b}""")
e("Lcodeend:")

L += ['.section .rodata,"a"', ".p2align 6", f".amdhsa_kernel {NAME}_kernel",
      "  .amdhsa_next_free_vgpr 256", "  .amdhsa_next_free_sgpr 102", "  .amdhsa_accum_offset 256",
      "  .amdhsa_group_segment_fixed_size 0", "  .amdhsa_kernarg_size 96", "  .amdhsa_user_sgpr_count 2",
      "  .amdhsa_user_sgpr_kernarg_segment_ptr 1", "  .amdhsa_system_sgpr_workgroup_id_x 1", ".end_amdhsa_kernel"]
open(OUT, "w").write("\n".join(L) + "\n")
print("wrote", OUT, len(L), "lines")
```

```python
import sys, struct
NAME = "recurrent_scan__grouped_kv_mqa__geglu_ffn__prompt"
PROF = "--prof" in sys.argv
OUT = [a for a in sys.argv[1:2] if not a.startswith("--")]
OUT = OUT[0] if OUT else f"cdna_kernels/{NAME}.s"

L = []
def e(s):
    for ln in s.split("\n"):
        if not ln.strip(): continue
        L.append(("    " + ln.strip()) if not ln.strip().endswith(":") else ln.strip())
def f2u(x): return struct.unpack("<I", struct.pack("<f", x))[0]
def vr(a, n): return f"v[{a}:{a+n-1}]"
def sr(a, n): return f"s[{a}:{a+n-1}]"

KVT = 2080
KVIMG = 0
HIMG = 135168
OIMG = HIMG + 64*88*1024
HFLG = OIMG + 64*32*1024
KFLG = HFLG + 256*128
STATG = KFLG + 16*128
CSG = STATG + 2048*16
PROFO = CSG + 64*2048
WS_BYTES = PROFO + 256*8*256
CNT_KV = 0
KVRDY = 128
STG = 45056
XOFF, GOFF, UOFF, QOFF = 0, 16384, 28672, 40960
STGK, QOFFK, NBK = 24832, 20736, 5
QIMG = 135168
STATM = 160768
CSUM = 162816
MRX = 159744
STL = 162816
KFL = 163776
LDS_BYTES = 163840
SX, SWQ, SWK, SWV, SWO, SWG, SWD, SOUT, SDBG, SWS = 4, 8, 12, 16, 20, 24, 28, 32, 36, 40
sI, sJ, sW, sW4 = 44, 45, 46, 47
sXo, sWo, sQo, sLb = 48, 49, 50, 51
sMx, sMw, sMq = 52, 53, 54
sSt, sDl, sT0, sT1, sT2, sT3 = 55, 56, 57, 58, 59, 60
sTB, sCS, sRetry, sRb = 61, 62, 63, 3
sEx = 88
sTm = 90
sPo = 92
sC0, sC1, sC2, sC3 = 94, 95, 96, 97
sOp = 98
TOUCH = int("--touch" in sys.argv)
vLane, vH, vT0, vT1, vT2, vT3 = 1, 2, 3, 4, 5, 6
vXa0, vXa1, vWa0, vWa1, vWa2, vQa = 7, 8, 9, 10, 11, 12
vRX = 13
vRW, vRQ = 17, 18
vSel = 20
vCs = 24
vF = 32
vAcc = 96
vSt = 160
aQ = [8, 12]; aK = [16, 20]; aVl = [24, 28]; aVh = [32, 36]; aS = [40, 56]; aC = [72, 88]; aO = [104, 120]
fA, fWo, fWb, fH, fX, fG = 8, 72, [136, 144], 152, 200, 204
fS, fO, fR = 136, 8, 8
vIdx, vAk, vAv, vDa, vL16, vRa = 240, 241, 242, 243, 244, 245
vPoll = 246
vRd = 248
vRw, vRr, vRr2, vDa2 = 252, 253, 254, 255
vRw2 = 238
vAq = 237
sKq, sTt, sHo, sDo, sDm, sHc, sXf, sOc, sOc2, sHs = 64, 65, 66, 67, 68, 69, 70, 71, 72, 73
sOc3, sOc4, sOp2 = 80, 81, 99
sXf2 = 64
sNo = 86
sRow, sKf = 63, 85
ASL = 8320
XB, XK, XP = 8512, 2112, 1056
XF0, XS0, XS1 = 34048, 0, 102144
def aslot(n): return ASL*n
SP = [135168, 143360, 151552]

nstamp = [0]
DBGT = "--dbgt" in sys.argv
DT = {0: 75, 12: 76, 1: 77, 2: 78, 3: 79, 6: 80, 9: 81, 7: 82, 11: 83}
PAD = (int(sys.argv[sys.argv.index("--pad")+1]), int(sys.argv[sys.argv.index("--pad")+2])) if "--pad" in sys.argv else None
npad = [0]
PADB = sNo if "--padg" in sys.argv else 100
def stamp(k):
    if PAD and PAD[0] == k:
        npad[0] += 1
        e(f"Lpad{npad[0]}:\ns_memrealtime s[{sTm}:{sTm+1}]\ns_waitcnt lgkmcnt(0)\ns_sub_u32 s{sTm}, s{sTm}, s{PADB}\ns_sleep 8\ns_cmp_lt_u32 s{sTm}, {PAD[1]}\ns_cbranch_scc1 Lpad{npad[0]}")
    if DBGT and k in DT:
        e(f"s_memrealtime s[{sTm}:{sTm+1}]\ns_waitcnt lgkmcnt(0)\ns_sub_u32 s{DT[k]}, s{sTm}, s100")
        if k == 11:
            e(f"s_memtime s[{sTm}:{sTm+1}]\ns_waitcnt lgkmcnt(0)\ns_sub_u32 s84, s{sTm}, s92")
            e(f"s_cmp_lg_u32 s2, 64\ns_cbranch_scc1 Lend\ns_cmp_lg_u32 s{sW}, 4\ns_cbranch_scc1 Lend")
            for n, r in enumerate(range(75, 85)):
                e(f"v_mov_b32 v0, s{r}\nbuffer_store_dword v0, off, {sr(SDBG,4)}, 0 offset:{4+4*n}\ns_nop 1")
    if not PROF: return
    e(f"""s_memtime s[{sTm}:{sTm+1}]
    s_waitcnt lgkmcnt(0)
    v_mov_b32 v0, s{sTm}
    buffer_store_dword v0, off, {sr(SWS,4)}, s{sPo} offset:{4*k}""")
    if k in RTS:
        e(f"""s_memrealtime s[{sTm}:{sTm+1}]
        s_waitcnt lgkmcnt(0)
        v_mov_b32 v0, s{sTm}
        buffer_store_dword v0, off, {sr(SWS,4)}, s{sPo} offset:{4*RTS[k]}""")
RTS = {12: 24, 1: 25, 5: 26, 6: 27, 11: 28}

TS = []
def tstamp(k):
    if not PROF: return
    r = 74 + len(TS); TS.append((k, r))
    e(f"s_memtime s[{sTm}:{sTm+1}]\ns_waitcnt lgkmcnt(0)\ns_mov_b32 s{r}, s{sTm}")
def tflush():
    for k, r in TS: e(f"v_mov_b32 v0, s{r}\nbuffer_store_dword v0, off, {sr(SWS,4)}, s{sPo} offset:{4*k}\ns_nop 1")
def tick(acc):
    if not PROF or "--notick" in sys.argv: return ""
    r = f"s_memtime s[{sTm}:{sTm+1}]\ns_waitcnt lgkmcnt(0)\n"
    if acc is not None: r += f"s_sub_u32 s99, s{sTm}, s99\ns_add_u32 s{acc}, s{acc}, s99\n"
    return r + f"s_mov_b32 s99, s{sTm}"

def interleave(main, fill):
    out = []; n = len(main); m = len(fill); k = 0
    for i, a in enumerate(main):
        out.append(a)
        t = (m * (i + 1)) // n
        out += fill[k:t]; k = t
    return out

def mfma(d, a, b, c=None):
    c = vr(d, 16) if c is None else c
    return f"v_mfma_f32_32x32x16_bf16 {vr(d,16)}, {vr(a,4)}, {vr(b,4)}, {c}"
def mfma16(d, a, b): return f"v_mfma_f32_16x16x32_bf16 {vr(d,4)}, {vr(a,4)}, {vr(b,4)}, {vr(d,4)}"
def smf(d, a, b, idx): return f"v_smfmac_f32_32x32x32_bf16 {vr(d,16)}, {vr(a,4)}, {vr(b,8)}, v{idx}"

TK = PROF and "--tk" in sys.argv
def tk(acc):
    if not TK: return ""
    r = f"s_memtime s[{sTm}:{sTm+1}]\ns_waitcnt lgkmcnt(0)\n"
    if acc is not None: r += f"s_sub_u32 s82, s{sTm}, s82\ns_add_u32 s{acc}, s{acc}, s82\n"
    return r + f"s_mov_b32 s82, s{sTm}"
def tkout():
    if TK: e(f"v_mov_b32 v0, s80\nbuffer_store_dword v0, off, {sr(SWS,4)}, s{sPo} offset:{4*29}\ns_nop 1\nv_mov_b32 v0, s81\nbuffer_store_dword v0, off, {sr(SWS,4)}, s{sPo} offset:{4*30}")
def tr(d, a, off): return [f"ds_read_b64_tr_b16 {vr(d,2)}, v{a} offset:{off}"]
def tag_issue(): return f"buffer_load_dwordx2 {vr(vPoll,2)}, off, {sr(SDBG,4)}, 0 sc1"
def tag_wait(tag, first_wait, early=False):
    chk = f"""s_memrealtime s[{sTm}:{sTm+1}]
    s_waitcnt lgkmcnt(0)
    s_sub_u32 s{sTm}, s{sTm}, s{sNo}
    s_add_u32 s{sTm}, s{sTm}, 200
    s_cmp_lt_u32 s{sTm}, 2000
    s_cselect_b32 s{sTm}, 99, s{sT0}
    s_cmp_lt_u32 s{sTm}, 40
    s_cbranch_scc1 Ltagr_{tag}""" if early else ""
    e(f"""s_mov_b32 s{sT0}, 0
    s_waitcnt vmcnt({first_wait})
    Ltag_{tag}:
    v_readfirstlane_b32 s{sNo}, v{vPoll}
    v_readfirstlane_b32 s{sNo+1}, v{vPoll+1}
    s_add_u32 s{sT0}, s{sT0}, 1
    {chk}
    s_cmp_lg_u32 s{sNo}, 0
    s_cbranch_scc1 Ltagd_{tag}
    s_cmp_ge_u32 s{sT0}, 100000
    s_cbranch_scc1 Ltagd_{tag}
    Ltagr_{tag}:
    s_sleep 1
    {tag_issue()}
    s_waitcnt vmcnt(0)
    s_branch Ltag_{tag}
    Ltagd_{tag}:""")
def flags_issue(base):
    return f"""v_and_b32 v{vPoll}, 15, v{vLane}
    v_lshlrev_b32 v{vPoll}, 7, v{vPoll}
    buffer_load_dwordx2 {vr(vPoll,2)}, v{vPoll}, {sr(SWS,4)}, s{base} offen sc1"""
def h_poll_issue(): return flags_issue(sHc)
def flags_wait(base, tag, first_wait):
    e(f"""s_mov_b32 s{sT0}, 0
    s_waitcnt vmcnt({first_wait})
    Lfw_{tag}:
    v_cmp_ne_u64 vcc, s[{sNo}:{sNo+1}], {vr(vPoll,2)}
    s_add_u32 s{sT0}, s{sT0}, 1
    s_cmp_ge_u32 s{sT0}, 100000
    s_cbranch_vccz Lfwd_{tag}
    s_cbranch_scc1 Lfwd_{tag}
    s_sleep 3
    {flags_issue(base)}
    s_waitcnt vmcnt(0)
    s_branch Lfw_{tag}
    Lfwd_{tag}:""")
def flag_set(off_sreg, tag, wave=0):
    e(f"""s_cmp_lg_u32 s{sW}, {wave}
    s_cbranch_scc1 Lsig_{tag}
    v_mov_b32 v{vPoll}, s{sNo}
    v_mov_b32 v{vPoll+1}, s{sNo+1}
    s_mov_b64 exec, 1
    buffer_store_dwordx2 {vr(vPoll,2)}, off, {sr(SWS,4)}, s{off_sreg} sc1
    s_mov_b64 exec, -1
    Lsig_{tag}:""")

hdr = open(f"cdna_kernels/{NAME}.s.ref").read().split("\n")
hdr = [h for h in hdr[:15] if h.startswith(";") and "@launch" not in h]
L += hdr
L.append(f"; @launch grid=(256,1,1) block=(512,1,1) lds={LDS_BYTES}")
L += """;
; One persistent launch, 256 workgroups (one per CU) x 8 waves; written with a generator script.
;  workgroup (i, j): 128-token row block i, column group j (2 heads of Q, 96 gate/up columns); j = 15 makes K/V instead.
;  P1  x @ [wq | w_gate | w_up]: waves 4-7 MFMA (16x16x32), waves 0-3 LDS-DMA; LayerNorm folded into the epilogue
;      (row mean / rstd and weight column sums are computed once and exchanged through d_ws).
;  P2  waves 0-3: attention, S^T = K Q^T - m (m = row max of the first key tile, as the MFMA C operand), exp2, and
;      P V plus the row sum by the sparse MFMA straight from the f32 registers; a run-time check of the row sum and of
;      the accumulators falls back to the true row max.  waves 4-7: GELU gate, down projection, output projection.
;  P3  out = x + s * silu(f) on a 64x64 tile per workgroup.
;  Hand-offs: write-through stores + sc1 loads; flags carry a per-launch tag published in d_debug; the attention
;  output is pre-filled with a sentinel.  Every wait is bounded.""".split("\n")
L += ['.amdgcn_target "amdgcn-amd-amdhsa--gfx950"', ".text", f".globl {NAME}_kernel", ".p2align 8",
      f".type {NAME}_kernel,@function"]
e(f"{NAME}_kernel:")
RT = PROF
if RT: e("s_memrealtime s[100:101]\ns_memtime s[98:99]")
if DBGT or PAD: e("s_memrealtime s[100:101]\ns_memtime s[92:93]")
MAP84 = f"""s_and_b32 s{sI}, s{sT0}, 1
s_lshl_b32 s{sI}, s{sI}, 3
s_and_b32 s{sT2}, s{sT1}, 7
s_add_u32 s{sI}, s{sI}, s{sT2}
s_lshr_b32 s{sJ}, s{sT0}, 1
s_lshl_b32 s{sJ}, s{sJ}, 2
s_lshr_b32 s{sT3}, s{sT1}, 3
s_add_u32 s{sJ}, s{sJ}, s{sT3}
s_sub_u32 s{sJ}, 15, s{sJ}
s_and_b32 s{sTB}, s{sT0}, 3
s_lshl_b32 s{sTB}, s{sTB}, 3
s_add_u32 s{sTB}, s{sTB}, s{sT2}
s_lshr_b32 s{sCS}, s{sT0}, 2
s_lshl_b32 s{sCS}, s{sCS}, 2
s_add_u32 s{sCS}, s{sCS}, s{sT3}"""
MAP48 = f"""s_lshr_b32 s{sT2}, s{sT0}, 1
s_lshl_b32 s{sI}, s{sT2}, 2
s_and_b32 s{sT3}, s{sT1}, 3
s_add_u32 s{sI}, s{sI}, s{sT3}
s_lshl_b32 s{sTB}, s{sT2}, 3
s_and_b32 s{sT3}, s{sT1}, 7
s_add_u32 s{sTB}, s{sTB}, s{sT3}
s_and_b32 s{sT0}, s{sT0}, 1
s_lshl_b32 s{sJ}, s{sT0}, 3
s_lshr_b32 s{sT3}, s{sT1}, 2
s_add_u32 s{sJ}, s{sJ}, s{sT3}
s_sub_u32 s{sJ}, 15, s{sJ}
s_lshl_b32 s{sCS}, s{sT0}, 2
s_lshr_b32 s{sT3}, s{sT1}, 3
s_add_u32 s{sCS}, s{sCS}, s{sT3}"""
JX = int(sys.argv[sys.argv.index("--jx")+1]) if "--jx" in sys.argv else 0
if JX: MAP84 = MAP84.replace(f"s_lshr_b32 s{sJ}, s{sT0}, 1\n", f"s_lshr_b32 s{sJ}, s{sT0}, 1\ns_xor_b32 s{sJ}, s{sJ}, {JX}\n")
M48 = "--m48" in sys.argv
MAP = MAP48 if M48 else MAP84
PFC = "" if "--nopfc" in sys.argv else f"""s_cmp_lg_u32 s{sW}, 7
s_cbranch_scc1 Lnop0
s_getpc_b64 s[94:95]
Lpc0:
s_bfe_u32 s{sT0}, s2, 0x20003
s_lshl_b32 s{sT0}, s{sT0}, 13
v_lshl_add_u32 v{vT1}, v{vLane}, 7, s{sT0}
v_min_u32 v{vT1}, Lcodeend-Lpc0-4, v{vT1}
global_load_dword v236, v{vT1}, s[94:95]"""
e(f"""s_cmp_ge_u32 s2, 256
s_cbranch_scc1 Lend
s_load_dwordx2 s[{SX}:{SX+1}], s[0:1], 0
s_load_dwordx2 s[{SWG}:{SWG+1}], s[0:1], 48
s_load_dwordx2 s[{SWQ}:{SWQ+1}], s[0:1], 8
s_load_dwordx2 s[{SWV}:{SWV+1}], s[0:1], 24
s_load_dwordx2 s[{SDBG}:{SDBG+1}], s[0:1], 80
s_load_dwordx2 s[{SWS}:{SWS+1}], s[0:1], 88
v_and_b32 v{vLane}, 63, v0
v_lshrrev_b32 v{vT0}, 6, v0
v_lshrrev_b32 v{vH}, 5, v{vLane}
v_readfirstlane_b32 s{sW}, v{vT0}
{PFC}
Lnop0:
s_and_b32 s{sT0}, s2, 7
s_lshr_b32 s{sT1}, s2, 3
{MAP}
s_and_b32 s{sW4}, s{sW}, 3
v_lshrrev_b32 v{vT0}, 3, v{vLane}
v_lshlrev_b32 v{vT0}, 10, v{vT0}
v_and_b32 v{vT1}, 7, v{vLane}
v_lshrrev_b32 v{vT2}, 4, v{vLane}
v_xor_b32 v{vT1}, v{vT1}, v{vT2}
v_lshl_add_u32 v{vXa0}, v{vT1}, 4, v{vT0}
v_xor_b32 v{vXa1}, 64, v{vXa0}
v_add_u32 v{vXa1}, {8192-1024}, v{vXa1}
v_lshlrev_b32 v{vL16}, 4, v{vLane}
s_lshl_b32 s{sXo}, s{sI}, 17
s_lshl_b32 s{sT0}, s{sW4}, 15
s_add_u32 s{sXo}, s{sXo}, s{sT0}
s_lshl_b32 s{sRow}, s{sI}, 4
s_add_u32 s{sRow}, s{sRow}, s{sJ}
s_lshl_b32 s{sRow}, s{sRow}, 2
s_add_u32 s{sRow}, s{sRow}, s{sW4}
s_cmp_eq_u32 s{sJ}, 15
s_cselect_b32 s{sT0}, 16, 56
s_load_dwordx2 s[{SWK}:{SWK+1}], s[0:1], s{sT0}
s_mov_b32 s{sT1}, {512*2752}
s_cselect_b32 s{SWK+2}, 16384, s{sT1}
s_mov_b32 s{SWK+3}, 0x20000""")
SWU = SWK
vRs = 144
vRs2 = 216
for d, nbytes in ((SX, 2048*1024), (SWG, 512*2752), (SWQ, 512*1024), (SWV, 16384), (SDBG, 256), (SWS, WS_BYTES)):
    e(f"s_mov_b32 s{d+2}, {nbytes}\ns_mov_b32 s{d+3}, 0x20000")
def late_srd(lst):
    for d, off, nbytes in lst:
        e(f"s_load_dwordx2 s[{d}:{d+1}], s[0:1], {off}\ns_mov_b32 s{d+2}, {nbytes}\ns_mov_b32 s{d+3}, 0x20000")
LS_A = [(SOUT, 72, 2048*1024)]; LS_F = [(SWO, 32, 512*1024), (SWD, 64, 1376*1024)]
def entry_stamp(defer=False):
    if PROF:
        e(f"s_lshl_b32 s{sPo}, s2, 3\ns_add_u32 s{sPo}, s{sPo}, s{sW}\ns_lshl_b32 s{sPo}, s{sPo}, 8\ns_add_u32 s{sPo}, s{sPo}, {PROFO}")
    if defer: tstamp(0); return
    stamp(0); rt_out()
def rt_out():
    if RT: e(f"s_nop 1\nv_mov_b32 v0, s100\nbuffer_store_dword v0, off, {sr(SWS,4)}, s{sPo} offset:60\ns_nop 1\nv_mov_b32 v0, s98\nbuffer_store_dword v0, off, {sr(SWS,4)}, s{sPo} offset:16")
def row_loads():
    e(f"""s_lshl_b32 s{sT1}, s{sRow}, 11
    buffer_load_dwordx4 {vr(vRs,4)}, v{vL16}, {sr(SX,4)}, s{sT1} offen
    buffer_load_dwordx4 {vr(vRs+4,4)}, v{vL16}, {sr(SX,4)}, s{sT1} offen offset:1024""")
WKV = 131072
vXf, vWk = 32, 192
sXb = sMw
def kvx_dma(c):
    return [f"""s_add_u32 m0, s{sXb}, {4096*c+2048*hf}
        s_add_u32 s{sT0}, s{sXo}, {128*c+16384*hf}
        buffer_load_dwordx4 v{vXa0}, {sr(SX,4)}, s{sT0} offen lds
        buffer_load_dwordx4 v{vXa1}, {sr(SX,4)}, s{sT0} offen offset:1024 lds""" for hf in range(2)]
e(f"""s_cbranch_scc1 Lkv0
s_cmp_lt_u32 s{sW}, 4
s_cbranch_scc1 Lhelp
s_waitcnt lgkmcnt(0)""")
row_loads()
e(f"""s_cmp_lg_u32 s{sJ}, 14
s_cbranch_scc1 Lcomp
s_add_u32 s{sT1}, s{sT1}, 8192
buffer_load_dwordx4 {vr(vRs2,4)}, v{vL16}, {sr(SX,4)}, s{sT1} offen
buffer_load_dwordx4 {vr(vRs2+4,4)}, v{vL16}, {sr(SX,4)}, s{sT1} offen offset:1024
s_branch Lcomp
Lkv0:
s_memrealtime s[{sTm}:{sTm+1}]
s_lshl_b32 s{sXb}, s{sW}, 14
s_lshr_b32 s{sT3}, s{sW}, 2
s_lshl_b32 s{sT0}, s{sT3}, 9
s_add_u32 s{sXo}, s{sXo}, s{sT0}
s_or_b32 s{sT0}, s2, s{sW}
s_cmp_lg_u32 s{sT0}, 0
s_waitcnt lgkmcnt(0)
s_cbranch_scc1 Lnotag
s_or_b32 s{sTm}, s{sTm}, 1
v_mov_b32 v{vPoll}, s{sTm}
v_mov_b32 v{vPoll+1}, s{sTm+1}
s_mov_b64 exec, 1
buffer_store_dwordx2 {vr(vPoll,2)}, off, {sr(SDBG,4)}, 0 sc1
s_mov_b64 exec, -1
Lnotag:
s_lshl_b32 s{sT0}, s{sW}, 11
s_add_u32 m0, s{sT0}, {WKV}
s_nop 0
buffer_load_dwordx4 v{vL16}, {sr(SWV,4)}, s{sT0} offen lds
buffer_load_dwordx4 v{vL16}, {sr(SWV,4)}, s{sT0} offen offset:1024 lds
s_add_u32 m0, s{sT0}, {WKV+16384}
s_nop 0
buffer_load_dwordx4 v{vL16}, {sr(SWK,4)}, s{sT0} offen lds
buffer_load_dwordx4 v{vL16}, {sr(SWK,4)}, s{sT0} offen offset:1024 lds""")
for x in kvx_dma(0): e(x)
e("s_branch Lkvcu\nLhelp:")

def v_lane_addr(d):
    e(f"""v_and_b32 v{d}, 15, v{vLane}
    v_lshlrev_b32 v{d}, 4, v{d}
    v_lshl_add_u32 v{d}, v{vH}, 8, v{d}
    s_mov_b32 exec_lo, 0xffff0000
    s_mov_b32 exec_hi, 0xffff0000
    v_mov_b32 v{d}, 512""")
def fin_init():
    e(f"""s_lshl_b32 s{sT0}, s{sTB}, 16
    s_lshl_b32 s{sT1}, s{sCS}, 7
    s_add_u32 s{sT0}, s{sT0}, s{sT1}
    s_lshl_b32 s{sT1}, s{sW4}, 14
    s_add_u32 s{sXf}, s{sT0}, s{sT1}
    s_add_u32 s{sXf2}, s{sXf}, 8192
    v_lshrrev_b32 v{vT0}, 3, v{vLane}
    v_and_b32 v{vT1}, 7, v{vLane}
    v_lshlrev_b32 v{vRa}, 10, v{vT0}
    v_lshl_add_u32 v{vRa}, v{vT1}, 4, v{vRa}
    v_bfe_u32 v{vT1}, v{vLane}, 1, 2
    v_mul_u32_u24 v{vT1}, {XB}, v{vT1}
    v_lshl_add_u32 v{vT0}, v{vT0}, 4, v{vT1}
    v_and_b32 v{vT1}, 1, v{vLane}
    v_mul_u32_u24 v{vT1}, {XP}, v{vT1}
    s_and_b32 s{sT0}, s{sW4}, 1
    s_lshl_b32 s{sT0}, s{sT0}, 8
    v_add3_u32 v{vT0}, v{vT0}, v{vT1}, s{sT0}
    s_lshr_b32 s{sT0}, s{sW4}, 1
    s_mul_i32 s{sT1}, s{sT0}, {4*XB}
    s_add_u32 s{sT1}, s{sT1}, {XF0}
    v_add_u32 v{vRr}, s{sT1}, v{vT0}
    s_mul_i32 s{sT1}, s{sT0}, {XS1}
    v_add_u32 v{vRr2}, s{sT1}, v{vT0}""")
FS = "--asent" not in sys.argv
def a_init():
    a_sent(); a_addr()
def a_sent(store=False):
    e(f"""s_lshl_b32 s{sT0}, s{sI}, 2
    s_add_u32 s{sT0}, s{sT0}, s{sW4}
    s_lshl_b32 s{sT0}, s{sT0}, 5
    s_lshr_b32 s{sT1}, s{sJ}, 1
    s_add_u32 s{sT0}, s{sT0}, s{sT1}
    s_and_b32 s{sT1}, s{sJ}, 1
    s_lshl_b32 s{sT1}, s{sT1}, 4
    s_add_u32 s{sT0}, s{sT0}, s{sT1}
    s_lshl_b32 s{sT0}, s{sT0}, 10
    s_add_u32 s{sOp}, s{sT0}, {OIMG}
    s_add_u32 s{sOp2}, s{sOp}, 8192""")
    if not FS or store: e(f"""v_mov_b64 v[232:233], -1
    v_mov_b64 v[234:235], -1
    buffer_store_dwordx4 v[232:235], v{vL16}, {sr(SWS,4)}, s{sOp} offen sc1
    buffer_store_dwordx4 v[232:235], v{vL16}, {sr(SWS,4)}, s{sOp2} offen sc1""")
    if store: return
def a_addr(zero=True):
    v_lane_addr(vAv)
    e(f"""s_mov_b32 exec_lo, 0xffee0000
    s_mov_b32 exec_hi, 0xffee0000
    v_mov_b32 v{vAv}, 0x4000000
    s_mov_b64 exec, -1
    v_add_u32 v{vAv}, 1024, v{vAv}
    v_mov_b32 v{vAk}, v{vL16}
    v_mov_b32 v{vIdx}, 0xdddd
    s_lshl_b32 s{sT0}, s{sW4}, 11
    s_add_u32 s{sT0}, s{sT0}, {QIMG}
    v_add_u32 v{vAq}, s{sT0}, v{vL16}""")
    if zero: a_zero()
def a_zero():
    for b in range(2):
        for r in range(0, 12, 2): e(f"v_mov_b64 {vr(aO[b]+r,2)}, 0")
def f_init():
    e(f"""v_lshrrev_b32 v{vT0}, 3, v{vLane}
    v_lshlrev_b32 v{vT0}, 10, v{vT0}
    v_and_b32 v{vT1}, 7, v{vLane}
    v_bfe_u32 v{vT2}, v{vLane}, 4, 1
    v_lshlrev_b32 v{vT2}, 2, v{vT2}
    v_xor_b32 v{vT1}, v{vT1}, v{vT2}
    v_lshl_add_u32 v{vDa}, v{vT1}, 4, v{vT0}
    v_add_u32 v{vDa2}, {8192-1024}, v{vDa}
    s_lshl_b32 s{sDo}, s{sW4}, 14
    s_lshl_b32 s{sT1}, s{sCS}, 7
    s_add_u32 s{sDo}, s{sDo}, s{sT1}
    s_lshl_b32 s{sDm}, s{sW4}, 11
    s_mul_i32 s{sHo}, s{sTB}, 176
    s_mul_i32 s{sT0}, s{sW4}, 22
    s_add_u32 s{sHo}, s{sHo}, s{sT0}
    s_lshl_b32 s{sHo}, s{sHo}, 10
    s_add_u32 s{sHo}, s{sHo}, {HIMG}
    s_lshl_b32 s{sT0}, s{sTB}, 3
    s_add_u32 s{sT0}, s{sT0}, s{sW4}
    s_lshl_b32 s{sT0}, s{sT0}, 13
    s_add_u32 s{sOc}, s{sT0}, {OIMG}
    s_add_u32 s{sOc2}, s{sOc}, 4096
    s_add_u32 s{sOc3}, s{sOc}, 32768
    s_add_u32 s{sOc4}, s{sOc}, {32768+4096}
    s_lshr_b32 s{sHc}, s{sTB}, 1
    s_lshl_b32 s{sHc}, s{sHc}, 11
    s_add_u32 s{sHc}, s{sHc}, {HFLG}
    s_lshl_b32 s{sHs}, s{sI}, 4
    s_add_u32 s{sHs}, s{sHs}, s{sJ}
    s_lshl_b32 s{sHs}, s{sHs}, 7
    s_add_u32 s{sHs}, s{sHs}, {HFLG}
    v_bfe_u32 v{vT0}, v{vLane}, 2, 2
    v_lshl_add_u32 v{vT0}, v{vH}, 2, v{vT0}
    v_lshlrev_b32 v{vT0}, 7, v{vT0}
    v_bfe_u32 v{vT1}, v{vLane}, 4, 1
    v_lshl_add_u32 v{vT0}, v{vT1}, 5, v{vT0}
    v_and_b32 v{vT1}, 3, v{vLane}
    v_lshl_add_u32 v{vT0}, v{vT1}, 3, v{vT0}
    v_bfe_u32 v{vT1}, v{vLane}, 3, 1
    v_lshl_add_u32 v{vT0}, v{vT1}, 6, v{vT0}
    v_add_u32 v{vRd}, s{sDm}, v{vT0}
    v_xor_b32 v{vRd+1}, 64, v{vRd}
    v_add_u32 v{vRd+2}, {SP[0]}, v{vRd}
    v_add_u32 v{vRd+3}, {SP[0]}, v{vRd+1}
    s_mul_i32 s{sT0}, s{sW4}, {XK}
    v_add_u32 v{vRw2}, s{sT0}, v{vL16}
    v_add_u32 v{vRw}, {XF0}, v{vRw2}
    v_add_u32 v{vRw2+1}, {XS1}, v{vRw2}""")
def kv_rest(tag):
    e(f"s_setprio 0\ns_lshl_b32 s{sT1}, s{sW4}, 12")
    for n in range(6):
        e(f"s_add_u32 s{sT0}, s{sT1}, {36*1024+16384*n}\ns_mov_b32 m0, s{sT0}\ns_nop 0")
        for k in range(4): e(f"buffer_load_dwordx4 v{vL16}, {sr(SWS,4)}, s{sT0} offen offset:{1024*k} sc1 lds")
    e(tag_issue())
    e("s_setprio 2")

def spread(m, fill):
    w = [16 if "16x16" in x else 32 for x in m]
    tot = sum(c for c, _ in fill); W = sum(w)
    out = []; k = 0; acc = 0; cw = 0
    for x, wx in zip(m, w):
        out.append(x); cw += wx
        while k < len(fill) and (acc + fill[k][0]/2) * W <= tot * cw:
            out.append(fill[k][1]); acc += fill[k][0]; k += 1
    out += [t for _, t in fill[k:]]
    return out


C1 = -2*0.7978845608028654*1.4426950408889634
C3 = C1*0.044715
def gelu_consts(m, r, d):
    e(f"""v_sub_f32 v{d}, 0, v{m}
    v_mul_f32 v{d+3}, v{r}, v{r}
    v_mul_f32 v{d+1}, {f2u(C1):#x}, v{r}
    v_mul_f32 v{d+2}, {f2u(C3):#x}, v{r}
    v_mul_f32 v{d+2}, v{d+2}, v{d+3}
    v_rcp_f32 v{d+3}, v{d+3}""")
def bc(reg, pos, n):
    base = reg & ~1
    return vr(base, 2), reg & 1
def pk(op, d, srcs, neg=None):
    if any(t == 'b' for t, _ in srcs):
        o = op.replace("v_pk_", "v_")
        return "\n".join(f"{o} v{d+h}, " + ", ".join(f"v{r+h if t == 'p' else r}" for t, r in srcs) for h in range(2))
    return f"{op} {vr(d,2)}, " + ", ".join(vr(r, 2) for _, r in srcs)
GM = sys.argv[sys.argv.index("--gm")+1] if "--gm" in sys.argv else "dup"
def gelu_tile(g, u, csg, csu, k, tmp, n=16, dst=None):
    if GM == "plain":
        for p in range(n): e(f"v_fmac_f32 v{g+p}, v{k}, v{csg+p}")
        for p in range(n): e(f"v_fmac_f32 v{u+p}, v{k}, v{csu+p}")
        for p in range(n): e(f"v_mul_f32 v{tmp+p}, v{g+p}, v{g+p}")
        for p in range(n): e(f"v_fma_f32 v{tmp+p}, v{tmp+p}, v{k+2}, v{k+1}")
        for p in range(n): e(f"v_mul_f32 v{tmp+p}, v{tmp+p}, v{g+p}")
        for p in range(n): e(f"v_exp_f32 v{tmp+p}, v{tmp+p}")
        for p in range(n): e(f"v_mul_f32 v{u+p}, v{u+p}, v{g+p}")
        for p in range(n): e(f"v_fma_f32 v{tmp+p}, v{tmp+p}, v{k+3}, v{k+3}")
        for p in range(n): e(f"v_rcp_f32 v{tmp+p}, v{tmp+p}")
        e("s_nop 0")
        for p in range(n): e(f"v_mul_f32 v{u+p}, v{u+p}, v{tmp+p}")
    else:
        if GM == "dup":
            D = 76
            for c in range(4): e(f"v_mov_b32 v{D+2*c}, v{k+c}\nv_mov_b32 v{D+2*c+1}, v{k+c}")
            K = [('p', D+2*c) for c in range(4)]
        else: K = [('b', k+c) for c in range(4)]
        for p in range(0, n, 2):
            e(pk("v_pk_fma_f32", g+p, [K[0], ('p', csg+p), ('p', g+p)]))
            e(pk("v_pk_fma_f32", u+p, [K[0], ('p', csu+p), ('p', u+p)]))
        for p in range(0, n, 2): e(pk("v_pk_mul_f32", tmp+p, [('p', g+p), ('p', g+p)]))
        for p in range(0, n, 2): e(pk("v_pk_fma_f32", tmp+p, [('p', tmp+p), K[2], K[1]]))
        for p in range(0, n, 2): e(pk("v_pk_mul_f32", tmp+p, [('p', tmp+p), ('p', g+p)]))
        for p in range(n): e(f"v_exp_f32 v{tmp+p}, v{tmp+p}")
        for p in range(0, n, 2): e(pk("v_pk_mul_f32", u+p, [('p', u+p), ('p', g+p)]))
        for p in range(0, n, 2): e(pk("v_pk_fma_f32", tmp+p, [('p', tmp+p), K[3], K[3]]))
        for p in range(n): e(f"v_rcp_f32 v{tmp+p}, v{tmp+p}")
        e("s_nop 0")
        for p in range(0, n, 2): e(pk("v_pk_mul_f32", u+p, [('p', u+p), ('p', tmp+p)]))
    for p in range(n//2): e(f"v_cvt_pk_bf16_f32 v{dst[p] if dst else g+p}, v{u+2*p}, v{u+2*p+1}")

def cs_read(d, slot_off):
    for q in range(4): e(f"ds_read_b128 {vr(d+4*q,4)}, v{vT3} offset:{slot_off+32*q}")

def lin_fold(acc, cs, negm, scale, n=16):
    for p in range(0, n, 2):
        e(pk("v_pk_fma_f32", acc+p, [('b', negm), ('p', cs+p), ('p', acc+p)]))
    for p in range(0, n, 2):
        e(pk("v_pk_mul_f32", acc+p, [('p', acc+p), ('b', scale)]))

def q_epilogue(cs):
    e(f"v_mul_f32 v{vSt+2}, {f2u(0.25*1.4426950408889634):#x}, v{vSt+1}")
    lin_fold(vAcc, cs, vSt+4, vSt+2)
    for p in range(8): e(f"v_cvt_pk_bf16_f32 v{vAcc+p}, v{vAcc+2*p}, v{vAcc+2*p+1}")
    e(f"""s_lshl_b32 s{sT0}, s{sW4}, 11
    s_add_u32 s{sT0}, s{sT0}, {QIMG}
    v_lshl_add_u32 v{vT0}, v{vLane}, 4, s{sT0}
    ds_write_b128 v{vT0}, {vr(vAcc,4)}
    ds_write_b128 v{vT0}, {vr(vAcc+4,4)} offset:1024""")


def rowstat_finish(vRs=vRs):
    a = vRs+8
    e(f"v_mov_b32 v{vT0}, 0x3f803f80")
    for k in range(4):
        for r in range(2):
            x = vRs+4*r+k
            c0 = "0" if k == 0 else f"v{a+2*r}"; c1 = "0" if k == 0 else f"v{a+2*r+1}"
            e(f"v_dot2_f32_bf16 v{a+2*r}, v{x}, v{vT0}, {c0}\nv_dot2_f32_bf16 v{a+2*r+1}, v{x}, v{x}, {c1}")
    e("s_nop 2")
    for ctl in ("row_shr:1", "row_shr:2", "row_shr:4", "row_shr:8"):
        for k in range(4): e(f"v_add_f32_dpp v{a+k}, v{a+k}, v{a+k} {ctl} row_mask:0xf bank_mask:0xf bound_ctrl:0")
    for ctl in ("row_bcast:15 row_mask:0xa", "row_bcast:31 row_mask:0xc"):
        for k in range(4): e(f"v_add_f32_dpp v{a+k}, v{a+k}, v{a+k} {ctl} bank_mask:0xf")
    for r in range(2):
        d = vRs+4*r
        e(f"""v_mul_f32 v{d}, {f2u(1/512):#x}, v{a+2*r}
        v_mul_f32 v{d+1}, {f2u(1/512):#x}, v{a+2*r+1}
        v_fma_f32 v{d+1}, -v{d}, v{d}, v{d+1}
        v_max_f32 v{d+1}, 0, v{d+1}
        v_add_f32 v{d+1}, {f2u(1e-5):#x}, v{d+1}
        v_rsq_f32 v{d+1}, v{d+1}""")
def rowstat_post(vRs=vRs, off=0):
    e(f"""s_lshl_b32 s{sT0}, s{sW4}, 4
    s_add_u32 s{sT0}, s{sT0}, {STL+off}
    v_mov_b32 v{vT0}, s{sT0}
    s_mov_b32 exec_lo, 0
    s_brev_b32 exec_hi, 1
    ds_write_b64 v{vT0}, {vr(vRs,2)}
    ds_write_b64 v{vT0}, {vr(vRs+4,2)} offset:8
    s_mov_b64 exec, -1""")
def kv_dma(tag):
    e(f"s_mul_i32 s{sT1}, s{sW4}, 3072")
    for n in range(3):
        e(f"s_add_u32 s{sT0}, s{sT1}, {12288*n}\ns_mov_b32 m0, s{sT0}\ns_nop 0")
        for k in range(3): e(f"buffer_load_dwordx4 v{vL16}, {sr(SWS,4)}, s{sT0} offen offset:{1024*k} sc1 lds")
def tr_lane(rowmul, d):
    e(f"""v_lshrrev_b32 v{vT0}, 4, v{vLane}
    v_bfe_u32 v{vT1}, v{vLane}, 2, 2
    v_lshl_add_u32 v{vT0}, v{vT0}, 3, v{vT1}
    v_mul_u32_u24 v{vT0}, {rowmul}, v{vT0}
    v_bfe_u32 v{vT1}, v{vLane}, 4, 1
    v_lshl_add_u32 v{vT0}, v{vT1}, 5, v{vT0}
    v_and_b32 v{vT1}, 3, v{vLane}
    v_lshl_add_u32 v{d}, v{vT1}, 3, v{vT0}""")
def ones_col0(d):
    e(f"""v_and_b32 v{vT0}, 15, v{vLane}
    v_cmp_eq_u32 vcc, 0, v{vT0}
    v_mov_b32 v{vT1}, 0x3f803f80
    s_nop 0
    v_cndmask_b32 v{d}, 0, v{vT1}, vcc""")
    for k in range(1, 4): e(f"v_mov_b32 v{d+k}, v{d}")
def rot_delta():
    return f"s_add_u32 s{sRb}, s{sRb}, 1\ns_cmp_eq_u32 s{sRb}, 3\ns_cselect_b32 s{sDl}, s{sC3}, {STG}\ns_cselect_b32 s{sRb}, 0, s{sRb}"
def cs16_write(accs, slot0_sreg, stride):
    e(f"v_add_u32 v{vT0}, s{slot0_sreg}, v{vLane}\ns_mov_b32 exec_lo, 0x00010001\ns_mov_b32 exec_hi, 0x00010001")
    for n, a in enumerate(accs): e(f"ds_write_b128 v{vT0}, {vr(a,4)} offset:{stride*n}")
    e("s_mov_b64 exec, -1")

ROT = int(sys.argv[sys.argv.index("--rot")+1]) if "--rot" in sys.argv else 7
sKs = 84
sM1, sM2, sPub, sCg = 66, 67, 68, 69
C0 = "--c0" in sys.argv
NR = 7 if C0 else 8
def dma_x():
    return [f"s_add_u32 m0, s{sLb}, s{sMx}", f"s_add_u32 s{sT0}, s{sXo}, 16384",
            f"buffer_load_dwordx4 v{vXa0}, {sr(SX,4)}, s{sXo} offen lds",
            f"buffer_load_dwordx4 v{vXa1}, {sr(SX,4)}, s{sXo} offen offset:1024 lds",
            "s_add_u32 m0, m0, 2048", f"s_add_u32 s{sXo}, s{sXo}, 128",
            f"buffer_load_dwordx4 v{vXa0}, {sr(SX,4)}, s{sT0} offen lds",
            f"buffer_load_dwordx4 v{vXa1}, {sr(SX,4)}, s{sT0} offen offset:1024 lds"]
def dma_w():
    r = []
    for k, sd in enumerate((SWG, SWU)):
        r += [f"s_add_u32 m0, s{sLb}, s{sMw}" if k == 0 else f"s_add_u32 m0, m0, {UOFF-GOFF}", "s_nop 0",
              f"buffer_load_dwordx4 v{vWa0}, {sr(sd,4)}, s{sWo} offen lds",
              f"buffer_load_dwordx4 v{vWa1}, {sr(sd,4)}, s{sWo} offen offset:1024 lds",
              f"buffer_load_dwordx4 v{vWa2}, {sr(sd,4)}, s{sWo} offen offset:2048 lds"]
    r += [f"s_add_u32 m0, s{sLb}, s{sMq}", f"s_add_u32 s{sWo}, s{sWo}, {64*2752}",
          f"buffer_load_dwordx4 v{vQa}, {sr(SWQ,4)}, s{sQo} offen lds", f"s_add_u32 s{sQo}, s{sQo}, 65536",
          f"s_add_u32 s{sLb}, s{sLb}, {STG}", f"s_cmp_ge_u32 s{sLb}, {3*STG}", f"s_cselect_b32 s{sLb}, 0, s{sLb}"]
    if ROT:
        r += [f"s_add_u32 s{sKs}, s{sKs}, 1", f"s_cmp_eq_u32 s{sKs}, 8",
              f"s_cselect_b32 s{sT0}, {128*NR}, 0", f"s_cselect_b32 s{sT1}, {64*NR*2752}, 0", f"s_cselect_b32 s{sT2}, {64*NR*1024}, 0",
              f"s_sub_u32 s{sXo}, s{sXo}, s{sT0}", f"s_sub_u32 s{sWo}, s{sWo}, s{sT1}", f"s_sub_u32 s{sQo}, s{sQo}, s{sT2}"]
    return r
e(f"s_mov_b32 s{sLb}, 0\ns_lshl_b32 s{sMx}, s{sW4}, 12")
if ROT and "--rm" in sys.argv: e(f"s_lshl_b32 s{sKs}, s{sI if M48 else sJ}, 1\ns_add_u32 s{sKs}, s{sKs}, s{sJ if M48 else sI}\ns_and_b32 s{sKs}, s{sKs}, {ROT}")
RM = sys.argv[sys.argv.index("--rm")+1] if "--rm" in sys.argv else "a"
if RM == "a":
    e(f"""s_xor_b32 s{sKs}, s{sI}, s{sJ}
    s_and_b32 s{sKs}, s{sKs}, 1
    s_lshl_b32 s{sKs}, s{sKs}, 2
    s_lshr_b32 s{sT0}, s{sI}, 1
    s_xor_b32 s{sT0}, s{sT0}, s{sJ}
    s_lshr_b32 s{sT0}, s{sT0}, 1
    s_and_b32 s{sT0}, s{sT0}, 2
    s_or_b32 s{sKs}, s{sKs}, s{sT0}""")
if RM == "b":
    e(f"""s_add_u32 s{sKs}, s{sI}, s{sJ}
    s_and_b32 s{sKs}, s{sKs}, 3
    s_lshl_b32 s{sKs}, s{sKs}, 1
    s_lshr_b32 s{sT0}, s{sI}, 1
    s_xor_b32 s{sT0}, s{sT0}, s{sJ}
    s_bfe_u32 s{sT0}, s{sT0}, 0x10002
    s_or_b32 s{sKs}, s{sKs}, s{sT0}""")
if RM == "c":
    e(f"""s_lshr_b32 s{sKs}, s{sI}, 3
    s_lshl_b32 s{sKs}, s{sKs}, 2
    s_lshr_b32 s{sT0}, s{sJ}, 2
    s_lshl_b32 s{sT0}, s{sT0}, 1
    s_add_u32 s{sKs}, s{sKs}, s{sT0}
    s_and_b32 s{sKs}, s{sKs}, 7""")
if "--pr" in sys.argv:
    e(f"s_and_b32 s{sT0}, s{sI}, 6\ns_cmp_eq_u32 s{sT0}, 0\ns_cselect_b32 s{sKs}, s{sKs}, 0")
if ROT and C0: e(f"s_cmp_eq_u32 s{sKs}, 7\ns_cselect_b32 s{sKs}, 3, s{sKs}")
def rot_x(): e(f"s_lshl_b32 s{sT0}, s{sKs}, 7\ns_add_u32 s{sXo}, s{sXo}, s{sT0}")
def rot_w(): e(f"s_mul_i32 s{sT0}, s{sKs}, {64*2752}\ns_add_u32 s{sWo}, s{sWo}, s{sT0}\ns_lshl_b32 s{sT0}, s{sKs}, 16\ns_add_u32 s{sQo}, s{sQo}, s{sT0}")
if ROT and not C0: rot_x()
e(f"s_lshl_b32 s{sCg}, s{sJ}, 13\ns_add_u32 s{sCg}, s{sCg}, {CSG}\ns_lshl_b32 s{sC1}, s{sKs}, 10\ns_add_u32 s{sC1}, s{sC1}, s{sCg}")
LZ = "--nolz" not in sys.argv
if LZ: e(f"s_cmp_eq_u32 s{sJ}, 14\ns_cselect_b32 s{sT3}, 8, 0\nv_mov_b32 v{vT3}, 0x40000000")
for k, r in enumerate((vWa0, vWa1, vWa2)):
    e(f"""v_add_u32 v{vT0}, {64*k}, v{vLane}
    v_mul_u32_u24 v{vT1}, 43691, v{vT0}
    v_lshrrev_b32 v{vT1}, 19, v{vT1}
    v_mul_u32_u24 v{vT2}, 12, v{vT1}
    v_sub_u32 v{vT0}, v{vT0}, v{vT2}
    v_lshrrev_b32 v{vT2}, 2, v{vT1}
    v_and_b32 v{vT2}, 2, v{vT2}
    v_xor_b32 v{vT0}, v{vT0}, v{vT2}
    v_mul_u32_u24 v{vT1}, 2752, v{vT1}
    v_lshl_add_u32 v{r}, v{vT0}, 4, v{vT1}""")
    if LZ: e(f"v_cmp_gt_u32 vcc, s{sT3}, v{vT0}")
    if k: e(f"v_subrev_u32 v{r}, {1024*k}, v{r}")
    if LZ: e(f"s_nop 1\nv_cndmask_b32 v{r}, v{r}, v{vT3}, vcc")
e(f"""v_lshrrev_b32 v{vT0}, 2, v{vLane}
v_lshlrev_b32 v{vT0}, 10, v{vT0}
v_and_b32 v{vT1}, 3, v{vLane}
v_lshlrev_b32 v{vT2}, 1, v{vH}
v_xor_b32 v{vT1}, v{vT1}, v{vT2}
v_lshl_add_u32 v{vQa}, v{vT1}, 4, v{vT0}
s_mul_i32 s{sT0}, s{sJ}, 96
s_min_u32 s{sT0}, s{sT0}, 1280
s_lshl_b32 s{sT0}, s{sT0}, 1
s_mul_i32 s{sWo}, s{sW4}, {16*2752}
s_add_u32 s{sWo}, s{sWo}, s{sT0}
s_lshl_b32 s{sQo}, s{sW4}, 14
s_lshl_b32 s{sT0}, s{sJ}, 6
s_add_u32 s{sQo}, s{sQo}, s{sT0}
s_mul_i32 s{sMw}, s{sW4}, 3072
s_add_u32 s{sMw}, s{sMw}, {GOFF}
s_lshl_b32 s{sMq}, s{sW4}, 10
s_add_u32 s{sMq}, s{sMq}, {QOFF}""")
if ROT and not C0: rot_w()
if "--noded" not in sys.argv:
    e(f"""s_lshl_b32 s{sT0}, s{sW4}, 15
    s_sub_u32 s{sXo}, s{sXo}, s{sT0}
    s_sub_u32 s{sT3}, 4, s{sW4}
    s_mul_i32 s{sT0}, s{sT3}, {16*2752}
    s_sub_u32 s{sWo}, s{sWo}, s{sT0}
    s_lshl_b32 s{sT0}, s{sT3}, 14
    s_sub_u32 s{sQo}, s{sQo}, s{sT0}
    s_mul_i32 s{sT0}, s{sT3}, 3072
    s_sub_u32 s{sMw}, s{sMw}, s{sT0}
    s_lshl_b32 s{sT0}, s{sT3}, 10
    s_sub_u32 s{sMq}, s{sMq}, s{sT0}
    s_add_u32 s{sMx}, s{sMq}, 1024""")
if JX:
    e(f"""s_memrealtime s[{sTm}:{sTm+1}]
    s_or_b32 s{sT0}, s2, s{sW}
    s_cmp_lg_u32 s{sT0}, 0
    s_waitcnt lgkmcnt(0)
    s_cbranch_scc1 Lnotag2
    s_or_b32 s{sTm}, s{sTm}, 1
    v_mov_b32 v{vPoll}, s{sTm}
    v_mov_b32 v{vPoll+1}, s{sTm+1}
    s_mov_b64 exec, 1
    buffer_store_dwordx2 {vr(vPoll,2)}, off, {sr(SDBG,4)}, 0 sc1
    s_mov_b64 exec, -1
    Lnotag2:""")
else: e("s_waitcnt lgkmcnt(0)")
DED = "--noded" not in sys.argv
hF = 30
hW = 32
TG = True
def adv():
    return [f"s_add_u32 s{sLb}, s{sLb}, {STG}", f"s_cmp_ge_u32 s{sLb}, {3*STG}", f"s_cselect_b32 s{sLb}, 0, s{sLb}",
            f"s_add_u32 s{sKs}, s{sKs}, 1", f"s_cmp_eq_u32 s{sKs}, 8"]
def ded_x():
    r = []
    for k in range(8):
        r += [f"s_add_u32 m0, s{sLb}, {2048*k}", f"s_add_u32 s{sT0}, s{sXo}, {16384*k}",
              f"buffer_load_dwordx4 v{vXa0}, {sr(SX,4)}, s{sT0} offen lds",
              f"buffer_load_dwordx4 v{vXa1}, {sr(SX,4)}, s{sT0} offen offset:1024 lds"]
    return r + adv() + [f"s_cselect_b32 s{sT0}, 1024, 0", f"s_add_u32 s{sXo}, s{sXo}, 128", f"s_sub_u32 s{sXo}, s{sXo}, s{sT0}"]
def ded_w():
    r = [f"s_add_u32 s{sT1}, s{sLb}, s{sMw}", f"s_add_u32 s{sT2}, s{sWo}, {16*2752}"]
    for hf in range(2):
        for k, sd in enumerate((SWG, SWU)):
            so = sWo if hf == 0 else sT2
            r += [f"s_add_u32 m0, s{sT1}, {3072*hf+(UOFF-GOFF)*k}", "s_nop 0",
                  f"buffer_load_dwordx4 v{vWa0}, {sr(sd,4)}, s{so} offen lds",
                  f"buffer_load_dwordx4 v{vWa1}, {sr(sd,4)}, s{so} offen offset:1024 lds",
                  f"buffer_load_dwordx4 v{vWa2}, {sr(sd,4)}, s{so} offen offset:2048 lds"]
        r += [f"s_add_u32 m0, s{sLb}, s{sMq}" if hf == 0 else f"s_add_u32 m0, s{sLb}, s{sMx}", f"s_add_u32 s{sT0}, s{sQo}, {16384*hf}",
              f"buffer_load_dwordx4 v{vQa}, {sr(SWQ,4)}, s{sT0} offen lds"]
    return r + adv() + [f"s_cselect_b32 s{sT1}, {512*2752}, 0", f"s_cselect_b32 s{sT2}, {512*1024}, 0",
                        f"s_add_u32 s{sWo}, s{sWo}, {64*2752}", f"s_add_u32 s{sQo}, s{sQo}, 65536",
                        f"s_sub_u32 s{sWo}, s{sWo}, s{sT1}", f"s_sub_u32 s{sQo}, s{sQo}, s{sT2}"]
def h_common():
    late_srd(LS_A)
    e(f"""s_lshl_b32 s{sT0}, s{sW4}, 2
    s_add_u32 s{sT0}, s{sT0}, {KFL}
    v_mov_b32 v{hF}, s{sT0}
    v_mov_b32 v{hF+1}, 0
    v_mov_b32 v{vT0}, {KFL}
    ds_write_b32 v{hF}, v{hF+1}
    ds_write_b32 v{vT0}, v{hF+1} offset:16
    s_mov_b32 s{sSt}, 0""")
def ded_loop(t, dma, n):
    for x in dma() + dma(): e(x)
    h_common()
    e(f"s_waitcnt vmcnt({n}) lgkmcnt(0)\ns_barrier\nLhl{t}:")
    for x in dma(): e(x)
    e(f"s_add_u32 s{sSt}, s{sSt}, 1\ns_waitcnt vmcnt({n})\ns_barrier\ns_cmp_lt_u32 s{sSt}, 6\ns_cbranch_scc1 Lhl{t}\ns_branch Lh6")
if DED:
    entry_stamp()
    e(f"s_cmp_lt_u32 s{sW}, 2\ns_cbranch_scc1 Lhx")
    ded_loop("w", ded_w, 14)
    e(f"Lhx:\ns_cmp_eq_u32 s{sW}, 0\ns_cbranch_scc1 Lh0")
    ded_loop("x", ded_x, 16)
    WT = int(sys.argv[sys.argv.index("--wt")+1]) if "--wt" in sys.argv else -1
    WE = "--we" in sys.argv
    def wtouch():
        ng = -(-((8-WT)*64*2752//128)//240); nq = -(-((8-WT)*64*8)//240)
        e(f"s_mul_i32 s{sT2}, s{sI}, 15\ns_add_u32 s{sT2}, s{sT2}, s{sJ}")
        for n, base, sds, r in ((ng, WT*64*2752//128, (SWG, SWU), 26), (nq, WT*64*8, (SWQ,), 27)):
            e(f"""s_mul_i32 s{sT1}, s{sT2}, {n}
            s_add_u32 s{sT1}, s{sT1}, {base}
            v_add_u32 v{r}, s{sT1}, v{vLane}
            v_lshlrev_b32 v{r}, 7, v{r}
            s_bfm_b64 exec, {n}, 0""")
            for sd in sds: e(f"buffer_load_dword v28, v{r}, {sr(sd,4)}, 0 offen")
            e("s_mov_b64 exec, -1")
    e("Lh0:")
    e(tag_issue())
    h_common()
    if WT >= 0 and WE:
        e("s_waitcnt vmcnt(0)")
        wtouch()
    e(f"s_waitcnt lgkmcnt(0)\ns_barrier")
    stamp(12)
    e(f"v_lshlrev_b32 v{vT0}, 3, v{vLane}\nv_add_u32 v{vT0}, {STL}, v{vT0}\nds_read_b64 {vr(hW,2)}, v{vT0}")
    tag_wait("p", 0, True)
    if WT >= 0 and not WE: wtouch()
    e(f"""v_mov_b32 v{hW+2}, s{sNo}
    v_mov_b32 v{hW+3}, s{sNo+1}
    s_lshl_b32 s{sT0}, s{sRow}, 5
    s_add_u32 s{sT0}, s{sT0}, {STATG}
    s_cmp_eq_u32 s{sJ}, 14
    s_mov_b32 exec_hi, 0
    s_mov_b32 exec_lo, 0xff
    s_cselect_b32 exec_lo, 0xffff, exec_lo
    s_waitcnt lgkmcnt(0)
    buffer_store_dwordx4 {vr(hW,4)}, v{vL16}, {sr(SWS,4)}, s{sT0} offen sc1
    s_mov_b64 exec, -1
    s_barrier
    s_barrier
    s_barrier
    s_and_b32 s{sT0}, s{sI}, 6
    s_cmp_lg_u32 s{sT0}, 0
    s_cbranch_scc1 Lnpc
    ds_read_b64 {vr(hW+8,2)}, v{vT0}
    ds_read_b64 {vr(hW+4,2)}, v{vT0} offset:512
    v_mov_b32 v{hW+10}, s{sNo}
    v_mov_b32 v{hW+11}, s{sNo+1}
    v_mov_b32 v{hW+6}, s{sNo}
    v_mov_b32 v{hW+7}, s{sNo+1}
    s_waitcnt lgkmcnt(0)
    buffer_store_dwordx4 {vr(hW+8,4)}, v{vL16}, {sr(SWS,4)}, s{sC1} offen sc1
    buffer_store_dwordx4 {vr(hW+4,4)}, v{vL16}, {sr(SWS,4)}, s{sC1} offen offset:1024 sc1
    Lnpc:
    s_barrier
    s_barrier
    s_barrier
    Lh6:""")
else:
    entry_stamp()
    for x in dma_x(): e(x)
    w0 = dma_w()
    if ROT and C0:
        k = w0.index(f"s_add_u32 s{sKs}, s{sKs}, 1")
        for x in w0[:k]: e(x)
        rot_x(); rot_w(); e(w0[k])
    else:
        for x in w0: e(x)
    for x in dma_x() + dma_w(): e(x)
    TG = "--oldtag" not in sys.argv
    if TG:
        e(f"""s_and_b32 s{sT0}, s{sI}, 6
        s_or_b32 s{sT0}, s{sT0}, s{sW}
        s_cmp_eq_u32 s{sT0}, 0
        s_cselect_b32 s{sPub}, 3, 99
        v_mov_b64 {vr(vPoll,2)}, 0
        s_cmp_eq_u32 s{sW}, 0
        s_cbranch_scc0 Lnt0""")
        e(tag_issue())
        e("Lnt0:")
    else: e(tag_issue())
    late_srd(LS_A)
    hF = 30
    e(f"""s_lshl_b32 s{sT0}, s{sW4}, 2
    s_add_u32 s{sT0}, s{sT0}, {KFL}
    v_mov_b32 v{hF}, s{sT0}
    v_mov_b32 v{hF+1}, 0
    v_mov_b32 v{vT0}, {KFL}
    ds_write_b32 v{hF}, v{hF+1}
    ds_write_b32 v{vT0}, v{hF+1} offset:16""")
    hW = 32
    e(f"s_mov_b32 s{sSt}, 0\ns_mov_b32 s{sRb}, 0\ns_mov_b32 s{sC3}, {(-2*STG) & 0xffffffff}")
    if "--hp3" in sys.argv: e("s_setprio 3")
    tstamp(21)
    e("s_waitcnt vmcnt(11) lgkmcnt(0)")
    tstamp(23); e("s_barrier")
    stamp(12); tflush(); TS.clear()
    W11 = "s_waitcnt vmcnt(11)" if "--unsafeH" not in sys.argv else f"s_waitcnt vmcnt(13)\ns_cmp_eq_u32 s{sW}, 0\ns_cbranch_scc1 Lw12\ns_waitcnt vmcnt(11)\nLw12:"
    def helper_loop(cs):
        t = "c" if cs else "n"
        e(f"Lhl{t}:")
        if cs:
            rd, m = cs_parts()
            for x in rd: e(x)
            e(rot_delta())
            for x in dma_x(): e(x)
            e(f"v_add_u32 v{hA}, s{sDl}, v{hA}\nv_add_u32 v{hA+1}, s{sDl}, v{hA+1}\ns_waitcnt lgkmcnt(0)")
            w = dma_w(); k = 0
            for x in w:
                e(x)
                if "buffer_load" in x: e(m[k]); k += 1
            for x in m[k:]: e(x)
        else:
            for x in dma_x() + dma_w():
                if "--nodma" in sys.argv and "buffer_load" in x: continue
                e(x)
                if "--pace" in sys.argv and "buffer_load" in x: e("s_sleep 1")
            e(f"s_or_b32 s{sT0}, s{sSt}, s{sW}\ns_cmp_lg_u32 s{sT0}, 0\ns_cbranch_scc1 Lnpub")
            e(f"v_lshlrev_b32 v{vT0}, 3, v{vLane}\nv_add_u32 v{vT0}, {STL}, v{vT0}\nds_read_b64 {vr(hW,2)}, v{vT0}")
            tag_wait("p", 11, True)
            e(f"""v_mov_b32 v{hW+2}, s{sNo}
            v_mov_b32 v{hW+3}, s{sNo+1}
            s_lshl_b32 s{sT0}, s{sRow}, 5
            s_add_u32 s{sT0}, s{sT0}, {STATG}
            s_cmp_eq_u32 s{sJ}, 14
            s_mov_b32 exec_hi, 0
            s_mov_b32 exec_lo, 0xff
            s_cselect_b32 exec_lo, 0xffff, exec_lo
            s_waitcnt lgkmcnt(0)
            buffer_store_dwordx4 {vr(hW,4)}, v{vL16}, {sr(SWS,4)}, s{sT0} offen sc1
            s_mov_b64 exec, -1
            Lnpub:
            s_cmp_lg_u32 s{sSt}, s{sPub}
            s_cbranch_scc1 Lnpc
            v_lshlrev_b32 v{vT0}, 3, v{vLane}
            v_add_u32 v{vT0}, {CSUM}, v{vT0}
            ds_read_b64 {vr(hW,2)}, v{vT0}
            ds_read_b64 {vr(hW+4,2)}, v{vT0} offset:512
            v_mov_b32 v{hW+2}, s{sNo}
            v_mov_b32 v{hW+3}, s{sNo+1}
            v_mov_b32 v{hW+6}, s{sNo}
            v_mov_b32 v{hW+7}, s{sNo+1}
            s_waitcnt lgkmcnt(0)
            buffer_store_dwordx4 {vr(hW,4)}, v{vL16}, {sr(SWS,4)}, s{sC1} offen sc1
            buffer_store_dwordx4 {vr(hW+4,4)}, v{vL16}, {sr(SWS,4)}, s{sC1} offen offset:1024 sc1
            Lnpc:""")
            if not FS:
                e(f"s_cmp_lg_u32 s{sSt}, 2\ns_cbranch_scc1 Lnini")
                a_sent()
                e("Lnini:")
        e(f"""s_add_u32 s{sSt}, s{sSt}, 1
        {W11}
        s_barrier
        {tk(81)}
        s_cmp_lt_u32 s{sSt}, 6
        s_cbranch_scc1 Lhl{t}""")
    helper_loop(False)
tkout()
def st_loads():
    return f"""buffer_load_dwordx4 {vr(hW,4)}, v{vL16}, {sr(SWS,4)}, s{sC0} offen sc1
    buffer_load_dwordx4 {vr(hW+4,4)}, v{vL16}, {sr(SWS,4)}, s{sC0} offen offset:1024 sc1"""
e(f"s_lshl_b32 s{sC0}, s{sI}, 11\ns_add_u32 s{sC0}, s{sC0}, {STATG}\ns_mov_b32 s{sKf}, {KFLG}\nv_mov_b32 v{hF+1}, 1")
if TG: e(tag_issue())
e(f"s_cmp_lg_u32 s{sW}, 1\ns_cbranch_scc1 Lhn0\n{st_loads()}\nLhn0:")
if FS: a_sent()
a_addr(); fin_init()
tag_wait("h", 0)
e(f"""s_cmp_lg_u32 s{sW}, 1
s_cbranch_scc1 Lhns
s_mov_b32 s{sT0}, 0
s_branch Lhs1
Lhs:
{st_loads()}
s_waitcnt vmcnt(0)
Lhs1:
s_add_u32 s{sT0}, s{sT0}, 1
v_cmp_ne_u64 vcc, s[{sNo}:{sNo+1}], {vr(hW+2,2)}
v_cmp_ne_u64 s[{sEx}:{sEx+1}], s[{sNo}:{sNo+1}], {vr(hW+6,2)}
s_or_b64 vcc, vcc, s[{sEx}:{sEx+1}]
s_cmp_ge_u32 s{sT0}, 100000
s_cbranch_scc1 Lhns
s_cbranch_vccnz Lhs
Lhns:""")
LATEP = "--earlyp" not in sys.argv
def cs_loads():
    return "\n".join(f"buffer_load_dwordx4 {vr(hW+4*c,4)}, v{vL16}, {sr(SWS,4)}, s{sCg if c < 2 else sC1} offen offset:{2048*(c & 1)} sc1" for c in range(4))
e(f"""s_cmp_lt_u32 s{sW}, 2
s_cbranch_scc1 Lhc0
s_and_b32 s{sT0}, s{sW}, 1
s_lshl_b32 s{sT0}, s{sT0}, 10
s_add_u32 s{sCg}, s{sCg}, s{sT0}
s_add_u32 s{sC1}, s{sCg}, 4096
{cs_loads()}
Lhc0:""")
if not LATEP: e(flags_issue(sKf))
e(f"s_mov_b32 s{sSt}, 1\ns_barrier")
if LATEP: e(flags_issue(sKf))
def kv_try(tag):
    e(f"""s_cmp_eq_u32 s{sSt}, 0
    s_cbranch_scc1 Lkt2_{tag}
    s_waitcnt vmcnt(0)
    v_cmp_ne_u64 vcc, s[{sNo}:{sNo+1}], {vr(vPoll,2)}
    s_cbranch_vccnz Lkt1_{tag}""")
    kv_dma(tag)
    e(f"v_mov_b32 v{vT0}, {KFL}\nds_write_b32 v{vT0}, v{hF+1} offset:16\ns_mov_b32 s{sSt}, 0\ns_branch Lkt2_{tag}\nLkt1_{tag}:")
    e(flags_issue(sKf))
    e(f"Lkt2_{tag}:")
e(f"s_cmp_lg_u32 s{sW}, 1\ns_cbranch_scc1 Lhnc")
gelu_consts(hW, hW+1, hW+8); gelu_consts(hW+4, hW+5, hW+12)
e(f"""v_add_u32 v{vT0}, {STATM}, v{vL16}
ds_write_b128 v{vT0}, {vr(hW+8,4)}
ds_write_b128 v{vT0}, {vr(hW+12,4)} offset:1024
Lhnc:""")
kv_try("a")
e(f"""s_cmp_lt_u32 s{sW}, 2
s_cbranch_scc1 Lhc3
s_mov_b32 s{sT0}, 0
s_branch Lhc2
Lhc1:
s_sleep 2
{cs_loads()}
s_waitcnt vmcnt(0)
Lhc2:
s_add_u32 s{sT0}, s{sT0}, 1
v_cmp_ne_u64 vcc, s[{sNo}:{sNo+1}], {vr(hW+2,2)}
v_cmp_ne_u64 s[{sEx}:{sEx+1}], s[{sNo}:{sNo+1}], {vr(hW+6,2)}
s_or_b64 vcc, vcc, s[{sEx}:{sEx+1}]
v_cmp_ne_u64 s[{sEx}:{sEx+1}], s[{sNo}:{sNo+1}], {vr(hW+10,2)}
s_or_b64 vcc, vcc, s[{sEx}:{sEx+1}]
v_cmp_ne_u64 s[{sEx}:{sEx+1}], s[{sNo}:{sNo+1}], {vr(hW+14,2)}
s_or_b64 vcc, vcc, s[{sEx}:{sEx+1}]
s_cmp_ge_u32 s{sT0}, 100000
s_cbranch_scc1 Lhc4
s_cbranch_vccnz Lhc1
Lhc4:
v_add_f32 v{hW}, v{hW}, v{hW+4}
v_add_f32 v{hW+1}, v{hW+1}, v{hW+5}
v_add_f32 v{hW+8}, v{hW+8}, v{hW+12}
v_add_f32 v{hW+9}, v{hW+9}, v{hW+13}
s_and_b32 s{sT0}, s{sW}, 1
s_lshl_b32 s{sT0}, s{sT0}, 9
s_add_u32 s{sT0}, s{sT0}, {CSUM}
v_lshl_add_u32 v{vT0}, v{vLane}, 3, s{sT0}
v_add_f32 v{hW}, v{hW}, v{hW+8}
v_add_f32 v{hW+1}, v{hW+1}, v{hW+9}
v_cmp_gt_u32 vcc, {CSUM+896}, v{vT0}
s_and_saveexec_b64 s[{sEx}:{sEx+1}], vcc
ds_write_b64 v{vT0}, {vr(hW,2)}
s_mov_b64 exec, -1
Lhc3:""")
e("s_waitcnt lgkmcnt(0)\ns_barrier")
if not LATEP and "--tryb" in sys.argv: kv_try("b")
stamp(1)
e("s_waitcnt lgkmcnt(0)\ns_barrier\ns_branch Lp2")

cX = [8, 24]; cW = 40; cRX, cRW, cRQ = 68, 70, 72; cCs = 76; cO = 92; cA = 96
e("Lcomp:")
entry_stamp(True)
late_srd(LS_F)
e(f"""v_and_b32 v{vT0}, 15, v{vLane}
v_lshrrev_b32 v{vT1}, 1, v{vT0}
v_lshrrev_b32 v{vT2}, 4, v{vLane}
v_xor_b32 v{vT1}, v{vT1}, v{vT2}
v_lshlrev_b32 v{vT0}, 7, v{vT0}
s_and_b32 s{sT0}, s{sW}, 1
s_lshl_b32 s{sT0}, s{sT0}, 13
v_add_u32 v{vT0}, s{sT0}, v{vT0}
v_lshl_add_u32 v{cRX}, v{vT1}, 4, v{vT0}
v_xor_b32 v{cRX+1}, 64, v{cRX}""")
tr_lane(192, cRW)
e(f"""s_lshl_b32 s{sT1}, s{sW}, 4
s_and_b32 s{sT1}, s{sT1}, 32
v_xor_b32 v{cRW}, s{sT1}, v{cRW}
v_xor_b32 v{cRW+1}, 32, v{cRW}
s_lshl_b32 s{sT2}, s{sT1}, 1
v_add_u32 v{cRW}, s{sT2}, v{cRW}
s_lshl_b32 s{sT2}, s{sT1}, 2
v_add_u32 v{cRW+1}, s{sT2}, v{cRW+1}""")
tr_lane(64, cRQ); e(f"v_xor_b32 v{cRQ}, s{sT1}, v{cRQ}")
ones_col0(cO)
cEh, cEs, cEq = 73, 74, 75
cEc, cEw, cEh2 = 212, 213, 214
e(f"""s_bfe_u32 s{sT2}, s{sW}, 0x10001
s_mul_i32 s{sT2}, s{sT2}, 448
s_add_u32 s{sT2}, s{sT2}, {CSUM}
s_and_b32 s{sT1}, s{sW}, 1
s_lshl_b32 s{sT1}, s{sT1}, 6
s_add_u32 s{sT1}, s{sT2}, s{sT1}
v_and_b32 v{cEc}, 48, v{vLane}
v_add_u32 v{cEc}, s{sT2}, v{cEc}
v_add_u32 v{cEw}, s{sT1}, v{vLane}""")
e(f"""s_lshl_b32 s{sT0}, s{sI}, 2
s_and_b32 s{sT1}, s{sW}, 1
s_lshl_b32 s{sT1}, s{sT1}, 1
s_add_u32 s{sT0}, s{sT0}, s{sT1}
s_mul_i32 s{sT0}, s{sT0}, 88
s_mul_i32 s{sT1}, s{sJ}, 6
s_min_u32 s{sT1}, s{sT1}, 80
s_bfe_u32 s{sT2}, s{sW}, 0x10001
s_mul_i32 s{sT2}, s{sT2}, 3
s_add_u32 s{sT1}, s{sT1}, s{sT2}
s_and_b32 s{sT2}, s{sW}, 2""")
for add, dst in enumerate((sC0, sC1, sC2)):
    e(f"""s_add_u32 s{sT3}, s{sT1}, {add}
    s_lshr_b32 s{dst}, s{sT3}, 2
    s_add_u32 s{dst}, s{dst}, s{sT0}
    s_and_b32 s{sT3}, s{sT3}, 3
    s_mul_i32 s{sT3}, s{sT3}, 22
    s_add_u32 s{dst}, s{dst}, s{sT3}
    s_lshl_b32 s{dst}, s{dst}, 10
    s_add_u32 s{dst}, s{dst}, {HIMG}""")
    if LZ: e(f"""s_mul_i32 s{sT3}, s{sJ}, 6
    s_sub_u32 s{sT3}, s{sT3}, {add}
    s_cmp_lt_i32 s{sT1}, s{sT3}
    s_cselect_b32 s{dst}, {PROFO+262144}, s{dst}""")
e(f"""v_bfe_u32 v{vT0}, v{vLane}, 4, 1
v_lshlrev_b32 v{vT0}, 9, v{vT0}
v_and_b32 v{vT1}, 15, v{vLane}
v_lshl_add_u32 v{vT0}, v{vT1}, 4, v{vT0}
v_lshl_add_u32 v{cEh}, v{vH}, 8, v{vT0}
v_add_u32 v{cEh2}, {88*1024}, v{cEh}
s_and_b32 s{sT0}, s{sW}, 1
s_lshl_b32 s{sT1}, s{sT0}, 10
s_add_u32 s{sT1}, s{sT1}, {STATM}
v_lshl_add_u32 v{cEs}, v{vT1}, 4, s{sT1}
s_lshl_b32 s{sT0}, s{sT0}, 12
s_lshl_b32 s{sT2}, s{sT2}, 9
s_add_u32 s{sT0}, s{sT0}, s{sT2}
s_add_u32 s{sT0}, s{sT0}, {QIMG}
v_lshl_add_u32 v{vT0}, v{vH}, 3, v{vT0}
v_add_u32 v{cEq}, s{sT0}, v{vT0}""")
f_init()
for r in list(range(cCs, cCs+16, 2)) + [r for r in range(cA, cA+112, 2) if not vRs <= r < vRs+16]: e(f"v_mov_b64 {vr(r,2)}, 0")
tstamp(13)
e("s_waitcnt vmcnt(0)")
tstamp(21)
rowstat_finish()
rowstat_post()
e(f"s_cmp_lg_u32 s{sJ}, 14\ns_cbranch_scc1 Lnr2")
rowstat_finish(vRs2); rowstat_post(vRs2, 64)
e("Lnr2:")
tstamp(23)
if "--touch" in sys.argv:
    e(f"""s_and_b32 s{sT2}, s{sI}, 7
    s_mul_i32 s{sT2}, s{sT2}, 48
    s_add_u32 s{sT2}, s{sT2}, 128
    s_cmp_ge_u32 s{sW}, 6
    s_cbranch_scc1 Ltc6
    v_lshrrev_b32 v{vT0}, 1, v{vLane}
    v_mul_u32_u24 v{vT0}, 2752, v{vT0}
    v_and_b32 v{vT1}, 1, v{vLane}
    v_lshl_add_u32 v{vT0}, v{vT1}, 7, v{vT0}
    s_mul_i32 s{sT0}, s{sJ}, 96
    s_min_u32 s{sT0}, s{sT0}, 1280
    s_lshl_b32 s{sT0}, s{sT0}, 1
    s_mul_i32 s{sT2}, s{sT2}, 2752
    s_add_u32 s{sT0}, s{sT0}, s{sT2}
    s_add_u32 s{sT1}, s{sT0}, {32*2752}
    s_cmp_eq_u32 s{sW}, 5
    s_cbranch_scc1 Ltc5
    buffer_load_dword v79, v{vT0}, {sr(SWG,4)}, s{sT0} offen
    s_mov_b32 exec_hi, 0
    buffer_load_dword v79, v{vT0}, {sr(SWG,4)}, s{sT1} offen
    s_branch Ltce
    Ltc5:
    buffer_load_dword v79, v{vT0}, {sr(SWU,4)}, s{sT0} offen
    s_mov_b32 exec_hi, 0
    buffer_load_dword v79, v{vT0}, {sr(SWU,4)}, s{sT1} offen
    s_branch Ltce
    Ltc6:
    s_cmp_eq_u32 s{sW}, 7
    s_cbranch_scc1 Ltc7
    v_lshrrev_b32 v{vT0}, 1, v{vLane}
    v_lshlrev_b32 v{vT0}, 10, v{vT0}
    v_and_b32 v{vT1}, 1, v{vLane}
    v_lshl_add_u32 v{vT0}, v{vT1}, 7, v{vT0}
    s_lshl_b32 s{sT0}, s{sI}, 17
    s_and_b32 s{sT1}, s{sJ}, 3
    s_lshl_b32 s{sT1}, s{sT1}, 15
    s_add_u32 s{sT0}, s{sT0}, s{sT1}
    buffer_load_dword v79, v{vT0}, {sr(SX,4)}, s{sT0} offen offset:256
    buffer_load_dword v79, v{vT0}, {sr(SX,4)}, s{sT0} offen offset:512
    buffer_load_dword v79, v{vT0}, {sr(SX,4)}, s{sT0} offen offset:768
    s_branch Ltce
    Ltc7:
    v_lshlrev_b32 v{vT0}, 10, v{vLane}
    s_lshl_b32 s{sT2}, s{sT2}, 10
    s_lshl_b32 s{sT0}, s{sJ}, 6
    s_add_u32 s{sT0}, s{sT0}, s{sT2}
    s_mov_b32 exec_hi, 0xffff
    buffer_load_dword v79, v{vT0}, {sr(SWQ,4)}, s{sT0} offen
    Ltce:
    s_mov_b64 exec, -1""")
e("s_nop 1")
for r in range(vRs, vRs+16, 2): e(f"v_mov_b64 {vr(r,2)}, 0")
e(f"s_mov_b32 s{sSt}, 0\ns_mov_b32 s{sRb}, 0\ns_mov_b32 s{sC3}, {(-2*STG) & 0xffffffff}\ns_setprio 2")
NF = 7
def comp_loop(var):
    tag = f"{var}"
    def wrd(n, k2):
        if n == 0: a, o, rs = cRQ, QOFF, 64
        else:
            t = (n-1) % 3
            a, o, rs = cRW+(t & 1), (GOFF if n < 4 else UOFF) + (t >> 1)*64, 192
        return tr(cW+4*n, a, o+32*k2*rs) + tr(cW+4*n+2, a, o+(32*k2+4)*rs)
    def xrd(k2): return [f"ds_read_b128 {vr(cX[k2]+4*u,4)}, v{cRX+k2} offset:{2048*u}" for u in range(4)]
    def mm(n, k2):
        r = [mfma16(cA+28*u+4*n, cW+4*n, cX[k2]+4*u) for u in range(4)]
        if var < 2 and (n & 1) == var: r.append(mfma16(cCs+4*(n >> 1), cW+4*n, cO))
        return r
    if var == 0:
        e("s_waitcnt lgkmcnt(0)\ns_barrier")
        for x in xrd(0) + sum([wrd(n, 0) for n in range(NF)], []): e(x)
        e(f"s_and_b32 s{sT0}, s{sI}, 6\ns_cmp_lg_u32 s{sT0}, 0\ns_waitcnt lgkmcnt(0)\ns_cbranch_scc1 Lc_2\ns_bitcmp1_b32 s{sW}, 0\ns_cbranch_scc1 Lc_1")
    e(f".p2align 3\nLc_{tag}:")
    adr = [f"v_add_u32 v{r}, s{sDl}, v{r}" for r in (cRX, cRX+1, cRW, cRW+1, cRQ)]
    ctl = rot_delta().split("\n") + [f"s_add_u32 s{sSt}, s{sSt}, 1"]
    BARG = 2
    def build(order0):
        out = []; q = []; issued = list(order0)
        def need(tagname):
            idx = max(i for i, t in enumerate(issued) if t == tagname)
            return len(issued)-1-idx
        def push(tagname, lst): q.extend((tagname, x) for x in lst)
        lastN = [99]
        for k2 in range(2):
            if k2 == 0: push("x1", xrd(1))
            for n in range(NF):
                if k2 == 1 and n == BARG:
                    while q:
                        t, x = q.pop(0); out.append(x)
                        if t: issued.append(t)
                    out.append(f"s_waitcnt lgkmcnt(0)\n{tk(None)}\ns_barrier\n{tk(81)}")
                    issued.clear(); issued.extend(["done"])
                    push("x0", xrd(0))
                    for m in range(BARG): push(f"w{m}0", wrd(m, 0))
                reqs = [f"w{n}{k2}"] + ([f"x{k2}"] if n == 0 else [])
                for r in reqs: assert all(t != r for t, _ in q), (r, k2, n)
                ns = [need(r) for r in reqs if r in issued]
                if ns and n % 2 == 0 or ns and min(ns) < lastN[0]:
                    nxt = f"w{n+1}{k2}"
                    if nxt in issued and all(t != nxt for t, _ in q): ns.append(need(nxt))
                    N = min(min(ns), 15); out.append(f"s_waitcnt lgkmcnt({N})"); lastN[0] = N
                for x in mm(n, k2):
                    out.append(x)
                    if q:
                        t, y = q.pop(0); out.append(y)
                        if t: issued.append(t); lastN[0] += 1
                if k2 == 0:
                    push(f"w{n}1", wrd(n, 1))
                    if n == 3: push(None, ctl)
                    if n == NF-1: push(None, adr)
                elif n >= BARG: push(f"w{n}0", wrd(n, 0))
        while q:
            t, x = q.pop(0); out.append(x)
            if t: issued.append(t)
        return out, issued
    _, steady = build([])
    out, _ = build(steady)
    for x in out: e(x)
    e(f"s_cmp_lt_u32 s{sSt}, {2 if var < 2 else 8}\ns_cbranch_scc1 Lc_{tag}")
    if var < 2:
        e(f"s_nop 2\ns_mov_b32 exec_lo, 0x00010001\ns_mov_b32 exec_hi, 0x00010001")
        for k in range(4-var): e(f"ds_write_b128 v{cEw}, {vr(cCs+4*k,4)} offset:{128*k}")
        e("s_mov_b64 exec, -1")
        if var == 0: e("s_branch Lc_2")
    tkout()
eC, eK, eT = 8, 40, 56
comp_loop(0); comp_loop(1); comp_loop(2)
tstamp(1)
for u in range(4): e(f"ds_read_b128 {vr(eK+4*u,4)}, v{cEs} offset:{256*u}")
for n in range(NF): e(f"ds_read_b128 {vr(eC+4*n,4)}, v{cEc} offset:{64*n}")
e("s_waitcnt lgkmcnt(6)")
for u in range(4): e(f"v_mul_f32 v{eT+u}, {f2u(0.25*1.4426950408889634/C1):#x}, v{eK+4*u+1}")
for u in range(4):
    for p in (0, 2): e(pk("v_pk_fma_f32", cA+28*u+p, [('b', eK+4*u), ('p', eC+p), ('p', cA+28*u+p)]))
for u in range(4):
    for p in (0, 2): e(pk("v_pk_mul_f32", cA+28*u+p, [('p', cA+28*u+p), ('b', eT+u)]))
for u in range(4):
    q = cA+28*u
    e(f"v_cvt_pk_bf16_f32 v{q}, v{q}, v{q+1}\nv_cvt_pk_bf16_f32 v{q+1}, v{q+2}, v{q+3}")
for u in range(4): e(f"ds_write_b64 v{cEq}, {vr(cA+28*u,2)} offset:{2048*(u>>1)+256*(u&1)}")
e(f"v_mov_b32 v{vT0}, {KFL}\ns_waitcnt lgkmcnt(0)\ns_barrier")
e(f"ds_read_b32 v{vT1}, v{vT0} offset:16")
ES = "--es" in sys.argv
if ES: a_sent(True)
e(f"s_waitcnt lgkmcnt(0)\nv_cmp_ne_u32 vcc, 0, v{vT1}")
CK = "--nock" not in sys.argv
e(f"s_cmp_eq_u64 vcc, 0\ns_cselect_b32 s{sSt}, 1, 0")
gl0 = len(L)
for u in range(4):
    g = cA+28*u+4; P = cA+28*(u & 2)+4
    gelu_tile(g, g+12, eC+4, eC+16, eK+4*u, eT, 12, [P+4*(p//2)+2*(u & 1)+(p & 1) for p in range(6)])
    if u & 1:
        e("s_nop 0")
        for t in range(3):
            e(f"v_permlane32_swap_b32 v{P+4*t}, v{P+4*t+2}\nv_permlane32_swap_b32 v{P+4*t+1}, v{P+4*t+3}")
        for t, so in enumerate((sC0, sC1, sC2)):
            st = f"buffer_store_dwordx4 {vr(P+4*t,4)}, v{cEh if u == 1 else cEh2}, {sr(SWS,4)}, s{so} offen sc1"
            if LZ: L.append(f"s_cmp_eq_u32 s{so}, {PROFO+262144}\ns_cbranch_scc1 Lns{u}{t}\n{st}\nLns{u}{t}:")
            else: e(st)
    if CK and u < 3: L.append(f"s_cmp_lg_u32 s{sSt}, 0\ns_cbranch_scc1 Lck{u}\nLckr{u}:")
body = L[gl0:]; del L[gl0:]
e(f"s_lshl_b32 s{sT1}, s{sW4}, 12")
items = []
for n in range(12):
    t = f"s_cbranch_vccz Lgk{n}\n"
    if n % 2 == 0: t += f"s_add_u32 s{sT0}, s{sT1}, {36*1024+8192*n}\ns_mov_b32 m0, s{sT0}\ns_nop 0\n"
    for k in range(2): t += f"buffer_load_dwordx4 v{vL16}, {sr(SWS,4)}, s{sT0} offen offset:{1024*(2*(n%2)+k)} sc1 lds\n"
    items.append(t + f"Lgk{n}:")
cut = (len(body)*3)//4
for x in interleave(body[:cut], items) + body[cut:]: e(x)
e(f"""s_cmp_eq_u32 s{sSt}, 0
s_cbranch_scc1 Lgk
s_mov_b32 s{sT0}, 0
s_setprio 0
Lgw:
s_sleep 2
ds_read_b32 v{vT1}, v{vT0} offset:16
s_add_u32 s{sT0}, s{sT0}, 1
s_waitcnt lgkmcnt(0)
v_cmp_ne_u32 vcc, 0, v{vT1}
s_cmp_ge_u32 s{sT0}, 2000000
s_cbranch_scc1 LFkv
s_cbranch_vccz Lgw
s_branch LFkv
Lgk:""")
e(tag_issue())
stamp(2)
tflush(); TS.clear(); rt_out()
e("s_branch LF")
if CK:
    for u in range(3):
        e(f"""Lck{u}:
        ds_read_b32 v{vT1}, v{vT0} offset:16
        s_waitcnt lgkmcnt(0)
        v_readfirstlane_b32 s{sT2}, v{vT1}
        s_cmp_eq_u32 s{sT2}, 0
        s_cbranch_scc1 Lckr{u}
        s_mov_b32 s{sSt}, 0""")
        kv_rest(f"c{u}")
        e(f"s_branch Lckr{u}")

def cs_write(acc, slot_expr_sreg):
    e(f"""v_and_b32 v{vT0}, 1, v{vLane}
    v_lshlrev_b32 v{vT0}, 6, v{vT0}
    v_lshrrev_b32 v{vT1}, 4, v{vLane}
    v_lshl_add_u32 v{vT0}, v{vT1}, 4, v{vT0}
    v_add_u32 v{vT0}, {slot_expr_sreg}, v{vT0}
    s_mov_b32 exec_lo, 0x00030003
    s_mov_b32 exec_hi, 0x00030003
    ds_write_b128 v{vT0}, {vr(acc,4)}
    s_mov_b64 exec, -1
    s_nop 2""")
e("Lkvcu:")
entry_stamp(True)
for x in kvx_dma(1): e(x)
late_srd(LS_A + LS_F)
e(f"""v_and_b32 v{vT0}, 31, v{vLane}
v_lshrrev_b32 v{vT1}, 1, v{vT0}
v_and_b32 v{vT1}, 7, v{vT1}
v_xor_b32 v{vT1}, v{vT1}, v{vH}
v_lshlrev_b32 v{vT0}, 7, v{vT0}
v_add_u32 v{vT0}, s{sXb}, v{vT0}""")
for ks in range(4):
    e(f"v_xor_b32 v{vT2}, {2*ks}, v{vT1}\nv_lshl_add_u32 v{vRX+ks}, v{vT2}, 4, v{vT0}")
e(f"""v_bfe_u32 v{vT0}, v{vLane}, 2, 2
v_lshl_add_u32 v{vT0}, v{vH}, 3, v{vT0}
v_bfe_u32 v{vT1}, v{vLane}, 4, 1
v_and_b32 v{vT2}, 3, v{vLane}
v_lshlrev_b32 v{vT2}, 3, v{vT2}
v_lshl_add_u32 v{vT3}, v{vT1}, 5, v{vT2}
v_lshl_add_u32 v{vRQ}, v{vT0}, 6, v{vT3}
v_lshlrev_b32 v{vT1}, 14, v{vT1}
v_lshl_add_u32 v{vRW}, v{vT0}, 5, v{vT2}
s_lshr_b32 s{sT0}, s{sW}, 2
s_lshl_b32 s{sT0}, s{sT0}, 13
s_add_u32 s{sT1}, s{sT0}, {WKV}
v_add3_u32 v{vRW}, v{vRW}, v{vT1}, s{sT1}
s_add_u32 s{sT1}, s{sT1}, s{sT0}
v_add_u32 v{vRQ}, s{sT1}, v{vRQ}
v_lshrrev_b32 v{vT0}, 2, v{vLane}
v_lshlrev_b32 v{vT0}, 10, v{vT0}
v_and_b32 v{vT1}, 3, v{vLane}
v_lshl_add_u32 v{vQa}, v{vT1}, 4, v{vT0}
v_bfe_u32 v{vT0}, v{vLane}, 4, 1
v_and_b32 v{vT1}, 15, v{vLane}
v_cmp_eq_u32 vcc, v{vT0}, v{vT1}
v_mov_b32 v{vT2}, 0x3f803f80
s_nop 0
v_cndmask_b32 v{vSel}, 0, v{vT2}, vcc""")
for k in range(1, 4): e(f"v_mov_b32 v{vSel+k}, v{vSel}")
for r in range(vCs, vCs+4): e(f"v_mov_b32 v{r}, 0")
e("s_waitcnt vmcnt(4) lgkmcnt(0)\ns_barrier")
tstamp(12)
def kv_reads(c):
    r = []
    for ks in range(4):
        W = vWk + 16*(c & 1) + 4*ks
        r += [f"ds_read_b128 {vr(vXf+16*c+4*ks,4)}, v{vRX+ks} offset:{4096*c}"]
        r += tr(W, vRW, (64*c+16*ks)*32) + tr(W+2, vRW, (64*c+16*ks+4)*32)
    return r
def kstat_issue():
    return f"buffer_load_dwordx4 {vr(vSt,4)}, v{vWa0}, {sr(SWS,4)}, s{sC1} offen sc1"
for x in kv_reads(0) + kvx_dma(2) + kvx_dma(3): e(x)
e(f"""v_and_b32 v{vWa0}, 31, v{vLane}
v_lshlrev_b32 v{vWa0}, 4, v{vWa0}
s_lshl_b32 s{sT0}, s{sI}, 2
s_add_u32 s{sT0}, s{sT0}, s{sW4}
s_mul_i32 s{sC0}, s{sT0}, {KVT}
s_lshl_b32 s{sC1}, s{sT0}, 9
s_add_u32 s{sC1}, s{sC1}, {STATG}""")
if "--kvt" in sys.argv: e(f"s_mov_b32 s{sT0}, {64*KVT+1024}\nbuffer_load_dword v{vSt+8}, off, {sr(SWS,4)}, s{sT0}")
for c in range(4):
    m = []
    for ks in range(4):
        X = vXf+16*c+4*ks; W = vWk + 16*(c & 1) + 4*ks
        z = "0" if c == 0 and ks == 0 else None
        m += [mfma(vAcc+16, W, X, z), mfma16(vCs, W, vSel), mfma(vAcc+32, X, W, z)]
    e("s_waitcnt lgkmcnt(0)")
    if c < 3:
        wt = f"s_waitcnt vmcnt({8-4*c})"
        for x in m[:3] + [wt] + interleave(m[3:9], kv_reads(c+1)) + m[9:]: e(x)
    else:
        e(tag_issue())
        e(kstat_issue())
        for x in m: e(x)
tstamp(1)
e(f"""v_and_b32 v{vT2}, 31, v{vLane}
v_lshlrev_b32 v{vT2}, 2, v{vT2}
s_xor_b32 s{sT2}, s{sXb}, 65536
s_add_u32 s{sT1}, s{sXb}, 4352
s_lshl_b32 s{sQo}, s{sW}, 16
s_add_u32 s{sQo}, s{sQo}, {64*15}
s_lshl_b32 s{sMq}, s{sW}, 12
s_add_u32 s{sMq}, s{sMq}, {WKV}""")
cs_write(vCs, f"s{sT1}")
e(f"""v_add_u32 v{vT0}, s{sXb}, v{vL16}
v_add_u32 v{vWa1}, s{sT2}, v{vL16}
v_add_u32 v{vWa2}, s{sT2}, v{vT2}
v_lshl_add_u32 v{vT3}, v{vH}, 4, s{sXb}
s_cmp_ge_u32 s{sW}, 4
s_cbranch_scc1 LkvH""")
def wq_dma():
    for k in range(4):
        e(f"s_add_u32 m0, s{sMq}, {1024*k}\ns_add_u32 s{sT0}, s{sQo}, {16384*k}\nbuffer_load_dwordx4 v{vQa}, {sr(SWQ,4)}, s{sT0} offen lds")
WQE = "--wqe" in sys.argv
def kstat_wait(tag):
    if WQE: wq_dma()
    if "--dkv3" in sys.argv: e("s_sleep 60")
    tag_wait("k"+tag, 0)
    e(f"""s_mov_b32 s{sT0}, 0
    Lks_{tag}:
    v_cmp_ne_u64 vcc, s[{sNo}:{sNo+1}], {vr(vSt+2,2)}
    s_add_u32 s{sT0}, s{sT0}, 1
    s_cmp_ge_u32 s{sT0}, 100000
    s_cbranch_vccz Lksd_{tag}
    s_cbranch_scc1 Lksd_{tag}
    {kstat_issue()}
    s_waitcnt vmcnt(0)
    s_branch Lks_{tag}
    Lksd_{tag}:""")
for q in range(4): e(f"ds_write_b128 v{vT0}, {vr(vAcc+32+4*q,4)} offset:{1024*q}")
e(f"v_xor_b32 v{vT1}, 0x10000, v{vT3}\ns_waitcnt lgkmcnt(0)\ns_barrier")
e(f"""ds_read_b128 {vr(vWk,4)}, v{vWa1}
ds_read_b128 {vr(vWk+4,4)}, v{vWa1} offset:1024
ds_read_b128 {vr(vSt+12,4)}, v{vT3} offset:{4352+64}
ds_read_b128 {vr(vSt+16,4)}, v{vT3} offset:{4352+96}
ds_read_b128 {vr(vWk+8,4)}, v{vT1} offset:{4352+64}
ds_read_b128 {vr(vWk+12,4)}, v{vT1} offset:{4352+96}
s_nop 2""")
e(f"""v_and_b32 v{vT0}, 0x33, v{vLane}
v_bfe_u32 v{vT1}, v{vLane}, 2, 1
v_lshl_or_b32 v{vT0}, v{vT1}, 3, v{vT0}
v_bfe_u32 v{vT1}, v{vLane}, 3, 1
v_lshl_or_b32 v{vT0}, v{vT1}, 2, v{vT0}
v_lshlrev_b32 v{vT0}, 4, v{vT0}
s_waitcnt lgkmcnt(0)""")
for p in range(0, 8, 2):
    e(pk("v_pk_add_f32", vAcc+24+p, [('p', vAcc+24+p), ('p', vWk+p)]))
    e(pk("v_pk_add_f32", vSt+12+p, [('p', vSt+12+p), ('p', vWk+8+p)]))
kstat_wait("l")
e(f"v_sub_f32 v{vSt+4}, 0, v{vSt}")
lin_fold(vAcc+24, vSt+12, vSt+4, vSt+1, 8)
for p in range(4): e(f"v_cvt_pk_bf16_f32 v{vAcc+16+p}, v{vAcc+24+2*p}, v{vAcc+25+2*p}")
RB = "--rb" in sys.argv
e(f"buffer_store_dwordx4 {vr(vAcc+16,4)}, v{vT0}, {sr(SWS,4)}, s{sC0} offen sc1")
if RB: e(f"s_waitcnt vmcnt(0)\nbuffer_load_dwordx4 {vr(vWk,4)}, v{vT0}, {sr(SWS,4)}, s{sC0} offen sc1")
e("s_branch LkvS")
e("LkvH:")
e(f"ds_write_b128 v{vT0}, {vr(vAcc+24,4)}\nds_write_b128 v{vT0}, {vr(vAcc+28,4)} offset:1024")
e(f"v_add_u32 v{vT1}, s{sXb}, v{vT2}\ns_waitcnt lgkmcnt(0)\ns_barrier")
e(f"ds_read_b32 v{vSt+6}, v{vT1} offset:4352\nds_read_b32 v{vSt+7}, v{vWa2} offset:4352")
for q in range(4): e(f"ds_read_b128 {vr(vAcc+48+4*q,4)}, v{vWa1} offset:{1024*q}")
tstamp(21)
kstat_wait("h")
tstamp(23)
e(f"ds_write_b32 v{vT1}, v{vSt} offset:4608\nds_write_b32 v{vT1}, v{vSt+1} offset:4736\ns_waitcnt lgkmcnt(0)")
for q in range(4):
    e(f"ds_read_b128 {vr(vWk+4*q,4)}, v{vT3} offset:{4608+32*q}\nds_read_b128 {vr(vWk+16+4*q,4)}, v{vT3} offset:{4736+32*q}")
e(f"v_add_f32 v{vSt+6}, v{vSt+6}, v{vSt+7}\nv_sub_f32 v{vSt+6}, 0, v{vSt+6}")
for p in range(0, 16, 2): e(pk("v_pk_add_f32", vAcc+32+p, [('p', vAcc+32+p), ('p', vAcc+48+p)]))
e("s_waitcnt lgkmcnt(0)")
for p in range(0, 16, 2): e(pk("v_pk_fma_f32", vAcc+32+p, [('p', vWk+p), ('b', vSt+6), ('p', vAcc+32+p)]))
for p in range(0, 16, 2): e(pk("v_pk_mul_f32", vAcc+32+p, [('p', vAcc+32+p), ('p', vWk+16+p)]))
for p in range(8): e(f"v_cvt_pk_bf16_f32 v{vAcc+32+p}, v{vAcc+32+2*p}, v{vAcc+33+2*p}")
v_lane_addr(vT0)
for p in range(8): e(f"v_mov_b32 v{vAcc+32+p}, 0x3f803f80")
e(f"""s_mov_b32 exec_lo, 0x1ffff
s_mov_b32 exec_hi, 0xffff
buffer_store_dwordx4 {vr(vAcc+32,4)}, v{vT0}, {sr(SWS,4)}, s{sC0} offen offset:1024 sc1
buffer_store_dwordx4 {vr(vAcc+36,4)}, v{vT0}, {sr(SWS,4)}, s{sC0} offen offset:{1024+528} sc1""")
if RB: e(f"""s_waitcnt vmcnt(0)
buffer_load_dwordx4 {vr(vWk,4)}, v{vT0}, {sr(SWS,4)}, s{sC0} offen offset:1024 sc1
buffer_load_dwordx4 {vr(vWk+4,4)}, v{vT0}, {sr(SWS,4)}, s{sC0} offen offset:{1024+528} sc1""")
e("s_mov_b64 exec, -1")
tstamp(29)
e("LkvS:")
for r in range(4): e(f"v_mov_b32 v{vCs+r}, 0")
e(f"s_lshl_b32 s{sT2}, s{sI}, 7\ns_add_u32 s{sT2}, s{sT2}, {KFLG}\ns_waitcnt vmcnt(0)\ns_barrier")
if "--dkv" in sys.argv:
    for _ in range(3): e("s_sleep 127")
if "--dkv2" in sys.argv: e("s_sleep 45")
flag_set(sT2, "kv")
if not WQE: wq_dma()
stamp(13)
tflush(); TS.clear(); rt_out()
e("s_waitcnt vmcnt(0)\ns_barrier")
def q_reads(c):
    r = []
    for ks in range(4):
        W = vWk + 16*(c & 1) + 4*ks
        r += tr(W, vRQ, (64*c+16*ks)*64) + tr(W+2, vRQ, (64*c+16*ks+4)*64)
    return r
for x in q_reads(0): e(x)
for c in range(4):
    m = []
    for ks in range(4):
        X = vXf+16*c+4*ks; W = vWk + 16*(c & 1) + 4*ks
        m += [mfma(vAcc, W, X, "0" if c == 0 and ks == 0 else None), mfma16(vCs, W, vSel)]
    e("s_waitcnt lgkmcnt(0)")
    for x in interleave(m[:4], q_reads(c+1) if c < 3 else []) + m[4:]: e(x)
e(f"""s_or_b32 s{sT2}, s{sXb}, {65536+8192}
s_lshr_b32 s{sT3}, s{sW}, 2
s_lshl_b32 s{sT3}, s{sT3}, 7
s_add_u32 s{sT1}, s{sT2}, s{sT3}
s_add_u32 s{sT1}, s{sT1}, 4096
v_add_u32 v{vWa1}, s{sT2}, v{vL16}
v_lshl_add_u32 v{vT3}, v{vH}, 4, s{sT2}
s_nop 3""")
cs_write(vCs, f"s{sT1}")
e(f"s_cmp_ge_u32 s{sW}, 4\ns_cbranch_scc1 LkvH2\ns_waitcnt lgkmcnt(0)\ns_barrier")
for q in range(4): e(f"ds_read_b128 {vr(vWk+4*q,4)}, v{vWa1} offset:{1024*q}")
cs_read(vAcc+48, 4096); cs_read(vWk+16, 4096+128)
e("s_waitcnt lgkmcnt(0)")
for p in range(0, 16, 2):
    e(pk("v_pk_add_f32", vAcc+p, [('p', vAcc+p), ('p', vWk+p)]))
    e(pk("v_pk_add_f32", vAcc+48+p, [('p', vAcc+48+p), ('p', vWk+16+p)]))
q_epilogue(vAcc+48)
a_init(); fin_init()
e("s_waitcnt lgkmcnt(0)\ns_barrier\ns_branch LaR\nLkvH2:")
for q in range(4): e(f"ds_write_b128 v{vWa1}, {vr(vAcc+4*q,4)} offset:{1024*q}")
e(f"s_mov_b32 s{sKf}, {KFLG}")
e(flags_issue(sKf))
e("s_waitcnt lgkmcnt(0)\ns_barrier")
f_init()
flags_wait(sKf, "kv2", 0)
kv_dma("c")
e("s_waitcnt vmcnt(0)\ns_barrier")
if ES: a_sent(True)
e("s_branch LFkv")

AAL = 6 if "--a6" in sys.argv else 3
APRE = int(sys.argv[sys.argv.index("--apre")+1]) if "--apre" in sys.argv else 3
UNS = "--unsafeF" in sys.argv
vm = []
def vtag(tag): vm.append(tag)
def vwait_s(tag):
    idx = max(i for i, t in enumerate(vm) if t == tag)
    return f"s_waitcnt vmcnt({min(63, sum(1 for t in vm[idx+1:] if t[0] == tag[0] or UNS))})"
def emit_seq(seq):
    for x in seq:
        if isinstance(x, list): emit_seq(x)
        elif isinstance(x, tuple): vtag(x[0]); e(x[1])
        elif callable(x): e(x())
        else: e(x)
e(f"Lp2:\ns_setprio {APRE}\ns_cmp_eq_u32 s{sSt}, 0\ns_cbranch_scc1 Lkvok")
stamp(16)
flags_wait(sKf, "kv", 0)
stamp(17)
kv_dma("d")
e(f"v_mov_b32 v{vT0}, {KFL}\nds_write_b32 v{vT0}, v{hF+1} offset:16\ns_nop 3")
e(f"""Lkvok:
v_mov_b32 v{vT0}, {KFL}
s_mov_b32 s{sT0}, 0
s_waitcnt vmcnt(0)
ds_write_b32 v{hF}, v{hF+1}
Lkw:
ds_read_b128 {vr(aS[0],4)}, v{vT0}
s_add_u32 s{sT0}, s{sT0}, 1
s_waitcnt lgkmcnt(0)
v_and_b32 v{aS[0]}, v{aS[0]}, v{aS[0]+1}
v_and_b32 v{aS[0]+2}, v{aS[0]+2}, v{aS[0]+3}
v_and_b32 v{aS[0]}, v{aS[0]}, v{aS[0]+2}
v_cmp_ne_u32 vcc, 0, v{aS[0]}
s_cmp_ge_u32 s{sT0}, 2000000
s_cbranch_scc1 LaR
s_cbranch_vccnz LaR
s_sleep 1
s_branch Lkw
LaR:""")
stamp(3)
e(f"""ds_read_b128 {vr(aQ[0],4)}, v{vAq}
ds_read_b128 {vr(aK[0],4)}, v{vAk}
ds_read_b128 {vr(aQ[1],4)}, v{vAq} offset:1024
ds_read_b128 {vr(aK[1],4)}, v{vAk} offset:{KVT}
ds_read_b128 {vr(aVl[0],4)}, v{vAv}
ds_read_b128 {vr(aVh[0],4)}, v{vAv} offset:528
s_waitcnt lgkmcnt(4)""")
e(mfma(aS[0], aK[0], aQ[0], "0"))
e("s_waitcnt lgkmcnt(3)")
e(mfma(aS[1], aK[0], aQ[1], "0"))
e("s_nop 9")
for b in range(2):
    t = vT0+2*b; S = aS[b]
    e(f"v_max3_f32 v{t}, v{S}, v{S+1}, v{S+2}")
    for p in range(3, 15, 2): e(f"v_max3_f32 v{t}, v{t}, v{S+p}, v{S+p+1}")
    e(f"v_max_f32 v{t}, v{t}, v{S+15}\nv_mov_b32 v{t+1}, v{t}")
e(f"""s_nop 1
v_permlane32_swap_b32 v{vT0}, v{vT1}
v_permlane32_swap_b32 v{vT2}, v{vT3}
s_mov_b32 s{sSt}, 0
v_max_f32 v{vT0}, v{vT0}, v{vT1}
v_max_f32 v{vT2}, v{vT2}, v{vT3}""")
for b in range(2):
    e(f"v_sub_f32 v{aC[b]}, 0, v{vT0+2*b}\nv_sub_f32 v{aC[b]+1}, 0, v{vT0+2*b}")
for r in range(16): e(f"v_sub_f32 v{aS[0]+r}, v{aS[0]+r}, v{vT0}")
for b in (1, 0):
    for r in range(2, 16, 2): e(f"v_mov_b64 {vr(aC[b]+r,2)}, {vr(aC[b],2)}")
e("s_setprio 1")
stamp(5)
e(f"v_exp_f32 v{aS[0]}, v{aS[0]}\nv_exp_f32 v{aS[0]+1}, v{aS[0]+1}\ns_branch La1\n.p2align {AAL}\nLa0:")
for n in range(32):
    b = n & 1; T = n >> 1
    X = aS[b]; Y = aS[b ^ 1]
    ex = [f"v_exp_f32 v{X+i}, v{X+i}" for i in range(16)]
    Tp = (n-1) >> 1; Tn = (n+1) >> 1
    seq = ex[0:2] + [smf(aO[b ^ 1], aVh[Tp & 1], Y+8, vIdx)] + (["La1:"] if n == 0 else []) + ex[2:5]
    seq += [mfma(Y, aK[Tn & 1], aQ[b ^ 1], vr(aC[b ^ 1], 16))]
    if b:
        rd = [f"ds_read_b128 {vr(aVl[(T+1)&1],4)}, v{vAv} offset:{(T+1)*KVT}",
              f"ds_read_b128 {vr(aVh[(T+1)&1],4)}, v{vAv} offset:{(T+1)*KVT+528}",
              f"ds_read_b128 {vr(aK[T&1],4)}, v{vAk} offset:{(T+2)*KVT}"]
        seq += rd + ex[5:10]
    else: seq += ["s_waitcnt lgkmcnt(0)"] + ex[5:10]
    seq += [smf(aO[b], aVl[T & 1], X, vIdx)] + ex[10:16]
    for x in seq: e(x)
if PROF:
    e(f"s_memtime s[{sTm}:{sTm+1}]\ns_lshl_b32 s{sT0}, s{sSt}, 2\ns_add_u32 s{sT0}, s{sT0}, s{sPo}\ns_waitcnt lgkmcnt(0)\nv_mov_b32 v0, s{sTm}\nbuffer_store_dword v0, off, {sr(SWS,4)}, s{sT0} offset:72")
e(f"""v_add_u32 v{vAk}, {16*KVT}, v{vAk}
v_add_u32 v{vAv}, {16*KVT}, v{vAv}
s_add_u32 s{sSt}, s{sSt}, 1
s_cmp_eq_u32 s{sSt}, 1
s_cbranch_scc0 La2
{'' if PROF else 's_waitcnt vmcnt(0)'}
s_barrier
s_branch La0
La2:
s_cmp_lt_u32 s{sSt}, 4
s_cbranch_scc1 La0""")
e(smf(aO[1], aVh[1], aS[1]+8, vIdx))
if "--dA" in sys.argv:
    e(f"s_and_b32 s{sT0}, s2, 0x29\ns_cmp_lg_u32 s{sT0}, 0\ns_cbranch_scc1 LdA\ns_sleep 127\ns_sleep 127\nLdA:")
e(f"s_mov_b32 s{sC0}, {f2u(2.0**40):#x}\ns_mov_b32 s{sC1}, {f2u(2.0**126):#x}")
for b in range(2):
    O = aO[b]
    e(f"s_mov_b32 s{sRetry}, 0\nLfin{b}:")
    e(f"""v_rcp_f32 v{O+10}, v{O+8}
    v_max3_f32 v{vT1}, abs(v{O}), abs(v{O+1}), abs(v{O+2})
    v_max3_f32 v{vT1}, v{vT1}, abs(v{O+3}), abs(v{O+4})
    v_max3_f32 v{vT1}, v{vT1}, abs(v{O+5}), abs(v{O+6})
    v_max_f32 v{vT1}, v{vT1}, abs(v{O+7})
    v_cmp_nlt_f32 vcc, v{O+8}, s{sC0}
    v_cmp_nlt_f32 s[{sEx}:{sEx+1}], v{vT1}, s{sC1}""")
    for p in range(8): e(f"v_mul_f32 v{O+p}, v{O+p}, v{O+10}")
    e(f"s_or_b64 vcc, vcc, s[{sEx}:{sEx+1}]")
    for p in range(4): e(f"v_cvt_pk_bf16_f32 v{O+p}, v{O+2*p}, v{O+2*p+1}")
    for p in range(4): e(f"v_min_u32 v{O+p}, -2, v{O+p}")
    e(f"s_cbranch_vccnz Lfallback{b}\nLok{b}:")
    e(f"buffer_store_dwordx4 {vr(O,4)}, v{vL16}, {sr(SWS,4)}, s{sOp if b == 0 else sOp2} offen sc1")
stamp(6)
OSC = " sc1"
gX = [136, 140]; gG = [144, 176]; gR = [8, 40]
e(f"buffer_load_dwordx4 {vr(gX[0],4)}, v{vRa}, {sr(SX,4)}, s{sXf} offen")
e(f"buffer_load_dwordx4 {vr(gX[1],4)}, v{vRa}, {sr(SX,4)}, s{sXf2} offen")
e("s_waitcnt lgkmcnt(0)\ns_setprio 0\ns_barrier\ns_barrier")
stamp(8)
for tt in range(2):
    for q in range(8): e(f"ds_read_b128 {vr(gG[tt]+4*q,4)}, v{vRr} offset:{128*tt+XK*(q//2)+512*(q%2)}")
def sum4(r):
    for p in range(0, 8, 2):
        e(pk("v_pk_add_f32", r+p, [('p', r+p), ('p', r+8+p)]))
        e(pk("v_pk_add_f32", r+16+p, [('p', r+16+p), ('p', r+24+p)]))
    for p in range(0, 8, 2): e(pk("v_pk_add_f32", r+p, [('p', r+p), ('p', r+16+p)]))
for tt in range(2):
    G = gG[tt]
    e(f"s_waitcnt lgkmcnt({8*(1-tt)})")
    for p in range(8): e(f"v_add_f32 v{G+p}, v{G+p}, v{G+8+p}\nv_add_f32 v{G+16+p}, v{G+16+p}, v{G+24+p}")
    for p in range(8): e(f"v_add_f32 v{G+p}, v{G+p}, v{G+16+p}")
    for p in range(8): e(f"v_mul_f32 v{G+8+p}, {f2u(-1.4426950408889634):#x}, v{G+p}")
    for p in range(8): e(f"v_exp_f32 v{G+8+p}, v{G+8+p}")
    for p in range(8): e(f"v_add_f32 v{G+8+p}, 1.0, v{G+8+p}")
    for p in range(8): e(f"v_rcp_f32 v{G+8+p}, v{G+8+p}")
    e("s_waitcnt vmcnt(0)")
    for p in range(4): e(f"v_lshlrev_b32 v{G+16+2*p}, 16, v{gX[tt]+p}\nv_and_b32 v{G+17+2*p}, 0xffff0000, v{gX[tt]+p}")
    for p in range(8): e(f"v_mul_f32 v{G+p}, v{G+p}, v{G+8+p}")
stamp(9)
e("s_barrier")
for tt in range(2):
    for q in range(8): e(f"ds_read_b128 {vr(gR[tt]+4*q,4)}, v{vRr2} offset:{128*tt+XK*(q//2)+512*(q%2)}")
for tt in range(2):
    R = gR[tt]; G = gG[tt]
    e(f"s_waitcnt lgkmcnt({8*(1-tt)})")
    sum4(R)
    for p in range(0, 8, 2): e(pk("v_pk_fma_f32", R+p, [('p', R+p), ('p', G+p), ('p', G+16+p)]))
    for p in range(4): e(f"v_cvt_pk_bf16_f32 v{R+p}, v{R+2*p}, v{R+2*p+1}")
    e(f"buffer_store_dwordx4 {vr(R,4)}, v{vRa}, {sr(SOUT,4)}, s{sXf if tt == 0 else sXf2} offen{OSC}")
def the_end():
    stamp(11)
    if RT: e(f"s_waitcnt vmcnt(0)\ns_memrealtime s[100:101]\ns_waitcnt lgkmcnt(0)\nv_mov_b32 v0, s100\nbuffer_store_dword v0, off, {sr(SWS,4)}, s{sPo} offset:56")
the_end()
e("Lend:\ns_endpgm")

e("LFkv:")
kv_rest("k")
e("LF:")
if FS and not ES: a_sent(True)
tag_wait("f", 0)
e("s_setprio 0\ns_barrier")
flag_set(sHs, "h", 4)
RG = SP + [aslot(n) for n in range(4)]
def u_dma(m):
    srdw, row = (SWO, 64*m) if m < 8 else (SWD, 64*(m-8))
    so = [f"s_add_u32 s{sT0}, s{sDo}, {row*1024}"]
    if m == 29: so += [f"s_cmp_lt_u32 s{sW4}, 2", f"s_cselect_b32 s{sT0}, s{sT0}, s{sDo}"]
    return [f"s_add_u32 m0, s{sDm}, {RG[m % 7]}"] + so + [
            (f"u{m}", f"buffer_load_dwordx4 v{vDa}, {sr(srdw,4)}, s{sT0} offen lds"),
            (f"u{m}", f"buffer_load_dwordx4 v{vDa2}, {sr(srdw,4)}, s{sT0} offen offset:1024 lds")]
def u_reads(m, F):
    a = RG[m % 7]; win = 1 if a >= SP[0] else 0; off = a - win*SP[0]
    r0, r1 = vRd+2*win, vRd+2*win+1
    return tr(F, r0, off) + tr(F+2, r0, off+1024) + tr(F+4, r1, off) + tr(F+6, r1, off+1024)
HR = int(sys.argv[sys.argv.index("--hr")+1]) if "--hr" in sys.argv else 8
def h_loads(s):
    r = []
    if s % 4 == 0: r += [f"s_add_u32 s{sC0}, s{sHo}, {1024*s}", f"s_add_u32 s{sC1}, s{sC0}, {88*1024}"]
    for tt in range(2):
        r.append((f"h{s}", f"buffer_load_dwordx4 {vr(fH+8*(s % HR)+4*tt,4)}, v{vL16}, {sr(SWS,4)}, s{sC0 if tt == 0 else sC1} offen offset:{1024*(s%4)} sc1"))
    return r
for m in range(7): emit_seq(u_dma(m))
for m in range(8):
    e(vwait_s(f"u{m}"))
    for x in u_reads(m, fWo+8*m): e(x)
    e("s_waitcnt lgkmcnt(0)")
    emit_seq(u_dma(m+7))
tstamp(18)
e(flags_issue(sHc))
flags_wait(sHc, "h", 0)
tstamp(19)
for s in range(HR): emit_seq(h_loads(s))
for x in u_reads(8, fWb[0]): e(x)
FB = int(sys.argv[sys.argv.index("--fb")+1]) if "--fb" in sys.argv else 15
for s in range(22):
    m = 8+s; W = fWb[s & 1]
    if s == FB:
        tstamp(20); e("s_barrier\ns_setprio 2"); tstamp(21)
    if s < 21:
        e(vwait_s(f"u{m+1}"))
        for x in u_reads(m+1, fWb[(s+1) & 1]): e(x)
        e("s_waitcnt lgkmcnt(4)")
    else: e("s_waitcnt lgkmcnt(0)")
    if m+7 < 30: emit_seq(u_dma(m+7))
    e(vwait_s(f"h{s}"))
    if s == 21: e(f"s_cmp_ge_u32 s{sW4}, 2\ns_cbranch_scc1 Lskip21")
    for tt in range(2):
        for ch in range(2 if "--nofm" not in sys.argv else 0): e(mfma(fA+32*tt+16*ch, W+4*ch, fH+8*(s % HR)+4*tt, "0" if s == 0 else None))
    if s+HR < 22: emit_seq(h_loads(s+HR))
e("Lskip21:\ns_nop 8")
tstamp(22)
ORD = [7, 6, 5, 4, 3, 2, 1, 0] if M48 else [i ^ (2*JX) for i in [7, 6, 5, 4, 1, 0, 3, 2]]
def o_load(k):
    tt, i = k & 1, k >> 1
    return f"buffer_load_dwordx4 {vr(opos(i)+4*tt,4)}, v{vL16}, {sr(SWS,4)}, s{(sOc, sOc2, sOc3, sOc4)[2*tt+(i>>2)]} offen offset:{1024*(i%4)} sc1"
def opos(i): return fO + 8*ORD.index(i)
zer = [f"v_mov_b64 {vr(fS+r,2)}, 0" for r in range(0, 64, 2)]
for q in range(16):
    e(f"ds_write_b128 v{vRw}, {vr(fA+4*q,4)} offset:{XB*(q//2)+XP*(q%2)}")
    if q >= 4: e(f"s_waitcnt lgkmcnt(4)\n{o_load(2*ORD[(q-4)//2]+(q & 1))}")
e("s_waitcnt lgkmcnt(0)\ns_barrier")
for k in range(12, 16): e(o_load(2*ORD[k//2]+(k & 1)))
tstamp(9)
def o_pair(i, tag, wait):
    B = opos(i)
    if wait is not None: e(f"s_waitcnt vmcnt({wait})")
    else: e(f"s_bitcmp1_b32 s{sSt}, {i}\ns_cbranch_scc0 Lon{tag}{i}")
    e(f"""v_max3_u32 v{vT1}, v{B}, v{B+1}, v{B+2}
    v_max3_u32 v{vT1}, v{vT1}, v{B+3}, v{B+4}
    v_max3_u32 v{vT1}, v{vT1}, v{B+5}, v{B+6}
    v_max_u32 v{vT1}, v{vT1}, v{B+7}
    v_cmp_eq_u32 vcc, s{sT1}, v{vT1}
    s_cbranch_vccnz Lon{tag}{i}
    s_bitset0_b32 s{sSt}, {i}""")
    for tt in range(2):
        for ch in range(2): e(mfma(fS+32*tt+16*ch, fWo+8*i+4*ch, B+4*tt))
    e(f"Lon{tag}{i}:")
def acc_chain(tt, ch): return [mfma(fS+32*tt+16*ch, fWo+8*i+4*ch, opos(i)+4*tt, "0" if n == 0 else None) for n, i in enumerate(ORD)]
def s_wr(tt, ch): return [f"ds_write_b128 v{vRw2+tt}, {vr(fS+32*tt+16*ch+4*q,4)} offset:{XB*(2*ch+q//2)+XP*(q%2)}" for q in range(4)]
e(f"v_mov_b32 v{vT1}, 0")
for n, x in enumerate(acc_chain(0, 0)):
    B = fO+8*n
    e(f"s_waitcnt vmcnt({14-2*n})\n{x}")
    for p in range(0, 8, 2): e(f"v_max3_u32 v{vT1}, v{vT1}, v{B+p}, v{B+p+1}")
e(f"v_cmp_eq_u32 vcc, -1, v{vT1}\ns_cbranch_vccnz Lor0")
c1, c2, c3 = acc_chain(0, 1), acc_chain(1, 0), acc_chain(1, 1)
for prev, c in (((0, 0), c1), ((0, 1), c2), ((1, 0), c3)):
    for x in [c[0], "s_nop 3", c[1], "s_nop 3", c[2]] + interleave(c[3:7], s_wr(*prev)) + c[7:]: e(x)
stamp(7)
e("s_nop 11")
for x in s_wr(1, 1): e(x)
e("Lsd:")
e("s_waitcnt lgkmcnt(0)\ns_barrier")
stamp(10); tflush(); TS.clear()
the_end()
e("s_endpgm")
e(f"Lor0:\ns_nop 8")
for x in zer: e(x)
e(f"s_mov_b32 s{sT0}, 0\ns_mov_b32 s{sSt}, 0xff\ns_mov_b32 s{sT1}, -1\ns_branch Lor2")
e("Lor:\ns_sleep 4")
for i in ORD:
    e(f"s_bitcmp1_b32 s{sSt}, {i}\ns_cbranch_scc0 Lorn{i}\n{o_load(2*i)}\n{o_load(2*i+1)}\nLorn{i}:")
e(f"""s_add_u32 s{sT0}, s{sT0}, 1
s_cmp_ge_u32 s{sT0}, 200000
s_cbranch_scc1 Lod
s_waitcnt vmcnt(0)
Lor2:""")
for i in ORD: o_pair(i, "b", None)
e(f"s_cmp_lg_u32 s{sSt}, 0\ns_cbranch_scc1 Lor\nLod:\ns_nop 6")
for tt in range(2):
    for ch in range(2):
        for x in s_wr(tt, ch): e(x)
e("s_branch Lsd")
for b in range(2):
    S = aS[0]; O = aO[b]; C = aC[b]; Q = aQ[b]
    e(f"""Lfallback{b}:
    s_cmp_lg_u32 s{sRetry}, 0
    s_cbranch_scc1 Lok{b}
    s_mov_b32 s{sRetry}, 1
    s_mov_b32 s{sSt}, 0
    v_mov_b32 v{vT1}, 0xff800000
    s_waitcnt lgkmcnt(0)
    Lfb1{b}:
    buffer_load_dwordx4 {vr(aK[0],4)}, v{vL16}, {sr(SWS,4)}, s{sSt} offen sc1
    s_waitcnt vmcnt(0)""")
    e(mfma(S, aK[0], Q, "0"))
    e("s_nop 11")
    for p in range(0, 16, 2): e(f"v_max3_f32 v{vT1}, v{vT1}, v{S+p}, v{S+p+1}")
    e(f"""s_add_u32 s{sSt}, s{sSt}, {KVT}
    s_cmp_lt_u32 s{sSt}, {64*KVT}
    s_cbranch_scc1 Lfb1{b}
    v_mov_b32 v{vT2}, v{vT1}
    s_nop 1
    v_permlane32_swap_b32 v{vT1}, v{vT2}
    s_nop 1
    v_max_f32 v{vT1}, v{vT1}, v{vT2}""")
    for r in range(16): e(f"v_sub_f32 v{C+r}, 0, v{vT1}")
    for r in range(12): e(f"v_mov_b32 v{O+r}, 0")
    e(f"""v_subrev_u32 v{vT0}, {64*KVT}, v{vAv}
    s_mov_b32 s{sSt}, 0
    Lfb2{b}:
    buffer_load_dwordx4 {vr(aK[0],4)}, v{vL16}, {sr(SWS,4)}, s{sSt} offen sc1
    buffer_load_dwordx4 {vr(aVl[0],4)}, v{vT0}, {sr(SWS,4)}, s{sSt} offen sc1
    buffer_load_dwordx4 {vr(aVh[0],4)}, v{vT0}, {sr(SWS,4)}, s{sSt} offen offset:528 sc1
    s_waitcnt vmcnt(0)""")
    e(mfma(S, aK[0], Q, vr(C, 16)))
    e("s_nop 11")
    for i in range(16): e(f"v_exp_f32 v{S+i}, v{S+i}")
    e("s_nop 1")
    e(smf(O, aVl[0], S, vIdx)); e(smf(O, aVh[0], S+8, vIdx))
    e(f"""s_add_u32 s{sSt}, s{sSt}, {KVT}
    s_cmp_lt_u32 s{sSt}, {64*KVT}
    s_cbranch_scc1 Lfb2{b}
    s_nop 9
    s_branch Lfin{b}""")
e("Lcodeend:")

L += ['.section .rodata,"a"', ".p2align 6", f".amdhsa_kernel {NAME}_kernel",
      "  .amdhsa_next_free_vgpr 256", "  .amdhsa_next_free_sgpr 102", "  .amdhsa_accum_offset 256",
      "  .amdhsa_group_segment_fixed_size 0", "  .amdhsa_kernarg_size 96", "  .amdhsa_user_sgpr_count 2",
      "  .amdhsa_user_sgpr_kernarg_segment_ptr 1", "  .amdhsa_system_sgpr_workgroup_id_x 1", ".end_amdhsa_kernel"]
open(OUT, "w").write("\n".join(L) + "\n")
print("wrote", OUT, len(L), "lines")
```

```python
import sys, struct
NAME = "recurrent_scan__grouped_kv_mqa__geglu_ffn__prompt"
PROF = "--prof" in sys.argv
OUT = [a for a in sys.argv[1:2] if not a.startswith("--")]
OUT = OUT[0] if OUT else f"cdna_kernels/{NAME}.s"

L = []
def e(s):
    for ln in s.split("\n"):
        if not ln.strip(): continue
        L.append(("    " + ln.strip()) if not ln.strip().endswith(":") else ln.strip())
def f2u(x): return struct.unpack("<I", struct.pack("<f", x))[0]
def vr(a, n): return f"v[{a}:{a+n-1}]"
def sr(a, n): return f"s[{a}:{a+n-1}]"

KVT = 2080
KVIMG = 0
HIMG = 135168
OIMG = HIMG + 64*88*1024
HFLG = OIMG + 64*32*1024
KFLG = HFLG + 256*128
STATG = KFLG + 16*128
CSG = STATG + 2048*16
PROFO = CSG + 64*2048
WS_BYTES = PROFO + 256*8*256
CNT_KV = 0
KVRDY = 128
STG = 45056
XOFF, GOFF, UOFF, QOFF = 0, 16384, 28672, 40960
STGK, QOFFK, NBK = 24832, 20736, 5
QIMG = 135168
STATM = 160768
CSUM = 162816
MRX = 159744
STL = 162816
KFL = 163776
LDS_BYTES = 163840
SX, SWQ, SWK, SWV, SWO, SWG, SWD, SOUT, SDBG, SWS = 4, 8, 12, 16, 20, 24, 28, 32, 36, 40
sI, sJ, sW, sW4 = 44, 45, 46, 47
sXo, sWo, sQo, sLb = 48, 49, 50, 51
sMx, sMw, sMq = 52, 53, 54
sSt, sDl, sT0, sT1, sT2, sT3 = 55, 56, 57, 58, 59, 60
sTB, sCS, sRetry, sRb = 61, 62, 63, 3
sEx = 88
sTm = 90
sPo = 92
sC0, sC1, sC2, sC3 = 94, 95, 96, 97
sOp = 98
TOUCH = int("--touch" in sys.argv)
vLane, vH, vT0, vT1, vT2, vT3 = 1, 2, 3, 4, 5, 6
vXa0, vXa1, vWa0, vWa1, vWa2, vQa = 7, 8, 9, 10, 11, 12
vRX = 13
vRW, vRQ = 17, 18
vSel = 20
vCs = 24
vF = 32
vAcc = 96
vSt = 160
aQ = [8, 12]; aK = [16, 20]; aVl = [24, 28]; aVh = [32, 36]; aS = [40, 56]; aC = [72, 88]; aO = [104, 120]
fA, fWo, fWb, fH, fX, fG = 8, 72, [136, 144], 152, 200, 204
fS, fO, fR = 136, 8, 8
vIdx, vAk, vAv, vDa, vL16, vRa = 240, 241, 242, 243, 244, 245
vPoll = 246
vRd = 248
vRw, vRr, vRr2, vDa2 = 252, 253, 254, 255
vRw2 = 238
vAq = 237
sKq, sTt, sHo, sDo, sDm, sHc, sXf, sOc, sOc2, sHs = 64, 65, 66, 67, 68, 69, 70, 71, 72, 73
sOc3, sOc4, sOp2 = 80, 81, 99
sXf2 = 64
sNo = 86
sRow, sKf = 63, 85
ASL = 8320
XB, XK, XP = 8512, 2112, 1056
XF0, XS0, XS1 = 34048, 0, 102144
def aslot(n): return ASL*n
SP = [135168, 143360, 151552]

nstamp = [0]
DBGT = "--dbgt" in sys.argv
DT = {0: 75, 12: 76, 1: 77, 2: 78, 3: 79, 6: 80, 9: 81, 7: 82, 11: 83}
PAD = (int(sys.argv[sys.argv.index("--pad")+1]), int(sys.argv[sys.argv.index("--pad")+2])) if "--pad" in sys.argv else None
npad = [0]
PADB = sNo if "--padg" in sys.argv else 100
def stamp(k):
    if PAD and PAD[0] == k:
        npad[0] += 1
        e(f"Lpad{npad[0]}:\ns_memrealtime s[{sTm}:{sTm+1}]\ns_waitcnt lgkmcnt(0)\ns_sub_u32 s{sTm}, s{sTm}, s{PADB}\ns_sleep 8\ns_cmp_lt_u32 s{sTm}, {PAD[1]}\ns_cbranch_scc1 Lpad{npad[0]}")
    if DBGT and k in DT:
        e(f"s_memrealtime s[{sTm}:{sTm+1}]\ns_waitcnt lgkmcnt(0)\ns_sub_u32 s{DT[k]}, s{sTm}, s100")
        if k == 11:
            e(f"s_memtime s[{sTm}:{sTm+1}]\ns_waitcnt lgkmcnt(0)\ns_sub_u32 s84, s{sTm}, s92")
            e(f"s_cmp_lg_u32 s2, 64\ns_cbranch_scc1 Lend\ns_cmp_lg_u32 s{sW}, 4\ns_cbranch_scc1 Lend")
            for n, r in enumerate(range(75, 85)):
                e(f"v_mov_b32 v0, s{r}\nbuffer_store_dword v0, off, {sr(SDBG,4)}, 0 offset:{4+4*n}\ns_nop 1")
    if not PROF: return
    e(f"""s_memtime s[{sTm}:{sTm+1}]
    s_waitcnt lgkmcnt(0)
    v_mov_b32 v0, s{sTm}
    buffer_store_dword v0, off, {sr(SWS,4)}, s{sPo} offset:{4*k}""")
    if k in RTS:
        e(f"""s_memrealtime s[{sTm}:{sTm+1}]
        s_waitcnt lgkmcnt(0)
        v_mov_b32 v0, s{sTm}
        buffer_store_dword v0, off, {sr(SWS,4)}, s{sPo} offset:{4*RTS[k]}""")
RTS = {12: 24, 1: 25, 5: 26, 6: 27, 11: 28}

TS = []
def tstamp(k):
    if not PROF: return
    r = 74 + len(TS); TS.append((k, r))
    e(f"s_memtime s[{sTm}:{sTm+1}]\ns_waitcnt lgkmcnt(0)\ns_mov_b32 s{r}, s{sTm}")
def tflush():
    for k, r in TS: e(f"v_mov_b32 v0, s{r}\nbuffer_store_dword v0, off, {sr(SWS,4)}, s{sPo} offset:{4*k}\ns_nop 1")
def tick(acc):
    if not PROF or "--notick" in sys.argv: return ""
    r = f"s_memtime s[{sTm}:{sTm+1}]\ns_waitcnt lgkmcnt(0)\n"
    if acc is not None: r += f"s_sub_u32 s99, s{sTm}, s99\ns_add_u32 s{acc}, s{acc}, s99\n"
    return r + f"s_mov_b32 s99, s{sTm}"

def interleave(main, fill):
    out = []; n = len(main); m = len(fill); k = 0
    for i, a in enumerate(main):
        out.append(a)
        t = (m * (i + 1)) // n
        out += fill[k:t]; k = t
    return out

def mfma(d, a, b, c=None):
    c = vr(d, 16) if c is None else c
    return f"v_mfma_f32_32x32x16_bf16 {vr(d,16)}, {vr(a,4)}, {vr(b,4)}, {c}"
def mfma16(d, a, b): return f"v_mfma_f32_16x16x32_bf16 {vr(d,4)}, {vr(a,4)}, {vr(b,4)}, {vr(d,4)}"
def smf(d, a, b, idx): return f"v_smfmac_f32_32x32x32_bf16 {vr(d,16)}, {vr(a,4)}, {vr(b,8)}, v{idx}"

TK = PROF and "--tk" in sys.argv
def tk(acc):
    if not TK: return ""
    r = f"s_memtime s[{sTm}:{sTm+1}]\ns_waitcnt lgkmcnt(0)\n"
    if acc is not None: r += f"s_sub_u32 s82, s{sTm}, s82\ns_add_u32 s{acc}, s{acc}, s82\n"
    return r + f"s_mov_b32 s82, s{sTm}"
def tkout():
    if TK: e(f"v_mov_b32 v0, s80\nbuffer_store_dword v0, off, {sr(SWS,4)}, s{sPo} offset:{4*29}\ns_nop 1\nv_mov_b32 v0, s81\nbuffer_store_dword v0, off, {sr(SWS,4)}, s{sPo} offset:{4*30}")
def tr(d, a, off): return [f"ds_read_b64_tr_b16 {vr(d,2)}, v{a} offset:{off}"]
def tag_issue(): return f"buffer_load_dwordx2 {vr(vPoll,2)}, off, {sr(SDBG,4)}, 0 sc1"
def tag_wait(tag, first_wait, early=False):
    chk = f"""s_memrealtime s[{sTm}:{sTm+1}]
    s_waitcnt lgkmcnt(0)
    s_sub_u32 s{sTm}, s{sTm}, s{sNo}
    s_add_u32 s{sTm}, s{sTm}, 200
    s_cmp_lt_u32 s{sTm}, 2000
    s_cselect_b32 s{sTm}, 99, s{sT0}
    s_cmp_lt_u32 s{sTm}, 40
    s_cbranch_scc1 Ltagr_{tag}""" if early else ""
    e(f"""s_mov_b32 s{sT0}, 0
    s_waitcnt vmcnt({first_wait})
    Ltag_{tag}:
    v_readfirstlane_b32 s{sNo}, v{vPoll}
    v_readfirstlane_b32 s{sNo+1}, v{vPoll+1}
    s_add_u32 s{sT0}, s{sT0}, 1
    {chk}
    s_cmp_lg_u32 s{sNo}, 0
    s_cbranch_scc1 Ltagd_{tag}
    s_cmp_ge_u32 s{sT0}, 100000
    s_cbranch_scc1 Ltagd_{tag}
    Ltagr_{tag}:
    s_sleep 1
    {tag_issue()}
    s_waitcnt vmcnt(0)
    s_branch Ltag_{tag}
    Ltagd_{tag}:""")
def flags_issue(base):
    return f"""v_and_b32 v{vPoll}, 15, v{vLane}
    v_lshlrev_b32 v{vPoll}, 7, v{vPoll}
    buffer_load_dwordx2 {vr(vPoll,2)}, v{vPoll}, {sr(SWS,4)}, s{base} offen sc1"""
def h_poll_issue(): return flags_issue(sHc)
def flags_wait(base, tag, first_wait):
    e(f"""s_mov_b32 s{sT0}, 0
    s_waitcnt vmcnt({first_wait})
    Lfw_{tag}:
    v_cmp_ne_u64 vcc, s[{sNo}:{sNo+1}], {vr(vPoll,2)}
    s_add_u32 s{sT0}, s{sT0}, 1
    s_cmp_ge_u32 s{sT0}, 100000
    s_cbranch_vccz Lfwd_{tag}
    s_cbranch_scc1 Lfwd_{tag}
    s_sleep 3
    {flags_issue(base)}
    s_waitcnt vmcnt(0)
    s_branch Lfw_{tag}
    Lfwd_{tag}:""")
def flag_set(off_sreg, tag, wave=0):
    e(f"""s_cmp_lg_u32 s{sW}, {wave}
    s_cbranch_scc1 Lsig_{tag}
    v_mov_b32 v{vPoll}, s{sNo}
    v_mov_b32 v{vPoll+1}, s{sNo+1}
    s_mov_b64 exec, 1
    buffer_store_dwordx2 {vr(vPoll,2)}, off, {sr(SWS,4)}, s{off_sreg} sc1
    s_mov_b64 exec, -1
    Lsig_{tag}:""")

hdr = open(f"cdna_kernels/{NAME}.s.ref").read().split("\n")
hdr = [h for h in hdr[:15] if h.startswith(";") and "@launch" not in h]
L += hdr
L.append(f"; @launch grid=(256,1,1) block=(512,1,1) lds={LDS_BYTES}")
L += """;
; One persistent launch, 256 workgroups (one per CU) x 8 waves; written with a generator script.
;  workgroup (i, j): 128-token row block i, column group j (2 heads of Q, 96 gate/up columns); j = 15 makes K/V instead.
;  P1  x @ [wq | w_gate | w_up]: waves 4-7 MFMA (16x16x32), waves 0-3 LDS-DMA; LayerNorm folded into the epilogue
;      (row mean / rstd and weight column sums are computed once and exchanged through d_ws).
;  P2  waves 0-3: attention, S^T = K Q^T - m (m = row max of the first key tile, as the MFMA C operand), exp2, and
;      P V plus the row sum by the sparse MFMA straight from the f32 registers; a run-time check of the row sum and of
;      the accumulators falls back to the true row max.  waves 4-7: GELU gate, down projection, output projection.
;  P3  out = x + s * silu(f) on a 64x64 tile per workgroup.
;  Hand-offs: write-through stores + sc1 loads; flags carry a per-launch tag published in d_debug; the attention
;  output is pre-filled with a sentinel.  Every wait is bounded.""".split("\n")
L += ['.amdgcn_target "amdgcn-amd-amdhsa--gfx950"', ".text", f".globl {NAME}_kernel", ".p2align 8",
      f".type {NAME}_kernel,@function"]
e(f"{NAME}_kernel:")
RT = PROF
if RT: e("s_memrealtime s[100:101]\ns_memtime s[98:99]")
if DBGT or PAD: e("s_memrealtime s[100:101]\ns_memtime s[92:93]")
MAP84 = f"""s_and_b32 s{sI}, s{sT0}, 1
s_lshl_b32 s{sI}, s{sI}, 3
s_and_b32 s{sT2}, s{sT1}, 7
s_add_u32 s{sI}, s{sI}, s{sT2}
s_lshr_b32 s{sJ}, s{sT0}, 1
s_lshl_b32 s{sJ}, s{sJ}, 2
s_lshr_b32 s{sT3}, s{sT1}, 3
s_add_u32 s{sJ}, s{sJ}, s{sT3}
s_sub_u32 s{sJ}, 15, s{sJ}
s_and_b32 s{sTB}, s{sT0}, 3
s_lshl_b32 s{sTB}, s{sTB}, 3
s_add_u32 s{sTB}, s{sTB}, s{sT2}
s_lshr_b32 s{sCS}, s{sT0}, 2
s_lshl_b32 s{sCS}, s{sCS}, 2
s_add_u32 s{sCS}, s{sCS}, s{sT3}"""
MAP48 = f"""s_lshr_b32 s{sT2}, s{sT0}, 1
s_lshl_b32 s{sI}, s{sT2}, 2
s_and_b32 s{sT3}, s{sT1}, 3
s_add_u32 s{sI}, s{sI}, s{sT3}
s_lshl_b32 s{sTB}, s{sT2}, 3
s_and_b32 s{sT3}, s{sT1}, 7
s_add_u32 s{sTB}, s{sTB}, s{sT3}
s_and_b32 s{sT0}, s{sT0}, 1
s_lshl_b32 s{sJ}, s{sT0}, 3
s_lshr_b32 s{sT3}, s{sT1}, 2
s_add_u32 s{sJ}, s{sJ}, s{sT3}
s_sub_u32 s{sJ}, 15, s{sJ}
s_lshl_b32 s{sCS}, s{sT0}, 2
s_lshr_b32 s{sT3}, s{sT1}, 3
s_add_u32 s{sCS}, s{sCS}, s{sT3}"""
JX = int(sys.argv[sys.argv.index("--jx")+1]) if "--jx" in sys.argv else 0
if JX: MAP84 = MAP84.replace(f"s_lshr_b32 s{sJ}, s{sT0}, 1\n", f"s_lshr_b32 s{sJ}, s{sT0}, 1\ns_xor_b32 s{sJ}, s{sJ}, {JX}\n")
M48 = "--m48" in sys.argv
MAP = MAP48 if M48 else MAP84
PFC = "" if "--nopfc" in sys.argv else f"""s_cmp_lg_u32 s{sW}, 7
s_cbranch_scc1 Lnop0
s_getpc_b64 s[94:95]
Lpc0:
s_bfe_u32 s{sT0}, s2, 0x20003
s_lshl_b32 s{sT0}, s{sT0}, 13
v_lshl_add_u32 v{vT1}, v{vLane}, 7, s{sT0}
v_min_u32 v{vT1}, Lcodeend-Lpc0-4, v{vT1}
global_load_dword v236, v{vT1}, s[94:95]"""
e(f"""s_cmp_ge_u32 s2, 256
s_cbranch_scc1 Lend
s_load_dwordx2 s[{SX}:{SX+1}], s[0:1], 0
s_load_dwordx2 s[{SWG}:{SWG+1}], s[0:1], 48
s_load_dwordx2 s[{SWQ}:{SWQ+1}], s[0:1], 8
s_load_dwordx2 s[{SWV}:{SWV+1}], s[0:1], 24
s_load_dwordx2 s[{SDBG}:{SDBG+1}], s[0:1], 80
s_load_dwordx2 s[{SWS}:{SWS+1}], s[0:1], 88
v_and_b32 v{vLane}, 63, v0
v_lshrrev_b32 v{vT0}, 6, v0
v_lshrrev_b32 v{vH}, 5, v{vLane}
v_readfirstlane_b32 s{sW}, v{vT0}
{PFC}
Lnop0:
s_and_b32 s{sT0}, s2, 7
s_lshr_b32 s{sT1}, s2, 3
{MAP}
s_and_b32 s{sW4}, s{sW}, 3
v_lshrrev_b32 v{vT0}, 3, v{vLane}
v_lshlrev_b32 v{vT0}, 10, v{vT0}
v_and_b32 v{vT1}, 7, v{vLane}
v_lshrrev_b32 v{vT2}, 4, v{vLane}
v_xor_b32 v{vT1}, v{vT1}, v{vT2}
v_lshl_add_u32 v{vXa0}, v{vT1}, 4, v{vT0}
v_xor_b32 v{vXa1}, 64, v{vXa0}
v_add_u32 v{vXa1}, {8192-1024}, v{vXa1}
v_lshlrev_b32 v{vL16}, 4, v{vLane}
s_lshl_b32 s{sXo}, s{sI}, 17
s_lshl_b32 s{sT0}, s{sW4}, 15
s_add_u32 s{sXo}, s{sXo}, s{sT0}
s_lshl_b32 s{sRow}, s{sI}, 4
s_add_u32 s{sRow}, s{sRow}, s{sJ}
s_lshl_b32 s{sRow}, s{sRow}, 2
s_add_u32 s{sRow}, s{sRow}, s{sW4}
s_cmp_eq_u32 s{sJ}, 15
s_cselect_b32 s{sT0}, 16, 56
s_load_dwordx2 s[{SWK}:{SWK+1}], s[0:1], s{sT0}
s_mov_b32 s{sT1}, {512*2752}
s_cselect_b32 s{SWK+2}, 16384, s{sT1}
s_mov_b32 s{SWK+3}, 0x20000""")
SWU = SWK
vRs = 144
vRs2 = 216
for d, nbytes in ((SX, 2048*1024), (SWG, 512*2752), (SWQ, 512*1024), (SWV, 16384), (SDBG, 256), (SWS, WS_BYTES)):
    e(f"s_mov_b32 s{d+2}, {nbytes}\ns_mov_b32 s{d+3}, 0x20000")
def late_srd(lst):
    for d, off, nbytes in lst:
        e(f"s_load_dwordx2 s[{d}:{d+1}], s[0:1], {off}\ns_mov_b32 s{d+2}, {nbytes}\ns_mov_b32 s{d+3}, 0x20000")
LS_A = [(SOUT, 72, 2048*1024)]; LS_F = [(SWO, 32, 512*1024), (SWD, 64, 1376*1024)]
def entry_stamp(defer=False):
    if PROF:
        e(f"s_lshl_b32 s{sPo}, s2, 3\ns_add_u32 s{sPo}, s{sPo}, s{sW}\ns_lshl_b32 s{sPo}, s{sPo}, 8\ns_add_u32 s{sPo}, s{sPo}, {PROFO}")
    if defer: tstamp(0); return
    stamp(0); rt_out()
def rt_out():
    if RT: e(f"s_nop 1\nv_mov_b32 v0, s100\nbuffer_store_dword v0, off, {sr(SWS,4)}, s{sPo} offset:60\ns_nop 1\nv_mov_b32 v0, s98\nbuffer_store_dword v0, off, {sr(SWS,4)}, s{sPo} offset:16")
def row_loads():
    e(f"""s_lshl_b32 s{sT1}, s{sRow}, 11
    buffer_load_dwordx4 {vr(vRs,4)}, v{vL16}, {sr(SX,4)}, s{sT1} offen
    buffer_load_dwordx4 {vr(vRs+4,4)}, v{vL16}, {sr(SX,4)}, s{sT1} offen offset:1024""")
WKV = 131072
vXf, vWk = 32, 192
sXb = sMw
def kvx_dma(c):
    return [f"""s_add_u32 m0, s{sXb}, {4096*c+2048*hf}
        s_add_u32 s{sT0}, s{sXo}, {128*c+16384*hf}
        buffer_load_dwordx4 v{vXa0}, {sr(SX,4)}, s{sT0} offen lds
        buffer_load_dwordx4 v{vXa1}, {sr(SX,4)}, s{sT0} offen offset:1024 lds""" for hf in range(2)]
e(f"""s_cbranch_scc1 Lkv0
s_cmp_lt_u32 s{sW}, 4
s_cbranch_scc1 Lhelp
s_waitcnt lgkmcnt(0)""")
row_loads()
e(f"""s_cmp_lg_u32 s{sJ}, 14
s_cbranch_scc1 Lcomp
s_add_u32 s{sT1}, s{sT1}, 8192
buffer_load_dwordx4 {vr(vRs2,4)}, v{vL16}, {sr(SX,4)}, s{sT1} offen
buffer_load_dwordx4 {vr(vRs2+4,4)}, v{vL16}, {sr(SX,4)}, s{sT1} offen offset:1024
s_branch Lcomp
Lkv0:
s_memrealtime s[{sTm}:{sTm+1}]
s_lshl_b32 s{sXb}, s{sW}, 14
s_lshr_b32 s{sT3}, s{sW}, 2
s_lshl_b32 s{sT0}, s{sT3}, 9
s_add_u32 s{sXo}, s{sXo}, s{sT0}
s_or_b32 s{sT0}, s2, s{sW}
s_cmp_lg_u32 s{sT0}, 0
s_waitcnt lgkmcnt(0)
s_cbranch_scc1 Lnotag
s_or_b32 s{sTm}, s{sTm}, 1
v_mov_b32 v{vPoll}, s{sTm}
v_mov_b32 v{vPoll+1}, s{sTm+1}
s_mov_b64 exec, 1
buffer_store_dwordx2 {vr(vPoll,2)}, off, {sr(SDBG,4)}, 0 sc1
s_mov_b64 exec, -1
Lnotag:
s_lshl_b32 s{sT0}, s{sW}, 11
s_add_u32 m0, s{sT0}, {WKV}
s_nop 0
buffer_load_dwordx4 v{vL16}, {sr(SWV,4)}, s{sT0} offen lds
buffer_load_dwordx4 v{vL16}, {sr(SWV,4)}, s{sT0} offen offset:1024 lds
s_add_u32 m0, s{sT0}, {WKV+16384}
s_nop 0
buffer_load_dwordx4 v{vL16}, {sr(SWK,4)}, s{sT0} offen lds
buffer_load_dwordx4 v{vL16}, {sr(SWK,4)}, s{sT0} offen offset:1024 lds""")
for x in kvx_dma(0): e(x)
e("s_branch Lkvcu\nLhelp:")

def v_lane_addr(d):
    e(f"""v_and_b32 v{d}, 15, v{vLane}
    v_lshlrev_b32 v{d}, 4, v{d}
    v_lshl_add_u32 v{d}, v{vH}, 8, v{d}
    s_mov_b32 exec_lo, 0xffff0000
    s_mov_b32 exec_hi, 0xffff0000
    v_mov_b32 v{d}, 512""")
def fin_init():
    e(f"""s_lshl_b32 s{sT0}, s{sTB}, 16
    s_lshl_b32 s{sT1}, s{sCS}, 7
    s_add_u32 s{sT0}, s{sT0}, s{sT1}
    s_lshl_b32 s{sT1}, s{sW4}, 14
    s_add_u32 s{sXf}, s{sT0}, s{sT1}
    s_add_u32 s{sXf2}, s{sXf}, 8192
    v_lshrrev_b32 v{vT0}, 3, v{vLane}
    v_and_b32 v{vT1}, 7, v{vLane}
    v_lshlrev_b32 v{vRa}, 10, v{vT0}
    v_lshl_add_u32 v{vRa}, v{vT1}, 4, v{vRa}
    v_bfe_u32 v{vT1}, v{vLane}, 1, 2
    v_mul_u32_u24 v{vT1}, {XB}, v{vT1}
    v_lshl_add_u32 v{vT0}, v{vT0}, 4, v{vT1}
    v_and_b32 v{vT1}, 1, v{vLane}
    v_mul_u32_u24 v{vT1}, {XP}, v{vT1}
    s_and_b32 s{sT0}, s{sW4}, 1
    s_lshl_b32 s{sT0}, s{sT0}, 8
    v_add3_u32 v{vT0}, v{vT0}, v{vT1}, s{sT0}
    s_lshr_b32 s{sT0}, s{sW4}, 1
    s_mul_i32 s{sT1}, s{sT0}, {4*XB}
    s_add_u32 s{sT1}, s{sT1}, {XF0}
    v_add_u32 v{vRr}, s{sT1}, v{vT0}
    s_mul_i32 s{sT1}, s{sT0}, {XS1}
    v_add_u32 v{vRr2}, s{sT1}, v{vT0}""")
FS = "--asent" not in sys.argv
def a_init():
    a_sent(); a_addr()
def a_sent(store=False):
    e(f"""s_lshl_b32 s{sT0}, s{sI}, 2
    s_add_u32 s{sT0}, s{sT0}, s{sW4}
    s_lshl_b32 s{sT0}, s{sT0}, 5
    s_lshr_b32 s{sT1}, s{sJ}, 1
    s_add_u32 s{sT0}, s{sT0}, s{sT1}
    s_and_b32 s{sT1}, s{sJ}, 1
    s_lshl_b32 s{sT1}, s{sT1}, 4
    s_add_u32 s{sT0}, s{sT0}, s{sT1}
    s_lshl_b32 s{sT0}, s{sT0}, 10
    s_add_u32 s{sOp}, s{sT0}, {OIMG}
    s_add_u32 s{sOp2}, s{sOp}, 8192""")
    if not FS or store: e(f"""v_mov_b64 v[232:233], -1
    v_mov_b64 v[234:235], -1
    buffer_store_dwordx4 v[232:235], v{vL16}, {sr(SWS,4)}, s{sOp} offen sc1
    buffer_store_dwordx4 v[232:235], v{vL16}, {sr(SWS,4)}, s{sOp2} offen sc1""")
    if store: return
def a_addr(zero=True):
    v_lane_addr(vAv)
    e(f"""s_mov_b32 exec_lo, 0xffee0000
    s_mov_b32 exec_hi, 0xffee0000
    v_mov_b32 v{vAv}, 0x4000000
    s_mov_b64 exec, -1
    v_add_u32 v{vAv}, 1024, v{vAv}
    v_mov_b32 v{vAk}, v{vL16}
    v_mov_b32 v{vIdx}, 0xdddd
    s_lshl_b32 s{sT0}, s{sW4}, 11
    s_add_u32 s{sT0}, s{sT0}, {QIMG}
    v_add_u32 v{vAq}, s{sT0}, v{vL16}""")
    if zero: a_zero()
def a_zero():
    for b in range(2):
        for r in range(0, 12, 2): e(f"v_mov_b64 {vr(aO[b]+r,2)}, 0")
def f_init():
    e(f"""v_lshrrev_b32 v{vT0}, 3, v{vLane}
    v_lshlrev_b32 v{vT0}, 10, v{vT0}
    v_and_b32 v{vT1}, 7, v{vLane}
    v_bfe_u32 v{vT2}, v{vLane}, 4, 1
    v_lshlrev_b32 v{vT2}, 2, v{vT2}
    v_xor_b32 v{vT1}, v{vT1}, v{vT2}
    v_lshl_add_u32 v{vDa}, v{vT1}, 4, v{vT0}
    v_add_u32 v{vDa2}, {8192-1024}, v{vDa}
    s_lshl_b32 s{sDo}, s{sW4}, 14
    s_lshl_b32 s{sT1}, s{sCS}, 7
    s_add_u32 s{sDo}, s{sDo}, s{sT1}
    s_lshl_b32 s{sDm}, s{sW4}, 11
    s_mul_i32 s{sHo}, s{sTB}, 176
    s_mul_i32 s{sT0}, s{sW4}, 22
    s_add_u32 s{sHo}, s{sHo}, s{sT0}
    s_lshl_b32 s{sHo}, s{sHo}, 10
    s_add_u32 s{sHo}, s{sHo}, {HIMG}
    s_lshl_b32 s{sT0}, s{sTB}, 3
    s_add_u32 s{sT0}, s{sT0}, s{sW4}
    s_lshl_b32 s{sT0}, s{sT0}, 13
    s_add_u32 s{sOc}, s{sT0}, {OIMG}
    s_add_u32 s{sOc2}, s{sOc}, 4096
    s_add_u32 s{sOc3}, s{sOc}, 32768
    s_add_u32 s{sOc4}, s{sOc}, {32768+4096}
    s_lshr_b32 s{sHc}, s{sTB}, 1
    s_lshl_b32 s{sHc}, s{sHc}, 11
    s_add_u32 s{sHc}, s{sHc}, {HFLG}
    s_lshl_b32 s{sHs}, s{sI}, 4
    s_add_u32 s{sHs}, s{sHs}, s{sJ}
    s_lshl_b32 s{sHs}, s{sHs}, 7
    s_add_u32 s{sHs}, s{sHs}, {HFLG}
    v_bfe_u32 v{vT0}, v{vLane}, 2, 2
    v_lshl_add_u32 v{vT0}, v{vH}, 2, v{vT0}
    v_lshlrev_b32 v{vT0}, 7, v{vT0}
    v_bfe_u32 v{vT1}, v{vLane}, 4, 1
    v_lshl_add_u32 v{vT0}, v{vT1}, 5, v{vT0}
    v_and_b32 v{vT1}, 3, v{vLane}
    v_lshl_add_u32 v{vT0}, v{vT1}, 3, v{vT0}
    v_bfe_u32 v{vT1}, v{vLane}, 3, 1
    v_lshl_add_u32 v{vT0}, v{vT1}, 6, v{vT0}
    v_add_u32 v{vRd}, s{sDm}, v{vT0}
    v_xor_b32 v{vRd+1}, 64, v{vRd}
    v_add_u32 v{vRd+2}, {SP[0]}, v{vRd}
    v_add_u32 v{vRd+3}, {SP[0]}, v{vRd+1}
    s_mul_i32 s{sT0}, s{sW4}, {XK}
    v_add_u32 v{vRw2}, s{sT0}, v{vL16}
    v_add_u32 v{vRw}, {XF0}, v{vRw2}
    v_add_u32 v{vRw2+1}, {XS1}, v{vRw2}""")
def kv_rest(tag):
    e(f"s_setprio 0\ns_lshl_b32 s{sT1}, s{sW4}, 12")
    for n in range(6):
        e(f"s_add_u32 s{sT0}, s{sT1}, {36*1024+16384*n}\ns_mov_b32 m0, s{sT0}\ns_nop 0")
        for k in range(4): e(f"buffer_load_dwordx4 v{vL16}, {sr(SWS,4)}, s{sT0} offen offset:{1024*k} sc1 lds")
    e(tag_issue())
    e("s_setprio 2")

def spread(m, fill):
    w = [16 if "16x16" in x else 32 for x in m]
    tot = sum(c for c, _ in fill); W = sum(w)
    out = []; k = 0; acc = 0; cw = 0
    for x, wx in zip(m, w):
        out.append(x); cw += wx
        while k < len(fill) and (acc + fill[k][0]/2) * W <= tot * cw:
            out.append(fill[k][1]); acc += fill[k][0]; k += 1
    out += [t for _, t in fill[k:]]
    return out


C1 = -2*0.7978845608028654*1.4426950408889634
C3 = C1*0.044715
def gelu_consts(m, r, d):
    e(f"""v_sub_f32 v{d}, 0, v{m}
    v_mul_f32 v{d+3}, v{r}, v{r}
    v_mul_f32 v{d+1}, {f2u(C1):#x}, v{r}
    v_mul_f32 v{d+2}, {f2u(C3):#x}, v{r}
    v_mul_f32 v{d+2}, v{d+2}, v{d+3}
    v_rcp_f32 v{d+3}, v{d+3}""")
def bc(reg, pos, n):
    base = reg & ~1
    return vr(base, 2), reg & 1
def pk(op, d, srcs, neg=None):
    if any(t == 'b' for t, _ in srcs):
        o = op.replace("v_pk_", "v_")
        return "\n".join(f"{o} v{d+h}, " + ", ".join(f"v{r+h if t == 'p' else r}" for t, r in srcs) for h in range(2))
    return f"{op} {vr(d,2)}, " + ", ".join(vr(r, 2) for _, r in srcs)
GM = sys.argv[sys.argv.index("--gm")+1] if "--gm" in sys.argv else "dup"
def gelu_tile(g, u, csg, csu, k, tmp, n=16, dst=None):
    if GM == "plain":
        for p in range(n): e(f"v_fmac_f32 v{g+p}, v{k}, v{csg+p}")
        for p in range(n): e(f"v_fmac_f32 v{u+p}, v{k}, v{csu+p}")
        for p in range(n): e(f"v_mul_f32 v{tmp+p}, v{g+p}, v{g+p}")
        for p in range(n): e(f"v_fma_f32 v{tmp+p}, v{tmp+p}, v{k+2}, v{k+1}")
        for p in range(n): e(f"v_mul_f32 v{tmp+p}, v{tmp+p}, v{g+p}")
        for p in range(n): e(f"v_exp_f32 v{tmp+p}, v{tmp+p}")
        for p in range(n): e(f"v_mul_f32 v{u+p}, v{u+p}, v{g+p}")
        for p in range(n): e(f"v_fma_f32 v{tmp+p}, v{tmp+p}, v{k+3}, v{k+3}")
        for p in range(n): e(f"v_rcp_f32 v{tmp+p}, v{tmp+p}")
        e("s_nop 0")
        for p in range(n): e(f"v_mul_f32 v{u+p}, v{u+p}, v{tmp+p}")
    else:
        if GM == "dup":
            D = 76
            for c in range(4): e(f"v_mov_b32 v{D+2*c}, v{k+c}\nv_mov_b32 v{D+2*c+1}, v{k+c}")
            K = [('p', D+2*c) for c in range(4)]
        else: K = [('b', k+c) for c in range(4)]
        for p in range(0, n, 2):
            e(pk("v_pk_fma_f32", g+p, [K[0], ('p', csg+p), ('p', g+p)]))
            e(pk("v_pk_fma_f32", u+p, [K[0], ('p', csu+p), ('p', u+p)]))
        for p in range(0, n, 2): e(pk("v_pk_mul_f32", tmp+p, [('p', g+p), ('p', g+p)]))
        for p in range(0, n, 2): e(pk("v_pk_fma_f32", tmp+p, [('p', tmp+p), K[2], K[1]]))
        for p in range(0, n, 2): e(pk("v_pk_mul_f32", tmp+p, [('p', tmp+p), ('p', g+p)]))
        for p in range(n): e(f"v_exp_f32 v{tmp+p}, v{tmp+p}")
        for p in range(0, n, 2): e(pk("v_pk_mul_f32", u+p, [('p', u+p), ('p', g+p)]))
        for p in range(0, n, 2): e(pk("v_pk_fma_f32", tmp+p, [('p', tmp+p), K[3], K[3]]))
        for p in range(n): e(f"v_rcp_f32 v{tmp+p}, v{tmp+p}")
        e("s_nop 0")
        for p in range(0, n, 2): e(pk("v_pk_mul_f32", u+p, [('p', u+p), ('p', tmp+p)]))
    for p in range(n//2): e(f"v_cvt_pk_bf16_f32 v{dst[p] if dst else g+p}, v{u+2*p}, v{u+2*p+1}")

def cs_read(d, slot_off):
    for q in range(4): e(f"ds_read_b128 {vr(d+4*q,4)}, v{vT3} offset:{slot_off+32*q}")

def lin_fold(acc, cs, negm, scale, n=16):
    for p in range(0, n, 2):
        e(pk("v_pk_fma_f32", acc+p, [('b', negm), ('p', cs+p), ('p', acc+p)]))
    for p in range(0, n, 2):
        e(pk("v_pk_mul_f32", acc+p, [('p', acc+p), ('b', scale)]))

def q_epilogue(cs):
    e(f"v_mul_f32 v{vSt+2}, {f2u(0.25*1.4426950408889634):#x}, v{vSt+1}")
    lin_fold(vAcc, cs, vSt+4, vSt+2)
    for p in range(8): e(f"v_cvt_pk_bf16_f32 v{vAcc+p}, v{vAcc+2*p}, v{vAcc+2*p+1}")
    e(f"""s_lshl_b32 s{sT0}, s{sW4}, 11
    s_add_u32 s{sT0}, s{sT0}, {QIMG}
    v_lshl_add_u32 v{vT0}, v{vLane}, 4, s{sT0}
    ds_write_b128 v{vT0}, {vr(vAcc,4)}
    ds_write_b128 v{vT0}, {vr(vAcc+4,4)} offset:1024""")


def rowstat_finish(vRs=vRs):
    a = vRs+8
    e(f"v_mov_b32 v{vT0}, 0x3f803f80")
    for k in range(4):
        for r in range(2):
            x = vRs+4*r+k
            c0 = "0" if k == 0 else f"v{a+2*r}"; c1 = "0" if k == 0 else f"v{a+2*r+1}"
            e(f"v_dot2_f32_bf16 v{a+2*r}, v{x}, v{vT0}, {c0}\nv_dot2_f32_bf16 v{a+2*r+1}, v{x}, v{x}, {c1}")
    e("s_nop 2")
    for ctl in ("row_shr:1", "row_shr:2", "row_shr:4", "row_shr:8"):
        for k in range(4): e(f"v_add_f32_dpp v{a+k}, v{a+k}, v{a+k} {ctl} row_mask:0xf bank_mask:0xf bound_ctrl:0")
    for ctl in ("row_bcast:15 row_mask:0xa", "row_bcast:31 row_mask:0xc"):
        for k in range(4): e(f"v_add_f32_dpp v{a+k}, v{a+k}, v{a+k} {ctl} bank_mask:0xf")
    for r in range(2):
        d = vRs+4*r
        e(f"""v_mul_f32 v{d}, {f2u(1/512):#x}, v{a+2*r}
        v_mul_f32 v{d+1}, {f2u(1/512):#x}, v{a+2*r+1}
        v_fma_f32 v{d+1}, -v{d}, v{d}, v{d+1}
        v_max_f32 v{d+1}, 0, v{d+1}
        v_add_f32 v{d+1}, {f2u(1e-5):#x}, v{d+1}
        v_rsq_f32 v{d+1}, v{d+1}""")
def rowstat_post(vRs=vRs, off=0):
    e(f"""s_lshl_b32 s{sT0}, s{sW4}, 4
    s_add_u32 s{sT0}, s{sT0}, {STL+off}
    v_mov_b32 v{vT0}, s{sT0}
    s_mov_b32 exec_lo, 0
    s_brev_b32 exec_hi, 1
    ds_write_b64 v{vT0}, {vr(vRs,2)}
    ds_write_b64 v{vT0}, {vr(vRs+4,2)} offset:8
    s_mov_b64 exec, -1""")
def kv_dma(tag):
    e(f"s_mul_i32 s{sT1}, s{sW4}, 3072")
    for n in range(3):
        e(f"s_add_u32 s{sT0}, s{sT1}, {12288*n}\ns_mov_b32 m0, s{sT0}\ns_nop 0")
        for k in range(3): e(f"buffer_load_dwordx4 v{vL16}, {sr(SWS,4)}, s{sT0} offen offset:{1024*k} sc1 lds")
def tr_lane(rowmul, d):
    e(f"""v_lshrrev_b32 v{vT0}, 4, v{vLane}
    v_bfe_u32 v{vT1}, v{vLane}, 2, 2
    v_lshl_add_u32 v{vT0}, v{vT0}, 3, v{vT1}
    v_mul_u32_u24 v{vT0}, {rowmul}, v{vT0}
    v_bfe_u32 v{vT1}, v{vLane}, 4, 1
    v_lshl_add_u32 v{vT0}, v{vT1}, 5, v{vT0}
    v_and_b32 v{vT1}, 3, v{vLane}
    v_lshl_add_u32 v{d}, v{vT1}, 3, v{vT0}""")
def ones_col0(d):
    e(f"""v_and_b32 v{vT0}, 15, v{vLane}
    v_cmp_eq_u32 vcc, 0, v{vT0}
    v_mov_b32 v{vT1}, 0x3f803f80
    s_nop 0
    v_cndmask_b32 v{d}, 0, v{vT1}, vcc""")
    for k in range(1, 4): e(f"v_mov_b32 v{d+k}, v{d}")
def rot_delta():
    return f"s_add_u32 s{sRb}, s{sRb}, 1\ns_cmp_eq_u32 s{sRb}, 3\ns_cselect_b32 s{sDl}, s{sC3}, {STG}\ns_cselect_b32 s{sRb}, 0, s{sRb}"
def cs16_write(accs, slot0_sreg, stride):
    e(f"v_add_u32 v{vT0}, s{slot0_sreg}, v{vLane}\ns_mov_b32 exec_lo, 0x00010001\ns_mov_b32 exec_hi, 0x00010001")
    for n, a in enumerate(accs): e(f"ds_write_b128 v{vT0}, {vr(a,4)} offset:{stride*n}")
    e("s_mov_b64 exec, -1")

ROT = int(sys.argv[sys.argv.index("--rot")+1]) if "--rot" in sys.argv else 7
sKs = 84
sM1, sM2, sPub, sCg = 66, 67, 68, 69
C0 = "--c0" in sys.argv
NR = 7 if C0 else 8
def dma_x():
    return [f"s_add_u32 m0, s{sLb}, s{sMx}", f"s_add_u32 s{sT0}, s{sXo}, 16384",
            f"buffer_load_dwordx4 v{vXa0}, {sr(SX,4)}, s{sXo} offen lds",
            f"buffer_load_dwordx4 v{vXa1}, {sr(SX,4)}, s{sXo} offen offset:1024 lds",
            "s_add_u32 m0, m0, 2048", f"s_add_u32 s{sXo}, s{sXo}, 128",
            f"buffer_load_dwordx4 v{vXa0}, {sr(SX,4)}, s{sT0} offen lds",
            f"buffer_load_dwordx4 v{vXa1}, {sr(SX,4)}, s{sT0} offen offset:1024 lds"]
def dma_w():
    r = []
    for k, sd in enumerate((SWG, SWU)):
        r += [f"s_add_u32 m0, s{sLb}, s{sMw}" if k == 0 else f"s_add_u32 m0, m0, {UOFF-GOFF}", "s_nop 0",
              f"buffer_load_dwordx4 v{vWa0}, {sr(sd,4)}, s{sWo} offen lds",
              f"buffer_load_dwordx4 v{vWa1}, {sr(sd,4)}, s{sWo} offen offset:1024 lds",
              f"buffer_load_dwordx4 v{vWa2}, {sr(sd,4)}, s{sWo} offen offset:2048 lds"]
    r += [f"s_add_u32 m0, s{sLb}, s{sMq}", f"s_add_u32 s{sWo}, s{sWo}, {64*2752}",
          f"buffer_load_dwordx4 v{vQa}, {sr(SWQ,4)}, s{sQo} offen lds", f"s_add_u32 s{sQo}, s{sQo}, 65536",
          f"s_add_u32 s{sLb}, s{sLb}, {STG}", f"s_cmp_ge_u32 s{sLb}, {3*STG}", f"s_cselect_b32 s{sLb}, 0, s{sLb}"]
    if ROT:
        r += [f"s_add_u32 s{sKs}, s{sKs}, 1", f"s_cmp_eq_u32 s{sKs}, 8",
              f"s_cselect_b32 s{sT0}, {128*NR}, 0", f"s_cselect_b32 s{sT1}, {64*NR*2752}, 0", f"s_cselect_b32 s{sT2}, {64*NR*1024}, 0",
              f"s_sub_u32 s{sXo}, s{sXo}, s{sT0}", f"s_sub_u32 s{sWo}, s{sWo}, s{sT1}", f"s_sub_u32 s{sQo}, s{sQo}, s{sT2}"]
    return r
e(f"s_mov_b32 s{sLb}, 0\ns_lshl_b32 s{sMx}, s{sW4}, 12")
if ROT and "--rm" in sys.argv: e(f"s_lshl_b32 s{sKs}, s{sI if M48 else sJ}, 1\ns_add_u32 s{sKs}, s{sKs}, s{sJ if M48 else sI}\ns_and_b32 s{sKs}, s{sKs}, {ROT}")
RM = sys.argv[sys.argv.index("--rm")+1] if "--rm" in sys.argv else "a"
if RM == "a":
    e(f"""s_xor_b32 s{sKs}, s{sI}, s{sJ}
    s_and_b32 s{sKs}, s{sKs}, 1
    s_lshl_b32 s{sKs}, s{sKs}, 2
    s_lshr_b32 s{sT0}, s{sI}, 1
    s_xor_b32 s{sT0}, s{sT0}, s{sJ}
    s_lshr_b32 s{sT0}, s{sT0}, 1
    s_and_b32 s{sT0}, s{sT0}, 2
    s_or_b32 s{sKs}, s{sKs}, s{sT0}""")
if RM == "b":
    e(f"""s_add_u32 s{sKs}, s{sI}, s{sJ}
    s_and_b32 s{sKs}, s{sKs}, 3
    s_lshl_b32 s{sKs}, s{sKs}, 1
    s_lshr_b32 s{sT0}, s{sI}, 1
    s_xor_b32 s{sT0}, s{sT0}, s{sJ}
    s_bfe_u32 s{sT0}, s{sT0}, 0x10002
    s_or_b32 s{sKs}, s{sKs}, s{sT0}""")
if RM == "c":
    e(f"""s_lshr_b32 s{sKs}, s{sI}, 3
    s_lshl_b32 s{sKs}, s{sKs}, 2
    s_lshr_b32 s{sT0}, s{sJ}, 2
    s_lshl_b32 s{sT0}, s{sT0}, 1
    s_add_u32 s{sKs}, s{sKs}, s{sT0}
    s_and_b32 s{sKs}, s{sKs}, 7""")
if ROT and C0: e(f"s_cmp_eq_u32 s{sKs}, 7\ns_cselect_b32 s{sKs}, 3, s{sKs}")
def rot_x(): e(f"s_lshl_b32 s{sT0}, s{sKs}, 7\ns_add_u32 s{sXo}, s{sXo}, s{sT0}")
def rot_w(): e(f"s_mul_i32 s{sT0}, s{sKs}, {64*2752}\ns_add_u32 s{sWo}, s{sWo}, s{sT0}\ns_lshl_b32 s{sT0}, s{sKs}, 16\ns_add_u32 s{sQo}, s{sQo}, s{sT0}")
if ROT and not C0: rot_x()
e(f"s_lshl_b32 s{sCg}, s{sJ}, 13\ns_add_u32 s{sCg}, s{sCg}, {CSG}\ns_lshl_b32 s{sC1}, s{sKs}, 10\ns_add_u32 s{sC1}, s{sC1}, s{sCg}")
LZ = "--nolz" not in sys.argv
if LZ: e(f"s_cmp_eq_u32 s{sJ}, 14\ns_cselect_b32 s{sT3}, 8, 0\nv_mov_b32 v{vT3}, 0x40000000")
for k, r in enumerate((vWa0, vWa1, vWa2)):
    e(f"""v_add_u32 v{vT0}, {64*k}, v{vLane}
    v_mul_u32_u24 v{vT1}, 43691, v{vT0}
    v_lshrrev_b32 v{vT1}, 19, v{vT1}
    v_mul_u32_u24 v{vT2}, 12, v{vT1}
    v_sub_u32 v{vT0}, v{vT0}, v{vT2}
    v_lshrrev_b32 v{vT2}, 2, v{vT1}
    v_and_b32 v{vT2}, 2, v{vT2}
    v_xor_b32 v{vT0}, v{vT0}, v{vT2}
    v_mul_u32_u24 v{vT1}, 2752, v{vT1}
    v_lshl_add_u32 v{r}, v{vT0}, 4, v{vT1}""")
    if LZ: e(f"v_cmp_gt_u32 vcc, s{sT3}, v{vT0}")
    if k: e(f"v_subrev_u32 v{r}, {1024*k}, v{r}")
    if LZ: e(f"s_nop 1\nv_cndmask_b32 v{r}, v{r}, v{vT3}, vcc")
e(f"""v_lshrrev_b32 v{vT0}, 2, v{vLane}
v_lshlrev_b32 v{vT0}, 10, v{vT0}
v_and_b32 v{vT1}, 3, v{vLane}
v_lshlrev_b32 v{vT2}, 1, v{vH}
v_xor_b32 v{vT1}, v{vT1}, v{vT2}
v_lshl_add_u32 v{vQa}, v{vT1}, 4, v{vT0}
s_mul_i32 s{sT0}, s{sJ}, 96
s_min_u32 s{sT0}, s{sT0}, 1280
s_lshl_b32 s{sT0}, s{sT0}, 1
s_mul_i32 s{sWo}, s{sW4}, {16*2752}
s_add_u32 s{sWo}, s{sWo}, s{sT0}
s_lshl_b32 s{sQo}, s{sW4}, 14
s_lshl_b32 s{sT0}, s{sJ}, 6
s_add_u32 s{sQo}, s{sQo}, s{sT0}
s_mul_i32 s{sMw}, s{sW4}, 3072
s_add_u32 s{sMw}, s{sMw}, {GOFF}
s_lshl_b32 s{sMq}, s{sW4}, 10
s_add_u32 s{sMq}, s{sMq}, {QOFF}""")
if ROT and not C0: rot_w()
if "--noded" not in sys.argv:
    e(f"""s_lshl_b32 s{sT0}, s{sW4}, 15
    s_sub_u32 s{sXo}, s{sXo}, s{sT0}
    s_sub_u32 s{sT3}, 4, s{sW4}
    s_mul_i32 s{sT0}, s{sT3}, {16*2752}
    s_sub_u32 s{sWo}, s{sWo}, s{sT0}
    s_lshl_b32 s{sT0}, s{sT3}, 14
    s_sub_u32 s{sQo}, s{sQo}, s{sT0}
    s_mul_i32 s{sT0}, s{sT3}, 3072
    s_sub_u32 s{sMw}, s{sMw}, s{sT0}
    s_lshl_b32 s{sT0}, s{sT3}, 10
    s_sub_u32 s{sMq}, s{sMq}, s{sT0}
    s_add_u32 s{sMx}, s{sMq}, 1024""")
if JX:
    e(f"""s_memrealtime s[{sTm}:{sTm+1}]
    s_or_b32 s{sT0}, s2, s{sW}
    s_cmp_lg_u32 s{sT0}, 0
    s_waitcnt lgkmcnt(0)
    s_cbranch_scc1 Lnotag2
    s_or_b32 s{sTm}, s{sTm}, 1
    v_mov_b32 v{vPoll}, s{sTm}
    v_mov_b32 v{vPoll+1}, s{sTm+1}
    s_mov_b64 exec, 1
    buffer_store_dwordx2 {vr(vPoll,2)}, off, {sr(SDBG,4)}, 0 sc1
    s_mov_b64 exec, -1
    Lnotag2:""")
else: e("s_waitcnt lgkmcnt(0)")
DED = "--noded" not in sys.argv
hF = 30
hW = 32
TG = True
def adv():
    return [f"s_add_u32 s{sLb}, s{sLb}, {STG}", f"s_cmp_ge_u32 s{sLb}, {3*STG}", f"s_cselect_b32 s{sLb}, 0, s{sLb}",
            f"s_add_u32 s{sKs}, s{sKs}, 1", f"s_cmp_eq_u32 s{sKs}, 8"]
def ded_x():
    r = []
    for k in range(8):
        r += [f"s_add_u32 m0, s{sLb}, {2048*k}", f"s_add_u32 s{sT0}, s{sXo}, {16384*k}",
              f"buffer_load_dwordx4 v{vXa0}, {sr(SX,4)}, s{sT0} offen lds",
              f"buffer_load_dwordx4 v{vXa1}, {sr(SX,4)}, s{sT0} offen offset:1024 lds"]
    return r + adv() + [f"s_cselect_b32 s{sT0}, 1024, 0", f"s_add_u32 s{sXo}, s{sXo}, 128", f"s_sub_u32 s{sXo}, s{sXo}, s{sT0}"]
def ded_w():
    r = [f"s_add_u32 s{sT1}, s{sLb}, s{sMw}", f"s_add_u32 s{sT2}, s{sWo}, {16*2752}"]
    for hf in range(2):
        for k, sd in enumerate((SWG, SWU)):
            so = sWo if hf == 0 else sT2
            r += [f"s_add_u32 m0, s{sT1}, {3072*hf+(UOFF-GOFF)*k}", "s_nop 0",
                  f"buffer_load_dwordx4 v{vWa0}, {sr(sd,4)}, s{so} offen lds",
                  f"buffer_load_dwordx4 v{vWa1}, {sr(sd,4)}, s{so} offen offset:1024 lds",
                  f"buffer_load_dwordx4 v{vWa2}, {sr(sd,4)}, s{so} offen offset:2048 lds"]
        r += [f"s_add_u32 m0, s{sLb}, s{sMq}" if hf == 0 else f"s_add_u32 m0, s{sLb}, s{sMx}", f"s_add_u32 s{sT0}, s{sQo}, {16384*hf}",
              f"buffer_load_dwordx4 v{vQa}, {sr(SWQ,4)}, s{sT0} offen lds"]
    return r + adv() + [f"s_cselect_b32 s{sT1}, {512*2752}, 0", f"s_cselect_b32 s{sT2}, {512*1024}, 0",
                        f"s_add_u32 s{sWo}, s{sWo}, {64*2752}", f"s_add_u32 s{sQo}, s{sQo}, 65536",
                        f"s_sub_u32 s{sWo}, s{sWo}, s{sT1}", f"s_sub_u32 s{sQo}, s{sQo}, s{sT2}"]
def h_common():
    late_srd(LS_A)
    e(f"""s_lshl_b32 s{sT0}, s{sW4}, 2
    s_add_u32 s{sT0}, s{sT0}, {KFL}
    v_mov_b32 v{hF}, s{sT0}
    v_mov_b32 v{hF+1}, 0
    v_mov_b32 v{vT0}, {KFL}
    ds_write_b32 v{hF}, v{hF+1}
    ds_write_b32 v{vT0}, v{hF+1} offset:16
    s_mov_b32 s{sSt}, 0""")
def ded_loop(t, dma, n):
    for x in dma() + dma(): e(x)
    h_common()
    e(f"s_waitcnt vmcnt({n}) lgkmcnt(0)\ns_barrier\nLhl{t}:")
    for x in dma(): e(x)
    e(f"s_add_u32 s{sSt}, s{sSt}, 1\ns_waitcnt vmcnt({n})\ns_barrier\ns_cmp_lt_u32 s{sSt}, 6\ns_cbranch_scc1 Lhl{t}\ns_branch Lh6")
if DED:
    entry_stamp()
    e(f"s_cmp_lt_u32 s{sW}, 2\ns_cbranch_scc1 Lhx")
    ded_loop("w", ded_w, 14)
    e(f"Lhx:\ns_cmp_eq_u32 s{sW}, 0\ns_cbranch_scc1 Lh0")
    ded_loop("x", ded_x, 16)
    e("Lh0:")
    e(tag_issue())
    h_common()
    e(f"s_waitcnt lgkmcnt(0)\ns_barrier")
    stamp(12)
    e(f"v_lshlrev_b32 v{vT0}, 3, v{vLane}\nv_add_u32 v{vT0}, {STL}, v{vT0}\nds_read_b64 {vr(hW,2)}, v{vT0}")
    tag_wait("p", 0, True)
    e(f"""v_mov_b32 v{hW+2}, s{sNo}
    v_mov_b32 v{hW+3}, s{sNo+1}
    s_lshl_b32 s{sT0}, s{sRow}, 5
    s_add_u32 s{sT0}, s{sT0}, {STATG}
    s_cmp_eq_u32 s{sJ}, 14
    s_mov_b32 exec_hi, 0
    s_mov_b32 exec_lo, 0xff
    s_cselect_b32 exec_lo, 0xffff, exec_lo
    s_waitcnt lgkmcnt(0)
    buffer_store_dwordx4 {vr(hW,4)}, v{vL16}, {sr(SWS,4)}, s{sT0} offen sc1
    s_mov_b64 exec, -1
    s_barrier
    s_barrier
    s_barrier
    s_and_b32 s{sT0}, s{sI}, 6
    s_cmp_lg_u32 s{sT0}, 0
    s_cbranch_scc1 Lnpc
    ds_read_b64 {vr(hW+8,2)}, v{vT0}
    ds_read_b64 {vr(hW+4,2)}, v{vT0} offset:512
    v_mov_b32 v{hW+10}, s{sNo}
    v_mov_b32 v{hW+11}, s{sNo+1}
    v_mov_b32 v{hW+6}, s{sNo}
    v_mov_b32 v{hW+7}, s{sNo+1}
    s_waitcnt lgkmcnt(0)
    buffer_store_dwordx4 {vr(hW+8,4)}, v{vL16}, {sr(SWS,4)}, s{sC1} offen sc1
    buffer_store_dwordx4 {vr(hW+4,4)}, v{vL16}, {sr(SWS,4)}, s{sC1} offen offset:1024 sc1
    Lnpc:
    s_barrier
    s_barrier
    s_barrier
    Lh6:""")
else:
    entry_stamp()
    for x in dma_x(): e(x)
    w0 = dma_w()
    if ROT and C0:
        k = w0.index(f"s_add_u32 s{sKs}, s{sKs}, 1")
        for x in w0[:k]: e(x)
        rot_x(); rot_w(); e(w0[k])
    else:
        for x in w0: e(x)
    for x in dma_x() + dma_w(): e(x)
    TG = "--oldtag" not in sys.argv
    if TG:
        e(f"""s_and_b32 s{sT0}, s{sI}, 6
        s_or_b32 s{sT0}, s{sT0}, s{sW}
        s_cmp_eq_u32 s{sT0}, 0
        s_cselect_b32 s{sPub}, 3, 99
        v_mov_b64 {vr(vPoll,2)}, 0
        s_cmp_eq_u32 s{sW}, 0
        s_cbranch_scc0 Lnt0""")
        e(tag_issue())
        e("Lnt0:")
    else: e(tag_issue())
    late_srd(LS_A)
    hF = 30
    e(f"""s_lshl_b32 s{sT0}, s{sW4}, 2
    s_add_u32 s{sT0}, s{sT0}, {KFL}
    v_mov_b32 v{hF}, s{sT0}
    v_mov_b32 v{hF+1}, 0
    v_mov_b32 v{vT0}, {KFL}
    ds_write_b32 v{hF}, v{hF+1}
    ds_write_b32 v{vT0}, v{hF+1} offset:16""")
    hW = 32
    e(f"s_mov_b32 s{sSt}, 0\ns_mov_b32 s{sRb}, 0\ns_mov_b32 s{sC3}, {(-2*STG) & 0xffffffff}")
    if "--hp3" in sys.argv: e("s_setprio 3")
    tstamp(21)
    e("s_waitcnt vmcnt(11) lgkmcnt(0)")
    tstamp(23); e("s_barrier")
    stamp(12); tflush(); TS.clear()
    W11 = "s_waitcnt vmcnt(11)" if "--unsafeH" not in sys.argv else f"s_waitcnt vmcnt(13)\ns_cmp_eq_u32 s{sW}, 0\ns_cbranch_scc1 Lw12\ns_waitcnt vmcnt(11)\nLw12:"
    def helper_loop(cs):
        t = "c" if cs else "n"
        e(f"Lhl{t}:")
        if cs:
            rd, m = cs_parts()
            for x in rd: e(x)
            e(rot_delta())
            for x in dma_x(): e(x)
            e(f"v_add_u32 v{hA}, s{sDl}, v{hA}\nv_add_u32 v{hA+1}, s{sDl}, v{hA+1}\ns_waitcnt lgkmcnt(0)")
            w = dma_w(); k = 0
            for x in w:
                e(x)
                if "buffer_load" in x: e(m[k]); k += 1
            for x in m[k:]: e(x)
        else:
            for x in dma_x() + dma_w():
                if "--nodma" in sys.argv and "buffer_load" in x: continue
                e(x)
                if "--pace" in sys.argv and "buffer_load" in x: e("s_sleep 1")
            e(f"s_or_b32 s{sT0}, s{sSt}, s{sW}\ns_cmp_lg_u32 s{sT0}, 0\ns_cbranch_scc1 Lnpub")
            e(f"v_lshlrev_b32 v{vT0}, 3, v{vLane}\nv_add_u32 v{vT0}, {STL}, v{vT0}\nds_read_b64 {vr(hW,2)}, v{vT0}")
            tag_wait("p", 11, True)
            e(f"""v_mov_b32 v{hW+2}, s{sNo}
            v_mov_b32 v{hW+3}, s{sNo+1}
            s_lshl_b32 s{sT0}, s{sRow}, 5
            s_add_u32 s{sT0}, s{sT0}, {STATG}
            s_cmp_eq_u32 s{sJ}, 14
            s_mov_b32 exec_hi, 0
            s_mov_b32 exec_lo, 0xff
            s_cselect_b32 exec_lo, 0xffff, exec_lo
            s_waitcnt lgkmcnt(0)
            buffer_store_dwordx4 {vr(hW,4)}, v{vL16}, {sr(SWS,4)}, s{sT0} offen sc1
            s_mov_b64 exec, -1
            Lnpub:
            s_cmp_lg_u32 s{sSt}, s{sPub}
            s_cbranch_scc1 Lnpc
            v_lshlrev_b32 v{vT0}, 3, v{vLane}
            v_add_u32 v{vT0}, {CSUM}, v{vT0}
            ds_read_b64 {vr(hW,2)}, v{vT0}
            ds_read_b64 {vr(hW+4,2)}, v{vT0} offset:512
            v_mov_b32 v{hW+2}, s{sNo}
            v_mov_b32 v{hW+3}, s{sNo+1}
            v_mov_b32 v{hW+6}, s{sNo}
            v_mov_b32 v{hW+7}, s{sNo+1}
            s_waitcnt lgkmcnt(0)
            buffer_store_dwordx4 {vr(hW,4)}, v{vL16}, {sr(SWS,4)}, s{sC1} offen sc1
            buffer_store_dwordx4 {vr(hW+4,4)}, v{vL16}, {sr(SWS,4)}, s{sC1} offen offset:1024 sc1
            Lnpc:""")
            if not FS:
                e(f"s_cmp_lg_u32 s{sSt}, 2\ns_cbranch_scc1 Lnini")
                a_sent()
                e("Lnini:")
        e(f"""s_add_u32 s{sSt}, s{sSt}, 1
        {W11}
        s_barrier
        {tk(81)}
        s_cmp_lt_u32 s{sSt}, 6
        s_cbranch_scc1 Lhl{t}""")
    helper_loop(False)
tkout()
def st_loads():
    return f"""buffer_load_dwordx4 {vr(hW,4)}, v{vL16}, {sr(SWS,4)}, s{sC0} offen sc1
    buffer_load_dwordx4 {vr(hW+4,4)}, v{vL16}, {sr(SWS,4)}, s{sC0} offen offset:1024 sc1"""
e(f"s_lshl_b32 s{sC0}, s{sI}, 11\ns_add_u32 s{sC0}, s{sC0}, {STATG}\ns_mov_b32 s{sKf}, {KFLG}\nv_mov_b32 v{hF+1}, 1")
if TG: e(tag_issue())
e(f"s_cmp_lg_u32 s{sW}, 1\ns_cbranch_scc1 Lhn0\n{st_loads()}\nLhn0:")
if FS: a_sent()
a_addr(); fin_init()
tag_wait("h", 0)
e(f"""s_cmp_lg_u32 s{sW}, 1
s_cbranch_scc1 Lhns
s_mov_b32 s{sT0}, 0
s_branch Lhs1
Lhs:
{st_loads()}
s_waitcnt vmcnt(0)
Lhs1:
s_add_u32 s{sT0}, s{sT0}, 1
v_cmp_ne_u64 vcc, s[{sNo}:{sNo+1}], {vr(hW+2,2)}
v_cmp_ne_u64 s[{sEx}:{sEx+1}], s[{sNo}:{sNo+1}], {vr(hW+6,2)}
s_or_b64 vcc, vcc, s[{sEx}:{sEx+1}]
s_cmp_ge_u32 s{sT0}, 100000
s_cbranch_scc1 Lhns
s_cbranch_vccnz Lhs
Lhns:""")
LATEP = "--earlyp" not in sys.argv
def cs_loads():
    return "\n".join(f"buffer_load_dwordx4 {vr(hW+4*c,4)}, v{vL16}, {sr(SWS,4)}, s{sCg if c < 2 else sC1} offen offset:{2048*(c & 1)} sc1" for c in range(4))
e(f"""s_cmp_lt_u32 s{sW}, 2
s_cbranch_scc1 Lhc0
s_and_b32 s{sT0}, s{sW}, 1
s_lshl_b32 s{sT0}, s{sT0}, 10
s_add_u32 s{sCg}, s{sCg}, s{sT0}
s_add_u32 s{sC1}, s{sCg}, 4096
{cs_loads()}
Lhc0:""")
if not LATEP: e(flags_issue(sKf))
e(f"s_mov_b32 s{sSt}, 1\ns_barrier")
if LATEP: e(flags_issue(sKf))
def kv_try(tag):
    e(f"""s_cmp_eq_u32 s{sSt}, 0
    s_cbranch_scc1 Lkt2_{tag}
    s_waitcnt vmcnt(0)
    v_cmp_ne_u64 vcc, s[{sNo}:{sNo+1}], {vr(vPoll,2)}
    s_cbranch_vccnz Lkt1_{tag}""")
    kv_dma(tag)
    e(f"v_mov_b32 v{vT0}, {KFL}\nds_write_b32 v{vT0}, v{hF+1} offset:16\ns_mov_b32 s{sSt}, 0\ns_branch Lkt2_{tag}\nLkt1_{tag}:")
    e(flags_issue(sKf))
    e(f"Lkt2_{tag}:")
e(f"s_cmp_lg_u32 s{sW}, 1\ns_cbranch_scc1 Lhnc")
gelu_consts(hW, hW+1, hW+8); gelu_consts(hW+4, hW+5, hW+12)
e(f"""v_add_u32 v{vT0}, {STATM}, v{vL16}
ds_write_b128 v{vT0}, {vr(hW+8,4)}
ds_write_b128 v{vT0}, {vr(hW+12,4)} offset:1024
Lhnc:""")
kv_try("a")
e(f"""s_cmp_lt_u32 s{sW}, 2
s_cbranch_scc1 Lhc3
s_mov_b32 s{sT0}, 0
s_branch Lhc2
Lhc1:
s_sleep 2
{cs_loads()}
s_waitcnt vmcnt(0)
Lhc2:
s_add_u32 s{sT0}, s{sT0}, 1
v_cmp_ne_u64 vcc, s[{sNo}:{sNo+1}], {vr(hW+2,2)}
v_cmp_ne_u64 s[{sEx}:{sEx+1}], s[{sNo}:{sNo+1}], {vr(hW+6,2)}
s_or_b64 vcc, vcc, s[{sEx}:{sEx+1}]
v_cmp_ne_u64 s[{sEx}:{sEx+1}], s[{sNo}:{sNo+1}], {vr(hW+10,2)}
s_or_b64 vcc, vcc, s[{sEx}:{sEx+1}]
v_cmp_ne_u64 s[{sEx}:{sEx+1}], s[{sNo}:{sNo+1}], {vr(hW+14,2)}
s_or_b64 vcc, vcc, s[{sEx}:{sEx+1}]
s_cmp_ge_u32 s{sT0}, 100000
s_cbranch_scc1 Lhc4
s_cbranch_vccnz Lhc1
Lhc4:
v_add_f32 v{hW}, v{hW}, v{hW+4}
v_add_f32 v{hW+1}, v{hW+1}, v{hW+5}
v_add_f32 v{hW+8}, v{hW+8}, v{hW+12}
v_add_f32 v{hW+9}, v{hW+9}, v{hW+13}
s_and_b32 s{sT0}, s{sW}, 1
s_lshl_b32 s{sT0}, s{sT0}, 9
s_add_u32 s{sT0}, s{sT0}, {CSUM}
v_lshl_add_u32 v{vT0}, v{vLane}, 3, s{sT0}
v_add_f32 v{hW}, v{hW}, v{hW+8}
v_add_f32 v{hW+1}, v{hW+1}, v{hW+9}
v_cmp_gt_u32 vcc, {CSUM+896}, v{vT0}
s_and_saveexec_b64 s[{sEx}:{sEx+1}], vcc
ds_write_b64 v{vT0}, {vr(hW,2)}
s_mov_b64 exec, -1
Lhc3:""")
e("s_waitcnt lgkmcnt(0)\ns_barrier")
if not LATEP and "--tryb" in sys.argv: kv_try("b")
stamp(1)
e("s_waitcnt lgkmcnt(0)\ns_barrier\ns_branch Lp2")

cX = [8, 24]; cW = 40; cRX, cRW, cRQ = 68, 70, 72; cCs = 76; cO = 92; cA = 96
e("Lcomp:")
entry_stamp(True)
late_srd(LS_F)
e(f"""v_and_b32 v{vT0}, 15, v{vLane}
v_lshrrev_b32 v{vT1}, 1, v{vT0}
v_lshrrev_b32 v{vT2}, 4, v{vLane}
v_xor_b32 v{vT1}, v{vT1}, v{vT2}
v_lshlrev_b32 v{vT0}, 7, v{vT0}
s_and_b32 s{sT0}, s{sW}, 1
s_lshl_b32 s{sT0}, s{sT0}, 13
v_add_u32 v{vT0}, s{sT0}, v{vT0}
v_lshl_add_u32 v{cRX}, v{vT1}, 4, v{vT0}
v_xor_b32 v{cRX+1}, 64, v{cRX}""")
tr_lane(192, cRW)
e(f"""s_lshl_b32 s{sT1}, s{sW}, 4
s_and_b32 s{sT1}, s{sT1}, 32
v_xor_b32 v{cRW}, s{sT1}, v{cRW}
v_xor_b32 v{cRW+1}, 32, v{cRW}
s_lshl_b32 s{sT2}, s{sT1}, 1
v_add_u32 v{cRW}, s{sT2}, v{cRW}
s_lshl_b32 s{sT2}, s{sT1}, 2
v_add_u32 v{cRW+1}, s{sT2}, v{cRW+1}""")
tr_lane(64, cRQ); e(f"v_xor_b32 v{cRQ}, s{sT1}, v{cRQ}")
ones_col0(cO)
cEh, cEs, cEq = 73, 74, 75
cEc, cEw, cEh2 = 212, 213, 214
e(f"""s_bfe_u32 s{sT2}, s{sW}, 0x10001
s_mul_i32 s{sT2}, s{sT2}, 448
s_add_u32 s{sT2}, s{sT2}, {CSUM}
s_and_b32 s{sT1}, s{sW}, 1
s_lshl_b32 s{sT1}, s{sT1}, 6
s_add_u32 s{sT1}, s{sT2}, s{sT1}
v_and_b32 v{cEc}, 48, v{vLane}
v_add_u32 v{cEc}, s{sT2}, v{cEc}
v_add_u32 v{cEw}, s{sT1}, v{vLane}""")
e(f"""s_lshl_b32 s{sT0}, s{sI}, 2
s_and_b32 s{sT1}, s{sW}, 1
s_lshl_b32 s{sT1}, s{sT1}, 1
s_add_u32 s{sT0}, s{sT0}, s{sT1}
s_mul_i32 s{sT0}, s{sT0}, 88
s_mul_i32 s{sT1}, s{sJ}, 6
s_min_u32 s{sT1}, s{sT1}, 80
s_bfe_u32 s{sT2}, s{sW}, 0x10001
s_mul_i32 s{sT2}, s{sT2}, 3
s_add_u32 s{sT1}, s{sT1}, s{sT2}
s_and_b32 s{sT2}, s{sW}, 2""")
for add, dst in enumerate((sC0, sC1, sC2)):
    e(f"""s_add_u32 s{sT3}, s{sT1}, {add}
    s_lshr_b32 s{dst}, s{sT3}, 2
    s_add_u32 s{dst}, s{dst}, s{sT0}
    s_and_b32 s{sT3}, s{sT3}, 3
    s_mul_i32 s{sT3}, s{sT3}, 22
    s_add_u32 s{dst}, s{dst}, s{sT3}
    s_lshl_b32 s{dst}, s{dst}, 10
    s_add_u32 s{dst}, s{dst}, {HIMG}""")
    if LZ: e(f"""s_mul_i32 s{sT3}, s{sJ}, 6
    s_sub_u32 s{sT3}, s{sT3}, {add}
    s_cmp_lt_i32 s{sT1}, s{sT3}
    s_cselect_b32 s{dst}, {PROFO+262144}, s{dst}""")
e(f"""v_bfe_u32 v{vT0}, v{vLane}, 4, 1
v_lshlrev_b32 v{vT0}, 9, v{vT0}
v_and_b32 v{vT1}, 15, v{vLane}
v_lshl_add_u32 v{vT0}, v{vT1}, 4, v{vT0}
v_lshl_add_u32 v{cEh}, v{vH}, 8, v{vT0}
v_add_u32 v{cEh2}, {88*1024}, v{cEh}
s_and_b32 s{sT0}, s{sW}, 1
s_lshl_b32 s{sT1}, s{sT0}, 10
s_add_u32 s{sT1}, s{sT1}, {STATM}
v_lshl_add_u32 v{cEs}, v{vT1}, 4, s{sT1}
s_lshl_b32 s{sT0}, s{sT0}, 12
s_lshl_b32 s{sT2}, s{sT2}, 9
s_add_u32 s{sT0}, s{sT0}, s{sT2}
s_add_u32 s{sT0}, s{sT0}, {QIMG}
v_lshl_add_u32 v{vT0}, v{vH}, 3, v{vT0}
v_add_u32 v{cEq}, s{sT0}, v{vT0}""")
f_init()
for r in list(range(cCs, cCs+16, 2)) + [r for r in range(cA, cA+112, 2) if not vRs <= r < vRs+16]: e(f"v_mov_b64 {vr(r,2)}, 0")
tstamp(13)
e("s_waitcnt vmcnt(0)")
tstamp(21)
rowstat_finish()
rowstat_post()
e(f"s_cmp_lg_u32 s{sJ}, 14\ns_cbranch_scc1 Lnr2")
rowstat_finish(vRs2); rowstat_post(vRs2, 64)
e("Lnr2:")
tstamp(23)
if "--touch" in sys.argv:
    e(f"""s_and_b32 s{sT2}, s{sI}, 7
    s_mul_i32 s{sT2}, s{sT2}, 48
    s_add_u32 s{sT2}, s{sT2}, 128
    s_cmp_ge_u32 s{sW}, 6
    s_cbranch_scc1 Ltc6
    v_lshrrev_b32 v{vT0}, 1, v{vLane}
    v_mul_u32_u24 v{vT0}, 2752, v{vT0}
    v_and_b32 v{vT1}, 1, v{vLane}
    v_lshl_add_u32 v{vT0}, v{vT1}, 7, v{vT0}
    s_mul_i32 s{sT0}, s{sJ}, 96
    s_min_u32 s{sT0}, s{sT0}, 1280
    s_lshl_b32 s{sT0}, s{sT0}, 1
    s_mul_i32 s{sT2}, s{sT2}, 2752
    s_add_u32 s{sT0}, s{sT0}, s{sT2}
    s_add_u32 s{sT1}, s{sT0}, {32*2752}
    s_cmp_eq_u32 s{sW}, 5
    s_cbranch_scc1 Ltc5
    buffer_load_dword v79, v{vT0}, {sr(SWG,4)}, s{sT0} offen
    s_mov_b32 exec_hi, 0
    buffer_load_dword v79, v{vT0}, {sr(SWG,4)}, s{sT1} offen
    s_branch Ltce
    Ltc5:
    buffer_load_dword v79, v{vT0}, {sr(SWU,4)}, s{sT0} offen
    s_mov_b32 exec_hi, 0
    buffer_load_dword v79, v{vT0}, {sr(SWU,4)}, s{sT1} offen
    s_branch Ltce
    Ltc6:
    s_cmp_eq_u32 s{sW}, 7
    s_cbranch_scc1 Ltc7
    v_lshrrev_b32 v{vT0}, 1, v{vLane}
    v_lshlrev_b32 v{vT0}, 10, v{vT0}
    v_and_b32 v{vT1}, 1, v{vLane}
    v_lshl_add_u32 v{vT0}, v{vT1}, 7, v{vT0}
    s_lshl_b32 s{sT0}, s{sI}, 17
    s_and_b32 s{sT1}, s{sJ}, 3
    s_lshl_b32 s{sT1}, s{sT1}, 15
    s_add_u32 s{sT0}, s{sT0}, s{sT1}
    buffer_load_dword v79, v{vT0}, {sr(SX,4)}, s{sT0} offen offset:256
    buffer_load_dword v79, v{vT0}, {sr(SX,4)}, s{sT0} offen offset:512
    buffer_load_dword v79, v{vT0}, {sr(SX,4)}, s{sT0} offen offset:768
    s_branch Ltce
    Ltc7:
    v_lshlrev_b32 v{vT0}, 10, v{vLane}
    s_lshl_b32 s{sT2}, s{sT2}, 10
    s_lshl_b32 s{sT0}, s{sJ}, 6
    s_add_u32 s{sT0}, s{sT0}, s{sT2}
    s_mov_b32 exec_hi, 0xffff
    buffer_load_dword v79, v{vT0}, {sr(SWQ,4)}, s{sT0} offen
    Ltce:
    s_mov_b64 exec, -1""")
e("s_nop 1")
for r in range(vRs, vRs+16, 2): e(f"v_mov_b64 {vr(r,2)}, 0")
e(f"s_mov_b32 s{sSt}, 0\ns_mov_b32 s{sRb}, 0\ns_mov_b32 s{sC3}, {(-2*STG) & 0xffffffff}\ns_setprio 2")
NF = 7
def comp_loop(var):
    tag = f"{var}"
    def wrd(n, k2):
        if n == 0: a, o, rs = cRQ, QOFF, 64
        else:
            t = (n-1) % 3
            a, o, rs = cRW+(t & 1), (GOFF if n < 4 else UOFF) + (t >> 1)*64, 192
        return tr(cW+4*n, a, o+32*k2*rs) + tr(cW+4*n+2, a, o+(32*k2+4)*rs)
    def xrd(k2): return [f"ds_read_b128 {vr(cX[k2]+4*u,4)}, v{cRX+k2} offset:{2048*u}" for u in range(4)]
    def mm(n, k2):
        r = [mfma16(cA+28*u+4*n, cW+4*n, cX[k2]+4*u) for u in range(4)]
        if var < 2 and (n & 1) == var: r.append(mfma16(cCs+4*(n >> 1), cW+4*n, cO))
        return r
    if var == 0:
        e("s_waitcnt lgkmcnt(0)\ns_barrier")
        for x in xrd(0) + sum([wrd(n, 0) for n in range(NF)], []): e(x)
        e(f"s_and_b32 s{sT0}, s{sI}, 6\ns_cmp_lg_u32 s{sT0}, 0\ns_waitcnt lgkmcnt(0)\ns_cbranch_scc1 Lc_2\ns_bitcmp1_b32 s{sW}, 0\ns_cbranch_scc1 Lc_1")
    e(f".p2align 3\nLc_{tag}:")
    adr = [f"v_add_u32 v{r}, s{sDl}, v{r}" for r in (cRX, cRX+1, cRW, cRW+1, cRQ)]
    ctl = rot_delta().split("\n") + [f"s_add_u32 s{sSt}, s{sSt}, 1"]
    BARG = 2
    def build(order0):
        out = []; q = []; issued = list(order0)
        def need(tagname):
            idx = max(i for i, t in enumerate(issued) if t == tagname)
            return len(issued)-1-idx
        def push(tagname, lst): q.extend((tagname, x) for x in lst)
        lastN = [99]
        for k2 in range(2):
            if k2 == 0: push("x1", xrd(1))
            for n in range(NF):
                if k2 == 1 and n == BARG:
                    while q:
                        t, x = q.pop(0); out.append(x)
                        if t: issued.append(t)
                    out.append(f"s_waitcnt lgkmcnt(0)\n{tk(None)}\ns_barrier\n{tk(81)}")
                    issued.clear(); issued.extend(["done"])
                    push("x0", xrd(0))
                    for m in range(BARG): push(f"w{m}0", wrd(m, 0))
                reqs = [f"w{n}{k2}"] + ([f"x{k2}"] if n == 0 else [])
                for r in reqs: assert all(t != r for t, _ in q), (r, k2, n)
                ns = [need(r) for r in reqs if r in issued]
                if ns and n % 2 == 0 or ns and min(ns) < lastN[0]:
                    nxt = f"w{n+1}{k2}"
                    if nxt in issued and all(t != nxt for t, _ in q): ns.append(need(nxt))
                    N = min(min(ns), 15); out.append(f"s_waitcnt lgkmcnt({N})"); lastN[0] = N
                for x in mm(n, k2):
                    out.append(x)
                    if q:
                        t, y = q.pop(0); out.append(y)
                        if t: issued.append(t); lastN[0] += 1
                if k2 == 0:
                    push(f"w{n}1", wrd(n, 1))
                    if n == 3: push(None, ctl)
                    if n == NF-1: push(None, adr)
                elif n >= BARG: push(f"w{n}0", wrd(n, 0))
        while q:
            t, x = q.pop(0); out.append(x)
            if t: issued.append(t)
        return out, issued
    _, steady = build([])
    out, _ = build(steady)
    for x in out: e(x)
    e(f"s_cmp_lt_u32 s{sSt}, {2 if var < 2 else 8}\ns_cbranch_scc1 Lc_{tag}")
    if var < 2:
        e(f"s_nop 2\ns_mov_b32 exec_lo, 0x00010001\ns_mov_b32 exec_hi, 0x00010001")
        for k in range(4-var): e(f"ds_write_b128 v{cEw}, {vr(cCs+4*k,4)} offset:{128*k}")
        e("s_mov_b64 exec, -1")
        if var == 0: e("s_branch Lc_2")
    tkout()
eC, eK, eT = 8, 40, 56
comp_loop(0); comp_loop(1); comp_loop(2)
tstamp(1)
for u in range(4): e(f"ds_read_b128 {vr(eK+4*u,4)}, v{cEs} offset:{256*u}")
for n in range(NF): e(f"ds_read_b128 {vr(eC+4*n,4)}, v{cEc} offset:{64*n}")
e("s_waitcnt lgkmcnt(6)")
for u in range(4): e(f"v_mul_f32 v{eT+u}, {f2u(0.25*1.4426950408889634/C1):#x}, v{eK+4*u+1}")
for u in range(4):
    for p in (0, 2): e(pk("v_pk_fma_f32", cA+28*u+p, [('b', eK+4*u), ('p', eC+p), ('p', cA+28*u+p)]))
for u in range(4):
    for p in (0, 2): e(pk("v_pk_mul_f32", cA+28*u+p, [('p', cA+28*u+p), ('b', eT+u)]))
for u in range(4):
    q = cA+28*u
    e(f"v_cvt_pk_bf16_f32 v{q}, v{q}, v{q+1}\nv_cvt_pk_bf16_f32 v{q+1}, v{q+2}, v{q+3}")
for u in range(4): e(f"ds_write_b64 v{cEq}, {vr(cA+28*u,2)} offset:{2048*(u>>1)+256*(u&1)}")
e(f"v_mov_b32 v{vT0}, {KFL}\ns_waitcnt lgkmcnt(0)\ns_barrier")
e(f"ds_read_b32 v{vT1}, v{vT0} offset:16")
ES = "--es" in sys.argv
if ES: a_sent(True)
e(f"s_waitcnt lgkmcnt(0)\nv_cmp_ne_u32 vcc, 0, v{vT1}")
CK = "--nock" not in sys.argv
e(f"s_cmp_eq_u64 vcc, 0\ns_cselect_b32 s{sSt}, 1, 0")
gl0 = len(L)
for u in range(4):
    g = cA+28*u+4; P = cA+28*(u & 2)+4
    gelu_tile(g, g+12, eC+4, eC+16, eK+4*u, eT, 12, [P+4*(p//2)+2*(u & 1)+(p & 1) for p in range(6)])
    if u & 1:
        e("s_nop 0")
        for t in range(3):
            e(f"v_permlane32_swap_b32 v{P+4*t}, v{P+4*t+2}\nv_permlane32_swap_b32 v{P+4*t+1}, v{P+4*t+3}")
        for t, so in enumerate((sC0, sC1, sC2)):
            st = f"buffer_store_dwordx4 {vr(P+4*t,4)}, v{cEh if u == 1 else cEh2}, {sr(SWS,4)}, s{so} offen sc1"
            if LZ: L.append(f"s_cmp_eq_u32 s{so}, {PROFO+262144}\ns_cbranch_scc1 Lns{u}{t}\n{st}\nLns{u}{t}:")
            else: e(st)
    if CK and u < 3: L.append(f"s_cmp_lg_u32 s{sSt}, 0\ns_cbranch_scc1 Lck{u}\nLckr{u}:")
body = L[gl0:]; del L[gl0:]
e(f"s_lshl_b32 s{sT1}, s{sW4}, 12")
items = []
for n in range(12):
    t = f"s_cbranch_vccz Lgk{n}\n"
    if n % 2 == 0: t += f"s_add_u32 s{sT0}, s{sT1}, {36*1024+8192*n}\ns_mov_b32 m0, s{sT0}\ns_nop 0\n"
    for k in range(2): t += f"buffer_load_dwordx4 v{vL16}, {sr(SWS,4)}, s{sT0} offen offset:{1024*(2*(n%2)+k)} sc1 lds\n"
    items.append(t + f"Lgk{n}:")
cut = (len(body)*3)//4
for x in interleave(body[:cut], items) + body[cut:]: e(x)
e(f"""s_cmp_eq_u32 s{sSt}, 0
s_cbranch_scc1 Lgk
s_mov_b32 s{sT0}, 0
s_setprio 0
Lgw:
s_sleep 2
ds_read_b32 v{vT1}, v{vT0} offset:16
s_add_u32 s{sT0}, s{sT0}, 1
s_waitcnt lgkmcnt(0)
v_cmp_ne_u32 vcc, 0, v{vT1}
s_cmp_ge_u32 s{sT0}, 2000000
s_cbranch_scc1 LFkv
s_cbranch_vccz Lgw
s_branch LFkv
Lgk:""")
e(tag_issue())
stamp(2)
tflush(); TS.clear(); rt_out()
e("s_branch LF")
if CK:
    for u in range(3):
        e(f"""Lck{u}:
        ds_read_b32 v{vT1}, v{vT0} offset:16
        s_waitcnt lgkmcnt(0)
        v_readfirstlane_b32 s{sT2}, v{vT1}
        s_cmp_eq_u32 s{sT2}, 0
        s_cbranch_scc1 Lckr{u}
        s_mov_b32 s{sSt}, 0""")
        kv_rest(f"c{u}")
        e(f"s_branch Lckr{u}")

def cs_write(acc, slot_expr_sreg):
    e(f"""v_and_b32 v{vT0}, 1, v{vLane}
    v_lshlrev_b32 v{vT0}, 6, v{vT0}
    v_lshrrev_b32 v{vT1}, 4, v{vLane}
    v_lshl_add_u32 v{vT0}, v{vT1}, 4, v{vT0}
    v_add_u32 v{vT0}, {slot_expr_sreg}, v{vT0}
    s_mov_b32 exec_lo, 0x00030003
    s_mov_b32 exec_hi, 0x00030003
    ds_write_b128 v{vT0}, {vr(acc,4)}
    s_mov_b64 exec, -1
    s_nop 2""")
e("Lkvcu:")
entry_stamp(True)
for x in kvx_dma(1): e(x)
late_srd(LS_A + LS_F)
e(f"""v_and_b32 v{vT0}, 31, v{vLane}
v_lshrrev_b32 v{vT1}, 1, v{vT0}
v_and_b32 v{vT1}, 7, v{vT1}
v_xor_b32 v{vT1}, v{vT1}, v{vH}
v_lshlrev_b32 v{vT0}, 7, v{vT0}
v_add_u32 v{vT0}, s{sXb}, v{vT0}""")
for ks in range(4):
    e(f"v_xor_b32 v{vT2}, {2*ks}, v{vT1}\nv_lshl_add_u32 v{vRX+ks}, v{vT2}, 4, v{vT0}")
e(f"""v_bfe_u32 v{vT0}, v{vLane}, 2, 2
v_lshl_add_u32 v{vT0}, v{vH}, 3, v{vT0}
v_bfe_u32 v{vT1}, v{vLane}, 4, 1
v_and_b32 v{vT2}, 3, v{vLane}
v_lshlrev_b32 v{vT2}, 3, v{vT2}
v_lshl_add_u32 v{vT3}, v{vT1}, 5, v{vT2}
v_lshl_add_u32 v{vRQ}, v{vT0}, 6, v{vT3}
v_lshlrev_b32 v{vT1}, 14, v{vT1}
v_lshl_add_u32 v{vRW}, v{vT0}, 5, v{vT2}
s_lshr_b32 s{sT0}, s{sW}, 2
s_lshl_b32 s{sT0}, s{sT0}, 13
s_add_u32 s{sT1}, s{sT0}, {WKV}
v_add3_u32 v{vRW}, v{vRW}, v{vT1}, s{sT1}
s_add_u32 s{sT1}, s{sT1}, s{sT0}
v_add_u32 v{vRQ}, s{sT1}, v{vRQ}
v_lshrrev_b32 v{vT0}, 2, v{vLane}
v_lshlrev_b32 v{vT0}, 10, v{vT0}
v_and_b32 v{vT1}, 3, v{vLane}
v_lshl_add_u32 v{vQa}, v{vT1}, 4, v{vT0}
v_bfe_u32 v{vT0}, v{vLane}, 4, 1
v_and_b32 v{vT1}, 15, v{vLane}
v_cmp_eq_u32 vcc, v{vT0}, v{vT1}
v_mov_b32 v{vT2}, 0x3f803f80
s_nop 0
v_cndmask_b32 v{vSel}, 0, v{vT2}, vcc""")
for k in range(1, 4): e(f"v_mov_b32 v{vSel+k}, v{vSel}")
for r in range(vCs, vCs+4): e(f"v_mov_b32 v{r}, 0")
e("s_waitcnt vmcnt(4) lgkmcnt(0)\ns_barrier")
tstamp(12)
def kv_reads(c):
    r = []
    for ks in range(4):
        W = vWk + 16*(c & 1) + 4*ks
        r += [f"ds_read_b128 {vr(vXf+16*c+4*ks,4)}, v{vRX+ks} offset:{4096*c}"]
        r += tr(W, vRW, (64*c+16*ks)*32) + tr(W+2, vRW, (64*c+16*ks+4)*32)
    return r
def kstat_issue():
    return f"buffer_load_dwordx4 {vr(vSt,4)}, v{vWa0}, {sr(SWS,4)}, s{sC1} offen sc1"
for x in kv_reads(0) + kvx_dma(2) + kvx_dma(3): e(x)
e(f"""v_and_b32 v{vWa0}, 31, v{vLane}
v_lshlrev_b32 v{vWa0}, 4, v{vWa0}
s_lshl_b32 s{sT0}, s{sI}, 2
s_add_u32 s{sT0}, s{sT0}, s{sW4}
s_mul_i32 s{sC0}, s{sT0}, {KVT}
s_lshl_b32 s{sC1}, s{sT0}, 9
s_add_u32 s{sC1}, s{sC1}, {STATG}""")
if "--kvt" in sys.argv: e(f"s_mov_b32 s{sT0}, {64*KVT+1024}\nbuffer_load_dword v{vSt+8}, off, {sr(SWS,4)}, s{sT0}")
for c in range(4):
    m = []
    for ks in range(4):
        X = vXf+16*c+4*ks; W = vWk + 16*(c & 1) + 4*ks
        z = "0" if c == 0 and ks == 0 else None
        m += [mfma(vAcc+16, W, X, z), mfma16(vCs, W, vSel), mfma(vAcc+32, X, W, z)]
    e("s_waitcnt lgkmcnt(0)")
    if c < 3:
        wt = f"s_waitcnt vmcnt({8-4*c})"
        for x in m[:3] + [wt] + interleave(m[3:9], kv_reads(c+1)) + m[9:]: e(x)
    else:
        e(tag_issue())
        e(kstat_issue())
        for x in m: e(x)
tstamp(1)
e(f"""v_and_b32 v{vT2}, 31, v{vLane}
v_lshlrev_b32 v{vT2}, 2, v{vT2}
s_xor_b32 s{sT2}, s{sXb}, 65536
s_add_u32 s{sT1}, s{sXb}, 4352
s_lshl_b32 s{sQo}, s{sW}, 16
s_add_u32 s{sQo}, s{sQo}, {64*15}
s_lshl_b32 s{sMq}, s{sW}, 12
s_add_u32 s{sMq}, s{sMq}, {WKV}""")
cs_write(vCs, f"s{sT1}")
e(f"""v_add_u32 v{vT0}, s{sXb}, v{vL16}
v_add_u32 v{vWa1}, s{sT2}, v{vL16}
v_add_u32 v{vWa2}, s{sT2}, v{vT2}
v_lshl_add_u32 v{vT3}, v{vH}, 4, s{sXb}
s_cmp_ge_u32 s{sW}, 4
s_cbranch_scc1 LkvH""")
def wq_dma():
    for k in range(4):
        e(f"s_add_u32 m0, s{sMq}, {1024*k}\ns_add_u32 s{sT0}, s{sQo}, {16384*k}\nbuffer_load_dwordx4 v{vQa}, {sr(SWQ,4)}, s{sT0} offen lds")
WQE = "--wqe" in sys.argv
def kstat_wait(tag):
    if WQE: wq_dma()
    if "--dkv3" in sys.argv: e("s_sleep 60")
    tag_wait("k"+tag, 0)
    e(f"""s_mov_b32 s{sT0}, 0
    Lks_{tag}:
    v_cmp_ne_u64 vcc, s[{sNo}:{sNo+1}], {vr(vSt+2,2)}
    s_add_u32 s{sT0}, s{sT0}, 1
    s_cmp_ge_u32 s{sT0}, 100000
    s_cbranch_vccz Lksd_{tag}
    s_cbranch_scc1 Lksd_{tag}
    {kstat_issue()}
    s_waitcnt vmcnt(0)
    s_branch Lks_{tag}
    Lksd_{tag}:""")
for q in range(4): e(f"ds_write_b128 v{vT0}, {vr(vAcc+32+4*q,4)} offset:{1024*q}")
e(f"v_xor_b32 v{vT1}, 0x10000, v{vT3}\ns_waitcnt lgkmcnt(0)\ns_barrier")
e(f"""ds_read_b128 {vr(vWk,4)}, v{vWa1}
ds_read_b128 {vr(vWk+4,4)}, v{vWa1} offset:1024
ds_read_b128 {vr(vSt+12,4)}, v{vT3} offset:{4352+64}
ds_read_b128 {vr(vSt+16,4)}, v{vT3} offset:{4352+96}
ds_read_b128 {vr(vWk+8,4)}, v{vT1} offset:{4352+64}
ds_read_b128 {vr(vWk+12,4)}, v{vT1} offset:{4352+96}
s_nop 2""")
e(f"""v_and_b32 v{vT0}, 0x33, v{vLane}
v_bfe_u32 v{vT1}, v{vLane}, 2, 1
v_lshl_or_b32 v{vT0}, v{vT1}, 3, v{vT0}
v_bfe_u32 v{vT1}, v{vLane}, 3, 1
v_lshl_or_b32 v{vT0}, v{vT1}, 2, v{vT0}
v_lshlrev_b32 v{vT0}, 4, v{vT0}
s_waitcnt lgkmcnt(0)""")
for p in range(0, 8, 2):
    e(pk("v_pk_add_f32", vAcc+24+p, [('p', vAcc+24+p), ('p', vWk+p)]))
    e(pk("v_pk_add_f32", vSt+12+p, [('p', vSt+12+p), ('p', vWk+8+p)]))
kstat_wait("l")
e(f"v_sub_f32 v{vSt+4}, 0, v{vSt}")
lin_fold(vAcc+24, vSt+12, vSt+4, vSt+1, 8)
for p in range(4): e(f"v_cvt_pk_bf16_f32 v{vAcc+16+p}, v{vAcc+24+2*p}, v{vAcc+25+2*p}")
RB = "--rb" in sys.argv
e(f"buffer_store_dwordx4 {vr(vAcc+16,4)}, v{vT0}, {sr(SWS,4)}, s{sC0} offen sc1")
if RB: e(f"s_waitcnt vmcnt(0)\nbuffer_load_dwordx4 {vr(vWk,4)}, v{vT0}, {sr(SWS,4)}, s{sC0} offen sc1")
e("s_branch LkvS")
e("LkvH:")
e(f"ds_write_b128 v{vT0}, {vr(vAcc+24,4)}\nds_write_b128 v{vT0}, {vr(vAcc+28,4)} offset:1024")
e(f"v_add_u32 v{vT1}, s{sXb}, v{vT2}\ns_waitcnt lgkmcnt(0)\ns_barrier")
e(f"ds_read_b32 v{vSt+6}, v{vT1} offset:4352\nds_read_b32 v{vSt+7}, v{vWa2} offset:4352")
for q in range(4): e(f"ds_read_b128 {vr(vAcc+48+4*q,4)}, v{vWa1} offset:{1024*q}")
tstamp(21)
kstat_wait("h")
tstamp(23)
e(f"ds_write_b32 v{vT1}, v{vSt} offset:4608\nds_write_b32 v{vT1}, v{vSt+1} offset:4736\ns_waitcnt lgkmcnt(0)")
for q in range(4):
    e(f"ds_read_b128 {vr(vWk+4*q,4)}, v{vT3} offset:{4608+32*q}\nds_read_b128 {vr(vWk+16+4*q,4)}, v{vT3} offset:{4736+32*q}")
e(f"v_add_f32 v{vSt+6}, v{vSt+6}, v{vSt+7}\nv_sub_f32 v{vSt+6}, 0, v{vSt+6}")
for p in range(0, 16, 2): e(pk("v_pk_add_f32", vAcc+32+p, [('p', vAcc+32+p), ('p', vAcc+48+p)]))
e("s_waitcnt lgkmcnt(0)")
for p in range(0, 16, 2): e(pk("v_pk_fma_f32", vAcc+32+p, [('p', vWk+p), ('b', vSt+6), ('p', vAcc+32+p)]))
for p in range(0, 16, 2): e(pk("v_pk_mul_f32", vAcc+32+p, [('p', vAcc+32+p), ('p', vWk+16+p)]))
for p in range(8): e(f"v_cvt_pk_bf16_f32 v{vAcc+32+p}, v{vAcc+32+2*p}, v{vAcc+33+2*p}")
v_lane_addr(vT0)
for p in range(8): e(f"v_mov_b32 v{vAcc+32+p}, 0x3f803f80")
e(f"""s_mov_b32 exec_lo, 0x1ffff
s_mov_b32 exec_hi, 0xffff
buffer_store_dwordx4 {vr(vAcc+32,4)}, v{vT0}, {sr(SWS,4)}, s{sC0} offen offset:1024 sc1
buffer_store_dwordx4 {vr(vAcc+36,4)}, v{vT0}, {sr(SWS,4)}, s{sC0} offen offset:{1024+528} sc1""")
if RB: e(f"""s_waitcnt vmcnt(0)
buffer_load_dwordx4 {vr(vWk,4)}, v{vT0}, {sr(SWS,4)}, s{sC0} offen offset:1024 sc1
buffer_load_dwordx4 {vr(vWk+4,4)}, v{vT0}, {sr(SWS,4)}, s{sC0} offen offset:{1024+528} sc1""")
e("s_mov_b64 exec, -1")
tstamp(29)
e("LkvS:")
for r in range(4): e(f"v_mov_b32 v{vCs+r}, 0")
e(f"s_lshl_b32 s{sT2}, s{sI}, 7\ns_add_u32 s{sT2}, s{sT2}, {KFLG}\ns_waitcnt vmcnt(0)\ns_barrier")
if "--dkv" in sys.argv:
    for _ in range(3): e("s_sleep 127")
if "--dkv2" in sys.argv: e("s_sleep 45")
flag_set(sT2, "kv")
if not WQE: wq_dma()
stamp(13)
tflush(); TS.clear(); rt_out()
e("s_waitcnt vmcnt(0)\ns_barrier")
def q_reads(c):
    r = []
    for ks in range(4):
        W = vWk + 16*(c & 1) + 4*ks
        r += tr(W, vRQ, (64*c+16*ks)*64) + tr(W+2, vRQ, (64*c+16*ks+4)*64)
    return r
for x in q_reads(0): e(x)
for c in range(4):
    m = []
    for ks in range(4):
        X = vXf+16*c+4*ks; W = vWk + 16*(c & 1) + 4*ks
        m += [mfma(vAcc, W, X, "0" if c == 0 and ks == 0 else None), mfma16(vCs, W, vSel)]
    e("s_waitcnt lgkmcnt(0)")
    for x in interleave(m[:4], q_reads(c+1) if c < 3 else []) + m[4:]: e(x)
e(f"""s_or_b32 s{sT2}, s{sXb}, {65536+8192}
s_lshr_b32 s{sT3}, s{sW}, 2
s_lshl_b32 s{sT3}, s{sT3}, 7
s_add_u32 s{sT1}, s{sT2}, s{sT3}
s_add_u32 s{sT1}, s{sT1}, 4096
v_add_u32 v{vWa1}, s{sT2}, v{vL16}
v_lshl_add_u32 v{vT3}, v{vH}, 4, s{sT2}
s_nop 3""")
cs_write(vCs, f"s{sT1}")
e(f"s_cmp_ge_u32 s{sW}, 4\ns_cbranch_scc1 LkvH2\ns_waitcnt lgkmcnt(0)\ns_barrier")
for q in range(4): e(f"ds_read_b128 {vr(vWk+4*q,4)}, v{vWa1} offset:{1024*q}")
cs_read(vAcc+48, 4096); cs_read(vWk+16, 4096+128)
e("s_waitcnt lgkmcnt(0)")
for p in range(0, 16, 2):
    e(pk("v_pk_add_f32", vAcc+p, [('p', vAcc+p), ('p', vWk+p)]))
    e(pk("v_pk_add_f32", vAcc+48+p, [('p', vAcc+48+p), ('p', vWk+16+p)]))
q_epilogue(vAcc+48)
a_init(); fin_init()
e("s_waitcnt lgkmcnt(0)\ns_barrier\ns_branch LaR\nLkvH2:")
for q in range(4): e(f"ds_write_b128 v{vWa1}, {vr(vAcc+4*q,4)} offset:{1024*q}")
e(f"s_mov_b32 s{sKf}, {KFLG}")
e(flags_issue(sKf))
e("s_waitcnt lgkmcnt(0)\ns_barrier")
f_init()
flags_wait(sKf, "kv2", 0)
kv_dma("c")
e("s_waitcnt vmcnt(0)\ns_barrier")
if ES: a_sent(True)
e("s_branch LFkv")

AAL = 6 if "--a6" in sys.argv else 3
APRE = int(sys.argv[sys.argv.index("--apre")+1]) if "--apre" in sys.argv else 3
UNS = "--unsafeF" in sys.argv
vm = []
def vtag(tag): vm.append(tag)
def vwait_s(tag):
    idx = max(i for i, t in enumerate(vm) if t == tag)
    return f"s_waitcnt vmcnt({min(63, sum(1 for t in vm[idx+1:] if t[0] == tag[0] or UNS))})"
def emit_seq(seq):
    for x in seq:
        if isinstance(x, list): emit_seq(x)
        elif isinstance(x, tuple): vtag(x[0]); e(x[1])
        elif callable(x): e(x())
        else: e(x)
e(f"Lp2:\ns_setprio {APRE}\ns_cmp_eq_u32 s{sSt}, 0\ns_cbranch_scc1 Lkvok")
stamp(16)
flags_wait(sKf, "kv", 0)
stamp(17)
kv_dma("d")
e(f"v_mov_b32 v{vT0}, {KFL}\nds_write_b32 v{vT0}, v{hF+1} offset:16\ns_nop 3")
e(f"""Lkvok:
v_mov_b32 v{vT0}, {KFL}
s_mov_b32 s{sT0}, 0
s_waitcnt vmcnt(0)
ds_write_b32 v{hF}, v{hF+1}
Lkw:
ds_read_b128 {vr(aS[0],4)}, v{vT0}
s_add_u32 s{sT0}, s{sT0}, 1
s_waitcnt lgkmcnt(0)
v_and_b32 v{aS[0]}, v{aS[0]}, v{aS[0]+1}
v_and_b32 v{aS[0]+2}, v{aS[0]+2}, v{aS[0]+3}
v_and_b32 v{aS[0]}, v{aS[0]}, v{aS[0]+2}
v_cmp_ne_u32 vcc, 0, v{aS[0]}
s_cmp_ge_u32 s{sT0}, 2000000
s_cbranch_scc1 LaR
s_cbranch_vccnz LaR
s_sleep 1
s_branch Lkw
LaR:""")
stamp(3)
e(f"""ds_read_b128 {vr(aQ[0],4)}, v{vAq}
ds_read_b128 {vr(aK[0],4)}, v{vAk}
ds_read_b128 {vr(aQ[1],4)}, v{vAq} offset:1024
ds_read_b128 {vr(aK[1],4)}, v{vAk} offset:{KVT}
ds_read_b128 {vr(aVl[0],4)}, v{vAv}
ds_read_b128 {vr(aVh[0],4)}, v{vAv} offset:528
s_waitcnt lgkmcnt(4)""")
e(mfma(aS[0], aK[0], aQ[0], "0"))
e("s_waitcnt lgkmcnt(3)")
e(mfma(aS[1], aK[0], aQ[1], "0"))
e("s_nop 9")
for b in range(2):
    t = vT0+2*b; S = aS[b]
    e(f"v_max3_f32 v{t}, v{S}, v{S+1}, v{S+2}")
    for p in range(3, 15, 2): e(f"v_max3_f32 v{t}, v{t}, v{S+p}, v{S+p+1}")
    e(f"v_max_f32 v{t}, v{t}, v{S+15}\nv_mov_b32 v{t+1}, v{t}")
e(f"""s_nop 1
v_permlane32_swap_b32 v{vT0}, v{vT1}
v_permlane32_swap_b32 v{vT2}, v{vT3}
s_mov_b32 s{sSt}, 0
v_max_f32 v{vT0}, v{vT0}, v{vT1}
v_max_f32 v{vT2}, v{vT2}, v{vT3}""")
for b in range(2):
    e(f"v_sub_f32 v{aC[b]}, 0, v{vT0+2*b}\nv_sub_f32 v{aC[b]+1}, 0, v{vT0+2*b}")
for r in range(16): e(f"v_sub_f32 v{aS[0]+r}, v{aS[0]+r}, v{vT0}")
for b in (1, 0):
    for r in range(2, 16, 2): e(f"v_mov_b64 {vr(aC[b]+r,2)}, {vr(aC[b],2)}")
e("s_setprio 1")
stamp(5)
e(f"v_exp_f32 v{aS[0]}, v{aS[0]}\nv_exp_f32 v{aS[0]+1}, v{aS[0]+1}\ns_branch La1\n.p2align {AAL}\nLa0:")
for n in range(32):
    b = n & 1; T = n >> 1
    X = aS[b]; Y = aS[b ^ 1]
    ex = [f"v_exp_f32 v{X+i}, v{X+i}" for i in range(16)]
    Tp = (n-1) >> 1; Tn = (n+1) >> 1
    seq = ex[0:2] + [smf(aO[b ^ 1], aVh[Tp & 1], Y+8, vIdx)] + (["La1:"] if n == 0 else []) + ex[2:5]
    seq += [mfma(Y, aK[Tn & 1], aQ[b ^ 1], vr(aC[b ^ 1], 16))]
    if b:
        rd = [f"ds_read_b128 {vr(aVl[(T+1)&1],4)}, v{vAv} offset:{(T+1)*KVT}",
              f"ds_read_b128 {vr(aVh[(T+1)&1],4)}, v{vAv} offset:{(T+1)*KVT+528}",
              f"ds_read_b128 {vr(aK[T&1],4)}, v{vAk} offset:{(T+2)*KVT}"]
        seq += rd + ex[5:10]
    else: seq += ["s_waitcnt lgkmcnt(0)"] + ex[5:10]
    seq += [smf(aO[b], aVl[T & 1], X, vIdx)] + ex[10:16]
    for x in seq: e(x)
if PROF:
    e(f"s_memtime s[{sTm}:{sTm+1}]\ns_lshl_b32 s{sT0}, s{sSt}, 2\ns_add_u32 s{sT0}, s{sT0}, s{sPo}\ns_waitcnt lgkmcnt(0)\nv_mov_b32 v0, s{sTm}\nbuffer_store_dword v0, off, {sr(SWS,4)}, s{sT0} offset:72")
e(f"""v_add_u32 v{vAk}, {16*KVT}, v{vAk}
v_add_u32 v{vAv}, {16*KVT}, v{vAv}
s_add_u32 s{sSt}, s{sSt}, 1
s_cmp_eq_u32 s{sSt}, 1
s_cbranch_scc0 La2
{'' if PROF else 's_waitcnt vmcnt(0)'}
s_barrier
s_branch La0
La2:
s_cmp_lt_u32 s{sSt}, 4
s_cbranch_scc1 La0""")
e(smf(aO[1], aVh[1], aS[1]+8, vIdx))
if "--dA" in sys.argv:
    e(f"s_and_b32 s{sT0}, s2, 0x29\ns_cmp_lg_u32 s{sT0}, 0\ns_cbranch_scc1 LdA\ns_sleep 127\ns_sleep 127\nLdA:")
e(f"s_mov_b32 s{sC0}, {f2u(2.0**40):#x}\ns_mov_b32 s{sC1}, {f2u(2.0**126):#x}")
for b in range(2):
    O = aO[b]
    e(f"s_mov_b32 s{sRetry}, 0\nLfin{b}:")
    e(f"""v_rcp_f32 v{O+10}, v{O+8}
    v_max3_f32 v{vT1}, abs(v{O}), abs(v{O+1}), abs(v{O+2})
    v_max3_f32 v{vT1}, v{vT1}, abs(v{O+3}), abs(v{O+4})
    v_max3_f32 v{vT1}, v{vT1}, abs(v{O+5}), abs(v{O+6})
    v_max_f32 v{vT1}, v{vT1}, abs(v{O+7})
    v_cmp_nlt_f32 vcc, v{O+8}, s{sC0}
    v_cmp_nlt_f32 s[{sEx}:{sEx+1}], v{vT1}, s{sC1}""")
    for p in range(8): e(f"v_mul_f32 v{O+p}, v{O+p}, v{O+10}")
    e(f"s_or_b64 vcc, vcc, s[{sEx}:{sEx+1}]")
    for p in range(4): e(f"v_cvt_pk_bf16_f32 v{O+p}, v{O+2*p}, v{O+2*p+1}")
    for p in range(4): e(f"v_min_u32 v{O+p}, -2, v{O+p}")
    e(f"s_cbranch_vccnz Lfallback{b}\nLok{b}:")
    e(f"buffer_store_dwordx4 {vr(O,4)}, v{vL16}, {sr(SWS,4)}, s{sOp if b == 0 else sOp2} offen sc1")
stamp(6)
OSC = " sc1"
gX = [136, 140]; gG = [144, 176]; gR = [8, 40]
e(f"buffer_load_dwordx4 {vr(gX[0],4)}, v{vRa}, {sr(SX,4)}, s{sXf} offen")
e(f"buffer_load_dwordx4 {vr(gX[1],4)}, v{vRa}, {sr(SX,4)}, s{sXf2} offen")
e("s_waitcnt lgkmcnt(0)\ns_setprio 0\ns_barrier\ns_barrier")
stamp(8)
for tt in range(2):
    for q in range(8): e(f"ds_read_b128 {vr(gG[tt]+4*q,4)}, v{vRr} offset:{128*tt+XK*(q//2)+512*(q%2)}")
def sum4(r):
    for p in range(0, 8, 2):
        e(pk("v_pk_add_f32", r+p, [('p', r+p), ('p', r+8+p)]))
        e(pk("v_pk_add_f32", r+16+p, [('p', r+16+p), ('p', r+24+p)]))
    for p in range(0, 8, 2): e(pk("v_pk_add_f32", r+p, [('p', r+p), ('p', r+16+p)]))
for tt in range(2):
    G = gG[tt]
    e(f"s_waitcnt lgkmcnt({8*(1-tt)})")
    for p in range(8): e(f"v_add_f32 v{G+p}, v{G+p}, v{G+8+p}\nv_add_f32 v{G+16+p}, v{G+16+p}, v{G+24+p}")
    for p in range(8): e(f"v_add_f32 v{G+p}, v{G+p}, v{G+16+p}")
    for p in range(8): e(f"v_mul_f32 v{G+8+p}, {f2u(-1.4426950408889634):#x}, v{G+p}")
    for p in range(8): e(f"v_exp_f32 v{G+8+p}, v{G+8+p}")
    for p in range(8): e(f"v_add_f32 v{G+8+p}, 1.0, v{G+8+p}")
    for p in range(8): e(f"v_rcp_f32 v{G+8+p}, v{G+8+p}")
    e("s_waitcnt vmcnt(0)")
    for p in range(4): e(f"v_lshlrev_b32 v{G+16+2*p}, 16, v{gX[tt]+p}\nv_and_b32 v{G+17+2*p}, 0xffff0000, v{gX[tt]+p}")
    for p in range(8): e(f"v_mul_f32 v{G+p}, v{G+p}, v{G+8+p}")
stamp(9)
e("s_barrier")
for tt in range(2):
    for q in range(8): e(f"ds_read_b128 {vr(gR[tt]+4*q,4)}, v{vRr2} offset:{128*tt+XK*(q//2)+512*(q%2)}")
for tt in range(2):
    R = gR[tt]; G = gG[tt]
    e(f"s_waitcnt lgkmcnt({8*(1-tt)})")
    sum4(R)
    for p in range(0, 8, 2): e(pk("v_pk_fma_f32", R+p, [('p', R+p), ('p', G+p), ('p', G+16+p)]))
    for p in range(4): e(f"v_cvt_pk_bf16_f32 v{R+p}, v{R+2*p}, v{R+2*p+1}")
    e(f"buffer_store_dwordx4 {vr(R,4)}, v{vRa}, {sr(SOUT,4)}, s{sXf if tt == 0 else sXf2} offen{OSC}")
def the_end():
    stamp(11)
    if RT: e(f"s_waitcnt vmcnt(0)\ns_memrealtime s[100:101]\ns_waitcnt lgkmcnt(0)\nv_mov_b32 v0, s100\nbuffer_store_dword v0, off, {sr(SWS,4)}, s{sPo} offset:56")
the_end()
e("Lend:\ns_endpgm")

e("LFkv:")
kv_rest("k")
e("LF:")
if FS and not ES: a_sent(True)
tag_wait("f", 0)
e("s_setprio 0\ns_barrier")
flag_set(sHs, "h", 4)
RG = SP + [aslot(n) for n in range(4)]
def u_dma(m):
    srdw, row = (SWO, 64*m) if m < 8 else (SWD, 64*(m-8))
    so = [f"s_add_u32 s{sT0}, s{sDo}, {row*1024}"]
    if m == 29: so += [f"s_cmp_lt_u32 s{sW4}, 2", f"s_cselect_b32 s{sT0}, s{sT0}, s{sDo}"]
    return [f"s_add_u32 m0, s{sDm}, {RG[m % 7]}"] + so + [
            (f"u{m}", f"buffer_load_dwordx4 v{vDa}, {sr(srdw,4)}, s{sT0} offen lds"),
            (f"u{m}", f"buffer_load_dwordx4 v{vDa2}, {sr(srdw,4)}, s{sT0} offen offset:1024 lds")]
def u_reads(m, F):
    a = RG[m % 7]; win = 1 if a >= SP[0] else 0; off = a - win*SP[0]
    r0, r1 = vRd+2*win, vRd+2*win+1
    return tr(F, r0, off) + tr(F+2, r0, off+1024) + tr(F+4, r1, off) + tr(F+6, r1, off+1024)
HR = int(sys.argv[sys.argv.index("--hr")+1]) if "--hr" in sys.argv else 8
def h_loads(s):
    r = []
    if s % 4 == 0: r += [f"s_add_u32 s{sC0}, s{sHo}, {1024*s}", f"s_add_u32 s{sC1}, s{sC0}, {88*1024}"]
    for tt in range(2):
        r.append((f"h{s}", f"buffer_load_dwordx4 {vr(fH+8*(s % HR)+4*tt,4)}, v{vL16}, {sr(SWS,4)}, s{sC0 if tt == 0 else sC1} offen offset:{1024*(s%4)} sc1"))
    return r
for m in range(7): emit_seq(u_dma(m))
for m in range(8):
    e(vwait_s(f"u{m}"))
    for x in u_reads(m, fWo+8*m): e(x)
    e("s_waitcnt lgkmcnt(0)")
    emit_seq(u_dma(m+7))
tstamp(18)
e(flags_issue(sHc))
flags_wait(sHc, "h", 0)
tstamp(19)
for s in range(HR): emit_seq(h_loads(s))
for x in u_reads(8, fWb[0]): e(x)
FB = int(sys.argv[sys.argv.index("--fb")+1]) if "--fb" in sys.argv else 15
for s in range(22):
    m = 8+s; W = fWb[s & 1]
    if s == FB:
        tstamp(20); e("s_barrier\ns_setprio 2"); tstamp(21)
    if s < 21:
        e(vwait_s(f"u{m+1}"))
        for x in u_reads(m+1, fWb[(s+1) & 1]): e(x)
        e("s_waitcnt lgkmcnt(4)")
    else: e("s_waitcnt lgkmcnt(0)")
    if m+7 < 30: emit_seq(u_dma(m+7))
    e(vwait_s(f"h{s}"))
    if s == 21: e(f"s_cmp_ge_u32 s{sW4}, 2\ns_cbranch_scc1 Lskip21")
    for tt in range(2):
        for ch in range(2 if "--nofm" not in sys.argv else 0): e(mfma(fA+32*tt+16*ch, W+4*ch, fH+8*(s % HR)+4*tt, "0" if s == 0 else None))
    if s+HR < 22: emit_seq(h_loads(s+HR))
e("Lskip21:\ns_nop 8")
tstamp(22)
ORD = [7, 6, 5, 4, 3, 2, 1, 0] if M48 else [i ^ (2*JX) for i in [7, 6, 5, 4, 1, 0, 3, 2]]
def o_load(k):
    tt, i = k & 1, k >> 1
    return f"buffer_load_dwordx4 {vr(opos(i)+4*tt,4)}, v{vL16}, {sr(SWS,4)}, s{(sOc, sOc2, sOc3, sOc4)[2*tt+(i>>2)]} offen offset:{1024*(i%4)} sc1"
def opos(i): return fO + 8*ORD.index(i)
zer = [f"v_mov_b64 {vr(fS+r,2)}, 0" for r in range(0, 64, 2)]
for q in range(16):
    e(f"ds_write_b128 v{vRw}, {vr(fA+4*q,4)} offset:{XB*(q//2)+XP*(q%2)}")
    if q >= 4: e(f"s_waitcnt lgkmcnt(4)\n{o_load(2*ORD[(q-4)//2]+(q & 1))}")
e("s_waitcnt lgkmcnt(0)\ns_barrier")
for k in range(12, 16): e(o_load(2*ORD[k//2]+(k & 1)))
tstamp(9)
def o_pair(i, tag, wait):
    B = opos(i)
    if wait is not None: e(f"s_waitcnt vmcnt({wait})")
    else: e(f"s_bitcmp1_b32 s{sSt}, {i}\ns_cbranch_scc0 Lon{tag}{i}")
    e(f"""v_max3_u32 v{vT1}, v{B}, v{B+1}, v{B+2}
    v_max3_u32 v{vT1}, v{vT1}, v{B+3}, v{B+4}
    v_max3_u32 v{vT1}, v{vT1}, v{B+5}, v{B+6}
    v_max_u32 v{vT1}, v{vT1}, v{B+7}
    v_cmp_eq_u32 vcc, s{sT1}, v{vT1}
    s_cbranch_vccnz Lon{tag}{i}
    s_bitset0_b32 s{sSt}, {i}""")
    for tt in range(2):
        for ch in range(2): e(mfma(fS+32*tt+16*ch, fWo+8*i+4*ch, B+4*tt))
    e(f"Lon{tag}{i}:")
def acc_chain(tt, ch): return [mfma(fS+32*tt+16*ch, fWo+8*i+4*ch, opos(i)+4*tt, "0" if n == 0 else None) for n, i in enumerate(ORD)]
def s_wr(tt, ch): return [f"ds_write_b128 v{vRw2+tt}, {vr(fS+32*tt+16*ch+4*q,4)} offset:{XB*(2*ch+q//2)+XP*(q%2)}" for q in range(4)]
e(f"v_mov_b32 v{vT1}, 0")
for n, x in enumerate(acc_chain(0, 0)):
    B = fO+8*n
    e(f"s_waitcnt vmcnt({14-2*n})\n{x}")
    for p in range(0, 8, 2): e(f"v_max3_u32 v{vT1}, v{vT1}, v{B+p}, v{B+p+1}")
e(f"v_cmp_eq_u32 vcc, -1, v{vT1}\ns_cbranch_vccnz Lor0")
c1, c2, c3 = acc_chain(0, 1), acc_chain(1, 0), acc_chain(1, 1)
for prev, c in (((0, 0), c1), ((0, 1), c2), ((1, 0), c3)):
    for x in [c[0], "s_nop 3", c[1], "s_nop 3", c[2]] + interleave(c[3:7], s_wr(*prev)) + c[7:]: e(x)
stamp(7)
e("s_nop 11")
for x in s_wr(1, 1): e(x)
e("Lsd:")
e("s_waitcnt lgkmcnt(0)\ns_barrier")
stamp(10); tflush(); TS.clear()
the_end()
e("s_endpgm")
e(f"Lor0:\ns_nop 8")
for x in zer: e(x)
e(f"s_mov_b32 s{sT0}, 0\ns_mov_b32 s{sSt}, 0xff\ns_mov_b32 s{sT1}, -1\ns_branch Lor2")
e("Lor:\ns_sleep 4")
for i in ORD:
    e(f"s_bitcmp1_b32 s{sSt}, {i}\ns_cbranch_scc0 Lorn{i}\n{o_load(2*i)}\n{o_load(2*i+1)}\nLorn{i}:")
e(f"""s_add_u32 s{sT0}, s{sT0}, 1
s_cmp_ge_u32 s{sT0}, 200000
s_cbranch_scc1 Lod
s_waitcnt vmcnt(0)
Lor2:""")
for i in ORD: o_pair(i, "b", None)
e(f"s_cmp_lg_u32 s{sSt}, 0\ns_cbranch_scc1 Lor\nLod:\ns_nop 6")
for tt in range(2):
    for ch in range(2):
        for x in s_wr(tt, ch): e(x)
e("s_branch Lsd")
for b in range(2):
    S = aS[0]; O = aO[b]; C = aC[b]; Q = aQ[b]
    e(f"""Lfallback{b}:
    s_cmp_lg_u32 s{sRetry}, 0
    s_cbranch_scc1 Lok{b}
    s_mov_b32 s{sRetry}, 1
    s_mov_b32 s{sSt}, 0
    v_mov_b32 v{vT1}, 0xff800000
    s_waitcnt lgkmcnt(0)
    Lfb1{b}:
    buffer_load_dwordx4 {vr(aK[0],4)}, v{vL16}, {sr(SWS,4)}, s{sSt} offen sc1
    s_waitcnt vmcnt(0)""")
    e(mfma(S, aK[0], Q, "0"))
    e("s_nop 11")
    for p in range(0, 16, 2): e(f"v_max3_f32 v{vT1}, v{vT1}, v{S+p}, v{S+p+1}")
    e(f"""s_add_u32 s{sSt}, s{sSt}, {KVT}
    s_cmp_lt_u32 s{sSt}, {64*KVT}
    s_cbranch_scc1 Lfb1{b}
    v_mov_b32 v{vT2}, v{vT1}
    s_nop 1
    v_permlane32_swap_b32 v{vT1}, v{vT2}
    s_nop 1
    v_max_f32 v{vT1}, v{vT1}, v{vT2}""")
    for r in range(16): e(f"v_sub_f32 v{C+r}, 0, v{vT1}")
    for r in range(12): e(f"v_mov_b32 v{O+r}, 0")
    e(f"""v_subrev_u32 v{vT0}, {64*KVT}, v{vAv}
    s_mov_b32 s{sSt}, 0
    Lfb2{b}:
    buffer_load_dwordx4 {vr(aK[0],4)}, v{vL16}, {sr(SWS,4)}, s{sSt} offen sc1
    buffer_load_dwordx4 {vr(aVl[0],4)}, v{vT0}, {sr(SWS,4)}, s{sSt} offen sc1
    buffer_load_dwordx4 {vr(aVh[0],4)}, v{vT0}, {sr(SWS,4)}, s{sSt} offen offset:528 sc1
    s_waitcnt vmcnt(0)""")
    e(mfma(S, aK[0], Q, vr(C, 16)))
    e("s_nop 11")
    for i in range(16): e(f"v_exp_f32 v{S+i}, v{S+i}")
    e("s_nop 1")
    e(smf(O, aVl[0], S, vIdx)); e(smf(O, aVh[0], S+8, vIdx))
    e(f"""s_add_u32 s{sSt}, s{sSt}, {KVT}
    s_cmp_lt_u32 s{sSt}, {64*KVT}
    s_cbranch_scc1 Lfb2{b}
    s_nop 9
    s_branch Lfin{b}""")
e("Lcodeend:")

L += ['.section .rodata,"a"', ".p2align 6", f".amdhsa_kernel {NAME}_kernel",
      "  .amdhsa_next_free_vgpr 256", "  .amdhsa_next_free_sgpr 102", "  .amdhsa_accum_offset 256",
      "  .amdhsa_group_segment_fixed_size 0", "  .amdhsa_kernarg_size 96", "  .amdhsa_user_sgpr_count 2",
      "  .amdhsa_user_sgpr_kernarg_segment_ptr 1", "  .amdhsa_system_sgpr_workgroup_id_x 1", ".end_amdhsa_kernel"]
open(OUT, "w").write("\n".join(L) + "\n")
print("wrote", OUT, len(L), "lines")
```

```python
import sys, struct
NAME = "recurrent_scan__grouped_kv_mqa__geglu_ffn__prompt"
PROF = "--prof" in sys.argv
OUT = [a for a in sys.argv[1:2] if not a.startswith("--")]
OUT = OUT[0] if OUT else f"cdna_kernels/{NAME}.s"

L = []
def e(s):
    for ln in s.split("\n"):
        if not ln.strip(): continue
        L.append(("    " + ln.strip()) if not ln.strip().endswith(":") else ln.strip())
def f2u(x): return struct.unpack("<I", struct.pack("<f", x))[0]
def vr(a, n): return f"v[{a}:{a+n-1}]"
def sr(a, n): return f"s[{a}:{a+n-1}]"

KVT = 2080
KVIMG = 0
HIMG = 135168
OIMG = HIMG + 64*88*1024
HFLG = OIMG + 64*32*1024
KFLG = HFLG + 256*128
STATG = KFLG + 16*128
CSG = STATG + 2048*16
PROFO = CSG + 64*2048
WS_BYTES = PROFO + 256*8*256
CNT_KV = 0
KVRDY = 128
STG = 45056
XOFF, GOFF, UOFF, QOFF = 0, 16384, 28672, 40960
STGK, QOFFK, NBK = 24832, 20736, 5
QIMG = 135168
STATM = 160768
CSUM = 162816
MRX = 159744
STL = 162816
KFL = 163776
LDS_BYTES = 163840
SX, SWQ, SWK, SWV, SWO, SWG, SWD, SOUT, SDBG, SWS = 4, 8, 12, 16, 20, 24, 28, 32, 36, 40
sI, sJ, sW, sW4 = 44, 45, 46, 47
sXo, sWo, sQo, sLb = 48, 49, 50, 51
sMx, sMw, sMq = 52, 53, 54
sSt, sDl, sT0, sT1, sT2, sT3 = 55, 56, 57, 58, 59, 60
sTB, sCS, sRetry, sRb = 61, 62, 63, 3
sEx = 88
sTm = 90
sPo = 92
sC0, sC1, sC2, sC3 = 94, 95, 96, 97
sOp = 98
TOUCH = int("--touch" in sys.argv)
vLane, vH, vT0, vT1, vT2, vT3 = 1, 2, 3, 4, 5, 6
vXa0, vXa1, vWa0, vWa1, vWa2, vQa = 7, 8, 9, 10, 11, 12
vRX = 13
vRW, vRQ = 17, 18
vSel = 20
vCs = 24
vF = 32
vAcc = 96
vSt = 160
aQ = [8, 12]; aK = [16, 20]; aVl = [24, 28]; aVh = [32, 36]; aS = [40, 56]; aC = [72, 88]; aO = [104, 120]
fA, fWo, fWb, fH, fX, fG = 8, 72, [136, 144], 152, 200, 204
fS, fO, fR = 136, 8, 8
vIdx, vAk, vAv, vDa, vL16, vRa = 240, 241, 242, 243, 244, 245
vPoll = 246
vRd = 248
vRw, vRr, vRr2, vDa2 = 252, 253, 254, 255
vRw2 = 238
vAq = 237
sKq, sTt, sHo, sDo, sDm, sHc, sXf, sOc, sOc2, sHs = 64, 65, 66, 67, 68, 69, 70, 71, 72, 73
sOc3, sOc4, sOp2 = 80, 81, 99
sXf2 = 64
sNo = 86
sRow, sKf = 63, 85
ASL = 8320
XB, XK, XP = 8512, 2112, 1056
XF0, XS0, XS1 = 34048, 0, 102144
def aslot(n): return ASL*n
SP = [135168, 143360, 151552]

nstamp = [0]
DBGT = "--dbgt" in sys.argv
DT = {0: 75, 12: 76, 1: 77, 2: 78, 3: 79, 6: 80, 9: 81, 7: 82, 11: 83}
PAD = (int(sys.argv[sys.argv.index("--pad")+1]), int(sys.argv[sys.argv.index("--pad")+2])) if "--pad" in sys.argv else None
npad = [0]
PADB = sNo if "--padg" in sys.argv else 100
def stamp(k):
    if PAD and PAD[0] == k:
        npad[0] += 1
        e(f"Lpad{npad[0]}:\ns_memrealtime s[{sTm}:{sTm+1}]\ns_waitcnt lgkmcnt(0)\ns_sub_u32 s{sTm}, s{sTm}, s{PADB}\ns_sleep 8\ns_cmp_lt_u32 s{sTm}, {PAD[1]}\ns_cbranch_scc1 Lpad{npad[0]}")
    if DBGT and k in DT:
        e(f"s_memrealtime s[{sTm}:{sTm+1}]\ns_waitcnt lgkmcnt(0)\ns_sub_u32 s{DT[k]}, s{sTm}, s100")
        if k == 11:
            e(f"s_memtime s[{sTm}:{sTm+1}]\ns_waitcnt lgkmcnt(0)\ns_sub_u32 s84, s{sTm}, s92")
            e(f"s_cmp_lg_u32 s2, 64\ns_cbranch_scc1 Lend\ns_cmp_lg_u32 s{sW}, 4\ns_cbranch_scc1 Lend")
            for n, r in enumerate(range(75, 85)):
                e(f"v_mov_b32 v0, s{r}\nbuffer_store_dword v0, off, {sr(SDBG,4)}, 0 offset:{4+4*n}\ns_nop 1")
    if not PROF: return
    e(f"""s_memtime s[{sTm}:{sTm+1}]
    s_waitcnt lgkmcnt(0)
    v_mov_b32 v0, s{sTm}
    buffer_store_dword v0, off, {sr(SWS,4)}, s{sPo} offset:{4*k}""")
    if k in RTS:
        e(f"""s_memrealtime s[{sTm}:{sTm+1}]
        s_waitcnt lgkmcnt(0)
        v_mov_b32 v0, s{sTm}
        buffer_store_dword v0, off, {sr(SWS,4)}, s{sPo} offset:{4*RTS[k]}""")
RTS = {12: 24, 1: 25, 5: 26, 6: 27, 11: 28}

TS = []
def tstamp(k):
    if not PROF: return
    r = 74 + len(TS); TS.append((k, r))
    e(f"s_memtime s[{sTm}:{sTm+1}]\ns_waitcnt lgkmcnt(0)\ns_mov_b32 s{r}, s{sTm}")
def tflush():
    for k, r in TS: e(f"v_mov_b32 v0, s{r}\nbuffer_store_dword v0, off, {sr(SWS,4)}, s{sPo} offset:{4*k}\ns_nop 1")
def tick(acc):
    if not PROF or "--notick" in sys.argv: return ""
    r = f"s_memtime s[{sTm}:{sTm+1}]\ns_waitcnt lgkmcnt(0)\n"
    if acc is not None: r += f"s_sub_u32 s99, s{sTm}, s99\ns_add_u32 s{acc}, s{acc}, s99\n"
    return r + f"s_mov_b32 s99, s{sTm}"

def interleave(main, fill):
    out = []; n = len(main); m = len(fill); k = 0
    for i, a in enumerate(main):
        out.append(a)
        t = (m * (i + 1)) // n
        out += fill[k:t]; k = t
    return out

def mfma(d, a, b, c=None):
    c = vr(d, 16) if c is None else c
    return f"v_mfma_f32_32x32x16_bf16 {vr(d,16)}, {vr(a,4)}, {vr(b,4)}, {c}"
def mfma16(d, a, b): return f"v_mfma_f32_16x16x32_bf16 {vr(d,4)}, {vr(a,4)}, {vr(b,4)}, {vr(d,4)}"
def smf(d, a, b, idx): return f"v_smfmac_f32_32x32x32_bf16 {vr(d,16)}, {vr(a,4)}, {vr(b,8)}, v{idx}"

TK = PROF and "--tk" in sys.argv
def tk(acc):
    if not TK: return ""
    r = f"s_memtime s[{sTm}:{sTm+1}]\ns_waitcnt lgkmcnt(0)\n"
    if acc is not None: r += f"s_sub_u32 s82, s{sTm}, s82\ns_add_u32 s{acc}, s{acc}, s82\n"
    return r + f"s_mov_b32 s82, s{sTm}"
def tkout():
    if TK: e(f"v_mov_b32 v0, s80\nbuffer_store_dword v0, off, {sr(SWS,4)}, s{sPo} offset:{4*29}\ns_nop 1\nv_mov_b32 v0, s81\nbuffer_store_dword v0, off, {sr(SWS,4)}, s{sPo} offset:{4*30}")
def tr(d, a, off): return [f"ds_read_b64_tr_b16 {vr(d,2)}, v{a} offset:{off}"]
def tag_issue(): return f"buffer_load_dwordx2 {vr(vPoll,2)}, off, {sr(SDBG,4)}, 0 sc1"
def tag_wait(tag, first_wait, early=False):
    chk = f"""s_memrealtime s[{sTm}:{sTm+1}]
    s_waitcnt lgkmcnt(0)
    s_sub_u32 s{sTm}, s{sTm}, s{sNo}
    s_add_u32 s{sTm}, s{sTm}, 200
    s_cmp_lt_u32 s{sTm}, 2000
    s_cselect_b32 s{sTm}, 99, s{sT0}
    s_cmp_lt_u32 s{sTm}, 40
    s_cbranch_scc1 Ltagr_{tag}""" if early else ""
    e(f"""s_mov_b32 s{sT0}, 0
    s_waitcnt vmcnt({first_wait})
    Ltag_{tag}:
    v_readfirstlane_b32 s{sNo}, v{vPoll}
    v_readfirstlane_b32 s{sNo+1}, v{vPoll+1}
    s_add_u32 s{sT0}, s{sT0}, 1
    {chk}
    s_cmp_lg_u32 s{sNo}, 0
    s_cbranch_scc1 Ltagd_{tag}
    s_cmp_ge_u32 s{sT0}, 100000
    s_cbranch_scc1 Ltagd_{tag}
    Ltagr_{tag}:
    s_sleep 1
    {tag_issue()}
    s_waitcnt vmcnt(0)
    s_branch Ltag_{tag}
    Ltagd_{tag}:""")
def flags_issue(base):
    return f"""v_and_b32 v{vPoll}, 15, v{vLane}
    v_lshlrev_b32 v{vPoll}, 7, v{vPoll}
    buffer_load_dwordx2 {vr(vPoll,2)}, v{vPoll}, {sr(SWS,4)}, s{base} offen sc1"""
def h_poll_issue(): return flags_issue(sHc)
def flags_wait(base, tag, first_wait):
    e(f"""s_mov_b32 s{sT0}, 0
    s_waitcnt vmcnt({first_wait})
    Lfw_{tag}:
    v_cmp_ne_u64 vcc, s[{sNo}:{sNo+1}], {vr(vPoll,2)}
    s_add_u32 s{sT0}, s{sT0}, 1
    s_cmp_ge_u32 s{sT0}, 100000
    s_cbranch_vccz Lfwd_{tag}
    s_cbranch_scc1 Lfwd_{tag}
    s_sleep 3
    {flags_issue(base)}
    s_waitcnt vmcnt(0)
    s_branch Lfw_{tag}
    Lfwd_{tag}:""")
def flag_set(off_sreg, tag, wave=0):
    e(f"""s_cmp_lg_u32 s{sW}, {wave}
    s_cbranch_scc1 Lsig_{tag}
    v_mov_b32 v{vPoll}, s{sNo}
    v_mov_b32 v{vPoll+1}, s{sNo+1}
    s_mov_b64 exec, 1
    buffer_store_dwordx2 {vr(vPoll,2)}, off, {sr(SWS,4)}, s{off_sreg} sc1
    s_mov_b64 exec, -1
    Lsig_{tag}:""")

hdr = open(f"cdna_kernels/{NAME}.s.ref").read().split("\n")
hdr = [h for h in hdr[:15] if h.startswith(";") and "@launch" not in h]
L += hdr
L.append(f"; @launch grid=(256,1,1) block=(512,1,1) lds={LDS_BYTES}")
L += """;
; One persistent launch, 256 workgroups (one per CU) x 8 waves; written with a generator script.
;  workgroup (i, j): 128-token row block i, column group j (2 heads of Q, 96 gate/up columns); j = 15 makes K/V instead.
;  P1  x @ [wq | w_gate | w_up]: waves 4-7 MFMA (16x16x32), waves 0-3 LDS-DMA; LayerNorm folded into the epilogue
;      (row mean / rstd and weight column sums are computed once and exchanged through d_ws).
;  P2  waves 0-3: attention, S^T = K Q^T - m (m = row max of the first key tile, as the MFMA C operand), exp2, and
;      P V plus the row sum by the sparse MFMA straight from the f32 registers; a run-time check of the row sum and of
;      the accumulators falls back to the true row max.  waves 4-7: GELU gate, down projection, output projection.
;  P3  out = x + s * silu(f) on a 64x64 tile per workgroup.
;  Hand-offs: write-through stores + sc1 loads; flags carry a per-launch tag published in d_debug; the attention
;  output is pre-filled with a sentinel.  Every wait is bounded.""".split("\n")
L += ['.amdgcn_target "amdgcn-amd-amdhsa--gfx950"', ".text", f".globl {NAME}_kernel", ".p2align 8",
      f".type {NAME}_kernel,@function"]
e(f"{NAME}_kernel:")
RT = PROF
if RT: e("s_memrealtime s[100:101]\ns_memtime s[98:99]")
if DBGT or PAD: e("s_memrealtime s[100:101]\ns_memtime s[92:93]")
MAP84 = f"""s_and_b32 s{sI}, s{sT0}, 1
s_lshl_b32 s{sI}, s{sI}, 3
s_and_b32 s{sT2}, s{sT1}, 7
s_add_u32 s{sI}, s{sI}, s{sT2}
s_lshr_b32 s{sJ}, s{sT0}, 1
s_lshl_b32 s{sJ}, s{sJ}, 2
s_lshr_b32 s{sT3}, s{sT1}, 3
s_add_u32 s{sJ}, s{sJ}, s{sT3}
s_sub_u32 s{sJ}, 15, s{sJ}
s_and_b32 s{sTB}, s{sT0}, 3
s_lshl_b32 s{sTB}, s{sTB}, 3
s_add_u32 s{sTB}, s{sTB}, s{sT2}
s_lshr_b32 s{sCS}, s{sT0}, 2
s_lshl_b32 s{sCS}, s{sCS}, 2
s_add_u32 s{sCS}, s{sCS}, s{sT3}"""
MAP48 = f"""s_lshr_b32 s{sT2}, s{sT0}, 1
s_lshl_b32 s{sI}, s{sT2}, 2
s_and_b32 s{sT3}, s{sT1}, 3
s_add_u32 s{sI}, s{sI}, s{sT3}
s_lshl_b32 s{sTB}, s{sT2}, 3
s_and_b32 s{sT3}, s{sT1}, 7
s_add_u32 s{sTB}, s{sTB}, s{sT3}
s_and_b32 s{sT0}, s{sT0}, 1
s_lshl_b32 s{sJ}, s{sT0}, 3
s_lshr_b32 s{sT3}, s{sT1}, 2
s_add_u32 s{sJ}, s{sJ}, s{sT3}
s_sub_u32 s{sJ}, 15, s{sJ}
s_lshl_b32 s{sCS}, s{sT0}, 2
s_lshr_b32 s{sT3}, s{sT1}, 3
s_add_u32 s{sCS}, s{sCS}, s{sT3}"""
JX = int(sys.argv[sys.argv.index("--jx")+1]) if "--jx" in sys.argv else 0
if JX: MAP84 = MAP84.replace(f"s_lshr_b32 s{sJ}, s{sT0}, 1\n", f"s_lshr_b32 s{sJ}, s{sT0}, 1\ns_xor_b32 s{sJ}, s{sJ}, {JX}\n")
M48 = "--m48" in sys.argv
MAP = MAP48 if M48 else MAP84
PFC = "" if "--nopfc" in sys.argv else f"""s_cmp_lg_u32 s{sW}, 7
s_cbranch_scc1 Lnop0
s_getpc_b64 s[94:95]
Lpc0:
s_bfe_u32 s{sT0}, s2, 0x20003
s_lshl_b32 s{sT0}, s{sT0}, 13
v_lshl_add_u32 v{vT1}, v{vLane}, 7, s{sT0}
v_min_u32 v{vT1}, Lcodeend-Lpc0-4, v{vT1}
global_load_dword v236, v{vT1}, s[94:95]"""
e(f"""s_cmp_ge_u32 s2, 256
s_cbranch_scc1 Lend
s_load_dwordx2 s[{SX}:{SX+1}], s[0:1], 0
s_load_dwordx2 s[{SWG}:{SWG+1}], s[0:1], 48
s_load_dwordx2 s[{SWQ}:{SWQ+1}], s[0:1], 8
s_load_dwordx2 s[{SWV}:{SWV+1}], s[0:1], 24
s_load_dwordx2 s[{SDBG}:{SDBG+1}], s[0:1], 80
s_load_dwordx2 s[{SWS}:{SWS+1}], s[0:1], 88
v_and_b32 v{vLane}, 63, v0
v_lshrrev_b32 v{vT0}, 6, v0
v_lshrrev_b32 v{vH}, 5, v{vLane}
v_readfirstlane_b32 s{sW}, v{vT0}
{PFC}
Lnop0:
s_and_b32 s{sT0}, s2, 7
s_lshr_b32 s{sT1}, s2, 3
{MAP}
s_and_b32 s{sW4}, s{sW}, 3
v_lshrrev_b32 v{vT0}, 3, v{vLane}
v_lshlrev_b32 v{vT0}, 10, v{vT0}
v_and_b32 v{vT1}, 7, v{vLane}
v_lshrrev_b32 v{vT2}, 4, v{vLane}
v_xor_b32 v{vT1}, v{vT1}, v{vT2}
v_lshl_add_u32 v{vXa0}, v{vT1}, 4, v{vT0}
v_xor_b32 v{vXa1}, 64, v{vXa0}
v_add_u32 v{vXa1}, {8192-1024}, v{vXa1}
v_lshlrev_b32 v{vL16}, 4, v{vLane}
s_lshl_b32 s{sXo}, s{sI}, 17
s_lshl_b32 s{sT0}, s{sW4}, 15
s_add_u32 s{sXo}, s{sXo}, s{sT0}
s_lshl_b32 s{sRow}, s{sI}, 4
s_add_u32 s{sRow}, s{sRow}, s{sJ}
s_lshl_b32 s{sRow}, s{sRow}, 2
s_add_u32 s{sRow}, s{sRow}, s{sW4}
s_cmp_eq_u32 s{sJ}, 15
s_cselect_b32 s{sT0}, 16, 56
s_load_dwordx2 s[{SWK}:{SWK+1}], s[0:1], s{sT0}
s_mov_b32 s{sT1}, {512*2752}
s_cselect_b32 s{SWK+2}, 16384, s{sT1}
s_mov_b32 s{SWK+3}, 0x20000""")
SWU = SWK
vRs = 144
vRs2 = 216
for d, nbytes in ((SX, 2048*1024), (SWG, 512*2752), (SWQ, 512*1024), (SWV, 16384), (SDBG, 256), (SWS, WS_BYTES)):
    e(f"s_mov_b32 s{d+2}, {nbytes}\ns_mov_b32 s{d+3}, 0x20000")
def late_srd(lst):
    for d, off, nbytes in lst:
        e(f"s_load_dwordx2 s[{d}:{d+1}], s[0:1], {off}\ns_mov_b32 s{d+2}, {nbytes}\ns_mov_b32 s{d+3}, 0x20000")
LS_A = [(SOUT, 72, 2048*1024)]; LS_F = [(SWO, 32, 512*1024), (SWD, 64, 1376*1024)]
def entry_stamp(defer=False):
    if PROF:
        e(f"s_lshl_b32 s{sPo}, s2, 3\ns_add_u32 s{sPo}, s{sPo}, s{sW}\ns_lshl_b32 s{sPo}, s{sPo}, 8\ns_add_u32 s{sPo}, s{sPo}, {PROFO}")
    if defer: tstamp(0); return
    stamp(0); rt_out()
def rt_out():
    if RT: e(f"s_nop 1\nv_mov_b32 v0, s100\nbuffer_store_dword v0, off, {sr(SWS,4)}, s{sPo} offset:60\ns_nop 1\nv_mov_b32 v0, s98\nbuffer_store_dword v0, off, {sr(SWS,4)}, s{sPo} offset:16")
def row_loads():
    e(f"""s_lshl_b32 s{sT1}, s{sRow}, 11
    buffer_load_dwordx4 {vr(vRs,4)}, v{vL16}, {sr(SX,4)}, s{sT1} offen
    buffer_load_dwordx4 {vr(vRs+4,4)}, v{vL16}, {sr(SX,4)}, s{sT1} offen offset:1024""")
WKV = 131072
vXf, vWk = 32, 192
sXb = sMw
def kvx_dma(c):
    return [f"""s_add_u32 m0, s{sXb}, {4096*c+2048*hf}
        s_add_u32 s{sT0}, s{sXo}, {128*c+16384*hf}
        buffer_load_dwordx4 v{vXa0}, {sr(SX,4)}, s{sT0} offen lds
        buffer_load_dwordx4 v{vXa1}, {sr(SX,4)}, s{sT0} offen offset:1024 lds""" for hf in range(2)]
e(f"""s_cbranch_scc1 Lkv0
s_cmp_lt_u32 s{sW}, 4
s_cbranch_scc1 Lhelp
s_waitcnt lgkmcnt(0)""")
row_loads()
e(f"""s_cmp_lg_u32 s{sJ}, 14
s_cbranch_scc1 Lcomp
s_add_u32 s{sT1}, s{sT1}, 8192
buffer_load_dwordx4 {vr(vRs2,4)}, v{vL16}, {sr(SX,4)}, s{sT1} offen
buffer_load_dwordx4 {vr(vRs2+4,4)}, v{vL16}, {sr(SX,4)}, s{sT1} offen offset:1024
s_branch Lcomp
Lkv0:
s_memrealtime s[{sTm}:{sTm+1}]
s_lshl_b32 s{sXb}, s{sW}, 14
s_lshr_b32 s{sT3}, s{sW}, 2
s_lshl_b32 s{sT0}, s{sT3}, 9
s_add_u32 s{sXo}, s{sXo}, s{sT0}
s_or_b32 s{sT0}, s2, s{sW}
s_cmp_lg_u32 s{sT0}, 0
s_waitcnt lgkmcnt(0)
s_cbranch_scc1 Lnotag
s_or_b32 s{sTm}, s{sTm}, 1
v_mov_b32 v{vPoll}, s{sTm}
v_mov_b32 v{vPoll+1}, s{sTm+1}
s_mov_b64 exec, 1
buffer_store_dwordx2 {vr(vPoll,2)}, off, {sr(SDBG,4)}, 0 sc1
s_mov_b64 exec, -1
Lnotag:
s_lshl_b32 s{sT0}, s{sW}, 11
s_add_u32 m0, s{sT0}, {WKV}
s_nop 0
buffer_load_dwordx4 v{vL16}, {sr(SWV,4)}, s{sT0} offen lds
buffer_load_dwordx4 v{vL16}, {sr(SWV,4)}, s{sT0} offen offset:1024 lds
s_add_u32 m0, s{sT0}, {WKV+16384}
s_nop 0
buffer_load_dwordx4 v{vL16}, {sr(SWK,4)}, s{sT0} offen lds
buffer_load_dwordx4 v{vL16}, {sr(SWK,4)}, s{sT0} offen offset:1024 lds""")
for x in kvx_dma(0): e(x)
e("s_branch Lkvcu\nLhelp:")

def v_lane_addr(d):
    e(f"""v_and_b32 v{d}, 15, v{vLane}
    v_lshlrev_b32 v{d}, 4, v{d}
    v_lshl_add_u32 v{d}, v{vH}, 8, v{d}
    s_mov_b32 exec_lo, 0xffff0000
    s_mov_b32 exec_hi, 0xffff0000
    v_mov_b32 v{d}, 512""")
def fin_init():
    e(f"""s_lshl_b32 s{sT0}, s{sTB}, 16
    s_lshl_b32 s{sT1}, s{sCS}, 7
    s_add_u32 s{sT0}, s{sT0}, s{sT1}
    s_lshl_b32 s{sT1}, s{sW4}, 14
    s_add_u32 s{sXf}, s{sT0}, s{sT1}
    s_add_u32 s{sXf2}, s{sXf}, 8192
    v_lshrrev_b32 v{vT0}, 3, v{vLane}
    v_and_b32 v{vT1}, 7, v{vLane}
    v_lshlrev_b32 v{vRa}, 10, v{vT0}
    v_lshl_add_u32 v{vRa}, v{vT1}, 4, v{vRa}
    v_bfe_u32 v{vT1}, v{vLane}, 1, 2
    v_mul_u32_u24 v{vT1}, {XB}, v{vT1}
    v_lshl_add_u32 v{vT0}, v{vT0}, 4, v{vT1}
    v_and_b32 v{vT1}, 1, v{vLane}
    v_mul_u32_u24 v{vT1}, {XP}, v{vT1}
    s_and_b32 s{sT0}, s{sW4}, 1
    s_lshl_b32 s{sT0}, s{sT0}, 8
    v_add3_u32 v{vT0}, v{vT0}, v{vT1}, s{sT0}
    s_lshr_b32 s{sT0}, s{sW4}, 1
    s_mul_i32 s{sT1}, s{sT0}, {4*XB}
    s_add_u32 s{sT1}, s{sT1}, {XF0}
    v_add_u32 v{vRr}, s{sT1}, v{vT0}
    s_mul_i32 s{sT1}, s{sT0}, {XS1}
    v_add_u32 v{vRr2}, s{sT1}, v{vT0}""")
FS = "--asent" not in sys.argv
def a_init():
    a_sent(); a_addr()
def a_sent(store=False):
    e(f"""s_lshl_b32 s{sT0}, s{sI}, 2
    s_add_u32 s{sT0}, s{sT0}, s{sW4}
    s_lshl_b32 s{sT0}, s{sT0}, 5
    s_lshr_b32 s{sT1}, s{sJ}, 1
    s_add_u32 s{sT0}, s{sT0}, s{sT1}
    s_and_b32 s{sT1}, s{sJ}, 1
    s_lshl_b32 s{sT1}, s{sT1}, 4
    s_add_u32 s{sT0}, s{sT0}, s{sT1}
    s_lshl_b32 s{sT0}, s{sT0}, 10
    s_add_u32 s{sOp}, s{sT0}, {OIMG}
    s_add_u32 s{sOp2}, s{sOp}, 8192""")
    if not FS or store: e(f"""v_mov_b64 v[232:233], -1
    v_mov_b64 v[234:235], -1
    buffer_store_dwordx4 v[232:235], v{vL16}, {sr(SWS,4)}, s{sOp} offen sc1
    buffer_store_dwordx4 v[232:235], v{vL16}, {sr(SWS,4)}, s{sOp2} offen sc1""")
    if store: return
def a_addr(zero=True):
    v_lane_addr(vAv)
    e(f"""s_mov_b32 exec_lo, 0xffee0000
    s_mov_b32 exec_hi, 0xffee0000
    v_mov_b32 v{vAv}, 0x4000000
    s_mov_b64 exec, -1
    v_add_u32 v{vAv}, 1024, v{vAv}
    v_mov_b32 v{vAk}, v{vL16}
    v_mov_b32 v{vIdx}, 0xdddd
    s_lshl_b32 s{sT0}, s{sW4}, 11
    s_add_u32 s{sT0}, s{sT0}, {QIMG}
    v_add_u32 v{vAq}, s{sT0}, v{vL16}""")
    if zero: a_zero()
def a_zero():
    for b in range(2):
        for r in range(0, 12, 2): e(f"v_mov_b64 {vr(aO[b]+r,2)}, 0")
def f_init():
    e(f"""v_lshrrev_b32 v{vT0}, 3, v{vLane}
    v_lshlrev_b32 v{vT0}, 10, v{vT0}
    v_and_b32 v{vT1}, 7, v{vLane}
    v_bfe_u32 v{vT2}, v{vLane}, 4, 1
    v_lshlrev_b32 v{vT2}, 2, v{vT2}
    v_xor_b32 v{vT1}, v{vT1}, v{vT2}
    v_lshl_add_u32 v{vDa}, v{vT1}, 4, v{vT0}
    v_add_u32 v{vDa2}, {8192-1024}, v{vDa}
    s_lshl_b32 s{sDo}, s{sW4}, 14
    s_lshl_b32 s{sT1}, s{sCS}, 7
    s_add_u32 s{sDo}, s{sDo}, s{sT1}
    s_lshl_b32 s{sDm}, s{sW4}, 11
    s_mul_i32 s{sHo}, s{sTB}, 176
    s_mul_i32 s{sT0}, s{sW4}, 22
    s_add_u32 s{sHo}, s{sHo}, s{sT0}
    s_lshl_b32 s{sHo}, s{sHo}, 10
    s_add_u32 s{sHo}, s{sHo}, {HIMG}
    s_lshl_b32 s{sT0}, s{sTB}, 3
    s_add_u32 s{sT0}, s{sT0}, s{sW4}
    s_lshl_b32 s{sT0}, s{sT0}, 13
    s_add_u32 s{sOc}, s{sT0}, {OIMG}
    s_add_u32 s{sOc2}, s{sOc}, 4096
    s_add_u32 s{sOc3}, s{sOc}, 32768
    s_add_u32 s{sOc4}, s{sOc}, {32768+4096}
    s_lshr_b32 s{sHc}, s{sTB}, 1
    s_lshl_b32 s{sHc}, s{sHc}, 11
    s_add_u32 s{sHc}, s{sHc}, {HFLG}
    s_lshl_b32 s{sHs}, s{sI}, 4
    s_add_u32 s{sHs}, s{sHs}, s{sJ}
    s_lshl_b32 s{sHs}, s{sHs}, 7
    s_add_u32 s{sHs}, s{sHs}, {HFLG}
    v_bfe_u32 v{vT0}, v{vLane}, 2, 2
    v_lshl_add_u32 v{vT0}, v{vH}, 2, v{vT0}
    v_lshlrev_b32 v{vT0}, 7, v{vT0}
    v_bfe_u32 v{vT1}, v{vLane}, 4, 1
    v_lshl_add_u32 v{vT0}, v{vT1}, 5, v{vT0}
    v_and_b32 v{vT1}, 3, v{vLane}
    v_lshl_add_u32 v{vT0}, v{vT1}, 3, v{vT0}
    v_bfe_u32 v{vT1}, v{vLane}, 3, 1
    v_lshl_add_u32 v{vT0}, v{vT1}, 6, v{vT0}
    v_add_u32 v{vRd}, s{sDm}, v{vT0}
    v_xor_b32 v{vRd+1}, 64, v{vRd}
    v_add_u32 v{vRd+2}, {SP[0]}, v{vRd}
    v_add_u32 v{vRd+3}, {SP[0]}, v{vRd+1}
    s_mul_i32 s{sT0}, s{sW4}, {XK}
    v_add_u32 v{vRw2}, s{sT0}, v{vL16}
    v_add_u32 v{vRw}, {XF0}, v{vRw2}
    v_add_u32 v{vRw2+1}, {XS1}, v{vRw2}""")
def kv_rest(tag):
    e(f"s_setprio 0\ns_lshl_b32 s{sT1}, s{sW4}, 12")
    for n in range(6):
        e(f"s_add_u32 s{sT0}, s{sT1}, {36*1024+16384*n}\ns_mov_b32 m0, s{sT0}\ns_nop 0")
        for k in range(4): e(f"buffer_load_dwordx4 v{vL16}, {sr(SWS,4)}, s{sT0} offen offset:{1024*k} sc1 lds")
    e(tag_issue())
    e("s_setprio 2")

def spread(m, fill):
    w = [16 if "16x16" in x else 32 for x in m]
    tot = sum(c for c, _ in fill); W = sum(w)
    out = []; k = 0; acc = 0; cw = 0
    for x, wx in zip(m, w):
        out.append(x); cw += wx
        while k < len(fill) and (acc + fill[k][0]/2) * W <= tot * cw:
            out.append(fill[k][1]); acc += fill[k][0]; k += 1
    out += [t for _, t in fill[k:]]
    return out


C1 = -2*0.7978845608028654*1.4426950408889634
C3 = C1*0.044715
def gelu_consts(m, r, d):
    e(f"""v_sub_f32 v{d}, 0, v{m}
    v_mul_f32 v{d+3}, v{r}, v{r}
    v_mul_f32 v{d+1}, {f2u(C1):#x}, v{r}
    v_mul_f32 v{d+2}, {f2u(C3):#x}, v{r}
    v_mul_f32 v{d+2}, v{d+2}, v{d+3}
    v_rcp_f32 v{d+3}, v{d+3}""")
def bc(reg, pos, n):
    base = reg & ~1
    return vr(base, 2), reg & 1
def pk(op, d, srcs, neg=None):
    if any(t == 'b' for t, _ in srcs):
        o = op.replace("v_pk_", "v_")
        return "\n".join(f"{o} v{d+h}, " + ", ".join(f"v{r+h if t == 'p' else r}" for t, r in srcs) for h in range(2))
    return f"{op} {vr(d,2)}, " + ", ".join(vr(r, 2) for _, r in srcs)
GM = sys.argv[sys.argv.index("--gm")+1] if "--gm" in sys.argv else "plain"
def gelu_tile(g, u, csg, csu, k, tmp, n=16, dst=None):
    if GM == "plain":
        for p in range(n): e(f"v_fmac_f32 v{g+p}, v{k}, v{csg+p}")
        for p in range(n): e(f"v_fmac_f32 v{u+p}, v{k}, v{csu+p}")
        for p in range(n): e(f"v_mul_f32 v{tmp+p}, v{g+p}, v{g+p}")
        for p in range(n): e(f"v_fma_f32 v{tmp+p}, v{tmp+p}, v{k+2}, v{k+1}")
        for p in range(n): e(f"v_mul_f32 v{tmp+p}, v{tmp+p}, v{g+p}")
        for p in range(n): e(f"v_exp_f32 v{tmp+p}, v{tmp+p}")
        for p in range(n): e(f"v_mul_f32 v{u+p}, v{u+p}, v{g+p}")
        for p in range(n): e(f"v_fma_f32 v{tmp+p}, v{tmp+p}, v{k+3}, v{k+3}")
        for p in range(n): e(f"v_rcp_f32 v{tmp+p}, v{tmp+p}")
        e("s_nop 0")
        for p in range(n): e(f"v_mul_f32 v{u+p}, v{u+p}, v{tmp+p}")
    else:
        if GM == "dup":
            D = 76
            for c in range(4): e(f"v_mov_b32 v{D+2*c}, v{k+c}\nv_mov_b32 v{D+2*c+1}, v{k+c}")
            K = [('p', D+2*c) for c in range(4)]
        else: K = [('b', k+c) for c in range(4)]
        for p in range(0, n, 2):
            e(pk("v_pk_fma_f32", g+p, [K[0], ('p', csg+p), ('p', g+p)]))
            e(pk("v_pk_fma_f32", u+p, [K[0], ('p', csu+p), ('p', u+p)]))
        for p in range(0, n, 2): e(pk("v_pk_mul_f32", tmp+p, [('p', g+p), ('p', g+p)]))
        for p in range(0, n, 2): e(pk("v_pk_fma_f32", tmp+p, [('p', tmp+p), K[2], K[1]]))
        for p in range(0, n, 2): e(pk("v_pk_mul_f32", tmp+p, [('p', tmp+p), ('p', g+p)]))
        for p in range(n): e(f"v_exp_f32 v{tmp+p}, v{tmp+p}")
        for p in range(0, n, 2): e(pk("v_pk_mul_f32", u+p, [('p', u+p), ('p', g+p)]))
        for p in range(0, n, 2): e(pk("v_pk_fma_f32", tmp+p, [('p', tmp+p), K[3], K[3]]))
        for p in range(n): e(f"v_rcp_f32 v{tmp+p}, v{tmp+p}")
        e("s_nop 0")
        for p in range(0, n, 2): e(pk("v_pk_mul_f32", u+p, [('p', u+p), ('p', tmp+p)]))
    for p in range(n//2): e(f"v_cvt_pk_bf16_f32 v{dst[p] if dst else g+p}, v{u+2*p}, v{u+2*p+1}")

def cs_read(d, slot_off):
    for q in range(4): e(f"ds_read_b128 {vr(d+4*q,4)}, v{vT3} offset:{slot_off+32*q}")

def lin_fold(acc, cs, negm, scale, n=16):
    for p in range(0, n, 2):
        e(pk("v_pk_fma_f32", acc+p, [('b', negm), ('p', cs+p), ('p', acc+p)]))
    for p in range(0, n, 2):
        e(pk("v_pk_mul_f32", acc+p, [('p', acc+p), ('b', scale)]))

def q_epilogue(cs):
    e(f"v_mul_f32 v{vSt+2}, {f2u(0.25*1.4426950408889634):#x}, v{vSt+1}")
    lin_fold(vAcc, cs, vSt+4, vSt+2)
    for p in range(8): e(f"v_cvt_pk_bf16_f32 v{vAcc+p}, v{vAcc+2*p}, v{vAcc+2*p+1}")
    e(f"""s_lshl_b32 s{sT0}, s{sW4}, 11
    s_add_u32 s{sT0}, s{sT0}, {QIMG}
    v_lshl_add_u32 v{vT0}, v{vLane}, 4, s{sT0}
    ds_write_b128 v{vT0}, {vr(vAcc,4)}
    ds_write_b128 v{vT0}, {vr(vAcc+4,4)} offset:1024""")


def rowstat_finish(vRs=vRs):
    a = vRs+8
    e(f"v_mov_b32 v{vT0}, 0x3f803f80")
    for k in range(4):
        for r in range(2):
            x = vRs+4*r+k
            c0 = "0" if k == 0 else f"v{a+2*r}"; c1 = "0" if k == 0 else f"v{a+2*r+1}"
            e(f"v_dot2_f32_bf16 v{a+2*r}, v{x}, v{vT0}, {c0}\nv_dot2_f32_bf16 v{a+2*r+1}, v{x}, v{x}, {c1}")
    e("s_nop 2")
    for ctl in ("row_shr:1", "row_shr:2", "row_shr:4", "row_shr:8"):
        for k in range(4): e(f"v_add_f32_dpp v{a+k}, v{a+k}, v{a+k} {ctl} row_mask:0xf bank_mask:0xf bound_ctrl:0")
    for ctl in ("row_bcast:15 row_mask:0xa", "row_bcast:31 row_mask:0xc"):
        for k in range(4): e(f"v_add_f32_dpp v{a+k}, v{a+k}, v{a+k} {ctl} bank_mask:0xf")
    for r in range(2):
        d = vRs+4*r
        e(f"""v_mul_f32 v{d}, {f2u(1/512):#x}, v{a+2*r}
        v_mul_f32 v{d+1}, {f2u(1/512):#x}, v{a+2*r+1}
        v_fma_f32 v{d+1}, -v{d}, v{d}, v{d+1}
        v_max_f32 v{d+1}, 0, v{d+1}
        v_add_f32 v{d+1}, {f2u(1e-5):#x}, v{d+1}
        v_rsq_f32 v{d+1}, v{d+1}""")
def rowstat_post(vRs=vRs, off=0):
    e(f"""s_lshl_b32 s{sT0}, s{sW4}, 4
    s_add_u32 s{sT0}, s{sT0}, {STL+off}
    v_mov_b32 v{vT0}, s{sT0}
    s_mov_b32 exec_lo, 0
    s_brev_b32 exec_hi, 1
    ds_write_b64 v{vT0}, {vr(vRs,2)}
    ds_write_b64 v{vT0}, {vr(vRs+4,2)} offset:8
    s_mov_b64 exec, -1""")
def kv_dma(tag):
    e(f"s_mul_i32 s{sT1}, s{sW4}, 3072")
    for n in range(3):
        e(f"s_add_u32 s{sT0}, s{sT1}, {12288*n}\ns_mov_b32 m0, s{sT0}\ns_nop 0")
        for k in range(3): e(f"buffer_load_dwordx4 v{vL16}, {sr(SWS,4)}, s{sT0} offen offset:{1024*k} sc1 lds")
def tr_lane(rowmul, d):
    e(f"""v_lshrrev_b32 v{vT0}, 4, v{vLane}
    v_bfe_u32 v{vT1}, v{vLane}, 2, 2
    v_lshl_add_u32 v{vT0}, v{vT0}, 3, v{vT1}
    v_mul_u32_u24 v{vT0}, {rowmul}, v{vT0}
    v_bfe_u32 v{vT1}, v{vLane}, 4, 1
    v_lshl_add_u32 v{vT0}, v{vT1}, 5, v{vT0}
    v_and_b32 v{vT1}, 3, v{vLane}
    v_lshl_add_u32 v{d}, v{vT1}, 3, v{vT0}""")
def ones_col0(d):
    e(f"""v_and_b32 v{vT0}, 15, v{vLane}
    v_cmp_eq_u32 vcc, 0, v{vT0}
    v_mov_b32 v{vT1}, 0x3f803f80
    s_nop 0
    v_cndmask_b32 v{d}, 0, v{vT1}, vcc""")
    for k in range(1, 4): e(f"v_mov_b32 v{d+k}, v{d}")
def rot_delta():
    return f"s_add_u32 s{sRb}, s{sRb}, 1\ns_cmp_eq_u32 s{sRb}, 3\ns_cselect_b32 s{sDl}, s{sC3}, {STG}\ns_cselect_b32 s{sRb}, 0, s{sRb}"
def cs16_write(accs, slot0_sreg, stride):
    e(f"v_add_u32 v{vT0}, s{slot0_sreg}, v{vLane}\ns_mov_b32 exec_lo, 0x00010001\ns_mov_b32 exec_hi, 0x00010001")
    for n, a in enumerate(accs): e(f"ds_write_b128 v{vT0}, {vr(a,4)} offset:{stride*n}")
    e("s_mov_b64 exec, -1")

ROT = int(sys.argv[sys.argv.index("--rot")+1]) if "--rot" in sys.argv else 7
sKs = 84
sM1, sM2, sPub, sCg = 66, 67, 68, 69
C0 = "--c0" in sys.argv
NR = 7 if C0 else 8
def dma_x():
    return [f"s_add_u32 m0, s{sLb}, s{sMx}", f"s_add_u32 s{sT0}, s{sXo}, 16384",
            f"buffer_load_dwordx4 v{vXa0}, {sr(SX,4)}, s{sXo} offen lds",
            f"buffer_load_dwordx4 v{vXa1}, {sr(SX,4)}, s{sXo} offen offset:1024 lds",
            "s_add_u32 m0, m0, 2048", f"s_add_u32 s{sXo}, s{sXo}, 128",
            f"buffer_load_dwordx4 v{vXa0}, {sr(SX,4)}, s{sT0} offen lds",
            f"buffer_load_dwordx4 v{vXa1}, {sr(SX,4)}, s{sT0} offen offset:1024 lds"]
def dma_w():
    r = []
    for k, sd in enumerate((SWG, SWU)):
        r += [f"s_add_u32 m0, s{sLb}, s{sMw}" if k == 0 else f"s_add_u32 m0, m0, {UOFF-GOFF}", "s_nop 0",
              f"buffer_load_dwordx4 v{vWa0}, {sr(sd,4)}, s{sWo} offen lds",
              f"buffer_load_dwordx4 v{vWa1}, {sr(sd,4)}, s{sWo} offen offset:1024 lds",
              f"buffer_load_dwordx4 v{vWa2}, {sr(sd,4)}, s{sWo} offen offset:2048 lds"]
    r += [f"s_add_u32 m0, s{sLb}, s{sMq}", f"s_add_u32 s{sWo}, s{sWo}, {64*2752}",
          f"buffer_load_dwordx4 v{vQa}, {sr(SWQ,4)}, s{sQo} offen lds", f"s_add_u32 s{sQo}, s{sQo}, 65536",
          f"s_add_u32 s{sLb}, s{sLb}, {STG}", f"s_cmp_ge_u32 s{sLb}, {3*STG}", f"s_cselect_b32 s{sLb}, 0, s{sLb}"]
    if ROT:
        r += [f"s_add_u32 s{sKs}, s{sKs}, 1", f"s_cmp_eq_u32 s{sKs}, 8",
              f"s_cselect_b32 s{sT0}, {128*NR}, 0", f"s_cselect_b32 s{sT1}, {64*NR*2752}, 0", f"s_cselect_b32 s{sT2}, {64*NR*1024}, 0",
              f"s_sub_u32 s{sXo}, s{sXo}, s{sT0}", f"s_sub_u32 s{sWo}, s{sWo}, s{sT1}", f"s_sub_u32 s{sQo}, s{sQo}, s{sT2}"]
    return r
e(f"s_mov_b32 s{sLb}, 0\ns_lshl_b32 s{sMx}, s{sW4}, 12")
if ROT and "--rm" in sys.argv: e(f"s_lshl_b32 s{sKs}, s{sI if M48 else sJ}, 1\ns_add_u32 s{sKs}, s{sKs}, s{sJ if M48 else sI}\ns_and_b32 s{sKs}, s{sKs}, {ROT}")
RM = sys.argv[sys.argv.index("--rm")+1] if "--rm" in sys.argv else "a"
if RM == "a":
    e(f"""s_xor_b32 s{sKs}, s{sI}, s{sJ}
    s_and_b32 s{sKs}, s{sKs}, 1
    s_lshl_b32 s{sKs}, s{sKs}, 2
    s_lshr_b32 s{sT0}, s{sI}, 1
    s_xor_b32 s{sT0}, s{sT0}, s{sJ}
    s_lshr_b32 s{sT0}, s{sT0}, 1
    s_and_b32 s{sT0}, s{sT0}, 2
    s_or_b32 s{sKs}, s{sKs}, s{sT0}""")
if RM == "b":
    e(f"""s_add_u32 s{sKs}, s{sI}, s{sJ}
    s_and_b32 s{sKs}, s{sKs}, 3
    s_lshl_b32 s{sKs}, s{sKs}, 1
    s_lshr_b32 s{sT0}, s{sI}, 1
    s_xor_b32 s{sT0}, s{sT0}, s{sJ}
    s_bfe_u32 s{sT0}, s{sT0}, 0x10002
    s_or_b32 s{sKs}, s{sKs}, s{sT0}""")
if RM == "c":
    e(f"""s_lshr_b32 s{sKs}, s{sI}, 3
    s_lshl_b32 s{sKs}, s{sKs}, 2
    s_lshr_b32 s{sT0}, s{sJ}, 2
    s_lshl_b32 s{sT0}, s{sT0}, 1
    s_add_u32 s{sKs}, s{sKs}, s{sT0}
    s_and_b32 s{sKs}, s{sKs}, 7""")
if "--pr" in sys.argv:
    e(f"s_and_b32 s{sT0}, s{sI}, 6\ns_cmp_eq_u32 s{sT0}, 0\ns_cselect_b32 s{sKs}, s{sKs}, 0")
if ROT and C0: e(f"s_cmp_eq_u32 s{sKs}, 7\ns_cselect_b32 s{sKs}, 3, s{sKs}")
def rot_x(): e(f"s_lshl_b32 s{sT0}, s{sKs}, 7\ns_add_u32 s{sXo}, s{sXo}, s{sT0}")
def rot_w(): e(f"s_mul_i32 s{sT0}, s{sKs}, {64*2752}\ns_add_u32 s{sWo}, s{sWo}, s{sT0}\ns_lshl_b32 s{sT0}, s{sKs}, 16\ns_add_u32 s{sQo}, s{sQo}, s{sT0}")
if ROT and not C0: rot_x()
e(f"s_lshl_b32 s{sCg}, s{sJ}, 13\ns_add_u32 s{sCg}, s{sCg}, {CSG}\ns_lshl_b32 s{sC1}, s{sKs}, 10\ns_add_u32 s{sC1}, s{sC1}, s{sCg}")
LZ = "--nolz" not in sys.argv
if LZ: e(f"s_cmp_eq_u32 s{sJ}, 14\ns_cselect_b32 s{sT3}, 8, 0\nv_mov_b32 v{vT3}, 0x40000000")
for k, r in enumerate((vWa0, vWa1, vWa2)):
    e(f"""v_add_u32 v{vT0}, {64*k}, v{vLane}
    v_mul_u32_u24 v{vT1}, 43691, v{vT0}
    v_lshrrev_b32 v{vT1}, 19, v{vT1}
    v_mul_u32_u24 v{vT2}, 12, v{vT1}
    v_sub_u32 v{vT0}, v{vT0}, v{vT2}
    v_lshrrev_b32 v{vT2}, 2, v{vT1}
    v_and_b32 v{vT2}, 2, v{vT2}
    v_xor_b32 v{vT0}, v{vT0}, v{vT2}
    v_mul_u32_u24 v{vT1}, 2752, v{vT1}
    v_lshl_add_u32 v{r}, v{vT0}, 4, v{vT1}""")
    if LZ: e(f"v_cmp_gt_u32 vcc, s{sT3}, v{vT0}")
    if k: e(f"v_subrev_u32 v{r}, {1024*k}, v{r}")
    if LZ: e(f"s_nop 1\nv_cndmask_b32 v{r}, v{r}, v{vT3}, vcc")
e(f"""v_lshrrev_b32 v{vT0}, 2, v{vLane}
v_lshlrev_b32 v{vT0}, 10, v{vT0}
v_and_b32 v{vT1}, 3, v{vLane}
v_lshlrev_b32 v{vT2}, 1, v{vH}
v_xor_b32 v{vT1}, v{vT1}, v{vT2}
v_lshl_add_u32 v{vQa}, v{vT1}, 4, v{vT0}
s_mul_i32 s{sT0}, s{sJ}, 96
s_min_u32 s{sT0}, s{sT0}, 1280
s_lshl_b32 s{sT0}, s{sT0}, 1
s_mul_i32 s{sWo}, s{sW4}, {16*2752}
s_add_u32 s{sWo}, s{sWo}, s{sT0}
s_lshl_b32 s{sQo}, s{sW4}, 14
s_lshl_b32 s{sT0}, s{sJ}, 6
s_add_u32 s{sQo}, s{sQo}, s{sT0}
s_mul_i32 s{sMw}, s{sW4}, 3072
s_add_u32 s{sMw}, s{sMw}, {GOFF}
s_lshl_b32 s{sMq}, s{sW4}, 10
s_add_u32 s{sMq}, s{sMq}, {QOFF}""")
if ROT and not C0: rot_w()
if "--noded" not in sys.argv:
    e(f"""s_lshl_b32 s{sT0}, s{sW4}, 15
    s_sub_u32 s{sXo}, s{sXo}, s{sT0}
    s_sub_u32 s{sT3}, 4, s{sW4}
    s_mul_i32 s{sT0}, s{sT3}, {16*2752}
    s_sub_u32 s{sWo}, s{sWo}, s{sT0}
    s_lshl_b32 s{sT0}, s{sT3}, 14
    s_sub_u32 s{sQo}, s{sQo}, s{sT0}
    s_mul_i32 s{sT0}, s{sT3}, 3072
    s_sub_u32 s{sMw}, s{sMw}, s{sT0}
    s_lshl_b32 s{sT0}, s{sT3}, 10
    s_sub_u32 s{sMq}, s{sMq}, s{sT0}
    s_add_u32 s{sMx}, s{sMq}, 1024""")
if JX:
    e(f"""s_memrealtime s[{sTm}:{sTm+1}]
    s_or_b32 s{sT0}, s2, s{sW}
    s_cmp_lg_u32 s{sT0}, 0
    s_waitcnt lgkmcnt(0)
    s_cbranch_scc1 Lnotag2
    s_or_b32 s{sTm}, s{sTm}, 1
    v_mov_b32 v{vPoll}, s{sTm}
    v_mov_b32 v{vPoll+1}, s{sTm+1}
    s_mov_b64 exec, 1
    buffer_store_dwordx2 {vr(vPoll,2)}, off, {sr(SDBG,4)}, 0 sc1
    s_mov_b64 exec, -1
    Lnotag2:""")
else: e("s_waitcnt lgkmcnt(0)")
DED = "--noded" not in sys.argv
hF = 30
hW = 32
TG = True
def adv():
    return [f"s_add_u32 s{sLb}, s{sLb}, {STG}", f"s_cmp_ge_u32 s{sLb}, {3*STG}", f"s_cselect_b32 s{sLb}, 0, s{sLb}",
            f"s_add_u32 s{sKs}, s{sKs}, 1", f"s_cmp_eq_u32 s{sKs}, 8"]
def ded_x():
    r = []
    for k in range(8):
        r += [f"s_add_u32 m0, s{sLb}, {2048*k}", f"s_add_u32 s{sT0}, s{sXo}, {16384*k}",
              f"buffer_load_dwordx4 v{vXa0}, {sr(SX,4)}, s{sT0} offen lds",
              f"buffer_load_dwordx4 v{vXa1}, {sr(SX,4)}, s{sT0} offen offset:1024 lds"]
    return r + adv() + [f"s_cselect_b32 s{sT0}, 1024, 0", f"s_add_u32 s{sXo}, s{sXo}, 128", f"s_sub_u32 s{sXo}, s{sXo}, s{sT0}"]
def ded_w():
    r = [f"s_add_u32 s{sT1}, s{sLb}, s{sMw}", f"s_add_u32 s{sT2}, s{sWo}, {16*2752}"]
    for hf in range(2):
        for k, sd in enumerate((SWG, SWU)):
            so = sWo if hf == 0 else sT2
            r += [f"s_add_u32 m0, s{sT1}, {3072*hf+(UOFF-GOFF)*k}", "s_nop 0",
                  f"buffer_load_dwordx4 v{vWa0}, {sr(sd,4)}, s{so} offen lds",
                  f"buffer_load_dwordx4 v{vWa1}, {sr(sd,4)}, s{so} offen offset:1024 lds",
                  f"buffer_load_dwordx4 v{vWa2}, {sr(sd,4)}, s{so} offen offset:2048 lds"]
        r += [f"s_add_u32 m0, s{sLb}, s{sMq}" if hf == 0 else f"s_add_u32 m0, s{sLb}, s{sMx}", f"s_add_u32 s{sT0}, s{sQo}, {16384*hf}",
              f"buffer_load_dwordx4 v{vQa}, {sr(SWQ,4)}, s{sT0} offen lds"]
    return r + adv() + [f"s_cselect_b32 s{sT1}, {512*2752}, 0", f"s_cselect_b32 s{sT2}, {512*1024}, 0",
                        f"s_add_u32 s{sWo}, s{sWo}, {64*2752}", f"s_add_u32 s{sQo}, s{sQo}, 65536",
                        f"s_sub_u32 s{sWo}, s{sWo}, s{sT1}", f"s_sub_u32 s{sQo}, s{sQo}, s{sT2}"]
def h_common():
    late_srd(LS_A)
    e(f"""s_lshl_b32 s{sT0}, s{sW4}, 2
    s_add_u32 s{sT0}, s{sT0}, {KFL}
    v_mov_b32 v{hF}, s{sT0}
    v_mov_b32 v{hF+1}, 0
    v_mov_b32 v{vT0}, {KFL}
    ds_write_b32 v{hF}, v{hF+1}
    ds_write_b32 v{vT0}, v{hF+1} offset:16
    s_mov_b32 s{sSt}, 0""")
def ded_loop(t, dma, n):
    for x in dma() + dma(): e(x)
    h_common()
    e(f"s_waitcnt vmcnt({n}) lgkmcnt(0)\ns_barrier\nLhl{t}:")
    for x in dma(): e(x)
    e(f"s_add_u32 s{sSt}, s{sSt}, 1\ns_waitcnt vmcnt({n})\ns_barrier\ns_cmp_lt_u32 s{sSt}, 6\ns_cbranch_scc1 Lhl{t}\ns_branch Lh6")
if DED:
    entry_stamp()
    e(f"s_cmp_lt_u32 s{sW}, 2\ns_cbranch_scc1 Lhx")
    ded_loop("w", ded_w, 14)
    e(f"Lhx:\ns_cmp_eq_u32 s{sW}, 0\ns_cbranch_scc1 Lh0")
    ded_loop("x", ded_x, 16)
    WT = int(sys.argv[sys.argv.index("--wt")+1]) if "--wt" in sys.argv else -1
    WE = "--we" in sys.argv
    def wtouch():
        ng = -(-((8-WT)*64*2752//128)//240); nq = -(-((8-WT)*64*8)//240)
        e(f"s_mul_i32 s{sT2}, s{sI}, 15\ns_add_u32 s{sT2}, s{sT2}, s{sJ}")
        for n, base, sds, r in ((ng, WT*64*2752//128, (SWG, SWU), 26), (nq, WT*64*8, (SWQ,), 27)):
            e(f"""s_mul_i32 s{sT1}, s{sT2}, {n}
            s_add_u32 s{sT1}, s{sT1}, {base}
            v_add_u32 v{r}, s{sT1}, v{vLane}
            v_lshlrev_b32 v{r}, 7, v{r}
            s_bfm_b64 exec, {n}, 0""")
            for sd in sds: e(f"buffer_load_dword v28, v{r}, {sr(sd,4)}, 0 offen")
            e("s_mov_b64 exec, -1")
    e("Lh0:")
    e(tag_issue())
    h_common()
    if WT >= 0 and WE:
        e("s_waitcnt vmcnt(0)")
        wtouch()
    e(f"s_waitcnt lgkmcnt(0)\ns_barrier")
    stamp(12)
    e(f"v_lshlrev_b32 v{vT0}, 3, v{vLane}\nv_add_u32 v{vT0}, {STL}, v{vT0}\nds_read_b64 {vr(hW,2)}, v{vT0}")
    tag_wait("p", 0, True)
    if WT >= 0 and not WE: wtouch()
    e(f"""v_mov_b32 v{hW+2}, s{sNo}
    v_mov_b32 v{hW+3}, s{sNo+1}
    s_lshl_b32 s{sT0}, s{sRow}, 5
    s_add_u32 s{sT0}, s{sT0}, {STATG}
    s_cmp_eq_u32 s{sJ}, 14
    s_mov_b32 exec_hi, 0
    s_mov_b32 exec_lo, 0xff
    s_cselect_b32 exec_lo, 0xffff, exec_lo
    s_waitcnt lgkmcnt(0)
    buffer_store_dwordx4 {vr(hW,4)}, v{vL16}, {sr(SWS,4)}, s{sT0} offen sc1
    s_mov_b64 exec, -1
    s_barrier
    s_barrier
    s_barrier
    s_and_b32 s{sT0}, s{sI}, 6
    s_cmp_lg_u32 s{sT0}, 0
    s_cbranch_scc1 Lnpc
    ds_read_b64 {vr(hW+8,2)}, v{vT0}
    ds_read_b64 {vr(hW+4,2)}, v{vT0} offset:512
    v_mov_b32 v{hW+10}, s{sNo}
    v_mov_b32 v{hW+11}, s{sNo+1}
    v_mov_b32 v{hW+6}, s{sNo}
    v_mov_b32 v{hW+7}, s{sNo+1}
    s_waitcnt lgkmcnt(0)
    buffer_store_dwordx4 {vr(hW+8,4)}, v{vL16}, {sr(SWS,4)}, s{sC1} offen sc1
    buffer_store_dwordx4 {vr(hW+4,4)}, v{vL16}, {sr(SWS,4)}, s{sC1} offen offset:1024 sc1
    Lnpc:
    s_barrier
    s_barrier
    s_barrier
    Lh6:""")
else:
    entry_stamp()
    for x in dma_x(): e(x)
    w0 = dma_w()
    if ROT and C0:
        k = w0.index(f"s_add_u32 s{sKs}, s{sKs}, 1")
        for x in w0[:k]: e(x)
        rot_x(); rot_w(); e(w0[k])
    else:
        for x in w0: e(x)
    for x in dma_x() + dma_w(): e(x)
    TG = "--oldtag" not in sys.argv
    if TG:
        e(f"""s_and_b32 s{sT0}, s{sI}, 6
        s_or_b32 s{sT0}, s{sT0}, s{sW}
        s_cmp_eq_u32 s{sT0}, 0
        s_cselect_b32 s{sPub}, 3, 99
        v_mov_b64 {vr(vPoll,2)}, 0
        s_cmp_eq_u32 s{sW}, 0
        s_cbranch_scc0 Lnt0""")
        e(tag_issue())
        e("Lnt0:")
    else: e(tag_issue())
    late_srd(LS_A)
    hF = 30
    e(f"""s_lshl_b32 s{sT0}, s{sW4}, 2
    s_add_u32 s{sT0}, s{sT0}, {KFL}
    v_mov_b32 v{hF}, s{sT0}
    v_mov_b32 v{hF+1}, 0
    v_mov_b32 v{vT0}, {KFL}
    ds_write_b32 v{hF}, v{hF+1}
    ds_write_b32 v{vT0}, v{hF+1} offset:16""")
    hW = 32
    e(f"s_mov_b32 s{sSt}, 0\ns_mov_b32 s{sRb}, 0\ns_mov_b32 s{sC3}, {(-2*STG) & 0xffffffff}")
    if "--hp3" in sys.argv: e("s_setprio 3")
    tstamp(21)
    e("s_waitcnt vmcnt(11) lgkmcnt(0)")
    tstamp(23); e("s_barrier")
    stamp(12); tflush(); TS.clear()
    W11 = "s_waitcnt vmcnt(11)" if "--unsafeH" not in sys.argv else f"s_waitcnt vmcnt(13)\ns_cmp_eq_u32 s{sW}, 0\ns_cbranch_scc1 Lw12\ns_waitcnt vmcnt(11)\nLw12:"
    def helper_loop(cs):
        t = "c" if cs else "n"
        e(f"Lhl{t}:")
        if cs:
            rd, m = cs_parts()
            for x in rd: e(x)
            e(rot_delta())
            for x in dma_x(): e(x)
            e(f"v_add_u32 v{hA}, s{sDl}, v{hA}\nv_add_u32 v{hA+1}, s{sDl}, v{hA+1}\ns_waitcnt lgkmcnt(0)")
            w = dma_w(); k = 0
            for x in w:
                e(x)
                if "buffer_load" in x: e(m[k]); k += 1
            for x in m[k:]: e(x)
        else:
            for x in dma_x() + dma_w():
                if "--nodma" in sys.argv and "buffer_load" in x: continue
                e(x)
                if "--pace" in sys.argv and "buffer_load" in x: e("s_sleep 1")
            e(f"s_or_b32 s{sT0}, s{sSt}, s{sW}\ns_cmp_lg_u32 s{sT0}, 0\ns_cbranch_scc1 Lnpub")
            e(f"v_lshlrev_b32 v{vT0}, 3, v{vLane}\nv_add_u32 v{vT0}, {STL}, v{vT0}\nds_read_b64 {vr(hW,2)}, v{vT0}")
            tag_wait("p", 11, True)
            e(f"""v_mov_b32 v{hW+2}, s{sNo}
            v_mov_b32 v{hW+3}, s{sNo+1}
            s_lshl_b32 s{sT0}, s{sRow}, 5
            s_add_u32 s{sT0}, s{sT0}, {STATG}
            s_cmp_eq_u32 s{sJ}, 14
            s_mov_b32 exec_hi, 0
            s_mov_b32 exec_lo, 0xff
            s_cselect_b32 exec_lo, 0xffff, exec_lo
            s_waitcnt lgkmcnt(0)
            buffer_store_dwordx4 {vr(hW,4)}, v{vL16}, {sr(SWS,4)}, s{sT0} offen sc1
            s_mov_b64 exec, -1
            Lnpub:
            s_cmp_lg_u32 s{sSt}, s{sPub}
            s_cbranch_scc1 Lnpc
            v_lshlrev_b32 v{vT0}, 3, v{vLane}
            v_add_u32 v{vT0}, {CSUM}, v{vT0}
            ds_read_b64 {vr(hW,2)}, v{vT0}
            ds_read_b64 {vr(hW+4,2)}, v{vT0} offset:512
            v_mov_b32 v{hW+2}, s{sNo}
            v_mov_b32 v{hW+3}, s{sNo+1}
            v_mov_b32 v{hW+6}, s{sNo}
            v_mov_b32 v{hW+7}, s{sNo+1}
            s_waitcnt lgkmcnt(0)
            buffer_store_dwordx4 {vr(hW,4)}, v{vL16}, {sr(SWS,4)}, s{sC1} offen sc1
            buffer_store_dwordx4 {vr(hW+4,4)}, v{vL16}, {sr(SWS,4)}, s{sC1} offen offset:1024 sc1
            Lnpc:""")
            if not FS:
                e(f"s_cmp_lg_u32 s{sSt}, 2\ns_cbranch_scc1 Lnini")
                a_sent()
                e("Lnini:")
        e(f"""s_add_u32 s{sSt}, s{sSt}, 1
        {W11}
        s_barrier
        {tk(81)}
        s_cmp_lt_u32 s{sSt}, 6
        s_cbranch_scc1 Lhl{t}""")
    helper_loop(False)
tkout()
def st_loads():
    return f"""buffer_load_dwordx4 {vr(hW,4)}, v{vL16}, {sr(SWS,4)}, s{sC0} offen sc1
    buffer_load_dwordx4 {vr(hW+4,4)}, v{vL16}, {sr(SWS,4)}, s{sC0} offen offset:1024 sc1"""
e(f"s_lshl_b32 s{sC0}, s{sI}, 11\ns_add_u32 s{sC0}, s{sC0}, {STATG}\ns_mov_b32 s{sKf}, {KFLG}\nv_mov_b32 v{hF+1}, 1")
if TG: e(tag_issue())
e(f"s_cmp_lg_u32 s{sW}, 1\ns_cbranch_scc1 Lhn0\n{st_loads()}\nLhn0:")
if FS: a_sent()
a_addr(); fin_init()
tag_wait("h", 0)
e(f"""s_cmp_lg_u32 s{sW}, 1
s_cbranch_scc1 Lhns
s_mov_b32 s{sT0}, 0
s_branch Lhs1
Lhs:
{st_loads()}
s_waitcnt vmcnt(0)
Lhs1:
s_add_u32 s{sT0}, s{sT0}, 1
v_cmp_ne_u64 vcc, s[{sNo}:{sNo+1}], {vr(hW+2,2)}
v_cmp_ne_u64 s[{sEx}:{sEx+1}], s[{sNo}:{sNo+1}], {vr(hW+6,2)}
s_or_b64 vcc, vcc, s[{sEx}:{sEx+1}]
s_cmp_ge_u32 s{sT0}, 100000
s_cbranch_scc1 Lhns
s_cbranch_vccnz Lhs
Lhns:""")
LATEP = "--earlyp" not in sys.argv
def cs_loads():
    return "\n".join(f"buffer_load_dwordx4 {vr(hW+4*c,4)}, v{vL16}, {sr(SWS,4)}, s{sCg if c < 2 else sC1} offen offset:{2048*(c & 1)} sc1" for c in range(4))
e(f"""s_cmp_lt_u32 s{sW}, 2
s_cbranch_scc1 Lhc0
s_and_b32 s{sT0}, s{sW}, 1
s_lshl_b32 s{sT0}, s{sT0}, 10
s_add_u32 s{sCg}, s{sCg}, s{sT0}
s_add_u32 s{sC1}, s{sCg}, 4096
{cs_loads()}
Lhc0:""")
if not LATEP: e(flags_issue(sKf))
e(f"s_mov_b32 s{sSt}, 1\ns_barrier")
if LATEP: e(flags_issue(sKf))
def kv_try(tag):
    e(f"""s_cmp_eq_u32 s{sSt}, 0
    s_cbranch_scc1 Lkt2_{tag}
    s_waitcnt vmcnt(0)
    v_cmp_ne_u64 vcc, s[{sNo}:{sNo+1}], {vr(vPoll,2)}
    s_cbranch_vccnz Lkt1_{tag}""")
    kv_dma(tag)
    e(f"v_mov_b32 v{vT0}, {KFL}\nds_write_b32 v{vT0}, v{hF+1} offset:16\ns_mov_b32 s{sSt}, 0\ns_branch Lkt2_{tag}\nLkt1_{tag}:")
    e(flags_issue(sKf))
    e(f"Lkt2_{tag}:")
e(f"s_cmp_lg_u32 s{sW}, 1\ns_cbranch_scc1 Lhnc")
gelu_consts(hW, hW+1, hW+8); gelu_consts(hW+4, hW+5, hW+12)
e(f"""v_add_u32 v{vT0}, {STATM}, v{vL16}
ds_write_b128 v{vT0}, {vr(hW+8,4)}
ds_write_b128 v{vT0}, {vr(hW+12,4)} offset:1024
Lhnc:""")
kv_try("a")
e(f"""s_cmp_lt_u32 s{sW}, 2
s_cbranch_scc1 Lhc3
s_mov_b32 s{sT0}, 0
s_branch Lhc2
Lhc1:
s_sleep 2
{cs_loads()}
s_waitcnt vmcnt(0)
Lhc2:
s_add_u32 s{sT0}, s{sT0}, 1
v_cmp_ne_u64 vcc, s[{sNo}:{sNo+1}], {vr(hW+2,2)}
v_cmp_ne_u64 s[{sEx}:{sEx+1}], s[{sNo}:{sNo+1}], {vr(hW+6,2)}
s_or_b64 vcc, vcc, s[{sEx}:{sEx+1}]
v_cmp_ne_u64 s[{sEx}:{sEx+1}], s[{sNo}:{sNo+1}], {vr(hW+10,2)}
s_or_b64 vcc, vcc, s[{sEx}:{sEx+1}]
v_cmp_ne_u64 s[{sEx}:{sEx+1}], s[{sNo}:{sNo+1}], {vr(hW+14,2)}
s_or_b64 vcc, vcc, s[{sEx}:{sEx+1}]
s_cmp_ge_u32 s{sT0}, 100000
s_cbranch_scc1 Lhc4
s_cbranch_vccnz Lhc1
Lhc4:
v_add_f32 v{hW}, v{hW}, v{hW+4}
v_add_f32 v{hW+1}, v{hW+1}, v{hW+5}
v_add_f32 v{hW+8}, v{hW+8}, v{hW+12}
v_add_f32 v{hW+9}, v{hW+9}, v{hW+13}
s_and_b32 s{sT0}, s{sW}, 1
s_lshl_b32 s{sT0}, s{sT0}, 9
s_add_u32 s{sT0}, s{sT0}, {CSUM}
v_lshl_add_u32 v{vT0}, v{vLane}, 3, s{sT0}
v_add_f32 v{hW}, v{hW}, v{hW+8}
v_add_f32 v{hW+1}, v{hW+1}, v{hW+9}
v_cmp_gt_u32 vcc, {CSUM+896}, v{vT0}
s_and_saveexec_b64 s[{sEx}:{sEx+1}], vcc
ds_write_b64 v{vT0}, {vr(hW,2)}
s_mov_b64 exec, -1
Lhc3:""")
e("s_waitcnt lgkmcnt(0)\ns_barrier")
if not LATEP and "--tryb" in sys.argv: kv_try("b")
stamp(1)
e("s_waitcnt lgkmcnt(0)\ns_barrier\ns_branch Lp2")

cX = [8, 24]; cW = 40; cRX, cRW, cRQ = 68, 70, 72; cCs = 76; cO = 92; cA = 96
e("Lcomp:")
entry_stamp(True)
late_srd(LS_F)
e(f"""v_and_b32 v{vT0}, 15, v{vLane}
v_lshrrev_b32 v{vT1}, 1, v{vT0}
v_lshrrev_b32 v{vT2}, 4, v{vLane}
v_xor_b32 v{vT1}, v{vT1}, v{vT2}
v_lshlrev_b32 v{vT0}, 7, v{vT0}
s_and_b32 s{sT0}, s{sW}, 1
s_lshl_b32 s{sT0}, s{sT0}, 13
v_add_u32 v{vT0}, s{sT0}, v{vT0}
v_lshl_add_u32 v{cRX}, v{vT1}, 4, v{vT0}
v_xor_b32 v{cRX+1}, 64, v{cRX}""")
tr_lane(192, cRW)
e(f"""s_lshl_b32 s{sT1}, s{sW}, 4
s_and_b32 s{sT1}, s{sT1}, 32
v_xor_b32 v{cRW}, s{sT1}, v{cRW}
v_xor_b32 v{cRW+1}, 32, v{cRW}
s_lshl_b32 s{sT2}, s{sT1}, 1
v_add_u32 v{cRW}, s{sT2}, v{cRW}
s_lshl_b32 s{sT2}, s{sT1}, 2
v_add_u32 v{cRW+1}, s{sT2}, v{cRW+1}""")
tr_lane(64, cRQ); e(f"v_xor_b32 v{cRQ}, s{sT1}, v{cRQ}")
ones_col0(cO)
cEh, cEs, cEq = 73, 74, 75
cEc, cEw, cEh2 = 212, 213, 214
e(f"""s_bfe_u32 s{sT2}, s{sW}, 0x10001
s_mul_i32 s{sT2}, s{sT2}, 448
s_add_u32 s{sT2}, s{sT2}, {CSUM}
s_and_b32 s{sT1}, s{sW}, 1
s_lshl_b32 s{sT1}, s{sT1}, 6
s_add_u32 s{sT1}, s{sT2}, s{sT1}
v_and_b32 v{cEc}, 48, v{vLane}
v_add_u32 v{cEc}, s{sT2}, v{cEc}
v_add_u32 v{cEw}, s{sT1}, v{vLane}""")
e(f"""s_lshl_b32 s{sT0}, s{sI}, 2
s_and_b32 s{sT1}, s{sW}, 1
s_lshl_b32 s{sT1}, s{sT1}, 1
s_add_u32 s{sT0}, s{sT0}, s{sT1}
s_mul_i32 s{sT0}, s{sT0}, 88
s_mul_i32 s{sT1}, s{sJ}, 6
s_min_u32 s{sT1}, s{sT1}, 80
s_bfe_u32 s{sT2}, s{sW}, 0x10001
s_mul_i32 s{sT2}, s{sT2}, 3
s_add_u32 s{sT1}, s{sT1}, s{sT2}
s_and_b32 s{sT2}, s{sW}, 2""")
for add, dst in enumerate((sC0, sC1, sC2)):
    e(f"""s_add_u32 s{sT3}, s{sT1}, {add}
    s_lshr_b32 s{dst}, s{sT3}, 2
    s_add_u32 s{dst}, s{dst}, s{sT0}
    s_and_b32 s{sT3}, s{sT3}, 3
    s_mul_i32 s{sT3}, s{sT3}, 22
    s_add_u32 s{dst}, s{dst}, s{sT3}
    s_lshl_b32 s{dst}, s{dst}, 10
    s_add_u32 s{dst}, s{dst}, {HIMG}""")
    if LZ: e(f"""s_mul_i32 s{sT3}, s{sJ}, 6
    s_sub_u32 s{sT3}, s{sT3}, {add}
    s_cmp_lt_i32 s{sT1}, s{sT3}
    s_cselect_b32 s{dst}, {PROFO+262144}, s{dst}""")
e(f"""v_bfe_u32 v{vT0}, v{vLane}, 4, 1
v_lshlrev_b32 v{vT0}, 9, v{vT0}
v_and_b32 v{vT1}, 15, v{vLane}
v_lshl_add_u32 v{vT0}, v{vT1}, 4, v{vT0}
v_lshl_add_u32 v{cEh}, v{vH}, 8, v{vT0}
v_add_u32 v{cEh2}, {88*1024}, v{cEh}
s_and_b32 s{sT0}, s{sW}, 1
s_lshl_b32 s{sT1}, s{sT0}, 10
s_add_u32 s{sT1}, s{sT1}, {STATM}
v_lshl_add_u32 v{cEs}, v{vT1}, 4, s{sT1}
s_lshl_b32 s{sT0}, s{sT0}, 12
s_lshl_b32 s{sT2}, s{sT2}, 9
s_add_u32 s{sT0}, s{sT0}, s{sT2}
s_add_u32 s{sT0}, s{sT0}, {QIMG}
v_lshl_add_u32 v{vT0}, v{vH}, 3, v{vT0}
v_add_u32 v{cEq}, s{sT0}, v{vT0}""")
f_init()
for r in list(range(cCs, cCs+16, 2)) + [r for r in range(cA, cA+112, 2) if not vRs <= r < vRs+16]: e(f"v_mov_b64 {vr(r,2)}, 0")
tstamp(13)
e("s_waitcnt vmcnt(0)")
tstamp(21)
rowstat_finish()
rowstat_post()
e(f"s_cmp_lg_u32 s{sJ}, 14\ns_cbranch_scc1 Lnr2")
rowstat_finish(vRs2); rowstat_post(vRs2, 64)
e("Lnr2:")
tstamp(23)
if "--touch" in sys.argv:
    e(f"""s_and_b32 s{sT2}, s{sI}, 7
    s_mul_i32 s{sT2}, s{sT2}, 48
    s_add_u32 s{sT2}, s{sT2}, 128
    s_cmp_ge_u32 s{sW}, 6
    s_cbranch_scc1 Ltc6
    v_lshrrev_b32 v{vT0}, 1, v{vLane}
    v_mul_u32_u24 v{vT0}, 2752, v{vT0}
    v_and_b32 v{vT1}, 1, v{vLane}
    v_lshl_add_u32 v{vT0}, v{vT1}, 7, v{vT0}
    s_mul_i32 s{sT0}, s{sJ}, 96
    s_min_u32 s{sT0}, s{sT0}, 1280
    s_lshl_b32 s{sT0}, s{sT0}, 1
    s_mul_i32 s{sT2}, s{sT2}, 2752
    s_add_u32 s{sT0}, s{sT0}, s{sT2}
    s_add_u32 s{sT1}, s{sT0}, {32*2752}
    s_cmp_eq_u32 s{sW}, 5
    s_cbranch_scc1 Ltc5
    buffer_load_dword v79, v{vT0}, {sr(SWG,4)}, s{sT0} offen
    s_mov_b32 exec_hi, 0
    buffer_load_dword v79, v{vT0}, {sr(SWG,4)}, s{sT1} offen
    s_branch Ltce
    Ltc5:
    buffer_load_dword v79, v{vT0}, {sr(SWU,4)}, s{sT0} offen
    s_mov_b32 exec_hi, 0
    buffer_load_dword v79, v{vT0}, {sr(SWU,4)}, s{sT1} offen
    s_branch Ltce
    Ltc6:
    s_cmp_eq_u32 s{sW}, 7
    s_cbranch_scc1 Ltc7
    v_lshrrev_b32 v{vT0}, 1, v{vLane}
    v_lshlrev_b32 v{vT0}, 10, v{vT0}
    v_and_b32 v{vT1}, 1, v{vLane}
    v_lshl_add_u32 v{vT0}, v{vT1}, 7, v{vT0}
    s_lshl_b32 s{sT0}, s{sI}, 17
    s_and_b32 s{sT1}, s{sJ}, 3
    s_lshl_b32 s{sT1}, s{sT1}, 15
    s_add_u32 s{sT0}, s{sT0}, s{sT1}
    buffer_load_dword v79, v{vT0}, {sr(SX,4)}, s{sT0} offen offset:256
    buffer_load_dword v79, v{vT0}, {sr(SX,4)}, s{sT0} offen offset:512
    buffer_load_dword v79, v{vT0}, {sr(SX,4)}, s{sT0} offen offset:768
    s_branch Ltce
    Ltc7:
    v_lshlrev_b32 v{vT0}, 10, v{vLane}
    s_lshl_b32 s{sT2}, s{sT2}, 10
    s_lshl_b32 s{sT0}, s{sJ}, 6
    s_add_u32 s{sT0}, s{sT0}, s{sT2}
    s_mov_b32 exec_hi, 0xffff
    buffer_load_dword v79, v{vT0}, {sr(SWQ,4)}, s{sT0} offen
    Ltce:
    s_mov_b64 exec, -1""")
e("s_nop 1")
for r in range(vRs, vRs+16, 2): e(f"v_mov_b64 {vr(r,2)}, 0")
e(f"s_mov_b32 s{sSt}, 0\ns_mov_b32 s{sRb}, 0\ns_mov_b32 s{sC3}, {(-2*STG) & 0xffffffff}\ns_setprio 2")
NF = 7
def comp_loop(var):
    tag = f"{var}"
    def wrd(n, k2):
        if n == 0: a, o, rs = cRQ, QOFF, 64
        else:
            t = (n-1) % 3
            a, o, rs = cRW+(t & 1), (GOFF if n < 4 else UOFF) + (t >> 1)*64, 192
        return tr(cW+4*n, a, o+32*k2*rs) + tr(cW+4*n+2, a, o+(32*k2+4)*rs)
    def xrd(k2): return [f"ds_read_b128 {vr(cX[k2]+4*u,4)}, v{cRX+k2} offset:{2048*u}" for u in range(4)]
    def mm(n, k2):
        r = [mfma16(cA+28*u+4*n, cW+4*n, cX[k2]+4*u) for u in range(4)]
        if var < 2 and (n & 1) == var: r.append(mfma16(cCs+4*(n >> 1), cW+4*n, cO))
        return r
    if var == 0:
        e("s_waitcnt lgkmcnt(0)\ns_barrier")
        for x in xrd(0) + sum([wrd(n, 0) for n in range(NF)], []): e(x)
        e(f"s_and_b32 s{sT0}, s{sI}, 6\ns_cmp_lg_u32 s{sT0}, 0\ns_waitcnt lgkmcnt(0)\ns_cbranch_scc1 Lc_2\ns_bitcmp1_b32 s{sW}, 0\ns_cbranch_scc1 Lc_1")
    e(f".p2align 3\nLc_{tag}:")
    adr = [f"v_add_u32 v{r}, s{sDl}, v{r}" for r in (cRX, cRX+1, cRW, cRW+1, cRQ)]
    ctl = rot_delta().split("\n") + [f"s_add_u32 s{sSt}, s{sSt}, 1"]
    BARG = 2
    def build(order0):
        out = []; q = []; issued = list(order0)
        def need(tagname):
            idx = max(i for i, t in enumerate(issued) if t == tagname)
            return len(issued)-1-idx
        def push(tagname, lst): q.extend((tagname, x) for x in lst)
        lastN = [99]
        for k2 in range(2):
            if k2 == 0: push("x1", xrd(1))
            for n in range(NF):
                if k2 == 1 and n == BARG:
                    while q:
                        t, x = q.pop(0); out.append(x)
                        if t: issued.append(t)
                    out.append(f"s_waitcnt lgkmcnt(0)\n{tk(None)}\ns_barrier\n{tk(81)}")
                    issued.clear(); issued.extend(["done"])
                    push("x0", xrd(0))
                    for m in range(BARG): push(f"w{m}0", wrd(m, 0))
                reqs = [f"w{n}{k2}"] + ([f"x{k2}"] if n == 0 else [])
                for r in reqs: assert all(t != r for t, _ in q), (r, k2, n)
                ns = [need(r) for r in reqs if r in issued]
                if ns and n % 2 == 0 or ns and min(ns) < lastN[0]:
                    nxt = f"w{n+1}{k2}"
                    if nxt in issued and all(t != nxt for t, _ in q): ns.append(need(nxt))
                    N = min(min(ns), 15); out.append(f"s_waitcnt lgkmcnt({N})"); lastN[0] = N
                for x in mm(n, k2):
                    out.append(x)
                    if q:
                        t, y = q.pop(0); out.append(y)
                        if t: issued.append(t); lastN[0] += 1
                if k2 == 0:
                    push(f"w{n}1", wrd(n, 1))
                    if n == 3: push(None, ctl)
                    if n == NF-1: push(None, adr)
                elif n >= BARG: push(f"w{n}0", wrd(n, 0))
        while q:
            t, x = q.pop(0); out.append(x)
            if t: issued.append(t)
        return out, issued
    _, steady = build([])
    out, _ = build(steady)
    for x in out: e(x)
    e(f"s_cmp_lt_u32 s{sSt}, {2 if var < 2 else 8}\ns_cbranch_scc1 Lc_{tag}")
    if var < 2:
        e(f"s_nop 2\ns_mov_b32 exec_lo, 0x00010001\ns_mov_b32 exec_hi, 0x00010001")
        for k in range(4-var): e(f"ds_write_b128 v{cEw}, {vr(cCs+4*k,4)} offset:{128*k}")
        e("s_mov_b64 exec, -1")
        if var == 0: e("s_branch Lc_2")
    tkout()
eC, eK, eT = 8, 40, 56
comp_loop(0); comp_loop(1); comp_loop(2)
tstamp(1)
for u in range(4): e(f"ds_read_b128 {vr(eK+4*u,4)}, v{cEs} offset:{256*u}")
for n in range(NF): e(f"ds_read_b128 {vr(eC+4*n,4)}, v{cEc} offset:{64*n}")
e("s_waitcnt lgkmcnt(6)")
for u in range(4): e(f"v_mul_f32 v{eT+u}, {f2u(0.25*1.4426950408889634/C1):#x}, v{eK+4*u+1}")
for u in range(4):
    for p in (0, 2): e(pk("v_pk_fma_f32", cA+28*u+p, [('b', eK+4*u), ('p', eC+p), ('p', cA+28*u+p)]))
for u in range(4):
    for p in (0, 2): e(pk("v_pk_mul_f32", cA+28*u+p, [('p', cA+28*u+p), ('b', eT+u)]))
for u in range(4):
    q = cA+28*u
    e(f"v_cvt_pk_bf16_f32 v{q}, v{q}, v{q+1}\nv_cvt_pk_bf16_f32 v{q+1}, v{q+2}, v{q+3}")
for u in range(4): e(f"ds_write_b64 v{cEq}, {vr(cA+28*u,2)} offset:{2048*(u>>1)+256*(u&1)}")
e(f"v_mov_b32 v{vT0}, {KFL}\ns_waitcnt lgkmcnt(0)\ns_barrier")
e(f"ds_read_b32 v{vT1}, v{vT0} offset:16")
ES = "--es" in sys.argv
if ES: a_sent(True)
e(f"s_waitcnt lgkmcnt(0)\nv_cmp_ne_u32 vcc, 0, v{vT1}")
CK = "--nock" not in sys.argv
e(f"s_cmp_eq_u64 vcc, 0\ns_cselect_b32 s{sSt}, 1, 0")
gl0 = len(L)
for u in range(4):
    g = cA+28*u+4; P = cA+28*(u & 2)+4
    gelu_tile(g, g+12, eC+4, eC+16, eK+4*u, eT, 12, [P+4*(p//2)+2*(u & 1)+(p & 1) for p in range(6)])
    if u & 1:
        e("s_nop 0")
        for t in range(3):
            e(f"v_permlane32_swap_b32 v{P+4*t}, v{P+4*t+2}\nv_permlane32_swap_b32 v{P+4*t+1}, v{P+4*t+3}")
        for t, so in enumerate((sC0, sC1, sC2)):
            st = f"buffer_store_dwordx4 {vr(P+4*t,4)}, v{cEh if u == 1 else cEh2}, {sr(SWS,4)}, s{so} offen sc1"
            if LZ: L.append(f"s_cmp_eq_u32 s{so}, {PROFO+262144}\ns_cbranch_scc1 Lns{u}{t}\n{st}\nLns{u}{t}:")
            else: e(st)
    if CK and u < 3: L.append(f"s_cmp_lg_u32 s{sSt}, 0\ns_cbranch_scc1 Lck{u}\nLckr{u}:")
body = L[gl0:]; del L[gl0:]
e(f"s_lshl_b32 s{sT1}, s{sW4}, 12")
items = []
for n in range(12):
    t = f"s_cbranch_vccz Lgk{n}\n"
    if n % 2 == 0: t += f"s_add_u32 s{sT0}, s{sT1}, {36*1024+8192*n}\ns_mov_b32 m0, s{sT0}\ns_nop 0\n"
    for k in range(2): t += f"buffer_load_dwordx4 v{vL16}, {sr(SWS,4)}, s{sT0} offen offset:{1024*(2*(n%2)+k)} sc1 lds\n"
    items.append(t + f"Lgk{n}:")
cut = (len(body)*3)//4
for x in interleave(body[:cut], items) + body[cut:]: e(x)
e(f"""s_cmp_eq_u32 s{sSt}, 0
s_cbranch_scc1 Lgk
s_mov_b32 s{sT0}, 0
s_setprio 0
Lgw:
s_sleep 2
ds_read_b32 v{vT1}, v{vT0} offset:16
s_add_u32 s{sT0}, s{sT0}, 1
s_waitcnt lgkmcnt(0)
v_cmp_ne_u32 vcc, 0, v{vT1}
s_cmp_ge_u32 s{sT0}, 2000000
s_cbranch_scc1 LFkv
s_cbranch_vccz Lgw
s_branch LFkv
Lgk:""")
e(tag_issue())
stamp(2)
tflush(); TS.clear(); rt_out()
e("s_branch LF")
if CK:
    for u in range(3):
        e(f"""Lck{u}:
        ds_read_b32 v{vT1}, v{vT0} offset:16
        s_waitcnt lgkmcnt(0)
        v_readfirstlane_b32 s{sT2}, v{vT1}
        s_cmp_eq_u32 s{sT2}, 0
        s_cbranch_scc1 Lckr{u}
        s_mov_b32 s{sSt}, 0""")
        kv_rest(f"c{u}")
        e(f"s_branch Lckr{u}")

def cs_write(acc, slot_expr_sreg):
    e(f"""v_and_b32 v{vT0}, 1, v{vLane}
    v_lshlrev_b32 v{vT0}, 6, v{vT0}
    v_lshrrev_b32 v{vT1}, 4, v{vLane}
    v_lshl_add_u32 v{vT0}, v{vT1}, 4, v{vT0}
    v_add_u32 v{vT0}, {slot_expr_sreg}, v{vT0}
    s_mov_b32 exec_lo, 0x00030003
    s_mov_b32 exec_hi, 0x00030003
    ds_write_b128 v{vT0}, {vr(acc,4)}
    s_mov_b64 exec, -1
    s_nop 2""")
e("Lkvcu:")
entry_stamp(True)
for x in kvx_dma(1): e(x)
late_srd(LS_A + LS_F)
e(f"""v_and_b32 v{vT0}, 31, v{vLane}
v_lshrrev_b32 v{vT1}, 1, v{vT0}
v_and_b32 v{vT1}, 7, v{vT1}
v_xor_b32 v{vT1}, v{vT1}, v{vH}
v_lshlrev_b32 v{vT0}, 7, v{vT0}
v_add_u32 v{vT0}, s{sXb}, v{vT0}""")
for ks in range(4):
    e(f"v_xor_b32 v{vT2}, {2*ks}, v{vT1}\nv_lshl_add_u32 v{vRX+ks}, v{vT2}, 4, v{vT0}")
e(f"""v_bfe_u32 v{vT0}, v{vLane}, 2, 2
v_lshl_add_u32 v{vT0}, v{vH}, 3, v{vT0}
v_bfe_u32 v{vT1}, v{vLane}, 4, 1
v_and_b32 v{vT2}, 3, v{vLane}
v_lshlrev_b32 v{vT2}, 3, v{vT2}
v_lshl_add_u32 v{vT3}, v{vT1}, 5, v{vT2}
v_lshl_add_u32 v{vRQ}, v{vT0}, 6, v{vT3}
v_lshlrev_b32 v{vT1}, 14, v{vT1}
v_lshl_add_u32 v{vRW}, v{vT0}, 5, v{vT2}
s_lshr_b32 s{sT0}, s{sW}, 2
s_lshl_b32 s{sT0}, s{sT0}, 13
s_add_u32 s{sT1}, s{sT0}, {WKV}
v_add3_u32 v{vRW}, v{vRW}, v{vT1}, s{sT1}
s_add_u32 s{sT1}, s{sT1}, s{sT0}
v_add_u32 v{vRQ}, s{sT1}, v{vRQ}
v_lshrrev_b32 v{vT0}, 2, v{vLane}
v_lshlrev_b32 v{vT0}, 10, v{vT0}
v_and_b32 v{vT1}, 3, v{vLane}
v_lshl_add_u32 v{vQa}, v{vT1}, 4, v{vT0}
v_bfe_u32 v{vT0}, v{vLane}, 4, 1
v_and_b32 v{vT1}, 15, v{vLane}
v_cmp_eq_u32 vcc, v{vT0}, v{vT1}
v_mov_b32 v{vT2}, 0x3f803f80
s_nop 0
v_cndmask_b32 v{vSel}, 0, v{vT2}, vcc""")
for k in range(1, 4): e(f"v_mov_b32 v{vSel+k}, v{vSel}")
for r in range(vCs, vCs+4): e(f"v_mov_b32 v{r}, 0")
e("s_waitcnt vmcnt(4) lgkmcnt(0)\ns_barrier")
tstamp(12)
def kv_reads(c):
    r = []
    for ks in range(4):
        W = vWk + 16*(c & 1) + 4*ks
        r += [f"ds_read_b128 {vr(vXf+16*c+4*ks,4)}, v{vRX+ks} offset:{4096*c}"]
        r += tr(W, vRW, (64*c+16*ks)*32) + tr(W+2, vRW, (64*c+16*ks+4)*32)
    return r
def kstat_issue():
    return f"buffer_load_dwordx4 {vr(vSt,4)}, v{vWa0}, {sr(SWS,4)}, s{sC1} offen sc1"
for x in kv_reads(0) + kvx_dma(2) + kvx_dma(3): e(x)
e(f"""v_and_b32 v{vWa0}, 31, v{vLane}
v_lshlrev_b32 v{vWa0}, 4, v{vWa0}
s_lshl_b32 s{sT0}, s{sI}, 2
s_add_u32 s{sT0}, s{sT0}, s{sW4}
s_mul_i32 s{sC0}, s{sT0}, {KVT}
s_lshl_b32 s{sC1}, s{sT0}, 9
s_add_u32 s{sC1}, s{sC1}, {STATG}""")
if "--kvt" in sys.argv: e(f"s_mov_b32 s{sT0}, {64*KVT+1024}\nbuffer_load_dword v{vSt+8}, off, {sr(SWS,4)}, s{sT0}")
for c in range(4):
    m = []
    for ks in range(4):
        X = vXf+16*c+4*ks; W = vWk + 16*(c & 1) + 4*ks
        z = "0" if c == 0 and ks == 0 else None
        m += [mfma(vAcc+16, W, X, z), mfma16(vCs, W, vSel), mfma(vAcc+32, X, W, z)]
    e("s_waitcnt lgkmcnt(0)")
    if c < 3:
        wt = f"s_waitcnt vmcnt({8-4*c})"
        for x in m[:3] + [wt] + interleave(m[3:9], kv_reads(c+1)) + m[9:]: e(x)
    else:
        e(tag_issue())
        e(kstat_issue())
        for x in m: e(x)
tstamp(1)
e(f"""v_and_b32 v{vT2}, 31, v{vLane}
v_lshlrev_b32 v{vT2}, 2, v{vT2}
s_xor_b32 s{sT2}, s{sXb}, 65536
s_add_u32 s{sT1}, s{sXb}, 4352
s_lshl_b32 s{sQo}, s{sW}, 16
s_add_u32 s{sQo}, s{sQo}, {64*15}
s_lshl_b32 s{sMq}, s{sW}, 12
s_add_u32 s{sMq}, s{sMq}, {WKV}""")
cs_write(vCs, f"s{sT1}")
e(f"""v_add_u32 v{vT0}, s{sXb}, v{vL16}
v_add_u32 v{vWa1}, s{sT2}, v{vL16}
v_add_u32 v{vWa2}, s{sT2}, v{vT2}
v_lshl_add_u32 v{vT3}, v{vH}, 4, s{sXb}
s_cmp_ge_u32 s{sW}, 4
s_cbranch_scc1 LkvH""")
def wq_dma():
    for k in range(4):
        e(f"s_add_u32 m0, s{sMq}, {1024*k}\ns_add_u32 s{sT0}, s{sQo}, {16384*k}\nbuffer_load_dwordx4 v{vQa}, {sr(SWQ,4)}, s{sT0} offen lds")
WQE = "--wqe" in sys.argv
def kstat_wait(tag):
    if WQE: wq_dma()
    if "--dkv3" in sys.argv: e("s_sleep 60")
    tag_wait("k"+tag, 0)
    e(f"""s_mov_b32 s{sT0}, 0
    Lks_{tag}:
    v_cmp_ne_u64 vcc, s[{sNo}:{sNo+1}], {vr(vSt+2,2)}
    s_add_u32 s{sT0}, s{sT0}, 1
    s_cmp_ge_u32 s{sT0}, 100000
    s_cbranch_vccz Lksd_{tag}
    s_cbranch_scc1 Lksd_{tag}
    {kstat_issue()}
    s_waitcnt vmcnt(0)
    s_branch Lks_{tag}
    Lksd_{tag}:""")
for q in range(4): e(f"ds_write_b128 v{vT0}, {vr(vAcc+32+4*q,4)} offset:{1024*q}")
e(f"v_xor_b32 v{vT1}, 0x10000, v{vT3}\ns_waitcnt lgkmcnt(0)\ns_barrier")
e(f"""ds_read_b128 {vr(vWk,4)}, v{vWa1}
ds_read_b128 {vr(vWk+4,4)}, v{vWa1} offset:1024
ds_read_b128 {vr(vSt+12,4)}, v{vT3} offset:{4352+64}
ds_read_b128 {vr(vSt+16,4)}, v{vT3} offset:{4352+96}
ds_read_b128 {vr(vWk+8,4)}, v{vT1} offset:{4352+64}
ds_read_b128 {vr(vWk+12,4)}, v{vT1} offset:{4352+96}
s_nop 2""")
e(f"""v_and_b32 v{vT0}, 0x33, v{vLane}
v_bfe_u32 v{vT1}, v{vLane}, 2, 1
v_lshl_or_b32 v{vT0}, v{vT1}, 3, v{vT0}
v_bfe_u32 v{vT1}, v{vLane}, 3, 1
v_lshl_or_b32 v{vT0}, v{vT1}, 2, v{vT0}
v_lshlrev_b32 v{vT0}, 4, v{vT0}
s_waitcnt lgkmcnt(0)""")
for p in range(0, 8, 2):
    e(pk("v_pk_add_f32", vAcc+24+p, [('p', vAcc+24+p), ('p', vWk+p)]))
    e(pk("v_pk_add_f32", vSt+12+p, [('p', vSt+12+p), ('p', vWk+8+p)]))
kstat_wait("l")
e(f"v_sub_f32 v{vSt+4}, 0, v{vSt}")
lin_fold(vAcc+24, vSt+12, vSt+4, vSt+1, 8)
for p in range(4): e(f"v_cvt_pk_bf16_f32 v{vAcc+16+p}, v{vAcc+24+2*p}, v{vAcc+25+2*p}")
RB = "--rb" in sys.argv
e(f"buffer_store_dwordx4 {vr(vAcc+16,4)}, v{vT0}, {sr(SWS,4)}, s{sC0} offen sc1")
if RB: e(f"s_waitcnt vmcnt(0)\nbuffer_load_dwordx4 {vr(vWk,4)}, v{vT0}, {sr(SWS,4)}, s{sC0} offen sc1")
e("s_branch LkvS")
e("LkvH:")
e(f"ds_write_b128 v{vT0}, {vr(vAcc+24,4)}\nds_write_b128 v{vT0}, {vr(vAcc+28,4)} offset:1024")
e(f"v_add_u32 v{vT1}, s{sXb}, v{vT2}\ns_waitcnt lgkmcnt(0)\ns_barrier")
e(f"ds_read_b32 v{vSt+6}, v{vT1} offset:4352\nds_read_b32 v{vSt+7}, v{vWa2} offset:4352")
for q in range(4): e(f"ds_read_b128 {vr(vAcc+48+4*q,4)}, v{vWa1} offset:{1024*q}")
tstamp(21)
kstat_wait("h")
tstamp(23)
e(f"ds_write_b32 v{vT1}, v{vSt} offset:4608\nds_write_b32 v{vT1}, v{vSt+1} offset:4736\ns_waitcnt lgkmcnt(0)")
for q in range(4):
    e(f"ds_read_b128 {vr(vWk+4*q,4)}, v{vT3} offset:{4608+32*q}\nds_read_b128 {vr(vWk+16+4*q,4)}, v{vT3} offset:{4736+32*q}")
e(f"v_add_f32 v{vSt+6}, v{vSt+6}, v{vSt+7}\nv_sub_f32 v{vSt+6}, 0, v{vSt+6}")
for p in range(0, 16, 2): e(pk("v_pk_add_f32", vAcc+32+p, [('p', vAcc+32+p), ('p', vAcc+48+p)]))
e("s_waitcnt lgkmcnt(0)")
for p in range(0, 16, 2): e(pk("v_pk_fma_f32", vAcc+32+p, [('p', vWk+p), ('b', vSt+6), ('p', vAcc+32+p)]))
for p in range(0, 16, 2): e(pk("v_pk_mul_f32", vAcc+32+p, [('p', vAcc+32+p), ('p', vWk+16+p)]))
for p in range(8): e(f"v_cvt_pk_bf16_f32 v{vAcc+32+p}, v{vAcc+32+2*p}, v{vAcc+33+2*p}")
v_lane_addr(vT0)
for p in range(8): e(f"v_mov_b32 v{vAcc+32+p}, 0x3f803f80")
e(f"""s_mov_b32 exec_lo, 0x1ffff
s_mov_b32 exec_hi, 0xffff
buffer_store_dwordx4 {vr(vAcc+32,4)}, v{vT0}, {sr(SWS,4)}, s{sC0} offen offset:1024 sc1
buffer_store_dwordx4 {vr(vAcc+36,4)}, v{vT0}, {sr(SWS,4)}, s{sC0} offen offset:{1024+528} sc1""")
if RB: e(f"""s_waitcnt vmcnt(0)
buffer_load_dwordx4 {vr(vWk,4)}, v{vT0}, {sr(SWS,4)}, s{sC0} offen offset:1024 sc1
buffer_load_dwordx4 {vr(vWk+4,4)}, v{vT0}, {sr(SWS,4)}, s{sC0} offen offset:{1024+528} sc1""")
e("s_mov_b64 exec, -1")
tstamp(29)
e("LkvS:")
for r in range(4): e(f"v_mov_b32 v{vCs+r}, 0")
e(f"s_lshl_b32 s{sT2}, s{sI}, 7\ns_add_u32 s{sT2}, s{sT2}, {KFLG}\ns_waitcnt vmcnt(0)\ns_barrier")
if "--dkv" in sys.argv:
    for _ in range(3): e("s_sleep 127")
if "--dkv2" in sys.argv: e("s_sleep 45")
flag_set(sT2, "kv")
if not WQE: wq_dma()
stamp(13)
tflush(); TS.clear(); rt_out()
e("s_waitcnt vmcnt(0)\ns_barrier")
def q_reads(c):
    r = []
    for ks in range(4):
        W = vWk + 16*(c & 1) + 4*ks
        r += tr(W, vRQ, (64*c+16*ks)*64) + tr(W+2, vRQ, (64*c+16*ks+4)*64)
    return r
for x in q_reads(0): e(x)
for c in range(4):
    m = []
    for ks in range(4):
        X = vXf+16*c+4*ks; W = vWk + 16*(c & 1) + 4*ks
        m += [mfma(vAcc, W, X, "0" if c == 0 and ks == 0 else None), mfma16(vCs, W, vSel)]
    e("s_waitcnt lgkmcnt(0)")
    for x in interleave(m[:4], q_reads(c+1) if c < 3 else []) + m[4:]: e(x)
e(f"""s_or_b32 s{sT2}, s{sXb}, {65536+8192}
s_lshr_b32 s{sT3}, s{sW}, 2
s_lshl_b32 s{sT3}, s{sT3}, 7
s_add_u32 s{sT1}, s{sT2}, s{sT3}
s_add_u32 s{sT1}, s{sT1}, 4096
v_add_u32 v{vWa1}, s{sT2}, v{vL16}
v_lshl_add_u32 v{vT3}, v{vH}, 4, s{sT2}
s_nop 3""")
cs_write(vCs, f"s{sT1}")
e(f"s_cmp_ge_u32 s{sW}, 4\ns_cbranch_scc1 LkvH2\ns_waitcnt lgkmcnt(0)\ns_barrier")
for q in range(4): e(f"ds_read_b128 {vr(vWk+4*q,4)}, v{vWa1} offset:{1024*q}")
cs_read(vAcc+48, 4096); cs_read(vWk+16, 4096+128)
e("s_waitcnt lgkmcnt(0)")
for p in range(0, 16, 2):
    e(pk("v_pk_add_f32", vAcc+p, [('p', vAcc+p), ('p', vWk+p)]))
    e(pk("v_pk_add_f32", vAcc+48+p, [('p', vAcc+48+p), ('p', vWk+16+p)]))
q_epilogue(vAcc+48)
a_init(); fin_init()
e("s_waitcnt lgkmcnt(0)\ns_barrier\ns_branch LaR\nLkvH2:")
for q in range(4): e(f"ds_write_b128 v{vWa1}, {vr(vAcc+4*q,4)} offset:{1024*q}")
e(f"s_mov_b32 s{sKf}, {KFLG}")
e(flags_issue(sKf))
e("s_waitcnt lgkmcnt(0)\ns_barrier")
f_init()
flags_wait(sKf, "kv2", 0)
kv_dma("c")
e("s_waitcnt vmcnt(0)\ns_barrier")
if ES: a_sent(True)
e("s_branch LFkv")

AAL = 6 if "--a6" in sys.argv else 3
APRE = int(sys.argv[sys.argv.index("--apre")+1]) if "--apre" in sys.argv else 3
UNS = "--unsafeF" in sys.argv
vm = []
def vtag(tag): vm.append(tag)
def vwait_s(tag):
    idx = max(i for i, t in enumerate(vm) if t == tag)
    return f"s_waitcnt vmcnt({min(63, sum(1 for t in vm[idx+1:] if t[0] == tag[0] or UNS))})"
def emit_seq(seq):
    for x in seq:
        if isinstance(x, list): emit_seq(x)
        elif isinstance(x, tuple): vtag(x[0]); e(x[1])
        elif callable(x): e(x())
        else: e(x)
e(f"Lp2:\ns_setprio {APRE}\ns_cmp_eq_u32 s{sSt}, 0\ns_cbranch_scc1 Lkvok")
stamp(16)
flags_wait(sKf, "kv", 0)
stamp(17)
kv_dma("d")
e(f"v_mov_b32 v{vT0}, {KFL}\nds_write_b32 v{vT0}, v{hF+1} offset:16\ns_nop 3")
e(f"""Lkvok:
v_mov_b32 v{vT0}, {KFL}
s_mov_b32 s{sT0}, 0
s_waitcnt vmcnt(0)
ds_write_b32 v{hF}, v{hF+1}
Lkw:
ds_read_b128 {vr(aS[0],4)}, v{vT0}
s_add_u32 s{sT0}, s{sT0}, 1
s_waitcnt lgkmcnt(0)
v_and_b32 v{aS[0]}, v{aS[0]}, v{aS[0]+1}
v_and_b32 v{aS[0]+2}, v{aS[0]+2}, v{aS[0]+3}
v_and_b32 v{aS[0]}, v{aS[0]}, v{aS[0]+2}
v_cmp_ne_u32 vcc, 0, v{aS[0]}
s_cmp_ge_u32 s{sT0}, 2000000
s_cbranch_scc1 LaR
s_cbranch_vccnz LaR
s_sleep 1
s_branch Lkw
LaR:""")
stamp(3)
e(f"""ds_read_b128 {vr(aQ[0],4)}, v{vAq}
ds_read_b128 {vr(aK[0],4)}, v{vAk}
ds_read_b128 {vr(aQ[1],4)}, v{vAq} offset:1024
ds_read_b128 {vr(aK[1],4)}, v{vAk} offset:{KVT}
ds_read_b128 {vr(aVl[0],4)}, v{vAv}
ds_read_b128 {vr(aVh[0],4)}, v{vAv} offset:528
s_waitcnt lgkmcnt(4)""")
e(mfma(aS[0], aK[0], aQ[0], "0"))
e("s_waitcnt lgkmcnt(3)")
e(mfma(aS[1], aK[0], aQ[1], "0"))
e("s_nop 9")
for b in range(2):
    t = vT0+2*b; S = aS[b]
    e(f"v_max3_f32 v{t}, v{S}, v{S+1}, v{S+2}")
    for p in range(3, 15, 2): e(f"v_max3_f32 v{t}, v{t}, v{S+p}, v{S+p+1}")
    e(f"v_max_f32 v{t}, v{t}, v{S+15}\nv_mov_b32 v{t+1}, v{t}")
e(f"""s_nop 1
v_permlane32_swap_b32 v{vT0}, v{vT1}
v_permlane32_swap_b32 v{vT2}, v{vT3}
s_mov_b32 s{sSt}, 0
v_max_f32 v{vT0}, v{vT0}, v{vT1}
v_max_f32 v{vT2}, v{vT2}, v{vT3}""")
for b in range(2):
    e(f"v_sub_f32 v{aC[b]}, 0, v{vT0+2*b}\nv_sub_f32 v{aC[b]+1}, 0, v{vT0+2*b}")
for r in range(16): e(f"v_sub_f32 v{aS[0]+r}, v{aS[0]+r}, v{vT0}")
for b in (1, 0):
    for r in range(2, 16, 2): e(f"v_mov_b64 {vr(aC[b]+r,2)}, {vr(aC[b],2)}")
e("s_setprio 1")
stamp(5)
e(f"v_exp_f32 v{aS[0]}, v{aS[0]}\nv_exp_f32 v{aS[0]+1}, v{aS[0]+1}\ns_branch La1\n.p2align {AAL}\nLa0:")
for n in range(32):
    b = n & 1; T = n >> 1
    X = aS[b]; Y = aS[b ^ 1]
    ex = [f"v_exp_f32 v{X+i}, v{X+i}" for i in range(16)]
    Tp = (n-1) >> 1; Tn = (n+1) >> 1
    seq = ex[0:2] + [smf(aO[b ^ 1], aVh[Tp & 1], Y+8, vIdx)] + (["La1:"] if n == 0 else []) + ex[2:5]
    seq += [mfma(Y, aK[Tn & 1], aQ[b ^ 1], vr(aC[b ^ 1], 16))]
    if b:
        rd = [f"ds_read_b128 {vr(aVl[(T+1)&1],4)}, v{vAv} offset:{(T+1)*KVT}",
              f"ds_read_b128 {vr(aVh[(T+1)&1],4)}, v{vAv} offset:{(T+1)*KVT+528}",
              f"ds_read_b128 {vr(aK[T&1],4)}, v{vAk} offset:{(T+2)*KVT}"]
        seq += rd + ex[5:10]
    else: seq += ["s_waitcnt lgkmcnt(0)"] + ex[5:10]
    seq += [smf(aO[b], aVl[T & 1], X, vIdx)] + ex[10:16]
    for x in seq: e(x)
if PROF:
    e(f"s_memtime s[{sTm}:{sTm+1}]\ns_lshl_b32 s{sT0}, s{sSt}, 2\ns_add_u32 s{sT0}, s{sT0}, s{sPo}\ns_waitcnt lgkmcnt(0)\nv_mov_b32 v0, s{sTm}\nbuffer_store_dword v0, off, {sr(SWS,4)}, s{sT0} offset:72")
e(f"""v_add_u32 v{vAk}, {16*KVT}, v{vAk}
v_add_u32 v{vAv}, {16*KVT}, v{vAv}
s_add_u32 s{sSt}, s{sSt}, 1
s_cmp_eq_u32 s{sSt}, 1
s_cbranch_scc0 La2
{'' if PROF else 's_waitcnt vmcnt(0)'}
s_barrier
s_branch La0
La2:
s_cmp_lt_u32 s{sSt}, 4
s_cbranch_scc1 La0""")
e(smf(aO[1], aVh[1], aS[1]+8, vIdx))
if "--dA" in sys.argv:
    e(f"s_and_b32 s{sT0}, s2, 0x29\ns_cmp_lg_u32 s{sT0}, 0\ns_cbranch_scc1 LdA\ns_sleep 127\ns_sleep 127\nLdA:")
e(f"s_mov_b32 s{sC0}, {f2u(2.0**40):#x}\ns_mov_b32 s{sC1}, {f2u(2.0**126):#x}")
for b in range(2):
    O = aO[b]
    e(f"s_mov_b32 s{sRetry}, 0\nLfin{b}:")
    e(f"""v_rcp_f32 v{O+10}, v{O+8}
    v_max3_f32 v{vT1}, abs(v{O}), abs(v{O+1}), abs(v{O+2})
    v_max3_f32 v{vT1}, v{vT1}, abs(v{O+3}), abs(v{O+4})
    v_max3_f32 v{vT1}, v{vT1}, abs(v{O+5}), abs(v{O+6})
    v_max_f32 v{vT1}, v{vT1}, abs(v{O+7})
    v_cmp_nlt_f32 vcc, v{O+8}, s{sC0}
    v_cmp_nlt_f32 s[{sEx}:{sEx+1}], v{vT1}, s{sC1}""")
    for p in range(8): e(f"v_mul_f32 v{O+p}, v{O+p}, v{O+10}")
    e(f"s_or_b64 vcc, vcc, s[{sEx}:{sEx+1}]")
    for p in range(4): e(f"v_cvt_pk_bf16_f32 v{O+p}, v{O+2*p}, v{O+2*p+1}")
    for p in range(4): e(f"v_min_u32 v{O+p}, -2, v{O+p}")
    e(f"s_cbranch_vccnz Lfallback{b}\nLok{b}:")
    e(f"buffer_store_dwordx4 {vr(O,4)}, v{vL16}, {sr(SWS,4)}, s{sOp if b == 0 else sOp2} offen sc1")
stamp(6)
OSC = " sc1"
gX = [136, 140]; gG = [144, 176]; gR = [8, 40]
e(f"buffer_load_dwordx4 {vr(gX[0],4)}, v{vRa}, {sr(SX,4)}, s{sXf} offen")
e(f"buffer_load_dwordx4 {vr(gX[1],4)}, v{vRa}, {sr(SX,4)}, s{sXf2} offen")
e("s_waitcnt lgkmcnt(0)\ns_setprio 0\ns_barrier\ns_barrier")
stamp(8)
for tt in range(2):
    for q in range(8): e(f"ds_read_b128 {vr(gG[tt]+4*q,4)}, v{vRr} offset:{128*tt+XK*(q//2)+512*(q%2)}")
def sum4(r):
    for p in range(0, 8, 2):
        e(pk("v_pk_add_f32", r+p, [('p', r+p), ('p', r+8+p)]))
        e(pk("v_pk_add_f32", r+16+p, [('p', r+16+p), ('p', r+24+p)]))
    for p in range(0, 8, 2): e(pk("v_pk_add_f32", r+p, [('p', r+p), ('p', r+16+p)]))
for tt in range(2):
    G = gG[tt]
    e(f"s_waitcnt lgkmcnt({8*(1-tt)})")
    for p in range(8): e(f"v_add_f32 v{G+p}, v{G+p}, v{G+8+p}\nv_add_f32 v{G+16+p}, v{G+16+p}, v{G+24+p}")
    for p in range(8): e(f"v_add_f32 v{G+p}, v{G+p}, v{G+16+p}")
    for p in range(8): e(f"v_mul_f32 v{G+8+p}, {f2u(-1.4426950408889634):#x}, v{G+p}")
    for p in range(8): e(f"v_exp_f32 v{G+8+p}, v{G+8+p}")
    for p in range(8): e(f"v_add_f32 v{G+8+p}, 1.0, v{G+8+p}")
    for p in range(8): e(f"v_rcp_f32 v{G+8+p}, v{G+8+p}")
    e("s_waitcnt vmcnt(0)")
    for p in range(4): e(f"v_lshlrev_b32 v{G+16+2*p}, 16, v{gX[tt]+p}\nv_and_b32 v{G+17+2*p}, 0xffff0000, v{gX[tt]+p}")
    for p in range(8): e(f"v_mul_f32 v{G+p}, v{G+p}, v{G+8+p}")
stamp(9)
e("s_barrier")
for tt in range(2):
    for q in range(8): e(f"ds_read_b128 {vr(gR[tt]+4*q,4)}, v{vRr2} offset:{128*tt+XK*(q//2)+512*(q%2)}")
for tt in range(2):
    R = gR[tt]; G = gG[tt]
    e(f"s_waitcnt lgkmcnt({8*(1-tt)})")
    sum4(R)
    for p in range(0, 8, 2): e(pk("v_pk_fma_f32", R+p, [('p', R+p), ('p', G+p), ('p', G+16+p)]))
    for p in range(4): e(f"v_cvt_pk_bf16_f32 v{R+p}, v{R+2*p}, v{R+2*p+1}")
    e(f"buffer_store_dwordx4 {vr(R,4)}, v{vRa}, {sr(SOUT,4)}, s{sXf if tt == 0 else sXf2} offen{OSC}")
def the_end():
    stamp(11)
    if RT: e(f"s_waitcnt vmcnt(0)\ns_memrealtime s[100:101]\ns_waitcnt lgkmcnt(0)\nv_mov_b32 v0, s100\nbuffer_store_dword v0, off, {sr(SWS,4)}, s{sPo} offset:56")
the_end()
e("Lend:\ns_endpgm")

e("LFkv:")
kv_rest("k")
e("LF:")
if FS and not ES: a_sent(True)
tag_wait("f", 0)
e("s_setprio 0\ns_barrier")
flag_set(sHs, "h", 4)
RG = SP + [aslot(n) for n in range(4)]
def u_dma(m):
    srdw, row = (SWO, 64*m) if m < 8 else (SWD, 64*(m-8))
    so = [f"s_add_u32 s{sT0}, s{sDo}, {row*1024}"]
    if m == 29: so += [f"s_cmp_lt_u32 s{sW4}, 2", f"s_cselect_b32 s{sT0}, s{sT0}, s{sDo}"]
    return [f"s_add_u32 m0, s{sDm}, {RG[m % 7]}"] + so + [
            (f"u{m}", f"buffer_load_dwordx4 v{vDa}, {sr(srdw,4)}, s{sT0} offen lds"),
            (f"u{m}", f"buffer_load_dwordx4 v{vDa2}, {sr(srdw,4)}, s{sT0} offen offset:1024 lds")]
def u_reads(m, F):
    a = RG[m % 7]; win = 1 if a >= SP[0] else 0; off = a - win*SP[0]
    r0, r1 = vRd+2*win, vRd+2*win+1
    return tr(F, r0, off) + tr(F+2, r0, off+1024) + tr(F+4, r1, off) + tr(F+6, r1, off+1024)
HR = int(sys.argv[sys.argv.index("--hr")+1]) if "--hr" in sys.argv else 8
def h_loads(s):
    r = []
    if s % 4 == 0: r += [f"s_add_u32 s{sC0}, s{sHo}, {1024*s}", f"s_add_u32 s{sC1}, s{sC0}, {88*1024}"]
    for tt in range(2):
        r.append((f"h{s}", f"buffer_load_dwordx4 {vr(fH+8*(s % HR)+4*tt,4)}, v{vL16}, {sr(SWS,4)}, s{sC0 if tt == 0 else sC1} offen offset:{1024*(s%4)} sc1"))
    return r
for m in range(7): emit_seq(u_dma(m))
for m in range(8):
    e(vwait_s(f"u{m}"))
    for x in u_reads(m, fWo+8*m): e(x)
    e("s_waitcnt lgkmcnt(0)")
    emit_seq(u_dma(m+7))
tstamp(18)
e(flags_issue(sHc))
flags_wait(sHc, "h", 0)
tstamp(19)
for s in range(HR): emit_seq(h_loads(s))
for x in u_reads(8, fWb[0]): e(x)
FB = int(sys.argv[sys.argv.index("--fb")+1]) if "--fb" in sys.argv else 15
for s in range(22):
    m = 8+s; W = fWb[s & 1]
    if s == FB:
        tstamp(20); e("s_barrier\ns_setprio 2"); tstamp(21)
    if s < 21:
        e(vwait_s(f"u{m+1}"))
        for x in u_reads(m+1, fWb[(s+1) & 1]): e(x)
        e("s_waitcnt lgkmcnt(4)")
    else: e("s_waitcnt lgkmcnt(0)")
    if m+7 < 30: emit_seq(u_dma(m+7))
    e(vwait_s(f"h{s}"))
    if s == 21: e(f"s_cmp_ge_u32 s{sW4}, 2\ns_cbranch_scc1 Lskip21")
    for tt in range(2):
        for ch in range(2 if "--nofm" not in sys.argv else 0): e(mfma(fA+32*tt+16*ch, W+4*ch, fH+8*(s % HR)+4*tt, "0" if s == 0 else None))
    if s+HR < 22: emit_seq(h_loads(s+HR))
e("Lskip21:\ns_nop 8")
tstamp(22)
ORD = [7, 6, 5, 4, 3, 2, 1, 0] if M48 else [i ^ (2*JX) for i in [7, 6, 5, 4, 1, 0, 3, 2]]
def o_load(k):
    tt, i = k & 1, k >> 1
    return f"buffer_load_dwordx4 {vr(opos(i)+4*tt,4)}, v{vL16}, {sr(SWS,4)}, s{(sOc, sOc2, sOc3, sOc4)[2*tt+(i>>2)]} offen offset:{1024*(i%4)} sc1"
def opos(i): return fO + 8*ORD.index(i)
zer = [f"v_mov_b64 {vr(fS+r,2)}, 0" for r in range(0, 64, 2)]
for q in range(16):
    e(f"ds_write_b128 v{vRw}, {vr(fA+4*q,4)} offset:{XB*(q//2)+XP*(q%2)}")
    if q >= 4: e(f"s_waitcnt lgkmcnt(4)\n{o_load(2*ORD[(q-4)//2]+(q & 1))}")
e("s_waitcnt lgkmcnt(0)\ns_barrier")
for k in range(12, 16): e(o_load(2*ORD[k//2]+(k & 1)))
tstamp(9)
def o_pair(i, tag, wait):
    B = opos(i)
    if wait is not None: e(f"s_waitcnt vmcnt({wait})")
    else: e(f"s_bitcmp1_b32 s{sSt}, {i}\ns_cbranch_scc0 Lon{tag}{i}")
    e(f"""v_max3_u32 v{vT1}, v{B}, v{B+1}, v{B+2}
    v_max3_u32 v{vT1}, v{vT1}, v{B+3}, v{B+4}
    v_max3_u32 v{vT1}, v{vT1}, v{B+5}, v{B+6}
    v_max_u32 v{vT1}, v{vT1}, v{B+7}
    v_cmp_eq_u32 vcc, s{sT1}, v{vT1}
    s_cbranch_vccnz Lon{tag}{i}
    s_bitset0_b32 s{sSt}, {i}""")
    for tt in range(2):
        for ch in range(2): e(mfma(fS+32*tt+16*ch, fWo+8*i+4*ch, B+4*tt))
    e(f"Lon{tag}{i}:")
def acc_chain(tt, ch): return [mfma(fS+32*tt+16*ch, fWo+8*i+4*ch, opos(i)+4*tt, "0" if n == 0 else None) for n, i in enumerate(ORD)]
def s_wr(tt, ch): return [f"ds_write_b128 v{vRw2+tt}, {vr(fS+32*tt+16*ch+4*q,4)} offset:{XB*(2*ch+q//2)+XP*(q%2)}" for q in range(4)]
e(f"v_mov_b32 v{vT1}, 0")
for n, x in enumerate(acc_chain(0, 0)):
    B = fO+8*n
    e(f"s_waitcnt vmcnt({14-2*n})\n{x}")
    for p in range(0, 8, 2): e(f"v_max3_u32 v{vT1}, v{vT1}, v{B+p}, v{B+p+1}")
e(f"v_cmp_eq_u32 vcc, -1, v{vT1}\ns_cbranch_vccnz Lor0")
c1, c2, c3 = acc_chain(0, 1), acc_chain(1, 0), acc_chain(1, 1)
for prev, c in (((0, 0), c1), ((0, 1), c2), ((1, 0), c3)):
    for x in [c[0], "s_nop 3", c[1], "s_nop 3", c[2]] + interleave(c[3:7], s_wr(*prev)) + c[7:]: e(x)
stamp(7)
e("s_nop 11")
for x in s_wr(1, 1): e(x)
e("Lsd:")
e("s_waitcnt lgkmcnt(0)\ns_barrier")
stamp(10); tflush(); TS.clear()
the_end()
e("s_endpgm")
e(f"Lor0:\ns_nop 8")
for x in zer: e(x)
e(f"s_mov_b32 s{sT0}, 0\ns_mov_b32 s{sSt}, 0xff\ns_mov_b32 s{sT1}, -1\ns_branch Lor2")
e("Lor:\ns_sleep 4")
for i in ORD:
    e(f"s_bitcmp1_b32 s{sSt}, {i}\ns_cbranch_scc0 Lorn{i}\n{o_load(2*i)}\n{o_load(2*i+1)}\nLorn{i}:")
e(f"""s_add_u32 s{sT0}, s{sT0}, 1
s_cmp_ge_u32 s{sT0}, 200000
s_cbranch_scc1 Lod
s_waitcnt vmcnt(0)
Lor2:""")
for i in ORD: o_pair(i, "b", None)
e(f"s_cmp_lg_u32 s{sSt}, 0\ns_cbranch_scc1 Lor\nLod:\ns_nop 6")
for tt in range(2):
    for ch in range(2):
        for x in s_wr(tt, ch): e(x)
e("s_branch Lsd")
for b in range(2):
    S = aS[0]; O = aO[b]; C = aC[b]; Q = aQ[b]
    e(f"""Lfallback{b}:
    s_cmp_lg_u32 s{sRetry}, 0
    s_cbranch_scc1 Lok{b}
    s_mov_b32 s{sRetry}, 1
    s_mov_b32 s{sSt}, 0
    v_mov_b32 v{vT1}, 0xff800000
    s_waitcnt lgkmcnt(0)
    Lfb1{b}:
    buffer_load_dwordx4 {vr(aK[0],4)}, v{vL16}, {sr(SWS,4)}, s{sSt} offen sc1
    s_waitcnt vmcnt(0)""")
    e(mfma(S, aK[0], Q, "0"))
    e("s_nop 11")
    for p in range(0, 16, 2): e(f"v_max3_f32 v{vT1}, v{vT1}, v{S+p}, v{S+p+1}")
    e(f"""s_add_u32 s{sSt}, s{sSt}, {KVT}
    s_cmp_lt_u32 s{sSt}, {64*KVT}
    s_cbranch_scc1 Lfb1{b}
    v_mov_b32 v{vT2}, v{vT1}
    s_nop 1
    v_permlane32_swap_b32 v{vT1}, v{vT2}
    s_nop 1
    v_max_f32 v{vT1}, v{vT1}, v{vT2}""")
    for r in range(16): e(f"v_sub_f32 v{C+r}, 0, v{vT1}")
    for r in range(12): e(f"v_mov_b32 v{O+r}, 0")
    e(f"""v_subrev_u32 v{vT0}, {64*KVT}, v{vAv}
    s_mov_b32 s{sSt}, 0
    Lfb2{b}:
    buffer_load_dwordx4 {vr(aK[0],4)}, v{vL16}, {sr(SWS,4)}, s{sSt} offen sc1
    buffer_load_dwordx4 {vr(aVl[0],4)}, v{vT0}, {sr(SWS,4)}, s{sSt} offen sc1
    buffer_load_dwordx4 {vr(aVh[0],4)}, v{vT0}, {sr(SWS,4)}, s{sSt} offen offset:528 sc1
    s_waitcnt vmcnt(0)""")
    e(mfma(S, aK[0], Q, vr(C, 16)))
    e("s_nop 11")
    for i in range(16): e(f"v_exp_f32 v{S+i}, v{S+i}")
    e("s_nop 1")
    e(smf(O, aVl[0], S, vIdx)); e(smf(O, aVh[0], S+8, vIdx))
    e(f"""s_add_u32 s{sSt}, s{sSt}, {KVT}
    s_cmp_lt_u32 s{sSt}, {64*KVT}
    s_cbranch_scc1 Lfb2{b}
    s_nop 9
    s_branch Lfin{b}""")
e("Lcodeend:")

L += ['.section .rodata,"a"', ".p2align 6", f".amdhsa_kernel {NAME}_kernel",
      "  .amdhsa_next_free_vgpr 256", "  .amdhsa_next_free_sgpr 102", "  .amdhsa_accum_offset 256",
      "  .amdhsa_group_segment_fixed_size 0", "  .amdhsa_kernarg_size 96", "  .amdhsa_user_sgpr_count 2",
      "  .amdhsa_user_sgpr_kernarg_segment_ptr 1", "  .amdhsa_system_sgpr_workgroup_id_x 1", ".end_amdhsa_kernel"]
open(OUT, "w").write("\n".join(L) + "\n")
print("wrote", OUT, len(L), "lines")
```
